```python
import torch

def _softmax(x, axis=-1):
    return torch.softmax(x, dim=axis)
def _gelu(x):
    return torch.nn.functional.gelu(x, approximate="tanh")
def _silu(x):
    return torch.nn.functional.silu(x)
def _sigmoid(x):
    return torch.sigmoid(x)
def _layernorm(x, axis=-1, eps=1e-5):
    m = x.mean(dim=axis, keepdim=True)
    v = x.var(dim=axis, keepdim=True, unbiased=False)
    return (x - m) / torch.sqrt(v + eps)
def _scatter_add(tgt, idx, src, axis=0):
    return tgt.clone().index_add_(axis, idx, src)
def _segment_sum(src, seg, n):
    out = torch.zeros((n,) + src.shape[1:], dtype=src.dtype)
    return out.index_add_(0, seg, src)
def _pad(x, pw):
    flat = tuple(v for pair in reversed(pw) for v in pair)
    return torch.nn.functional.pad(x, flat)

kernel_name = 'sequential_preLN__linear_attn_block__mixer_channel_mlp__prompt'

def setup_inputs():

    _w = (lambda a: (lambda t: t.to(torch.bfloat16) if t.is_floating_point() else t)(torch.as_tensor(a)))
    def _A_setup():
        B, S, D = 1, 2048, 640
        return {
            "x": _w((lambda *s: torch.randn(*s, dtype=torch.bfloat16) * 0.05)(B, S, D)),
            "wqkv": _w((lambda *s: torch.randn(*s, dtype=torch.bfloat16) * 0.1)(D, 3 * D)),
            "wo": _w((lambda *s: torch.randn(*s, dtype=torch.bfloat16) * 0.05)(D, D)),
        }
    _A_in = _A_setup()

    def _B_setup():
        B, S, D, F = 1, 2048, 640, 1728
        return {
            "x": _w((lambda *s: torch.randn(*s, dtype=torch.bfloat16) * 0.05)(B, S, D)),
            "w1": _w((lambda *s: torch.randn(*s, dtype=torch.bfloat16) * 3.2)(D, F) * (D ** -0.5)),
            "b1": _w((lambda *s: torch.randn(*s, dtype=torch.bfloat16) * 0.8)(F)),
            "w2": _w((lambda *s: torch.randn(*s, dtype=torch.bfloat16) * 0.05)(F, D) * (F ** -0.5)),
            "b2": _w((lambda *s: torch.randn(*s, dtype=torch.bfloat16) * 0.05)(D)),
        }
    _B_in = _B_setup()

    return {
        "A_x": _A_in["x"],
        "A_wqkv": _A_in["wqkv"],
        "A_wo": _A_in["wo"],
        "B_x": _B_in["x"],
        "B_w1": _B_in["w1"],
        "B_b1": _B_in["b1"],
        "B_w2": _B_in["w2"],
        "B_b2": _B_in["b2"],
    }

def reference(A_x, A_wqkv, A_wo, B_x, B_w1, B_b1, B_w2, B_b2):
    def _A_ref(x, wqkv, wo):
        B, S, D = x.shape
        H = 32; Dh = D // H
        qkv = (lambda x, *d: x.permute(*d))((x @ wqkv).reshape(B, S, 3, H, Dh), 2, 0, 3, 1, 4)
        q, k, v = qkv[0], qkv[1], qkv[2]
        phi = lambda t: torch.where(t > 0, t + 1, torch.exp(t)) + 1e-6
        pq, pk = phi(q), phi(k)
        kv = torch.einsum("bhsd,bhse->bhde", pk, v)
        z = torch.einsum("bhsd->bhd", pk)
        num = torch.einsum("bhqd,bhde->bhqe", pq, kv)
        den = torch.einsum("bhqd,bhd->bhq", pq, z)[..., None] + 1e-6
        o = num / den
        return (lambda x, *d: x.permute(*d))(o, 0, 2, 1, 3).reshape(B, S, D) @ wo

    def _B_ref(x, w1, b1, w2, b2):
        y = _layernorm(x, axis=-1)
        h = _gelu(torch.einsum("bsd,df->bsf", y, w1) + b1)
        return torch.einsum("bsf,fd->bsd", h, w2) + b2

    x = A_x
    h = x + _A_ref(_layernorm(x, axis=-1), A_wqkv, A_wo)
    h2 = h + _B_ref(_layernorm(h, axis=-1), B_w1, B_b1, B_w2, B_b2)
    return h2
```

```python
import re

def R(n, cnt=1):
    p = 'v'
    if n >= 256:
        p = 'a'; n -= 256
    if cnt == 1:
        return f"{p}{n}"
    return f"{p}[{n}:{n+cnt-1}]"

def S(n, cnt=1):
    if cnt == 1:
        return f"s{n}"
    return f"s[{n}:{n+cnt-1}]"

_reg_re = re.compile(r'^(-|\|)?(abs\()?([vas])(\d+|\[(\d+):(\d+)\])\)?\|?$')

def parse_reg(tok):
    tok = tok.strip()
    if tok in ('vcc', 'exec'):
        return [(tok, 0), (tok, 1)]
    if tok in ('vcc_lo', 'exec_lo'):
        return [(tok[:-3], 0)]
    if tok in ('vcc_hi', 'exec_hi'):
        return [(tok[:-3], 1)]
    if tok == 'm0':
        return [('m0', 0)]
    m = _reg_re.match(tok)
    if not m:
        return []
    k = m.group(3)
    if m.group(5) is not None:
        return [(k, i) for i in range(int(m.group(5)), int(m.group(6)) + 1)]
    return [(k, int(m.group(4)))]

TRANS = ('v_exp_f32', 'v_log_f32', 'v_rcp_f32', 'v_rsq_f32', 'v_sqrt_f32', 'v_sin_f32', 'v_cos_f32', 'v_rcp_iflag_f32')

class Ins:
    __slots__ = ('text', 'op', 'ops', 'rd', 'wr', 'cls', 'srcc', 'srcab', 'ws', 'sdata', 'isdpp', 'islds_dma', 'sg_rd')
    def __init__(self, text):
        self.text = text
        t = text.split(';')[0].strip()
        parts = t.split(None, 1)
        self.op = parts[0]
        rest = parts[1] if len(parts) > 1 else ''
        ops = []; cur = ''; depth = 0
        for ch in rest:
            if ch in '[(': depth += 1
            if ch in '])': depth -= 1
            if ch == ',' and depth == 0:
                ops.append(cur.strip()); cur = ''
            else:
                cur += ch
        if cur.strip(): ops.append(cur.strip())
        mods = ''
        if ops:
            l = ops[-1].split(None, 1)
            ops[-1] = l[0]
            mods = l[1] if len(l) > 1 else ''
        self.ops = ops
        op = self.op
        base = re.sub(r'_(e32|e64|dpp|sdwa)$', '', op)
        self.rd = set(); self.wr = set(); self.srcc = set(); self.srcab = set(); self.sdata = set()
        self.isdpp = op.endswith('_dpp') or 'quad_perm' in mods or 'row_' in mods
        self.islds_dma = False
        self.ws = 1
        P = [parse_reg(o) for o in ops]
        if op == 's_nop':
            self.cls = 'nop'; self.ws = int(ops[0], 0) + 1
        elif op.startswith('v_mfma'):
            self.cls = 'mfma'
            self.wr = set(P[0]); self.srcab = set(P[1]) | set(P[2]); self.srcc = set(P[3]); self.rd = self.srcab | self.srcc
        elif op.startswith('v_'):
            self.cls = 'valu'
            if base in TRANS: self.cls = 'trans'
            if base.startswith('v_dot2'): self.cls = 'dot'
            if base.startswith('v_cmp'):
                self.wr = set(P[0])
                for p in P[1:]: self.rd |= set(p)
            elif base in ('v_permlane32_swap_b32', 'v_permlane16_swap_b32'):
                self.cls = 'perm'
                self.wr = set(P[0]) | set(P[1]); self.rd = set(self.wr)
            elif base in ('v_add_co_u32', 'v_sub_co_u32', 'v_addc_co_u32', 'v_subb_co_u32'):
                self.wr = set(P[0]) | set(P[1])
                for p in P[2:]: self.rd |= set(p)
            else:
                self.wr = set(P[0])
                for p in P[1:]: self.rd |= set(p)
                if base in ('v_fmac_f32', 'v_dot2c_f32_bf16', 'v_pk_fmac_f16'):
                    self.rd |= set(P[0])
                if base in ('v_readfirstlane_b32', 'v_readlane_b32'):
                    self.cls = 'rdlane'
                if self.cls == 'dot':
                    if base == 'v_dot2c_f32_bf16':
                        self.srcc = set(P[0]); self.srcab = set(P[1]) | set(P[2])
                    else:
                        self.srcc = set(P[3]); self.srcab = set(P[1]) | set(P[2])
        elif op.startswith('ds_'):
            self.cls = 'ds'
            if op.startswith('ds_read') or op.startswith('ds_bpermute') or op.startswith('ds_swizzle') or op.startswith('ds_permute'):
                self.wr = set(P[0])
                for p in P[1:]: self.rd |= set(p)
            else:
                for p in P: self.rd |= set(p)
        elif op.startswith('buffer_') or op.startswith('global_'):
            self.cls = 'vmem'
            is_lds = (' lds' in (' ' + mods)) or op.startswith('global_load_lds')
            if is_lds:
                self.islds_dma = True
                for p in P: self.rd |= set(p)
                self.rd.add(('m0', 0))
            elif '_load' in op:
                self.wr = set(P[0])
                for p in P[1:]: self.rd |= set(p)
            elif '_store' in op or '_atomic' in op:
                for p in P: self.rd |= set(p)
                if op.endswith('x4') or op.endswith('x3'):
                    self.sdata = set(P[0]) if op.startswith('buffer_') else set(P[1])
                if '_atomic' in op and 'sc0' in mods:
                    self.wr = set(P[0])
            else:
                pass
        elif op.startswith('s_'):
            self.cls = 'salu'
            if op.startswith('s_cmp') or op.startswith('s_cbranch') or op in ('s_branch', 's_barrier', 's_waitcnt', 's_endpgm', 's_sleep', 's_setprio', 's_bitcmp1_b32', 's_bitcmp0_b32'):
                for p in P: self.rd |= set(p)
            else:
                if P: self.wr = set(P[0])
                for p in P[1:]: self.rd |= set(p)
                if 'saveexec' in op:
                    self.wr |= {('exec', 0), ('exec', 1)}
        else:
            raise ValueError("unknown op " + text)

VALUISH = ('valu', 'trans', 'dot', 'perm', 'rdlane')

def need(prod, cons):
    n = 0
    pv = {r for r in prod.wr if r[0] in 'va' and len(r[0]) == 1}
    ps = {r for r in prod.wr if r[0] in ('s', 'vcc', 'exec')}
    if prod.cls in VALUISH:
        if cons.cls == 'mfma' and pv & cons.rd:
            n = max(n, 3 if prod.cls == 'dot' else 2)
        if cons.cls == 'mfma' and (('exec', 0) in prod.wr or ('exec', 1) in prod.wr): n = max(n, 4)
        if prod.cls == 'trans' and cons.cls in VALUISH and cons.cls != 'trans' and pv & cons.rd: n = max(n, 1)
        if prod.cls == 'trans' and cons.cls == 'trans' and pv & cons.rd: n = max(n, 1)
        if cons.cls in VALUISH and ps & cons.rd: n = max(n, 4 if cons.cls == 'rdlane' else 2)
        if cons.cls == 'vmem' and ps & cons.rd: n = max(n, 5)
        if cons.cls == 'rdlane' and pv & cons.rd: n = max(n, 1)
        if cons.isdpp and cons.cls in VALUISH and pv & cons.rd: n = max(n, 2)
        if cons.cls == 'perm' and pv & cons.rd: n = max(n, 2)
        if prod.cls == 'dot':
            if cons.cls == 'dot' and cons.op == prod.op:
                if pv & cons.srcab: n = max(n, 3)
            elif pv & (cons.rd | cons.wr): n = max(n, 3)
    if prod.cls == 'mfma':
        big = '32x32' in prod.op
        if cons.cls == 'mfma':
            if pv & cons.srcab: n = max(n, 12 if big else 8)
            if pv & cons.srcc:
                if not (cons.srcc == pv and cons.op == prod.op): n = max(n, 10 if big else 6)
            elif pv & cons.wr:
                n = max(n, 12 if big else 8)
        elif cons.cls in VALUISH or cons.cls in ('ds', 'vmem'):
            if pv & (cons.rd | cons.wr): n = max(n, 12 if big else 8)
        if cons.cls in VALUISH and prod.srcc & cons.wr: n = max(n, 7 if big else 3)
    if prod.cls == 'mfma' and cons.op.startswith('v_pk_'): n = max(n, 10)
    if prod.op.startswith('v_pk_') and cons.cls == 'mfma': n = max(n, 4)
    if prod.op.startswith('v_pk_') and (cons.cls in VALUISH or cons.cls in ('vmem', 'ds')) and pv & cons.rd: n = max(n, 1)
    if prod.cls == 'salu' and ('m0', 0) in prod.wr and cons.islds_dma: n = max(n, 1)
    if prod.cls == 'vmem' and prod.sdata and prod.sdata & cons.wr:
        n = max(n, 2)
    return n

class Asm:
    def __init__(self):
        self.items = []
    def __call__(self, text):
        for line in text.split('\n'):
            line = line.strip()
            if not line: continue
            if line.endswith(':') or line.startswith('.') or line.startswith(';'):
                self.items.append(line)
            else:
                self.items.append(Ins(line))
    def raw(self, text):
        self.items.append(text)
    def finish(self):
        out = []
        hist = []
        for it in self.items:
            if isinstance(it, str):
                out.append(it)
                continue
            req = 0; dist = 0
            for p in reversed(hist):
                if dist >= 20: break
                n = need(p, it)
                if n > dist: req = max(req, n - dist)
                dist += p.ws
            while req > 0:
                k = min(req, 16)
                nop = Ins(f"s_nop {k-1}")
                out.append("    " + nop.text); hist.append(nop); req -= k
            out.append("    " + it.text); hist.append(it)
            if len(hist) > 40: hist = hist[-40:]
        return "\n".join(out) + "\n"
```

```python
import sys, struct
from asmdsl import Asm, R, S

WOP = 0
W2P = WOP + 8*20*5*1024
W1P = W2P + 8*54*5*1024
PART = W1P + 16*20*7*1024
PQ = PART + 256*4096
OB = PQ + 256*12288
HB = OB + 2621440
HID = HB + 2621440
WS_END = HID + 128*54*1024
LOG2E = 1.4426950408889634

def f2u(x): return struct.unpack('<I', struct.pack('<f', x))[0]
def hx(x): return hex(f2u(x))

A0 = 256

PAIRS = [(0,2),(0,3),(1,2),(1,3),(1,4),(2,3),(2,4),(0,-1),(1,-1),(2,-1)]
def build_tables():
    ent = []
    idx = {}
    for p,(ta,tb) in enumerate(PAIRS):
        for lane in range(64):
            i, g = lane & 15, lane >> 4
            d0 = 16*ta + 4*g
            if d0 >= 40: continue
            if tb < 0:
                if i != 0: continue
                idx[('z', d0)] = len(ent); ent.append((p, lane))
            else:
                e = 16*tb + i - 40
                if e < 0 or e >= 40: continue
                if (e // 20) != (d0 // 20): continue
                idx[('kv', d0, e)] = len(ent); ent.append((p, lane))
    assert len(ent) == 210
    T1 = [p*1024 + lane*16 for p, lane in ent] + [0]*(256-len(ent))
    T2 = []
    for lane in range(64):
        i, g = lane & 15, lane >> 4
        row = []
        for E in range(4):
            for ta in range(3):
                d0 = 16*ta + 4*g
                n = 255
                if d0 < 40:
                    if E < 3:
                        e = [8*(i>>2)+(i&3), 8*(i>>2)+4+(i&3), 32+i if i < 8 else -1][E]
                        if e >= 0 and e//20 == d0//20: n = idx[('kv', d0, e)]
                    else:
                        if (i & 1) == d0//20: n = idx[('z', d0)]
                row.append(n*8)
        T2.append(row + [0]*4)
    return T1, T2

def prologue(a, name, code_bytes=0):
    a.raw(f".globl {name}\n.p2align 8\n.type {name},@function\n{name}:")
    a(f"s_cmp_ge_u32 s2, 256")
    a(f"s_cbranch_scc1 L_{name}_end")
    a("s_load_dwordx16 s[4:19], s[0:1], 0")
    a("s_load_dwordx4 s[20:23], s[0:1], 64")
    a("s_load_dwordx2 s[24:25], s[0:1], 80")
    a("s_getpc_b64 s[30:31]")
    a(f"L_{name}_pc:")
    a("v_lshrrev_b32 v2, 6, v0")
    a("v_and_b32 v1, 63, v0")
    a("v_readfirstlane_b32 s28, v2")
    a("s_and_b32 s3, s2, 7")
    a("s_lshr_b32 s27, s2, 3")
    a("s_lshr_b32 s26, s27, 4")
    a("s_lshl_b32 s3, s3, 1")
    a("s_add_u32 s26, s26, s3")
    a("s_and_b32 s27, s27, 15")
    n = (code_bytes + 4095) // 4096
    if n:
        a("v_lshlrev_b32 v3, 4, v0")
        for i in range(n):
            a(f"global_load_dwordx4 v[4:7], v3, s[30:31]")
            if i + 1 < n: a("v_add_u32 v3, 4096, v3")
    return n

def srd(a, d, ptr, nbytes):
    a(f"s_mov_b32 s{d}, s{ptr}")
    a(f"s_and_b32 s{d+1}, s{ptr+1}, 0xffff")
    a(f"s_mov_b32 s{d+2}, {nbytes}")
    a(f"s_mov_b32 s{d+3}, 0x20000")

def epilogue(a, name):
    a(f"L_{name}_end:")
    a("s_endpgm")

def desc(name, vgpr=512, accum=256, sgpr=96):
    return f""".amdhsa_kernel {name}
  .amdhsa_next_free_vgpr {vgpr}
  .amdhsa_next_free_sgpr {sgpr}
  .amdhsa_accum_offset {accum}
  .amdhsa_group_segment_fixed_size 0
  .amdhsa_kernarg_size 88
  .amdhsa_user_sgpr_count 2
  .amdhsa_user_sgpr_kernarg_segment_ptr 1
  .amdhsa_system_sgpr_workgroup_id_x 1
.end_amdhsa_kernel"""

def divmod_const(a, q, rem, n, d, tmp=None):
    mag = (65536 + d - 1) // d
    assert all((x*mag) >> 16 == x // d for x in range(1024))
    a(f"v_mul_u32_u24 {q}, {mag}, {n}")
    a(f"v_lshrrev_b32 {q}, 16, {q}")
    a(f"v_mul_u32_u24 {rem}, {d}, {q}")
    a(f"v_sub_u32 {rem}, {n}, {rem}")

def phi(a, val, t1, t2):
    a(f"v_mul_f32 {t1}, s60, {val}")
    a(f"v_max_f32 {t2}, 0, {val}")
    a(f"v_exp_f32_e64 {t1}, {t1} clamp")
    a(f"v_add_f32 {t2}, s61, {t2}")
    a(f"v_add_f32 {val}, {t1}, {t2}")

def gen_k1(a, code_bytes):
    name = "k1_kernel"
    npre = prologue(a, name, code_bytes)
    BQ = 102400; SCR = 153600
    vXA = [8, 9, 10, 11]; vW = [12, 13]; vRd = [14, 15]; vBA = [16, 17, 18, 19, 20]; vTB = [21, 22]; vTQ = 23
    vT1 = 24; vtmp = [25, 26, 27, 28, 29, 30, 31]
    ACC = 32
    STS = 92
    RAW = 96
    XF = A0
    BF = A0 + 160
    ONES = A0 + 200
    vS = [92, 93, 94, 95]; vQ = [2, 3, 25, 26]
    t0, t1, t2, t3 = "v27", "v28", "v29", "v30"
    a("v_lshrrev_b32 v27, 3, v1")
    a("v_and_b32 v28, 7, v1")
    a("v_mul_u32_u24 v29, 1280, v27")
    a(f"v_lshl_add_u32 v{vXA[0]}, v28, 4, v29")
    for rg in range(1, 4):
        a(f"v_add_u32 v{vXA[rg]}, {10240*rg}, v{vXA[0]}")
    a("s_lshl_b32 s3, s28, 11")
    a(f"s_add_u32 s48, s3, {SCR}")
    a("v_lshrrev_b32 v29, 1, v27")
    a("v_xor_b32 v29, v29, v28")
    a("v_lshlrev_b32 v29, 4, v29")
    a("v_lshl_add_u32 v29, v27, 7, v29")
    a(f"v_add_u32 v{vW[0]}, s48, v29")
    a(f"v_xor_b32 v29, 64, v29")
    a(f"v_add_u32 v29, 1024, v29")
    a(f"v_add_u32 v{vW[1]}, s48, v29")
    a("v_and_b32 v27, 15, v1")
    a("v_lshrrev_b32 v28, 4, v1")
    a("v_lshrrev_b32 v29, 1, v27")
    a("v_xor_b32 v29, v29, v28")
    a("v_lshlrev_b32 v29, 4, v29")
    a("v_lshl_add_u32 v29, v27, 7, v29")
    a(f"v_add_u32 v{vRd[0]}, s48, v29")
    a(f"v_xor_b32 v29, 64, v29")
    a(f"v_add_u32 v{vRd[1]}, s48, v29")
    for i in range(5):
        a(f"v_add_u32 v27, {64*i}, v1")
        divmod_const(a, "v28", "v29", "v27", 10)
        a("v_and_b32 v30, 0x13, v28")
        a("v_bfe_u32 v27, v28, 2, 1")
        a("v_lshl_add_u32 v30, v27, 3, v30")
        a("v_bfe_u32 v27, v28, 3, 1")
        a("v_lshl_add_u32 v30, v27, 2, v30")
        a("v_mul_u32_u24 v30, 3840, v30")
        a("v_lshl_add_u32 v30, v29, 4, v30")
        a("v_cmp_lt_u32 vcc, 4, v29")
        a("v_add_u32 v27, 1200, v30")
        a(f"v_cndmask_b32 v{vBA[i]}, v30, v27, vcc")
    a("v_lshrrev_b32 v27, 5, v1")
    a("v_bfe_u32 v28, v1, 4, 1")
    a("v_bfe_u32 v29, v1, 2, 2")
    a("v_lshl_add_u32 v29, v28, 2, v29")
    a("v_lshl_add_u32 v30, v27, 4, v29")
    a("v_mul_u32_u24 v30, 160, v30")
    a("v_and_b32 v28, 3, v1")
    a(f"v_lshl_add_u32 v{vTB[0]}, v28, 3, v30")
    a(f"v_add_u32 v{vTB[1]}, 61440, v{vTB[0]}")
    a("v_lshlrev_b32 v29, 1, v29")
    a("v_lshl_add_u32 v30, v27, 4, v29")
    a("v_mul_u32_u24 v30, 80, v30")
    a("v_lshl_add_u32 v30, v28, 3, v30")
    a(f"v_add_u32 v{vTQ}, {BQ}, v30")
    a("v_mov_b32 v27, 0x3f803f80")
    for i in range(4): a(f"v_accvgpr_write_b32 {R(ONES+i)}, v27")
    a("s_mov_b32 s62, 0x3f803f80")
    a(f"s_mov_b32 s60, {hx(LOG2E)}")
    a(f"s_mov_b32 s61, {hx(1e-6)}")
    for r_ in vS + vQ: a(f"v_mov_b32 v{r_}, 0")
    a("s_waitcnt lgkmcnt(0)")
    srd(a, 32, 4, 2621440); srd(a, 36, 6, 2457600); srd(a, 40, 24, WS_END)
    a("s_lshl_b32 s49, s26, 7"); a("s_lshl_b32 s3, s28, 5"); a("s_add_u32 s49, s49, s3"); a("s_mul_i32 s49, s49, 1280")
    a("s_mul_i32 s50, s28, 122880"); a("s_mul_i32 s51, s27, 80"); a("s_add_u32 s50, s50, s51"); a("s_add_u32 s50, s50, 1280")
    a("s_mul_i32 s52, s28, 5120")
    def raw(cx, rg): return RAW + (cx*4 + rg)*4
    issued = npre
    for j in range(5):
        for cx in (2*j, 2*j+1):
            for rg in range(4):
                a(f"buffer_load_dwordx4 {R(raw(cx, rg), 4)}, v{vXA[rg]}, s[32:35], s49 offen offset:{128*cx}")
        for i in range(5):
            a(f"s_add_u32 m0, s52, {j*20480 + i*1024}")
            a(f"buffer_load_dwordx4 v{vBA[i]}, s[36:39], s50 offen lds")
        a(f"s_add_u32 s50, s50, {128*3840}")
        issued += 13
    a("v_lshlrev_b32 v27, 1, v0")
    a(f"s_add_u32 s54, s30, T1_tab-L_{name}_pc"); a("s_addc_u32 s55, s31, 0")
    for i in range(5):
        a(f"v_add_u32 v31, {64*i}, v1")
        divmod_const(a, "v28", "v29", "v31", 5)
        a("v_and_b32 v30, 0x30, v28")
        a("v_bfe_u32 v31, v28, 1, 2")
        a("v_add_u32 v30, v30, v31")
        a("v_and_b32 v31, 1, v28")
        a("v_lshl_add_u32 v30, v31, 2, v30")
        a("v_and_b32 v31, 8, v28")
        a("v_add_u32 v30, v30, v31")
        a("v_mul_u32_u24 v30, 3840, v30")
        a(f"v_lshl_add_u32 v{vBA[i]}, v29, 4, v30")
    def xf(tt, k): return XF + (tt*20 + k)*4
    def acc(tt, t): return ACC + (tt*5 + t)*4
    def cs(t): return ACC + 40 + 4*t
    def trreads(k, st):
        for t in range(5):
            for h in range(2):
                b = vTB[0] if k < 12 else vTB[1]
                off = (k*5120 if k < 12 else k*5120 - 61440) + h*1280 + t*32
                a(f"ds_read_b64_tr_b16 {R(BF + st*20 + t*4 + h*2, 2)}, v{b} offset:{off}")
    extra = 0
    for j in range(5):
        done = npre + 13*(j+1)
        a(f"s_waitcnt vmcnt({issued - done})")
        a("s_barrier")
        if j == 1:
            a(f"global_load_ushort v{vT1}, v27, s[54:55]")
            a("s_mul_i32 s50, s28, 245760"); a("s_add_u32 s50, s50, s51")
            a(f"s_add_u32 s53, s52, {BQ}")
            for gq in range(2):
                for i in range(5):
                    a(f"s_add_u32 m0, s53, {gq*20480 + i*1024}")
                    a(f"buffer_load_dwordx4 v{vBA[i]}, s[36:39], s50 offen lds")
                a(f"s_add_u32 s50, s50, {256*3840}")
            issued += 11
        for cx in (2*j, 2*j+1):
            for tt in range(2):
                a(f"ds_write_b128 v{vW[0]}, {R(raw(cx, 2*tt), 4)}")
                a(f"ds_write_b128 v{vW[1]}, {R(raw(cx, 2*tt+1), 4)}")
                a(f"ds_read_b128 {R(xf(tt, 2*cx), 4)}, v{vRd[0]}")
                a(f"ds_read_b128 {R(xf(tt, 2*cx+1), 4)}, v{vRd[1]}")
        trreads(4*j, 0)
        dots = []
        for cx in (2*j, 2*j+1):
            for e in range(4):
                for rg in range(4):
                    r_ = raw(cx, rg) + e
                    dots.append(f"v_dot2_f32_bf16 v{vS[rg]}, v{r_}, s62, v{vS[rg]}")
                    dots.append(f"v_dot2_f32_bf16 v{vQ[rg]}, v{r_}, v{r_}, v{vQ[rg]}")
        for kk in range(4):
            k = 4*j + kk; st = kk & 1
            if kk < 3:
                trreads(k+1, st ^ 1)
                a("s_waitcnt lgkmcnt(10)")
            else:
                a("s_waitcnt lgkmcnt(0)")
            for t in range(5):
                b = R(BF + st*20 + t*4, 4)
                for tt in range(2):
                    c_ = "0" if k == 0 else R(acc(tt, t), 4)
                    a(f"v_mfma_f32_16x16x32_bf16 {R(acc(tt, t), 4)}, {R(xf(tt, k), 4)}, {b}, {c_}")
                    a(dots.pop(0))
                c_ = "0" if k == 0 else R(cs(t), 4)
                a(f"v_mfma_f32_16x16x32_bf16 {R(cs(t), 4)}, {R(ONES, 4)}, {b}, {c_}")
                a(dots.pop(0))
            a(dots.pop(0))
        assert not dots
    a("s_cmp_ge_u32 s28, 2")
    a("s_cbranch_scc1 L_k1_noq3")
    for i in range(5):
        a(f"s_add_u32 m0, s53, {2*20480 + i*1024}")
        a(f"buffer_load_dwordx4 v{vBA[i]}, s[36:39], s50 offen lds")
    a("L_k1_noq3:")
    a("s_nop 4")
    for r_ in vS + vQ:
        a(f"v_add_f32_dpp v{r_}, v{r_}, v{r_} quad_perm:[1,0,3,2] row_mask:0xf bank_mask:0xf")
    for r_ in vS + vQ:
        a(f"v_add_f32_dpp v{r_}, v{r_}, v{r_} quad_perm:[2,3,0,1] row_mask:0xf bank_mask:0xf")
    for r_ in vS + vQ:
        a(f"v_add_f32_dpp v{r_}, v{r_}, v{r_} row_half_mirror row_mask:0xf bank_mask:0xf")
    a(f"s_mov_b32 s63, {hx(1.0/640)}")
    a(f"s_mov_b32 s64, {hx(1e-5)}")
    a("v_lshrrev_b32 v27, 3, v1")
    a("v_lshlrev_b32 v27, 2, v27")
    a("v_add_u32 v27, s48, v27")
    for rg in range(4):
        s_, q_ = f"v{vS[rg]}", f"v{vQ[rg]}"
        a(f"v_mul_f32 {s_}, s63, {s_}")
        a(f"v_mul_f32 {q_}, s63, {q_}")
        a(f"v_fma_f32 {q_}, -{s_}, {s_}, {q_}")
        a(f"v_max_f32 {q_}, 0, {q_}")
        a(f"v_add_f32 {q_}, s64, {q_}")
        a(f"v_rsq_f32 {q_}, {q_}")
        a(f"v_mul_f32 {s_}, {s_}, {q_}")
        a(f"ds_write_b32 v27, {q_} offset:{32*rg}")
        a(f"ds_write_b32 v27, {s_} offset:{128 + 32*rg}")
    RS = 96; MS = 104; RT = 112; MT = 114
    a("v_lshrrev_b32 v28, 4, v1")
    a("v_lshlrev_b32 v28, 4, v28")
    a("v_add_u32 v28, s48, v28")
    a("v_and_b32 v29, 15, v1")
    a("v_cmp_gt_u32 s[66:67], 8, v29")
    a("v_lshlrev_b32 v29, 2, v29")
    a("v_add_u32 v29, s48, v29")
    for tt in range(2):
        a(f"ds_read_b128 {R(RS + 4*tt, 4)}, v28 offset:{64*tt}")
        a(f"ds_read_b128 {R(MS + 4*tt, 4)}, v28 offset:{128 + 64*tt}")
        a(f"ds_read_b32 v{RT + tt}, v29 offset:{64*tt}")
        a(f"ds_read_b32 v{MT + tt}, v29 offset:{128 + 64*tt}")
    a("s_waitcnt lgkmcnt(0)")
    OP = 120
    for t in range(5):
        for tt in range(2):
            for r_ in range(4):
                v_ = f"v{acc(tt, t) + r_}"
                a(f"v_mul_f32 {t0}, v{MS + 4*tt + r_}, v{cs(t)}")
                a(f"v_fma_f32 {v_}, {v_}, v{RS + 4*tt + r_}, -{t0}")
                if t < 2:
                    phi(a, v_, t1, t2)
                elif t == 2:
                    a(f"v_mov_b32 {t3}, {v_}")
                    phi(a, t3, t1, t2)
                    a(f"v_cndmask_b32 {v_}, {v_}, {t3}, s[66:67]")
            for h in range(2):
                a(f"v_cvt_pk_bf16_f32 v{OP + 4*t + 2*tt + h}, v{acc(tt, t) + 2*h}, v{acc(tt, t) + 2*h + 1}")
    KVD = 144
    for p, (ta, tb) in enumerate(PAIRS):
        b = R(ONES, 4) if tb < 0 else R(OP + 4*tb, 4)
        a(f"v_mfma_f32_16x16x32_bf16 {R(KVD + 4*p, 4)}, {R(OP + 4*ta, 4)}, {b}, 0")
    a("s_mul_i32 s3, s28, 10240")
    a("v_lshlrev_b32 v27, 4, v1")
    a("v_add_u32 v27, s3, v27")
    for p in range(10):
        a(f"ds_write_b128 v27, {R(KVD + 4*p, 4)} offset:{1024*p}")
    a("s_waitcnt vmcnt(0) lgkmcnt(0)")
    a("s_barrier")
    RP = 40960
    a("s_lshl_b32 s70, s2, 2"); a("s_add_u32 s70, s70, s28")
    a(f"s_mul_i32 s71, s28, 7168"); a(f"s_add_u32 s71, s71, {RP}")
    srd(a, 44, 12, 2211840)
    a("s_mov_b32 s72, 0")
    a("s_mov_b32 s73, 0"); a("s_mov_b32 s74, 0")
    a("s_cmp_ge_u32 s70, 912"); a("s_cbranch_scc1 L_k1_rp_issued")
    a("s_cmp_ge_u32 s70, 320"); a("s_cbranch_scc1 L_k1_rp5")
    a("s_mov_b32 s72, 1")
    a("s_mul_i32 s75, s70, 3277"); a("s_lshr_b32 s75, s75, 16")
    a("s_mul_i32 s76, s75, 20"); a("s_sub_u32 s76, s70, s76")
    a("s_mul_i32 s75, s75, 27"); a("s_lshr_b32 s75, s75, 2"); a("s_lshl_b32 s75, s75, 5")
    a("s_mul_i32 s76, s76, 110592"); a("s_add_u32 s73, s75, s76")
    a("s_mul_i32 s74, s70, 7168"); a(f"s_add_u32 s74, s74, {W1P}")
    for i in range(7):
        a(f"v_add_u32 v27, {64*i}, v1")
        divmod_const(a, "v28", "v29", "v27", 14)
        a("v_mul_u32_u24 v28, 3456, v28")
        a("v_lshl_add_u32 v28, v29, 4, v28")
        a(f"s_add_u32 m0, s71, {1024*i}")
        a(f"buffer_load_dwordx4 v28, s[44:47], s73 offen lds")
    a("s_branch L_k1_rp_issued")
    a("L_k1_rp5:")
    a("s_mov_b32 s72, 2")
    a("s_cmp_ge_u32 s70, 752"); a("s_cbranch_scc1 L_k1_rpwo")
    srd(a, 44, 16, 2211840)
    a("s_sub_u32 s70, s70, 320")
    a("s_mul_i32 s75, s70, 1214"); a("s_lshr_b32 s75, s75, 16")
    a("s_mul_i32 s76, s75, 54"); a("s_sub_u32 s76, s70, s76")
    a("s_mul_i32 s74, s70, 5120"); a(f"s_add_u32 s74, s74, {W2P}")
    a("s_branch L_k1_rp5b")
    a("L_k1_rpwo:")
    srd(a, 44, 8, 819200)
    a("s_sub_u32 s70, s70, 752")
    a("s_mul_i32 s75, s70, 3277"); a("s_lshr_b32 s75, s75, 16")
    a("s_mul_i32 s76, s75, 20"); a("s_sub_u32 s76, s70, s76")
    a("s_mul_i32 s74, s70, 5120"); a(f"s_add_u32 s74, s74, {WOP}")
    a("L_k1_rp5b:")
    a("s_mul_i32 s75, s75, 160"); a("s_mul_i32 s76, s76, 40960"); a("s_add_u32 s73, s75, s76")
    for i in range(5):
        a(f"v_add_u32 v27, {64*i}, v1")
        divmod_const(a, "v28", "v29", "v27", 10)
        a("v_mul_u32_u24 v28, 1280, v28")
        a("v_lshl_add_u32 v28, v29, 4, v28")
        a(f"s_add_u32 m0, s71, {1024*i}")
        a(f"buffer_load_dwordx4 v28, s[44:47], s73 offen lds")
    a("L_k1_rp_issued:")
    assert all(((u*3277) >> 16) == u//20 for u in range(320)) and all(((u*1214) >> 16) == u//54 for u in range(432))
    for w in range(4):
        a(f"ds_read_b128 {R(KVD + 4*w, 4)}, v{vT1} offset:{10240*w}")
    a("s_lshl_b32 s3, s27, 4"); a("s_add_u32 s3, s3, s26"); a("s_lshl_b32 s3, s3, 12"); a(f"s_add_u32 s3, s3, {PART}")
    a("v_lshlrev_b32 v27, 4, v0")
    a("s_waitcnt lgkmcnt(0)")
    for e in range(4):
        a(f"v_add_f32 v{KVD+e}, v{KVD+e}, v{KVD+4+e}")
        a(f"v_add_f32 v{KVD+8+e}, v{KVD+8+e}, v{KVD+12+e}")
    for e in range(4):
        a(f"v_add_f32 v{KVD+e}, v{KVD+e}, v{KVD+8+e}")
    a(f"buffer_store_dwordx4 {R(KVD, 4)}, v27, s[40:43], s3 offen")
    QA = 32
    def qreads(k, st):
        for t in range(3):
            for h in range(2):
                a(f"ds_read_b64_tr_b16 {R(BF + st*20 + t*4 + h*2, 2)}, v{vTQ} offset:{k*2560 + h*80 + t*32}")
    qreads(0, 0)
    for k in range(20):
        st = k & 1
        if k < 19:
            qreads(k+1, st ^ 1); a("s_waitcnt lgkmcnt(6)")
        else:
            a("s_waitcnt lgkmcnt(0)")
        for t in range(3):
            b = R(BF + st*20 + t*4, 4)
            for tt in range(2):
                d = R(QA + (tt*3+t)*4, 4)
                a(f"v_mfma_f32_16x16x32_bf16 {d}, {b}, {R(xf(tt, k), 4)}, {'0' if k == 0 else d}")
            d = R(QA + 24 + 4*t, 4)
            a(f"v_mfma_f32_16x16x32_bf16 {d}, {b}, {R(ONES, 4)}, {'0' if k == 0 else d}")
    PQR = 120
    a("v_cmp_gt_u32 s[66:67], 32, v1")
    for tt in range(2):
        for t in range(3):
            for r_ in range(4):
                v_ = f"v{QA + (tt*3+t)*4 + r_}"
                a(f"v_mul_f32 {t0}, v{MT + tt}, v{QA + 24 + 4*t + r_}")
                a(f"v_fma_f32 {v_}, {v_}, v{RT + tt}, -{t0}")
                phi(a, v_, t1, t2)
            for h in range(2):
                d = f"v{PQR + tt*6 + t*2 + h}"
                a(f"v_cvt_pk_bf16_f32 {d}, v{QA + (tt*3+t)*4 + 2*h}, v{QA + (tt*3+t)*4 + 2*h + 1}")
                if t == 2:
                    a(f"v_cndmask_b32 {d}, 0, {d}, s[66:67]")
    a("s_mul_i32 s3, s2, 12288"); a(f"s_add_u32 s3, s3, {PQ}")
    a("v_lshlrev_b32 v27, 4, v0")
    a("v_add_u32 v28, 4096, v27"); a("v_add_u32 v29, 8192, v27")
    for q in range(3):
        a(f"buffer_store_dwordx4 {R(PQR + 4*q, 4)}, v{27+q}, s[40:43], s3 offen")
    a("s_cmp_eq_u32 s72, 0"); a(f"s_cbranch_scc1 L_{name}_end")
    a("s_waitcnt vmcnt(0)")
    a("v_lshrrev_b32 v27, 4, v1"); a("v_bfe_u32 v28, v1, 2, 2"); a("v_lshl_add_u32 v27, v27, 3, v28")
    a("v_and_b32 v28, 3, v1")
    a("v_lshlrev_b32 v31, 4, v1")
    a("s_cmp_eq_u32 s72, 2"); a("s_cbranch_scc1 L_k1_rf5")
    for nt, pitch, lab in ((7, 224, None), (5, 160, "L_k1_rf5")):
        if lab: a(f"{lab}:")
        a(f"v_mul_u32_u24 v29, {pitch}, v27")
        a("v_add_u32 v29, s71, v29")
        a("v_lshl_add_u32 v30, v28, 3, v29")
        a("v_lshl_add_u32 v29, v28, 4, v29")
        for t in range(nt):
            for h in range(2):
                if t == nt - 1:
                    a(f"ds_read_b64_tr_b16 {R(144 + 4*t + 2*h, 2)}, v30 offset:{h*4*pitch + 32*t}")
                else:
                    a(f"ds_read_b64_tr_b16 {R(144 + 4*t + 2*h, 2)}, v29 offset:{h*4*pitch + 64*(t>>1) + 8*(t&1)}")
        a("s_waitcnt lgkmcnt(0)")
        for t in range(nt):
            if t == 4: a("v_add_u32 v31, 4096, v31")
            a(f"buffer_store_dwordx4 {R(144 + 4*t, 4)}, v31, s[40:43], s74 offen offset:{1024*(t&3)}")
        if not lab: a(f"s_branch L_{name}_end")
    epilogue(a, name)

def gen_k2(a, code_bytes):
    name = "k2_kernel"
    npre = prologue(a, name, code_bytes)
    a("v_lshlrev_b32 v8, 4, v0")
    a("v_lshlrev_b32 v9, 5, v1")
    a(f"s_add_u32 s54, s30, T2_tab-L_{name}_pc"); a("s_addc_u32 s55, s31, 0")
    a("global_load_dwordx4 v[12:15], v9, s[54:55]")
    a("global_load_dwordx2 v[16:17], v9, s[54:55] offset:16")
    a("s_waitcnt lgkmcnt(0)")
    srd(a, 40, 24, WS_END)
    a("s_lshl_b32 s3, s27, 16"); a(f"s_add_u32 s3, s3, {PART}")
    P0 = 64
    for r_ in range(16):
        a(f"buffer_load_dwordx4 {R(P0 + 4*r_, 4)}, v8, s[40:43], s3 offen")
        a("s_add_u32 s3, s3, 4096")
    PQR = 32
    a("s_mul_i32 s3, s2, 12288"); a(f"s_add_u32 s3, s3, {PQ}")
    for q in range(3):
        a(f"buffer_load_dwordx4 {R(PQR + 4*q, 4)}, v8, s[40:43], s3 offen")
        a("s_add_u32 s3, s3, 4096")
    a("s_waitcnt vmcnt(19)")
    TA = 44
    for s_ in range(12):
        src = 12 + s_//2
        if s_ & 1: a(f"v_lshrrev_b32 v{TA+s_}, 16, v{src}")
        else: a(f"v_and_b32 v{TA+s_}, 0xffff, v{src}")
    a("s_waitcnt vmcnt(3)")
    step = 1
    while step < 16:
        for r_ in range(0, 16, 2*step):
            for e in range(4):
                a(f"v_add_f32 v{P0+4*r_+e}, v{P0+4*r_+e}, v{P0+4*(r_+step)+e}")
        step *= 2
    a(f"v_cvt_pk_bf16_f32 v18, v{P0}, v{P0+1}")
    a(f"v_cvt_pk_bf16_f32 v19, v{P0+2}, v{P0+3}")
    a("v_cmp_gt_u32 vcc, 210, v0")
    a("v_cndmask_b32 v18, 0, v18, vcc"); a("v_cndmask_b32 v19, 0, v19, vcc")
    a("v_lshlrev_b32 v10, 3, v0")
    a("ds_write_b64 v10, v[18:19]")
    a("s_waitcnt lgkmcnt(0)")
    a("s_barrier")
    KF = 64
    for E in range(4):
        for ta in range(3):
            a(f"ds_read_b64 {R(KF + 8*E + 2*ta, 2)}, v{TA + 3*E + ta}")
    a("s_waitcnt vmcnt(0) lgkmcnt(0)")
    D = 100
    for tt in range(2):
        for E in range(4):
            d = R(D + (tt*4+E)*4, 4)
            a(f"v_mfma_f32_16x16x32_bf16 {d}, {R(KF + 8*E, 4)}, {R(PQR + 6*tt, 4)}, 0")
    for tt in range(2):
        for E in range(4):
            d = R(D + (tt*4+E)*4, 4)
            a(f"v_mfma_f32_16x16x16_bf16 {d}, {R(KF + 8*E + 4, 2)}, {R(PQR + 6*tt + 4, 2)}, {d}")
    a(f"s_mov_b32 s61, {hx(1e-6)}")
    a("v_cmp_gt_u32 s[66:67], 48, v1")
    a("v_cmp_gt_u32 s[68:69], 32, v1")
    a("s_lshl_b32 s3, s26, 3"); a("s_lshl_b32 s48, s28, 1"); a("s_add_u32 s3, s3, s48"); a("s_mul_i32 s3, s3, 20480")
    a("s_mul_i32 s48, s27, 1280"); a("s_add_u32 s3, s3, s48"); a(f"s_add_u32 s3, s3, {OB}")
    a("v_lshlrev_b32 v8, 4, v1")
    a("v_and_b32 v9, 15, v1"); a("v_lshlrev_b32 v9, 4, v9"); a("v_lshrrev_b32 v10, 4, v1"); a("v_lshl_add_u32 v9, v10, 3, v9")
    a("v_mov_b32 v10, 0x7fffffff")
    a("v_cndmask_b32 v9, v10, v9, s[68:69]")
    for tt in range(2):
        z = D + (tt*4+3)*4
        a(f"v_add_f32 v20, s61, v{z}"); a(f"v_add_f32 v21, s61, v{z+1}")
        a("v_rcp_f32 v20, v20"); a("v_rcp_f32 v21, v21")
        a("v_cndmask_b32 v22, v21, v20, s[66:67]")
        a("v_cndmask_b32 v23, v21, v20, s[68:69]")
        for E, rc in ((0, 22), (1, 23), (2, 21)):
            d = D + (tt*4+E)*4
            for e in range(4): a(f"v_mul_f32 v{d+e}, v{d+e}, v{rc}")
            o = 24 + 2*E + 0
            a(f"v_cvt_pk_bf16_f32 v{140 + tt*8 + 2*E}, v{d}, v{d+1}")
            a(f"v_cvt_pk_bf16_f32 v{140 + tt*8 + 2*E + 1}, v{d+2}, v{d+3}")
        a(f"buffer_store_dwordx4 {R(140 + tt*8, 4)}, v8, s[40:43], s3 offen")
        a(f"buffer_store_dwordx2 {R(140 + tt*8 + 4, 2)}, v9, s[40:43], s3 offen offset:1024")
        a("s_add_u32 s3, s3, 20480")
    epilogue(a, name)

def gen_k35(a, which, code_bytes):
    name = f"k{which}_kernel"
    npre = prologue(a, name, code_bytes)
    NK = 20 if which == 3 else 54
    nst = 5 if which == 3 else 14
    ABUF = OB if which == 3 else HID
    WP = WOP if which == 3 else W2P
    a("s_lshr_b32 s3, s27, 3"); a("s_lshl_b32 s48, s26, 1"); a("s_add_u32 s48, s48, s3")
    a("s_and_b32 s49, s27, 7")
    a("v_lshlrev_b32 v8, 4, v1")
    a("v_add_u32 v9, 4096, v8")
    for m in range(4):
        a(f"s_add_u32 s3, s28, {m}"); a("s_and_b32 s3, s3, 3"); a("s_lshl_b32 s50, s48, 2"); a("s_add_u32 s3, s3, s50")
        a(f"s_mul_i32 s3, s3, {NK}"); a("s_add_u32 s3, s3, s28"); a("s_lshl_b32 s3, s3, 10"); a(f"s_add_u32 s{52+m}, s3, {ABUF}")
    a(f"s_mul_i32 s3, s49, {NK}"); a("s_add_u32 s3, s3, s28"); a("s_mul_i32 s3, s3, 5120"); a(f"s_add_u32 s56, s3, {WP}")
    a("s_waitcnt lgkmcnt(0)")
    srd(a, 40, 24, WS_END)
    ACC = 32
    RING = min(nst, 7)
    FR = A0
    def fa(n, m): return FR + ((n % RING)*9 + m)*4
    def fb(n, t): return FR + ((n % RING)*9 + 4 + t)*4
    a("v_and_b32 v10, 15, v1"); a("v_lshrrev_b32 v11, 4, v1")
    a("v_lshrrev_b32 v12, 1, v11"); a("v_lshlrev_b32 v12, 8, v12"); a("v_lshl_add_u32 v12, v10, 4, v12")
    a("v_and_b32 v13, 1, v11"); a("v_lshl_add_u32 v12, v13, 3, v12")
    a("s_lshl_b32 s3, s48, 2"); a("s_add_u32 s3, s3, s28")
    a("s_mul_i32 s57, s3, 20480"); a("s_mul_i32 s50, s49, 2560"); a("s_add_u32 s57, s57, s50"); a(f"s_add_u32 s57, s57, {HB}")
    a("v_mul_u32_u24 v13, 1280, v10"); a("v_lshl_add_u32 v14, v11, 3, v13"); a("v_lshl_add_u32 v13, v11, 4, v13")
    a("s_mul_i32 s58, s3, 20480"); a("s_mul_i32 s50, s49, 160"); a("s_add_u32 s58, s58, s50")
    RES = 112
    BIA = 124
    nextra = 0
    if which == 3:
        srd(a, 32, 4, 2621440)
        a(f"buffer_load_dwordx4 {R(RES, 4)}, v13, s[32:35], s58 offen")
        a(f"buffer_load_dwordx4 {R(RES+4, 4)}, v13, s[32:35], s58 offen offset:64")
        a(f"buffer_load_dwordx2 {R(RES+8, 2)}, v14, s[32:35], s58 offen offset:128")
    else:
        srd(a, 32, 20, 2621440)
        srd(a, 36, 18, 1280)
        a(f"buffer_load_dwordx4 {R(RES, 4)}, v8, s[40:43], s57 offen")
        a(f"buffer_load_dwordx4 {R(RES+4, 4)}, v8, s[40:43], s57 offen offset:1024")
        a(f"buffer_load_dwordx2 {R(RES+8, 2)}, v12, s[40:43], s57 offen offset:2048")
        a("v_lshlrev_b32 v15, 4, v11"); a("v_lshlrev_b32 v16, 3, v11")
        a(f"buffer_load_dwordx4 {R(BIA, 4)}, v15, s[36:39], s50 offen")
        a(f"buffer_load_dwordx4 {R(BIA+4, 4)}, v15, s[36:39], s50 offen offset:64")
        a(f"buffer_load_dwordx2 {R(BIA+8, 2)}, v16, s[36:39], s50 offen offset:128")
    def issue(n):
        if which == 5 and n == 13:
            a("s_cmp_ge_u32 s28, 2"); a("s_cselect_b32 s3, 0x40000000, 0")
            for m in range(5): a(f"s_add_u32 s{52+m}, s{52+m}, s3")
        for t in range(5):
            a(f"buffer_load_dwordx4 {R(fb(n, t), 4)}, v{8 if t < 4 else 9}, s[40:43], s56 offen offset:{1024*(t&3)}")
        for m in range(4):
            a(f"buffer_load_dwordx4 {R(fa(n, m), 4)}, v8, s[40:43], s{52+m} offen")
            a(f"s_add_u32 s{52+m}, s{52+m}, 4096")
        a("s_add_u32 s56, s56, 20480")
    pre = min(RING - 1, nst) if nst > RING else nst
    for n in range(pre): issue(n)
    nxt = pre
    for n in range(nst):
        out = (nxt - n - 1)*9
        a(f"s_waitcnt vmcnt({out})")
        for m in range(4):
            for t in range(5):
                d = R(ACC + (m*5+t)*4, 4)
                a(f"v_mfma_f32_16x16x32_bf16 {d}, {R(fb(n, t), 4)}, {R(fa(n, m), 4)}, {'0' if n == 0 else d}")
        if nxt < nst:
            issue(nxt); nxt += 1
    for m in range(1, 4):
        a(f"s_add_u32 s3, s28, {m}"); a("s_and_b32 s3, s3, 3"); a("s_mul_i32 s3, s3, 15360")
        a(f"v_add_u32 v{16+m}, s3, v8")
    for m in range(1, 4):
        for t in range(5):
            a(f"ds_write_b128 v{16+m}, {R(ACC + (m*5+t)*4, 4)} offset:{(m-1)*5120 + t*1024}")
    a("s_mul_i32 s3, s28, 15360"); a("v_add_u32 v16, s3, v8")
    a("s_waitcnt lgkmcnt(0)")
    a("s_barrier")
    for m in range(1, 4):
        for t in range(5):
            a(f"ds_read_b128 {R(ACC + (m*5+t)*4, 4)}, v16 offset:{(m-1)*5120 + t*1024}")
    U = 140
    for t in range(5):
        for e in range(4):
            src = RES + 2*t + (e >> 1)
            if e & 1: a(f"v_and_b32 v{U+4*t+e}, 0xffff0000, v{src}")
            else: a(f"v_lshlrev_b32 v{U+4*t+e}, 16, v{src}")
            a(f"v_add_f32 v{ACC+4*t+e}, v{ACC+4*t+e}, v{U+4*t+e}")
            if which == 5:
                src = BIA + 2*t + (e >> 1)
                if e & 1: a(f"v_and_b32 v{U+4*t+e}, 0xffff0000, v{src}")
                else: a(f"v_lshlrev_b32 v{U+4*t+e}, 16, v{src}")
                a(f"v_add_f32 v{ACC+4*t+e}, v{ACC+4*t+e}, v{U+4*t+e}")
    a("s_waitcnt lgkmcnt(0)")
    for t in range(5):
        for e in range(4):
            x0 = ACC + 4*t + e
            a(f"v_add_f32 v{x0+20}, v{x0+20}, v{x0+40}")
            a(f"v_add_f32 v{x0}, v{x0}, v{x0+60}")
            a(f"v_add_f32 v{x0}, v{x0}, v{x0+20}")
        for h in range(2):
            a(f"v_cvt_pk_bf16_f32 v{U+2*t+h}, v{ACC+4*t+2*h}, v{ACC+4*t+2*h+1}")
    if which == 3:
        a(f"buffer_store_dwordx4 {R(U, 4)}, v8, s[40:43], s57 offen")
        a(f"buffer_store_dwordx4 {R(U+4, 4)}, v8, s[40:43], s57 offen offset:1024")
        a(f"buffer_store_dwordx2 {R(U+8, 2)}, v12, s[40:43], s57 offen offset:2048")
    else:
        a(f"buffer_store_dwordx4 {R(U, 4)}, v13, s[32:35], s58 offen")
        a(f"buffer_store_dwordx4 {R(U+4, 4)}, v13, s[32:35], s58 offen offset:64")
        a(f"buffer_store_dwordx2 {R(U+8, 2)}, v14, s[32:35], s58 offen offset:128")
    epilogue(a, name)

def gen_k4(a, code_bytes):
    name = "k4_kernel"
    npre = prologue(a, name, code_bytes)
    HF = 96
    ACC = 32
    BF = A0
    ONES = A0 + 56
    CSA = A0 + 60
    CSL = 143360
    a("v_lshlrev_b32 v8, 4, v1")
    for q in range(1, 5): a(f"v_add_u32 v{8+q}, {4096*q}, v8")
    a("v_add_u32 v13, 57344, v8"); a("v_add_u32 v14, 114688, v8")
    a("v_mov_b32 v27, 0x3f803f80")
    for i in range(4): a(f"v_accvgpr_write_b32 {R(ONES+i)}, v27")
    a("s_mov_b32 s62, 0x3f803f80")
    vS = [88, 89]; vQ = [90, 91]
    for r_ in vS + vQ: a(f"v_mov_b32 v{r_}, 0")
    a("s_lshl_b32 s3, s26, 3"); a("s_lshl_b32 s48, s28, 1"); a("s_add_u32 s48, s48, s3")
    a("s_mul_i32 s49, s48, 20480"); a(f"s_add_u32 s49, s49, {HB}"); a("s_add_u32 s50, s49, 20480")
    a("s_mul_i32 s51, s27, 143360"); a("s_mul_i32 s52, s28, 7168"); a("s_add_u32 s51, s51, s52"); a(f"s_add_u32 s51, s51, {W1P}")
    a("s_mul_i32 s53, s27, 27"); a("s_lshr_b32 s53, s53, 2")
    a("s_waitcnt lgkmcnt(0)")
    srd(a, 40, 24, WS_END); srd(a, 36, 14, 3456)
    def hf(tt, k): return HF + (tt*20 + k)*4
    a("v_lshrrev_b32 v15, 4, v1"); a("v_lshlrev_b32 v30, 4, v15"); a("v_lshlrev_b32 v31, 3, v15")
    a("s_lshl_b32 s54, s53, 5")
    for p in range(3): a(f"buffer_load_dwordx4 {R(16 + 4*p, 4)}, v30, s[36:39], s54 offen offset:{64*p}")
    a(f"buffer_load_dwordx2 v[28:29], v31, s[36:39], s54 offen offset:192")
    issued = npre + 4
    def issue(j):
        a(f"s_add_u32 m0, s52, {j*28672}")
        for i in range(4): a(f"buffer_load_dwordx4 v8, s[40:43], s51 offen offset:{1024*i} lds")
        a(f"s_add_u32 m0, s52, {j*28672 + 4096}")
        for i in range(3): a(f"buffer_load_dwordx4 v9, s[40:43], s51 offen offset:{1024*i} lds")
        a("s_add_u32 s51, s51, 28672")
        for kk in range(4):
            for tt in range(2):
                a(f"buffer_load_dwordx4 {R(hf(tt, 4*j+kk), 4)}, v{8+j}, s[40:43], s{49+tt} offen offset:{1024*kk}")
    for j in range(4): issue(j)
    issued += 60
    def breads(k, st):
        for t in range(7):
            a(f"ds_read_b128 {R(BF + st*28 + 4*t, 4)}, v{[8, 13, 14][k >> 3]} offset:{(k & 7)*7168 + 1024*t}")
    for j in range(5):
        done = npre + 4 + 15*(j+1)
        a(f"s_waitcnt vmcnt({issued - done})")
        a("s_barrier")
        if j == 0:
            issue(4); issued += 15
        breads(4*j, 0)
        for kk in range(4):
            k = 4*j + kk; st = kk & 1
            if kk < 3:
                breads(k+1, st ^ 1); a("s_waitcnt lgkmcnt(7)")
            else:
                a("s_waitcnt lgkmcnt(0)")
            dots = []
            for e in range(4):
                for tt in range(2):
                    r_ = hf(tt, k) + e
                    dots.append(f"v_dot2_f32_bf16 v{vS[tt]}, v{r_}, s62, v{vS[tt]}")
                    dots.append(f"v_dot2_f32_bf16 v{vQ[tt]}, v{r_}, v{r_}, v{vQ[tt]}")
            for t in range(7):
                for tt in range(2):
                    d = R(ACC + (tt*7+t)*4, 4)
                    a(f"v_mfma_f32_16x16x32_bf16 {d}, {R(BF + st*28 + 4*t, 4)}, {R(hf(tt, k), 4)}, {'0' if k == 0 else d}")
                    a(dots.pop(0))
            a(dots.pop(0)); a(dots.pop(0))
    a("s_mul_i32 s3, s28, 35840"); a("v_add_u32 v13, s3, v8")
    for n in range(5):
        st = n & 1
        for t in range(7):
            a(f"ds_read_b128 {R(BF + st*28 + 4*t, 4)}, v13 offset:{n*7168 + 1024*t}")
        a("s_waitcnt lgkmcnt(0)")
        for t in range(7):
            d = R(CSA + 4*t, 4)
            a(f"v_mfma_f32_16x16x32_bf16 {d}, {R(BF + st*28 + 4*t, 4)}, {R(ONES, 4)}, {'0' if n == 0 else d}")
    a("s_lshl_b32 s3, s28, 9"); a(f"s_add_u32 s3, s3, {CSL}")
    a("v_add_u32 v13, s3, v30")
    a(f"v_add_u32 v14, {CSL}, v30")
    for t in range(7):
        a(f"ds_write_b128 v13, {R(CSA + 4*t, 4)} offset:{64*t}")
    for r_ in vS + vQ:
        a(f"v_mov_b32 v92, v{r_}")
        a(f"v_permlane32_swap_b32 v{r_}, v92")
        a(f"v_add_f32 v{r_}, v{r_}, v92")
        a(f"v_mov_b32 v92, v{r_}")
        a(f"v_permlane16_swap_b32 v{r_}, v92")
        a(f"v_add_f32 v{r_}, v{r_}, v92")
    a(f"s_mov_b32 s63, {hx(1.0/640)}"); a(f"s_mov_b32 s64, {hx(1e-5)}")
    for tt in range(2):
        s_, q_ = f"v{vS[tt]}", f"v{vQ[tt]}"
        a(f"v_mul_f32 {s_}, s63, {s_}")
        a(f"v_mul_f32 {q_}, s63, {q_}")
        a(f"v_fma_f32 {q_}, -{s_}, {s_}, {q_}")
        a(f"v_max_f32 {q_}, 0, {q_}")
        a(f"v_add_f32 v92, s64, {q_}")
        a(f"v_fma_f32 {q_}, v92, s64, {q_}")
        a(f"v_rsq_f32 {q_}, {q_}")
        a(f"v_mul_f32 {s_}, {s_}, {q_}")
    a("s_waitcnt lgkmcnt(0)")
    a("s_barrier")
    CS = 96
    for w in range(4):
        for t in range(7):
            a(f"ds_read_b128 {R(CS + 28*w + 4*t, 4)}, v14 offset:{512*w + 64*t}")
    B1 = 208
    for t in range(7):
        for e in range(4):
            src = 16 + 2*t + (e >> 1)
            if e & 1: a(f"v_and_b32 v{B1+4*t+e}, 0xffff0000, v{src}")
            else: a(f"v_lshlrev_b32 v{B1+4*t+e}, 16, v{src}")
    a("s_waitcnt lgkmcnt(0)")
    for x in range(28):
        a(f"v_add_f32 v{CS+x}, v{CS+x}, v{CS+28+x}")
        a(f"v_add_f32 v{CS+56+x}, v{CS+56+x}, v{CS+84+x}")
        a(f"v_add_f32 v{CS+x}, v{CS+x}, v{CS+56+x}")
    c1 = -2.0*LOG2E*0.7978845608028654
    c2 = c1*0.044715
    a(f"s_mov_b32 s60, {hx(c1)}"); a(f"s_mov_b32 s61, {hx(c2)}")
    a("v_mov_b32 v93, s60")
    a("s_mul_i32 s49, s48, 55296"); a("s_lshl_b32 s3, s53, 9"); a("s_add_u32 s49, s49, s3"); a(f"s_add_u32 s49, s49, {HID}")
    a("v_and_b32 v10, 15, v1")
    a("v_lshrrev_b32 v12, 1, v15"); a("v_lshlrev_b32 v12, 8, v12"); a("v_lshl_add_u32 v12, v10, 4, v12")
    a("v_and_b32 v13, 1, v15"); a("v_lshl_add_u32 v12, v13, 3, v12")
    PK = 130
    for tt in range(2):
        for t in range(7):
            for e in range(4):
                v_ = f"v{ACC + (tt*7+t)*4 + e}"
                ta, tb = f"v{160+e}", f"v{164+e}"
                a(f"v_fma_f32 {ta}, -v{vS[tt]}, v{CS+4*t+e}, v{B1+4*t+e}")
                a(f"v_fma_f32 {v_}, {v_}, v{vQ[tt]}, {ta}")
                a(f"v_mul_f32 {ta}, {v_}, {v_}")
                a(f"v_fma_f32 {ta}, {ta}, s61, v93")
                a(f"v_mul_f32 {ta}, {ta}, {v_}")
                a(f"v_exp_f32 {ta}, {ta}")
            for e in range(4):
                ta = f"v{160+e}"
                a(f"v_add_f32 {ta}, 1.0, {ta}")
                a(f"v_rcp_f32 {ta}, {ta}")
            for e in range(4):
                v_ = f"v{ACC + (tt*7+t)*4 + e}"
                a(f"v_mul_f32 {v_}, {v_}, v{160+e}")
            for h in range(2):
                x0 = ACC + (tt*7+t)*4 + 2*h
                a(f"v_cvt_pk_bf16_f32 v{PK + tt*14 + 2*t + h}, v{x0}, v{x0+1}")
        for p in range(3):
            a(f"buffer_store_dwordx4 {R(PK + tt*14 + 4*p, 4)}, v8, s[40:43], s49 offen offset:{1024*p}")
        a(f"buffer_store_dwordx2 {R(PK + tt*14 + 12, 2)}, v12, s[40:43], s49 offen offset:3072")
        a("s_add_u32 s49, s49, 55296")
    epilogue(a, name)

def main(out):
    hdr = open("sequential_preLN__linear_attn_block__mixer_channel_mlp__prompt.s.ref").read().split("\n")
    hdr = [l for l in hdr if l.startswith(";") and "@launch" not in l and "Override launch" not in l and "grid=ceil" not in l]
    launches = [("k1_kernel", 161792), ("k2_kernel", 2048), ("k3_kernel", 61440), ("k4_kernel", 145408), ("k5_kernel", 61440)]
    for n, lds in launches:
        hdr.append(f"; @launch kernel={n} grid=(256,1,1) block=(256,1,1) lds={lds}")
    a = Asm()
    a.raw('.amdgcn_target "amdgcn-amd-amdhsa--gfx950"\n.text')
    gen_k1(a, 16384)
    gen_k2(a, 0)
    gen_k35(a, 3, 0)
    gen_k4(a, 12288)
    gen_k35(a, 5, 4096)
    T1, T2 = build_tables()
    a.raw(".p2align 6\nT1_tab:")
    a.raw(".short " + ",".join(map(str, T1)))
    a.raw("T2_tab:")
    for row in T2: a.raw(".short " + ",".join(map(str, row)))
    a.raw(".fill 4096, 4, 0")
    a.raw('.section .rodata,"a"')
    for n, _ in launches:
        a.raw(".p2align 6\n" + desc(n))
    open(out, "w").write("\n".join(hdr) + "\n" + a.finish())

if __name__ == "__main__":
    main(sys.argv[1] if len(sys.argv) > 1 else "sequential_preLN__linear_attn_block__mixer_channel_mlp__prompt.s")
```

```python
import sys, struct
from asmdsl import Asm, R, S

WOP = 0
W2P = WOP + 8*20*5*1024
W1P = W2P + 8*54*5*1024
PART = W1P + 16*20*7*1024
PQ = PART + 256*4096
OB = PQ + 256*12288
HB = OB + 2621440
HID = HB + 2621440
WS_END = HID + 128*54*1024
LOG2E = 1.4426950408889634

def f2u(x): return struct.unpack('<I', struct.pack('<f', x))[0]
def hx(x): return hex(f2u(x))

A0 = 256
import os
STAMP = int(os.environ.get("STAMP", "0"))
STB = 32 << 20
_nst = [0]
def stamp(a):
    if not STAMP: return
    i = _nst[0]; _nst[0] += 1
    assert i < 8
    a(f"s_memtime s[{80+2*i}:{81+2*i}]")
def stamp_flush(a, kid):
    if not STAMP: return
    n = _nst[0]; _nst[0] = 0
    a("s_memrealtime s[78:79]")
    a("s_waitcnt vmcnt(0) lgkmcnt(0)")
    a("s_memtime s[96:97]")
    a("s_waitcnt lgkmcnt(0)")
    a("s_lshl_b32 s3, s2, 2"); a("s_add_u32 s3, s3, s28"); a("s_lshl_b32 s3, s3, 6"); a(f"s_add_u32 s3, s3, {STB + kid*65536}")
    a("v_mov_b32 v2, s3")
    for i in range(n):
        a(f"v_mov_b32 v3, s{80+2*i}")
        a(f"global_store_dword v2, v3, s[24:25] offset:{4*i}")
    a("v_mov_b32 v3, s96"); a("global_store_dword v2, v3, s[24:25] offset:52")
    a("v_mov_b32 v3, s98"); a("global_store_dword v2, v3, s[24:25] offset:56")
    a("v_mov_b32 v3, s78"); a("global_store_dword v2, v3, s[24:25] offset:60")


PAIRS = [(0,2),(0,3),(1,2),(1,3),(1,4),(2,3),(2,4),(0,-1),(1,-1),(2,-1)]
def build_tables():
    ent = []
    idx = {}
    for p,(ta,tb) in enumerate(PAIRS):
        for lane in range(64):
            i, g = lane & 15, lane >> 4
            d0 = 16*ta + 4*g
            if d0 >= 40: continue
            if tb < 0:
                if i != 0: continue
                idx[('z', d0)] = len(ent); ent.append((p, lane))
            else:
                e = 16*tb + i - 40
                if e < 0 or e >= 40: continue
                if (e // 20) != (d0 // 20): continue
                idx[('kv', d0, e)] = len(ent); ent.append((p, lane))
    assert len(ent) == 210
    T1 = [p*1024 + lane*16 for p, lane in ent] + [0]*(256-len(ent))
    T2 = []
    for lane in range(64):
        i, g = lane & 15, lane >> 4
        row = []
        for E in range(4):
            for ta in range(3):
                d0 = 16*ta + 4*g
                n = 255
                if d0 < 40:
                    if E < 3:
                        e = [8*(i>>2)+(i&3), 8*(i>>2)+4+(i&3), 32+i if i < 8 else -1][E]
                        if e >= 0 and e//20 == d0//20: n = idx[('kv', d0, e)]
                    else:
                        if (i & 1) == d0//20: n = idx[('z', d0)]
                row.append(n*8)
        T2.append(row + [0]*4)
    return T1, T2

def prologue(a, name, code_bytes=0):
    a.raw(f".globl {name}\n.p2align 8\n.type {name},@function\n{name}:")
    a(f"s_cmp_ge_u32 s2, 256")
    a(f"s_cbranch_scc1 L_{name}_end")
    stamp(a)
    if STAMP: a("s_memrealtime s[98:99]")
    a("s_load_dwordx16 s[4:19], s[0:1], 0")
    a("s_load_dwordx4 s[20:23], s[0:1], 64")
    a("s_load_dwordx2 s[24:25], s[0:1], 80")
    a("s_getpc_b64 s[30:31]")
    a(f"L_{name}_pc:")
    a("v_lshrrev_b32 v2, 6, v0")
    a("v_and_b32 v1, 63, v0")
    a("v_readfirstlane_b32 s28, v2")
    a("s_and_b32 s3, s2, 7")
    a("s_lshr_b32 s27, s2, 3")
    a("s_lshr_b32 s26, s27, 4")
    a("s_lshl_b32 s3, s3, 1")
    a("s_add_u32 s26, s26, s3")
    a("s_and_b32 s27, s27, 15")
    n = (code_bytes + 4095) // 4096
    if n:
        a("v_lshlrev_b32 v3, 4, v0")
        for i in range(n):
            a(f"global_load_dwordx4 v[4:7], v3, s[30:31]")
            if i + 1 < n: a("v_add_u32 v3, 4096, v3")
    return n

def srd(a, d, ptr, nbytes):
    a(f"s_mov_b32 s{d}, s{ptr}")
    a(f"s_and_b32 s{d+1}, s{ptr+1}, 0xffff")
    a(f"s_mov_b32 s{d+2}, {nbytes}")
    a(f"s_mov_b32 s{d+3}, 0x20000")

def epilogue(a, name):
    a(f"L_{name}_fin:")
    stamp_flush(a, int(name[1]))
    a(f"L_{name}_end:")
    a("s_endpgm")

def desc(name, vgpr=512, accum=256, sgpr=102):
    return f""".amdhsa_kernel {name}
  .amdhsa_next_free_vgpr {vgpr}
  .amdhsa_next_free_sgpr {sgpr}
  .amdhsa_accum_offset {accum}
  .amdhsa_group_segment_fixed_size 0
  .amdhsa_kernarg_size 88
  .amdhsa_user_sgpr_count 2
  .amdhsa_user_sgpr_kernarg_segment_ptr 1
  .amdhsa_system_sgpr_workgroup_id_x 1
.end_amdhsa_kernel"""

def divmod_const(a, q, rem, n, d, tmp=None):
    mag = (65536 + d - 1) // d
    assert all((x*mag) >> 16 == x // d for x in range(1024))
    a(f"v_mul_u32_u24 {q}, {mag}, {n}")
    a(f"v_lshrrev_b32 {q}, 16, {q}")
    a(f"v_mul_u32_u24 {rem}, {d}, {q}")
    a(f"v_sub_u32 {rem}, {n}, {rem}")

def phi(a, val, t1, t2):
    a(f"v_mul_f32 {t1}, s60, {val}")
    a(f"v_max_f32 {t2}, 0, {val}")
    a(f"v_exp_f32_e64 {t1}, {t1} clamp")
    a(f"v_add_f32 {t2}, s61, {t2}")
    a(f"v_add_f32 {val}, {t1}, {t2}")

def gen_k1(a, code_bytes):
    name = "k1_kernel"
    npre = prologue(a, name, code_bytes)
    BQ = 102400; SCR = 153600
    vXA = [8, 9, 10, 11]; vW = [12, 13]; vRd = [14, 15]; vBA = [16, 17, 18, 19, 20]; vTB = [21, 22]; vTQ = 23
    vT1 = 24; vtmp = [25, 26, 27, 28, 29, 30, 31]
    ACC = 32
    STS = 92
    RAW = 96
    XF = A0
    BF = A0 + 160
    ONES = A0 + 200
    vS = [92, 93, 94, 95]; vQ = [2, 3, 25, 26]
    t0, t1, t2, t3 = "v27", "v28", "v29", "v30"
    a("v_lshrrev_b32 v27, 3, v1")
    a("v_and_b32 v28, 7, v1")
    a("v_mul_u32_u24 v29, 1280, v27")
    a(f"v_lshl_add_u32 v{vXA[0]}, v28, 4, v29")
    for rg in range(1, 4):
        a(f"v_add_u32 v{vXA[rg]}, {10240*rg}, v{vXA[0]}")
    a("s_lshl_b32 s3, s28, 11")
    a(f"s_add_u32 s48, s3, {SCR}")
    a("v_lshrrev_b32 v29, 1, v27")
    a("v_xor_b32 v29, v29, v28")
    a("v_lshlrev_b32 v29, 4, v29")
    a("v_lshl_add_u32 v29, v27, 7, v29")
    a(f"v_add_u32 v{vW[0]}, s48, v29")
    a(f"v_xor_b32 v29, 64, v29")
    a(f"v_add_u32 v29, 1024, v29")
    a(f"v_add_u32 v{vW[1]}, s48, v29")
    a("v_and_b32 v27, 15, v1")
    a("v_lshrrev_b32 v28, 4, v1")
    a("v_lshrrev_b32 v29, 1, v27")
    a("v_xor_b32 v29, v29, v28")
    a("v_lshlrev_b32 v29, 4, v29")
    a("v_lshl_add_u32 v29, v27, 7, v29")
    a(f"v_add_u32 v{vRd[0]}, s48, v29")
    a(f"v_xor_b32 v29, 64, v29")
    a(f"v_add_u32 v{vRd[1]}, s48, v29")
    for i in range(5):
        a(f"v_add_u32 v27, {64*i}, v1")
        divmod_const(a, "v28", "v29", "v27", 10)
        a("v_and_b32 v30, 0x13, v28")
        a("v_bfe_u32 v27, v28, 2, 1")
        a("v_lshl_add_u32 v30, v27, 3, v30")
        a("v_bfe_u32 v27, v28, 3, 1")
        a("v_lshl_add_u32 v30, v27, 2, v30")
        a("v_mul_u32_u24 v30, 3840, v30")
        a("v_lshl_add_u32 v30, v29, 4, v30")
        a("v_cmp_lt_u32 vcc, 4, v29")
        a("v_add_u32 v27, 1200, v30")
        a(f"v_cndmask_b32 v{vBA[i]}, v30, v27, vcc")
    a("v_lshrrev_b32 v27, 5, v1")
    a("v_bfe_u32 v28, v1, 4, 1")
    a("v_bfe_u32 v29, v1, 2, 2")
    a("v_lshl_add_u32 v29, v28, 2, v29")
    a("v_lshl_add_u32 v30, v27, 4, v29")
    a("v_mul_u32_u24 v30, 160, v30")
    a("v_and_b32 v28, 3, v1")
    a(f"v_lshl_add_u32 v{vTB[0]}, v28, 3, v30")
    a(f"v_add_u32 v{vTB[1]}, 61440, v{vTB[0]}")
    a("v_lshlrev_b32 v29, 1, v29")
    a("v_lshl_add_u32 v30, v27, 4, v29")
    a("v_mul_u32_u24 v30, 80, v30")
    a("v_lshl_add_u32 v30, v28, 3, v30")
    a(f"v_add_u32 v{vTQ}, {BQ}, v30")
    a("v_mov_b32 v27, 0x3f803f80")
    for i in range(4): a(f"v_accvgpr_write_b32 {R(ONES+i)}, v27")
    a("s_mov_b32 s62, 0x3f803f80")
    a(f"s_mov_b32 s60, {hx(LOG2E)}")
    a(f"s_mov_b32 s61, {hx(1e-6)}")
    for r_ in vS + vQ: a(f"v_mov_b32 v{r_}, 0")
    a("s_waitcnt lgkmcnt(0)")
    srd(a, 32, 4, 2621440); srd(a, 36, 6, 2457600); srd(a, 40, 24, WS_END)
    a("s_lshl_b32 s49, s26, 7"); a("s_lshl_b32 s3, s28, 5"); a("s_add_u32 s49, s49, s3"); a("s_mul_i32 s49, s49, 1280")
    a("s_mul_i32 s50, s28, 122880"); a("s_mul_i32 s51, s27, 80"); a("s_add_u32 s50, s50, s51"); a("s_add_u32 s50, s50, 1280")
    a("s_mul_i32 s52, s28, 5120")
    def raw(cx, rg): return RAW + (cx*4 + rg)*4
    issued = npre
    for j in range(5):
        for cx in (2*j, 2*j+1):
            for rg in range(4):
                a(f"buffer_load_dwordx4 {R(raw(cx, rg), 4)}, v{vXA[rg]}, s[32:35], s49 offen offset:{128*cx}")
        for i in range(5):
            a(f"s_add_u32 m0, s52, {j*20480 + i*1024}")
            a(f"buffer_load_dwordx4 v{vBA[i]}, s[36:39], s50 offen lds")
        a(f"s_add_u32 s50, s50, {128*3840}")
        issued += 13
    stamp(a)
    a("v_lshlrev_b32 v27, 1, v0")
    a(f"s_add_u32 s54, s30, T1_tab-L_{name}_pc"); a("s_addc_u32 s55, s31, 0")
    for i in range(5):
        a(f"v_add_u32 v31, {64*i}, v1")
        divmod_const(a, "v28", "v29", "v31", 5)
        a("v_and_b32 v30, 0x30, v28")
        a("v_bfe_u32 v31, v28, 1, 2")
        a("v_add_u32 v30, v30, v31")
        a("v_and_b32 v31, 1, v28")
        a("v_lshl_add_u32 v30, v31, 2, v30")
        a("v_and_b32 v31, 8, v28")
        a("v_add_u32 v30, v30, v31")
        a("v_mul_u32_u24 v30, 3840, v30")
        a(f"v_lshl_add_u32 v{vBA[i]}, v29, 4, v30")
    def xf(tt, k): return XF + (tt*20 + k)*4
    def acc(tt, t): return ACC + (tt*5 + t)*4
    def cs(t): return ACC + 40 + 4*t
    def trreads(k, st):
        for t in range(5):
            for h in range(2):
                b = vTB[0] if k < 12 else vTB[1]
                off = (k*5120 if k < 12 else k*5120 - 61440) + h*1280 + t*32
                a(f"ds_read_b64_tr_b16 {R(BF + st*20 + t*4 + h*2, 2)}, v{b} offset:{off}")
    extra = 0
    for j in range(5):
        done = npre + 13*(j+1)
        a(f"s_waitcnt vmcnt({issued - done})")
        a("s_barrier")
        if j in (0, 4): stamp(a)
        if j == 1:
            a(f"global_load_ushort v{vT1}, v27, s[54:55]")
            a("s_mul_i32 s50, s28, 245760"); a("s_add_u32 s50, s50, s51")
            a(f"s_add_u32 s53, s52, {BQ}")
            for gq in range(2):
                for i in range(5):
                    a(f"s_add_u32 m0, s53, {gq*20480 + i*1024}")
                    a(f"buffer_load_dwordx4 v{vBA[i]}, s[36:39], s50 offen lds")
                a(f"s_add_u32 s50, s50, {256*3840}")
            issued += 11
        for cx in (2*j, 2*j+1):
            for tt in range(2):
                a(f"ds_write_b128 v{vW[0]}, {R(raw(cx, 2*tt), 4)}")
                a(f"ds_write_b128 v{vW[1]}, {R(raw(cx, 2*tt+1), 4)}")
                a(f"ds_read_b128 {R(xf(tt, 2*cx), 4)}, v{vRd[0]}")
                a(f"ds_read_b128 {R(xf(tt, 2*cx+1), 4)}, v{vRd[1]}")
        trreads(4*j, 0)
        dots = []
        for cx in (2*j, 2*j+1):
            for e in range(4):
                for rg in range(4):
                    r_ = raw(cx, rg) + e
                    dots.append(f"v_dot2_f32_bf16 v{vS[rg]}, v{r_}, s62, v{vS[rg]}")
                    dots.append(f"v_dot2_f32_bf16 v{vQ[rg]}, v{r_}, v{r_}, v{vQ[rg]}")
        for kk in range(4):
            k = 4*j + kk; st = kk & 1
            if kk < 3:
                trreads(k+1, st ^ 1)
                a("s_waitcnt lgkmcnt(10)")
            else:
                a("s_waitcnt lgkmcnt(0)")
            for t in range(5):
                b = R(BF + st*20 + t*4, 4)
                for tt in range(2):
                    c_ = "0" if k == 0 else R(acc(tt, t), 4)
                    a(f"v_mfma_f32_16x16x32_bf16 {R(acc(tt, t), 4)}, {R(xf(tt, k), 4)}, {b}, {c_}")
                    a(dots.pop(0))
                c_ = "0" if k == 0 else R(cs(t), 4)
                a(f"v_mfma_f32_16x16x32_bf16 {R(cs(t), 4)}, {R(ONES, 4)}, {b}, {c_}")
                a(dots.pop(0))
            a(dots.pop(0))
        assert not dots
    stamp(a)
    a("s_cmp_ge_u32 s28, 2")
    a("s_cbranch_scc1 L_k1_noq3")
    for i in range(5):
        a(f"s_add_u32 m0, s53, {2*20480 + i*1024}")
        a(f"buffer_load_dwordx4 v{vBA[i]}, s[36:39], s50 offen lds")
    a("L_k1_noq3:")
    a("s_nop 4")
    for r_ in vS + vQ:
        a(f"v_add_f32_dpp v{r_}, v{r_}, v{r_} quad_perm:[1,0,3,2] row_mask:0xf bank_mask:0xf")
    for r_ in vS + vQ:
        a(f"v_add_f32_dpp v{r_}, v{r_}, v{r_} quad_perm:[2,3,0,1] row_mask:0xf bank_mask:0xf")
    for r_ in vS + vQ:
        a(f"v_add_f32_dpp v{r_}, v{r_}, v{r_} row_half_mirror row_mask:0xf bank_mask:0xf")
    a(f"s_mov_b32 s63, {hx(1.0/640)}")
    a(f"s_mov_b32 s64, {hx(1e-5)}")
    a("v_lshrrev_b32 v27, 3, v1")
    a("v_lshlrev_b32 v27, 2, v27")
    a("v_add_u32 v27, s48, v27")
    for rg in range(4):
        s_, q_ = f"v{vS[rg]}", f"v{vQ[rg]}"
        a(f"v_mul_f32 {s_}, s63, {s_}")
        a(f"v_mul_f32 {q_}, s63, {q_}")
        a(f"v_fma_f32 {q_}, -{s_}, {s_}, {q_}")
        a(f"v_max_f32 {q_}, 0, {q_}")
        a(f"v_add_f32 {q_}, s64, {q_}")
        a(f"v_rsq_f32 {q_}, {q_}")
        a(f"v_mul_f32 {s_}, {s_}, {q_}")
        a(f"ds_write_b32 v27, {q_} offset:{32*rg}")
        a(f"ds_write_b32 v27, {s_} offset:{128 + 32*rg}")
    RS = 96; MS = 104; RT = 112; MT = 114
    a("v_lshrrev_b32 v28, 4, v1")
    a("v_lshlrev_b32 v28, 4, v28")
    a("v_add_u32 v28, s48, v28")
    a("v_and_b32 v29, 15, v1")
    a("v_cmp_gt_u32 s[66:67], 8, v29")
    a("v_lshlrev_b32 v29, 2, v29")
    a("v_add_u32 v29, s48, v29")
    for tt in range(2):
        a(f"ds_read_b128 {R(RS + 4*tt, 4)}, v28 offset:{64*tt}")
        a(f"ds_read_b128 {R(MS + 4*tt, 4)}, v28 offset:{128 + 64*tt}")
        a(f"ds_read_b32 v{RT + tt}, v29 offset:{64*tt}")
        a(f"ds_read_b32 v{MT + tt}, v29 offset:{128 + 64*tt}")
    a("s_waitcnt lgkmcnt(0)")
    OP = 120
    for t in range(5):
        for tt in range(2):
            for r_ in range(4):
                v_ = f"v{acc(tt, t) + r_}"
                a(f"v_mul_f32 {t0}, v{MS + 4*tt + r_}, v{cs(t)}")
                a(f"v_fma_f32 {v_}, {v_}, v{RS + 4*tt + r_}, -{t0}")
                if t < 2:
                    phi(a, v_, t1, t2)
                elif t == 2:
                    a(f"v_mov_b32 {t3}, {v_}")
                    phi(a, t3, t1, t2)
                    a(f"v_cndmask_b32 {v_}, {v_}, {t3}, s[66:67]")
            for h in range(2):
                a(f"v_cvt_pk_bf16_f32 v{OP + 4*t + 2*tt + h}, v{acc(tt, t) + 2*h}, v{acc(tt, t) + 2*h + 1}")
    KVD = 144
    for p, (ta, tb) in enumerate(PAIRS):
        b = R(ONES, 4) if tb < 0 else R(OP + 4*tb, 4)
        a(f"v_mfma_f32_16x16x32_bf16 {R(KVD + 4*p, 4)}, {R(OP + 4*ta, 4)}, {b}, 0")
    a("s_mul_i32 s3, s28, 10240")
    a("v_lshlrev_b32 v27, 4, v1")
    a("v_add_u32 v27, s3, v27")
    for p in range(10):
        a(f"ds_write_b128 v27, {R(KVD + 4*p, 4)} offset:{1024*p}")
    a("s_waitcnt vmcnt(0) lgkmcnt(0)")
    a("s_barrier")
    stamp(a)
    RP = 40960
    a("s_lshl_b32 s70, s2, 2"); a("s_add_u32 s70, s70, s28")
    a(f"s_mul_i32 s71, s28, 7168"); a(f"s_add_u32 s71, s71, {RP}")
    srd(a, 44, 12, 2211840)
    a("s_mov_b32 s72, 0")
    a("s_mov_b32 s73, 0"); a("s_mov_b32 s74, 0")
    a("s_cmp_ge_u32 s70, 912"); a("s_cbranch_scc1 L_k1_rp_issued")
    a("s_cmp_ge_u32 s70, 320"); a("s_cbranch_scc1 L_k1_rp5")
    a("s_mov_b32 s72, 1")
    a("s_mul_i32 s75, s70, 3277"); a("s_lshr_b32 s75, s75, 16")
    a("s_mul_i32 s76, s75, 20"); a("s_sub_u32 s76, s70, s76")
    a("s_mul_i32 s75, s75, 27"); a("s_lshr_b32 s75, s75, 2"); a("s_lshl_b32 s75, s75, 5")
    a("s_mul_i32 s76, s76, 110592"); a("s_add_u32 s73, s75, s76")
    a("s_mul_i32 s74, s70, 7168"); a(f"s_add_u32 s74, s74, {W1P}")
    for i in range(7):
        a(f"v_add_u32 v27, {64*i}, v1")
        divmod_const(a, "v28", "v29", "v27", 14)
        a("v_mul_u32_u24 v28, 3456, v28")
        a("v_lshl_add_u32 v28, v29, 4, v28")
        a(f"s_add_u32 m0, s71, {1024*i}")
        a(f"buffer_load_dwordx4 v28, s[44:47], s73 offen lds")
    a("s_branch L_k1_rp_issued")
    a("L_k1_rp5:")
    a("s_mov_b32 s72, 2")
    a("s_cmp_ge_u32 s70, 752"); a("s_cbranch_scc1 L_k1_rpwo")
    srd(a, 44, 16, 2211840)
    a("s_sub_u32 s70, s70, 320")
    a("s_mul_i32 s75, s70, 1214"); a("s_lshr_b32 s75, s75, 16")
    a("s_mul_i32 s76, s75, 54"); a("s_sub_u32 s76, s70, s76")
    a("s_mul_i32 s74, s70, 5120"); a(f"s_add_u32 s74, s74, {W2P}")
    a("s_branch L_k1_rp5b")
    a("L_k1_rpwo:")
    srd(a, 44, 8, 819200)
    a("s_sub_u32 s70, s70, 752")
    a("s_mul_i32 s75, s70, 3277"); a("s_lshr_b32 s75, s75, 16")
    a("s_mul_i32 s76, s75, 20"); a("s_sub_u32 s76, s70, s76")
    a("s_mul_i32 s74, s70, 5120"); a(f"s_add_u32 s74, s74, {WOP}")
    a("L_k1_rp5b:")
    a("s_mul_i32 s75, s75, 160"); a("s_mul_i32 s76, s76, 40960"); a("s_add_u32 s73, s75, s76")
    for i in range(5):
        a(f"v_add_u32 v27, {64*i}, v1")
        divmod_const(a, "v28", "v29", "v27", 10)
        a("v_mul_u32_u24 v28, 1280, v28")
        a("v_lshl_add_u32 v28, v29, 4, v28")
        a(f"s_add_u32 m0, s71, {1024*i}")
        a(f"buffer_load_dwordx4 v28, s[44:47], s73 offen lds")
    a("L_k1_rp_issued:")
    assert all(((u*3277) >> 16) == u//20 for u in range(320)) and all(((u*1214) >> 16) == u//54 for u in range(432))
    for w in range(4):
        a(f"ds_read_b128 {R(KVD + 4*w, 4)}, v{vT1} offset:{10240*w}")
    a("s_lshl_b32 s3, s27, 4"); a("s_add_u32 s3, s3, s26"); a("s_lshl_b32 s3, s3, 12"); a(f"s_add_u32 s3, s3, {PART}")
    a("v_lshlrev_b32 v27, 4, v0")
    a("s_waitcnt lgkmcnt(0)")
    for e in range(4):
        a(f"v_add_f32 v{KVD+e}, v{KVD+e}, v{KVD+4+e}")
        a(f"v_add_f32 v{KVD+8+e}, v{KVD+8+e}, v{KVD+12+e}")
    for e in range(4):
        a(f"v_add_f32 v{KVD+e}, v{KVD+e}, v{KVD+8+e}")
    a(f"buffer_store_dwordx4 {R(KVD, 4)}, v27, s[40:43], s3 offen")
    QA = 32
    def qreads(k, st):
        for t in range(3):
            for h in range(2):
                a(f"ds_read_b64_tr_b16 {R(BF + st*20 + t*4 + h*2, 2)}, v{vTQ} offset:{k*2560 + h*80 + t*32}")
    qreads(0, 0)
    for k in range(20):
        st = k & 1
        if k < 19:
            qreads(k+1, st ^ 1); a("s_waitcnt lgkmcnt(6)")
        else:
            a("s_waitcnt lgkmcnt(0)")
        for t in range(3):
            b = R(BF + st*20 + t*4, 4)
            for tt in range(2):
                d = R(QA + (tt*3+t)*4, 4)
                a(f"v_mfma_f32_16x16x32_bf16 {d}, {b}, {R(xf(tt, k), 4)}, {'0' if k == 0 else d}")
            d = R(QA + 24 + 4*t, 4)
            a(f"v_mfma_f32_16x16x32_bf16 {d}, {b}, {R(ONES, 4)}, {'0' if k == 0 else d}")
    stamp(a)
    PQR = 120
    a("v_cmp_gt_u32 s[66:67], 32, v1")
    for tt in range(2):
        for t in range(3):
            for r_ in range(4):
                v_ = f"v{QA + (tt*3+t)*4 + r_}"
                a(f"v_mul_f32 {t0}, v{MT + tt}, v{QA + 24 + 4*t + r_}")
                a(f"v_fma_f32 {v_}, {v_}, v{RT + tt}, -{t0}")
                phi(a, v_, t1, t2)
            for h in range(2):
                d = f"v{PQR + tt*6 + t*2 + h}"
                a(f"v_cvt_pk_bf16_f32 {d}, v{QA + (tt*3+t)*4 + 2*h}, v{QA + (tt*3+t)*4 + 2*h + 1}")
                if t == 2:
                    a(f"v_cndmask_b32 {d}, 0, {d}, s[66:67]")
    a("s_mul_i32 s3, s2, 12288"); a(f"s_add_u32 s3, s3, {PQ}")
    a("v_lshlrev_b32 v27, 4, v0")
    a("v_add_u32 v28, 4096, v27"); a("v_add_u32 v29, 8192, v27")
    for q in range(3):
        a(f"buffer_store_dwordx4 {R(PQR + 4*q, 4)}, v{27+q}, s[40:43], s3 offen")
    stamp(a)
    a("s_cmp_eq_u32 s72, 0"); a(f"s_cbranch_scc1 L_{name}_fin")
    a("s_waitcnt vmcnt(0)")
    a("v_lshrrev_b32 v27, 4, v1"); a("v_bfe_u32 v28, v1, 2, 2"); a("v_lshl_add_u32 v27, v27, 3, v28")
    a("v_and_b32 v28, 3, v1")
    a("v_lshlrev_b32 v31, 4, v1")
    a("s_cmp_eq_u32 s72, 2"); a("s_cbranch_scc1 L_k1_rf5")
    for nt, pitch, lab in ((7, 224, None), (5, 160, "L_k1_rf5")):
        if lab: a(f"{lab}:")
        a(f"v_mul_u32_u24 v29, {pitch}, v27")
        a("v_add_u32 v29, s71, v29")
        a("v_lshl_add_u32 v30, v28, 3, v29")
        a("v_lshl_add_u32 v29, v28, 4, v29")
        for t in range(nt):
            for h in range(2):
                if t == nt - 1:
                    a(f"ds_read_b64_tr_b16 {R(144 + 4*t + 2*h, 2)}, v30 offset:{h*4*pitch + 32*t}")
                else:
                    a(f"ds_read_b64_tr_b16 {R(144 + 4*t + 2*h, 2)}, v29 offset:{h*4*pitch + 64*(t>>1) + 8*(t&1)}")
        a("s_waitcnt lgkmcnt(0)")
        for t in range(nt):
            if t == 4: a("v_add_u32 v31, 4096, v31")
            a(f"buffer_store_dwordx4 {R(144 + 4*t, 4)}, v31, s[40:43], s74 offen offset:{1024*(t&3)}")
        if not lab: a(f"s_branch L_{name}_fin")
    epilogue(a, name)

def gen_k2(a, code_bytes):
    name = "k2_kernel"
    npre = prologue(a, name, code_bytes)
    a("v_lshlrev_b32 v8, 4, v0")
    a("v_lshlrev_b32 v9, 5, v1")
    a(f"s_add_u32 s54, s30, T2_tab-L_{name}_pc"); a("s_addc_u32 s55, s31, 0")
    a("global_load_dwordx4 v[12:15], v9, s[54:55]")
    a("global_load_dwordx2 v[16:17], v9, s[54:55] offset:16")
    a("s_waitcnt lgkmcnt(0)")
    srd(a, 40, 24, WS_END)
    a("s_lshl_b32 s3, s27, 16"); a(f"s_add_u32 s3, s3, {PART}")
    P0 = 64
    for r_ in range(16):
        a(f"buffer_load_dwordx4 {R(P0 + 4*r_, 4)}, v8, s[40:43], s3 offen")
        a("s_add_u32 s3, s3, 4096")
    PQR = 32
    a("s_mul_i32 s3, s2, 12288"); a(f"s_add_u32 s3, s3, {PQ}")
    for q in range(3):
        a(f"buffer_load_dwordx4 {R(PQR + 4*q, 4)}, v8, s[40:43], s3 offen")
        a("s_add_u32 s3, s3, 4096")
    stamp(a)
    a("s_waitcnt vmcnt(19)")
    stamp(a)
    TA = 44
    for s_ in range(12):
        src = 12 + s_//2
        if s_ & 1: a(f"v_lshrrev_b32 v{TA+s_}, 16, v{src}")
        else: a(f"v_and_b32 v{TA+s_}, 0xffff, v{src}")
    a("s_waitcnt vmcnt(3)")
    stamp(a)
    step = 1
    while step < 16:
        for r_ in range(0, 16, 2*step):
            for e in range(4):
                a(f"v_add_f32 v{P0+4*r_+e}, v{P0+4*r_+e}, v{P0+4*(r_+step)+e}")
        step *= 2
    a(f"v_cvt_pk_bf16_f32 v18, v{P0}, v{P0+1}")
    a(f"v_cvt_pk_bf16_f32 v19, v{P0+2}, v{P0+3}")
    a("v_cmp_gt_u32 vcc, 210, v0")
    a("v_cndmask_b32 v18, 0, v18, vcc"); a("v_cndmask_b32 v19, 0, v19, vcc")
    a("v_lshlrev_b32 v10, 3, v0")
    a("ds_write_b64 v10, v[18:19]")
    a("s_waitcnt lgkmcnt(0)")
    a("s_barrier")
    KF = 64
    for E in range(4):
        for ta in range(3):
            a(f"ds_read_b64 {R(KF + 8*E + 2*ta, 2)}, v{TA + 3*E + ta}")
    a("s_waitcnt vmcnt(0) lgkmcnt(0)")
    stamp(a)
    D = 100
    for tt in range(2):
        for E in range(4):
            d = R(D + (tt*4+E)*4, 4)
            a(f"v_mfma_f32_16x16x32_bf16 {d}, {R(KF + 8*E, 4)}, {R(PQR + 6*tt, 4)}, 0")
    for tt in range(2):
        for E in range(4):
            d = R(D + (tt*4+E)*4, 4)
            a(f"v_mfma_f32_16x16x16_bf16 {d}, {R(KF + 8*E + 4, 2)}, {R(PQR + 6*tt + 4, 2)}, {d}")
    a(f"s_mov_b32 s61, {hx(1e-6)}")
    a("v_cmp_gt_u32 s[66:67], 48, v1")
    a("v_cmp_gt_u32 s[68:69], 32, v1")
    a("s_lshl_b32 s3, s26, 3"); a("s_lshl_b32 s48, s28, 1"); a("s_add_u32 s3, s3, s48"); a("s_mul_i32 s3, s3, 20480")
    a("s_mul_i32 s48, s27, 1280"); a("s_add_u32 s3, s3, s48"); a(f"s_add_u32 s3, s3, {OB}")
    a("v_lshlrev_b32 v8, 4, v1")
    a("v_and_b32 v9, 15, v1"); a("v_lshlrev_b32 v9, 4, v9"); a("v_lshrrev_b32 v10, 4, v1"); a("v_lshl_add_u32 v9, v10, 3, v9")
    a("v_mov_b32 v10, 0x7fffffff")
    a("v_cndmask_b32 v9, v10, v9, s[68:69]")
    for tt in range(2):
        z = D + (tt*4+3)*4
        a(f"v_add_f32 v20, s61, v{z}"); a(f"v_add_f32 v21, s61, v{z+1}")
        a("v_rcp_f32 v20, v20"); a("v_rcp_f32 v21, v21")
        a("v_cndmask_b32 v22, v21, v20, s[66:67]")
        a("v_cndmask_b32 v23, v21, v20, s[68:69]")
        for E, rc in ((0, 22), (1, 23), (2, 21)):
            d = D + (tt*4+E)*4
            for e in range(4): a(f"v_mul_f32 v{d+e}, v{d+e}, v{rc}")
            o = 24 + 2*E + 0
            a(f"v_cvt_pk_bf16_f32 v{140 + tt*8 + 2*E}, v{d}, v{d+1}")
            a(f"v_cvt_pk_bf16_f32 v{140 + tt*8 + 2*E + 1}, v{d+2}, v{d+3}")
        a(f"buffer_store_dwordx4 {R(140 + tt*8, 4)}, v8, s[40:43], s3 offen")
        a(f"buffer_store_dwordx2 {R(140 + tt*8 + 4, 2)}, v9, s[40:43], s3 offen offset:1024")
        a("s_add_u32 s3, s3, 20480")
    epilogue(a, name)

def gen_k35(a, which, code_bytes):
    name = f"k{which}_kernel"
    npre = prologue(a, name, code_bytes)
    NK = 20 if which == 3 else 54
    nst = 5 if which == 3 else 14
    ABUF = OB if which == 3 else HID
    WP = WOP if which == 3 else W2P
    a("s_lshr_b32 s3, s27, 3"); a("s_lshl_b32 s48, s26, 1"); a("s_add_u32 s48, s48, s3")
    a("s_and_b32 s49, s27, 7")
    a("v_lshlrev_b32 v8, 4, v1")
    a("v_add_u32 v9, 4096, v8")
    for m in range(4):
        a(f"s_add_u32 s3, s28, {m}"); a("s_and_b32 s3, s3, 3"); a("s_lshl_b32 s50, s48, 2"); a("s_add_u32 s3, s3, s50")
        a(f"s_mul_i32 s3, s3, {NK}"); a("s_add_u32 s3, s3, s28"); a("s_lshl_b32 s3, s3, 10"); a(f"s_add_u32 s{52+m}, s3, {ABUF}")
    a(f"s_mul_i32 s3, s49, {NK}"); a("s_add_u32 s3, s3, s28"); a("s_mul_i32 s3, s3, 5120"); a(f"s_add_u32 s56, s3, {WP}")
    a("s_waitcnt lgkmcnt(0)")
    srd(a, 40, 24, WS_END)
    ACC = 32
    RING = min(nst, 7)
    FR = A0
    def fa(n, m): return FR + ((n % RING)*9 + m)*4
    def fb(n, t): return FR + ((n % RING)*9 + 4 + t)*4
    a("v_and_b32 v10, 15, v1"); a("v_lshrrev_b32 v11, 4, v1")
    a("v_lshrrev_b32 v12, 1, v11"); a("v_lshlrev_b32 v12, 8, v12"); a("v_lshl_add_u32 v12, v10, 4, v12")
    a("v_and_b32 v13, 1, v11"); a("v_lshl_add_u32 v12, v13, 3, v12")
    a("s_lshl_b32 s3, s48, 2"); a("s_add_u32 s3, s3, s28")
    a("s_mul_i32 s57, s3, 20480"); a("s_mul_i32 s50, s49, 2560"); a("s_add_u32 s57, s57, s50"); a(f"s_add_u32 s57, s57, {HB}")
    a("v_mul_u32_u24 v13, 1280, v10"); a("v_lshl_add_u32 v14, v11, 3, v13"); a("v_lshl_add_u32 v13, v11, 4, v13")
    a("s_mul_i32 s58, s3, 20480"); a("s_mul_i32 s50, s49, 160"); a("s_add_u32 s58, s58, s50")
    RES = 112
    BIA = 124
    nextra = 0
    if which == 3:
        srd(a, 32, 4, 2621440)
        a(f"buffer_load_dwordx4 {R(RES, 4)}, v13, s[32:35], s58 offen")
        a(f"buffer_load_dwordx4 {R(RES+4, 4)}, v13, s[32:35], s58 offen offset:64")
        a(f"buffer_load_dwordx2 {R(RES+8, 2)}, v14, s[32:35], s58 offen offset:128")
    else:
        srd(a, 32, 20, 2621440)
        srd(a, 36, 18, 1280)
        a(f"buffer_load_dwordx4 {R(RES, 4)}, v8, s[40:43], s57 offen")
        a(f"buffer_load_dwordx4 {R(RES+4, 4)}, v8, s[40:43], s57 offen offset:1024")
        a(f"buffer_load_dwordx2 {R(RES+8, 2)}, v12, s[40:43], s57 offen offset:2048")
        a("v_lshlrev_b32 v15, 4, v11"); a("v_lshlrev_b32 v16, 3, v11")
        a(f"buffer_load_dwordx4 {R(BIA, 4)}, v15, s[36:39], s50 offen")
        a(f"buffer_load_dwordx4 {R(BIA+4, 4)}, v15, s[36:39], s50 offen offset:64")
        a(f"buffer_load_dwordx2 {R(BIA+8, 2)}, v16, s[36:39], s50 offen offset:128")
    def issue(n):
        if which == 5 and n == 13:
            a("s_cmp_ge_u32 s28, 2"); a("s_cselect_b32 s3, 0x40000000, 0")
            for m in range(5): a(f"s_add_u32 s{52+m}, s{52+m}, s3")
        for t in range(5):
            a(f"buffer_load_dwordx4 {R(fb(n, t), 4)}, v{8 if t < 4 else 9}, s[40:43], s56 offen offset:{1024*(t&3)}")
        for m in range(4):
            a(f"buffer_load_dwordx4 {R(fa(n, m), 4)}, v8, s[40:43], s{52+m} offen")
            a(f"s_add_u32 s{52+m}, s{52+m}, 4096")
        a("s_add_u32 s56, s56, 20480")
    pre = min(RING - 1, nst) if nst > RING else nst
    for n in range(pre): issue(n)
    nxt = pre
    stamp(a)
    for n in range(nst):
        out = (nxt - n - 1)*9
        a(f"s_waitcnt vmcnt({out})")
        if n in (0, nst-1): stamp(a)
        for m in range(4):
            for t in range(5):
                d = R(ACC + (m*5+t)*4, 4)
                a(f"v_mfma_f32_16x16x32_bf16 {d}, {R(fb(n, t), 4)}, {R(fa(n, m), 4)}, {'0' if n == 0 else d}")
        if nxt < nst:
            issue(nxt); nxt += 1
    stamp(a)
    for m in range(1, 4):
        a(f"s_add_u32 s3, s28, {m}"); a("s_and_b32 s3, s3, 3"); a("s_mul_i32 s3, s3, 15360")
        a(f"v_add_u32 v{16+m}, s3, v8")
    for m in range(1, 4):
        for t in range(5):
            a(f"ds_write_b128 v{16+m}, {R(ACC + (m*5+t)*4, 4)} offset:{(m-1)*5120 + t*1024}")
    a("s_mul_i32 s3, s28, 15360"); a("v_add_u32 v16, s3, v8")
    a("s_waitcnt lgkmcnt(0)")
    a("s_barrier")
    for m in range(1, 4):
        for t in range(5):
            a(f"ds_read_b128 {R(ACC + (m*5+t)*4, 4)}, v16 offset:{(m-1)*5120 + t*1024}")
    stamp(a)
    U = 140
    for t in range(5):
        for e in range(4):
            src = RES + 2*t + (e >> 1)
            if e & 1: a(f"v_and_b32 v{U+4*t+e}, 0xffff0000, v{src}")
            else: a(f"v_lshlrev_b32 v{U+4*t+e}, 16, v{src}")
            a(f"v_add_f32 v{ACC+4*t+e}, v{ACC+4*t+e}, v{U+4*t+e}")
            if which == 5:
                src = BIA + 2*t + (e >> 1)
                if e & 1: a(f"v_and_b32 v{U+4*t+e}, 0xffff0000, v{src}")
                else: a(f"v_lshlrev_b32 v{U+4*t+e}, 16, v{src}")
                a(f"v_add_f32 v{ACC+4*t+e}, v{ACC+4*t+e}, v{U+4*t+e}")
    a("s_waitcnt lgkmcnt(0)")
    for t in range(5):
        for e in range(4):
            x0 = ACC + 4*t + e
            a(f"v_add_f32 v{x0+20}, v{x0+20}, v{x0+40}")
            a(f"v_add_f32 v{x0}, v{x0}, v{x0+60}")
            a(f"v_add_f32 v{x0}, v{x0}, v{x0+20}")
        for h in range(2):
            a(f"v_cvt_pk_bf16_f32 v{U+2*t+h}, v{ACC+4*t+2*h}, v{ACC+4*t+2*h+1}")
    if which == 3:
        a(f"buffer_store_dwordx4 {R(U, 4)}, v8, s[40:43], s57 offen")
        a(f"buffer_store_dwordx4 {R(U+4, 4)}, v8, s[40:43], s57 offen offset:1024")
        a(f"buffer_store_dwordx2 {R(U+8, 2)}, v12, s[40:43], s57 offen offset:2048")
    else:
        a(f"buffer_store_dwordx4 {R(U, 4)}, v13, s[32:35], s58 offen")
        a(f"buffer_store_dwordx4 {R(U+4, 4)}, v13, s[32:35], s58 offen offset:64")
        a(f"buffer_store_dwordx2 {R(U+8, 2)}, v14, s[32:35], s58 offen offset:128")
    epilogue(a, name)

def gen_k4(a, code_bytes):
    name = "k4_kernel"
    npre = prologue(a, name, code_bytes)
    HF = 96
    ACC = 32
    BF = A0
    ONES = A0 + 56
    CSA = A0 + 60
    CSL = 143360
    a("v_lshlrev_b32 v8, 4, v1")
    for q in range(1, 5): a(f"v_add_u32 v{8+q}, {4096*q}, v8")
    a("v_add_u32 v13, 57344, v8"); a("v_add_u32 v14, 114688, v8")
    a("v_mov_b32 v27, 0x3f803f80")
    for i in range(4): a(f"v_accvgpr_write_b32 {R(ONES+i)}, v27")
    a("s_mov_b32 s62, 0x3f803f80")
    vS = [88, 89]; vQ = [90, 91]
    for r_ in vS + vQ: a(f"v_mov_b32 v{r_}, 0")
    a("s_lshl_b32 s3, s26, 3"); a("s_lshl_b32 s48, s28, 1"); a("s_add_u32 s48, s48, s3")
    a("s_mul_i32 s49, s48, 20480"); a(f"s_add_u32 s49, s49, {HB}"); a("s_add_u32 s50, s49, 20480")
    a("s_mul_i32 s51, s27, 143360"); a("s_mul_i32 s52, s28, 7168"); a("s_add_u32 s51, s51, s52"); a(f"s_add_u32 s51, s51, {W1P}")
    a("s_mul_i32 s53, s27, 27"); a("s_lshr_b32 s53, s53, 2")
    a("s_waitcnt lgkmcnt(0)")
    srd(a, 40, 24, WS_END); srd(a, 36, 14, 3456)
    def hf(tt, k): return HF + (tt*20 + k)*4
    a("v_lshrrev_b32 v15, 4, v1"); a("v_lshlrev_b32 v30, 4, v15"); a("v_lshlrev_b32 v31, 3, v15")
    a("s_lshl_b32 s54, s53, 5")
    for p in range(3): a(f"buffer_load_dwordx4 {R(16 + 4*p, 4)}, v30, s[36:39], s54 offen offset:{64*p}")
    a(f"buffer_load_dwordx2 v[28:29], v31, s[36:39], s54 offen offset:192")
    issued = npre + 4
    def issue(j):
        a(f"s_add_u32 m0, s52, {j*28672}")
        for i in range(4): a(f"buffer_load_dwordx4 v8, s[40:43], s51 offen offset:{1024*i} lds")
        a(f"s_add_u32 m0, s52, {j*28672 + 4096}")
        for i in range(3): a(f"buffer_load_dwordx4 v9, s[40:43], s51 offen offset:{1024*i} lds")
        a("s_add_u32 s51, s51, 28672")
        for kk in range(4):
            for tt in range(2):
                a(f"buffer_load_dwordx4 {R(hf(tt, 4*j+kk), 4)}, v{8+j}, s[40:43], s{49+tt} offen offset:{1024*kk}")
    for j in range(4): issue(j)
    issued += 60
    stamp(a)
    def breads(k, st):
        for t in range(7):
            a(f"ds_read_b128 {R(BF + st*28 + 4*t, 4)}, v{[8, 13, 14][k >> 3]} offset:{(k & 7)*7168 + 1024*t}")
    for j in range(5):
        done = npre + 4 + 15*(j+1)
        a(f"s_waitcnt vmcnt({issued - done})")
        a("s_barrier")
        if j in (0, 4): stamp(a)
        if j == 0:
            issue(4); issued += 15
        breads(4*j, 0)
        for kk in range(4):
            k = 4*j + kk; st = kk & 1
            if kk < 3:
                breads(k+1, st ^ 1); a("s_waitcnt lgkmcnt(7)")
            else:
                a("s_waitcnt lgkmcnt(0)")
            dots = []
            for e in range(4):
                for tt in range(2):
                    r_ = hf(tt, k) + e
                    dots.append(f"v_dot2_f32_bf16 v{vS[tt]}, v{r_}, s62, v{vS[tt]}")
                    dots.append(f"v_dot2_f32_bf16 v{vQ[tt]}, v{r_}, v{r_}, v{vQ[tt]}")
            for t in range(7):
                for tt in range(2):
                    d = R(ACC + (tt*7+t)*4, 4)
                    a(f"v_mfma_f32_16x16x32_bf16 {d}, {R(BF + st*28 + 4*t, 4)}, {R(hf(tt, k), 4)}, {'0' if k == 0 else d}")
                    a(dots.pop(0))
            a(dots.pop(0)); a(dots.pop(0))
    stamp(a)
    a("s_mul_i32 s3, s28, 35840"); a("v_add_u32 v13, s3, v8")
    for n in range(5):
        st = n & 1
        for t in range(7):
            a(f"ds_read_b128 {R(BF + st*28 + 4*t, 4)}, v13 offset:{n*7168 + 1024*t}")
        a("s_waitcnt lgkmcnt(0)")
        for t in range(7):
            d = R(CSA + 4*t, 4)
            a(f"v_mfma_f32_16x16x32_bf16 {d}, {R(BF + st*28 + 4*t, 4)}, {R(ONES, 4)}, {'0' if n == 0 else d}")
    a("s_lshl_b32 s3, s28, 9"); a(f"s_add_u32 s3, s3, {CSL}")
    a("v_add_u32 v13, s3, v30")
    a(f"v_add_u32 v14, {CSL}, v30")
    for t in range(7):
        a(f"ds_write_b128 v13, {R(CSA + 4*t, 4)} offset:{64*t}")
    for r_ in vS + vQ:
        a(f"v_mov_b32 v92, v{r_}")
        a(f"v_permlane32_swap_b32 v{r_}, v92")
        a(f"v_add_f32 v{r_}, v{r_}, v92")
        a(f"v_mov_b32 v92, v{r_}")
        a(f"v_permlane16_swap_b32 v{r_}, v92")
        a(f"v_add_f32 v{r_}, v{r_}, v92")
    a(f"s_mov_b32 s63, {hx(1.0/640)}"); a(f"s_mov_b32 s64, {hx(1e-5)}")
    for tt in range(2):
        s_, q_ = f"v{vS[tt]}", f"v{vQ[tt]}"
        a(f"v_mul_f32 {s_}, s63, {s_}")
        a(f"v_mul_f32 {q_}, s63, {q_}")
        a(f"v_fma_f32 {q_}, -{s_}, {s_}, {q_}")
        a(f"v_max_f32 {q_}, 0, {q_}")
        a(f"v_add_f32 v92, s64, {q_}")
        a(f"v_fma_f32 {q_}, v92, s64, {q_}")
        a(f"v_rsq_f32 {q_}, {q_}")
        a(f"v_mul_f32 {s_}, {s_}, {q_}")
    a("s_waitcnt lgkmcnt(0)")
    a("s_barrier")
    stamp(a)
    CS = 96
    for w in range(4):
        for t in range(7):
            a(f"ds_read_b128 {R(CS + 28*w + 4*t, 4)}, v14 offset:{512*w + 64*t}")
    B1 = 208
    for t in range(7):
        for e in range(4):
            src = 16 + 2*t + (e >> 1)
            if e & 1: a(f"v_and_b32 v{B1+4*t+e}, 0xffff0000, v{src}")
            else: a(f"v_lshlrev_b32 v{B1+4*t+e}, 16, v{src}")
    a("s_waitcnt lgkmcnt(0)")
    for x in range(28):
        a(f"v_add_f32 v{CS+x}, v{CS+x}, v{CS+28+x}")
        a(f"v_add_f32 v{CS+56+x}, v{CS+56+x}, v{CS+84+x}")
        a(f"v_add_f32 v{CS+x}, v{CS+x}, v{CS+56+x}")
    c1 = -2.0*LOG2E*0.7978845608028654
    c2 = c1*0.044715
    a(f"s_mov_b32 s60, {hx(c1)}"); a(f"s_mov_b32 s61, {hx(c2)}")
    a("v_mov_b32 v93, s60")
    a("s_mul_i32 s49, s48, 55296"); a("s_lshl_b32 s3, s53, 9"); a("s_add_u32 s49, s49, s3"); a(f"s_add_u32 s49, s49, {HID}")
    a("v_and_b32 v10, 15, v1")
    a("v_lshrrev_b32 v12, 1, v15"); a("v_lshlrev_b32 v12, 8, v12"); a("v_lshl_add_u32 v12, v10, 4, v12")
    a("v_and_b32 v13, 1, v15"); a("v_lshl_add_u32 v12, v13, 3, v12")
    PK = 130
    stamp(a)
    for tt in range(2):
        for t in range(7):
            for e in range(4):
                v_ = f"v{ACC + (tt*7+t)*4 + e}"
                ta, tb = f"v{160+e}", f"v{164+e}"
                a(f"v_fma_f32 {ta}, -v{vS[tt]}, v{CS+4*t+e}, v{B1+4*t+e}")
                a(f"v_fma_f32 {v_}, {v_}, v{vQ[tt]}, {ta}")
                a(f"v_mul_f32 {ta}, {v_}, {v_}")
                a(f"v_fma_f32 {ta}, {ta}, s61, v93")
                a(f"v_mul_f32 {ta}, {ta}, {v_}")
                a(f"v_exp_f32 {ta}, {ta}")
            for e in range(4):
                ta = f"v{160+e}"
                a(f"v_add_f32 {ta}, 1.0, {ta}")
                a(f"v_rcp_f32 {ta}, {ta}")
            for e in range(4):
                v_ = f"v{ACC + (tt*7+t)*4 + e}"
                a(f"v_mul_f32 {v_}, {v_}, v{160+e}")
            for h in range(2):
                x0 = ACC + (tt*7+t)*4 + 2*h
                a(f"v_cvt_pk_bf16_f32 v{PK + tt*14 + 2*t + h}, v{x0}, v{x0+1}")
        for p in range(3):
            a(f"buffer_store_dwordx4 {R(PK + tt*14 + 4*p, 4)}, v8, s[40:43], s49 offen offset:{1024*p}")
        a(f"buffer_store_dwordx2 {R(PK + tt*14 + 12, 2)}, v12, s[40:43], s49 offen offset:3072")
        a("s_add_u32 s49, s49, 55296")
    epilogue(a, name)

def main(out):
    hdr = open("sequential_preLN__linear_attn_block__mixer_channel_mlp__prompt.s.ref").read().split("\n")
    hdr = [l for l in hdr if l.startswith(";") and "@launch" not in l and "Override launch" not in l and "grid=ceil" not in l]
    launches = [("k1_kernel", 161792), ("k2_kernel", 2048), ("k3_kernel", 61440), ("k4_kernel", 145408), ("k5_kernel", 61440)]
    for n, lds in launches:
        hdr.append(f"; @launch kernel={n} grid=(256,1,1) block=(256,1,1) lds={lds}")
    a = Asm()
    a.raw('.amdgcn_target "amdgcn-amd-amdhsa--gfx950"\n.text')
    gen_k1(a, 16384)
    gen_k2(a, 0)
    gen_k35(a, 3, 0)
    gen_k4(a, 12288)
    gen_k35(a, 5, 4096)
    T1, T2 = build_tables()
    a.raw(".p2align 6\nT1_tab:")
    a.raw(".short " + ",".join(map(str, T1)))
    a.raw("T2_tab:")
    for row in T2: a.raw(".short " + ",".join(map(str, row)))
    a.raw(".fill 4096, 4, 0")
    a.raw('.section .rodata,"a"')
    for n, _ in launches:
        a.raw(".p2align 6\n" + desc(n))
    open(out, "w").write("\n".join(hdr) + "\n" + a.finish())

if __name__ == "__main__":
    main(sys.argv[1] if len(sys.argv) > 1 else "sequential_preLN__linear_attn_block__mixer_channel_mlp__prompt.s")
```

```python
import sys, struct, os
from asmdsl import Asm, R, S
from gen1 import build_tables, PAIRS, f2u, hx, divmod_const, srd, LOG2E

NAME = "sequential_preLN__linear_attn_block__mixer_channel_mlp__prompt_kernel"
WOP = 0
W2P = WOP + 8*20*5*1024
W1P = W2P + 8*54*5*1024
C1P = W1P + 16*20*7*1024
PART = C1P + 320*512
GRP = PART + 256*4096
G_O = 0; G_H = 163840; G_ST = 327680; G_HID = 335872; G_SZ = 335872 + 442368
FLG = GRP + 16*G_SZ
F1 = FLG; RF = FLG + 2048; F2 = FLG + 4096; F3 = FLG + 6144; F4 = FLG + 8192
WS_END = FLG + 16384
A0 = 256
STAMP = int(os.environ.get("STAMP", "0"))
STB = 32 << 20
POLLMAX = 1 << 15

class G:
    def __init__(self):
        self.a = Asm()
        self.vm = []
        self.nst = 0
    def __call__(self, t): self.a(t)
    def vmem(self, text, tag=None):
        self.a(text); self.vm.append(tag)
    def wait(self, tag, extra=""):
        idx = max(i for i, t in enumerate(self.vm) if t == tag)
        n = len(self.vm) - 1 - idx
        n = min(n, 63)
        self.a(f"s_waitcnt vmcnt({n}){extra}")
    def waitall(self, extra=""):
        self.a(f"s_waitcnt vmcnt(0){extra}"); self.vm = []
    def stamp(self):
        if not STAMP: return
        i = self.nst; self.nst += 1
        assert i < 30
        self.a("s_memtime s[100:101]")
        self.a("s_waitcnt lgkmcnt(0)")
        self.a(f"v_writelane_b32 v7, s100, {i}")

def phi(a, val, t1, t2):
    a(f"v_mul_f32 {t1}, s60, {val}")
    a(f"v_max_f32 {t2}, 0, {val}")
    a(f"v_exp_f32_e64 {t1}, {t1} clamp")
    a(f"v_add_f32 {t2}, s61, {t2}")
    a(f"v_add_f32 {val}, {t1}, {t2}")

def interleave(a, main, extra, every=1):
    n = len(main); m = len(extra); j = 0
    for i, x in enumerate(main):
        x() if callable(x) else a(x)
        while j < m and (j + 1) * n <= (i + 1) * m:
            e = extra[j]; e() if callable(e) else a(e); j += 1
    while j < m:
        e = extra[j]; e() if callable(e) else a(e); j += 1

def gen(code_bytes):
    a = G()
    name = NAME
    a.a.raw(f".globl {name}\n.p2align 8\n.type {name},@function\n{name}:")
    a("s_cmp_ge_u32 s2, 256")
    a("s_cbranch_scc1 L_end")
    a("s_load_dwordx16 s[4:19], s[0:1], 0")
    a("s_load_dwordx4 s[20:23], s[0:1], 64")
    a("s_load_dwordx2 s[24:25], s[0:1], 80")
    a("s_memrealtime s[76:77]")
    a("s_getpc_b64 s[30:31]")
    a("L_pc:")
    a("v_mov_b32 v7, 0")
    a.stamp()
    a("v_lshrrev_b32 v2, 6, v0")
    a("v_and_b32 v1, 63, v0")
    a("v_readfirstlane_b32 s28, v2")
    a("s_and_b32 s3, s2, 7")
    a("s_lshr_b32 s27, s2, 3")
    a("s_lshr_b32 s26, s27, 4")
    a("s_lshl_b32 s3, s3, 1")
    a("s_add_u32 s26, s26, s3")
    a("s_and_b32 s27, s27, 15")
    a("v_lshlrev_b32 v3, 7, v0")
    for i in range((code_bytes + 32767)//32768):
        a.vmem("global_load_dword v4, v3, s[30:31]")
        a("v_add_u32 v3, 32768, v3")
    BQ = 102400; SCR = 153600
    vXA = [8, 9, 10, 11]; vW = [12, 13]; vRd = [14, 15]; vBA = [16, 17, 18, 19, 20]; vTB = [21, 22]; vTQ = 23
    vT1 = 24; vSTW = 25
    ACC = 32; RAW = 96; XF = A0; BF = A0 + 160; ONES = A0 + 200; GR = A0 + 204; RSM = A0 + 212
    t0, t1, t2, t3 = "v27", "v28", "v29", "v30"
    a("v_lshrrev_b32 v27, 3, v1")
    a("v_and_b32 v28, 7, v1")
    a("v_mul_u32_u24 v29, 1280, v27")
    a(f"v_lshl_add_u32 v{vXA[0]}, v28, 4, v29")
    for rg in range(1, 4):
        a(f"v_add_u32 v{vXA[rg]}, {10240*rg}, v{vXA[0]}")
    a("s_lshl_b32 s3, s28, 11")
    a(f"s_add_u32 s48, s3, {SCR}")
    a("v_lshrrev_b32 v29, 1, v27")
    a("v_xor_b32 v29, v29, v28")
    a("v_lshlrev_b32 v29, 4, v29")
    a("v_lshl_add_u32 v29, v27, 7, v29")
    a(f"v_add_u32 v{vW[0]}, s48, v29")
    a(f"v_xor_b32 v29, 64, v29")
    a(f"v_add_u32 v29, 1024, v29")
    a(f"v_add_u32 v{vW[1]}, s48, v29")
    for i in range(5):
        a(f"v_add_u32 v27, {64*i}, v1")
        divmod_const(a, "v28", "v29", "v27", 10)
        a("v_and_b32 v30, 0x13, v28")
        a("v_bfe_u32 v27, v28, 2, 1")
        a("v_lshl_add_u32 v30, v27, 3, v30")
        a("v_bfe_u32 v27, v28, 3, 1")
        a("v_lshl_add_u32 v30, v27, 2, v30")
        a("v_mul_u32_u24 v30, 3840, v30")
        a("v_lshl_add_u32 v30, v29, 4, v30")
        a("v_cmp_lt_u32 vcc, 4, v29")
        a("v_add_u32 v27, 1200, v30")
        a(f"v_cndmask_b32 v{vBA[i]}, v30, v27, vcc")
    a("s_waitcnt lgkmcnt(0)")
    srd(a, 32, 4, 2621440); srd(a, 36, 6, 2457600); srd(a, 40, 24, WS_END)
    a("s_lshl_b32 s49, s26, 7"); a("s_lshl_b32 s3, s28, 5"); a("s_add_u32 s49, s49, s3"); a("s_mul_i32 s49, s49, 1280")
    a("s_mul_i32 s50, s28, 122880"); a("s_mul_i32 s51, s27, 80"); a("s_add_u32 s50, s50, s51"); a("s_add_u32 s50, s50, 1280")
    a("s_mul_i32 s52, s28, 5120")
    def raw(cx, rg): return RAW + (cx*4 + rg)*4
    def xf(tt, k): return XF + (tt*20 + k)*4
    def ldx(cx):
        return [lambda cx=cx, rg=rg: a.vmem(f"buffer_load_dwordx4 {R(raw(cx, rg), 4)}, v{vXA[rg]}, s[32:35], s49 offen offset:{128*cx}", f"X{cx}") for rg in range(4)]
    def ldb(j):
        def one(i):
            a(f"s_add_u32 m0, s52, {j*20480 + i*1024}")
            a.vmem(f"buffer_load_dwordx4 v{vBA[i]}, s[36:39], s50 offen lds", f"B{j}")
            if i == 4: a(f"s_add_u32 s50, s50, {128*3840}")
        return [lambda i=i: one(i) for i in range(5)]
    for f in ldx(0) + ldx(1) + ldb(0) + ldx(2) + ldx(3): f()
    a("s_and_b32 s76, s76, 0xfffffff8"); a("s_or_b32 s76, s76, 8")
    a("s_or_b32 s3, s2, s28"); a("s_cmp_lg_u32 s3, 0"); a("s_cbranch_scc1 L_notag")
    a("v_mov_b32 v27, 0"); a("v_mov_b32 v28, s76")
    a("global_store_dword v27, v28, s[22:23] sc1")
    a("L_notag:")
    a("v_and_b32 v27, 15, v1")
    a("v_lshrrev_b32 v28, 4, v1")
    a("v_lshrrev_b32 v29, 1, v27")
    a("v_xor_b32 v29, v29, v28")
    a("v_lshlrev_b32 v29, 4, v29")
    a("v_lshl_add_u32 v29, v27, 7, v29")
    a(f"v_add_u32 v{vRd[0]}, s48, v29")
    a(f"v_xor_b32 v29, 64, v29")
    a(f"v_add_u32 v{vRd[1]}, s48, v29")
    a("v_lshrrev_b32 v29, 2, v27")
    a("v_cmp_eq_u32 vcc, v29, v28")
    a("v_lshlrev_b32 v29, 2, v27"); a("v_lshlrev_b32 v30, 2, v1"); a("v_add_u32 v30, 512, v30")
    a("v_cndmask_b32 v29, v30, v29, vcc")
    a(f"v_add_u32 v{vSTW}, s48, v29")
    a("v_and_b32 v29, 1, v1"); a("v_cmp_eq_u32 s[68:69], 1, v29")
    a("v_and_b32 v29, 2, v1"); a("v_cmp_eq_u32 s[70:71], 2, v29")
    a("v_cmp_gt_u32 s[66:67], 8, v27")
    a("v_lshrrev_b32 v27, 5, v1")
    a("v_bfe_u32 v28, v1, 4, 1")
    a("v_bfe_u32 v29, v1, 2, 2")
    a("v_lshl_add_u32 v29, v28, 2, v29")
    a("v_lshl_add_u32 v30, v27, 4, v29")
    a("v_mul_u32_u24 v30, 160, v30")
    a("v_and_b32 v28, 3, v1")
    a(f"v_lshl_add_u32 v{vTB[0]}, v28, 3, v30")
    a(f"v_add_u32 v{vTB[1]}, 61440, v{vTB[0]}")
    a("v_lshlrev_b32 v29, 1, v29")
    a("v_lshl_add_u32 v30, v27, 4, v29")
    a("v_mul_u32_u24 v30, 80, v30")
    a("v_lshl_add_u32 v30, v28, 3, v30")
    a(f"v_add_u32 v{vTQ}, {BQ}, v30")
    a("v_mov_b32 v27, 0x3f803f80")
    for i in range(4): a(f"v_accvgpr_write_b32 {R(ONES+i)}, v27")
    a(f"s_mov_b32 s60, {hx(LOG2E)}"); a(f"s_mov_b32 s61, {hx(1e-6)}")
    a(f"s_mov_b32 s63, {hx(1.0/640)}"); a(f"s_mov_b32 s64, {hx(1e-5)}")
    for f in ldb(1) + ldx(4) + ldx(5): f()
    a.stamp()
    def acc(tt, t): return ACC + (tt*5 + t)*4
    def cs(t): return ACC + 40 + 4*t
    def transp(cx):
        L = []
        for tt in range(2):
            L.append(f"ds_write_b128 v{vW[0]}, {R(raw(cx, 2*tt), 4)}")
            L.append(f"ds_write_b128 v{vW[1]}, {R(raw(cx, 2*tt+1), 4)}")
            L.append(f"ds_read_b128 {R(xf(tt, 2*cx), 4)}, v{vRd[0]}")
            L.append(f"ds_read_b128 {R(xf(tt, 2*cx+1), 4)}, v{vRd[1]}")
        return L
    def trreads(k, st):
        L = []
        for t in range(5):
            for h in range(2):
                b = vTB[0] if k < 12 else vTB[1]
                off = (k*5120 if k < 12 else k*5120 - 61440) + h*1280 + t*32
                L.append(f"ds_read_b64_tr_b16 {R(BF + st*20 + t*4 + h*2, 2)}, v{b} offset:{off}")
        return L
    def statm(k):
        L = []
        for tt in range(2):
            d = R(GR + 4*tt, 4); L.append(f"v_mfma_f32_16x16x32_bf16 {d}, {R(xf(tt, k), 4)}, {R(xf(tt, k), 4)}, {'0' if k == 0 else d}")
            d = R(RSM + 4*tt, 4); L.append(f"v_mfma_f32_16x16x32_bf16 {d}, {R(ONES, 4)}, {R(xf(tt, k), 4)}, {'0' if k == 0 else d}")
        return L
    vBQ = [92, 93, 94, 95, 26]
    for i in range(5):
        a(f"v_add_u32 v31, {64*i}, v1")
        divmod_const(a, "v28", "v29", "v31", 5)
        a("v_and_b32 v30, 0x30, v28")
        a("v_bfe_u32 v31, v28, 1, 2")
        a("v_add_u32 v30, v30, v31")
        a("v_and_b32 v31, 1, v28")
        a("v_lshl_add_u32 v30, v31, 2, v30")
        a("v_and_b32 v31, 8, v28")
        a("v_add_u32 v30, v30, v31")
        a("v_mul_u32_u24 v30, 3840, v30")
        a(f"v_lshl_add_u32 v{vBQ[i]}, v29, 4, v30")
    a("s_mul_i32 s53, s28, 245760"); a("s_add_u32 s53, s53, s51")
    a(f"s_add_u32 s54, s52, {BQ}")
    a("s_cmp_ge_u32 s28, 2"); a("s_cselect_b32 s55, 0x40000000, 0")
    def ldq(gq):
        def one(i):
            if gq == 2 and i == 0: a("s_add_u32 s53, s53, s55"); a("s_lshr_b32 s55, s55, 14"); a("s_add_u32 s54, s54, s55")
            a(f"s_add_u32 m0, s54, {gq*20480 + i*1024}")
            a.vmem(f"buffer_load_dwordx4 v{vBQ[i]}, s[36:39], s53 offen lds", "BQ")
            if i == 4: a(f"s_add_u32 s53, s53, {256*3840}")
        return [lambda i=i: one(i) for i in range(5)]
    def ldmisc():
        a("v_lshlrev_b32 v27, 1, v0")
        a("s_add_u32 s56, s30, T1_tab-L_pc"); a("s_addc_u32 s57, s31, 0")
        a.vmem(f"global_load_ushort v{vT1}, v27, s[56:57]", "T1")
        a("v_mov_b32 v27, 0")
        a.vmem("global_load_dword v5, v27, s[22:23] sc1", "TAG")
    a.wait("X1")
    for x in transp(0) + transp(1): a(x)
    RS = 96; MS = 104; RT = 112; MT = 114
    for j in range(5):
        a.wait(f"B{j}")
        a("s_barrier")
        if j in (0, 4): a.stamp()
        loads = {0: ldb(2) + ldx(6) + ldx(7), 1: ldb(3) + ldx(8) + ldx(9), 2: ldb(4) + [ldmisc] + ldq(0), 3: ldq(1) + ldq(2), 4: []}[j]
        for x in trreads(4*j, 0): a(x)
        if j == 0:
            a("s_waitcnt lgkmcnt(10)")
            for k in range(4):
                for x in statm(k): a(x)
        for kk in range(4):
            k = 4*j + kk; st = kk & 1
            side = []
            nl = 0
            if kk < 3:
                for x in trreads(k+1, st ^ 1): a(x)
                nl = 10
            if j < 4 and kk < 2:
                if kk == 0: a.wait(f"X{2*j+3}")
                tr = transp(2*j + 2 + kk)
                a(f"s_waitcnt lgkmcnt({nl})")
                side += tr
            else:
                a(f"s_waitcnt lgkmcnt({nl})")
            mf = []
            for t in range(5):
                b = R(BF + st*20 + t*4, 4)
                for tt in range(2):
                    d = R(acc(tt, t), 4)
                    mf.append(f"v_mfma_f32_16x16x32_bf16 {d}, {R(xf(tt, k), 4)}, {b}, {'0' if k == 0 else d}")
                d = R(cs(t), 4)
                mf.append(f"v_mfma_f32_16x16x32_bf16 {d}, {R(ONES, 4)}, {b}, {'0' if k == 0 else d}")
            if j < 4 and kk >= 2:
                kb = 4*(j+1) + 2*(kk-2)
                mf += statm(kb) + statm(kb+1)
            if j == 4 and kk == 0:
                for tt in range(2):
                    for e in range(4): side.append(f"v_accvgpr_read_b32 v{116+e}, {R(GR + 4*tt + e)}")
                    side.append(f"v_accvgpr_read_b32 v120, {R(RSM + 4*tt)}")
                    side.append("v_cndmask_b32 v116, v116, v117, s[68:69]")
                    side.append("v_cndmask_b32 v118, v118, v119, s[68:69]")
                    side.append("v_mul_f32 v120, s63, v120")
                    side.append("v_cndmask_b32 v116, v116, v118, s[70:71]")
                    side.append("v_mul_f32 v116, s63, v116")
                    side.append("v_fma_f32 v116, -v120, v120, v116")
                    side.append("v_max_f32 v116, 0, v116")
                    side.append("v_add_f32 v116, s64, v116")
                    side.append("v_rsq_f32 v116, v116")
                    side.append("v_mul_f32 v120, v120, v116")
                    side.append(f"ds_write_b32 v{vSTW}, v116 offset:{64*tt}")
                    side.append(f"ds_write_b32 v{vSTW}, v120 offset:{128 + 64*tt}")
            if j == 4 and kk == 1:
                side.append("v_lshrrev_b32 v28, 4, v1"); side.append("v_lshlrev_b32 v28, 4, v28"); side.append("v_add_u32 v28, s48, v28")
                side.append("v_and_b32 v29, 15, v1"); side.append("v_lshlrev_b32 v29, 2, v29"); side.append("v_add_u32 v29, s48, v29")
                for tt in range(2):
                    side.append(f"ds_read_b128 {R(RS + 4*tt, 4)}, v28 offset:{64*tt}")
                    side.append(f"ds_read_b128 {R(MS + 4*tt, 4)}, v28 offset:{128 + 64*tt}")
                    side.append(f"ds_read_b32 v{RT + tt}, v29 offset:{64*tt}")
                    side.append(f"ds_read_b32 v{MT + tt}, v29 offset:{128 + 64*tt}")
            q = (len(loads) + 3 - kk)//(4 - kk) if loads else 0
            side += loads[:q]; loads = loads[q:]
            interleave(a, mf, side)
    a.stamp()
    OP = 120
    for t in range(5):
        for tt in range(2):
            for r_ in range(4):
                v_ = f"v{acc(tt, t) + r_}"
                a(f"v_mul_f32 {t0}, v{MS + 4*tt + r_}, v{cs(t)}")
                a(f"v_fma_f32 {v_}, {v_}, v{RS + 4*tt + r_}, -{t0}")
                if t < 2:
                    phi(a, v_, t1, t2)
                elif t == 2:
                    a(f"v_mov_b32 {t3}, {v_}")
                    phi(a, t3, t1, t2)
                    a(f"v_cndmask_b32 {v_}, {v_}, {t3}, s[66:67]")
            for h in range(2):
                a(f"v_cvt_pk_bf16_f32 v{OP + 4*t + 2*tt + h}, v{acc(tt, t) + 2*h}, v{acc(tt, t) + 2*h + 1}")
    KVD = 144
    for p, (ta, tb) in enumerate(PAIRS):
        b = R(ONES, 4) if tb < 0 else R(OP + 4*tb, 4)
        a(f"v_mfma_f32_16x16x32_bf16 {R(KVD + 4*p, 4)}, {R(OP + 4*ta, 4)}, {b}, 0")
    a("s_mul_i32 s3, s28, 10240")
    a("v_lshlrev_b32 v8, 4, v1")
    a("v_add_u32 v27, s3, v8")
    for p in range(10):
        a(f"ds_write_b128 v27, {R(KVD + 4*p, 4)} offset:{1024*p}")
    a.wait("TAG", " lgkmcnt(0)")
    a("s_barrier")
    for w in range(4):
        a(f"ds_read_b128 {R(KVD + 4*w, 4)}, v{vT1} offset:{10240*w}")
    a("s_lshl_b32 s3, s27, 4"); a("s_add_u32 s3, s3, s26"); a("s_lshl_b32 s3, s3, 12"); a(f"s_add_u32 s3, s3, {PART}")
    a("v_lshlrev_b32 v9, 4, v0")
    a("v_readfirstlane_b32 s76, v5")
    a("s_waitcnt lgkmcnt(0)")
    for e in range(4):
        a(f"v_add_f32 v{KVD+e}, v{KVD+e}, v{KVD+4+e}")
        a(f"v_add_f32 v{KVD+8+e}, v{KVD+8+e}, v{KVD+12+e}")
    for e in range(4):
        a(f"v_add_f32 v{KVD+e}, v{KVD+e}, v{KVD+8+e}")
    a.vmem(f"buffer_store_dwordx4 {R(KVD, 4)}, v9, s[40:43], s3 offen sc1")
    a("s_mov_b32 s78, 0")
    a("L_tagpoll:")
    a("s_cmp_lg_u32 s76, 0"); a("s_cbranch_scc1 L_tagok")
    a("v_mov_b32 v27, 0")
    a("global_load_dword v5, v27, s[22:23] sc1")
    a("s_add_u32 s78, s78, 1")
    a("s_waitcnt vmcnt(0)")
    a("v_readfirstlane_b32 s76, v5")
    a(f"s_cmp_lt_u32 s78, {POLLMAX}"); a("s_cbranch_scc1 L_tagpoll")
    a("L_tagok:")
    a.waitall()
    a("s_barrier")
    a.stamp()
    a("v_mov_b32 v6, s76")
    a("v_mov_b32 v5, 0")
    a("s_cmp_lg_u32 s28, 0"); a("s_cbranch_scc1 L_nopub1")
    a("s_lshl_b32 s3, s27, 7"); a("s_lshl_b32 s56, s26, 2"); a("s_add_u32 s3, s3, s56"); a(f"s_add_u32 s3, s3, {F1}")
    a("s_mov_b64 exec, 1")
    a("buffer_store_dword v6, v5, s[40:43], s3 offen sc1")
    a("s_mov_b64 exec, -1")
    a("L_nopub1:")
    RP = 40960
    a("s_lshl_b32 s70, s2, 2"); a("s_add_u32 s70, s70, s28")
    a(f"s_mul_i32 s71, s28, 7168"); a(f"s_add_u32 s71, s71, {RP}")
    srd(a, 44, 12, 2211840)
    a("s_mov_b32 s72, 0"); a("s_mov_b32 s73, 0"); a("s_mov_b32 s74, 0")
    a("s_cmp_ge_u32 s70, 912"); a("s_cbranch_scc1 L_rp_issued")
    a("s_cmp_ge_u32 s70, 320"); a("s_cbranch_scc1 L_rp5")
    a("s_mov_b32 s72, 1")
    a("s_mul_i32 s75, s70, 3277"); a("s_lshr_b32 s75, s75, 16")
    a("s_mul_i32 s79, s75, 20"); a("s_sub_u32 s79, s70, s79")
    a("s_mul_i32 s75, s75, 27"); a("s_lshr_b32 s75, s75, 2"); a("s_lshl_b32 s75, s75, 5")
    a("s_mul_i32 s79, s79, 110592"); a("s_add_u32 s73, s75, s79")
    a("s_mul_i32 s74, s70, 7168"); a(f"s_add_u32 s74, s74, {W1P}")
    for i in range(7):
        a(f"v_add_u32 v27, {64*i}, v1")
        divmod_const(a, "v28", "v29", "v27", 14)
        a("v_mul_u32_u24 v28, 3456, v28")
        a("v_lshl_add_u32 v28, v29, 4, v28")
        a(f"s_add_u32 m0, s71, {1024*i}")
        a(f"buffer_load_dwordx4 v28, s[44:47], s73 offen lds")
    a("s_branch L_rp_issued")
    a("L_rp5:")
    a("s_mov_b32 s72, 2")
    a("s_cmp_ge_u32 s70, 752"); a("s_cbranch_scc1 L_rpwo")
    srd(a, 44, 16, 2211840)
    a("s_sub_u32 s70, s70, 320")
    a("s_mul_i32 s75, s70, 1214"); a("s_lshr_b32 s75, s75, 16")
    a("s_mul_i32 s79, s75, 54"); a("s_sub_u32 s79, s70, s79")
    a("s_mul_i32 s74, s70, 5120"); a(f"s_add_u32 s74, s74, {W2P}")
    a("s_branch L_rp5b")
    a("L_rpwo:")
    srd(a, 44, 8, 819200)
    a("s_sub_u32 s70, s70, 752")
    a("s_mul_i32 s75, s70, 3277"); a("s_lshr_b32 s75, s75, 16")
    a("s_mul_i32 s79, s75, 20"); a("s_sub_u32 s79, s70, s79")
    a("s_mul_i32 s74, s70, 5120"); a(f"s_add_u32 s74, s74, {WOP}")
    a("L_rp5b:")
    a("s_mul_i32 s75, s75, 160"); a("s_mul_i32 s79, s79, 40960"); a("s_add_u32 s73, s75, s79")
    for i in range(5):
        a(f"v_add_u32 v27, {64*i}, v1")
        divmod_const(a, "v28", "v29", "v27", 10)
        a("v_mul_u32_u24 v28, 1280, v28")
        a("v_lshl_add_u32 v28, v29, 4, v28")
        a(f"s_add_u32 m0, s71, {1024*i}")
        a(f"buffer_load_dwordx4 v28, s[44:47], s73 offen lds")
    a("L_rp_issued:")
    a(f"s_mul_i32 s58, s26, {G_SZ}"); a(f"s_add_u32 s58, s58, {GRP}")
    a("s_mul_i32 s3, s27, 20992"); a("s_add_u32 s3, s3, s58")
    a("v_lshlrev_b32 v27, 7, v0")
    a("s_cmp_eq_u32 s28, 3"); a("s_cbranch_scc1 L_notouch")
    a("buffer_load_dword v4, v27, s[40:43], s3 offen")
    a("L_notouch:")
    a("v_lshlrev_b32 v27, 5, v1")
    a("s_add_u32 s56, s30, T2_tab-L_pc"); a("s_addc_u32 s57, s31, 0")
    a("global_load_dwordx4 v[12:15], v27, s[56:57]")
    a("global_load_dwordx2 v[16:17], v27, s[56:57] offset:16")
    QA = 32
    def qreads(k, st):
        for t in range(3):
            for h in range(2):
                a(f"ds_read_b64_tr_b16 {R(BF + st*20 + t*4 + h*2, 2)}, v{vTQ} offset:{k*2560 + h*80 + t*32}")
    qreads(0, 0)
    for k in range(20):
        st = k & 1
        if k < 19:
            qreads(k+1, st ^ 1); a("s_waitcnt lgkmcnt(6)")
        else:
            a("s_waitcnt lgkmcnt(0)")
        for t in range(3):
            b = R(BF + st*20 + t*4, 4)
            for tt in range(2):
                d = R(QA + (tt*3+t)*4, 4)
                a(f"v_mfma_f32_16x16x32_bf16 {d}, {b}, {R(xf(tt, k), 4)}, {'0' if k == 0 else d}")
            d = R(QA + 24 + 4*t, 4)
            a(f"v_mfma_f32_16x16x32_bf16 {d}, {b}, {R(ONES, 4)}, {'0' if k == 0 else d}")
    a.stamp()
    a("s_waitcnt vmcnt(0)")
    a("s_cmp_eq_u32 s72, 0"); a("s_cbranch_scc1 L_rp_done")
    a("v_lshrrev_b32 v27, 4, v1"); a("v_bfe_u32 v28, v1, 2, 2"); a("v_lshl_add_u32 v27, v27, 3, v28")
    a("v_and_b32 v28, 3, v1")
    a("v_mov_b32 v31, v8")
    a("s_cmp_eq_u32 s72, 2"); a("s_cbranch_scc1 L_rf5")
    for nt, pitch, lab in ((7, 224, None), (5, 160, "L_rf5")):
        if lab: a(f"{lab}:")
        a(f"v_mul_u32_u24 v29, {pitch}, v27")
        a("v_add_u32 v29, s71, v29")
        a("v_lshl_add_u32 v30, v28, 3, v29")
        a("v_lshl_add_u32 v29, v28, 4, v29")
        for t in range(nt):
            for h in range(2):
                if t == nt - 1:
                    a(f"ds_read_b64_tr_b16 {R(144 + 4*t + 2*h, 2)}, v30 offset:{h*4*pitch + 32*t}")
                else:
                    a(f"ds_read_b64_tr_b16 {R(144 + 4*t + 2*h, 2)}, v29 offset:{h*4*pitch + 64*(t>>1) + 8*(t&1)}")
        if nt == 7:
            a("v_and_b32 v27, 15, v1"); a("v_mov_b32 v28, 0x3f803f80")
            for t in range(7):
                a(f"v_cmp_eq_u32 vcc, {t}, v27")
                for e in range(4): a(f"v_cndmask_b32 v{172+4*t+e}, 0, v28, vcc")
        a("s_waitcnt lgkmcnt(0)")
        for t in range(nt):
            if t == 4: a("v_add_u32 v31, 4096, v31")
            a(f"buffer_store_dwordx4 {R(144 + 4*t, 4)}, v31, s[40:43], s74 offen offset:{1024*(t&3)} sc1")
        if nt == 7:
            for t in range(7):
                a(f"v_mfma_f32_16x16x32_bf16 v[200:203], {R(144 + 4*t, 4)}, {R(172 + 4*t, 4)}, {'0' if t == 0 else 'v[200:203]'}")
            a("v_lshrrev_b32 v29, 4, v1"); a("v_lshlrev_b32 v29, 4, v29"); a("v_lshl_add_u32 v29, v27, 6, v29")
            a("v_mov_b32 v30, 0x7fffffff"); a("v_cndmask_b32 v29, v30, v29, s[66:67]")
            a("s_lshl_b32 s3, s70, 9"); a(f"s_add_u32 s3, s3, {C1P}")
            a("buffer_store_dwordx4 v[200:203], v29, s[40:43], s3 offen sc1")
            a("s_branch L_rp_done")
    a("L_rp_done:")
    PQR = 120
    a("v_cmp_gt_u32 s[68:69], 32, v1")
    a("v_cmp_gt_u32 s[70:71], 48, v1")
    for tt in range(2):
        for t in range(3):
            for r_ in range(4):
                v_ = f"v{QA + (tt*3+t)*4 + r_}"
                a(f"v_mul_f32 {t0}, v{MT + tt}, v{QA + 24 + 4*t + r_}")
                a(f"v_fma_f32 {v_}, {v_}, v{RT + tt}, -{t0}")
                phi(a, v_, t1, t2)
            for h in range(2):
                d = f"v{PQR + tt*6 + t*2 + h}"
                a(f"v_cvt_pk_bf16_f32 {d}, v{QA + (tt*3+t)*4 + 2*h}, v{QA + (tt*3+t)*4 + 2*h + 1}")
                if t == 2:
                    a(f"v_cndmask_b32 {d}, 0, {d}, s[68:69]")
    TA = 96
    for s_ in range(12):
        src = 12 + s_//2
        if s_ & 1: a(f"v_lshrrev_b32 v{TA+s_}, 16, v{src}")
        else: a(f"v_and_b32 v{TA+s_}, 0xffff, v{src}")
    a("s_waitcnt vmcnt(0)")
    a("s_barrier")
    a.stamp()
    a("s_getreg_b32 s77, hwreg(HW_REG_XCC_ID)"); a("s_and_b32 s77, s77, 7"); a("s_or_b32 s77, s77, s76")
    a("v_and_b32 v10, 15, v1"); a("v_lshlrev_b32 v10, 2, v10")
    a("s_cmp_lg_u32 s28, 0"); a("s_cbranch_scc1 L_h1w")
    a("s_lshl_b32 s3, s26, 4"); a("s_add_u32 s3, s3, s27"); a("s_lshl_b32 s3, s3, 2"); a(f"s_add_u32 s3, s3, {RF}")
    a("v_mov_b32 v27, s77")
    a("s_mov_b64 exec, 1")
    a("buffer_store_dword v27, v5, s[40:43], s3 offen sc1")
    a("s_mov_b64 exec, -1")
    def poll(lab, base_s):
        a("s_mov_b32 s78, 0")
        a(f"{lab}:")
        a(f"buffer_load_dword v27, v10, s[40:43], {base_s} offen sc1")
        a("s_add_u32 s78, s78, 1")
        a("s_waitcnt vmcnt(0)")
        a("v_cmp_ne_u32 vcc, s76, v27")
        a(f"s_cmp_ge_u32 s78, {POLLMAX}"); a(f"s_cbranch_scc1 {lab}_x")
        a(f"s_cbranch_vccnz {lab}")
        a(f"{lab}_x:")
    a("s_lshl_b32 s3, s27, 7"); a(f"s_add_u32 s3, s3, {F1}")
    poll("L_h1p", "s3")
    a("L_h1w:")
    a("s_barrier")
    a.stamp()
    a.vm = []
    a("s_lshl_b32 s3, s27, 16"); a(f"s_add_u32 s3, s3, {PART}")
    P0 = 144
    for r_ in range(16):
        a.vmem(f"buffer_load_dwordx4 {R(P0 + 4*r_, 4)}, v9, s[40:43], s3 offen sc1", "P")
        a("s_add_u32 s3, s3, 4096")
    a(f"s_mov_b32 s3, {RF}")
    a.vmem("buffer_load_dwordx4 v[208:211], v8, s[40:43], s3 offen sc1", "RF")
    a.wait("P")
    step = 1
    while step < 16:
        for r_ in range(0, 16, 2*step):
            for e in range(4):
                a(f"v_add_f32 v{P0+4*r_+e}, v{P0+4*r_+e}, v{P0+4*(r_+step)+e}")
        step *= 2
    a(f"v_cvt_pk_bf16_f32 v18, v{P0}, v{P0+1}")
    a(f"v_cvt_pk_bf16_f32 v19, v{P0+2}, v{P0+3}")
    a("v_cmp_gt_u32 vcc, 210, v0")
    a("v_cndmask_b32 v18, 0, v18, vcc"); a("v_cndmask_b32 v19, 0, v19, vcc")
    a("v_lshlrev_b32 v27, 3, v0")
    OSC = 161792
    a(f"ds_write_b64 v27, v[18:19] offset:0")
    a("s_waitcnt lgkmcnt(0)")
    a("s_barrier")
    KF = 144
    for E in range(4):
        for ta in range(3):
            a(f"ds_read_b64 {R(KF + 8*E + 2*ta, 2)}, v{TA + 3*E + ta}")
    a("s_mov_b32 s78, 0")
    a("L_rfp:")
    a("s_waitcnt vmcnt(0)")
    a("v_and_b32 v27, v208, v209"); a("v_and_b32 v28, v210, v211"); a("v_and_b32 v27, v27, v28")
    a("v_or_b32 v28, v208, v209"); a("v_or3_b32 v28, v28, v210, v211")
    a("v_cmp_eq_u32 s[80:81], s77, v27"); a("v_cmp_eq_u32 s[82:83], s77, v28")
    a("v_and_b32 v27, 0xfffffff8, v27"); a("v_and_b32 v28, 0xfffffff8, v28")
    a("v_cmp_ne_u32 vcc, s76, v27"); a("v_cmp_ne_u32 s[84:85], s76, v28")
    a("s_or_b64 vcc, vcc, s[84:85]")
    a("s_cbranch_scc0 L_rfok")
    a("s_add_u32 s78, s78, 1"); a(f"s_cmp_ge_u32 s78, {POLLMAX}"); a("s_cbranch_scc1 L_rfok")
    a("buffer_load_dwordx4 v[208:211], v8, s[40:43], s3 offen sc1")
    a("s_branch L_rfp")
    a("L_rfok:")
    a.vm = []
    a("s_and_b64 s[80:81], s[80:81], s[82:83]")
    a("s_lshl_b32 s3, s26, 2"); a("s_lshr_b64 s[80:81], s[80:81], s3"); a("s_and_b32 s80, s80, 15")
    a("s_cmp_eq_u32 s80, 15"); a("s_cselect_b32 s79, 1, 0")
    if os.environ.get("FORCESLOW"): a("s_mov_b32 s79, 0")
    a.stamp()
    a("s_waitcnt lgkmcnt(0)")
    D = 32
    for tt in range(2):
        for E in range(4):
            d = R(D + (tt*4+E)*4, 4)
            a(f"v_mfma_f32_16x16x32_bf16 {d}, {R(KF + 8*E, 4)}, {R(PQR + 6*tt, 4)}, 0")
    for tt in range(2):
        for E in range(4):
            d = R(D + (tt*4+E)*4, 4)
            a(f"v_mfma_f32_16x16x16_bf16 {d}, {R(KF + 8*E + 4, 2)}, {R(PQR + 6*tt + 4, 2)}, {d}")
    a("s_mul_i32 s3, s28, 40960"); a("s_mul_i32 s48, s27, 1280"); a("s_add_u32 s3, s3, s48"); a("s_add_u32 s3, s3, s58")
    a("v_and_b32 v27, 15, v1"); a("v_lshlrev_b32 v27, 4, v27"); a("v_lshrrev_b32 v11, 4, v1"); a("v_lshl_add_u32 v27, v11, 3, v27")
    a("v_mov_b32 v28, 0x7fffffff")
    a("v_cndmask_b32 v27, v28, v27, s[68:69]")
    for tt in range(2):
        z = D + (tt*4+3)*4
        a(f"v_add_f32 v20, s61, v{z}"); a(f"v_add_f32 v21, s61, v{z+1}")
        a("v_rcp_f32 v20, v20"); a("v_rcp_f32 v21, v21")
        a("v_cndmask_b32 v22, v21, v20, s[70:71]")
        a("v_cndmask_b32 v23, v21, v20, s[68:69]")
        for E, rc in ((0, 22), (1, 23), (2, 21)):
            d = D + (tt*4+E)*4
            for e in range(4): a(f"v_mul_f32 v{d+e}, v{d+e}, v{rc}")
            a(f"v_cvt_pk_bf16_f32 v{96 + tt*8 + 2*E}, v{d}, v{d+1}")
            a(f"v_cvt_pk_bf16_f32 v{96 + tt*8 + 2*E + 1}, v{d+2}, v{d+3}")
        a(f"buffer_store_dwordx4 {R(96 + tt*8, 4)}, v8, s[40:43], s3 offen")
        a(f"buffer_store_dwordx2 {R(96 + tt*8 + 4, 2)}, v27, s[40:43], s3 offen offset:1024")
        a("s_add_u32 s3, s3, 20480")

    def hop(n, F, between):
        a("s_waitcnt vmcnt(0)")
        a.vm = []
        a("s_barrier")
        a.stamp()
        a("s_lshl_b32 s59, s26, 7"); a(f"s_add_u32 s59, s59, {F}")
        a("s_cmp_lg_u32 s28, 0"); a(f"s_cbranch_scc1 L_h{n}np")
        a("s_lshl_b32 s3, s27, 2"); a("s_add_u32 s3, s3, s59")
        a("s_mov_b64 exec, 1")
        a("s_cmp_eq_u32 s79, 0"); a(f"s_cbranch_scc1 L_h{n}slow")
        a("buffer_store_dword v6, v5, s[40:43], s3 offen")
        a(f"s_branch L_h{n}pd")
        a(f"L_h{n}slow:")
        a("buffer_wbl2 sc1")
        a("s_waitcnt vmcnt(0)")
        a("buffer_store_dword v6, v5, s[40:43], s3 offen sc1")
        a(f"L_h{n}pd:")
        a("s_mov_b64 exec, -1")
        poll(f"L_h{n}p", "s59")
        a("s_cmp_lg_u32 s79, 0"); a(f"s_cbranch_scc1 L_h{n}np")
        a("buffer_inv sc1")
        a("s_waitcnt vmcnt(0)")
        a(f"L_h{n}np:")
        between()
        a("s_barrier")
        a.stamp()

    a("s_lshr_b32 s48, s27, 3"); a("s_and_b32 s49, s27, 7")
    a("v_add_u32 v12, 4096, v8")
    ACC = 32; RES = 112; BIA = 124
    FB3 = A0; FA3 = A0 + 100
    a("v_and_b32 v27, 15, v1")
    a("v_lshrrev_b32 v13, 1, v11"); a("v_lshlrev_b32 v13, 8, v13"); a("v_lshl_add_u32 v13, v27, 4, v13")
    a("v_and_b32 v28, 1, v11"); a("v_lshl_add_u32 v13, v28, 3, v13")
    a("v_mul_u32_u24 v14, 1280, v27"); a("v_lshl_add_u32 v15, v11, 3, v14"); a("v_lshl_add_u32 v14, v11, 4, v14")
    a("s_lshl_b32 s50, s48, 2"); a("s_add_u32 s50, s50, s28")
    a("s_lshl_b32 s3, s26, 3"); a("s_add_u32 s3, s3, s50"); a("s_mul_i32 s51, s3, 20480"); a("s_mul_i32 s3, s49, 160"); a("s_add_u32 s51, s51, s3")
    def pre3():
        a("s_mul_i32 s3, s49, 20"); a("s_add_u32 s3, s3, s28"); a("s_mul_i32 s56, s3, 5120"); a(f"s_add_u32 s56, s56, {WOP}")
        for n in range(5):
            for t in range(5):
                a.vmem(f"buffer_load_dwordx4 {R(FB3 + (n*5+t)*4, 4)}, v{8 if t < 4 else 12}, s[40:43], s56 offen offset:{1024*(t&3)} sc1", "WO")
            a("s_add_u32 s56, s56, 20480")
        a.vmem(f"buffer_load_dwordx4 {R(RES, 4)}, v14, s[32:35], s51 offen")
        a.vmem(f"buffer_load_dwordx4 {R(RES+4, 4)}, v14, s[32:35], s51 offen offset:64")
        a.vmem(f"buffer_load_dwordx2 {R(RES+8, 2)}, v15, s[32:35], s51 offen offset:128")
    hop(2, F2, pre3)
    def a_off(NK, goff):
        for m in range(4):
            a(f"s_add_u32 s3, s28, {m}"); a("s_and_b32 s3, s3, 3"); a("s_lshl_b32 s57, s48, 2"); a("s_add_u32 s3, s3, s57")
            a(f"s_mul_i32 s3, s3, {NK}"); a("s_add_u32 s3, s3, s28"); a("s_lshl_b32 s3, s3, 10"); a("s_add_u32 s3, s3, s58"); a(f"s_add_u32 s{52+m}, s3, {goff}")
    a_off(20, G_O)
    for n in range(5):
        for m in range(4):
            a.vmem(f"buffer_load_dwordx4 {R(FA3 + (n*4+m)*4, 4)}, v8, s[40:43], s{52+m} offen sc1", f"A{n}")
            a(f"s_add_u32 s{52+m}, s{52+m}, 4096")
    a("s_mul_i32 s56, s27, 143360"); a(f"s_add_u32 s56, s56, {W1P}")
    def w1dma(kb0, cnt):
        L = []
        def one(i):
            if i % 4 == 0:
                a(f"s_mul_i32 s3, s28, {cnt*1024}"); a(f"s_add_u32 m0, s3, {(kb0 + i)*1024}"); a("s_add_u32 s57, s56, m0")
            a.vmem(f"buffer_load_dwordx4 v8, s[40:43], s57 offen offset:{1024*(i&3)} sc1 lds", "W1")
        return [lambda i=i: one(i) for i in range(cnt)]
    w1a = w1dma(0, 24)
    for n in range(5):
        a.wait(f"A{n}")
        mf = []
        for m in range(4):
            for t in range(5):
                d = R(ACC + (m*5+t)*4, 4)
                mf.append(f"v_mfma_f32_16x16x32_bf16 {d}, {R(FB3 + (n*5+t)*4, 4)}, {R(FA3 + (n*4+m)*4, 4)}, {'0' if n == 0 else d}")
        interleave(a, mf, w1a[n*5:n*5+5])
    a.stamp()
    RED = 100352
    def reduce_epi(which):
        for m in range(1, 4):
            a(f"s_add_u32 s3, s28, {m}"); a("s_and_b32 s3, s3, 3"); a("s_mul_i32 s3, s3, 15360"); a(f"s_add_u32 s3, s3, {RED}")
            a(f"v_add_u32 v{16+m}, s3, v8")
        for m in range(1, 4):
            for t in range(5):
                a(f"ds_write_b128 v{16+m}, {R(ACC + (m*5+t)*4, 4)} offset:{(m-1)*5120 + t*1024}")
        a("s_mul_i32 s3, s28, 15360"); a(f"s_add_u32 s3, s3, {RED}"); a("v_add_u32 v16, s3, v8")
        U = 20
        for t in range(5):
            for e in range(4):
                for src0 in ([RES] if which == 3 else [RES, BIA]):
                    src = src0 + 2*t + (e >> 1)
                    if e & 1: a(f"v_and_b32 v{U+e}, 0xffff0000, v{src}")
                    else: a(f"v_lshlrev_b32 v{U+e}, 16, v{src}")
                    a(f"v_add_f32 v{ACC+4*t+e}, v{ACC+4*t+e}, v{U+e}")
        a("s_waitcnt lgkmcnt(0)")
        a("s_barrier")
        for t in range(5):
            for m in range(1, 4):
                a(f"ds_read_b128 {R(ACC + (m*5+t)*4, 4)}, v16 offset:{(m-1)*5120 + t*1024}")
        for t in range(5):
            a(f"s_waitcnt lgkmcnt({12 - 3*t})")
            for e in range(4):
                x0 = ACC + 4*t + e
                a(f"v_add_f32 v{x0+20}, v{x0+20}, v{x0+40}")
                a(f"v_add_f32 v{x0}, v{x0}, v{x0+60}")
                a(f"v_add_f32 v{x0}, v{x0}, v{x0+20}")
            for h in range(2):
                a(f"v_cvt_pk_bf16_f32 v{RES+2*t+h}, v{ACC+4*t+2*h}, v{ACC+4*t+2*h+1}")
    reduce_epi(3)
    a("s_mul_i32 s57, s50, 20480"); a("s_mul_i32 s3, s49, 2560"); a("s_add_u32 s57, s57, s3"); a("s_add_u32 s57, s57, s58"); a(f"s_add_u32 s57, s57, {G_H}")
    a.vmem(f"buffer_store_dwordx4 {R(RES, 4)}, v8, s[40:43], s57 offen")
    a.vmem(f"buffer_store_dwordx4 {R(RES+4, 4)}, v8, s[40:43], s57 offen offset:1024")
    a.vmem(f"buffer_store_dwordx2 {R(RES+8, 2)}, v13, s[40:43], s57 offen offset:2048")
    a(f"v_add_f32 v20, v{ACC}, v{ACC+1}"); a(f"v_mul_f32 v21, v{ACC}, v{ACC}"); a(f"v_fmac_f32 v21, v{ACC+1}, v{ACC+1}")
    for x in range(2, 20):
        a(f"v_add_f32 v20, v20, v{ACC+x}"); a(f"v_fmac_f32 v21, v{ACC+x}, v{ACC+x}")
    def red_g(regs, tmp):
        for r_ in regs:
            a(f"v_mov_b32 {tmp}, {r_}"); a(f"v_permlane32_swap_b32 {r_}, {tmp}"); a(f"v_add_f32 {r_}, {r_}, {tmp}")
            a(f"v_mov_b32 {tmp}, {r_}"); a(f"v_permlane16_swap_b32 {r_}, {tmp}"); a(f"v_add_f32 {r_}, {r_}, {tmp}")
    red_g(["v20", "v21"], "v22")
    a("v_lshlrev_b32 v22, 1, v10")
    a("s_lshl_b32 s57, s50, 10"); a("s_lshl_b32 s3, s49, 7"); a("s_add_u32 s57, s57, s3"); a("s_add_u32 s57, s57, s58"); a(f"s_add_u32 s57, s57, {G_ST}")
    a.vmem("buffer_store_dwordx2 v[20:21], v22, s[40:43], s57 offen")

    CSL = OSC
    CS = 136; B1 = 164
    a("s_mul_i32 s53, s27, 27"); a("s_lshr_b32 s53, s53, 2")
    srd(a, 36, 14, 3456)
    def pre4():
        for f in w1dma(96, 11): f()
        a("v_lshlrev_b32 v27, 4, v11"); a("v_lshl_add_u32 v28, v10, 4, v27")
        a("s_mul_i32 s3, s27, 20"); a("s_mul_i32 s57, s28, 5"); a("s_add_u32 s3, s3, s57"); a("s_lshl_b32 s3, s3, 9"); a(f"s_add_u32 s3, s3, {C1P}")
        a("s_mov_b64 exec, s[66:67]")
        for n in range(5):
            a.vmem(f"buffer_load_dwordx4 {R(180 + 4*n, 4)}, v28, s[40:43], s3 offen offset:{512*n} sc1", "C1")
        a("s_mov_b64 exec, -1")
        a("v_lshlrev_b32 v29, 3, v11"); a("s_lshl_b32 s54, s53, 5")
        for p in range(3): a.vmem(f"buffer_load_dwordx4 {R(B1 + 4*p, 4)}, v27, s[36:39], s54 offen offset:{64*p}")
        a.vmem(f"buffer_load_dwordx2 {R(B1 + 12, 2)}, v29, s[36:39], s54 offen offset:192")
        a("s_mul_i32 s3, s27, 27648"); a("s_add_u32 s3, s3, s58"); a(f"s_add_u32 s3, s3, {G_HID}")
        a("v_lshlrev_b32 v29, 7, v0")
        a.wait("C1")
        a.vmem("buffer_load_dword v4, v29, s[40:43], s3 offen")
        for e in range(4):
            a(f"v_add_f32 v{180+e}, v{180+e}, v{184+e}"); a(f"v_add_f32 v{188+e}, v{188+e}, v{192+e}")
            a(f"v_add_f32 v{180+e}, v{180+e}, v{196+e}"); a(f"v_add_f32 v{180+e}, v{180+e}, v{188+e}")
        a("s_lshl_b32 s3, s28, 9"); a(f"s_add_u32 s3, s3, {CSL}"); a("v_add_u32 v28, s3, v28")
        a("s_mov_b64 exec, s[66:67]")
        a("ds_write_b128 v28, v[180:183]")
        a("s_mov_b64 exec, -1")
        a("s_waitcnt lgkmcnt(0)")
    hop(3, F3, pre4)
    HF = A0; NHR = 20
    BF = A0 + 160
    def hf(tt, k): return HF + (tt*20 + k)*4
    a("s_mul_i32 s49, s28, 40960"); a("s_add_u32 s49, s49, s58"); a(f"s_add_u32 s54, s49, {G_H}"); a("s_add_u32 s55, s54, 20480")
    a("s_lshl_b32 s3, s28, 11"); a("s_add_u32 s3, s3, s58"); a(f"s_add_u32 s3, s3, {G_ST}")
    a("v_lshlrev_b32 v27, 8, v11"); a("v_lshl_add_u32 v27, v10, 1, v27")
    def ldh(k):
        def one(tt):
            a.vmem(f"buffer_load_dwordx4 {R(hf(tt, k), 4)}, v8, s[40:43], s{54+tt} offen offset:{1024*(k&3)} sc1", f"H{k}")
            if (k & 3) == 3: a(f"s_add_u32 s{54+tt}, s{54+tt}, 4096")
        return [lambda tt=tt: one(tt) for tt in range(2)]
    PRE = 6
    for k in range(PRE):
        for f in ldh(k): f()
    for tt in range(2):
        for q in range(2):
            a.vmem(f"buffer_load_dwordx2 {R(180 + 4*tt + 2*q, 2)}, v27, s[40:43], s3 offen offset:{1024*tt + 128*q} sc1", "ST")
    a("v_add_u32 v16, 57344, v8"); a("v_add_u32 v17, 114688, v8")
    a("v_lshlrev_b32 v18, 4, v11"); a(f"v_add_u32 v18, {CSL}, v18")
    for w in range(4):
        for t in range(7):
            dst = CS + 4*t if w == 0 else 190 + 4*t if w == 1 else 218 + 4*t if w == 2 else 88 + 4*t if False else None
            if w < 3: a(f"ds_read_b128 {R(dst, 4)}, v18 offset:{512*w + 64*t}")
    a("s_waitcnt lgkmcnt(0)")
    for x in range(28):
        a(f"v_add_f32 v{CS+x}, v{CS+x}, v{190+x}")
    for t in range(7): a(f"ds_read_b128 {R(190 + 4*t, 4)}, v18 offset:{512*3 + 64*t}")
    for x in range(28):
        a(f"v_add_f32 v{CS+x}, v{CS+x}, v{218+x}")
    a("s_waitcnt lgkmcnt(0)")
    for x in range(28):
        a(f"v_add_f32 v{CS+x}, v{CS+x}, v{190+x}")
    def breads(k, st):
        return [f"ds_read_b128 {R(BF + st*28 + 4*t, 4)}, v{[8, 16, 17][k >> 3]} offset:{(k & 7)*7168 + 1024*t}" for t in range(7)]
    for x in breads(0, 0): a(x)
    vS = [20, 21]; vQ = [22, 23]
    for k in range(20):
        st = k & 1
        side = []
        if k < 19:
            for x in breads(k+1, st ^ 1): a(x)
        a.wait(f"H{k}", f" lgkmcnt({7 if k < 19 else 0})")
        if k + PRE < 20: side += ldh(k + PRE)
        if k == PRE + 1:
            for tt in range(2):
                side.append(f"v_add_f32 v{vS[tt]}, v{180+4*tt}, v{182+4*tt}"); side.append(f"v_add_f32 v{vQ[tt]}, v{181+4*tt}, v{183+4*tt}")
            side.append(lambda: red_g([f"v{x}" for x in vS + vQ], "v24"))
        if k == PRE + 2:
            for tt in range(2):
                s_, q_ = f"v{vS[tt]}", f"v{vQ[tt]}"
                side += [f"v_mul_f32 {s_}, s63, {s_}", f"v_mul_f32 {q_}, s63, {q_}", f"v_fma_f32 {q_}, -{s_}, {s_}, {q_}", f"v_max_f32 {q_}, 0, {q_}",
                         f"v_add_f32 v24, s64, {q_}", f"v_fma_f32 {q_}, v24, s64, {q_}", f"v_rsq_f32 {q_}, {q_}", f"v_mul_f32 {s_}, {s_}, {q_}"]
        mf = []
        for t in range(7):
            for tt in range(2):
                d = R(ACC + (tt*7+t)*4, 4)
                mf.append(f"v_mfma_f32_16x16x32_bf16 {d}, {R(BF + st*28 + 4*t, 4)}, {R(hf(tt, k), 4)}, {'0' if k == 0 else d}")
        interleave(a, mf, side)
    a.stamp()
    c1 = -2.0*LOG2E*0.7978845608028654
    c2 = c1*0.044715
    a(f"s_mov_b32 s60, {hx(c1)}"); a(f"s_mov_b32 s61, {hx(c2)}")
    a("v_mov_b32 v24, s60")
    a("s_mul_i32 s49, s28, 110592"); a("s_lshl_b32 s3, s53, 9"); a("s_add_u32 s49, s49, s3"); a("s_add_u32 s49, s49, s58"); a(f"s_add_u32 s49, s49, {G_HID}")
    B1U = 190
    for t in range(7):
        for e in range(4):
            src = B1 + 2*t + (e >> 1)
            if e & 1: a(f"v_and_b32 v{B1U+4*t+e}, 0xffff0000, v{src}")
            else: a(f"v_lshlrev_b32 v{B1U+4*t+e}, 16, v{src}")
    PK = 220
    for tt in range(2):
        for t in range(7):
            for e in range(4):
                v_ = f"v{ACC + (tt*7+t)*4 + e}"
                ta = f"v{88+e}"
                a(f"v_fma_f32 {ta}, -v{vS[tt]}, v{CS+4*t+e}, v{B1U+4*t+e}")
                a(f"v_fma_f32 {v_}, {v_}, v{vQ[tt]}, {ta}")
                a(f"v_mul_f32 {ta}, {v_}, {v_}")
                a(f"v_fma_f32 {ta}, {ta}, s61, v24")
                a(f"v_mul_f32 {ta}, {ta}, {v_}")
                a(f"v_exp_f32 {ta}, {ta}")
            for e in range(4):
                ta = f"v{88+e}"
                a(f"v_add_f32 {ta}, 1.0, {ta}")
                a(f"v_rcp_f32 {ta}, {ta}")
            for e in range(4):
                v_ = f"v{ACC + (tt*7+t)*4 + e}"
                a(f"v_mul_f32 {v_}, {v_}, v{88+e}")
            for h in range(2):
                x0 = ACC + (tt*7+t)*4 + 2*h
                a(f"v_cvt_pk_bf16_f32 v{PK + tt*14 + 2*t + h}, v{x0}, v{x0+1}")
        for p in range(3):
            a.vmem(f"buffer_store_dwordx4 {R(PK + tt*14 + 4*p, 4)}, v8, s[40:43], s49 offen offset:{1024*p}")
        a.vmem(f"buffer_store_dwordx2 {R(PK + tt*14 + 12, 2)}, v13, s[40:43], s49 offen offset:3072")
        a("s_add_u32 s49, s49, 55296")

    a("s_and_b32 s49, s27, 7")
    srd(a, 32, 20, 2621440); srd(a, 36, 18, 1280)
    def fb(n, t): return (A0 + (n*5+t)*4) if n < 12 else (136 + ((n-12)*5+t)*4)
    def fa(n, m): return 176 + ((n % 5)*4 + m)*4
    def ldw2(n):
        def one(t):
            if n == 13 and t == 0:
                a("s_cmp_ge_u32 s28, 2"); a("s_cselect_b32 s3, 0x40000000, 0"); a("s_add_u32 s56, s56, s3")
            a.vmem(f"buffer_load_dwordx4 {R(fb(n, t), 4)}, v{8 if t < 4 else 12}, s[40:43], s56 offen offset:{1024*(t&3)} sc1", f"W2_{n}")
            if t == 4: a("s_add_u32 s56, s56, 20480")
        return [lambda t=t: one(t) for t in range(5)]
    NPRE5 = 5
    def pre5():
        a("s_mul_i32 s3, s49, 54"); a("s_add_u32 s3, s3, s28"); a("s_mul_i32 s56, s3, 5120"); a(f"s_add_u32 s56, s56, {W2P}")
        a("v_lshlrev_b32 v27, 4, v11"); a("v_lshlrev_b32 v28, 3, v11"); a("s_mul_i32 s3, s49, 160")
        a.vmem(f"buffer_load_dwordx4 {R(BIA, 4)}, v27, s[36:39], s3 offen")
        a.vmem(f"buffer_load_dwordx4 {R(BIA+4, 4)}, v27, s[36:39], s3 offen offset:64")
        a.vmem(f"buffer_load_dwordx2 {R(BIA+8, 2)}, v28, s[36:39], s3 offen offset:128")
        for n in range(NPRE5):
            for f in ldw2(n): f()
    hop(4, F4, pre5)
    a_off(54, G_HID)
    def lda5(n):
        def one(m):
            if n == 13 and m == 0:
                a("s_cmp_ge_u32 s28, 2"); a("s_cselect_b32 s3, 0x40000000, 0")
                for q in range(4): a(f"s_add_u32 s{52+q}, s{52+q}, s3")
            a.vmem(f"buffer_load_dwordx4 {R(fa(n, m), 4)}, v8, s[40:43], s{52+m} offen sc1", f"A5_{n}")
            a(f"s_add_u32 s{52+m}, s{52+m}, 4096")
        return [lambda m=m: one(m) for m in range(4)]
    for n in range(4):
        for f in lda5(n): f()
    for n in range(14):
        a.wait(f"A5_{n}")
        side = []
        if n + NPRE5 < 14: side += ldw2(n + NPRE5)
        if n + 4 < 14: side += lda5(n + 4)
        mf = []
        for m in range(4):
            for t in range(5):
                d = R(ACC + (m*5+t)*4, 4)
                mf.append(f"v_mfma_f32_16x16x32_bf16 {d}, {R(fb(n, t), 4)}, {R(fa(n, m), 4)}, {'0' if n == 0 else d}")
        interleave(a, mf, side)
    a.stamp()
    reduce_epi(5)
    a(f"buffer_store_dwordx4 {R(RES, 4)}, v14, s[32:35], s51 offen")
    a(f"buffer_store_dwordx4 {R(RES+4, 4)}, v14, s[32:35], s51 offen offset:64")
    a(f"buffer_store_dwordx2 {R(RES+8, 2)}, v15, s[32:35], s51 offen offset:128")
    a.stamp()
    if STAMP:
        a("s_waitcnt vmcnt(0)")
        a.stamp()
        a("s_memrealtime s[100:101]"); a("s_waitcnt lgkmcnt(0)"); a("v_writelane_b32 v7, s100, 31")
        a("v_writelane_b32 v7, s79, 30")
        a("s_lshl_b32 s3, s2, 2"); a("s_add_u32 s3, s3, s28"); a("s_lshl_b32 s3, s3, 8"); a(f"s_add_u32 s3, s3, {STB}")
        a("v_lshlrev_b32 v27, 2, v1"); a("v_add_u32 v27, s3, v27")
        a("global_store_dword v27, v7, s[24:25]")
    a("L_end:")
    a("s_endpgm")
    return a.a

def main(out):
    hdr = open("sequential_preLN__linear_attn_block__mixer_channel_mlp__prompt.s.ref").read().split("\n")
    hdr = [l for l in hdr if l.startswith(";") and "@launch" not in l]
    hdr.append("; @launch grid=(256,1,1) block=(256,1,1) lds=163840")
    a = gen(65536)
    pre = '.amdgcn_target "amdgcn-amd-amdhsa--gfx950"\n.text\n'
    T1, T2 = build_tables()
    a.raw(".p2align 6\nT1_tab:")
    a.raw(".short " + ",".join(map(str, T1)))
    a.raw("T2_tab:")
    for row in T2: a.raw(".short " + ",".join(map(str, row)))
    a.raw(".fill 8192, 4, 0")
    a.raw('.section .rodata,"a"\n.p2align 6')
    a.raw(f""".amdhsa_kernel {NAME}
  .amdhsa_next_free_vgpr 512
  .amdhsa_next_free_sgpr 102
  .amdhsa_accum_offset 256
  .amdhsa_group_segment_fixed_size 0
  .amdhsa_kernarg_size 88
  .amdhsa_user_sgpr_count 2
  .amdhsa_user_sgpr_kernarg_segment_ptr 1
  .amdhsa_system_sgpr_workgroup_id_x 1
.end_amdhsa_kernel""")
    open(out, "w").write("\n".join(hdr) + "\n" + pre + a.finish())

if __name__ == "__main__":
    main(sys.argv[1])
```

```python
import sys, struct, os
from asmdsl import Asm, R, S
from gen1 import build_tables, PAIRS, f2u, hx, divmod_const, srd, LOG2E

NAME = "sequential_preLN__linear_attn_block__mixer_channel_mlp__prompt_kernel"
WOP = 0
W2P = WOP + 8*20*5*1024
W1P = W2P + 8*54*5*1024
C1P = W1P + 16*20*7*1024
PART = C1P + 320*512
GRP = PART + 256*4096
G_O = 0; G_H = 163840; G_ST = 327680; G_FL = 335872; G_HID = 336896; G_SZ = G_HID + 442368
FLG = GRP + 16*G_SZ
F1 = FLG; F1R = FLG + 2048; RF = FLG + 4096
WS_END = FLG + 16384
A0 = 256
STAMP = int(os.environ.get("STAMP", "0"))
STB = 32 << 20
POLLMAX = 1 << 15
OPT = set(os.environ.get("OPT", "").split(","))
def P(name, d): return int(os.environ.get(name, d))

class G:
    def __init__(self):
        self.a = Asm(); self.vm = []; self.lg = []; self.nst = 0
    def __call__(self, t): self.a(t)
    def vmem(self, text, tag=None): self.a(text); self.vm.append(tag)
    def ds(self, text, tag=None): self.a(text); self.lg.append(tag)
    def _n(self, lst, tag, cap):
        idx = max(i for i, t in enumerate(lst) if t == tag)
        return min(len(lst) - 1 - idx, cap)
    def wait(self, vm=None, lg=None):
        s = []
        if vm is not None: s.append(f"vmcnt({0 if vm == 'all' else self._n(self.vm, vm, 63)})")
        if lg is not None: s.append(f"lgkmcnt({0 if lg == 'all' else self._n(self.lg, lg, 15)})")
        self.a("s_waitcnt " + " ".join(s))
        if vm == 'all': self.vm = []
        if lg == 'all': self.lg = []
    def stamp(self):
        if not STAMP: return
        i = self.nst; self.nst += 1
        assert i < 30
        self.a("s_memtime s[100:101]"); self.a("s_waitcnt lgkmcnt(0)"); self.a(f"v_writelane_b32 v7, s100, {i}")
    def run(self, x): x() if callable(x) else self.a(x)
    def interleave(self, main, extra):
        n = len(main); m = len(extra); j = 0
        for i, x in enumerate(main):
            self.run(x)
            while j < m and (j + 1) * n <= (i + 1) * m + (n - 1):
                self.run(extra[j]); j += 1
        while j < m:
            self.run(extra[j]); j += 1

def MF(d, a_, b_, first): return f"v_mfma_f32_16x16x32_bf16 {R(d,4)}, {R(a_,4)}, {R(b_,4)}, {'0' if first else R(d,4)}"

def phi(a, val, t1, t2):
    a(f"v_mul_f32 {t1}, s60, {val}")
    a(f"v_max_f32 {t2}, 0, {val}")
    a(f"v_exp_f32_e64 {t1}, {t1} clamp")
    a(f"v_add_f32 {t2}, s61, {t2}")
    a(f"v_add_f32 {val}, {t1}, {t2}")

def gen():
    a = G()
    name = NAME
    a.a.raw(f".globl {name}\n.p2align 8\n.type {name},@function\n{name}:")
    a("s_cmp_ge_u32 s2, 256"); a("s_cbranch_scc1 L_end")
    a("s_load_dwordx16 s[4:19], s[0:1], 0")
    a("s_load_dwordx4 s[20:23], s[0:1], 64")
    a("s_load_dwordx2 s[24:25], s[0:1], 80")
    a("s_memrealtime s[76:77]")
    a("s_getpc_b64 s[30:31]")
    a("L_pc:")
    a("v_mov_b32 v7, 0")
    a.stamp()
    a("v_lshrrev_b32 v2, 6, v0"); a("v_and_b32 v1, 63, v0")
    a("v_readfirstlane_b32 s28, v2")
    a("s_and_b32 s3, s2, 7"); a("s_lshr_b32 s27, s2, 3"); a("s_lshr_b32 s26, s27, 4"); a("s_lshl_b32 s3, s3, 1")
    a("s_add_u32 s26, s26, s3")
    a("s_and_b32 s27, s27, 15")
    a("s_cmp_lg_u32 s28, 3"); a("s_cbranch_scc1 L_nocp")
    a("s_mul_i32 s3, s27, 13"); a("s_lshr_b32 s3, s3, 6"); a("s_mul_i32 s3, s3, 5"); a("s_sub_u32 s3, s27, s3"); a("s_lshl_b32 s3, s3, 13")
    a("v_lshlrev_b32 v3, 7, v1"); a("v_add_u32 v3, s3, v3")
    a("global_load_dword v4, v3, s[30:31]")
    a("L_nocp:")
    BQ = 102400; SCR = 153600
    vXA = [72, 73, 74, 75]; vW = [76, 77]; vRd = [78, 79]; vBA = [80, 81, 82, 83, 84]; vTB = [17, 18, 19, 20]; vTQ = [86, 87, 88, 89]
    vBQ = [12, 13, 14, 15, 16]
    vT1 = 24; vSTW = 25
    ACC = 32; RAW = 160; XF = A0; BF = A0 + 160; ONES = A0 + 200; GR = A0 + 204; RSM = A0 + 212; OH = A0 + 220; CSA = A0 + 240; CSQ = A0 + 244
    t0, t1, t2, t3 = "v27", "v28", "v29", "v30"
    a("v_lshlrev_b32 v8, 4, v1")
    a("v_lshlrev_b32 v9, 4, v0")
    a("v_and_b32 v10, 15, v1"); a("v_lshlrev_b32 v10, 2, v10")
    a("v_lshrrev_b32 v11, 4, v1")
    a("v_mov_b32 v5, 0")
    a("v_lshrrev_b32 v27, 3, v1"); a("v_and_b32 v28, 7, v1")
    a("v_mul_u32_u24 v29, 1280, v27")
    a(f"v_lshl_add_u32 v{vXA[0]}, v28, 4, v29")
    for rg in range(1, 4): a(f"v_add_u32 v{vXA[rg]}, {10240*rg}, v{vXA[0]}")
    a("s_lshl_b32 s3, s28, 11"); a(f"s_add_u32 s48, s3, {SCR}")
    a("v_lshrrev_b32 v29, 1, v27"); a("v_xor_b32 v29, v29, v28"); a("v_lshlrev_b32 v29, 4, v29"); a("v_lshl_add_u32 v29, v27, 7, v29")
    a(f"v_add_u32 v{vW[0]}, s48, v29")
    a("v_xor_b32 v29, 64, v29"); a("v_add_u32 v29, 1024, v29"); a(f"v_add_u32 v{vW[1]}, s48, v29")
    for i in range(5):
        a(f"v_add_u32 v27, {64*i}, v1")
        divmod_const(a, "v28", "v29", "v27", 10)
        a("v_and_b32 v30, 0x13, v28"); a("v_bfe_u32 v27, v28, 2, 1"); a("v_lshl_add_u32 v30, v27, 3, v30")
        a("v_bfe_u32 v27, v28, 3, 1"); a("v_lshl_add_u32 v30, v27, 2, v30")
        a("v_mul_u32_u24 v30, 3840, v30"); a("v_lshl_add_u32 v30, v29, 4, v30")
        a("v_cmp_lt_u32 vcc, 4, v29"); a("v_add_u32 v27, 1200, v30")
        a(f"v_cndmask_b32 v{vBA[i]}, v30, v27, vcc")
    a("s_and_b32 s3, s27, 7"); a("s_bitcmp1_b32 0xa5, s3"); a("s_cselect_b32 s65, 1, 0")
    a("s_lshl_b32 s70, s26, 3"); a("s_lshr_b32 s3, s27, 1"); a("s_add_u32 s70, s70, s3"); a("s_lshl_b32 s70, s70, 2"); a("s_add_u32 s70, s70, s28")
    a("s_waitcnt lgkmcnt(0)")
    srd(a, 32, 4, 2621440); srd(a, 36, 6, 2457600); srd(a, 40, 24, WS_END); srd(a, 44, 12, 2211840)
    a("s_lshl_b32 s49, s26, 7"); a("s_lshl_b32 s3, s28, 5"); a("s_add_u32 s49, s49, s3"); a("s_mul_i32 s49, s49, 1280")
    a("s_lshr_b32 s3, s28, 1"); a("s_lshl_b32 s3, s3, 7"); a("s_add_u32 s62, s49, 128"); a("s_sub_u32 s62, s62, s3"); a("s_add_u32 s49, s49, s3")
    a("s_mul_i32 s50, s28, 122880"); a("s_mul_i32 s51, s27, 80"); a("s_add_u32 s50, s50, s51"); a("s_add_u32 s50, s50, 1280")
    a("s_mul_i32 s52, s28, 5120")
    a(f"s_mul_i32 s58, s26, {G_SZ}"); a(f"s_add_u32 s58, s58, {GRP}")
    XNT = " nt" if "xnt" in OPT else ""
    XTNT = " nt" if "xtnt" in OPT else ""
    PTNT = " nt" if "ptnt" in OPT else ""
    def raw(cx, rg): return RAW + ((cx % 6)*4 + rg)*4
    def xf(tt, k): return XF + (tt*20 + k)*4
    def ldx(cx):
        return [lambda cx=cx, rg=rg: a.vmem(f"buffer_load_dwordx4 {R(raw(cx, rg), 4)}, v{vXA[rg]}, s[32:35], s{62 if cx & 1 else 49} offen offset:{256*(cx>>1)}{XNT}", f"X{cx}") for rg in range(4)]
    def ldb(j):
        def one(i):
            a(f"s_add_u32 m0, s52, {j*20480 + i*1024}")
            a.vmem(f"buffer_load_dwordx4 v{vBA[i]}, s[36:39], s50 offen lds", f"B{j}")
            if i == 4: a(f"s_add_u32 s50, s50, {128*3840}")
        return [lambda i=i: one(i) for i in range(5)]
    a("s_mul_i32 s3, s26, 163840"); a("s_mul_i32 s56, s27, 10240"); a("s_add_u32 s3, s3, s56"); a("s_mul_i32 s56, s28, 2560"); a("s_add_u32 s3, s3, s56")
    a("v_lshlrev_b32 v3, 7, v1")
    a("s_mov_b64 exec, 0xfffff")
    a.vmem(f"buffer_load_dword v4, v3, s[32:35], s3 offen{XTNT}")
    a("s_mov_b64 exec, -1")
    for f in ldb(0) + ldx(0) + ldx(1): f()
    def rp_issue(nt, pitch_src, nch):
        for i in range(nt):
            a(f"v_add_u32 v27, {64*i}, v1")
            divmod_const(a, "v28", "v29", "v27", nch)
            a(f"v_mul_u32_u24 v28, {pitch_src}, v28")
            a("v_lshl_add_u32 v28, v29, 4, v28")
            a(f"s_add_u32 m0, s71, {1024*i}")
            a(f"buffer_load_dwordx4 v28, s[44:47], s73 offen nt lds")
    def rp_fin(nt, RG):
        pitch = nt*32
        a("v_bfe_u32 v28, v1, 2, 2"); a("v_lshl_add_u32 v27, v11, 3, v28"); a("v_and_b32 v28, 3, v1")
        a(f"v_mul_u32_u24 v29, {pitch}, v27"); a("v_add_u32 v29, s71, v29")
        a("v_lshl_add_u32 v30, v28, 3, v29"); a("v_lshl_add_u32 v29, v28, 4, v29")
        a("v_add_u32 v31, 4096, v8")
        for t in range(nt):
            for h in range(2):
                if t == nt - 1: a(f"ds_read_b64_tr_b16 {R(RG + 4*t + 2*h, 2)}, v30 offset:{h*4*pitch + 32*t}")
                else: a(f"ds_read_b64_tr_b16 {R(RG + 4*t + 2*h, 2)}, v29 offset:{h*4*pitch + 64*(t>>1) + 8*(t&1)}")
        if nt == 7:
            a("v_mov_b32 v28, 0x3f803f80")
            for t in (5, 6):
                a(f"v_cmp_eq_u32 vcc, {4*t}, v10")
                for e in range(4): a(f"v_cndmask_b32 v{RG+28+4*(t-5)+e}, 0, v28, vcc")
        a("s_waitcnt lgkmcnt(0)")
        for t in range(nt):
            a(f"buffer_store_dwordx4 {R(RG + 4*t, 4)}, v{8 if t < 4 else 31}, s[40:43], s74 offen offset:{1024*(t&3)} sc1")
        if nt == 7:
            for t in range(7):
                a(MF(RG+36, RG + 4*t, OH + 4*t if t < 5 else RG+28+4*(t-5), t == 0))
            a("v_lshlrev_b32 v29, 4, v11"); a("v_lshl_add_u32 v29, v10, 4, v29")
            a("v_mov_b32 v30, 0x7fffffff"); a("v_cndmask_b32 v29, v30, v29, s[66:67]")
            a("s_lshl_b32 s3, s70, 9"); a(f"s_add_u32 s3, s3, {C1P}")
            a(f"buffer_store_dwordx4 {R(RG+36, 4)}, v29, s[40:43], s3 offen sc1")
    a("s_mov_b32 s72, 0"); a("s_mov_b32 s73, 0"); a("s_mov_b32 s74, 0")
    a(f"s_mul_i32 s71, s28, 7168"); a(f"s_add_u32 s71, s71, {BQ}")
    a("s_cmp_eq_u32 s65, 0"); a("s_cbranch_scc1 L_rp1_issued")
    a("s_cmp_ge_u32 s70, 480"); a("s_cbranch_scc1 L_rp1_issued")
    a("s_cmp_ge_u32 s70, 320"); a("s_cbranch_scc1 L_rp1_wo")
    a("s_mov_b32 s72, 1")
    a("s_mul_i32 s75, s70, 3277"); a("s_lshr_b32 s75, s75, 16"); a("s_mul_i32 s79, s75, 20"); a("s_sub_u32 s79, s70, s79")
    a("s_mul_i32 s75, s75, 27"); a("s_lshr_b32 s75, s75, 2"); a("s_lshl_b32 s75, s75, 5")
    a("s_mul_i32 s79, s79, 110592"); a("s_add_u32 s73, s75, s79")
    a("s_mul_i32 s74, s70, 7168"); a(f"s_add_u32 s74, s74, {W1P}")
    rp_issue(7, 3456, 14)
    a("s_branch L_rp1_issued")
    a("L_rp1_wo:")
    a("s_mov_b32 s72, 2")
    srd(a, 44, 8, 819200)
    a("s_sub_u32 s78, s70, 320")
    a("s_mul_i32 s75, s78, 3277"); a("s_lshr_b32 s75, s75, 16"); a("s_mul_i32 s79, s75, 20"); a("s_sub_u32 s79, s78, s79")
    a("s_mul_i32 s74, s78, 5120"); a(f"s_add_u32 s74, s74, {WOP}")
    a("s_mul_i32 s75, s75, 160"); a("s_mul_i32 s79, s79, 40960"); a("s_add_u32 s73, s75, s79")
    rp_issue(5, 1280, 10)
    a("L_rp1_issued:")
    if "wtouch" in OPT:
        divmod_const(a, "v27", "v28", "v1", 20)
        a("v_mul_u32_u24 v27, 3840, v27"); a("v_lshl_add_u32 v3, v28, 7, v27")
        a("s_lshr_b32 s3, s2, 3"); a("s_lshl_b32 s3, s3, 2"); a("s_add_u32 s3, s3, s28"); a("s_mul_i32 s3, s3, 11520"); a(f"s_add_u32 s56, s3, {256*3840 + 1280}")
        a("s_bfm_b64 exec, 60, 0")
        a.vmem("buffer_load_dword v4, v3, s[36:39], s56 offen")
        a("s_mov_b64 exec, -1")
    for f in ldx(2) + ldx(3) + ldb(1): f()
    a("s_and_b32 s76, s76, 0xfffffff8"); a("s_or_b32 s76, s76, 8")
    a("s_or_b32 s3, s2, s28"); a("s_cmp_lg_u32 s3, 0"); a("s_cbranch_scc1 L_notag")
    a("v_mov_b32 v28, s76")
    a("global_store_dword v5, v28, s[22:23] sc1")
    a("L_notag:")
    a("v_and_b32 v27, 15, v1")
    a("v_lshrrev_b32 v29, 1, v27"); a("v_xor_b32 v29, v29, v11"); a("v_lshlrev_b32 v29, 4, v29"); a("v_lshl_add_u32 v29, v27, 7, v29")
    a("s_and_b32 s3, s28, 1"); a("s_lshl_b32 s3, s3, 6"); a("v_xor_b32 v29, s3, v29")
    a(f"v_add_u32 v{vRd[0]}, s48, v29"); a("v_xor_b32 v29, 64, v29"); a(f"v_add_u32 v{vRd[1]}, s48, v29")
    a("v_lshrrev_b32 v29, 2, v27"); a("v_cmp_eq_u32 vcc, v29, v11")
    a("v_lshlrev_b32 v30, 2, v1"); a("v_add_u32 v30, 512, v30")
    a("v_cndmask_b32 v29, v30, v10, vcc"); a(f"v_add_u32 v{vSTW}, s48, v29")
    a("v_and_b32 v29, 1, v1"); a("v_cmp_eq_u32 s[68:69], 1, v29")
    a("v_and_b32 v29, 2, v1"); a("v_cmp_eq_u32 s[86:87], 2, v29")
    a("v_cmp_gt_u32 s[66:67], 8, v27")
    a("v_mov_b32 v28, 0x3f803f80")
    for i in range(4): a(f"v_accvgpr_write_b32 {R(ONES+i)}, v28")
    for t in range(5):
        a(f"v_cmp_eq_u32 vcc, {t}, v27"); a("v_cndmask_b32 v29, 0, v28, vcc")
        for e in range(4): a(f"v_accvgpr_write_b32 {R(OH+4*t+e)}, v29")
    a("v_lshrrev_b32 v27, 5, v1"); a("v_bfe_u32 v28, v1, 4, 1"); a("v_bfe_u32 v29, v1, 2, 2")
    a("v_lshl_add_u32 v29, v28, 2, v29"); a("v_lshl_add_u32 v30, v27, 4, v29"); a("v_mul_u32_u24 v30, 160, v30")
    a("v_and_b32 v28, 3, v1"); a("v_lshl_add_u32 v31, v28, 3, v30")
    a("v_lshlrev_b32 v29, 1, v29"); a("v_lshl_add_u32 v30, v27, 4, v29"); a("v_mul_u32_u24 v30, 80, v30"); a("v_lshl_add_u32 v30, v28, 3, v30")
    for p in range(4):
        a(f"s_xor_b32 s3, s28, {p}"); a("s_mul_i32 s56, s3, 5120"); a(f"v_add_u32 v{vTB[p]}, s56, v31")
        a("s_mul_i32 s56, s3, 2560"); a(f"s_add_u32 s56, s56, {BQ}"); a(f"v_add_u32 v{vTQ[p]}, s56, v30")
    a(f"s_mov_b32 s60, {hx(LOG2E)}"); a(f"s_mov_b32 s61, {hx(1e-6)}")
    a(f"s_mov_b32 s63, {hx(1.0/640)}"); a(f"s_mov_b32 s64, {hx(1e-5)}")
    for i in range(5):
        a(f"v_add_u32 v31, {64*i}, v1")
        divmod_const(a, "v28", "v29", "v31", 5)
        a("v_and_b32 v30, 0x30, v28"); a("v_bfe_u32 v31, v28, 1, 2"); a("v_add_u32 v30, v30, v31")
        a("v_and_b32 v31, 1, v28"); a("v_lshl_add_u32 v30, v31, 2, v30"); a("v_and_b32 v31, 8, v28"); a("v_add_u32 v30, v30, v31")
        a("v_mul_u32_u24 v30, 3840, v30"); a(f"v_lshl_add_u32 v{vBQ[i]}, v29, 4, v30")
    a("s_mul_i32 s53, s28, 245760"); a("s_add_u32 s53, s53, s51"); a(f"s_add_u32 s54, s52, {BQ}")
    a("s_cmp_ge_u32 s28, 2"); a("s_cselect_b32 s55, 0x40000000, 0")
    a.stamp()
    def ldq(gq):
        def one(i):
            if gq == 2 and i == 0: a("s_add_u32 s53, s53, s55"); a("s_lshr_b32 s55, s55, 14"); a("s_add_u32 s54, s54, s55")
            a(f"s_add_u32 m0, s54, {gq*20480 + i*1024}")
            a.vmem(f"buffer_load_dwordx4 v{vBQ[i]}, s[36:39], s53 offen lds", "BQ")
            if i == 4: a(f"s_add_u32 s53, s53, {256*3840}")
        return [lambda i=i: one(i) for i in range(5)]
    def ldmisc():
        a("v_lshlrev_b32 v27, 1, v0")
        a("s_add_u32 s56, s30, T1_tab-L_pc"); a("s_addc_u32 s57, s31, 0")
        a.vmem(f"global_load_ushort v{vT1}, v27, s[56:57]", "T1")
        a.vmem("global_load_dword v6, v5, s[22:23] sc1", "TAG")
    def acc(tt, t): return ACC + (tt*5 + t)*4
    def transp(cx):
        L = []
        for tt in range(2):
            L.append(lambda tt=tt: a.ds(f"ds_write_b128 v{vW[0]}, {R(raw(cx, 2*tt), 4)}"))
            L.append(lambda tt=tt: a.ds(f"ds_write_b128 v{vW[1]}, {R(raw(cx, 2*tt+1), 4)}"))
            L.append(lambda tt=tt: a.ds(f"ds_read_b128 {R(xf(tt, 2*cx), 4)}, v{vRd[0]}"))
            L.append(lambda tt=tt: a.ds(f"ds_read_b128 {R(xf(tt, 2*cx+1), 4)}, v{vRd[1]}", f"T{cx}"))
        return L
    def trreads(s):
        j, p = divmod(s, 4); L = []
        for t in range(5):
            for h in range(2):
                off = (j % 3)*20480 + h*1280 + t*32
                L.append(lambda t=t, h=h, off=off: a.ds(f"ds_read_b64_tr_b16 {R(BF + (s&1)*20 + t*4 + h*2, 2)}, v{vTB[p]} offset:{off}", f"R{s}"))
        if j == 2: L.append(f"v_add_u32 v{vTB[p]}, 61440, v{vTB[p]}")
        return L
    def statm(k):
        L = []
        for tt in range(2):
            L.append(MF(GR + 4*tt, xf(tt, k), xf(tt, k), k == 0)); L.append(MF(RSM + 4*tt, ONES, xf(tt, k), k == 0))
        return L
    def tagpoll(lab):
        a("v_readfirstlane_b32 s76, v6"); a("s_mov_b32 s78, 0")
        a(f"{lab}:")
        a("s_cmp_lg_u32 s76, 0"); a(f"s_cbranch_scc1 {lab}_ok")
        a("global_load_dword v6, v5, s[22:23] sc1"); a("s_add_u32 s78, s78, 1"); a("s_waitcnt vmcnt(0)")
        a("v_readfirstlane_b32 s76, v6")
        a(f"s_cmp_lt_u32 s78, {POLLMAX}"); a(f"s_cbranch_scc1 {lab}")
        a(f"{lab}_ok:")
    RS = 96; MS = 104; RT = 112; MT = 114; CSV = 116
    CSX = 161792
    a.wait(vm="X1")
    for f in transp(0) + transp(1): f()
    a("s_barrier")
    a.stamp()
    for f in trreads(0): a.run(f)
    a.wait(lg="T1")
    for k in range(4):
        for x in statm(k): a(x)
    loads = {0: ldx(4) + ldx(5) + ldb(2), 1: [ldmisc] + ldx(6) + ldx(7) + ldb(3), 2: ldx(8) + ldx(9) + ldb(4), 3: ldq(0) + ldq(1), 4: ldq(2)}
    for s in range(20):
        j, p = divmod(s, 4)
        if p == 3 and j < 4:
            a.wait(vm=f"B{j+1}")
            a("s_barrier")
            if j == 3: a.stamp()
            if j == 2:
                tagpoll("L_tp1")
                a("s_and_b32 s3, s65, 1"); a("s_cmp_eq_u32 s28, 0"); a("s_cselect_b32 s3, s3, 0"); a("s_cmp_eq_u32 s3, 0"); a("s_cbranch_scc1 L_norf1")
                a("s_lshl_b32 s3, s26, 4"); a("s_add_u32 s3, s3, s27"); a("s_lshl_b32 s3, s3, 2"); a(f"s_add_u32 s3, s3, {RF}")
                a("s_mov_b64 exec, 1"); a("buffer_store_dword v6, v5, s[40:43], s3 offen sc1"); a("s_mov_b64 exec, -1")
                a("L_norf1:")
        if s == 18: a.wait(lg="CSW"); a("s_barrier")
        if j < 4 and p == 0: a.wait(vm=f"X{2*j+3}")
        if s == 4:
            a.wait(lg="all")
            a("s_cmp_eq_u32 s72, 0"); a("s_cbranch_scc1 L_rp1_done")
            a("s_cmp_eq_u32 s72, 2"); a("s_cbranch_scc1 L_rp1_f5")
            rp_fin(7, 96); a("s_branch L_rp1_done")
            a("L_rp1_f5:"); rp_fin(5, 96)
            a("L_rp1_done:"); a("s_nop 7")
        else:
            a.wait(lg=f"R{s}")
        mf = []
        for t in range(5):
            b = BF + (s&1)*20 + t*4
            for tt in range(2): mf.append(MF(acc(tt, t), xf(tt, s), b, s == 0))
            if p == 0: mf.append(MF(CSA, OH + 4*t, b, s == 0 and t == 0))
        side = trreads(s+1) if s < 19 else []
        if j < 4 and p < 2: side += transp(2*j + 2 + p)
        if j < 4 and p >= 2:
            kb = 4*(j+1) + 2*(p-2); mf += statm(kb) + statm(kb+1)
        if s == 16:
            for tt in range(2):
                for e in range(4): side.append(f"v_accvgpr_read_b32 v{124+e}, {R(GR + 4*tt + e)}")
                side.append(f"v_accvgpr_read_b32 v128, {R(RSM + 4*tt)}")
                side += ["v_cndmask_b32 v124, v124, v125, s[68:69]", "v_cndmask_b32 v126, v126, v127, s[68:69]", "v_mul_f32 v128, s63, v128",
                         "v_cndmask_b32 v124, v124, v126, s[86:87]", "v_mul_f32 v124, s63, v124", "v_fma_f32 v124, -v128, v128, v124",
                         "v_max_f32 v124, 0, v124", "v_add_f32 v124, s64, v124", "v_rsq_f32 v124, v124", "v_mul_f32 v128, v128, v124"]
                side.append(lambda tt=tt: a.ds(f"ds_write_b32 v{vSTW}, v124 offset:{64*tt}"))
                side.append(lambda tt=tt: a.ds(f"ds_write_b32 v{vSTW}, v128 offset:{128 + 64*tt}"))
        if s == 17:
            side += ["s_lshl_b32 s3, s28, 9", f"s_add_u32 s3, s3, {CSX}", "v_add_u32 v27, s3, v8"]
            side.append(lambda: (a("s_bfm_b64 exec, 32, 0"), a.ds(f"ds_write_b128 v27, {R(CSA, 4)}", "CSW"), a("s_mov_b64 exec, -1")))
            side += ["v_lshlrev_b32 v28, 4, v11", "v_add_u32 v28, s48, v28", "v_add_u32 v29, s48, v10"]
            for tt in range(2):
                side.append(lambda tt=tt: a.ds(f"ds_read_b128 {R(RS + 4*tt, 4)}, v28 offset:{64*tt}"))
                side.append(lambda tt=tt: a.ds(f"ds_read_b128 {R(MS + 4*tt, 4)}, v28 offset:{128 + 64*tt}"))
                side.append(lambda tt=tt: a.ds(f"ds_read_b32 v{RT + tt}, v29 offset:{64*tt}"))
                side.append(lambda tt=tt: a.ds(f"ds_read_b32 v{MT + tt}, v29 offset:{128 + 64*tt}"))
        if s == 18:
            side += ["v_lshlrev_b32 v27, 2, v10", f"v_add_u32 v27, {CSX}, v27"]
            for w in range(4):
                side.append(lambda w=w: a.ds(f"ds_read_b128 {R(124 + 4*w, 4)}, v27 offset:{512*w}"))
                side.append(lambda w=w: a.ds(f"ds_read_b32 v{140 + w}, v27 offset:{512*w + 256}", "CSR"))
        if s == 19:
            side.append(lambda: a.wait(lg="CSR"))
            for e in range(4):
                side += [f"v_add_f32 v{124+e}, v{124+e}, v{128+e}", f"v_add_f32 v{132+e}, v{132+e}, v{136+e}", f"v_add_f32 v{CSV+e}, v{124+e}, v{132+e}"]
            side += ["v_add_f32 v140, v140, v141", "v_add_f32 v142, v142, v143", f"v_add_f32 v{CSV+4}, v140, v142"]
        ld = loads[j]; q = (len(ld) + 3 - p)//(4 - p)
        lds_ = ld[:q]; loads[j] = ld[q:]
        if lds_:
            m = []; step = max(1, len(side)//len(lds_)); li = 0
            for i_, x in enumerate(side):
                m.append(x)
                if i_ % step == step - 1 and li < len(lds_): m.append(lds_[li]); li += 1
            m += lds_[li:]; side = m
        a.interleave(mf, side)
    a.stamp()
    a(f"s_mov_b32 s59, {RF}")
    a.vmem("buffer_load_dwordx4 v[92:95], v8, s[40:43], s59 offen sc1", "RF")
    OP = 124
    for t in range(5):
        for tt in range(2):
            for r_ in range(4):
                v_ = f"v{acc(tt, t) + r_}"
                a(f"v_mul_f32 {t0}, v{MS + 4*tt + r_}, v{CSV + t}")
                a(f"v_fma_f32 {v_}, {v_}, v{RS + 4*tt + r_}, -{t0}")
                if t < 2: phi(a, v_, t1, t2)
                elif t == 2:
                    a(f"v_mov_b32 {t3}, {v_}"); phi(a, t3, t1, t2); a(f"v_cndmask_b32 {v_}, {v_}, {t3}, s[66:67]")
            for h in range(2):
                a(f"v_cvt_pk_bf16_f32 v{OP + 4*t + 2*tt + h}, v{acc(tt, t) + 2*h}, v{acc(tt, t) + 2*h + 1}")
    KVD = 144
    for p, (ta, tb) in enumerate(PAIRS):
        a(MF(KVD + 4*p, OP + 4*ta, ONES if tb < 0 else OP + 4*tb, True))
    a("s_mul_i32 s3, s28, 10240"); a("v_add_u32 v27, s3, v8")
    for p in range(10): a(f"ds_write_b128 v27, {R(KVD + 4*p, 4)} offset:{1024*p}")
    a.wait(lg="all")
    a("s_barrier")
    a(f"v_add_u32 v27, {SCR}, v10"); a("ds_write_b32 v27, v5")
    for w in range(4): a(f"ds_read_b128 {R(KVD + 4*w, 4)}, v{vT1} offset:{10240*w}")
    a("s_lshl_b32 s3, s27, 4"); a("s_add_u32 s3, s3, s26"); a("s_lshl_b32 s3, s3, 12"); a(f"s_add_u32 s3, s3, {PART}")
    a("s_getreg_b32 s77, hwreg(HW_REG_XCC_ID)"); a("s_and_b32 s77, s77, 7"); a("s_or_b32 s77, s77, s76")
    a("s_waitcnt lgkmcnt(0)")
    for e in range(4):
        a(f"v_add_f32 v{KVD+e}, v{KVD+e}, v{KVD+4+e}"); a(f"v_add_f32 v{KVD+8+e}, v{KVD+8+e}, v{KVD+12+e}")
    for e in range(4): a(f"v_add_f32 v{KVD+e}, v{KVD+e}, v{KVD+8+e}")
    a.vmem(f"buffer_store_dwordx4 {R(KVD, 4)}, v9, s[40:43], s3 offen sc1")
    def rfcheck(lab, full):
        a("s_mov_b32 s78, 0")
        a(f"{lab}:")
        if not full:
            a("v_cndmask_b32 v27, v92, v93, s[68:69]"); a("v_cndmask_b32 v28, v94, v95, s[68:69]")
        else:
            a("v_cndmask_b32 v27, v93, v92, s[68:69]"); a("v_cndmask_b32 v28, v95, v94, s[68:69]")
        a("v_cmp_ne_u32 vcc, s76, v27"); a("v_cmp_ne_u32 s[84:85], s76, v28")
        a("s_or_b64 vcc, vcc, s[84:85]"); a(f"s_cbranch_scc0 {lab}_ok")
        a("s_add_u32 s78, s78, 1"); a(f"s_cmp_ge_u32 s78, {POLLMAX}"); a(f"s_cbranch_scc1 {lab}_ok")
        a("buffer_load_dwordx4 v[92:95], v8, s[40:43], s59 offen sc1"); a("s_waitcnt vmcnt(0)")
        a(f"s_branch {lab}")
        a(f"{lab}_ok:")
    a.wait(vm="all")
    a("s_barrier")
    a.stamp()
    a("s_cmp_lg_u32 s28, 0"); a("s_cbranch_scc1 L_nopub1")
    a("s_lshl_b32 s3, s27, 7"); a("s_lshl_b32 s56, s26, 2"); a("s_add_u32 s3, s3, s56"); a(f"s_add_u32 s3, s3, {F1}")
    a("s_lshl_b32 s57, s26, 7"); a("s_lshl_b32 s56, s27, 2"); a("s_add_u32 s57, s57, s56"); a(f"s_add_u32 s57, s57, {F1R}")
    a("v_mov_b32 v27, s77")
    a("s_mov_b64 exec, 1")
    a("buffer_store_dword v27, v5, s[40:43], s3 offen sc1"); a("buffer_store_dword v27, v5, s[40:43], s57 offen sc1")
    a("s_mov_b64 exec, -1")
    a("L_nopub1:")
    rfcheck("L_rf1", False)
    a.stamp()
    a("s_mov_b32 s72, 0")
    a("s_cmp_lg_u32 s65, 0"); a("s_cbranch_scc1 L_rp2_issued")
    a("s_cmp_ge_u32 s70, 432"); a("s_cbranch_scc1 L_rp2_issued")
    a("s_mov_b32 s72, 2")
    srd(a, 44, 16, 2211840)
    a("s_add_u32 s71, s52, 81920")
    a("s_mul_i32 s75, s70, 1214"); a("s_lshr_b32 s75, s75, 16"); a("s_mul_i32 s79, s75, 54"); a("s_sub_u32 s79, s70, s79")
    a("s_mul_i32 s74, s70, 5120"); a(f"s_add_u32 s74, s74, {W2P}")
    a("s_mul_i32 s75, s75, 160"); a("s_mul_i32 s79, s79, 40960"); a("s_add_u32 s73, s75, s79")
    rp_issue(5, 1280, 10)
    a("L_rp2_issued:")
    a("s_mul_i32 s3, s27, 21056"); a("s_add_u32 s3, s3, s58"); a("s_mul_i32 s56, s28, 5376"); a("s_add_u32 s3, s3, s56")
    a("v_lshlrev_b32 v3, 7, v1")
    a("s_bfm_b64 exec, 42, 0"); a.vmem(f"buffer_load_dword v4, v3, s[40:43], s3 offen{PTNT}"); a("s_mov_b64 exec, -1")
    a("s_lshr_b32 s48, s27, 3"); a("s_and_b32 s49, s27, 7")
    a("v_add_u32 v12, 4096, v8")
    a("v_lshrrev_b32 v13, 1, v11"); a("v_lshlrev_b32 v13, 8, v13"); a("v_lshl_add_u32 v13, v10, 2, v13")
    a("v_and_b32 v28, 1, v11"); a("v_lshl_add_u32 v13, v28, 3, v13")
    a("v_mul_u32_u24 v14, 320, v10"); a("v_lshl_add_u32 v15, v11, 3, v14"); a("v_lshl_add_u32 v14, v11, 4, v14")
    a("s_lshl_b32 s50, s48, 2"); a("s_add_u32 s50, s50, s28")
    a("s_lshl_b32 s3, s26, 3"); a("s_add_u32 s3, s3, s50"); a("s_mul_i32 s51, s3, 20480"); a("s_mul_i32 s3, s49, 160"); a("s_add_u32 s51, s51, s3")
    a("s_mul_i32 s53, s27, 27"); a("s_lshr_b32 s53, s53, 2")
    a("s_mul_i32 s3, s49, 20"); a("s_add_u32 s3, s3, s28"); a("s_mul_i32 s54, s3, 5120"); a(f"s_add_u32 s54, s54, {WOP}")
    a("s_mul_i32 s55, s27, 143360"); a(f"s_add_u32 s55, s55, {W1P}")
    srd(a, 36, 14, 3456)
    FB3 = 156; RES = 116; B1 = 72; C1R = 126; T2R = 18
    def ldwo():
        def one(n, t):
            a.vmem(f"buffer_load_dwordx4 {R(FB3 + (n*5+t)*4, 4)}, v{8 if t < 4 else 12}, s[40:43], s54 offen offset:{1024*(t&3)} sc1", "WO")
            if t == 4: a("s_add_u32 s54, s54, 20480")
        return [lambda n=n, t=t: one(n, t) for n in range(5) for t in range(5)]
    def w1dma(kb0, cnt, wsub=0):
        def one(i):
            if i % 4 == 0:
                a(f"s_mul_i32 s3, s28, {cnt*1024}"); a(f"s_add_u32 m0, s3, {(kb0 + i - wsub*cnt)*1024}"); a("s_add_u32 s57, s55, m0")
            a.vmem(f"buffer_load_dwordx4 v8, s[40:43], s57 offen offset:{1024*(i&3)} sc1 lds", "W1")
        return [lambda i=i: one(i) for i in range(cnt)]
    def ldsmall():
        a("v_lshlrev_b32 v27, 5, v1"); a("s_add_u32 s56, s30, T2_tab-L_pc"); a("s_addc_u32 s57, s31, 0")
        a.vmem(f"global_load_dwordx4 {R(T2R, 4)}, v27, s[56:57]"); a.vmem(f"global_load_dwordx2 {R(T2R+4, 2)}, v27, s[56:57] offset:16")
    def ldres():
        a.vmem(f"buffer_load_dwordx4 {R(RES, 4)}, v14, s[32:35], s51 offen")
        a.vmem(f"buffer_load_dwordx4 {R(RES+4, 4)}, v14, s[32:35], s51 offen offset:64")
        a.vmem(f"buffer_load_dwordx2 {R(RES+8, 2)}, v15, s[32:35], s51 offen offset:128")
    def ldc1():
        a("v_lshlrev_b32 v27, 4, v11"); a("v_lshl_add_u32 v26, v10, 4, v27")
        a("s_mul_i32 s3, s27, 20"); a("s_mul_i32 s57, s28, 5"); a("s_add_u32 s3, s3, s57"); a("s_lshl_b32 s3, s3, 9"); a(f"s_add_u32 s3, s3, {C1P}")
        a("s_mov_b64 exec, s[66:67]")
        for n in range(5): a.vmem(f"buffer_load_dwordx4 {R(C1R + 4*n, 4)}, v26, s[40:43], s3 offen offset:{512*n} sc1")
        a("s_mov_b64 exec, -1")
        a("v_lshlrev_b32 v29, 3, v11"); a("s_lshl_b32 s3, s53, 5")
        for p in range(3): a.vmem(f"buffer_load_dwordx4 {R(B1 + 4*p, 4)}, v27, s[36:39], s3 offen offset:{64*p}")
        a.vmem(f"buffer_load_dwordx2 {R(B1 + 12, 2)}, v29, s[36:39], s3 offen offset:192")
    def ldpoll1():
        a("s_lshl_b32 s3, s27, 7"); a("s_lshl_b32 s56, s26, 7"); a("s_add_u32 s56, s56, 2048")
        a("v_mov_b32 v27, s3"); a("v_mov_b32 v28, s56"); a("v_and_b32 v29, 1, v11"); a("v_cmp_eq_u32 s[88:89], 1, v29")
        a("v_cndmask_b32 v17, v27, v28, s[88:89]"); a("v_add_u32 v17, v17, v10")
        a(f"s_mov_b32 s56, {F1}")
        a.vmem("buffer_load_dword v16, v17, s[40:43], s56 offen sc1", "POLL1")
    QA = 32
    vTQ3 = 93
    def qreads(s):
        j, p = divmod(s, 4)
        return [lambda t=t, h=h: a.ds(f"ds_read_b64_tr_b16 {R(BF + (s&1)*20 + t*4 + h*2, 2)}, v{vTQ[p]} offset:{j*10240 + h*80 + t*32}", f"Q{s}") for t in range(3) for h in range(2)]
    pre = [ldsmall, ldres] + ldwo() + [ldc1] + w1dma(0, 20)
    NQL = 17
    for f in qreads(0): f()
    for s in range(20):
        j, p = divmod(s, 4)
        if s == 18: a.wait(lg="CQW"); a("s_barrier")
        a.wait(lg=f"Q{s}")
        mf = []
        for t in range(3):
            b = BF + (s&1)*20 + t*4
            for tt in range(2): mf.append(MF(QA + (tt*3+t)*4, b, xf(tt, s), s == 0))
            if p == 0: mf.append(MF(CSQ, b, OH + 4*t, s == 0 and t == 0))
        side = qreads(s+1) if s < 19 else []
        if s < NQL:
            q = (len(pre) + NQL - 1 - s)//(NQL - s); side += pre[:q]; pre = pre[q:]
        if s == 17:
            side.append(ldpoll1)
            side += ["s_lshl_b32 s3, s28, 9", f"s_add_u32 s3, s3, {CSX}", "v_add_u32 v27, s3, v26"]
            side.append(lambda: (a("s_mov_b64 exec, s[66:67]"), a.ds(f"ds_write_b128 v27, {R(CSQ, 4)}", "CQW"), a("s_mov_b64 exec, -1")))
        if s == 18:
            side += ["v_lshlrev_b32 v27, 4, v11", f"v_add_u32 v27, {CSX}, v27"]
            for w in range(4):
                for t in range(3):
                    d = (56 + 4*t) if w == 0 else (96 + 0) if False else None
            dst = {0: 56, 1: 96, 2: 86 - 0, 3: 0}
            for w, base in ((0, 56), (1, 96)):
                for t in range(3): side.append(lambda w=w, t=t, base=base: a.ds(f"ds_read_b128 {R(base + 4*t, 4)}, v27 offset:{512*w + 64*t}", "CQR"))
        if s == 19:
            side.append(lambda: a.wait(lg="CQR"))
            for x in range(12): side.append(f"v_add_f32 v{56+x}, v{56+x}, v{96+x}")
            for t in range(3): side.append(lambda t=t: a.ds(f"ds_read_b128 {R(96 + 4*t, 4)}, v27 offset:{1024 + 64*t}", "CQR"))
        a.interleave(mf, side)
    a.stamp()
    a.wait(vm="POLL1")
    a("s_mov_b32 s78, 0")
    a("L_h1p:")
    a("v_and_b32 v28, 0xfffffff8, v16"); a("v_cmp_ne_u32 vcc, s76, v28")
    a("s_cbranch_vccz L_h1ok")
    a("s_add_u32 s78, s78, 1"); a(f"s_cmp_ge_u32 s78, {POLLMAX}"); a("s_cbranch_scc1 L_h1ok")
    a("buffer_load_dword v16, v17, s[40:43], s56 offen sc1"); a("s_waitcnt vmcnt(0)")
    a("s_branch L_h1p")
    a("L_h1ok:")
    a.stamp()
    a.vm = []
    a("v_cmp_ne_u32 vcc, s77, v16"); a("s_and_b64 vcc, vcc, s[88:89]"); a("s_cselect_b32 s79, 0, 1")
    if os.environ.get("FORCESLOW"): a("s_mov_b32 s79, 0")
    P0 = A0
    a("s_lshl_b32 s3, s27, 16"); a(f"s_add_u32 s3, s3, {PART}")
    for r_ in range(16):
        a.vmem(f"buffer_load_dwordx4 {R(P0 + 4*r_, 4)}, v9, s[40:43], s3 offen sc1", f"P{r_}")
        a("s_add_u32 s3, s3, 4096")
    a.wait(lg="CQR")
    for x in range(12): a(f"v_add_f32 v{56+x}, v{56+x}, v{96+x}")
    for t in range(3): a.ds(f"ds_read_b128 {R(96 + 4*t, 4)}, v27 offset:{1536 + 64*t}", "CQR")
    a.wait(lg="all")
    for x in range(12): a(f"v_add_f32 v{56+x}, v{56+x}, v{96+x}")
    PQR = 96
    a("v_cmp_gt_u32 s[90:91], 32, v1"); a("v_cmp_gt_u32 s[92:93], 48, v1")
    for tt in range(2):
        for t in range(3):
            for r_ in range(4):
                v_ = f"v{QA + (tt*3+t)*4 + r_}"
                a(f"v_mul_f32 {t0}, v{MT + tt}, v{56 + 4*t + r_}")
                a(f"v_fma_f32 {v_}, {v_}, v{RT + tt}, -{t0}")
                phi(a, v_, t1, t2)
            for h in range(2):
                d = f"v{PQR + tt*6 + t*2 + h}"
                a(f"v_cvt_pk_bf16_f32 {d}, v{QA + (tt*3+t)*4 + 2*h}, v{QA + (tt*3+t)*4 + 2*h + 1}")
                if t == 2: a(f"v_cndmask_b32 {d}, 0, {d}, s[90:91]")
    OSC = CSX
    OSC = SCR
    TA = 56
    for s_ in range(12):
        src = T2R + s_//2
        if s_ & 1: a(f"v_lshrrev_b32 v{TA+s_}, 16, v{src}")
        else: a(f"v_and_b32 v{TA+s_}, 0xffff, v{src}")
        a(f"v_add_u32 v{TA+s_}, {OSC}, v{TA+s_}")
    for r_ in range(16):
        if r_ % 4 == 0: a.wait(vm=f"P{r_+3}")
        for e in range(4):
            if r_ == 0: a(f"v_accvgpr_read_b32 v{32+e}, {R(P0+e)}")
            else:
                a(f"v_accvgpr_read_b32 v{36+e}, {R(P0+4*r_+e)}")
        if r_:
            for e in range(4): a(f"v_add_f32 v{32+e}, v{32+e}, v{36+e}")
    a("v_cvt_pk_bf16_f32 v18, v32, v33"); a("v_cvt_pk_bf16_f32 v19, v34, v35")
    a("v_cmp_gt_u32 vcc, 210, v0")
    a("v_cndmask_b32 v18, 0, v18, vcc"); a("v_cndmask_b32 v19, 0, v19, vcc")
    a("v_lshlrev_b32 v27, 3, v0"); a(f"v_add_u32 v27, {OSC}, v27")
    a("ds_write_b64 v27, v[18:19]")
    a("s_cmp_eq_u32 s72, 0"); a("s_cbranch_scc1 L_rp2_done")
    rp_fin(5, A0 + 64)
    a("L_rp2_done:")
    a("s_waitcnt lgkmcnt(0)")
    a("s_barrier")
    a.stamp()
    KF = A0 + 96
    for E in range(4):
        for ta in range(3): a(f"ds_read_b64 {R(KF + 8*E + 2*ta, 2)}, v{TA + 3*E + ta}")
    a("s_mul_i32 s3, s28, 40960"); a("s_mul_i32 s56, s27, 1280"); a("s_add_u32 s3, s3, s56"); a("s_add_u32 s3, s3, s58")
    a("v_lshlrev_b32 v27, 2, v10"); a("v_lshl_add_u32 v27, v11, 3, v27")
    a("v_mov_b32 v28, 0x7fffffff"); a("v_cndmask_b32 v27, v28, v27, s[90:91]")
    a("s_waitcnt lgkmcnt(0)")
    D = 32
    for tt in range(2):
        for E in (3, 0, 1, 2):
            d = R(D + (tt*4+E)*4, 4)
            a(f"v_mfma_f32_16x16x32_bf16 {d}, {R(KF + 8*E, 4)}, {R(PQR + 6*tt, 4)}, 0")
    for tt in range(2):
        for E in (3, 0, 1, 2):
            d = R(D + (tt*4+E)*4, 4)
            a(f"v_mfma_f32_16x16x16_bf16 {d}, {R(KF + 8*E + 4, 2)}, {R(PQR + 6*tt + 4, 2)}, {d}")
    for tt in range(2):
        z = D + (tt*4+3)*4
        a(f"v_add_f32 v20, s61, v{z}"); a(f"v_add_f32 v21, s61, v{z+1}")
        a("v_rcp_f32 v20, v20"); a("v_rcp_f32 v21, v21")
        a("v_cndmask_b32 v22, v21, v20, s[92:93]"); a("v_cndmask_b32 v23, v21, v20, s[90:91]")
        for E, rc in ((0, 22), (1, 23), (2, 21)):
            d = D + (tt*4+E)*4
            for e in range(4): a(f"v_mul_f32 v{d+e}, v{d+e}, v{rc}")
            a(f"v_cvt_pk_bf16_f32 v{64 + tt*0 + 2*E + (22 if tt else 0)}, v{d}, v{d+1}")
            a(f"v_cvt_pk_bf16_f32 v{64 + 2*E + 1 + (22 if tt else 0)}, v{d+2}, v{d+3}")
        ob = 64 + (22 if tt else 0)
        a(f"buffer_store_dwordx4 {R(ob, 4)}, v8, s[40:43], s3 offen")
        a(f"buffer_store_dwordx2 {R(ob + 4, 2)}, v27, s[40:43], s3 offen offset:1024")
        a("s_add_u32 s3, s3, 20480")

    def hop(n, before, others):
        before()
        a(f"s_add_u32 s59, s58, {G_FL + 128*n}")
        a("s_lshl_b32 s3, s27, 2"); a("s_add_u32 s3, s3, s59")
        a.wait(vm="all")
        a("s_barrier")
        a.stamp()
        a("s_cmp_lg_u32 s28, 0"); a(f"s_cbranch_scc1 L_g{n}o")
        a("s_mov_b64 exec, 1")
        a("s_cmp_eq_u32 s79, 0"); a(f"s_cbranch_scc1 L_g{n}slow")
        a("buffer_store_dword v6, v5, s[40:43], s3 offen")
        a(f"s_branch L_g{n}pd")
        a(f"L_g{n}slow:")
        a("buffer_wbl2 sc1"); a("s_waitcnt vmcnt(0)")
        a("buffer_store_dword v6, v5, s[40:43], s3 offen sc1")
        a(f"L_g{n}pd:")
        a("s_mov_b64 exec, -1")
        a("s_mov_b32 s78, 0")
        a(f"L_g{n}p:")
        a("buffer_load_dword v27, v10, s[40:43], s59 offen sc1")
        a("s_add_u32 s78, s78, 1")
        a("s_waitcnt vmcnt(0)")
        a("v_cmp_ne_u32 vcc, s76, v27")
        a(f"s_cmp_ge_u32 s78, {POLLMAX}"); a(f"s_cbranch_scc1 L_g{n}x")
        a(f"s_cbranch_vccnz L_g{n}p")
        a(f"L_g{n}x:")
        a("s_cmp_lg_u32 s79, 0"); a(f"s_cbranch_scc1 L_g{n}j")
        a("buffer_inv sc1"); a("s_waitcnt vmcnt(0)")
        a(f"s_branch L_g{n}j")
        a(f"L_g{n}o:")
        others()
        a.vm = []
        a(f"L_g{n}j:")
        a("s_barrier")
        a.stamp()
    def a_off(NK, goff):
        for m in range(4):
            a(f"s_add_u32 s3, s28, {m}"); a("s_and_b32 s3, s3, 3"); a("s_lshl_b32 s57, s48, 2"); a("s_add_u32 s3, s3, s57")
            a(f"s_mul_i32 s3, s3, {NK}"); a("s_add_u32 s3, s3, s28"); a("s_lshl_b32 s3, s3, 10"); a("s_add_u32 s3, s3, s58"); a(f"s_add_u32 s{80+m}, s3, {goff}")
    def oth2():
        a("s_cmp_lg_u32 s28, 1"); a("s_cbranch_scc1 L_norf2"); a("s_cmp_lg_u32 s65, 0"); a("s_cbranch_scc1 L_norf2")
        a("s_lshl_b32 s3, s26, 4"); a("s_add_u32 s3, s3, s27"); a("s_lshl_b32 s3, s3, 2"); a(f"s_add_u32 s3, s3, {RF}")
        a("s_mov_b64 exec, 1"); a("buffer_store_dword v6, v5, s[40:43], s3 offen sc1"); a("s_mov_b64 exec, -1")
        a("L_norf2:")
    hop(0, lambda: a_off(20, G_O), oth2)
    ACC = 32 ; FA3 = A0
    B1A = A0 + 240
    for n in range(5):
        for m in range(4):
            a.vmem(f"buffer_load_dwordx4 {R(FA3 + (n*4+m)*4, 4)}, v8, s[40:43], s{80+m} offen sc1", f"A{n}")
            a(f"s_add_u32 s{80+m}, s{80+m}, 4096")
    for x in range(14): a(f"v_accvgpr_write_b32 {R(B1A + x)}, v{B1 + x}")
    CSL = 100*1024 - 0
    RED = 102400
    for e in range(4):
        a(f"v_add_f32 v{C1R+e}, v{C1R+e}, v{C1R+4+e}"); a(f"v_add_f32 v{C1R+8+e}, v{C1R+8+e}, v{C1R+12+e}")
        a(f"v_add_f32 v{C1R+e}, v{C1R+e}, v{C1R+16+e}"); a(f"v_add_f32 v{C1R+e}, v{C1R+e}, v{C1R+8+e}")
    CSL = 98304
    a("s_lshl_b32 s3, s28, 9"); a(f"s_add_u32 s3, s3, {CSL}"); a("v_add_u32 v27, s3, v26")
    a("s_mov_b64 exec, s[66:67]"); a(f"ds_write_b128 v27, {R(C1R, 4)}"); a("s_mov_b64 exec, -1")
    def hidtouch():
        a("s_mul_i32 s3, s27, 27648"); a("s_add_u32 s3, s3, s58"); a(f"s_add_u32 s3, s3, {G_HID}"); a("s_mul_i32 s56, s28, 6912"); a("s_add_u32 s3, s3, s56")
        a("s_bfm_b64 exec, 54, 0"); a.vmem(f"buffer_load_dword v4, v3, s[40:43], s3 offen{PTNT}"); a("s_mov_b64 exec, -1")
    side3 = [hidtouch] + w1dma(80, 4)
    for n in range(5):
        a.wait(vm=f"A{n}")
        mf = [MF(ACC + (m*5+t)*4, FB3 + (n*5+t)*4, FA3 + (n*4+m)*4, n == 0) for m in range(4) for t in range(5)]
        a.interleave(mf, side3[n:n+1])
    a.stamp()
    def reduce_epi(which, BIA=None):
        for m in range(1, 4):
            a(f"s_add_u32 s3, s28, {m}"); a("s_and_b32 s3, s3, 3"); a("s_mul_i32 s3, s3, 15360"); a(f"s_add_u32 s3, s3, {RED}")
            a(f"v_add_u32 v{16+m}, s3, v8")
        for m in range(1, 4):
            for t in range(5): a(f"ds_write_b128 v{16+m}, {R(ACC + (m*5+t)*4, 4)} offset:{(m-1)*5120 + t*1024}")
        a("s_mul_i32 s3, s28, 15360"); a(f"s_add_u32 s3, s3, {RED}"); a("v_add_u32 v16, s3, v8")
        U = 20
        for t in range(5):
            for e in range(4):
                for src0 in ([RES] if which == 3 else [RES, BIA]):
                    src = src0 + 2*t + (e >> 1)
                    if e & 1: a(f"v_and_b32 v{U+e}, 0xffff0000, v{src}")
                    else: a(f"v_lshlrev_b32 v{U+e}, 16, v{src}")
                    a(f"v_add_f32 v{ACC+4*t+e}, v{ACC+4*t+e}, v{U+e}")
        a("s_waitcnt lgkmcnt(0)")
        a("s_barrier")
        for t in range(5):
            for m in range(1, 4): a(f"ds_read_b128 {R(ACC + (m*5+t)*4, 4)}, v16 offset:{(m-1)*5120 + t*1024}")
        for t in range(5):
            a(f"s_waitcnt lgkmcnt({12 - 3*t})")
            for e in range(4):
                x0 = ACC + 4*t + e
                a(f"v_add_f32 v{x0+20}, v{x0+20}, v{x0+40}"); a(f"v_add_f32 v{x0}, v{x0}, v{x0+60}"); a(f"v_add_f32 v{x0}, v{x0}, v{x0+20}")
            for h in range(2): a(f"v_cvt_pk_bf16_f32 v{RES+2*t+h}, v{ACC+4*t+2*h}, v{ACC+4*t+2*h+1}")
    reduce_epi(3)
    a("s_mul_i32 s57, s50, 20480"); a("s_mul_i32 s3, s49, 2560"); a("s_add_u32 s57, s57, s3"); a("s_add_u32 s57, s57, s58"); a(f"s_add_u32 s57, s57, {G_H}")
    a.vmem(f"buffer_store_dwordx4 {R(RES, 4)}, v8, s[40:43], s57 offen")
    a.vmem(f"buffer_store_dwordx4 {R(RES+4, 4)}, v8, s[40:43], s57 offen offset:1024")
    a.vmem(f"buffer_store_dwordx2 {R(RES+8, 2)}, v13, s[40:43], s57 offen offset:2048")
    a(f"v_add_f32 v20, v{ACC}, v{ACC+1}"); a(f"v_mul_f32 v21, v{ACC}, v{ACC}"); a(f"v_fmac_f32 v21, v{ACC+1}, v{ACC+1}")
    for x in range(2, 20):
        a(f"v_add_f32 v20, v20, v{ACC+x}"); a(f"v_fmac_f32 v21, v{ACC+x}, v{ACC+x}")
    def red_g(regs, tmp):
        for r_ in regs:
            a(f"v_mov_b32 {tmp}, {r_}"); a(f"v_permlane32_swap_b32 {r_}, {tmp}"); a(f"v_add_f32 {r_}, {r_}, {tmp}")
            a(f"v_mov_b32 {tmp}, {r_}"); a(f"v_permlane16_swap_b32 {r_}, {tmp}"); a(f"v_add_f32 {r_}, {r_}, {tmp}")
    red_g(["v20", "v21"], "v22")
    a("v_lshlrev_b32 v22, 1, v10")
    a("s_lshl_b32 s57, s50, 10"); a("s_lshl_b32 s3, s49, 7"); a("s_add_u32 s57, s57, s3"); a("s_add_u32 s57, s57, s58"); a(f"s_add_u32 s57, s57, {G_ST}")
    a.vmem("buffer_store_dwordx2 v[20:21], v22, s[40:43], s57 offen")
    CS = 128
    def bef3():
        a("v_lshlrev_b32 v18, 4, v11"); a(f"v_add_u32 v18, {CSL}, v18")
        for w, base in ((0, CS), (1, 156), (2, 184), (3, 212)):
            for t in range(7): a(f"ds_read_b128 {R(base + 4*t, 4)}, v18 offset:{512*w + 64*t}")
        a("s_mul_i32 s3, s28, 40960"); a("s_add_u32 s3, s3, s58"); a(f"s_add_u32 s80, s3, {G_H}"); a("s_add_u32 s81, s80, 20480")
        a("s_lshl_b32 s82, s28, 11"); a("s_add_u32 s82, s82, s58"); a(f"s_add_u32 s82, s82, {G_ST}")
        a("v_lshlrev_b32 v19, 8, v11"); a("v_lshl_add_u32 v19, v10, 1, v19")
        a("v_add_u32 v16, 57344, v8"); a("v_add_u32 v17, 114688, v8")
        a("s_waitcnt lgkmcnt(0)")
    def oth3():
        for f in w1dma(96, 15, 1): f()
        a("s_waitcnt vmcnt(0)")
    hop(1, bef3, oth3)
    HF = A0; BF = A0 + 160
    def hf(tt, k): return HF + (k*2 + tt)*4
    def ldh(k):
        def one(tt):
            a.vmem(f"buffer_load_dwordx4 {R(hf(tt, k), 4)}, v8, s[40:43], s{80+tt} offen offset:{1024*(k&3)} sc1", f"H{k}")
            if (k & 3) == 3: a(f"s_add_u32 s{80+tt}, s{80+tt}, 4096")
        return [lambda tt=tt: one(tt) for tt in range(2)]
    PRE = P("PRE4", 5)
    for k in range(PRE):
        for f in ldh(k): f()
    for tt in range(2):
        for q in range(2):
            a.vmem(f"buffer_load_dwordx2 {R(88 + 4*tt + 2*q, 2)}, v19, s[40:43], s82 offen offset:{1024*tt + 128*q} sc1", "ST")
    a(f"s_mov_b32 s59, {RF}")
    def breads(k):
        return [lambda t=t: a.ds(f"ds_read_b128 {R(BF + (k&1)*28 + 4*t, 4)}, v{[8, 16, 17][k >> 3]} offset:{(k & 7)*7168 + 1024*t}", f"BR{k}") for t in range(7)]
    for f in breads(0): f()
    for x in range(28):
        a(f"v_add_f32 v{CS+x}, v{CS+x}, v{156+x}"); a(f"v_add_f32 v{184+x}, v{184+x}, v{212+x}"); a(f"v_add_f32 v{CS+x}, v{CS+x}, v{184+x}")
    vS = [20, 21]; vQ = [22, 23]
    slots = [156 + 4*i for i in range(16)]
    slots += [A0 + 216 + 4*i for i in range(6)]
    slots += [HF + 4*i for i in range(40)]
    slots += [BF + 4*i for i in range(8)]
    def fb(n, t): return slots[n*5 + t]
    a("s_mul_i32 s3, s49, 54"); a("s_add_u32 s3, s3, s28"); a("s_mul_i32 s54, s3, 5120"); a(f"s_add_u32 s54, s54, {W2P}")
    def ldw2(n, t):
        if n == 13 and t == 0:
            a("s_cmp_ge_u32 s28, 2"); a("s_cselect_b32 s3, 0x40000000, 0"); a("s_add_u32 s54, s54, s3")
        a.vmem(f"buffer_load_dwordx4 {R(fb(n, t), 4)}, v{8 if t < 4 else 12}, s[40:43], s54 offen offset:{1024*(t&3)} sc1", f"W2_{n}")
        if t == 4: a("s_add_u32 s54, s54, 20480")
    w2q = [(n, t) for n in range(14) for t in range(5)]
    hq = list(range(PRE, 20))
    HRATE = P("HRATE", 2); W2RATE = P("W2RATE", 3)
    krf = None
    for k in range(20):
        a.wait(vm=f"H{k}", lg=f"BR{k}")
        side = breads(k+1) if k < 19 else []
        for _ in range(HRATE):
            if hq:
                kk = hq.pop(0); side += ldh(kk)
                if not hq:
                    side.append(lambda: a.vmem("buffer_load_dwordx4 v[92:95], v8, s[40:43], s59 offen sc1", "RF")); krf = k
        if k == PRE + 1:
            for tt in range(2):
                side.append(f"v_add_f32 v{vS[tt]}, v{88+4*tt}, v{90+4*tt}"); side.append(f"v_add_f32 v{vQ[tt]}, v{89+4*tt}, v{91+4*tt}")
            side.append(lambda: red_g([f"v{x}" for x in vS + vQ], "v24"))
        if k == PRE + 2:
            for tt in range(2):
                s_, q_ = f"v{vS[tt]}", f"v{vQ[tt]}"
                side += [f"v_mul_f32 {s_}, s63, {s_}", f"v_mul_f32 {q_}, s63, {q_}", f"v_fma_f32 {q_}, -{s_}, {s_}, {q_}", f"v_max_f32 {q_}, 0, {q_}",
                         f"v_add_f32 v24, s64, {q_}", f"v_fma_f32 {q_}, v24, s64, {q_}", f"v_rsq_f32 {q_}, {q_}", f"v_mul_f32 {s_}, {s_}, {q_}"]
        if krf is not None and k == krf + 3:
            a.wait(vm="RF"); rfcheck("L_rf2", True)
        if krf is not None and k >= krf + 3:
            for _ in range(W2RATE):
                n, t = w2q[0]
                idx = n*5 + t
                if idx < 22 + 2*k:
                    w2q.pop(0); side.append(lambda n=n, t=t: ldw2(n, t))
        mf = [MF(ACC + (tt*7+t)*4, BF + (k&1)*28 + 4*t, hf(tt, k), k == 0) for t in range(7) for tt in range(2)]
        a.interleave(mf, side)
    assert krf is not None and krf >= PRE + 1, krf
    a.stamp()
    c1 = -2.0*LOG2E*0.7978845608028654
    c2 = c1*0.044715
    a(f"s_mov_b32 s60, {hx(c1)}"); a(f"s_mov_b32 s61, {hx(c2)}")
    a("v_mov_b32 v24, s60")
    a("s_mul_i32 s56, s28, 110592"); a("s_lshl_b32 s3, s53, 9"); a("s_add_u32 s56, s56, s3"); a("s_add_u32 s56, s56, s58"); a(f"s_add_u32 s56, s56, {G_HID}")
    B1U = 220
    for x in range(14):
        a(f"v_accvgpr_read_b32 v25, {R(B1A + x)}")
        a(f"v_lshlrev_b32 v{B1U+2*x}, 16, v25"); a(f"v_and_b32 v{B1U+2*x+1}, 0xffff0000, v25")
    PK = 88
    W2EPI = P("W2EPI", 2); W2STOP = P("W2STOP", 11)
    for tt in range(2):
        for t in range(7):
            for e in range(4):
                v_ = f"v{ACC + (tt*7+t)*4 + e}"; ta = f"v{248+e}"
                a(f"v_fma_f32 {ta}, -v{vS[tt]}, v{CS+4*t+e}, v{B1U+4*t+e}")
                a(f"v_fma_f32 {v_}, {v_}, v{vQ[tt]}, {ta}")
                a(f"v_mul_f32 {ta}, {v_}, {v_}")
                a(f"v_fma_f32 {ta}, {ta}, s61, v24")
                a(f"v_mul_f32 {ta}, {ta}, {v_}")
                a(f"v_exp_f32 {ta}, {ta}")
                if e < W2EPI and w2q and tt*7 + t < W2STOP: ldw2(*w2q.pop(0))
            for e in range(4):
                ta = f"v{248+e}"; a(f"v_add_f32 {ta}, 1.0, {ta}"); a(f"v_rcp_f32 {ta}, {ta}")
            for e in range(4):
                v_ = f"v{ACC + (tt*7+t)*4 + e}"; a(f"v_mul_f32 {v_}, {v_}, v{248+e}")
            for h in range(2):
                x0 = ACC + (tt*7+t)*4 + 2*h
                a(f"v_cvt_pk_bf16_f32 v{PK + tt*14 + 2*t + h}, v{x0}, v{x0+1}")
        for p in range(3): a.vmem(f"buffer_store_dwordx4 {R(PK + tt*14 + 4*p, 4)}, v8, s[40:43], s56 offen offset:{1024*p}")
        a.vmem(f"buffer_store_dwordx2 {R(PK + tt*14 + 12, 2)}, v13, s[40:43], s56 offen offset:3072")
        a("s_add_u32 s56, s56, 55296")
    BIA = 126
    def bef4():
        srd(a, 32, 20, 2621440); srd(a, 36, 18, 1280)
        a_off(54, G_HID)
    hop(2, bef4, lambda: None)
    ar = [136 + 4*i for i in range(5)] + [220 + 4*i for i in range(9)] + [A0 + 192 + 4*i for i in range(6)] + [A0 + 240 + 4*i for i in range(4)]
    NR = 6
    def fa(n, m): return ar[(n % NR)*4 + m]
    def lda5(n):
        def one(m):
            if n == 13 and m == 0:
                a("s_cmp_ge_u32 s28, 2"); a("s_cselect_b32 s3, 0x40000000, 0")
                for q in range(4): a(f"s_add_u32 s{80+q}, s{80+q}, s3")
            a.vmem(f"buffer_load_dwordx4 {R(fa(n, m), 4)}, v8, s[40:43], s{80+m} offen sc1", f"A5_{n}")
            a(f"s_add_u32 s{80+m}, s{80+m}, 4096")
        return [lambda m=m: one(m) for m in range(4)]
    PRE5 = P("PRE5", 3)
    def need_w2(n):
        L = []
        while w2q and w2q[0][0] <= n:
            x = w2q.pop(0); L.append(lambda x=x: ldw2(*x))
        return L
    for n in range(PRE5):
        for f in need_w2(n) + lda5(n): f()
    def ldbia():
        a("v_lshlrev_b32 v27, 4, v11"); a("v_lshlrev_b32 v28, 3, v11"); a("s_mul_i32 s3, s49, 160")
        a.vmem(f"buffer_load_dwordx4 {R(BIA, 4)}, v27, s[36:39], s3 offen")
        a.vmem(f"buffer_load_dwordx4 {R(BIA+4, 4)}, v27, s[36:39], s3 offen offset:64")
        a.vmem(f"buffer_load_dwordx2 {R(BIA+8, 2)}, v28, s[36:39], s3 offen offset:128")
    nxt = PRE5
    for n in range(14):
        a.wait(vm=f"A5_{n}")
        side = []
        cnt = 0
        while nxt < 14 and nxt <= n + NR - 1 and cnt < 2:
            side += need_w2(nxt) + lda5(nxt); nxt += 1; cnt += 1
        if n == 2: side.append(ldbia)
        mf = [MF(ACC + (m*5+t)*4, fb(n, t), fa(n, m), n == 0) for m in range(4) for t in range(5)]
        a.interleave(mf, side)
    a.stamp()
    reduce_epi(5, BIA)
    a(f"buffer_store_dwordx4 {R(RES, 4)}, v14, s[32:35], s51 offen")
    a(f"buffer_store_dwordx4 {R(RES+4, 4)}, v14, s[32:35], s51 offen offset:64")
    a(f"buffer_store_dwordx2 {R(RES+8, 2)}, v15, s[32:35], s51 offen offset:128")
    a.stamp()
    if STAMP:
        a("s_waitcnt vmcnt(0)")
        a.stamp()
        a("v_writelane_b32 v7, s79, 30")
        a("s_lshl_b32 s3, s2, 2"); a("s_add_u32 s3, s3, s28"); a("s_lshl_b32 s3, s3, 8"); a(f"s_add_u32 s3, s3, {STB}")
        a("v_lshlrev_b32 v27, 2, v1"); a("v_add_u32 v27, s3, v27")
        a("global_store_dword v27, v7, s[24:25]")
    a("L_end:")
    a("s_endpgm")
    return a.a

def main(out):
    hdr = open("sequential_preLN__linear_attn_block__mixer_channel_mlp__prompt.s.ref").read().split("\n")
    hdr = [l for l in hdr if l.startswith(";") and "@launch" not in l]
    hdr.append("; @launch grid=(256,1,1) block=(256,1,1) lds=163840")
    a = gen()
    pre = '.amdgcn_target "amdgcn-amd-amdhsa--gfx950"\n.text\n'
    T1, T2 = build_tables()
    a.raw(".p2align 6\nT1_tab:")
    a.raw(".short " + ",".join(map(str, T1)))
    a.raw("T2_tab:")
    for row in T2: a.raw(".short " + ",".join(map(str, row)))
    a.raw(".fill 2048, 4, 0")
    a.raw('.section .rodata,"a"\n.p2align 6')
    a.raw(f""".amdhsa_kernel {NAME}
  .amdhsa_next_free_vgpr 512
  .amdhsa_next_free_sgpr 102
  .amdhsa_accum_offset 256
  .amdhsa_group_segment_fixed_size 0
  .amdhsa_kernarg_size 88
  .amdhsa_user_sgpr_count 2
  .amdhsa_user_sgpr_kernarg_segment_ptr 1
  .amdhsa_system_sgpr_workgroup_id_x 1
.end_amdhsa_kernel""")
    open(out, "w").write("\n".join(hdr) + "\n" + pre + a.finish())

if __name__ == "__main__":
    main(sys.argv[1])
```

```python
import sys, struct, os
from asmdsl import Asm, R, S
from gen1 import build_tables, PAIRS, f2u, hx, divmod_const, srd, LOG2E

NAME = "sequential_preLN__linear_attn_block__mixer_channel_mlp__prompt_kernel"
WOP = 0
W2P = WOP + 8*20*5*1024
W1P = W2P + 8*54*5*1024
C1P = W1P + 16*20*7*1024
PART = C1P + 320*512
GRP = PART + 256*4096
G_O = 0; G_H = 163840; G_ST = 327680; G_FL = 335872; G_HID = 336896; G_SZ = G_HID + 442368
FLG = GRP + 16*G_SZ
F1 = FLG; F1R = FLG + 2048; RF = FLG + 4096
WS_END = FLG + 16384
A0 = 256
STAMP = int(os.environ.get("STAMP", "0"))
STB = 32 << 20
POLLMAX = 1 << 15
OPT = set(os.environ.get("OPT", "").split(","))
def P(name, d): return int(os.environ.get(name, d))

class G:
    def __init__(self):
        self.a = Asm(); self.vm = []; self.lg = []; self.nst = 0
    def __call__(self, t): self.a(t)
    def vmem(self, text, tag=None): self.a(text); self.vm.append(tag)
    def ds(self, text, tag=None): self.a(text); self.lg.append(tag)
    def _n(self, lst, tag, cap):
        idx = max(i for i, t in enumerate(lst) if t == tag)
        return min(len(lst) - 1 - idx, cap)
    def wait(self, vm=None, lg=None):
        s = []
        if vm is not None: s.append(f"vmcnt({0 if vm == 'all' else self._n(self.vm, vm, 63)})")
        if lg is not None: s.append(f"lgkmcnt({0 if lg == 'all' else self._n(self.lg, lg, 15)})")
        self.a("s_waitcnt " + " ".join(s))
        if vm == 'all': self.vm = []
        if lg == 'all': self.lg = []
    def stamp(self):
        if not STAMP: return
        i = self.nst; self.nst += 1
        assert i < 30
        self.a("s_memtime s[100:101]"); self.a("s_waitcnt lgkmcnt(0)"); self.a(f"v_writelane_b32 v7, s100, {i}")
    def run(self, x): x() if callable(x) else self.a(x)
    def interleave(self, main, extra):
        n = len(main); m = len(extra); j = 0
        for i, x in enumerate(main):
            self.run(x)
            while j < m and (j + 1) * n <= (i + 1) * m + (n - 1):
                self.run(extra[j]); j += 1
        while j < m:
            self.run(extra[j]); j += 1

def MF(d, a_, b_, first): return f"v_mfma_f32_16x16x32_bf16 {R(d,4)}, {R(a_,4)}, {R(b_,4)}, {'0' if first else R(d,4)}"

def phi(a, val, t1, t2):
    a(f"v_mul_f32 {t1}, s60, {val}")
    a(f"v_max_f32 {t2}, 0, {val}")
    a(f"v_exp_f32_e64 {t1}, {t1} clamp")
    a(f"v_add_f32 {t2}, s61, {t2}")
    a(f"v_add_f32 {val}, {t1}, {t2}")

def gen():
    a = G()
    name = NAME
    a.a.raw(f".globl {name}\n.p2align 8\n.type {name},@function\n{name}:")
    a("s_cmp_ge_u32 s2, 256"); a("s_cbranch_scc1 L_end")
    a("s_load_dwordx16 s[4:19], s[0:1], 0")
    a("s_load_dwordx4 s[20:23], s[0:1], 64")
    a("s_load_dwordx2 s[24:25], s[0:1], 80")
    a("s_memrealtime s[76:77]")
    a("s_getpc_b64 s[30:31]")
    a("L_pc:")
    a("v_mov_b32 v7, 0")
    a.stamp()
    a("v_lshrrev_b32 v2, 6, v0"); a("v_and_b32 v1, 63, v0")
    a("v_readfirstlane_b32 s28, v2")
    a("s_and_b32 s3, s2, 7"); a("s_lshr_b32 s27, s2, 3"); a("s_lshr_b32 s26, s27, 4"); a("s_lshl_b32 s3, s3, 1")
    a("s_add_u32 s26, s26, s3")
    a("s_and_b32 s27, s27, 15")
    a("s_cmp_lg_u32 s28, 3"); a("s_cbranch_scc1 L_nocp")
    a("s_mul_i32 s3, s27, 13"); a("s_lshr_b32 s3, s3, 6"); a("s_mul_i32 s3, s3, 5"); a("s_sub_u32 s3, s27, s3"); a("s_lshl_b32 s3, s3, 13")
    a("v_lshlrev_b32 v3, 7, v1"); a("v_add_u32 v3, s3, v3")
    a("global_load_dword v4, v3, s[30:31]")
    a("L_nocp:")
    BQ = 102400; SCR = 153600
    vXA = [72, 73, 74, 75]; vW = [76, 77]; vRd = [78, 79]; vBA = [80, 81, 82, 83, 84]; vTB = [17, 18, 19, 20]; vTQ = [86, 87, 88, 89]
    vBQ = [12, 13, 14, 15, 16]
    vT1 = 24; vSTW = 25
    ACC = 32; RAW = 160; XF = A0; BF = A0 + 160; ONES = A0 + 200; GR = A0 + 204; RSM = A0 + 212; OH = A0 + 220; CSA = A0 + 240; CSQ = A0 + 244
    t0, t1, t2, t3 = "v27", "v28", "v29", "v30"
    a("v_lshlrev_b32 v8, 4, v1")
    a("v_lshlrev_b32 v9, 4, v0")
    a("v_and_b32 v10, 15, v1"); a("v_lshlrev_b32 v10, 2, v10")
    a("v_lshrrev_b32 v11, 4, v1")
    a("v_mov_b32 v5, 0")
    a("v_lshrrev_b32 v27, 3, v1"); a("v_and_b32 v28, 7, v1")
    a("v_mul_u32_u24 v29, 1280, v27")
    a(f"v_lshl_add_u32 v{vXA[0]}, v28, 4, v29")
    for rg in range(1, 4): a(f"v_add_u32 v{vXA[rg]}, {10240*rg}, v{vXA[0]}")
    a("s_lshl_b32 s3, s28, 11"); a(f"s_add_u32 s48, s3, {SCR}")
    a("v_lshrrev_b32 v29, 1, v27"); a("v_xor_b32 v29, v29, v28"); a("v_lshlrev_b32 v29, 4, v29"); a("v_lshl_add_u32 v29, v27, 7, v29")
    a(f"v_add_u32 v{vW[0]}, s48, v29")
    a("v_xor_b32 v29, 64, v29"); a("v_add_u32 v29, 1024, v29"); a(f"v_add_u32 v{vW[1]}, s48, v29")
    for i in range(5):
        a(f"v_add_u32 v27, {64*i}, v1")
        divmod_const(a, "v28", "v29", "v27", 10)
        a("v_and_b32 v30, 0x13, v28"); a("v_bfe_u32 v27, v28, 2, 1"); a("v_lshl_add_u32 v30, v27, 3, v30")
        a("v_bfe_u32 v27, v28, 3, 1"); a("v_lshl_add_u32 v30, v27, 2, v30")
        a("v_mul_u32_u24 v30, 3840, v30"); a("v_lshl_add_u32 v30, v29, 4, v30")
        a("v_cmp_lt_u32 vcc, 4, v29"); a("v_add_u32 v27, 1200, v30")
        a(f"v_cndmask_b32 v{vBA[i]}, v30, v27, vcc")
    a("s_and_b32 s3, s27, 7"); a("s_bitcmp1_b32 0xa5, s3"); a("s_cselect_b32 s65, 1, 0")
    a("s_lshl_b32 s70, s26, 3"); a("s_lshr_b32 s3, s27, 1"); a("s_add_u32 s70, s70, s3"); a("s_lshl_b32 s70, s70, 2"); a("s_add_u32 s70, s70, s28")
    a("s_waitcnt lgkmcnt(0)")
    srd(a, 32, 4, 2621440); srd(a, 36, 6, 2457600); srd(a, 40, 24, WS_END); srd(a, 44, 12, 2211840)
    a("s_lshl_b32 s49, s26, 7"); a("s_lshl_b32 s3, s28, 5"); a("s_add_u32 s49, s49, s3"); a("s_mul_i32 s49, s49, 1280")
    a("s_lshr_b32 s3, s28, 1"); a("s_lshl_b32 s3, s3, 7"); a("s_add_u32 s62, s49, 128"); a("s_sub_u32 s62, s62, s3"); a("s_add_u32 s49, s49, s3")
    a("s_mul_i32 s50, s28, 122880"); a("s_mul_i32 s51, s27, 80"); a("s_add_u32 s50, s50, s51"); a("s_add_u32 s50, s50, 1280")
    a("s_mul_i32 s52, s28, 5120")
    a(f"s_mul_i32 s58, s26, {G_SZ}"); a(f"s_add_u32 s58, s58, {GRP}")
    XNT = " nt" if "xnt" in OPT else ""
    XTNT = " nt" if "xtnt" in OPT else ""
    PTNT = " nt" if "ptnt" in OPT else ""
    def raw(cx, rg): return RAW + ((cx % 6)*4 + rg)*4
    def xf(tt, k): return XF + (tt*20 + k)*4
    def ldx(cx):
        return [lambda cx=cx, rg=rg: a.vmem(f"buffer_load_dwordx4 {R(raw(cx, rg), 4)}, v{vXA[rg]}, s[32:35], s{62 if cx & 1 else 49} offen offset:{256*(cx>>1)}{XNT}", f"X{cx}") for rg in range(4)]
    def ldb(j):
        def one(i):
            a(f"s_add_u32 m0, s52, {j*20480 + i*1024}")
            a.vmem(f"buffer_load_dwordx4 v{vBA[i]}, s[36:39], s50 offen lds", f"B{j}")
            if i == 4: a(f"s_add_u32 s50, s50, {128*3840}")
        return [lambda i=i: one(i) for i in range(5)]
    a("s_mul_i32 s3, s26, 163840"); a("s_mul_i32 s56, s27, 10240"); a("s_add_u32 s3, s3, s56"); a("s_mul_i32 s56, s28, 2560"); a("s_add_u32 s3, s3, s56")
    a("v_lshlrev_b32 v3, 7, v1")
    a("s_mov_b64 exec, 0xfffff")
    a.vmem(f"buffer_load_dword v4, v3, s[32:35], s3 offen{XTNT}")
    a("s_mov_b64 exec, -1")
    for f in ldb(0) + ldx(0) + ldx(1): f()
    def rp_issue(nt, pitch_src, nch):
        for i in range(nt):
            a(f"v_add_u32 v27, {64*i}, v1")
            divmod_const(a, "v28", "v29", "v27", nch)
            a(f"v_mul_u32_u24 v28, {pitch_src}, v28")
            a("v_lshl_add_u32 v28, v29, 4, v28")
            a(f"s_add_u32 m0, s71, {1024*i}")
            a(f"buffer_load_dwordx4 v28, s[44:47], s73 offen nt lds")
    def rp_fin(nt, RG):
        pitch = nt*32
        a("v_bfe_u32 v28, v1, 2, 2"); a("v_lshl_add_u32 v27, v11, 3, v28"); a("v_and_b32 v28, 3, v1")
        a(f"v_mul_u32_u24 v29, {pitch}, v27"); a("v_add_u32 v29, s71, v29")
        a("v_lshl_add_u32 v30, v28, 3, v29"); a("v_lshl_add_u32 v29, v28, 4, v29")
        a("v_add_u32 v31, 4096, v8")
        for t in range(nt):
            for h in range(2):
                if t == nt - 1: a(f"ds_read_b64_tr_b16 {R(RG + 4*t + 2*h, 2)}, v30 offset:{h*4*pitch + 32*t}")
                else: a(f"ds_read_b64_tr_b16 {R(RG + 4*t + 2*h, 2)}, v29 offset:{h*4*pitch + 64*(t>>1) + 8*(t&1)}")
        if nt == 7:
            a("v_mov_b32 v28, 0x3f803f80")
            for t in (5, 6):
                a(f"v_cmp_eq_u32 vcc, {4*t}, v10")
                for e in range(4): a(f"v_cndmask_b32 v{RG+28+4*(t-5)+e}, 0, v28, vcc")
        a("s_waitcnt lgkmcnt(0)")
        for t in range(nt):
            a(f"buffer_store_dwordx4 {R(RG + 4*t, 4)}, v{8 if t < 4 else 31}, s[40:43], s74 offen offset:{1024*(t&3)} sc1")
        if nt == 7:
            for t in range(7):
                a(MF(RG+36, RG + 4*t, OH + 4*t if t < 5 else RG+28+4*(t-5), t == 0))
            a("v_lshlrev_b32 v29, 4, v11"); a("v_lshl_add_u32 v29, v10, 4, v29")
            a("v_mov_b32 v30, 0x7fffffff"); a("v_cndmask_b32 v29, v30, v29, s[66:67]")
            a("s_lshl_b32 s3, s70, 9"); a(f"s_add_u32 s3, s3, {C1P}")
            a(f"buffer_store_dwordx4 {R(RG+36, 4)}, v29, s[40:43], s3 offen sc1")
    a("s_mov_b32 s72, 0"); a("s_mov_b32 s73, 0"); a("s_mov_b32 s74, 0")
    a(f"s_mul_i32 s71, s28, 7168"); a(f"s_add_u32 s71, s71, {BQ}")
    a("s_cmp_eq_u32 s65, 0"); a("s_cbranch_scc1 L_rp1_issued")
    a("s_cmp_ge_u32 s70, 480"); a("s_cbranch_scc1 L_rp1_issued")
    a("s_cmp_ge_u32 s70, 320"); a("s_cbranch_scc1 L_rp1_wo")
    a("s_mov_b32 s72, 1")
    a("s_mul_i32 s75, s70, 3277"); a("s_lshr_b32 s75, s75, 16"); a("s_mul_i32 s79, s75, 20"); a("s_sub_u32 s79, s70, s79")
    a("s_mul_i32 s75, s75, 27"); a("s_lshr_b32 s75, s75, 2"); a("s_lshl_b32 s75, s75, 5")
    a("s_mul_i32 s79, s79, 110592"); a("s_add_u32 s73, s75, s79")
    a("s_mul_i32 s74, s70, 7168"); a(f"s_add_u32 s74, s74, {W1P}")
    rp_issue(7, 3456, 14)
    a("s_branch L_rp1_issued")
    a("L_rp1_wo:")
    a("s_mov_b32 s72, 2")
    srd(a, 44, 8, 819200)
    a("s_sub_u32 s78, s70, 320")
    a("s_mul_i32 s75, s78, 3277"); a("s_lshr_b32 s75, s75, 16"); a("s_mul_i32 s79, s75, 20"); a("s_sub_u32 s79, s78, s79")
    a("s_mul_i32 s74, s78, 5120"); a(f"s_add_u32 s74, s74, {WOP}")
    a("s_mul_i32 s75, s75, 160"); a("s_mul_i32 s79, s79, 40960"); a("s_add_u32 s73, s75, s79")
    rp_issue(5, 1280, 10)
    a("L_rp1_issued:")
    if "wtouch" in OPT:
        divmod_const(a, "v27", "v28", "v1", 20)
        a("v_mul_u32_u24 v27, 3840, v27"); a("v_lshl_add_u32 v3, v28, 7, v27")
        a("s_lshr_b32 s3, s2, 3"); a("s_lshl_b32 s3, s3, 2"); a("s_add_u32 s3, s3, s28"); a("s_mul_i32 s3, s3, 11520"); a(f"s_add_u32 s56, s3, {256*3840 + 1280}")
        a("s_bfm_b64 exec, 60, 0")
        a.vmem("buffer_load_dword v4, v3, s[36:39], s56 offen")
        a("s_mov_b64 exec, -1")
    for f in ldx(2) + ldx(3) + ldb(1): f()
    a("s_and_b32 s76, s76, 0xfffffff8"); a("s_or_b32 s76, s76, 8")
    a("s_or_b32 s3, s2, s28"); a("s_cmp_lg_u32 s3, 0"); a("s_cbranch_scc1 L_notag")
    a("v_mov_b32 v28, s76")
    a("global_store_dword v5, v28, s[22:23] sc1")
    a("L_notag:")
    a("v_and_b32 v27, 15, v1")
    a("v_lshrrev_b32 v29, 1, v27"); a("v_xor_b32 v29, v29, v11"); a("v_lshlrev_b32 v29, 4, v29"); a("v_lshl_add_u32 v29, v27, 7, v29")
    a("s_and_b32 s3, s28, 1"); a("s_lshl_b32 s3, s3, 6"); a("v_xor_b32 v29, s3, v29")
    a(f"v_add_u32 v{vRd[0]}, s48, v29"); a("v_xor_b32 v29, 64, v29"); a(f"v_add_u32 v{vRd[1]}, s48, v29")
    a("v_lshrrev_b32 v29, 2, v27"); a("v_cmp_eq_u32 vcc, v29, v11")
    a("v_lshlrev_b32 v30, 2, v1"); a("v_add_u32 v30, 512, v30")
    a("v_cndmask_b32 v29, v30, v10, vcc"); a(f"v_add_u32 v{vSTW}, s48, v29")
    a("v_and_b32 v29, 1, v1"); a("v_cmp_eq_u32 s[68:69], 1, v29")
    a("v_and_b32 v29, 2, v1"); a("v_cmp_eq_u32 s[86:87], 2, v29")
    a("v_cmp_gt_u32 s[66:67], 8, v27")
    a("v_mov_b32 v28, 0x3f803f80")
    for i in range(4): a(f"v_accvgpr_write_b32 {R(ONES+i)}, v28")
    for t in range(5):
        a(f"v_cmp_eq_u32 vcc, {t}, v27"); a("v_cndmask_b32 v29, 0, v28, vcc")
        for e in range(4): a(f"v_accvgpr_write_b32 {R(OH+4*t+e)}, v29")
    a("v_lshrrev_b32 v27, 5, v1"); a("v_bfe_u32 v28, v1, 4, 1"); a("v_bfe_u32 v29, v1, 2, 2")
    a("v_lshl_add_u32 v29, v28, 2, v29"); a("v_lshl_add_u32 v30, v27, 4, v29"); a("v_mul_u32_u24 v30, 160, v30")
    a("v_and_b32 v28, 3, v1"); a("v_lshl_add_u32 v31, v28, 3, v30")
    a("v_lshlrev_b32 v29, 1, v29"); a("v_lshl_add_u32 v30, v27, 4, v29"); a("v_mul_u32_u24 v30, 80, v30"); a("v_lshl_add_u32 v30, v28, 3, v30")
    for p in range(4):
        a(f"s_xor_b32 s3, s28, {p}"); a("s_mul_i32 s56, s3, 5120"); a(f"v_add_u32 v{vTB[p]}, s56, v31")
        a("s_mul_i32 s56, s3, 2560"); a(f"s_add_u32 s56, s56, {BQ}"); a(f"v_add_u32 v{vTQ[p]}, s56, v30")
    a(f"s_mov_b32 s60, {hx(LOG2E)}"); a(f"s_mov_b32 s61, {hx(1e-6)}")
    a(f"s_mov_b32 s63, {hx(1.0/640)}"); a(f"s_mov_b32 s64, {hx(1e-5)}")
    for i in range(5):
        a(f"v_add_u32 v31, {64*i}, v1")
        divmod_const(a, "v28", "v29", "v31", 5)
        a("v_and_b32 v30, 0x30, v28"); a("v_bfe_u32 v31, v28, 1, 2"); a("v_add_u32 v30, v30, v31")
        a("v_and_b32 v31, 1, v28"); a("v_lshl_add_u32 v30, v31, 2, v30"); a("v_and_b32 v31, 8, v28"); a("v_add_u32 v30, v30, v31")
        a("v_mul_u32_u24 v30, 3840, v30"); a(f"v_lshl_add_u32 v{vBQ[i]}, v29, 4, v30")
    a("s_mul_i32 s53, s28, 245760"); a("s_add_u32 s53, s53, s51"); a(f"s_add_u32 s54, s52, {BQ}")
    a("s_cmp_ge_u32 s28, 2"); a("s_cselect_b32 s55, 0x40000000, 0")
    a.stamp()
    def ldq(gq):
        def one(i):
            if gq == 2 and i == 0: a("s_add_u32 s53, s53, s55"); a("s_lshr_b32 s55, s55, 14"); a("s_add_u32 s54, s54, s55")
            a(f"s_add_u32 m0, s54, {gq*20480 + i*1024}")
            a.vmem(f"buffer_load_dwordx4 v{vBQ[i]}, s[36:39], s53 offen lds", "BQ")
            if i == 4: a(f"s_add_u32 s53, s53, {256*3840}")
        return [lambda i=i: one(i) for i in range(5)]
    def ldmisc():
        a("v_lshlrev_b32 v27, 1, v0")
        a("s_add_u32 s56, s30, T1_tab-L_pc"); a("s_addc_u32 s57, s31, 0")
        a.vmem(f"global_load_ushort v{vT1}, v27, s[56:57]", "T1")
        a.vmem("global_load_dword v6, v5, s[22:23] sc1", "TAG")
    def acc(tt, t): return ACC + (tt*5 + t)*4
    def transp(cx):
        L = []
        for tt in range(2):
            L.append(lambda tt=tt: a.ds(f"ds_write_b128 v{vW[0]}, {R(raw(cx, 2*tt), 4)}"))
            L.append(lambda tt=tt: a.ds(f"ds_write_b128 v{vW[1]}, {R(raw(cx, 2*tt+1), 4)}"))
            L.append(lambda tt=tt: a.ds(f"ds_read_b128 {R(xf(tt, 2*cx), 4)}, v{vRd[0]}"))
            L.append(lambda tt=tt: a.ds(f"ds_read_b128 {R(xf(tt, 2*cx+1), 4)}, v{vRd[1]}", f"T{cx}"))
        return L
    def trreads(s):
        j, p = divmod(s, 4); L = []
        for t in range(5):
            for h in range(2):
                off = (j % 3)*20480 + h*1280 + t*32
                L.append(lambda t=t, h=h, off=off: a.ds(f"ds_read_b64_tr_b16 {R(BF + (s&1)*20 + t*4 + h*2, 2)}, v{vTB[p]} offset:{off}", f"R{s}"))
        if j == 2: L.append(f"v_add_u32 v{vTB[p]}, 61440, v{vTB[p]}")
        return L
    def statm(k):
        L = []
        for tt in range(2):
            L.append(MF(GR + 4*tt, xf(tt, k), xf(tt, k), k == 0)); L.append(MF(RSM + 4*tt, ONES, xf(tt, k), k == 0))
        return L
    def tagpoll(lab):
        a("v_readfirstlane_b32 s76, v6"); a("s_mov_b32 s78, 0")
        a(f"{lab}:")
        a("s_cmp_lg_u32 s76, 0"); a(f"s_cbranch_scc1 {lab}_ok")
        a("global_load_dword v6, v5, s[22:23] sc1"); a("s_add_u32 s78, s78, 1"); a("s_waitcnt vmcnt(0)")
        a("v_readfirstlane_b32 s76, v6")
        a(f"s_cmp_lt_u32 s78, {POLLMAX}"); a(f"s_cbranch_scc1 {lab}")
        a(f"{lab}_ok:")
    RS = 96; MS = 104; RT = 112; MT = 114; CSV = 116
    CSX = 161792
    a.wait(vm="X1")
    for f in transp(0) + transp(1): f()
    a("s_barrier")
    a.stamp()
    for f in trreads(0): a.run(f)
    a.wait(lg="T1")
    for k in range(4):
        for x in statm(k): a(x)
    loads = {0: ldx(4) + ldx(5) + ldb(2), 1: [ldmisc] + ldx(6) + ldx(7) + ldb(3), 2: ldx(8) + ldx(9) + ldb(4), 3: ldq(0) + ldq(1), 4: ldq(2)}
    for s in range(20):
        j, p = divmod(s, 4)
        if p == 3 and j < 4:
            a.wait(vm=f"B{j+1}")
            a("s_barrier")
            if j == 3: a.stamp()
            if j == 2:
                tagpoll("L_tp1")
                a("s_and_b32 s3, s65, 1"); a("s_cmp_eq_u32 s28, 0"); a("s_cselect_b32 s3, s3, 0"); a("s_cmp_eq_u32 s3, 0"); a("s_cbranch_scc1 L_norf1")
                a("s_lshl_b32 s3, s26, 4"); a("s_add_u32 s3, s3, s27"); a("s_lshl_b32 s3, s3, 2"); a(f"s_add_u32 s3, s3, {RF}")
                a("s_mov_b64 exec, 1"); a("buffer_store_dword v6, v5, s[40:43], s3 offen sc1"); a("s_mov_b64 exec, -1")
                a("L_norf1:")
        if s == 18: a.wait(lg="CSW"); a("s_barrier")
        if j < 4 and p == 0: a.wait(vm=f"X{2*j+3}")
        if s == 4:
            a.wait(lg="all")
            a("s_cmp_eq_u32 s72, 0"); a("s_cbranch_scc1 L_rp1_done")
            a("s_cmp_eq_u32 s72, 2"); a("s_cbranch_scc1 L_rp1_f5")
            rp_fin(7, 96); a("s_branch L_rp1_done")
            a("L_rp1_f5:"); rp_fin(5, 96)
            a("L_rp1_done:"); a("s_nop 7")
        else:
            a.wait(lg=f"R{s}")
        mf = []
        for t in range(5):
            b = BF + (s&1)*20 + t*4
            for tt in range(2): mf.append(MF(acc(tt, t), xf(tt, s), b, s == 0))
            if p == 0: mf.append(MF(CSA, OH + 4*t, b, s == 0 and t == 0))
        side = trreads(s+1) if s < 19 else []
        if j < 4 and p < 2: side += transp(2*j + 2 + p)
        if j < 4 and p >= 2:
            kb = 4*(j+1) + 2*(p-2); mf += statm(kb) + statm(kb+1)
        if s == 16:
            for tt in range(2):
                for e in range(4): side.append(f"v_accvgpr_read_b32 v{124+e}, {R(GR + 4*tt + e)}")
                side.append(f"v_accvgpr_read_b32 v128, {R(RSM + 4*tt)}")
                side += ["v_cndmask_b32 v124, v124, v125, s[68:69]", "v_cndmask_b32 v126, v126, v127, s[68:69]", "v_mul_f32 v128, s63, v128",
                         "v_cndmask_b32 v124, v124, v126, s[86:87]", "v_mul_f32 v124, s63, v124", "v_fma_f32 v124, -v128, v128, v124",
                         "v_max_f32 v124, 0, v124", "v_add_f32 v124, s64, v124", "v_rsq_f32 v124, v124", "v_mul_f32 v128, v128, v124"]
                side.append(lambda tt=tt: a.ds(f"ds_write_b32 v{vSTW}, v124 offset:{64*tt}"))
                side.append(lambda tt=tt: a.ds(f"ds_write_b32 v{vSTW}, v128 offset:{128 + 64*tt}"))
        if s == 17:
            side += ["s_lshl_b32 s3, s28, 9", f"s_add_u32 s3, s3, {CSX}", "v_add_u32 v27, s3, v8"]
            side.append(lambda: (a("s_bfm_b64 exec, 32, 0"), a.ds(f"ds_write_b128 v27, {R(CSA, 4)}", "CSW"), a("s_mov_b64 exec, -1")))
            side += ["v_lshlrev_b32 v28, 4, v11", "v_add_u32 v28, s48, v28", "v_add_u32 v29, s48, v10"]
            for tt in range(2):
                side.append(lambda tt=tt: a.ds(f"ds_read_b128 {R(RS + 4*tt, 4)}, v28 offset:{64*tt}"))
                side.append(lambda tt=tt: a.ds(f"ds_read_b128 {R(MS + 4*tt, 4)}, v28 offset:{128 + 64*tt}"))
                side.append(lambda tt=tt: a.ds(f"ds_read_b32 v{RT + tt}, v29 offset:{64*tt}"))
                side.append(lambda tt=tt: a.ds(f"ds_read_b32 v{MT + tt}, v29 offset:{128 + 64*tt}"))
        if s == 18:
            side += ["v_lshlrev_b32 v27, 2, v10", f"v_add_u32 v27, {CSX}, v27"]
            for w in range(4):
                side.append(lambda w=w: a.ds(f"ds_read_b128 {R(124 + 4*w, 4)}, v27 offset:{512*w}"))
                side.append(lambda w=w: a.ds(f"ds_read_b32 v{140 + w}, v27 offset:{512*w + 256}", "CSR"))
        if s == 19:
            side.append(lambda: a.wait(lg="CSR"))
            for e in range(4):
                side += [f"v_add_f32 v{124+e}, v{124+e}, v{128+e}", f"v_add_f32 v{132+e}, v{132+e}, v{136+e}", f"v_add_f32 v{CSV+e}, v{124+e}, v{132+e}"]
            side += ["v_add_f32 v140, v140, v141", "v_add_f32 v142, v142, v143", f"v_add_f32 v{CSV+4}, v140, v142"]
        ld = loads[j]; q = (len(ld) + 3 - p)//(4 - p)
        lds_ = ld[:q]; loads[j] = ld[q:]
        if lds_:
            m = []; step = max(1, len(side)//len(lds_)); li = 0
            for i_, x in enumerate(side):
                m.append(x)
                if i_ % step == step - 1 and li < len(lds_): m.append(lds_[li]); li += 1
            m += lds_[li:]; side = m
        a.interleave(mf, side)
    a.stamp()
    a(f"s_mov_b32 s59, {RF}")
    a.vmem("buffer_load_dwordx4 v[92:95], v8, s[40:43], s59 offen sc1", "RF")
    OP = 124
    for t in range(5):
        for tt in range(2):
            for r_ in range(4):
                v_ = f"v{acc(tt, t) + r_}"
                a(f"v_mul_f32 {t0}, v{MS + 4*tt + r_}, v{CSV + t}")
                a(f"v_fma_f32 {v_}, {v_}, v{RS + 4*tt + r_}, -{t0}")
                if t < 2: phi(a, v_, t1, t2)
                elif t == 2:
                    a(f"v_mov_b32 {t3}, {v_}"); phi(a, t3, t1, t2); a(f"v_cndmask_b32 {v_}, {v_}, {t3}, s[66:67]")
            for h in range(2):
                a(f"v_cvt_pk_bf16_f32 v{OP + 4*t + 2*tt + h}, v{acc(tt, t) + 2*h}, v{acc(tt, t) + 2*h + 1}")
    KVD = 144
    for p, (ta, tb) in enumerate(PAIRS):
        a(MF(KVD + 4*p, OP + 4*ta, ONES if tb < 0 else OP + 4*tb, True))
    a("s_mul_i32 s3, s28, 10240"); a("v_add_u32 v27, s3, v8")
    for p in range(10): a(f"ds_write_b128 v27, {R(KVD + 4*p, 4)} offset:{1024*p}")
    a.wait(lg="all")
    a("s_barrier")
    a(f"v_add_u32 v27, {SCR}, v10"); a("ds_write_b32 v27, v5")
    for w in range(4): a(f"ds_read_b128 {R(KVD + 4*w, 4)}, v{vT1} offset:{10240*w}")
    a("s_lshl_b32 s3, s27, 4"); a("s_add_u32 s3, s3, s26"); a("s_lshl_b32 s3, s3, 12"); a(f"s_add_u32 s3, s3, {PART}")
    a("s_getreg_b32 s77, hwreg(HW_REG_XCC_ID)"); a("s_and_b32 s77, s77, 7"); a("s_or_b32 s77, s77, s76")
    a("s_waitcnt lgkmcnt(0)")
    for e in range(4):
        a(f"v_add_f32 v{KVD+e}, v{KVD+e}, v{KVD+4+e}"); a(f"v_add_f32 v{KVD+8+e}, v{KVD+8+e}, v{KVD+12+e}")
    for e in range(4): a(f"v_add_f32 v{KVD+e}, v{KVD+e}, v{KVD+8+e}")
    a.vmem(f"buffer_store_dwordx4 {R(KVD, 4)}, v9, s[40:43], s3 offen sc1")
    def rfcheck(lab, full):
        a("s_mov_b32 s78, 0")
        a(f"{lab}:")
        if not full:
            a("v_cndmask_b32 v27, v92, v93, s[68:69]"); a("v_cndmask_b32 v28, v94, v95, s[68:69]")
        else:
            a("v_cndmask_b32 v27, v93, v92, s[68:69]"); a("v_cndmask_b32 v28, v95, v94, s[68:69]")
        a("v_cmp_ne_u32 vcc, s76, v27"); a("v_cmp_ne_u32 s[84:85], s76, v28")
        a("s_or_b64 vcc, vcc, s[84:85]"); a(f"s_cbranch_scc0 {lab}_ok")
        a("s_add_u32 s78, s78, 1"); a(f"s_cmp_ge_u32 s78, {POLLMAX}"); a(f"s_cbranch_scc1 {lab}_ok")
        a("buffer_load_dwordx4 v[92:95], v8, s[40:43], s59 offen sc1"); a("s_waitcnt vmcnt(0)")
        a(f"s_branch {lab}")
        a(f"{lab}_ok:")
    a.wait(vm="all")
    a("s_barrier")
    a.stamp()
    a("s_cmp_lg_u32 s28, 0"); a("s_cbranch_scc1 L_nopub1")
    a("s_lshl_b32 s3, s27, 7"); a("s_lshl_b32 s56, s26, 2"); a("s_add_u32 s3, s3, s56"); a(f"s_add_u32 s3, s3, {F1}")
    a("s_lshl_b32 s57, s26, 7"); a("s_lshl_b32 s56, s27, 2"); a("s_add_u32 s57, s57, s56"); a(f"s_add_u32 s57, s57, {F1R}")
    a("v_mov_b32 v27, s77")
    a("s_mov_b64 exec, 1")
    a("buffer_store_dword v27, v5, s[40:43], s3 offen sc1"); a("buffer_store_dword v27, v5, s[40:43], s57 offen sc1")
    a("s_mov_b64 exec, -1")
    a("L_nopub1:")
    rfcheck("L_rf1", False)
    a.stamp()
    a("s_mov_b32 s72, 0")
    a("s_cmp_lg_u32 s65, 0"); a("s_cbranch_scc1 L_rp2_issued")
    a("s_cmp_ge_u32 s70, 432"); a("s_cbranch_scc1 L_rp2_issued")
    a("s_mov_b32 s72, 2")
    srd(a, 44, 16, 2211840)
    a("s_add_u32 s71, s52, 81920")
    a("s_mul_i32 s75, s70, 1214"); a("s_lshr_b32 s75, s75, 16"); a("s_mul_i32 s79, s75, 54"); a("s_sub_u32 s79, s70, s79")
    a("s_mul_i32 s74, s70, 5120"); a(f"s_add_u32 s74, s74, {W2P}")
    a("s_mul_i32 s75, s75, 160"); a("s_mul_i32 s79, s79, 40960"); a("s_add_u32 s73, s75, s79")
    rp_issue(5, 1280, 10)
    a("L_rp2_issued:")
    a("s_mul_i32 s3, s27, 21056"); a("s_add_u32 s3, s3, s58"); a("s_mul_i32 s56, s28, 5376"); a("s_add_u32 s3, s3, s56")
    a("v_lshlrev_b32 v3, 7, v1")
    a("s_bfm_b64 exec, 42, 0"); a.vmem(f"buffer_load_dword v4, v3, s[40:43], s3 offen{PTNT}"); a("s_mov_b64 exec, -1")
    a("s_lshr_b32 s48, s27, 3"); a("s_and_b32 s49, s27, 7")
    a("v_add_u32 v12, 4096, v8")
    a("v_lshrrev_b32 v13, 1, v11"); a("v_lshlrev_b32 v13, 8, v13"); a("v_lshl_add_u32 v13, v10, 2, v13")
    a("v_and_b32 v28, 1, v11"); a("v_lshl_add_u32 v13, v28, 3, v13")
    a("v_mul_u32_u24 v14, 320, v10"); a("v_lshl_add_u32 v15, v11, 3, v14"); a("v_lshl_add_u32 v14, v11, 4, v14")
    a("s_lshl_b32 s50, s48, 2"); a("s_add_u32 s50, s50, s28")
    a("s_lshl_b32 s3, s26, 3"); a("s_add_u32 s3, s3, s50"); a("s_mul_i32 s51, s3, 20480"); a("s_mul_i32 s3, s49, 160"); a("s_add_u32 s51, s51, s3")
    a("s_mul_i32 s53, s27, 27"); a("s_lshr_b32 s53, s53, 2")
    a("s_mul_i32 s3, s49, 20"); a("s_add_u32 s3, s3, s28"); a("s_mul_i32 s54, s3, 5120"); a(f"s_add_u32 s54, s54, {WOP}")
    a("s_mul_i32 s55, s27, 143360"); a(f"s_add_u32 s55, s55, {W1P}")
    srd(a, 36, 14, 3456)
    FB3 = 156; RES = 116; B1 = 72; C1R = 126; T2R = 18
    def ldwo():
        def one(n, t):
            a.vmem(f"buffer_load_dwordx4 {R(FB3 + (n*5+t)*4, 4)}, v{8 if t < 4 else 12}, s[40:43], s54 offen offset:{1024*(t&3)} sc1", "WO")
            if t == 4: a("s_add_u32 s54, s54, 20480")
        return [lambda n=n, t=t: one(n, t) for n in range(5) for t in range(5)]
    def w1dma(kb0, cnt, wsub=0):
        def one(i):
            if i % 4 == 0:
                a(f"s_mul_i32 s3, s28, {cnt*1024}"); a(f"s_add_u32 m0, s3, {(kb0 + i - wsub*cnt)*1024}"); a("s_add_u32 s57, s55, m0")
            a.vmem(f"buffer_load_dwordx4 v8, s[40:43], s57 offen offset:{1024*(i&3)} sc1 lds", "W1")
        return [lambda i=i: one(i) for i in range(cnt)]
    def ldsmall():
        a("v_lshlrev_b32 v27, 5, v1"); a("s_add_u32 s56, s30, T2_tab-L_pc"); a("s_addc_u32 s57, s31, 0")
        a.vmem(f"global_load_dwordx4 {R(T2R, 4)}, v27, s[56:57]"); a.vmem(f"global_load_dwordx2 {R(T2R+4, 2)}, v27, s[56:57] offset:16")
    def ldres():
        a.vmem(f"buffer_load_dwordx4 {R(RES, 4)}, v14, s[32:35], s51 offen")
        a.vmem(f"buffer_load_dwordx4 {R(RES+4, 4)}, v14, s[32:35], s51 offen offset:64")
        a.vmem(f"buffer_load_dwordx2 {R(RES+8, 2)}, v15, s[32:35], s51 offen offset:128")
    def ldc1():
        a("v_lshlrev_b32 v27, 4, v11"); a("v_lshl_add_u32 v26, v10, 4, v27")
        a("s_mul_i32 s3, s27, 20"); a("s_mul_i32 s57, s28, 5"); a("s_add_u32 s3, s3, s57"); a("s_lshl_b32 s3, s3, 9"); a(f"s_add_u32 s3, s3, {C1P}")
        a("s_mov_b64 exec, s[66:67]")
        for n in range(5): a.vmem(f"buffer_load_dwordx4 {R(C1R + 4*n, 4)}, v26, s[40:43], s3 offen offset:{512*n} sc1")
        a("s_mov_b64 exec, -1")
        a("v_lshlrev_b32 v29, 3, v11"); a("s_lshl_b32 s3, s53, 5")
        for p in range(3): a.vmem(f"buffer_load_dwordx4 {R(B1 + 4*p, 4)}, v27, s[36:39], s3 offen offset:{64*p}")
        a.vmem(f"buffer_load_dwordx2 {R(B1 + 12, 2)}, v29, s[36:39], s3 offen offset:192")
    def ldpoll1():
        a("s_lshl_b32 s3, s27, 7"); a("s_lshl_b32 s56, s26, 7"); a("s_add_u32 s56, s56, 2048")
        a("v_mov_b32 v27, s3"); a("v_mov_b32 v28, s56"); a("v_and_b32 v29, 1, v11"); a("v_cmp_eq_u32 s[88:89], 1, v29")
        a("v_cndmask_b32 v17, v27, v28, s[88:89]"); a("v_add_u32 v17, v17, v10")
        a(f"s_mov_b32 s56, {F1}")
        a.vmem("buffer_load_dword v16, v17, s[40:43], s56 offen sc1", "POLL1")
    QA = 32
    vTQ3 = 93
    def qreads(s):
        j, p = divmod(s, 4)
        return [lambda t=t, h=h: a.ds(f"ds_read_b64_tr_b16 {R(BF + (s&1)*20 + t*4 + h*2, 2)}, v{vTQ[p]} offset:{j*10240 + h*80 + t*32}", f"Q{s}") for t in range(3) for h in range(2)]
    pre = [ldsmall, ldres] + ldwo() + [ldc1] + w1dma(0, 20)
    NQL = 17
    for f in qreads(0): f()
    for s in range(20):
        j, p = divmod(s, 4)
        if s == 18: a.wait(lg="CQW"); a("s_barrier")
        a.wait(lg=f"Q{s}")
        mf = []
        for t in range(3):
            b = BF + (s&1)*20 + t*4
            for tt in range(2): mf.append(MF(QA + (tt*3+t)*4, b, xf(tt, s), s == 0))
            if p == 0: mf.append(MF(CSQ, b, OH + 4*t, s == 0 and t == 0))
        side = qreads(s+1) if s < 19 else []
        if s < NQL:
            q = (len(pre) + NQL - 1 - s)//(NQL - s); side += pre[:q]; pre = pre[q:]
        if s == 17:
            side.append(ldpoll1)
            side += ["s_lshl_b32 s3, s28, 9", f"s_add_u32 s3, s3, {CSX}", "v_add_u32 v27, s3, v26"]
            side.append(lambda: (a("s_mov_b64 exec, s[66:67]"), a.ds(f"ds_write_b128 v27, {R(CSQ, 4)}", "CQW"), a("s_mov_b64 exec, -1")))
        if s == 18:
            side += ["v_lshlrev_b32 v27, 4, v11", f"v_add_u32 v27, {CSX}, v27"]
            for w in range(4):
                for t in range(3):
                    d = (56 + 4*t) if w == 0 else (96 + 0) if False else None
            dst = {0: 56, 1: 96, 2: 86 - 0, 3: 0}
            for w, base in ((0, 56), (1, 96)):
                for t in range(3): side.append(lambda w=w, t=t, base=base: a.ds(f"ds_read_b128 {R(base + 4*t, 4)}, v27 offset:{512*w + 64*t}", "CQR"))
        if s == 19:
            side.append(lambda: a.wait(lg="CQR"))
            for x in range(12): side.append(f"v_add_f32 v{56+x}, v{56+x}, v{96+x}")
            for t in range(3): side.append(lambda t=t: a.ds(f"ds_read_b128 {R(96 + 4*t, 4)}, v27 offset:{1024 + 64*t}", "CQR"))
        a.interleave(mf, side)
    a.stamp()
    a.wait(vm="POLL1")
    a("s_mov_b32 s78, 0")
    a("L_h1p:")
    a("v_and_b32 v28, 0xfffffff8, v16"); a("v_cmp_ne_u32 vcc, s76, v28")
    a("s_cbranch_vccz L_h1ok")
    a("s_add_u32 s78, s78, 1"); a(f"s_cmp_ge_u32 s78, {POLLMAX}"); a("s_cbranch_scc1 L_h1ok")
    a("buffer_load_dword v16, v17, s[40:43], s56 offen sc1"); a("s_waitcnt vmcnt(0)")
    a("s_branch L_h1p")
    a("L_h1ok:")
    a.stamp()
    a.vm = []
    a("v_cmp_ne_u32 vcc, s77, v16"); a("s_and_b64 vcc, vcc, s[88:89]"); a("s_cselect_b32 s79, 0, 1")
    if os.environ.get("FORCESLOW"): a("s_mov_b32 s79, 0")
    P0 = A0
    a("s_lshl_b32 s3, s27, 16"); a(f"s_add_u32 s3, s3, {PART}")
    for r_ in range(16):
        a.vmem(f"buffer_load_dwordx4 {R(P0 + 4*r_, 4)}, v9, s[40:43], s3 offen sc1", f"P{r_}")
        a("s_add_u32 s3, s3, 4096")
    a.wait(lg="CQR")
    for x in range(12): a(f"v_add_f32 v{56+x}, v{56+x}, v{96+x}")
    for t in range(3): a.ds(f"ds_read_b128 {R(96 + 4*t, 4)}, v27 offset:{1536 + 64*t}", "CQR")
    a.wait(lg="all")
    for x in range(12): a(f"v_add_f32 v{56+x}, v{56+x}, v{96+x}")
    PQR = 96
    a("v_cmp_gt_u32 s[90:91], 32, v1"); a("v_cmp_gt_u32 s[92:93], 48, v1")
    for tt in range(2):
        for t in range(3):
            for r_ in range(4):
                v_ = f"v{QA + (tt*3+t)*4 + r_}"
                a(f"v_mul_f32 {t0}, v{MT + tt}, v{56 + 4*t + r_}")
                a(f"v_fma_f32 {v_}, {v_}, v{RT + tt}, -{t0}")
                phi(a, v_, t1, t2)
            for h in range(2):
                d = f"v{PQR + tt*6 + t*2 + h}"
                a(f"v_cvt_pk_bf16_f32 {d}, v{QA + (tt*3+t)*4 + 2*h}, v{QA + (tt*3+t)*4 + 2*h + 1}")
                if t == 2: a(f"v_cndmask_b32 {d}, 0, {d}, s[90:91]")
    OSC = CSX
    OSC = SCR
    TA = 56
    for s_ in range(12):
        src = T2R + s_//2
        if s_ & 1: a(f"v_lshrrev_b32 v{TA+s_}, 16, v{src}")
        else: a(f"v_and_b32 v{TA+s_}, 0xffff, v{src}")
        a(f"v_add_u32 v{TA+s_}, {OSC}, v{TA+s_}")
    for r_ in range(16):
        if r_ % 4 == 0: a.wait(vm=f"P{r_+3}")
        for e in range(4):
            if r_ == 0: a(f"v_accvgpr_read_b32 v{32+e}, {R(P0+e)}")
            else:
                a(f"v_accvgpr_read_b32 v{36+e}, {R(P0+4*r_+e)}")
        if r_:
            for e in range(4): a(f"v_add_f32 v{32+e}, v{32+e}, v{36+e}")
    a("v_cvt_pk_bf16_f32 v18, v32, v33"); a("v_cvt_pk_bf16_f32 v19, v34, v35")
    a("v_cmp_gt_u32 vcc, 210, v0")
    a("v_cndmask_b32 v18, 0, v18, vcc"); a("v_cndmask_b32 v19, 0, v19, vcc")
    a("v_lshlrev_b32 v27, 3, v0"); a(f"v_add_u32 v27, {OSC}, v27")
    a("ds_write_b64 v27, v[18:19]")
    a("s_cmp_eq_u32 s72, 0"); a("s_cbranch_scc1 L_rp2_done")
    rp_fin(5, A0 + 64)
    a("L_rp2_done:")
    a("s_waitcnt lgkmcnt(0)")
    a("s_barrier")
    a.stamp()
    KF = A0 + 96
    for E in range(4):
        for ta in range(3): a(f"ds_read_b64 {R(KF + 8*E + 2*ta, 2)}, v{TA + 3*E + ta}")
    a("s_mul_i32 s3, s28, 40960"); a("s_mul_i32 s56, s27, 1280"); a("s_add_u32 s3, s3, s56"); a("s_add_u32 s3, s3, s58")
    a("v_lshlrev_b32 v27, 2, v10"); a("v_lshl_add_u32 v27, v11, 3, v27")
    a("v_mov_b32 v28, 0x7fffffff"); a("v_cndmask_b32 v27, v28, v27, s[90:91]")
    a("s_waitcnt lgkmcnt(0)")
    D = 32
    for tt in range(2):
        for E in (3, 0, 1, 2):
            d = R(D + (tt*4+E)*4, 4)
            a(f"v_mfma_f32_16x16x32_bf16 {d}, {R(KF + 8*E, 4)}, {R(PQR + 6*tt, 4)}, 0")
    for tt in range(2):
        for E in (3, 0, 1, 2):
            d = R(D + (tt*4+E)*4, 4)
            a(f"v_mfma_f32_16x16x16_bf16 {d}, {R(KF + 8*E + 4, 2)}, {R(PQR + 6*tt + 4, 2)}, {d}")
    for tt in range(2):
        z = D + (tt*4+3)*4
        a(f"v_add_f32 v20, s61, v{z}"); a(f"v_add_f32 v21, s61, v{z+1}")
        a("v_rcp_f32 v20, v20"); a("v_rcp_f32 v21, v21")
        a("v_cndmask_b32 v22, v21, v20, s[92:93]"); a("v_cndmask_b32 v23, v21, v20, s[90:91]")
        for E, rc in ((0, 22), (1, 23), (2, 21)):
            d = D + (tt*4+E)*4
            for e in range(4): a(f"v_mul_f32 v{d+e}, v{d+e}, v{rc}")
            a(f"v_cvt_pk_bf16_f32 v{64 + tt*0 + 2*E + (22 if tt else 0)}, v{d}, v{d+1}")
            a(f"v_cvt_pk_bf16_f32 v{64 + 2*E + 1 + (22 if tt else 0)}, v{d+2}, v{d+3}")
        ob = 64 + (22 if tt else 0)
        a(f"buffer_store_dwordx4 {R(ob, 4)}, v8, s[40:43], s3 offen")
        a(f"buffer_store_dwordx2 {R(ob + 4, 2)}, v27, s[40:43], s3 offen offset:1024")
        a("s_add_u32 s3, s3, 20480")

    def hop(n, before, others):
        before()
        a(f"s_add_u32 s59, s58, {G_FL + 128*n}")
        a("s_lshl_b32 s3, s27, 2"); a("s_add_u32 s3, s3, s59")
        a.wait(vm="all")
        a("s_barrier")
        a.stamp()
        a("s_cmp_lg_u32 s28, 0"); a(f"s_cbranch_scc1 L_g{n}o")
        a("s_mov_b64 exec, 1")
        a("s_cmp_eq_u32 s79, 0"); a(f"s_cbranch_scc1 L_g{n}slow")
        a("buffer_store_dword v6, v5, s[40:43], s3 offen")
        a(f"s_branch L_g{n}pd")
        a(f"L_g{n}slow:")
        a("buffer_wbl2 sc1"); a("s_waitcnt vmcnt(0)")
        a("buffer_store_dword v6, v5, s[40:43], s3 offen sc1")
        a(f"L_g{n}pd:")
        a("s_mov_b64 exec, -1")
        a("s_mov_b32 s78, 0")
        a(f"L_g{n}p:")
        a("buffer_load_dword v27, v10, s[40:43], s59 offen sc1")
        a("s_add_u32 s78, s78, 1")
        a("s_waitcnt vmcnt(0)")
        a("v_cmp_ne_u32 vcc, s76, v27")
        a(f"s_cmp_ge_u32 s78, {POLLMAX}"); a(f"s_cbranch_scc1 L_g{n}x")
        a(f"s_cbranch_vccnz L_g{n}p")
        a(f"L_g{n}x:")
        a("s_cmp_lg_u32 s79, 0"); a(f"s_cbranch_scc1 L_g{n}j")
        a("buffer_inv sc1"); a("s_waitcnt vmcnt(0)")
        a(f"s_branch L_g{n}j")
        a(f"L_g{n}o:")
        others()
        a.vm = []
        a(f"L_g{n}j:")
        a("s_barrier")
        a.stamp()
    def a_off(NK, goff):
        for m in range(4):
            a(f"s_add_u32 s3, s28, {m}"); a("s_and_b32 s3, s3, 3"); a("s_lshl_b32 s57, s48, 2"); a("s_add_u32 s3, s3, s57")
            a(f"s_mul_i32 s3, s3, {NK}"); a("s_add_u32 s3, s3, s28"); a("s_lshl_b32 s3, s3, 10"); a("s_add_u32 s3, s3, s58"); a(f"s_add_u32 s{80+m}, s3, {goff}")
    def oth2():
        a("s_cmp_lg_u32 s28, 1"); a("s_cbranch_scc1 L_norf2"); a("s_cmp_lg_u32 s65, 0"); a("s_cbranch_scc1 L_norf2")
        a("s_lshl_b32 s3, s26, 4"); a("s_add_u32 s3, s3, s27"); a("s_lshl_b32 s3, s3, 2"); a(f"s_add_u32 s3, s3, {RF}")
        a("s_mov_b64 exec, 1"); a("buffer_store_dword v6, v5, s[40:43], s3 offen sc1"); a("s_mov_b64 exec, -1")
        a("L_norf2:")
    hop(0, lambda: a_off(20, G_O), oth2)
    ACC = 32 ; FA3 = A0
    B1A = A0 + 240
    for n in range(5):
        for m in range(4):
            a.vmem(f"buffer_load_dwordx4 {R(FA3 + (n*4+m)*4, 4)}, v8, s[40:43], s{80+m} offen sc1", f"A{n}")
            a(f"s_add_u32 s{80+m}, s{80+m}, 4096")
    for x in range(14): a(f"v_accvgpr_write_b32 {R(B1A + x)}, v{B1 + x}")
    CSL = 100*1024 - 0
    RED = 102400
    for e in range(4):
        a(f"v_add_f32 v{C1R+e}, v{C1R+e}, v{C1R+4+e}"); a(f"v_add_f32 v{C1R+8+e}, v{C1R+8+e}, v{C1R+12+e}")
        a(f"v_add_f32 v{C1R+e}, v{C1R+e}, v{C1R+16+e}"); a(f"v_add_f32 v{C1R+e}, v{C1R+e}, v{C1R+8+e}")
    CSL = 98304
    a("s_lshl_b32 s3, s28, 9"); a(f"s_add_u32 s3, s3, {CSL}"); a("v_add_u32 v27, s3, v26")
    a("s_mov_b64 exec, s[66:67]"); a(f"ds_write_b128 v27, {R(C1R, 4)}"); a("s_mov_b64 exec, -1")
    def hidtouch():
        a("s_mul_i32 s3, s27, 27648"); a("s_add_u32 s3, s3, s58"); a(f"s_add_u32 s3, s3, {G_HID}"); a("s_mul_i32 s56, s28, 6912"); a("s_add_u32 s3, s3, s56")
        a("s_bfm_b64 exec, 54, 0"); a.vmem(f"buffer_load_dword v4, v3, s[40:43], s3 offen{PTNT}"); a("s_mov_b64 exec, -1")
    side3 = [hidtouch] + w1dma(80, 4)
    for n in range(5):
        a.wait(vm=f"A{n}")
        mf = [MF(ACC + (m*5+t)*4, FB3 + (n*5+t)*4, FA3 + (n*4+m)*4, n == 0) for m in range(4) for t in range(5)]
        a.interleave(mf, side3[n:n+1])
    a.stamp()
    def reduce_epi(which, BIA=None):
        for m in range(1, 4):
            a(f"s_add_u32 s3, s28, {m}"); a("s_and_b32 s3, s3, 3"); a("s_mul_i32 s3, s3, 15360"); a(f"s_add_u32 s3, s3, {RED}")
            a(f"v_add_u32 v{16+m}, s3, v8")
        for m in range(1, 4):
            for t in range(5): a(f"ds_write_b128 v{16+m}, {R(ACC + (m*5+t)*4, 4)} offset:{(m-1)*5120 + t*1024}")
        a("s_mul_i32 s3, s28, 15360"); a(f"s_add_u32 s3, s3, {RED}"); a("v_add_u32 v16, s3, v8")
        U = 20
        for t in range(5):
            for e in range(4):
                for src0 in ([RES] if which == 3 else [RES, BIA]):
                    src = src0 + 2*t + (e >> 1)
                    if e & 1: a(f"v_and_b32 v{U+e}, 0xffff0000, v{src}")
                    else: a(f"v_lshlrev_b32 v{U+e}, 16, v{src}")
                    a(f"v_add_f32 v{ACC+4*t+e}, v{ACC+4*t+e}, v{U+e}")
        a("s_waitcnt lgkmcnt(0)")
        a("s_barrier")
        for t in range(5):
            for m in range(1, 4): a(f"ds_read_b128 {R(ACC + (m*5+t)*4, 4)}, v16 offset:{(m-1)*5120 + t*1024}")
        for t in range(5):
            a(f"s_waitcnt lgkmcnt({12 - 3*t})")
            for e in range(4):
                x0 = ACC + 4*t + e
                a(f"v_add_f32 v{x0+20}, v{x0+20}, v{x0+40}"); a(f"v_add_f32 v{x0}, v{x0}, v{x0+60}"); a(f"v_add_f32 v{x0}, v{x0}, v{x0+20}")
            for h in range(2): a(f"v_cvt_pk_bf16_f32 v{RES+2*t+h}, v{ACC+4*t+2*h}, v{ACC+4*t+2*h+1}")
    reduce_epi(3)
    a("s_mul_i32 s57, s50, 20480"); a("s_mul_i32 s3, s49, 2560"); a("s_add_u32 s57, s57, s3"); a("s_add_u32 s57, s57, s58"); a(f"s_add_u32 s57, s57, {G_H}")
    a.vmem(f"buffer_store_dwordx4 {R(RES, 4)}, v8, s[40:43], s57 offen")
    a.vmem(f"buffer_store_dwordx4 {R(RES+4, 4)}, v8, s[40:43], s57 offen offset:1024")
    a.vmem(f"buffer_store_dwordx2 {R(RES+8, 2)}, v13, s[40:43], s57 offen offset:2048")
    a(f"v_add_f32 v20, v{ACC}, v{ACC+1}"); a(f"v_mul_f32 v21, v{ACC}, v{ACC}"); a(f"v_fmac_f32 v21, v{ACC+1}, v{ACC+1}")
    for x in range(2, 20):
        a(f"v_add_f32 v20, v20, v{ACC+x}"); a(f"v_fmac_f32 v21, v{ACC+x}, v{ACC+x}")
    def red_g(regs, tmp):
        for r_ in regs:
            a(f"v_mov_b32 {tmp}, {r_}"); a(f"v_permlane32_swap_b32 {r_}, {tmp}"); a(f"v_add_f32 {r_}, {r_}, {tmp}")
            a(f"v_mov_b32 {tmp}, {r_}"); a(f"v_permlane16_swap_b32 {r_}, {tmp}"); a(f"v_add_f32 {r_}, {r_}, {tmp}")
    red_g(["v20", "v21"], "v22")
    a("v_lshlrev_b32 v22, 1, v10")
    a("s_lshl_b32 s57, s50, 10"); a("s_lshl_b32 s3, s49, 7"); a("s_add_u32 s57, s57, s3"); a("s_add_u32 s57, s57, s58"); a(f"s_add_u32 s57, s57, {G_ST}")
    a.vmem("buffer_store_dwordx2 v[20:21], v22, s[40:43], s57 offen")
    CS = 128
    def bef3():
        a("v_lshlrev_b32 v18, 4, v11"); a(f"v_add_u32 v18, {CSL}, v18")
        for w, base in ((0, CS), (1, 156), (2, 184), (3, 212)):
            for t in range(7): a(f"ds_read_b128 {R(base + 4*t, 4)}, v18 offset:{512*w + 64*t}")
        a("s_mul_i32 s3, s28, 40960"); a("s_add_u32 s3, s3, s58"); a(f"s_add_u32 s80, s3, {G_H}"); a("s_add_u32 s81, s80, 20480")
        a("s_lshl_b32 s82, s28, 11"); a("s_add_u32 s82, s82, s58"); a(f"s_add_u32 s82, s82, {G_ST}")
        a("v_lshlrev_b32 v19, 8, v11"); a("v_lshl_add_u32 v19, v10, 1, v19")
        a("v_add_u32 v16, 57344, v8"); a("v_add_u32 v17, 114688, v8")
        a("s_waitcnt lgkmcnt(0)")
    def oth3():
        for f in w1dma(96, 15, 1): f()
        a("s_waitcnt vmcnt(0)")
    hop(1, bef3, oth3)
    HF = A0; BF = A0 + 160
    def hf(tt, k): return HF + (k*2 + tt)*4
    def ldh(k):
        def one(tt):
            a.vmem(f"buffer_load_dwordx4 {R(hf(tt, k), 4)}, v8, s[40:43], s{80+tt} offen offset:{1024*(k&3)} sc1", f"H{k}")
            if (k & 3) == 3: a(f"s_add_u32 s{80+tt}, s{80+tt}, 4096")
        return [lambda tt=tt: one(tt) for tt in range(2)]
    PRE = P("PRE4", 5)
    for k in range(PRE):
        for f in ldh(k): f()
    for tt in range(2):
        for q in range(2):
            a.vmem(f"buffer_load_dwordx2 {R(88 + 4*tt + 2*q, 2)}, v19, s[40:43], s82 offen offset:{1024*tt + 128*q} sc1", "ST")
    a(f"s_mov_b32 s59, {RF}")
    def breads(k):
        return [lambda t=t: a.ds(f"ds_read_b128 {R(BF + (k&1)*28 + 4*t, 4)}, v{[8, 16, 17][k >> 3]} offset:{(k & 7)*7168 + 1024*t}", f"BR{k}") for t in range(7)]
    for f in breads(0): f()
    for x in range(28):
        a(f"v_add_f32 v{CS+x}, v{CS+x}, v{156+x}"); a(f"v_add_f32 v{184+x}, v{184+x}, v{212+x}"); a(f"v_add_f32 v{CS+x}, v{CS+x}, v{184+x}")
    vS = [20, 21]; vQ = [22, 23]
    slots = [156 + 4*i for i in range(16)]
    slots += [A0 + 216 + 4*i for i in range(6)]
    slots += [HF + 4*i for i in range(40)]
    slots += [BF + 4*i for i in range(8)]
    def fb(n, t): return slots[n*5 + t]
    a("s_mul_i32 s3, s49, 54"); a("s_add_u32 s3, s3, s28"); a("s_mul_i32 s54, s3, 5120"); a(f"s_add_u32 s54, s54, {W2P}")
    def ldw2(n, t):
        if n == 13 and t == 0:
            a("s_cmp_ge_u32 s28, 2"); a("s_cselect_b32 s3, 0x40000000, 0"); a("s_add_u32 s54, s54, s3")
        a.vmem(f"buffer_load_dwordx4 {R(fb(n, t), 4)}, v{8 if t < 4 else 12}, s[40:43], s54 offen offset:{1024*(t&3)} sc1", f"W2_{n}")
        if t == 4: a("s_add_u32 s54, s54, 20480")
    w2q = [(n, t) for n in range(14) for t in range(5)]
    hq = list(range(PRE, 20))
    HRATE = P("HRATE", 2); W2RATE = P("W2RATE", 3)
    krf = None
    for k in range(20):
        a.wait(vm=f"H{k}", lg=f"BR{k}")
        side = breads(k+1) if k < 19 else []
        for _ in range(HRATE):
            if hq:
                kk = hq.pop(0); side += ldh(kk)
                if not hq:
                    side.append(lambda: a.vmem("buffer_load_dwordx4 v[92:95], v8, s[40:43], s59 offen sc1", "RF")); krf = k
        if k == PRE + 1:
            for tt in range(2):
                side.append(f"v_add_f32 v{vS[tt]}, v{88+4*tt}, v{90+4*tt}"); side.append(f"v_add_f32 v{vQ[tt]}, v{89+4*tt}, v{91+4*tt}")
            side.append(lambda: red_g([f"v{x}" for x in vS + vQ], "v24"))
        if k == PRE + 2:
            for tt in range(2):
                s_, q_ = f"v{vS[tt]}", f"v{vQ[tt]}"
                side += [f"v_mul_f32 {s_}, s63, {s_}", f"v_mul_f32 {q_}, s63, {q_}", f"v_fma_f32 {q_}, -{s_}, {s_}, {q_}", f"v_max_f32 {q_}, 0, {q_}",
                         f"v_add_f32 v24, s64, {q_}", f"v_fma_f32 {q_}, v24, s64, {q_}", f"v_rsq_f32 {q_}, {q_}", f"v_mul_f32 {s_}, {s_}, {q_}"]
        if krf is not None and k == krf + 3:
            a.wait(vm="RF"); rfcheck("L_rf2", True)
        if krf is not None and k >= krf + 3:
            for _ in range(W2RATE):
                n, t = w2q[0]
                idx = n*5 + t
                if idx < 22 + 2*k:
                    w2q.pop(0); side.append(lambda n=n, t=t: ldw2(n, t))
        mf = [MF(ACC + (tt*7+t)*4, BF + (k&1)*28 + 4*t, hf(tt, k), k == 0) for t in range(7) for tt in range(2)]
        a.interleave(mf, side)
    assert krf is not None and krf >= PRE + 1, krf
    a.stamp()
    c1 = -2.0*LOG2E*0.7978845608028654
    c2 = c1*0.044715
    a(f"s_mov_b32 s60, {hx(c1)}"); a(f"s_mov_b32 s61, {hx(c2)}")
    a("v_mov_b32 v24, s60")
    a("s_mul_i32 s56, s28, 110592"); a("s_lshl_b32 s3, s53, 9"); a("s_add_u32 s56, s56, s3"); a("s_add_u32 s56, s56, s58"); a(f"s_add_u32 s56, s56, {G_HID}")
    B1U = 220
    for x in range(14):
        a(f"v_accvgpr_read_b32 v25, {R(B1A + x)}")
        a(f"v_lshlrev_b32 v{B1U+2*x}, 16, v25"); a(f"v_and_b32 v{B1U+2*x+1}, 0xffff0000, v25")
    PK = 88
    W2EPI = P("W2EPI", 2); W2STOP = P("W2STOP", 11)
    for tt in range(2):
        for t in range(7):
            for e in range(4):
                v_ = f"v{ACC + (tt*7+t)*4 + e}"; ta = f"v{248+e}"
                a(f"v_fma_f32 {ta}, -v{vS[tt]}, v{CS+4*t+e}, v{B1U+4*t+e}")
                a(f"v_fma_f32 {v_}, {v_}, v{vQ[tt]}, {ta}")
                a(f"v_mul_f32 {ta}, {v_}, {v_}")
                a(f"v_fma_f32 {ta}, {ta}, s61, v24")
                a(f"v_mul_f32 {ta}, {ta}, {v_}")
                a(f"v_exp_f32 {ta}, {ta}")
                if e < W2EPI and w2q and tt*7 + t < W2STOP: ldw2(*w2q.pop(0))
            for e in range(4):
                ta = f"v{248+e}"; a(f"v_add_f32 {ta}, 1.0, {ta}"); a(f"v_rcp_f32 {ta}, {ta}")
            for e in range(4):
                v_ = f"v{ACC + (tt*7+t)*4 + e}"; a(f"v_mul_f32 {v_}, {v_}, v{248+e}")
            for h in range(2):
                x0 = ACC + (tt*7+t)*4 + 2*h
                a(f"v_cvt_pk_bf16_f32 v{PK + tt*14 + 2*t + h}, v{x0}, v{x0+1}")
        for p in range(3): a.vmem(f"buffer_store_dwordx4 {R(PK + tt*14 + 4*p, 4)}, v8, s[40:43], s56 offen offset:{1024*p}")
        a.vmem(f"buffer_store_dwordx2 {R(PK + tt*14 + 12, 2)}, v13, s[40:43], s56 offen offset:3072")
        a("s_add_u32 s56, s56, 55296")
    BIA = 126
    def bef4():
        srd(a, 32, 20, 2621440); srd(a, 36, 18, 1280)
        a_off(54, G_HID)
    hop(2, bef4, lambda: None)
    ar = [136 + 4*i for i in range(5)] + [220 + 4*i for i in range(9)] + [A0 + 192 + 4*i for i in range(6)] + [A0 + 240 + 4*i for i in range(4)]
    NR = 6
    def fa(n, m): return ar[(n % NR)*4 + m]
    def lda5(n):
        def one(m):
            if n == 13 and m == 0:
                a("s_cmp_ge_u32 s28, 2"); a("s_cselect_b32 s3, 0x40000000, 0")
                for q in range(4): a(f"s_add_u32 s{80+q}, s{80+q}, s3")
            a.vmem(f"buffer_load_dwordx4 {R(fa(n, m), 4)}, v8, s[40:43], s{80+m} offen sc1", f"A5_{n}")
            a(f"s_add_u32 s{80+m}, s{80+m}, 4096")
        return [lambda m=m: one(m) for m in range(4)]
    PRE5 = P("PRE5", 3)
    def need_w2(n):
        L = []
        while w2q and w2q[0][0] <= n:
            x = w2q.pop(0); L.append(lambda x=x: ldw2(*x))
        return L
    for n in range(PRE5):
        for f in need_w2(n) + lda5(n): f()
    def ldbia():
        a("v_lshlrev_b32 v27, 4, v11"); a("v_lshlrev_b32 v28, 3, v11"); a("s_mul_i32 s3, s49, 160")
        a.vmem(f"buffer_load_dwordx4 {R(BIA, 4)}, v27, s[36:39], s3 offen")
        a.vmem(f"buffer_load_dwordx4 {R(BIA+4, 4)}, v27, s[36:39], s3 offen offset:64")
        a.vmem(f"buffer_load_dwordx2 {R(BIA+8, 2)}, v28, s[36:39], s3 offen offset:128")
    nxt = PRE5
    for n in range(14):
        a.wait(vm=f"A5_{n}")
        side = []
        cnt = 0
        while nxt < 14 and nxt <= n + NR - 1 and cnt < 2:
            side += need_w2(nxt) + lda5(nxt); nxt += 1; cnt += 1
        if n == 2: side.append(ldbia)
        mf = [MF(ACC + (m*5+t)*4, fb(n, t), fa(n, m), n == 0) for m in range(4) for t in range(5)]
        a.interleave(mf, side)
    a.stamp()
    reduce_epi(5, BIA)
    a(f"buffer_store_dwordx4 {R(RES, 4)}, v14, s[32:35], s51 offen")
    a(f"buffer_store_dwordx4 {R(RES+4, 4)}, v14, s[32:35], s51 offen offset:64")
    a(f"buffer_store_dwordx2 {R(RES+8, 2)}, v15, s[32:35], s51 offen offset:128")
    a.stamp()
    if STAMP:
        a("s_waitcnt vmcnt(0)")
        a.stamp()
        a("v_writelane_b32 v7, s79, 30")
        a("s_lshl_b32 s3, s2, 2"); a("s_add_u32 s3, s3, s28"); a("s_lshl_b32 s3, s3, 8"); a(f"s_add_u32 s3, s3, {STB}")
        a("v_lshlrev_b32 v27, 2, v1"); a("v_add_u32 v27, s3, v27")
        a("global_store_dword v27, v7, s[24:25]")
        if os.environ.get("DBGOUT"):
            a("s_memrealtime s[100:101]"); a("s_waitcnt lgkmcnt(0)")
            a("s_sub_u32 s100, s100, s76"); a("v_readlane_b32 s3, v7, 0"); a("s_nop 3"); a("v_subrev_u32 v7, s3, v7"); a("v_writelane_b32 v7, s100, 0")
            a("s_cmp_lg_u32 s2, 8"); a("s_cbranch_scc1 L_end"); a("s_cmp_lg_u32 s28, 0"); a("s_cbranch_scc1 L_end")
            sel = [0, 1, 2, 3, 5, 7, 9, 11, 12, 14, 15, 17, 18, 19, 20]
            for q, i in enumerate(sel):
                a(f"v_readlane_b32 s3, v7, {i}"); a("s_nop 3"); a("v_mov_b32 v27, s3"); a(f"global_store_dword v5, v27, s[22:23] offset:{4*(q+1)}")
    a("L_end:")
    a("s_endpgm")
    return a.a

def main(out):
    hdr = open("sequential_preLN__linear_attn_block__mixer_channel_mlp__prompt.s.ref").read().split("\n")
    hdr = [l for l in hdr if l.startswith(";") and "@launch" not in l]
    hdr.append("; @launch grid=(256,1,1) block=(256,1,1) lds=163840")
    a = gen()
    pre = '.amdgcn_target "amdgcn-amd-amdhsa--gfx950"\n.text\n'
    T1, T2 = build_tables()
    a.raw(".p2align 6\nT1_tab:")
    a.raw(".short " + ",".join(map(str, T1)))
    a.raw("T2_tab:")
    for row in T2: a.raw(".short " + ",".join(map(str, row)))
    a.raw(".fill 2048, 4, 0")
    a.raw('.section .rodata,"a"\n.p2align 6')
    a.raw(f""".amdhsa_kernel {NAME}
  .amdhsa_next_free_vgpr 512
  .amdhsa_next_free_sgpr 102
  .amdhsa_accum_offset 256
  .amdhsa_group_segment_fixed_size 0
  .amdhsa_kernarg_size 88
  .amdhsa_user_sgpr_count 2
  .amdhsa_user_sgpr_kernarg_segment_ptr 1
  .amdhsa_system_sgpr_workgroup_id_x 1
.end_amdhsa_kernel""")
    open(out, "w").write("\n".join(hdr) + "\n" + pre + a.finish())

if __name__ == "__main__":
    main(sys.argv[1])
```

```python
import sys, struct, os
from asmdsl import Asm, R, S
from gen1 import build_tables, PAIRS, f2u, hx, divmod_const, srd, LOG2E

NAME = "sequential_preLN__linear_attn_block__mixer_channel_mlp__prompt_kernel"
WOP = 0
W2P = WOP + 8*20*5*1024
W1P = W2P + 8*54*5*1024
C1P = W1P + 16*20*7*1024
PART = C1P + 320*512
GRP = PART + 256*4096
G_O = 0; G_H = 163840; G_ST = 327680; G_FL = 335872; G_HID = 336896; G_SZ = G_HID + 442368
FLG = GRP + 16*G_SZ
F1 = FLG; F1R = FLG + 2048; RF = FLG + 4096
WS_END = FLG + 16384
A0 = 256
STAMP = int(os.environ.get("STAMP", "0"))
STB = 32 << 20
POLLMAX = 1 << 15
OPT = set(os.environ.get("OPT", "").split(","))
def P(name, d): return int(os.environ.get(name, d))

class G:
    def __init__(self):
        self.a = Asm(); self.vm = []; self.lg = []; self.nst = 0
    def __call__(self, t): self.a(t)
    def vmem(self, text, tag=None): self.a(text); self.vm.append(tag)
    def ds(self, text, tag=None): self.a(text); self.lg.append(tag)
    def _n(self, lst, tag, cap):
        idx = max(i for i, t in enumerate(lst) if t == tag)
        return min(len(lst) - 1 - idx, cap)
    def wait(self, vm=None, lg=None):
        s = []
        if vm is not None: s.append(f"vmcnt({0 if vm == 'all' else self._n(self.vm, vm, 63)})")
        if lg is not None: s.append(f"lgkmcnt({0 if lg == 'all' else self._n(self.lg, lg, 15)})")
        self.a("s_waitcnt " + " ".join(s))
        if vm == 'all': self.vm = []
        if lg == 'all': self.lg = []
    def stamp(self):
        if not STAMP: return
        i = self.nst; self.nst += 1
        assert i < 30
        self.a("s_memtime s[100:101]"); self.a("s_waitcnt lgkmcnt(0)"); self.a(f"v_writelane_b32 v7, s100, {i}")
    def run(self, x): x() if callable(x) else self.a(x)
    def interleave(self, main, extra):
        n = len(main); m = len(extra); j = 0
        for i, x in enumerate(main):
            self.run(x)
            while j < m and (j + 1) * n <= (i + 1) * m + (n - 1):
                self.run(extra[j]); j += 1
        while j < m:
            self.run(extra[j]); j += 1

def MF(d, a_, b_, first): return f"v_mfma_f32_16x16x32_bf16 {R(d,4)}, {R(a_,4)}, {R(b_,4)}, {'0' if first else R(d,4)}"

def phi(a, val, t1, t2):
    a(f"v_mul_f32 {t1}, s60, {val}")
    a(f"v_max_f32 {t2}, 0, {val}")
    a(f"v_exp_f32_e64 {t1}, {t1} clamp")
    a(f"v_add_f32 {t2}, s61, {t2}")
    a(f"v_add_f32 {val}, {t1}, {t2}")

def gen():
    a = G()
    name = NAME
    a.a.raw(f".globl {name}\n.p2align 8\n.type {name},@function\n{name}:")
    a("s_cmp_ge_u32 s2, 256"); a("s_cbranch_scc1 L_end")
    a("s_load_dwordx16 s[4:19], s[0:1], 0")
    a("s_load_dwordx4 s[20:23], s[0:1], 64")
    a("s_load_dwordx2 s[24:25], s[0:1], 80")
    a("s_memrealtime s[76:77]")
    a("s_getpc_b64 s[30:31]")
    a("L_pc:")
    a("v_mov_b32 v7, 0")
    a.stamp()
    a("v_lshrrev_b32 v2, 6, v0"); a("v_and_b32 v1, 63, v0")
    a("v_readfirstlane_b32 s28, v2")
    a("s_and_b32 s3, s2, 7"); a("s_lshr_b32 s27, s2, 3"); a("s_lshr_b32 s26, s27, 4"); a("s_lshl_b32 s3, s3, 1")
    a("s_add_u32 s26, s26, s3")
    a("s_and_b32 s27, s27, 15")
    a("s_cmp_lg_u32 s28, 3"); a("s_cbranch_scc1 L_nocp")
    a("s_mul_i32 s3, s27, 13"); a("s_lshr_b32 s3, s3, 6"); a("s_mul_i32 s3, s3, 5"); a("s_sub_u32 s3, s27, s3"); a("s_lshl_b32 s3, s3, 13")
    a("v_lshlrev_b32 v3, 7, v1"); a("v_add_u32 v3, s3, v3")
    a("global_load_dword v4, v3, s[30:31]")
    a("L_nocp:")
    BQ = 102400; SCR = 153600
    vXA = [72, 73, 74, 75]; vW = [76, 77]; vRd = [78, 79]; vBA = [80, 81, 82, 83, 84]; vTB = [17, 18, 19, 20]; vTQ = [86, 87, 88, 89]
    vBQ = [12, 13, 14, 15, 16]
    vT1 = 24; vSTW = 25
    ACC = 32; RAW = 160; XF = A0; BF = A0 + 160; ONES = A0 + 200; GR = A0 + 204; RSM = A0 + 212; OH = A0 + 220; CSA = A0 + 240; CSQ = A0 + 244
    t0, t1, t2, t3 = "v27", "v28", "v29", "v30"
    a("v_lshlrev_b32 v8, 4, v1")
    a("v_lshlrev_b32 v9, 4, v0")
    a("v_and_b32 v10, 15, v1"); a("v_lshlrev_b32 v10, 2, v10")
    a("v_lshrrev_b32 v11, 4, v1")
    a("v_mov_b32 v5, 0")
    a("v_lshrrev_b32 v27, 3, v1"); a("v_and_b32 v28, 7, v1")
    a("v_mul_u32_u24 v29, 1280, v27")
    a(f"v_lshl_add_u32 v{vXA[0]}, v28, 4, v29")
    for rg in range(1, 4): a(f"v_add_u32 v{vXA[rg]}, {10240*rg}, v{vXA[0]}")
    a("s_lshl_b32 s3, s28, 11"); a(f"s_add_u32 s48, s3, {SCR}")
    a("v_lshrrev_b32 v29, 1, v27"); a("v_xor_b32 v29, v29, v28"); a("v_lshlrev_b32 v29, 4, v29"); a("v_lshl_add_u32 v29, v27, 7, v29")
    a(f"v_add_u32 v{vW[0]}, s48, v29")
    a("v_xor_b32 v29, 64, v29"); a("v_add_u32 v29, 1024, v29"); a(f"v_add_u32 v{vW[1]}, s48, v29")
    for i in range(5):
        a(f"v_add_u32 v27, {64*i}, v1")
        divmod_const(a, "v28", "v29", "v27", 10)
        a("v_and_b32 v30, 0x13, v28"); a("v_bfe_u32 v27, v28, 2, 1"); a("v_lshl_add_u32 v30, v27, 3, v30")
        a("v_bfe_u32 v27, v28, 3, 1"); a("v_lshl_add_u32 v30, v27, 2, v30")
        a("v_mul_u32_u24 v30, 3840, v30"); a("v_lshl_add_u32 v30, v29, 4, v30")
        a("v_cmp_lt_u32 vcc, 4, v29"); a("v_add_u32 v27, 1200, v30")
        a(f"v_cndmask_b32 v{vBA[i]}, v30, v27, vcc")
    a("s_and_b32 s3, s27, 7"); a("s_bitcmp1_b32 0xa5, s3"); a("s_cselect_b32 s65, 1, 0")
    a("s_lshl_b32 s70, s26, 3"); a("s_lshr_b32 s3, s27, 1"); a("s_add_u32 s70, s70, s3"); a("s_lshl_b32 s70, s70, 2"); a("s_add_u32 s70, s70, s28")
    a("s_waitcnt lgkmcnt(0)")
    srd(a, 32, 4, 2621440); srd(a, 36, 6, 2457600); srd(a, 40, 24, WS_END); srd(a, 44, 12, 2211840)
    a("s_lshl_b32 s49, s26, 7"); a("s_lshl_b32 s3, s28, 5"); a("s_add_u32 s49, s49, s3"); a("s_mul_i32 s49, s49, 1280")
    a("s_lshr_b32 s3, s28, 1"); a("s_lshl_b32 s3, s3, 7"); a("s_add_u32 s62, s49, 128"); a("s_sub_u32 s62, s62, s3"); a("s_add_u32 s49, s49, s3")
    a("s_mul_i32 s50, s28, 122880"); a("s_mul_i32 s51, s27, 80"); a("s_add_u32 s50, s50, s51"); a("s_add_u32 s50, s50, 1280")
    a("s_mul_i32 s52, s28, 5120")
    a(f"s_mul_i32 s58, s26, {G_SZ}"); a(f"s_add_u32 s58, s58, {GRP}")
    XNT = " nt" if "xnt" in OPT else ""
    XTNT = " nt" if "xtnt" in OPT else ""
    PTNT = " nt" if "ptnt" in OPT else ""
    def raw(cx, rg): return RAW + ((cx % 6)*4 + rg)*4
    def xf(tt, k): return XF + (tt*20 + k)*4
    def ldx(cx):
        return [lambda cx=cx, rg=rg: a.vmem(f"buffer_load_dwordx4 {R(raw(cx, rg), 4)}, v{vXA[rg]}, s[32:35], s{62 if cx & 1 else 49} offen offset:{256*(cx>>1)}{XNT}", f"X{cx}") for rg in range(4)]
    def ldb(j):
        def one(i):
            a(f"s_add_u32 m0, s52, {j*20480 + i*1024}")
            a.vmem(f"buffer_load_dwordx4 v{vBA[i]}, s[36:39], s50 offen lds", f"B{j}")
            if i == 4: a(f"s_add_u32 s50, s50, {128*3840}")
        return [lambda i=i: one(i) for i in range(5)]
    a("s_mul_i32 s3, s26, 163840"); a("s_mul_i32 s56, s27, 10240"); a("s_add_u32 s3, s3, s56"); a("s_mul_i32 s56, s28, 2560"); a("s_add_u32 s3, s3, s56")
    a("v_lshlrev_b32 v3, 7, v1")
    a("s_mov_b64 exec, 0xfffff")
    a.vmem(f"buffer_load_dword v4, v3, s[32:35], s3 offen{XTNT}")
    a("s_mov_b64 exec, -1")
    for f in ldb(0) + ldx(0) + ldx(1): f()
    def rp_issue(nt, pitch_src, nch):
        for i in range(nt):
            a(f"v_add_u32 v27, {64*i}, v1")
            divmod_const(a, "v28", "v29", "v27", nch)
            a(f"v_mul_u32_u24 v28, {pitch_src}, v28")
            a("v_lshl_add_u32 v28, v29, 4, v28")
            a(f"s_add_u32 m0, s71, {1024*i}")
            a(f"buffer_load_dwordx4 v28, s[44:47], s73 offen nt lds")
    def rp_fin(nt, RG):
        pitch = nt*32
        a("v_bfe_u32 v28, v1, 2, 2"); a("v_lshl_add_u32 v27, v11, 3, v28"); a("v_and_b32 v28, 3, v1")
        a(f"v_mul_u32_u24 v29, {pitch}, v27"); a("v_add_u32 v29, s71, v29")
        a("v_lshl_add_u32 v30, v28, 3, v29"); a("v_lshl_add_u32 v29, v28, 4, v29")
        a("v_add_u32 v31, 4096, v8")
        for t in range(nt):
            for h in range(2):
                if t == nt - 1: a(f"ds_read_b64_tr_b16 {R(RG + 4*t + 2*h, 2)}, v30 offset:{h*4*pitch + 32*t}")
                else: a(f"ds_read_b64_tr_b16 {R(RG + 4*t + 2*h, 2)}, v29 offset:{h*4*pitch + 64*(t>>1) + 8*(t&1)}")
        if nt == 7:
            a("v_mov_b32 v28, 0x3f803f80")
            for t in (5, 6):
                a(f"v_cmp_eq_u32 vcc, {4*t}, v10")
                for e in range(4): a(f"v_cndmask_b32 v{RG+28+4*(t-5)+e}, 0, v28, vcc")
        a("s_waitcnt lgkmcnt(0)")
        for t in range(nt):
            a(f"buffer_store_dwordx4 {R(RG + 4*t, 4)}, v{8 if t < 4 else 31}, s[40:43], s74 offen offset:{1024*(t&3)} sc1")
        if nt == 7:
            for t in range(7):
                a(MF(RG+36, RG + 4*t, OH + 4*t if t < 5 else RG+28+4*(t-5), t == 0))
            a("v_lshlrev_b32 v29, 4, v11"); a("v_lshl_add_u32 v29, v10, 4, v29")
            a("v_mov_b32 v30, 0x7fffffff"); a("v_cndmask_b32 v29, v30, v29, s[66:67]")
            a("s_lshl_b32 s3, s70, 9"); a(f"s_add_u32 s3, s3, {C1P}")
            a(f"buffer_store_dwordx4 {R(RG+36, 4)}, v29, s[40:43], s3 offen sc1")
    a("s_mov_b32 s72, 0"); a("s_mov_b32 s73, 0"); a("s_mov_b32 s74, 0")
    a(f"s_mul_i32 s71, s28, 7168"); a(f"s_add_u32 s71, s71, {BQ}")
    a("s_cmp_eq_u32 s65, 0"); a("s_cbranch_scc1 L_rp1_issued")
    a("s_cmp_ge_u32 s70, 480"); a("s_cbranch_scc1 L_rp1_issued")
    a("s_cmp_ge_u32 s70, 320"); a("s_cbranch_scc1 L_rp1_wo")
    a("s_mov_b32 s72, 1")
    a("s_mul_i32 s75, s70, 3277"); a("s_lshr_b32 s75, s75, 16"); a("s_mul_i32 s79, s75, 20"); a("s_sub_u32 s79, s70, s79")
    a("s_mul_i32 s75, s75, 27"); a("s_lshr_b32 s75, s75, 2"); a("s_lshl_b32 s75, s75, 5")
    a("s_mul_i32 s79, s79, 110592"); a("s_add_u32 s73, s75, s79")
    a("s_mul_i32 s74, s70, 7168"); a(f"s_add_u32 s74, s74, {W1P}")
    rp_issue(7, 3456, 14)
    a("s_branch L_rp1_issued")
    a("L_rp1_wo:")
    a("s_mov_b32 s72, 2")
    srd(a, 44, 8, 819200)
    a("s_sub_u32 s78, s70, 320")
    a("s_mul_i32 s75, s78, 3277"); a("s_lshr_b32 s75, s75, 16"); a("s_mul_i32 s79, s75, 20"); a("s_sub_u32 s79, s78, s79")
    a("s_mul_i32 s74, s78, 5120"); a(f"s_add_u32 s74, s74, {WOP}")
    a("s_mul_i32 s75, s75, 160"); a("s_mul_i32 s79, s79, 40960"); a("s_add_u32 s73, s75, s79")
    rp_issue(5, 1280, 10)
    a("L_rp1_issued:")
    if "wtouch" in OPT:
        divmod_const(a, "v27", "v28", "v1", 20)
        a("v_mul_u32_u24 v27, 3840, v27"); a("v_lshl_add_u32 v3, v28, 7, v27")
        a("s_lshr_b32 s3, s2, 3"); a("s_lshl_b32 s3, s3, 2"); a("s_add_u32 s3, s3, s28"); a("s_mul_i32 s3, s3, 11520"); a(f"s_add_u32 s56, s3, {256*3840 + 1280}")
        a("s_bfm_b64 exec, 60, 0")
        a.vmem("buffer_load_dword v4, v3, s[36:39], s56 offen")
        a("s_mov_b64 exec, -1")
    for f in ldx(2) + ldx(3) + ldb(1): f()
    a("s_and_b32 s76, s76, 0xfffffff8"); a("s_or_b32 s76, s76, 8")
    a("s_or_b32 s3, s2, s28"); a("s_cmp_lg_u32 s3, 0"); a("s_cbranch_scc1 L_notag")
    a("v_mov_b32 v28, s76")
    a("global_store_dword v5, v28, s[22:23] sc1")
    a("L_notag:")
    a("v_and_b32 v27, 15, v1")
    a("v_lshrrev_b32 v29, 1, v27"); a("v_xor_b32 v29, v29, v11"); a("v_lshlrev_b32 v29, 4, v29"); a("v_lshl_add_u32 v29, v27, 7, v29")
    a("s_and_b32 s3, s28, 1"); a("s_lshl_b32 s3, s3, 6"); a("v_xor_b32 v29, s3, v29")
    a(f"v_add_u32 v{vRd[0]}, s48, v29"); a("v_xor_b32 v29, 64, v29"); a(f"v_add_u32 v{vRd[1]}, s48, v29")
    a("v_lshrrev_b32 v29, 2, v27"); a("v_cmp_eq_u32 vcc, v29, v11")
    a("v_lshlrev_b32 v30, 2, v1"); a("v_add_u32 v30, 512, v30")
    a("v_cndmask_b32 v29, v30, v10, vcc"); a(f"v_add_u32 v{vSTW}, s48, v29")
    a("v_and_b32 v29, 1, v1"); a("v_cmp_eq_u32 s[68:69], 1, v29")
    a("v_and_b32 v29, 2, v1"); a("v_cmp_eq_u32 s[86:87], 2, v29")
    a("v_cmp_gt_u32 s[66:67], 8, v27")
    a("v_mov_b32 v28, 0x3f803f80")
    for i in range(4): a(f"v_accvgpr_write_b32 {R(ONES+i)}, v28")
    for t in range(5):
        a(f"v_cmp_eq_u32 vcc, {t}, v27"); a("v_cndmask_b32 v29, 0, v28, vcc")
        for e in range(4): a(f"v_accvgpr_write_b32 {R(OH+4*t+e)}, v29")
    a("v_lshrrev_b32 v27, 5, v1"); a("v_bfe_u32 v28, v1, 4, 1"); a("v_bfe_u32 v29, v1, 2, 2")
    a("v_lshl_add_u32 v29, v28, 2, v29"); a("v_lshl_add_u32 v30, v27, 4, v29"); a("v_mul_u32_u24 v30, 160, v30")
    a("v_and_b32 v28, 3, v1"); a("v_lshl_add_u32 v31, v28, 3, v30")
    a("v_lshlrev_b32 v29, 1, v29"); a("v_lshl_add_u32 v30, v27, 4, v29"); a("v_mul_u32_u24 v30, 80, v30"); a("v_lshl_add_u32 v30, v28, 3, v30")
    for p in range(4):
        a(f"s_xor_b32 s3, s28, {p}"); a("s_mul_i32 s56, s3, 5120"); a(f"v_add_u32 v{vTB[p]}, s56, v31")
        a("s_mul_i32 s56, s3, 2560"); a(f"s_add_u32 s56, s56, {BQ}"); a(f"v_add_u32 v{vTQ[p]}, s56, v30")
    a(f"s_mov_b32 s60, {hx(LOG2E)}"); a(f"s_mov_b32 s61, {hx(1e-6)}")
    a(f"s_mov_b32 s63, {hx(1.0/640)}"); a(f"s_mov_b32 s64, {hx(1e-5)}")
    for i in range(5):
        a(f"v_add_u32 v31, {64*i}, v1")
        divmod_const(a, "v28", "v29", "v31", 5)
        a("v_and_b32 v30, 0x30, v28"); a("v_bfe_u32 v31, v28, 1, 2"); a("v_add_u32 v30, v30, v31")
        a("v_and_b32 v31, 1, v28"); a("v_lshl_add_u32 v30, v31, 2, v30"); a("v_and_b32 v31, 8, v28"); a("v_add_u32 v30, v30, v31")
        a("v_mul_u32_u24 v30, 3840, v30"); a(f"v_lshl_add_u32 v{vBQ[i]}, v29, 4, v30")
    a("s_mul_i32 s53, s28, 245760"); a("s_add_u32 s53, s53, s51"); a(f"s_add_u32 s54, s52, {BQ}")
    a("s_cmp_ge_u32 s28, 2"); a("s_cselect_b32 s55, 0x40000000, 0")
    a.stamp()
    def ldq(gq):
        def one(i):
            if gq == 2 and i == 0: a("s_add_u32 s53, s53, s55"); a("s_lshr_b32 s55, s55, 14"); a("s_add_u32 s54, s54, s55")
            a(f"s_add_u32 m0, s54, {gq*20480 + i*1024}")
            a.vmem(f"buffer_load_dwordx4 v{vBQ[i]}, s[36:39], s53 offen lds", "BQ")
            if i == 4: a(f"s_add_u32 s53, s53, {256*3840}")
        return [lambda i=i: one(i) for i in range(5)]
    def ldmisc():
        a("v_lshlrev_b32 v27, 1, v0")
        a("s_add_u32 s56, s30, T1_tab-L_pc"); a("s_addc_u32 s57, s31, 0")
        a.vmem(f"global_load_ushort v{vT1}, v27, s[56:57]", "T1")
        a.vmem("global_load_dword v6, v5, s[22:23] sc1", "TAG")
    def acc(tt, t): return ACC + (tt*5 + t)*4
    def transp(cx):
        L = []
        for tt in range(2):
            L.append(lambda tt=tt: a.ds(f"ds_write_b128 v{vW[0]}, {R(raw(cx, 2*tt), 4)}"))
            L.append(lambda tt=tt: a.ds(f"ds_write_b128 v{vW[1]}, {R(raw(cx, 2*tt+1), 4)}"))
            L.append(lambda tt=tt: a.ds(f"ds_read_b128 {R(xf(tt, 2*cx), 4)}, v{vRd[0]}"))
            L.append(lambda tt=tt: a.ds(f"ds_read_b128 {R(xf(tt, 2*cx+1), 4)}, v{vRd[1]}", f"T{cx}"))
        return L
    def trreads(s):
        j, p = divmod(s, 4); L = []
        for t in range(5):
            for h in range(2):
                off = (j % 3)*20480 + h*1280 + t*32
                L.append(lambda t=t, h=h, off=off: a.ds(f"ds_read_b64_tr_b16 {R(BF + (s&1)*20 + t*4 + h*2, 2)}, v{vTB[p]} offset:{off}", f"R{s}"))
        if j == 2: L.append(f"v_add_u32 v{vTB[p]}, 61440, v{vTB[p]}")
        return L
    def statm(k):
        L = []
        for tt in range(2):
            L.append(MF(GR + 4*tt, xf(tt, k), xf(tt, k), k == 0)); L.append(MF(RSM + 4*tt, ONES, xf(tt, k), k == 0))
        return L
    def tagpoll(lab):
        a("v_readfirstlane_b32 s76, v6"); a("s_mov_b32 s78, 0")
        a(f"{lab}:")
        a("s_cmp_lg_u32 s76, 0"); a(f"s_cbranch_scc1 {lab}_ok")
        a("global_load_dword v6, v5, s[22:23] sc1"); a("s_add_u32 s78, s78, 1"); a("s_waitcnt vmcnt(0)")
        a("v_readfirstlane_b32 s76, v6")
        a(f"s_cmp_lt_u32 s78, {POLLMAX}"); a(f"s_cbranch_scc1 {lab}")
        a(f"{lab}_ok:")
    RS = 96; MS = 104; RT = 112; MT = 114; CSV = 116
    CSX = 161792
    a.wait(vm="X1")
    for f in transp(0) + transp(1): f()
    a("s_barrier")
    a.stamp()
    for f in trreads(0): a.run(f)
    a.wait(lg="T1")
    for k in range(4):
        for x in statm(k): a(x)
    loads = {0: ldx(4) + ldx(5) + ldb(2), 1: [ldmisc] + ldx(6) + ldx(7) + ldb(3), 2: ldx(8) + ldx(9) + ldb(4), 3: ldq(0) + ldq(1), 4: ldq(2)}
    for s in range(20):
        j, p = divmod(s, 4)
        if p == 3 and j < 4:
            a.wait(vm=f"B{j+1}")
            a("s_barrier")
            if j == 3: a.stamp()
            if j == 2:
                tagpoll("L_tp1")
                a("s_and_b32 s3, s65, 1"); a("s_cmp_eq_u32 s28, 0"); a("s_cselect_b32 s3, s3, 0"); a("s_cmp_eq_u32 s3, 0"); a("s_cbranch_scc1 L_norf1")
                a("s_lshl_b32 s3, s26, 4"); a("s_add_u32 s3, s3, s27"); a("s_lshl_b32 s3, s3, 2"); a(f"s_add_u32 s3, s3, {RF}")
                a("s_mov_b64 exec, 1"); a("buffer_store_dword v6, v5, s[40:43], s3 offen sc1"); a("s_mov_b64 exec, -1")
                a("L_norf1:")
        if s == 18: a.wait(lg="CSW"); a("s_barrier")
        if j < 4 and p == 0: a.wait(vm=f"X{2*j+3}")
        if s == 4:
            a.wait(lg="all")
            a("s_cmp_eq_u32 s72, 0"); a("s_cbranch_scc1 L_rp1_done")
            a("s_cmp_eq_u32 s72, 2"); a("s_cbranch_scc1 L_rp1_f5")
            rp_fin(7, 96); a("s_branch L_rp1_done")
            a("L_rp1_f5:"); rp_fin(5, 96)
            a("L_rp1_done:"); a("s_nop 7")
        else:
            a.wait(lg=f"R{s}")
        mf = []
        for t in range(5):
            b = BF + (s&1)*20 + t*4
            for tt in range(2): mf.append(MF(acc(tt, t), xf(tt, s), b, s == 0))
            if p == 0: mf.append(MF(CSA, OH + 4*t, b, s == 0 and t == 0))
        side = trreads(s+1) if s < 19 else []
        if j < 4 and p < 2: side += transp(2*j + 2 + p)
        if j < 4 and p >= 2:
            kb = 4*(j+1) + 2*(p-2); mf += statm(kb) + statm(kb+1)
        if s == 16:
            for tt in range(2):
                for e in range(4): side.append(f"v_accvgpr_read_b32 v{124+e}, {R(GR + 4*tt + e)}")
                side.append(f"v_accvgpr_read_b32 v128, {R(RSM + 4*tt)}")
                side += ["v_cndmask_b32 v124, v124, v125, s[68:69]", "v_cndmask_b32 v126, v126, v127, s[68:69]", "v_mul_f32 v128, s63, v128",
                         "v_cndmask_b32 v124, v124, v126, s[86:87]", "v_mul_f32 v124, s63, v124", "v_fma_f32 v124, -v128, v128, v124",
                         "v_max_f32 v124, 0, v124", "v_add_f32 v124, s64, v124", "v_rsq_f32 v124, v124", "v_mul_f32 v128, v128, v124"]
                side.append(lambda tt=tt: a.ds(f"ds_write_b32 v{vSTW}, v124 offset:{64*tt}"))
                side.append(lambda tt=tt: a.ds(f"ds_write_b32 v{vSTW}, v128 offset:{128 + 64*tt}"))
        if s == 17:
            side += ["s_lshl_b32 s3, s28, 9", f"s_add_u32 s3, s3, {CSX}", "v_add_u32 v27, s3, v8"]
            side.append(lambda: (a("s_bfm_b64 exec, 32, 0"), a.ds(f"ds_write_b128 v27, {R(CSA, 4)}", "CSW"), a("s_mov_b64 exec, -1")))
            side += ["v_lshlrev_b32 v28, 4, v11", "v_add_u32 v28, s48, v28", "v_add_u32 v29, s48, v10"]
            for tt in range(2):
                side.append(lambda tt=tt: a.ds(f"ds_read_b128 {R(RS + 4*tt, 4)}, v28 offset:{64*tt}"))
                side.append(lambda tt=tt: a.ds(f"ds_read_b128 {R(MS + 4*tt, 4)}, v28 offset:{128 + 64*tt}"))
                side.append(lambda tt=tt: a.ds(f"ds_read_b32 v{RT + tt}, v29 offset:{64*tt}"))
                side.append(lambda tt=tt: a.ds(f"ds_read_b32 v{MT + tt}, v29 offset:{128 + 64*tt}"))
        if s == 18:
            side += ["v_lshlrev_b32 v27, 2, v10", f"v_add_u32 v27, {CSX}, v27"]
            for w in range(4):
                side.append(lambda w=w: a.ds(f"ds_read_b128 {R(124 + 4*w, 4)}, v27 offset:{512*w}"))
                side.append(lambda w=w: a.ds(f"ds_read_b32 v{140 + w}, v27 offset:{512*w + 256}", "CSR"))
        if s == 19:
            side.append(lambda: a.wait(lg="CSR"))
            for e in range(4):
                side += [f"v_add_f32 v{124+e}, v{124+e}, v{128+e}", f"v_add_f32 v{132+e}, v{132+e}, v{136+e}", f"v_add_f32 v{CSV+e}, v{124+e}, v{132+e}"]
            side += ["v_add_f32 v140, v140, v141", "v_add_f32 v142, v142, v143", f"v_add_f32 v{CSV+4}, v140, v142"]
        ld = loads[j]; q = (len(ld) + 3 - p)//(4 - p)
        lds_ = ld[:q]; loads[j] = ld[q:]
        if lds_:
            m = []; step = max(1, len(side)//len(lds_)); li = 0
            for i_, x in enumerate(side):
                m.append(x)
                if i_ % step == step - 1 and li < len(lds_): m.append(lds_[li]); li += 1
            m += lds_[li:]; side = m
        a.interleave(mf, side)
    a.stamp()
    a(f"s_mov_b32 s59, {RF}")
    a.vmem("buffer_load_dwordx4 v[92:95], v8, s[40:43], s59 offen sc1", "RF")
    OP = 124
    for t in range(5):
        for tt in range(2):
            for r_ in range(4):
                v_ = f"v{acc(tt, t) + r_}"
                a(f"v_mul_f32 {t0}, v{MS + 4*tt + r_}, v{CSV + t}")
                a(f"v_fma_f32 {v_}, {v_}, v{RS + 4*tt + r_}, -{t0}")
                if t < 2: phi(a, v_, t1, t2)
                elif t == 2:
                    a(f"v_mov_b32 {t3}, {v_}"); phi(a, t3, t1, t2); a(f"v_cndmask_b32 {v_}, {v_}, {t3}, s[66:67]")
            for h in range(2):
                a(f"v_cvt_pk_bf16_f32 v{OP + 4*t + 2*tt + h}, v{acc(tt, t) + 2*h}, v{acc(tt, t) + 2*h + 1}")
    KVD = 144
    for p, (ta, tb) in enumerate(PAIRS):
        a(MF(KVD + 4*p, OP + 4*ta, ONES if tb < 0 else OP + 4*tb, True))
    a("s_mul_i32 s3, s28, 10240"); a("v_add_u32 v27, s3, v8")
    for p in range(10): a(f"ds_write_b128 v27, {R(KVD + 4*p, 4)} offset:{1024*p}")
    a.wait(lg="all")
    a("s_barrier")
    a(f"v_add_u32 v27, {SCR}, v10"); a("ds_write_b32 v27, v5")
    for w in range(4): a(f"ds_read_b128 {R(KVD + 4*w, 4)}, v{vT1} offset:{10240*w}")
    a("s_lshl_b32 s3, s27, 4"); a("s_add_u32 s3, s3, s26"); a("s_lshl_b32 s3, s3, 12"); a(f"s_add_u32 s3, s3, {PART}")
    a("s_getreg_b32 s77, hwreg(HW_REG_XCC_ID)"); a("s_and_b32 s77, s77, 7"); a("s_or_b32 s77, s77, s76")
    a("s_waitcnt lgkmcnt(0)")
    for e in range(4):
        a(f"v_add_f32 v{KVD+e}, v{KVD+e}, v{KVD+4+e}"); a(f"v_add_f32 v{KVD+8+e}, v{KVD+8+e}, v{KVD+12+e}")
    for e in range(4): a(f"v_add_f32 v{KVD+e}, v{KVD+e}, v{KVD+8+e}")
    a.vmem(f"buffer_store_dwordx4 {R(KVD, 4)}, v9, s[40:43], s3 offen sc1")
    def rfcheck(lab, full):
        a("s_mov_b32 s78, 0")
        a(f"{lab}:")
        if not full:
            a("v_cndmask_b32 v27, v92, v93, s[68:69]"); a("v_cndmask_b32 v28, v94, v95, s[68:69]")
        else:
            a("v_cndmask_b32 v27, v93, v92, s[68:69]"); a("v_cndmask_b32 v28, v95, v94, s[68:69]")
        a("v_cmp_ne_u32 vcc, s76, v27"); a("v_cmp_ne_u32 s[84:85], s76, v28")
        a("s_or_b64 vcc, vcc, s[84:85]"); a(f"s_cbranch_scc0 {lab}_ok")
        a("s_add_u32 s78, s78, 1"); a(f"s_cmp_ge_u32 s78, {POLLMAX}"); a(f"s_cbranch_scc1 {lab}_ok")
        a("buffer_load_dwordx4 v[92:95], v8, s[40:43], s59 offen sc1"); a("s_waitcnt vmcnt(0)")
        a(f"s_branch {lab}")
        a(f"{lab}_ok:")
    a.wait(vm="all")
    a("s_barrier")
    a.stamp()
    a("s_cmp_lg_u32 s28, 0"); a("s_cbranch_scc1 L_nopub1")
    a("s_lshl_b32 s3, s27, 7"); a("s_lshl_b32 s56, s26, 2"); a("s_add_u32 s3, s3, s56"); a(f"s_add_u32 s3, s3, {F1}")
    a("s_lshl_b32 s57, s26, 7"); a("s_lshl_b32 s56, s27, 2"); a("s_add_u32 s57, s57, s56"); a(f"s_add_u32 s57, s57, {F1R}")
    a("v_mov_b32 v27, s77")
    a("s_mov_b64 exec, 1")
    a("buffer_store_dword v27, v5, s[40:43], s3 offen sc1"); a("buffer_store_dword v27, v5, s[40:43], s57 offen sc1")
    a("s_mov_b64 exec, -1")
    a("L_nopub1:")
    rfcheck("L_rf1", False)
    a.stamp()
    a("s_mov_b32 s72, 0")
    a("s_cmp_lg_u32 s65, 0"); a("s_cbranch_scc1 L_rp2_issued")
    a("s_cmp_ge_u32 s70, 432"); a("s_cbranch_scc1 L_rp2_issued")
    a("s_mov_b32 s72, 2")
    srd(a, 44, 16, 2211840)
    a("s_add_u32 s71, s52, 81920")
    a("s_mul_i32 s75, s70, 1214"); a("s_lshr_b32 s75, s75, 16"); a("s_mul_i32 s79, s75, 54"); a("s_sub_u32 s79, s70, s79")
    a("s_mul_i32 s74, s70, 5120"); a(f"s_add_u32 s74, s74, {W2P}")
    a("s_mul_i32 s75, s75, 160"); a("s_mul_i32 s79, s79, 40960"); a("s_add_u32 s73, s75, s79")
    rp_issue(5, 1280, 10)
    a("L_rp2_issued:")
    a("s_mul_i32 s3, s27, 21056"); a("s_add_u32 s3, s3, s58"); a("s_mul_i32 s56, s28, 5376"); a("s_add_u32 s3, s3, s56")
    a("v_lshlrev_b32 v3, 7, v1")
    a("s_bfm_b64 exec, 42, 0"); a.vmem(f"buffer_load_dword v4, v3, s[40:43], s3 offen{PTNT}"); a("s_mov_b64 exec, -1")
    a("s_lshr_b32 s48, s27, 3"); a("s_and_b32 s49, s27, 7")
    a("v_add_u32 v12, 4096, v8")
    a("v_lshrrev_b32 v13, 1, v11"); a("v_lshlrev_b32 v13, 8, v13"); a("v_lshl_add_u32 v13, v10, 2, v13")
    a("v_and_b32 v28, 1, v11"); a("v_lshl_add_u32 v13, v28, 3, v13")
    a("v_mul_u32_u24 v14, 320, v10"); a("v_lshl_add_u32 v15, v11, 3, v14"); a("v_lshl_add_u32 v14, v11, 4, v14")
    a("s_lshl_b32 s50, s48, 2"); a("s_add_u32 s50, s50, s28")
    a("s_lshl_b32 s3, s26, 3"); a("s_add_u32 s3, s3, s50"); a("s_mul_i32 s51, s3, 20480"); a("s_mul_i32 s3, s49, 160"); a("s_add_u32 s51, s51, s3")
    a("s_mul_i32 s53, s27, 27"); a("s_lshr_b32 s53, s53, 2")
    a("s_mul_i32 s3, s49, 20"); a("s_add_u32 s3, s3, s28"); a("s_mul_i32 s54, s3, 5120"); a(f"s_add_u32 s54, s54, {WOP}")
    a("s_mul_i32 s55, s27, 143360"); a(f"s_add_u32 s55, s55, {W1P}")
    srd(a, 36, 14, 3456)
    FB3 = 156; RES = 116; B1 = 72; C1R = 126; T2R = 18
    def ldwo():
        def one(n, t):
            a.vmem(f"buffer_load_dwordx4 {R(FB3 + (n*5+t)*4, 4)}, v{8 if t < 4 else 12}, s[40:43], s54 offen offset:{1024*(t&3)} sc1", "WO")
            if t == 4: a("s_add_u32 s54, s54, 20480")
        return [lambda n=n, t=t: one(n, t) for n in range(5) for t in range(5)]
    def w1dma(kb0, cnt, wsub=0):
        def one(i):
            if i % 4 == 0:
                a(f"s_mul_i32 s3, s28, {cnt*1024}"); a(f"s_add_u32 m0, s3, {(kb0 + i - wsub*cnt)*1024}"); a("s_add_u32 s57, s55, m0")
            a.vmem(f"buffer_load_dwordx4 v8, s[40:43], s57 offen offset:{1024*(i&3)} sc1 lds", "W1")
        return [lambda i=i: one(i) for i in range(cnt)]
    def ldsmall():
        a("v_lshlrev_b32 v27, 5, v1"); a("s_add_u32 s56, s30, T2_tab-L_pc"); a("s_addc_u32 s57, s31, 0")
        a.vmem(f"global_load_dwordx4 {R(T2R, 4)}, v27, s[56:57]"); a.vmem(f"global_load_dwordx2 {R(T2R+4, 2)}, v27, s[56:57] offset:16")
    def ldres():
        a.vmem(f"buffer_load_dwordx4 {R(RES, 4)}, v14, s[32:35], s51 offen")
        a.vmem(f"buffer_load_dwordx4 {R(RES+4, 4)}, v14, s[32:35], s51 offen offset:64")
        a.vmem(f"buffer_load_dwordx2 {R(RES+8, 2)}, v15, s[32:35], s51 offen offset:128")
    def ldc1():
        a("v_lshlrev_b32 v27, 4, v11"); a("v_lshl_add_u32 v26, v10, 4, v27")
        a("s_mul_i32 s3, s27, 20"); a("s_mul_i32 s57, s28, 5"); a("s_add_u32 s3, s3, s57"); a("s_lshl_b32 s3, s3, 9"); a(f"s_add_u32 s3, s3, {C1P}")
        a("s_mov_b64 exec, s[66:67]")
        for n in range(5): a.vmem(f"buffer_load_dwordx4 {R(C1R + 4*n, 4)}, v26, s[40:43], s3 offen offset:{512*n} sc1")
        a("s_mov_b64 exec, -1")
        a("v_lshlrev_b32 v29, 3, v11"); a("s_lshl_b32 s3, s53, 5")
        for p in range(3): a.vmem(f"buffer_load_dwordx4 {R(B1 + 4*p, 4)}, v27, s[36:39], s3 offen offset:{64*p}")
        a.vmem(f"buffer_load_dwordx2 {R(B1 + 12, 2)}, v29, s[36:39], s3 offen offset:192")
    def ldpoll1():
        a("s_lshl_b32 s3, s27, 7"); a("s_lshl_b32 s56, s26, 7"); a("s_add_u32 s56, s56, 2048")
        a("v_mov_b32 v27, s3"); a("v_mov_b32 v28, s56"); a("v_and_b32 v29, 1, v11"); a("v_cmp_eq_u32 s[88:89], 1, v29")
        a("v_cndmask_b32 v17, v27, v28, s[88:89]"); a("v_add_u32 v17, v17, v10")
        a(f"s_mov_b32 s56, {F1}")
        a.vmem("buffer_load_dword v16, v17, s[40:43], s56 offen sc1", "POLL1")
    QA = 32
    vTQ3 = 93
    def qreads(s):
        j, p = divmod(s, 4)
        return [lambda t=t, h=h: a.ds(f"ds_read_b64_tr_b16 {R(BF + (s&1)*20 + t*4 + h*2, 2)}, v{vTQ[p]} offset:{j*10240 + h*80 + t*32}", f"Q{s}") for t in range(3) for h in range(2)]
    pre = [ldsmall, ldres] + ldwo() + [ldc1] + w1dma(0, 20)
    NQL = 17
    for f in qreads(0): f()
    for s in range(20):
        j, p = divmod(s, 4)
        if s == 18: a.wait(lg="CQW"); a("s_barrier")
        a.wait(lg=f"Q{s}")
        mf = []
        for t in range(3):
            b = BF + (s&1)*20 + t*4
            for tt in range(2): mf.append(MF(QA + (tt*3+t)*4, b, xf(tt, s), s == 0))
            if p == 0: mf.append(MF(CSQ, b, OH + 4*t, s == 0 and t == 0))
        side = qreads(s+1) if s < 19 else []
        if s < NQL:
            q = (len(pre) + NQL - 1 - s)//(NQL - s); side += pre[:q]; pre = pre[q:]
        if s == 17:
            side.append(ldpoll1)
            side += ["s_lshl_b32 s3, s28, 9", f"s_add_u32 s3, s3, {CSX}", "v_add_u32 v27, s3, v26"]
            side.append(lambda: (a("s_mov_b64 exec, s[66:67]"), a.ds(f"ds_write_b128 v27, {R(CSQ, 4)}", "CQW"), a("s_mov_b64 exec, -1")))
        if s == 18:
            side += ["v_lshlrev_b32 v27, 4, v11", f"v_add_u32 v27, {CSX}, v27"]
            for w in range(4):
                for t in range(3):
                    d = (56 + 4*t) if w == 0 else (96 + 0) if False else None
            dst = {0: 56, 1: 96, 2: 86 - 0, 3: 0}
            for w, base in ((0, 56), (1, 96)):
                for t in range(3): side.append(lambda w=w, t=t, base=base: a.ds(f"ds_read_b128 {R(base + 4*t, 4)}, v27 offset:{512*w + 64*t}", "CQR"))
        if s == 19:
            side.append(lambda: a.wait(lg="CQR"))
            for x in range(12): side.append(f"v_add_f32 v{56+x}, v{56+x}, v{96+x}")
            for t in range(3): side.append(lambda t=t: a.ds(f"ds_read_b128 {R(96 + 4*t, 4)}, v27 offset:{1024 + 64*t}", "CQR"))
        a.interleave(mf, side)
    a.stamp()
    a.wait(vm="POLL1")
    a("s_mov_b32 s78, 0")
    a("L_h1p:")
    a("v_and_b32 v28, 0xfffffff8, v16"); a("v_cmp_ne_u32 vcc, s76, v28")
    a("s_cbranch_vccz L_h1ok")
    a("s_add_u32 s78, s78, 1"); a(f"s_cmp_ge_u32 s78, {POLLMAX}"); a("s_cbranch_scc1 L_h1ok")
    a("buffer_load_dword v16, v17, s[40:43], s56 offen sc1"); a("s_waitcnt vmcnt(0)")
    a("s_branch L_h1p")
    a("L_h1ok:")
    a.stamp()
    a.vm = []
    a("v_cmp_ne_u32 vcc, s77, v16"); a("s_and_b64 vcc, vcc, s[88:89]"); a("s_cselect_b32 s79, 0, 1")
    if os.environ.get("FORCESLOW"): a("s_mov_b32 s79, 0")
    P0 = A0
    a("s_lshl_b32 s3, s27, 16"); a(f"s_add_u32 s3, s3, {PART}")
    for r_ in range(16):
        a.vmem(f"buffer_load_dwordx4 {R(P0 + 4*r_, 4)}, v9, s[40:43], s3 offen sc1", f"P{r_}")
        a("s_add_u32 s3, s3, 4096")
    a.wait(lg="CQR")
    for x in range(12): a(f"v_add_f32 v{56+x}, v{56+x}, v{96+x}")
    for t in range(3): a.ds(f"ds_read_b128 {R(96 + 4*t, 4)}, v27 offset:{1536 + 64*t}", "CQR")
    a.wait(lg="all")
    for x in range(12): a(f"v_add_f32 v{56+x}, v{56+x}, v{96+x}")
    PQR = 96
    a("v_cmp_gt_u32 s[90:91], 32, v1"); a("v_cmp_gt_u32 s[92:93], 48, v1")
    for tt in range(2):
        for t in range(3):
            for r_ in range(4):
                v_ = f"v{QA + (tt*3+t)*4 + r_}"
                a(f"v_mul_f32 {t0}, v{MT + tt}, v{56 + 4*t + r_}")
                a(f"v_fma_f32 {v_}, {v_}, v{RT + tt}, -{t0}")
                phi(a, v_, t1, t2)
            for h in range(2):
                d = f"v{PQR + tt*6 + t*2 + h}"
                a(f"v_cvt_pk_bf16_f32 {d}, v{QA + (tt*3+t)*4 + 2*h}, v{QA + (tt*3+t)*4 + 2*h + 1}")
                if t == 2: a(f"v_cndmask_b32 {d}, 0, {d}, s[90:91]")
    OSC = CSX
    OSC = SCR
    TA = 56
    for s_ in range(12):
        src = T2R + s_//2
        if s_ & 1: a(f"v_lshrrev_b32 v{TA+s_}, 16, v{src}")
        else: a(f"v_and_b32 v{TA+s_}, 0xffff, v{src}")
        a(f"v_add_u32 v{TA+s_}, {OSC}, v{TA+s_}")
    for r_ in range(16):
        if r_ % 4 == 0: a.wait(vm=f"P{r_+3}")
        for e in range(4):
            if r_ == 0: a(f"v_accvgpr_read_b32 v{32+e}, {R(P0+e)}")
            else:
                a(f"v_accvgpr_read_b32 v{36+e}, {R(P0+4*r_+e)}")
        if r_:
            for e in range(4): a(f"v_add_f32 v{32+e}, v{32+e}, v{36+e}")
    a("v_cvt_pk_bf16_f32 v18, v32, v33"); a("v_cvt_pk_bf16_f32 v19, v34, v35")
    a("v_cmp_gt_u32 vcc, 210, v0")
    a("v_cndmask_b32 v18, 0, v18, vcc"); a("v_cndmask_b32 v19, 0, v19, vcc")
    a("v_lshlrev_b32 v27, 3, v0"); a(f"v_add_u32 v27, {OSC}, v27")
    a("ds_write_b64 v27, v[18:19]")
    a("s_cmp_eq_u32 s72, 0"); a("s_cbranch_scc1 L_rp2_done")
    rp_fin(5, A0 + 64)
    a("L_rp2_done:")
    a("s_waitcnt lgkmcnt(0)")
    a("s_barrier")
    a.stamp()
    KF = A0 + 96
    for E in range(4):
        for ta in range(3): a(f"ds_read_b64 {R(KF + 8*E + 2*ta, 2)}, v{TA + 3*E + ta}")
    a("s_mul_i32 s3, s28, 40960"); a("s_mul_i32 s56, s27, 1280"); a("s_add_u32 s3, s3, s56"); a("s_add_u32 s3, s3, s58")
    a("v_lshlrev_b32 v27, 2, v10"); a("v_lshl_add_u32 v27, v11, 3, v27")
    a("v_mov_b32 v28, 0x7fffffff"); a("v_cndmask_b32 v27, v28, v27, s[90:91]")
    a("s_waitcnt lgkmcnt(0)")
    D = 32
    for tt in range(2):
        for E in (3, 0, 1, 2):
            d = R(D + (tt*4+E)*4, 4)
            a(f"v_mfma_f32_16x16x32_bf16 {d}, {R(KF + 8*E, 4)}, {R(PQR + 6*tt, 4)}, 0")
    for tt in range(2):
        for E in (3, 0, 1, 2):
            d = R(D + (tt*4+E)*4, 4)
            a(f"v_mfma_f32_16x16x16_bf16 {d}, {R(KF + 8*E + 4, 2)}, {R(PQR + 6*tt + 4, 2)}, {d}")
    for tt in range(2):
        z = D + (tt*4+3)*4
        a(f"v_add_f32 v20, s61, v{z}"); a(f"v_add_f32 v21, s61, v{z+1}")
        a("v_rcp_f32 v20, v20"); a("v_rcp_f32 v21, v21")
        a("v_cndmask_b32 v22, v21, v20, s[92:93]"); a("v_cndmask_b32 v23, v21, v20, s[90:91]")
        for E, rc in ((0, 22), (1, 23), (2, 21)):
            d = D + (tt*4+E)*4
            for e in range(4): a(f"v_mul_f32 v{d+e}, v{d+e}, v{rc}")
            a(f"v_cvt_pk_bf16_f32 v{64 + tt*0 + 2*E + (22 if tt else 0)}, v{d}, v{d+1}")
            a(f"v_cvt_pk_bf16_f32 v{64 + 2*E + 1 + (22 if tt else 0)}, v{d+2}, v{d+3}")
        ob = 64 + (22 if tt else 0)
        a(f"buffer_store_dwordx4 {R(ob, 4)}, v8, s[40:43], s3 offen")
        a(f"buffer_store_dwordx2 {R(ob + 4, 2)}, v27, s[40:43], s3 offen offset:1024")
        a("s_add_u32 s3, s3, 20480")

    def hop(n, before, others):
        before()
        a(f"s_add_u32 s59, s58, {G_FL + 128*n}")
        a("s_lshl_b32 s3, s27, 2"); a("s_add_u32 s3, s3, s59")
        a.wait(vm="all")
        a("s_barrier")
        a.stamp()
        a("s_cmp_lg_u32 s28, 0"); a(f"s_cbranch_scc1 L_g{n}o")
        a("s_mov_b64 exec, 1")
        a("s_cmp_eq_u32 s79, 0"); a(f"s_cbranch_scc1 L_g{n}slow")
        a("buffer_store_dword v6, v5, s[40:43], s3 offen")
        a(f"s_branch L_g{n}pd")
        a(f"L_g{n}slow:")
        a("buffer_wbl2 sc1"); a("s_waitcnt vmcnt(0)")
        a("buffer_store_dword v6, v5, s[40:43], s3 offen sc1")
        a(f"L_g{n}pd:")
        a("s_mov_b64 exec, -1")
        a("s_mov_b32 s78, 0")
        a(f"L_g{n}p:")
        a("buffer_load_dword v27, v10, s[40:43], s59 offen sc1")
        a("s_add_u32 s78, s78, 1")
        a("s_waitcnt vmcnt(0)")
        a("v_cmp_ne_u32 vcc, s76, v27")
        a(f"s_cmp_ge_u32 s78, {POLLMAX}"); a(f"s_cbranch_scc1 L_g{n}x")
        a(f"s_cbranch_vccnz L_g{n}p")
        a(f"L_g{n}x:")
        a("s_cmp_lg_u32 s79, 0"); a(f"s_cbranch_scc1 L_g{n}j")
        a("buffer_inv sc1"); a("s_waitcnt vmcnt(0)")
        a(f"s_branch L_g{n}j")
        a(f"L_g{n}o:")
        others()
        a.vm = []
        a(f"L_g{n}j:")
        a("s_barrier")
        a.stamp()
    def a_off(NK, goff):
        for m in range(4):
            a(f"s_add_u32 s3, s28, {m}"); a("s_and_b32 s3, s3, 3"); a("s_lshl_b32 s57, s48, 2"); a("s_add_u32 s3, s3, s57")
            a(f"s_mul_i32 s3, s3, {NK}"); a("s_add_u32 s3, s3, s28"); a("s_lshl_b32 s3, s3, 10"); a("s_add_u32 s3, s3, s58"); a(f"s_add_u32 s{80+m}, s3, {goff}")
    def oth2():
        a("s_cmp_lg_u32 s28, 1"); a("s_cbranch_scc1 L_norf2"); a("s_cmp_lg_u32 s65, 0"); a("s_cbranch_scc1 L_norf2")
        a("s_lshl_b32 s3, s26, 4"); a("s_add_u32 s3, s3, s27"); a("s_lshl_b32 s3, s3, 2"); a(f"s_add_u32 s3, s3, {RF}")
        a("s_mov_b64 exec, 1"); a("buffer_store_dword v6, v5, s[40:43], s3 offen sc1"); a("s_mov_b64 exec, -1")
        a("L_norf2:")
    hop(0, lambda: a_off(20, G_O), oth2)
    ACC = 32 ; FA3 = A0
    B1A = A0 + 240
    for n in range(5):
        for m in range(4):
            a.vmem(f"buffer_load_dwordx4 {R(FA3 + (n*4+m)*4, 4)}, v8, s[40:43], s{80+m} offen sc1", f"A{n}")
            a(f"s_add_u32 s{80+m}, s{80+m}, 4096")
    for x in range(14): a(f"v_accvgpr_write_b32 {R(B1A + x)}, v{B1 + x}")
    CSL = 100*1024 - 0
    RED = 102400
    for e in range(4):
        a(f"v_add_f32 v{C1R+e}, v{C1R+e}, v{C1R+4+e}"); a(f"v_add_f32 v{C1R+8+e}, v{C1R+8+e}, v{C1R+12+e}")
        a(f"v_add_f32 v{C1R+e}, v{C1R+e}, v{C1R+16+e}"); a(f"v_add_f32 v{C1R+e}, v{C1R+e}, v{C1R+8+e}")
    CSL = 98304
    a("s_lshl_b32 s3, s28, 9"); a(f"s_add_u32 s3, s3, {CSL}"); a("v_add_u32 v27, s3, v26")
    a("s_mov_b64 exec, s[66:67]"); a(f"ds_write_b128 v27, {R(C1R, 4)}"); a("s_mov_b64 exec, -1")
    def hidtouch():
        a("s_mul_i32 s3, s27, 27648"); a("s_add_u32 s3, s3, s58"); a(f"s_add_u32 s3, s3, {G_HID}"); a("s_mul_i32 s56, s28, 6912"); a("s_add_u32 s3, s3, s56")
        a("s_bfm_b64 exec, 54, 0"); a.vmem(f"buffer_load_dword v4, v3, s[40:43], s3 offen{PTNT}"); a("s_mov_b64 exec, -1")
    side3 = [hidtouch] + w1dma(80, 4)
    for n in range(5):
        a.wait(vm=f"A{n}")
        mf = [MF(ACC + (m*5+t)*4, FB3 + (n*5+t)*4, FA3 + (n*4+m)*4, n == 0) for m in range(4) for t in range(5)]
        a.interleave(mf, side3[n:n+1])
    a.stamp()
    def reduce_epi(which, BIA=None):
        for m in range(1, 4):
            a(f"s_add_u32 s3, s28, {m}"); a("s_and_b32 s3, s3, 3"); a("s_mul_i32 s3, s3, 15360"); a(f"s_add_u32 s3, s3, {RED}")
            a(f"v_add_u32 v{16+m}, s3, v8")
        for m in range(1, 4):
            for t in range(5): a(f"ds_write_b128 v{16+m}, {R(ACC + (m*5+t)*4, 4)} offset:{(m-1)*5120 + t*1024}")
        a("s_mul_i32 s3, s28, 15360"); a(f"s_add_u32 s3, s3, {RED}"); a("v_add_u32 v16, s3, v8")
        U = 20
        for t in range(5):
            for e in range(4):
                for src0 in ([RES] if which == 3 else [RES, BIA]):
                    src = src0 + 2*t + (e >> 1)
                    if e & 1: a(f"v_and_b32 v{U+e}, 0xffff0000, v{src}")
                    else: a(f"v_lshlrev_b32 v{U+e}, 16, v{src}")
                    a(f"v_add_f32 v{ACC+4*t+e}, v{ACC+4*t+e}, v{U+e}")
        a("s_waitcnt lgkmcnt(0)")
        a("s_barrier")
        for t in range(5):
            for m in range(1, 4): a(f"ds_read_b128 {R(ACC + (m*5+t)*4, 4)}, v16 offset:{(m-1)*5120 + t*1024}")
        for t in range(5):
            a(f"s_waitcnt lgkmcnt({12 - 3*t})")
            for e in range(4):
                x0 = ACC + 4*t + e
                a(f"v_add_f32 v{x0+20}, v{x0+20}, v{x0+40}"); a(f"v_add_f32 v{x0}, v{x0}, v{x0+60}"); a(f"v_add_f32 v{x0}, v{x0}, v{x0+20}")
            for h in range(2): a(f"v_cvt_pk_bf16_f32 v{RES+2*t+h}, v{ACC+4*t+2*h}, v{ACC+4*t+2*h+1}")
    reduce_epi(3)
    a("s_mul_i32 s57, s50, 20480"); a("s_mul_i32 s3, s49, 2560"); a("s_add_u32 s57, s57, s3"); a("s_add_u32 s57, s57, s58"); a(f"s_add_u32 s57, s57, {G_H}")
    a.vmem(f"buffer_store_dwordx4 {R(RES, 4)}, v8, s[40:43], s57 offen")
    a.vmem(f"buffer_store_dwordx4 {R(RES+4, 4)}, v8, s[40:43], s57 offen offset:1024")
    a.vmem(f"buffer_store_dwordx2 {R(RES+8, 2)}, v13, s[40:43], s57 offen offset:2048")
    a(f"v_add_f32 v20, v{ACC}, v{ACC+1}"); a(f"v_mul_f32 v21, v{ACC}, v{ACC}"); a(f"v_fmac_f32 v21, v{ACC+1}, v{ACC+1}")
    for x in range(2, 20):
        a(f"v_add_f32 v20, v20, v{ACC+x}"); a(f"v_fmac_f32 v21, v{ACC+x}, v{ACC+x}")
    def red_g(regs, tmp):
        for r_ in regs:
            a(f"v_mov_b32 {tmp}, {r_}"); a(f"v_permlane32_swap_b32 {r_}, {tmp}"); a(f"v_add_f32 {r_}, {r_}, {tmp}")
            a(f"v_mov_b32 {tmp}, {r_}"); a(f"v_permlane16_swap_b32 {r_}, {tmp}"); a(f"v_add_f32 {r_}, {r_}, {tmp}")
    red_g(["v20", "v21"], "v22")
    a("v_lshlrev_b32 v22, 1, v10")
    a("s_lshl_b32 s57, s50, 10"); a("s_lshl_b32 s3, s49, 7"); a("s_add_u32 s57, s57, s3"); a("s_add_u32 s57, s57, s58"); a(f"s_add_u32 s57, s57, {G_ST}")
    a.vmem("buffer_store_dwordx2 v[20:21], v22, s[40:43], s57 offen")
    CS = 128
    def bef3():
        a("v_lshlrev_b32 v18, 4, v11"); a(f"v_add_u32 v18, {CSL}, v18")
        for w, base in ((0, CS), (1, 156), (2, 184), (3, 212)):
            for t in range(7): a(f"ds_read_b128 {R(base + 4*t, 4)}, v18 offset:{512*w + 64*t}")
        a("s_mul_i32 s3, s28, 40960"); a("s_add_u32 s3, s3, s58"); a(f"s_add_u32 s80, s3, {G_H}"); a("s_add_u32 s81, s80, 20480")
        a("s_lshl_b32 s82, s28, 11"); a("s_add_u32 s82, s82, s58"); a(f"s_add_u32 s82, s82, {G_ST}")
        a("v_lshlrev_b32 v19, 8, v11"); a("v_lshl_add_u32 v19, v10, 1, v19")
        a("v_add_u32 v16, 57344, v8"); a("v_add_u32 v17, 114688, v8")
        a("s_waitcnt lgkmcnt(0)")
    def oth3():
        for f in w1dma(96, 15, 1): f()
        a("s_waitcnt vmcnt(0)")
    hop(1, bef3, oth3)
    HF = A0; BF = A0 + 160
    def hf(tt, k): return HF + (k*2 + tt)*4
    def ldh(k):
        def one(tt):
            a.vmem(f"buffer_load_dwordx4 {R(hf(tt, k), 4)}, v8, s[40:43], s{80+tt} offen offset:{1024*(k&3)} sc1", f"H{k}")
            if (k & 3) == 3: a(f"s_add_u32 s{80+tt}, s{80+tt}, 4096")
        return [lambda tt=tt: one(tt) for tt in range(2)]
    PRE = P("PRE4", 5)
    for k in range(PRE):
        for f in ldh(k): f()
    for tt in range(2):
        for q in range(2):
            a.vmem(f"buffer_load_dwordx2 {R(88 + 4*tt + 2*q, 2)}, v19, s[40:43], s82 offen offset:{1024*tt + 128*q} sc1", "ST")
    a(f"s_mov_b32 s59, {RF}")
    def breads(k):
        return [lambda t=t: a.ds(f"ds_read_b128 {R(BF + (k&1)*28 + 4*t, 4)}, v{[8, 16, 17][k >> 3]} offset:{(k & 7)*7168 + 1024*t}", f"BR{k}") for t in range(7)]
    for f in breads(0): f()
    for x in range(28):
        a(f"v_add_f32 v{CS+x}, v{CS+x}, v{156+x}"); a(f"v_add_f32 v{184+x}, v{184+x}, v{212+x}"); a(f"v_add_f32 v{CS+x}, v{CS+x}, v{184+x}")
    vS = [20, 21]; vQ = [22, 23]
    slots = [156 + 4*i for i in range(16)]
    slots += [A0 + 216 + 4*i for i in range(6)]
    slots += [HF + 4*i for i in range(40)]
    slots += [BF + 4*i for i in range(8)]
    def fb(n, t): return slots[n*5 + t]
    a("s_mul_i32 s3, s49, 54"); a("s_add_u32 s3, s3, s28"); a("s_mul_i32 s54, s3, 5120"); a(f"s_add_u32 s54, s54, {W2P}")
    def ldw2(n, t):
        if n == 13 and t == 0:
            a("s_cmp_ge_u32 s28, 2"); a("s_cselect_b32 s3, 0x40000000, 0"); a("s_add_u32 s54, s54, s3")
        a.vmem(f"buffer_load_dwordx4 {R(fb(n, t), 4)}, v{8 if t < 4 else 12}, s[40:43], s54 offen offset:{1024*(t&3)} sc1", f"W2_{n}")
        if t == 4: a("s_add_u32 s54, s54, 20480")
    w2q = [(n, t) for n in range(14) for t in range(5)]
    hq = list(range(PRE, 20))
    HRATE = P("HRATE", 2); W2RATE = P("W2RATE", 3)
    krf = None
    for k in range(20):
        a.wait(vm=f"H{k}", lg=f"BR{k}")
        side = breads(k+1) if k < 19 else []
        for _ in range(HRATE):
            if hq:
                kk = hq.pop(0); side += ldh(kk)
                if not hq:
                    side.append(lambda: a.vmem("buffer_load_dwordx4 v[92:95], v8, s[40:43], s59 offen sc1", "RF")); krf = k
        if k == PRE + 1:
            for tt in range(2):
                side.append(f"v_add_f32 v{vS[tt]}, v{88+4*tt}, v{90+4*tt}"); side.append(f"v_add_f32 v{vQ[tt]}, v{89+4*tt}, v{91+4*tt}")
            side.append(lambda: red_g([f"v{x}" for x in vS + vQ], "v24"))
        if k == PRE + 2:
            for tt in range(2):
                s_, q_ = f"v{vS[tt]}", f"v{vQ[tt]}"
                side += [f"v_mul_f32 {s_}, s63, {s_}", f"v_mul_f32 {q_}, s63, {q_}", f"v_fma_f32 {q_}, -{s_}, {s_}, {q_}", f"v_max_f32 {q_}, 0, {q_}",
                         f"v_add_f32 v24, s64, {q_}", f"v_fma_f32 {q_}, v24, s64, {q_}", f"v_rsq_f32 {q_}, {q_}", f"v_mul_f32 {s_}, {s_}, {q_}"]
        if krf is not None and k == krf + 3:
            a.wait(vm="RF"); rfcheck("L_rf2", True)
        if krf is not None and k >= krf + 3:
            for _ in range(W2RATE):
                n, t = w2q[0]
                idx = n*5 + t
                if idx < 22 + 2*k:
                    w2q.pop(0); side.append(lambda n=n, t=t: ldw2(n, t))
        mf = [MF(ACC + (tt*7+t)*4, BF + (k&1)*28 + 4*t, hf(tt, k), k == 0) for t in range(7) for tt in range(2)]
        a.interleave(mf, side)
    assert krf is not None and krf >= PRE + 1, krf
    a.stamp()
    c1 = -2.0*LOG2E*0.7978845608028654
    c2 = c1*0.044715
    a(f"s_mov_b32 s60, {hx(c1)}"); a(f"s_mov_b32 s61, {hx(c2)}")
    a("v_mov_b32 v24, s60")
    a("s_mul_i32 s56, s28, 110592"); a("s_lshl_b32 s3, s53, 9"); a("s_add_u32 s56, s56, s3"); a("s_add_u32 s56, s56, s58"); a(f"s_add_u32 s56, s56, {G_HID}")
    B1U = 220
    for x in range(14):
        a(f"v_accvgpr_read_b32 v25, {R(B1A + x)}")
        a(f"v_lshlrev_b32 v{B1U+2*x}, 16, v25"); a(f"v_and_b32 v{B1U+2*x+1}, 0xffff0000, v25")
    PK = 88
    W2EPI = P("W2EPI", 2); W2STOP = P("W2STOP", 11)
    for tt in range(2):
        for t in range(7):
            for e in range(4):
                v_ = f"v{ACC + (tt*7+t)*4 + e}"; ta = f"v{248+e}"
                a(f"v_fma_f32 {ta}, -v{vS[tt]}, v{CS+4*t+e}, v{B1U+4*t+e}")
                a(f"v_fma_f32 {v_}, {v_}, v{vQ[tt]}, {ta}")
                a(f"v_mul_f32 {ta}, {v_}, {v_}")
                a(f"v_fma_f32 {ta}, {ta}, s61, v24")
                a(f"v_mul_f32 {ta}, {ta}, {v_}")
                a(f"v_exp_f32 {ta}, {ta}")
                if e < W2EPI and w2q and tt*7 + t < W2STOP: ldw2(*w2q.pop(0))
            for e in range(4):
                ta = f"v{248+e}"; a(f"v_add_f32 {ta}, 1.0, {ta}"); a(f"v_rcp_f32 {ta}, {ta}")
            for e in range(4):
                v_ = f"v{ACC + (tt*7+t)*4 + e}"; a(f"v_mul_f32 {v_}, {v_}, v{248+e}")
            for h in range(2):
                x0 = ACC + (tt*7+t)*4 + 2*h
                a(f"v_cvt_pk_bf16_f32 v{PK + tt*14 + 2*t + h}, v{x0}, v{x0+1}")
        for p in range(3): a.vmem(f"buffer_store_dwordx4 {R(PK + tt*14 + 4*p, 4)}, v8, s[40:43], s56 offen offset:{1024*p}")
        a.vmem(f"buffer_store_dwordx2 {R(PK + tt*14 + 12, 2)}, v13, s[40:43], s56 offen offset:3072")
        a("s_add_u32 s56, s56, 55296")
    BIA = 126
    def bef4():
        srd(a, 32, 20, 2621440); srd(a, 36, 18, 1280)
        a_off(54, G_HID)
    hop(2, bef4, lambda: None)
    ar = [136 + 4*i for i in range(5)] + [220 + 4*i for i in range(9)] + [A0 + 192 + 4*i for i in range(6)] + [A0 + 240 + 4*i for i in range(4)]
    NR = 6
    def fa(n, m): return ar[(n % NR)*4 + m]
    def lda5(n):
        def one(m):
            if n == 13 and m == 0:
                a("s_cmp_ge_u32 s28, 2"); a("s_cselect_b32 s3, 0x40000000, 0")
                for q in range(4): a(f"s_add_u32 s{80+q}, s{80+q}, s3")
            a.vmem(f"buffer_load_dwordx4 {R(fa(n, m), 4)}, v8, s[40:43], s{80+m} offen sc1", f"A5_{n}")
            a(f"s_add_u32 s{80+m}, s{80+m}, 4096")
        return [lambda m=m: one(m) for m in range(4)]
    PRE5 = P("PRE5", 3)
    def need_w2(n):
        L = []
        while w2q and w2q[0][0] <= n:
            x = w2q.pop(0); L.append(lambda x=x: ldw2(*x))
        return L
    for n in range(PRE5):
        for f in need_w2(n) + lda5(n): f()
    def ldbia():
        a("v_lshlrev_b32 v27, 4, v11"); a("v_lshlrev_b32 v28, 3, v11"); a("s_mul_i32 s3, s49, 160")
        a.vmem(f"buffer_load_dwordx4 {R(BIA, 4)}, v27, s[36:39], s3 offen")
        a.vmem(f"buffer_load_dwordx4 {R(BIA+4, 4)}, v27, s[36:39], s3 offen offset:64")
        a.vmem(f"buffer_load_dwordx2 {R(BIA+8, 2)}, v28, s[36:39], s3 offen offset:128")
    nxt = PRE5
    for n in range(14):
        a.wait(vm=f"A5_{n}")
        side = []
        cnt = 0
        while nxt < 14 and nxt <= n + NR - 1 and cnt < 2:
            side += need_w2(nxt) + lda5(nxt); nxt += 1; cnt += 1
        if n == 2: side.append(ldbia)
        mf = [MF(ACC + (m*5+t)*4, fb(n, t), fa(n, m), n == 0) for m in range(4) for t in range(5)]
        a.interleave(mf, side)
    a.stamp()
    reduce_epi(5, BIA)
    a(f"buffer_store_dwordx4 {R(RES, 4)}, v14, s[32:35], s51 offen")
    a(f"buffer_store_dwordx4 {R(RES+4, 4)}, v14, s[32:35], s51 offen offset:64")
    a(f"buffer_store_dwordx2 {R(RES+8, 2)}, v15, s[32:35], s51 offen offset:128")
    a.stamp()
    if STAMP:
        a("s_waitcnt vmcnt(0)")
        a.stamp()
        a("v_writelane_b32 v7, s79, 30")
        a("s_lshl_b32 s3, s2, 2"); a("s_add_u32 s3, s3, s28"); a("s_lshl_b32 s3, s3, 8"); a(f"s_add_u32 s3, s3, {STB}")
        a("v_lshlrev_b32 v27, 2, v1"); a("v_add_u32 v27, s3, v27")
        a("global_store_dword v27, v7, s[24:25]")
        if os.environ.get("DELAY"):
            di = os.environ["DELAY"]
            a("s_cmp_lg_u32 s2, 8"); a("s_cbranch_scc1 L_end"); a("s_cmp_lg_u32 s28, 0"); a("s_cbranch_scc1 L_end")
            clk = "s_memrealtime" if di == "rt" else "s_memtime"
            a(f"{clk} s[100:101]"); a("s_waitcnt lgkmcnt(0)")
            if di == "rt":
                a("s_sub_u32 s3, s100, s76")
            else:
                a(f"v_readlane_b32 s3, v7, {di}"); a("v_readlane_b32 s56, v7, 0"); a("s_nop 3"); a("s_sub_u32 s3, s3, s56")
            a("s_lshl_b32 s3, s3, 2"); a("s_min_u32 s3, s3, 0x100000"); a("s_mov_b32 s57, s100")
            a("L_dly:")
            a(f"{clk} s[100:101]"); a("s_waitcnt lgkmcnt(0)"); a("s_sub_u32 s56, s100, s57"); a("s_cmp_lt_u32 s56, s3"); a("s_cbranch_scc1 L_dly")
        if os.environ.get("DBGOUT"):
            a("s_memrealtime s[100:101]"); a("s_waitcnt lgkmcnt(0)")
            a("s_sub_u32 s100, s100, s76"); a("v_readlane_b32 s3, v7, 0"); a("s_nop 3"); a("v_subrev_u32 v7, s3, v7"); a("v_writelane_b32 v7, s100, 0")
            a("s_cmp_lg_u32 s2, 8"); a("s_cbranch_scc1 L_end"); a("s_cmp_lg_u32 s28, 0"); a("s_cbranch_scc1 L_end")
            sel = [0, 1, 2, 3, 5, 7, 9, 11, 12, 14, 15, 17, 18, 19, 20]
            for q, i in enumerate(sel):
                a(f"v_readlane_b32 s3, v7, {i}"); a("s_nop 3"); a("v_mov_b32 v27, s3"); a(f"global_store_dword v5, v27, s[22:23] offset:{4*(q+1)}")
    a("L_end:")
    a("s_endpgm")
    return a.a

def main(out):
    hdr = open("sequential_preLN__linear_attn_block__mixer_channel_mlp__prompt.s.ref").read().split("\n")
    hdr = [l for l in hdr if l.startswith(";") and "@launch" not in l]
    hdr.append("; @launch grid=(256,1,1) block=(256,1,1) lds=163840")
    a = gen()
    pre = '.amdgcn_target "amdgcn-amd-amdhsa--gfx950"\n.text\n'
    T1, T2 = build_tables()
    a.raw(".p2align 6\nT1_tab:")
    a.raw(".short " + ",".join(map(str, T1)))
    a.raw("T2_tab:")
    for row in T2: a.raw(".short " + ",".join(map(str, row)))
    a.raw(".fill 2048, 4, 0")
    a.raw('.section .rodata,"a"\n.p2align 6')
    a.raw(f""".amdhsa_kernel {NAME}
  .amdhsa_next_free_vgpr 512
  .amdhsa_next_free_sgpr 102
  .amdhsa_accum_offset 256
  .amdhsa_group_segment_fixed_size 0
  .amdhsa_kernarg_size 88
  .amdhsa_user_sgpr_count 2
  .amdhsa_user_sgpr_kernarg_segment_ptr 1
  .amdhsa_system_sgpr_workgroup_id_x 1
.end_amdhsa_kernel""")
    open(out, "w").write("\n".join(hdr) + "\n" + pre + a.finish())

if __name__ == "__main__":
    main(sys.argv[1])
```

```python
import sys, struct, os
from asmdsl import Asm, R, S
from gen1 import build_tables, PAIRS, f2u, hx, divmod_const, srd, LOG2E

NAME = "sequential_preLN__linear_attn_block__mixer_channel_mlp__prompt_kernel"
WOP = 0
W2P = WOP + 8*20*5*1024
W1P = W2P + 8*54*5*1024
C1P = W1P + 16*20*7*1024
WQKV = C1P + 320*512
PART = WQKV + 16*153600
GRP = PART + 256*4096
G_O = 0; G_H = 163840; G_ST = 327680; G_FL = 335872; G_HID = 336896; G_SZ = G_HID + 442368
FLG = GRP + 16*G_SZ
F1 = FLG; F1R = FLG + 2048; RF = FLG + 4096; F0 = FLG + 8192
WS_END = FLG + 16384
A0 = 256
STAMP = int(os.environ.get("STAMP", "0"))
STB = 32 << 20
POLLMAX = 1 << 15
OPT = set(os.environ.get("OPT", "").split(","))
def P(name, d): return int(os.environ.get(name, d))

class G:
    def __init__(self):
        self.a = Asm(); self.vm = []; self.lg = []; self.nst = 0; self.bgq = []; self.names = []
    def __call__(self, t): self.a(t)
    def vmem(self, text, tag=None): self.a(text); self.vm.append(tag)
    def ds(self, text, tag=None): self.a(text); self.lg.append(tag)
    def _n(self, lst, tag, cap):
        idx = max(i for i, t in enumerate(lst) if t == tag)
        return min(len(lst) - 1 - idx, cap)
    def wait(self, vm=None, lg=None):
        s = []
        if vm is not None: s.append(f"vmcnt({0 if vm == 'all' else self._n(self.vm, vm, 63)})")
        if lg is not None: s.append(f"lgkmcnt({0 if lg == 'all' else self._n(self.lg, lg, 15)})")
        self.a("s_waitcnt " + " ".join(s))
        if vm == 'all': self.vm = []
        if lg == 'all': self.lg = []
    def stamp(self, name=""):
        if not STAMP: return
        i = self.nst; self.nst += 1; self.names.append(name)
        assert i < 30
        self.a("s_memtime s[100:101]"); self.a("s_waitcnt lgkmcnt(0)"); self.a(f"v_writelane_b32 v7, s100, {i}")
    def run(self, x): x() if callable(x) else self.a(x)
    def bg(self, n=1):
        for _ in range(n):
            if self.bgq: self.bgq.pop(0)()
    def interleave(self, main, extra):
        n = len(main); m = len(extra); j = 0
        for i, x in enumerate(main):
            self.run(x)
            while j < m and (j + 1) * n <= (i + 1) * m + (n - 1):
                self.run(extra[j]); j += 1
        while j < m:
            self.run(extra[j]); j += 1

def MF(d, a_, b_, first): return f"v_mfma_f32_16x16x32_bf16 {R(d,4)}, {R(a_,4)}, {R(b_,4)}, {'0' if first else R(d,4)}"

def phi(a, val, t1, t2):
    a(f"v_mul_f32 {t1}, s60, {val}")
    a(f"v_max_f32 {t2}, 0, {val}")
    a(f"v_exp_f32_e64 {t1}, {t1} clamp")
    a(f"v_add_f32 {t2}, s61, {t2}")
    a(f"v_add_f32 {val}, {t1}, {t2}")

HS = " sc1" if "sc1h" in OPT else ""
HS2 = " sc1" if "sc1hid" in OPT else ""
def gen():
    a = G()
    name = NAME
    NRAW = P("NRAW", 2)
    a.a.raw(f".globl {name}\n.p2align 8\n.type {name},@function\n{name}:")
    a("s_cmp_ge_u32 s2, 256"); a("s_cbranch_scc1 L_end")
    a("s_load_dwordx16 s[4:19], s[0:1], 0")
    a("s_load_dwordx4 s[20:23], s[0:1], 64")
    a("s_load_dwordx2 s[24:25], s[0:1], 80")
    a("s_memrealtime s[76:77]")
    a("s_getpc_b64 s[30:31]")
    a("L_pc:")
    a("v_mov_b32 v7, 0")
    a.stamp("start")
    a("v_lshrrev_b32 v2, 6, v0"); a("v_and_b32 v1, 63, v0")
    a("v_readfirstlane_b32 s28, v2")
    a("s_and_b32 s3, s2, 7"); a("s_lshr_b32 s27, s2, 3"); a("s_lshr_b32 s26, s27, 4"); a("s_lshl_b32 s3, s3, 1")
    a("s_add_u32 s26, s26, s3")
    a("s_and_b32 s27, s27, 15")
    a("v_lshlrev_b32 v3, 7, v1")
    a("s_cmp_lg_u32 s28, 3"); a("s_cbranch_scc1 L_nocp")
    a("s_mul_i32 s3, s27, 13"); a("s_lshr_b32 s3, s3, 6"); a("s_mul_i32 s3, s3, 5"); a("s_sub_u32 s3, s27, s3"); a("s_lshl_b32 s3, s3, 13")
    a("v_add_u32 v27, s3, v3")
    a("global_load_dword v4, v27, s[30:31]")
    a("L_nocp:")
    BQ = 102400; SCR = 153600; CSX = 161792
    vXA = [72, 73, 74, 75]; vW = [76, 77]; vRd = [78, 79]; vTB = [17, 18, 19, 20]; vTQ = [86, 87, 88, 89]; vTQ2 = [90, 91, 21, 22]
    vSA = [80, 81, 82]; vBA = [144, 145, 146, 147, 148]; vTR = [149, 150, 151, 152]
    vT1 = 24; vSTW = 25
    ACC = 32; RAW = 160; XF = A0; BF = A0 + 160; ONES = A0 + 200; GR = A0 + 204; RSM = A0 + 212; OH = A0 + 220; CSA = A0 + 240; CSQ = A0 + 244
    t0, t1, t2, t3 = "v27", "v28", "v29", "v30"
    a("v_lshlrev_b32 v8, 4, v1"); a("v_lshlrev_b32 v9, 4, v0")
    a("v_and_b32 v10, 15, v1"); a("v_lshlrev_b32 v10, 2, v10")
    a("v_lshrrev_b32 v11, 4, v1"); a("v_mov_b32 v5, 0"); a("v_add_u32 v12, 4096, v8")
    a("v_and_b32 v27, 3, v1"); a("s_lshl_b32 s3, s28, 2"); a("v_add_u32 v27, s3, v27"); a("v_min_u32 v27, 14, v27")
    a("v_lshrrev_b32 v28, 2, v1"); a("v_mul_u32_u24 v28, 3840, v28"); a("v_lshl_add_u32 v28, v27, 4, v28")
    a("v_add_u32 v29, 1440, v28"); a("v_add_u32 v30, 2640, v28")
    a("v_cmp_gt_u32 vcc, 10, v27"); a("v_cndmask_b32 v28, v28, v30, vcc")
    a("v_cmp_gt_u32 vcc, 5, v27"); a("v_cndmask_b32 v83, v28, v29, vcc")
    a("v_lshrrev_b32 v27, 3, v1"); a("v_and_b32 v28, 7, v1"); a("v_mul_u32_u24 v29, 1280, v27")
    a(f"v_lshl_add_u32 v{vXA[0]}, v28, 4, v29")
    for rg in range(1, 4): a(f"v_add_u32 v{vXA[rg]}, {10240*rg}, v{vXA[0]}")
    a("s_lshl_b32 s3, s28, 11"); a(f"s_add_u32 s48, s3, {SCR}")
    a("v_lshrrev_b32 v29, 1, v27"); a("v_xor_b32 v29, v29, v28"); a("v_lshlrev_b32 v29, 4, v29"); a("v_lshl_add_u32 v29, v27, 7, v29")
    a(f"v_add_u32 v{vW[0]}, s48, v29")
    a("v_xor_b32 v29, 64, v29"); a("v_add_u32 v29, 1024, v29"); a(f"v_add_u32 v{vW[1]}, s48, v29")
    a("v_subrev_u32 v83, 160, v83")
    a("s_mul_i32 s50, s26, 153600"); a("s_mul_i32 s51, s27, 80"); a("s_add_u32 s50, s50, s51")
    a("s_mul_i32 s53, s28, 3072"); a(f"s_add_u32 s53, s53, {BQ + 28672}")
    a("s_lshl_b32 s49, s26, 7"); a("s_lshl_b32 s3, s28, 5"); a("s_add_u32 s49, s49, s3"); a("s_mul_i32 s49, s49, 1280")
    a("s_lshr_b32 s3, s28, 1"); a("s_lshl_b32 s3, s3, 7"); a("s_add_u32 s62, s49, 128"); a("s_sub_u32 s62, s62, s3"); a("s_add_u32 s49, s49, s3")
    a("s_mul_i32 s52, s28, 5120")
    a(f"s_mul_i32 s58, s26, {G_SZ}"); a(f"s_add_u32 s58, s58, {GRP}")
    a("s_mul_i32 s3, s26, 163840"); a("s_mul_i32 s56, s27, 10240"); a("s_add_u32 s3, s3, s56"); a("s_mul_i32 s56, s28, 2560"); a("s_add_u32 s57, s3, s56")
    a("s_lshl_b32 s70, s26, 2"); a("s_add_u32 s70, s70, s28")
    a(f"s_mul_i32 s71, s28, 7168"); a(f"s_add_u32 s71, s71, {BQ}")
    a("v_mov_b32 v2, 0x7fffffff")
    a("s_waitcnt lgkmcnt(0)")
    srd(a, 36, 6, 2457600)
    SLNT = "" if "slplain" in OPT else " nt"
    for i in range(3):
        a(f"s_add_u32 m0, s53, {1024*i}")
        if i == 2: a("s_bfm_b64 exec, 32, 0")
        a.vmem(f"buffer_load_dwordx4 v83, s[36:39], s50 offen{SLNT} lds", "SLD")
        a(f"s_add_u32 s50, s50, {16*3840}")
    srd(a, 32, 4, 2621440); srd(a, 40, 24, WS_END)
    a("s_mov_b64 exec, 0xfffff")
    a.vmem(f"buffer_load_dword v4, v3, s[32:35], s57 offen{' nt' if 'xtnt' in OPT else ''}")
    if "tlb" in OPT:
        a("v_lshlrev_b32 v27, 20, v1"); a("s_bfm_b64 exec, 24, 0")
        a.vmem(f"buffer_load_dword v4, v27, s[40:43], 0 offen")
    a("s_mov_b64 exec, -1")
    a("s_and_b32 s76, s76, 0xfffffff8"); a("s_or_b32 s76, s76, 8")
    a("s_or_b32 s3, s2, s28"); a("s_cmp_lg_u32 s3, 0"); a("s_cbranch_scc1 L_notag")
    a("v_mov_b32 v28, s76"); a("global_store_dword v5, v28, s[22:23] sc1")
    a("L_notag:")
    srd(a, 44, 12, 2211840)
    def rp_issue(nt, pitch_src, nch):
        for i in range(7):
            if i < nt:
                a(f"v_add_u32 v27, {64*i}, v1")
                divmod_const(a, "v28", "v29", "v27", nch)
                a(f"v_mul_u32_u24 v28, {pitch_src}, v28"); a("v_lshl_add_u32 v28, v29, 4, v28")
                a(f"s_add_u32 m0, s71, {1024*i}")
                a(f"buffer_load_dwordx4 v28, s[44:47], s73 offen nt lds")
            else:
                a("buffer_load_dword v4, v2, s[44:47], 0 offen")
    def unit_issue():
        a("s_cmp_ge_u32 s70, 20"); a("s_cbranch_scc1 L_rp5")
        a("s_mov_b32 s72, 1")
        a("s_mul_i32 s75, s27, 27"); a("s_lshr_b32 s75, s75, 2"); a("s_lshl_b32 s75, s75, 5")
        a("s_mul_i32 s79, s70, 110592"); a("s_add_u32 s73, s75, s79")
        a("s_mul_i32 s75, s27, 20"); a("s_add_u32 s70, s70, s75")
        a("s_mul_i32 s74, s70, 7168"); a(f"s_add_u32 s74, s74, {W1P}")
        rp_issue(7, 3456, 14)
        a("s_branch L_rp_issued")
        a("L_rp5:")
        a("s_mov_b32 s72, 2")
        a("s_sub_u32 s79, s70, 20"); a("s_lshl_b32 s79, s79, 1"); a("s_lshr_b32 s75, s27, 3"); a("s_add_u32 s79, s79, s75"); a("s_and_b32 s75, s27, 7")
        a("s_cmp_ge_u32 s79, 54"); a("s_cbranch_scc1 L_rpwo")
        srd(a, 44, 16, 2211840)
        a("s_mul_i32 s78, s75, 54"); a("s_add_u32 s78, s78, s79")
        a("s_mul_i32 s74, s78, 5120"); a(f"s_add_u32 s74, s74, {W2P}")
        a("s_branch L_rp5b")
        a("L_rpwo:")
        srd(a, 44, 8, 819200)
        a("s_sub_u32 s79, s79, 54")
        a("s_mul_i32 s78, s75, 20"); a("s_add_u32 s78, s78, s79")
        a("s_mul_i32 s74, s78, 5120"); a(f"s_add_u32 s74, s74, {WOP}")
        a("s_cmp_ge_u32 s79, 20"); a("s_cselect_b32 s74, 0x40000000, s74")
        a("L_rp5b:")
        a("s_mul_i32 s75, s75, 160"); a("s_mul_i32 s79, s79, 40960"); a("s_add_u32 s73, s75, s79")
        rp_issue(5, 1280, 10)
        a("L_rp_issued:")
        a.vm += ["UL"]*7
    def raw(cx, rg): return RAW + ((cx % 6)*4 + rg)*4
    def xf(tt, k): return XF + (tt*20 + k)*4
    def ldx(cx):
        return [lambda cx=cx, rg=rg: a.vmem(f"buffer_load_dwordx4 {R(raw(cx, rg), 4)}, v{vXA[rg]}, s[32:35], s{62 if cx & 1 else 49} offen offset:{256*(cx>>1)}", f"X{cx}") for rg in range(4)]
    a("v_and_b32 v27, 15, v1")
    a("v_cmp_gt_u32 s[66:67], 8, v27")
    a("v_cmp_gt_u32 s[90:91], 32, v1"); a("v_cmp_gt_u32 s[92:93], 48, v1")
    a("v_cmp_eq_u32 s[88:89], 1, v11")
    a("v_and_b32 v29, 1, v11")
    a("s_lshl_b32 s3, s28, 1"); a("v_add_u32 v29, s3, v29")
    a("v_cmp_gt_u32 s[94:95], 5, v29"); a("v_cmp_eq_u32 s[96:97], 7, v29")
    a("v_lshlrev_b32 v29, 10, v29"); a(f"v_add_u32 v30, {BQ - 5120}, v29"); a("v_cndmask_b32 v29, v30, v29, s[94:95]")
    a("v_lshl_add_u32 v29, v10, 2, v29")
    a("v_mov_b32 v30, 2560"); a("v_mov_b32 v31, 5120"); a("v_cndmask_b32 v30, v30, v31, s[94:95]")
    a("v_mov_b32 v31, 8"); a("v_cndmask_b32 v31, v31, 7, s[96:97]")
    a("s_andn2_b64 s[96:97], s[96:97], s[66:67]")
    a("s_mul_i32 s3, s26, 5")
    a("v_lshrrev_b32 v28, 1, v11"); a("v_add_u32 v28, s3, v28")
    for n in range(3):
        a(f"v_lshrrev_b32 v27, 2, v28"); a(f"v_mad_u32_u24 v{vSA[n]}, v27, v30, v29")
        a("v_and_b32 v27, 3, v28"); a("v_lshlrev_b32 v27, v31, v27"); a(f"v_add_u32 v{vSA[n]}, v{vSA[n]}, v27")
        a(f"v_cndmask_b32 v{vSA[n]}, v{vSA[n]}, v2, s[96:97]")
        if n == 2: a(f"v_cndmask_b32 v{vSA[n]}, v2, v{vSA[n]}, s[90:91]")
        else: a("v_add_u32 v28, 2, v28")
    a("v_lshrrev_b32 v27, 5, v1"); a("v_bfe_u32 v28, v1, 2, 2"); a("v_lshl_add_u32 v27, v27, 3, v28"); a("v_lshlrev_b32 v27, 6, v27")
    a("v_bfe_u32 v28, v1, 4, 1"); a("v_lshl_add_u32 v27, v28, 5, v27"); a("v_and_b32 v28, 3, v1"); a("v_lshl_add_u32 v27, v28, 3, v27")
    a("v_add_u32 v84, s53, v27")
    a("s_mul_i32 s54, s27, 153600"); a(f"s_add_u32 s54, s54, {WQKV}")
    UEARLY = "ulate" not in OPT
    if UEARLY: unit_issue()
    a.wait(vm="SLD")
    a.stamp("sld")
    for n in range(3):
        for h in range(2): a(f"ds_read_b64_tr_b16 {R(96 + 4*n + 2*h, 2)}, v84 offset:{1024*n + 256*h}")
    a("s_waitcnt lgkmcnt(0)")
    for n in range(3): a.vmem(f"buffer_store_dwordx4 {R(96 + 4*n, 4)}, v{vSA[n]}, s[40:43], s54 offen sc1", "SL")
    a.vmem("global_load_dword v6, v5, s[22:23] sc1", "TAG")
    if not UEARLY: unit_issue()
    NX0 = P("NX0", 2)
    for cx in range(NX0):
        for f in ldx(cx): f()
    a("v_and_b32 v27, 15, v1")
    a("v_lshrrev_b32 v29, 1, v27"); a("v_xor_b32 v29, v29, v11"); a("v_lshlrev_b32 v29, 4, v29"); a("v_lshl_add_u32 v29, v27, 7, v29")
    a("s_and_b32 s3, s28, 1"); a("s_lshl_b32 s3, s3, 6"); a("v_xor_b32 v29, s3, v29")
    a(f"v_add_u32 v{vRd[0]}, s48, v29"); a("v_xor_b32 v29, 64, v29"); a(f"v_add_u32 v{vRd[1]}, s48, v29")
    a("v_lshrrev_b32 v29, 2, v27"); a("v_cmp_eq_u32 vcc, v29, v11")
    a("v_lshlrev_b32 v30, 2, v1"); a("v_add_u32 v30, 512, v30")
    a("v_cndmask_b32 v29, v30, v10, vcc"); a(f"v_add_u32 v{vSTW}, s48, v29")
    a("v_and_b32 v29, 1, v1"); a("v_cmp_eq_u32 s[68:69], 1, v29")
    a("v_and_b32 v29, 2, v1"); a("v_cmp_eq_u32 s[86:87], 2, v29")
    a("v_mov_b32 v28, 0x3f803f80")
    for i in range(4): a(f"v_accvgpr_write_b32 {R(ONES+i)}, v28")
    for t in range(5):
        a(f"v_cmp_eq_u32 vcc, {t}, v27"); a("v_cndmask_b32 v29, 0, v28, vcc")
        for e in range(4): a(f"v_accvgpr_write_b32 {R(OH+4*t+e)}, v29")
    a("v_and_b32 v27, 7, v1"); a("v_lshlrev_b32 v27, 4, v27"); a("v_lshl_add_u32 v27, v11, 7, v27")
    for p in range(4):
        a(f"s_xor_b32 s3, s28, {p}"); a("s_mul_i32 s56, s3, 5120"); a(f"v_add_u32 v{vTB[p]}, s56, v8")
        a("s_mul_i32 s56, s3, 2560"); a(f"s_add_u32 s56, s56, {BQ}"); a(f"v_add_u32 v{vTQ[p]}, s56, v8"); a("s_add_u32 s56, s56, 2048"); a(f"v_add_u32 v{vTQ2[p]}, s56, v27")
    a(f"s_mov_b32 s60, {hx(LOG2E)}"); a(f"s_mov_b32 s61, {hx(1e-6)}")
    a(f"s_mov_b32 s63, {hx(1.0/640)}"); a(f"s_mov_b32 s64, {hx(1e-5)}")
    a("s_lshl_b32 s55, s27, 8"); a(f"s_add_u32 s55, s55, {F0}")
    a("v_lshlrev_b32 v26, 2, v1")
    a("s_lshl_b32 s3, s26, 4"); a("s_lshl_b32 s56, s28, 2"); a("s_add_u32 s3, s3, s56"); a("s_add_u32 s3, s3, s55")
    a.wait(vm="TAG")
    a("v_readfirstlane_b32 s76, v6"); a("s_mov_b32 s78, 0")
    a("L_tp1:")
    a("s_cmp_lg_u32 s76, 0"); a("s_cbranch_scc1 L_tp1_ok")
    a("global_load_dword v6, v5, s[22:23] sc1"); a("s_add_u32 s78, s78, 1"); a("s_waitcnt vmcnt(0)")
    a("v_readfirstlane_b32 s76, v6")
    a(f"s_cmp_lt_u32 s78, {POLLMAX}"); a("s_cbranch_scc1 L_tp1")
    a("L_tp1_ok:")
    a("s_mov_b64 exec, 1"); a.vmem("buffer_store_dword v6, v5, s[40:43], s3 offen sc1"); a("s_mov_b64 exec, -1")
    a.stamp("F0pub")
    def rp_fin(nt, RG):
        pitch = nt*32
        a("v_bfe_u32 v28, v1, 2, 2"); a("v_lshl_add_u32 v27, v11, 3, v28"); a("v_and_b32 v28, 3, v1")
        a(f"v_mul_u32_u24 v29, {pitch}, v27"); a("v_add_u32 v29, s71, v29")
        a("v_lshl_add_u32 v30, v28, 3, v29"); a("v_lshl_add_u32 v29, v28, 4, v29")
        for t in range(nt):
            for h in range(2):
                if t == nt - 1: a(f"ds_read_b64_tr_b16 {R(RG + 4*t + 2*h, 2)}, v30 offset:{h*4*pitch + 32*t}")
                else: a(f"ds_read_b64_tr_b16 {R(RG + 4*t + 2*h, 2)}, v29 offset:{h*4*pitch + 64*(t>>1) + 8*(t&1)}")
        if nt == 7:
            a("v_mov_b32 v28, 0x3f803f80")
            for t in (5, 6):
                a(f"v_cmp_eq_u32 vcc, {4*t}, v10")
                for e in range(4): a(f"v_cndmask_b32 v{RG+28+4*(t-5)+e}, 0, v28, vcc")
        a("s_waitcnt lgkmcnt(0)")
        if nt == 7:
            for t in range(7): a(MF(RG+36, RG + 4*t, OH + 4*t if t < 5 else RG+28+4*(t-5), t == 0))
    def rp_store(nt, RG):
        for t in range(nt):
            a(f"buffer_store_dwordx4 {R(RG + 4*t, 4)}, v{8 if t < 4 else 12}, s[40:43], s74 offen offset:{1024*(t&3)} sc1")
        if nt == 7:
            a("v_lshlrev_b32 v29, 4, v11"); a("v_lshl_add_u32 v29, v10, 4, v29"); a("v_cndmask_b32 v29, v2, v29, s[66:67]")
            a("s_lshl_b32 s3, s70, 9"); a(f"s_add_u32 s3, s3, {C1P}")
            a(f"buffer_store_dwordx4 {R(RG+36, 4)}, v29, s[40:43], s3 offen sc1")
        else:
            for _ in range(3): a("buffer_store_dword v5, v2, s[40:43], 0 offen")
    def acc(tt, t): return ACC + (tt*5 + t)*4
    def transp(cx):
        L = []
        for tt in range(2):
            L.append(lambda tt=tt: a.ds(f"ds_write_b128 v{vW[0]}, {R(raw(cx, 2*tt), 4)}"))
            L.append(lambda tt=tt: a.ds(f"ds_write_b128 v{vW[1]}, {R(raw(cx, 2*tt+1), 4)}"))
            L.append(lambda tt=tt: a.ds(f"ds_read_b128 {R(xf(tt, 2*cx), 4)}, v{vRd[0]}"))
            L.append(lambda tt=tt: a.ds(f"ds_read_b128 {R(xf(tt, 2*cx+1), 4)}, v{vRd[1]}", f"T{cx}"))
        return L
    def statm(k):
        L = []
        for tt in range(2):
            L.append(MF(GR + 4*tt, xf(tt, k), xf(tt, k), k == 0)); L.append(MF(RSM + 4*tt, ONES, xf(tt, k), k == 0))
        return L
    def breads1(s):
        j, p = divmod(s, 4); L = []
        for t in range(5):
            L.append(lambda t=t: a.ds(f"ds_read_b128 {R(BF + (s&1)*20 + t*4, 4)}, v{vTB[p]} offset:{(j % 3)*20480 + t*1024}", f"R{s}"))
        if j == 2: L.append(f"v_add_u32 v{vTB[p]}, 61440, v{vTB[p]}")
        return L
    def ldb(j):
        def one(i):
            if i == 0: a(f"s_add_u32 m0, s52, {j*20480}"); a("s_add_u32 s57, s54, m0")
            if i == 4: a(f"s_add_u32 m0, s52, {j*20480 + 4096}")
            a.vmem(f"buffer_load_dwordx4 v{8 if i < 4 else 12}, s[40:43], s57 offen offset:{1024*(i&3)} sc1 lds", f"B{j}")
        return [lambda i=i: one(i) for i in range(5)]
    def ldq():
        def one(i):
            if i % 4 == 0: a(f"s_mul_i32 s3, s28, 13312"); a(f"s_add_u32 m0, s3, {BQ + i*1024}"); a("s_add_u32 s57, s54, m0")
            if i == 11: a("s_cmp_eq_u32 s28, 3"); a("s_cbranch_scc1 L_noq")
            a.a(f"buffer_load_dwordx4 v8, s[40:43], s57 offen offset:{1024*(i&3)} sc1 lds")
            if i < 11: a.vm.append("BQ")
            if i == 12: a("L_noq:")
        return [lambda i=i: one(i) for i in range(11)] + [lambda: (one(11), one(12))]
    def ldt1():
        a("v_lshlrev_b32 v27, 1, v0"); a("s_add_u32 s56, s30, T1_tab-L_pc"); a("s_addc_u32 s57, s31, 0")
        a.vmem(f"global_load_ushort v{vT1}, v27, s[56:57]", "T1")
    def kv_mf(s):
        mf = []
        for t in range(5):
            b = BF + (s&1)*20 + t*4
            for tt in range(2): mf.append(MF(acc(tt, t), xf(tt, s), b, s == 0))
            if s % 4 == 0: mf.append(MF(CSA, OH + 4*t, b, s == 0 and t == 0))
        return mf
    RS = 96; MS = 104; RT = 112; MT = 114; CSV = 116
    URG = 120
    for cx in range(NX0, 6):
        for f in ldx(cx): f()
    a.wait(vm="X0")
    a("s_cmp_eq_u32 s72, 2"); a("s_cbranch_scc1 L_rp_f5")
    rp_fin(7, URG); a("s_branch L_rp_done")
    a("L_rp_f5:"); rp_fin(5, URG)
    a("L_rp_done:")
    for cx in range(10):
        a.wait(vm=f"X{cx}")
        mf = (statm(2*(cx-1)) + statm(2*(cx-1)+1)) if cx else []
        if cx: a.wait(lg=f"T{cx-1}")
        side = transp(cx)
        if cx >= 1 and cx + 5 < 10: side += ldx(cx + 5)
        if cx == 5: side.append(ldt1)
        if mf: a.interleave(mf, side)
        else:
            for f in side: f()
    a.stamp("xdone")
    a("s_mov_b32 s78, 0")
    a("L_h0p:")
    a("buffer_load_dword v16, v26, s[40:43], s55 offen sc1"); a("s_waitcnt vmcnt(0)")
    a("v_cmp_ne_u32 vcc, s76, v16")
    a("s_cbranch_vccz L_h0ok")
    a("s_add_u32 s78, s78, 1"); a(f"s_cmp_lt_u32 s78, {POLLMAX}"); a("s_cbranch_scc1 L_h0p")
    a("L_h0ok:")
    a.vm = []
    a.stamp("F0ok")
    for f in ldb(0) + ldb(1): f()
    a.wait(lg="all")
    for x in statm(18) + statm(19): a(x)
    for tt in range(2):
        for e in range(4): a(f"v_accvgpr_read_b32 v{160+e}, {R(GR + 4*tt + e)}")
        a(f"v_accvgpr_read_b32 v164, {R(RSM + 4*tt)}")
        for x in ["v_cndmask_b32 v160, v160, v161, s[68:69]", "v_cndmask_b32 v162, v162, v163, s[68:69]", "v_mul_f32 v164, s63, v164",
                  "v_cndmask_b32 v160, v160, v162, s[86:87]", "v_mul_f32 v160, s63, v160", "v_fma_f32 v160, -v164, v164, v160",
                  "v_max_f32 v160, 0, v160", "v_add_f32 v160, s64, v160", "v_rsq_f32 v160, v160", "v_mul_f32 v164, v164, v160"]: a(x)
        a.ds(f"ds_write_b32 v{vSTW}, v160 offset:{64*tt}"); a.ds(f"ds_write_b32 v{vSTW}, v164 offset:{128 + 64*tt}")
    a("v_lshlrev_b32 v28, 4, v11"); a("v_add_u32 v28, s48, v28"); a("v_add_u32 v29, s48, v10")
    for tt in range(2):
        a.ds(f"ds_read_b128 {R(RS + 4*tt, 4)}, v28 offset:{64*tt}"); a.ds(f"ds_read_b128 {R(MS + 4*tt, 4)}, v28 offset:{128 + 64*tt}")
        a.ds(f"ds_read_b32 v{RT + tt}, v29 offset:{64*tt}"); a.ds(f"ds_read_b32 v{MT + tt}, v29 offset:{128 + 64*tt}")
    for f in ldb(2): f()
    a.wait(vm="B0")
    a("s_barrier")
    a.stamp("bP")
    for f in breads1(0): a.run(f)
    def pretouch():
        if "sc1h" in OPT:
            a(f"s_add_u32 s3, s58, {G_FL}"); a("s_bfm_b64 exec, 4, 0"); a.vmem("buffer_load_dword v4, v3, s[40:43], s3 offen"); a("s_mov_b64 exec, -1")
            return
        a("s_mul_i32 s3, s27, 21056"); a("s_add_u32 s3, s3, s58"); a("s_mul_i32 s56, s28, 5376"); a("s_add_u32 s3, s3, s56")
        a("s_bfm_b64 exec, 42, 0"); a.vmem("buffer_load_dword v4, v3, s[40:43], s3 offen"); a("s_mov_b64 exec, -1")
    def ustore():
        a("s_cmp_eq_u32 s72, 2"); a("s_cbranch_scc1 L_us5")
        rp_store(7, URG); a("s_branch L_usd")
        a("L_us5:"); rp_store(5, URG)
        a("L_usd:")
        a.vm += ["US"]*8
    ldlist = ldb(3) + ldb(4) + [ustore] + ldq()
    CT = 168
    for s in range(20):
        j, p = divmod(s, 4)
        if p == 3 and j < 4:
            a.wait(vm=f"B{j+1}"); a("s_barrier")
        if s == 18:
            a.wait(lg="CSW"); a("s_barrier")
        a.wait(lg=f"R{s}")
        mf = kv_mf(s)
        side = breads1(s+1) if s < 19 else []
        if s == 17:
            side += ["s_lshl_b32 s3, s28, 9", f"s_add_u32 s3, s3, {CSX}", "v_add_u32 v27, s3, v8"]
            side.append(lambda: (a("s_bfm_b64 exec, 32, 0"), a.ds(f"ds_write_b128 v27, {R(CSA, 4)}", "CSW"), a("s_mov_b64 exec, -1")))
        if s == 18:
            side += ["v_lshlrev_b32 v27, 2, v10", f"v_add_u32 v27, {CSX}, v27"]
            for w in range(4):
                side.append(lambda w=w: a.ds(f"ds_read_b128 {R(CT + 4*w, 4)}, v27 offset:{512*w}"))
                side.append(lambda w=w: a.ds(f"ds_read_b32 v{CT + 16 + w}, v27 offset:{512*w + 256}", "CSR"))
        if s == 19:
            side.append(lambda: a.wait(lg="CSR"))
            for e in range(4):
                side += [f"v_add_f32 v{CT+e}, v{CT+e}, v{CT+4+e}", f"v_add_f32 v{CT+8+e}, v{CT+8+e}, v{CT+12+e}", f"v_add_f32 v{CT+20+e}, v{CT+e}, v{CT+8+e}"]
            side += [f"v_add_f32 v{CT+16}, v{CT+16}, v{CT+17}", f"v_add_f32 v{CT+18}, v{CT+18}, v{CT+19}", f"v_add_f32 v{CT+24}, v{CT+16}, v{CT+18}"]
        if s < 17:
            q = (len(ldlist) + 16 - s)//(17 - s); side += ldlist[:q]; ldlist = ldlist[q:]
        a.interleave(mf, side)
    CSV = CT + 20
    a.stamp("kvend")
    OP = 196
    for t in range(5):
        for tt in range(2):
            for r_ in range(4):
                v_ = f"v{acc(tt, t) + r_}"
                a(f"v_mul_f32 {t0}, v{MS + 4*tt + r_}, v{CSV + t}")
                a(f"v_fma_f32 {v_}, {v_}, v{RS + 4*tt + r_}, -{t0}")
                if t < 2: phi(a, v_, t1, t2)
                elif t == 2:
                    a(f"v_mov_b32 {t3}, {v_}"); phi(a, t3, t1, t2); a(f"v_cndmask_b32 {v_}, {v_}, {t3}, s[66:67]")
            for h in range(2):
                a(f"v_cvt_pk_bf16_f32 v{OP + 4*t + 2*tt + h}, v{acc(tt, t) + 2*h}, v{acc(tt, t) + 2*h + 1}")
    KVD = 32
    for p, (ta, tb) in enumerate(PAIRS):
        a(MF(KVD + 4*p, OP + 4*ta, ONES if tb < 0 else OP + 4*tb, True))
    a("s_mul_i32 s3, s28, 10240"); a("v_add_u32 v27, s3, v8")
    for p in range(10): a(f"ds_write_b128 v27, {R(KVD + 4*p, 4)} offset:{1024*p}")
    a.wait(lg="all")
    a("s_barrier")
    for w in range(4): a(f"ds_read_b128 {R(224 + 4*w, 4)}, v{vT1} offset:{10240*w}")
    a("s_lshl_b32 s3, s27, 4"); a("s_add_u32 s3, s3, s26"); a("s_lshl_b32 s3, s3, 12"); a(f"s_add_u32 s3, s3, {PART}")
    a("s_getreg_b32 s77, hwreg(HW_REG_XCC_ID)"); a("s_and_b32 s77, s77, 7"); a("s_or_b32 s77, s77, s76")
    a("v_cmp_gt_u32 vcc, 216, v0"); a("v_cndmask_b32 v9, v2, v9, vcc")
    a("s_waitcnt lgkmcnt(0)")
    for e in range(4):
        a(f"v_add_f32 v{224+e}, v{224+e}, v{228+e}"); a(f"v_add_f32 v{232+e}, v{232+e}, v{236+e}")
    for e in range(4): a(f"v_add_f32 v{224+e}, v{224+e}, v{232+e}")
    a.vmem(f"buffer_store_dwordx4 v[224:227], v9, s[40:43], s3 offen sc1")
    a("s_lshr_b32 s48, s27, 3"); a("s_and_b32 s49, s27, 7")
    a("v_lshrrev_b32 v13, 1, v11"); a("v_lshlrev_b32 v13, 8, v13"); a("v_lshl_add_u32 v13, v10, 2, v13")
    a("v_and_b32 v28, 1, v11"); a("v_lshl_add_u32 v13, v28, 3, v13")
    a("v_mul_u32_u24 v14, 320, v10"); a("v_lshl_add_u32 v15, v11, 3, v14"); a("v_lshl_add_u32 v14, v11, 4, v14")
    a("s_lshl_b32 s50, s48, 2"); a("s_add_u32 s50, s50, s28")
    a("s_lshl_b32 s3, s26, 3"); a("s_add_u32 s3, s3, s50"); a("s_mul_i32 s51, s3, 20480"); a("s_mul_i32 s3, s49, 160"); a("s_add_u32 s51, s51, s3")
    a("s_mul_i32 s53, s27, 27"); a("s_lshr_b32 s53, s53, 2")
    a("s_mul_i32 s3, s49, 20"); a("s_add_u32 s3, s3, s28"); a("s_mul_i32 s54, s3, 5120"); a(f"s_add_u32 s54, s54, {WOP}")
    a("s_mul_i32 s55, s27, 143360"); a(f"s_add_u32 s55, s55, {W1P}")
    srd(a, 36, 14, 3456)
    a("v_lshlrev_b32 v23, 4, v11"); a("v_lshl_add_u32 v26, v10, 4, v23")
    a("s_lshl_b32 s3, s27, 7"); a("s_lshl_b32 s56, s26, 7"); a("s_add_u32 s56, s56, 2048")
    a("v_mov_b32 v27, s3"); a("v_xor_b32 v29, 1024, v27"); a("v_cndmask_b32 v27, v29, v27, s[90:91]")
    a("v_mov_b32 v28, s56"); a("v_cndmask_b32 v17, v27, v28, s[88:89]"); a("v_add_u32 v17, v17, v10")
    a.wait(vm="all")
    a("s_barrier")
    a.stamp("b7")
    a("s_cmp_lg_u32 s28, 0"); a("s_cbranch_scc1 L_nopub1")
    a("s_lshl_b32 s3, s27, 7"); a("s_lshl_b32 s56, s26, 2"); a("s_add_u32 s3, s3, s56"); a(f"s_add_u32 s3, s3, {F1}")
    a("s_lshl_b32 s57, s26, 7"); a("s_lshl_b32 s56, s27, 2"); a("s_add_u32 s57, s57, s56"); a(f"s_add_u32 s57, s57, {F1R}")
    a("v_mov_b32 v27, s77")
    a("s_mov_b64 exec, 1")
    a("buffer_store_dword v27, v5, s[40:43], s3 offen sc1"); a("buffer_store_dword v27, v5, s[40:43], s57 offen sc1")
    a("s_mov_b64 exec, -1")
    a("L_nopub1:")
    FB3 = 156; RES = 116; C1R = 126; T2R = 146
    B1A = A0 + 204
    W1T = A0 + 100
    def ldwo(n, t):
        a.vmem(f"buffer_load_dwordx4 {R(FB3 + (n*5+t)*4, 4)}, v{8 if t < 4 else 12}, s[40:43], s54 offen offset:{1024*(t&3)} sc1", "WO")
        if t == 4: a("s_add_u32 s54, s54, 20480")
    def w1dma(i):
        a(f"s_mul_i32 s98, s28, {24*1024}"); a(f"s_add_u32 m0, s98, {i*1024}"); a("s_add_u32 s98, s55, m0")
        a.vmem(f"buffer_load_dwordx4 v8, s[40:43], s98 offen sc1 lds", "W1")
    def w1tail(i):
        a(f"s_mul_i32 s98, s28, {11*1024}"); a(f"s_add_u32 s98, s98, {(96+i)*1024}"); a("s_add_u32 s98, s55, s98")
        a.vmem(f"buffer_load_dwordx4 {R(W1T + 4*i, 4)}, v8, s[40:43], s98 offen sc1", "W1")
    def ldsmall():
        a("v_lshlrev_b32 v31, 5, v1"); a("s_add_u32 s98, s30, T2_tab-L_pc"); a("s_addc_u32 s99, s31, 0")
        a.vmem(f"global_load_dwordx4 {R(T2R, 4)}, v31, s[98:99]"); a.vmem(f"global_load_dwordx2 {R(T2R+4, 2)}, v31, s[98:99] offset:16")
    def ldres(q):
        if q == 0: a.vmem(f"buffer_load_dwordx4 {R(RES, 4)}, v14, s[32:35], s51 offen")
        if q == 1: a.vmem(f"buffer_load_dwordx4 {R(RES+4, 4)}, v14, s[32:35], s51 offen offset:64")
        if q == 2: a.vmem(f"buffer_load_dwordx2 {R(RES+8, 2)}, v15, s[32:35], s51 offen offset:128")
    def ldb1():
        a("v_lshlrev_b32 v31, 3, v11"); a("s_lshl_b32 s98, s53, 5")
        for p in range(3): a.vmem(f"buffer_load_dwordx4 {R(B1A + 4*p, 4)}, v23, s[36:39], s98 offen offset:{64*p}")
        a.vmem(f"buffer_load_dwordx2 {R(B1A + 12, 2)}, v31, s[36:39], s98 offen offset:192")
    def ldc1():
        a("s_mul_i32 s98, s27, 20"); a("s_mul_i32 s99, s28, 5"); a("s_add_u32 s98, s98, s99"); a("s_lshl_b32 s98, s98, 9"); a(f"s_add_u32 s98, s98, {C1P}")
        a("s_mov_b64 exec, s[66:67]")
        for n in range(5): a.vmem(f"buffer_load_dwordx4 {R(C1R + 4*n, 4)}, v26, s[40:43], s98 offen offset:{512*n} sc1", "C1")
        a("s_mov_b64 exec, -1")
    def hidtouch():
        a("s_mul_i32 s98, s27, 27648"); a("s_add_u32 s98, s98, s58"); a(f"s_add_u32 s98, s98, {G_HID}"); a("s_mul_i32 s99, s28, 6912"); a("s_add_u32 s98, s98, s99")
        a("s_bfm_b64 exec, 54, 0"); a.vmem("buffer_load_dword v4, v3, s[40:43], s98 offen"); a("s_mov_b64 exec, -1")
    pretouch(); ldsmall()
    free_q = [lambda q=q: ldres(q) for q in range(3)] + [ldb1]
    dep_q = [lambda n=n, t=t: ldwo(n, t) for n in range(5) for t in range(5)] + [ldc1] + [lambda i=i: w1dma(i) for i in range(24)]
    a.bgq = free_q
    QA = 32
    def qreads(s):
        j, p = divmod(s, 4)
        return [lambda t=t: a.ds(f"ds_read_b128 {R(BF + (s&1)*20 + t*4, 4)}, v{vTQ[p] if t < 2 else vTQ2[p]} offset:{j*10240 + (t&1)*1024}", f"Q{s}") for t in range(3)]
    for f in qreads(0): f()
    a(f"s_mov_b32 s56, {F1}")
    QSTOP = P("QSTOP", 16)
    for s in range(20):
        j, p = divmod(s, 4)
        if s == 18: a.wait(lg="CQW"); a("s_barrier")
        a.wait(lg=f"Q{s}")
        mf = []
        for t in range(3):
            b = BF + (s&1)*20 + t*4
            for tt in range(2): mf.append(MF(QA + (tt*3+t)*4, b, xf(tt, s), s == 0))
            if p == 0: mf.append(MF(CSQ, b, OH + 4*t, s == 0 and t == 0))
        side = qreads(s+1) if s < 19 else []
        if s < QSTOP: side.append(lambda: a.bg(1))
        if s == 17:
            side.append(lambda: a.vmem("buffer_load_dword v16, v17, s[40:43], s56 offen sc1", "POLL1"))
            side += ["s_lshl_b32 s3, s28, 9", f"s_add_u32 s3, s3, {CSX}", "v_add_u32 v27, s3, v26"]
            side.append(lambda: (a("s_mov_b64 exec, s[66:67]"), a.ds(f"ds_write_b128 v27, {R(CSQ, 4)}", "CQW"), a("s_mov_b64 exec, -1")))
        if s == 18:
            side += [f"v_add_u32 v30, {CSX}, v23"]
            for w, base in ((0, 56), (1, 68), (2, 96)):
                for t in range(3): side.append(lambda w=w, t=t, base=base: a.ds(f"ds_read_b128 {R(base + 4*t, 4)}, v30 offset:{512*w + 64*t}", "CQR"))
        if s == 19:
            side.append(lambda: a.wait(lg="CQR"))
            for x in range(12): side.append(f"v_add_f32 v{56+x}, v{56+x}, v{68+x}")
            for t in range(3): side.append(lambda t=t: a.ds(f"ds_read_b128 {R(68 + 4*t, 4)}, v30 offset:{1536 + 64*t}", "CQR"))
        a.interleave(mf, side)
    a.stamp("qend")
    a.wait(vm="POLL1")
    a("s_mov_b32 s78, 0")
    a("L_h1p:")
    a("v_and_b32 v28, 0xfffffff8, v16"); a("v_cmp_ne_u32 vcc, s76, v28")
    a("s_cbranch_vccz L_h1ok")
    a("s_add_u32 s78, s78, 1"); a(f"s_cmp_ge_u32 s78, {POLLMAX}"); a("s_cbranch_scc1 L_h1ok")
    a("buffer_load_dword v16, v17, s[40:43], s56 offen sc1"); a("s_waitcnt vmcnt(0)")
    a("s_branch L_h1p")
    a("L_h1ok:")
    a.stamp("h1ok")
    a.vm = []
    a("v_cmp_ne_u32 vcc, s77, v16"); a("s_and_b64 vcc, vcc, s[88:89]"); a("s_cselect_b32 s79, 0, 1")
    if os.environ.get("FORCESLOW"): a("s_mov_b32 s79, 0")
    P0 = A0
    a("s_lshl_b32 s3, s27, 16"); a(f"s_add_u32 s3, s3, {PART}")
    for r_ in range(16):
        a.vmem(f"buffer_load_dwordx4 {R(P0 + 4*r_, 4)}, v9, s[40:43], s3 offen sc1", f"P{r_}")
        a("s_add_u32 s3, s3, 4096")
    a.bgq += dep_q
    a.bgq += [lambda i=i: w1tail(i) for i in range(11)]
    for x in range(12): a(f"v_add_f32 v{56+x}, v{56+x}, v{96+x}")
    a.wait(lg="all")
    for x in range(12): a(f"v_add_f32 v{56+x}, v{56+x}, v{68+x}")
    PQR = 96
    EBG = P("EBG", 1)
    for tt in range(2):
        for t in range(3):
            for r_ in range(4):
                v_ = f"v{QA + (tt*3+t)*4 + r_}"
                a(f"v_mul_f32 {t0}, v{MT + tt}, v{56 + 4*t + r_}")
                a(f"v_fma_f32 {v_}, {v_}, v{RT + tt}, -{t0}")
                phi(a, v_, t1, t2)
            for h in range(2):
                d = f"v{PQR + tt*6 + t*2 + h}"
                a(f"v_cvt_pk_bf16_f32 {d}, v{QA + (tt*3+t)*4 + 2*h}, v{QA + (tt*3+t)*4 + 2*h + 1}")
                if t == 2: a(f"v_cndmask_b32 {d}, 0, {d}, s[90:91]")
            a.bg(EBG)
    OSC = SCR
    TA = 56
    for s_ in range(12):
        src = T2R + s_//2
        if s_ & 1: a(f"v_lshrrev_b32 v{TA+s_}, 16, v{src}")
        else: a(f"v_and_b32 v{TA+s_}, 0xffff, v{src}")
        a(f"v_add_u32 v{TA+s_}, {OSC}, v{TA+s_}")
    for r_ in range(16):
        if r_ % 4 == 0: a.wait(vm=f"P{r_+3}")
        for e in range(4): a(f"v_accvgpr_read_b32 v{(32 if r_ == 0 else 36)+e}, {R(P0+4*r_+e)}")
        if r_:
            for e in range(4): a(f"v_add_f32 v{32+e}, v{32+e}, v{36+e}")
        if r_ % 4 == 3: a.bg(EBG)
    a("v_cvt_pk_bf16_f32 v18, v32, v33"); a("v_cvt_pk_bf16_f32 v19, v34, v35")
    a("v_cmp_gt_u32 vcc, 210, v0")
    a("v_cndmask_b32 v18, 0, v18, vcc"); a("v_cndmask_b32 v19, 0, v19, vcc")
    a("v_lshlrev_b32 v27, 3, v0"); a(f"v_add_u32 v27, {OSC}, v27")
    a("ds_write_b64 v27, v[18:19]")
    a("s_waitcnt lgkmcnt(0)")
    a("s_barrier")
    a.stamp("b9")
    KF = A0 + 64
    for E in range(4):
        for ta in range(3): a(f"ds_read_b64 {R(KF + 8*E + 2*ta, 2)}, v{TA + 3*E + ta}")
    a("s_mul_i32 s3, s28, 40960"); a("s_mul_i32 s56, s27, 1280"); a("s_add_u32 s3, s3, s56"); a("s_add_u32 s3, s3, s58")
    a("v_lshlrev_b32 v27, 2, v10"); a("v_lshl_add_u32 v27, v11, 3, v27")
    a("v_cndmask_b32 v27, v2, v27, s[90:91]")
    a("s_waitcnt lgkmcnt(0)")
    D = 32
    for tt in range(2):
        for E in (3, 0, 1, 2):
            d = R(D + (tt*4+E)*4, 4)
            a(f"v_mfma_f32_16x16x32_bf16 {d}, {R(KF + 8*E, 4)}, {R(PQR + 6*tt, 4)}, 0")
    for tt in range(2):
        for E in (3, 0, 1, 2):
            d = R(D + (tt*4+E)*4, 4)
            a(f"v_mfma_f32_16x16x16_bf16 {d}, {R(KF + 8*E + 4, 2)}, {R(PQR + 6*tt + 4, 2)}, {d}")
    for tt in range(2):
        z = D + (tt*4+3)*4
        a(f"v_add_f32 v20, s61, v{z}"); a(f"v_add_f32 v21, s61, v{z+1}")
        a("v_rcp_f32 v20, v20"); a("v_rcp_f32 v21, v21")
        a("v_cndmask_b32 v22, v21, v20, s[92:93]"); a("v_cndmask_b32 v28, v21, v20, s[90:91]")
        ob = 64 + 8*tt
        for E, rc in ((0, 22), (1, 28), (2, 21)):
            d = D + (tt*4+E)*4
            for e in range(4): a(f"v_mul_f32 v{d+e}, v{d+e}, v{rc}")
            a(f"v_cvt_pk_bf16_f32 v{ob + 2*E}, v{d}, v{d+1}"); a(f"v_cvt_pk_bf16_f32 v{ob + 2*E + 1}, v{d+2}, v{d+3}")
        a.vmem(f"buffer_store_dwordx4 {R(ob, 4)}, v8, s[40:43], s3 offen{HS}", "ST")
        a.vmem(f"buffer_store_dwordx2 {R(ob + 4, 2)}, v27, s[40:43], s3 offen offset:1024{HS}", "ST")
        a("s_add_u32 s3, s3, 20480")

    def hop(n, before, after_pub, post=0):
        before()
        a(f"s_add_u32 s59, s58, {G_FL + 128*n}")
        a("s_lshl_b32 s3, s27, 2"); a("s_add_u32 s3, s3, s59")
        a.bg(post)
        a.wait(vm="ST")
        a("s_barrier")
        a.stamp(f"hop{n}a")
        a("s_cmp_lg_u32 s28, 0"); a(f"s_cbranch_scc1 L_g{n}np")
        a("s_mov_b64 exec, 1")
        a("s_cmp_eq_u32 s79, 0"); a(f"s_cbranch_scc1 L_g{n}slow")
        a("buffer_store_dword v6, v5, s[40:43], s3 offen")
        a(f"s_branch L_g{n}pd")
        a(f"L_g{n}slow:")
        a("buffer_wbl2 sc1"); a("s_waitcnt vmcnt(0)")
        a("buffer_store_dword v6, v5, s[40:43], s3 offen sc1")
        a(f"L_g{n}pd:")
        a("s_mov_b64 exec, -1")
        a(f"L_g{n}np:")
        after_pub()
        a("s_cmp_lg_u32 s28, 0"); a(f"s_cbranch_scc1 L_g{n}j")
        a("s_mov_b32 s78, 0")
        a(f"L_g{n}p:")
        a("buffer_load_dword v27, v10, s[40:43], s59 offen sc1")
        a("s_add_u32 s78, s78, 1")
        a("s_waitcnt vmcnt(0)")
        a("v_cmp_ne_u32 vcc, s76, v27")
        a(f"s_cmp_ge_u32 s78, {POLLMAX}"); a(f"s_cbranch_scc1 L_g{n}x")
        a(f"s_cbranch_vccnz L_g{n}p")
        a(f"L_g{n}x:")
        a("s_cmp_lg_u32 s79, 0"); a(f"s_cbranch_scc1 L_g{n}j")
        a("buffer_inv sc1"); a("s_waitcnt vmcnt(0)")
        a(f"L_g{n}j:")
        a("s_barrier")
        a.stamp(f"hop{n}b")
    def a_off(NK, goff):
        for m in range(4):
            a(f"s_add_u32 s3, s28, {m}"); a("s_and_b32 s3, s3, 3"); a("s_lshl_b32 s57, s48, 2"); a("s_add_u32 s3, s3, s57")
            a(f"s_mul_i32 s3, s3, {NK}"); a("s_add_u32 s3, s3, s28"); a("s_lshl_b32 s3, s3, 10"); a("s_add_u32 s3, s3, s58"); a(f"s_add_u32 s{80+m}, s3, {goff}")
    def flush_wo():
        while any(True for _ in [0]) and a.bgq and len(a.bgq) > 24 + 11 + 1: a.bg(1)
    hop(0, lambda: a_off(20, G_O), lambda: None, post=P("POST0", 6))
    flush_wo()
    ACC = 32 ; FA3 = A0
    for n in range(5):
        for m in range(4):
            a.vmem(f"buffer_load_dwordx4 {R(FA3 + (n*4+m)*4, 4)}, v8, s[40:43], s{80+m} offen sc1", f"A{n}")
            a(f"s_add_u32 s{80+m}, s{80+m}, 4096")
    if "sc1hid" not in OPT: a.bgq.insert(0, hidtouch)
    RED = 102400; CSL = 98304
    S3BG = P("S3BG", 3)
    for n in range(5):
        a.wait(vm=f"A{n}")
        mf = [MF(ACC + (m*5+t)*4, FB3 + (n*5+t)*4, FA3 + (n*4+m)*4, n == 0) for m in range(4) for t in range(5)]
        a.interleave(mf, [lambda: a.bg(1)]*S3BG)
    a.stamp("s3end")
    def reduce_epi(which, BIA=None, nbg=0):
        for m in range(1, 4):
            a(f"s_add_u32 s3, s28, {m}"); a("s_and_b32 s3, s3, 3"); a("s_mul_i32 s3, s3, 15360"); a(f"s_add_u32 s3, s3, {RED}")
            a(f"v_add_u32 v{16+m}, s3, v8")
        for m in range(1, 4):
            for t in range(5): a(f"ds_write_b128 v{16+m}, {R(ACC + (m*5+t)*4, 4)} offset:{(m-1)*5120 + t*1024}")
            a.bg(nbg)
        a("s_mul_i32 s3, s28, 15360"); a(f"s_add_u32 s3, s3, {RED}"); a("v_add_u32 v16, s3, v8")
        U = 27
        for t in range(5):
            for e in range(4):
                for src0 in ([RES] if which == 3 else [RES, BIA]):
                    src = src0 + 2*t + (e >> 1)
                    if e & 1: a(f"v_and_b32 v{U+e}, 0xffff0000, v{src}")
                    else: a(f"v_lshlrev_b32 v{U+e}, 16, v{src}")
                    a(f"v_add_f32 v{ACC+4*t+e}, v{ACC+4*t+e}, v{U+e}")
        if which == 3:
            a.wait(vm="C1")
            for e in range(4):
                a(f"v_add_f32 v{C1R+e}, v{C1R+e}, v{C1R+4+e}"); a(f"v_add_f32 v{C1R+8+e}, v{C1R+8+e}, v{C1R+12+e}")
                a(f"v_add_f32 v{C1R+e}, v{C1R+e}, v{C1R+16+e}"); a(f"v_add_f32 v{C1R+e}, v{C1R+e}, v{C1R+8+e}")
            a("s_lshl_b32 s3, s28, 9"); a(f"s_add_u32 s3, s3, {CSL}"); a("v_add_u32 v27, s3, v26")
            a("s_mov_b64 exec, s[66:67]"); a(f"ds_write_b128 v27, {R(C1R, 4)}"); a("s_mov_b64 exec, -1")
        a.bg(nbg)
        a("s_waitcnt lgkmcnt(0)")
        a("s_barrier")
        for t in range(5):
            for m in range(1, 4): a(f"ds_read_b128 {R(ACC + (m*5+t)*4, 4)}, v16 offset:{(m-1)*5120 + t*1024}")
        for t in range(5):
            a(f"s_waitcnt lgkmcnt({12 - 3*t})")
            for e in range(4):
                x0 = ACC + 4*t + e
                a(f"v_add_f32 v{x0+20}, v{x0+20}, v{x0+40}"); a(f"v_add_f32 v{x0}, v{x0}, v{x0+60}"); a(f"v_add_f32 v{x0}, v{x0}, v{x0+20}")
            for h in range(2): a(f"v_cvt_pk_bf16_f32 v{RES+2*t+h}, v{ACC+4*t+2*h}, v{ACC+4*t+2*h+1}")
    if "C1" not in a.vm: a.vm.insert(0, "C1")
    reduce_epi(3, nbg=P("R3BG", 2))
    a("s_mul_i32 s57, s50, 20480"); a("s_mul_i32 s3, s49, 2560"); a("s_add_u32 s57, s57, s3"); a("s_add_u32 s57, s57, s58"); a(f"s_add_u32 s57, s57, {G_H}")
    a.vmem(f"buffer_store_dwordx4 {R(RES, 4)}, v8, s[40:43], s57 offen{HS}")
    a.vmem(f"buffer_store_dwordx4 {R(RES+4, 4)}, v8, s[40:43], s57 offen offset:1024{HS}")
    a.vmem(f"buffer_store_dwordx2 {R(RES+8, 2)}, v13, s[40:43], s57 offen offset:2048{HS}")
    a(f"v_add_f32 v20, v{ACC}, v{ACC+1}"); a(f"v_mul_f32 v21, v{ACC}, v{ACC}"); a(f"v_fmac_f32 v21, v{ACC+1}, v{ACC+1}")
    for x in range(2, 20):
        a(f"v_add_f32 v20, v20, v{ACC+x}"); a(f"v_fmac_f32 v21, v{ACC+x}, v{ACC+x}")
    def red_g(regs, tmp):
        for r_ in regs:
            a(f"v_mov_b32 {tmp}, {r_}"); a(f"v_permlane32_swap_b32 {r_}, {tmp}"); a(f"v_add_f32 {r_}, {r_}, {tmp}")
            a(f"v_mov_b32 {tmp}, {r_}"); a(f"v_permlane16_swap_b32 {r_}, {tmp}"); a(f"v_add_f32 {r_}, {r_}, {tmp}")
    red_g(["v20", "v21"], "v22")
    a("v_lshlrev_b32 v22, 1, v10")
    a("s_lshl_b32 s57, s50, 10"); a("s_lshl_b32 s3, s49, 7"); a("s_add_u32 s57, s57, s3"); a("s_add_u32 s57, s57, s58"); a(f"s_add_u32 s57, s57, {G_ST}")
    a.vmem(f"buffer_store_dwordx2 v[20:21], v22, s[40:43], s57 offen{HS}", "ST")
    CS = 128
    def bef3():
        a(f"v_add_u32 v18, {CSL}, v23")
        for w, base in ((0, CS), (1, 156), (2, 184), (3, 212)):
            for t in range(7): a(f"ds_read_b128 {R(base + 4*t, 4)}, v18 offset:{512*w + 64*t}")
        a("s_mul_i32 s3, s28, 40960"); a("s_add_u32 s3, s3, s58"); a(f"s_add_u32 s80, s3, {G_H}"); a("s_add_u32 s81, s80, 20480")
        a("s_lshl_b32 s82, s28, 11"); a("s_add_u32 s82, s82, s58"); a(f"s_add_u32 s82, s82, {G_ST}")
        a("v_lshlrev_b32 v19, 8, v11"); a("v_lshl_add_u32 v19, v10, 1, v19")
        a("v_add_u32 v16, 57344, v8"); a("v_add_u32 v17, 114688, v8")
        a(f"s_mul_i32 s3, s28, {11*1024}"); a(f"s_add_u32 s3, s3, {96*1024}"); a("v_add_u32 v18, s3, v8")
        a("s_waitcnt lgkmcnt(0)")
    def aft3():
        a.wait(vm="all")
        for i in range(11): a(f"ds_write_b128 v18, {R(W1T + 4*i, 4)} offset:{1024*i}")
        for x in range(28):
            a(f"v_add_f32 v{CS+x}, v{CS+x}, v{156+x}"); a(f"v_add_f32 v{184+x}, v{184+x}, v{212+x}"); a(f"v_add_f32 v{CS+x}, v{CS+x}, v{184+x}")
        a("s_waitcnt lgkmcnt(0)")
    print("bg left at hop3:", len(a.bgq), file=sys.stderr)
    hop(1, bef3, aft3, post=len(a.bgq))
    a.vm = []
    HF = A0; BF = A0 + 160
    B1A2 = B1A
    for x in range(14): a(f"v_accvgpr_mov_b32 {R(A0 + 240 + x)}, {R(B1A + x)}")
    B1A = A0 + 240
    def hf(tt, k): return HF + (k*2 + tt)*4
    def ldh(k):
        def one(tt):
            a.vmem(f"buffer_load_dwordx4 {R(hf(tt, k), 4)}, v8, s[40:43], s{80+tt} offen offset:{1024*(k&3)} sc1", f"H{k}")
            if (k & 3) == 3: a(f"s_add_u32 s{80+tt}, s{80+tt}, 4096")
        return [lambda tt=tt: one(tt) for tt in range(2)]
    PRE = P("PRE4", 5)
    for k in range(PRE):
        for f in ldh(k): f()
    for tt in range(2):
        for q in range(2):
            a.vmem(f"buffer_load_dwordx2 {R(88 + 4*tt + 2*q, 2)}, v19, s[40:43], s82 offen offset:{1024*tt + 128*q} sc1", "STAT")
    def breads(k):
        return [lambda t=t: a.ds(f"ds_read_b128 {R(BF + (k&1)*28 + 4*t, 4)}, v{[8, 16, 17][k >> 3]} offset:{(k & 7)*7168 + 1024*t}", f"BR{k}") for t in range(7)]
    for f in breads(0): f()
    vS = [20, 21]; vQ = [22, 25]
    slots = [156 + 4*i for i in range(16)] + [A0 + 216 + 4*i for i in range(6)] + [HF + 4*i for i in range(40)] + [BF + 4*i for i in range(8)]
    def fb(n, t): return slots[n*5 + t]
    a("s_mul_i32 s3, s49, 54"); a("s_add_u32 s3, s3, s28"); a("s_mul_i32 s54, s3, 5120"); a(f"s_add_u32 s54, s54, {W2P}")
    def ldw2(n, t):
        if n == 13 and t == 0:
            a("s_cmp_ge_u32 s28, 2"); a("s_cselect_b32 s98, 0x40000000, 0"); a("s_add_u32 s54, s54, s98")
        a.vmem(f"buffer_load_dwordx4 {R(fb(n, t), 4)}, v{8 if t < 4 else 12}, s[40:43], s54 offen offset:{1024*(t&3)} sc1", f"W2_{n}")
        if t == 4: a("s_add_u32 s54, s54, 20480")
    w2q = [(n, t) for n in range(14) for t in range(5)]
    hq = list(range(PRE, 20))
    HRATE = P("HRATE", 2); W2RATE = P("W2RATE", 2)
    krf = None
    for k in range(20):
        a.wait(vm=f"H{k}", lg=f"BR{k}")
        side = breads(k+1) if k < 19 else []
        for _ in range(HRATE):
            if hq:
                kk = hq.pop(0); side += ldh(kk)
                if not hq: krf = k
        if k == PRE + 1:
            for tt in range(2):
                side.append(f"v_add_f32 v{vS[tt]}, v{88+4*tt}, v{90+4*tt}"); side.append(f"v_add_f32 v{vQ[tt]}, v{89+4*tt}, v{91+4*tt}")
            side.append(lambda: red_g([f"v{x}" for x in vS + vQ], "v24"))
        if k == PRE + 2:
            for tt in range(2):
                s_, q_ = f"v{vS[tt]}", f"v{vQ[tt]}"
                side += [f"v_mul_f32 {s_}, s63, {s_}", f"v_mul_f32 {q_}, s63, {q_}", f"v_fma_f32 {q_}, -{s_}, {s_}, {q_}", f"v_max_f32 {q_}, 0, {q_}",
                         f"v_add_f32 v24, s64, {q_}", f"v_fma_f32 {q_}, v24, s64, {q_}", f"v_rsq_f32 {q_}, {q_}", f"v_mul_f32 {s_}, {s_}, {q_}"]
        if k >= 12:
            x = 2*(k - 12)
            for y in (x, x + 1):
                if y < 14:
                    side += [f"v_accvgpr_read_b32 v27, {R(B1A + y)}", f"v_lshlrev_b32 v{220+2*y}, 16, v27", f"v_and_b32 v{220+2*y+1}, 0xffff0000, v27"]
        if krf is not None and k >= krf + 1:
            for _ in range(W2RATE):
                n, t = w2q[0]
                if n*5 + t < 22 + 2*k:
                    w2q.pop(0); side.append(lambda n=n, t=t: ldw2(n, t))
        mf = [MF(ACC + (tt*7+t)*4, BF + (k&1)*28 + 4*t, hf(tt, k), k == 0) for t in range(7) for tt in range(2)]
        a.interleave(mf, side)
    a.stamp("s4end")
    c1 = -2.0*LOG2E*0.7978845608028654
    c2 = c1*0.044715
    a(f"s_mov_b32 s60, {hx(c1)}"); a(f"s_mov_b32 s61, {hx(c2)}")
    a("v_mov_b32 v24, s60")
    a("s_mul_i32 s56, s28, 110592"); a("s_lshl_b32 s3, s53, 9"); a("s_add_u32 s56, s56, s3"); a("s_add_u32 s56, s56, s58"); a(f"s_add_u32 s56, s56, {G_HID}")
    B1U = 220
    PK = 88
    W2EPI = P("W2EPI", 2); W2STOP = P("W2STOP", 11)
    for tt in range(2):
        for t in range(7):
            for e in range(4):
                v_ = f"v{ACC + (tt*7+t)*4 + e}"; ta = f"v{248+e}"
                a(f"v_fma_f32 {ta}, -v{vS[tt]}, v{CS+4*t+e}, v{B1U+4*t+e}")
                a(f"v_fma_f32 {v_}, {v_}, v{vQ[tt]}, {ta}")
                a(f"v_mul_f32 {ta}, {v_}, {v_}")
                a(f"v_fma_f32 {ta}, {ta}, s61, v24")
                a(f"v_mul_f32 {ta}, {ta}, {v_}")
                a(f"v_exp_f32 {ta}, {ta}")
                if e % 2 == 0 and e//2 < W2EPI and w2q and tt*7 + t < W2STOP: ldw2(*w2q.pop(0))
            for e in range(4):
                ta = f"v{248+e}"; a(f"v_add_f32 {ta}, 1.0, {ta}"); a(f"v_rcp_f32 {ta}, {ta}")
            for e in range(4):
                v_ = f"v{ACC + (tt*7+t)*4 + e}"; a(f"v_mul_f32 {v_}, {v_}, v{248+e}")
            for h in range(2):
                x0 = ACC + (tt*7+t)*4 + 2*h
                a(f"v_cvt_pk_bf16_f32 v{PK + tt*14 + 2*t + h}, v{x0}, v{x0+1}")
        for p in range(3): a.vmem(f"buffer_store_dwordx4 {R(PK + tt*14 + 4*p, 4)}, v8, s[40:43], s56 offen offset:{1024*p}{HS2}", "ST")
        a.vmem(f"buffer_store_dwordx2 {R(PK + tt*14 + 12, 2)}, v13, s[40:43], s56 offen offset:3072{HS2}", "ST")
        a("s_add_u32 s56, s56, 55296")
    BIA = 126
    def bef4():
        srd(a, 32, 20, 2621440); srd(a, 36, 18, 1280)
        a_off(54, G_HID)
    npost = min(P("POST2", 6), len(w2q))
    a.bgq = [lambda x=x: ldw2(*x) for x in w2q[:npost]]; w2q = w2q[npost:]
    print("w2 left after hop4:", len(w2q), file=sys.stderr)
    hop(2, bef4, lambda: None, post=npost)
    ar = [136 + 4*i for i in range(5)] + [220 + 4*i for i in range(9)] + [A0 + 192 + 4*i for i in range(6)] + [A0 + 240 + 4*i for i in range(4)]
    NR = 6
    def fa(n, m): return ar[(n % NR)*4 + m]
    def lda5(n):
        def one(m):
            if n == 13 and m == 0:
                a("s_cmp_ge_u32 s28, 2"); a("s_cselect_b32 s3, 0x40000000, 0")
                for q in range(4): a(f"s_add_u32 s{80+q}, s{80+q}, s3")
            a.vmem(f"buffer_load_dwordx4 {R(fa(n, m), 4)}, v8, s[40:43], s{80+m} offen sc1", f"A5_{n}")
            a(f"s_add_u32 s{80+m}, s{80+m}, 4096")
        return [lambda m=m: one(m) for m in range(4)]
    PRE5 = P("PRE5", 3)
    def need_w2(n):
        L = []
        while w2q and w2q[0][0] <= n:
            x = w2q.pop(0); L.append(lambda x=x: ldw2(*x))
        return L
    for n in range(PRE5):
        for f in need_w2(n) + lda5(n): f()
    def ldbia():
        a("v_lshlrev_b32 v28, 3, v11"); a("s_mul_i32 s3, s49, 160")
        a.vmem(f"buffer_load_dwordx4 {R(BIA, 4)}, v23, s[36:39], s3 offen")
        a.vmem(f"buffer_load_dwordx4 {R(BIA+4, 4)}, v23, s[36:39], s3 offen offset:64")
        a.vmem(f"buffer_load_dwordx2 {R(BIA+8, 2)}, v28, s[36:39], s3 offen offset:128")
    nxt = PRE5
    for n in range(14):
        a.wait(vm=f"A5_{n}")
        side = []; cnt = 0
        while nxt < 14 and nxt <= n + NR - 1 and cnt < 2:
            side += need_w2(nxt) + lda5(nxt); nxt += 1; cnt += 1
        if n == 2: side.append(ldbia)
        mf = [MF(ACC + (m*5+t)*4, fb(n, t), fa(n, m), n == 0) for m in range(4) for t in range(5)]
        a.interleave(mf, side)
    a.stamp("s5end")
    reduce_epi(5, BIA)
    a(f"buffer_store_dwordx4 {R(RES, 4)}, v14, s[32:35], s51 offen")
    a(f"buffer_store_dwordx4 {R(RES+4, 4)}, v14, s[32:35], s51 offen offset:64")
    a(f"buffer_store_dwordx2 {R(RES+8, 2)}, v15, s[32:35], s51 offen offset:128")
    a("s_or_b32 s3, s2, s28"); a("s_cmp_lg_u32 s3, 0"); a("s_cbranch_scc1 L_notagclr")
    a("global_store_dword v5, v5, s[22:23] sc1")
    a("L_notagclr:")
    a.stamp("stored")
    if STAMP:
        a("s_waitcnt vmcnt(0)")
        a.stamp("end")
        a("v_writelane_b32 v7, s79, 30")
        a("s_lshl_b32 s3, s2, 2"); a("s_add_u32 s3, s3, s28"); a("s_lshl_b32 s3, s3, 8"); a(f"s_add_u32 s3, s3, {STB}")
        a("v_lshlrev_b32 v27, 2, v1"); a("v_add_u32 v27, s3, v27")
        a("global_store_dword v27, v7, s[24:25]")
        a.a.raw("; STAMPS " + " ".join(a.names))
    a("L_end:")
    a("s_endpgm")
    return a.a

def main(out):
    hdr = open("sequential_preLN__linear_attn_block__mixer_channel_mlp__prompt.s.ref").read().split("\n")
    hdr = [l for l in hdr if l.startswith(";") and "@launch" not in l]
    hdr.append("; @launch grid=(256,1,1) block=(256,1,1) lds=163840")
    a = gen()
    pre = '.amdgcn_target "amdgcn-amd-amdhsa--gfx950"\n.text\n'
    T1, T2 = build_tables()
    a.raw(".p2align 6\nT1_tab:")
    a.raw(".short " + ",".join(map(str, T1)))
    a.raw("T2_tab:")
    for row in T2: a.raw(".short " + ",".join(map(str, row)))
    a.raw(".fill 2048, 4, 0")
    a.raw('.section .rodata,"a"\n.p2align 6')
    a.raw(f""".amdhsa_kernel {NAME}
  .amdhsa_next_free_vgpr 512
  .amdhsa_next_free_sgpr 102
  .amdhsa_accum_offset 256
  .amdhsa_group_segment_fixed_size 0
  .amdhsa_kernarg_size 88
  .amdhsa_user_sgpr_count 2
  .amdhsa_user_sgpr_kernarg_segment_ptr 1
  .amdhsa_system_sgpr_workgroup_id_x 1
.end_amdhsa_kernel""")
    open(out, "w").write("\n".join(hdr) + "\n" + pre + a.finish())

if __name__ == "__main__":
    main(sys.argv[1])
```

```python
import sys, struct, os
from asmdsl import Asm, R, S
from gen1 import build_tables, PAIRS, f2u, hx, divmod_const, srd, LOG2E

NAME = "sequential_preLN__linear_attn_block__mixer_channel_mlp__prompt_kernel"
WOP = 0
W2P = WOP + 8*20*5*1024
W1P = W2P + 8*54*5*1024
C1P = W1P + 16*20*7*1024
WQKV = C1P + 320*512
PART = WQKV + 16*153600
GRP = PART + 256*4096
G_O = 0; G_H = 163840; G_ST = 327680; G_FL = 335872; G_HID = 336896; G_SZ = G_HID + 442368
FLG = GRP + 16*G_SZ
F1 = FLG; F1R = FLG + 8192; F0 = FLG + 10240; FU = FLG + 14336
WS_END = FLG + 20480
A0 = 256
STAMP = int(os.environ.get("STAMP", "0"))
STB = 32 << 20
POLLMAX = 1 << 15
OPT = set(os.environ.get("OPT", "").split(","))
def P(name, d): return int(os.environ.get(name, d))

class G:
    def __init__(self):
        self.a = Asm(); self.vm = []; self.lg = []; self.nst = 0; self.bgq = []; self.names = []
    def __call__(self, t): self.a(t)
    def vmem(self, text, tag=None): self.a(text); self.vm.append(tag)
    def ds(self, text, tag=None): self.a(text); self.lg.append(tag)
    def _n(self, lst, tag, cap):
        idx = max(i for i, t in enumerate(lst) if t == tag)
        return min(len(lst) - 1 - idx, cap)
    def wait(self, vm=None, lg=None):
        s = []
        if vm is not None: s.append(f"vmcnt({0 if vm == 'all' else self._n(self.vm, vm, 63)})")
        if lg is not None: s.append(f"lgkmcnt({0 if lg == 'all' else self._n(self.lg, lg, 15)})")
        self.a("s_waitcnt " + " ".join(s))
        if vm == 'all': self.vm = []
        if lg == 'all': self.lg = []
    def stamp(self, name=""):
        if not STAMP: return
        i = self.nst; self.nst += 1; self.names.append(name)
        assert i < 30
        self.a("s_memtime s[100:101]"); self.a("s_waitcnt lgkmcnt(0)"); self.a(f"v_writelane_b32 v7, s100, {i}")
    def run(self, x): x() if callable(x) else self.a(x)
    def bg(self, n=1):
        for _ in range(n):
            if self.bgq: self.bgq.pop(0)()
    def interleave(self, main, extra, front=()):
        n = len(main); m = len(extra); j = 0; front = list(front)
        for i, x in enumerate(main):
            self.run(x)
            if front:
                self.run(front.pop(0))
                if len(front) >= n - i and front: self.run(front.pop(0))
            while j < m and (j + 1) * n <= (i + 1) * m + (n - 1):
                self.run(extra[j]); j += 1
        for x in front: self.run(x)
        while j < m:
            self.run(extra[j]); j += 1

def MF(d, a_, b_, first): return f"v_mfma_f32_16x16x32_bf16 {R(d,4)}, {R(a_,4)}, {R(b_,4)}, {'0' if first else R(d,4)}"

def phi(a, val, t1, t2):
    a(f"v_mul_f32 {t1}, s60, {val}")
    a(f"v_max_f32 {t2}, 0, {val}")
    a(f"v_exp_f32_e64 {t1}, {t1} clamp")
    a(f"v_add_f32 {t2}, s61, {t2}")
    a(f"v_add_f32 {val}, {t1}, {t2}")

OPT |= {"sc1h", "sc1hid", "notouch", "usfirst"}
def phi4(a, b_, T, sel_mask=None):
    for h in range(2): a(f"v_pk_mul_f32 v[{T+2*h}:{T+2*h+1}], v[{b_+2*h}:{b_+2*h+1}], s[94:95]")
    for e in range(4): a(f"v_max_f32 v{T+4+e}, 0, v{b_+e}")
    for e in range(4): a(f"v_exp_f32_e64 v{T+e}, v{T+e} clamp")
    for h in range(2): a(f"v_pk_add_f32 v[{T+4+2*h}:{T+5+2*h}], v[{T+4+2*h}:{T+5+2*h}], s[96:97]")
    if sel_mask is None:
        for h in range(2): a(f"v_pk_add_f32 v[{b_+2*h}:{b_+2*h+1}], v[{T+2*h}:{T+2*h+1}], v[{T+4+2*h}:{T+5+2*h}]")
    else:
        for h in range(2): a(f"v_pk_add_f32 v[{T+2*h}:{T+2*h+1}], v[{T+2*h}:{T+2*h+1}], v[{T+4+2*h}:{T+5+2*h}]")
        for e in range(4): a(f"v_cndmask_b32 v{b_+e}, v{b_+e}, v{T+e}, {sel_mask}")
HS = " sc1"
HS2 = " sc1"
def gen():
    a = G()
    name = NAME
    NRAW = P("NRAW", 2)
    a.a.raw(f".globl {name}\n.p2align 8\n.type {name},@function\n{name}:")
    a("s_cmp_ge_u32 s2, 256"); a("s_cbranch_scc1 L_end")
    a("s_load_dwordx16 s[4:19], s[0:1], 0")
    a("s_load_dwordx4 s[20:23], s[0:1], 64")
    a("s_load_dwordx2 s[24:25], s[0:1], 80")
    a("s_memrealtime s[76:77]")
    a("s_getpc_b64 s[30:31]")
    a("L_pc:")
    a("v_mov_b32 v7, 0")
    a.stamp("start")
    a("v_lshrrev_b32 v2, 6, v0"); a("v_and_b32 v1, 63, v0")
    a("v_readfirstlane_b32 s28, v2")
    if "m48" in OPT:
        a("s_and_b32 s3, s2, 7"); a("s_lshr_b32 s29, s2, 3")
        a("s_lshr_b32 s26, s3, 1"); a("s_lshl_b32 s26, s26, 2"); a("s_lshr_b32 s27, s29, 3"); a("s_add_u32 s26, s26, s27")
        a("s_and_b32 s3, s3, 1"); a("s_lshl_b32 s3, s3, 2"); a("s_and_b32 s27, s29, 3"); a("s_or_b32 s27, s27, s3")
        a("s_and_b32 s29, s29, 4"); a("s_lshl_b32 s29, s29, 1"); a("s_or_b32 s27, s27, s29")
    else:
        a("s_and_b32 s3, s2, 7"); a("s_lshr_b32 s27, s2, 3"); a("s_lshr_b32 s26, s27, 4"); a("s_lshl_b32 s3, s3, 1")
        a("s_add_u32 s26, s26, s3")
        a("s_and_b32 s27, s27, 15")
    a("v_lshlrev_b32 v3, 7, v1")
    a("s_cmp_lg_u32 s28, 3"); a("s_cbranch_scc1 L_nocp")
    a("s_mul_i32 s3, s27, 13"); a("s_lshr_b32 s3, s3, 6"); a("s_mul_i32 s3, s3, 5"); a("s_sub_u32 s3, s27, s3"); a("s_lshl_b32 s3, s3, 13")
    a("v_add_u32 v27, s3, v3")
    a("global_load_dword v4, v27, s[30:31]")
    a("L_nocp:")
    BQ = 102400; SCR = 153600; CSX = 161792
    vXA = [72, 73, 74, 75]; vW = [76, 77]; vRd = [78, 79]; vTB = [17, 18, 19, 20]; vTQ = [86, 87, 88, 89]; vTQ2 = [90, 91, 21, 22]
    vSA = [80, 81, 82]; vBA = [144, 145, 146, 147, 148]; vTR = [149, 150, 151, 152]
    vT1 = 24; vSTW = 25
    ACC = 32; RAW = 160; XF = A0; BF = A0 + 160; ONES = A0 + 200; GR = A0 + 204; RSM = A0 + 212; OH = A0 + 220; CSA = A0 + 240; CSQ = A0 + 244
    t0, t1, t2, t3 = "v27", "v28", "v29", "v30"
    a("v_lshlrev_b32 v8, 4, v1"); a("v_lshlrev_b32 v9, 4, v0")
    a("v_and_b32 v10, 15, v1"); a("v_lshlrev_b32 v10, 2, v10")
    a("v_lshrrev_b32 v11, 4, v1"); a("v_mov_b32 v5, 0"); a("v_add_u32 v12, 4096, v8")
    a("v_and_b32 v27, 3, v1"); a("s_lshl_b32 s3, s28, 2"); a("v_add_u32 v27, s3, v27"); a("v_min_u32 v27, 14, v27")
    a("v_lshrrev_b32 v28, 2, v1"); a("v_mul_u32_u24 v28, 3840, v28"); a("v_lshl_add_u32 v28, v27, 4, v28")
    a("v_add_u32 v29, 1440, v28"); a("v_add_u32 v30, 2640, v28")
    a("v_cmp_gt_u32 vcc, 10, v27"); a("v_cndmask_b32 v28, v28, v30, vcc")
    a("v_cmp_gt_u32 vcc, 5, v27"); a("v_cndmask_b32 v83, v28, v29, vcc")
    a("v_lshrrev_b32 v27, 3, v1"); a("v_and_b32 v28, 7, v1"); a("v_mul_u32_u24 v29, 1280, v27")
    a(f"v_lshl_add_u32 v{vXA[0]}, v28, 4, v29")
    for rg in range(1, 4): a(f"v_add_u32 v{vXA[rg]}, {10240*rg}, v{vXA[0]}")
    a("s_lshl_b32 s3, s28, 11"); a(f"s_add_u32 s48, s3, {SCR}")
    a("v_lshrrev_b32 v29, 1, v27"); a("v_xor_b32 v29, v29, v28"); a("v_lshlrev_b32 v29, 4, v29"); a("v_lshl_add_u32 v29, v27, 7, v29")
    a(f"v_add_u32 v{vW[0]}, s48, v29")
    a("v_xor_b32 v29, 64, v29"); a("v_add_u32 v29, 1024, v29"); a(f"v_add_u32 v{vW[1]}, s48, v29")
    a("v_subrev_u32 v83, 160, v83")
    a("s_mul_i32 s50, s26, 153600"); a("s_mul_i32 s51, s27, 80"); a("s_add_u32 s50, s50, s51")
    a("s_mul_i32 s53, s28, 3072"); a(f"s_add_u32 s53, s53, {BQ + 28672}")
    a("s_lshl_b32 s49, s26, 7"); a("s_lshl_b32 s3, s28, 5"); a("s_add_u32 s49, s49, s3"); a("s_mul_i32 s49, s49, 1280")
    a("s_lshr_b32 s3, s28, 1"); a("s_lshl_b32 s3, s3, 7"); a("s_add_u32 s62, s49, 128"); a("s_sub_u32 s62, s62, s3"); a("s_add_u32 s49, s49, s3")
    a("s_mul_i32 s52, s28, 5120")
    a(f"s_mul_i32 s58, s26, {G_SZ}"); a(f"s_add_u32 s58, s58, {GRP}")
    a("s_mul_i32 s3, s26, 163840"); a("s_mul_i32 s56, s27, 10240"); a("s_add_u32 s3, s3, s56"); a("s_mul_i32 s56, s28, 2560"); a("s_add_u32 s57, s3, s56")
    a("s_lshl_b32 s70, s28, 4"); a("s_add_u32 s70, s70, s26")
    a(f"s_mul_i32 s71, s28, 7168"); a(f"s_add_u32 s71, s71, {BQ}")
    a("v_mov_b32 v2, 0x7fffffff")
    a("s_waitcnt lgkmcnt(0)")
    srd(a, 36, 6, 2457600)
    SLNT = "" if "slplain" in OPT else " nt"
    for i in range(3):
        a(f"s_add_u32 m0, s53, {1024*i}")
        if i == 2: a("s_bfm_b64 exec, 32, 0")
        a.vmem(f"buffer_load_dwordx4 v83, s[36:39], s50 offen{SLNT} lds", "SLD")
        a(f"s_add_u32 s50, s50, {16*3840}")
    srd(a, 32, 4, 2621440); srd(a, 40, 24, WS_END)
    a("s_mov_b64 exec, 0xfffff")
    a.vmem(f"buffer_load_dword v4, v3, s[32:35], s57 offen{' nt' if 'xtnt' in OPT else ''}")
    if "tlb" in OPT:
        a("v_lshlrev_b32 v27, 20, v1"); a("s_bfm_b64 exec, 24, 0")
        a.vmem(f"buffer_load_dword v4, v27, s[40:43], 0 offen")
    a("s_mov_b64 exec, -1")
    a("s_and_b32 s76, s76, 0xfffffff8"); a("s_or_b32 s76, s76, 8")
    a("s_or_b32 s3, s2, s28"); a("s_cmp_lg_u32 s3, 0"); a("s_cbranch_scc1 L_notag")
    a("v_mov_b32 v28, s76"); a("global_store_dword v5, v28, s[22:23] sc1")
    a("L_notag:")
    srd(a, 44, 12, 2211840)
    def rp_issue(nt, pitch_src, nch):
        for i in range(7):
            if i < nt:
                a(f"v_add_u32 v27, {64*i}, v1")
                divmod_const(a, "v28", "v29", "v27", nch)
                a(f"v_mul_u32_u24 v28, {pitch_src}, v28"); a("v_lshl_add_u32 v28, v29, 4, v28")
                a(f"s_add_u32 m0, s71, {1024*i}")
                a(f"buffer_load_dwordx4 v28, s[44:47], s73 offen nt lds")
            else:
                a("buffer_load_dword v4, v2, s[44:47], 0 offen")
    def unit_issue():
        a("s_cmp_ge_u32 s70, 20"); a("s_cbranch_scc1 L_rp5")
        a("s_mov_b32 s72, 1")
        a("s_mul_i32 s75, s27, 27"); a("s_lshr_b32 s75, s75, 2"); a("s_lshl_b32 s75, s75, 5")
        a("s_mul_i32 s79, s70, 110592"); a("s_add_u32 s73, s75, s79")
        a("s_mul_i32 s75, s27, 20"); a("s_add_u32 s70, s70, s75")
        a("s_mul_i32 s74, s70, 7168"); a(f"s_add_u32 s74, s74, {W1P}")
        rp_issue(7, 3456, 14)
        a("s_branch L_rp_issued")
        a("L_rp5:")
        a("s_mov_b32 s72, 2")
        a("s_sub_u32 s79, s70, 20"); a("s_lshl_b32 s79, s79, 1"); a("s_lshr_b32 s75, s27, 3"); a("s_add_u32 s79, s79, s75"); a("s_and_b32 s75, s27, 7")
        a("s_cmp_ge_u32 s79, 54"); a("s_cbranch_scc1 L_rpwo")
        srd(a, 44, 16, 2211840)
        a("s_mul_i32 s78, s75, 54"); a("s_add_u32 s78, s78, s79")
        a("s_mul_i32 s74, s78, 5120"); a(f"s_add_u32 s74, s74, {W2P}")
        a("s_branch L_rp5b")
        a("L_rpwo:")
        srd(a, 44, 8, 819200)
        a("s_sub_u32 s79, s79, 54")
        a("s_mul_i32 s78, s75, 20"); a("s_add_u32 s78, s78, s79")
        a("s_mul_i32 s74, s78, 5120"); a(f"s_add_u32 s74, s74, {WOP}")
        a("s_cmp_ge_u32 s79, 20"); a("s_cselect_b32 s74, 0x40000000, s74")
        a("L_rp5b:")
        a("s_mul_i32 s75, s75, 160"); a("s_mul_i32 s79, s79, 40960"); a("s_add_u32 s73, s75, s79")
        rp_issue(5, 1280, 10)
        a("L_rp_issued:")
        a.vm += ["UL"]*7
    def raw(cx, rg): return 96 + (((cx + 1) % 10)*4 + rg)*4
    def xf(tt, k): return XF + (tt*20 + k)*4
    def ldx(cx):
        return [lambda cx=cx, rg=rg: a.vmem(f"buffer_load_dwordx4 {R(raw(cx, rg), 4)}, v{vXA[rg]}, s[32:35], s{62 if cx & 1 else 49} offen offset:{256*(cx>>1)}", f"X{cx}") for rg in range(4)]
    a("v_and_b32 v27, 15, v1")
    a("v_cmp_gt_u32 s[66:67], 8, v27")
    a("v_cmp_gt_u32 s[90:91], 32, v1"); a("v_cmp_gt_u32 s[92:93], 48, v1")
    a("v_cmp_eq_u32 s[88:89], 1, v11")
    a("v_and_b32 v29, 1, v11")
    a("s_lshl_b32 s3, s28, 1"); a("v_add_u32 v29, s3, v29")
    a("v_cmp_gt_u32 s[94:95], 5, v29"); a("v_cmp_eq_u32 s[96:97], 7, v29")
    a("v_lshlrev_b32 v29, 10, v29"); a(f"v_add_u32 v30, {BQ - 5120}, v29"); a("v_cndmask_b32 v29, v30, v29, s[94:95]")
    a("v_lshl_add_u32 v29, v10, 2, v29")
    a("v_mov_b32 v30, 2560"); a("v_mov_b32 v31, 5120"); a("v_cndmask_b32 v30, v30, v31, s[94:95]")
    a("v_mov_b32 v31, 8"); a("v_cndmask_b32 v31, v31, 7, s[96:97]")
    a("s_andn2_b64 s[96:97], s[96:97], s[66:67]")
    a("s_mul_i32 s3, s26, 5")
    a("v_lshrrev_b32 v28, 1, v11"); a("v_add_u32 v28, s3, v28")
    for n in range(3):
        a(f"v_lshrrev_b32 v27, 2, v28"); a(f"v_mad_u32_u24 v{vSA[n]}, v27, v30, v29")
        a("v_and_b32 v27, 3, v28"); a("v_lshlrev_b32 v27, v31, v27"); a(f"v_add_u32 v{vSA[n]}, v{vSA[n]}, v27")
        a(f"v_cndmask_b32 v{vSA[n]}, v{vSA[n]}, v2, s[96:97]")
        if n == 2: a(f"v_cndmask_b32 v{vSA[n]}, v2, v{vSA[n]}, s[90:91]")
        else: a("v_add_u32 v28, 2, v28")
    a("v_lshrrev_b32 v27, 5, v1"); a("v_bfe_u32 v28, v1, 2, 2"); a("v_lshl_add_u32 v27, v27, 3, v28"); a("v_lshlrev_b32 v27, 6, v27")
    a("v_bfe_u32 v28, v1, 4, 1"); a("v_lshl_add_u32 v27, v28, 5, v27"); a("v_and_b32 v28, 3, v1"); a("v_lshl_add_u32 v27, v28, 3, v27")
    a("v_add_u32 v84, s53, v27")
    a("s_mul_i32 s54, s27, 153600"); a(f"s_add_u32 s54, s54, {WQKV}")
    a.wait(vm="SLD")
    a.stamp("sld")
    for n in range(3):
        for h in range(2): a(f"ds_read_b64_tr_b16 {R(96 + 4*n + 2*h, 2)}, v84 offset:{1024*n + 256*h}")
    a("s_waitcnt lgkmcnt(0)")
    for n in range(3): a.vmem(f"buffer_store_dwordx4 {R(96 + 4*n, 4)}, v{vSA[n]}, s[40:43], s54 offen sc1", "SL")
    a.vmem("global_load_dword v6, v5, s[22:23] sc1", "TAG")
    NX0 = P("NX0", 3)
    for cx in range(NX0):
        for f in ldx(cx): f()
    a("v_and_b32 v27, 15, v1")
    a("v_lshrrev_b32 v29, 1, v27"); a("v_xor_b32 v29, v29, v11"); a("v_lshlrev_b32 v29, 4, v29"); a("v_lshl_add_u32 v29, v27, 7, v29")
    a("s_and_b32 s3, s28, 1"); a("s_lshl_b32 s3, s3, 6"); a("v_xor_b32 v29, s3, v29")
    a(f"v_add_u32 v{vRd[0]}, s48, v29"); a("v_xor_b32 v29, 64, v29"); a(f"v_add_u32 v{vRd[1]}, s48, v29")
    a("v_lshrrev_b32 v29, 2, v27"); a("v_cmp_eq_u32 vcc, v29, v11")
    a("v_lshlrev_b32 v30, 2, v1"); a("v_add_u32 v30, 512, v30")
    a("v_cndmask_b32 v29, v30, v10, vcc"); a(f"v_add_u32 v{vSTW}, s48, v29")
    a("v_and_b32 v29, 1, v1"); a("v_cmp_eq_u32 s[68:69], 1, v29")
    a("v_and_b32 v29, 2, v1"); a("v_cmp_eq_u32 s[86:87], 2, v29")
    a("v_mov_b32 v28, 0x3f803f80")
    for i in range(4): a(f"v_accvgpr_write_b32 {R(ONES+i)}, v28")
    for t in range(5):
        a(f"v_cmp_eq_u32 vcc, {t}, v27"); a("v_cndmask_b32 v29, 0, v28, vcc")
        for e in range(4): a(f"v_accvgpr_write_b32 {R(OH+4*t+e)}, v29")
    a("v_and_b32 v27, 7, v1"); a("v_lshlrev_b32 v27, 4, v27"); a("v_lshl_add_u32 v27, v11, 7, v27")
    for p in range(4):
        a(f"s_xor_b32 s3, s28, {p}"); a("s_mul_i32 s56, s3, 5120"); a(f"v_add_u32 v{vTB[p]}, s56, v8")
        a("s_mul_i32 s56, s3, 2560"); a(f"s_add_u32 s56, s56, {BQ}"); a(f"v_add_u32 v{vTQ[p]}, s56, v8"); a("s_add_u32 s56, s56, 2048"); a(f"v_add_u32 v{vTQ2[p]}, s56, v27")
    a(f"s_mov_b32 s60, {hx(LOG2E)}"); a(f"s_mov_b32 s61, {hx(1e-6)}")
    a(f"s_mov_b32 s63, {hx(1.0/640)}"); a(f"s_mov_b32 s64, {hx(1e-5)}")
    a("s_lshl_b32 s55, s27, 8"); a(f"s_add_u32 s55, s55, {F0}")
    a("v_lshlrev_b32 v26, 2, v1")
    a("s_lshl_b32 s3, s26, 4"); a("s_lshl_b32 s56, s28, 2"); a("s_add_u32 s3, s3, s56"); a("s_add_u32 s3, s3, s55")
    a.wait(vm="TAG")
    a("v_readfirstlane_b32 s76, v6"); a("s_mov_b32 s78, 0")
    a("L_tp1:")
    a("s_cmp_lg_u32 s76, 0"); a("s_cbranch_scc1 L_tp1_ok")
    a("global_load_dword v6, v5, s[22:23] sc1"); a("s_add_u32 s78, s78, 1"); a("s_waitcnt vmcnt(0)")
    a("v_readfirstlane_b32 s76, v6")
    a(f"s_cmp_lt_u32 s78, {POLLMAX}"); a("s_cbranch_scc1 L_tp1")
    a("L_tp1_ok:")
    a("s_getreg_b32 s77, hwreg(HW_REG_XCC_ID)"); a("s_and_b32 s77, s77, 7"); a("s_or_b32 s77, s77, s76")
    a("s_lshl_b32 s57, s26, 7"); a("s_lshl_b32 s56, s27, 2"); a("s_add_u32 s57, s57, s56"); a(f"s_add_u32 s57, s57, {F1R}")
    a("s_cmp_eq_u32 s28, 0"); a("s_cselect_b32 s57, s57, 0x40000000"); a("v_mov_b32 v27, s77")
    a("s_mov_b64 exec, 1"); a.vmem("buffer_store_dword v6, v5, s[40:43], s3 offen sc1"); a.vmem("buffer_store_dword v27, v5, s[40:43], s57 offen sc1"); a("s_mov_b64 exec, -1")
    a.stamp("F0pub")
    def rp_fin(nt, RG):
        pitch = nt*32
        a("v_bfe_u32 v28, v1, 2, 2"); a("v_lshl_add_u32 v27, v11, 3, v28"); a("v_and_b32 v28, 3, v1")
        a(f"v_mul_u32_u24 v29, {pitch}, v27"); a("v_add_u32 v29, s71, v29")
        a("v_lshl_add_u32 v30, v28, 3, v29"); a("v_lshl_add_u32 v29, v28, 4, v29")
        for t in range(nt):
            for h in range(2):
                if t == nt - 1: a(f"ds_read_b64_tr_b16 {R(RG + 4*t + 2*h, 2)}, v30 offset:{h*4*pitch + 32*t}")
                else: a(f"ds_read_b64_tr_b16 {R(RG + 4*t + 2*h, 2)}, v29 offset:{h*4*pitch + 64*(t>>1) + 8*(t&1)}")
        if nt == 7:
            a("v_mov_b32 v28, 0x3f803f80")
            for t in (5, 6):
                a(f"v_cmp_eq_u32 vcc, {4*t}, v10")
                for e in range(4): a(f"v_cndmask_b32 v{RG+28+4*(t-5)+e}, 0, v28, vcc")
        a("s_waitcnt lgkmcnt(0)")
        if nt == 7:
            for t in range(7): a(MF(RG+36, RG + 4*t, OH + 4*t if t < 5 else RG+28+4*(t-5), t == 0))
    def rp_store(nt, RG):
        for t in range(nt):
            a(f"buffer_store_dwordx4 {R(RG + 4*t, 4)}, v{8 if t < 4 else 12}, s[40:43], s74 offen offset:{1024*(t&3)} sc1")
        if nt == 7:
            a("v_lshlrev_b32 v29, 4, v11"); a("v_lshl_add_u32 v29, v10, 4, v29"); a("v_cndmask_b32 v29, v2, v29, s[66:67]")
            a("s_lshl_b32 s3, s70, 9"); a(f"s_add_u32 s3, s3, {C1P}")
            a(f"buffer_store_dwordx4 {R(RG+36, 4)}, v29, s[40:43], s3 offen sc1")
        else:
            for _ in range(3): a("buffer_store_dword v5, v2, s[40:43], 0 offen")
    def acc(tt, t): return ACC + (tt*5 + t)*4
    def transp(cx):
        L = []
        for tt in range(2):
            L.append(lambda tt=tt: a.ds(f"ds_write_b128 v{vW[0]}, {R(raw(cx, 2*tt), 4)}"))
            L.append(lambda tt=tt: a.ds(f"ds_write_b128 v{vW[1]}, {R(raw(cx, 2*tt+1), 4)}"))
            L.append(lambda tt=tt: a.ds(f"ds_read_b128 {R(xf(tt, 2*cx), 4)}, v{vRd[0]}"))
            L.append(lambda tt=tt: a.ds(f"ds_read_b128 {R(xf(tt, 2*cx+1), 4)}, v{vRd[1]}", f"T{cx}"))
        return L
    def statm(k):
        L = []
        for tt in range(2):
            L.append(MF(GR + 4*tt, xf(tt, k), xf(tt, k), k == 0)); L.append(MF(RSM + 4*tt, ONES, xf(tt, k), k == 0))
        return L
    def breads1(s):
        j, p = divmod(s, 4); L = []
        for t in range(5):
            L.append(lambda t=t: a.ds(f"ds_read_b128 {R(BF + (s&1)*20 + t*4, 4)}, v{vTB[p]} offset:{(j % 3)*20480 + t*1024}", f"R{s}"))
        if j == 2: L.append(f"v_add_u32 v{vTB[p]}, 61440, v{vTB[p]}")
        return L
    def ldb(j):
        def one(i):
            if i == 0: a(f"s_add_u32 m0, s52, {j*20480}"); a("s_add_u32 s57, s54, m0")
            if i == 4: a(f"s_add_u32 m0, s52, {j*20480 + 4096}")
            a.vmem(f"buffer_load_dwordx4 v{8 if i < 4 else 12}, s[40:43], s57 offen offset:{1024*(i&3)} sc1 lds", f"B{j}")
        return [lambda i=i: one(i) for i in range(5)]
    def ldq():
        def one(i):
            if i == 11: a("s_cmp_eq_u32 s28, 3"); a("s_cbranch_scc1 L_noq")
            a(f"s_mul_i32 s98, s28, 13312"); a(f"s_add_u32 m0, s98, {BQ + i*1024}"); a("s_add_u32 s98, s54, m0")
            a.a(f"buffer_load_dwordx4 v8, s[40:43], s98 offen sc1 lds")
            if i < 11: a.vm.append("BQ")
            if i == 12: a("L_noq:")
        return [lambda i=i: one(i) for i in range(11)] + [lambda: (one(11), one(12))]
    def ldt1():
        a("v_lshlrev_b32 v27, 1, v0"); a("s_add_u32 s56, s30, T1_tab-L_pc"); a("s_addc_u32 s57, s31, 0")
        a.vmem(f"global_load_ushort v{vT1}, v27, s[56:57]", "T1")
    def kv_mf(s):
        mf = []
        for t in range(5):
            b = BF + (s&1)*20 + t*4
            for tt in range(2): mf.append(MF(acc(tt, t), xf(tt, s), b, s == 0))
            if s % 4 == 0: mf.append(MF(CSA, OH + 4*t, b, s == 0 and t == 0))
        return mf
    RS = 96; MS = 104; RT = 112; MT = 114; CSV = 116
    URG = 116
    def flagtouch():
        a(f"s_add_u32 s3, s58, {G_FL}"); a("s_bfm_b64 exec, 8, 0"); a.vmem("buffer_load_dword v4, v3, s[40:43], s3 offen"); a("s_mov_b64 exec, -1")
    lq = sum([ldx(cx) for cx in range(NX0, 10)], []) + [ldt1, flagtouch, unit_issue]
    XR = P("XR", 8)
    for cx in range(10):
        while f"X{cx}" not in a.vm or a.vm.count(f"X{cx}") < 4: lq.pop(0)()
        a.wait(vm=f"X{cx}")
        mf = (statm(2*(cx-1)) + statm(2*(cx-1)+1)) if cx else []
        if cx: a.wait(lg=f"T{cx-1}")
        side = transp(cx) + lq[:XR]; lq = lq[XR:]
        if mf: a.interleave(mf, side)
        else:
            for f in side: f()
    assert not lq
    a.stamp("xdone")
    a("s_mov_b32 s78, 0")
    a("L_h0p:")
    a("buffer_load_dword v16, v26, s[40:43], s55 offen sc1"); a("s_waitcnt vmcnt(0)")
    a("v_cmp_ne_u32 vcc, s76, v16")
    a("s_cbranch_vccz L_h0ok")
    a("s_add_u32 s78, s78, 1"); a(f"s_cmp_lt_u32 s78, {POLLMAX}"); a("s_cbranch_scc1 L_h0p")
    a("L_h0ok:")
    a.vm = []
    a.stamp("F0ok")
    for f in ldb(0): f()
    for f in ldb(1): f()
    a.wait(lg="all")
    for x in statm(18) + statm(19): a(x)
    a("s_cmp_eq_u32 s72, 2"); a("s_cbranch_scc1 L_rp_f5")
    rp_fin(7, URG); a("s_branch L_rp_done")
    a("L_rp_f5:"); rp_fin(5, URG)
    a("L_rp_done:")
    for tt in range(2):
        for e in range(4): a(f"v_accvgpr_read_b32 v{160+e}, {R(GR + 4*tt + e)}")
        a(f"v_accvgpr_read_b32 v164, {R(RSM + 4*tt)}")
        for x in ["v_cndmask_b32 v160, v160, v161, s[68:69]", "v_cndmask_b32 v162, v162, v163, s[68:69]", "v_mul_f32 v164, s63, v164",
                  "v_cndmask_b32 v160, v160, v162, s[86:87]", "v_mul_f32 v160, s63, v160", "v_fma_f32 v160, -v164, v164, v160",
                  "v_max_f32 v160, 0, v160", "v_add_f32 v160, s64, v160", "v_rsq_f32 v160, v160", "v_mul_f32 v164, v164, v160"]: a(x)
        a.ds(f"ds_write_b32 v{vSTW}, v160 offset:{64*tt}"); a.ds(f"ds_write_b32 v{vSTW}, v164 offset:{128 + 64*tt}")
    a("v_lshlrev_b32 v28, 4, v11"); a("v_add_u32 v28, s48, v28"); a("v_add_u32 v29, s48, v10")
    for tt in range(2):
        a.ds(f"ds_read_b128 {R(RS + 4*tt, 4)}, v28 offset:{64*tt}"); a.ds(f"ds_read_b128 {R(MS + 4*tt, 4)}, v28 offset:{128 + 64*tt}")
        a.ds(f"ds_read_b32 v{RT + tt}, v29 offset:{64*tt}"); a.ds(f"ds_read_b32 v{MT + tt}, v29 offset:{128 + 64*tt}")
    NBE = P("NBE", 3)
    for j in range(2, NBE):
        for f in ldb(j): f()
    a("s_lshl_b32 s73, s70, 9"); a(f"s_add_u32 s73, s73, {C1P}")
    a("s_cmp_eq_u32 s72, 2"); a("s_cselect_b32 s75, 0x40000000, s74"); a("s_cselect_b32 s73, 0x40000000, s73")
    a("v_lshlrev_b32 v85, 4, v11"); a("v_lshl_add_u32 v85, v10, 4, v85"); a("v_cndmask_b32 v85, v2, v85, s[66:67]")
    def ust(t):
        if t < 7: a.vmem(f"buffer_store_dwordx4 {R(URG + 4*t, 4)}, v{8 if t < 4 else 12}, s[40:43], s{74 if t < 5 else 75} offen offset:{1024*(t&3)} sc1", "US")
        else: a.vmem(f"buffer_store_dwordx4 {R(URG+36, 4)}, v85, s[40:43], s73 offen sc1", "US")
    a("s_and_b32 s59, s27, 7"); a("s_lshl_b32 s59, s59, 9"); a(f"s_add_u32 s59, s59, {FU}")
    a("s_lshr_b32 s3, s27, 3"); a("s_lshl_b32 s3, s3, 4"); a("s_add_u32 s3, s3, s26"); a("s_lshl_b32 s3, s3, 2"); a("s_add_u32 s3, s3, s28"); a("s_lshl_b32 s3, s3, 2"); a("s_add_u32 s70, s3, s59")
    a.wait(vm="B0")
    a("s_barrier")
    a.stamp("bP")
    a("s_mov_b32 s94, s60"); a("s_mov_b32 s95, s60"); a("s_mov_b32 s96, s61"); a("s_mov_b32 s97, s61")
    for f in breads1(0): a.run(f)
    def pretouch():
        if "sc1h" in OPT:
            a(f"s_add_u32 s3, s58, {G_FL}"); a("s_bfm_b64 exec, 4, 0"); a.vmem("buffer_load_dword v4, v3, s[40:43], s3 offen"); a("s_mov_b64 exec, -1")
            return
        a("s_mul_i32 s3, s27, 21056"); a("s_add_u32 s3, s3, s58"); a("s_mul_i32 s56, s28, 5376"); a("s_add_u32 s3, s3, s56")
        a("s_bfm_b64 exec, 42, 0"); a.vmem("buffer_load_dword v4, v3, s[40:43], s3 offen"); a("s_mov_b64 exec, -1")
    FB3 = 156
    a("s_and_b32 s3, s27, 7"); a("s_mul_i32 s3, s3, 20"); a("s_add_u32 s3, s3, s28"); a("s_mul_i32 s65, s3, 5120"); a(f"s_add_u32 s65, s65, {WOP}")
    def ldwo(n, t):
        a.vmem(f"buffer_load_dwordx4 {R(FB3 + (n*5+t)*4, 4)}, v{8 if t < 4 else 12}, s[40:43], s65 offen offset:{1024*(t&3)} sc1", "WO")
        if t == 4: a("s_add_u32 s65, s65, 20480")
    def ldfu():
        a("v_lshlrev_b32 v31, 3, v1")
        a.vmem("buffer_load_dwordx2 v[92:93], v31, s[40:43], s59 offen sc1", "FU")
    def chkfu():
        a.wait(vm="FU")
        a("s_mov_b32 s78, 0")
        a("L_fu:")
        a("v_cmp_ne_u32 vcc, s76, v92"); a("v_cmp_ne_u32 s[84:85], s76, v93")
        a("s_or_b64 vcc, vcc, s[84:85]"); a("s_cbranch_scc0 L_fu_ok")
        a("s_add_u32 s78, s78, 1"); a(f"s_cmp_ge_u32 s78, {POLLMAX}"); a("s_cbranch_scc1 L_fu_ok")
        a("buffer_load_dwordx2 v[92:93], v31, s[40:43], s59 offen sc1"); a("s_waitcnt vmcnt(0)")
        a("s_branch L_fu")
        a("L_fu_ok:")
    q_ = ldq(); mix = []
    if "usfirst" in OPT:
        mix = [lambda i=i: ust(i) for i in range(8)] + q_
    else:
        for i in range(12):
            mix.append(q_[i])
            if i < 8: mix.append(lambda i=i: ust(i))
    ldlist = sum([ldb(j) for j in range(NBE, 5)], [])
    MS0 = P("MS0", 6); MR = P("MR", 1)
    a.bgq = mix
    SFU = P("SFU", 18)
    LEND = P("LEND", 16)
    CT = 116
    for s in range(20):
        j, p = divmod(s, 4)
        if p == 3 and j < 4:
            a.wait(vm=f"B{j+1}"); a("s_barrier")
        if s == SFU:
            a.wait(vm="US")
            a("s_mov_b64 exec, 1"); a.vmem("buffer_store_dword v6, v5, s[40:43], s70 offen sc1"); a("s_mov_b64 exec, -1")
        if s == 18:
            a.wait(lg="CSW"); a("s_barrier")
        a.wait(lg=f"R{s}")
        mf = kv_mf(s)
        front = breads1(s+1) if s < 19 else []
        side = []
        if s == 17:
            side += ["s_lshl_b32 s3, s28, 9", f"s_add_u32 s3, s3, {CSX}", "v_add_u32 v27, s3, v8"]
            side.append(lambda: (a("s_bfm_b64 exec, 32, 0"), a.ds(f"ds_write_b128 v27, {R(CSA, 4)}", "CSW"), a("s_mov_b64 exec, -1")))
        if s == 18:
            assert a.vm.count("US") == 8
            side += ["v_lshlrev_b32 v27, 2, v10", f"v_add_u32 v27, {CSX}, v27"]
            for w in range(4):
                side.append(lambda w=w: a.ds(f"ds_read_b128 {R(CT + 4*w, 4)}, v27 offset:{512*w}"))
                side.append(lambda w=w: a.ds(f"ds_read_b32 v{CT + 16 + w}, v27 offset:{512*w + 256}", "CSR"))
        if s == 19:
            side.append(lambda: a.wait(lg="CSR"))
            for e in range(4):
                side += [f"v_add_f32 v{CT+e}, v{CT+e}, v{CT+4+e}", f"v_add_f32 v{CT+8+e}, v{CT+8+e}, v{CT+12+e}", f"v_add_f32 v{CT+20+e}, v{CT+e}, v{CT+8+e}"]
            side += [f"v_add_f32 v{CT+16}, v{CT+16}, v{CT+17}", f"v_add_f32 v{CT+18}, v{CT+18}, v{CT+19}", f"v_add_f32 v{CT+24}, v{CT+16}, v{CT+18}"]
        side += ldlist[:3]; ldlist = ldlist[3:]
        if s >= MS0: side = [lambda: a.bg(1)]*MR + side
        a.interleave(mf, side, front)
    CSV = CT + 20
    a.stamp("kvend")
    OP = 116; TP = 72
    FUC = P("FUC", 14)
    if FUC < 4: ldfu()
    KBG = P("KBG", 1)
    for t in range(5):
        for tt in range(2):
            b_ = acc(tt, t)
            cp = CSV + t; cpe = cp & ~1; sel = cp & 1
            for h in range(2):
                x = b_ + 2*h
                a(f"v_pk_mul_f32 v[{TP+2*h}:{TP+2*h+1}], v[{MS+4*tt+2*h}:{MS+4*tt+2*h+1}], v[{cpe}:{cpe+1}] op_sel:[0,{sel}] op_sel_hi:[1,{sel}]")
            for h in range(2):
                x = b_ + 2*h
                a(f"v_pk_fma_f32 v[{x}:{x+1}], v[{x}:{x+1}], v[{RS+4*tt+2*h}:{RS+4*tt+2*h+1}], v[{TP+2*h}:{TP+2*h+1}] neg_lo:[0,0,1] neg_hi:[0,0,1]")
            if t <= 2: phi4(a, b_, TP, sel_mask=("s[66:67]" if t == 2 else None))
            for h in range(2):
                a(f"v_cvt_pk_bf16_f32 v{OP + 4*t + 2*tt + h}, v{acc(tt, t) + 2*h}, v{acc(tt, t) + 2*h + 1}")
            if t*2 + tt == SFU - 20:
                a.wait(vm="US")
                a("s_mov_b64 exec, 1"); a.vmem("buffer_store_dword v6, v5, s[40:43], s70 offen sc1"); a("s_mov_b64 exec, -1")
            if t*2 + tt == FUC - 4: ldfu()
            if t*2 + tt == FUC: chkfu(); a.bgq += [lambda n=n, t=t: ldwo(n, t) for n in range(5) for t in range(5)]
            a.bg(KBG)
    while "BQdone" not in a.vm and a.vm.count("BQ") < 11 or (a.bgq and a.bgq[0] is q_[11]): a.bg(1)
    KVD = 32
    for p, (ta, tb) in enumerate(PAIRS):
        a(MF(KVD + 4*p, OP + 4*ta, ONES if tb < 0 else OP + 4*tb, True))
    a("s_mul_i32 s3, s28, 10240"); a("v_add_u32 v27, s3, v8")
    for p in range(10): a(f"ds_write_b128 v27, {R(KVD + 4*p, 4)} offset:{1024*p}")
    a("s_lshl_b32 s3, s27, 4"); a("s_add_u32 s3, s3, s26"); a("s_lshl_b32 s3, s3, 12"); a(f"s_add_u32 s3, s3, {PART}")
    a("v_cmp_gt_u32 vcc, 216, v0"); a("v_cndmask_b32 v9, v2, v9, vcc")
    a.wait(lg="all")
    a("s_barrier")
    for w in range(4): a(f"ds_read_b128 {R(56 + 4*w, 4)}, v{vT1} offset:{10240*w}")
    a("s_waitcnt lgkmcnt(0)")
    for e in (0, 2):
        a(f"v_pk_add_f32 v[{56+e}:{57+e}], v[{56+e}:{57+e}], v[{60+e}:{61+e}]"); a(f"v_pk_add_f32 v[{64+e}:{65+e}], v[{64+e}:{65+e}], v[{68+e}:{69+e}]")
    for e in (0, 2): a(f"v_pk_add_f32 v[{56+e}:{57+e}], v[{56+e}:{57+e}], v[{64+e}:{65+e}]")
    a.vmem(f"buffer_store_dwordx4 v[56:59], v9, s[40:43], s3 offen sc1", "PST")
    ldfu()
    a("s_lshr_b32 s48, s27, 3"); a("s_and_b32 s49, s27, 7")
    a("v_lshrrev_b32 v13, 1, v11"); a("v_lshlrev_b32 v13, 8, v13"); a("v_lshl_add_u32 v13, v10, 2, v13")
    a("v_and_b32 v28, 1, v11"); a("v_lshl_add_u32 v13, v28, 3, v13")
    a("v_mul_u32_u24 v14, 320, v10"); a("v_lshl_add_u32 v15, v11, 3, v14"); a("v_lshl_add_u32 v14, v11, 4, v14")
    a("s_lshl_b32 s50, s48, 2"); a("s_add_u32 s50, s50, s28")
    a("s_lshl_b32 s3, s26, 3"); a("s_add_u32 s3, s3, s50"); a("s_mul_i32 s51, s3, 20480"); a("s_mul_i32 s3, s49, 160"); a("s_add_u32 s51, s51, s3")
    a("s_mul_i32 s53, s27, 27"); a("s_lshr_b32 s53, s53, 2")
    a("s_mul_i32 s55, s27, 143360"); a(f"s_add_u32 s55, s55, {W1P}")
    srd(a, 36, 14, 3456)
    a("v_lshlrev_b32 v23, 4, v11"); a("v_lshl_add_u32 v26, v10, 4, v23")
    a("s_lshl_b32 s62, s27, 2"); a("s_add_u32 s62, s62, s28"); a("s_lshl_b32 s62, s62, 7")
    a("s_lshl_b32 s56, s26, 7"); a("s_add_u32 s56, s56, 8192")
    a("v_mov_b32 v27, s62"); a("v_mov_b32 v28, s56"); a("v_cndmask_b32 v17, v27, v28, s[88:89]"); a("v_add_u32 v17, v17, v10")
    a("s_lshl_b32 s3, s26, 2"); a("s_add_u32 s3, s3, s62"); a(f"s_add_u32 s3, s3, {F1}")
    a.wait(vm="PST")
    a("s_mov_b64 exec, 1"); a.vmem("buffer_store_dword v6, v5, s[40:43], s3 offen sc1"); a("s_mov_b64 exec, -1")
    a("s_barrier")
    a.stamp("b7")
    chkfu(); a.bgq += [lambda n=n, t=t: ldwo(n, t) for n in range(5) for t in range(5)]
    FB3 = 156; RES = 116; C1R = 126; T2R = 146
    B1A = A0 + 204
    W1T = A0 + 100
    def w1dma(i):
        a(f"s_mul_i32 s98, s28, {24*1024}"); a(f"s_add_u32 m0, s98, {i*1024}"); a("s_add_u32 s98, s55, m0")
        a.vmem(f"buffer_load_dwordx4 v8, s[40:43], s98 offen sc1 lds", "W1")
    def w1tail(i):
        a(f"s_mul_i32 s98, s28, {11*1024}"); a(f"s_add_u32 s98, s98, {(96+i)*1024}"); a("s_add_u32 s98, s55, s98")
        a.vmem(f"buffer_load_dwordx4 {R(W1T + 4*i, 4)}, v8, s[40:43], s98 offen sc1", "W1")
    def ldsmall():
        a("v_lshlrev_b32 v31, 5, v1"); a("s_add_u32 s98, s30, T2_tab-L_pc"); a("s_addc_u32 s99, s31, 0")
        a.vmem(f"global_load_dwordx4 {R(T2R, 4)}, v31, s[98:99]"); a.vmem(f"global_load_dwordx2 {R(T2R+4, 2)}, v31, s[98:99] offset:16")
    def ldres(q):
        if q == 0: a.vmem(f"buffer_load_dwordx4 {R(RES, 4)}, v14, s[32:35], s51 offen")
        if q == 1: a.vmem(f"buffer_load_dwordx4 {R(RES+4, 4)}, v14, s[32:35], s51 offen offset:64")
        if q == 2: a.vmem(f"buffer_load_dwordx2 {R(RES+8, 2)}, v15, s[32:35], s51 offen offset:128")
    def ldb1():
        a("v_lshlrev_b32 v31, 3, v11"); a("s_lshl_b32 s98, s53, 5")
        for p in range(3): a.vmem(f"buffer_load_dwordx4 {R(B1A + 4*p, 4)}, v23, s[36:39], s98 offen offset:{64*p}")
        a.vmem(f"buffer_load_dwordx2 {R(B1A + 12, 2)}, v31, s[36:39], s98 offen offset:192")
    def ldc1():
        a("s_mul_i32 s98, s27, 20"); a("s_mul_i32 s99, s28, 5"); a("s_add_u32 s98, s98, s99"); a("s_lshl_b32 s98, s98, 9"); a(f"s_add_u32 s98, s98, {C1P}")
        a("s_mov_b64 exec, s[66:67]")
        for n in range(5): a.vmem(f"buffer_load_dwordx4 {R(C1R + 4*n, 4)}, v26, s[40:43], s98 offen offset:{512*n} sc1", "C1")
        a("s_mov_b64 exec, -1")
    def hidtouch():
        a("s_mul_i32 s98, s27, 27648"); a("s_add_u32 s98, s98, s58"); a(f"s_add_u32 s98, s98, {G_HID}"); a("s_mul_i32 s99, s28, 6912"); a("s_add_u32 s98, s98, s99")
        a("s_bfm_b64 exec, 54, 0"); a.vmem("buffer_load_dword v4, v3, s[40:43], s98 offen"); a("s_mov_b64 exec, -1")
    ldsmall()
    a.bgq += [lambda q=q: ldres(q) for q in range(3)] + [ldb1, ldc1] + [lambda i=i: w1dma(i) for i in range(24)]
    QA = 32
    def qreads(s):
        j, p = divmod(s, 4)
        return [lambda t=t: a.ds(f"ds_read_b128 {R(BF + (s%3)*12 + t*4, 4)}, v{vTQ[p] if t < 2 else vTQ2[p]} offset:{j*10240 + (t&1)*1024}", f"Q{s}") for t in range(3)]
    for f in qreads(0) + qreads(1): f()
    a(f"s_mov_b32 s56, {F1}")
    QSTOP = P("QSTOP", 16)
    for s in range(20):
        j, p = divmod(s, 4)
        if s == 18: a.wait(lg="CQW"); a("s_barrier")
        a.wait(lg=f"Q{s}")
        mf = []
        for t in range(3):
            b = BF + (s%3)*12 + t*4
            for tt in range(2): mf.append(MF(QA + (tt*3+t)*4, b, xf(tt, s), s == 0))
            if p == 0: mf.append(MF(CSQ, b, OH + 4*t, s == 0 and t == 0))
        front = qreads(s+2) if s < 18 else []
        side = []
        if s < QSTOP: side += [lambda: a.bg(1)]*P("QBG", 1)
        if s == 17:
            side.append(lambda: a.vmem("buffer_load_dword v16, v17, s[40:43], s56 offen sc1", "POLL1"))
            side += ["s_lshl_b32 s3, s28, 9", f"s_add_u32 s3, s3, {CSX}", "v_add_u32 v27, s3, v26"]
            side.append(lambda: (a("s_mov_b64 exec, s[66:67]"), a.ds(f"ds_write_b128 v27, {R(CSQ, 4)}", "CQW"), a("s_mov_b64 exec, -1")))
        if s == 18:
            side += [f"v_add_u32 v30, {CSX}, v23"]
            for w, base in ((0, 56), (1, 68), (2, 96)):
                for t in range(3): side.append(lambda w=w, t=t, base=base: a.ds(f"ds_read_b128 {R(base + 4*t, 4)}, v30 offset:{512*w + 64*t}", "CQR"))
        if s == 19:
            side.append(lambda: a.wait(lg="CQR"))
            for x in range(12): side.append(f"v_add_f32 v{56+x}, v{56+x}, v{68+x}")
            for t in range(3): side.append(lambda t=t: a.ds(f"ds_read_b128 {R(68 + 4*t, 4)}, v30 offset:{1536 + 64*t}", "CQR"))
        a.interleave(mf, side, front)
    a.stamp("qend")
    a.wait(vm="POLL1")
    a("s_mov_b32 s78, 0")
    a("L_h1p:")
    a("v_and_b32 v28, 0xfffffff8, v16"); a("v_cmp_ne_u32 vcc, s76, v28")
    a("s_cbranch_vccz L_h1ok")
    a("s_add_u32 s78, s78, 1"); a(f"s_cmp_ge_u32 s78, {POLLMAX}"); a("s_cbranch_scc1 L_h1ok")
    a("buffer_load_dword v16, v17, s[40:43], s56 offen sc1"); a("s_waitcnt vmcnt(0)")
    a("s_branch L_h1p")
    a("L_h1ok:")
    a.stamp("h1ok")
    a.vm = []
    a("v_cmp_ne_u32 vcc, s77, v16"); a("s_and_b64 vcc, vcc, s[88:89]"); a("s_cselect_b32 s79, 0, 1")
    if os.environ.get("FORCESLOW"): a("s_mov_b32 s79, 0")
    P0 = A0
    a("s_lshl_b32 s3, s27, 16"); a(f"s_add_u32 s3, s3, {PART}")
    for r_ in range(16):
        a.vmem(f"buffer_load_dwordx4 {R(P0 + 4*r_, 4)}, v9, s[40:43], s3 offen sc1", f"P{r_}")
        a("s_add_u32 s3, s3, 4096")
    a.bgq += [lambda i=i: w1tail(i) for i in range(11)]
    for x in range(0, 12, 2): a(f"v_pk_add_f32 v[{56+x}:{57+x}], v[{56+x}:{57+x}], v[{96+x}:{97+x}]")
    a.wait(lg="all")
    for x in range(0, 12, 2): a(f"v_pk_add_f32 v[{56+x}:{57+x}], v[{56+x}:{57+x}], v[{68+x}:{69+x}]")
    PQR = 96
    EBG = P("EBG", 1)
    for tt in range(2):
        for t in range(3):
            b_ = QA + (tt*3+t)*4
            for h in range(2):
                a(f"v_pk_mul_f32 v[{TP+2*h}:{TP+2*h+1}], v[{56+4*t+2*h}:{57+4*t+2*h}], v[{MT}:{MT+1}] op_sel:[0,{tt}] op_sel_hi:[1,{tt}]")
            for h in range(2):
                x = b_ + 2*h
                a(f"v_pk_fma_f32 v[{x}:{x+1}], v[{x}:{x+1}], v[{RT}:{RT+1}], v[{TP+2*h}:{TP+2*h+1}] op_sel:[0,{tt},0] op_sel_hi:[1,{tt},1] neg_lo:[0,0,1] neg_hi:[0,0,1]")
            phi4(a, b_, TP)
            for h in range(2):
                d = f"v{PQR + tt*6 + t*2 + h}"
                a(f"v_cvt_pk_bf16_f32 {d}, v{QA + (tt*3+t)*4 + 2*h}, v{QA + (tt*3+t)*4 + 2*h + 1}")
                if t == 2: a(f"v_cndmask_b32 {d}, 0, {d}, s[90:91]")
            a.bg(EBG)
    OSC = SCR
    TA = 56
    for s_ in range(12):
        src = T2R + s_//2
        if s_ & 1: a(f"v_lshrrev_b32 v{TA+s_}, 16, v{src}")
        else: a(f"v_and_b32 v{TA+s_}, 0xffff, v{src}")
        a(f"v_add_u32 v{TA+s_}, {OSC}, v{TA+s_}")
    for r_ in range(16):
        if r_ % 4 == 0: a.wait(vm=f"P{r_+3}")
        for e in range(4): a(f"v_accvgpr_read_b32 v{(32 if r_ == 0 else 36)+e}, {R(P0+4*r_+e)}")
        if r_:
            for e in (0, 2): a(f"v_pk_add_f32 v[{32+e}:{33+e}], v[{32+e}:{33+e}], v[{36+e}:{37+e}]")
        if r_ % 4 == 3: a.bg(EBG)
    a("v_cvt_pk_bf16_f32 v18, v32, v33"); a("v_cvt_pk_bf16_f32 v19, v34, v35")
    a("v_cmp_gt_u32 vcc, 210, v0")
    a("v_cndmask_b32 v18, 0, v18, vcc"); a("v_cndmask_b32 v19, 0, v19, vcc")
    a("v_lshlrev_b32 v27, 3, v0"); a(f"v_add_u32 v27, {OSC}, v27")
    a("ds_write_b64 v27, v[18:19]")
    a("s_waitcnt lgkmcnt(0)")
    a("s_barrier")
    a.stamp("b9")
    KF = A0 + 64
    for E in range(4):
        for ta in range(3): a(f"ds_read_b64 {R(KF + 8*E + 2*ta, 2)}, v{TA + 3*E + ta}")
    a("s_mul_i32 s3, s28, 40960"); a("s_mul_i32 s56, s27, 1280"); a("s_add_u32 s3, s3, s56"); a("s_add_u32 s3, s3, s58")
    a("v_lshlrev_b32 v27, 2, v10"); a("v_lshl_add_u32 v27, v11, 3, v27")
    a("v_cndmask_b32 v27, v2, v27, s[90:91]")
    a("s_waitcnt lgkmcnt(0)")
    D = 32
    for tt in range(2):
        for E in (3, 0, 1, 2):
            d = R(D + (tt*4+E)*4, 4)
            a(f"v_mfma_f32_16x16x32_bf16 {d}, {R(KF + 8*E, 4)}, {R(PQR + 6*tt, 4)}, 0")
    for tt in range(2):
        for E in (3, 0, 1, 2):
            d = R(D + (tt*4+E)*4, 4)
            a(f"v_mfma_f32_16x16x16_bf16 {d}, {R(KF + 8*E + 4, 2)}, {R(PQR + 6*tt + 4, 2)}, {d}")
    for tt in range(2):
        z = D + (tt*4+3)*4
        a(f"v_add_f32 v20, s61, v{z}"); a(f"v_add_f32 v21, s61, v{z+1}")
        a("v_rcp_f32 v20, v20"); a("v_rcp_f32 v21, v21")
        a("v_cndmask_b32 v22, v21, v20, s[92:93]"); a("v_cndmask_b32 v28, v21, v20, s[90:91]")
        ob = 64 + 8*tt
        for E, rc in ((0, 22), (1, 28), (2, 21)):
            d = D + (tt*4+E)*4
            for e in range(4): a(f"v_mul_f32 v{d+e}, v{d+e}, v{rc}")
            a(f"v_cvt_pk_bf16_f32 v{ob + 2*E}, v{d}, v{d+1}"); a(f"v_cvt_pk_bf16_f32 v{ob + 2*E + 1}, v{d+2}, v{d+3}")
        a.vmem(f"buffer_store_dwordx4 {R(ob, 4)}, v8, s[40:43], s3 offen{HS}", "ST")
        a.vmem(f"buffer_store_dwordx2 {R(ob + 4, 2)}, v27, s[40:43], s3 offen offset:1024{HS}", "ST")
        a("s_add_u32 s3, s3, 20480")

    def hop(n, before, after_pub, post=0, touch=None, post2=0):
        before()
        a(f"s_add_u32 s59, s58, {G_FL + 128*n}")
        a("s_lshl_b32 s3, s27, 2"); a("s_add_u32 s3, s3, s59")
        a.bg(post)
        a.wait(vm="ST")
        if touch and "notouch" not in OPT: touch()
        a("s_barrier")
        a.stamp(f"hop{n}a")
        a("s_cmp_lg_u32 s28, 0"); a(f"s_cbranch_scc1 L_g{n}np")
        a("s_mov_b64 exec, 1")
        a("s_cmp_eq_u32 s79, 0"); a(f"s_cbranch_scc1 L_g{n}slow")
        a("buffer_store_dword v6, v5, s[40:43], s3 offen")
        a(f"s_branch L_g{n}pd")
        a(f"L_g{n}slow:")
        a("buffer_store_dword v6, v5, s[40:43], s3 offen sc1")
        a(f"L_g{n}pd:")
        a("s_mov_b64 exec, -1")
        a(f"L_g{n}np:")
        after_pub()
        a.bg(post2)
        a("s_cmp_lg_u32 s28, 0"); a(f"s_cbranch_scc1 L_g{n}j")
        a("s_mov_b32 s78, 0")
        a(f"L_g{n}p:")
        a("buffer_load_dword v27, v10, s[40:43], s59 offen sc1")
        a("s_add_u32 s78, s78, 1")
        a("s_waitcnt vmcnt(0)")
        a("v_cmp_ne_u32 vcc, s76, v27")
        a(f"s_cmp_ge_u32 s78, {POLLMAX}"); a(f"s_cbranch_scc1 L_g{n}x")
        a(f"s_cbranch_vccnz L_g{n}p")
        a(f"L_g{n}x:")
        a(f"L_g{n}j:")
        a("s_barrier")
        a.stamp(f"hop{n}b")
    def a_off(NK, goff):
        for m in range(4):
            a(f"s_add_u32 s3, s28, {m}"); a("s_and_b32 s3, s3, 3"); a("s_lshl_b32 s57, s48, 2"); a("s_add_u32 s3, s3, s57")
            a(f"s_mul_i32 s3, s3, {NK}"); a("s_add_u32 s3, s3, s28"); a("s_lshl_b32 s3, s3, 10"); a("s_add_u32 s3, s3, s58"); a(f"s_add_u32 s{80+m}, s3, {goff}")
    def flush_wo():
        while any(True for _ in [0]) and a.bgq and len(a.bgq) > 24 + 11: a.bg(1)
    def bef0():
        a_off(20, G_O)
        a("s_mul_i32 s99, s28, 40960"); a("s_mul_i32 s56, s27, 1280"); a("s_add_u32 s99, s99, s56"); a("s_add_u32 s99, s99, s58")
        a("v_mul_u32_u24 v28, 20480, v11"); a("v_lshl_add_u32 v28, v10, 5, v28")
    def tch0():
        a("s_mov_b64 exec, 0x03ff03ff"); a.vmem("buffer_load_dword v4, v28, s[40:43], s99 offen sc1"); a("s_mov_b64 exec, -1")
    hop(0, bef0, lambda: None, post=0, touch=tch0, post2=P("POST0", 6))
    flush_wo()
    ACC = 32 ; FA3 = A0
    for n in range(5):
        for m in range(4):
            a.vmem(f"buffer_load_dwordx4 {R(FA3 + (n*4+m)*4, 4)}, v8, s[40:43], s{80+m} offen sc1", f"A{n}")
            a(f"s_add_u32 s{80+m}, s{80+m}, 4096")
    if "sc1hid" not in OPT: a.bgq.insert(0, hidtouch)
    RED = 102400
    S3BG = P("S3BG", 3)
    for n in range(5):
        a.wait(vm=f"A{n}")
        mf = [MF(ACC + (m*5+t)*4, FB3 + (n*5+t)*4, FA3 + (n*4+m)*4, n == 0) for m in range(4) for t in range(5)]
        a.interleave(mf, [lambda: a.bg(1)]*S3BG)
    a.stamp("s3end")
    HF = A0; BF = A0 + 160
    NA = P("NA", 4); BS = 4*max(NA, 7 - NA)
    if NA == 4:
        slots = [156 + 4*i for i in range(16)] + [A0 + 192 + 4*i for i in range(3)] + [A0 + 220 + 4*i for i in range(9)] + [HF + 4*i for i in range(40)] + [BF + 4*i for i in range(2)]
        NEARLY = 28
        arA = [A0 + 168 + 4*i for i in range(6)] + [A0 + 204 + 4*i for i in range(4)]
    else:
        for x in range(14): a(f"v_accvgpr_mov_b32 {R(A0 + 240 + x)}, {R(B1A + x)}")
        B1A = A0 + 240
        slots = [156 + 4*i for i in range(16)] + [A0 + 208 + 4*i for i in range(8)] + [HF + 4*i for i in range(40)] + [BF + 4*i for i in range(6)]
        NEARLY = 24
        arA = [A0 + 184 + 4*i for i in range(6)] + [A0 + 240 + 4*i for i in range(4)]
    def fb(n, t): return slots[n*5 + t]
    a("s_mul_i32 s3, s49, 54"); a("s_add_u32 s3, s3, s28"); a("s_mul_i32 s54, s3, 5120"); a(f"s_add_u32 s54, s54, {W2P}")
    def ldw2(n, t):
        if n == 13 and t == 0:
            a("s_cmp_ge_u32 s28, 2"); a("s_cselect_b32 s98, 0x40000000, 0"); a("s_add_u32 s54, s54, s98")
        a.vmem(f"buffer_load_dwordx4 {R(fb(n, t), 4)}, v{8 if t < 4 else 12}, s[40:43], s54 offen offset:{1024*(t&3)} sc1", f"W2_{n}")
        if t == 4: a("s_add_u32 s54, s54, 20480")
    w2q = [(n, t) for n in range(14) for t in range(5)]
    nw1left = len(a.bgq)
    def w2bg():
        ldw2(*w2q.pop(0))
    a.bgq += [w2bg]*NEARLY
    def reduce_epi(which, BIA=None, nbg=0):
        for m in range(1, 4):
            a(f"s_add_u32 s3, s28, {m}"); a("s_and_b32 s3, s3, 3"); a("s_mul_i32 s3, s3, 15360"); a(f"s_add_u32 s3, s3, {RED}")
            a(f"v_add_u32 v{16+m}, s3, v8")
        for m in range(1, 4):
            for t in range(5): a(f"ds_write_b128 v{16+m}, {R(ACC + (m*5+t)*4, 4)} offset:{(m-1)*5120 + t*1024}")
            a.bg(nbg)
        a("s_mul_i32 s3, s28, 15360"); a(f"s_add_u32 s3, s3, {RED}"); a("v_add_u32 v16, s3, v8")
        U = 27
        for t in range(5):
            for e in range(4):
                for src0 in ([RES] if which == 3 else [RES, BIA]):
                    src = src0 + 2*t + (e >> 1)
                    if e & 1: a(f"v_and_b32 v{U+e}, 0xffff0000, v{src}")
                    else: a(f"v_lshlrev_b32 v{U+e}, 16, v{src}")
                    a(f"v_add_f32 v{ACC+4*t+e}, v{ACC+4*t+e}, v{U+e}")
        a.bg(nbg)
        a("s_waitcnt lgkmcnt(0)")
        a("s_barrier")
        for t in range(5):
            for m in range(1, 4): a(f"ds_read_b128 {R(ACC + (m*5+t)*4, 4)}, v16 offset:{(m-1)*5120 + t*1024}")
        for t in range(5):
            a(f"s_waitcnt lgkmcnt({12 - 3*t})")
            for e in (0, 2):
                x0 = ACC + 4*t + e
                a(f"v_pk_add_f32 v[{x0+20}:{x0+21}], v[{x0+20}:{x0+21}], v[{x0+40}:{x0+41}]"); a(f"v_pk_add_f32 v[{x0}:{x0+1}], v[{x0}:{x0+1}], v[{x0+60}:{x0+61}]")
            for e in (0, 2):
                x0 = ACC + 4*t + e
                a(f"v_pk_add_f32 v[{x0}:{x0+1}], v[{x0}:{x0+1}], v[{x0+20}:{x0+21}]")
            for h in range(2): a(f"v_cvt_pk_bf16_f32 v{RES+2*t+h}, v{ACC+4*t+2*h}, v{ACC+4*t+2*h+1}")
            if which == 3:
                if t == 1: a.vmem(f"buffer_store_dwordx4 {R(RES, 4)}, v8, s[40:43], s57 offen{HS}")
                if t == 3: a.vmem(f"buffer_store_dwordx4 {R(RES+4, 4)}, v8, s[40:43], s57 offen offset:1024{HS}")
                if t == 4: a.vmem(f"buffer_store_dwordx2 {R(RES+8, 2)}, v13, s[40:43], s57 offen offset:2048{HS}")
    a("s_mul_i32 s57, s50, 20480"); a("s_mul_i32 s3, s49, 2560"); a("s_add_u32 s57, s57, s3"); a("s_add_u32 s57, s57, s58"); a(f"s_add_u32 s57, s57, {G_H}")
    reduce_epi(3, nbg=P("R3BG", 2))
    a(f"v_pk_add_f32 v[28:29], v[{ACC}:{ACC+1}], v[{ACC+2}:{ACC+3}]"); a(f"v_pk_mul_f32 v[30:31], v[{ACC}:{ACC+1}], v[{ACC}:{ACC+1}]"); a(f"v_pk_fma_f32 v[30:31], v[{ACC+2}:{ACC+3}], v[{ACC+2}:{ACC+3}], v[30:31]")
    for x in range(4, 20, 2):
        a(f"v_pk_add_f32 v[28:29], v[28:29], v[{ACC+x}:{ACC+x+1}]"); a(f"v_pk_fma_f32 v[30:31], v[{ACC+x}:{ACC+x+1}], v[{ACC+x}:{ACC+x+1}], v[30:31]")
    a("v_add_f32 v20, v28, v29"); a("v_add_f32 v21, v30, v31")
    def red_g(regs, tmp):
        for r_ in regs:
            a(f"v_mov_b32 {tmp}, {r_}"); a(f"v_permlane32_swap_b32 {r_}, {tmp}"); a(f"v_add_f32 {r_}, {r_}, {tmp}")
            a(f"v_mov_b32 {tmp}, {r_}"); a(f"v_permlane16_swap_b32 {r_}, {tmp}"); a(f"v_add_f32 {r_}, {r_}, {tmp}")
    red_g(["v20", "v21"], "v22")
    a("v_lshlrev_b32 v22, 1, v10")
    a("s_lshl_b32 s57, s50, 10"); a("s_lshl_b32 s3, s49, 7"); a("s_add_u32 s57, s57, s3"); a("s_add_u32 s57, s57, s58"); a(f"s_add_u32 s57, s57, {G_ST}")
    a.vmem(f"buffer_store_dwordx2 v[20:21], v22, s[40:43], s57 offen{HS}", "ST")
    CS = 128; CSL = 144384
    def bef3():
        a("s_mul_i32 s3, s28, 40960"); a("s_add_u32 s3, s3, s58"); a(f"s_add_u32 s80, s3, {G_H}"); a("s_add_u32 s81, s80, 20480")
        a("s_lshl_b32 s82, s28, 11"); a("s_add_u32 s82, s82, s58"); a(f"s_add_u32 s82, s82, {G_ST}")
        a("v_lshlrev_b32 v19, 8, v11"); a("v_lshl_add_u32 v19, v10, 1, v19")
        a("v_add_u32 v16, 57344, v8"); a("v_add_u32 v17, 114688, v8")
        a(f"s_mul_i32 s3, s28, {11*1024}"); a(f"s_add_u32 s3, s3, {96*1024}"); a("v_add_u32 v18, s3, v8")
        for e in range(4):
            a(f"v_add_f32 v{C1R+e}, v{C1R+e}, v{C1R+4+e}"); a(f"v_add_f32 v{C1R+8+e}, v{C1R+8+e}, v{C1R+12+e}")
            a(f"v_add_f32 v{C1R+e}, v{C1R+e}, v{C1R+16+e}"); a(f"v_add_f32 v{C1R+e}, v{C1R+e}, v{C1R+8+e}")
        a("s_lshl_b32 s3, s28, 9"); a(f"s_add_u32 s3, s3, {CSL}"); a("v_add_u32 v29, s3, v26")
    def aft3():
        if "W1" in a.vm: a.wait(vm="W1")
        for i in range(11): a(f"ds_write_b128 v18, {R(W1T + 4*i, 4)} offset:{1024*i}")
        a("s_mov_b64 exec, s[66:67]"); a(f"ds_write_b128 v29, {R(C1R, 4)}"); a("s_mov_b64 exec, -1")
        a("s_waitcnt lgkmcnt(0)")
    left1 = max(0, len(a.bgq) - len([1 for x in a.bgq if x is w2bg]))
    print("w1 left at hop3:", left1, "w2 issued:", 70 - len(w2q), file=sys.stderr)
    def tch1():
        a("s_mul_i32 s99, s50, 20480"); a("s_mul_i32 s98, s49, 2560"); a("s_add_u32 s99, s99, s98"); a("s_add_u32 s99, s99, s58"); a(f"s_add_u32 s99, s99, {G_H}")
        a("s_mov_b64 exec, 0xfffff"); a.vmem("buffer_load_dword v4, v3, s[40:43], s99 offen sc1"); a("s_mov_b64 exec, -1")
    hop(1, bef3, aft3, post=left1, touch=tch1, post2=max(0, P("POST1", 6) - left1))
    def hf(tt, k): return HF + (k*2 + tt)*4
    def ldh(k):
        def one(tt):
            a.vmem(f"buffer_load_dwordx4 {R(hf(tt, k), 4)}, v8, s[40:43], s{80+tt} offen offset:{1024*(k&3)} sc1", f"H{k}")
            if (k & 3) == 3: a(f"s_add_u32 s{80+tt}, s{80+tt}, 4096")
        return [lambda tt=tt: one(tt) for tt in range(2)]
    PRE = P("PRE4", 6)
    for k in range(PRE):
        for f in ldh(k): f()
    for tt in range(2):
        for q in range(2):
            a.vmem(f"buffer_load_dwordx2 {R(88 + 4*tt + 2*q, 2)}, v19, s[40:43], s82 offen offset:{1024*tt + 128*q} sc1", "STAT")
    def breads(ps, k):
        ts = range(NA) if ps == 0 else range(NA, 7)
        return [lambda t=t: a.ds(f"ds_read_b128 {R(BF + (k&1)*BS + 4*(t - ts[0]), 4)}, v{[8, 16, 17][k >> 3]} offset:{(k & 7)*7168 + 1024*t}", f"BR{ps}_{k}") for t in ts]
    for f in breads(0, 0): f()
    vS = [20, 21]; vQ = [24, 25]
    a(f"v_add_u32 v18, {CSL}, v23")
    hq = list(range(PRE, 20))
    B1U = 220
    c1 = -2.0*LOG2E*0.7978845608028654
    c2 = c1*0.044715
    a(f"s_mov_b32 s60, {hx(c1)}"); a(f"s_mov_b32 s61, {hx(c2)}")
    a("s_mul_i32 s56, s28, 110592"); a("s_lshl_b32 s3, s53, 9"); a("s_add_u32 s56, s56, s3"); a("s_add_u32 s56, s56, s58"); a(f"s_add_u32 s56, s56, {G_HID}"); a("s_add_u32 s57, s56, 55296")
    for k in range(20):
        a.wait(vm=f"H{k}", lg=f"BR0_{k}")
        front = breads(0, k+1) if k < 19 else breads(1, 0)
        side = []
        if hq: side += ldh(hq.pop(0))
        else: side += [lambda: a.bg(1)]*P("ABG", 1)
        if 1 <= k < 8:
            kk = k - 1; tb = 96 if kk % 2 == 0 else 220
            side.append(lambda kk=kk: a.wait(lg=f"CG{kk}"))
            for e in range(4):
                side += [f"v_add_f32 v{CS+4*kk+e}, v{CS+4*kk+e}, v{tb+e}", f"v_add_f32 v{tb+4+e}, v{tb+4+e}, v{tb+8+e}", f"v_add_f32 v{CS+4*kk+e}, v{CS+4*kk+e}, v{tb+4+e}"]
        if k < 7:
            tb = 96 if k % 2 == 0 else 220
            for w in range(4): front.append(lambda w=w, k=k, tb=tb: a.ds(f"ds_read_b128 {R((CS + 4*k) if w == 0 else (tb - 4 + 4*w), 4)}, v18 offset:{512*w + 64*k}", f"CG{k}"))
        if k == PRE + 2:
            for tt in range(2):
                side.append(f"v_add_f32 v{vS[tt]}, v{88+4*tt}, v{90+4*tt}"); side.append(f"v_add_f32 v{vQ[tt]}, v{89+4*tt}, v{91+4*tt}")
            side.append(lambda: red_g([f"v{x}" for x in vS + vQ], "v22"))
        if k == PRE + 3:
            for tt in range(2):
                s_, q_ = f"v{vS[tt]}", f"v{vQ[tt]}"
                side += [f"v_mul_f32 {s_}, s63, {s_}", f"v_mul_f32 {q_}, s63, {q_}", f"v_fma_f32 {q_}, -{s_}, {s_}, {q_}", f"v_max_f32 {q_}, 0, {q_}",
                         f"v_add_f32 v22, s64, {q_}", f"v_fma_f32 {q_}, v22, s64, {q_}", f"v_rsq_f32 {q_}, {q_}", f"v_mul_f32 {s_}, {s_}, {q_}"]
            side += ["v_mov_b32 v252, s60", "v_mov_b32 v253, s60", "s_mov_b32 s96, s61", "s_mov_b32 s97, s61"]
        if k >= 12:
            x = 2*(k - 12)
            for y in (x, x + 1):
                if y < 14:
                    side += [f"v_accvgpr_read_b32 v27, {R(B1A + y)}", f"v_lshlrev_b32 v{B1U+2*y}, 16, v27", f"v_and_b32 v{B1U+2*y+1}, 0xffff0000, v27"]
        mf = [MF(ACC + (tt*7+t)*4, BF + (k&1)*BS + 4*t, hf(tt, k), k == 0) for t in range(NA) for tt in range(2)]
        a.interleave(mf, side, front)
    a.stamp("s4A")
    PK = 88
    def gelu(tt, t, pk=False):
        L = []
        if pk:
            b_ = ACC + (tt*7+t)*4
            pr = lambda x: f"v[{x}:{x+1}]"
            for h in (0, 2): L.append(f"v_pk_fma_f32 {pr(248+h)}, v[20:21], {pr(CS+4*t+h)}, {pr(B1U+4*t+h)} op_sel:[{tt},0,0] op_sel_hi:[{tt},1,1] neg_lo:[1,0,0] neg_hi:[1,0,0]")
            for h in (0, 2): L.append(f"v_pk_fma_f32 {pr(b_+h)}, {pr(b_+h)}, v[24:25], {pr(248+h)} op_sel:[0,{tt},0] op_sel_hi:[1,{tt},1]")
            for h in (0, 2): L.append(f"v_pk_mul_f32 {pr(248+h)}, {pr(b_+h)}, {pr(b_+h)}")
            for h in (0, 2): L.append(f"v_pk_fma_f32 {pr(248+h)}, {pr(248+h)}, s[96:97], v[252:253]")
            for h in (0, 2): L.append(f"v_pk_mul_f32 {pr(248+h)}, {pr(248+h)}, {pr(b_+h)}")
            for e in range(4): L.append(f"v_exp_f32 v{248+e}, v{248+e}")
            for h in (0, 2): L.append(f"v_pk_add_f32 {pr(248+h)}, {pr(248+h)}, 1.0 op_sel_hi:[1,0]")
            for e in range(4): L.append(f"v_rcp_f32 v{248+e}, v{248+e}")
            for h in (0, 2): L.append(f"v_pk_mul_f32 {pr(b_+h)}, {pr(b_+h)}, {pr(248+h)}")
        else:
            for e in range(4):
                v_ = f"v{ACC + (tt*7+t)*4 + e}"; ta = f"v{248+e}"
                L += [f"v_fma_f32 {ta}, -v{vS[tt]}, v{CS+4*t+e}, v{B1U+4*t+e}", f"v_fma_f32 {v_}, {v_}, v{vQ[tt]}, {ta}", f"v_mul_f32 {ta}, {v_}, {v_}",
                      f"v_fma_f32 {ta}, {ta}, s61, v252", f"v_mul_f32 {ta}, {ta}, {v_}", f"v_exp_f32 {ta}, {ta}"]
            for e in range(4):
                ta = f"v{248+e}"; L += [f"v_add_f32 {ta}, 1.0, {ta}"]
            for e in range(4):
                ta = f"v{248+e}"; L += [f"v_rcp_f32 {ta}, {ta}"]
            for e in range(4):
                v_ = f"v{ACC + (tt*7+t)*4 + e}"; L.append(f"v_mul_f32 {v_}, {v_}, v{248+e}")
        for h in range(2):
            x0 = ACC + (tt*7+t)*4 + 2*h
            L.append(f"v_cvt_pk_bf16_f32 v{PK + tt*14 + 2*t + h}, v{x0}, v{x0+1}")
        if t & 1: L.append(lambda: a.vmem(f"buffer_store_dwordx4 {R(PK + tt*14 + 2*(t-1), 4)}, v8, s[40:43], s{56+tt} offen offset:{512*(t-1)}{HS2}", "ST"))
        if t == 6: L.append(lambda: a.vmem(f"buffer_store_dwordx2 {R(PK + tt*14 + 12, 2)}, v13, s[40:43], s{56+tt} offen offset:3072{HS2}", "ST"))
        return L
    gl = []
    for p in range(NA//2):
        for tt in range(2): gl += gelu(tt, 2*p, "pkB" in OPT) + gelu(tt, 2*p+1, "pkB" in OPT)
    a.bgq = []
    W2RATE = P("W2RATE", 2)
    for k in range(20):
        a.wait(lg=f"BR1_{k}")
        front = breads(1, k+1) if k < 19 else []
        q = (len(gl) + 19 - k)//(20 - k) if k > 0 else 0
        side = gl[:q]; gl = gl[q:]
        nin = max(0, min(W2RATE, len(w2q), NEARLY + 2*k - (70 - len(w2q))))
        for i_ in range(nin): side.insert((i_ + 1)*len(side)//(nin + 1), w2bg)
        mf = [MF(ACC + (tt*7+t)*4, BF + (k&1)*BS + 4*(t-NA), hf(tt, k), k == 0) for t in range(NA, 7) for tt in range(2)]
        a.interleave(mf, side, front)
    a.stamp("s4B")
    W2EPI = P("W2EPI", 2)
    seq = [(0, 4), (0, 5), (1, 4), (1, 5), (0, 6), (1, 6)] if NA == 4 else [(0, 6), (1, 6)]
    for i_, (tt, t) in enumerate(seq):
        L = gelu(tt, t, True)
        for j_, x in enumerate(L):
            a.run(x)
            if i_ < P("W2STOP", 4) and j_ in (6, 16)[:W2EPI] and w2q: ldw2(*w2q.pop(0))
    BIA = 126
    def bef4():
        srd(a, 32, 20, 2621440); srd(a, 36, 18, 1280)
        a_off(54, G_HID)
    npost = min(P("POST2", 4), len(w2q))
    a.bgq = [lambda x=x: ldw2(*x) for x in w2q[:npost]]; w2q = w2q[npost:]
    print("w2 left after hop4:", len(w2q), file=sys.stderr)
    def tch2():
        a("v_lshrrev_b32 v28, 5, v1"); a("v_mul_u32_u24 v28, 55296, v28"); a("v_and_b32 v29, 31, v1"); a("v_lshl_add_u32 v28, v29, 7, v28")
        a("s_mov_b32 exec_lo, 0x0fffffff"); a("s_mov_b32 exec_hi, 0x0fffffff"); a.vmem("buffer_load_dword v4, v28, s[40:43], s56 offen sc1"); a("s_mov_b64 exec, -1")
    hop(2, bef4, lambda: None, post=0, touch=tch2, post2=npost)
    ar = [136 + 4*i for i in range(5)] + [220 + 4*i for i in range(9)] + arA
    NR = 6
    def fa(n, m): return ar[(n % NR)*4 + m]
    def lda5(n):
        def one(m):
            if n == 13 and m == 0:
                a("s_cmp_ge_u32 s28, 2"); a("s_cselect_b32 s3, 0x40000000, 0")
                for q in range(4): a(f"s_add_u32 s{80+q}, s{80+q}, s3")
            a.vmem(f"buffer_load_dwordx4 {R(fa(n, m), 4)}, v8, s[40:43], s{80+m} offen sc1", f"A5_{n}")
            a(f"s_add_u32 s{80+m}, s{80+m}, 4096")
        return [lambda m=m: one(m) for m in range(4)]
    PRE5 = P("PRE5", 3)
    def need_w2(n):
        L = []
        while w2q and w2q[0][0] <= n:
            x = w2q.pop(0); L.append(lambda x=x: ldw2(*x))
        return L
    for n in range(PRE5):
        for f in need_w2(n) + lda5(n): f()
    def ldbia():
        a("v_lshlrev_b32 v28, 3, v11"); a("s_mul_i32 s3, s49, 160")
        a.vmem(f"buffer_load_dwordx4 {R(BIA, 4)}, v23, s[36:39], s3 offen")
        a.vmem(f"buffer_load_dwordx4 {R(BIA+4, 4)}, v23, s[36:39], s3 offen offset:64")
        a.vmem(f"buffer_load_dwordx2 {R(BIA+8, 2)}, v28, s[36:39], s3 offen offset:128")
    nxt = PRE5
    for n in range(14):
        a.wait(vm=f"A5_{n}")
        side = []; cnt = 0
        while nxt < 14 and nxt <= n + NR - 1 and cnt < 2:
            side += need_w2(nxt) + lda5(nxt); nxt += 1; cnt += 1
        if n == 2: side.append(ldbia)
        mf = [MF(ACC + (m*5+t)*4, fb(n, t), fa(n, m), n == 0) for m in range(4) for t in range(5)]
        a.interleave(mf, side)
    a.stamp("s5end")
    reduce_epi(5, BIA)
    a(f"buffer_store_dwordx4 {R(RES, 4)}, v14, s[32:35], s51 offen")
    a(f"buffer_store_dwordx4 {R(RES+4, 4)}, v14, s[32:35], s51 offen offset:64")
    a(f"buffer_store_dwordx2 {R(RES+8, 2)}, v15, s[32:35], s51 offen offset:128")
    a("s_or_b32 s3, s2, s28"); a("s_cmp_lg_u32 s3, 0"); a("s_cbranch_scc1 L_notagclr")
    a("global_store_dword v5, v5, s[22:23] sc1")
    a("L_notagclr:")
    a.stamp("stored")
    if STAMP:
        a("s_waitcnt vmcnt(0)")
        a.stamp("end")
        a("v_writelane_b32 v7, s79, 30")
        a("s_lshl_b32 s3, s2, 2"); a("s_add_u32 s3, s3, s28"); a("s_lshl_b32 s3, s3, 8"); a(f"s_add_u32 s3, s3, {STB}")
        a("v_lshlrev_b32 v27, 2, v1"); a("v_add_u32 v27, s3, v27")
        a("global_store_dword v27, v7, s[24:25]")
        a.a.raw("; STAMPS " + " ".join(a.names))
    a("L_end:")
    a("s_endpgm")
    return a.a

def main(out):
    hdr = open("sequential_preLN__linear_attn_block__mixer_channel_mlp__prompt.s.ref").read().split("\n")
    hdr = [l for l in hdr if l.startswith(";") and "@launch" not in l]
    hdr.append("; @launch grid=(256,1,1) block=(256,1,1) lds=163840")
    a = gen()
    pre = '.amdgcn_target "amdgcn-amd-amdhsa--gfx950"\n.text\n'
    T1, T2 = build_tables()
    a.raw(".p2align 6\nT1_tab:")
    a.raw(".short " + ",".join(map(str, T1)))
    a.raw("T2_tab:")
    for row in T2: a.raw(".short " + ",".join(map(str, row)))
    a.raw(".fill 2048, 4, 0")
    a.raw('.section .rodata,"a"\n.p2align 6')
    a.raw(f""".amdhsa_kernel {NAME}
  .amdhsa_next_free_vgpr 512
  .amdhsa_next_free_sgpr 102
  .amdhsa_accum_offset 256
  .amdhsa_group_segment_fixed_size 0
  .amdhsa_kernarg_size 88
  .amdhsa_user_sgpr_count 2
  .amdhsa_user_sgpr_kernarg_segment_ptr 1
  .amdhsa_system_sgpr_workgroup_id_x 1
.end_amdhsa_kernel""")
    open(out, "w").write("\n".join(hdr) + "\n" + pre + a.finish())

if __name__ == "__main__":
    main(sys.argv[1])
```

```python
import sys, struct, os
from asmdsl import Asm, R, S
from gen1 import build_tables, PAIRS, f2u, hx, divmod_const, srd, LOG2E

NAME = "sequential_preLN__linear_attn_block__mixer_channel_mlp__prompt_kernel"
WOP = 0
W2P = WOP + 8*20*5*1024
W1P = W2P + 8*54*5*1024
C1P = W1P + 16*20*7*1024
WQKV = C1P + 320*512
PART = WQKV + 16*153600
GRP = PART + 256*4096
G_O = 0; G_H = 163840; G_ST = 327680; G_FL = 335872; G_HID = 336896; G_SZ = G_HID + 442368
FLG = GRP + 16*G_SZ
F1 = FLG; F1R = FLG + 8192; F0 = FLG + 10240; FU = FLG + 14336
WS_END = FLG + 20480
A0 = 256
STAMP = int(os.environ.get("STAMP", "0"))
STB = 32 << 20
POLLMAX = 1 << 15
OPT = set(os.environ.get("OPT", "").split(","))
def P(name, d): return int(os.environ.get(name, d))

class G:
    def __init__(self):
        self.a = Asm(); self.vm = []; self.lg = []; self.nst = 0; self.bgq = []; self.names = []
    def __call__(self, t): self.a(t)
    def vmem(self, text, tag=None): self.a(text); self.vm.append(tag)
    def ds(self, text, tag=None): self.a(text); self.lg.append(tag)
    def _n(self, lst, tag, cap):
        idx = max(i for i, t in enumerate(lst) if t == tag)
        return min(len(lst) - 1 - idx, cap)
    def wait(self, vm=None, lg=None):
        s = []
        if vm is not None: s.append(f"vmcnt({0 if vm == 'all' else self._n(self.vm, vm, 63)})")
        if lg is not None: s.append(f"lgkmcnt({0 if lg == 'all' else self._n(self.lg, lg, 15)})")
        self.a("s_waitcnt " + " ".join(s))
        if vm == 'all': self.vm = []
        if lg == 'all': self.lg = []
    def stamp(self, name=""):
        if not STAMP: return
        i = self.nst; self.nst += 1; self.names.append(name)
        assert i < 30
        self.a("s_memtime s[100:101]"); self.a("s_waitcnt lgkmcnt(0)"); self.a(f"v_writelane_b32 v7, s100, {i}")
    def run(self, x): x() if callable(x) else self.a(x)
    def bg(self, n=1):
        for _ in range(n):
            if self.bgq: self.bgq.pop(0)()
    def interleave(self, main, extra, front=()):
        n = len(main); m = len(extra); j = 0; front = list(front)
        for i, x in enumerate(main):
            self.run(x)
            if front:
                self.run(front.pop(0))
                if len(front) >= n - i and front: self.run(front.pop(0))
            while j < m and (j + 1) * n <= (i + 1) * m + (n - 1):
                self.run(extra[j]); j += 1
        for x in front: self.run(x)
        while j < m:
            self.run(extra[j]); j += 1

def MF(d, a_, b_, first): return f"v_mfma_f32_16x16x32_bf16 {R(d,4)}, {R(a_,4)}, {R(b_,4)}, {'0' if first else R(d,4)}"

def phi(a, val, t1, t2):
    a(f"v_mul_f32 {t1}, s60, {val}")
    a(f"v_max_f32 {t2}, 0, {val}")
    a(f"v_exp_f32_e64 {t1}, {t1} clamp")
    a(f"v_add_f32 {t2}, s61, {t2}")
    a(f"v_add_f32 {val}, {t1}, {t2}")

OPT |= {"sc1h", "sc1hid", "notouch", "usfirst"}
def phi4(a, b_, T, sel_mask=None):
    for h in range(2): a(f"v_pk_mul_f32 v[{T+2*h}:{T+2*h+1}], v[{b_+2*h}:{b_+2*h+1}], s[94:95]")
    for e in range(4): a(f"v_max_f32 v{T+4+e}, 0, v{b_+e}")
    for e in range(4): a(f"v_exp_f32_e64 v{T+e}, v{T+e} clamp")
    for h in range(2): a(f"v_pk_add_f32 v[{T+4+2*h}:{T+5+2*h}], v[{T+4+2*h}:{T+5+2*h}], s[96:97]")
    if sel_mask is None:
        for h in range(2): a(f"v_pk_add_f32 v[{b_+2*h}:{b_+2*h+1}], v[{T+2*h}:{T+2*h+1}], v[{T+4+2*h}:{T+5+2*h}]")
    else:
        for h in range(2): a(f"v_pk_add_f32 v[{T+2*h}:{T+2*h+1}], v[{T+2*h}:{T+2*h+1}], v[{T+4+2*h}:{T+5+2*h}]")
        for e in range(4): a(f"v_cndmask_b32 v{b_+e}, v{b_+e}, v{T+e}, {sel_mask}")
HS = " sc1"
HS2 = " sc1"
def gen():
    a = G()
    name = NAME
    NRAW = P("NRAW", 2)
    a.a.raw(f".globl {name}\n.p2align 8\n.type {name},@function\n{name}:")
    a("s_cmp_ge_u32 s2, 256"); a("s_cbranch_scc1 L_end")
    a("s_load_dwordx16 s[4:19], s[0:1], 0")
    a("s_load_dwordx4 s[20:23], s[0:1], 64")
    a("s_load_dwordx2 s[24:25], s[0:1], 80")
    a("s_memrealtime s[76:77]")
    a("s_getpc_b64 s[30:31]")
    a("L_pc:")
    a("v_mov_b32 v7, 0")
    a.stamp("start")
    a("v_lshrrev_b32 v2, 6, v0"); a("v_and_b32 v1, 63, v0")
    a("v_readfirstlane_b32 s28, v2")
    if "m48" in OPT:
        a("s_and_b32 s3, s2, 7"); a("s_lshr_b32 s29, s2, 3")
        a("s_lshr_b32 s26, s3, 1"); a("s_lshl_b32 s26, s26, 2"); a("s_lshr_b32 s27, s29, 3"); a("s_add_u32 s26, s26, s27")
        a("s_and_b32 s3, s3, 1"); a("s_lshl_b32 s3, s3, 2"); a("s_and_b32 s27, s29, 3"); a("s_or_b32 s27, s27, s3")
        a("s_and_b32 s29, s29, 4"); a("s_lshl_b32 s29, s29, 1"); a("s_or_b32 s27, s27, s29")
    else:
        a("s_and_b32 s3, s2, 7"); a("s_lshr_b32 s27, s2, 3"); a("s_lshr_b32 s26, s27, 4"); a("s_lshl_b32 s3, s3, 1")
        a("s_add_u32 s26, s26, s3")
        a("s_and_b32 s27, s27, 15")
    a("v_lshlrev_b32 v3, 7, v1")
    a("s_cmp_lg_u32 s28, 3"); a("s_cbranch_scc1 L_nocp")
    a("s_mul_i32 s3, s27, 13"); a("s_lshr_b32 s3, s3, 6"); a("s_mul_i32 s3, s3, 5"); a("s_sub_u32 s3, s27, s3"); a("s_lshl_b32 s3, s3, 13")
    a("v_add_u32 v27, s3, v3")
    a("global_load_dword v4, v27, s[30:31]")
    a("L_nocp:")
    BQ = 102400; SCR = 153600; CSX = 161792
    vXA = [72, 73, 74, 75]; vW = [76, 77]; vRd = [78, 79]; vTB = [17, 18, 19, 20]; vTQ = [86, 87, 88, 89]; vTQ2 = [90, 91, 21, 22]
    vSA = [80, 81, 82]; vBA = [144, 145, 146, 147, 148]; vTR = [149, 150, 151, 152]
    vT1 = 24; vSTW = 25
    ACC = 32; RAW = 160; XF = A0; BF = A0 + 160; ONES = A0 + 200; GR = A0 + 204; RSM = A0 + 212; OH = A0 + 220; CSA = A0 + 240; CSQ = A0 + 244
    t0, t1, t2, t3 = "v27", "v28", "v29", "v30"
    a("v_lshlrev_b32 v8, 4, v1"); a("v_lshlrev_b32 v9, 4, v0")
    a("v_and_b32 v10, 15, v1"); a("v_lshlrev_b32 v10, 2, v10")
    a("v_lshrrev_b32 v11, 4, v1"); a("v_mov_b32 v5, 0"); a("v_add_u32 v12, 4096, v8")
    a("v_and_b32 v27, 3, v1"); a("s_lshl_b32 s3, s28, 2"); a("v_add_u32 v27, s3, v27"); a("v_min_u32 v27, 14, v27")
    a("v_lshrrev_b32 v28, 2, v1"); a("v_mul_u32_u24 v28, 3840, v28"); a("v_lshl_add_u32 v28, v27, 4, v28")
    a("v_add_u32 v29, 1440, v28"); a("v_add_u32 v30, 2640, v28")
    a("v_cmp_gt_u32 vcc, 10, v27"); a("v_cndmask_b32 v28, v28, v30, vcc")
    a("v_cmp_gt_u32 vcc, 5, v27"); a("v_cndmask_b32 v83, v28, v29, vcc")
    a("v_lshrrev_b32 v27, 3, v1"); a("v_and_b32 v28, 7, v1"); a("v_mul_u32_u24 v29, 1280, v27")
    a(f"v_lshl_add_u32 v{vXA[0]}, v28, 4, v29")
    for rg in range(1, 4): a(f"v_add_u32 v{vXA[rg]}, {10240*rg}, v{vXA[0]}")
    a("s_lshl_b32 s3, s28, 11"); a(f"s_add_u32 s48, s3, {SCR}")
    a("v_lshrrev_b32 v29, 1, v27"); a("v_xor_b32 v29, v29, v28"); a("v_lshlrev_b32 v29, 4, v29"); a("v_lshl_add_u32 v29, v27, 7, v29")
    a(f"v_add_u32 v{vW[0]}, s48, v29")
    a("v_xor_b32 v29, 64, v29"); a("v_add_u32 v29, 1024, v29"); a(f"v_add_u32 v{vW[1]}, s48, v29")
    a("v_subrev_u32 v83, 160, v83")
    a("s_mul_i32 s50, s26, 153600"); a("s_mul_i32 s51, s27, 80"); a("s_add_u32 s50, s50, s51")
    a("s_mul_i32 s53, s28, 3072"); a(f"s_add_u32 s53, s53, {BQ + 28672}")
    a("s_lshl_b32 s49, s26, 7"); a("s_lshl_b32 s3, s28, 5"); a("s_add_u32 s49, s49, s3"); a("s_mul_i32 s49, s49, 1280")
    a("s_lshr_b32 s3, s28, 1"); a("s_lshl_b32 s3, s3, 7"); a("s_add_u32 s62, s49, 128"); a("s_sub_u32 s62, s62, s3"); a("s_add_u32 s49, s49, s3")
    a("s_mul_i32 s52, s28, 5120")
    a(f"s_mul_i32 s58, s26, {G_SZ}"); a(f"s_add_u32 s58, s58, {GRP}")
    a("s_mul_i32 s3, s26, 163840"); a("s_mul_i32 s56, s27, 10240"); a("s_add_u32 s3, s3, s56"); a("s_mul_i32 s56, s28, 2560"); a("s_add_u32 s57, s3, s56")
    a("s_lshl_b32 s70, s28, 4"); a("s_add_u32 s70, s70, s26")
    a(f"s_mul_i32 s71, s28, 7168"); a(f"s_add_u32 s71, s71, {BQ}")
    a("v_mov_b32 v2, 0x7fffffff")
    a("s_waitcnt lgkmcnt(0)")
    srd(a, 36, 6, 2457600)
    SLNT = "" if "slplain" in OPT else " nt"
    for i in range(3):
        a(f"s_add_u32 m0, s53, {1024*i}")
        if i == 2: a("s_bfm_b64 exec, 32, 0")
        a.vmem(f"buffer_load_dwordx4 v83, s[36:39], s50 offen{SLNT} lds", "SLD")
        a(f"s_add_u32 s50, s50, {16*3840}")
    srd(a, 32, 4, 2621440); srd(a, 40, 24, WS_END)
    a("s_mov_b64 exec, 0xfffff")
    a.vmem(f"buffer_load_dword v4, v3, s[32:35], s57 offen{' nt' if 'xtnt' in OPT else ''}")
    if "tlb" in OPT:
        a("v_lshlrev_b32 v27, 20, v1"); a("s_bfm_b64 exec, 24, 0")
        a.vmem(f"buffer_load_dword v4, v27, s[40:43], 0 offen")
    a("s_mov_b64 exec, -1")
    a("s_and_b32 s76, s76, 0xfffffff8"); a("s_or_b32 s76, s76, 8")
    a("s_or_b32 s3, s2, s28"); a("s_cmp_lg_u32 s3, 0"); a("s_cbranch_scc1 L_notag")
    a("v_mov_b32 v28, s76"); a("global_store_dword v5, v28, s[22:23] sc1")
    a("L_notag:")
    srd(a, 44, 12, 2211840)
    def rp_issue(nt, pitch_src, nch):
        for i in range(7):
            if i < nt:
                a(f"v_add_u32 v27, {64*i}, v1")
                divmod_const(a, "v28", "v29", "v27", nch)
                a(f"v_mul_u32_u24 v28, {pitch_src}, v28"); a("v_lshl_add_u32 v28, v29, 4, v28")
                a(f"s_add_u32 m0, s71, {1024*i}")
                a(f"buffer_load_dwordx4 v28, s[44:47], s73 offen nt lds")
            else:
                a("buffer_load_dword v4, v2, s[44:47], 0 offen")
    def unit_issue():
        a("s_cmp_ge_u32 s70, 20"); a("s_cbranch_scc1 L_rp5")
        a("s_mov_b32 s72, 1")
        a("s_mul_i32 s75, s27, 27"); a("s_lshr_b32 s75, s75, 2"); a("s_lshl_b32 s75, s75, 5")
        a("s_mul_i32 s79, s70, 110592"); a("s_add_u32 s73, s75, s79")
        a("s_mul_i32 s75, s27, 20"); a("s_add_u32 s70, s70, s75")
        a("s_mul_i32 s74, s70, 7168"); a(f"s_add_u32 s74, s74, {W1P}")
        rp_issue(7, 3456, 14)
        a("s_branch L_rp_issued")
        a("L_rp5:")
        a("s_mov_b32 s72, 2")
        a("s_sub_u32 s79, s70, 20"); a("s_lshl_b32 s79, s79, 1"); a("s_lshr_b32 s75, s27, 3"); a("s_add_u32 s79, s79, s75"); a("s_and_b32 s75, s27, 7")
        a("s_cmp_ge_u32 s79, 54"); a("s_cbranch_scc1 L_rpwo")
        srd(a, 44, 16, 2211840)
        a("s_mul_i32 s78, s75, 54"); a("s_add_u32 s78, s78, s79")
        a("s_mul_i32 s74, s78, 5120"); a(f"s_add_u32 s74, s74, {W2P}")
        a("s_branch L_rp5b")
        a("L_rpwo:")
        srd(a, 44, 8, 819200)
        a("s_sub_u32 s79, s79, 54")
        a("s_mul_i32 s78, s75, 20"); a("s_add_u32 s78, s78, s79")
        a("s_mul_i32 s74, s78, 5120"); a(f"s_add_u32 s74, s74, {WOP}")
        a("s_cmp_ge_u32 s79, 20"); a("s_cselect_b32 s74, 0x40000000, s74")
        a("L_rp5b:")
        a("s_mul_i32 s75, s75, 160"); a("s_mul_i32 s79, s79, 40960"); a("s_add_u32 s73, s75, s79")
        rp_issue(5, 1280, 10)
        a("L_rp_issued:")
        a.vm += ["UL"]*7
    def raw(cx, rg): return 96 + (((cx + 1) % 10)*4 + rg)*4
    def xf(tt, k): return XF + (tt*20 + k)*4
    def ldx(cx):
        return [lambda cx=cx, rg=rg: a.vmem(f"buffer_load_dwordx4 {R(raw(cx, rg), 4)}, v{vXA[rg]}, s[32:35], s{62 if cx & 1 else 49} offen offset:{256*(cx>>1)}", f"X{cx}") for rg in range(4)]
    a("v_and_b32 v27, 15, v1")
    a("v_cmp_gt_u32 s[66:67], 8, v27")
    a("v_cmp_gt_u32 s[90:91], 32, v1"); a("v_cmp_gt_u32 s[92:93], 48, v1")
    a("v_cmp_eq_u32 s[88:89], 1, v11")
    a("v_and_b32 v29, 1, v11")
    a("s_lshl_b32 s3, s28, 1"); a("v_add_u32 v29, s3, v29")
    a("v_cmp_gt_u32 s[94:95], 5, v29"); a("v_cmp_eq_u32 s[96:97], 7, v29")
    a("v_lshlrev_b32 v29, 10, v29"); a(f"v_add_u32 v30, {BQ - 5120}, v29"); a("v_cndmask_b32 v29, v30, v29, s[94:95]")
    a("v_lshl_add_u32 v29, v10, 2, v29")
    a("v_mov_b32 v30, 2560"); a("v_mov_b32 v31, 5120"); a("v_cndmask_b32 v30, v30, v31, s[94:95]")
    a("v_mov_b32 v31, 8"); a("v_cndmask_b32 v31, v31, 7, s[96:97]")
    a("s_andn2_b64 s[96:97], s[96:97], s[66:67]")
    a("s_mul_i32 s3, s26, 5")
    a("v_lshrrev_b32 v28, 1, v11"); a("v_add_u32 v28, s3, v28")
    for n in range(3):
        a(f"v_lshrrev_b32 v27, 2, v28"); a(f"v_mad_u32_u24 v{vSA[n]}, v27, v30, v29")
        a("v_and_b32 v27, 3, v28"); a("v_lshlrev_b32 v27, v31, v27"); a(f"v_add_u32 v{vSA[n]}, v{vSA[n]}, v27")
        a(f"v_cndmask_b32 v{vSA[n]}, v{vSA[n]}, v2, s[96:97]")
        if n == 2: a(f"v_cndmask_b32 v{vSA[n]}, v2, v{vSA[n]}, s[90:91]")
        else: a("v_add_u32 v28, 2, v28")
    a("v_lshrrev_b32 v27, 5, v1"); a("v_bfe_u32 v28, v1, 2, 2"); a("v_lshl_add_u32 v27, v27, 3, v28"); a("v_lshlrev_b32 v27, 6, v27")
    a("v_bfe_u32 v28, v1, 4, 1"); a("v_lshl_add_u32 v27, v28, 5, v27"); a("v_and_b32 v28, 3, v1"); a("v_lshl_add_u32 v27, v28, 3, v27")
    a("v_add_u32 v84, s53, v27")
    a("s_mul_i32 s54, s27, 153600"); a(f"s_add_u32 s54, s54, {WQKV}")
    a.wait(vm="SLD")
    a.stamp("sld")
    for n in range(3):
        for h in range(2): a(f"ds_read_b64_tr_b16 {R(96 + 4*n + 2*h, 2)}, v84 offset:{1024*n + 256*h}")
    a("s_waitcnt lgkmcnt(0)")
    for n in range(3): a.vmem(f"buffer_store_dwordx4 {R(96 + 4*n, 4)}, v{vSA[n]}, s[40:43], s54 offen sc1", "SL")
    a.vmem("global_load_dword v6, v5, s[22:23] sc1", "TAG")
    NX0 = P("NX0", 3)
    for cx in range(NX0):
        for f in ldx(cx): f()
    a("v_and_b32 v27, 15, v1")
    a("v_lshrrev_b32 v29, 1, v27"); a("v_xor_b32 v29, v29, v11"); a("v_lshlrev_b32 v29, 4, v29"); a("v_lshl_add_u32 v29, v27, 7, v29")
    a("s_and_b32 s3, s28, 1"); a("s_lshl_b32 s3, s3, 6"); a("v_xor_b32 v29, s3, v29")
    a(f"v_add_u32 v{vRd[0]}, s48, v29"); a("v_xor_b32 v29, 64, v29"); a(f"v_add_u32 v{vRd[1]}, s48, v29")
    a("v_lshrrev_b32 v29, 2, v27"); a("v_cmp_eq_u32 vcc, v29, v11")
    a("v_lshlrev_b32 v30, 2, v1"); a("v_add_u32 v30, 512, v30")
    a("v_cndmask_b32 v29, v30, v10, vcc"); a(f"v_add_u32 v{vSTW}, s48, v29")
    a("v_and_b32 v29, 1, v1"); a("v_cmp_eq_u32 s[68:69], 1, v29")
    a("v_and_b32 v29, 2, v1"); a("v_cmp_eq_u32 s[86:87], 2, v29")
    a("v_mov_b32 v28, 0x3f803f80")
    for i in range(4): a(f"v_accvgpr_write_b32 {R(ONES+i)}, v28")
    for t in range(5):
        a(f"v_cmp_eq_u32 vcc, {t}, v27"); a("v_cndmask_b32 v29, 0, v28, vcc")
        for e in range(4): a(f"v_accvgpr_write_b32 {R(OH+4*t+e)}, v29")
    a("v_and_b32 v27, 7, v1"); a("v_lshlrev_b32 v27, 4, v27"); a("v_lshl_add_u32 v27, v11, 7, v27")
    for p in range(4):
        a(f"s_xor_b32 s3, s28, {p}"); a("s_mul_i32 s56, s3, 5120"); a(f"v_add_u32 v{vTB[p]}, s56, v8")
        a("s_mul_i32 s56, s3, 2560"); a(f"s_add_u32 s56, s56, {BQ}"); a(f"v_add_u32 v{vTQ[p]}, s56, v8"); a("s_add_u32 s56, s56, 2048"); a(f"v_add_u32 v{vTQ2[p]}, s56, v27")
    a(f"s_mov_b32 s60, {hx(LOG2E)}"); a(f"s_mov_b32 s61, {hx(1e-6)}")
    a(f"s_mov_b32 s63, {hx(1.0/640)}"); a(f"s_mov_b32 s64, {hx(1e-5)}")
    a("s_lshl_b32 s55, s27, 8"); a(f"s_add_u32 s55, s55, {F0}")
    a("v_lshlrev_b32 v26, 2, v1")
    a("s_lshl_b32 s3, s26, 4"); a("s_lshl_b32 s56, s28, 2"); a("s_add_u32 s3, s3, s56"); a("s_add_u32 s3, s3, s55")
    a.wait(vm="TAG")
    a("v_readfirstlane_b32 s76, v6"); a("s_mov_b32 s78, 0")
    a("L_tp1:")
    a("s_cmp_lg_u32 s76, 0"); a("s_cbranch_scc1 L_tp1_ok")
    a("global_load_dword v6, v5, s[22:23] sc1"); a("s_add_u32 s78, s78, 1"); a("s_waitcnt vmcnt(0)")
    a("v_readfirstlane_b32 s76, v6")
    a(f"s_cmp_lt_u32 s78, {POLLMAX}"); a("s_cbranch_scc1 L_tp1")
    a("L_tp1_ok:")
    a("s_getreg_b32 s77, hwreg(HW_REG_XCC_ID)"); a("s_and_b32 s77, s77, 7"); a("s_or_b32 s77, s77, s76")
    a("s_lshl_b32 s57, s26, 7"); a("s_lshl_b32 s56, s27, 2"); a("s_add_u32 s57, s57, s56"); a(f"s_add_u32 s57, s57, {F1R}")
    a("s_cmp_eq_u32 s28, 0"); a("s_cselect_b32 s57, s57, 0x40000000"); a("v_mov_b32 v27, s77")
    a("s_mov_b64 exec, 1"); a.vmem("buffer_store_dword v6, v5, s[40:43], s3 offen sc1"); a.vmem("buffer_store_dword v27, v5, s[40:43], s57 offen sc1"); a("s_mov_b64 exec, -1")
    a.stamp("F0pub")
    def rp_fin(nt, RG):
        pitch = nt*32
        a("v_bfe_u32 v28, v1, 2, 2"); a("v_lshl_add_u32 v27, v11, 3, v28"); a("v_and_b32 v28, 3, v1")
        a(f"v_mul_u32_u24 v29, {pitch}, v27"); a("v_add_u32 v29, s71, v29")
        a("v_lshl_add_u32 v30, v28, 3, v29"); a("v_lshl_add_u32 v29, v28, 4, v29")
        for t in range(nt):
            for h in range(2):
                if t == nt - 1: a(f"ds_read_b64_tr_b16 {R(RG + 4*t + 2*h, 2)}, v30 offset:{h*4*pitch + 32*t}")
                else: a(f"ds_read_b64_tr_b16 {R(RG + 4*t + 2*h, 2)}, v29 offset:{h*4*pitch + 64*(t>>1) + 8*(t&1)}")
        if nt == 7:
            a("v_mov_b32 v28, 0x3f803f80")
            for t in (5, 6):
                a(f"v_cmp_eq_u32 vcc, {4*t}, v10")
                for e in range(4): a(f"v_cndmask_b32 v{RG+28+4*(t-5)+e}, 0, v28, vcc")
        a("s_waitcnt lgkmcnt(0)")
        if nt == 7:
            for t in range(7): a(MF(RG+36, RG + 4*t, OH + 4*t if t < 5 else RG+28+4*(t-5), t == 0))
    def rp_store(nt, RG):
        for t in range(nt):
            a(f"buffer_store_dwordx4 {R(RG + 4*t, 4)}, v{8 if t < 4 else 12}, s[40:43], s74 offen offset:{1024*(t&3)} sc1")
        if nt == 7:
            a("v_lshlrev_b32 v29, 4, v11"); a("v_lshl_add_u32 v29, v10, 4, v29"); a("v_cndmask_b32 v29, v2, v29, s[66:67]")
            a("s_lshl_b32 s3, s70, 9"); a(f"s_add_u32 s3, s3, {C1P}")
            a(f"buffer_store_dwordx4 {R(RG+36, 4)}, v29, s[40:43], s3 offen sc1")
        else:
            for _ in range(3): a("buffer_store_dword v5, v2, s[40:43], 0 offen")
    def acc(tt, t): return ACC + (tt*5 + t)*4
    def transp(cx):
        L = []
        for tt in range(2):
            L.append(lambda tt=tt: a.ds(f"ds_write_b128 v{vW[0]}, {R(raw(cx, 2*tt), 4)}"))
            L.append(lambda tt=tt: a.ds(f"ds_write_b128 v{vW[1]}, {R(raw(cx, 2*tt+1), 4)}"))
            L.append(lambda tt=tt: a.ds(f"ds_read_b128 {R(xf(tt, 2*cx), 4)}, v{vRd[0]}"))
            L.append(lambda tt=tt: a.ds(f"ds_read_b128 {R(xf(tt, 2*cx+1), 4)}, v{vRd[1]}", f"T{cx}"))
        return L
    def statm(k):
        L = []
        for tt in range(2):
            L.append(MF(GR + 4*tt, xf(tt, k), xf(tt, k), k == 0)); L.append(MF(RSM + 4*tt, ONES, xf(tt, k), k == 0))
        return L
    def breads1(s):
        j, p = divmod(s, 4); L = []
        for t in range(5):
            L.append(lambda t=t: a.ds(f"ds_read_b128 {R(BF + (s&1)*20 + t*4, 4)}, v{vTB[p]} offset:{(j % 3)*20480 + t*1024}", f"R{s}"))
        if j == 2: L.append(f"v_add_u32 v{vTB[p]}, 61440, v{vTB[p]}")
        return L
    def ldb(j):
        def one(i):
            if i == 0: a(f"s_add_u32 m0, s52, {j*20480}"); a("s_add_u32 s57, s54, m0")
            if i == 4: a(f"s_add_u32 m0, s52, {j*20480 + 4096}")
            a.vmem(f"buffer_load_dwordx4 v{8 if i < 4 else 12}, s[40:43], s57 offen offset:{1024*(i&3)} sc1 lds", f"B{j}")
        return [lambda i=i: one(i) for i in range(5)]
    def ldq():
        def one(i):
            if i == 11: a("s_cmp_eq_u32 s28, 3"); a("s_cbranch_scc1 L_noq")
            a(f"s_mul_i32 s98, s28, 13312"); a(f"s_add_u32 m0, s98, {BQ + i*1024}"); a("s_add_u32 s98, s54, m0")
            a.a(f"buffer_load_dwordx4 v8, s[40:43], s98 offen sc1 lds")
            if i < 11: a.vm.append("BQ")
            if i == 12: a("L_noq:")
        return [lambda i=i: one(i) for i in range(11)] + [lambda: (one(11), one(12))]
    def ldt1():
        a("v_lshlrev_b32 v27, 1, v0"); a("s_add_u32 s56, s30, T1_tab-L_pc"); a("s_addc_u32 s57, s31, 0")
        a.vmem(f"global_load_ushort v{vT1}, v27, s[56:57]", "T1")
    def kv_mf(s):
        mf = []
        for t in range(5):
            b = BF + (s&1)*20 + t*4
            for tt in range(2): mf.append(MF(acc(tt, t), xf(tt, s), b, s == 0))
            if s % 4 == 0: mf.append(MF(CSA, OH + 4*t, b, s == 0 and t == 0))
        return mf
    RS = 96; MS = 104; RT = 112; MT = 114; CSV = 116
    URG = 116
    def flagtouch():
        a(f"s_add_u32 s3, s58, {G_FL}"); a("s_bfm_b64 exec, 8, 0"); a.vmem("buffer_load_dword v4, v3, s[40:43], s3 offen"); a("s_mov_b64 exec, -1")
    lq = sum([ldx(cx) for cx in range(NX0, 10)], []) + [ldt1, flagtouch, unit_issue]
    XR = P("XR", 8)
    for cx in range(10):
        while f"X{cx}" not in a.vm or a.vm.count(f"X{cx}") < 4: lq.pop(0)()
        a.wait(vm=f"X{cx}")
        mf = (statm(2*(cx-1)) + statm(2*(cx-1)+1)) if cx else []
        if cx: a.wait(lg=f"T{cx-1}")
        side = transp(cx) + lq[:XR]; lq = lq[XR:]
        if mf: a.interleave(mf, side)
        else:
            for f in side: f()
    assert not lq
    a.stamp("xdone")
    a("s_mov_b32 s78, 0")
    a("L_h0p:")
    a("buffer_load_dword v16, v26, s[40:43], s55 offen sc1"); a("s_waitcnt vmcnt(0)")
    a("v_cmp_ne_u32 vcc, s76, v16")
    a("s_cbranch_vccz L_h0ok")
    a("s_add_u32 s78, s78, 1"); a(f"s_cmp_lt_u32 s78, {POLLMAX}"); a("s_cbranch_scc1 L_h0p")
    a("L_h0ok:")
    a.vm = []
    a.stamp("F0ok")
    for f in ldb(0): f()
    for f in ldb(1): f()
    a.wait(lg="all")
    for x in statm(18) + statm(19): a(x)
    a("s_cmp_eq_u32 s72, 2"); a("s_cbranch_scc1 L_rp_f5")
    rp_fin(7, URG); a("s_branch L_rp_done")
    a("L_rp_f5:"); rp_fin(5, URG)
    a("L_rp_done:")
    for tt in range(2):
        for e in range(4): a(f"v_accvgpr_read_b32 v{160+e}, {R(GR + 4*tt + e)}")
        a(f"v_accvgpr_read_b32 v164, {R(RSM + 4*tt)}")
        for x in ["v_cndmask_b32 v160, v160, v161, s[68:69]", "v_cndmask_b32 v162, v162, v163, s[68:69]", "v_mul_f32 v164, s63, v164",
                  "v_cndmask_b32 v160, v160, v162, s[86:87]", "v_mul_f32 v160, s63, v160", "v_fma_f32 v160, -v164, v164, v160",
                  "v_max_f32 v160, 0, v160", "v_add_f32 v160, s64, v160", "v_rsq_f32 v160, v160", "v_mul_f32 v164, v164, v160"]: a(x)
        a.ds(f"ds_write_b32 v{vSTW}, v160 offset:{64*tt}"); a.ds(f"ds_write_b32 v{vSTW}, v164 offset:{128 + 64*tt}")
    a("v_lshlrev_b32 v28, 4, v11"); a("v_add_u32 v28, s48, v28"); a("v_add_u32 v29, s48, v10")
    for tt in range(2):
        a.ds(f"ds_read_b128 {R(RS + 4*tt, 4)}, v28 offset:{64*tt}"); a.ds(f"ds_read_b128 {R(MS + 4*tt, 4)}, v28 offset:{128 + 64*tt}")
        a.ds(f"ds_read_b32 v{RT + tt}, v29 offset:{64*tt}"); a.ds(f"ds_read_b32 v{MT + tt}, v29 offset:{128 + 64*tt}")
    NBE = P("NBE", 3)
    for j in range(2, NBE):
        for f in ldb(j): f()
    a("s_lshl_b32 s73, s70, 9"); a(f"s_add_u32 s73, s73, {C1P}")
    a("s_cmp_eq_u32 s72, 2"); a("s_cselect_b32 s75, 0x40000000, s74"); a("s_cselect_b32 s73, 0x40000000, s73")
    a("v_lshlrev_b32 v85, 4, v11"); a("v_lshl_add_u32 v85, v10, 4, v85"); a("v_cndmask_b32 v85, v2, v85, s[66:67]")
    def ust(t):
        if t < 7: a.vmem(f"buffer_store_dwordx4 {R(URG + 4*t, 4)}, v{8 if t < 4 else 12}, s[40:43], s{74 if t < 5 else 75} offen offset:{1024*(t&3)} sc1", "US")
        else: a.vmem(f"buffer_store_dwordx4 {R(URG+36, 4)}, v85, s[40:43], s73 offen sc1", "US")
    a("s_and_b32 s59, s27, 7"); a("s_lshl_b32 s59, s59, 9"); a(f"s_add_u32 s59, s59, {FU}")
    a("s_lshr_b32 s3, s27, 3"); a("s_lshl_b32 s3, s3, 4"); a("s_add_u32 s3, s3, s26"); a("s_lshl_b32 s3, s3, 2"); a("s_add_u32 s3, s3, s28"); a("s_lshl_b32 s3, s3, 2"); a("s_add_u32 s70, s3, s59")
    a.wait(vm="B0")
    a("s_barrier")
    a.stamp("bP")
    a("s_mov_b32 s94, s60"); a("s_mov_b32 s95, s60"); a("s_mov_b32 s96, s61"); a("s_mov_b32 s97, s61")
    for f in breads1(0): a.run(f)
    def pretouch():
        if "sc1h" in OPT:
            a(f"s_add_u32 s3, s58, {G_FL}"); a("s_bfm_b64 exec, 4, 0"); a.vmem("buffer_load_dword v4, v3, s[40:43], s3 offen"); a("s_mov_b64 exec, -1")
            return
        a("s_mul_i32 s3, s27, 21056"); a("s_add_u32 s3, s3, s58"); a("s_mul_i32 s56, s28, 5376"); a("s_add_u32 s3, s3, s56")
        a("s_bfm_b64 exec, 42, 0"); a.vmem("buffer_load_dword v4, v3, s[40:43], s3 offen"); a("s_mov_b64 exec, -1")
    FB3 = 156
    a("s_and_b32 s3, s27, 7"); a("s_mul_i32 s3, s3, 20"); a("s_add_u32 s3, s3, s28"); a("s_mul_i32 s65, s3, 5120"); a(f"s_add_u32 s65, s65, {WOP}")
    def ldwo(n, t):
        a.vmem(f"buffer_load_dwordx4 {R(FB3 + (n*5+t)*4, 4)}, v{8 if t < 4 else 12}, s[40:43], s65 offen offset:{1024*(t&3)} sc1", "WO")
        if t == 4: a("s_add_u32 s65, s65, 20480")
    def ldfu():
        a("v_lshlrev_b32 v31, 3, v1")
        a.vmem("buffer_load_dwordx2 v[92:93], v31, s[40:43], s59 offen sc1", "FU")
    def chkfu():
        a.wait(vm="FU")
        a("s_mov_b32 s78, 0")
        a("L_fu:")
        a("v_cmp_ne_u32 vcc, s76, v92"); a("v_cmp_ne_u32 s[84:85], s76, v93")
        a("s_or_b64 vcc, vcc, s[84:85]"); a("s_cbranch_scc0 L_fu_ok")
        a("s_add_u32 s78, s78, 1"); a(f"s_cmp_ge_u32 s78, {POLLMAX}"); a("s_cbranch_scc1 L_fu_ok")
        a("buffer_load_dwordx2 v[92:93], v31, s[40:43], s59 offen sc1"); a("s_waitcnt vmcnt(0)")
        a("s_branch L_fu")
        a("L_fu_ok:")
    q_ = ldq(); mix = []
    if "usfirst" in OPT:
        mix = [lambda i=i: ust(i) for i in range(8)] + q_
    else:
        for i in range(12):
            mix.append(q_[i])
            if i < 8: mix.append(lambda i=i: ust(i))
    ldlist = sum([ldb(j) for j in range(NBE, 5)], [])
    MS0 = P("MS0", 6); MR = P("MR", 1)
    a.bgq = mix
    SFU = P("SFU", 18)
    LEND = P("LEND", 16)
    CT = 116
    for s in range(20):
        j, p = divmod(s, 4)
        if p == 3 and j < 4:
            a.wait(vm=f"B{j+1}"); a("s_barrier")
        if s == SFU:
            a.wait(vm="US")
            a("s_mov_b64 exec, 1"); a.vmem("buffer_store_dword v6, v5, s[40:43], s70 offen sc1"); a("s_mov_b64 exec, -1")
        if s == 18:
            a.wait(lg="CSW"); a("s_barrier")
        a.wait(lg=f"R{s}")
        mf = kv_mf(s)
        front = breads1(s+1) if s < 19 else []
        side = []
        if s == 17:
            side += ["s_lshl_b32 s3, s28, 9", f"s_add_u32 s3, s3, {CSX}", "v_add_u32 v27, s3, v8"]
            side.append(lambda: (a("s_bfm_b64 exec, 32, 0"), a.ds(f"ds_write_b128 v27, {R(CSA, 4)}", "CSW"), a("s_mov_b64 exec, -1")))
        if s == 18:
            assert a.vm.count("US") == 8
            side += ["v_lshlrev_b32 v27, 2, v10", f"v_add_u32 v27, {CSX}, v27"]
            for w in range(4):
                side.append(lambda w=w: a.ds(f"ds_read_b128 {R(CT + 4*w, 4)}, v27 offset:{512*w}"))
                side.append(lambda w=w: a.ds(f"ds_read_b32 v{CT + 16 + w}, v27 offset:{512*w + 256}", "CSR"))
        if s == 19:
            side.append(lambda: a.wait(lg="CSR"))
            for e in range(4):
                side += [f"v_add_f32 v{CT+e}, v{CT+e}, v{CT+4+e}", f"v_add_f32 v{CT+8+e}, v{CT+8+e}, v{CT+12+e}", f"v_add_f32 v{CT+20+e}, v{CT+e}, v{CT+8+e}"]
            side += [f"v_add_f32 v{CT+16}, v{CT+16}, v{CT+17}", f"v_add_f32 v{CT+18}, v{CT+18}, v{CT+19}", f"v_add_f32 v{CT+24}, v{CT+16}, v{CT+18}"]
        side += ldlist[:3]; ldlist = ldlist[3:]
        if s >= MS0: side = [lambda: a.bg(1)]*MR + side
        a.interleave(mf, side, front)
    CSV = CT + 20
    a.stamp("kvend")
    OP = 116; TP = 72
    FUC = P("FUC", 14)
    if FUC < 4: ldfu()
    KBG = P("KBG", 1)
    for t in range(5):
        for tt in range(2):
            b_ = acc(tt, t)
            cp = CSV + t; cpe = cp & ~1; sel = cp & 1
            for h in range(2):
                x = b_ + 2*h
                a(f"v_pk_mul_f32 v[{TP+2*h}:{TP+2*h+1}], v[{MS+4*tt+2*h}:{MS+4*tt+2*h+1}], v[{cpe}:{cpe+1}] op_sel:[0,{sel}] op_sel_hi:[1,{sel}]")
            for h in range(2):
                x = b_ + 2*h
                a(f"v_pk_fma_f32 v[{x}:{x+1}], v[{x}:{x+1}], v[{RS+4*tt+2*h}:{RS+4*tt+2*h+1}], v[{TP+2*h}:{TP+2*h+1}] neg_lo:[0,0,1] neg_hi:[0,0,1]")
            if t <= 2: phi4(a, b_, TP, sel_mask=("s[66:67]" if t == 2 else None))
            for h in range(2):
                a(f"v_cvt_pk_bf16_f32 v{OP + 4*t + 2*tt + h}, v{acc(tt, t) + 2*h}, v{acc(tt, t) + 2*h + 1}")
            if t*2 + tt == SFU - 20:
                a.wait(vm="US")
                a("s_mov_b64 exec, 1"); a.vmem("buffer_store_dword v6, v5, s[40:43], s70 offen sc1"); a("s_mov_b64 exec, -1")
            if t*2 + tt == FUC - 4: ldfu()
            if t*2 + tt == FUC: chkfu(); a.bgq += [lambda n=n, t=t: ldwo(n, t) for n in range(5) for t in range(5)]
            a.bg(KBG)
    while "BQdone" not in a.vm and a.vm.count("BQ") < 11 or (a.bgq and a.bgq[0] is q_[11]): a.bg(1)
    KVD = 32
    for p, (ta, tb) in enumerate(PAIRS):
        a(MF(KVD + 4*p, OP + 4*ta, ONES if tb < 0 else OP + 4*tb, True))
    a("s_mul_i32 s3, s28, 10240"); a("v_add_u32 v27, s3, v8")
    for p in range(10): a(f"ds_write_b128 v27, {R(KVD + 4*p, 4)} offset:{1024*p}")
    a("s_lshl_b32 s3, s27, 4"); a("s_add_u32 s3, s3, s26"); a("s_lshl_b32 s3, s3, 12"); a(f"s_add_u32 s3, s3, {PART}")
    a("v_cmp_gt_u32 vcc, 216, v0"); a("v_cndmask_b32 v9, v2, v9, vcc")
    a.wait(lg="all")
    a("s_barrier")
    for w in range(4): a(f"ds_read_b128 {R(56 + 4*w, 4)}, v{vT1} offset:{10240*w}")
    a("s_waitcnt lgkmcnt(0)")
    for e in (0, 2):
        a(f"v_pk_add_f32 v[{56+e}:{57+e}], v[{56+e}:{57+e}], v[{60+e}:{61+e}]"); a(f"v_pk_add_f32 v[{64+e}:{65+e}], v[{64+e}:{65+e}], v[{68+e}:{69+e}]")
    for e in (0, 2): a(f"v_pk_add_f32 v[{56+e}:{57+e}], v[{56+e}:{57+e}], v[{64+e}:{65+e}]")
    a.vmem(f"buffer_store_dwordx4 v[56:59], v9, s[40:43], s3 offen sc1", "PST")
    ldfu()
    a("s_lshr_b32 s48, s27, 3"); a("s_and_b32 s49, s27, 7")
    a("v_lshrrev_b32 v13, 1, v11"); a("v_lshlrev_b32 v13, 8, v13"); a("v_lshl_add_u32 v13, v10, 2, v13")
    a("v_and_b32 v28, 1, v11"); a("v_lshl_add_u32 v13, v28, 3, v13")
    a("v_mul_u32_u24 v14, 320, v10"); a("v_lshl_add_u32 v15, v11, 3, v14"); a("v_lshl_add_u32 v14, v11, 4, v14")
    a("s_lshl_b32 s50, s48, 2"); a("s_add_u32 s50, s50, s28")
    a("s_lshl_b32 s3, s26, 3"); a("s_add_u32 s3, s3, s50"); a("s_mul_i32 s51, s3, 20480"); a("s_mul_i32 s3, s49, 160"); a("s_add_u32 s51, s51, s3")
    a("s_mul_i32 s53, s27, 27"); a("s_lshr_b32 s53, s53, 2")
    a("s_mul_i32 s55, s27, 143360"); a(f"s_add_u32 s55, s55, {W1P}")
    srd(a, 36, 14, 3456)
    a("v_lshlrev_b32 v23, 4, v11"); a("v_lshl_add_u32 v26, v10, 4, v23")
    a("s_lshl_b32 s62, s27, 2"); a("s_add_u32 s62, s62, s28"); a("s_lshl_b32 s62, s62, 7")
    a("s_lshl_b32 s56, s26, 7"); a("s_add_u32 s56, s56, 8192")
    a("v_mov_b32 v27, s62"); a("v_mov_b32 v28, s56"); a("v_cndmask_b32 v17, v27, v28, s[88:89]"); a("v_add_u32 v17, v17, v10")
    a("s_lshl_b32 s3, s26, 2"); a("s_add_u32 s3, s3, s62"); a(f"s_add_u32 s3, s3, {F1}")
    a.wait(vm="PST")
    a("s_mov_b64 exec, 1"); a.vmem("buffer_store_dword v6, v5, s[40:43], s3 offen sc1"); a("s_mov_b64 exec, -1")
    a("s_barrier")
    a.stamp("b7")
    chkfu(); a.bgq += [lambda n=n, t=t: ldwo(n, t) for n in range(5) for t in range(5)]
    FB3 = 156; RES = 116; C1R = 126; T2R = 146
    B1A = A0 + 204
    W1T = A0 + 100
    def w1dma(i):
        a(f"s_mul_i32 s98, s28, {24*1024}"); a(f"s_add_u32 m0, s98, {i*1024}"); a("s_add_u32 s98, s55, m0")
        a.vmem(f"buffer_load_dwordx4 v8, s[40:43], s98 offen sc1 lds", "W1")
    def w1tail(i):
        a(f"s_mul_i32 s98, s28, {11*1024}"); a(f"s_add_u32 s98, s98, {(96+i)*1024}"); a("s_add_u32 s98, s55, s98")
        a.vmem(f"buffer_load_dwordx4 {R(W1T + 4*i, 4)}, v8, s[40:43], s98 offen sc1", "W1")
    def ldsmall():
        a("v_lshlrev_b32 v31, 5, v1"); a("s_add_u32 s98, s30, T2_tab-L_pc"); a("s_addc_u32 s99, s31, 0")
        a.vmem(f"global_load_dwordx4 {R(T2R, 4)}, v31, s[98:99]"); a.vmem(f"global_load_dwordx2 {R(T2R+4, 2)}, v31, s[98:99] offset:16")
    def ldres(q):
        if q == 0: a.vmem(f"buffer_load_dwordx4 {R(RES, 4)}, v14, s[32:35], s51 offen")
        if q == 1: a.vmem(f"buffer_load_dwordx4 {R(RES+4, 4)}, v14, s[32:35], s51 offen offset:64")
        if q == 2: a.vmem(f"buffer_load_dwordx2 {R(RES+8, 2)}, v15, s[32:35], s51 offen offset:128")
    def ldb1():
        a("v_lshlrev_b32 v31, 3, v11"); a("s_lshl_b32 s98, s53, 5")
        for p in range(3): a.vmem(f"buffer_load_dwordx4 {R(B1A + 4*p, 4)}, v23, s[36:39], s98 offen offset:{64*p}")
        a.vmem(f"buffer_load_dwordx2 {R(B1A + 12, 2)}, v31, s[36:39], s98 offen offset:192")
    def ldc1():
        a("s_mul_i32 s98, s27, 20"); a("s_mul_i32 s99, s28, 5"); a("s_add_u32 s98, s98, s99"); a("s_lshl_b32 s98, s98, 9"); a(f"s_add_u32 s98, s98, {C1P}")
        a("s_mov_b64 exec, s[66:67]")
        for n in range(5): a.vmem(f"buffer_load_dwordx4 {R(C1R + 4*n, 4)}, v26, s[40:43], s98 offen offset:{512*n} sc1", "C1")
        a("s_mov_b64 exec, -1")
    def hidtouch():
        a("s_mul_i32 s98, s27, 27648"); a("s_add_u32 s98, s98, s58"); a(f"s_add_u32 s98, s98, {G_HID}"); a("s_mul_i32 s99, s28, 6912"); a("s_add_u32 s98, s98, s99")
        a("s_bfm_b64 exec, 54, 0"); a.vmem("buffer_load_dword v4, v3, s[40:43], s98 offen"); a("s_mov_b64 exec, -1")
    ldsmall()
    a.bgq += [lambda q=q: ldres(q) for q in range(3)] + [ldb1, ldc1] + [lambda i=i: w1dma(i) for i in range(24)]
    QA = 32
    def qreads(s):
        j, p = divmod(s, 4)
        return [lambda t=t: a.ds(f"ds_read_b128 {R(BF + (s%3)*12 + t*4, 4)}, v{vTQ[p] if t < 2 else vTQ2[p]} offset:{j*10240 + (t&1)*1024}", f"Q{s}") for t in range(3)]
    for f in qreads(0) + qreads(1): f()
    a(f"s_mov_b32 s56, {F1}")
    QSTOP = P("QSTOP", 16)
    for s in range(20):
        j, p = divmod(s, 4)
        if s == 18: a.wait(lg="CQW"); a("s_barrier")
        a.wait(lg=f"Q{s}")
        mf = []
        for t in range(3):
            b = BF + (s%3)*12 + t*4
            for tt in range(2): mf.append(MF(QA + (tt*3+t)*4, b, xf(tt, s), s == 0))
            if p == 0: mf.append(MF(CSQ, b, OH + 4*t, s == 0 and t == 0))
        front = qreads(s+2) if s < 18 else []
        side = []
        if s < QSTOP: side += [lambda: a.bg(1)]*P("QBG", 1)
        if s == 17:
            side.append(lambda: a.vmem("buffer_load_dword v16, v17, s[40:43], s56 offen sc1", "POLL1"))
            side += ["s_lshl_b32 s3, s28, 9", f"s_add_u32 s3, s3, {CSX}", "v_add_u32 v27, s3, v26"]
            side.append(lambda: (a("s_mov_b64 exec, s[66:67]"), a.ds(f"ds_write_b128 v27, {R(CSQ, 4)}", "CQW"), a("s_mov_b64 exec, -1")))
        if s == 18:
            side += [f"v_add_u32 v30, {CSX}, v23"]
            for w, base in ((0, 56), (1, 68), (2, 96)):
                for t in range(3): side.append(lambda w=w, t=t, base=base: a.ds(f"ds_read_b128 {R(base + 4*t, 4)}, v30 offset:{512*w + 64*t}", "CQR"))
        if s == 19:
            side.append(lambda: a.wait(lg="CQR"))
            for x in range(12): side.append(f"v_add_f32 v{56+x}, v{56+x}, v{68+x}")
            for t in range(3): side.append(lambda t=t: a.ds(f"ds_read_b128 {R(68 + 4*t, 4)}, v30 offset:{1536 + 64*t}", "CQR"))
        a.interleave(mf, side, front)
    a.stamp("qend")
    a.wait(vm="POLL1")
    a("s_mov_b32 s78, 0")
    a("L_h1p:")
    a("v_and_b32 v28, 0xfffffff8, v16"); a("v_cmp_ne_u32 vcc, s76, v28")
    a("s_cbranch_vccz L_h1ok")
    a("s_add_u32 s78, s78, 1"); a(f"s_cmp_ge_u32 s78, {POLLMAX}"); a("s_cbranch_scc1 L_h1ok")
    a("buffer_load_dword v16, v17, s[40:43], s56 offen sc1"); a("s_waitcnt vmcnt(0)")
    a("s_branch L_h1p")
    a("L_h1ok:")
    a.stamp("h1ok")
    a.vm = []
    a("v_cmp_ne_u32 vcc, s77, v16"); a("s_and_b64 vcc, vcc, s[88:89]"); a("s_cselect_b32 s79, 0, 1")
    if os.environ.get("FORCESLOW"): a("s_mov_b32 s79, 0")
    P0 = A0
    a("s_lshl_b32 s3, s27, 16"); a(f"s_add_u32 s3, s3, {PART}")
    for r_ in range(16):
        a.vmem(f"buffer_load_dwordx4 {R(P0 + 4*r_, 4)}, v9, s[40:43], s3 offen sc1", f"P{r_}")
        a("s_add_u32 s3, s3, 4096")
    a.bgq += [lambda i=i: w1tail(i) for i in range(11)]
    for x in range(0, 12, 2): a(f"v_pk_add_f32 v[{56+x}:{57+x}], v[{56+x}:{57+x}], v[{96+x}:{97+x}]")
    a.wait(lg="all")
    for x in range(0, 12, 2): a(f"v_pk_add_f32 v[{56+x}:{57+x}], v[{56+x}:{57+x}], v[{68+x}:{69+x}]")
    PQR = 96
    EBG = P("EBG", 1)
    for tt in range(2):
        for t in range(3):
            b_ = QA + (tt*3+t)*4
            for h in range(2):
                a(f"v_pk_mul_f32 v[{TP+2*h}:{TP+2*h+1}], v[{56+4*t+2*h}:{57+4*t+2*h}], v[{MT}:{MT+1}] op_sel:[0,{tt}] op_sel_hi:[1,{tt}]")
            for h in range(2):
                x = b_ + 2*h
                a(f"v_pk_fma_f32 v[{x}:{x+1}], v[{x}:{x+1}], v[{RT}:{RT+1}], v[{TP+2*h}:{TP+2*h+1}] op_sel:[0,{tt},0] op_sel_hi:[1,{tt},1] neg_lo:[0,0,1] neg_hi:[0,0,1]")
            phi4(a, b_, TP)
            for h in range(2):
                d = f"v{PQR + tt*6 + t*2 + h}"
                a(f"v_cvt_pk_bf16_f32 {d}, v{QA + (tt*3+t)*4 + 2*h}, v{QA + (tt*3+t)*4 + 2*h + 1}")
                if t == 2: a(f"v_cndmask_b32 {d}, 0, {d}, s[90:91]")
            a.bg(EBG)
    OSC = SCR
    TA = 56
    for s_ in range(12):
        src = T2R + s_//2
        if s_ & 1: a(f"v_lshrrev_b32 v{TA+s_}, 16, v{src}")
        else: a(f"v_and_b32 v{TA+s_}, 0xffff, v{src}")
        a(f"v_add_u32 v{TA+s_}, {OSC}, v{TA+s_}")
    for r_ in range(16):
        if r_ % 4 == 0: a.wait(vm=f"P{r_+3}")
        for e in range(4): a(f"v_accvgpr_read_b32 v{(32 if r_ == 0 else 36)+e}, {R(P0+4*r_+e)}")
        if r_:
            for e in (0, 2): a(f"v_pk_add_f32 v[{32+e}:{33+e}], v[{32+e}:{33+e}], v[{36+e}:{37+e}]")
        if r_ % 4 == 3: a.bg(EBG)
    a("v_cvt_pk_bf16_f32 v18, v32, v33"); a("v_cvt_pk_bf16_f32 v19, v34, v35")
    a("v_cmp_gt_u32 vcc, 210, v0")
    a("v_cndmask_b32 v18, 0, v18, vcc"); a("v_cndmask_b32 v19, 0, v19, vcc")
    a("v_lshlrev_b32 v27, 3, v0"); a(f"v_add_u32 v27, {OSC}, v27")
    a("ds_write_b64 v27, v[18:19]")
    a("s_waitcnt lgkmcnt(0)")
    a("s_barrier")
    a.stamp("b9")
    KF = A0 + 64
    for E in range(4):
        for ta in range(3): a(f"ds_read_b64 {R(KF + 8*E + 2*ta, 2)}, v{TA + 3*E + ta}")
    a("s_mul_i32 s3, s28, 40960"); a("s_mul_i32 s56, s27, 1280"); a("s_add_u32 s3, s3, s56"); a("s_add_u32 s3, s3, s58")
    a("v_lshlrev_b32 v27, 2, v10"); a("v_lshl_add_u32 v27, v11, 3, v27")
    a("v_cndmask_b32 v27, v2, v27, s[90:91]")
    a("s_waitcnt lgkmcnt(0)")
    D = 32
    for tt in range(2):
        for E in (3, 0, 1, 2):
            d = R(D + (tt*4+E)*4, 4)
            a(f"v_mfma_f32_16x16x32_bf16 {d}, {R(KF + 8*E, 4)}, {R(PQR + 6*tt, 4)}, 0")
    for tt in range(2):
        for E in (3, 0, 1, 2):
            d = R(D + (tt*4+E)*4, 4)
            a(f"v_mfma_f32_16x16x16_bf16 {d}, {R(KF + 8*E + 4, 2)}, {R(PQR + 6*tt + 4, 2)}, {d}")
    for tt in range(2):
        z = D + (tt*4+3)*4
        a(f"v_add_f32 v20, s61, v{z}"); a(f"v_add_f32 v21, s61, v{z+1}")
        a("v_rcp_f32 v20, v20"); a("v_rcp_f32 v21, v21")
        a("v_cndmask_b32 v22, v21, v20, s[92:93]"); a("v_cndmask_b32 v28, v21, v20, s[90:91]")
        ob = 64 + 8*tt
        for E, rc in ((0, 22), (1, 28), (2, 21)):
            d = D + (tt*4+E)*4
            for e in range(4): a(f"v_mul_f32 v{d+e}, v{d+e}, v{rc}")
            a(f"v_cvt_pk_bf16_f32 v{ob + 2*E}, v{d}, v{d+1}"); a(f"v_cvt_pk_bf16_f32 v{ob + 2*E + 1}, v{d+2}, v{d+3}")
        a.vmem(f"buffer_store_dwordx4 {R(ob, 4)}, v8, s[40:43], s3 offen{HS}", "ST")
        a.vmem(f"buffer_store_dwordx2 {R(ob + 4, 2)}, v27, s[40:43], s3 offen offset:1024{HS}", "ST")
        a("s_add_u32 s3, s3, 20480")

    def hop(n, before, after_pub, post=0, touch=None, post2=0):
        before()
        a(f"s_add_u32 s59, s58, {G_FL + 128*n}")
        a("s_lshl_b32 s3, s27, 2"); a("s_add_u32 s3, s3, s59")
        a.bg(post)
        a.wait(vm="ST")
        if touch and "notouch" not in OPT: touch()
        a("s_barrier")
        a.stamp(f"hop{n}a")
        a("s_cmp_lg_u32 s28, 0"); a(f"s_cbranch_scc1 L_g{n}np")
        a("s_mov_b64 exec, 1")
        a("s_cmp_eq_u32 s79, 0"); a(f"s_cbranch_scc1 L_g{n}slow")
        a("buffer_store_dword v6, v5, s[40:43], s3 offen")
        a(f"s_branch L_g{n}pd")
        a(f"L_g{n}slow:")
        a("buffer_store_dword v6, v5, s[40:43], s3 offen sc1")
        a(f"L_g{n}pd:")
        a("s_mov_b64 exec, -1")
        a(f"L_g{n}np:")
        after_pub()
        a.bg(post2)
        a("s_cmp_lg_u32 s28, 0"); a(f"s_cbranch_scc1 L_g{n}j")
        a("s_mov_b32 s78, 0")
        a(f"L_g{n}p:")
        a("buffer_load_dword v27, v10, s[40:43], s59 offen sc1")
        a("s_add_u32 s78, s78, 1")
        a("s_waitcnt vmcnt(0)")
        a("v_cmp_ne_u32 vcc, s76, v27")
        a(f"s_cmp_ge_u32 s78, {POLLMAX}"); a(f"s_cbranch_scc1 L_g{n}x")
        a(f"s_cbranch_vccnz L_g{n}p")
        a(f"L_g{n}x:")
        a(f"L_g{n}j:")
        a("s_barrier")
        a.stamp(f"hop{n}b")
    def a_off(NK, goff):
        for m in range(4):
            a(f"s_add_u32 s3, s28, {m}"); a("s_and_b32 s3, s3, 3"); a("s_lshl_b32 s57, s48, 2"); a("s_add_u32 s3, s3, s57")
            a(f"s_mul_i32 s3, s3, {NK}"); a("s_add_u32 s3, s3, s28"); a("s_lshl_b32 s3, s3, 10"); a("s_add_u32 s3, s3, s58"); a(f"s_add_u32 s{80+m}, s3, {goff}")
    def flush_wo():
        while any(True for _ in [0]) and a.bgq and len(a.bgq) > 24 + 11: a.bg(1)
    def bef0():
        a_off(20, G_O)
        a("s_mul_i32 s99, s28, 40960"); a("s_mul_i32 s56, s27, 1280"); a("s_add_u32 s99, s99, s56"); a("s_add_u32 s99, s99, s58")
        a("v_mul_u32_u24 v28, 20480, v11"); a("v_lshl_add_u32 v28, v10, 5, v28")
    def tch0():
        a("s_mov_b64 exec, 0x03ff03ff"); a.vmem("buffer_load_dword v4, v28, s[40:43], s99 offen sc1"); a("s_mov_b64 exec, -1")
    hop(0, bef0, lambda: None, post=0, touch=tch0, post2=P("POST0", 6))
    flush_wo()
    ACC = 32 ; FA3 = A0
    for n in range(5):
        for m in range(4):
            a.vmem(f"buffer_load_dwordx4 {R(FA3 + (n*4+m)*4, 4)}, v8, s[40:43], s{80+m} offen sc1", f"A{n}")
            a(f"s_add_u32 s{80+m}, s{80+m}, 4096")
    if "sc1hid" not in OPT: a.bgq.insert(0, hidtouch)
    RED = 102400
    S3BG = P("S3BG", 3)
    for n in range(5):
        a.wait(vm=f"A{n}")
        mf = [MF(ACC + (m*5+t)*4, FB3 + (n*5+t)*4, FA3 + (n*4+m)*4, n == 0) for m in range(4) for t in range(5)]
        a.interleave(mf, [lambda: a.bg(1)]*S3BG)
    a.stamp("s3end")
    HF = A0; BF = A0 + 160
    NA = P("NA", 4); BS = 4*max(NA, 7 - NA)
    if NA == 4:
        slots = [156 + 4*i for i in range(16)] + [A0 + 192 + 4*i for i in range(3)] + [A0 + 220 + 4*i for i in range(9)] + [HF + 4*i for i in range(40)] + [BF + 4*i for i in range(2)]
        NEARLY = 28
        arA = [A0 + 168 + 4*i for i in range(6)] + [A0 + 204 + 4*i for i in range(4)]
    else:
        for x in range(14): a(f"v_accvgpr_mov_b32 {R(A0 + 240 + x)}, {R(B1A + x)}")
        B1A = A0 + 240
        slots = [156 + 4*i for i in range(16)] + [A0 + 208 + 4*i for i in range(8)] + [HF + 4*i for i in range(40)] + [BF + 4*i for i in range(6)]
        NEARLY = 24
        arA = [A0 + 184 + 4*i for i in range(6)] + [A0 + 240 + 4*i for i in range(4)]
    def fb(n, t): return slots[n*5 + t]
    a("s_mul_i32 s3, s49, 54"); a("s_add_u32 s3, s3, s28"); a("s_mul_i32 s54, s3, 5120"); a(f"s_add_u32 s54, s54, {W2P}")
    def ldw2(n, t):
        if n == 13 and t == 0:
            a("s_cmp_ge_u32 s28, 2"); a("s_cselect_b32 s98, 0x40000000, 0"); a("s_add_u32 s54, s54, s98")
        a.vmem(f"buffer_load_dwordx4 {R(fb(n, t), 4)}, v{8 if t < 4 else 12}, s[40:43], s54 offen offset:{1024*(t&3)} sc1", f"W2_{n}")
        if t == 4: a("s_add_u32 s54, s54, 20480")
    w2q = [(n, t) for n in range(14) for t in range(5)]
    nw1left = len(a.bgq)
    def w2bg():
        ldw2(*w2q.pop(0))
    a.bgq += [w2bg]*NEARLY
    def reduce_epi(which, BIA=None, nbg=0):
        for m in range(1, 4):
            a(f"s_add_u32 s3, s28, {m}"); a("s_and_b32 s3, s3, 3"); a("s_mul_i32 s3, s3, 15360"); a(f"s_add_u32 s3, s3, {RED}")
            a(f"v_add_u32 v{16+m}, s3, v8")
        for m in range(1, 4):
            for t in range(5): a(f"ds_write_b128 v{16+m}, {R(ACC + (m*5+t)*4, 4)} offset:{(m-1)*5120 + t*1024}")
            a.bg(nbg)
        a("s_mul_i32 s3, s28, 15360"); a(f"s_add_u32 s3, s3, {RED}"); a("v_add_u32 v16, s3, v8")
        U = 27
        for t in range(5):
            for e in range(4):
                for src0 in ([RES] if which == 3 else [RES, BIA]):
                    src = src0 + 2*t + (e >> 1)
                    if e & 1: a(f"v_and_b32 v{U+e}, 0xffff0000, v{src}")
                    else: a(f"v_lshlrev_b32 v{U+e}, 16, v{src}")
                    a(f"v_add_f32 v{ACC+4*t+e}, v{ACC+4*t+e}, v{U+e}")
        a.bg(nbg)
        a("s_waitcnt lgkmcnt(0)")
        a("s_barrier")
        for t in range(5):
            for m in range(1, 4): a(f"ds_read_b128 {R(ACC + (m*5+t)*4, 4)}, v16 offset:{(m-1)*5120 + t*1024}")
        for t in range(5):
            a(f"s_waitcnt lgkmcnt({12 - 3*t})")
            for e in (0, 2):
                x0 = ACC + 4*t + e
                a(f"v_pk_add_f32 v[{x0+20}:{x0+21}], v[{x0+20}:{x0+21}], v[{x0+40}:{x0+41}]"); a(f"v_pk_add_f32 v[{x0}:{x0+1}], v[{x0}:{x0+1}], v[{x0+60}:{x0+61}]")
            for e in (0, 2):
                x0 = ACC + 4*t + e
                a(f"v_pk_add_f32 v[{x0}:{x0+1}], v[{x0}:{x0+1}], v[{x0+20}:{x0+21}]")
            for h in range(2): a(f"v_cvt_pk_bf16_f32 v{RES+2*t+h}, v{ACC+4*t+2*h}, v{ACC+4*t+2*h+1}")
            if which == 3:
                if t == 1: a.vmem(f"buffer_store_dwordx4 {R(RES, 4)}, v8, s[40:43], s57 offen{HS}")
                if t == 3: a.vmem(f"buffer_store_dwordx4 {R(RES+4, 4)}, v8, s[40:43], s57 offen offset:1024{HS}")
                if t == 4: a.vmem(f"buffer_store_dwordx2 {R(RES+8, 2)}, v13, s[40:43], s57 offen offset:2048{HS}")
    a("s_mul_i32 s57, s50, 20480"); a("s_mul_i32 s3, s49, 2560"); a("s_add_u32 s57, s57, s3"); a("s_add_u32 s57, s57, s58"); a(f"s_add_u32 s57, s57, {G_H}")
    reduce_epi(3, nbg=P("R3BG", 2))
    a(f"v_pk_add_f32 v[28:29], v[{ACC}:{ACC+1}], v[{ACC+2}:{ACC+3}]"); a(f"v_pk_mul_f32 v[30:31], v[{ACC}:{ACC+1}], v[{ACC}:{ACC+1}]"); a(f"v_pk_fma_f32 v[30:31], v[{ACC+2}:{ACC+3}], v[{ACC+2}:{ACC+3}], v[30:31]")
    for x in range(4, 20, 2):
        a(f"v_pk_add_f32 v[28:29], v[28:29], v[{ACC+x}:{ACC+x+1}]"); a(f"v_pk_fma_f32 v[30:31], v[{ACC+x}:{ACC+x+1}], v[{ACC+x}:{ACC+x+1}], v[30:31]")
    a("v_add_f32 v20, v28, v29"); a("v_add_f32 v21, v30, v31")
    def red_g(regs, tmp):
        for r_ in regs:
            a(f"v_mov_b32 {tmp}, {r_}"); a(f"v_permlane32_swap_b32 {r_}, {tmp}"); a(f"v_add_f32 {r_}, {r_}, {tmp}")
            a(f"v_mov_b32 {tmp}, {r_}"); a(f"v_permlane16_swap_b32 {r_}, {tmp}"); a(f"v_add_f32 {r_}, {r_}, {tmp}")
    red_g(["v20", "v21"], "v22")
    a("v_lshlrev_b32 v22, 1, v10")
    a("s_lshl_b32 s57, s50, 10"); a("s_lshl_b32 s3, s49, 7"); a("s_add_u32 s57, s57, s3"); a("s_add_u32 s57, s57, s58"); a(f"s_add_u32 s57, s57, {G_ST}")
    a.vmem(f"buffer_store_dwordx2 v[20:21], v22, s[40:43], s57 offen{HS}", "ST")
    CS = 128; CSL = 144384
    def bef3():
        a("s_mul_i32 s3, s28, 40960"); a("s_add_u32 s3, s3, s58"); a(f"s_add_u32 s80, s3, {G_H}"); a("s_add_u32 s81, s80, 20480")
        a("s_lshl_b32 s82, s28, 11"); a("s_add_u32 s82, s82, s58"); a(f"s_add_u32 s82, s82, {G_ST}")
        a("v_lshlrev_b32 v19, 8, v11"); a("v_lshl_add_u32 v19, v10, 1, v19")
        a("v_add_u32 v16, 57344, v8"); a("v_add_u32 v17, 114688, v8")
        a(f"s_mul_i32 s3, s28, {11*1024}"); a(f"s_add_u32 s3, s3, {96*1024}"); a("v_add_u32 v18, s3, v8")
        for e in range(4):
            a(f"v_add_f32 v{C1R+e}, v{C1R+e}, v{C1R+4+e}"); a(f"v_add_f32 v{C1R+8+e}, v{C1R+8+e}, v{C1R+12+e}")
            a(f"v_add_f32 v{C1R+e}, v{C1R+e}, v{C1R+16+e}"); a(f"v_add_f32 v{C1R+e}, v{C1R+e}, v{C1R+8+e}")
        a("s_lshl_b32 s3, s28, 9"); a(f"s_add_u32 s3, s3, {CSL}"); a("v_add_u32 v29, s3, v26")
    def aft3():
        if "W1" in a.vm: a.wait(vm="W1")
        for i in range(11): a(f"ds_write_b128 v18, {R(W1T + 4*i, 4)} offset:{1024*i}")
        a("s_mov_b64 exec, s[66:67]"); a(f"ds_write_b128 v29, {R(C1R, 4)}"); a("s_mov_b64 exec, -1")
        a("s_waitcnt lgkmcnt(0)")
    left1 = max(0, len(a.bgq) - len([1 for x in a.bgq if x is w2bg]))
    print("w1 left at hop3:", left1, "w2 issued:", 70 - len(w2q), file=sys.stderr)
    def tch1():
        a("s_mul_i32 s99, s50, 20480"); a("s_mul_i32 s98, s49, 2560"); a("s_add_u32 s99, s99, s98"); a("s_add_u32 s99, s99, s58"); a(f"s_add_u32 s99, s99, {G_H}")
        a("s_mov_b64 exec, 0xfffff"); a.vmem("buffer_load_dword v4, v3, s[40:43], s99 offen sc1"); a("s_mov_b64 exec, -1")
    hop(1, bef3, aft3, post=left1, touch=tch1, post2=max(0, P("POST1", 6) - left1))
    def hf(tt, k): return HF + (k*2 + tt)*4
    def ldh(k):
        def one(tt):
            a.vmem(f"buffer_load_dwordx4 {R(hf(tt, k), 4)}, v8, s[40:43], s{80+tt} offen offset:{1024*(k&3)} sc1", f"H{k}")
            if (k & 3) == 3: a(f"s_add_u32 s{80+tt}, s{80+tt}, 4096")
        return [lambda tt=tt: one(tt) for tt in range(2)]
    PRE = P("PRE4", 6)
    for k in range(PRE):
        for f in ldh(k): f()
    for tt in range(2):
        for q in range(2):
            a.vmem(f"buffer_load_dwordx2 {R(88 + 4*tt + 2*q, 2)}, v19, s[40:43], s82 offen offset:{1024*tt + 128*q} sc1", "STAT")
    def breads(ps, k):
        ts = range(NA) if ps == 0 else range(NA, 7)
        return [lambda t=t: a.ds(f"ds_read_b128 {R(BF + (k&1)*BS + 4*(t - ts[0]), 4)}, v{[8, 16, 17][k >> 3]} offset:{(k & 7)*7168 + 1024*t}", f"BR{ps}_{k}") for t in ts]
    for f in breads(0, 0): f()
    vS = [20, 21]; vQ = [24, 25]
    a(f"v_add_u32 v18, {CSL}, v23")
    hq = list(range(PRE, 20))
    B1U = 220
    c1 = -2.0*LOG2E*0.7978845608028654
    c2 = c1*0.044715
    a(f"s_mov_b32 s60, {hx(c1)}"); a(f"s_mov_b32 s61, {hx(c2)}")
    a("s_mul_i32 s56, s28, 110592"); a("s_lshl_b32 s3, s53, 9"); a("s_add_u32 s56, s56, s3"); a("s_add_u32 s56, s56, s58"); a(f"s_add_u32 s56, s56, {G_HID}"); a("s_add_u32 s57, s56, 55296")
    for k in range(20):
        a.wait(vm=f"H{k}", lg=f"BR0_{k}")
        front = breads(0, k+1) if k < 19 else breads(1, 0)
        side = []
        if hq: side += ldh(hq.pop(0))
        else: side += [lambda: a.bg(1)]*P("ABG", 1)
        if 1 <= k < 8:
            kk = k - 1; tb = 96 if kk % 2 == 0 else 220
            side.append(lambda kk=kk: a.wait(lg=f"CG{kk}"))
            for e in range(4):
                side += [f"v_add_f32 v{CS+4*kk+e}, v{CS+4*kk+e}, v{tb+e}", f"v_add_f32 v{tb+4+e}, v{tb+4+e}, v{tb+8+e}", f"v_add_f32 v{CS+4*kk+e}, v{CS+4*kk+e}, v{tb+4+e}"]
        if k < 7:
            tb = 96 if k % 2 == 0 else 220
            for w in range(4): front.append(lambda w=w, k=k, tb=tb: a.ds(f"ds_read_b128 {R((CS + 4*k) if w == 0 else (tb - 4 + 4*w), 4)}, v18 offset:{512*w + 64*k}", f"CG{k}"))
        if k == PRE + 2:
            for tt in range(2):
                side.append(f"v_add_f32 v{vS[tt]}, v{88+4*tt}, v{90+4*tt}"); side.append(f"v_add_f32 v{vQ[tt]}, v{89+4*tt}, v{91+4*tt}")
            side.append(lambda: red_g([f"v{x}" for x in vS + vQ], "v22"))
        if k == PRE + 3:
            for tt in range(2):
                s_, q_ = f"v{vS[tt]}", f"v{vQ[tt]}"
                side += [f"v_mul_f32 {s_}, s63, {s_}", f"v_mul_f32 {q_}, s63, {q_}", f"v_fma_f32 {q_}, -{s_}, {s_}, {q_}", f"v_max_f32 {q_}, 0, {q_}",
                         f"v_add_f32 v22, s64, {q_}", f"v_fma_f32 {q_}, v22, s64, {q_}", f"v_rsq_f32 {q_}, {q_}", f"v_mul_f32 {s_}, {s_}, {q_}"]
            side += ["v_mov_b32 v252, s60", "v_mov_b32 v253, s60", "s_mov_b32 s96, s61", "s_mov_b32 s97, s61"]
        if k >= 12:
            x = 2*(k - 12)
            for y in (x, x + 1):
                if y < 14:
                    side += [f"v_accvgpr_read_b32 v27, {R(B1A + y)}", f"v_lshlrev_b32 v{B1U+2*y}, 16, v27", f"v_and_b32 v{B1U+2*y+1}, 0xffff0000, v27"]
        mf = [MF(ACC + (tt*7+t)*4, BF + (k&1)*BS + 4*t, hf(tt, k), k == 0) for t in range(NA) for tt in range(2)]
        a.interleave(mf, side, front)
    a.stamp("s4A")
    PK = 88
    def gelu(tt, t, pk=False):
        L = []
        if pk:
            b_ = ACC + (tt*7+t)*4
            pr = lambda x: f"v[{x}:{x+1}]"
            for h in (0, 2): L.append(f"v_pk_fma_f32 {pr(248+h)}, v[20:21], {pr(CS+4*t+h)}, {pr(B1U+4*t+h)} op_sel:[{tt},0,0] op_sel_hi:[{tt},1,1] neg_lo:[1,0,0] neg_hi:[1,0,0]")
            for h in (0, 2): L.append(f"v_pk_fma_f32 {pr(b_+h)}, {pr(b_+h)}, v[24:25], {pr(248+h)} op_sel:[0,{tt},0] op_sel_hi:[1,{tt},1]")
            for h in (0, 2): L.append(f"v_pk_mul_f32 {pr(248+h)}, {pr(b_+h)}, {pr(b_+h)}")
            for h in (0, 2): L.append(f"v_pk_fma_f32 {pr(248+h)}, {pr(248+h)}, s[96:97], v[252:253]")
            for h in (0, 2): L.append(f"v_pk_mul_f32 {pr(248+h)}, {pr(248+h)}, {pr(b_+h)}")
            for e in range(4): L.append(f"v_exp_f32 v{248+e}, v{248+e}")
            for h in (0, 2): L.append(f"v_pk_add_f32 {pr(248+h)}, {pr(248+h)}, 1.0 op_sel_hi:[1,0]")
            for e in range(4): L.append(f"v_rcp_f32 v{248+e}, v{248+e}")
            for h in (0, 2): L.append(f"v_pk_mul_f32 {pr(b_+h)}, {pr(b_+h)}, {pr(248+h)}")
        else:
            for e in range(4):
                v_ = f"v{ACC + (tt*7+t)*4 + e}"; ta = f"v{248+e}"
                L += [f"v_fma_f32 {ta}, -v{vS[tt]}, v{CS+4*t+e}, v{B1U+4*t+e}", f"v_fma_f32 {v_}, {v_}, v{vQ[tt]}, {ta}", f"v_mul_f32 {ta}, {v_}, {v_}",
                      f"v_fma_f32 {ta}, {ta}, s61, v252", f"v_mul_f32 {ta}, {ta}, {v_}", f"v_exp_f32 {ta}, {ta}"]
            for e in range(4):
                ta = f"v{248+e}"; L += [f"v_add_f32 {ta}, 1.0, {ta}"]
            for e in range(4):
                ta = f"v{248+e}"; L += [f"v_rcp_f32 {ta}, {ta}"]
            for e in range(4):
                v_ = f"v{ACC + (tt*7+t)*4 + e}"; L.append(f"v_mul_f32 {v_}, {v_}, v{248+e}")
        for h in range(2):
            x0 = ACC + (tt*7+t)*4 + 2*h
            L.append(f"v_cvt_pk_bf16_f32 v{PK + tt*14 + 2*t + h}, v{x0}, v{x0+1}")
        if t & 1: L.append(lambda: a.vmem(f"buffer_store_dwordx4 {R(PK + tt*14 + 2*(t-1), 4)}, v8, s[40:43], s{56+tt} offen offset:{512*(t-1)}{HS2}", "ST"))
        if t == 6: L.append(lambda: a.vmem(f"buffer_store_dwordx2 {R(PK + tt*14 + 12, 2)}, v13, s[40:43], s{56+tt} offen offset:3072{HS2}", "ST"))
        return L
    gl = []
    for p in range(NA//2):
        for tt in range(2): gl += gelu(tt, 2*p, "pkB" in OPT) + gelu(tt, 2*p+1, "pkB" in OPT)
    a.bgq = []
    W2RATE = P("W2RATE", 2)
    for k in range(20):
        a.wait(lg=f"BR1_{k}")
        front = breads(1, k+1) if k < 19 else []
        q = (len(gl) + 19 - k)//(20 - k) if k > 0 else 0
        side = gl[:q]; gl = gl[q:]
        nin = max(0, min(W2RATE, len(w2q), NEARLY + 2*k - (70 - len(w2q))))
        for i_ in range(nin): side.insert((i_ + 1)*len(side)//(nin + 1), w2bg)
        mf = [MF(ACC + (tt*7+t)*4, BF + (k&1)*BS + 4*(t-NA), hf(tt, k), k == 0) for t in range(NA, 7) for tt in range(2)]
        a.interleave(mf, side, front)
    a.stamp("s4B")
    W2EPI = P("W2EPI", 2)
    seq = [(0, 4), (0, 5), (1, 4), (1, 5), (0, 6), (1, 6)] if NA == 4 else [(0, 6), (1, 6)]
    for i_, (tt, t) in enumerate(seq):
        L = gelu(tt, t, True)
        for j_, x in enumerate(L):
            a.run(x)
            if i_ < P("W2STOP", 4) and j_ in (6, 16)[:W2EPI] and w2q: ldw2(*w2q.pop(0))
    BIA = 126
    def bef4():
        srd(a, 32, 20, 2621440); srd(a, 36, 18, 1280)
        a_off(54, G_HID)
    npost = min(P("POST2", 4), len(w2q))
    a.bgq = [lambda x=x: ldw2(*x) for x in w2q[:npost]]; w2q = w2q[npost:]
    print("w2 left after hop4:", len(w2q), file=sys.stderr)
    def tch2():
        a("v_lshrrev_b32 v28, 5, v1"); a("v_mul_u32_u24 v28, 55296, v28"); a("v_and_b32 v29, 31, v1"); a("v_lshl_add_u32 v28, v29, 7, v28")
        a("s_mov_b32 exec_lo, 0x0fffffff"); a("s_mov_b32 exec_hi, 0x0fffffff"); a.vmem("buffer_load_dword v4, v28, s[40:43], s56 offen sc1"); a("s_mov_b64 exec, -1")
    hop(2, bef4, lambda: None, post=0, touch=tch2, post2=npost)
    ar = [136 + 4*i for i in range(5)] + [220 + 4*i for i in range(9)] + arA
    NR = 6
    def fa(n, m): return ar[(n % NR)*4 + m]
    def lda5(n):
        def one(m):
            if n == 13 and m == 0:
                a("s_cmp_ge_u32 s28, 2"); a("s_cselect_b32 s3, 0x40000000, 0")
                for q in range(4): a(f"s_add_u32 s{80+q}, s{80+q}, s3")
            a.vmem(f"buffer_load_dwordx4 {R(fa(n, m), 4)}, v8, s[40:43], s{80+m} offen sc1", f"A5_{n}")
            a(f"s_add_u32 s{80+m}, s{80+m}, 4096")
        return [lambda m=m: one(m) for m in range(4)]
    PRE5 = P("PRE5", 3)
    def need_w2(n):
        L = []
        while w2q and w2q[0][0] <= n:
            x = w2q.pop(0); L.append(lambda x=x: ldw2(*x))
        return L
    for n in range(PRE5):
        for f in need_w2(n) + lda5(n): f()
    def ldbia():
        a("v_lshlrev_b32 v28, 3, v11"); a("s_mul_i32 s3, s49, 160")
        a.vmem(f"buffer_load_dwordx4 {R(BIA, 4)}, v23, s[36:39], s3 offen")
        a.vmem(f"buffer_load_dwordx4 {R(BIA+4, 4)}, v23, s[36:39], s3 offen offset:64")
        a.vmem(f"buffer_load_dwordx2 {R(BIA+8, 2)}, v28, s[36:39], s3 offen offset:128")
    nxt = PRE5
    for n in range(14):
        a.wait(vm=f"A5_{n}")
        side = []; cnt = 0
        while nxt < 14 and nxt <= n + NR - 1 and cnt < 2:
            side += need_w2(nxt) + lda5(nxt); nxt += 1; cnt += 1
        if n == 2: side.append(ldbia)
        mf = [MF(ACC + (m*5+t)*4, fb(n, t), fa(n, m), n == 0) for m in range(4) for t in range(5)]
        a.interleave(mf, side)
    a.stamp("s5end")
    reduce_epi(5, BIA)
    a(f"buffer_store_dwordx4 {R(RES, 4)}, v14, s[32:35], s51 offen")
    a(f"buffer_store_dwordx4 {R(RES+4, 4)}, v14, s[32:35], s51 offen offset:64")
    a(f"buffer_store_dwordx2 {R(RES+8, 2)}, v15, s[32:35], s51 offen offset:128")
    a("s_or_b32 s3, s2, s28"); a("s_cmp_lg_u32 s3, 0"); a("s_cbranch_scc1 L_notagclr")
    a("global_store_dword v5, v5, s[22:23] sc1")
    a("L_notagclr:")
    a.stamp("stored")
    if STAMP:
        a("s_waitcnt vmcnt(0)")
        a.stamp("end")
        a("v_writelane_b32 v7, s79, 30")
        a("s_lshl_b32 s3, s2, 2"); a("s_add_u32 s3, s3, s28"); a("s_lshl_b32 s3, s3, 8"); a(f"s_add_u32 s3, s3, {STB}")
        a("v_lshlrev_b32 v27, 2, v1"); a("v_add_u32 v27, s3, v27")
        a("global_store_dword v27, v7, s[24:25]")
        if os.environ.get("DELAY"):
            di = os.environ["DELAY"]
            a(f"s_cmp_lg_u32 s2, {P('DWG', 8)}"); a("s_cbranch_scc1 L_end"); a("s_cmp_lg_u32 s28, 0"); a("s_cbranch_scc1 L_end")
            clk = "s_memrealtime" if di == "rt" else "s_memtime"
            a(f"{clk} s[100:101]"); a("s_waitcnt lgkmcnt(0)")
            if di == "rt":
                a("s_sub_u32 s3, s100, s76")
            else:
                a(f"v_readlane_b32 s3, v7, {di}"); a("v_readlane_b32 s56, v7, 0"); a("s_nop 3"); a("s_sub_u32 s3, s3, s56")
            a("s_lshl_b32 s3, s3, 2"); a("s_min_u32 s3, s3, 0x100000"); a("s_mov_b32 s57, s100")
            a("L_dly:")
            a(f"{clk} s[100:101]"); a("s_waitcnt lgkmcnt(0)"); a("s_sub_u32 s56, s100, s57"); a("s_cmp_lt_u32 s56, s3"); a("s_cbranch_scc1 L_dly")
        a.a.raw("; STAMPS " + " ".join(a.names))
    a("L_end:")
    a("s_endpgm")
    return a.a

def main(out):
    hdr = open("sequential_preLN__linear_attn_block__mixer_channel_mlp__prompt.s.ref").read().split("\n")
    hdr = [l for l in hdr if l.startswith(";") and "@launch" not in l]
    hdr.append("; @launch grid=(256,1,1) block=(256,1,1) lds=163840")
    a = gen()
    pre = '.amdgcn_target "amdgcn-amd-amdhsa--gfx950"\n.text\n'
    T1, T2 = build_tables()
    a.raw(".p2align 6\nT1_tab:")
    a.raw(".short " + ",".join(map(str, T1)))
    a.raw("T2_tab:")
    for row in T2: a.raw(".short " + ",".join(map(str, row)))
    a.raw(".fill 2048, 4, 0")
    a.raw('.section .rodata,"a"\n.p2align 6')
    a.raw(f""".amdhsa_kernel {NAME}
  .amdhsa_next_free_vgpr 512
  .amdhsa_next_free_sgpr 102
  .amdhsa_accum_offset 256
  .amdhsa_group_segment_fixed_size 0
  .amdhsa_kernarg_size 88
  .amdhsa_user_sgpr_count 2
  .amdhsa_user_sgpr_kernarg_segment_ptr 1
  .amdhsa_system_sgpr_workgroup_id_x 1
.end_amdhsa_kernel""")
    open(out, "w").write("\n".join(hdr) + "\n" + pre + a.finish())

if __name__ == "__main__":
    main(sys.argv[1])
```

```python
import sys, struct, os
from asmdsl import Asm, R, S
from gen1 import build_tables, PAIRS, f2u, hx, divmod_const, srd, LOG2E

NAME = "sequential_preLN__linear_attn_block__mixer_channel_mlp__prompt_kernel"
WOP = 0
W2P = WOP + 8*20*5*1024
W1P = W2P + 8*54*5*1024
C1P = W1P + 16*20*7*1024
WQKV = C1P + 320*512
PART = WQKV + 16*153600
GRP = PART + 256*4096
G_O = 0; G_H = 163840; G_ST = 327680; G_FL = 335872; G_HID = 336896; G_SZ = G_HID + 442368
FLG = GRP + 16*G_SZ
F1 = FLG; F1R = FLG + 8192; F0 = FLG + 10240; FU = FLG + 14336
WS_END = FLG + 20480
A0 = 256
STAMP = int(os.environ.get("STAMP", "0"))
STB = 32 << 20
POLLMAX = 1 << 15
OPT = set(os.environ.get("OPT", "").split(","))
def P(name, d): return int(os.environ.get(name, d))

class G:
    def __init__(self):
        self.a = Asm(); self.vm = []; self.lg = []; self.nst = 0; self.bgq = []; self.names = []
    def __call__(self, t): self.a(t)
    def vmem(self, text, tag=None): self.a(text); self.vm.append(tag)
    def ds(self, text, tag=None): self.a(text); self.lg.append(tag)
    def _n(self, lst, tag, cap):
        idx = max(i for i, t in enumerate(lst) if t == tag)
        return min(len(lst) - 1 - idx, cap)
    def wait(self, vm=None, lg=None):
        s = []
        if vm is not None: s.append(f"vmcnt({0 if vm == 'all' else self._n(self.vm, vm, 63)})")
        if lg is not None: s.append(f"lgkmcnt({0 if lg == 'all' else self._n(self.lg, lg, 15)})")
        self.a("s_waitcnt " + " ".join(s))
        if vm == 'all': self.vm = []
        if lg == 'all': self.lg = []
    def stamp(self, name=""):
        if STAMP != 1: return
        i = self.nst; self.nst += 1; self.names.append(name)
        assert i < 29
        self.a("s_memtime s[100:101]"); self.a("s_waitcnt lgkmcnt(0)"); self.a(f"v_writelane_b32 v7, s100, {i}")
    def run(self, x): x() if callable(x) else self.a(x)
    def bg(self, n=1):
        for _ in range(n):
            if self.bgq: self.bgq.pop(0)()
    def interleave(self, main, extra, front=()):
        n = len(main); m = len(extra); j = 0; front = list(front)
        for i, x in enumerate(main):
            self.run(x)
            if front:
                self.run(front.pop(0))
                if len(front) >= n - i and front: self.run(front.pop(0))
            while j < m and (j + 1) * n <= (i + 1) * m + (n - 1):
                self.run(extra[j]); j += 1
        for x in front: self.run(x)
        while j < m:
            self.run(extra[j]); j += 1

def MF(d, a_, b_, first): return f"v_mfma_f32_16x16x32_bf16 {R(d,4)}, {R(a_,4)}, {R(b_,4)}, {'0' if first else R(d,4)}"

def phi(a, val, t1, t2):
    a(f"v_mul_f32 {t1}, s60, {val}")
    a(f"v_max_f32 {t2}, 0, {val}")
    a(f"v_exp_f32_e64 {t1}, {t1} clamp")
    a(f"v_add_f32 {t2}, s61, {t2}")
    a(f"v_add_f32 {val}, {t1}, {t2}")

OPT |= {"sc1h", "sc1hid", "notouch", "usfirst"}
def phi4(a, b_, T, sel_mask=None):
    for h in range(2): a(f"v_pk_mul_f32 v[{T+2*h}:{T+2*h+1}], v[{b_+2*h}:{b_+2*h+1}], s[94:95]")
    for e in range(4): a(f"v_max_f32 v{T+4+e}, 0, v{b_+e}")
    for e in range(4): a(f"v_exp_f32_e64 v{T+e}, v{T+e} clamp")
    for h in range(2): a(f"v_pk_add_f32 v[{T+4+2*h}:{T+5+2*h}], v[{T+4+2*h}:{T+5+2*h}], s[96:97]")
    if sel_mask is None:
        for h in range(2): a(f"v_pk_add_f32 v[{b_+2*h}:{b_+2*h+1}], v[{T+2*h}:{T+2*h+1}], v[{T+4+2*h}:{T+5+2*h}]")
    else:
        for h in range(2): a(f"v_pk_add_f32 v[{T+2*h}:{T+2*h+1}], v[{T+2*h}:{T+2*h+1}], v[{T+4+2*h}:{T+5+2*h}]")
        for e in range(4): a(f"v_cndmask_b32 v{b_+e}, v{b_+e}, v{T+e}, {sel_mask}")
HS = " sc1"
HS2 = " sc1"
def gen():
    a = G()
    name = NAME
    NRAW = P("NRAW", 2)
    a.a.raw(f".globl {name}\n.p2align 8\n.type {name},@function\n{name}:")
    a("s_cmp_ge_u32 s2, 256"); a("s_cbranch_scc1 L_end")
    a("s_load_dwordx16 s[4:19], s[0:1], 0")
    a("s_load_dwordx4 s[20:23], s[0:1], 64")
    a("s_load_dwordx2 s[24:25], s[0:1], 80")
    a("s_memrealtime s[76:77]")
    a("s_getpc_b64 s[30:31]")
    a("L_pc:")
    a("v_mov_b32 v7, 0")
    a.stamp("start")
    a("v_lshrrev_b32 v2, 6, v0"); a("v_and_b32 v1, 63, v0")
    a("v_readfirstlane_b32 s28, v2")
    if "m48" in OPT:
        a("s_and_b32 s3, s2, 7"); a("s_lshr_b32 s29, s2, 3")
        a("s_lshr_b32 s26, s3, 1"); a("s_lshl_b32 s26, s26, 2"); a("s_lshr_b32 s27, s29, 3"); a("s_add_u32 s26, s26, s27")
        a("s_and_b32 s3, s3, 1"); a("s_lshl_b32 s3, s3, 2"); a("s_and_b32 s27, s29, 3"); a("s_or_b32 s27, s27, s3")
        a("s_and_b32 s29, s29, 4"); a("s_lshl_b32 s29, s29, 1"); a("s_or_b32 s27, s27, s29")
    else:
        a("s_and_b32 s3, s2, 7"); a("s_lshr_b32 s27, s2, 3"); a("s_lshr_b32 s26, s27, 4"); a("s_lshl_b32 s3, s3, 1")
        a("s_add_u32 s26, s26, s3")
        a("s_and_b32 s27, s27, 15")
    a("v_lshlrev_b32 v3, 7, v1")
    a("s_cmp_lg_u32 s28, 3"); a("s_cbranch_scc1 L_nocp")
    a("s_mul_i32 s3, s27, 13"); a("s_lshr_b32 s3, s3, 6"); a("s_mul_i32 s3, s3, 5"); a("s_sub_u32 s3, s27, s3"); a("s_lshl_b32 s3, s3, 13")
    a("v_add_u32 v27, s3, v3")
    a("global_load_dword v4, v27, s[30:31]")
    a("L_nocp:")
    BQ = 102400; SCR = 153600; CSX = 161792
    vXA = [72, 73, 74, 75]; vW = [76, 77]; vRd = [78, 79]; vTB = [17, 18, 19, 20]; vTQ = [86, 87, 88, 89]; vTQ2 = [90, 91, 21, 22]
    vSA = [80, 81, 82]; vBA = [144, 145, 146, 147, 148]; vTR = [149, 150, 151, 152]
    vT1 = 24; vSTW = 25
    ACC = 32; RAW = 160; XF = A0; BF = A0 + 160; ONES = A0 + 200; GR = A0 + 204; RSM = A0 + 212; OH = A0 + 220; CSA = A0 + 240; CSQ = A0 + 244
    t0, t1, t2, t3 = "v27", "v28", "v29", "v30"
    a("v_lshlrev_b32 v8, 4, v1"); a("v_lshlrev_b32 v9, 4, v0")
    a("v_and_b32 v10, 15, v1"); a("v_lshlrev_b32 v10, 2, v10")
    a("v_lshrrev_b32 v11, 4, v1"); a("v_mov_b32 v5, 0"); a("v_add_u32 v12, 4096, v8")
    a("v_and_b32 v27, 3, v1"); a("s_lshl_b32 s3, s28, 2"); a("v_add_u32 v27, s3, v27"); a("v_min_u32 v27, 14, v27")
    a("v_lshrrev_b32 v28, 2, v1"); a("v_mul_u32_u24 v28, 3840, v28"); a("v_lshl_add_u32 v28, v27, 4, v28")
    a("v_add_u32 v29, 1440, v28"); a("v_add_u32 v30, 2640, v28")
    a("v_cmp_gt_u32 vcc, 10, v27"); a("v_cndmask_b32 v28, v28, v30, vcc")
    a("v_cmp_gt_u32 vcc, 5, v27"); a("v_cndmask_b32 v83, v28, v29, vcc")
    a("v_lshrrev_b32 v27, 3, v1"); a("v_and_b32 v28, 7, v1"); a("v_mul_u32_u24 v29, 1280, v27")
    a(f"v_lshl_add_u32 v{vXA[0]}, v28, 4, v29")
    for rg in range(1, 4): a(f"v_add_u32 v{vXA[rg]}, {10240*rg}, v{vXA[0]}")
    a("s_lshl_b32 s3, s28, 11"); a(f"s_add_u32 s48, s3, {SCR}")
    a("v_lshrrev_b32 v29, 1, v27"); a("v_xor_b32 v29, v29, v28"); a("v_lshlrev_b32 v29, 4, v29"); a("v_lshl_add_u32 v29, v27, 7, v29")
    a(f"v_add_u32 v{vW[0]}, s48, v29")
    a("v_xor_b32 v29, 64, v29"); a("v_add_u32 v29, 1024, v29"); a(f"v_add_u32 v{vW[1]}, s48, v29")
    a("v_subrev_u32 v83, 160, v83")
    a("s_mul_i32 s50, s26, 153600"); a("s_mul_i32 s51, s27, 80"); a("s_add_u32 s50, s50, s51")
    a("s_mul_i32 s53, s28, 3072"); a(f"s_add_u32 s53, s53, {BQ + 28672}")
    a("s_lshl_b32 s49, s26, 7"); a("s_lshl_b32 s3, s28, 5"); a("s_add_u32 s49, s49, s3"); a("s_mul_i32 s49, s49, 1280")
    a("s_lshr_b32 s3, s28, 1"); a("s_lshl_b32 s3, s3, 7"); a("s_add_u32 s62, s49, 128"); a("s_sub_u32 s62, s62, s3"); a("s_add_u32 s49, s49, s3")
    a("s_mul_i32 s52, s28, 5120")
    a(f"s_mul_i32 s58, s26, {G_SZ}"); a(f"s_add_u32 s58, s58, {GRP}")
    a("s_mul_i32 s3, s26, 163840"); a("s_mul_i32 s56, s27, 10240"); a("s_add_u32 s3, s3, s56"); a("s_mul_i32 s56, s28, 2560"); a("s_add_u32 s57, s3, s56")
    a("s_lshl_b32 s70, s28, 4"); a("s_add_u32 s70, s70, s26")
    a(f"s_mul_i32 s71, s28, 7168"); a(f"s_add_u32 s71, s71, {BQ}")
    a("v_mov_b32 v2, 0x7fffffff")
    a("s_waitcnt lgkmcnt(0)")
    srd(a, 36, 6, 2457600)
    SLNT = "" if "slplain" in OPT else " nt"
    for i in range(3):
        a(f"s_add_u32 m0, s53, {1024*i}")
        if i == 2: a("s_bfm_b64 exec, 32, 0")
        a.vmem(f"buffer_load_dwordx4 v83, s[36:39], s50 offen{SLNT} lds", "SLD")
        a(f"s_add_u32 s50, s50, {16*3840}")
    srd(a, 32, 4, 2621440); srd(a, 40, 24, WS_END)
    a("s_mov_b64 exec, 0xfffff")
    a.vmem(f"buffer_load_dword v4, v3, s[32:35], s57 offen{' nt' if 'xtnt' in OPT else ''}")
    if "tlb" in OPT:
        a("v_lshlrev_b32 v27, 20, v1"); a("s_bfm_b64 exec, 24, 0")
        a.vmem(f"buffer_load_dword v4, v27, s[40:43], 0 offen")
    if "tlb2" in OPT:
        a("s_mul_i32 s54, s27, 153600"); a(f"s_add_u32 s54, s54, {WQKV}")
        a("v_mul_u32_u24 v27, 51200, v1"); a("v_add_u32 v27, s54, v27"); a(f"v_mov_b32 v28, {F0}"); a("v_cmp_eq_u32 vcc, 3, v1"); a("v_cndmask_b32 v27, v27, v28, vcc")
        a("s_bfm_b64 exec, 4, 0")
        a.vmem(f"buffer_load_dword v4, v27, s[40:43], 0 offen")
        a.vmem("global_load_dword v4, v5, s[22:23] offset:128")
    a("s_mov_b64 exec, -1")
    if STAMP: a("v_writelane_b32 v7, s76, 29")
    a("s_and_b32 s76, s76, 0xfffffff8"); a("s_or_b32 s76, s76, 8")
    a("s_or_b32 s3, s2, s28"); a("s_cmp_lg_u32 s3, 0"); a("s_cbranch_scc1 L_notag")
    a("v_mov_b32 v28, s76"); a("global_store_dword v5, v28, s[22:23] sc1")
    a("L_notag:")
    if "ft" in OPT:
        a("s_cmp_lg_u32 s26, s27"); a("s_cbranch_scc1 L_noft"); a("s_cmp_lg_u32 s28, 1"); a("s_cbranch_scc1 L_noft")
        a("s_mul_i32 s3, s27, 1280"); a(f"s_add_u32 s3, s3, {FLG}")
        a("s_bfm_b64 exec, 10, 0"); a("buffer_load_dword v4, v3, s[40:43], s3 offen sc0 sc1"); a("s_mov_b64 exec, -1")
        a("L_noft:")
    if "nobt" not in OPT:
        a("s_lshl_b32 s3, s27, 2"); a("s_add_u32 s3, s3, s28"); a("s_cmp_lg_u32 s3, 6"); a("s_cbranch_scc1 L_nobt")
        a("s_bfm_b64 exec, 27, 0"); a("global_load_dword v4, v3, s[14:15]")
        a("s_bfm_b64 exec, 10, 0"); a("global_load_dword v4, v3, s[18:19]")
        a("s_mov_b64 exec, -1")
        a("L_nobt:")
    srd(a, 44, 12, 2211840)
    def rp_issue(nt, pitch_src, nch):
        for i in range(7):
            if i < nt:
                a(f"v_add_u32 v27, {64*i}, v1")
                divmod_const(a, "v28", "v29", "v27", nch)
                a(f"v_mul_u32_u24 v28, {pitch_src}, v28"); a("v_lshl_add_u32 v28, v29, 4, v28")
                a(f"s_add_u32 m0, s71, {1024*i}")
                a(f"buffer_load_dwordx4 v28, s[44:47], s73 offen nt lds")
            else:
                a("buffer_load_dword v4, v2, s[44:47], 0 offen")
    def unit_issue():
        a("s_cmp_ge_u32 s70, 20"); a("s_cbranch_scc1 L_rp5")
        a("s_mov_b32 s72, 1")
        a("s_mul_i32 s75, s27, 27"); a("s_lshr_b32 s75, s75, 2"); a("s_lshl_b32 s75, s75, 5")
        a("s_mul_i32 s79, s70, 110592"); a("s_add_u32 s73, s75, s79")
        a("s_mul_i32 s75, s27, 20"); a("s_add_u32 s70, s70, s75")
        a("s_mul_i32 s74, s70, 7168"); a(f"s_add_u32 s74, s74, {W1P}")
        rp_issue(7, 3456, 14)
        a("s_branch L_rp_issued")
        a("L_rp5:")
        a("s_mov_b32 s72, 2")
        a("s_sub_u32 s79, s70, 20"); a("s_lshl_b32 s79, s79, 1"); a("s_lshr_b32 s75, s27, 3"); a("s_add_u32 s79, s79, s75"); a("s_and_b32 s75, s27, 7")
        a("s_cmp_ge_u32 s79, 54"); a("s_cbranch_scc1 L_rpwo")
        srd(a, 44, 16, 2211840)
        a("s_mul_i32 s78, s75, 54"); a("s_add_u32 s78, s78, s79")
        a("s_mul_i32 s74, s78, 5120"); a(f"s_add_u32 s74, s74, {W2P}")
        a("s_branch L_rp5b")
        a("L_rpwo:")
        srd(a, 44, 8, 819200)
        a("s_sub_u32 s79, s79, 54")
        a("s_mul_i32 s78, s75, 20"); a("s_add_u32 s78, s78, s79")
        a("s_mul_i32 s74, s78, 5120"); a(f"s_add_u32 s74, s74, {WOP}")
        a("s_cmp_ge_u32 s79, 20"); a("s_cselect_b32 s74, 0x40000000, s74")
        a("L_rp5b:")
        a("s_mul_i32 s75, s75, 160"); a("s_mul_i32 s79, s79, 40960"); a("s_add_u32 s73, s75, s79")
        rp_issue(5, 1280, 10)
        a("L_rp_issued:")
        a.vm += ["UL"]*7
    def raw(cx, rg): return 96 + (((cx + 1) % 10)*4 + rg)*4
    def xf(tt, k): return XF + (tt*20 + k)*4
    def ldx(cx):
        return [lambda cx=cx, rg=rg: a.vmem(f"buffer_load_dwordx4 {R(raw(cx, rg), 4)}, v{vXA[rg]}, s[32:35], s{62 if cx & 1 else 49} offen offset:{256*(cx>>1)}", f"X{cx}") for rg in range(4)]
    a("v_and_b32 v27, 15, v1")
    a("v_cmp_gt_u32 s[66:67], 8, v27")
    a("v_cmp_gt_u32 s[90:91], 32, v1"); a("v_cmp_gt_u32 s[92:93], 48, v1")
    a("v_cmp_eq_u32 s[88:89], 1, v11")
    a("v_and_b32 v29, 1, v11")
    a("s_lshl_b32 s3, s28, 1"); a("v_add_u32 v29, s3, v29")
    a("v_cmp_gt_u32 s[94:95], 5, v29"); a("v_cmp_eq_u32 s[96:97], 7, v29")
    a("v_lshlrev_b32 v29, 10, v29"); a(f"v_add_u32 v30, {BQ - 5120}, v29"); a("v_cndmask_b32 v29, v30, v29, s[94:95]")
    a("v_lshl_add_u32 v29, v10, 2, v29")
    a("v_mov_b32 v30, 2560"); a("v_mov_b32 v31, 5120"); a("v_cndmask_b32 v30, v30, v31, s[94:95]")
    a("v_mov_b32 v31, 8"); a("v_cndmask_b32 v31, v31, 7, s[96:97]")
    a("s_andn2_b64 s[96:97], s[96:97], s[66:67]")
    a("s_mul_i32 s3, s26, 5")
    a("v_lshrrev_b32 v28, 1, v11"); a("v_add_u32 v28, s3, v28")
    for n in range(3):
        a(f"v_lshrrev_b32 v27, 2, v28"); a(f"v_mad_u32_u24 v{vSA[n]}, v27, v30, v29")
        a("v_and_b32 v27, 3, v28"); a("v_lshlrev_b32 v27, v31, v27"); a(f"v_add_u32 v{vSA[n]}, v{vSA[n]}, v27")
        a(f"v_cndmask_b32 v{vSA[n]}, v{vSA[n]}, v2, s[96:97]")
        if n == 2: a(f"v_cndmask_b32 v{vSA[n]}, v2, v{vSA[n]}, s[90:91]")
        else: a("v_add_u32 v28, 2, v28")
    a("v_lshrrev_b32 v27, 5, v1"); a("v_bfe_u32 v28, v1, 2, 2"); a("v_lshl_add_u32 v27, v27, 3, v28"); a("v_lshlrev_b32 v27, 6, v27")
    a("v_bfe_u32 v28, v1, 4, 1"); a("v_lshl_add_u32 v27, v28, 5, v27"); a("v_and_b32 v28, 3, v1"); a("v_lshl_add_u32 v27, v28, 3, v27")
    a("v_add_u32 v84, s53, v27")
    a("s_mul_i32 s54, s27, 153600"); a(f"s_add_u32 s54, s54, {WQKV}")
    a.wait(vm="SLD")
    a.stamp("sld")
    for n in range(3):
        for h in range(2): a(f"ds_read_b64_tr_b16 {R(96 + 4*n + 2*h, 2)}, v84 offset:{1024*n + 256*h}")
    a("s_waitcnt lgkmcnt(0)")
    for n in range(3): a.vmem(f"buffer_store_dwordx4 {R(96 + 4*n, 4)}, v{vSA[n]}, s[40:43], s54 offen sc1", "SL")
    a.vmem("global_load_dword v6, v5, s[22:23] sc1", "TAG")
    NX0 = P("NX0", 3)
    for cx in range(NX0):
        for f in ldx(cx): f()
    a("v_and_b32 v27, 15, v1")
    a("v_lshrrev_b32 v29, 1, v27"); a("v_xor_b32 v29, v29, v11"); a("v_lshlrev_b32 v29, 4, v29"); a("v_lshl_add_u32 v29, v27, 7, v29")
    a("s_and_b32 s3, s28, 1"); a("s_lshl_b32 s3, s3, 6"); a("v_xor_b32 v29, s3, v29")
    a(f"v_add_u32 v{vRd[0]}, s48, v29"); a("v_xor_b32 v29, 64, v29"); a(f"v_add_u32 v{vRd[1]}, s48, v29")
    a("v_lshrrev_b32 v29, 2, v27"); a("v_cmp_eq_u32 vcc, v29, v11")
    a("v_lshlrev_b32 v30, 2, v1"); a("v_add_u32 v30, 512, v30")
    a("v_cndmask_b32 v29, v30, v10, vcc"); a(f"v_add_u32 v{vSTW}, s48, v29")
    a("v_and_b32 v29, 1, v1"); a("v_cmp_eq_u32 s[68:69], 1, v29")
    a("v_and_b32 v29, 2, v1"); a("v_cmp_eq_u32 s[86:87], 2, v29")
    a("v_mov_b32 v28, 0x3f803f80")
    for i in range(4): a(f"v_accvgpr_write_b32 {R(ONES+i)}, v28")
    for t in range(5):
        a(f"v_cmp_eq_u32 vcc, {t}, v27"); a("v_cndmask_b32 v29, 0, v28, vcc")
        for e in range(4): a(f"v_accvgpr_write_b32 {R(OH+4*t+e)}, v29")
    a("v_and_b32 v27, 7, v1"); a("v_lshlrev_b32 v27, 4, v27"); a("v_lshl_add_u32 v27, v11, 7, v27")
    for p in range(4):
        a(f"s_xor_b32 s3, s28, {p}"); a("s_mul_i32 s56, s3, 5120"); a(f"v_add_u32 v{vTB[p]}, s56, v8")
        a("s_mul_i32 s56, s3, 2560"); a(f"s_add_u32 s56, s56, {BQ}"); a(f"v_add_u32 v{vTQ[p]}, s56, v8"); a("s_add_u32 s56, s56, 2048"); a(f"v_add_u32 v{vTQ2[p]}, s56, v27")
    a(f"s_mov_b32 s60, {hx(LOG2E)}"); a(f"s_mov_b32 s61, {hx(1e-6)}")
    a(f"s_mov_b32 s63, {hx(1.0/640)}"); a(f"s_mov_b32 s64, {hx(1e-5)}")
    a("s_lshl_b32 s55, s27, 8"); a(f"s_add_u32 s55, s55, {F0}")
    a("v_lshlrev_b32 v26, 2, v1")
    a("s_lshl_b32 s3, s26, 4"); a("s_lshl_b32 s56, s28, 2"); a("s_add_u32 s3, s3, s56"); a("s_add_u32 s3, s3, s55")
    a.wait(vm="TAG")
    a("v_readfirstlane_b32 s76, v6"); a("s_mov_b32 s78, 0")
    a("L_tp1:")
    a("s_cmp_lg_u32 s76, 0"); a("s_cbranch_scc1 L_tp1_ok")
    a("global_load_dword v6, v5, s[22:23] sc1"); a("s_add_u32 s78, s78, 1"); a("s_waitcnt vmcnt(0)")
    a("v_readfirstlane_b32 s76, v6")
    a(f"s_cmp_lt_u32 s78, {POLLMAX}"); a("s_cbranch_scc1 L_tp1")
    a("L_tp1_ok:")
    a("s_getreg_b32 s77, hwreg(HW_REG_XCC_ID)"); a("s_and_b32 s77, s77, 7"); a("s_or_b32 s77, s77, s76")
    a("s_lshl_b32 s57, s26, 7"); a("s_lshl_b32 s56, s27, 2"); a("s_add_u32 s57, s57, s56"); a(f"s_add_u32 s57, s57, {F1R}")
    a("s_cmp_eq_u32 s28, 0"); a("s_cselect_b32 s57, s57, 0x40000000"); a("v_mov_b32 v27, s77")
    a("s_mov_b64 exec, 1"); a.vmem("buffer_store_dword v6, v5, s[40:43], s3 offen sc1"); a.vmem("buffer_store_dword v27, v5, s[40:43], s57 offen sc1"); a("s_mov_b64 exec, -1")
    a.stamp("F0pub")
    def rp_fin(nt, RG):
        pitch = nt*32
        a("v_bfe_u32 v28, v1, 2, 2"); a("v_lshl_add_u32 v27, v11, 3, v28"); a("v_and_b32 v28, 3, v1")
        a(f"v_mul_u32_u24 v29, {pitch}, v27"); a("v_add_u32 v29, s71, v29")
        a("v_lshl_add_u32 v30, v28, 3, v29"); a("v_lshl_add_u32 v29, v28, 4, v29")
        for t in range(nt):
            for h in range(2):
                if t == nt - 1: a(f"ds_read_b64_tr_b16 {R(RG + 4*t + 2*h, 2)}, v30 offset:{h*4*pitch + 32*t}")
                else: a(f"ds_read_b64_tr_b16 {R(RG + 4*t + 2*h, 2)}, v29 offset:{h*4*pitch + 64*(t>>1) + 8*(t&1)}")
        if nt == 7:
            a("v_mov_b32 v28, 0x3f803f80")
            for t in (5, 6):
                a(f"v_cmp_eq_u32 vcc, {4*t}, v10")
                for e in range(4): a(f"v_cndmask_b32 v{RG+28+4*(t-5)+e}, 0, v28, vcc")
        a("s_waitcnt lgkmcnt(0)")
        if nt == 7:
            for t in range(7): a(MF(RG+36, RG + 4*t, OH + 4*t if t < 5 else RG+28+4*(t-5), t == 0))
    def rp_store(nt, RG):
        for t in range(nt):
            a(f"buffer_store_dwordx4 {R(RG + 4*t, 4)}, v{8 if t < 4 else 12}, s[40:43], s74 offen offset:{1024*(t&3)} sc1")
        if nt == 7:
            a("v_lshlrev_b32 v29, 4, v11"); a("v_lshl_add_u32 v29, v10, 4, v29"); a("v_cndmask_b32 v29, v2, v29, s[66:67]")
            a("s_lshl_b32 s3, s70, 9"); a(f"s_add_u32 s3, s3, {C1P}")
            a(f"buffer_store_dwordx4 {R(RG+36, 4)}, v29, s[40:43], s3 offen sc1")
        else:
            for _ in range(3): a("buffer_store_dword v5, v2, s[40:43], 0 offen")
    def acc(tt, t): return ACC + (tt*5 + t)*4
    def transp(cx):
        L = []
        for tt in range(2):
            L.append(lambda tt=tt: a.ds(f"ds_write_b128 v{vW[0]}, {R(raw(cx, 2*tt), 4)}"))
            L.append(lambda tt=tt: a.ds(f"ds_write_b128 v{vW[1]}, {R(raw(cx, 2*tt+1), 4)}"))
            L.append(lambda tt=tt: a.ds(f"ds_read_b128 {R(xf(tt, 2*cx), 4)}, v{vRd[0]}"))
            L.append(lambda tt=tt: a.ds(f"ds_read_b128 {R(xf(tt, 2*cx+1), 4)}, v{vRd[1]}", f"T{cx}"))
        return L
    def statm(k):
        L = []
        for tt in range(2):
            L.append(MF(GR + 4*tt, xf(tt, k), xf(tt, k), k == 0)); L.append(MF(RSM + 4*tt, ONES, xf(tt, k), k == 0))
        return L
    def breads1(s):
        j, p = divmod(s, 4); L = []
        for t in range(5):
            L.append(lambda t=t: a.ds(f"ds_read_b128 {R(BF + (s&1)*20 + t*4, 4)}, v{vTB[p]} offset:{(j % 3)*20480 + t*1024}", f"R{s}"))
        if j == 2: L.append(f"v_add_u32 v{vTB[p]}, 61440, v{vTB[p]}")
        return L
    def ldb(j):
        def one(i):
            if i == 0: a(f"s_add_u32 m0, s52, {j*20480}"); a("s_add_u32 s57, s54, m0")
            if i == 4: a(f"s_add_u32 m0, s52, {j*20480 + 4096}")
            a.vmem(f"buffer_load_dwordx4 v{8 if i < 4 else 12}, s[40:43], s57 offen offset:{1024*(i&3)} sc1 lds", f"B{j}")
        return [lambda i=i: one(i) for i in range(5)]
    def ldq():
        def one(i):
            if i == 11: a("s_cmp_eq_u32 s28, 3"); a("s_cbranch_scc1 L_noq")
            a(f"s_mul_i32 s98, s28, 13312"); a(f"s_add_u32 m0, s98, {BQ + i*1024}"); a("s_add_u32 s98, s54, m0")
            a.a(f"buffer_load_dwordx4 v8, s[40:43], s98 offen sc1 lds")
            if i < 11: a.vm.append("BQ")
            if i == 12: a("L_noq:")
        return [lambda i=i: one(i) for i in range(11)] + [lambda: (one(11), one(12))]
    def ldt1():
        a("v_lshlrev_b32 v27, 1, v0"); a("s_add_u32 s56, s30, T1_tab-L_pc"); a("s_addc_u32 s57, s31, 0")
        a.vmem(f"global_load_ushort v{vT1}, v27, s[56:57]", "T1")
    def kv_mf(s):
        mf = []
        for t in range(5):
            b = BF + (s&1)*20 + t*4
            for tt in range(2): mf.append(MF(acc(tt, t), xf(tt, s), b, s == 0))
            if s % 4 == 0: mf.append(MF(CSA, OH + 4*t, b, s == 0 and t == 0))
        return mf
    RS = 96; MS = 104; RT = 112; MT = 114; CSV = 116
    URG = 116
    def flagtouch():
        a(f"s_add_u32 s3, s58, {G_FL}"); a("s_bfm_b64 exec, 8, 0"); a.vmem("buffer_load_dword v4, v3, s[40:43], s3 offen"); a("s_mov_b64 exec, -1")
    lq = sum([ldx(cx) for cx in range(NX0, 10)], []) + [ldt1, flagtouch, unit_issue]
    XR = P("XR", 8)
    for cx in range(10):
        while f"X{cx}" not in a.vm or a.vm.count(f"X{cx}") < 4: lq.pop(0)()
        a.wait(vm=f"X{cx}")
        mf = (statm(2*(cx-1)) + statm(2*(cx-1)+1)) if cx else []
        if cx: a.wait(lg=f"T{cx-1}")
        side = transp(cx) + lq[:XR]; lq = lq[XR:]
        if mf: a.interleave(mf, side)
        else:
            for f in side: f()
    assert not lq
    a.stamp("xdone")
    a("s_mov_b32 s78, 0")
    a("L_h0p:")
    a("buffer_load_dword v16, v26, s[40:43], s55 offen sc1"); a("s_waitcnt vmcnt(0)")
    a("v_cmp_ne_u32 vcc, s76, v16")
    a("s_cbranch_vccz L_h0ok")
    a("s_add_u32 s78, s78, 1"); a(f"s_cmp_lt_u32 s78, {POLLMAX}"); a("s_cbranch_scc1 L_h0p")
    a("L_h0ok:")
    a.vm = []
    a.stamp("F0ok")
    for f in ldb(0): f()
    for f in ldb(1): f()
    a.wait(lg="all")
    for x in statm(18) + statm(19): a(x)
    a("s_cmp_eq_u32 s72, 2"); a("s_cbranch_scc1 L_rp_f5")
    rp_fin(7, URG); a("s_branch L_rp_done")
    a("L_rp_f5:"); rp_fin(5, URG)
    a("L_rp_done:")
    for tt in range(2):
        for e in range(4): a(f"v_accvgpr_read_b32 v{160+e}, {R(GR + 4*tt + e)}")
        a(f"v_accvgpr_read_b32 v164, {R(RSM + 4*tt)}")
        for x in ["v_cndmask_b32 v160, v160, v161, s[68:69]", "v_cndmask_b32 v162, v162, v163, s[68:69]", "v_mul_f32 v164, s63, v164",
                  "v_cndmask_b32 v160, v160, v162, s[86:87]", "v_mul_f32 v160, s63, v160", "v_fma_f32 v160, -v164, v164, v160",
                  "v_max_f32 v160, 0, v160", "v_add_f32 v160, s64, v160", "v_rsq_f32 v160, v160", "v_mul_f32 v164, v164, v160"]: a(x)
        a.ds(f"ds_write_b32 v{vSTW}, v160 offset:{64*tt}"); a.ds(f"ds_write_b32 v{vSTW}, v164 offset:{128 + 64*tt}")
    a("v_lshlrev_b32 v28, 4, v11"); a("v_add_u32 v28, s48, v28"); a("v_add_u32 v29, s48, v10")
    for tt in range(2):
        a.ds(f"ds_read_b128 {R(RS + 4*tt, 4)}, v28 offset:{64*tt}"); a.ds(f"ds_read_b128 {R(MS + 4*tt, 4)}, v28 offset:{128 + 64*tt}")
        a.ds(f"ds_read_b32 v{RT + tt}, v29 offset:{64*tt}"); a.ds(f"ds_read_b32 v{MT + tt}, v29 offset:{128 + 64*tt}")
    NBE = P("NBE", 3)
    for j in range(2, NBE):
        for f in ldb(j): f()
    a("s_lshl_b32 s73, s70, 9"); a(f"s_add_u32 s73, s73, {C1P}")
    a("s_cmp_eq_u32 s72, 2"); a("s_cselect_b32 s75, 0x40000000, s74"); a("s_cselect_b32 s73, 0x40000000, s73")
    a("v_lshlrev_b32 v85, 4, v11"); a("v_lshl_add_u32 v85, v10, 4, v85"); a("v_cndmask_b32 v85, v2, v85, s[66:67]")
    def ust(t):
        if t < 7: a.vmem(f"buffer_store_dwordx4 {R(URG + 4*t, 4)}, v{8 if t < 4 else 12}, s[40:43], s{74 if t < 5 else 75} offen offset:{1024*(t&3)} sc1", "US")
        else: a.vmem(f"buffer_store_dwordx4 {R(URG+36, 4)}, v85, s[40:43], s73 offen sc1", "US")
    a("s_and_b32 s59, s27, 7"); a("s_lshl_b32 s59, s59, 9"); a(f"s_add_u32 s59, s59, {FU}")
    a("s_lshr_b32 s3, s27, 3"); a("s_lshl_b32 s3, s3, 4"); a("s_add_u32 s3, s3, s26"); a("s_lshl_b32 s3, s3, 2"); a("s_add_u32 s3, s3, s28"); a("s_lshl_b32 s3, s3, 2"); a("s_add_u32 s70, s3, s59")
    a.wait(vm="B0")
    a("s_barrier")
    a.stamp("bP")
    a("s_mov_b32 s94, s60"); a("s_mov_b32 s95, s60"); a("s_mov_b32 s96, s61"); a("s_mov_b32 s97, s61")
    for f in breads1(0): a.run(f)
    def pretouch():
        if "sc1h" in OPT:
            a(f"s_add_u32 s3, s58, {G_FL}"); a("s_bfm_b64 exec, 4, 0"); a.vmem("buffer_load_dword v4, v3, s[40:43], s3 offen"); a("s_mov_b64 exec, -1")
            return
        a("s_mul_i32 s3, s27, 21056"); a("s_add_u32 s3, s3, s58"); a("s_mul_i32 s56, s28, 5376"); a("s_add_u32 s3, s3, s56")
        a("s_bfm_b64 exec, 42, 0"); a.vmem("buffer_load_dword v4, v3, s[40:43], s3 offen"); a("s_mov_b64 exec, -1")
    FB3 = 156
    a("s_and_b32 s3, s27, 7"); a("s_mul_i32 s3, s3, 20"); a("s_add_u32 s3, s3, s28"); a("s_mul_i32 s65, s3, 5120"); a(f"s_add_u32 s65, s65, {WOP}")
    def ldwo(n, t):
        a.vmem(f"buffer_load_dwordx4 {R(FB3 + (n*5+t)*4, 4)}, v{8 if t < 4 else 12}, s[40:43], s65 offen offset:{1024*(t&3)} sc1", "WO")
        if t == 4: a("s_add_u32 s65, s65, 20480")
    def ldfu():
        a("v_lshlrev_b32 v31, 3, v1")
        a.vmem("buffer_load_dwordx2 v[92:93], v31, s[40:43], s59 offen sc1", "FU")
    def chkfu():
        a.wait(vm="FU")
        a("s_mov_b32 s78, 0")
        a("L_fu:")
        a("v_cmp_ne_u32 vcc, s76, v92"); a("v_cmp_ne_u32 s[84:85], s76, v93")
        a("s_or_b64 vcc, vcc, s[84:85]"); a("s_cbranch_scc0 L_fu_ok")
        a("s_add_u32 s78, s78, 1"); a(f"s_cmp_ge_u32 s78, {POLLMAX}"); a("s_cbranch_scc1 L_fu_ok")
        a("buffer_load_dwordx2 v[92:93], v31, s[40:43], s59 offen sc1"); a("s_waitcnt vmcnt(0)")
        a("s_branch L_fu")
        a("L_fu_ok:")
    q_ = ldq(); mix = []
    if "usfirst" in OPT:
        mix = [lambda i=i: ust(i) for i in range(8)] + q_
    else:
        for i in range(12):
            mix.append(q_[i])
            if i < 8: mix.append(lambda i=i: ust(i))
    ldlist = sum([ldb(j) for j in range(NBE, 5)], [])
    MS0 = P("MS0", 6); MR = P("MR", 1)
    a.bgq = mix
    SFU = P("SFU", 18)
    LEND = P("LEND", 16)
    CT = 116
    for s in range(20):
        j, p = divmod(s, 4)
        if p == 3 and j < 4:
            a.wait(vm=f"B{j+1}"); a("s_barrier")
        if s == SFU:
            a.wait(vm="US")
            a("s_mov_b64 exec, 1"); a.vmem("buffer_store_dword v6, v5, s[40:43], s70 offen sc1"); a("s_mov_b64 exec, -1")
        if s == 18:
            a.wait(lg="CSW"); a("s_barrier")
        a.wait(lg=f"R{s}")
        mf = kv_mf(s)
        front = breads1(s+1) if s < 19 else []
        side = []
        if s == 17:
            side += ["s_lshl_b32 s3, s28, 9", f"s_add_u32 s3, s3, {CSX}", "v_add_u32 v27, s3, v8"]
            side.append(lambda: (a("s_bfm_b64 exec, 32, 0"), a.ds(f"ds_write_b128 v27, {R(CSA, 4)}", "CSW"), a("s_mov_b64 exec, -1")))
        if s == 18:
            assert a.vm.count("US") == 8
            side += ["v_lshlrev_b32 v27, 2, v10", f"v_add_u32 v27, {CSX}, v27"]
            for w in range(4):
                side.append(lambda w=w: a.ds(f"ds_read_b128 {R(CT + 4*w, 4)}, v27 offset:{512*w}"))
                side.append(lambda w=w: a.ds(f"ds_read_b32 v{CT + 16 + w}, v27 offset:{512*w + 256}", "CSR"))
        if s == 19:
            side.append(lambda: a.wait(lg="CSR"))
            for e in range(4):
                side += [f"v_add_f32 v{CT+e}, v{CT+e}, v{CT+4+e}", f"v_add_f32 v{CT+8+e}, v{CT+8+e}, v{CT+12+e}", f"v_add_f32 v{CT+20+e}, v{CT+e}, v{CT+8+e}"]
            side += [f"v_add_f32 v{CT+16}, v{CT+16}, v{CT+17}", f"v_add_f32 v{CT+18}, v{CT+18}, v{CT+19}", f"v_add_f32 v{CT+24}, v{CT+16}, v{CT+18}"]
        side += ldlist[:3]; ldlist = ldlist[3:]
        if s >= MS0: side = [lambda: a.bg(1)]*MR + side
        a.interleave(mf, side, front)
    CSV = CT + 20
    a.stamp("kvend")
    OP = 116; TP = 72
    FUC = P("FUC", 14)
    if FUC < 4: ldfu()
    KBG = P("KBG", 1)
    for t in range(5):
        for tt in range(2):
            b_ = acc(tt, t)
            cp = CSV + t; cpe = cp & ~1; sel = cp & 1
            for h in range(2):
                x = b_ + 2*h
                a(f"v_pk_mul_f32 v[{TP+2*h}:{TP+2*h+1}], v[{MS+4*tt+2*h}:{MS+4*tt+2*h+1}], v[{cpe}:{cpe+1}] op_sel:[0,{sel}] op_sel_hi:[1,{sel}]")
            for h in range(2):
                x = b_ + 2*h
                a(f"v_pk_fma_f32 v[{x}:{x+1}], v[{x}:{x+1}], v[{RS+4*tt+2*h}:{RS+4*tt+2*h+1}], v[{TP+2*h}:{TP+2*h+1}] neg_lo:[0,0,1] neg_hi:[0,0,1]")
            if t <= 2: phi4(a, b_, TP, sel_mask=("s[66:67]" if t == 2 else None))
            for h in range(2):
                a(f"v_cvt_pk_bf16_f32 v{OP + 4*t + 2*tt + h}, v{acc(tt, t) + 2*h}, v{acc(tt, t) + 2*h + 1}")
            if t*2 + tt == SFU - 20:
                a.wait(vm="US")
                a("s_mov_b64 exec, 1"); a.vmem("buffer_store_dword v6, v5, s[40:43], s70 offen sc1"); a("s_mov_b64 exec, -1")
            if t*2 + tt == FUC - 4: ldfu()
            if t*2 + tt == FUC: chkfu(); a.bgq += [lambda n=n, t=t: ldwo(n, t) for n in range(5) for t in range(5)]
            a.bg(KBG)
    while "BQdone" not in a.vm and a.vm.count("BQ") < 11 or (a.bgq and a.bgq[0] is q_[11]): a.bg(1)
    KVD = 32
    for p, (ta, tb) in enumerate(PAIRS):
        a(MF(KVD + 4*p, OP + 4*ta, ONES if tb < 0 else OP + 4*tb, True))
    a("s_mul_i32 s3, s28, 10240"); a("v_add_u32 v27, s3, v8")
    for p in range(10): a(f"ds_write_b128 v27, {R(KVD + 4*p, 4)} offset:{1024*p}")
    a("s_lshl_b32 s3, s27, 4"); a("s_add_u32 s3, s3, s26"); a("s_lshl_b32 s3, s3, 12"); a(f"s_add_u32 s3, s3, {PART}")
    a("v_cmp_gt_u32 vcc, 216, v0"); a("v_cndmask_b32 v9, v2, v9, vcc")
    a.wait(lg="all")
    a("s_barrier")
    for w in range(4): a(f"ds_read_b128 {R(56 + 4*w, 4)}, v{vT1} offset:{10240*w}")
    a("s_waitcnt lgkmcnt(0)")
    for e in (0, 2):
        a(f"v_pk_add_f32 v[{56+e}:{57+e}], v[{56+e}:{57+e}], v[{60+e}:{61+e}]"); a(f"v_pk_add_f32 v[{64+e}:{65+e}], v[{64+e}:{65+e}], v[{68+e}:{69+e}]")
    for e in (0, 2): a(f"v_pk_add_f32 v[{56+e}:{57+e}], v[{56+e}:{57+e}], v[{64+e}:{65+e}]")
    a.vmem(f"buffer_store_dwordx4 v[56:59], v9, s[40:43], s3 offen sc1", "PST")
    ldfu()
    a("s_lshr_b32 s48, s27, 3"); a("s_and_b32 s49, s27, 7")
    a("v_lshrrev_b32 v13, 1, v11"); a("v_lshlrev_b32 v13, 8, v13"); a("v_lshl_add_u32 v13, v10, 2, v13")
    a("v_and_b32 v28, 1, v11"); a("v_lshl_add_u32 v13, v28, 3, v13")
    a("v_mul_u32_u24 v14, 320, v10"); a("v_lshl_add_u32 v15, v11, 3, v14"); a("v_lshl_add_u32 v14, v11, 4, v14")
    a("s_lshl_b32 s50, s48, 2"); a("s_add_u32 s50, s50, s28")
    a("s_lshl_b32 s3, s26, 3"); a("s_add_u32 s3, s3, s50"); a("s_mul_i32 s51, s3, 20480"); a("s_mul_i32 s3, s49, 160"); a("s_add_u32 s51, s51, s3")
    a("s_mul_i32 s53, s27, 27"); a("s_lshr_b32 s53, s53, 2")
    a("s_mul_i32 s55, s27, 143360"); a(f"s_add_u32 s55, s55, {W1P}")
    srd(a, 36, 14, 3456)
    a("v_lshlrev_b32 v23, 4, v11"); a("v_lshl_add_u32 v26, v10, 4, v23")
    a("s_lshl_b32 s62, s27, 2"); a("s_add_u32 s62, s62, s28"); a("s_lshl_b32 s62, s62, 7")
    a("s_lshl_b32 s56, s26, 7"); a("s_add_u32 s56, s56, 8192")
    a("v_mov_b32 v27, s62"); a("v_mov_b32 v28, s56"); a("v_cndmask_b32 v17, v27, v28, s[88:89]"); a("v_add_u32 v17, v17, v10")
    a("s_lshl_b32 s3, s26, 2"); a("s_add_u32 s3, s3, s62"); a(f"s_add_u32 s3, s3, {F1}")
    a.wait(vm="PST")
    a("s_mov_b64 exec, 1"); a.vmem("buffer_store_dword v6, v5, s[40:43], s3 offen sc1"); a("s_mov_b64 exec, -1")
    a("s_barrier")
    a.stamp("b7")
    chkfu(); a.bgq += [lambda n=n, t=t: ldwo(n, t) for n in range(5) for t in range(5)]
    FB3 = 156; RES = 116; C1R = 126; T2R = 146
    B1A = A0 + 204
    W1T = A0 + 100
    def w1dma(i):
        a(f"s_mul_i32 s98, s28, {24*1024}"); a(f"s_add_u32 m0, s98, {i*1024}"); a("s_add_u32 s98, s55, m0")
        a.vmem(f"buffer_load_dwordx4 v8, s[40:43], s98 offen sc1 lds", "W1")
    def w1tail(i):
        a(f"s_mul_i32 s98, s28, {11*1024}"); a(f"s_add_u32 s98, s98, {(96+i)*1024}"); a("s_add_u32 s98, s55, s98")
        a.vmem(f"buffer_load_dwordx4 {R(W1T + 4*i, 4)}, v8, s[40:43], s98 offen sc1", "W1")
    def ldsmall():
        a("v_lshlrev_b32 v31, 5, v1"); a("s_add_u32 s98, s30, T2_tab-L_pc"); a("s_addc_u32 s99, s31, 0")
        a.vmem(f"global_load_dwordx4 {R(T2R, 4)}, v31, s[98:99]"); a.vmem(f"global_load_dwordx2 {R(T2R+4, 2)}, v31, s[98:99] offset:16")
    def ldres(q):
        if q == 0: a.vmem(f"buffer_load_dwordx4 {R(RES, 4)}, v14, s[32:35], s51 offen")
        if q == 1: a.vmem(f"buffer_load_dwordx4 {R(RES+4, 4)}, v14, s[32:35], s51 offen offset:64")
        if q == 2: a.vmem(f"buffer_load_dwordx2 {R(RES+8, 2)}, v15, s[32:35], s51 offen offset:128", "RES")
    def ldb1():
        a("v_lshlrev_b32 v31, 3, v11"); a("s_lshl_b32 s98, s53, 5")
        for p in range(3): a.vmem(f"buffer_load_dwordx4 {R(B1A + 4*p, 4)}, v23, s[36:39], s98 offen offset:{64*p}")
        a.vmem(f"buffer_load_dwordx2 {R(B1A + 12, 2)}, v31, s[36:39], s98 offen offset:192")
    def ldc1():
        a("s_mul_i32 s98, s27, 20"); a("s_mul_i32 s99, s28, 5"); a("s_add_u32 s98, s98, s99"); a("s_lshl_b32 s98, s98, 9"); a(f"s_add_u32 s98, s98, {C1P}")
        a("s_mov_b64 exec, s[66:67]")
        for n in range(5): a.vmem(f"buffer_load_dwordx4 {R(C1R + 4*n, 4)}, v26, s[40:43], s98 offen offset:{512*n} sc1", "C1")
        a("s_mov_b64 exec, -1")
    def hidtouch():
        a("s_mul_i32 s98, s27, 27648"); a("s_add_u32 s98, s98, s58"); a(f"s_add_u32 s98, s98, {G_HID}"); a("s_mul_i32 s99, s28, 6912"); a("s_add_u32 s98, s98, s99")
        a("s_bfm_b64 exec, 54, 0"); a.vmem("buffer_load_dword v4, v3, s[40:43], s98 offen"); a("s_mov_b64 exec, -1")
    ldsmall()
    a.bgq += [lambda q=q: ldres(q) for q in range(3)] + [ldb1, ldc1] + [lambda i=i: w1dma(i) for i in range(24)]
    QA = 32
    def qreads(s):
        j, p = divmod(s, 4)
        return [lambda t=t: a.ds(f"ds_read_b128 {R(BF + (s%3)*12 + t*4, 4)}, v{vTQ[p] if t < 2 else vTQ2[p]} offset:{j*10240 + (t&1)*1024}", f"Q{s}") for t in range(3)]
    for f in qreads(0) + qreads(1): f()
    a(f"s_mov_b32 s56, {F1}")
    QSTOP = P("QSTOP", 16)
    for s in range(20):
        j, p = divmod(s, 4)
        if s == 18: a.wait(lg="CQW"); a("s_barrier")
        a.wait(lg=f"Q{s}")
        mf = []
        for t in range(3):
            b = BF + (s%3)*12 + t*4
            for tt in range(2): mf.append(MF(QA + (tt*3+t)*4, b, xf(tt, s), s == 0))
            if p == 0: mf.append(MF(CSQ, b, OH + 4*t, s == 0 and t == 0))
        front = qreads(s+2) if s < 18 else []
        side = []
        if s < QSTOP: side += [lambda: a.bg(1)]*P("QBG", 1)
        if s == 17:
            side.append(lambda: a.vmem("buffer_load_dword v16, v17, s[40:43], s56 offen sc1", "POLL1"))
            side += ["s_lshl_b32 s3, s28, 9", f"s_add_u32 s3, s3, {CSX}", "v_add_u32 v27, s3, v26"]
            side.append(lambda: (a("s_mov_b64 exec, s[66:67]"), a.ds(f"ds_write_b128 v27, {R(CSQ, 4)}", "CQW"), a("s_mov_b64 exec, -1")))
        if s == 18:
            side += [f"v_add_u32 v30, {CSX}, v23"]
            for w, base in ((0, 56), (1, 68), (2, 96)):
                for t in range(3): side.append(lambda w=w, t=t, base=base: a.ds(f"ds_read_b128 {R(base + 4*t, 4)}, v30 offset:{512*w + 64*t}", "CQR"))
        if s == 19:
            side.append(lambda: a.wait(lg="CQR"))
            for x in range(12): side.append(f"v_add_f32 v{56+x}, v{56+x}, v{68+x}")
            for t in range(3): side.append(lambda t=t: a.ds(f"ds_read_b128 {R(68 + 4*t, 4)}, v30 offset:{1536 + 64*t}", "CQR"))
        a.interleave(mf, side, front)
    a.stamp("qend")
    a.wait(vm="POLL1")
    a("s_mov_b32 s78, 0")
    a("L_h1p:")
    a("v_and_b32 v28, 0xfffffff8, v16"); a("v_cmp_ne_u32 vcc, s76, v28")
    a("s_cbranch_vccz L_h1ok")
    a("s_add_u32 s78, s78, 1"); a(f"s_cmp_ge_u32 s78, {POLLMAX}"); a("s_cbranch_scc1 L_h1ok")
    a("buffer_load_dword v16, v17, s[40:43], s56 offen sc1"); a("s_waitcnt vmcnt(0)")
    a("s_branch L_h1p")
    a("L_h1ok:")
    a.stamp("h1ok")
    a.vm = []
    a("v_cmp_ne_u32 vcc, s77, v16"); a("s_and_b64 vcc, vcc, s[88:89]"); a("s_cselect_b32 s79, 0, 1")
    if os.environ.get("FORCESLOW"): a("s_mov_b32 s79, 0")
    P0 = A0
    a("s_lshl_b32 s3, s27, 16"); a(f"s_add_u32 s3, s3, {PART}")
    for r_ in range(16):
        a.vmem(f"buffer_load_dwordx4 {R(P0 + 4*r_, 4)}, v9, s[40:43], s3 offen sc1", f"P{r_}")
        a("s_add_u32 s3, s3, 4096")
    a.bgq += [lambda i=i: w1tail(i) for i in range(11)]
    for x in range(0, 12, 2): a(f"v_pk_add_f32 v[{56+x}:{57+x}], v[{56+x}:{57+x}], v[{96+x}:{97+x}]")
    a.wait(lg="all")
    for x in range(0, 12, 2): a(f"v_pk_add_f32 v[{56+x}:{57+x}], v[{56+x}:{57+x}], v[{68+x}:{69+x}]")
    PQR = 96
    EBG = P("EBG", 1)
    for tt in range(2):
        for t in range(3):
            b_ = QA + (tt*3+t)*4
            for h in range(2):
                a(f"v_pk_mul_f32 v[{TP+2*h}:{TP+2*h+1}], v[{56+4*t+2*h}:{57+4*t+2*h}], v[{MT}:{MT+1}] op_sel:[0,{tt}] op_sel_hi:[1,{tt}]")
            for h in range(2):
                x = b_ + 2*h
                a(f"v_pk_fma_f32 v[{x}:{x+1}], v[{x}:{x+1}], v[{RT}:{RT+1}], v[{TP+2*h}:{TP+2*h+1}] op_sel:[0,{tt},0] op_sel_hi:[1,{tt},1] neg_lo:[0,0,1] neg_hi:[0,0,1]")
            phi4(a, b_, TP)
            for h in range(2):
                d = f"v{PQR + tt*6 + t*2 + h}"
                a(f"v_cvt_pk_bf16_f32 {d}, v{QA + (tt*3+t)*4 + 2*h}, v{QA + (tt*3+t)*4 + 2*h + 1}")
                if t == 2: a(f"v_cndmask_b32 {d}, 0, {d}, s[90:91]")
            a.bg(EBG)
    OSC = SCR
    TA = 56
    for s_ in range(12):
        src = T2R + s_//2
        if s_ & 1: a(f"v_lshrrev_b32 v{TA+s_}, 16, v{src}")
        else: a(f"v_and_b32 v{TA+s_}, 0xffff, v{src}")
        a(f"v_add_u32 v{TA+s_}, {OSC}, v{TA+s_}")
    for r_ in range(16):
        if r_ % 4 == 0: a.wait(vm=f"P{r_+3}")
        for e in range(4): a(f"v_accvgpr_read_b32 v{(32 if r_ == 0 else 36)+e}, {R(P0+4*r_+e)}")
        if r_:
            for e in (0, 2): a(f"v_pk_add_f32 v[{32+e}:{33+e}], v[{32+e}:{33+e}], v[{36+e}:{37+e}]")
        if r_ % 4 == 3: a.bg(EBG)
    a("v_cvt_pk_bf16_f32 v18, v32, v33"); a("v_cvt_pk_bf16_f32 v19, v34, v35")
    a("v_cmp_gt_u32 vcc, 210, v0")
    a("v_cndmask_b32 v18, 0, v18, vcc"); a("v_cndmask_b32 v19, 0, v19, vcc")
    a("v_lshlrev_b32 v27, 3, v0"); a(f"v_add_u32 v27, {OSC}, v27")
    a("ds_write_b64 v27, v[18:19]")
    a("s_waitcnt lgkmcnt(0)")
    a("s_barrier")
    a.stamp("b9")
    KF = A0 + 64
    for E in range(4):
        for ta in range(3): a(f"ds_read_b64 {R(KF + 8*E + 2*ta, 2)}, v{TA + 3*E + ta}")
    a("s_mul_i32 s3, s28, 40960"); a("s_mul_i32 s56, s27, 1280"); a("s_add_u32 s3, s3, s56"); a("s_add_u32 s3, s3, s58")
    a("v_lshlrev_b32 v27, 2, v10"); a("v_lshl_add_u32 v27, v11, 3, v27")
    a("v_cndmask_b32 v27, v2, v27, s[90:91]")
    a("s_waitcnt lgkmcnt(0)")
    D = 32
    for tt in range(2):
        for E in (3, 0, 1, 2):
            d = R(D + (tt*4+E)*4, 4)
            a(f"v_mfma_f32_16x16x32_bf16 {d}, {R(KF + 8*E, 4)}, {R(PQR + 6*tt, 4)}, 0")
    for tt in range(2):
        for E in (3, 0, 1, 2):
            d = R(D + (tt*4+E)*4, 4)
            a(f"v_mfma_f32_16x16x16_bf16 {d}, {R(KF + 8*E + 4, 2)}, {R(PQR + 6*tt + 4, 2)}, {d}")
    for tt in range(2):
        z = D + (tt*4+3)*4
        a(f"v_add_f32 v20, s61, v{z}"); a(f"v_add_f32 v21, s61, v{z+1}")
        a("v_rcp_f32 v20, v20"); a("v_rcp_f32 v21, v21")
        a("v_cndmask_b32 v22, v21, v20, s[92:93]"); a("v_cndmask_b32 v28, v21, v20, s[90:91]")
        ob = 64 + 8*tt
        for E, rc in ((0, 22), (1, 28), (2, 21)):
            d = D + (tt*4+E)*4
            for e in range(4): a(f"v_mul_f32 v{d+e}, v{d+e}, v{rc}")
            a(f"v_cvt_pk_bf16_f32 v{ob + 2*E}, v{d}, v{d+1}"); a(f"v_cvt_pk_bf16_f32 v{ob + 2*E + 1}, v{d+2}, v{d+3}")
        a.vmem(f"buffer_store_dwordx4 {R(ob, 4)}, v8, s[40:43], s3 offen{HS}", "ST")
        a.vmem(f"buffer_store_dwordx2 {R(ob + 4, 2)}, v27, s[40:43], s3 offen offset:1024{HS}", "ST")
        a("s_add_u32 s3, s3, 20480")

    def hop(n, before, after_pub, post=0, touch=None, post2=0):
        before()
        a(f"s_add_u32 s59, s58, {G_FL + 128*n}")
        a("s_lshl_b32 s3, s27, 2"); a("s_add_u32 s3, s3, s59")
        a.bg(post)
        a.wait(vm="ST")
        if touch and "notouch" not in OPT: touch()
        a("s_barrier")
        a.stamp(f"hop{n}a")
        a("s_cmp_lg_u32 s28, 0"); a(f"s_cbranch_scc1 L_g{n}np")
        a("s_mov_b64 exec, 1")
        a("s_cmp_eq_u32 s79, 0"); a(f"s_cbranch_scc1 L_g{n}slow")
        a("buffer_store_dword v6, v5, s[40:43], s3 offen")
        a(f"s_branch L_g{n}pd")
        a(f"L_g{n}slow:")
        a("buffer_store_dword v6, v5, s[40:43], s3 offen sc1")
        a(f"L_g{n}pd:")
        a("s_mov_b64 exec, -1")
        a(f"L_g{n}np:")
        after_pub()
        a.bg(post2)
        a("s_cmp_lg_u32 s28, 0"); a(f"s_cbranch_scc1 L_g{n}j")
        a("s_mov_b32 s78, 0")
        a(f"L_g{n}p:")
        a("buffer_load_dword v27, v10, s[40:43], s59 offen sc1")
        a("s_add_u32 s78, s78, 1")
        a("s_waitcnt vmcnt(0)")
        a("v_cmp_ne_u32 vcc, s76, v27")
        a(f"s_cmp_ge_u32 s78, {POLLMAX}"); a(f"s_cbranch_scc1 L_g{n}x")
        a(f"s_cbranch_vccnz L_g{n}p")
        a(f"L_g{n}x:")
        a(f"L_g{n}j:")
        a("s_barrier")
        a.stamp(f"hop{n}b")
    def a_off(NK, goff):
        for m in range(4):
            a(f"s_add_u32 s3, s28, {m}"); a("s_and_b32 s3, s3, 3"); a("s_lshl_b32 s57, s48, 2"); a("s_add_u32 s3, s3, s57")
            a(f"s_mul_i32 s3, s3, {NK}"); a("s_add_u32 s3, s3, s28"); a("s_lshl_b32 s3, s3, 10"); a("s_add_u32 s3, s3, s58"); a(f"s_add_u32 s{80+m}, s3, {goff}")
    def flush_wo():
        while any(True for _ in [0]) and a.bgq and len(a.bgq) > 24 + 11: a.bg(1)
    def bef0():
        a_off(20, G_O)
        a("s_mul_i32 s99, s28, 40960"); a("s_mul_i32 s56, s27, 1280"); a("s_add_u32 s99, s99, s56"); a("s_add_u32 s99, s99, s58")
        a("v_mul_u32_u24 v28, 20480, v11"); a("v_lshl_add_u32 v28, v10, 5, v28")
    def tch0():
        a("s_mov_b64 exec, 0x03ff03ff"); a.vmem("buffer_load_dword v4, v28, s[40:43], s99 offen sc1"); a("s_mov_b64 exec, -1")
    hop(0, bef0, lambda: None, post=0, touch=tch0, post2=P("POST0", 6))
    flush_wo()
    ACC = 32 ; FA3 = A0
    for n in range(5):
        for m in range(4):
            a.vmem(f"buffer_load_dwordx4 {R(FA3 + (n*4+m)*4, 4)}, v8, s[40:43], s{80+m} offen sc1", f"A{n}")
            a(f"s_add_u32 s{80+m}, s{80+m}, 4096")
    if "sc1hid" not in OPT: a.bgq.insert(0, hidtouch)
    RED = 102400
    def red_addr():
        for m in range(1, 4):
            a(f"s_add_u32 s3, s28, {m}"); a("s_and_b32 s3, s3, 3"); a("s_mul_i32 s3, s3, 15360"); a(f"s_add_u32 s3, s3, {RED}")
            a(f"v_add_u32 v{16+m}, s3, v8")
        a("s_mul_i32 s3, s28, 15360"); a(f"s_add_u32 s3, s3, {RED}"); a("v_add_u32 v16, s3, v8")
    def init_acc(srcs):
        for t in range(5):
            for e in range(4):
                for q, src0 in enumerate(srcs):
                    src = src0 + 2*t + (e >> 1); d = ACC+4*t+e if q == 0 else 27
                    if e & 1: a(f"v_and_b32 v{d}, 0xffff0000, v{src}")
                    else: a(f"v_lshlrev_b32 v{d}, 16, v{src}")
                    if q: a(f"v_add_f32 v{ACC+4*t+e}, v{ACC+4*t+e}, v27")
    def last_step(mfn):
        order = [(m, t) for m in (1, 2, 3, 0) for t in range(5)]
        for i, (m, t) in enumerate(order):
            a(mfn(m, t))
            if i >= 5:
                m2, t2 = order[i-5]
                a(f"ds_write_b128 v{16+m2}, {R(ACC + (m2*5+t2)*4, 4)} offset:{(m2-1)*5120 + t2*1024}")
    red_addr()
    if "RES" in a.vm: a.wait(vm="RES")
    init_acc([RES])
    S3BG = P("S3BG", 3)
    for n in range(5):
        a.wait(vm=f"A{n}")
        if n == 4:
            last_step(lambda m, t: MF(ACC + (m*5+t)*4, FB3 + (n*5+t)*4, FA3 + (n*4+m)*4, False)); a.bg(S3BG)
        else:
            mf = [MF(ACC + (m*5+t)*4, FB3 + (n*5+t)*4, FA3 + (n*4+m)*4, n == 0 and m > 0) for m in range(4) for t in range(5)]
            a.interleave(mf, [lambda: a.bg(1)]*S3BG)
    a.stamp("s3end")
    HF = A0; BF = A0 + 160
    NA = P("NA", 4); BS = 4*max(NA, 7 - NA)
    if NA == 4:
        slots = [156 + 4*i for i in range(16)] + [A0 + 192 + 4*i for i in range(3)] + [A0 + 220 + 4*i for i in range(9)] + [HF + 4*i for i in range(40)] + [BF + 4*i for i in range(2)]
        NEARLY = 28
        arA = [A0 + 168 + 4*i for i in range(6)] + [A0 + 204 + 4*i for i in range(4)]
    else:
        for x in range(14): a(f"v_accvgpr_mov_b32 {R(A0 + 240 + x)}, {R(B1A + x)}")
        B1A = A0 + 240
        slots = [156 + 4*i for i in range(16)] + [A0 + 208 + 4*i for i in range(8)] + [HF + 4*i for i in range(40)] + [BF + 4*i for i in range(6)]
        NEARLY = 24
        arA = [A0 + 184 + 4*i for i in range(6)] + [A0 + 240 + 4*i for i in range(4)]
    def fb(n, t): return slots[n*5 + t]
    a("s_mul_i32 s3, s49, 54"); a("s_add_u32 s3, s3, s28"); a("s_mul_i32 s54, s3, 5120"); a(f"s_add_u32 s54, s54, {W2P}")
    def ldw2(n, t):
        if n == 13 and t == 0:
            a("s_cmp_ge_u32 s28, 2"); a("s_cselect_b32 s98, 0x40000000, 0"); a("s_add_u32 s54, s54, s98")
        a.vmem(f"buffer_load_dwordx4 {R(fb(n, t), 4)}, v{8 if t < 4 else 12}, s[40:43], s54 offen offset:{1024*(t&3)} sc1", f"W2_{n}")
        if t == 4: a("s_add_u32 s54, s54, 20480")
    w2q = [(n, t) for n in range(14) for t in range(5)]
    nw1left = len(a.bgq)
    def w2bg():
        ldw2(*w2q.pop(0))
    a.bgq += [w2bg]*NEARLY
    def reduce_epi(which, BIA=None, nbg=0):
        a.bg(2*nbg)
        a("s_waitcnt lgkmcnt(0)")
        a("s_barrier")
        for t in range(5):
            for m in range(1, 4): a(f"ds_read_b128 {R(ACC + (m*5+t)*4, 4)}, v16 offset:{(m-1)*5120 + t*1024}")
        for t in range(5):
            a(f"s_waitcnt lgkmcnt({12 - 3*t})")
            for e in (0, 2):
                x0 = ACC + 4*t + e
                a(f"v_pk_add_f32 v[{x0+20}:{x0+21}], v[{x0+20}:{x0+21}], v[{x0+40}:{x0+41}]"); a(f"v_pk_add_f32 v[{x0}:{x0+1}], v[{x0}:{x0+1}], v[{x0+60}:{x0+61}]")
            for e in (0, 2):
                x0 = ACC + 4*t + e
                a(f"v_pk_add_f32 v[{x0}:{x0+1}], v[{x0}:{x0+1}], v[{x0+20}:{x0+21}]")
            for h in range(2): a(f"v_cvt_pk_bf16_f32 v{RES+2*t+h}, v{ACC+4*t+2*h}, v{ACC+4*t+2*h+1}")
            if which == 3:
                if t == 1: a.vmem(f"buffer_store_dwordx4 {R(RES, 4)}, v8, s[40:43], s57 offen{HS}")
                if t == 3: a.vmem(f"buffer_store_dwordx4 {R(RES+4, 4)}, v8, s[40:43], s57 offen offset:1024{HS}")
                if t == 4: a.vmem(f"buffer_store_dwordx2 {R(RES+8, 2)}, v13, s[40:43], s57 offen offset:2048{HS}")
    a("s_mul_i32 s57, s50, 20480"); a("s_mul_i32 s3, s49, 2560"); a("s_add_u32 s57, s57, s3"); a("s_add_u32 s57, s57, s58"); a(f"s_add_u32 s57, s57, {G_H}")
    reduce_epi(3, nbg=P("R3BG", 2))
    a(f"v_pk_add_f32 v[28:29], v[{ACC}:{ACC+1}], v[{ACC+2}:{ACC+3}]"); a(f"v_pk_mul_f32 v[30:31], v[{ACC}:{ACC+1}], v[{ACC}:{ACC+1}]"); a(f"v_pk_fma_f32 v[30:31], v[{ACC+2}:{ACC+3}], v[{ACC+2}:{ACC+3}], v[30:31]")
    for x in range(4, 20, 2):
        a(f"v_pk_add_f32 v[28:29], v[28:29], v[{ACC+x}:{ACC+x+1}]"); a(f"v_pk_fma_f32 v[30:31], v[{ACC+x}:{ACC+x+1}], v[{ACC+x}:{ACC+x+1}], v[30:31]")
    a("v_add_f32 v20, v28, v29"); a("v_add_f32 v21, v30, v31")
    def red_g(regs, tmp):
        for r_ in regs:
            a(f"v_mov_b32 {tmp}, {r_}"); a(f"v_permlane32_swap_b32 {r_}, {tmp}"); a(f"v_add_f32 {r_}, {r_}, {tmp}")
            a(f"v_mov_b32 {tmp}, {r_}"); a(f"v_permlane16_swap_b32 {r_}, {tmp}"); a(f"v_add_f32 {r_}, {r_}, {tmp}")
    red_g(["v20", "v21"], "v22")
    a("v_lshlrev_b32 v22, 1, v10")
    a("s_lshl_b32 s57, s50, 10"); a("s_lshl_b32 s3, s49, 7"); a("s_add_u32 s57, s57, s3"); a("s_add_u32 s57, s57, s58"); a(f"s_add_u32 s57, s57, {G_ST}")
    a.vmem(f"buffer_store_dwordx2 v[20:21], v22, s[40:43], s57 offen{HS}", "ST")
    CS = 128; CSL = 144384
    def bef3():
        a("s_mul_i32 s3, s28, 40960"); a("s_add_u32 s3, s3, s58"); a(f"s_add_u32 s80, s3, {G_H}"); a("s_add_u32 s81, s80, 20480")
        a("s_lshl_b32 s82, s28, 11"); a("s_add_u32 s82, s82, s58"); a(f"s_add_u32 s82, s82, {G_ST}")
        a("v_lshlrev_b32 v19, 8, v11"); a("v_lshl_add_u32 v19, v10, 1, v19")
        a("v_add_u32 v16, 57344, v8"); a("v_add_u32 v17, 114688, v8")
        a(f"s_mul_i32 s3, s28, {11*1024}"); a(f"s_add_u32 s3, s3, {96*1024}"); a("v_add_u32 v18, s3, v8")
        for e in range(4):
            a(f"v_add_f32 v{C1R+e}, v{C1R+e}, v{C1R+4+e}"); a(f"v_add_f32 v{C1R+8+e}, v{C1R+8+e}, v{C1R+12+e}")
            a(f"v_add_f32 v{C1R+e}, v{C1R+e}, v{C1R+16+e}"); a(f"v_add_f32 v{C1R+e}, v{C1R+e}, v{C1R+8+e}")
        a("s_lshl_b32 s3, s28, 9"); a(f"s_add_u32 s3, s3, {CSL}"); a("v_add_u32 v29, s3, v26")
    def aft3():
        if "W1" in a.vm: a.wait(vm="W1")
        for i in range(11): a(f"ds_write_b128 v18, {R(W1T + 4*i, 4)} offset:{1024*i}")
        a("s_mov_b64 exec, s[66:67]"); a(f"ds_write_b128 v29, {R(C1R, 4)}"); a("s_mov_b64 exec, -1")
        a("s_waitcnt lgkmcnt(0)")
    left1 = max(0, len(a.bgq) - len([1 for x in a.bgq if x is w2bg]))
    print("w1 left at hop3:", left1, "w2 issued:", 70 - len(w2q), file=sys.stderr)
    def tch1():
        a("s_mul_i32 s99, s50, 20480"); a("s_mul_i32 s98, s49, 2560"); a("s_add_u32 s99, s99, s98"); a("s_add_u32 s99, s99, s58"); a(f"s_add_u32 s99, s99, {G_H}")
        a("s_mov_b64 exec, 0xfffff"); a.vmem("buffer_load_dword v4, v3, s[40:43], s99 offen sc1"); a("s_mov_b64 exec, -1")
    hop(1, bef3, aft3, post=left1, touch=tch1, post2=max(0, P("POST1", 6) - left1))
    def hf(tt, k): return HF + (k*2 + tt)*4
    def ldh(k):
        def one(tt):
            a.vmem(f"buffer_load_dwordx4 {R(hf(tt, k), 4)}, v8, s[40:43], s{80+tt} offen offset:{1024*(k&3)} sc1", f"H{k}")
            if (k & 3) == 3: a(f"s_add_u32 s{80+tt}, s{80+tt}, 4096")
        return [lambda tt=tt: one(tt) for tt in range(2)]
    PRE = P("PRE4", 6)
    for k in range(PRE):
        for f in ldh(k): f()
    for tt in range(2):
        for q in range(2):
            a.vmem(f"buffer_load_dwordx2 {R(88 + 4*tt + 2*q, 2)}, v19, s[40:43], s82 offen offset:{1024*tt + 128*q} sc1", "STAT")
    def breads(ps, k):
        ts = range(NA) if ps == 0 else range(NA, 7)
        return [lambda t=t: a.ds(f"ds_read_b128 {R(BF + (k&1)*BS + 4*(t - ts[0]), 4)}, v{[8, 16, 17][k >> 3]} offset:{(k & 7)*7168 + 1024*t}", f"BR{ps}_{k}") for t in ts]
    for f in breads(0, 0): f()
    vS = [20, 21]; vQ = [24, 25]
    a(f"v_add_u32 v18, {CSL}, v23")
    hq = list(range(PRE, 20))
    B1U = 220
    c1 = -2.0*LOG2E*0.7978845608028654
    c2 = c1*0.044715
    a(f"s_mov_b32 s60, {hx(c1)}"); a(f"s_mov_b32 s61, {hx(c2)}")
    a("s_mul_i32 s56, s28, 110592"); a("s_lshl_b32 s3, s53, 9"); a("s_add_u32 s56, s56, s3"); a("s_add_u32 s56, s56, s58"); a(f"s_add_u32 s56, s56, {G_HID}"); a("s_add_u32 s57, s56, 55296")
    for k in range(20):
        a.wait(vm=f"H{k}", lg=f"BR0_{k}")
        front = breads(0, k+1) if k < 19 else breads(1, 0)
        side = []
        if hq: side += ldh(hq.pop(0))
        else: side += [lambda: a.bg(1)]*P("ABG", 1)
        if 1 <= k < 8:
            kk = k - 1; tb = 96 if kk % 2 == 0 else 220
            side.append(lambda kk=kk: a.wait(lg=f"CG{kk}"))
            for e in range(4):
                side += [f"v_add_f32 v{CS+4*kk+e}, v{CS+4*kk+e}, v{tb+e}", f"v_add_f32 v{tb+4+e}, v{tb+4+e}, v{tb+8+e}", f"v_add_f32 v{CS+4*kk+e}, v{CS+4*kk+e}, v{tb+4+e}"]
        if k < 7:
            tb = 96 if k % 2 == 0 else 220
            for w in range(4): front.append(lambda w=w, k=k, tb=tb: a.ds(f"ds_read_b128 {R((CS + 4*k) if w == 0 else (tb - 4 + 4*w), 4)}, v18 offset:{512*w + 64*k}", f"CG{k}"))
        if k == PRE + 2:
            for tt in range(2):
                side.append(f"v_add_f32 v{vS[tt]}, v{88+4*tt}, v{90+4*tt}"); side.append(f"v_add_f32 v{vQ[tt]}, v{89+4*tt}, v{91+4*tt}")
            side.append(lambda: red_g([f"v{x}" for x in vS + vQ], "v22"))
        if k == PRE + 3:
            for tt in range(2):
                s_, q_ = f"v{vS[tt]}", f"v{vQ[tt]}"
                side += [f"v_mul_f32 {s_}, s63, {s_}", f"v_mul_f32 {q_}, s63, {q_}", f"v_fma_f32 {q_}, -{s_}, {s_}, {q_}", f"v_max_f32 {q_}, 0, {q_}",
                         f"v_add_f32 v22, s64, {q_}", f"v_fma_f32 {q_}, v22, s64, {q_}", f"v_rsq_f32 {q_}, {q_}", f"v_mul_f32 {s_}, {s_}, {q_}"]
            side += ["v_mov_b32 v252, s60", "v_mov_b32 v253, s60", "s_mov_b32 s96, s61", "s_mov_b32 s97, s61"]
        if k >= 12:
            x = 2*(k - 12)
            for y in (x, x + 1):
                if y < 14:
                    side += [f"v_accvgpr_read_b32 v27, {R(B1A + y)}", f"v_lshlrev_b32 v{B1U+2*y}, 16, v27", f"v_and_b32 v{B1U+2*y+1}, 0xffff0000, v27"]
        mf = [MF(ACC + (tt*7+t)*4, BF + (k&1)*BS + 4*t, hf(tt, k), k == 0) for t in range(NA) for tt in range(2)]
        a.interleave(mf, side, front)
    a.stamp("s4A")
    PK = 88
    def gelu(tt, t, pk=False):
        L = []
        if pk:
            b_ = ACC + (tt*7+t)*4
            pr = lambda x: f"v[{x}:{x+1}]"
            for h in (0, 2): L.append(f"v_pk_fma_f32 {pr(248+h)}, v[20:21], {pr(CS+4*t+h)}, {pr(B1U+4*t+h)} op_sel:[{tt},0,0] op_sel_hi:[{tt},1,1] neg_lo:[1,0,0] neg_hi:[1,0,0]")
            for h in (0, 2): L.append(f"v_pk_fma_f32 {pr(b_+h)}, {pr(b_+h)}, v[24:25], {pr(248+h)} op_sel:[0,{tt},0] op_sel_hi:[1,{tt},1]")
            for h in (0, 2): L.append(f"v_pk_mul_f32 {pr(248+h)}, {pr(b_+h)}, {pr(b_+h)}")
            for h in (0, 2): L.append(f"v_pk_fma_f32 {pr(248+h)}, {pr(248+h)}, s[96:97], v[252:253]")
            for h in (0, 2): L.append(f"v_pk_mul_f32 {pr(248+h)}, {pr(248+h)}, {pr(b_+h)}")
            for e in range(4): L.append(f"v_exp_f32 v{248+e}, v{248+e}")
            for h in (0, 2): L.append(f"v_pk_add_f32 {pr(248+h)}, {pr(248+h)}, 1.0 op_sel_hi:[1,0]")
            for e in range(4): L.append(f"v_rcp_f32 v{248+e}, v{248+e}")
            for h in (0, 2): L.append(f"v_pk_mul_f32 {pr(b_+h)}, {pr(b_+h)}, {pr(248+h)}")
        else:
            for e in range(4):
                v_ = f"v{ACC + (tt*7+t)*4 + e}"; ta = f"v{248+e}"
                L += [f"v_fma_f32 {ta}, -v{vS[tt]}, v{CS+4*t+e}, v{B1U+4*t+e}", f"v_fma_f32 {v_}, {v_}, v{vQ[tt]}, {ta}", f"v_mul_f32 {ta}, {v_}, {v_}",
                      f"v_fma_f32 {ta}, {ta}, s61, v252", f"v_mul_f32 {ta}, {ta}, {v_}", f"v_exp_f32 {ta}, {ta}"]
            for e in range(4):
                ta = f"v{248+e}"; L += [f"v_add_f32 {ta}, 1.0, {ta}"]
            for e in range(4):
                ta = f"v{248+e}"; L += [f"v_rcp_f32 {ta}, {ta}"]
            for e in range(4):
                v_ = f"v{ACC + (tt*7+t)*4 + e}"; L.append(f"v_mul_f32 {v_}, {v_}, v{248+e}")
        for h in range(2):
            x0 = ACC + (tt*7+t)*4 + 2*h
            L.append(f"v_cvt_pk_bf16_f32 v{PK + tt*14 + 2*t + h}, v{x0}, v{x0+1}")
        if t & 1: L.append(lambda: a.vmem(f"buffer_store_dwordx4 {R(PK + tt*14 + 2*(t-1), 4)}, v8, s[40:43], s{56+tt} offen offset:{512*(t-1)}{HS2}", "ST"))
        if t == 6: L.append(lambda: a.vmem(f"buffer_store_dwordx2 {R(PK + tt*14 + 12, 2)}, v13, s[40:43], s{56+tt} offen offset:3072{HS2}", "ST"))
        return L
    gl = []
    for p in range(NA//2):
        for tt in range(2): gl += gelu(tt, 2*p, "pkB" in OPT) + gelu(tt, 2*p+1, "pkB" in OPT)
    a.bgq = []
    W2RATE = P("W2RATE", 2)
    for k in range(20):
        a.wait(lg=f"BR1_{k}")
        front = breads(1, k+1) if k < 19 else []
        q = (len(gl) + 19 - k)//(20 - k) if k > 0 else 0
        side = gl[:q]; gl = gl[q:]
        nin = max(0, min(W2RATE, len(w2q), NEARLY + 2*k - (70 - len(w2q))))
        for i_ in range(nin): side.insert((i_ + 1)*len(side)//(nin + 1), w2bg)
        mf = [MF(ACC + (tt*7+t)*4, BF + (k&1)*BS + 4*(t-NA), hf(tt, k), k == 0) for t in range(NA, 7) for tt in range(2)]
        a.interleave(mf, side, front)
    a.stamp("s4B")
    W2EPI = P("W2EPI", 2)
    seq = [(0, 4), (0, 5), (1, 4), (1, 5), (0, 6), (1, 6)] if NA == 4 else [(0, 6), (1, 6)]
    for i_, (tt, t) in enumerate(seq):
        L = gelu(tt, t, True)
        for j_, x in enumerate(L):
            a.run(x)
            if i_ < P("W2STOP", 4) and j_ in (6, 16)[:W2EPI] and w2q: ldw2(*w2q.pop(0))
    BIA = 126
    def bef4():
        srd(a, 32, 20, 2621440); srd(a, 36, 18, 1280)
        a_off(54, G_HID)
        a("v_lshlrev_b32 v28, 3, v11"); a("s_mul_i32 s3, s49, 160")
        a.vmem(f"buffer_load_dwordx4 {R(BIA, 4)}, v23, s[36:39], s3 offen")
        a.vmem(f"buffer_load_dwordx4 {R(BIA+4, 4)}, v23, s[36:39], s3 offen offset:64")
        a.vmem(f"buffer_load_dwordx2 {R(BIA+8, 2)}, v28, s[36:39], s3 offen offset:128", "BIA")
    npost = min(P("POST2", 4), len(w2q))
    a.bgq = [lambda x=x: ldw2(*x) for x in w2q[:npost]]; w2q = w2q[npost:]
    print("w2 left after hop4:", len(w2q), file=sys.stderr)
    def tch2():
        a("v_lshrrev_b32 v28, 5, v1"); a("v_mul_u32_u24 v28, 55296, v28"); a("v_and_b32 v29, 31, v1"); a("v_lshl_add_u32 v28, v29, 7, v28")
        a("s_mov_b32 exec_lo, 0x0fffffff"); a("s_mov_b32 exec_hi, 0x0fffffff"); a.vmem("buffer_load_dword v4, v28, s[40:43], s56 offen sc1"); a("s_mov_b64 exec, -1")
    hop(2, bef4, lambda: None, post=0, touch=tch2, post2=npost)
    ar = [136 + 4*i for i in range(5)] + [220 + 4*i for i in range(9)] + arA
    NR = 6
    def fa(n, m): return ar[(n % NR)*4 + m]
    def lda5(n):
        def one(m):
            if n == 13 and m == 0:
                a("s_cmp_ge_u32 s28, 2"); a("s_cselect_b32 s3, 0x40000000, 0")
                for q in range(4): a(f"s_add_u32 s{80+q}, s{80+q}, s3")
            a.vmem(f"buffer_load_dwordx4 {R(fa(n, m), 4)}, v8, s[40:43], s{80+m} offen sc1", f"A5_{n}")
            a(f"s_add_u32 s{80+m}, s{80+m}, 4096")
        return [lambda m=m: one(m) for m in range(4)]
    PRE5 = P("PRE5", 3)
    def need_w2(n):
        L = []
        while w2q and w2q[0][0] <= n:
            x = w2q.pop(0); L.append(lambda x=x: ldw2(*x))
        return L
    for n in range(PRE5):
        for f in need_w2(n) + lda5(n): f()
    def ldbia():
        a("v_lshlrev_b32 v28, 3, v11"); a("s_mul_i32 s3, s49, 160")
        a.vmem(f"buffer_load_dwordx4 {R(BIA, 4)}, v23, s[36:39], s3 offen")
        a.vmem(f"buffer_load_dwordx4 {R(BIA+4, 4)}, v23, s[36:39], s3 offen offset:64")
        a.vmem(f"buffer_load_dwordx2 {R(BIA+8, 2)}, v28, s[36:39], s3 offen offset:128")
    red_addr(); a.wait(vm="BIA"); init_acc([RES, BIA])
    nxt = PRE5
    for n in range(14):
        a.wait(vm=f"A5_{n}")
        side = []; cnt = 0
        while nxt < 14 and nxt <= n + NR - 1 and cnt < 2:
            side += need_w2(nxt) + lda5(nxt); nxt += 1; cnt += 1
        if n == 13:
            last_step(lambda m, t: MF(ACC + (m*5+t)*4, fb(n, t), fa(n, m), False))
        else:
            mf = [MF(ACC + (m*5+t)*4, fb(n, t), fa(n, m), n == 0 and m > 0) for m in range(4) for t in range(5)]
            a.interleave(mf, side)
    a.stamp("s5end")
    reduce_epi(5, BIA)
    a(f"buffer_store_dwordx4 {R(RES, 4)}, v14, s[32:35], s51 offen")
    a(f"buffer_store_dwordx4 {R(RES+4, 4)}, v14, s[32:35], s51 offen offset:64")
    a(f"buffer_store_dwordx2 {R(RES+8, 2)}, v15, s[32:35], s51 offen offset:128")
    a("s_or_b32 s3, s2, s28"); a("s_cmp_lg_u32 s3, 0"); a("s_cbranch_scc1 L_notagclr")
    a("global_store_dword v5, v5, s[22:23] sc1")
    a("L_notagclr:")
    a.stamp("stored")
    if STAMP:
        a("s_waitcnt vmcnt(0)")
        a.stamp("end")
        a("s_memrealtime s[100:101]"); a("s_waitcnt lgkmcnt(0)"); a("v_writelane_b32 v7, s100, 31")
        a("v_writelane_b32 v7, s79, 30")
        a("s_lshl_b32 s3, s2, 2"); a("s_add_u32 s3, s3, s28"); a("s_lshl_b32 s3, s3, 8"); a(f"s_add_u32 s3, s3, {STB}")
        a("v_lshlrev_b32 v27, 2, v1"); a("v_add_u32 v27, s3, v27")
        a("global_store_dword v27, v7, s[24:25]")
        if os.environ.get("DELAY"):
            di = os.environ["DELAY"]
            a(f"s_cmp_lg_u32 s2, {P('DWG', 8)}"); a("s_cbranch_scc1 L_end"); a("s_cmp_lg_u32 s28, 0"); a("s_cbranch_scc1 L_end")
            clk = "s_memrealtime" if di == "rt" else "s_memtime"
            a(f"{clk} s[100:101]"); a("s_waitcnt lgkmcnt(0)")
            if di == "rt":
                a("s_sub_u32 s3, s100, s76")
            else:
                a(f"v_readlane_b32 s3, v7, {di}"); a("v_readlane_b32 s56, v7, 0"); a("s_nop 3"); a("s_sub_u32 s3, s3, s56")
            a("s_lshl_b32 s3, s3, 2"); a("s_min_u32 s3, s3, 0x100000"); a("s_mov_b32 s57, s100")
            a("L_dly:")
            a(f"{clk} s[100:101]"); a("s_waitcnt lgkmcnt(0)"); a("s_sub_u32 s56, s100, s57"); a("s_cmp_lt_u32 s56, s3"); a("s_cbranch_scc1 L_dly")
        a.a.raw("; STAMPS " + " ".join(a.names))
    a("L_end:")
    a("s_endpgm")
    return a.a

def main(out):
    hdr = open("sequential_preLN__linear_attn_block__mixer_channel_mlp__prompt.s.ref").read().split("\n")
    hdr = [l for l in hdr if l.startswith(";") and "@launch" not in l]
    hdr.append("; @launch grid=(256,1,1) block=(256,1,1) lds=163840")
    a = gen()
    pre = '.amdgcn_target "amdgcn-amd-amdhsa--gfx950"\n.text\n'
    T1, T2 = build_tables()
    a.raw(".p2align 6\nT1_tab:")
    a.raw(".short " + ",".join(map(str, T1)))
    a.raw("T2_tab:")
    for row in T2: a.raw(".short " + ",".join(map(str, row)))
    a.raw(".fill 2048, 4, 0")
    a.raw('.section .rodata,"a"\n.p2align 6')
    a.raw(f""".amdhsa_kernel {NAME}
  .amdhsa_next_free_vgpr 512
  .amdhsa_next_free_sgpr 102
  .amdhsa_accum_offset 256
  .amdhsa_group_segment_fixed_size 0
  .amdhsa_kernarg_size 88
  .amdhsa_user_sgpr_count 2
  .amdhsa_user_sgpr_kernarg_segment_ptr 1
  .amdhsa_system_sgpr_workgroup_id_x 1
.end_amdhsa_kernel""")
    open(out, "w").write("\n".join(hdr) + "\n" + pre + a.finish())

if __name__ == "__main__":
    main(sys.argv[1])
```

```python
import sys, struct, os
from asmdsl import Asm, R, S
from gen1 import build_tables, PAIRS, f2u, hx, divmod_const, srd, LOG2E

NAME = "sequential_preLN__linear_attn_block__mixer_channel_mlp__prompt_kernel"
WOP = 0
W2P = WOP + 8*20*5*1024
W1P = W2P + 8*54*5*1024
C1P = W1P + 16*20*7*1024
WQKV = C1P + 320*512
PART = WQKV + 16*153600
GRP = PART + 256*4096
G_O = 0; G_H = 163840; G_ST = 327680; G_FL = 335872; G_HID = 336896; G_SZ = G_HID + 442368
FLG = GRP + 16*G_SZ
F1 = FLG; F1R = FLG + 8192; F0 = FLG + 10240; FU = FLG + 14336
WS_END = FLG + 20480
A0 = 256
STAMP = int(os.environ.get("STAMP", "0"))
STB = 32 << 20
POLLMAX = 1 << 15
OPT = set(os.environ.get("OPT", "").split(","))
def P(name, d): return int(os.environ.get(name, d))

class G:
    def __init__(self):
        self.a = Asm(); self.vm = []; self.lg = []; self.nst = 0; self.bgq = []; self.names = []
    def __call__(self, t): self.a(t)
    def vmem(self, text, tag=None): self.a(text); self.vm.append(tag)
    def ds(self, text, tag=None): self.a(text); self.lg.append(tag)
    def _n(self, lst, tag, cap):
        idx = max(i for i, t in enumerate(lst) if t == tag)
        return min(len(lst) - 1 - idx, cap)
    def wait(self, vm=None, lg=None):
        s = []
        if vm is not None: s.append(f"vmcnt({0 if vm == 'all' else self._n(self.vm, vm, 63)})")
        if lg is not None: s.append(f"lgkmcnt({0 if lg == 'all' else self._n(self.lg, lg, 15)})")
        self.a("s_waitcnt " + " ".join(s))
        if vm == 'all': self.vm = []
        if lg == 'all': self.lg = []
    def stamp(self, name=""):
        if STAMP != 1: return
        i = self.nst; self.nst += 1; self.names.append(name)
        assert i < 29
        self.a("s_memtime s[100:101]"); self.a("s_waitcnt lgkmcnt(0)"); self.a(f"v_writelane_b32 v7, s100, {i}")
    def run(self, x): x() if callable(x) else self.a(x)
    def bg(self, n=1):
        for _ in range(n):
            if self.bgq: self.bgq.pop(0)()
    def interleave(self, main, extra, front=()):
        n = len(main); m = len(extra); j = 0; front = list(front)
        for i, x in enumerate(main):
            self.run(x)
            if front:
                self.run(front.pop(0))
                if len(front) >= n - i and front: self.run(front.pop(0))
            while j < m and (j + 1) * n <= (i + 1) * m + (n - 1):
                self.run(extra[j]); j += 1
        for x in front: self.run(x)
        while j < m:
            self.run(extra[j]); j += 1

def MF(d, a_, b_, first): return f"v_mfma_f32_16x16x32_bf16 {R(d,4)}, {R(a_,4)}, {R(b_,4)}, {'0' if first else R(d,4)}"

def phi(a, val, t1, t2):
    a(f"v_mul_f32 {t1}, s60, {val}")
    a(f"v_max_f32 {t2}, 0, {val}")
    a(f"v_exp_f32_e64 {t1}, {t1} clamp")
    a(f"v_add_f32 {t2}, s61, {t2}")
    a(f"v_add_f32 {val}, {t1}, {t2}")

OPT |= {"sc1h", "sc1hid", "notouch", "usfirst", "ft"}
def phi4(a, b_, T, sel_mask=None):
    for h in range(2): a(f"v_pk_mul_f32 v[{T+2*h}:{T+2*h+1}], v[{b_+2*h}:{b_+2*h+1}], s[94:95]")
    for e in range(4): a(f"v_max_f32 v{T+4+e}, 0, v{b_+e}")
    for e in range(4): a(f"v_exp_f32_e64 v{T+e}, v{T+e} clamp")
    for h in range(2): a(f"v_pk_add_f32 v[{T+4+2*h}:{T+5+2*h}], v[{T+4+2*h}:{T+5+2*h}], s[96:97]")
    if sel_mask is None:
        for h in range(2): a(f"v_pk_add_f32 v[{b_+2*h}:{b_+2*h+1}], v[{T+2*h}:{T+2*h+1}], v[{T+4+2*h}:{T+5+2*h}]")
    else:
        for h in range(2): a(f"v_pk_add_f32 v[{T+2*h}:{T+2*h+1}], v[{T+2*h}:{T+2*h+1}], v[{T+4+2*h}:{T+5+2*h}]")
        for e in range(4): a(f"v_cndmask_b32 v{b_+e}, v{b_+e}, v{T+e}, {sel_mask}")
HS = " sc1"
HS2 = " sc1"
def gen():
    a = G()
    name = NAME
    NRAW = P("NRAW", 2)
    a.a.raw(f".globl {name}\n.p2align 8\n.type {name},@function\n{name}:")
    a("s_cmp_ge_u32 s2, 256"); a("s_cbranch_scc1 L_end")
    a("s_load_dwordx16 s[4:19], s[0:1], 0")
    a("s_load_dwordx4 s[20:23], s[0:1], 64")
    a("s_load_dwordx2 s[24:25], s[0:1], 80")
    a("s_memrealtime s[76:77]")
    a("s_getpc_b64 s[30:31]")
    a("L_pc:")
    a("v_mov_b32 v7, 0")
    a.stamp("start")
    a("v_lshrrev_b32 v2, 6, v0"); a("v_and_b32 v1, 63, v0")
    a("v_readfirstlane_b32 s28, v2")
    if "m48" in OPT:
        a("s_and_b32 s3, s2, 7"); a("s_lshr_b32 s29, s2, 3")
        a("s_lshr_b32 s26, s3, 1"); a("s_lshl_b32 s26, s26, 2"); a("s_lshr_b32 s27, s29, 3"); a("s_add_u32 s26, s26, s27")
        a("s_and_b32 s3, s3, 1"); a("s_lshl_b32 s3, s3, 2"); a("s_and_b32 s27, s29, 3"); a("s_or_b32 s27, s27, s3")
        a("s_and_b32 s29, s29, 4"); a("s_lshl_b32 s29, s29, 1"); a("s_or_b32 s27, s27, s29")
    else:
        a("s_and_b32 s3, s2, 7"); a("s_lshr_b32 s27, s2, 3"); a("s_lshr_b32 s26, s27, 4"); a("s_lshl_b32 s3, s3, 1")
        a("s_add_u32 s26, s26, s3")
        a("s_and_b32 s27, s27, 15")
    a("v_lshlrev_b32 v3, 7, v1")
    if "cp16" in OPT:
        a("s_cmp_lg_u32 s28, 3"); a("s_cbranch_scc1 L_nocp")
        a("s_mul_i32 s3, s27, 2304"); a("v_add_u32 v27, s3, v3"); a("s_bfm_b64 exec, 18, 0")
        a("global_load_dword v4, v27, s[30:31]"); a("s_mov_b64 exec, -1")
    elif "nocp" not in OPT:
        a("s_cmp_lg_u32 s28, 3"); a("s_cbranch_scc1 L_nocp")
        a("s_mul_i32 s3, s27, 13"); a("s_lshr_b32 s3, s3, 6"); a("s_mul_i32 s3, s3, 5"); a("s_sub_u32 s3, s27, s3"); a("s_lshl_b32 s3, s3, 13")
        a("v_add_u32 v27, s3, v3")
        a("global_load_dword v4, v27, s[30:31]")
    a("L_nocp:")
    BQ = 102400; SCR = 153600; CSX = 161792
    vXA = [72, 73, 74, 75]; vW = [76, 77]; vRd = [78, 79]; vTB = [17, 18, 19, 20]; vTQ = [86, 87, 88, 89]; vTQ2 = [90, 91, 21, 22]
    vSA = [80, 81, 82]; vBA = [144, 145, 146, 147, 148]; vTR = [149, 150, 151, 152]
    vT1 = 24; vSTW = 25
    ACC = 32; RAW = 160; XF = A0; BF = A0 + 160; ONES = A0 + 200; GR = A0 + 204; RSM = A0 + 212; OH = A0 + 220; CSA = A0 + 240; CSQ = A0 + 244
    t0, t1, t2, t3 = "v27", "v28", "v29", "v30"
    def early():
        a("v_and_b32 v27, 3, v1"); a("s_lshl_b32 s3, s28, 2"); a("v_add_u32 v27, s3, v27"); a("v_min_u32 v27, 14, v27")
        a("v_lshrrev_b32 v28, 2, v1"); a("v_mul_u32_u24 v28, 3840, v28"); a("v_lshl_add_u32 v28, v27, 4, v28")
        a("v_add_u32 v29, 1280, v28"); a("v_add_u32 v30, 2480, v28"); a("v_subrev_u32 v28, 160, v28")
        a("v_cmp_gt_u32 vcc, 10, v27"); a("s_mul_i32 s50, s26, 153600"); a("s_mul_i32 s51, s27, 80"); a("v_cndmask_b32 v28, v28, v30, vcc")
        a("v_cmp_gt_u32 vcc, 5, v27"); a("s_add_u32 s50, s50, s51"); a("s_mul_i32 s53, s28, 3072"); a("v_cndmask_b32 v83, v28, v29, vcc")
        a(f"s_add_u32 s53, s53, {BQ + 28672}")
        a("s_mul_i32 s3, s26, 163840"); a("s_mul_i32 s56, s27, 10240"); a("s_add_u32 s3, s3, s56"); a("s_mul_i32 s56, s28, 2560"); a("s_add_u32 s57, s3, s56")
        a("v_mov_b32 v5, 0")
    def late():
        a("v_lshlrev_b32 v8, 4, v1"); a("v_lshlrev_b32 v9, 4, v0")
        a("v_and_b32 v10, 15, v1"); a("v_lshlrev_b32 v10, 2, v10")
        a("v_lshrrev_b32 v11, 4, v1"); a("v_add_u32 v12, 4096, v8")
        a("v_lshrrev_b32 v27, 3, v1"); a("v_and_b32 v28, 7, v1"); a("v_mul_u32_u24 v29, 1280, v27")
        a(f"v_lshl_add_u32 v{vXA[0]}, v28, 4, v29")
        for rg in range(1, 4): a(f"v_add_u32 v{vXA[rg]}, {10240*rg}, v{vXA[0]}")
        a("s_lshl_b32 s3, s28, 11"); a(f"s_add_u32 s48, s3, {SCR}")
        a("v_lshrrev_b32 v29, 1, v27"); a("v_xor_b32 v29, v29, v28"); a("v_lshlrev_b32 v29, 4, v29"); a("v_lshl_add_u32 v29, v27, 7, v29")
        a(f"v_add_u32 v{vW[0]}, s48, v29")
        a("v_xor_b32 v29, 64, v29"); a("v_add_u32 v29, 1024, v29"); a(f"v_add_u32 v{vW[1]}, s48, v29")
        a("s_lshl_b32 s49, s26, 7"); a("s_lshl_b32 s3, s28, 5"); a("s_add_u32 s49, s49, s3"); a("s_mul_i32 s49, s49, 1280")
        a("s_lshr_b32 s3, s28, 1"); a("s_lshl_b32 s3, s3, 7"); a("s_add_u32 s62, s49, 128"); a("s_sub_u32 s62, s62, s3"); a("s_add_u32 s49, s49, s3")
        a("s_mul_i32 s52, s28, 5120")
        a(f"s_mul_i32 s58, s26, {G_SZ}"); a(f"s_add_u32 s58, s58, {GRP}")
        a("s_lshl_b32 s70, s28, 4"); a("s_add_u32 s70, s70, s26")
        a(f"s_mul_i32 s71, s28, 7168"); a(f"s_add_u32 s71, s71, {BQ}")
        a("v_mov_b32 v2, 0x7fffffff")
    early()
    if "slowpro" in OPT: late()
    a("s_waitcnt lgkmcnt(0)")
    srd(a, 36, 6, 2457600)
    SLNT = "" if "slplain" in OPT else " nt"
    for i in range(3):
        a(f"s_add_u32 m0, s53, {1024*i}")
        if i == 2: a("s_bfm_b64 exec, 32, 0")
        a.vmem(f"buffer_load_dwordx4 v83, s[36:39], s50 offen{SLNT} lds", "SLD")
        a(f"s_add_u32 s50, s50, {16*3840}")
    srd(a, 32, 4, 2621440); srd(a, 40, 24, WS_END)
    a("s_mov_b64 exec, 0xfffff")
    a.vmem(f"buffer_load_dword v4, v3, s[32:35], s57 offen{' nt' if 'xtnt' in OPT else ''}")
    if "tlb" in OPT:
        a("v_lshlrev_b32 v27, 20, v1"); a("s_bfm_b64 exec, 24, 0")
        a.vmem(f"buffer_load_dword v4, v27, s[40:43], 0 offen")
    if "tlb2" in OPT:
        a("s_mul_i32 s54, s27, 153600"); a(f"s_add_u32 s54, s54, {WQKV}")
        a("v_mul_u32_u24 v27, 51200, v1"); a("v_add_u32 v27, s54, v27"); a(f"v_mov_b32 v28, {F0}"); a("v_cmp_eq_u32 vcc, 3, v1"); a("v_cndmask_b32 v27, v27, v28, vcc")
        a("s_bfm_b64 exec, 4, 0")
        a.vmem(f"buffer_load_dword v4, v27, s[40:43], 0 offen")
        a.vmem("global_load_dword v4, v5, s[22:23] offset:128")
    a("s_mov_b64 exec, -1")
    if STAMP: a("v_writelane_b32 v7, s76, 29")
    a("s_and_b32 s76, s76, 0xfffffff8"); a("s_or_b32 s76, s76, 8")
    a("s_or_b32 s3, s2, s28"); a("s_cmp_lg_u32 s3, 0"); a("s_cbranch_scc1 L_notag")
    a("v_mov_b32 v28, s76"); a("global_store_dword v5, v28, s[22:23] sc1")
    a("L_notag:")
    if "ft" in OPT:
        a("s_cmp_lg_u32 s26, s27"); a("s_cbranch_scc1 L_noft"); a("s_cmp_lg_u32 s28, 1"); a("s_cbranch_scc1 L_noft")
        a("s_mul_i32 s3, s27, 1280"); a(f"s_add_u32 s3, s3, {FLG}")
        a("s_bfm_b64 exec, 10, 0"); a("buffer_load_dword v4, v3, s[40:43], s3 offen sc0 sc1"); a("s_mov_b64 exec, -1")
        a("L_noft:")
    if "nobt" not in OPT:
        a("s_lshl_b32 s3, s27, 2"); a("s_add_u32 s3, s3, s28"); a("s_cmp_lg_u32 s3, 6"); a("s_cbranch_scc1 L_nobt")
        a("s_bfm_b64 exec, 27, 0"); a("global_load_dword v4, v3, s[14:15]")
        a("s_bfm_b64 exec, 10, 0"); a("global_load_dword v4, v3, s[18:19]")
        a("s_mov_b64 exec, -1")
        a("L_nobt:")
    srd(a, 44, 12, 2211840)
    if "slowpro" not in OPT: late()
    def rp_issue(nt, pitch_src, nch):
        for i in range(7):
            if i < nt:
                a(f"v_add_u32 v27, {64*i}, v1")
                divmod_const(a, "v28", "v29", "v27", nch)
                a(f"v_mul_u32_u24 v28, {pitch_src}, v28"); a("v_lshl_add_u32 v28, v29, 4, v28")
                a(f"s_add_u32 m0, s71, {1024*i}")
                a(f"buffer_load_dwordx4 v28, s[44:47], s73 offen nt lds")
            else:
                a("buffer_load_dword v4, v2, s[44:47], 0 offen")
    def unit_issue():
        a("s_cmp_ge_u32 s70, 20"); a("s_cbranch_scc1 L_rp5")
        a("s_mov_b32 s72, 1")
        a("s_mul_i32 s75, s27, 27"); a("s_lshr_b32 s75, s75, 2"); a("s_lshl_b32 s75, s75, 5")
        a("s_mul_i32 s79, s70, 110592"); a("s_add_u32 s73, s75, s79")
        a("s_mul_i32 s75, s27, 20"); a("s_add_u32 s70, s70, s75")
        a("s_mul_i32 s74, s70, 7168"); a(f"s_add_u32 s74, s74, {W1P}")
        rp_issue(7, 3456, 14)
        a("s_branch L_rp_issued")
        a("L_rp5:")
        a("s_mov_b32 s72, 2")
        a("s_sub_u32 s79, s70, 20"); a("s_lshl_b32 s79, s79, 1"); a("s_lshr_b32 s75, s27, 3"); a("s_add_u32 s79, s79, s75"); a("s_and_b32 s75, s27, 7")
        a("s_cmp_ge_u32 s79, 54"); a("s_cbranch_scc1 L_rpwo")
        srd(a, 44, 16, 2211840)
        a("s_mul_i32 s78, s75, 54"); a("s_add_u32 s78, s78, s79")
        a("s_mul_i32 s74, s78, 5120"); a(f"s_add_u32 s74, s74, {W2P}")
        a("s_branch L_rp5b")
        a("L_rpwo:")
        srd(a, 44, 8, 819200)
        a("s_sub_u32 s79, s79, 54")
        a("s_mul_i32 s78, s75, 20"); a("s_add_u32 s78, s78, s79")
        a("s_mul_i32 s74, s78, 5120"); a(f"s_add_u32 s74, s74, {WOP}")
        a("s_cmp_ge_u32 s79, 20"); a("s_cselect_b32 s74, 0x40000000, s74")
        a("L_rp5b:")
        a("s_mul_i32 s75, s75, 160"); a("s_mul_i32 s79, s79, 40960"); a("s_add_u32 s73, s75, s79")
        rp_issue(5, 1280, 10)
        a("L_rp_issued:")
        a.vm += ["UL"]*7
    def raw(cx, rg): return 96 + (((cx + 1) % 10)*4 + rg)*4
    def xf(tt, k): return XF + (tt*20 + k)*4
    def ldx(cx):
        return [lambda cx=cx, rg=rg: a.vmem(f"buffer_load_dwordx4 {R(raw(cx, rg), 4)}, v{vXA[rg]}, s[32:35], s{62 if cx & 1 else 49} offen offset:{256*(cx>>1)}", f"X{cx}") for rg in range(4)]
    a("v_and_b32 v27, 15, v1")
    a("v_cmp_gt_u32 s[66:67], 8, v27")
    a("v_cmp_gt_u32 s[90:91], 32, v1"); a("v_cmp_gt_u32 s[92:93], 48, v1")
    a("v_cmp_eq_u32 s[88:89], 1, v11")
    a("v_and_b32 v29, 1, v11")
    a("s_lshl_b32 s3, s28, 1"); a("v_add_u32 v29, s3, v29")
    a("v_cmp_gt_u32 s[94:95], 5, v29"); a("v_cmp_eq_u32 s[96:97], 7, v29")
    a("v_lshlrev_b32 v29, 10, v29"); a(f"v_add_u32 v30, {BQ - 5120}, v29"); a("v_cndmask_b32 v29, v30, v29, s[94:95]")
    a("v_lshl_add_u32 v29, v10, 2, v29")
    a("v_mov_b32 v30, 2560"); a("v_mov_b32 v31, 5120"); a("v_cndmask_b32 v30, v30, v31, s[94:95]")
    a("v_mov_b32 v31, 8"); a("v_cndmask_b32 v31, v31, 7, s[96:97]")
    a("s_andn2_b64 s[96:97], s[96:97], s[66:67]")
    a("s_mul_i32 s3, s26, 5")
    a("v_lshrrev_b32 v28, 1, v11"); a("v_add_u32 v28, s3, v28")
    for n in range(3):
        a(f"v_lshrrev_b32 v27, 2, v28"); a(f"v_mad_u32_u24 v{vSA[n]}, v27, v30, v29")
        a("v_and_b32 v27, 3, v28"); a("v_lshlrev_b32 v27, v31, v27"); a(f"v_add_u32 v{vSA[n]}, v{vSA[n]}, v27")
        a(f"v_cndmask_b32 v{vSA[n]}, v{vSA[n]}, v2, s[96:97]")
        if n == 2: a(f"v_cndmask_b32 v{vSA[n]}, v2, v{vSA[n]}, s[90:91]")
        else: a("v_add_u32 v28, 2, v28")
    a("v_lshrrev_b32 v27, 5, v1"); a("v_bfe_u32 v28, v1, 2, 2"); a("v_lshl_add_u32 v27, v27, 3, v28"); a("v_lshlrev_b32 v27, 6, v27")
    a("v_bfe_u32 v28, v1, 4, 1"); a("v_lshl_add_u32 v27, v28, 5, v27"); a("v_and_b32 v28, 3, v1"); a("v_lshl_add_u32 v27, v28, 3, v27")
    a("v_add_u32 v84, s53, v27")
    a("s_mul_i32 s54, s27, 153600"); a(f"s_add_u32 s54, s54, {WQKV}")
    a.wait(vm="SLD")
    a.stamp("sld")
    for n in range(3):
        for h in range(2): a(f"ds_read_b64_tr_b16 {R(96 + 4*n + 2*h, 2)}, v84 offset:{1024*n + 256*h}")
    a("s_waitcnt lgkmcnt(0)")
    for n in range(3): a.vmem(f"buffer_store_dwordx4 {R(96 + 4*n, 4)}, v{vSA[n]}, s[40:43], s54 offen sc1", "SL")
    a.vmem("global_load_dword v6, v5, s[22:23] sc1", "TAG")
    NX0 = P("NX0", 3)
    for cx in range(NX0):
        for f in ldx(cx): f()
    a("v_and_b32 v27, 15, v1")
    a("v_lshrrev_b32 v29, 1, v27"); a("v_xor_b32 v29, v29, v11"); a("v_lshlrev_b32 v29, 4, v29"); a("v_lshl_add_u32 v29, v27, 7, v29")
    a("s_and_b32 s3, s28, 1"); a("s_lshl_b32 s3, s3, 6"); a("v_xor_b32 v29, s3, v29")
    a(f"v_add_u32 v{vRd[0]}, s48, v29"); a("v_xor_b32 v29, 64, v29"); a(f"v_add_u32 v{vRd[1]}, s48, v29")
    a("v_lshrrev_b32 v29, 2, v27"); a("v_cmp_eq_u32 vcc, v29, v11")
    a("v_lshlrev_b32 v30, 2, v1"); a("v_add_u32 v30, 512, v30")
    a("v_cndmask_b32 v29, v30, v10, vcc"); a(f"v_add_u32 v{vSTW}, s48, v29")
    a("v_and_b32 v29, 1, v1"); a("v_cmp_eq_u32 s[68:69], 1, v29")
    a("v_and_b32 v29, 2, v1"); a("v_cmp_eq_u32 s[86:87], 2, v29")
    a("v_mov_b32 v28, 0x3f803f80")
    for i in range(4): a(f"v_accvgpr_write_b32 {R(ONES+i)}, v28")
    for t in range(5):
        a(f"v_cmp_eq_u32 vcc, {t}, v27"); a("v_cndmask_b32 v29, 0, v28, vcc")
        for e in range(4): a(f"v_accvgpr_write_b32 {R(OH+4*t+e)}, v29")
    a("v_and_b32 v27, 7, v1"); a("v_lshlrev_b32 v27, 4, v27"); a("v_lshl_add_u32 v27, v11, 7, v27")
    for p in range(4):
        a(f"s_xor_b32 s3, s28, {p}"); a("s_mul_i32 s56, s3, 5120"); a(f"v_add_u32 v{vTB[p]}, s56, v8")
        a("s_mul_i32 s56, s3, 2560"); a(f"s_add_u32 s56, s56, {BQ}"); a(f"v_add_u32 v{vTQ[p]}, s56, v8"); a("s_add_u32 s56, s56, 2048"); a(f"v_add_u32 v{vTQ2[p]}, s56, v27")
    a(f"s_mov_b32 s60, {hx(LOG2E)}"); a(f"s_mov_b32 s61, {hx(1e-6)}")
    a(f"s_mov_b32 s63, {hx(1.0/640)}"); a(f"s_mov_b32 s64, {hx(1e-5)}")
    a("s_lshl_b32 s55, s27, 8"); a(f"s_add_u32 s55, s55, {F0}")
    a("v_lshlrev_b32 v26, 2, v1")
    a("s_lshl_b32 s3, s26, 4"); a("s_lshl_b32 s56, s28, 2"); a("s_add_u32 s3, s3, s56"); a("s_add_u32 s3, s3, s55")
    a.wait(vm="TAG")
    a("v_readfirstlane_b32 s76, v6"); a("s_mov_b32 s78, 0")
    a("L_tp1:")
    a("s_cmp_lg_u32 s76, 0"); a("s_cbranch_scc1 L_tp1_ok")
    a("global_load_dword v6, v5, s[22:23] sc1"); a("s_add_u32 s78, s78, 1"); a("s_waitcnt vmcnt(0)")
    a("v_readfirstlane_b32 s76, v6")
    a(f"s_cmp_lt_u32 s78, {POLLMAX}"); a("s_cbranch_scc1 L_tp1")
    a("L_tp1_ok:")
    a("s_getreg_b32 s77, hwreg(HW_REG_XCC_ID)"); a("s_and_b32 s77, s77, 7"); a("s_or_b32 s77, s77, s76")
    a("s_lshl_b32 s57, s26, 7"); a("s_lshl_b32 s56, s27, 2"); a("s_add_u32 s57, s57, s56"); a(f"s_add_u32 s57, s57, {F1R}")
    a("s_cmp_eq_u32 s28, 0"); a("s_cselect_b32 s57, s57, 0x40000000"); a("v_mov_b32 v27, s77")
    a("s_mov_b64 exec, 1"); a.vmem("buffer_store_dword v6, v5, s[40:43], s3 offen sc1"); a.vmem("buffer_store_dword v27, v5, s[40:43], s57 offen sc1"); a("s_mov_b64 exec, -1")
    a.stamp("F0pub")
    def rp_fin(nt, RG):
        pitch = nt*32
        a("v_bfe_u32 v28, v1, 2, 2"); a("v_lshl_add_u32 v27, v11, 3, v28"); a("v_and_b32 v28, 3, v1")
        a(f"v_mul_u32_u24 v29, {pitch}, v27"); a("v_add_u32 v29, s71, v29")
        a("v_lshl_add_u32 v30, v28, 3, v29"); a("v_lshl_add_u32 v29, v28, 4, v29")
        for t in range(nt):
            for h in range(2):
                if t == nt - 1: a(f"ds_read_b64_tr_b16 {R(RG + 4*t + 2*h, 2)}, v30 offset:{h*4*pitch + 32*t}")
                else: a(f"ds_read_b64_tr_b16 {R(RG + 4*t + 2*h, 2)}, v29 offset:{h*4*pitch + 64*(t>>1) + 8*(t&1)}")
        if nt == 7:
            a("v_mov_b32 v28, 0x3f803f80")
            for t in (5, 6):
                a(f"v_cmp_eq_u32 vcc, {4*t}, v10")
                for e in range(4): a(f"v_cndmask_b32 v{RG+28+4*(t-5)+e}, 0, v28, vcc")
        a("s_waitcnt lgkmcnt(0)")
        if nt == 7:
            for t in range(7): a(MF(RG+36, RG + 4*t, OH + 4*t if t < 5 else RG+28+4*(t-5), t == 0))
    def rp_store(nt, RG):
        for t in range(nt):
            a(f"buffer_store_dwordx4 {R(RG + 4*t, 4)}, v{8 if t < 4 else 12}, s[40:43], s74 offen offset:{1024*(t&3)} sc1")
        if nt == 7:
            a("v_lshlrev_b32 v29, 4, v11"); a("v_lshl_add_u32 v29, v10, 4, v29"); a("v_cndmask_b32 v29, v2, v29, s[66:67]")
            a("s_lshl_b32 s3, s70, 9"); a(f"s_add_u32 s3, s3, {C1P}")
            a(f"buffer_store_dwordx4 {R(RG+36, 4)}, v29, s[40:43], s3 offen sc1")
        else:
            for _ in range(3): a("buffer_store_dword v5, v2, s[40:43], 0 offen")
    def acc(tt, t): return ACC + (tt*5 + t)*4
    def transp(cx):
        L = []
        for tt in range(2):
            L.append(lambda tt=tt: a.ds(f"ds_write_b128 v{vW[0]}, {R(raw(cx, 2*tt), 4)}"))
            L.append(lambda tt=tt: a.ds(f"ds_write_b128 v{vW[1]}, {R(raw(cx, 2*tt+1), 4)}"))
            L.append(lambda tt=tt: a.ds(f"ds_read_b128 {R(xf(tt, 2*cx), 4)}, v{vRd[0]}"))
            L.append(lambda tt=tt: a.ds(f"ds_read_b128 {R(xf(tt, 2*cx+1), 4)}, v{vRd[1]}", f"T{cx}"))
        return L
    def statm(k):
        L = []
        for tt in range(2):
            L.append(MF(GR + 4*tt, xf(tt, k), xf(tt, k), k == 0)); L.append(MF(RSM + 4*tt, ONES, xf(tt, k), k == 0))
        return L
    def breads1(s):
        j, p = divmod(s, 4); L = []
        for t in range(5):
            L.append(lambda t=t: a.ds(f"ds_read_b128 {R(BF + (s&1)*20 + t*4, 4)}, v{vTB[p]} offset:{(j % 3)*20480 + t*1024}", f"R{s}"))
        if j == 2: L.append(f"v_add_u32 v{vTB[p]}, 61440, v{vTB[p]}")
        return L
    def ldb(j):
        def one(i):
            if i == 0: a(f"s_add_u32 m0, s52, {j*20480}"); a("s_add_u32 s57, s54, m0")
            if i == 4: a(f"s_add_u32 m0, s52, {j*20480 + 4096}")
            a.vmem(f"buffer_load_dwordx4 v{8 if i < 4 else 12}, s[40:43], s57 offen offset:{1024*(i&3)} sc1 lds", f"B{j}")
        return [lambda i=i: one(i) for i in range(5)]
    def ldq():
        def one(i):
            if i == 11: a("s_cmp_eq_u32 s28, 3"); a("s_cbranch_scc1 L_noq")
            a(f"s_mul_i32 s98, s28, 13312"); a(f"s_add_u32 m0, s98, {BQ + i*1024}"); a("s_add_u32 s98, s54, m0")
            a.a(f"buffer_load_dwordx4 v8, s[40:43], s98 offen sc1 lds")
            if i < 11: a.vm.append("BQ")
            if i == 12: a("L_noq:")
        return [lambda i=i: one(i) for i in range(11)] + [lambda: (one(11), one(12))]
    def ldt1():
        a("v_lshlrev_b32 v27, 1, v0"); a("s_add_u32 s56, s30, T1_tab-L_pc"); a("s_addc_u32 s57, s31, 0")
        a.vmem(f"global_load_ushort v{vT1}, v27, s[56:57]", "T1")
    def kv_mf(s):
        mf = []
        for t in range(5):
            b = BF + (s&1)*20 + t*4
            for tt in range(2): mf.append(MF(acc(tt, t), xf(tt, s), b, s == 0))
            if s % 4 == 0: mf.append(MF(CSA, OH + 4*t, b, s == 0 and t == 0))
        return mf
    RS = 96; MS = 104; RT = 112; MT = 114; CSV = 116
    URG = 116
    def flagtouch():
        a(f"s_add_u32 s3, s58, {G_FL}"); a("s_bfm_b64 exec, 8, 0"); a.vmem("buffer_load_dword v4, v3, s[40:43], s3 offen"); a("s_mov_b64 exec, -1")
    lq = sum([ldx(cx) for cx in range(NX0, 10)], []) + [ldt1, flagtouch, unit_issue]
    XR = P("XR", 8)
    for cx in range(10):
        while f"X{cx}" not in a.vm or a.vm.count(f"X{cx}") < 4: lq.pop(0)()
        a.wait(vm=f"X{cx}")
        mf = (statm(2*(cx-1)) + statm(2*(cx-1)+1)) if cx else []
        if cx: a.wait(lg=f"T{cx-1}")
        side = transp(cx) + lq[:XR]; lq = lq[XR:]
        if mf: a.interleave(mf, side)
        else:
            for f in side: f()
    assert not lq
    a.stamp("xdone")
    a("s_mov_b32 s78, 0")
    a("L_h0p:")
    a("buffer_load_dword v16, v26, s[40:43], s55 offen sc1"); a("s_waitcnt vmcnt(0)")
    a("v_cmp_ne_u32 vcc, s76, v16")
    a("s_cbranch_vccz L_h0ok")
    a("s_add_u32 s78, s78, 1"); a(f"s_cmp_lt_u32 s78, {POLLMAX}"); a("s_cbranch_scc1 L_h0p")
    a("L_h0ok:")
    a.vm = []
    a.stamp("F0ok")
    for f in ldb(0): f()
    for f in ldb(1): f()
    a.wait(lg="all")
    for x in statm(18) + statm(19): a(x)
    a("s_cmp_eq_u32 s72, 2"); a("s_cbranch_scc1 L_rp_f5")
    rp_fin(7, URG); a("s_branch L_rp_done")
    a("L_rp_f5:"); rp_fin(5, URG)
    a("L_rp_done:")
    for tt in range(2):
        for e in range(4): a(f"v_accvgpr_read_b32 v{160+e}, {R(GR + 4*tt + e)}")
        a(f"v_accvgpr_read_b32 v164, {R(RSM + 4*tt)}")
        for x in ["v_cndmask_b32 v160, v160, v161, s[68:69]", "v_cndmask_b32 v162, v162, v163, s[68:69]", "v_mul_f32 v164, s63, v164",
                  "v_cndmask_b32 v160, v160, v162, s[86:87]", "v_mul_f32 v160, s63, v160", "v_fma_f32 v160, -v164, v164, v160",
                  "v_max_f32 v160, 0, v160", "v_add_f32 v160, s64, v160", "v_rsq_f32 v160, v160", "v_mul_f32 v164, v164, v160"]: a(x)
        a.ds(f"ds_write_b32 v{vSTW}, v160 offset:{64*tt}"); a.ds(f"ds_write_b32 v{vSTW}, v164 offset:{128 + 64*tt}")
    a("v_lshlrev_b32 v28, 4, v11"); a("v_add_u32 v28, s48, v28"); a("v_add_u32 v29, s48, v10")
    for tt in range(2):
        a.ds(f"ds_read_b128 {R(RS + 4*tt, 4)}, v28 offset:{64*tt}"); a.ds(f"ds_read_b128 {R(MS + 4*tt, 4)}, v28 offset:{128 + 64*tt}")
        a.ds(f"ds_read_b32 v{RT + tt}, v29 offset:{64*tt}"); a.ds(f"ds_read_b32 v{MT + tt}, v29 offset:{128 + 64*tt}")
    NBE = P("NBE", 3)
    for j in range(2, NBE):
        for f in ldb(j): f()
    a("s_lshl_b32 s73, s70, 9"); a(f"s_add_u32 s73, s73, {C1P}")
    a("s_cmp_eq_u32 s72, 2"); a("s_cselect_b32 s75, 0x40000000, s74"); a("s_cselect_b32 s73, 0x40000000, s73")
    a("v_lshlrev_b32 v85, 4, v11"); a("v_lshl_add_u32 v85, v10, 4, v85"); a("v_cndmask_b32 v85, v2, v85, s[66:67]")
    def ust(t):
        if t < 7: a.vmem(f"buffer_store_dwordx4 {R(URG + 4*t, 4)}, v{8 if t < 4 else 12}, s[40:43], s{74 if t < 5 else 75} offen offset:{1024*(t&3)} sc1", "US")
        else: a.vmem(f"buffer_store_dwordx4 {R(URG+36, 4)}, v85, s[40:43], s73 offen sc1", "US")
    a("s_and_b32 s59, s27, 7"); a("s_lshl_b32 s59, s59, 9"); a(f"s_add_u32 s59, s59, {FU}")
    a("s_lshr_b32 s3, s27, 3"); a("s_lshl_b32 s3, s3, 4"); a("s_add_u32 s3, s3, s26"); a("s_lshl_b32 s3, s3, 2"); a("s_add_u32 s3, s3, s28"); a("s_lshl_b32 s3, s3, 2"); a("s_add_u32 s70, s3, s59")
    a.wait(vm="B0")
    a("s_barrier")
    a.stamp("bP")
    a("s_mov_b32 s94, s60"); a("s_mov_b32 s95, s60"); a("s_mov_b32 s96, s61"); a("s_mov_b32 s97, s61")
    for f in breads1(0): a.run(f)
    def pretouch():
        if "sc1h" in OPT:
            a(f"s_add_u32 s3, s58, {G_FL}"); a("s_bfm_b64 exec, 4, 0"); a.vmem("buffer_load_dword v4, v3, s[40:43], s3 offen"); a("s_mov_b64 exec, -1")
            return
        a("s_mul_i32 s3, s27, 21056"); a("s_add_u32 s3, s3, s58"); a("s_mul_i32 s56, s28, 5376"); a("s_add_u32 s3, s3, s56")
        a("s_bfm_b64 exec, 42, 0"); a.vmem("buffer_load_dword v4, v3, s[40:43], s3 offen"); a("s_mov_b64 exec, -1")
    FB3 = 156
    a("s_and_b32 s3, s27, 7"); a("s_mul_i32 s3, s3, 20"); a("s_add_u32 s3, s3, s28"); a("s_mul_i32 s65, s3, 5120"); a(f"s_add_u32 s65, s65, {WOP}")
    def ldwo(n, t):
        a.vmem(f"buffer_load_dwordx4 {R(FB3 + (n*5+t)*4, 4)}, v{8 if t < 4 else 12}, s[40:43], s65 offen offset:{1024*(t&3)} sc1", "WO")
        if t == 4: a("s_add_u32 s65, s65, 20480")
    def ldfu():
        a("v_lshlrev_b32 v31, 3, v1")
        a.vmem("buffer_load_dwordx2 v[92:93], v31, s[40:43], s59 offen sc1", "FU")
    def chkfu():
        a.wait(vm="FU")
        a("s_mov_b32 s78, 0")
        a("L_fu:")
        a("v_cmp_ne_u32 vcc, s76, v92"); a("v_cmp_ne_u32 s[84:85], s76, v93")
        a("s_or_b64 vcc, vcc, s[84:85]"); a("s_cbranch_scc0 L_fu_ok")
        a("s_add_u32 s78, s78, 1"); a(f"s_cmp_ge_u32 s78, {POLLMAX}"); a("s_cbranch_scc1 L_fu_ok")
        a("buffer_load_dwordx2 v[92:93], v31, s[40:43], s59 offen sc1"); a("s_waitcnt vmcnt(0)")
        a("s_branch L_fu")
        a("L_fu_ok:")
    q_ = ldq(); mix = []
    if "usfirst" in OPT:
        mix = [lambda i=i: ust(i) for i in range(8)] + q_
    else:
        for i in range(12):
            mix.append(q_[i])
            if i < 8: mix.append(lambda i=i: ust(i))
    ldlist = sum([ldb(j) for j in range(NBE, 5)], [])
    MS0 = P("MS0", 6); MR = P("MR", 1)
    a.bgq = mix
    SFU = P("SFU", 18)
    LEND = P("LEND", 16)
    CT = 116
    for s in range(20):
        j, p = divmod(s, 4)
        if p == 3 and j < 4:
            a.wait(vm=f"B{j+1}"); a("s_barrier")
        if s == SFU:
            a.wait(vm="US")
            a("s_mov_b64 exec, 1"); a.vmem("buffer_store_dword v6, v5, s[40:43], s70 offen sc1"); a("s_mov_b64 exec, -1")
        if s == 18:
            a.wait(lg="CSW"); a("s_barrier")
        a.wait(lg=f"R{s}")
        mf = kv_mf(s)
        front = breads1(s+1) if s < 19 else []
        side = []
        if s == 17:
            side += ["s_lshl_b32 s3, s28, 9", f"s_add_u32 s3, s3, {CSX}", "v_add_u32 v27, s3, v8"]
            side.append(lambda: (a("s_bfm_b64 exec, 32, 0"), a.ds(f"ds_write_b128 v27, {R(CSA, 4)}", "CSW"), a("s_mov_b64 exec, -1")))
        if s == 18:
            assert a.vm.count("US") == 8
            side += ["v_lshlrev_b32 v27, 2, v10", f"v_add_u32 v27, {CSX}, v27"]
            for w in range(4):
                side.append(lambda w=w: a.ds(f"ds_read_b128 {R(CT + 4*w, 4)}, v27 offset:{512*w}"))
                side.append(lambda w=w: a.ds(f"ds_read_b32 v{CT + 16 + w}, v27 offset:{512*w + 256}", "CSR"))
        if s == 19:
            side.append(lambda: a.wait(lg="CSR"))
            for e in range(4):
                side += [f"v_add_f32 v{CT+e}, v{CT+e}, v{CT+4+e}", f"v_add_f32 v{CT+8+e}, v{CT+8+e}, v{CT+12+e}", f"v_add_f32 v{CT+20+e}, v{CT+e}, v{CT+8+e}"]
            side += [f"v_add_f32 v{CT+16}, v{CT+16}, v{CT+17}", f"v_add_f32 v{CT+18}, v{CT+18}, v{CT+19}", f"v_add_f32 v{CT+24}, v{CT+16}, v{CT+18}"]
        side += ldlist[:3]; ldlist = ldlist[3:]
        if s >= MS0: side = [lambda: a.bg(1)]*MR + side
        a.interleave(mf, side, front)
    CSV = CT + 20
    a.stamp("kvend")
    OP = 116; TP = 72
    FUC = P("FUC", 14)
    if FUC < 4: ldfu()
    KBG = P("KBG", 1)
    for t in range(5):
        for tt in range(2):
            b_ = acc(tt, t)
            cp = CSV + t; cpe = cp & ~1; sel = cp & 1
            for h in range(2):
                x = b_ + 2*h
                a(f"v_pk_mul_f32 v[{TP+2*h}:{TP+2*h+1}], v[{MS+4*tt+2*h}:{MS+4*tt+2*h+1}], v[{cpe}:{cpe+1}] op_sel:[0,{sel}] op_sel_hi:[1,{sel}]")
            for h in range(2):
                x = b_ + 2*h
                a(f"v_pk_fma_f32 v[{x}:{x+1}], v[{x}:{x+1}], v[{RS+4*tt+2*h}:{RS+4*tt+2*h+1}], v[{TP+2*h}:{TP+2*h+1}] neg_lo:[0,0,1] neg_hi:[0,0,1]")
            if t <= 2: phi4(a, b_, TP, sel_mask=("s[66:67]" if t == 2 else None))
            for h in range(2):
                a(f"v_cvt_pk_bf16_f32 v{OP + 4*t + 2*tt + h}, v{acc(tt, t) + 2*h}, v{acc(tt, t) + 2*h + 1}")
            if t*2 + tt == SFU - 20:
                a.wait(vm="US")
                a("s_mov_b64 exec, 1"); a.vmem("buffer_store_dword v6, v5, s[40:43], s70 offen sc1"); a("s_mov_b64 exec, -1")
            if t*2 + tt == FUC - 4: ldfu()
            if t*2 + tt == FUC: chkfu(); a.bgq += [lambda n=n, t=t: ldwo(n, t) for n in range(5) for t in range(5)]
            a.bg(KBG)
    while "BQdone" not in a.vm and a.vm.count("BQ") < 11 or (a.bgq and a.bgq[0] is q_[11]): a.bg(1)
    KVD = 32
    for p, (ta, tb) in enumerate(PAIRS):
        a(MF(KVD + 4*p, OP + 4*ta, ONES if tb < 0 else OP + 4*tb, True))
    a("s_mul_i32 s3, s28, 10240"); a("v_add_u32 v27, s3, v8")
    for p in range(10): a(f"ds_write_b128 v27, {R(KVD + 4*p, 4)} offset:{1024*p}")
    a("s_lshl_b32 s3, s27, 4"); a("s_add_u32 s3, s3, s26"); a("s_lshl_b32 s3, s3, 12"); a(f"s_add_u32 s3, s3, {PART}")
    a("v_cmp_gt_u32 vcc, 216, v0"); a("v_cndmask_b32 v9, v2, v9, vcc")
    a.wait(lg="all")
    a("s_barrier")
    for w in range(4): a(f"ds_read_b128 {R(56 + 4*w, 4)}, v{vT1} offset:{10240*w}")
    a("s_waitcnt lgkmcnt(0)")
    for e in (0, 2):
        a(f"v_pk_add_f32 v[{56+e}:{57+e}], v[{56+e}:{57+e}], v[{60+e}:{61+e}]"); a(f"v_pk_add_f32 v[{64+e}:{65+e}], v[{64+e}:{65+e}], v[{68+e}:{69+e}]")
    for e in (0, 2): a(f"v_pk_add_f32 v[{56+e}:{57+e}], v[{56+e}:{57+e}], v[{64+e}:{65+e}]")
    a.vmem(f"buffer_store_dwordx4 v[56:59], v9, s[40:43], s3 offen sc1", "PST")
    ldfu()
    a("s_lshr_b32 s48, s27, 3"); a("s_and_b32 s49, s27, 7")
    a("v_lshrrev_b32 v13, 1, v11"); a("v_lshlrev_b32 v13, 8, v13"); a("v_lshl_add_u32 v13, v10, 2, v13")
    a("v_and_b32 v28, 1, v11"); a("v_lshl_add_u32 v13, v28, 3, v13")
    a("v_mul_u32_u24 v14, 320, v10"); a("v_lshl_add_u32 v15, v11, 3, v14"); a("v_lshl_add_u32 v14, v11, 4, v14")
    a("s_lshl_b32 s50, s48, 2"); a("s_add_u32 s50, s50, s28")
    a("s_lshl_b32 s3, s26, 3"); a("s_add_u32 s3, s3, s50"); a("s_mul_i32 s51, s3, 20480"); a("s_mul_i32 s3, s49, 160"); a("s_add_u32 s51, s51, s3")
    a("s_mul_i32 s53, s27, 27"); a("s_lshr_b32 s53, s53, 2")
    a("s_mul_i32 s55, s27, 143360"); a(f"s_add_u32 s55, s55, {W1P}")
    srd(a, 36, 14, 3456)
    a("v_lshlrev_b32 v23, 4, v11"); a("v_lshl_add_u32 v26, v10, 4, v23")
    a("s_lshl_b32 s62, s27, 2"); a("s_add_u32 s62, s62, s28"); a("s_lshl_b32 s62, s62, 7")
    a("s_lshl_b32 s56, s26, 7"); a("s_add_u32 s56, s56, 8192")
    a("v_mov_b32 v27, s62"); a("v_mov_b32 v28, s56"); a("v_cndmask_b32 v17, v27, v28, s[88:89]"); a("v_add_u32 v17, v17, v10")
    a("s_lshl_b32 s3, s26, 2"); a("s_add_u32 s3, s3, s62"); a(f"s_add_u32 s3, s3, {F1}")
    a.wait(vm="PST")
    a("s_mov_b64 exec, 1"); a.vmem("buffer_store_dword v6, v5, s[40:43], s3 offen sc1"); a("s_mov_b64 exec, -1")
    a("s_barrier")
    a.stamp("b7")
    chkfu(); a.bgq += [lambda n=n, t=t: ldwo(n, t) for n in range(5) for t in range(5)]
    FB3 = 156; RES = 116; C1R = 126; T2R = 146
    B1A = A0 + 204
    W1T = A0 + 100
    def w1dma(i):
        a(f"s_mul_i32 s98, s28, {24*1024}"); a(f"s_add_u32 m0, s98, {i*1024}"); a("s_add_u32 s98, s55, m0")
        a.vmem(f"buffer_load_dwordx4 v8, s[40:43], s98 offen sc1 lds", "W1")
    def w1tail(i):
        a(f"s_mul_i32 s98, s28, {11*1024}"); a(f"s_add_u32 s98, s98, {(96+i)*1024}"); a("s_add_u32 s98, s55, s98")
        a.vmem(f"buffer_load_dwordx4 {R(W1T + 4*i, 4)}, v8, s[40:43], s98 offen sc1", "W1")
    def ldsmall():
        a("v_lshlrev_b32 v31, 5, v1"); a("s_add_u32 s98, s30, T2_tab-L_pc"); a("s_addc_u32 s99, s31, 0")
        a.vmem(f"global_load_dwordx4 {R(T2R, 4)}, v31, s[98:99]"); a.vmem(f"global_load_dwordx2 {R(T2R+4, 2)}, v31, s[98:99] offset:16")
    def ldres(q):
        if q == 0: a.vmem(f"buffer_load_dwordx4 {R(RES, 4)}, v14, s[32:35], s51 offen")
        if q == 1: a.vmem(f"buffer_load_dwordx4 {R(RES+4, 4)}, v14, s[32:35], s51 offen offset:64")
        if q == 2: a.vmem(f"buffer_load_dwordx2 {R(RES+8, 2)}, v15, s[32:35], s51 offen offset:128", "RES")
    def ldb1():
        a("v_lshlrev_b32 v31, 3, v11"); a("s_lshl_b32 s98, s53, 5")
        for p in range(3): a.vmem(f"buffer_load_dwordx4 {R(B1A + 4*p, 4)}, v23, s[36:39], s98 offen offset:{64*p}")
        a.vmem(f"buffer_load_dwordx2 {R(B1A + 12, 2)}, v31, s[36:39], s98 offen offset:192")
    def ldc1():
        a("s_mul_i32 s98, s27, 20"); a("s_mul_i32 s99, s28, 5"); a("s_add_u32 s98, s98, s99"); a("s_lshl_b32 s98, s98, 9"); a(f"s_add_u32 s98, s98, {C1P}")
        a("s_mov_b64 exec, s[66:67]")
        for n in range(5): a.vmem(f"buffer_load_dwordx4 {R(C1R + 4*n, 4)}, v26, s[40:43], s98 offen offset:{512*n} sc1", "C1")
        a("s_mov_b64 exec, -1")
    def hidtouch():
        a("s_mul_i32 s98, s27, 27648"); a("s_add_u32 s98, s98, s58"); a(f"s_add_u32 s98, s98, {G_HID}"); a("s_mul_i32 s99, s28, 6912"); a("s_add_u32 s98, s98, s99")
        a("s_bfm_b64 exec, 54, 0"); a.vmem("buffer_load_dword v4, v3, s[40:43], s98 offen"); a("s_mov_b64 exec, -1")
    ldsmall()
    a.bgq += [lambda q=q: ldres(q) for q in range(3)] + [ldb1, ldc1] + [lambda i=i: w1dma(i) for i in range(24)]
    QA = 32
    def qreads(s):
        j, p = divmod(s, 4)
        return [lambda t=t: a.ds(f"ds_read_b128 {R(BF + (s%3)*12 + t*4, 4)}, v{vTQ[p] if t < 2 else vTQ2[p]} offset:{j*10240 + (t&1)*1024}", f"Q{s}") for t in range(3)]
    for f in qreads(0) + qreads(1): f()
    a(f"s_mov_b32 s56, {F1}")
    QSTOP = P("QSTOP", 16)
    for s in range(20):
        j, p = divmod(s, 4)
        if s == 18: a.wait(lg="CQW"); a("s_barrier")
        a.wait(lg=f"Q{s}")
        mf = []
        for t in range(3):
            b = BF + (s%3)*12 + t*4
            for tt in range(2): mf.append(MF(QA + (tt*3+t)*4, b, xf(tt, s), s == 0))
            if p == 0: mf.append(MF(CSQ, b, OH + 4*t, s == 0 and t == 0))
        front = qreads(s+2) if s < 18 else []
        side = []
        if s < QSTOP: side += [lambda: a.bg(1)]*P("QBG", 1)
        if s == 17:
            side.append(lambda: a.vmem("buffer_load_dword v16, v17, s[40:43], s56 offen sc1", "POLL1"))
            side += ["s_lshl_b32 s3, s28, 9", f"s_add_u32 s3, s3, {CSX}", "v_add_u32 v27, s3, v26"]
            side.append(lambda: (a("s_mov_b64 exec, s[66:67]"), a.ds(f"ds_write_b128 v27, {R(CSQ, 4)}", "CQW"), a("s_mov_b64 exec, -1")))
        if s == 18:
            side += [f"v_add_u32 v30, {CSX}, v23"]
            for w, base in ((0, 56), (1, 68), (2, 96)):
                for t in range(3): side.append(lambda w=w, t=t, base=base: a.ds(f"ds_read_b128 {R(base + 4*t, 4)}, v30 offset:{512*w + 64*t}", "CQR"))
        if s == 19:
            side.append(lambda: a.wait(lg="CQR"))
            for x in range(12): side.append(f"v_add_f32 v{56+x}, v{56+x}, v{68+x}")
            for t in range(3): side.append(lambda t=t: a.ds(f"ds_read_b128 {R(68 + 4*t, 4)}, v30 offset:{1536 + 64*t}", "CQR"))
        a.interleave(mf, side, front)
    a.stamp("qend")
    a.wait(vm="POLL1")
    a("s_mov_b32 s78, 0")
    a("L_h1p:")
    a("v_and_b32 v28, 0xfffffff8, v16"); a("v_cmp_ne_u32 vcc, s76, v28")
    a("s_cbranch_vccz L_h1ok")
    a("s_add_u32 s78, s78, 1"); a(f"s_cmp_ge_u32 s78, {POLLMAX}"); a("s_cbranch_scc1 L_h1ok")
    a("buffer_load_dword v16, v17, s[40:43], s56 offen sc1"); a("s_waitcnt vmcnt(0)")
    a("s_branch L_h1p")
    a("L_h1ok:")
    a.stamp("h1ok")
    a.vm = []
    a("v_cmp_ne_u32 vcc, s77, v16"); a("s_and_b64 vcc, vcc, s[88:89]"); a("s_cselect_b32 s79, 0, 1")
    if os.environ.get("FORCESLOW"): a("s_mov_b32 s79, 0")
    P0 = A0
    a("s_lshl_b32 s3, s27, 16"); a(f"s_add_u32 s3, s3, {PART}")
    for r_ in range(16):
        a.vmem(f"buffer_load_dwordx4 {R(P0 + 4*r_, 4)}, v9, s[40:43], s3 offen sc1", f"P{r_}")
        a("s_add_u32 s3, s3, 4096")
    a.bgq += [lambda i=i: w1tail(i) for i in range(11)]
    for x in range(0, 12, 2): a(f"v_pk_add_f32 v[{56+x}:{57+x}], v[{56+x}:{57+x}], v[{96+x}:{97+x}]")
    a.wait(lg="all")
    for x in range(0, 12, 2): a(f"v_pk_add_f32 v[{56+x}:{57+x}], v[{56+x}:{57+x}], v[{68+x}:{69+x}]")
    PQR = 96
    EBG = P("EBG", 2)
    for tt in range(2):
        for t in range(3):
            b_ = QA + (tt*3+t)*4
            for h in range(2):
                a(f"v_pk_mul_f32 v[{TP+2*h}:{TP+2*h+1}], v[{56+4*t+2*h}:{57+4*t+2*h}], v[{MT}:{MT+1}] op_sel:[0,{tt}] op_sel_hi:[1,{tt}]")
            for h in range(2):
                x = b_ + 2*h
                a(f"v_pk_fma_f32 v[{x}:{x+1}], v[{x}:{x+1}], v[{RT}:{RT+1}], v[{TP+2*h}:{TP+2*h+1}] op_sel:[0,{tt},0] op_sel_hi:[1,{tt},1] neg_lo:[0,0,1] neg_hi:[0,0,1]")
            phi4(a, b_, TP)
            for h in range(2):
                d = f"v{PQR + tt*6 + t*2 + h}"
                a(f"v_cvt_pk_bf16_f32 {d}, v{QA + (tt*3+t)*4 + 2*h}, v{QA + (tt*3+t)*4 + 2*h + 1}")
                if t == 2: a(f"v_cndmask_b32 {d}, 0, {d}, s[90:91]")
            a.bg(EBG)
    OSC = SCR
    TA = 56
    for s_ in range(12):
        src = T2R + s_//2
        if s_ & 1: a(f"v_lshrrev_b32 v{TA+s_}, 16, v{src}")
        else: a(f"v_and_b32 v{TA+s_}, 0xffff, v{src}")
        a(f"v_add_u32 v{TA+s_}, {OSC}, v{TA+s_}")
    for r_ in range(16):
        if r_ % 4 == 0: a.wait(vm=f"P{r_+3}")
        for e in range(4): a(f"v_accvgpr_read_b32 v{(32 if r_ == 0 else 36)+e}, {R(P0+4*r_+e)}")
        if r_:
            for e in (0, 2): a(f"v_pk_add_f32 v[{32+e}:{33+e}], v[{32+e}:{33+e}], v[{36+e}:{37+e}]")
        if r_ % 4 == 3: a.bg(EBG)
    a("v_cvt_pk_bf16_f32 v18, v32, v33"); a("v_cvt_pk_bf16_f32 v19, v34, v35")
    a("v_cmp_gt_u32 vcc, 210, v0")
    a("v_cndmask_b32 v18, 0, v18, vcc"); a("v_cndmask_b32 v19, 0, v19, vcc")
    a("v_lshlrev_b32 v27, 3, v0"); a(f"v_add_u32 v27, {OSC}, v27")
    a("ds_write_b64 v27, v[18:19]")
    a("s_waitcnt lgkmcnt(0)")
    a("s_barrier")
    a.stamp("b9")
    KF = A0 + 64
    for E in range(4):
        for ta in range(3): a(f"ds_read_b64 {R(KF + 8*E + 2*ta, 2)}, v{TA + 3*E + ta}")
    a("s_mul_i32 s3, s28, 40960"); a("s_mul_i32 s56, s27, 1280"); a("s_add_u32 s3, s3, s56"); a("s_add_u32 s3, s3, s58")
    a("v_lshlrev_b32 v27, 2, v10"); a("v_lshl_add_u32 v27, v11, 3, v27")
    a("v_cndmask_b32 v27, v2, v27, s[90:91]")
    a("s_waitcnt lgkmcnt(0)")
    D = 32
    for tt in range(2):
        for E in (3, 0, 1, 2):
            d = R(D + (tt*4+E)*4, 4)
            a(f"v_mfma_f32_16x16x32_bf16 {d}, {R(KF + 8*E, 4)}, {R(PQR + 6*tt, 4)}, 0")
    for tt in range(2):
        for E in (3, 0, 1, 2):
            d = R(D + (tt*4+E)*4, 4)
            a(f"v_mfma_f32_16x16x16_bf16 {d}, {R(KF + 8*E + 4, 2)}, {R(PQR + 6*tt + 4, 2)}, {d}")
    for tt in range(2):
        z = D + (tt*4+3)*4
        a(f"v_add_f32 v20, s61, v{z}"); a(f"v_add_f32 v21, s61, v{z+1}")
        a("v_rcp_f32 v20, v20"); a("v_rcp_f32 v21, v21")
        a("v_cndmask_b32 v22, v21, v20, s[92:93]"); a("v_cndmask_b32 v28, v21, v20, s[90:91]")
        ob = 64 + 8*tt
        for E, rc in ((0, 22), (1, 28), (2, 21)):
            d = D + (tt*4+E)*4
            for e in range(4): a(f"v_mul_f32 v{d+e}, v{d+e}, v{rc}")
            a(f"v_cvt_pk_bf16_f32 v{ob + 2*E}, v{d}, v{d+1}"); a(f"v_cvt_pk_bf16_f32 v{ob + 2*E + 1}, v{d+2}, v{d+3}")
        a.vmem(f"buffer_store_dwordx4 {R(ob, 4)}, v8, s[40:43], s3 offen{HS}", "ST")
        a.vmem(f"buffer_store_dwordx2 {R(ob + 4, 2)}, v27, s[40:43], s3 offen offset:1024{HS}", "ST")
        a("s_add_u32 s3, s3, 20480")

    def hop(n, before, after_pub, post=0, touch=None, post2=0):
        before()
        a(f"s_add_u32 s59, s58, {G_FL + 128*n}")
        a("s_lshl_b32 s3, s27, 2"); a("s_add_u32 s3, s3, s59")
        a.bg(post)
        a.wait(vm="ST")
        if touch and "notouch" not in OPT: touch()
        a("s_barrier")
        a.stamp(f"hop{n}a")
        a("s_cmp_lg_u32 s28, 0"); a(f"s_cbranch_scc1 L_g{n}np")
        a("s_mov_b64 exec, 1")
        a("s_cmp_eq_u32 s79, 0"); a(f"s_cbranch_scc1 L_g{n}slow")
        a("buffer_store_dword v6, v5, s[40:43], s3 offen")
        a(f"s_branch L_g{n}pd")
        a(f"L_g{n}slow:")
        a("buffer_store_dword v6, v5, s[40:43], s3 offen sc1")
        a(f"L_g{n}pd:")
        a("s_mov_b64 exec, -1")
        a(f"L_g{n}np:")
        after_pub()
        a.bg(post2)
        a("s_cmp_lg_u32 s28, 0"); a(f"s_cbranch_scc1 L_g{n}j")
        a("s_mov_b32 s78, 0")
        a(f"L_g{n}p:")
        a("buffer_load_dword v27, v10, s[40:43], s59 offen sc1")
        a("s_add_u32 s78, s78, 1")
        a("s_waitcnt vmcnt(0)")
        a("v_cmp_ne_u32 vcc, s76, v27")
        a(f"s_cmp_ge_u32 s78, {POLLMAX}"); a(f"s_cbranch_scc1 L_g{n}x")
        a(f"s_cbranch_vccnz L_g{n}p")
        a(f"L_g{n}x:")
        a(f"L_g{n}j:")
        a("s_barrier")
        a.stamp(f"hop{n}b")
    def a_off(NK, goff):
        for m in range(4):
            a(f"s_add_u32 s3, s28, {m}"); a("s_and_b32 s3, s3, 3"); a("s_lshl_b32 s57, s48, 2"); a("s_add_u32 s3, s3, s57")
            a(f"s_mul_i32 s3, s3, {NK}"); a("s_add_u32 s3, s3, s28"); a("s_lshl_b32 s3, s3, 10"); a("s_add_u32 s3, s3, s58"); a(f"s_add_u32 s{80+m}, s3, {goff}")
    def ctouch(lab, nl):
        def f():
            a("s_lshl_b32 s98, s27, 2"); a("s_add_u32 s98, s98, s28"); a(f"s_mul_i32 s98, s98, {128*nl}"); a(f"s_add_u32 s98, s98, {lab}-L_pc")
            a("v_add_u32 v31, s98, v3"); a(f"s_bfm_b64 exec, {nl}, 0")
            a.vmem("global_load_dword v4, v31, s[30:31]"); a("s_mov_b64 exec, -1")
        return f
    if "noct" not in OPT: a.bgq.insert(0, ctouch("L_cS4", 2))
    def flush_wo():
        while any(True for _ in [0]) and a.bgq and len(a.bgq) > 24 + 11: a.bg(1)
    def bef0():
        a_off(20, G_O)
        a("s_mul_i32 s99, s28, 40960"); a("s_mul_i32 s56, s27, 1280"); a("s_add_u32 s99, s99, s56"); a("s_add_u32 s99, s99, s58")
        a("v_mul_u32_u24 v28, 20480, v11"); a("v_lshl_add_u32 v28, v10, 5, v28")
    def tch0():
        a("s_mov_b64 exec, 0x03ff03ff"); a.vmem("buffer_load_dword v4, v28, s[40:43], s99 offen sc1"); a("s_mov_b64 exec, -1")
    hop(0, bef0, lambda: None, post=0, touch=tch0, post2=P("POST0", 10))
    flush_wo()
    ACC = 32 ; FA3 = A0
    for n in range(5):
        for m in range(4):
            a.vmem(f"buffer_load_dwordx4 {R(FA3 + (n*4+m)*4, 4)}, v8, s[40:43], s{80+m} offen sc1", f"A{n}")
            a(f"s_add_u32 s{80+m}, s{80+m}, 4096")
    if "sc1hid" not in OPT: a.bgq.insert(0, hidtouch)
    RED = 102400
    def red_addr():
        for m in range(1, 4):
            a(f"s_add_u32 s3, s28, {m}"); a("s_and_b32 s3, s3, 3"); a("s_mul_i32 s3, s3, 15360"); a(f"s_add_u32 s3, s3, {RED}")
            a(f"v_add_u32 v{16+m}, s3, v8")
        a("s_mul_i32 s3, s28, 15360"); a(f"s_add_u32 s3, s3, {RED}"); a("v_add_u32 v16, s3, v8")
    def init_acc(srcs):
        for t in range(5):
            for e in range(4):
                for q, src0 in enumerate(srcs):
                    src = src0 + 2*t + (e >> 1); d = ACC+4*t+e if q == 0 else 27
                    if e & 1: a(f"v_and_b32 v{d}, 0xffff0000, v{src}")
                    else: a(f"v_lshlrev_b32 v{d}, 16, v{src}")
                    if q: a(f"v_add_f32 v{ACC+4*t+e}, v{ACC+4*t+e}, v27")
    def last_step(mfn):
        order = [(m, t) for m in (1, 2, 3, 0) for t in range(5)]
        for i, (m, t) in enumerate(order):
            a(mfn(m, t))
            if i >= 5:
                m2, t2 = order[i-5]
                a(f"ds_write_b128 v{16+m2}, {R(ACC + (m2*5+t2)*4, 4)} offset:{(m2-1)*5120 + t2*1024}")
    red_addr()
    if "RES" in a.vm: a.wait(vm="RES")
    init_acc([RES])
    S3BG = P("S3BG", 3)
    for n in range(5):
        a.wait(vm=f"A{n}")
        if n == 4:
            last_step(lambda m, t: MF(ACC + (m*5+t)*4, FB3 + (n*5+t)*4, FA3 + (n*4+m)*4, False)); a.bg(S3BG)
        else:
            mf = [MF(ACC + (m*5+t)*4, FB3 + (n*5+t)*4, FA3 + (n*4+m)*4, n == 0 and m > 0) for m in range(4) for t in range(5)]
            a.interleave(mf, [lambda: a.bg(1)]*S3BG)
    a.stamp("s3end")
    a("L_cS4:")
    HF = A0; BF = A0 + 160
    NA = P("NA", 4); BS = 4*max(NA, 7 - NA)
    if NA == 4:
        slots = [156 + 4*i for i in range(16)] + [A0 + 192 + 4*i for i in range(3)] + [A0 + 220 + 4*i for i in range(9)] + [HF + 4*i for i in range(40)] + [BF + 4*i for i in range(2)]
        NEARLY = 28
        arA = [A0 + 168 + 4*i for i in range(6)] + [A0 + 204 + 4*i for i in range(4)]
    else:
        for x in range(14): a(f"v_accvgpr_mov_b32 {R(A0 + 240 + x)}, {R(B1A + x)}")
        B1A = A0 + 240
        slots = [156 + 4*i for i in range(16)] + [A0 + 208 + 4*i for i in range(8)] + [HF + 4*i for i in range(40)] + [BF + 4*i for i in range(6)]
        NEARLY = 24
        arA = [A0 + 184 + 4*i for i in range(6)] + [A0 + 240 + 4*i for i in range(4)]
    def fb(n, t): return slots[n*5 + t]
    a("s_mul_i32 s3, s49, 54"); a("s_add_u32 s3, s3, s28"); a("s_mul_i32 s54, s3, 5120"); a(f"s_add_u32 s54, s54, {W2P}")
    def ldw2(n, t):
        if n == 13 and t == 0:
            a("s_cmp_ge_u32 s28, 2"); a("s_cselect_b32 s98, 0x40000000, 0"); a("s_add_u32 s54, s54, s98")
        a.vmem(f"buffer_load_dwordx4 {R(fb(n, t), 4)}, v{8 if t < 4 else 12}, s[40:43], s54 offen offset:{1024*(t&3)} sc1", f"W2_{n}")
        if t == 4: a("s_add_u32 s54, s54, 20480")
    w2q = [(n, t) for n in range(14) for t in range(5)]
    nw1left = len(a.bgq)
    def w2bg():
        ldw2(*w2q.pop(0))
    a.bgq += [w2bg]*NEARLY
    def reduce_epi(which, BIA=None, nbg=0):
        a.bg(2*nbg)
        a("s_waitcnt lgkmcnt(0)")
        a("s_barrier")
        for t in range(5):
            for m in range(1, 4): a(f"ds_read_b128 {R(ACC + (m*5+t)*4, 4)}, v16 offset:{(m-1)*5120 + t*1024}")
        for t in range(5):
            a(f"s_waitcnt lgkmcnt({12 - 3*t})")
            for e in (0, 2):
                x0 = ACC + 4*t + e
                a(f"v_pk_add_f32 v[{x0+20}:{x0+21}], v[{x0+20}:{x0+21}], v[{x0+40}:{x0+41}]"); a(f"v_pk_add_f32 v[{x0}:{x0+1}], v[{x0}:{x0+1}], v[{x0+60}:{x0+61}]")
            for e in (0, 2):
                x0 = ACC + 4*t + e
                a(f"v_pk_add_f32 v[{x0}:{x0+1}], v[{x0}:{x0+1}], v[{x0+20}:{x0+21}]")
            for h in range(2): a(f"v_cvt_pk_bf16_f32 v{RES+2*t+h}, v{ACC+4*t+2*h}, v{ACC+4*t+2*h+1}")
            if which == 3:
                if t == 1: a.vmem(f"buffer_store_dwordx4 {R(RES, 4)}, v8, s[40:43], s57 offen{HS}")
                if t == 3: a.vmem(f"buffer_store_dwordx4 {R(RES+4, 4)}, v8, s[40:43], s57 offen offset:1024{HS}")
                if t == 4: a.vmem(f"buffer_store_dwordx2 {R(RES+8, 2)}, v13, s[40:43], s57 offen offset:2048{HS}")
    a("s_mul_i32 s57, s50, 20480"); a("s_mul_i32 s3, s49, 2560"); a("s_add_u32 s57, s57, s3"); a("s_add_u32 s57, s57, s58"); a(f"s_add_u32 s57, s57, {G_H}")
    reduce_epi(3, nbg=P("R3BG", 3))
    a(f"v_pk_add_f32 v[28:29], v[{ACC}:{ACC+1}], v[{ACC+2}:{ACC+3}]"); a(f"v_pk_mul_f32 v[30:31], v[{ACC}:{ACC+1}], v[{ACC}:{ACC+1}]"); a(f"v_pk_fma_f32 v[30:31], v[{ACC+2}:{ACC+3}], v[{ACC+2}:{ACC+3}], v[30:31]")
    for x in range(4, 20, 2):
        a(f"v_pk_add_f32 v[28:29], v[28:29], v[{ACC+x}:{ACC+x+1}]"); a(f"v_pk_fma_f32 v[30:31], v[{ACC+x}:{ACC+x+1}], v[{ACC+x}:{ACC+x+1}], v[30:31]")
    a("v_add_f32 v20, v28, v29"); a("v_add_f32 v21, v30, v31")
    def red_g(regs, tmp):
        for r_ in regs:
            a(f"v_mov_b32 {tmp}, {r_}"); a(f"v_permlane32_swap_b32 {r_}, {tmp}"); a(f"v_add_f32 {r_}, {r_}, {tmp}")
            a(f"v_mov_b32 {tmp}, {r_}"); a(f"v_permlane16_swap_b32 {r_}, {tmp}"); a(f"v_add_f32 {r_}, {r_}, {tmp}")
    red_g(["v20", "v21"], "v22")
    a("v_lshlrev_b32 v22, 1, v10")
    a("s_lshl_b32 s57, s50, 10"); a("s_lshl_b32 s3, s49, 7"); a("s_add_u32 s57, s57, s3"); a("s_add_u32 s57, s57, s58"); a(f"s_add_u32 s57, s57, {G_ST}")
    a.vmem(f"buffer_store_dwordx2 v[20:21], v22, s[40:43], s57 offen{HS}", "ST")
    CS = 128; CSL = 144384
    def bef3():
        a("s_mul_i32 s3, s28, 40960"); a("s_add_u32 s3, s3, s58"); a(f"s_add_u32 s80, s3, {G_H}"); a("s_add_u32 s81, s80, 20480")
        a("s_lshl_b32 s82, s28, 11"); a("s_add_u32 s82, s82, s58"); a(f"s_add_u32 s82, s82, {G_ST}")
        a("v_lshlrev_b32 v19, 8, v11"); a("v_lshl_add_u32 v19, v10, 1, v19")
        a("v_add_u32 v16, 57344, v8"); a("v_add_u32 v17, 114688, v8")
        a(f"s_mul_i32 s3, s28, {11*1024}"); a(f"s_add_u32 s3, s3, {96*1024}"); a("v_add_u32 v18, s3, v8")
        for e in range(4):
            a(f"v_add_f32 v{C1R+e}, v{C1R+e}, v{C1R+4+e}"); a(f"v_add_f32 v{C1R+8+e}, v{C1R+8+e}, v{C1R+12+e}")
            a(f"v_add_f32 v{C1R+e}, v{C1R+e}, v{C1R+16+e}"); a(f"v_add_f32 v{C1R+e}, v{C1R+e}, v{C1R+8+e}")
        a("s_lshl_b32 s3, s28, 9"); a(f"s_add_u32 s3, s3, {CSL}"); a("v_add_u32 v29, s3, v26")
    def aft3():
        if "W1" in a.vm: a.wait(vm="W1")
        for i in range(11): a(f"ds_write_b128 v18, {R(W1T + 4*i, 4)} offset:{1024*i}")
        a("s_mov_b64 exec, s[66:67]"); a(f"ds_write_b128 v29, {R(C1R, 4)}"); a("s_mov_b64 exec, -1")
        a("s_waitcnt lgkmcnt(0)")
    left1 = max(0, len(a.bgq) - len([1 for x in a.bgq if x is w2bg]))
    print("w1 left at hop3:", left1, "w2 issued:", 70 - len(w2q), file=sys.stderr)
    def tch1():
        a("s_mul_i32 s99, s50, 20480"); a("s_mul_i32 s98, s49, 2560"); a("s_add_u32 s99, s99, s98"); a("s_add_u32 s99, s99, s58"); a(f"s_add_u32 s99, s99, {G_H}")
        a("s_mov_b64 exec, 0xfffff"); a.vmem("buffer_load_dword v4, v3, s[40:43], s99 offen sc1"); a("s_mov_b64 exec, -1")
    hop(1, bef3, aft3, post=left1, touch=tch1, post2=max(0, P("POST1", 6) - left1))
    def hf(tt, k): return HF + (k*2 + tt)*4
    def ldh(k):
        def one(tt):
            a.vmem(f"buffer_load_dwordx4 {R(hf(tt, k), 4)}, v8, s[40:43], s{80+tt} offen offset:{1024*(k&3)} sc1", f"H{k}")
            if (k & 3) == 3: a(f"s_add_u32 s{80+tt}, s{80+tt}, 4096")
        return [lambda tt=tt: one(tt) for tt in range(2)]
    PRE = P("PRE4", 6)
    for k in range(PRE):
        for f in ldh(k): f()
    for tt in range(2):
        for q in range(2):
            a.vmem(f"buffer_load_dwordx2 {R(88 + 4*tt + 2*q, 2)}, v19, s[40:43], s82 offen offset:{1024*tt + 128*q} sc1", "STAT")
    def breads(ps, k):
        ts = range(NA) if ps == 0 else range(NA, 7)
        return [lambda t=t: a.ds(f"ds_read_b128 {R(BF + (k&1)*BS + 4*(t - ts[0]), 4)}, v{[8, 16, 17][k >> 3]} offset:{(k & 7)*7168 + 1024*t}", f"BR{ps}_{k}") for t in ts]
    for f in breads(0, 0): f()
    vS = [20, 21]; vQ = [24, 25]
    a(f"v_add_u32 v18, {CSL}, v23")
    hq = list(range(PRE, 20))
    B1U = 220
    c1 = -2.0*LOG2E*0.7978845608028654
    c2 = c1*0.044715
    a(f"s_mov_b32 s60, {hx(c1)}"); a(f"s_mov_b32 s61, {hx(c2)}")
    a("s_mul_i32 s56, s28, 110592"); a("s_lshl_b32 s3, s53, 9"); a("s_add_u32 s56, s56, s3"); a("s_add_u32 s56, s56, s58"); a(f"s_add_u32 s56, s56, {G_HID}"); a("s_add_u32 s57, s56, 55296")
    for k in range(20):
        a.wait(vm=f"H{k}", lg=f"BR0_{k}")
        front = breads(0, k+1) if k < 19 else breads(1, 0)
        side = []
        if hq: side += ldh(hq.pop(0))
        else: side += [lambda: a.bg(1)]*P("ABG", 1)
        if 1 <= k < 8:
            kk = k - 1; tb = 96 if kk % 2 == 0 else 220
            side.append(lambda kk=kk: a.wait(lg=f"CG{kk}"))
            for e in range(4):
                side += [f"v_add_f32 v{CS+4*kk+e}, v{CS+4*kk+e}, v{tb+e}", f"v_add_f32 v{tb+4+e}, v{tb+4+e}, v{tb+8+e}", f"v_add_f32 v{CS+4*kk+e}, v{CS+4*kk+e}, v{tb+4+e}"]
        if k < 7:
            tb = 96 if k % 2 == 0 else 220
            for w in range(4): front.append(lambda w=w, k=k, tb=tb: a.ds(f"ds_read_b128 {R((CS + 4*k) if w == 0 else (tb - 4 + 4*w), 4)}, v18 offset:{512*w + 64*k}", f"CG{k}"))
        if k == PRE + 2:
            for tt in range(2):
                side.append(f"v_add_f32 v{vS[tt]}, v{88+4*tt}, v{90+4*tt}"); side.append(f"v_add_f32 v{vQ[tt]}, v{89+4*tt}, v{91+4*tt}")
            side.append(lambda: red_g([f"v{x}" for x in vS + vQ], "v22"))
        if k == PRE + 3:
            for tt in range(2):
                s_, q_ = f"v{vS[tt]}", f"v{vQ[tt]}"
                side += [f"v_mul_f32 {s_}, s63, {s_}", f"v_mul_f32 {q_}, s63, {q_}", f"v_fma_f32 {q_}, -{s_}, {s_}, {q_}", f"v_max_f32 {q_}, 0, {q_}",
                         f"v_add_f32 v22, s64, {q_}", f"v_fma_f32 {q_}, v22, s64, {q_}", f"v_rsq_f32 {q_}, {q_}", f"v_mul_f32 {s_}, {s_}, {q_}"]
            side += ["v_mov_b32 v252, s60", "v_mov_b32 v253, s60", "s_mov_b32 s96, s61", "s_mov_b32 s97, s61"]
        if k >= 12:
            x = 2*(k - 12)
            for y in (x, x + 1):
                if y < 14:
                    side += [f"v_accvgpr_read_b32 v27, {R(B1A + y)}", f"v_lshlrev_b32 v{B1U+2*y}, 16, v27", f"v_and_b32 v{B1U+2*y+1}, 0xffff0000, v27"]
        mf = [MF(ACC + (tt*7+t)*4, BF + (k&1)*BS + 4*t, hf(tt, k), k == 0) for t in range(NA) for tt in range(2)]
        a.interleave(mf, side, front)
    a.stamp("s4A")
    if "noct" not in OPT: ctouch("L_cS5", 1)()
    PK = 88
    def gelu(tt, t, pk=False):
        L = []
        if pk:
            b_ = ACC + (tt*7+t)*4
            pr = lambda x: f"v[{x}:{x+1}]"
            for h in (0, 2): L.append(f"v_pk_fma_f32 {pr(248+h)}, v[20:21], {pr(CS+4*t+h)}, {pr(B1U+4*t+h)} op_sel:[{tt},0,0] op_sel_hi:[{tt},1,1] neg_lo:[1,0,0] neg_hi:[1,0,0]")
            for h in (0, 2): L.append(f"v_pk_fma_f32 {pr(b_+h)}, {pr(b_+h)}, v[24:25], {pr(248+h)} op_sel:[0,{tt},0] op_sel_hi:[1,{tt},1]")
            for h in (0, 2): L.append(f"v_pk_mul_f32 {pr(248+h)}, {pr(b_+h)}, {pr(b_+h)}")
            for h in (0, 2): L.append(f"v_pk_fma_f32 {pr(248+h)}, {pr(248+h)}, s[96:97], v[252:253]")
            for h in (0, 2): L.append(f"v_pk_mul_f32 {pr(248+h)}, {pr(248+h)}, {pr(b_+h)}")
            for e in range(4): L.append(f"v_exp_f32 v{248+e}, v{248+e}")
            for h in (0, 2): L.append(f"v_pk_add_f32 {pr(248+h)}, {pr(248+h)}, 1.0 op_sel_hi:[1,0]")
            for e in range(4): L.append(f"v_rcp_f32 v{248+e}, v{248+e}")
            for h in (0, 2): L.append(f"v_pk_mul_f32 {pr(b_+h)}, {pr(b_+h)}, {pr(248+h)}")
        else:
            for e in range(4):
                v_ = f"v{ACC + (tt*7+t)*4 + e}"; ta = f"v{248+e}"
                L += [f"v_fma_f32 {ta}, -v{vS[tt]}, v{CS+4*t+e}, v{B1U+4*t+e}", f"v_fma_f32 {v_}, {v_}, v{vQ[tt]}, {ta}", f"v_mul_f32 {ta}, {v_}, {v_}",
                      f"v_fma_f32 {ta}, {ta}, s61, v252", f"v_mul_f32 {ta}, {ta}, {v_}", f"v_exp_f32 {ta}, {ta}"]
            for e in range(4):
                ta = f"v{248+e}"; L += [f"v_add_f32 {ta}, 1.0, {ta}"]
            for e in range(4):
                ta = f"v{248+e}"; L += [f"v_rcp_f32 {ta}, {ta}"]
            for e in range(4):
                v_ = f"v{ACC + (tt*7+t)*4 + e}"; L.append(f"v_mul_f32 {v_}, {v_}, v{248+e}")
        for h in range(2):
            x0 = ACC + (tt*7+t)*4 + 2*h
            L.append(f"v_cvt_pk_bf16_f32 v{PK + tt*14 + 2*t + h}, v{x0}, v{x0+1}")
        if t & 1: L.append(lambda: a.vmem(f"buffer_store_dwordx4 {R(PK + tt*14 + 2*(t-1), 4)}, v8, s[40:43], s{56+tt} offen offset:{512*(t-1)}{HS2}", "ST" if t > 3 else "ST01"))
        if t == 6: L.append(lambda: a.vmem(f"buffer_store_dwordx2 {R(PK + tt*14 + 12, 2)}, v13, s[40:43], s{56+tt} offen offset:3072{HS2}", "ST"))
        return L
    gl = []
    for p in range(NA//2):
        for tt in range(2): gl += gelu(tt, 2*p, "pkB" in OPT) + gelu(tt, 2*p+1, "pkB" in OPT)
    a.bgq = []
    W2RATE = P("W2RATE", 2)
    for k in range(20):
        a.wait(lg=f"BR1_{k}")
        front = breads(1, k+1) if k < 19 else []
        q = (len(gl) + 19 - k)//(20 - k) if k > 0 else 0
        side = gl[:q]; gl = gl[q:]
        nin = max(0, min(W2RATE, len(w2q), NEARLY + 2*k - (70 - len(w2q))))
        for i_ in range(nin): side.insert((i_ + 1)*len(side)//(nin + 1), w2bg)
        mf = [MF(ACC + (tt*7+t)*4, BF + (k&1)*BS + 4*(t-NA), hf(tt, k), k == 0) for t in range(NA, 7) for tt in range(2)]
        a.interleave(mf, side, front)
    a.stamp("s4B")
    a("L_cS5:")
    W2EPI = P("W2EPI", 2)
    seq = [(0, 4), (0, 5), (1, 4), (1, 5), (0, 6), (1, 6)] if NA == 4 else [(0, 6), (1, 6)]
    for i_, (tt, t) in enumerate(seq):
        L = gelu(tt, t, True)
        if i_ == P("HT", 99):
            a("v_and_b32 v28, 1, v11"); a("v_mul_u32_u24 v28, 55296, v28"); a("v_lshl_add_u32 v28, v10, 5, v28")
            a.wait(vm="ST01")
            a("s_bfm_b64 exec, 32, 0"); a.vmem("buffer_load_dword v4, v28, s[40:43], s56 offen sc1"); a("s_mov_b64 exec, -1")
        for j_, x in enumerate(L):
            a.run(x)
            if i_ < P("W2STOP", 4) and j_ in (6, 16)[:W2EPI] and w2q: ldw2(*w2q.pop(0))
    BIA = 126
    def bef4():
        srd(a, 32, 20, 2621440); srd(a, 36, 18, 1280)
        a_off(54, G_HID)
        a("v_lshlrev_b32 v28, 3, v11"); a("s_mul_i32 s3, s49, 160")
        a.vmem(f"buffer_load_dwordx4 {R(BIA, 4)}, v23, s[36:39], s3 offen")
        a.vmem(f"buffer_load_dwordx4 {R(BIA+4, 4)}, v23, s[36:39], s3 offen offset:64")
        a.vmem(f"buffer_load_dwordx2 {R(BIA+8, 2)}, v28, s[36:39], s3 offen offset:128", "BIA")
    npost = min(P("POST2", 4), len(w2q))
    a.bgq = [lambda x=x: ldw2(*x) for x in w2q[:npost]]; w2q = w2q[npost:]
    print("w2 left after hop4:", len(w2q), file=sys.stderr)
    def tch2():
        a("v_lshrrev_b32 v28, 5, v1"); a("v_mul_u32_u24 v28, 55296, v28"); a("v_and_b32 v29, 31, v1"); a("v_lshl_add_u32 v28, v29, 7, v28")
        a("s_mov_b32 exec_lo, 0x0fffffff"); a("s_mov_b32 exec_hi, 0x0fffffff"); a.vmem("buffer_load_dword v4, v28, s[40:43], s56 offen sc1"); a("s_mov_b64 exec, -1")
    hop(2, bef4, lambda: None, post=0, touch=tch2, post2=npost)
    ar = [136 + 4*i for i in range(5)] + [220 + 4*i for i in range(9)] + arA
    NR = 6
    def fa(n, m): return ar[(n % NR)*4 + m]
    def lda5(n):
        def one(m):
            if n == 13 and m == 0:
                a("s_cmp_ge_u32 s28, 2"); a("s_cselect_b32 s3, 0x40000000, 0")
                for q in range(4): a(f"s_add_u32 s{80+q}, s{80+q}, s3")
            a.vmem(f"buffer_load_dwordx4 {R(fa(n, m), 4)}, v8, s[40:43], s{80+m} offen sc1", f"A5_{n}")
            a(f"s_add_u32 s{80+m}, s{80+m}, 4096")
        return [lambda m=m: one(m) for m in range(4)]
    PRE5 = P("PRE5", 3)
    def need_w2(n):
        L = []
        while w2q and w2q[0][0] <= n:
            x = w2q.pop(0); L.append(lambda x=x: ldw2(*x))
        return L
    for n in range(PRE5):
        for f in need_w2(n) + lda5(n): f()
    def ldbia():
        a("v_lshlrev_b32 v28, 3, v11"); a("s_mul_i32 s3, s49, 160")
        a.vmem(f"buffer_load_dwordx4 {R(BIA, 4)}, v23, s[36:39], s3 offen")
        a.vmem(f"buffer_load_dwordx4 {R(BIA+4, 4)}, v23, s[36:39], s3 offen offset:64")
        a.vmem(f"buffer_load_dwordx2 {R(BIA+8, 2)}, v28, s[36:39], s3 offen offset:128")
    red_addr(); a.wait(vm="BIA"); init_acc([RES, BIA])
    nxt = PRE5
    for n in range(14):
        a.wait(vm=f"A5_{n}")
        side = []; cnt = 0
        while nxt < 14 and nxt <= n + NR - 1 and cnt < 2:
            side += need_w2(nxt) + lda5(nxt); nxt += 1; cnt += 1
        if n == 13:
            last_step(lambda m, t: MF(ACC + (m*5+t)*4, fb(n, t), fa(n, m), False))
        else:
            mf = [MF(ACC + (m*5+t)*4, fb(n, t), fa(n, m), n == 0 and m > 0) for m in range(4) for t in range(5)]
            a.interleave(mf, side)
    a.stamp("s5end")
    reduce_epi(5, BIA)
    a(f"buffer_store_dwordx4 {R(RES, 4)}, v14, s[32:35], s51 offen")
    a(f"buffer_store_dwordx4 {R(RES+4, 4)}, v14, s[32:35], s51 offen offset:64")
    a(f"buffer_store_dwordx2 {R(RES+8, 2)}, v15, s[32:35], s51 offen offset:128")
    a("s_or_b32 s3, s2, s28"); a("s_cmp_lg_u32 s3, 0"); a("s_cbranch_scc1 L_notagclr")
    a("global_store_dword v5, v5, s[22:23] sc1")
    a("L_notagclr:")
    a.stamp("stored")
    if STAMP:
        a("s_waitcnt vmcnt(0)")
        a.stamp("end")
        a("s_memrealtime s[100:101]"); a("s_waitcnt lgkmcnt(0)"); a("v_writelane_b32 v7, s100, 31")
        a("v_writelane_b32 v7, s79, 30")
        a("s_lshl_b32 s3, s2, 2"); a("s_add_u32 s3, s3, s28"); a("s_lshl_b32 s3, s3, 8"); a(f"s_add_u32 s3, s3, {STB}")
        a("v_lshlrev_b32 v27, 2, v1"); a("v_add_u32 v27, s3, v27")
        a("global_store_dword v27, v7, s[24:25]")
        if os.environ.get("DELAY"):
            di = os.environ["DELAY"]
            a(f"s_cmp_lg_u32 s2, {P('DWG', 8)}"); a("s_cbranch_scc1 L_end"); a("s_cmp_lg_u32 s28, 0"); a("s_cbranch_scc1 L_end")
            clk = "s_memrealtime" if di == "rt" else "s_memtime"
            a(f"{clk} s[100:101]"); a("s_waitcnt lgkmcnt(0)")
            if di == "rt":
                a("s_sub_u32 s3, s100, s76")
            else:
                a(f"v_readlane_b32 s3, v7, {di}"); a("v_readlane_b32 s56, v7, 0"); a("s_nop 3"); a("s_sub_u32 s3, s3, s56")
            a("s_lshl_b32 s3, s3, 2"); a("s_min_u32 s3, s3, 0x100000"); a("s_mov_b32 s57, s100")
            a("L_dly:")
            a(f"{clk} s[100:101]"); a("s_waitcnt lgkmcnt(0)"); a("s_sub_u32 s56, s100, s57"); a("s_cmp_lt_u32 s56, s3"); a("s_cbranch_scc1 L_dly")
        a.a.raw("; STAMPS " + " ".join(a.names))
    a("L_end:")
    a("s_endpgm")
    return a.a

def main(out):
    hdr = open("sequential_preLN__linear_attn_block__mixer_channel_mlp__prompt.s.ref").read().split("\n")
    hdr = [l for l in hdr if l.startswith(";") and "@launch" not in l]
    hdr.append("; @launch grid=(256,1,1) block=(256,1,1) lds=163840")
    a = gen()
    pre = '.amdgcn_target "amdgcn-amd-amdhsa--gfx950"\n.text\n'
    T1, T2 = build_tables()
    a.raw(".p2align 6\nT1_tab:")
    a.raw(".short " + ",".join(map(str, T1)))
    a.raw("T2_tab:")
    for row in T2: a.raw(".short " + ",".join(map(str, row)))
    a.raw(".fill 2048, 4, 0")
    a.raw('.section .rodata,"a"\n.p2align 6')
    a.raw(f""".amdhsa_kernel {NAME}
  .amdhsa_next_free_vgpr 512
  .amdhsa_next_free_sgpr 102
  .amdhsa_accum_offset 256
  .amdhsa_group_segment_fixed_size 0
  .amdhsa_kernarg_size 88
  .amdhsa_user_sgpr_count 2
  .amdhsa_user_sgpr_kernarg_segment_ptr 1
  .amdhsa_system_sgpr_workgroup_id_x 1
.end_amdhsa_kernel""")
    open(out, "w").write("\n".join(hdr) + "\n" + pre + a.finish())

if __name__ == "__main__":
    main(sys.argv[1])
```

```python
import sys, struct, os
from asmdsl import Asm, R, S
from gen1 import build_tables, PAIRS, f2u, hx, divmod_const, srd, LOG2E

NAME = "sequential_preLN__linear_attn_block__mixer_channel_mlp__prompt_kernel"
WOP = 0
W2P = WOP + 8*20*5*1024
W1P = W2P + 8*54*5*1024
C1P = W1P + 16*20*7*1024
WQKV = C1P + 320*512
PART = WQKV + 16*153600
GRP = PART + 256*4096
G_O = 0; G_H = 163840; G_ST = 327680; G_FL = 335872; G_HID = 336896; G_SZ = G_HID + 442368
FLG = GRP + 16*G_SZ
F1 = FLG; F1R = FLG + 8192; F0 = FLG + 10240; FU = FLG + 14336
WS_END = FLG + 20480
A0 = 256
STAMP = int(os.environ.get("STAMP", "0"))
STB = 32 << 20
POLLMAX = 1 << 15
OPT = set(os.environ.get("OPT", "").split(","))
def P(name, d): return int(os.environ.get(name, d))

class G:
    def __init__(self):
        self.a = Asm(); self.vm = []; self.lg = []; self.nst = 0; self.bgq = []; self.names = []
    def __call__(self, t): self.a(t)
    def vmem(self, text, tag=None): self.a(text); self.vm.append(tag)
    def ds(self, text, tag=None): self.a(text); self.lg.append(tag)
    def _n(self, lst, tag, cap):
        idx = max(i for i, t in enumerate(lst) if t == tag)
        return min(len(lst) - 1 - idx, cap)
    def wait(self, vm=None, lg=None):
        s = []
        if vm is not None: s.append(f"vmcnt({0 if vm == 'all' else self._n(self.vm, vm, 63)})")
        if lg is not None: s.append(f"lgkmcnt({0 if lg == 'all' else self._n(self.lg, lg, 15)})")
        self.a("s_waitcnt " + " ".join(s))
        if vm == 'all': self.vm = []
        if lg == 'all': self.lg = []
    def stamp(self, name=""):
        if STAMP != 1: return
        i = self.nst; self.nst += 1; self.names.append(name)
        assert i < 29
        self.a("s_memtime s[100:101]"); self.a("s_waitcnt lgkmcnt(0)"); self.a(f"v_writelane_b32 v7, s100, {i}")
    def run(self, x): x() if callable(x) else self.a(x)
    def bg(self, n=1):
        for _ in range(n):
            if self.bgq: self.bgq.pop(0)()
    def interleave(self, main, extra, front=()):
        n = len(main); m = len(extra); j = 0; front = list(front)
        for i, x in enumerate(main):
            self.run(x)
            if front:
                self.run(front.pop(0))
                if len(front) >= n - i and front: self.run(front.pop(0))
            while j < m and (j + 1) * n <= (i + 1) * m + (n - 1):
                self.run(extra[j]); j += 1
        for x in front: self.run(x)
        while j < m:
            self.run(extra[j]); j += 1

def MF(d, a_, b_, first): return f"v_mfma_f32_16x16x32_bf16 {R(d,4)}, {R(a_,4)}, {R(b_,4)}, {'0' if first else R(d,4)}"

def phi(a, val, t1, t2):
    a(f"v_mul_f32 {t1}, s60, {val}")
    a(f"v_max_f32 {t2}, 0, {val}")
    a(f"v_exp_f32_e64 {t1}, {t1} clamp")
    a(f"v_add_f32 {t2}, s61, {t2}")
    a(f"v_add_f32 {val}, {t1}, {t2}")

OPT |= {"sc1h", "sc1hid", "notouch", "usfirst", "ft"}
def phi4(a, b_, T, sel_mask=None):
    for h in range(2): a(f"v_pk_mul_f32 v[{T+2*h}:{T+2*h+1}], v[{b_+2*h}:{b_+2*h+1}], s[94:95]")
    for e in range(4): a(f"v_max_f32 v{T+4+e}, 0, v{b_+e}")
    for e in range(4): a(f"v_exp_f32_e64 v{T+e}, v{T+e} clamp")
    for h in range(2): a(f"v_pk_add_f32 v[{T+4+2*h}:{T+5+2*h}], v[{T+4+2*h}:{T+5+2*h}], s[96:97]")
    if sel_mask is None:
        for h in range(2): a(f"v_pk_add_f32 v[{b_+2*h}:{b_+2*h+1}], v[{T+2*h}:{T+2*h+1}], v[{T+4+2*h}:{T+5+2*h}]")
    else:
        for h in range(2): a(f"v_pk_add_f32 v[{T+2*h}:{T+2*h+1}], v[{T+2*h}:{T+2*h+1}], v[{T+4+2*h}:{T+5+2*h}]")
        for e in range(4): a(f"v_cndmask_b32 v{b_+e}, v{b_+e}, v{T+e}, {sel_mask}")
HS = " sc1"
HS2 = " sc1"
def gen():
    a = G()
    name = NAME
    NRAW = P("NRAW", 2)
    a.a.raw(f".globl {name}\n.p2align 8\n.type {name},@function\n{name}:")
    a("s_cmp_ge_u32 s2, 256"); a("s_cbranch_scc1 L_end")
    a("s_load_dwordx16 s[4:19], s[0:1], 0")
    a("s_load_dwordx4 s[20:23], s[0:1], 64")
    a("s_load_dwordx2 s[24:25], s[0:1], 80")
    a("s_memrealtime s[76:77]")
    a("s_getpc_b64 s[30:31]")
    a("L_pc:")
    a("v_mov_b32 v7, 0")
    a.stamp("start")
    a("v_lshrrev_b32 v2, 6, v0"); a("v_and_b32 v1, 63, v0")
    a("v_readfirstlane_b32 s28, v2")
    if "m48" in OPT:
        a("s_and_b32 s3, s2, 7"); a("s_lshr_b32 s29, s2, 3")
        a("s_lshr_b32 s26, s3, 1"); a("s_lshl_b32 s26, s26, 2"); a("s_lshr_b32 s27, s29, 3"); a("s_add_u32 s26, s26, s27")
        a("s_and_b32 s3, s3, 1"); a("s_lshl_b32 s3, s3, 2"); a("s_and_b32 s27, s29, 3"); a("s_or_b32 s27, s27, s3")
        a("s_and_b32 s29, s29, 4"); a("s_lshl_b32 s29, s29, 1"); a("s_or_b32 s27, s27, s29")
    else:
        a("s_and_b32 s3, s2, 7"); a("s_lshr_b32 s27, s2, 3"); a("s_lshr_b32 s26, s27, 4"); a("s_lshl_b32 s3, s3, 1")
        a("s_add_u32 s26, s26, s3")
        a("s_and_b32 s27, s27, 15")
    a("v_lshlrev_b32 v3, 7, v1")
    if "cp16" in OPT:
        a("s_cmp_lg_u32 s28, 3"); a("s_cbranch_scc1 L_nocp")
        a("s_mul_i32 s3, s27, 2304"); a("v_add_u32 v27, s3, v3"); a("s_bfm_b64 exec, 18, 0")
        a("global_load_dword v4, v27, s[30:31]"); a("s_mov_b64 exec, -1")
    elif "nocp" not in OPT:
        a("s_cmp_lg_u32 s28, 3"); a("s_cbranch_scc1 L_nocp")
        a("s_mul_i32 s3, s27, 13"); a("s_lshr_b32 s3, s3, 6"); a("s_mul_i32 s3, s3, 5"); a("s_sub_u32 s3, s27, s3"); a("s_lshl_b32 s3, s3, 13")
        a("v_add_u32 v27, s3, v3")
        a("global_load_dword v4, v27, s[30:31]")
    a("L_nocp:")
    BQ = 102400; SCR = 153600; CSX = 161792
    vXA = [72, 73, 74, 75]; vW = [76, 77]; vRd = [78, 79]; vTB = [17, 18, 19, 20]; vTQ = [86, 87, 88, 89]; vTQ2 = [90, 91, 21, 22]
    vSA = [80, 81, 82]; vBA = [144, 145, 146, 147, 148]; vTR = [149, 150, 151, 152]
    vT1 = 24; vSTW = 25
    ACC = 32; RAW = 160; XF = A0; BF = A0 + 160; ONES = A0 + 200; GR = A0 + 204; RSM = A0 + 212; OH = A0 + 220; CSA = A0 + 240; CSQ = A0 + 244
    t0, t1, t2, t3 = "v27", "v28", "v29", "v30"
    def early():
        a("v_and_b32 v27, 3, v1"); a("s_lshl_b32 s3, s28, 2"); a("v_add_u32 v27, s3, v27"); a("v_min_u32 v27, 14, v27")
        a("v_lshrrev_b32 v28, 2, v1"); a("v_mul_u32_u24 v28, 3840, v28"); a("v_lshl_add_u32 v28, v27, 4, v28")
        a("v_add_u32 v29, 1280, v28"); a("v_add_u32 v30, 2480, v28"); a("v_subrev_u32 v28, 160, v28")
        a("v_cmp_gt_u32 vcc, 10, v27"); a("s_mul_i32 s50, s26, 153600"); a("s_mul_i32 s51, s27, 80"); a("v_cndmask_b32 v28, v28, v30, vcc")
        a("v_cmp_gt_u32 vcc, 5, v27"); a("s_add_u32 s50, s50, s51"); a("s_mul_i32 s53, s28, 3072"); a("v_cndmask_b32 v83, v28, v29, vcc")
        a(f"s_add_u32 s53, s53, {BQ + 28672}")
        a("s_mul_i32 s3, s26, 163840"); a("s_mul_i32 s56, s27, 10240"); a("s_add_u32 s3, s3, s56"); a("s_mul_i32 s56, s28, 2560"); a("s_add_u32 s57, s3, s56")
        a("v_mov_b32 v5, 0")
    def late():
        a("v_lshlrev_b32 v8, 4, v1"); a("v_lshlrev_b32 v9, 4, v0")
        a("v_and_b32 v10, 15, v1"); a("v_lshlrev_b32 v10, 2, v10")
        a("v_lshrrev_b32 v11, 4, v1"); a("v_add_u32 v12, 4096, v8")
        a("v_lshrrev_b32 v27, 3, v1"); a("v_and_b32 v28, 7, v1"); a("v_mul_u32_u24 v29, 1280, v27")
        a(f"v_lshl_add_u32 v{vXA[0]}, v28, 4, v29")
        for rg in range(1, 4): a(f"v_add_u32 v{vXA[rg]}, {10240*rg}, v{vXA[0]}")
        a("s_lshl_b32 s3, s28, 11"); a(f"s_add_u32 s48, s3, {SCR}")
        a("v_lshrrev_b32 v29, 1, v27"); a("v_xor_b32 v29, v29, v28"); a("v_lshlrev_b32 v29, 4, v29"); a("v_lshl_add_u32 v29, v27, 7, v29")
        a(f"v_add_u32 v{vW[0]}, s48, v29")
        a("v_xor_b32 v29, 64, v29"); a("v_add_u32 v29, 1024, v29"); a(f"v_add_u32 v{vW[1]}, s48, v29")
        a("s_lshl_b32 s49, s26, 7"); a("s_lshl_b32 s3, s28, 5"); a("s_add_u32 s49, s49, s3"); a("s_mul_i32 s49, s49, 1280")
        a("s_lshr_b32 s3, s28, 1"); a("s_lshl_b32 s3, s3, 7"); a("s_add_u32 s62, s49, 128"); a("s_sub_u32 s62, s62, s3"); a("s_add_u32 s49, s49, s3")
        a("s_mul_i32 s52, s28, 5120")
        a(f"s_mul_i32 s58, s26, {G_SZ}"); a(f"s_add_u32 s58, s58, {GRP}")
        a("s_lshl_b32 s70, s28, 4"); a("s_add_u32 s70, s70, s26")
        a(f"s_mul_i32 s71, s28, 7168"); a(f"s_add_u32 s71, s71, {BQ}")
        a("v_mov_b32 v2, 0x7fffffff")
    early()
    if "slowpro" in OPT: late()
    a("s_waitcnt lgkmcnt(0)")
    srd(a, 36, 6, 2457600)
    SLNT = "" if "slplain" in OPT else " nt"
    for i in range(3):
        a(f"s_add_u32 m0, s53, {1024*i}")
        if i == 2: a("s_bfm_b64 exec, 32, 0")
        a.vmem(f"buffer_load_dwordx4 v83, s[36:39], s50 offen{SLNT} lds", "SLD")
        a(f"s_add_u32 s50, s50, {16*3840}")
    srd(a, 32, 4, 2621440); srd(a, 40, 24, WS_END)
    a("s_mov_b64 exec, 0xfffff")
    a.vmem(f"buffer_load_dword v4, v3, s[32:35], s57 offen{' nt' if 'xtnt' in OPT else ''}")
    if "tlb" in OPT:
        a("v_lshlrev_b32 v27, 20, v1"); a("s_bfm_b64 exec, 24, 0")
        a.vmem(f"buffer_load_dword v4, v27, s[40:43], 0 offen")
    if "tlb2" in OPT:
        a("s_mul_i32 s54, s27, 153600"); a(f"s_add_u32 s54, s54, {WQKV}")
        a("v_mul_u32_u24 v27, 51200, v1"); a("v_add_u32 v27, s54, v27"); a(f"v_mov_b32 v28, {F0}"); a("v_cmp_eq_u32 vcc, 3, v1"); a("v_cndmask_b32 v27, v27, v28, vcc")
        a("s_bfm_b64 exec, 4, 0")
        a.vmem(f"buffer_load_dword v4, v27, s[40:43], 0 offen")
        a.vmem("global_load_dword v4, v5, s[22:23] offset:128")
    a("s_mov_b64 exec, -1")
    if STAMP: a("v_writelane_b32 v7, s76, 29")
    a("s_and_b32 s76, s76, 0xfffffff8"); a("s_or_b32 s76, s76, 8")
    a("s_or_b32 s3, s2, s28"); a("s_cmp_lg_u32 s3, 0"); a("s_cbranch_scc1 L_notag")
    a("v_mov_b32 v28, s76"); a("global_store_dword v5, v28, s[22:23] sc1")
    a("L_notag:")
    if "ft" in OPT:
        a("s_cmp_lg_u32 s26, s27"); a("s_cbranch_scc1 L_noft"); a("s_cmp_lg_u32 s28, 1"); a("s_cbranch_scc1 L_noft")
        a("s_mul_i32 s3, s27, 1280"); a(f"s_add_u32 s3, s3, {FLG}")
        a("s_bfm_b64 exec, 10, 0"); a("buffer_load_dword v4, v3, s[40:43], s3 offen sc0 sc1"); a("s_mov_b64 exec, -1")
        a("L_noft:")
    if "nobt" not in OPT:
        a("s_lshl_b32 s3, s27, 2"); a("s_add_u32 s3, s3, s28"); a("s_cmp_lg_u32 s3, 6"); a("s_cbranch_scc1 L_nobt")
        a("s_bfm_b64 exec, 27, 0"); a("global_load_dword v4, v3, s[14:15]")
        a("s_bfm_b64 exec, 10, 0"); a("global_load_dword v4, v3, s[18:19]")
        a("s_mov_b64 exec, -1")
        a("L_nobt:")
    srd(a, 44, 12, 2211840)
    if "slowpro" not in OPT: late()
    def rp_issue(nt, pitch_src, nch):
        for i in range(7):
            if i < nt:
                a(f"v_add_u32 v27, {64*i}, v1")
                divmod_const(a, "v28", "v29", "v27", nch)
                a(f"v_mul_u32_u24 v28, {pitch_src}, v28"); a("v_lshl_add_u32 v28, v29, 4, v28")
                a(f"s_add_u32 m0, s71, {1024*i}")
                a(f"buffer_load_dwordx4 v28, s[44:47], s73 offen nt lds")
            else:
                a("buffer_load_dword v4, v2, s[44:47], 0 offen")
    def unit_issue():
        a("s_cmp_ge_u32 s70, 20"); a("s_cbranch_scc1 L_rp5")
        a("s_mov_b32 s72, 1")
        a("s_mul_i32 s75, s27, 27"); a("s_lshr_b32 s75, s75, 2"); a("s_lshl_b32 s75, s75, 5")
        a("s_mul_i32 s79, s70, 110592"); a("s_add_u32 s73, s75, s79")
        a("s_mul_i32 s75, s27, 20"); a("s_add_u32 s70, s70, s75")
        a("s_mul_i32 s74, s70, 7168"); a(f"s_add_u32 s74, s74, {W1P}")
        rp_issue(7, 3456, 14)
        a("s_branch L_rp_issued")
        a("L_rp5:")
        a("s_mov_b32 s72, 2")
        a("s_sub_u32 s79, s70, 20"); a("s_lshl_b32 s79, s79, 1"); a("s_lshr_b32 s75, s27, 3"); a("s_add_u32 s79, s79, s75"); a("s_and_b32 s75, s27, 7")
        a("s_cmp_ge_u32 s79, 54"); a("s_cbranch_scc1 L_rpwo")
        srd(a, 44, 16, 2211840)
        a("s_mul_i32 s78, s75, 54"); a("s_add_u32 s78, s78, s79")
        a("s_mul_i32 s74, s78, 5120"); a(f"s_add_u32 s74, s74, {W2P}")
        a("s_branch L_rp5b")
        a("L_rpwo:")
        srd(a, 44, 8, 819200)
        a("s_sub_u32 s79, s79, 54")
        a("s_mul_i32 s78, s75, 20"); a("s_add_u32 s78, s78, s79")
        a("s_mul_i32 s74, s78, 5120"); a(f"s_add_u32 s74, s74, {WOP}")
        a("s_cmp_ge_u32 s79, 20"); a("s_cselect_b32 s74, 0x40000000, s74")
        a("L_rp5b:")
        a("s_mul_i32 s75, s75, 160"); a("s_mul_i32 s79, s79, 40960"); a("s_add_u32 s73, s75, s79")
        rp_issue(5, 1280, 10)
        a("L_rp_issued:")
        a.vm += ["UL"]*7
    def raw(cx, rg): return 96 + (((cx + 1) % 10)*4 + rg)*4
    def xf(tt, k): return XF + (tt*20 + k)*4
    def ldx(cx):
        return [lambda cx=cx, rg=rg: a.vmem(f"buffer_load_dwordx4 {R(raw(cx, rg), 4)}, v{vXA[rg]}, s[32:35], s{62 if cx & 1 else 49} offen offset:{256*(cx>>1)}", f"X{cx}") for rg in range(4)]
    a("v_and_b32 v27, 15, v1")
    a("v_cmp_gt_u32 s[66:67], 8, v27")
    a("v_cmp_gt_u32 s[90:91], 32, v1"); a("v_cmp_gt_u32 s[92:93], 48, v1")
    a("v_cmp_eq_u32 s[88:89], 1, v11")
    a("v_and_b32 v29, 1, v11")
    a("s_lshl_b32 s3, s28, 1"); a("v_add_u32 v29, s3, v29")
    a("v_cmp_gt_u32 s[94:95], 5, v29"); a("v_cmp_eq_u32 s[96:97], 7, v29")
    a("v_lshlrev_b32 v29, 10, v29"); a(f"v_add_u32 v30, {BQ - 5120}, v29"); a("v_cndmask_b32 v29, v30, v29, s[94:95]")
    a("v_lshl_add_u32 v29, v10, 2, v29")
    a("v_mov_b32 v30, 2560"); a("v_mov_b32 v31, 5120"); a("v_cndmask_b32 v30, v30, v31, s[94:95]")
    a("v_mov_b32 v31, 8"); a("v_cndmask_b32 v31, v31, 7, s[96:97]")
    a("s_andn2_b64 s[96:97], s[96:97], s[66:67]")
    a("s_mul_i32 s3, s26, 5")
    a("v_lshrrev_b32 v28, 1, v11"); a("v_add_u32 v28, s3, v28")
    for n in range(3):
        a(f"v_lshrrev_b32 v27, 2, v28"); a(f"v_mad_u32_u24 v{vSA[n]}, v27, v30, v29")
        a("v_and_b32 v27, 3, v28"); a("v_lshlrev_b32 v27, v31, v27"); a(f"v_add_u32 v{vSA[n]}, v{vSA[n]}, v27")
        a(f"v_cndmask_b32 v{vSA[n]}, v{vSA[n]}, v2, s[96:97]")
        if n == 2: a(f"v_cndmask_b32 v{vSA[n]}, v2, v{vSA[n]}, s[90:91]")
        else: a("v_add_u32 v28, 2, v28")
    a("v_lshrrev_b32 v27, 5, v1"); a("v_bfe_u32 v28, v1, 2, 2"); a("v_lshl_add_u32 v27, v27, 3, v28"); a("v_lshlrev_b32 v27, 6, v27")
    a("v_bfe_u32 v28, v1, 4, 1"); a("v_lshl_add_u32 v27, v28, 5, v27"); a("v_and_b32 v28, 3, v1"); a("v_lshl_add_u32 v27, v28, 3, v27")
    a("v_add_u32 v84, s53, v27")
    a("s_mul_i32 s54, s27, 153600"); a(f"s_add_u32 s54, s54, {WQKV}")
    def transp(cx):
        L = []
        for tt in range(2):
            L.append(lambda tt=tt: a.ds(f"ds_write_b128 v{vW[0]}, {R(raw(cx, 2*tt), 4)}"))
            L.append(lambda tt=tt: a.ds(f"ds_write_b128 v{vW[1]}, {R(raw(cx, 2*tt+1), 4)}"))
            L.append(lambda tt=tt: a.ds(f"ds_read_b128 {R(xf(tt, 2*cx), 4)}, v{vRd[0]}"))
            L.append(lambda tt=tt: a.ds(f"ds_read_b128 {R(xf(tt, 2*cx+1), 4)}, v{vRd[1]}", f"T{cx}"))
        return L
    a("v_and_b32 v27, 15, v1")
    a("v_lshrrev_b32 v29, 1, v27"); a("v_xor_b32 v29, v29, v11"); a("v_lshlrev_b32 v29, 4, v29"); a("v_lshl_add_u32 v29, v27, 7, v29")
    a("s_and_b32 s3, s28, 1"); a("s_lshl_b32 s3, s3, 6"); a("v_xor_b32 v29, s3, v29")
    a(f"v_add_u32 v{vRd[0]}, s48, v29"); a("v_xor_b32 v29, 64, v29"); a(f"v_add_u32 v{vRd[1]}, s48, v29")
    a("v_lshrrev_b32 v29, 2, v27"); a("v_cmp_eq_u32 vcc, v29, v11")
    a("v_lshlrev_b32 v30, 2, v1"); a("v_add_u32 v30, 512, v30")
    a("v_cndmask_b32 v29, v30, v10, vcc"); a(f"v_add_u32 v{vSTW}, s48, v29")
    a("v_and_b32 v29, 1, v1"); a("v_cmp_eq_u32 s[68:69], 1, v29")
    a("v_and_b32 v29, 2, v1"); a("v_cmp_eq_u32 s[86:87], 2, v29")
    a("v_mov_b32 v28, 0x3f803f80")
    for i in range(4): a(f"v_accvgpr_write_b32 {R(ONES+i)}, v28")
    for t in range(5):
        a(f"v_cmp_eq_u32 vcc, {t}, v27"); a("v_cndmask_b32 v29, 0, v28, vcc")
        for e in range(4): a(f"v_accvgpr_write_b32 {R(OH+4*t+e)}, v29")
    a("v_and_b32 v27, 7, v1"); a("v_lshlrev_b32 v27, 4, v27"); a("v_lshl_add_u32 v27, v11, 7, v27")
    for p in range(4):
        a(f"s_xor_b32 s3, s28, {p}"); a("s_mul_i32 s56, s3, 5120"); a(f"v_add_u32 v{vTB[p]}, s56, v8")
        a("s_mul_i32 s56, s3, 2560"); a(f"s_add_u32 s56, s56, {BQ}"); a(f"v_add_u32 v{vTQ[p]}, s56, v8"); a("s_add_u32 s56, s56, 2048"); a(f"v_add_u32 v{vTQ2[p]}, s56, v27")
    a(f"s_mov_b32 s60, {hx(LOG2E)}"); a(f"s_mov_b32 s61, {hx(1e-6)}")
    a(f"s_mov_b32 s63, {hx(1.0/640)}"); a(f"s_mov_b32 s64, {hx(1e-5)}")
    a("s_lshl_b32 s55, s27, 8"); a(f"s_add_u32 s55, s55, {F0}")
    a("v_lshlrev_b32 v26, 2, v1")
    a("s_lshl_b32 s3, s26, 4"); a("s_lshl_b32 s56, s28, 2"); a("s_add_u32 s3, s3, s56"); a("s_add_u32 s3, s3, s55")
    NX0 = P("NX0", 3); NX1 = P("NX1", 10)
    for cx in range(NX0):
        for f in ldx(cx): f()
    a.wait(vm="SLD")
    a.stamp("sld")
    for n in range(3):
        for h in range(2): a(f"ds_read_b64_tr_b16 {R(32 + 4*n + 2*h, 2)}, v84 offset:{1024*n + 256*h}")
    a("s_waitcnt lgkmcnt(0)")
    for n in range(3): a.vmem(f"buffer_store_dwordx4 {R(32 + 4*n, 4)}, v{vSA[n]}, s[40:43], s54 offen sc1", "SL")
    a.vmem("global_load_dword v6, v5, s[22:23] sc1", "TAG")
    lq = sum([ldx(cx) for cx in range(NX0, NX1)], [])
    per = (len(lq) + NX0 - 1)//NX0
    for cx in range(NX0):
        for f in lq[:per]: f()
        lq = lq[per:]
        a.wait(vm=f"X{cx}")
        for f in transp(cx): f()
    a.wait(vm="TAG")
    a("v_readfirstlane_b32 s76, v6"); a("s_mov_b32 s78, 0")
    a("L_tp1:")
    a("s_cmp_lg_u32 s76, 0"); a("s_cbranch_scc1 L_tp1_ok")
    a("global_load_dword v6, v5, s[22:23] sc1"); a("s_add_u32 s78, s78, 1"); a("s_waitcnt vmcnt(0)")
    a("v_readfirstlane_b32 s76, v6")
    a(f"s_cmp_lt_u32 s78, {POLLMAX}"); a("s_cbranch_scc1 L_tp1")
    a("L_tp1_ok:")
    a("s_getreg_b32 s77, hwreg(HW_REG_XCC_ID)"); a("s_and_b32 s77, s77, 7"); a("s_or_b32 s77, s77, s76")
    a("s_lshl_b32 s57, s26, 7"); a("s_lshl_b32 s56, s27, 2"); a("s_add_u32 s57, s57, s56"); a(f"s_add_u32 s57, s57, {F1R}")
    a("s_cmp_eq_u32 s28, 0"); a("s_cselect_b32 s57, s57, 0x40000000"); a("v_mov_b32 v27, s77")
    a("s_mov_b64 exec, 1"); a.vmem("buffer_store_dword v6, v5, s[40:43], s3 offen sc1"); a.vmem("buffer_store_dword v27, v5, s[40:43], s57 offen sc1"); a("s_mov_b64 exec, -1")
    a.stamp("F0pub")
    def rp_fin(nt, RG):
        pitch = nt*32
        a("v_bfe_u32 v28, v1, 2, 2"); a("v_lshl_add_u32 v27, v11, 3, v28"); a("v_and_b32 v28, 3, v1")
        a(f"v_mul_u32_u24 v29, {pitch}, v27"); a("v_add_u32 v29, s71, v29")
        a("v_lshl_add_u32 v30, v28, 3, v29"); a("v_lshl_add_u32 v29, v28, 4, v29")
        for t in range(nt):
            for h in range(2):
                if t == nt - 1: a(f"ds_read_b64_tr_b16 {R(RG + 4*t + 2*h, 2)}, v30 offset:{h*4*pitch + 32*t}")
                else: a(f"ds_read_b64_tr_b16 {R(RG + 4*t + 2*h, 2)}, v29 offset:{h*4*pitch + 64*(t>>1) + 8*(t&1)}")
        if nt == 7:
            a("v_mov_b32 v28, 0x3f803f80")
            for t in (5, 6):
                a(f"v_cmp_eq_u32 vcc, {4*t}, v10")
                for e in range(4): a(f"v_cndmask_b32 v{RG+28+4*(t-5)+e}, 0, v28, vcc")
        a("s_waitcnt lgkmcnt(0)")
        if nt == 7:
            for t in range(7): a(MF(RG+36, RG + 4*t, OH + 4*t if t < 5 else RG+28+4*(t-5), t == 0))
    def rp_store(nt, RG):
        for t in range(nt):
            a(f"buffer_store_dwordx4 {R(RG + 4*t, 4)}, v{8 if t < 4 else 12}, s[40:43], s74 offen offset:{1024*(t&3)} sc1")
        if nt == 7:
            a("v_lshlrev_b32 v29, 4, v11"); a("v_lshl_add_u32 v29, v10, 4, v29"); a("v_cndmask_b32 v29, v2, v29, s[66:67]")
            a("s_lshl_b32 s3, s70, 9"); a(f"s_add_u32 s3, s3, {C1P}")
            a(f"buffer_store_dwordx4 {R(RG+36, 4)}, v29, s[40:43], s3 offen sc1")
        else:
            for _ in range(3): a("buffer_store_dword v5, v2, s[40:43], 0 offen")
    def acc(tt, t): return ACC + (tt*5 + t)*4
    def statm(k):
        L = []
        for tt in range(2):
            L.append(MF(GR + 4*tt, xf(tt, k), xf(tt, k), k == 0)); L.append(MF(RSM + 4*tt, ONES, xf(tt, k), k == 0))
        return L
    def breads1(s):
        j, p = divmod(s, 4); L = []
        for t in range(5):
            L.append(lambda t=t: a.ds(f"ds_read_b128 {R(BF + (s&1)*20 + t*4, 4)}, v{vTB[p]} offset:{(j % 3)*20480 + t*1024}", f"R{s}"))
        if j == 2: L.append(f"v_add_u32 v{vTB[p]}, 61440, v{vTB[p]}")
        return L
    def ldb(j):
        def one(i):
            if i == 0: a(f"s_add_u32 m0, s52, {j*20480}"); a("s_add_u32 s57, s54, m0")
            if i == 4: a(f"s_add_u32 m0, s52, {j*20480 + 4096}")
            a.vmem(f"buffer_load_dwordx4 v{8 if i < 4 else 12}, s[40:43], s57 offen offset:{1024*(i&3)} sc1 lds", f"B{j}")
        return [lambda i=i: one(i) for i in range(5)]
    def ldq():
        def one(i):
            if i == 11: a("s_cmp_eq_u32 s28, 3"); a("s_cbranch_scc1 L_noq")
            a(f"s_mul_i32 s98, s28, 13312"); a(f"s_add_u32 m0, s98, {BQ + i*1024}"); a("s_add_u32 s98, s54, m0")
            a.a(f"buffer_load_dwordx4 v8, s[40:43], s98 offen sc1 lds")
            if i < 11: a.vm.append("BQ")
            if i == 12: a("L_noq:")
        return [lambda i=i: one(i) for i in range(11)] + [lambda: (one(11), one(12))]
    def ldt1():
        a("v_lshlrev_b32 v27, 1, v0"); a("s_add_u32 s56, s30, T1_tab-L_pc"); a("s_addc_u32 s57, s31, 0")
        a.vmem(f"global_load_ushort v{vT1}, v27, s[56:57]", "T1")
    def kv_mf(s):
        mf = []
        for t in range(5):
            b = BF + (s&1)*20 + t*4
            for tt in range(2): mf.append(MF(acc(tt, t), xf(tt, s), b, s == 0))
            if s % 4 == 0: mf.append(MF(CSA, OH + 4*t, b, s == 0 and t == 0))
        return mf
    RS = 96; MS = 104; RT = 112; MT = 114; CSV = 116
    URG = 116
    def flagtouch():
        a(f"s_add_u32 s3, s58, {G_FL}"); a("s_bfm_b64 exec, 8, 0"); a.vmem("buffer_load_dword v4, v3, s[40:43], s3 offen"); a("s_mov_b64 exec, -1")
    for f in sum([ldx(cx) for cx in range(NX1, 10)], []) + [ldt1, flagtouch]: f()
    UPOS = P("UPOS", NX0)
    sq = 0
    for cx in range(NX0, 10):
        if cx == UPOS: unit_issue()
        a.wait(vm=f"X{cx}")
        a.wait(lg=f"T{cx-1}")
        mf = []
        n_ = 3 if sq + 3 <= 2*cx else 2*cx - sq
        for _ in range(n_): mf += statm(sq); sq += 1
        a.interleave(mf, transp(cx))
    a.stamp("xdone")
    a("s_mov_b32 s78, 0")
    a("L_h0p:")
    a("buffer_load_dword v16, v26, s[40:43], s55 offen sc1"); a("s_waitcnt vmcnt(0)")
    a("v_cmp_ne_u32 vcc, s76, v16")
    a("s_cbranch_vccz L_h0ok")
    a("s_add_u32 s78, s78, 1"); a(f"s_cmp_lt_u32 s78, {POLLMAX}"); a("s_cbranch_scc1 L_h0p")
    a("L_h0ok:")
    a.vm = []
    a.stamp("F0ok")
    for f in ldb(0): f()
    for f in ldb(1): f()
    a.wait(lg="all")
    while sq < 20:
        for x in statm(sq): a(x)
        sq += 1
    a("s_cmp_eq_u32 s72, 2"); a("s_cbranch_scc1 L_rp_f5")
    rp_fin(7, URG); a("s_branch L_rp_done")
    a("L_rp_f5:"); rp_fin(5, URG)
    a("L_rp_done:")
    for tt in range(2):
        for e in range(4): a(f"v_accvgpr_read_b32 v{160+e}, {R(GR + 4*tt + e)}")
        a(f"v_accvgpr_read_b32 v164, {R(RSM + 4*tt)}")
        for x in ["v_cndmask_b32 v160, v160, v161, s[68:69]", "v_cndmask_b32 v162, v162, v163, s[68:69]", "v_mul_f32 v164, s63, v164",
                  "v_cndmask_b32 v160, v160, v162, s[86:87]", "v_mul_f32 v160, s63, v160", "v_fma_f32 v160, -v164, v164, v160",
                  "v_max_f32 v160, 0, v160", "v_add_f32 v160, s64, v160", "v_rsq_f32 v160, v160", "v_mul_f32 v164, v164, v160"]: a(x)
        a.ds(f"ds_write_b32 v{vSTW}, v160 offset:{64*tt}"); a.ds(f"ds_write_b32 v{vSTW}, v164 offset:{128 + 64*tt}")
    a("v_lshlrev_b32 v28, 4, v11"); a("v_add_u32 v28, s48, v28"); a("v_add_u32 v29, s48, v10")
    for tt in range(2):
        a.ds(f"ds_read_b128 {R(RS + 4*tt, 4)}, v28 offset:{64*tt}"); a.ds(f"ds_read_b128 {R(MS + 4*tt, 4)}, v28 offset:{128 + 64*tt}")
        a.ds(f"ds_read_b32 v{RT + tt}, v29 offset:{64*tt}"); a.ds(f"ds_read_b32 v{MT + tt}, v29 offset:{128 + 64*tt}")
    NBE = P("NBE", 3)
    for j in range(2, NBE):
        for f in ldb(j): f()
    a("s_lshl_b32 s73, s70, 9"); a(f"s_add_u32 s73, s73, {C1P}")
    a("s_cmp_eq_u32 s72, 2"); a("s_cselect_b32 s75, 0x40000000, s74"); a("s_cselect_b32 s73, 0x40000000, s73")
    a("v_lshlrev_b32 v85, 4, v11"); a("v_lshl_add_u32 v85, v10, 4, v85"); a("v_cndmask_b32 v85, v2, v85, s[66:67]")
    def ust(t):
        if t < 7: a.vmem(f"buffer_store_dwordx4 {R(URG + 4*t, 4)}, v{8 if t < 4 else 12}, s[40:43], s{74 if t < 5 else 75} offen offset:{1024*(t&3)} sc1", "US")
        else: a.vmem(f"buffer_store_dwordx4 {R(URG+36, 4)}, v85, s[40:43], s73 offen sc1", "US")
    a("s_and_b32 s59, s27, 7"); a("s_lshl_b32 s59, s59, 9"); a(f"s_add_u32 s59, s59, {FU}")
    a("s_lshr_b32 s3, s27, 3"); a("s_lshl_b32 s3, s3, 4"); a("s_add_u32 s3, s3, s26"); a("s_lshl_b32 s3, s3, 2"); a("s_add_u32 s3, s3, s28"); a("s_lshl_b32 s3, s3, 2"); a("s_add_u32 s70, s3, s59")
    a.wait(vm="B0")
    a("s_barrier")
    a.stamp("bP")
    a("s_mov_b32 s94, s60"); a("s_mov_b32 s95, s60"); a("s_mov_b32 s96, s61"); a("s_mov_b32 s97, s61")
    for f in breads1(0): a.run(f)
    def pretouch():
        if "sc1h" in OPT:
            a(f"s_add_u32 s3, s58, {G_FL}"); a("s_bfm_b64 exec, 4, 0"); a.vmem("buffer_load_dword v4, v3, s[40:43], s3 offen"); a("s_mov_b64 exec, -1")
            return
        a("s_mul_i32 s3, s27, 21056"); a("s_add_u32 s3, s3, s58"); a("s_mul_i32 s56, s28, 5376"); a("s_add_u32 s3, s3, s56")
        a("s_bfm_b64 exec, 42, 0"); a.vmem("buffer_load_dword v4, v3, s[40:43], s3 offen"); a("s_mov_b64 exec, -1")
    FB3 = 156
    a("s_and_b32 s3, s27, 7"); a("s_mul_i32 s3, s3, 20"); a("s_add_u32 s3, s3, s28"); a("s_mul_i32 s65, s3, 5120"); a(f"s_add_u32 s65, s65, {WOP}")
    def ldwo(n, t):
        a.vmem(f"buffer_load_dwordx4 {R(FB3 + (n*5+t)*4, 4)}, v{8 if t < 4 else 12}, s[40:43], s65 offen offset:{1024*(t&3)} sc1", "WO")
        if t == 4: a("s_add_u32 s65, s65, 20480")
    def ldfu():
        a("v_lshlrev_b32 v31, 3, v1")
        a.vmem("buffer_load_dwordx2 v[92:93], v31, s[40:43], s59 offen sc1", "FU")
    def chkfu():
        a.wait(vm="FU")
        a("s_mov_b32 s78, 0")
        a("L_fu:")
        a("v_cmp_ne_u32 vcc, s76, v92"); a("v_cmp_ne_u32 s[84:85], s76, v93")
        a("s_or_b64 vcc, vcc, s[84:85]"); a("s_cbranch_scc0 L_fu_ok")
        a("s_add_u32 s78, s78, 1"); a(f"s_cmp_ge_u32 s78, {POLLMAX}"); a("s_cbranch_scc1 L_fu_ok")
        a("buffer_load_dwordx2 v[92:93], v31, s[40:43], s59 offen sc1"); a("s_waitcnt vmcnt(0)")
        a("s_branch L_fu")
        a("L_fu_ok:")
    q_ = ldq(); mix = []
    if "usfirst" in OPT:
        mix = [lambda i=i: ust(i) for i in range(8)] + q_
    else:
        for i in range(12):
            mix.append(q_[i])
            if i < 8: mix.append(lambda i=i: ust(i))
    ldlist = sum([ldb(j) for j in range(NBE, 5)], [])
    MS0 = P("MS0", 6); MR = P("MR", 1)
    a.bgq = mix
    SFU = P("SFU", 18)
    LEND = P("LEND", 16)
    CT = 116
    for s in range(20):
        j, p = divmod(s, 4)
        if p == 3 and j < 4:
            a.wait(vm=f"B{j+1}"); a("s_barrier")
        if s == SFU:
            a.wait(vm="US")
            a("s_mov_b64 exec, 1"); a.vmem("buffer_store_dword v6, v5, s[40:43], s70 offen sc1"); a("s_mov_b64 exec, -1")
        if s == 18:
            a.wait(lg="CSW"); a("s_barrier")
        a.wait(lg=f"R{s}")
        mf = kv_mf(s)
        front = breads1(s+1) if s < 19 else []
        side = []
        if s == 17:
            side += ["s_lshl_b32 s3, s28, 9", f"s_add_u32 s3, s3, {CSX}", "v_add_u32 v27, s3, v8"]
            side.append(lambda: (a("s_bfm_b64 exec, 32, 0"), a.ds(f"ds_write_b128 v27, {R(CSA, 4)}", "CSW"), a("s_mov_b64 exec, -1")))
        if s == 18:
            assert a.vm.count("US") == 8
            side += ["v_lshlrev_b32 v27, 2, v10", f"v_add_u32 v27, {CSX}, v27"]
            for w in range(4):
                side.append(lambda w=w: a.ds(f"ds_read_b128 {R(CT + 4*w, 4)}, v27 offset:{512*w}"))
                side.append(lambda w=w: a.ds(f"ds_read_b32 v{CT + 16 + w}, v27 offset:{512*w + 256}", "CSR"))
        if s == 19:
            side.append(lambda: a.wait(lg="CSR"))
            for e in range(4):
                side += [f"v_add_f32 v{CT+e}, v{CT+e}, v{CT+4+e}", f"v_add_f32 v{CT+8+e}, v{CT+8+e}, v{CT+12+e}", f"v_add_f32 v{CT+20+e}, v{CT+e}, v{CT+8+e}"]
            side += [f"v_add_f32 v{CT+16}, v{CT+16}, v{CT+17}", f"v_add_f32 v{CT+18}, v{CT+18}, v{CT+19}", f"v_add_f32 v{CT+24}, v{CT+16}, v{CT+18}"]
        side += ldlist[:3]; ldlist = ldlist[3:]
        if s >= MS0: side = [lambda: a.bg(1)]*MR + side
        a.interleave(mf, side, front)
    CSV = CT + 20
    a.stamp("kvend")
    OP = 116; TP = 72
    FUC = P("FUC", 14)
    if FUC < 4: ldfu()
    KBG = P("KBG", 1)
    for t in range(5):
        for tt in range(2):
            b_ = acc(tt, t)
            cp = CSV + t; cpe = cp & ~1; sel = cp & 1
            for h in range(2):
                x = b_ + 2*h
                a(f"v_pk_mul_f32 v[{TP+2*h}:{TP+2*h+1}], v[{MS+4*tt+2*h}:{MS+4*tt+2*h+1}], v[{cpe}:{cpe+1}] op_sel:[0,{sel}] op_sel_hi:[1,{sel}]")
            for h in range(2):
                x = b_ + 2*h
                a(f"v_pk_fma_f32 v[{x}:{x+1}], v[{x}:{x+1}], v[{RS+4*tt+2*h}:{RS+4*tt+2*h+1}], v[{TP+2*h}:{TP+2*h+1}] neg_lo:[0,0,1] neg_hi:[0,0,1]")
            if t <= 2: phi4(a, b_, TP, sel_mask=("s[66:67]" if t == 2 else None))
            for h in range(2):
                a(f"v_cvt_pk_bf16_f32 v{OP + 4*t + 2*tt + h}, v{acc(tt, t) + 2*h}, v{acc(tt, t) + 2*h + 1}")
            if t*2 + tt == SFU - 20:
                a.wait(vm="US")
                a("s_mov_b64 exec, 1"); a.vmem("buffer_store_dword v6, v5, s[40:43], s70 offen sc1"); a("s_mov_b64 exec, -1")
            if t*2 + tt == FUC - 4: ldfu()
            if t*2 + tt == FUC: chkfu(); a.bgq += [lambda n=n, t=t: ldwo(n, t) for n in range(5) for t in range(5)]
            a.bg(KBG)
    while "BQdone" not in a.vm and a.vm.count("BQ") < 11 or (a.bgq and a.bgq[0] is q_[11]): a.bg(1)
    KVD = 32
    for p, (ta, tb) in enumerate(PAIRS):
        a(MF(KVD + 4*p, OP + 4*ta, ONES if tb < 0 else OP + 4*tb, True))
    a("s_mul_i32 s3, s28, 10240"); a("v_add_u32 v27, s3, v8")
    for p in range(10): a(f"ds_write_b128 v27, {R(KVD + 4*p, 4)} offset:{1024*p}")
    a("s_lshl_b32 s3, s27, 4"); a("s_add_u32 s3, s3, s26"); a("s_lshl_b32 s3, s3, 12"); a(f"s_add_u32 s3, s3, {PART}")
    a("v_cmp_gt_u32 vcc, 216, v0"); a("v_cndmask_b32 v9, v2, v9, vcc")
    a.wait(lg="all")
    a("s_barrier")
    for w in range(4): a(f"ds_read_b128 {R(56 + 4*w, 4)}, v{vT1} offset:{10240*w}")
    a("s_waitcnt lgkmcnt(0)")
    for e in (0, 2):
        a(f"v_pk_add_f32 v[{56+e}:{57+e}], v[{56+e}:{57+e}], v[{60+e}:{61+e}]"); a(f"v_pk_add_f32 v[{64+e}:{65+e}], v[{64+e}:{65+e}], v[{68+e}:{69+e}]")
    for e in (0, 2): a(f"v_pk_add_f32 v[{56+e}:{57+e}], v[{56+e}:{57+e}], v[{64+e}:{65+e}]")
    if "p16" in OPT:
        a("v_cvt_pk_bf16_f32 v56, v56, v57"); a("v_cvt_pk_bf16_f32 v57, v58, v59"); a("v_lshrrev_b32 v9, 1, v9")
        a.vmem(f"buffer_store_dwordx2 v[56:57], v9, s[40:43], s3 offen sc1", "PST")
    else:
        a.vmem(f"buffer_store_dwordx4 v[56:59], v9, s[40:43], s3 offen sc1", "PST")
    ldfu()
    a("s_lshr_b32 s48, s27, 3"); a("s_and_b32 s49, s27, 7")
    a("v_lshrrev_b32 v13, 1, v11"); a("v_lshlrev_b32 v13, 8, v13"); a("v_lshl_add_u32 v13, v10, 2, v13")
    a("v_and_b32 v28, 1, v11"); a("v_lshl_add_u32 v13, v28, 3, v13")
    a("v_mul_u32_u24 v14, 320, v10"); a("v_lshl_add_u32 v15, v11, 3, v14"); a("v_lshl_add_u32 v14, v11, 4, v14")
    a("s_lshl_b32 s50, s48, 2"); a("s_add_u32 s50, s50, s28")
    a("s_lshl_b32 s3, s26, 3"); a("s_add_u32 s3, s3, s50"); a("s_mul_i32 s51, s3, 20480"); a("s_mul_i32 s3, s49, 160"); a("s_add_u32 s51, s51, s3")
    a("s_mul_i32 s53, s27, 27"); a("s_lshr_b32 s53, s53, 2")
    a("s_mul_i32 s55, s27, 143360"); a(f"s_add_u32 s55, s55, {W1P}")
    srd(a, 36, 14, 3456)
    a("v_lshlrev_b32 v23, 4, v11"); a("v_lshl_add_u32 v26, v10, 4, v23")
    a("s_lshl_b32 s62, s27, 2"); a("s_add_u32 s62, s62, s28"); a("s_lshl_b32 s62, s62, 7")
    a("s_lshl_b32 s56, s26, 7"); a("s_add_u32 s56, s56, 8192")
    a("v_mov_b32 v27, s62"); a("v_mov_b32 v28, s56"); a("v_cndmask_b32 v17, v27, v28, s[88:89]"); a("v_add_u32 v17, v17, v10")
    a("s_lshl_b32 s3, s26, 2"); a("s_add_u32 s3, s3, s62"); a(f"s_add_u32 s3, s3, {F1}")
    a.wait(vm="PST")
    a("s_mov_b64 exec, 1"); a.vmem("buffer_store_dword v6, v5, s[40:43], s3 offen sc1"); a("s_mov_b64 exec, -1")
    a("s_barrier")
    a.stamp("b7")
    chkfu(); a.bgq += [lambda n=n, t=t: ldwo(n, t) for n in range(5) for t in range(5)]
    FB3 = 156; RES = 116; C1R = 126; T2R = 146
    B1A = A0 + 204
    W1T = A0 + 100
    def w1dma(i):
        a(f"s_mul_i32 s98, s28, {24*1024}"); a(f"s_add_u32 m0, s98, {i*1024}"); a("s_add_u32 s98, s55, m0")
        a.vmem(f"buffer_load_dwordx4 v8, s[40:43], s98 offen sc1 lds", "W1")
    def w1tail(i):
        a(f"s_mul_i32 s98, s28, {11*1024}"); a(f"s_add_u32 s98, s98, {(96+i)*1024}"); a("s_add_u32 s98, s55, s98")
        a.vmem(f"buffer_load_dwordx4 {R(W1T + 4*i, 4)}, v8, s[40:43], s98 offen sc1", "W1")
    def ldsmall():
        a("v_lshlrev_b32 v31, 5, v1"); a("s_add_u32 s98, s30, T2_tab-L_pc"); a("s_addc_u32 s99, s31, 0")
        a.vmem(f"global_load_dwordx4 {R(T2R, 4)}, v31, s[98:99]"); a.vmem(f"global_load_dwordx2 {R(T2R+4, 2)}, v31, s[98:99] offset:16")
    def ldres(q):
        if q == 0: a.vmem(f"buffer_load_dwordx4 {R(RES, 4)}, v14, s[32:35], s51 offen")
        if q == 1: a.vmem(f"buffer_load_dwordx4 {R(RES+4, 4)}, v14, s[32:35], s51 offen offset:64")
        if q == 2: a.vmem(f"buffer_load_dwordx2 {R(RES+8, 2)}, v15, s[32:35], s51 offen offset:128", "RES")
    def ldb1():
        a("v_lshlrev_b32 v31, 3, v11"); a("s_lshl_b32 s98, s53, 5")
        for p in range(3): a.vmem(f"buffer_load_dwordx4 {R(B1A + 4*p, 4)}, v23, s[36:39], s98 offen offset:{64*p}")
        a.vmem(f"buffer_load_dwordx2 {R(B1A + 12, 2)}, v31, s[36:39], s98 offen offset:192")
    def ldc1():
        a("s_mul_i32 s98, s27, 20"); a("s_mul_i32 s99, s28, 5"); a("s_add_u32 s98, s98, s99"); a("s_lshl_b32 s98, s98, 9"); a(f"s_add_u32 s98, s98, {C1P}")
        a("s_mov_b64 exec, s[66:67]")
        for n in range(5): a.vmem(f"buffer_load_dwordx4 {R(C1R + 4*n, 4)}, v26, s[40:43], s98 offen offset:{512*n} sc1", "C1")
        a("s_mov_b64 exec, -1")
    def hidtouch():
        a("s_mul_i32 s98, s27, 27648"); a("s_add_u32 s98, s98, s58"); a(f"s_add_u32 s98, s98, {G_HID}"); a("s_mul_i32 s99, s28, 6912"); a("s_add_u32 s98, s98, s99")
        a("s_bfm_b64 exec, 54, 0"); a.vmem("buffer_load_dword v4, v3, s[40:43], s98 offen"); a("s_mov_b64 exec, -1")
    ldsmall()
    a.bgq += [lambda q=q: ldres(q) for q in range(3)] + [ldb1, ldc1] + [lambda i=i: w1dma(i) for i in range(24)]
    QA = 32
    def qreads(s):
        j, p = divmod(s, 4)
        return [lambda t=t: a.ds(f"ds_read_b128 {R(BF + (s%3)*12 + t*4, 4)}, v{vTQ[p] if t < 2 else vTQ2[p]} offset:{j*10240 + (t&1)*1024}", f"Q{s}") for t in range(3)]
    for f in qreads(0) + qreads(1): f()
    a(f"s_mov_b32 s56, {F1}")
    QSTOP = P("QSTOP", 16)
    for s in range(20):
        j, p = divmod(s, 4)
        if s == 18: a.wait(lg="CQW"); a("s_barrier")
        a.wait(lg=f"Q{s}")
        mf = []
        for t in range(3):
            b = BF + (s%3)*12 + t*4
            for tt in range(2): mf.append(MF(QA + (tt*3+t)*4, b, xf(tt, s), s == 0))
            if p == 0: mf.append(MF(CSQ, b, OH + 4*t, s == 0 and t == 0))
        front = qreads(s+2) if s < 18 else []
        side = []
        if s < QSTOP: side += [lambda: a.bg(1)]*P("QBG", 1)
        if s == 17:
            side.append(lambda: a.vmem("buffer_load_dword v16, v17, s[40:43], s56 offen sc1", "POLL1"))
            side += ["s_lshl_b32 s3, s28, 9", f"s_add_u32 s3, s3, {CSX}", "v_add_u32 v27, s3, v26"]
            side.append(lambda: (a("s_mov_b64 exec, s[66:67]"), a.ds(f"ds_write_b128 v27, {R(CSQ, 4)}", "CQW"), a("s_mov_b64 exec, -1")))
        if s == 18:
            side += [f"v_add_u32 v30, {CSX}, v23"]
            for w, base in ((0, 56), (1, 68), (2, 96)):
                for t in range(3): side.append(lambda w=w, t=t, base=base: a.ds(f"ds_read_b128 {R(base + 4*t, 4)}, v30 offset:{512*w + 64*t}", "CQR"))
        if s == 19:
            side.append(lambda: a.wait(lg="CQR"))
            for x in range(12): side.append(f"v_add_f32 v{56+x}, v{56+x}, v{68+x}")
            for t in range(3): side.append(lambda t=t: a.ds(f"ds_read_b128 {R(68 + 4*t, 4)}, v30 offset:{1536 + 64*t}", "CQR"))
        a.interleave(mf, side, front)
    a.stamp("qend")
    a.wait(vm="POLL1")
    a("s_mov_b32 s78, 0")
    a("L_h1p:")
    a("v_and_b32 v28, 0xfffffff8, v16"); a("v_cmp_ne_u32 vcc, s76, v28")
    a("s_cbranch_vccz L_h1ok")
    a("s_add_u32 s78, s78, 1"); a(f"s_cmp_ge_u32 s78, {POLLMAX}"); a("s_cbranch_scc1 L_h1ok")
    a("buffer_load_dword v16, v17, s[40:43], s56 offen sc1"); a("s_waitcnt vmcnt(0)")
    a("s_branch L_h1p")
    a("L_h1ok:")
    a.stamp("h1ok")
    a.vm = []
    a("v_cmp_ne_u32 vcc, s77, v16"); a("s_and_b64 vcc, vcc, s[88:89]"); a("s_cselect_b32 s79, 0, 1")
    if os.environ.get("FORCESLOW"): a("s_mov_b32 s79, 0")
    P0 = A0
    a("s_lshl_b32 s3, s27, 16"); a(f"s_add_u32 s3, s3, {PART}")
    for r_ in range(16):
        if "p16" in OPT: a.vmem(f"buffer_load_dwordx2 {R(P0 + 4*r_, 2)}, v9, s[40:43], s3 offen sc1", f"P{r_}")
        else: a.vmem(f"buffer_load_dwordx4 {R(P0 + 4*r_, 4)}, v9, s[40:43], s3 offen sc1", f"P{r_}")
        a("s_add_u32 s3, s3, 4096")
    a.bgq += [lambda i=i: w1tail(i) for i in range(11)]
    for x in range(0, 12, 2): a(f"v_pk_add_f32 v[{56+x}:{57+x}], v[{56+x}:{57+x}], v[{96+x}:{97+x}]")
    a.wait(lg="all")
    for x in range(0, 12, 2): a(f"v_pk_add_f32 v[{56+x}:{57+x}], v[{56+x}:{57+x}], v[{68+x}:{69+x}]")
    PQR = 96
    EBG = P("EBG", 2)
    for tt in range(2):
        for t in range(3):
            b_ = QA + (tt*3+t)*4
            for h in range(2):
                a(f"v_pk_mul_f32 v[{TP+2*h}:{TP+2*h+1}], v[{56+4*t+2*h}:{57+4*t+2*h}], v[{MT}:{MT+1}] op_sel:[0,{tt}] op_sel_hi:[1,{tt}]")
            for h in range(2):
                x = b_ + 2*h
                a(f"v_pk_fma_f32 v[{x}:{x+1}], v[{x}:{x+1}], v[{RT}:{RT+1}], v[{TP+2*h}:{TP+2*h+1}] op_sel:[0,{tt},0] op_sel_hi:[1,{tt},1] neg_lo:[0,0,1] neg_hi:[0,0,1]")
            phi4(a, b_, TP)
            for h in range(2):
                d = f"v{PQR + tt*6 + t*2 + h}"
                a(f"v_cvt_pk_bf16_f32 {d}, v{QA + (tt*3+t)*4 + 2*h}, v{QA + (tt*3+t)*4 + 2*h + 1}")
                if t == 2: a(f"v_cndmask_b32 {d}, 0, {d}, s[90:91]")
            a.bg(EBG)
    OSC = SCR
    TA = 56
    for s_ in range(12):
        src = T2R + s_//2
        if s_ & 1: a(f"v_lshrrev_b32 v{TA+s_}, 16, v{src}")
        else: a(f"v_and_b32 v{TA+s_}, 0xffff, v{src}")
        a(f"v_add_u32 v{TA+s_}, {OSC}, v{TA+s_}")
    for r_ in range(16):
        if r_ % 4 == 0: a.wait(vm=f"P{r_+3}")
        if "p16" in OPT:
            b_ = 32 if r_ == 0 else 36
            for e in range(2): a(f"v_accvgpr_read_b32 v{40+e}, {R(P0+4*r_+e)}")
            for e in range(2): a(f"v_lshlrev_b32 v{b_+2*e}, 16, v{40+e}"); a(f"v_and_b32 v{b_+2*e+1}, 0xffff0000, v{40+e}")
        else:
            for e in range(4): a(f"v_accvgpr_read_b32 v{(32 if r_ == 0 else 36)+e}, {R(P0+4*r_+e)}")
        if r_:
            for e in (0, 2): a(f"v_pk_add_f32 v[{32+e}:{33+e}], v[{32+e}:{33+e}], v[{36+e}:{37+e}]")
        if r_ % 4 == 3: a.bg(EBG)
    a("v_cvt_pk_bf16_f32 v18, v32, v33"); a("v_cvt_pk_bf16_f32 v19, v34, v35")
    a("v_cmp_gt_u32 vcc, 210, v0")
    a("v_cndmask_b32 v18, 0, v18, vcc"); a("v_cndmask_b32 v19, 0, v19, vcc")
    a("v_lshlrev_b32 v27, 3, v0"); a(f"v_add_u32 v27, {OSC}, v27")
    a("ds_write_b64 v27, v[18:19]")
    a("s_waitcnt lgkmcnt(0)")
    a("s_barrier")
    a.stamp("b9")
    KF = A0 + 64
    for E in range(4):
        for ta in range(3): a(f"ds_read_b64 {R(KF + 8*E + 2*ta, 2)}, v{TA + 3*E + ta}")
    a("s_mul_i32 s3, s28, 40960"); a("s_mul_i32 s56, s27, 1280"); a("s_add_u32 s3, s3, s56"); a("s_add_u32 s3, s3, s58")
    a("v_lshlrev_b32 v27, 2, v10"); a("v_lshl_add_u32 v27, v11, 3, v27")
    a("v_cndmask_b32 v27, v2, v27, s[90:91]")
    a("s_waitcnt lgkmcnt(0)")
    D = 32
    for tt in range(2):
        for E in (3, 0, 1, 2):
            d = R(D + (tt*4+E)*4, 4)
            a(f"v_mfma_f32_16x16x32_bf16 {d}, {R(KF + 8*E, 4)}, {R(PQR + 6*tt, 4)}, 0")
    for tt in range(2):
        for E in (3, 0, 1, 2):
            d = R(D + (tt*4+E)*4, 4)
            a(f"v_mfma_f32_16x16x16_bf16 {d}, {R(KF + 8*E + 4, 2)}, {R(PQR + 6*tt + 4, 2)}, {d}")
    for tt in range(2):
        z = D + (tt*4+3)*4
        a(f"v_add_f32 v20, s61, v{z}"); a(f"v_add_f32 v21, s61, v{z+1}")
        a("v_rcp_f32 v20, v20"); a("v_rcp_f32 v21, v21")
        a("v_cndmask_b32 v22, v21, v20, s[92:93]"); a("v_cndmask_b32 v28, v21, v20, s[90:91]")
        ob = 64 + 8*tt
        for E, rc in ((0, 22), (1, 28), (2, 21)):
            d = D + (tt*4+E)*4
            for e in range(4): a(f"v_mul_f32 v{d+e}, v{d+e}, v{rc}")
            a(f"v_cvt_pk_bf16_f32 v{ob + 2*E}, v{d}, v{d+1}"); a(f"v_cvt_pk_bf16_f32 v{ob + 2*E + 1}, v{d+2}, v{d+3}")
        a.vmem(f"buffer_store_dwordx4 {R(ob, 4)}, v8, s[40:43], s3 offen{HS}", "ST")
        a.vmem(f"buffer_store_dwordx2 {R(ob + 4, 2)}, v27, s[40:43], s3 offen offset:1024{HS}", "ST")
        a("s_add_u32 s3, s3, 20480")

    def hop(n, before, after_pub, post=0, touch=None, post2=0):
        before()
        a(f"s_add_u32 s59, s58, {G_FL + 128*n}")
        a("s_lshl_b32 s3, s27, 2"); a("s_add_u32 s3, s3, s59")
        a.bg(post)
        a.wait(vm="ST")
        if touch and "notouch" not in OPT: touch()
        a("s_barrier")
        a.stamp(f"hop{n}a")
        a("s_cmp_lg_u32 s28, 0"); a(f"s_cbranch_scc1 L_g{n}np")
        a("s_mov_b64 exec, 1")
        a("s_cmp_eq_u32 s79, 0"); a(f"s_cbranch_scc1 L_g{n}slow")
        a("buffer_store_dword v6, v5, s[40:43], s3 offen")
        a(f"s_branch L_g{n}pd")
        a(f"L_g{n}slow:")
        a("buffer_store_dword v6, v5, s[40:43], s3 offen sc1")
        a(f"L_g{n}pd:")
        a("s_mov_b64 exec, -1")
        a(f"L_g{n}np:")
        after_pub()
        a.bg(post2)
        a("s_cmp_lg_u32 s28, 0"); a(f"s_cbranch_scc1 L_g{n}j")
        a("s_mov_b32 s78, 0")
        a(f"L_g{n}p:")
        a("buffer_load_dword v27, v10, s[40:43], s59 offen sc1")
        a("s_add_u32 s78, s78, 1")
        a("s_waitcnt vmcnt(0)")
        a("v_cmp_ne_u32 vcc, s76, v27")
        a(f"s_cmp_ge_u32 s78, {POLLMAX}"); a(f"s_cbranch_scc1 L_g{n}x")
        a(f"s_cbranch_vccnz L_g{n}p")
        a(f"L_g{n}x:")
        a(f"L_g{n}j:")
        a("s_barrier")
        a.stamp(f"hop{n}b")
    def a_off(NK, goff):
        for m in range(4):
            a(f"s_add_u32 s3, s28, {m}"); a("s_and_b32 s3, s3, 3"); a("s_lshl_b32 s57, s48, 2"); a("s_add_u32 s3, s3, s57")
            a(f"s_mul_i32 s3, s3, {NK}"); a("s_add_u32 s3, s3, s28"); a("s_lshl_b32 s3, s3, 10"); a("s_add_u32 s3, s3, s58"); a(f"s_add_u32 s{80+m}, s3, {goff}")
    def ctouch(lab, nl):
        def f():
            a("s_lshl_b32 s98, s27, 2"); a("s_add_u32 s98, s98, s28"); a(f"s_mul_i32 s98, s98, {128*nl}"); a(f"s_add_u32 s98, s98, {lab}-L_pc")
            a("v_add_u32 v31, s98, v3"); a(f"s_bfm_b64 exec, {nl}, 0")
            a.vmem("global_load_dword v4, v31, s[30:31]"); a("s_mov_b64 exec, -1")
        return f
    if "noct" not in OPT: a.bgq.insert(0, ctouch("L_cS4", 2))
    def flush_wo():
        while any(True for _ in [0]) and a.bgq and len(a.bgq) > 24 + 11: a.bg(1)
    def bef0():
        a_off(20, G_O)
        a("s_mul_i32 s99, s28, 40960"); a("s_mul_i32 s56, s27, 1280"); a("s_add_u32 s99, s99, s56"); a("s_add_u32 s99, s99, s58")
        a("v_mul_u32_u24 v28, 20480, v11"); a("v_lshl_add_u32 v28, v10, 5, v28")
    def tch0():
        a("s_mov_b64 exec, 0x03ff03ff"); a.vmem("buffer_load_dword v4, v28, s[40:43], s99 offen sc1"); a("s_mov_b64 exec, -1")
    hop(0, bef0, lambda: None, post=0, touch=tch0, post2=P("POST0", 10))
    flush_wo()
    ACC = 32 ; FA3 = A0
    for n in range(5):
        for m in range(4):
            a.vmem(f"buffer_load_dwordx4 {R(FA3 + (n*4+m)*4, 4)}, v8, s[40:43], s{80+m} offen sc1", f"A{n}")
            a(f"s_add_u32 s{80+m}, s{80+m}, 4096")
    if "sc1hid" not in OPT: a.bgq.insert(0, hidtouch)
    RED = 102400
    def red_addr():
        for m in range(1, 4):
            a(f"s_add_u32 s3, s28, {m}"); a("s_and_b32 s3, s3, 3"); a("s_mul_i32 s3, s3, 15360"); a(f"s_add_u32 s3, s3, {RED}")
            a(f"v_add_u32 v{16+m}, s3, v8")
        a("s_mul_i32 s3, s28, 15360"); a(f"s_add_u32 s3, s3, {RED}"); a("v_add_u32 v16, s3, v8")
    def init_acc(srcs):
        for t in range(5):
            for e in range(4):
                for q, src0 in enumerate(srcs):
                    src = src0 + 2*t + (e >> 1); d = ACC+4*t+e if q == 0 else 27
                    if e & 1: a(f"v_and_b32 v{d}, 0xffff0000, v{src}")
                    else: a(f"v_lshlrev_b32 v{d}, 16, v{src}")
                    if q: a(f"v_add_f32 v{ACC+4*t+e}, v{ACC+4*t+e}, v27")
    def last_step(mfn):
        order = [(m, t) for m in (1, 2, 3, 0) for t in range(5)]
        for i, (m, t) in enumerate(order):
            a(mfn(m, t))
            if i >= 5:
                m2, t2 = order[i-5]
                a(f"ds_write_b128 v{16+m2}, {R(ACC + (m2*5+t2)*4, 4)} offset:{(m2-1)*5120 + t2*1024}")
    red_addr()
    if "RES" in a.vm: a.wait(vm="RES")
    init_acc([RES])
    S3BG = P("S3BG", 3)
    for n in range(5):
        a.wait(vm=f"A{n}")
        if n == 4:
            last_step(lambda m, t: MF(ACC + (m*5+t)*4, FB3 + (n*5+t)*4, FA3 + (n*4+m)*4, False)); a.bg(S3BG)
        else:
            mf = [MF(ACC + (m*5+t)*4, FB3 + (n*5+t)*4, FA3 + (n*4+m)*4, n == 0 and m > 0) for m in range(4) for t in range(5)]
            a.interleave(mf, [lambda: a.bg(1)]*S3BG)
    a.stamp("s3end")
    a("L_cS4:")
    HF = A0; BF = A0 + 160
    NA = P("NA", 4); BS = 4*max(NA, 7 - NA)
    if NA == 4:
        slots = [156 + 4*i for i in range(16)] + [A0 + 192 + 4*i for i in range(3)] + [A0 + 220 + 4*i for i in range(9)] + [HF + 4*i for i in range(40)] + [BF + 4*i for i in range(2)]
        NEARLY = 28
        arA = [A0 + 168 + 4*i for i in range(6)] + [A0 + 204 + 4*i for i in range(4)]
    elif NA == 7:
        for x in range(14): a(f"v_accvgpr_mov_b32 {R(A0 + 240 + x)}, {R(B1A + x)}")
        B1A = A0 + 240
        slots = [156 + 4*i for i in range(16)] + [A0 + 216 + 4*i for i in range(6)] + [HF + 4*i for i in range(40)] + [BF + 4*i for i in range(8)]
        NEARLY = 22
        arA = [A0 + 192 + 4*i for i in range(6)] + [A0 + 240 + 4*i for i in range(4)]
    else:
        for x in range(14): a(f"v_accvgpr_mov_b32 {R(A0 + 240 + x)}, {R(B1A + x)}")
        B1A = A0 + 240
        slots = [156 + 4*i for i in range(16)] + [A0 + 208 + 4*i for i in range(8)] + [HF + 4*i for i in range(40)] + [BF + 4*i for i in range(6)]
        NEARLY = 24
        arA = [A0 + 184 + 4*i for i in range(6)] + [A0 + 240 + 4*i for i in range(4)]
    def fb(n, t): return slots[n*5 + t]
    a("s_mul_i32 s3, s49, 54"); a("s_add_u32 s3, s3, s28"); a("s_mul_i32 s54, s3, 5120"); a(f"s_add_u32 s54, s54, {W2P}")
    def ldw2(n, t):
        if n == 13 and t == 0:
            a("s_cmp_ge_u32 s28, 2"); a("s_cselect_b32 s98, 0x40000000, 0"); a("s_add_u32 s54, s54, s98")
        a.vmem(f"buffer_load_dwordx4 {R(fb(n, t), 4)}, v{8 if t < 4 else 12}, s[40:43], s54 offen offset:{1024*(t&3)} sc1", f"W2_{n}")
        if t == 4: a("s_add_u32 s54, s54, 20480")
    w2q = [(n, t) for n in range(14) for t in range(5)]
    nw1left = len(a.bgq)
    def w2bg():
        ldw2(*w2q.pop(0))
    a.bgq += [w2bg]*NEARLY
    def reduce_epi(which, BIA=None, nbg=0):
        a.bg(2*nbg)
        a("s_waitcnt lgkmcnt(0)")
        a("s_barrier")
        for t in range(5):
            for m in range(1, 4): a(f"ds_read_b128 {R(ACC + (m*5+t)*4, 4)}, v16 offset:{(m-1)*5120 + t*1024}")
        for t in range(5):
            a(f"s_waitcnt lgkmcnt({12 - 3*t})")
            for e in (0, 2):
                x0 = ACC + 4*t + e
                a(f"v_pk_add_f32 v[{x0+20}:{x0+21}], v[{x0+20}:{x0+21}], v[{x0+40}:{x0+41}]"); a(f"v_pk_add_f32 v[{x0}:{x0+1}], v[{x0}:{x0+1}], v[{x0+60}:{x0+61}]")
            for e in (0, 2):
                x0 = ACC + 4*t + e
                a(f"v_pk_add_f32 v[{x0}:{x0+1}], v[{x0}:{x0+1}], v[{x0+20}:{x0+21}]")
            for h in range(2): a(f"v_cvt_pk_bf16_f32 v{RES+2*t+h}, v{ACC+4*t+2*h}, v{ACC+4*t+2*h+1}")
            if which == 3:
                if t == 1: a.vmem(f"buffer_store_dwordx4 {R(RES, 4)}, v8, s[40:43], s57 offen{HS}")
                if t == 3: a.vmem(f"buffer_store_dwordx4 {R(RES+4, 4)}, v8, s[40:43], s57 offen offset:1024{HS}")
                if t == 4: a.vmem(f"buffer_store_dwordx2 {R(RES+8, 2)}, v13, s[40:43], s57 offen offset:2048{HS}")
    a("s_mul_i32 s57, s50, 20480"); a("s_mul_i32 s3, s49, 2560"); a("s_add_u32 s57, s57, s3"); a("s_add_u32 s57, s57, s58"); a(f"s_add_u32 s57, s57, {G_H}")
    reduce_epi(3, nbg=P("R3BG", 3))
    a(f"v_pk_add_f32 v[28:29], v[{ACC}:{ACC+1}], v[{ACC+2}:{ACC+3}]"); a(f"v_pk_mul_f32 v[30:31], v[{ACC}:{ACC+1}], v[{ACC}:{ACC+1}]"); a(f"v_pk_fma_f32 v[30:31], v[{ACC+2}:{ACC+3}], v[{ACC+2}:{ACC+3}], v[30:31]")
    for x in range(4, 20, 2):
        a(f"v_pk_add_f32 v[28:29], v[28:29], v[{ACC+x}:{ACC+x+1}]"); a(f"v_pk_fma_f32 v[30:31], v[{ACC+x}:{ACC+x+1}], v[{ACC+x}:{ACC+x+1}], v[30:31]")
    a("v_add_f32 v20, v28, v29"); a("v_add_f32 v21, v30, v31")
    def red_g(regs, tmp):
        for r_ in regs:
            a(f"v_mov_b32 {tmp}, {r_}"); a(f"v_permlane32_swap_b32 {r_}, {tmp}"); a(f"v_add_f32 {r_}, {r_}, {tmp}")
            a(f"v_mov_b32 {tmp}, {r_}"); a(f"v_permlane16_swap_b32 {r_}, {tmp}"); a(f"v_add_f32 {r_}, {r_}, {tmp}")
    red_g(["v20", "v21"], "v22")
    a("v_lshlrev_b32 v22, 1, v10")
    a("s_lshl_b32 s57, s50, 10"); a("s_lshl_b32 s3, s49, 7"); a("s_add_u32 s57, s57, s3"); a("s_add_u32 s57, s57, s58"); a(f"s_add_u32 s57, s57, {G_ST}")
    a.vmem(f"buffer_store_dwordx2 v[20:21], v22, s[40:43], s57 offen{HS}", "ST")
    CS = 128; CSL = 144384
    def bef3():
        a("s_mul_i32 s3, s28, 40960"); a("s_add_u32 s3, s3, s58"); a(f"s_add_u32 s80, s3, {G_H}"); a("s_add_u32 s81, s80, 20480")
        a("s_lshl_b32 s82, s28, 11"); a("s_add_u32 s82, s82, s58"); a(f"s_add_u32 s82, s82, {G_ST}")
        a("v_lshlrev_b32 v19, 8, v11"); a("v_lshl_add_u32 v19, v10, 1, v19")
        a("v_add_u32 v16, 57344, v8"); a("v_add_u32 v17, 114688, v8")
        a(f"s_mul_i32 s3, s28, {11*1024}"); a(f"s_add_u32 s3, s3, {96*1024}"); a("v_add_u32 v18, s3, v8")
        for e in range(4):
            a(f"v_add_f32 v{C1R+e}, v{C1R+e}, v{C1R+4+e}"); a(f"v_add_f32 v{C1R+8+e}, v{C1R+8+e}, v{C1R+12+e}")
            a(f"v_add_f32 v{C1R+e}, v{C1R+e}, v{C1R+16+e}"); a(f"v_add_f32 v{C1R+e}, v{C1R+e}, v{C1R+8+e}")
        a("s_lshl_b32 s3, s28, 9"); a(f"s_add_u32 s3, s3, {CSL}"); a("v_add_u32 v29, s3, v26")
    def aft3():
        if "W1" in a.vm: a.wait(vm="W1")
        for i in range(11): a(f"ds_write_b128 v18, {R(W1T + 4*i, 4)} offset:{1024*i}")
        a("s_mov_b64 exec, s[66:67]"); a(f"ds_write_b128 v29, {R(C1R, 4)}"); a("s_mov_b64 exec, -1")
        a("s_waitcnt lgkmcnt(0)")
    left1 = max(0, len(a.bgq) - len([1 for x in a.bgq if x is w2bg]))
    print("w1 left at hop3:", left1, "w2 issued:", 70 - len(w2q), file=sys.stderr)
    def tch1():
        a("s_mul_i32 s99, s50, 20480"); a("s_mul_i32 s98, s49, 2560"); a("s_add_u32 s99, s99, s98"); a("s_add_u32 s99, s99, s58"); a(f"s_add_u32 s99, s99, {G_H}")
        a("s_mov_b64 exec, 0xfffff"); a.vmem("buffer_load_dword v4, v3, s[40:43], s99 offen sc1"); a("s_mov_b64 exec, -1")
    hop(1, bef3, aft3, post=left1, touch=tch1, post2=max(0, P("POST1", 6) - left1))
    def hf(tt, k): return HF + (k*2 + tt)*4
    def ldh(k):
        def one(tt):
            a.vmem(f"buffer_load_dwordx4 {R(hf(tt, k), 4)}, v8, s[40:43], s{80+tt} offen offset:{1024*(k&3)} sc1", f"H{k}")
            if (k & 3) == 3: a(f"s_add_u32 s{80+tt}, s{80+tt}, 4096")
        return [lambda tt=tt: one(tt) for tt in range(2)]
    PRE = P("PRE4", 6)
    for k in range(PRE):
        for f in ldh(k): f()
    for tt in range(2):
        for q in range(2):
            a.vmem(f"buffer_load_dwordx2 {R(88 + 4*tt + 2*q, 2)}, v19, s[40:43], s82 offen offset:{1024*tt + 128*q} sc1", "STAT")
    def breads(ps, k):
        ts = range(NA) if ps == 0 else range(NA, 7)
        return [lambda t=t: a.ds(f"ds_read_b128 {R(BF + (k&1)*BS + 4*(t - ts[0]), 4)}, v{[8, 16, 17][k >> 3]} offset:{(k & 7)*7168 + 1024*t}", f"BR{ps}_{k}") for t in ts]
    for f in breads(0, 0): f()
    vS = [20, 21]; vQ = [24, 25]
    a(f"v_add_u32 v18, {CSL}, v23")
    hq = list(range(PRE, 20))
    B1U = 220
    c1 = -2.0*LOG2E*0.7978845608028654
    c2 = c1*0.044715
    a(f"s_mov_b32 s60, {hx(c1)}"); a(f"s_mov_b32 s61, {hx(c2)}")
    a("s_mul_i32 s56, s28, 110592"); a("s_lshl_b32 s3, s53, 9"); a("s_add_u32 s56, s56, s3"); a("s_add_u32 s56, s56, s58"); a(f"s_add_u32 s56, s56, {G_HID}"); a("s_add_u32 s57, s56, 55296")
    for k in range(20):
        a.wait(vm=f"H{k}", lg=f"BR0_{k}")
        front = breads(0, k+1) if k < 19 else (breads(1, 0) if NA < 7 else [])
        side = []
        if NA == 7:
            if hq:
                for _ in range(P("HRATE", 2)):
                    if hq: side += ldh(hq.pop(0))
            else:
                side += [w2bg]*max(0, min(P("ABG", 2), len(w2q), NEARLY + 2*k - (70 - len(w2q))))
        elif hq: side += ldh(hq.pop(0))
        else: side += [lambda: a.bg(1)]*P("ABG", 1)
        if 1 <= k < 8:
            kk = k - 1; tb = 96 if kk % 2 == 0 else 220
            side.append(lambda kk=kk: a.wait(lg=f"CG{kk}"))
            for e in range(4):
                side += [f"v_add_f32 v{CS+4*kk+e}, v{CS+4*kk+e}, v{tb+e}", f"v_add_f32 v{tb+4+e}, v{tb+4+e}, v{tb+8+e}", f"v_add_f32 v{CS+4*kk+e}, v{CS+4*kk+e}, v{tb+4+e}"]
        if k < 7:
            tb = 96 if k % 2 == 0 else 220
            for w in range(4): front.append(lambda w=w, k=k, tb=tb: a.ds(f"ds_read_b128 {R((CS + 4*k) if w == 0 else (tb - 4 + 4*w), 4)}, v18 offset:{512*w + 64*k}", f"CG{k}"))
        if k == PRE + 2:
            for tt in range(2):
                side.append(f"v_add_f32 v{vS[tt]}, v{88+4*tt}, v{90+4*tt}"); side.append(f"v_add_f32 v{vQ[tt]}, v{89+4*tt}, v{91+4*tt}")
            side.append(lambda: red_g([f"v{x}" for x in vS + vQ], "v22"))
        if k == PRE + 3:
            for tt in range(2):
                s_, q_ = f"v{vS[tt]}", f"v{vQ[tt]}"
                side += [f"v_mul_f32 {s_}, s63, {s_}", f"v_mul_f32 {q_}, s63, {q_}", f"v_fma_f32 {q_}, -{s_}, {s_}, {q_}", f"v_max_f32 {q_}, 0, {q_}",
                         f"v_add_f32 v22, s64, {q_}", f"v_fma_f32 {q_}, v22, s64, {q_}", f"v_rsq_f32 {q_}, {q_}", f"v_mul_f32 {s_}, {s_}, {q_}"]
            side += ["v_mov_b32 v252, s60", "v_mov_b32 v253, s60", "s_mov_b32 s96, s61", "s_mov_b32 s97, s61"]
        if k >= 12:
            x = 2*(k - 12)
            for y in (x, x + 1):
                if y < 14:
                    side += [f"v_accvgpr_read_b32 v27, {R(B1A + y)}", f"v_lshlrev_b32 v{B1U+2*y}, 16, v27", f"v_and_b32 v{B1U+2*y+1}, 0xffff0000, v27"]
        mf = [MF(ACC + (tt*7+t)*4, BF + (k&1)*BS + 4*t, hf(tt, k), k == 0) for t in range(NA) for tt in range(2)]
        a.interleave(mf, side, front)
    a.stamp("s4A")
    if "noct" not in OPT: ctouch("L_cS5", 1)()
    PK = 88
    def gelu(tt, t, pk=False):
        L = []
        if pk:
            b_ = ACC + (tt*7+t)*4
            pr = lambda x: f"v[{x}:{x+1}]"
            for h in (0, 2): L.append(f"v_pk_fma_f32 {pr(248+h)}, v[20:21], {pr(CS+4*t+h)}, {pr(B1U+4*t+h)} op_sel:[{tt},0,0] op_sel_hi:[{tt},1,1] neg_lo:[1,0,0] neg_hi:[1,0,0]")
            for h in (0, 2): L.append(f"v_pk_fma_f32 {pr(b_+h)}, {pr(b_+h)}, v[24:25], {pr(248+h)} op_sel:[0,{tt},0] op_sel_hi:[1,{tt},1]")
            for h in (0, 2): L.append(f"v_pk_mul_f32 {pr(248+h)}, {pr(b_+h)}, {pr(b_+h)}")
            for h in (0, 2): L.append(f"v_pk_fma_f32 {pr(248+h)}, {pr(248+h)}, s[96:97], v[252:253]")
            for h in (0, 2): L.append(f"v_pk_mul_f32 {pr(248+h)}, {pr(248+h)}, {pr(b_+h)}")
            for e in range(4): L.append(f"v_exp_f32 v{248+e}, v{248+e}")
            for h in (0, 2): L.append(f"v_pk_add_f32 {pr(248+h)}, {pr(248+h)}, 1.0 op_sel_hi:[1,0]")
            for e in range(4): L.append(f"v_rcp_f32 v{248+e}, v{248+e}")
            for h in (0, 2): L.append(f"v_pk_mul_f32 {pr(b_+h)}, {pr(b_+h)}, {pr(248+h)}")
        else:
            for e in range(4):
                v_ = f"v{ACC + (tt*7+t)*4 + e}"; ta = f"v{248+e}"
                L += [f"v_fma_f32 {ta}, -v{vS[tt]}, v{CS+4*t+e}, v{B1U+4*t+e}", f"v_fma_f32 {v_}, {v_}, v{vQ[tt]}, {ta}", f"v_mul_f32 {ta}, {v_}, {v_}",
                      f"v_fma_f32 {ta}, {ta}, s61, v252", f"v_mul_f32 {ta}, {ta}, {v_}", f"v_exp_f32 {ta}, {ta}"]
            for e in range(4):
                ta = f"v{248+e}"; L += [f"v_add_f32 {ta}, 1.0, {ta}"]
            for e in range(4):
                ta = f"v{248+e}"; L += [f"v_rcp_f32 {ta}, {ta}"]
            for e in range(4):
                v_ = f"v{ACC + (tt*7+t)*4 + e}"; L.append(f"v_mul_f32 {v_}, {v_}, v{248+e}")
        for h in range(2):
            x0 = ACC + (tt*7+t)*4 + 2*h
            L.append(f"v_cvt_pk_bf16_f32 v{PK + tt*14 + 2*t + h}, v{x0}, v{x0+1}")
        if t & 1: L.append(lambda: a.vmem(f"buffer_store_dwordx4 {R(PK + tt*14 + 2*(t-1), 4)}, v8, s[40:43], s{56+tt} offen offset:{512*(t-1)}{HS2}", "ST" if t > 3 else "ST01"))
        if t == 6: L.append(lambda: a.vmem(f"buffer_store_dwordx2 {R(PK + tt*14 + 12, 2)}, v13, s[40:43], s{56+tt} offen offset:3072{HS2}", "ST"))
        return L
    gl = []
    for p in range(NA//2 if NA < 7 else 0):
        for tt in range(2): gl += gelu(tt, 2*p, "pkB" in OPT) + gelu(tt, 2*p+1, "pkB" in OPT)
    a.bgq = []
    W2RATE = P("W2RATE", 2)
    for k in range(20 if NA < 7 else 0):
        a.wait(lg=f"BR1_{k}")
        front = breads(1, k+1) if k < 19 else []
        q = (len(gl) + 19 - k)//(20 - k) if k > 0 else 0
        side = gl[:q]; gl = gl[q:]
        nin = max(0, min(W2RATE, len(w2q), NEARLY + 2*k - (70 - len(w2q))))
        for i_ in range(nin): side.insert((i_ + 1)*len(side)//(nin + 1), w2bg)
        mf = [MF(ACC + (tt*7+t)*4, BF + (k&1)*BS + 4*(t-NA), hf(tt, k), k == 0) for t in range(NA, 7) for tt in range(2)]
        a.interleave(mf, side, front)
    a.stamp("s4B")
    a("L_cS5:")
    W2EPI = P("W2EPI", 2)
    seq = [(0, 4), (0, 5), (1, 4), (1, 5), (0, 6), (1, 6)] if NA == 4 else [(0, 6), (1, 6)]
    if NA == 7: seq = [(tt, 2*p + q) for p in range(3) for tt in range(2) for q in range(2)] + [(0, 6), (1, 6)]
    for i_, (tt, t) in enumerate(seq):
        L = gelu(tt, t, True)
        if i_ == P("HT", 99):
            a("v_and_b32 v28, 1, v11"); a("v_mul_u32_u24 v28, 55296, v28"); a("v_lshl_add_u32 v28, v10, 5, v28")
            a.wait(vm="ST01")
            a("s_bfm_b64 exec, 32, 0"); a.vmem("buffer_load_dword v4, v28, s[40:43], s56 offen sc1"); a("s_mov_b64 exec, -1")
        for j_, x in enumerate(L):
            a.run(x)
            if i_ < P("W2STOP", 4) and j_ in (6, 16)[:W2EPI] and w2q: ldw2(*w2q.pop(0))
    BIA = 126
    def bef4():
        srd(a, 32, 20, 2621440); srd(a, 36, 18, 1280)
        a_off(54, G_HID)
        a("v_lshlrev_b32 v28, 3, v11"); a("s_mul_i32 s3, s49, 160")
        a.vmem(f"buffer_load_dwordx4 {R(BIA, 4)}, v23, s[36:39], s3 offen")
        a.vmem(f"buffer_load_dwordx4 {R(BIA+4, 4)}, v23, s[36:39], s3 offen offset:64")
        a.vmem(f"buffer_load_dwordx2 {R(BIA+8, 2)}, v28, s[36:39], s3 offen offset:128", "BIA")
    npost = min(P("POST2", 4), len(w2q))
    a.bgq = [lambda x=x: ldw2(*x) for x in w2q[:npost]]; w2q = w2q[npost:]
    print("w2 left after hop4:", len(w2q), file=sys.stderr)
    def tch2():
        a("v_lshrrev_b32 v28, 5, v1"); a("v_mul_u32_u24 v28, 55296, v28"); a("v_and_b32 v29, 31, v1"); a("v_lshl_add_u32 v28, v29, 7, v28")
        a("s_mov_b32 exec_lo, 0x0fffffff"); a("s_mov_b32 exec_hi, 0x0fffffff"); a.vmem("buffer_load_dword v4, v28, s[40:43], s56 offen sc1"); a("s_mov_b64 exec, -1")
    hop(2, bef4, lambda: None, post=0, touch=tch2, post2=npost)
    ar = [136 + 4*i for i in range(5)] + [220 + 4*i for i in range(9)] + arA
    NR = 6
    def fa(n, m): return ar[(n % NR)*4 + m]
    def lda5(n):
        def one(m):
            if n == 13 and m == 0:
                a("s_cmp_ge_u32 s28, 2"); a("s_cselect_b32 s3, 0x40000000, 0")
                for q in range(4): a(f"s_add_u32 s{80+q}, s{80+q}, s3")
            a.vmem(f"buffer_load_dwordx4 {R(fa(n, m), 4)}, v8, s[40:43], s{80+m} offen sc1", f"A5_{n}")
            a(f"s_add_u32 s{80+m}, s{80+m}, 4096")
        return [lambda m=m: one(m) for m in range(4)]
    PRE5 = P("PRE5", 3)
    def need_w2(n):
        L = []
        while w2q and w2q[0][0] <= n:
            x = w2q.pop(0); L.append(lambda x=x: ldw2(*x))
        return L
    for n in range(PRE5):
        for f in need_w2(n) + lda5(n): f()
    def ldbia():
        a("v_lshlrev_b32 v28, 3, v11"); a("s_mul_i32 s3, s49, 160")
        a.vmem(f"buffer_load_dwordx4 {R(BIA, 4)}, v23, s[36:39], s3 offen")
        a.vmem(f"buffer_load_dwordx4 {R(BIA+4, 4)}, v23, s[36:39], s3 offen offset:64")
        a.vmem(f"buffer_load_dwordx2 {R(BIA+8, 2)}, v28, s[36:39], s3 offen offset:128")
    red_addr(); a.wait(vm="BIA"); init_acc([RES, BIA])
    nxt = PRE5
    for n in range(14):
        a.wait(vm=f"A5_{n}")
        side = []; cnt = 0
        while nxt < 14 and nxt <= n + NR - 1 and cnt < 2:
            side += need_w2(nxt) + lda5(nxt); nxt += 1; cnt += 1
        if n == 13:
            last_step(lambda m, t: MF(ACC + (m*5+t)*4, fb(n, t), fa(n, m), False))
        else:
            mf = [MF(ACC + (m*5+t)*4, fb(n, t), fa(n, m), n == 0 and m > 0) for m in range(4) for t in range(5)]
            a.interleave(mf, side)
    a.stamp("s5end")
    reduce_epi(5, BIA)
    a(f"buffer_store_dwordx4 {R(RES, 4)}, v14, s[32:35], s51 offen")
    a(f"buffer_store_dwordx4 {R(RES+4, 4)}, v14, s[32:35], s51 offen offset:64")
    a(f"buffer_store_dwordx2 {R(RES+8, 2)}, v15, s[32:35], s51 offen offset:128")
    a("s_or_b32 s3, s2, s28"); a("s_cmp_lg_u32 s3, 0"); a("s_cbranch_scc1 L_notagclr")
    a("global_store_dword v5, v5, s[22:23] sc1")
    a("L_notagclr:")
    a.stamp("stored")
    if STAMP:
        a("s_waitcnt vmcnt(0)")
        a.stamp("end")
        a("s_memrealtime s[100:101]"); a("s_waitcnt lgkmcnt(0)"); a("v_writelane_b32 v7, s100, 31")
        a("v_writelane_b32 v7, s79, 30")
        a("s_lshl_b32 s3, s2, 2"); a("s_add_u32 s3, s3, s28"); a("s_lshl_b32 s3, s3, 8"); a(f"s_add_u32 s3, s3, {STB}")
        a("v_lshlrev_b32 v27, 2, v1"); a("v_add_u32 v27, s3, v27")
        a("global_store_dword v27, v7, s[24:25]")
        if os.environ.get("DELAY"):
            di = os.environ["DELAY"]
            a(f"s_cmp_lg_u32 s2, {P('DWG', 8)}"); a("s_cbranch_scc1 L_end"); a("s_cmp_lg_u32 s28, 0"); a("s_cbranch_scc1 L_end")
            clk = "s_memrealtime" if di == "rt" else "s_memtime"
            a(f"{clk} s[100:101]"); a("s_waitcnt lgkmcnt(0)")
            if di == "rt":
                a("s_sub_u32 s3, s100, s76")
            else:
                a(f"v_readlane_b32 s3, v7, {di}"); a("v_readlane_b32 s56, v7, 0"); a("s_nop 3"); a("s_sub_u32 s3, s3, s56")
            a("s_lshl_b32 s3, s3, 2"); a("s_min_u32 s3, s3, 0x100000"); a("s_mov_b32 s57, s100")
            a("L_dly:")
            a(f"{clk} s[100:101]"); a("s_waitcnt lgkmcnt(0)"); a("s_sub_u32 s56, s100, s57"); a("s_cmp_lt_u32 s56, s3"); a("s_cbranch_scc1 L_dly")
        a.a.raw("; STAMPS " + " ".join(a.names))
    a("L_end:")
    a("s_endpgm")
    return a.a

def main(out):
    hdr = open("sequential_preLN__linear_attn_block__mixer_channel_mlp__prompt.s.ref").read().split("\n")
    hdr = [l for l in hdr if l.startswith(";") and "@launch" not in l]
    hdr.append("; @launch grid=(256,1,1) block=(256,1,1) lds=163840")
    a = gen()
    pre = '.amdgcn_target "amdgcn-amd-amdhsa--gfx950"\n.text\n'
    T1, T2 = build_tables()
    a.raw(".p2align 6\nT1_tab:")
    a.raw(".short " + ",".join(map(str, T1)))
    a.raw("T2_tab:")
    for row in T2: a.raw(".short " + ",".join(map(str, row)))
    a.raw(".fill 2048, 4, 0")
    a.raw('.section .rodata,"a"\n.p2align 6')
    a.raw(f""".amdhsa_kernel {NAME}
  .amdhsa_next_free_vgpr 512
  .amdhsa_next_free_sgpr 102
  .amdhsa_accum_offset 256
  .amdhsa_group_segment_fixed_size 0
  .amdhsa_kernarg_size 88
  .amdhsa_user_sgpr_count 2
  .amdhsa_user_sgpr_kernarg_segment_ptr 1
  .amdhsa_system_sgpr_workgroup_id_x 1
.end_amdhsa_kernel""")
    open(out, "w").write("\n".join(hdr) + "\n" + pre + a.finish())

if __name__ == "__main__":
    main(sys.argv[1])
```

```python
import sys, struct, os
from asmdsl import Asm, R, S
from gen1 import build_tables, PAIRS, f2u, hx, divmod_const, srd, LOG2E

NAME = "sequential_preLN__linear_attn_block__mixer_channel_mlp__prompt_kernel"
WOP = 0
W2P = WOP + 8*20*5*1024
W1P = W2P + 8*54*5*1024
C1P = W1P + 16*20*7*1024
WQKV = C1P + 320*512
PART = WQKV + 16*153600
GRP = PART + 256*4096
G_O = 0; G_H = 163840; G_ST = 327680; G_FL = 335872; G_HID = 336896; G_SZ = G_HID + 442368
FLG = GRP + 16*G_SZ
F1 = FLG; F1R = FLG + 8192; F0 = FLG + 10240; FU = FLG + 14336
WS_END = FLG + 20480
A0 = 256
STAMP = int(os.environ.get("STAMP", "0"))
STB = 32 << 20
POLLMAX = 1 << 15
OPT = set(os.environ.get("OPT", "").split(","))
def P(name, d): return int(os.environ.get(name, d))

class G:
    def __init__(self):
        self.a = Asm(); self.vm = []; self.lg = []; self.nst = 0; self.bgq = []; self.names = []
    def __call__(self, t): self.a(t)
    def vmem(self, text, tag=None): self.a(text); self.vm.append(tag)
    def ds(self, text, tag=None): self.a(text); self.lg.append(tag)
    def _n(self, lst, tag, cap):
        idx = max(i for i, t in enumerate(lst) if t == tag)
        return min(len(lst) - 1 - idx, cap)
    def wait(self, vm=None, lg=None):
        s = []
        if vm is not None: s.append(f"vmcnt({0 if vm == 'all' else self._n(self.vm, vm, 63)})")
        if lg is not None: s.append(f"lgkmcnt({0 if lg == 'all' else self._n(self.lg, lg, 15)})")
        self.a("s_waitcnt " + " ".join(s))
        if vm == 'all': self.vm = []
        if lg == 'all': self.lg = []
    def stamp(self, name=""):
        if STAMP != 1: return
        i = self.nst; self.nst += 1; self.names.append(name)
        assert i < 29
        self.a("s_memtime s[100:101]"); self.a("s_waitcnt lgkmcnt(0)"); self.a(f"v_writelane_b32 v7, s100, {i}")
    def run(self, x): x() if callable(x) else self.a(x)
    def bg(self, n=1):
        for _ in range(n):
            if self.bgq: self.bgq.pop(0)()
    def interleave(self, main, extra, front=()):
        n = len(main); m = len(extra); j = 0; front = list(front)
        for i, x in enumerate(main):
            self.run(x)
            if front:
                self.run(front.pop(0))
                if len(front) >= n - i and front: self.run(front.pop(0))
            while j < m and (j + 1) * n <= (i + 1) * m + (n - 1):
                self.run(extra[j]); j += 1
        for x in front: self.run(x)
        while j < m:
            self.run(extra[j]); j += 1

def MF(d, a_, b_, first): return f"v_mfma_f32_16x16x32_bf16 {R(d,4)}, {R(a_,4)}, {R(b_,4)}, {'0' if first else R(d,4)}"

def phi(a, val, t1, t2):
    a(f"v_mul_f32 {t1}, s60, {val}")
    a(f"v_max_f32 {t2}, 0, {val}")
    a(f"v_exp_f32_e64 {t1}, {t1} clamp")
    a(f"v_add_f32 {t2}, s61, {t2}")
    a(f"v_add_f32 {val}, {t1}, {t2}")

OPT |= {"sc1h", "sc1hid", "notouch", "usfirst", "ft"}
def phi4(a, b_, T, sel_mask=None):
    for h in range(2): a(f"v_pk_mul_f32 v[{T+2*h}:{T+2*h+1}], v[{b_+2*h}:{b_+2*h+1}], s[94:95]")
    for e in range(4): a(f"v_max_f32 v{T+4+e}, 0, v{b_+e}")
    for e in range(4): a(f"v_exp_f32_e64 v{T+e}, v{T+e} clamp")
    for h in range(2): a(f"v_pk_add_f32 v[{T+4+2*h}:{T+5+2*h}], v[{T+4+2*h}:{T+5+2*h}], s[96:97]")
    if sel_mask is None:
        for h in range(2): a(f"v_pk_add_f32 v[{b_+2*h}:{b_+2*h+1}], v[{T+2*h}:{T+2*h+1}], v[{T+4+2*h}:{T+5+2*h}]")
    else:
        for h in range(2): a(f"v_pk_add_f32 v[{T+2*h}:{T+2*h+1}], v[{T+2*h}:{T+2*h+1}], v[{T+4+2*h}:{T+5+2*h}]")
        for e in range(4): a(f"v_cndmask_b32 v{b_+e}, v{b_+e}, v{T+e}, {sel_mask}")
RPNT = "" if "rpplain" in OPT else " nt"
HS = " sc1"
HS2 = " sc1"
def gen():
    a = G()
    name = NAME
    NRAW = P("NRAW", 2)
    a.a.raw(f".globl {name}\n.p2align 8\n.type {name},@function\n{name}:")
    a("s_cmp_ge_u32 s2, 256"); a("s_cbranch_scc1 L_end")
    a("s_load_dwordx16 s[4:19], s[0:1], 0")
    a("s_load_dwordx4 s[20:23], s[0:1], 64")
    a("s_load_dwordx2 s[24:25], s[0:1], 80")
    a("s_memrealtime s[76:77]")
    a("s_getpc_b64 s[30:31]")
    a("L_pc:")
    a("v_mov_b32 v7, 0")
    a.stamp("start")
    a("v_lshrrev_b32 v2, 6, v0"); a("v_and_b32 v1, 63, v0")
    a("v_readfirstlane_b32 s28, v2")
    if "m48" in OPT:
        a("s_and_b32 s3, s2, 7"); a("s_lshr_b32 s29, s2, 3")
        a("s_lshr_b32 s26, s3, 1"); a("s_lshl_b32 s26, s26, 2"); a("s_lshr_b32 s27, s29, 3"); a("s_add_u32 s26, s26, s27")
        a("s_and_b32 s3, s3, 1"); a("s_lshl_b32 s3, s3, 2"); a("s_and_b32 s27, s29, 3"); a("s_or_b32 s27, s27, s3")
        a("s_and_b32 s29, s29, 4"); a("s_lshl_b32 s29, s29, 1"); a("s_or_b32 s27, s27, s29")
    else:
        a("s_and_b32 s3, s2, 7"); a("s_lshr_b32 s27, s2, 3"); a("s_lshr_b32 s26, s27, 4"); a("s_lshl_b32 s3, s3, 1")
        a("s_add_u32 s26, s26, s3")
        a("s_and_b32 s27, s27, 15")
    a("v_lshlrev_b32 v3, 7, v1")
    if "cp16" in OPT:
        a("s_cmp_lg_u32 s28, 3"); a("s_cbranch_scc1 L_nocp")
        a("s_mul_i32 s3, s27, 2304"); a("v_add_u32 v27, s3, v3"); a("s_bfm_b64 exec, 18, 0")
        a("global_load_dword v4, v27, s[30:31]"); a("s_mov_b64 exec, -1")
    elif "nocp" not in OPT:
        a("s_cmp_lg_u32 s28, 3"); a("s_cbranch_scc1 L_nocp")
        a("s_mul_i32 s3, s27, 13"); a("s_lshr_b32 s3, s3, 6"); a("s_mul_i32 s3, s3, 5"); a("s_sub_u32 s3, s27, s3"); a("s_lshl_b32 s3, s3, 13")
        a("v_add_u32 v27, s3, v3")
        a("global_load_dword v4, v27, s[30:31]")
    a("L_nocp:")
    BQ = 102400; SCR = 153600; CSX = 161792
    vXA = [72, 73, 74, 75]; vW = [76, 77]; vRd = [78, 79]; vTB = [17, 18, 19, 20]; vTQ = [86, 87, 88, 89]; vTQ2 = [90, 91, 21, 22]
    vSA = [80, 81, 82]; vBA = [144, 145, 146, 147, 148]; vTR = [149, 150, 151, 152]
    vT1 = 24; vSTW = 25
    ACC = 32; RAW = 160; XF = A0; BF = A0 + 160; ONES = A0 + 200; GR = A0 + 204; RSM = A0 + 212; OH = A0 + 220; CSA = A0 + 240; CSQ = A0 + 244
    t0, t1, t2, t3 = "v27", "v28", "v29", "v30"
    def early():
        a("v_and_b32 v27, 3, v1"); a("s_lshl_b32 s3, s28, 2"); a("v_add_u32 v27, s3, v27"); a("v_min_u32 v27, 14, v27")
        a("v_lshrrev_b32 v28, 2, v1"); a("v_mul_u32_u24 v28, 3840, v28"); a("v_lshl_add_u32 v28, v27, 4, v28")
        a("v_add_u32 v29, 1280, v28"); a("v_add_u32 v30, 2480, v28"); a("v_subrev_u32 v28, 160, v28")
        a("v_cmp_gt_u32 vcc, 10, v27"); a("s_mul_i32 s50, s26, 153600"); a("s_mul_i32 s51, s27, 80"); a("v_cndmask_b32 v28, v28, v30, vcc")
        a("v_cmp_gt_u32 vcc, 5, v27"); a("s_add_u32 s50, s50, s51"); a("s_mul_i32 s53, s28, 3072"); a("v_cndmask_b32 v83, v28, v29, vcc")
        a(f"s_add_u32 s53, s53, {BQ + 28672}")
        a("s_mul_i32 s3, s26, 163840"); a("s_mul_i32 s56, s27, 10240"); a("s_add_u32 s3, s3, s56"); a("s_mul_i32 s56, s28, 2560"); a("s_add_u32 s57, s3, s56")
        a("v_mov_b32 v5, 0")
    def late():
        a("v_lshlrev_b32 v8, 4, v1"); a("v_lshlrev_b32 v9, 4, v0")
        a("v_and_b32 v10, 15, v1"); a("v_lshlrev_b32 v10, 2, v10")
        a("v_lshrrev_b32 v11, 4, v1"); a("v_add_u32 v12, 4096, v8")
        a("v_lshrrev_b32 v27, 3, v1"); a("v_and_b32 v28, 7, v1"); a("v_mul_u32_u24 v29, 1280, v27")
        a(f"v_lshl_add_u32 v{vXA[0]}, v28, 4, v29")
        for rg in range(1, 4): a(f"v_add_u32 v{vXA[rg]}, {10240*rg}, v{vXA[0]}")
        a("s_lshl_b32 s3, s28, 11"); a(f"s_add_u32 s48, s3, {SCR}")
        a("v_lshrrev_b32 v29, 1, v27"); a("v_xor_b32 v29, v29, v28"); a("v_lshlrev_b32 v29, 4, v29"); a("v_lshl_add_u32 v29, v27, 7, v29")
        a(f"v_add_u32 v{vW[0]}, s48, v29")
        a("v_xor_b32 v29, 64, v29"); a("v_add_u32 v29, 1024, v29"); a(f"v_add_u32 v{vW[1]}, s48, v29")
        a("s_lshl_b32 s49, s26, 7"); a("s_lshl_b32 s3, s28, 5"); a("s_add_u32 s49, s49, s3"); a("s_mul_i32 s49, s49, 1280")
        a("s_lshr_b32 s3, s28, 1"); a("s_lshl_b32 s3, s3, 7"); a("s_add_u32 s62, s49, 128"); a("s_sub_u32 s62, s62, s3"); a("s_add_u32 s49, s49, s3")
        a("s_mul_i32 s52, s28, 5120")
        a(f"s_mul_i32 s58, s26, {G_SZ}"); a(f"s_add_u32 s58, s58, {GRP}")
        a("s_lshl_b32 s70, s28, 4"); a("s_add_u32 s70, s70, s26")
        a(f"s_mul_i32 s71, s28, 7168"); a(f"s_add_u32 s71, s71, {BQ}")
        a("v_mov_b32 v2, 0x7fffffff")
    early()
    if "slowpro" in OPT: late()
    a("s_waitcnt lgkmcnt(0)")
    srd(a, 36, 6, 2457600)
    SLNT = "" if "slplain" in OPT else " nt"
    for i in range(3):
        a(f"s_add_u32 m0, s53, {1024*i}")
        if i == 2: a("s_bfm_b64 exec, 32, 0")
        a.vmem(f"buffer_load_dwordx4 v83, s[36:39], s50 offen{SLNT} lds", "SLD")
        a(f"s_add_u32 s50, s50, {16*3840}")
    srd(a, 32, 4, 2621440); srd(a, 40, 24, WS_END)
    a("s_mov_b64 exec, 0xfffff")
    a.vmem(f"buffer_load_dword v4, v3, s[32:35], s57 offen{' nt' if 'xtnt' in OPT else ''}")
    if "tlb" in OPT:
        a("v_lshlrev_b32 v27, 20, v1"); a("s_bfm_b64 exec, 24, 0")
        a.vmem(f"buffer_load_dword v4, v27, s[40:43], 0 offen")
    if "tlb2" in OPT:
        a("s_mul_i32 s54, s27, 153600"); a(f"s_add_u32 s54, s54, {WQKV}")
        a("v_mul_u32_u24 v27, 51200, v1"); a("v_add_u32 v27, s54, v27"); a(f"v_mov_b32 v28, {F0}"); a("v_cmp_eq_u32 vcc, 3, v1"); a("v_cndmask_b32 v27, v27, v28, vcc")
        a("s_bfm_b64 exec, 4, 0")
        a.vmem(f"buffer_load_dword v4, v27, s[40:43], 0 offen")
        a.vmem("global_load_dword v4, v5, s[22:23] offset:128")
    a("s_mov_b64 exec, -1")
    if STAMP: a("v_writelane_b32 v7, s76, 29")
    a("s_and_b32 s76, s76, 0xfffffff8"); a("s_or_b32 s76, s76, 8")
    a("s_or_b32 s3, s2, s28"); a("s_cmp_lg_u32 s3, 0"); a("s_cbranch_scc1 L_notag")
    a("v_mov_b32 v28, s76"); a("global_store_dword v5, v28, s[22:23] sc1")
    a("L_notag:")
    if "ft" in OPT:
        a("s_cmp_lg_u32 s26, s27"); a("s_cbranch_scc1 L_noft"); a("s_cmp_lg_u32 s28, 1"); a("s_cbranch_scc1 L_noft")
        a("s_mul_i32 s3, s27, 1280"); a(f"s_add_u32 s3, s3, {FLG}")
        a("s_bfm_b64 exec, 10, 0"); a("buffer_load_dword v4, v3, s[40:43], s3 offen sc0 sc1"); a("s_mov_b64 exec, -1")
        a("L_noft:")
    if "nobt" not in OPT:
        a("s_lshl_b32 s3, s27, 2"); a("s_add_u32 s3, s3, s28"); a("s_cmp_lg_u32 s3, 6"); a("s_cbranch_scc1 L_nobt")
        a("s_bfm_b64 exec, 27, 0"); a("global_load_dword v4, v3, s[14:15]")
        a("s_bfm_b64 exec, 10, 0"); a("global_load_dword v4, v3, s[18:19]")
        a("s_mov_b64 exec, -1")
        a("L_nobt:")
    srd(a, 44, 12, 2211840)
    if "slowpro" not in OPT: late()
    def rp_issue(nt, pitch_src, nch):
        for i in range(7):
            if i < nt:
                a(f"v_add_u32 v27, {64*i}, v1")
                divmod_const(a, "v28", "v29", "v27", nch)
                a(f"v_mul_u32_u24 v28, {pitch_src}, v28"); a("v_lshl_add_u32 v28, v29, 4, v28")
                a(f"s_add_u32 m0, s71, {1024*i}")
                a(f"buffer_load_dwordx4 v28, s[44:47], s73 offen{RPNT} lds")
            else:
                a("buffer_load_dword v4, v2, s[44:47], 0 offen")
    def unit_issue():
        a("s_cmp_ge_u32 s70, 20"); a("s_cbranch_scc1 L_rp5")
        a("s_mov_b32 s72, 1")
        a("s_mul_i32 s75, s27, 27"); a("s_lshr_b32 s75, s75, 2"); a("s_lshl_b32 s75, s75, 5")
        a("s_mul_i32 s79, s70, 110592"); a("s_add_u32 s73, s75, s79")
        a("s_mul_i32 s75, s27, 20"); a("s_add_u32 s70, s70, s75")
        a("s_mul_i32 s74, s70, 7168"); a(f"s_add_u32 s74, s74, {W1P}")
        rp_issue(7, 3456, 14)
        a("s_branch L_rp_issued")
        a("L_rp5:")
        a("s_mov_b32 s72, 2")
        a("s_sub_u32 s79, s70, 20"); a("s_lshl_b32 s79, s79, 1"); a("s_lshr_b32 s75, s27, 3"); a("s_add_u32 s79, s79, s75"); a("s_and_b32 s75, s27, 7")
        a("s_cmp_ge_u32 s79, 54"); a("s_cbranch_scc1 L_rpwo")
        srd(a, 44, 16, 2211840)
        a("s_mul_i32 s78, s75, 54"); a("s_add_u32 s78, s78, s79")
        a("s_mul_i32 s74, s78, 5120"); a(f"s_add_u32 s74, s74, {W2P}")
        a("s_branch L_rp5b")
        a("L_rpwo:")
        srd(a, 44, 8, 819200)
        a("s_sub_u32 s79, s79, 54")
        a("s_mul_i32 s78, s75, 20"); a("s_add_u32 s78, s78, s79")
        a("s_mul_i32 s74, s78, 5120"); a(f"s_add_u32 s74, s74, {WOP}")
        a("s_cmp_ge_u32 s79, 20"); a("s_cselect_b32 s74, 0x40000000, s74")
        a("L_rp5b:")
        a("s_mul_i32 s75, s75, 160"); a("s_mul_i32 s79, s79, 40960"); a("s_add_u32 s73, s75, s79")
        rp_issue(5, 1280, 10)
        a("L_rp_issued:")
        a.vm += ["UL"]*7
    def raw(cx, rg): return 96 + (((cx + 1) % 10)*4 + rg)*4
    def xf(tt, k): return XF + (tt*20 + k)*4
    def ldx(cx):
        return [lambda cx=cx, rg=rg: a.vmem(f"buffer_load_dwordx4 {R(raw(cx, rg), 4)}, v{vXA[rg]}, s[32:35], s{62 if cx & 1 else 49} offen offset:{256*(cx>>1)}", f"X{cx}") for rg in range(4)]
    a("v_and_b32 v27, 15, v1")
    a("v_cmp_gt_u32 s[66:67], 8, v27")
    a("v_cmp_gt_u32 s[90:91], 32, v1"); a("v_cmp_gt_u32 s[92:93], 48, v1")
    a("v_cmp_eq_u32 s[88:89], 1, v11")
    a("v_and_b32 v29, 1, v11")
    a("s_lshl_b32 s3, s28, 1"); a("v_add_u32 v29, s3, v29")
    a("v_cmp_gt_u32 s[94:95], 5, v29"); a("v_cmp_eq_u32 s[96:97], 7, v29")
    a("v_lshlrev_b32 v29, 10, v29"); a(f"v_add_u32 v30, {BQ - 5120}, v29"); a("v_cndmask_b32 v29, v30, v29, s[94:95]")
    a("v_lshl_add_u32 v29, v10, 2, v29")
    a("v_mov_b32 v30, 2560"); a("v_mov_b32 v31, 5120"); a("v_cndmask_b32 v30, v30, v31, s[94:95]")
    a("v_mov_b32 v31, 8"); a("v_cndmask_b32 v31, v31, 7, s[96:97]")
    a("s_andn2_b64 s[96:97], s[96:97], s[66:67]")
    a("s_mul_i32 s3, s26, 5")
    a("v_lshrrev_b32 v28, 1, v11"); a("v_add_u32 v28, s3, v28")
    for n in range(3):
        a(f"v_lshrrev_b32 v27, 2, v28"); a(f"v_mad_u32_u24 v{vSA[n]}, v27, v30, v29")
        a("v_and_b32 v27, 3, v28"); a("v_lshlrev_b32 v27, v31, v27"); a(f"v_add_u32 v{vSA[n]}, v{vSA[n]}, v27")
        a(f"v_cndmask_b32 v{vSA[n]}, v{vSA[n]}, v2, s[96:97]")
        if n == 2: a(f"v_cndmask_b32 v{vSA[n]}, v2, v{vSA[n]}, s[90:91]")
        else: a("v_add_u32 v28, 2, v28")
    a("v_lshrrev_b32 v27, 5, v1"); a("v_bfe_u32 v28, v1, 2, 2"); a("v_lshl_add_u32 v27, v27, 3, v28"); a("v_lshlrev_b32 v27, 6, v27")
    a("v_bfe_u32 v28, v1, 4, 1"); a("v_lshl_add_u32 v27, v28, 5, v27"); a("v_and_b32 v28, 3, v1"); a("v_lshl_add_u32 v27, v28, 3, v27")
    a("v_add_u32 v84, s53, v27")
    a("s_mul_i32 s54, s27, 153600"); a(f"s_add_u32 s54, s54, {WQKV}")
    a.wait(vm="SLD")
    a.stamp("sld")
    for n in range(3):
        for h in range(2): a(f"ds_read_b64_tr_b16 {R(96 + 4*n + 2*h, 2)}, v84 offset:{1024*n + 256*h}")
    a("s_waitcnt lgkmcnt(0)")
    for n in range(3): a.vmem(f"buffer_store_dwordx4 {R(96 + 4*n, 4)}, v{vSA[n]}, s[40:43], s54 offen sc1", "SL")
    a.vmem("global_load_dword v6, v5, s[22:23] sc1", "TAG")
    NX0 = P("NX0", 3)
    for cx in range(NX0):
        for f in ldx(cx): f()
    a("v_and_b32 v27, 15, v1")
    a("v_lshrrev_b32 v29, 1, v27"); a("v_xor_b32 v29, v29, v11"); a("v_lshlrev_b32 v29, 4, v29"); a("v_lshl_add_u32 v29, v27, 7, v29")
    a("s_and_b32 s3, s28, 1"); a("s_lshl_b32 s3, s3, 6"); a("v_xor_b32 v29, s3, v29")
    a(f"v_add_u32 v{vRd[0]}, s48, v29"); a("v_xor_b32 v29, 64, v29"); a(f"v_add_u32 v{vRd[1]}, s48, v29")
    a("v_lshrrev_b32 v29, 2, v27"); a("v_cmp_eq_u32 vcc, v29, v11")
    a("v_lshlrev_b32 v30, 2, v1"); a("v_add_u32 v30, 512, v30")
    a("v_cndmask_b32 v29, v30, v10, vcc"); a(f"v_add_u32 v{vSTW}, s48, v29")
    a("v_and_b32 v29, 1, v1"); a("v_cmp_eq_u32 s[68:69], 1, v29")
    a("v_and_b32 v29, 2, v1"); a("v_cmp_eq_u32 s[86:87], 2, v29")
    a("v_mov_b32 v28, 0x3f803f80")
    for i in range(4): a(f"v_accvgpr_write_b32 {R(ONES+i)}, v28")
    for t in range(5):
        a(f"v_cmp_eq_u32 vcc, {t}, v27"); a("v_cndmask_b32 v29, 0, v28, vcc")
        for e in range(4): a(f"v_accvgpr_write_b32 {R(OH+4*t+e)}, v29")
    a("v_and_b32 v27, 7, v1"); a("v_lshlrev_b32 v27, 4, v27"); a("v_lshl_add_u32 v27, v11, 7, v27")
    for p in range(4):
        a(f"s_xor_b32 s3, s28, {p}"); a("s_mul_i32 s56, s3, 5120"); a(f"v_add_u32 v{vTB[p]}, s56, v8")
        a("s_mul_i32 s56, s3, 2560"); a(f"s_add_u32 s56, s56, {BQ}"); a(f"v_add_u32 v{vTQ[p]}, s56, v8"); a("s_add_u32 s56, s56, 2048"); a(f"v_add_u32 v{vTQ2[p]}, s56, v27")
    a(f"s_mov_b32 s60, {hx(LOG2E)}"); a(f"s_mov_b32 s61, {hx(1e-6)}")
    a(f"s_mov_b32 s63, {hx(1.0/640)}"); a(f"s_mov_b32 s64, {hx(1e-5)}")
    a("s_lshl_b32 s55, s27, 8"); a(f"s_add_u32 s55, s55, {F0}")
    a("v_lshlrev_b32 v26, 2, v1")
    a("s_lshl_b32 s3, s26, 4"); a("s_lshl_b32 s56, s28, 2"); a("s_add_u32 s3, s3, s56"); a("s_add_u32 s3, s3, s55")
    a.wait(vm="TAG")
    a("v_readfirstlane_b32 s76, v6"); a("s_mov_b32 s78, 0")
    a("L_tp1:")
    a("s_cmp_lg_u32 s76, 0"); a("s_cbranch_scc1 L_tp1_ok")
    a("global_load_dword v6, v5, s[22:23] sc1"); a("s_add_u32 s78, s78, 1"); a("s_waitcnt vmcnt(0)")
    a("v_readfirstlane_b32 s76, v6")
    a(f"s_cmp_lt_u32 s78, {POLLMAX}"); a("s_cbranch_scc1 L_tp1")
    a("L_tp1_ok:")
    a("s_getreg_b32 s77, hwreg(HW_REG_XCC_ID)"); a("s_and_b32 s77, s77, 7"); a("s_or_b32 s77, s77, s76")
    a("s_lshl_b32 s57, s26, 7"); a("s_lshl_b32 s56, s27, 2"); a("s_add_u32 s57, s57, s56"); a(f"s_add_u32 s57, s57, {F1R}")
    a("s_cmp_eq_u32 s28, 0"); a("s_cselect_b32 s57, s57, 0x40000000"); a("v_mov_b32 v27, s77")
    a("s_mov_b64 exec, 1"); a.vmem("buffer_store_dword v6, v5, s[40:43], s3 offen sc1"); a.vmem("buffer_store_dword v27, v5, s[40:43], s57 offen sc1"); a("s_mov_b64 exec, -1")
    a.stamp("F0pub")
    def rp_fin(nt, RG):
        pitch = nt*32
        a("v_bfe_u32 v28, v1, 2, 2"); a("v_lshl_add_u32 v27, v11, 3, v28"); a("v_and_b32 v28, 3, v1")
        a(f"v_mul_u32_u24 v29, {pitch}, v27"); a("v_add_u32 v29, s71, v29")
        a("v_lshl_add_u32 v30, v28, 3, v29"); a("v_lshl_add_u32 v29, v28, 4, v29")
        for t in range(nt):
            for h in range(2):
                if t == nt - 1: a(f"ds_read_b64_tr_b16 {R(RG + 4*t + 2*h, 2)}, v30 offset:{h*4*pitch + 32*t}")
                else: a(f"ds_read_b64_tr_b16 {R(RG + 4*t + 2*h, 2)}, v29 offset:{h*4*pitch + 64*(t>>1) + 8*(t&1)}")
        if nt == 7:
            a("v_mov_b32 v28, 0x3f803f80")
            for t in (5, 6):
                a(f"v_cmp_eq_u32 vcc, {4*t}, v10")
                for e in range(4): a(f"v_cndmask_b32 v{RG+28+4*(t-5)+e}, 0, v28, vcc")
        a("s_waitcnt lgkmcnt(0)")
        if nt == 7:
            for t in range(7): a(MF(RG+36, RG + 4*t, OH + 4*t if t < 5 else RG+28+4*(t-5), t == 0))
    def rp_store(nt, RG):
        for t in range(nt):
            a(f"buffer_store_dwordx4 {R(RG + 4*t, 4)}, v{8 if t < 4 else 12}, s[40:43], s74 offen offset:{1024*(t&3)} sc1")
        if nt == 7:
            a("v_lshlrev_b32 v29, 4, v11"); a("v_lshl_add_u32 v29, v10, 4, v29"); a("v_cndmask_b32 v29, v2, v29, s[66:67]")
            a("s_lshl_b32 s3, s70, 9"); a(f"s_add_u32 s3, s3, {C1P}")
            a(f"buffer_store_dwordx4 {R(RG+36, 4)}, v29, s[40:43], s3 offen sc1")
        else:
            for _ in range(3): a("buffer_store_dword v5, v2, s[40:43], 0 offen")
    def acc(tt, t): return ACC + (tt*5 + t)*4
    def transp(cx):
        L = []
        for tt in range(2):
            L.append(lambda tt=tt: a.ds(f"ds_write_b128 v{vW[0]}, {R(raw(cx, 2*tt), 4)}"))
            L.append(lambda tt=tt: a.ds(f"ds_write_b128 v{vW[1]}, {R(raw(cx, 2*tt+1), 4)}"))
            L.append(lambda tt=tt: a.ds(f"ds_read_b128 {R(xf(tt, 2*cx), 4)}, v{vRd[0]}"))
            L.append(lambda tt=tt: a.ds(f"ds_read_b128 {R(xf(tt, 2*cx+1), 4)}, v{vRd[1]}", f"T{cx}"))
        return L
    def statm(k):
        L = []
        for tt in range(2):
            L.append(MF(GR + 4*tt, xf(tt, k), xf(tt, k), k == 0)); L.append(MF(RSM + 4*tt, ONES, xf(tt, k), k == 0))
        return L
    def breads1(s):
        j, p = divmod(s, 4); L = []
        for t in range(5):
            L.append(lambda t=t: a.ds(f"ds_read_b128 {R(BF + (s&1)*20 + t*4, 4)}, v{vTB[p]} offset:{(j % 3)*20480 + t*1024}", f"R{s}"))
        if j == 2: L.append(f"v_add_u32 v{vTB[p]}, 61440, v{vTB[p]}")
        return L
    def ldb(j):
        def one(i):
            if i == 0: a(f"s_add_u32 m0, s52, {j*20480}"); a("s_add_u32 s57, s54, m0")
            if i == 4: a(f"s_add_u32 m0, s52, {j*20480 + 4096}")
            a.vmem(f"buffer_load_dwordx4 v{8 if i < 4 else 12}, s[40:43], s57 offen offset:{1024*(i&3)} sc1 lds", f"B{j}")
        return [lambda i=i: one(i) for i in range(5)]
    def ldq():
        def one(i):
            if i == 11: a("s_cmp_eq_u32 s28, 3"); a("s_cbranch_scc1 L_noq")
            a(f"s_mul_i32 s98, s28, 13312"); a(f"s_add_u32 m0, s98, {BQ + i*1024}"); a("s_add_u32 s98, s54, m0")
            a.a(f"buffer_load_dwordx4 v8, s[40:43], s98 offen sc1 lds")
            if i < 11: a.vm.append("BQ")
            if i == 12: a("L_noq:")
        return [lambda i=i: one(i) for i in range(11)] + [lambda: (one(11), one(12))]
    def ldt1():
        a("v_lshlrev_b32 v27, 1, v0"); a("s_add_u32 s56, s30, T1_tab-L_pc"); a("s_addc_u32 s57, s31, 0")
        a.vmem(f"global_load_ushort v{vT1}, v27, s[56:57]", "T1")
    def kv_mf(s):
        mf = []
        for t in range(5):
            b = BF + (s&1)*20 + t*4
            for tt in range(2): mf.append(MF(acc(tt, t), xf(tt, s), b, s == 0))
            if s % 4 == 0: mf.append(MF(CSA, OH + 4*t, b, s == 0 and t == 0))
        return mf
    RS = 96; MS = 104; RT = 112; MT = 114; CSV = 116
    URG = 116
    def flagtouch():
        a(f"s_add_u32 s3, s58, {G_FL}"); a("s_bfm_b64 exec, 8, 0"); a.vmem("buffer_load_dword v4, v3, s[40:43], s3 offen"); a("s_mov_b64 exec, -1")
    lq = sum([ldx(cx) for cx in range(NX0, 10)], []) + [ldt1, flagtouch, unit_issue]
    XR = P("XR", 8)
    for cx in range(10):
        while f"X{cx}" not in a.vm or a.vm.count(f"X{cx}") < 4: lq.pop(0)()
        a.wait(vm=f"X{cx}")
        mf = (statm(2*(cx-1)) + statm(2*(cx-1)+1)) if cx else []
        if cx: a.wait(lg=f"T{cx-1}")
        side = transp(cx) + lq[:XR]; lq = lq[XR:]
        if mf: a.interleave(mf, side)
        else:
            for f in side: f()
    assert not lq
    a.stamp("xdone")
    a("s_mov_b32 s78, 0")
    a("L_h0p:")
    a("buffer_load_dword v16, v26, s[40:43], s55 offen sc1"); a("s_waitcnt vmcnt(0)")
    a("v_cmp_ne_u32 vcc, s76, v16")
    a("s_cbranch_vccz L_h0ok")
    a("s_add_u32 s78, s78, 1"); a(f"s_cmp_lt_u32 s78, {POLLMAX}"); a("s_cbranch_scc1 L_h0p")
    a("L_h0ok:")
    a.vm = []
    a.stamp("F0ok")
    for f in ldb(0): f()
    for f in ldb(1): f()
    a.wait(lg="all")
    for x in statm(18) + statm(19): a(x)
    a("s_cmp_eq_u32 s72, 2"); a("s_cbranch_scc1 L_rp_f5")
    rp_fin(7, URG); a("s_branch L_rp_done")
    a("L_rp_f5:"); rp_fin(5, URG)
    a("L_rp_done:")
    for tt in range(2):
        for e in range(4): a(f"v_accvgpr_read_b32 v{160+e}, {R(GR + 4*tt + e)}")
        a(f"v_accvgpr_read_b32 v164, {R(RSM + 4*tt)}")
        for x in ["v_cndmask_b32 v160, v160, v161, s[68:69]", "v_cndmask_b32 v162, v162, v163, s[68:69]", "v_mul_f32 v164, s63, v164",
                  "v_cndmask_b32 v160, v160, v162, s[86:87]", "v_mul_f32 v160, s63, v160", "v_fma_f32 v160, -v164, v164, v160",
                  "v_max_f32 v160, 0, v160", "v_add_f32 v160, s64, v160", "v_rsq_f32 v160, v160", "v_mul_f32 v164, v164, v160"]: a(x)
        a.ds(f"ds_write_b32 v{vSTW}, v160 offset:{64*tt}"); a.ds(f"ds_write_b32 v{vSTW}, v164 offset:{128 + 64*tt}")
    a("v_lshlrev_b32 v28, 4, v11"); a("v_add_u32 v28, s48, v28"); a("v_add_u32 v29, s48, v10")
    for tt in range(2):
        a.ds(f"ds_read_b128 {R(RS + 4*tt, 4)}, v28 offset:{64*tt}"); a.ds(f"ds_read_b128 {R(MS + 4*tt, 4)}, v28 offset:{128 + 64*tt}")
        a.ds(f"ds_read_b32 v{RT + tt}, v29 offset:{64*tt}"); a.ds(f"ds_read_b32 v{MT + tt}, v29 offset:{128 + 64*tt}")
    NBE = P("NBE", 3)
    for j in range(2, NBE):
        for f in ldb(j): f()
    a("s_lshl_b32 s73, s70, 9"); a(f"s_add_u32 s73, s73, {C1P}")
    a("s_cmp_eq_u32 s72, 2"); a("s_cselect_b32 s75, 0x40000000, s74"); a("s_cselect_b32 s73, 0x40000000, s73")
    a("v_lshlrev_b32 v85, 4, v11"); a("v_lshl_add_u32 v85, v10, 4, v85"); a("v_cndmask_b32 v85, v2, v85, s[66:67]")
    def ust(t):
        if t < 7: a.vmem(f"buffer_store_dwordx4 {R(URG + 4*t, 4)}, v{8 if t < 4 else 12}, s[40:43], s{74 if t < 5 else 75} offen offset:{1024*(t&3)} sc1", "US")
        else: a.vmem(f"buffer_store_dwordx4 {R(URG+36, 4)}, v85, s[40:43], s73 offen sc1", "US")
    a("s_and_b32 s59, s27, 7"); a("s_lshl_b32 s59, s59, 9"); a(f"s_add_u32 s59, s59, {FU}")
    a("s_lshr_b32 s3, s27, 3"); a("s_lshl_b32 s3, s3, 4"); a("s_add_u32 s3, s3, s26"); a("s_lshl_b32 s3, s3, 2"); a("s_add_u32 s3, s3, s28"); a("s_lshl_b32 s3, s3, 2"); a("s_add_u32 s70, s3, s59")
    a.wait(vm="B0")
    a("s_barrier")
    a.stamp("bP")
    a("s_mov_b32 s94, s60"); a("s_mov_b32 s95, s60"); a("s_mov_b32 s96, s61"); a("s_mov_b32 s97, s61")
    for f in breads1(0): a.run(f)
    def pretouch():
        if "sc1h" in OPT:
            a(f"s_add_u32 s3, s58, {G_FL}"); a("s_bfm_b64 exec, 4, 0"); a.vmem("buffer_load_dword v4, v3, s[40:43], s3 offen"); a("s_mov_b64 exec, -1")
            return
        a("s_mul_i32 s3, s27, 21056"); a("s_add_u32 s3, s3, s58"); a("s_mul_i32 s56, s28, 5376"); a("s_add_u32 s3, s3, s56")
        a("s_bfm_b64 exec, 42, 0"); a.vmem("buffer_load_dword v4, v3, s[40:43], s3 offen"); a("s_mov_b64 exec, -1")
    FB3 = 156
    a("s_and_b32 s3, s27, 7"); a("s_mul_i32 s3, s3, 20"); a("s_add_u32 s3, s3, s28"); a("s_mul_i32 s65, s3, 5120"); a(f"s_add_u32 s65, s65, {WOP}")
    def ldwo(n, t):
        a.vmem(f"buffer_load_dwordx4 {R(FB3 + (n*5+t)*4, 4)}, v{8 if t < 4 else 12}, s[40:43], s65 offen offset:{1024*(t&3)} sc1", "WO")
        if t == 4: a("s_add_u32 s65, s65, 20480")
    def ldfu():
        a("v_lshlrev_b32 v31, 3, v1")
        a.vmem("buffer_load_dwordx2 v[92:93], v31, s[40:43], s59 offen sc1", "FU")
    def chkfu():
        a.wait(vm="FU")
        a("s_mov_b32 s78, 0")
        a("L_fu:")
        a("v_cmp_ne_u32 vcc, s76, v92"); a("v_cmp_ne_u32 s[84:85], s76, v93")
        a("s_or_b64 vcc, vcc, s[84:85]"); a("s_cbranch_scc0 L_fu_ok")
        a("s_add_u32 s78, s78, 1"); a(f"s_cmp_ge_u32 s78, {POLLMAX}"); a("s_cbranch_scc1 L_fu_ok")
        a("buffer_load_dwordx2 v[92:93], v31, s[40:43], s59 offen sc1"); a("s_waitcnt vmcnt(0)")
        a("s_branch L_fu")
        a("L_fu_ok:")
    q_ = ldq(); mix = []
    if "usfirst" in OPT:
        mix = [lambda i=i: ust(i) for i in range(8)] + q_
    else:
        for i in range(12):
            mix.append(q_[i])
            if i < 8: mix.append(lambda i=i: ust(i))
    ldlist = sum([ldb(j) for j in range(NBE, 5)], [])
    MS0 = P("MS0", 6); MR = P("MR", 1)
    a.bgq = mix
    SFU = P("SFU", 18)
    LEND = P("LEND", 16)
    CT = 116
    for s in range(20):
        j, p = divmod(s, 4)
        if p == 3 and j < 4:
            a.wait(vm=f"B{j+1}"); a("s_barrier")
        if s == SFU:
            a.wait(vm="US")
            a("s_mov_b64 exec, 1"); a.vmem("buffer_store_dword v6, v5, s[40:43], s70 offen sc1"); a("s_mov_b64 exec, -1")
        if s == 18:
            a.wait(lg="CSW"); a("s_barrier")
        a.wait(lg=f"R{s}")
        mf = kv_mf(s)
        front = breads1(s+1) if s < 19 else []
        side = []
        if s == 17:
            side += ["s_lshl_b32 s3, s28, 9", f"s_add_u32 s3, s3, {CSX}", "v_add_u32 v27, s3, v8"]
            side.append(lambda: (a("s_bfm_b64 exec, 32, 0"), a.ds(f"ds_write_b128 v27, {R(CSA, 4)}", "CSW"), a("s_mov_b64 exec, -1")))
        if s == 18:
            assert a.vm.count("US") == 8
            side += ["v_lshlrev_b32 v27, 2, v10", f"v_add_u32 v27, {CSX}, v27"]
            for w in range(4):
                side.append(lambda w=w: a.ds(f"ds_read_b128 {R(CT + 4*w, 4)}, v27 offset:{512*w}"))
                side.append(lambda w=w: a.ds(f"ds_read_b32 v{CT + 16 + w}, v27 offset:{512*w + 256}", "CSR"))
        if s == 19:
            side.append(lambda: a.wait(lg="CSR"))
            for e in range(4):
                side += [f"v_add_f32 v{CT+e}, v{CT+e}, v{CT+4+e}", f"v_add_f32 v{CT+8+e}, v{CT+8+e}, v{CT+12+e}", f"v_add_f32 v{CT+20+e}, v{CT+e}, v{CT+8+e}"]
            side += [f"v_add_f32 v{CT+16}, v{CT+16}, v{CT+17}", f"v_add_f32 v{CT+18}, v{CT+18}, v{CT+19}", f"v_add_f32 v{CT+24}, v{CT+16}, v{CT+18}"]
        side += ldlist[:3]; ldlist = ldlist[3:]
        if s >= MS0: side = [lambda: a.bg(1)]*MR + side
        a.interleave(mf, side, front)
    CSV = CT + 20
    a.stamp("kvend")
    OP = 116; TP = 72
    FUC = P("FUC", 14)
    if FUC < 4: ldfu()
    KBG = P("KBG", 1)
    for t in range(5):
        for tt in range(2):
            b_ = acc(tt, t)
            cp = CSV + t; cpe = cp & ~1; sel = cp & 1
            for h in range(2):
                x = b_ + 2*h
                a(f"v_pk_mul_f32 v[{TP+2*h}:{TP+2*h+1}], v[{MS+4*tt+2*h}:{MS+4*tt+2*h+1}], v[{cpe}:{cpe+1}] op_sel:[0,{sel}] op_sel_hi:[1,{sel}]")
            for h in range(2):
                x = b_ + 2*h
                a(f"v_pk_fma_f32 v[{x}:{x+1}], v[{x}:{x+1}], v[{RS+4*tt+2*h}:{RS+4*tt+2*h+1}], v[{TP+2*h}:{TP+2*h+1}] neg_lo:[0,0,1] neg_hi:[0,0,1]")
            if t <= 2: phi4(a, b_, TP, sel_mask=("s[66:67]" if t == 2 else None))
            for h in range(2):
                a(f"v_cvt_pk_bf16_f32 v{OP + 4*t + 2*tt + h}, v{acc(tt, t) + 2*h}, v{acc(tt, t) + 2*h + 1}")
            if t*2 + tt == SFU - 20:
                a.wait(vm="US")
                a("s_mov_b64 exec, 1"); a.vmem("buffer_store_dword v6, v5, s[40:43], s70 offen sc1"); a("s_mov_b64 exec, -1")
            if t*2 + tt == FUC - 4: ldfu()
            if t*2 + tt == FUC: chkfu(); a.bgq += [lambda n=n, t=t: ldwo(n, t) for n in range(5) for t in range(5)]
            a.bg(KBG)
    while "BQdone" not in a.vm and a.vm.count("BQ") < 11 or (a.bgq and a.bgq[0] is q_[11]): a.bg(1)
    KVD = 32
    for p, (ta, tb) in enumerate(PAIRS):
        a(MF(KVD + 4*p, OP + 4*ta, ONES if tb < 0 else OP + 4*tb, True))
    a("s_mul_i32 s3, s28, 10240"); a("v_add_u32 v27, s3, v8")
    for p in range(10): a(f"ds_write_b128 v27, {R(KVD + 4*p, 4)} offset:{1024*p}")
    a("s_lshl_b32 s3, s27, 4"); a("s_add_u32 s3, s3, s26"); a("s_lshl_b32 s3, s3, 12"); a(f"s_add_u32 s3, s3, {PART}")
    a("v_cmp_gt_u32 vcc, 216, v0"); a("v_cndmask_b32 v9, v2, v9, vcc")
    a.wait(lg="all")
    a("s_barrier")
    for w in range(4): a(f"ds_read_b128 {R(56 + 4*w, 4)}, v{vT1} offset:{10240*w}")
    a("s_waitcnt lgkmcnt(0)")
    for e in (0, 2):
        a(f"v_pk_add_f32 v[{56+e}:{57+e}], v[{56+e}:{57+e}], v[{60+e}:{61+e}]"); a(f"v_pk_add_f32 v[{64+e}:{65+e}], v[{64+e}:{65+e}], v[{68+e}:{69+e}]")
    for e in (0, 2): a(f"v_pk_add_f32 v[{56+e}:{57+e}], v[{56+e}:{57+e}], v[{64+e}:{65+e}]")
    if "p16" in OPT:
        a("v_cvt_pk_bf16_f32 v56, v56, v57"); a("v_cvt_pk_bf16_f32 v57, v58, v59"); a("v_lshrrev_b32 v9, 1, v9")
        a.vmem(f"buffer_store_dwordx2 v[56:57], v9, s[40:43], s3 offen sc1", "PST")
    else:
        a.vmem(f"buffer_store_dwordx4 v[56:59], v9, s[40:43], s3 offen sc1", "PST")
    ldfu()
    a("s_lshr_b32 s48, s27, 3"); a("s_and_b32 s49, s27, 7")
    a("v_lshrrev_b32 v13, 1, v11"); a("v_lshlrev_b32 v13, 8, v13"); a("v_lshl_add_u32 v13, v10, 2, v13")
    a("v_and_b32 v28, 1, v11"); a("v_lshl_add_u32 v13, v28, 3, v13")
    a("v_mul_u32_u24 v14, 320, v10"); a("v_lshl_add_u32 v15, v11, 3, v14"); a("v_lshl_add_u32 v14, v11, 4, v14")
    a("s_lshl_b32 s50, s48, 2"); a("s_add_u32 s50, s50, s28")
    a("s_lshl_b32 s3, s26, 3"); a("s_add_u32 s3, s3, s50"); a("s_mul_i32 s51, s3, 20480"); a("s_mul_i32 s3, s49, 160"); a("s_add_u32 s51, s51, s3")
    a("s_mul_i32 s53, s27, 27"); a("s_lshr_b32 s53, s53, 2")
    a("s_mul_i32 s55, s27, 143360"); a(f"s_add_u32 s55, s55, {W1P}")
    srd(a, 36, 14, 3456)
    a("v_lshlrev_b32 v23, 4, v11"); a("v_lshl_add_u32 v26, v10, 4, v23")
    a("s_lshl_b32 s62, s27, 2"); a("s_add_u32 s62, s62, s28"); a("s_lshl_b32 s62, s62, 7")
    a("s_lshl_b32 s56, s26, 7"); a("s_add_u32 s56, s56, 8192")
    a("v_mov_b32 v27, s62"); a("v_mov_b32 v28, s56"); a("v_cndmask_b32 v17, v27, v28, s[88:89]"); a("v_add_u32 v17, v17, v10")
    a("s_lshl_b32 s3, s26, 2"); a("s_add_u32 s3, s3, s62"); a(f"s_add_u32 s3, s3, {F1}")
    a.wait(vm="PST")
    a("s_mov_b64 exec, 1"); a.vmem("buffer_store_dword v6, v5, s[40:43], s3 offen sc1"); a("s_mov_b64 exec, -1")
    a("s_barrier")
    a.stamp("b7")
    chkfu(); a.bgq += [lambda n=n, t=t: ldwo(n, t) for n in range(5) for t in range(5)]
    FB3 = 156; RES = 116; C1R = 126; T2R = 146
    B1A = A0 + 204
    W1T = A0 + 100
    def w1dma(i):
        a(f"s_mul_i32 s98, s28, {24*1024}"); a(f"s_add_u32 m0, s98, {i*1024}"); a("s_add_u32 s98, s55, m0")
        a.vmem(f"buffer_load_dwordx4 v8, s[40:43], s98 offen sc1 lds", "W1")
    def w1tail(i):
        a(f"s_mul_i32 s98, s28, {11*1024}"); a(f"s_add_u32 s98, s98, {(96+i)*1024}"); a("s_add_u32 s98, s55, s98")
        a.vmem(f"buffer_load_dwordx4 {R(W1T + 4*i, 4)}, v8, s[40:43], s98 offen sc1", "W1")
    def ldsmall():
        a("v_lshlrev_b32 v31, 5, v1"); a("s_add_u32 s98, s30, T2_tab-L_pc"); a("s_addc_u32 s99, s31, 0")
        a.vmem(f"global_load_dwordx4 {R(T2R, 4)}, v31, s[98:99]"); a.vmem(f"global_load_dwordx2 {R(T2R+4, 2)}, v31, s[98:99] offset:16")
    def ldres(q):
        if q == 0: a.vmem(f"buffer_load_dwordx4 {R(RES, 4)}, v14, s[32:35], s51 offen")
        if q == 1: a.vmem(f"buffer_load_dwordx4 {R(RES+4, 4)}, v14, s[32:35], s51 offen offset:64")
        if q == 2: a.vmem(f"buffer_load_dwordx2 {R(RES+8, 2)}, v15, s[32:35], s51 offen offset:128", "RES")
    def ldb1():
        a("v_lshlrev_b32 v31, 3, v11"); a("s_lshl_b32 s98, s53, 5")
        for p in range(3): a.vmem(f"buffer_load_dwordx4 {R(B1A + 4*p, 4)}, v23, s[36:39], s98 offen offset:{64*p}")
        a.vmem(f"buffer_load_dwordx2 {R(B1A + 12, 2)}, v31, s[36:39], s98 offen offset:192")
    def ldc1():
        a("s_mul_i32 s98, s27, 20"); a("s_mul_i32 s99, s28, 5"); a("s_add_u32 s98, s98, s99"); a("s_lshl_b32 s98, s98, 9"); a(f"s_add_u32 s98, s98, {C1P}")
        a("s_mov_b64 exec, s[66:67]")
        for n in range(5): a.vmem(f"buffer_load_dwordx4 {R(C1R + 4*n, 4)}, v26, s[40:43], s98 offen offset:{512*n} sc1", "C1")
        a("s_mov_b64 exec, -1")
    def hidtouch():
        a("s_mul_i32 s98, s27, 27648"); a("s_add_u32 s98, s98, s58"); a(f"s_add_u32 s98, s98, {G_HID}"); a("s_mul_i32 s99, s28, 6912"); a("s_add_u32 s98, s98, s99")
        a("s_bfm_b64 exec, 54, 0"); a.vmem("buffer_load_dword v4, v3, s[40:43], s98 offen"); a("s_mov_b64 exec, -1")
    ldsmall()
    a.bgq += [lambda q=q: ldres(q) for q in range(3)] + [ldb1, ldc1] + [lambda i=i: w1dma(i) for i in range(24)]
    QA = 32
    def qreads(s):
        j, p = divmod(s, 4)
        return [lambda t=t: a.ds(f"ds_read_b128 {R(BF + (s%3)*12 + t*4, 4)}, v{vTQ[p] if t < 2 else vTQ2[p]} offset:{j*10240 + (t&1)*1024}", f"Q{s}") for t in range(3)]
    for f in qreads(0) + qreads(1): f()
    a(f"s_mov_b32 s56, {F1}")
    QSTOP = P("QSTOP", 16)
    for s in range(20):
        j, p = divmod(s, 4)
        if s == 18: a.wait(lg="CQW"); a("s_barrier")
        a.wait(lg=f"Q{s}")
        mf = []
        for t in range(3):
            b = BF + (s%3)*12 + t*4
            for tt in range(2): mf.append(MF(QA + (tt*3+t)*4, b, xf(tt, s), s == 0))
            if p == 0: mf.append(MF(CSQ, b, OH + 4*t, s == 0 and t == 0))
        front = qreads(s+2) if s < 18 else []
        side = []
        if s < QSTOP: side += [lambda: a.bg(1)]*P("QBG", 1)
        if s == 17:
            side.append(lambda: a.vmem("buffer_load_dword v16, v17, s[40:43], s56 offen sc1", "POLL1"))
            side += ["s_lshl_b32 s3, s28, 9", f"s_add_u32 s3, s3, {CSX}", "v_add_u32 v27, s3, v26"]
            side.append(lambda: (a("s_mov_b64 exec, s[66:67]"), a.ds(f"ds_write_b128 v27, {R(CSQ, 4)}", "CQW"), a("s_mov_b64 exec, -1")))
        if s == 18:
            side += [f"v_add_u32 v30, {CSX}, v23"]
            for w, base in ((0, 56), (1, 68), (2, 96)):
                for t in range(3): side.append(lambda w=w, t=t, base=base: a.ds(f"ds_read_b128 {R(base + 4*t, 4)}, v30 offset:{512*w + 64*t}", "CQR"))
        if s == 19:
            side.append(lambda: a.wait(lg="CQR"))
            for x in range(12): side.append(f"v_add_f32 v{56+x}, v{56+x}, v{68+x}")
            for t in range(3): side.append(lambda t=t: a.ds(f"ds_read_b128 {R(68 + 4*t, 4)}, v30 offset:{1536 + 64*t}", "CQR"))
        a.interleave(mf, side, front)
    a.stamp("qend")
    a.wait(vm="POLL1")
    a("s_mov_b32 s78, 0")
    a("L_h1p:")
    a("v_and_b32 v28, 0xfffffff8, v16"); a("v_cmp_ne_u32 vcc, s76, v28")
    a("s_cbranch_vccz L_h1ok")
    a("s_add_u32 s78, s78, 1"); a(f"s_cmp_ge_u32 s78, {POLLMAX}"); a("s_cbranch_scc1 L_h1ok")
    a("buffer_load_dword v16, v17, s[40:43], s56 offen sc1"); a("s_waitcnt vmcnt(0)")
    a("s_branch L_h1p")
    a("L_h1ok:")
    a.stamp("h1ok")
    a.vm = []
    a("v_cmp_ne_u32 vcc, s77, v16"); a("s_and_b64 vcc, vcc, s[88:89]"); a("s_cselect_b32 s79, 0, 1")
    if os.environ.get("FORCESLOW"): a("s_mov_b32 s79, 0")
    P0 = A0
    a("s_lshl_b32 s3, s27, 16"); a(f"s_add_u32 s3, s3, {PART}")
    for r_ in range(16):
        if "p16" in OPT: a.vmem(f"buffer_load_dwordx2 {R(P0 + 4*r_, 2)}, v9, s[40:43], s3 offen sc1", f"P{r_}")
        else: a.vmem(f"buffer_load_dwordx4 {R(P0 + 4*r_, 4)}, v9, s[40:43], s3 offen sc1", f"P{r_}")
        a("s_add_u32 s3, s3, 4096")
    a.bgq += [lambda i=i: w1tail(i) for i in range(11)]
    for x in range(0, 12, 2): a(f"v_pk_add_f32 v[{56+x}:{57+x}], v[{56+x}:{57+x}], v[{96+x}:{97+x}]")
    a.wait(lg="all")
    for x in range(0, 12, 2): a(f"v_pk_add_f32 v[{56+x}:{57+x}], v[{56+x}:{57+x}], v[{68+x}:{69+x}]")
    PQR = 96
    EBG = P("EBG", 2)
    for tt in range(2):
        for t in range(3):
            b_ = QA + (tt*3+t)*4
            for h in range(2):
                a(f"v_pk_mul_f32 v[{TP+2*h}:{TP+2*h+1}], v[{56+4*t+2*h}:{57+4*t+2*h}], v[{MT}:{MT+1}] op_sel:[0,{tt}] op_sel_hi:[1,{tt}]")
            for h in range(2):
                x = b_ + 2*h
                a(f"v_pk_fma_f32 v[{x}:{x+1}], v[{x}:{x+1}], v[{RT}:{RT+1}], v[{TP+2*h}:{TP+2*h+1}] op_sel:[0,{tt},0] op_sel_hi:[1,{tt},1] neg_lo:[0,0,1] neg_hi:[0,0,1]")
            phi4(a, b_, TP)
            for h in range(2):
                d = f"v{PQR + tt*6 + t*2 + h}"
                a(f"v_cvt_pk_bf16_f32 {d}, v{QA + (tt*3+t)*4 + 2*h}, v{QA + (tt*3+t)*4 + 2*h + 1}")
                if t == 2: a(f"v_cndmask_b32 {d}, 0, {d}, s[90:91]")
            a.bg(EBG)
    OSC = SCR
    TA = 56
    for s_ in range(12):
        src = T2R + s_//2
        if s_ & 1: a(f"v_lshrrev_b32 v{TA+s_}, 16, v{src}")
        else: a(f"v_and_b32 v{TA+s_}, 0xffff, v{src}")
        a(f"v_add_u32 v{TA+s_}, {OSC}, v{TA+s_}")
    for r_ in range(16):
        if r_ % 4 == 0: a.wait(vm=f"P{r_+3}")
        if "p16" in OPT:
            b_ = 32 if r_ == 0 else 36
            for e in range(2): a(f"v_accvgpr_read_b32 v{40+e}, {R(P0+4*r_+e)}")
            for e in range(2): a(f"v_lshlrev_b32 v{b_+2*e}, 16, v{40+e}"); a(f"v_and_b32 v{b_+2*e+1}, 0xffff0000, v{40+e}")
        else:
            for e in range(4): a(f"v_accvgpr_read_b32 v{(32 if r_ == 0 else 36)+e}, {R(P0+4*r_+e)}")
        if r_:
            for e in (0, 2): a(f"v_pk_add_f32 v[{32+e}:{33+e}], v[{32+e}:{33+e}], v[{36+e}:{37+e}]")
        if r_ % 4 == 3: a.bg(EBG)
    a("v_cvt_pk_bf16_f32 v18, v32, v33"); a("v_cvt_pk_bf16_f32 v19, v34, v35")
    a("v_cmp_gt_u32 vcc, 210, v0")
    a("v_cndmask_b32 v18, 0, v18, vcc"); a("v_cndmask_b32 v19, 0, v19, vcc")
    a("v_lshlrev_b32 v27, 3, v0"); a(f"v_add_u32 v27, {OSC}, v27")
    a("ds_write_b64 v27, v[18:19]")
    a("s_waitcnt lgkmcnt(0)")
    a("s_barrier")
    a.stamp("b9")
    KF = A0 + 64
    for E in range(4):
        for ta in range(3): a(f"ds_read_b64 {R(KF + 8*E + 2*ta, 2)}, v{TA + 3*E + ta}")
    a("s_mul_i32 s3, s28, 40960"); a("s_mul_i32 s56, s27, 1280"); a("s_add_u32 s3, s3, s56"); a("s_add_u32 s3, s3, s58")
    a("v_lshlrev_b32 v27, 2, v10"); a("v_lshl_add_u32 v27, v11, 3, v27")
    a("v_cndmask_b32 v27, v2, v27, s[90:91]")
    a("s_waitcnt lgkmcnt(0)")
    D = 32
    for tt in range(2):
        for E in (3, 0, 1, 2):
            d = R(D + (tt*4+E)*4, 4)
            a(f"v_mfma_f32_16x16x32_bf16 {d}, {R(KF + 8*E, 4)}, {R(PQR + 6*tt, 4)}, 0")
    for tt in range(2):
        for E in (3, 0, 1, 2):
            d = R(D + (tt*4+E)*4, 4)
            a(f"v_mfma_f32_16x16x16_bf16 {d}, {R(KF + 8*E + 4, 2)}, {R(PQR + 6*tt + 4, 2)}, {d}")
    for tt in range(2):
        z = D + (tt*4+3)*4
        a(f"v_add_f32 v20, s61, v{z}"); a(f"v_add_f32 v21, s61, v{z+1}")
        a("v_rcp_f32 v20, v20"); a("v_rcp_f32 v21, v21")
        a("v_cndmask_b32 v22, v21, v20, s[92:93]"); a("v_cndmask_b32 v28, v21, v20, s[90:91]")
        ob = 64 + 8*tt
        for E, rc in ((0, 22), (1, 28), (2, 21)):
            d = D + (tt*4+E)*4
            for e in range(4): a(f"v_mul_f32 v{d+e}, v{d+e}, v{rc}")
            a(f"v_cvt_pk_bf16_f32 v{ob + 2*E}, v{d}, v{d+1}"); a(f"v_cvt_pk_bf16_f32 v{ob + 2*E + 1}, v{d+2}, v{d+3}")
        a.vmem(f"buffer_store_dwordx4 {R(ob, 4)}, v8, s[40:43], s3 offen{HS}", "ST")
        a.vmem(f"buffer_store_dwordx2 {R(ob + 4, 2)}, v27, s[40:43], s3 offen offset:1024{HS}", "ST")
        a("s_add_u32 s3, s3, 20480")

    def hop(n, before, after_pub, post=0, touch=None, post2=0):
        before()
        a(f"s_add_u32 s59, s58, {G_FL + 128*n}")
        a("s_lshl_b32 s3, s27, 2"); a("s_add_u32 s3, s3, s59")
        a.bg(post)
        a.wait(vm="ST")
        if touch and "notouch" not in OPT: touch()
        a("s_barrier")
        a.stamp(f"hop{n}a")
        a("s_cmp_lg_u32 s28, 0"); a(f"s_cbranch_scc1 L_g{n}np")
        a("s_mov_b64 exec, 1")
        a("s_cmp_eq_u32 s79, 0"); a(f"s_cbranch_scc1 L_g{n}slow")
        a("buffer_store_dword v6, v5, s[40:43], s3 offen")
        a(f"s_branch L_g{n}pd")
        a(f"L_g{n}slow:")
        a("buffer_store_dword v6, v5, s[40:43], s3 offen sc1")
        a(f"L_g{n}pd:")
        a("s_mov_b64 exec, -1")
        a(f"L_g{n}np:")
        after_pub()
        a.bg(post2)
        a("s_cmp_lg_u32 s28, 0"); a(f"s_cbranch_scc1 L_g{n}j")
        a("s_mov_b32 s78, 0")
        a(f"L_g{n}p:")
        a("buffer_load_dword v27, v10, s[40:43], s59 offen sc1")
        a("s_add_u32 s78, s78, 1")
        a("s_waitcnt vmcnt(0)")
        a("v_cmp_ne_u32 vcc, s76, v27")
        a(f"s_cmp_ge_u32 s78, {POLLMAX}"); a(f"s_cbranch_scc1 L_g{n}x")
        a(f"s_cbranch_vccnz L_g{n}p")
        a(f"L_g{n}x:")
        a(f"L_g{n}j:")
        a("s_barrier")
        a.stamp(f"hop{n}b")
    def a_off(NK, goff):
        for m in range(4):
            a(f"s_add_u32 s3, s28, {m}"); a("s_and_b32 s3, s3, 3"); a("s_lshl_b32 s57, s48, 2"); a("s_add_u32 s3, s3, s57")
            a(f"s_mul_i32 s3, s3, {NK}"); a("s_add_u32 s3, s3, s28"); a("s_lshl_b32 s3, s3, 10"); a("s_add_u32 s3, s3, s58"); a(f"s_add_u32 s{80+m}, s3, {goff}")
    def ctouch(lab, nl):
        def f():
            a("s_lshl_b32 s98, s27, 2"); a("s_add_u32 s98, s98, s28"); a(f"s_mul_i32 s98, s98, {128*nl}"); a(f"s_add_u32 s98, s98, {lab}-L_pc")
            a("v_add_u32 v31, s98, v3"); a(f"s_bfm_b64 exec, {nl}, 0")
            a.vmem("global_load_dword v4, v31, s[30:31]"); a("s_mov_b64 exec, -1")
        return f
    if "noct" not in OPT: a.bgq.insert(0, ctouch("L_cS4", 2))
    def flush_wo():
        while any(True for _ in [0]) and a.bgq and len(a.bgq) > 24 + 11: a.bg(1)
    def bef0():
        a_off(20, G_O)
        a("s_mul_i32 s99, s28, 40960"); a("s_mul_i32 s56, s27, 1280"); a("s_add_u32 s99, s99, s56"); a("s_add_u32 s99, s99, s58")
        a("v_mul_u32_u24 v28, 20480, v11"); a("v_lshl_add_u32 v28, v10, 5, v28")
    def tch0():
        a("s_mov_b64 exec, 0x03ff03ff"); a.vmem("buffer_load_dword v4, v28, s[40:43], s99 offen sc1"); a("s_mov_b64 exec, -1")
    hop(0, bef0, lambda: None, post=0, touch=tch0, post2=P("POST0", 10))
    flush_wo()
    ACC = 32 ; FA3 = A0
    for n in range(5):
        for m in range(4):
            a.vmem(f"buffer_load_dwordx4 {R(FA3 + (n*4+m)*4, 4)}, v8, s[40:43], s{80+m} offen sc1", f"A{n}")
            a(f"s_add_u32 s{80+m}, s{80+m}, 4096")
    if "sc1hid" not in OPT: a.bgq.insert(0, hidtouch)
    RED = 102400
    def red_addr():
        for m in range(1, 4):
            a(f"s_add_u32 s3, s28, {m}"); a("s_and_b32 s3, s3, 3"); a("s_mul_i32 s3, s3, 15360"); a(f"s_add_u32 s3, s3, {RED}")
            a(f"v_add_u32 v{16+m}, s3, v8")
        a("s_mul_i32 s3, s28, 15360"); a(f"s_add_u32 s3, s3, {RED}"); a("v_add_u32 v16, s3, v8")
    def init_acc(srcs):
        for t in range(5):
            for e in range(4):
                for q, src0 in enumerate(srcs):
                    src = src0 + 2*t + (e >> 1); d = ACC+4*t+e if q == 0 else 27
                    if e & 1: a(f"v_and_b32 v{d}, 0xffff0000, v{src}")
                    else: a(f"v_lshlrev_b32 v{d}, 16, v{src}")
                    if q: a(f"v_add_f32 v{ACC+4*t+e}, v{ACC+4*t+e}, v27")
    def last_step(mfn):
        order = [(m, t) for m in (1, 2, 3, 0) for t in range(5)]
        for i, (m, t) in enumerate(order):
            a(mfn(m, t))
            if i >= 5:
                m2, t2 = order[i-5]
                a(f"ds_write_b128 v{16+m2}, {R(ACC + (m2*5+t2)*4, 4)} offset:{(m2-1)*5120 + t2*1024}")
    red_addr()
    if "RES" in a.vm: a.wait(vm="RES")
    init_acc([RES])
    S3BG = P("S3BG", 3)
    for n in range(5):
        a.wait(vm=f"A{n}")
        if n == 4:
            last_step(lambda m, t: MF(ACC + (m*5+t)*4, FB3 + (n*5+t)*4, FA3 + (n*4+m)*4, False)); a.bg(S3BG)
        else:
            mf = [MF(ACC + (m*5+t)*4, FB3 + (n*5+t)*4, FA3 + (n*4+m)*4, n == 0 and m > 0) for m in range(4) for t in range(5)]
            a.interleave(mf, [lambda: a.bg(1)]*S3BG)
    a.stamp("s3end")
    a("L_cS4:")
    HF = A0; BF = A0 + 160
    NA = P("NA", 4); BS = 4*max(NA, 7 - NA)
    if NA == 4:
        slots = [156 + 4*i for i in range(16)] + [A0 + 192 + 4*i for i in range(3)] + [A0 + 220 + 4*i for i in range(9)] + [HF + 4*i for i in range(40)] + [BF + 4*i for i in range(2)]
        NEARLY = 28
        arA = [A0 + 168 + 4*i for i in range(6)] + [A0 + 204 + 4*i for i in range(4)]
    elif NA == 7:
        for x in range(14): a(f"v_accvgpr_mov_b32 {R(A0 + 240 + x)}, {R(B1A + x)}")
        B1A = A0 + 240
        slots = [156 + 4*i for i in range(16)] + [A0 + 216 + 4*i for i in range(6)] + [HF + 4*i for i in range(40)] + [BF + 4*i for i in range(8)]
        NEARLY = 22
        arA = [A0 + 192 + 4*i for i in range(6)] + [A0 + 240 + 4*i for i in range(4)]
    else:
        for x in range(14): a(f"v_accvgpr_mov_b32 {R(A0 + 240 + x)}, {R(B1A + x)}")
        B1A = A0 + 240
        slots = [156 + 4*i for i in range(16)] + [A0 + 208 + 4*i for i in range(8)] + [HF + 4*i for i in range(40)] + [BF + 4*i for i in range(6)]
        NEARLY = 24
        arA = [A0 + 184 + 4*i for i in range(6)] + [A0 + 240 + 4*i for i in range(4)]
    def fb(n, t): return slots[n*5 + t]
    a("s_mul_i32 s3, s49, 54"); a("s_add_u32 s3, s3, s28"); a("s_mul_i32 s54, s3, 5120"); a(f"s_add_u32 s54, s54, {W2P}")
    def ldw2(n, t):
        if n == 13 and t == 0:
            a("s_cmp_ge_u32 s28, 2"); a("s_cselect_b32 s98, 0x40000000, 0"); a("s_add_u32 s54, s54, s98")
        a.vmem(f"buffer_load_dwordx4 {R(fb(n, t), 4)}, v{8 if t < 4 else 12}, s[40:43], s54 offen offset:{1024*(t&3)} sc1", f"W2_{n}")
        if t == 4: a("s_add_u32 s54, s54, 20480")
    w2q = [(n, t) for n in range(14) for t in range(5)]
    nw1left = len(a.bgq)
    def w2bg():
        ldw2(*w2q.pop(0))
    a.bgq += [w2bg]*NEARLY
    def reduce_epi(which, BIA=None, nbg=0):
        a.bg(2*nbg)
        a("s_waitcnt lgkmcnt(0)")
        a("s_barrier")
        for t in range(5):
            for m in range(1, 4): a(f"ds_read_b128 {R(ACC + (m*5+t)*4, 4)}, v16 offset:{(m-1)*5120 + t*1024}")
        for t in range(5):
            a(f"s_waitcnt lgkmcnt({12 - 3*t})")
            for e in (0, 2):
                x0 = ACC + 4*t + e
                a(f"v_pk_add_f32 v[{x0+20}:{x0+21}], v[{x0+20}:{x0+21}], v[{x0+40}:{x0+41}]"); a(f"v_pk_add_f32 v[{x0}:{x0+1}], v[{x0}:{x0+1}], v[{x0+60}:{x0+61}]")
            for e in (0, 2):
                x0 = ACC + 4*t + e
                a(f"v_pk_add_f32 v[{x0}:{x0+1}], v[{x0}:{x0+1}], v[{x0+20}:{x0+21}]")
            for h in range(2): a(f"v_cvt_pk_bf16_f32 v{RES+2*t+h}, v{ACC+4*t+2*h}, v{ACC+4*t+2*h+1}")
            if which == 3:
                if t == 1: a.vmem(f"buffer_store_dwordx4 {R(RES, 4)}, v8, s[40:43], s57 offen{HS}")
                if t == 3: a.vmem(f"buffer_store_dwordx4 {R(RES+4, 4)}, v8, s[40:43], s57 offen offset:1024{HS}")
                if t == 4: a.vmem(f"buffer_store_dwordx2 {R(RES+8, 2)}, v13, s[40:43], s57 offen offset:2048{HS}")
    a("s_mul_i32 s57, s50, 20480"); a("s_mul_i32 s3, s49, 2560"); a("s_add_u32 s57, s57, s3"); a("s_add_u32 s57, s57, s58"); a(f"s_add_u32 s57, s57, {G_H}")
    reduce_epi(3, nbg=P("R3BG", 3))
    a(f"v_pk_add_f32 v[28:29], v[{ACC}:{ACC+1}], v[{ACC+2}:{ACC+3}]"); a(f"v_pk_mul_f32 v[30:31], v[{ACC}:{ACC+1}], v[{ACC}:{ACC+1}]"); a(f"v_pk_fma_f32 v[30:31], v[{ACC+2}:{ACC+3}], v[{ACC+2}:{ACC+3}], v[30:31]")
    for x in range(4, 20, 2):
        a(f"v_pk_add_f32 v[28:29], v[28:29], v[{ACC+x}:{ACC+x+1}]"); a(f"v_pk_fma_f32 v[30:31], v[{ACC+x}:{ACC+x+1}], v[{ACC+x}:{ACC+x+1}], v[30:31]")
    a("v_add_f32 v20, v28, v29"); a("v_add_f32 v21, v30, v31")
    def red_g(regs, tmp):
        for r_ in regs:
            a(f"v_mov_b32 {tmp}, {r_}"); a(f"v_permlane32_swap_b32 {r_}, {tmp}"); a(f"v_add_f32 {r_}, {r_}, {tmp}")
            a(f"v_mov_b32 {tmp}, {r_}"); a(f"v_permlane16_swap_b32 {r_}, {tmp}"); a(f"v_add_f32 {r_}, {r_}, {tmp}")
    red_g(["v20", "v21"], "v22")
    a("v_lshlrev_b32 v22, 1, v10")
    a("s_lshl_b32 s57, s50, 10"); a("s_lshl_b32 s3, s49, 7"); a("s_add_u32 s57, s57, s3"); a("s_add_u32 s57, s57, s58"); a(f"s_add_u32 s57, s57, {G_ST}")
    a.vmem(f"buffer_store_dwordx2 v[20:21], v22, s[40:43], s57 offen{HS}", "ST")
    CS = 128; CSL = 144384
    def bef3():
        a("s_mul_i32 s3, s28, 40960"); a("s_add_u32 s3, s3, s58"); a(f"s_add_u32 s80, s3, {G_H}"); a("s_add_u32 s81, s80, 20480")
        a("s_lshl_b32 s82, s28, 11"); a("s_add_u32 s82, s82, s58"); a(f"s_add_u32 s82, s82, {G_ST}")
        a("v_lshlrev_b32 v19, 8, v11"); a("v_lshl_add_u32 v19, v10, 1, v19")
        a("v_add_u32 v16, 57344, v8"); a("v_add_u32 v17, 114688, v8")
        a(f"s_mul_i32 s3, s28, {11*1024}"); a(f"s_add_u32 s3, s3, {96*1024}"); a("v_add_u32 v18, s3, v8")
        for e in range(4):
            a(f"v_add_f32 v{C1R+e}, v{C1R+e}, v{C1R+4+e}"); a(f"v_add_f32 v{C1R+8+e}, v{C1R+8+e}, v{C1R+12+e}")
            a(f"v_add_f32 v{C1R+e}, v{C1R+e}, v{C1R+16+e}"); a(f"v_add_f32 v{C1R+e}, v{C1R+e}, v{C1R+8+e}")
        a("s_lshl_b32 s3, s28, 9"); a(f"s_add_u32 s3, s3, {CSL}"); a("v_add_u32 v29, s3, v26")
    def aft3():
        if "W1" in a.vm: a.wait(vm="W1")
        for i in range(11): a(f"ds_write_b128 v18, {R(W1T + 4*i, 4)} offset:{1024*i}")
        a("s_mov_b64 exec, s[66:67]"); a(f"ds_write_b128 v29, {R(C1R, 4)}"); a("s_mov_b64 exec, -1")
        a("s_waitcnt lgkmcnt(0)")
    left1 = max(0, len(a.bgq) - len([1 for x in a.bgq if x is w2bg]))
    print("w1 left at hop3:", left1, "w2 issued:", 70 - len(w2q), file=sys.stderr)
    def tch1():
        a("s_mul_i32 s99, s50, 20480"); a("s_mul_i32 s98, s49, 2560"); a("s_add_u32 s99, s99, s98"); a("s_add_u32 s99, s99, s58"); a(f"s_add_u32 s99, s99, {G_H}")
        a("s_mov_b64 exec, 0xfffff"); a.vmem("buffer_load_dword v4, v3, s[40:43], s99 offen sc1"); a("s_mov_b64 exec, -1")
    hop(1, bef3, aft3, post=left1, touch=tch1, post2=max(0, P("POST1", 6) - left1))
    def hf(tt, k): return HF + (k*2 + tt)*4
    def ldh(k):
        def one(tt):
            a.vmem(f"buffer_load_dwordx4 {R(hf(tt, k), 4)}, v8, s[40:43], s{80+tt} offen offset:{1024*(k&3)} sc1", f"H{k}")
            if (k & 3) == 3: a(f"s_add_u32 s{80+tt}, s{80+tt}, 4096")
        return [lambda tt=tt: one(tt) for tt in range(2)]
    PRE = P("PRE4", 6)
    for k in range(PRE):
        for f in ldh(k): f()
    for tt in range(2):
        for q in range(2):
            a.vmem(f"buffer_load_dwordx2 {R(88 + 4*tt + 2*q, 2)}, v19, s[40:43], s82 offen offset:{1024*tt + 128*q} sc1", "STAT")
    def breads(ps, k):
        ts = range(NA) if ps == 0 else range(NA, 7)
        return [lambda t=t: a.ds(f"ds_read_b128 {R(BF + (k&1)*BS + 4*(t - ts[0]), 4)}, v{[8, 16, 17][k >> 3]} offset:{(k & 7)*7168 + 1024*t}", f"BR{ps}_{k}") for t in ts]
    for f in breads(0, 0): f()
    vS = [20, 21]; vQ = [24, 25]
    a(f"v_add_u32 v18, {CSL}, v23")
    hq = list(range(PRE, 20))
    B1U = 220
    c1 = -2.0*LOG2E*0.7978845608028654
    c2 = c1*0.044715
    a(f"s_mov_b32 s60, {hx(c1)}"); a(f"s_mov_b32 s61, {hx(c2)}")
    a("s_mul_i32 s56, s28, 110592"); a("s_lshl_b32 s3, s53, 9"); a("s_add_u32 s56, s56, s3"); a("s_add_u32 s56, s56, s58"); a(f"s_add_u32 s56, s56, {G_HID}"); a("s_add_u32 s57, s56, 55296")
    for k in range(20):
        a.wait(vm=f"H{k}", lg=f"BR0_{k}")
        front = breads(0, k+1) if k < 19 else (breads(1, 0) if NA < 7 else [])
        side = []
        if NA == 7:
            if hq:
                for _ in range(P("HRATE", 2)):
                    if hq: side += ldh(hq.pop(0))
            else:
                side += [w2bg]*max(0, min(P("ABG", 2), len(w2q), NEARLY + 2*k - (70 - len(w2q))))
        elif hq: side += ldh(hq.pop(0))
        else: side += [lambda: a.bg(1)]*P("ABG", 1)
        if 1 <= k < 8:
            kk = k - 1; tb = 96 if kk % 2 == 0 else 220
            side.append(lambda kk=kk: a.wait(lg=f"CG{kk}"))
            for e in range(4):
                side += [f"v_add_f32 v{CS+4*kk+e}, v{CS+4*kk+e}, v{tb+e}", f"v_add_f32 v{tb+4+e}, v{tb+4+e}, v{tb+8+e}", f"v_add_f32 v{CS+4*kk+e}, v{CS+4*kk+e}, v{tb+4+e}"]
        if k < 7:
            tb = 96 if k % 2 == 0 else 220
            for w in range(4): front.append(lambda w=w, k=k, tb=tb: a.ds(f"ds_read_b128 {R((CS + 4*k) if w == 0 else (tb - 4 + 4*w), 4)}, v18 offset:{512*w + 64*k}", f"CG{k}"))
        if k == PRE + 2:
            for tt in range(2):
                side.append(f"v_add_f32 v{vS[tt]}, v{88+4*tt}, v{90+4*tt}"); side.append(f"v_add_f32 v{vQ[tt]}, v{89+4*tt}, v{91+4*tt}")
            side.append(lambda: red_g([f"v{x}" for x in vS + vQ], "v22"))
        if k == PRE + 3:
            for tt in range(2):
                s_, q_ = f"v{vS[tt]}", f"v{vQ[tt]}"
                side += [f"v_mul_f32 {s_}, s63, {s_}", f"v_mul_f32 {q_}, s63, {q_}", f"v_fma_f32 {q_}, -{s_}, {s_}, {q_}", f"v_max_f32 {q_}, 0, {q_}",
                         f"v_add_f32 v22, s64, {q_}", f"v_fma_f32 {q_}, v22, s64, {q_}", f"v_rsq_f32 {q_}, {q_}", f"v_mul_f32 {s_}, {s_}, {q_}"]
            side += ["v_mov_b32 v252, s60", "v_mov_b32 v253, s60", "s_mov_b32 s96, s61", "s_mov_b32 s97, s61"]
        if k >= 12:
            x = 2*(k - 12)
            for y in (x, x + 1):
                if y < 14:
                    side += [f"v_accvgpr_read_b32 v27, {R(B1A + y)}", f"v_lshlrev_b32 v{B1U+2*y}, 16, v27", f"v_and_b32 v{B1U+2*y+1}, 0xffff0000, v27"]
        mf = [MF(ACC + (tt*7+t)*4, BF + (k&1)*BS + 4*t, hf(tt, k), k == 0) for t in range(NA) for tt in range(2)]
        a.interleave(mf, side, front)
    a.stamp("s4A")
    if "noct" not in OPT: ctouch("L_cS5", 1)()
    PK = 88
    def gelu(tt, t, pk=False):
        L = []
        if pk:
            b_ = ACC + (tt*7+t)*4
            pr = lambda x: f"v[{x}:{x+1}]"
            for h in (0, 2): L.append(f"v_pk_fma_f32 {pr(248+h)}, v[20:21], {pr(CS+4*t+h)}, {pr(B1U+4*t+h)} op_sel:[{tt},0,0] op_sel_hi:[{tt},1,1] neg_lo:[1,0,0] neg_hi:[1,0,0]")
            for h in (0, 2): L.append(f"v_pk_fma_f32 {pr(b_+h)}, {pr(b_+h)}, v[24:25], {pr(248+h)} op_sel:[0,{tt},0] op_sel_hi:[1,{tt},1]")
            for h in (0, 2): L.append(f"v_pk_mul_f32 {pr(248+h)}, {pr(b_+h)}, {pr(b_+h)}")
            for h in (0, 2): L.append(f"v_pk_fma_f32 {pr(248+h)}, {pr(248+h)}, s[96:97], v[252:253]")
            for h in (0, 2): L.append(f"v_pk_mul_f32 {pr(248+h)}, {pr(248+h)}, {pr(b_+h)}")
            for e in range(4): L.append(f"v_exp_f32 v{248+e}, v{248+e}")
            for h in (0, 2): L.append(f"v_pk_add_f32 {pr(248+h)}, {pr(248+h)}, 1.0 op_sel_hi:[1,0]")
            for e in range(4): L.append(f"v_rcp_f32 v{248+e}, v{248+e}")
            for h in (0, 2): L.append(f"v_pk_mul_f32 {pr(b_+h)}, {pr(b_+h)}, {pr(248+h)}")
        else:
            for e in range(4):
                v_ = f"v{ACC + (tt*7+t)*4 + e}"; ta = f"v{248+e}"
                L += [f"v_fma_f32 {ta}, -v{vS[tt]}, v{CS+4*t+e}, v{B1U+4*t+e}", f"v_fma_f32 {v_}, {v_}, v{vQ[tt]}, {ta}", f"v_mul_f32 {ta}, {v_}, {v_}",
                      f"v_fma_f32 {ta}, {ta}, s61, v252", f"v_mul_f32 {ta}, {ta}, {v_}", f"v_exp_f32 {ta}, {ta}"]
            for e in range(4):
                ta = f"v{248+e}"; L += [f"v_add_f32 {ta}, 1.0, {ta}"]
            for e in range(4):
                ta = f"v{248+e}"; L += [f"v_rcp_f32 {ta}, {ta}"]
            for e in range(4):
                v_ = f"v{ACC + (tt*7+t)*4 + e}"; L.append(f"v_mul_f32 {v_}, {v_}, v{248+e}")
        for h in range(2):
            x0 = ACC + (tt*7+t)*4 + 2*h
            L.append(f"v_cvt_pk_bf16_f32 v{PK + tt*14 + 2*t + h}, v{x0}, v{x0+1}")
        if t & 1: L.append(lambda: a.vmem(f"buffer_store_dwordx4 {R(PK + tt*14 + 2*(t-1), 4)}, v8, s[40:43], s{56+tt} offen offset:{512*(t-1)}{HS2}", "ST" if t > 3 else "ST01"))
        if t == 6: L.append(lambda: a.vmem(f"buffer_store_dwordx2 {R(PK + tt*14 + 12, 2)}, v13, s[40:43], s{56+tt} offen offset:3072{HS2}", "ST"))
        return L
    gl = []
    for p in range(NA//2 if NA < 7 else 0):
        for tt in range(2): gl += gelu(tt, 2*p, "pkB" in OPT) + gelu(tt, 2*p+1, "pkB" in OPT)
    a.bgq = []
    W2RATE = P("W2RATE", 2)
    for k in range(20 if NA < 7 else 0):
        a.wait(lg=f"BR1_{k}")
        front = breads(1, k+1) if k < 19 else []
        q = (len(gl) + 19 - k)//(20 - k) if k > 0 else 0
        side = gl[:q]; gl = gl[q:]
        nin = max(0, min(W2RATE, len(w2q), NEARLY + 2*k - (70 - len(w2q))))
        for i_ in range(nin): side.insert((i_ + 1)*len(side)//(nin + 1), w2bg)
        mf = [MF(ACC + (tt*7+t)*4, BF + (k&1)*BS + 4*(t-NA), hf(tt, k), k == 0) for t in range(NA, 7) for tt in range(2)]
        a.interleave(mf, side, front)
    a.stamp("s4B")
    a("L_cS5:")
    W2EPI = P("W2EPI", 2)
    seq = [(0, 4), (0, 5), (1, 4), (1, 5), (0, 6), (1, 6)] if NA == 4 else [(0, 6), (1, 6)]
    if NA == 7: seq = [(tt, 2*p + q) for p in range(3) for tt in range(2) for q in range(2)] + [(0, 6), (1, 6)]
    for i_, (tt, t) in enumerate(seq):
        L = gelu(tt, t, True)
        if i_ == P("HT", 99):
            a("v_and_b32 v28, 1, v11"); a("v_mul_u32_u24 v28, 55296, v28"); a("v_lshl_add_u32 v28, v10, 5, v28")
            a.wait(vm="ST01")
            a("s_bfm_b64 exec, 32, 0"); a.vmem("buffer_load_dword v4, v28, s[40:43], s56 offen sc1"); a("s_mov_b64 exec, -1")
        for j_, x in enumerate(L):
            a.run(x)
            if i_ < P("W2STOP", 4) and j_ in (6, 16)[:W2EPI] and w2q: ldw2(*w2q.pop(0))
    BIA = 126
    def bef4():
        srd(a, 32, 20, 2621440); srd(a, 36, 18, 1280)
        a_off(54, G_HID)
        a("v_lshlrev_b32 v28, 3, v11"); a("s_mul_i32 s3, s49, 160")
        a.vmem(f"buffer_load_dwordx4 {R(BIA, 4)}, v23, s[36:39], s3 offen")
        a.vmem(f"buffer_load_dwordx4 {R(BIA+4, 4)}, v23, s[36:39], s3 offen offset:64")
        a.vmem(f"buffer_load_dwordx2 {R(BIA+8, 2)}, v28, s[36:39], s3 offen offset:128", "BIA")
    npost = min(P("POST2", 4), len(w2q))
    a.bgq = [lambda x=x: ldw2(*x) for x in w2q[:npost]]; w2q = w2q[npost:]
    print("w2 left after hop4:", len(w2q), file=sys.stderr)
    def tch2():
        a("v_lshrrev_b32 v28, 5, v1"); a("v_mul_u32_u24 v28, 55296, v28"); a("v_and_b32 v29, 31, v1"); a("v_lshl_add_u32 v28, v29, 7, v28")
        a("s_mov_b32 exec_lo, 0x0fffffff"); a("s_mov_b32 exec_hi, 0x0fffffff"); a.vmem("buffer_load_dword v4, v28, s[40:43], s56 offen sc1"); a("s_mov_b64 exec, -1")
    hop(2, bef4, lambda: None, post=0, touch=tch2, post2=npost)
    ar = [136 + 4*i for i in range(5)] + [220 + 4*i for i in range(9)] + arA
    NR = 6
    def fa(n, m): return ar[(n % NR)*4 + m]
    def lda5(n):
        def one(m):
            if n == 13 and m == 0:
                a("s_cmp_ge_u32 s28, 2"); a("s_cselect_b32 s3, 0x40000000, 0")
                for q in range(4): a(f"s_add_u32 s{80+q}, s{80+q}, s3")
            a.vmem(f"buffer_load_dwordx4 {R(fa(n, m), 4)}, v8, s[40:43], s{80+m} offen sc1", f"A5_{n}")
            a(f"s_add_u32 s{80+m}, s{80+m}, 4096")
        return [lambda m=m: one(m) for m in range(4)]
    PRE5 = P("PRE5", 3)
    def need_w2(n):
        L = []
        while w2q and w2q[0][0] <= n:
            x = w2q.pop(0); L.append(lambda x=x: ldw2(*x))
        return L
    for n in range(PRE5):
        for f in need_w2(n) + lda5(n): f()
    def ldbia():
        a("v_lshlrev_b32 v28, 3, v11"); a("s_mul_i32 s3, s49, 160")
        a.vmem(f"buffer_load_dwordx4 {R(BIA, 4)}, v23, s[36:39], s3 offen")
        a.vmem(f"buffer_load_dwordx4 {R(BIA+4, 4)}, v23, s[36:39], s3 offen offset:64")
        a.vmem(f"buffer_load_dwordx2 {R(BIA+8, 2)}, v28, s[36:39], s3 offen offset:128")
    red_addr(); a.wait(vm="BIA"); init_acc([RES, BIA])
    nxt = PRE5
    for n in range(14):
        a.wait(vm=f"A5_{n}")
        side = []; cnt = 0
        while nxt < 14 and nxt <= n + NR - 1 and cnt < 2:
            side += need_w2(nxt) + lda5(nxt); nxt += 1; cnt += 1
        if n == 13:
            last_step(lambda m, t: MF(ACC + (m*5+t)*4, fb(n, t), fa(n, m), False))
        else:
            mf = [MF(ACC + (m*5+t)*4, fb(n, t), fa(n, m), n == 0 and m > 0) for m in range(4) for t in range(5)]
            a.interleave(mf, side)
    a.stamp("s5end")
    reduce_epi(5, BIA)
    a(f"buffer_store_dwordx4 {R(RES, 4)}, v14, s[32:35], s51 offen")
    a(f"buffer_store_dwordx4 {R(RES+4, 4)}, v14, s[32:35], s51 offen offset:64")
    a(f"buffer_store_dwordx2 {R(RES+8, 2)}, v15, s[32:35], s51 offen offset:128")
    a("s_or_b32 s3, s2, s28"); a("s_cmp_lg_u32 s3, 0"); a("s_cbranch_scc1 L_notagclr")
    a("global_store_dword v5, v5, s[22:23] sc1")
    a("L_notagclr:")
    a.stamp("stored")
    if STAMP:
        a("s_waitcnt vmcnt(0)")
        a.stamp("end")
        a("s_memrealtime s[100:101]"); a("s_waitcnt lgkmcnt(0)"); a("v_writelane_b32 v7, s100, 31")
        a("v_writelane_b32 v7, s79, 30")
        a("s_lshl_b32 s3, s2, 2"); a("s_add_u32 s3, s3, s28"); a("s_lshl_b32 s3, s3, 8"); a(f"s_add_u32 s3, s3, {STB}")
        a("v_lshlrev_b32 v27, 2, v1"); a("v_add_u32 v27, s3, v27")
        a("global_store_dword v27, v7, s[24:25]")
        if os.environ.get("DELAY"):
            di = os.environ["DELAY"]
            a(f"s_cmp_lg_u32 s2, {P('DWG', 8)}"); a("s_cbranch_scc1 L_end"); a("s_cmp_lg_u32 s28, 0"); a("s_cbranch_scc1 L_end")
            clk = "s_memrealtime" if di == "rt" else "s_memtime"
            a(f"{clk} s[100:101]"); a("s_waitcnt lgkmcnt(0)")
            if di == "rt":
                a("s_sub_u32 s3, s100, s76")
            else:
                a(f"v_readlane_b32 s3, v7, {di}"); a("v_readlane_b32 s56, v7, 0"); a("s_nop 3"); a("s_sub_u32 s3, s3, s56")
            a("s_lshl_b32 s3, s3, 2"); a("s_min_u32 s3, s3, 0x100000"); a("s_mov_b32 s57, s100")
            a("L_dly:")
            a(f"{clk} s[100:101]"); a("s_waitcnt lgkmcnt(0)"); a("s_sub_u32 s56, s100, s57"); a("s_cmp_lt_u32 s56, s3"); a("s_cbranch_scc1 L_dly")
        a.a.raw("; STAMPS " + " ".join(a.names))
    a("L_end:")
    a("s_endpgm")
    return a.a

def main(out):
    hdr = open("sequential_preLN__linear_attn_block__mixer_channel_mlp__prompt.s.ref").read().split("\n")
    hdr = [l for l in hdr if l.startswith(";") and "@launch" not in l]
    hdr.append("; @launch grid=(256,1,1) block=(256,1,1) lds=163840")
    a = gen()
    pre = '.amdgcn_target "amdgcn-amd-amdhsa--gfx950"\n.text\n'
    T1, T2 = build_tables()
    a.raw(".p2align 6\nT1_tab:")
    a.raw(".short " + ",".join(map(str, T1)))
    a.raw("T2_tab:")
    for row in T2: a.raw(".short " + ",".join(map(str, row)))
    a.raw(".fill 2048, 4, 0")
    a.raw('.section .rodata,"a"\n.p2align 6')
    a.raw(f""".amdhsa_kernel {NAME}
  .amdhsa_next_free_vgpr 512
  .amdhsa_next_free_sgpr 102
  .amdhsa_accum_offset 256
  .amdhsa_group_segment_fixed_size 0
  .amdhsa_kernarg_size 88
  .amdhsa_user_sgpr_count 2
  .amdhsa_user_sgpr_kernarg_segment_ptr 1
  .amdhsa_system_sgpr_workgroup_id_x 1
.end_amdhsa_kernel""")
    open(out, "w").write("\n".join(hdr) + "\n" + pre + a.finish())

if __name__ == "__main__":
    main(sys.argv[1])
```

```python
import sys, struct, os
from asmdsl import Asm, R, S
from gen1 import build_tables, PAIRS, f2u, hx, divmod_const, srd, LOG2E

NAME = "sequential_preLN__linear_attn_block__mixer_channel_mlp__prompt_kernel"
WOP = 0
W2P = WOP + 8*20*5*1024
W1P = W2P + 8*54*5*1024
C1P = W1P + 16*20*7*1024
WQKV = C1P + 320*512
PART = WQKV + 16*153600
GRP = PART + 256*4096
G_O = 0; G_H = 163840; G_ST = 327680; G_FL = 335872; G_HID = 336896; G_SZ = G_HID + 442368
FLG = GRP + 16*G_SZ
F1 = FLG; F1R = FLG + 8192; F0 = FLG + 10240; FU = FLG + 14336
WS_END = FLG + 20480
A0 = 256
STAMP = int(os.environ.get("STAMP", "0"))
STB = 32 << 20
POLLMAX = 1 << 15
OPT = set(os.environ.get("OPT", "").split(","))
def P(name, d): return int(os.environ.get(name, d))

class G:
    def __init__(self):
        self.a = Asm(); self.vm = []; self.lg = []; self.nst = 0; self.bgq = []; self.names = []
    def __call__(self, t): self.a(t)
    def vmem(self, text, tag=None): self.a(text); self.vm.append(tag)
    def ds(self, text, tag=None): self.a(text); self.lg.append(tag)
    def _n(self, lst, tag, cap):
        idx = max(i for i, t in enumerate(lst) if t == tag)
        return min(len(lst) - 1 - idx, cap)
    def wait(self, vm=None, lg=None):
        s = []
        if vm is not None: s.append(f"vmcnt({0 if vm == 'all' else self._n(self.vm, vm, 63)})")
        if lg is not None: s.append(f"lgkmcnt({0 if lg == 'all' else self._n(self.lg, lg, 15)})")
        self.a("s_waitcnt " + " ".join(s))
        if vm == 'all': self.vm = []
        if lg == 'all': self.lg = []
    def stamp(self, name=""):
        if STAMP != 1: return
        i = self.nst; self.nst += 1; self.names.append(name)
        assert i < 29
        self.a("s_memtime s[100:101]"); self.a("s_waitcnt lgkmcnt(0)"); self.a(f"v_writelane_b32 v7, s100, {i}")
    def run(self, x): x() if callable(x) else self.a(x)
    def bg(self, n=1):
        for _ in range(n):
            if self.bgq: self.bgq.pop(0)()
    def interleave(self, main, extra, front=()):
        n = len(main); m = len(extra); j = 0; front = list(front)
        for i, x in enumerate(main):
            self.run(x)
            if front:
                self.run(front.pop(0))
                if len(front) >= n - i and front: self.run(front.pop(0))
            while j < m and (j + 1) * n <= (i + 1) * m + (n - 1):
                self.run(extra[j]); j += 1
        for x in front: self.run(x)
        while j < m:
            self.run(extra[j]); j += 1

def MF(d, a_, b_, first): return f"v_mfma_f32_16x16x32_bf16 {R(d,4)}, {R(a_,4)}, {R(b_,4)}, {'0' if first else R(d,4)}"

def phi(a, val, t1, t2):
    a(f"v_mul_f32 {t1}, s60, {val}")
    a(f"v_max_f32 {t2}, 0, {val}")
    a(f"v_exp_f32_e64 {t1}, {t1} clamp")
    a(f"v_add_f32 {t2}, s61, {t2}")
    a(f"v_add_f32 {val}, {t1}, {t2}")

OPT |= {"sc1h", "sc1hid", "notouch", "usfirst", "ft"}
def phi4(a, b_, T, sel_mask=None):
    for h in range(2): a(f"v_pk_mul_f32 v[{T+2*h}:{T+2*h+1}], v[{b_+2*h}:{b_+2*h+1}], s[94:95]")
    for e in range(4): a(f"v_max_f32 v{T+4+e}, 0, v{b_+e}")
    for e in range(4): a(f"v_exp_f32_e64 v{T+e}, v{T+e} clamp")
    for h in range(2): a(f"v_pk_add_f32 v[{T+4+2*h}:{T+5+2*h}], v[{T+4+2*h}:{T+5+2*h}], s[96:97]")
    if sel_mask is None:
        for h in range(2): a(f"v_pk_add_f32 v[{b_+2*h}:{b_+2*h+1}], v[{T+2*h}:{T+2*h+1}], v[{T+4+2*h}:{T+5+2*h}]")
    else:
        for h in range(2): a(f"v_pk_add_f32 v[{T+2*h}:{T+2*h+1}], v[{T+2*h}:{T+2*h+1}], v[{T+4+2*h}:{T+5+2*h}]")
        for e in range(4): a(f"v_cndmask_b32 v{b_+e}, v{b_+e}, v{T+e}, {sel_mask}")
RPNT = "" if "rpplain" in OPT else " nt"
HS = "" if "plainh" in OPT else " sc1"
HS2 = "" if "plainhid" in OPT else " sc1"
FENCE = "plainh" in OPT or "plainhid" in OPT
def gen():
    a = G()
    name = NAME
    NRAW = P("NRAW", 2)
    a.a.raw(f".globl {name}\n.p2align 8\n.type {name},@function\n{name}:")
    a("s_cmp_ge_u32 s2, 256"); a("s_cbranch_scc1 L_end")
    a("s_load_dwordx16 s[4:19], s[0:1], 0")
    a("s_load_dwordx4 s[20:23], s[0:1], 64")
    a("s_load_dwordx2 s[24:25], s[0:1], 80")
    a("s_memrealtime s[76:77]")
    a("s_getpc_b64 s[30:31]")
    a("L_pc:")
    a("v_mov_b32 v7, 0")
    a.stamp("start")
    a("v_lshrrev_b32 v2, 6, v0"); a("v_and_b32 v1, 63, v0")
    a("v_readfirstlane_b32 s28, v2")
    if "m48" in OPT:
        a("s_and_b32 s3, s2, 7"); a("s_lshr_b32 s29, s2, 3")
        a("s_lshr_b32 s26, s3, 1"); a("s_lshl_b32 s26, s26, 2"); a("s_lshr_b32 s27, s29, 3"); a("s_add_u32 s26, s26, s27")
        a("s_and_b32 s3, s3, 1"); a("s_lshl_b32 s3, s3, 2"); a("s_and_b32 s27, s29, 3"); a("s_or_b32 s27, s27, s3")
        a("s_and_b32 s29, s29, 4"); a("s_lshl_b32 s29, s29, 1"); a("s_or_b32 s27, s27, s29")
    else:
        a("s_and_b32 s3, s2, 7"); a("s_lshr_b32 s27, s2, 3"); a("s_lshr_b32 s26, s27, 4"); a("s_lshl_b32 s3, s3, 1")
        a("s_add_u32 s26, s26, s3")
        a("s_and_b32 s27, s27, 15")
    a("v_lshlrev_b32 v3, 7, v1")
    if "cp16" in OPT:
        a("s_cmp_lg_u32 s28, 3"); a("s_cbranch_scc1 L_nocp")
        a("s_mul_i32 s3, s27, 2304"); a("v_add_u32 v27, s3, v3"); a("s_bfm_b64 exec, 18, 0")
        a("global_load_dword v4, v27, s[30:31]"); a("s_mov_b64 exec, -1")
    elif "nocp" not in OPT:
        a("s_cmp_lg_u32 s28, 3"); a("s_cbranch_scc1 L_nocp")
        a("s_mul_i32 s3, s27, 13"); a("s_lshr_b32 s3, s3, 6"); a("s_mul_i32 s3, s3, 5"); a("s_sub_u32 s3, s27, s3"); a("s_lshl_b32 s3, s3, 13")
        a("v_add_u32 v27, s3, v3")
        a("global_load_dword v4, v27, s[30:31]")
    a("L_nocp:")
    BQ = 102400; SCR = 153600; CSX = 161792
    vXA = [72, 73, 74, 75]; vW = [76, 77]; vRd = [78, 79]; vTB = [17, 18, 19, 20]; vTQ = [86, 87, 88, 89]; vTQ2 = [90, 91, 21, 22]
    vSA = [80, 81, 82]; vBA = [144, 145, 146, 147, 148]; vTR = [149, 150, 151, 152]
    vT1 = 24; vSTW = 25
    ACC = 32; RAW = 160; XF = A0; BF = A0 + 160; ONES = A0 + 200; GR = A0 + 204; RSM = A0 + 212; OH = A0 + 220; CSA = A0 + 240; CSQ = A0 + 244
    t0, t1, t2, t3 = "v27", "v28", "v29", "v30"
    def early():
        a("v_and_b32 v27, 3, v1"); a("s_lshl_b32 s3, s28, 2"); a("v_add_u32 v27, s3, v27"); a("v_min_u32 v27, 14, v27")
        a("v_lshrrev_b32 v28, 2, v1"); a("v_mul_u32_u24 v28, 3840, v28"); a("v_lshl_add_u32 v28, v27, 4, v28")
        a("v_add_u32 v29, 1280, v28"); a("v_add_u32 v30, 2480, v28"); a("v_subrev_u32 v28, 160, v28")
        a("v_cmp_gt_u32 vcc, 10, v27"); a("s_mul_i32 s50, s26, 153600"); a("s_mul_i32 s51, s27, 80"); a("v_cndmask_b32 v28, v28, v30, vcc")
        a("v_cmp_gt_u32 vcc, 5, v27"); a("s_add_u32 s50, s50, s51"); a("s_mul_i32 s53, s28, 3072"); a("v_cndmask_b32 v83, v28, v29, vcc")
        a(f"s_add_u32 s53, s53, {BQ + 28672}")
        a("s_mul_i32 s3, s26, 163840"); a("s_mul_i32 s56, s27, 10240"); a("s_add_u32 s3, s3, s56"); a("s_mul_i32 s56, s28, 2560"); a("s_add_u32 s57, s3, s56")
        a("v_mov_b32 v5, 0")
    def late():
        a("v_lshlrev_b32 v8, 4, v1"); a("v_lshlrev_b32 v9, 4, v0")
        a("v_and_b32 v10, 15, v1"); a("v_lshlrev_b32 v10, 2, v10")
        a("v_lshrrev_b32 v11, 4, v1"); a("v_add_u32 v12, 4096, v8")
        a("v_lshrrev_b32 v27, 3, v1"); a("v_and_b32 v28, 7, v1"); a("v_mul_u32_u24 v29, 1280, v27")
        a(f"v_lshl_add_u32 v{vXA[0]}, v28, 4, v29")
        for rg in range(1, 4): a(f"v_add_u32 v{vXA[rg]}, {10240*rg}, v{vXA[0]}")
        a("s_lshl_b32 s3, s28, 11"); a(f"s_add_u32 s48, s3, {SCR}")
        a("v_lshrrev_b32 v29, 1, v27"); a("v_xor_b32 v29, v29, v28"); a("v_lshlrev_b32 v29, 4, v29"); a("v_lshl_add_u32 v29, v27, 7, v29")
        a(f"v_add_u32 v{vW[0]}, s48, v29")
        a("v_xor_b32 v29, 64, v29"); a("v_add_u32 v29, 1024, v29"); a(f"v_add_u32 v{vW[1]}, s48, v29")
        a("s_lshl_b32 s49, s26, 7"); a("s_lshl_b32 s3, s28, 5"); a("s_add_u32 s49, s49, s3"); a("s_mul_i32 s49, s49, 1280")
        a("s_lshr_b32 s3, s28, 1"); a("s_lshl_b32 s3, s3, 7"); a("s_add_u32 s62, s49, 128"); a("s_sub_u32 s62, s62, s3"); a("s_add_u32 s49, s49, s3")
        a("s_mul_i32 s52, s28, 5120")
        a(f"s_mul_i32 s58, s26, {G_SZ}"); a(f"s_add_u32 s58, s58, {GRP}")
        a("s_lshl_b32 s70, s28, 4"); a("s_add_u32 s70, s70, s26")
        a(f"s_mul_i32 s71, s28, 7168"); a(f"s_add_u32 s71, s71, {BQ}")
        a("v_mov_b32 v2, 0x7fffffff")
    early()
    if "slowpro" in OPT: late()
    a("s_waitcnt lgkmcnt(0)")
    srd(a, 36, 6, 2457600)
    SLNT = "" if "slplain" in OPT else " nt"
    for i in range(3):
        a(f"s_add_u32 m0, s53, {1024*i}")
        if i == 2: a("s_bfm_b64 exec, 32, 0")
        a.vmem(f"buffer_load_dwordx4 v83, s[36:39], s50 offen{SLNT} lds", "SLD")
        a(f"s_add_u32 s50, s50, {16*3840}")
    srd(a, 32, 4, 2621440); srd(a, 40, 24, WS_END)
    a("s_mov_b64 exec, 0xfffff")
    a.vmem(f"buffer_load_dword v4, v3, s[32:35], s57 offen{' nt' if 'xtnt' in OPT else ''}")
    if "tlb" in OPT:
        a("v_lshlrev_b32 v27, 20, v1"); a("s_bfm_b64 exec, 24, 0")
        a.vmem(f"buffer_load_dword v4, v27, s[40:43], 0 offen")
    if "tlb2" in OPT:
        a("s_mul_i32 s54, s27, 153600"); a(f"s_add_u32 s54, s54, {WQKV}")
        a("v_mul_u32_u24 v27, 51200, v1"); a("v_add_u32 v27, s54, v27"); a(f"v_mov_b32 v28, {F0}"); a("v_cmp_eq_u32 vcc, 3, v1"); a("v_cndmask_b32 v27, v27, v28, vcc")
        a("s_bfm_b64 exec, 4, 0")
        a.vmem(f"buffer_load_dword v4, v27, s[40:43], 0 offen")
        a.vmem("global_load_dword v4, v5, s[22:23] offset:128")
    a("s_mov_b64 exec, -1")
    if STAMP: a("v_writelane_b32 v7, s76, 29")
    a("s_and_b32 s76, s76, 0xfffffff8"); a("s_or_b32 s76, s76, 8")
    a("s_or_b32 s3, s2, s28"); a("s_cmp_lg_u32 s3, 0"); a("s_cbranch_scc1 L_notag")
    a("v_mov_b32 v28, s76"); a("global_store_dword v5, v28, s[22:23] sc1")
    a("L_notag:")
    if "ft" in OPT:
        a("s_cmp_lg_u32 s26, s27"); a("s_cbranch_scc1 L_noft"); a("s_cmp_lg_u32 s28, 1"); a("s_cbranch_scc1 L_noft")
        a("s_mul_i32 s3, s27, 1280"); a(f"s_add_u32 s3, s3, {FLG}")
        a("s_bfm_b64 exec, 10, 0"); a("buffer_load_dword v4, v3, s[40:43], s3 offen sc0 sc1"); a("s_mov_b64 exec, -1")
        a("L_noft:")
    if "nobt" not in OPT:
        a("s_lshl_b32 s3, s27, 2"); a("s_add_u32 s3, s3, s28"); a("s_cmp_lg_u32 s3, 6"); a("s_cbranch_scc1 L_nobt")
        a("s_bfm_b64 exec, 27, 0"); a("global_load_dword v4, v3, s[14:15]")
        a("s_bfm_b64 exec, 10, 0"); a("global_load_dword v4, v3, s[18:19]")
        a("s_mov_b64 exec, -1")
        a("L_nobt:")
    srd(a, 44, 12, 2211840)
    if "slowpro" not in OPT: late()
    def rp_issue(nt, pitch_src, nch):
        for i in range(7):
            if i < nt:
                a(f"v_add_u32 v27, {64*i}, v1")
                divmod_const(a, "v28", "v29", "v27", nch)
                a(f"v_mul_u32_u24 v28, {pitch_src}, v28"); a("v_lshl_add_u32 v28, v29, 4, v28")
                a(f"s_add_u32 m0, s71, {1024*i}")
                a(f"buffer_load_dwordx4 v28, s[44:47], s73 offen{RPNT} lds")
            else:
                a("buffer_load_dword v4, v2, s[44:47], 0 offen")
    def unit_issue():
        a("s_cmp_ge_u32 s70, 20"); a("s_cbranch_scc1 L_rp5")
        a("s_mov_b32 s72, 1")
        a("s_mul_i32 s75, s27, 27"); a("s_lshr_b32 s75, s75, 2"); a("s_lshl_b32 s75, s75, 5")
        a("s_mul_i32 s79, s70, 110592"); a("s_add_u32 s73, s75, s79")
        a("s_mul_i32 s75, s27, 20"); a("s_add_u32 s70, s70, s75")
        a("s_mul_i32 s74, s70, 7168"); a(f"s_add_u32 s74, s74, {W1P}")
        rp_issue(7, 3456, 14)
        a("s_branch L_rp_issued")
        a("L_rp5:")
        a("s_mov_b32 s72, 2")
        a("s_sub_u32 s79, s70, 20"); a("s_lshl_b32 s79, s79, 1"); a("s_lshr_b32 s75, s27, 3"); a("s_add_u32 s79, s79, s75"); a("s_and_b32 s75, s27, 7")
        a("s_cmp_ge_u32 s79, 54"); a("s_cbranch_scc1 L_rpwo")
        srd(a, 44, 16, 2211840)
        a("s_mul_i32 s78, s75, 54"); a("s_add_u32 s78, s78, s79")
        a("s_mul_i32 s74, s78, 5120"); a(f"s_add_u32 s74, s74, {W2P}")
        a("s_branch L_rp5b")
        a("L_rpwo:")
        srd(a, 44, 8, 819200)
        a("s_sub_u32 s79, s79, 54")
        a("s_mul_i32 s78, s75, 20"); a("s_add_u32 s78, s78, s79")
        a("s_mul_i32 s74, s78, 5120"); a(f"s_add_u32 s74, s74, {WOP}")
        a("s_cmp_ge_u32 s79, 20"); a("s_cselect_b32 s74, 0x40000000, s74")
        a("L_rp5b:")
        a("s_mul_i32 s75, s75, 160"); a("s_mul_i32 s79, s79, 40960"); a("s_add_u32 s73, s75, s79")
        rp_issue(5, 1280, 10)
        a("L_rp_issued:")
        a.vm += ["UL"]*7
    def raw(cx, rg): return 96 + (((cx + 1) % 10)*4 + rg)*4
    def xf(tt, k): return XF + (tt*20 + k)*4
    def ldx(cx):
        return [lambda cx=cx, rg=rg: a.vmem(f"buffer_load_dwordx4 {R(raw(cx, rg), 4)}, v{vXA[rg]}, s[32:35], s{62 if cx & 1 else 49} offen offset:{256*(cx>>1)}", f"X{cx}") for rg in range(4)]
    a("v_and_b32 v27, 15, v1")
    a("v_cmp_gt_u32 s[66:67], 8, v27")
    a("v_cmp_gt_u32 s[90:91], 32, v1"); a("v_cmp_gt_u32 s[92:93], 48, v1")
    a("v_cmp_eq_u32 s[88:89], 1, v11")
    a("v_and_b32 v29, 1, v11")
    a("s_lshl_b32 s3, s28, 1"); a("v_add_u32 v29, s3, v29")
    a("v_cmp_gt_u32 s[94:95], 5, v29"); a("v_cmp_eq_u32 s[96:97], 7, v29")
    a("v_lshlrev_b32 v29, 10, v29"); a(f"v_add_u32 v30, {BQ - 5120}, v29"); a("v_cndmask_b32 v29, v30, v29, s[94:95]")
    a("v_lshl_add_u32 v29, v10, 2, v29")
    a("v_mov_b32 v30, 2560"); a("v_mov_b32 v31, 5120"); a("v_cndmask_b32 v30, v30, v31, s[94:95]")
    a("v_mov_b32 v31, 8"); a("v_cndmask_b32 v31, v31, 7, s[96:97]")
    a("s_andn2_b64 s[96:97], s[96:97], s[66:67]")
    a("s_mul_i32 s3, s26, 5")
    a("v_lshrrev_b32 v28, 1, v11"); a("v_add_u32 v28, s3, v28")
    for n in range(3):
        a(f"v_lshrrev_b32 v27, 2, v28"); a(f"v_mad_u32_u24 v{vSA[n]}, v27, v30, v29")
        a("v_and_b32 v27, 3, v28"); a("v_lshlrev_b32 v27, v31, v27"); a(f"v_add_u32 v{vSA[n]}, v{vSA[n]}, v27")
        a(f"v_cndmask_b32 v{vSA[n]}, v{vSA[n]}, v2, s[96:97]")
        if n == 2: a(f"v_cndmask_b32 v{vSA[n]}, v2, v{vSA[n]}, s[90:91]")
        else: a("v_add_u32 v28, 2, v28")
    a("v_lshrrev_b32 v27, 5, v1"); a("v_bfe_u32 v28, v1, 2, 2"); a("v_lshl_add_u32 v27, v27, 3, v28"); a("v_lshlrev_b32 v27, 6, v27")
    a("v_bfe_u32 v28, v1, 4, 1"); a("v_lshl_add_u32 v27, v28, 5, v27"); a("v_and_b32 v28, 3, v1"); a("v_lshl_add_u32 v27, v28, 3, v27")
    a("v_add_u32 v84, s53, v27")
    a("s_mul_i32 s54, s27, 153600"); a(f"s_add_u32 s54, s54, {WQKV}")
    a.wait(vm="SLD")
    a.stamp("sld")
    for n in range(3):
        for h in range(2): a(f"ds_read_b64_tr_b16 {R(96 + 4*n + 2*h, 2)}, v84 offset:{1024*n + 256*h}")
    a("s_waitcnt lgkmcnt(0)")
    for n in range(3): a.vmem(f"buffer_store_dwordx4 {R(96 + 4*n, 4)}, v{vSA[n]}, s[40:43], s54 offen sc1", "SL")
    a.vmem("global_load_dword v6, v5, s[22:23] sc1", "TAG")
    NX0 = P("NX0", 3)
    for cx in range(NX0):
        for f in ldx(cx): f()
    a("v_and_b32 v27, 15, v1")
    a("v_lshrrev_b32 v29, 1, v27"); a("v_xor_b32 v29, v29, v11"); a("v_lshlrev_b32 v29, 4, v29"); a("v_lshl_add_u32 v29, v27, 7, v29")
    a("s_and_b32 s3, s28, 1"); a("s_lshl_b32 s3, s3, 6"); a("v_xor_b32 v29, s3, v29")
    a(f"v_add_u32 v{vRd[0]}, s48, v29"); a("v_xor_b32 v29, 64, v29"); a(f"v_add_u32 v{vRd[1]}, s48, v29")
    a("v_lshrrev_b32 v29, 2, v27"); a("v_cmp_eq_u32 vcc, v29, v11")
    a("v_lshlrev_b32 v30, 2, v1"); a("v_add_u32 v30, 512, v30")
    a("v_cndmask_b32 v29, v30, v10, vcc"); a(f"v_add_u32 v{vSTW}, s48, v29")
    a("v_and_b32 v29, 1, v1"); a("v_cmp_eq_u32 s[68:69], 1, v29")
    a("v_and_b32 v29, 2, v1"); a("v_cmp_eq_u32 s[86:87], 2, v29")
    a("v_mov_b32 v28, 0x3f803f80")
    for i in range(4): a(f"v_accvgpr_write_b32 {R(ONES+i)}, v28")
    for t in range(5):
        a(f"v_cmp_eq_u32 vcc, {t}, v27"); a("v_cndmask_b32 v29, 0, v28, vcc")
        for e in range(4): a(f"v_accvgpr_write_b32 {R(OH+4*t+e)}, v29")
    a("v_and_b32 v27, 7, v1"); a("v_lshlrev_b32 v27, 4, v27"); a("v_lshl_add_u32 v27, v11, 7, v27")
    for p in range(4):
        a(f"s_xor_b32 s3, s28, {p}"); a("s_mul_i32 s56, s3, 5120"); a(f"v_add_u32 v{vTB[p]}, s56, v8")
        a("s_mul_i32 s56, s3, 2560"); a(f"s_add_u32 s56, s56, {BQ}"); a(f"v_add_u32 v{vTQ[p]}, s56, v8"); a("s_add_u32 s56, s56, 2048"); a(f"v_add_u32 v{vTQ2[p]}, s56, v27")
    a(f"s_mov_b32 s60, {hx(LOG2E)}"); a(f"s_mov_b32 s61, {hx(1e-6)}")
    a(f"s_mov_b32 s63, {hx(1.0/640)}"); a(f"s_mov_b32 s64, {hx(1e-5)}")
    a("s_lshl_b32 s55, s27, 8"); a(f"s_add_u32 s55, s55, {F0}")
    a("v_lshlrev_b32 v26, 2, v1")
    a("s_lshl_b32 s3, s26, 4"); a("s_lshl_b32 s56, s28, 2"); a("s_add_u32 s3, s3, s56"); a("s_add_u32 s3, s3, s55")
    a.wait(vm="TAG")
    a("v_readfirstlane_b32 s76, v6"); a("s_mov_b32 s78, 0")
    a("L_tp1:")
    a("s_cmp_lg_u32 s76, 0"); a("s_cbranch_scc1 L_tp1_ok")
    a("global_load_dword v6, v5, s[22:23] sc1"); a("s_add_u32 s78, s78, 1"); a("s_waitcnt vmcnt(0)")
    a("v_readfirstlane_b32 s76, v6")
    a(f"s_cmp_lt_u32 s78, {POLLMAX}"); a("s_cbranch_scc1 L_tp1")
    a("L_tp1_ok:")
    a("s_getreg_b32 s77, hwreg(HW_REG_XCC_ID)"); a("s_and_b32 s77, s77, 7"); a("s_or_b32 s77, s77, s76")
    a("s_lshl_b32 s57, s26, 7"); a("s_lshl_b32 s56, s27, 2"); a("s_add_u32 s57, s57, s56"); a(f"s_add_u32 s57, s57, {F1R}")
    a("s_cmp_eq_u32 s28, 0"); a("s_cselect_b32 s57, s57, 0x40000000"); a("v_mov_b32 v27, s77")
    a("s_mov_b64 exec, 1"); a.vmem("buffer_store_dword v6, v5, s[40:43], s3 offen sc1"); a.vmem("buffer_store_dword v27, v5, s[40:43], s57 offen sc1"); a("s_mov_b64 exec, -1")
    a.stamp("F0pub")
    def rp_fin(nt, RG):
        pitch = nt*32
        a("v_bfe_u32 v28, v1, 2, 2"); a("v_lshl_add_u32 v27, v11, 3, v28"); a("v_and_b32 v28, 3, v1")
        a(f"v_mul_u32_u24 v29, {pitch}, v27"); a("v_add_u32 v29, s71, v29")
        a("v_lshl_add_u32 v30, v28, 3, v29"); a("v_lshl_add_u32 v29, v28, 4, v29")
        for t in range(nt):
            for h in range(2):
                if t == nt - 1: a(f"ds_read_b64_tr_b16 {R(RG + 4*t + 2*h, 2)}, v30 offset:{h*4*pitch + 32*t}")
                else: a(f"ds_read_b64_tr_b16 {R(RG + 4*t + 2*h, 2)}, v29 offset:{h*4*pitch + 64*(t>>1) + 8*(t&1)}")
        if nt == 7:
            a("v_mov_b32 v28, 0x3f803f80")
            for t in (5, 6):
                a(f"v_cmp_eq_u32 vcc, {4*t}, v10")
                for e in range(4): a(f"v_cndmask_b32 v{RG+28+4*(t-5)+e}, 0, v28, vcc")
        a("s_waitcnt lgkmcnt(0)")
        if nt == 7:
            for t in range(7): a(MF(RG+36, RG + 4*t, OH + 4*t if t < 5 else RG+28+4*(t-5), t == 0))
    def rp_store(nt, RG):
        for t in range(nt):
            a(f"buffer_store_dwordx4 {R(RG + 4*t, 4)}, v{8 if t < 4 else 12}, s[40:43], s74 offen offset:{1024*(t&3)} sc1")
        if nt == 7:
            a("v_lshlrev_b32 v29, 4, v11"); a("v_lshl_add_u32 v29, v10, 4, v29"); a("v_cndmask_b32 v29, v2, v29, s[66:67]")
            a("s_lshl_b32 s3, s70, 9"); a(f"s_add_u32 s3, s3, {C1P}")
            a(f"buffer_store_dwordx4 {R(RG+36, 4)}, v29, s[40:43], s3 offen sc1")
        else:
            for _ in range(3): a("buffer_store_dword v5, v2, s[40:43], 0 offen")
    def acc(tt, t): return ACC + (tt*5 + t)*4
    def transp(cx):
        L = []
        for tt in range(2):
            L.append(lambda tt=tt: a.ds(f"ds_write_b128 v{vW[0]}, {R(raw(cx, 2*tt), 4)}"))
            L.append(lambda tt=tt: a.ds(f"ds_write_b128 v{vW[1]}, {R(raw(cx, 2*tt+1), 4)}"))
            L.append(lambda tt=tt: a.ds(f"ds_read_b128 {R(xf(tt, 2*cx), 4)}, v{vRd[0]}"))
            L.append(lambda tt=tt: a.ds(f"ds_read_b128 {R(xf(tt, 2*cx+1), 4)}, v{vRd[1]}", f"T{cx}"))
        return L
    def statm(k):
        L = []
        for tt in range(2):
            L.append(MF(GR + 4*tt, xf(tt, k), xf(tt, k), k == 0)); L.append(MF(RSM + 4*tt, ONES, xf(tt, k), k == 0))
        return L
    def breads1(s):
        j, p = divmod(s, 4); L = []
        for t in range(5):
            L.append(lambda t=t: a.ds(f"ds_read_b128 {R(BF + (s&1)*20 + t*4, 4)}, v{vTB[p]} offset:{(j % 3)*20480 + t*1024}", f"R{s}"))
        if j == 2: L.append(f"v_add_u32 v{vTB[p]}, 61440, v{vTB[p]}")
        return L
    def ldb(j):
        def one(i):
            if i == 0: a(f"s_add_u32 m0, s52, {j*20480}"); a("s_add_u32 s57, s54, m0")
            if i == 4: a(f"s_add_u32 m0, s52, {j*20480 + 4096}")
            a.vmem(f"buffer_load_dwordx4 v{8 if i < 4 else 12}, s[40:43], s57 offen offset:{1024*(i&3)} sc1 lds", f"B{j}")
        return [lambda i=i: one(i) for i in range(5)]
    def ldq():
        def one(i):
            if i == 11: a("s_cmp_eq_u32 s28, 3"); a("s_cbranch_scc1 L_noq")
            a(f"s_mul_i32 s98, s28, 13312"); a(f"s_add_u32 m0, s98, {BQ + i*1024}"); a("s_add_u32 s98, s54, m0")
            a.a(f"buffer_load_dwordx4 v8, s[40:43], s98 offen sc1 lds")
            if i < 11: a.vm.append("BQ")
            if i == 12: a("L_noq:")
        return [lambda i=i: one(i) for i in range(11)] + [lambda: (one(11), one(12))]
    def ldt1():
        a("v_lshlrev_b32 v27, 1, v0"); a("s_add_u32 s56, s30, T1_tab-L_pc"); a("s_addc_u32 s57, s31, 0")
        a.vmem(f"global_load_ushort v{vT1}, v27, s[56:57]", "T1")
    def kv_mf(s):
        mf = []
        for t in range(5):
            b = BF + (s&1)*20 + t*4
            for tt in range(2): mf.append(MF(acc(tt, t), xf(tt, s), b, s == 0))
            if s % 4 == 0: mf.append(MF(CSA, OH + 4*t, b, s == 0 and t == 0))
        return mf
    RS = 96; MS = 104; RT = 112; MT = 114; CSV = 116
    URG = 116
    def flagtouch():
        a(f"s_add_u32 s3, s58, {G_FL}"); a("s_bfm_b64 exec, 8, 0"); a.vmem("buffer_load_dword v4, v3, s[40:43], s3 offen"); a("s_mov_b64 exec, -1")
    lq = sum([ldx(cx) for cx in range(NX0, 10)], []) + [ldt1, flagtouch, unit_issue]
    XR = P("XR", 8)
    for cx in range(10):
        while f"X{cx}" not in a.vm or a.vm.count(f"X{cx}") < 4: lq.pop(0)()
        a.wait(vm=f"X{cx}")
        mf = (statm(2*(cx-1)) + statm(2*(cx-1)+1)) if cx else []
        if cx: a.wait(lg=f"T{cx-1}")
        side = transp(cx) + lq[:XR]; lq = lq[XR:]
        if mf: a.interleave(mf, side)
        else:
            for f in side: f()
    assert not lq
    a.stamp("xdone")
    a("s_mov_b32 s78, 0")
    a("L_h0p:")
    a("buffer_load_dword v16, v26, s[40:43], s55 offen sc1"); a("s_waitcnt vmcnt(0)")
    a("v_cmp_ne_u32 vcc, s76, v16")
    a("s_cbranch_vccz L_h0ok")
    a("s_add_u32 s78, s78, 1"); a(f"s_cmp_lt_u32 s78, {POLLMAX}"); a("s_cbranch_scc1 L_h0p")
    a("L_h0ok:")
    a.vm = []
    a.stamp("F0ok")
    for f in ldb(0): f()
    for f in ldb(1): f()
    a.wait(lg="all")
    for x in statm(18) + statm(19): a(x)
    a("s_cmp_eq_u32 s72, 2"); a("s_cbranch_scc1 L_rp_f5")
    rp_fin(7, URG); a("s_branch L_rp_done")
    a("L_rp_f5:"); rp_fin(5, URG)
    a("L_rp_done:")
    for tt in range(2):
        for e in range(4): a(f"v_accvgpr_read_b32 v{160+e}, {R(GR + 4*tt + e)}")
        a(f"v_accvgpr_read_b32 v164, {R(RSM + 4*tt)}")
        for x in ["v_cndmask_b32 v160, v160, v161, s[68:69]", "v_cndmask_b32 v162, v162, v163, s[68:69]", "v_mul_f32 v164, s63, v164",
                  "v_cndmask_b32 v160, v160, v162, s[86:87]", "v_mul_f32 v160, s63, v160", "v_fma_f32 v160, -v164, v164, v160",
                  "v_max_f32 v160, 0, v160", "v_add_f32 v160, s64, v160", "v_rsq_f32 v160, v160", "v_mul_f32 v164, v164, v160"]: a(x)
        a.ds(f"ds_write_b32 v{vSTW}, v160 offset:{64*tt}"); a.ds(f"ds_write_b32 v{vSTW}, v164 offset:{128 + 64*tt}")
    a("v_lshlrev_b32 v28, 4, v11"); a("v_add_u32 v28, s48, v28"); a("v_add_u32 v29, s48, v10")
    for tt in range(2):
        a.ds(f"ds_read_b128 {R(RS + 4*tt, 4)}, v28 offset:{64*tt}"); a.ds(f"ds_read_b128 {R(MS + 4*tt, 4)}, v28 offset:{128 + 64*tt}")
        a.ds(f"ds_read_b32 v{RT + tt}, v29 offset:{64*tt}"); a.ds(f"ds_read_b32 v{MT + tt}, v29 offset:{128 + 64*tt}")
    NBE = P("NBE", 3)
    for j in range(2, NBE):
        for f in ldb(j): f()
    a("s_lshl_b32 s73, s70, 9"); a(f"s_add_u32 s73, s73, {C1P}")
    a("s_cmp_eq_u32 s72, 2"); a("s_cselect_b32 s75, 0x40000000, s74"); a("s_cselect_b32 s73, 0x40000000, s73")
    a("v_lshlrev_b32 v85, 4, v11"); a("v_lshl_add_u32 v85, v10, 4, v85"); a("v_cndmask_b32 v85, v2, v85, s[66:67]")
    def ust(t):
        if t < 7: a.vmem(f"buffer_store_dwordx4 {R(URG + 4*t, 4)}, v{8 if t < 4 else 12}, s[40:43], s{74 if t < 5 else 75} offen offset:{1024*(t&3)} sc1", "US")
        else: a.vmem(f"buffer_store_dwordx4 {R(URG+36, 4)}, v85, s[40:43], s73 offen sc1", "US")
    a("s_and_b32 s59, s27, 7"); a("s_lshl_b32 s59, s59, 9"); a(f"s_add_u32 s59, s59, {FU}")
    a("s_lshr_b32 s3, s27, 3"); a("s_lshl_b32 s3, s3, 4"); a("s_add_u32 s3, s3, s26"); a("s_lshl_b32 s3, s3, 2"); a("s_add_u32 s3, s3, s28"); a("s_lshl_b32 s3, s3, 2"); a("s_add_u32 s70, s3, s59")
    a.wait(vm="B0")
    a("s_barrier")
    a.stamp("bP")
    a("s_mov_b32 s94, s60"); a("s_mov_b32 s95, s60"); a("s_mov_b32 s96, s61"); a("s_mov_b32 s97, s61")
    for f in breads1(0): a.run(f)
    def pretouch():
        if "sc1h" in OPT:
            a(f"s_add_u32 s3, s58, {G_FL}"); a("s_bfm_b64 exec, 4, 0"); a.vmem("buffer_load_dword v4, v3, s[40:43], s3 offen"); a("s_mov_b64 exec, -1")
            return
        a("s_mul_i32 s3, s27, 21056"); a("s_add_u32 s3, s3, s58"); a("s_mul_i32 s56, s28, 5376"); a("s_add_u32 s3, s3, s56")
        a("s_bfm_b64 exec, 42, 0"); a.vmem("buffer_load_dword v4, v3, s[40:43], s3 offen"); a("s_mov_b64 exec, -1")
    FB3 = 156
    a("s_and_b32 s3, s27, 7"); a("s_mul_i32 s3, s3, 20"); a("s_add_u32 s3, s3, s28"); a("s_mul_i32 s65, s3, 5120"); a(f"s_add_u32 s65, s65, {WOP}")
    def ldwo(n, t):
        a.vmem(f"buffer_load_dwordx4 {R(FB3 + (n*5+t)*4, 4)}, v{8 if t < 4 else 12}, s[40:43], s65 offen offset:{1024*(t&3)} sc1", "WO")
        if t == 4: a("s_add_u32 s65, s65, 20480")
    def ldfu():
        a("v_lshlrev_b32 v31, 3, v1")
        a.vmem("buffer_load_dwordx2 v[92:93], v31, s[40:43], s59 offen sc1", "FU")
    def chkfu():
        a.wait(vm="FU")
        a("s_mov_b32 s78, 0")
        a("L_fu:")
        a("v_cmp_ne_u32 vcc, s76, v92"); a("v_cmp_ne_u32 s[84:85], s76, v93")
        a("s_or_b64 vcc, vcc, s[84:85]"); a("s_cbranch_scc0 L_fu_ok")
        a("s_add_u32 s78, s78, 1"); a(f"s_cmp_ge_u32 s78, {POLLMAX}"); a("s_cbranch_scc1 L_fu_ok")
        a("buffer_load_dwordx2 v[92:93], v31, s[40:43], s59 offen sc1"); a("s_waitcnt vmcnt(0)")
        a("s_branch L_fu")
        a("L_fu_ok:")
    q_ = ldq(); mix = []
    if "usfirst" in OPT:
        mix = [lambda i=i: ust(i) for i in range(8)] + q_
    else:
        for i in range(12):
            mix.append(q_[i])
            if i < 8: mix.append(lambda i=i: ust(i))
    ldlist = sum([ldb(j) for j in range(NBE, 5)], [])
    MS0 = P("MS0", 6); MR = P("MR", 1)
    a.bgq = mix
    SFU = P("SFU", 18)
    LEND = P("LEND", 16)
    CT = 116
    for s in range(20):
        j, p = divmod(s, 4)
        if p == 3 and j < 4:
            a.wait(vm=f"B{j+1}"); a("s_barrier")
        if s == SFU:
            a.wait(vm="US")
            a("s_mov_b64 exec, 1"); a.vmem("buffer_store_dword v6, v5, s[40:43], s70 offen sc1"); a("s_mov_b64 exec, -1")
        if s == 18:
            a.wait(lg="CSW"); a("s_barrier")
        a.wait(lg=f"R{s}")
        mf = kv_mf(s)
        front = breads1(s+1) if s < 19 else []
        side = []
        if s == 17:
            side += ["s_lshl_b32 s3, s28, 9", f"s_add_u32 s3, s3, {CSX}", "v_add_u32 v27, s3, v8"]
            side.append(lambda: (a("s_bfm_b64 exec, 32, 0"), a.ds(f"ds_write_b128 v27, {R(CSA, 4)}", "CSW"), a("s_mov_b64 exec, -1")))
        if s == 18:
            assert a.vm.count("US") == 8
            side += ["v_lshlrev_b32 v27, 2, v10", f"v_add_u32 v27, {CSX}, v27"]
            for w in range(4):
                side.append(lambda w=w: a.ds(f"ds_read_b128 {R(CT + 4*w, 4)}, v27 offset:{512*w}"))
                side.append(lambda w=w: a.ds(f"ds_read_b32 v{CT + 16 + w}, v27 offset:{512*w + 256}", "CSR"))
        if s == 19:
            side.append(lambda: a.wait(lg="CSR"))
            for e in range(4):
                side += [f"v_add_f32 v{CT+e}, v{CT+e}, v{CT+4+e}", f"v_add_f32 v{CT+8+e}, v{CT+8+e}, v{CT+12+e}", f"v_add_f32 v{CT+20+e}, v{CT+e}, v{CT+8+e}"]
            side += [f"v_add_f32 v{CT+16}, v{CT+16}, v{CT+17}", f"v_add_f32 v{CT+18}, v{CT+18}, v{CT+19}", f"v_add_f32 v{CT+24}, v{CT+16}, v{CT+18}"]
        side += ldlist[:3]; ldlist = ldlist[3:]
        if s >= MS0: side = [lambda: a.bg(1)]*MR + side
        a.interleave(mf, side, front)
    CSV = CT + 20
    a.stamp("kvend")
    if "plainh" in OPT:
        a("s_mul_i32 s3, s27, 21056"); a("s_add_u32 s3, s3, s58"); a("s_mul_i32 s56, s28, 5376"); a("s_add_u32 s3, s3, s56")
        a("s_bfm_b64 exec, 42, 0"); a.vmem("buffer_load_dword v4, v3, s[40:43], s3 offen"); a("s_mov_b64 exec, -1")
    OP = 116; TP = 72
    FUC = P("FUC", 14)
    if FUC < 4: ldfu()
    KBG = P("KBG", 1)
    for t in range(5):
        for tt in range(2):
            b_ = acc(tt, t)
            cp = CSV + t; cpe = cp & ~1; sel = cp & 1
            for h in range(2):
                x = b_ + 2*h
                a(f"v_pk_mul_f32 v[{TP+2*h}:{TP+2*h+1}], v[{MS+4*tt+2*h}:{MS+4*tt+2*h+1}], v[{cpe}:{cpe+1}] op_sel:[0,{sel}] op_sel_hi:[1,{sel}]")
            for h in range(2):
                x = b_ + 2*h
                a(f"v_pk_fma_f32 v[{x}:{x+1}], v[{x}:{x+1}], v[{RS+4*tt+2*h}:{RS+4*tt+2*h+1}], v[{TP+2*h}:{TP+2*h+1}] neg_lo:[0,0,1] neg_hi:[0,0,1]")
            if t <= 2: phi4(a, b_, TP, sel_mask=("s[66:67]" if t == 2 else None))
            for h in range(2):
                a(f"v_cvt_pk_bf16_f32 v{OP + 4*t + 2*tt + h}, v{acc(tt, t) + 2*h}, v{acc(tt, t) + 2*h + 1}")
            if t*2 + tt == SFU - 20:
                a.wait(vm="US")
                a("s_mov_b64 exec, 1"); a.vmem("buffer_store_dword v6, v5, s[40:43], s70 offen sc1"); a("s_mov_b64 exec, -1")
            if t*2 + tt == FUC - 4: ldfu()
            if t*2 + tt == FUC: chkfu(); a.bgq += [lambda n=n, t=t: ldwo(n, t) for n in range(5) for t in range(5)]
            a.bg(KBG)
    while "BQdone" not in a.vm and a.vm.count("BQ") < 11 or (a.bgq and a.bgq[0] is q_[11]): a.bg(1)
    KVD = 32
    for p, (ta, tb) in enumerate(PAIRS):
        a(MF(KVD + 4*p, OP + 4*ta, ONES if tb < 0 else OP + 4*tb, True))
    a("s_mul_i32 s3, s28, 10240"); a("v_add_u32 v27, s3, v8")
    for p in range(10): a(f"ds_write_b128 v27, {R(KVD + 4*p, 4)} offset:{1024*p}")
    a("s_lshl_b32 s3, s27, 4"); a("s_add_u32 s3, s3, s26"); a("s_lshl_b32 s3, s3, 12"); a(f"s_add_u32 s3, s3, {PART}")
    a("v_cmp_gt_u32 vcc, 216, v0"); a("v_cndmask_b32 v9, v2, v9, vcc")
    a.wait(lg="all")
    a("s_barrier")
    for w in range(4): a(f"ds_read_b128 {R(56 + 4*w, 4)}, v{vT1} offset:{10240*w}")
    a("s_waitcnt lgkmcnt(0)")
    for e in (0, 2):
        a(f"v_pk_add_f32 v[{56+e}:{57+e}], v[{56+e}:{57+e}], v[{60+e}:{61+e}]"); a(f"v_pk_add_f32 v[{64+e}:{65+e}], v[{64+e}:{65+e}], v[{68+e}:{69+e}]")
    for e in (0, 2): a(f"v_pk_add_f32 v[{56+e}:{57+e}], v[{56+e}:{57+e}], v[{64+e}:{65+e}]")
    if "p16" in OPT:
        a("v_cvt_pk_bf16_f32 v56, v56, v57"); a("v_cvt_pk_bf16_f32 v57, v58, v59"); a("v_lshrrev_b32 v9, 1, v9")
        a.vmem(f"buffer_store_dwordx2 v[56:57], v9, s[40:43], s3 offen sc1", "PST")
    else:
        a.vmem(f"buffer_store_dwordx4 v[56:59], v9, s[40:43], s3 offen sc1", "PST")
    ldfu()
    a("s_lshr_b32 s48, s27, 3"); a("s_and_b32 s49, s27, 7")
    a("v_lshrrev_b32 v13, 1, v11"); a("v_lshlrev_b32 v13, 8, v13"); a("v_lshl_add_u32 v13, v10, 2, v13")
    a("v_and_b32 v28, 1, v11"); a("v_lshl_add_u32 v13, v28, 3, v13")
    a("v_mul_u32_u24 v14, 320, v10"); a("v_lshl_add_u32 v15, v11, 3, v14"); a("v_lshl_add_u32 v14, v11, 4, v14")
    a("s_lshl_b32 s50, s48, 2"); a("s_add_u32 s50, s50, s28")
    a("s_lshl_b32 s3, s26, 3"); a("s_add_u32 s3, s3, s50"); a("s_mul_i32 s51, s3, 20480"); a("s_mul_i32 s3, s49, 160"); a("s_add_u32 s51, s51, s3")
    a("s_mul_i32 s53, s27, 27"); a("s_lshr_b32 s53, s53, 2")
    a("s_mul_i32 s55, s27, 143360"); a(f"s_add_u32 s55, s55, {W1P}")
    srd(a, 36, 14, 3456)
    a("v_lshlrev_b32 v23, 4, v11"); a("v_lshl_add_u32 v26, v10, 4, v23")
    a("s_lshl_b32 s62, s27, 2"); a("s_add_u32 s62, s62, s28"); a("s_lshl_b32 s62, s62, 7")
    a("s_lshl_b32 s56, s26, 7"); a("s_add_u32 s56, s56, 8192")
    a("v_mov_b32 v27, s62"); a("v_mov_b32 v28, s56"); a("v_cndmask_b32 v17, v27, v28, s[88:89]"); a("v_add_u32 v17, v17, v10")
    a("s_lshl_b32 s3, s26, 2"); a("s_add_u32 s3, s3, s62"); a(f"s_add_u32 s3, s3, {F1}")
    a.wait(vm="PST")
    a("s_mov_b64 exec, 1"); a.vmem("buffer_store_dword v6, v5, s[40:43], s3 offen sc1"); a("s_mov_b64 exec, -1")
    a("s_barrier")
    a.stamp("b7")
    chkfu(); a.bgq += [lambda n=n, t=t: ldwo(n, t) for n in range(5) for t in range(5)]
    FB3 = 156; RES = 116; C1R = 126; T2R = 146
    B1A = A0 + 204
    W1T = A0 + 100
    def w1dma(i):
        a(f"s_mul_i32 s98, s28, {24*1024}"); a(f"s_add_u32 m0, s98, {i*1024}"); a("s_add_u32 s98, s55, m0")
        a.vmem(f"buffer_load_dwordx4 v8, s[40:43], s98 offen sc1 lds", "W1")
    def w1tail(i):
        a(f"s_mul_i32 s98, s28, {11*1024}"); a(f"s_add_u32 s98, s98, {(96+i)*1024}"); a("s_add_u32 s98, s55, s98")
        a.vmem(f"buffer_load_dwordx4 {R(W1T + 4*i, 4)}, v8, s[40:43], s98 offen sc1", "W1")
    def ldsmall():
        a("v_lshlrev_b32 v31, 5, v1"); a("s_add_u32 s98, s30, T2_tab-L_pc"); a("s_addc_u32 s99, s31, 0")
        a.vmem(f"global_load_dwordx4 {R(T2R, 4)}, v31, s[98:99]"); a.vmem(f"global_load_dwordx2 {R(T2R+4, 2)}, v31, s[98:99] offset:16")
    def ldres(q):
        if q == 0: a.vmem(f"buffer_load_dwordx4 {R(RES, 4)}, v14, s[32:35], s51 offen")
        if q == 1: a.vmem(f"buffer_load_dwordx4 {R(RES+4, 4)}, v14, s[32:35], s51 offen offset:64")
        if q == 2: a.vmem(f"buffer_load_dwordx2 {R(RES+8, 2)}, v15, s[32:35], s51 offen offset:128", "RES")
    def ldb1():
        a("v_lshlrev_b32 v31, 3, v11"); a("s_lshl_b32 s98, s53, 5")
        for p in range(3): a.vmem(f"buffer_load_dwordx4 {R(B1A + 4*p, 4)}, v23, s[36:39], s98 offen offset:{64*p}")
        a.vmem(f"buffer_load_dwordx2 {R(B1A + 12, 2)}, v31, s[36:39], s98 offen offset:192")
    def ldc1():
        a("s_mul_i32 s98, s27, 20"); a("s_mul_i32 s99, s28, 5"); a("s_add_u32 s98, s98, s99"); a("s_lshl_b32 s98, s98, 9"); a(f"s_add_u32 s98, s98, {C1P}")
        a("s_mov_b64 exec, s[66:67]")
        for n in range(5): a.vmem(f"buffer_load_dwordx4 {R(C1R + 4*n, 4)}, v26, s[40:43], s98 offen offset:{512*n} sc1", "C1")
        a("s_mov_b64 exec, -1")
    def hidtouch():
        a("s_mul_i32 s98, s27, 27648"); a("s_add_u32 s98, s98, s58"); a(f"s_add_u32 s98, s98, {G_HID}"); a("s_mul_i32 s99, s28, 6912"); a("s_add_u32 s98, s98, s99")
        a("s_bfm_b64 exec, 54, 0"); a.vmem("buffer_load_dword v4, v3, s[40:43], s98 offen"); a("s_mov_b64 exec, -1")
    ldsmall()
    a.bgq += [lambda q=q: ldres(q) for q in range(3)] + [ldb1, ldc1] + [lambda i=i: w1dma(i) for i in range(24)]
    QA = 32
    def qreads(s):
        j, p = divmod(s, 4)
        return [lambda t=t: a.ds(f"ds_read_b128 {R(BF + (s%3)*12 + t*4, 4)}, v{vTQ[p] if t < 2 else vTQ2[p]} offset:{j*10240 + (t&1)*1024}", f"Q{s}") for t in range(3)]
    for f in qreads(0) + qreads(1): f()
    a(f"s_mov_b32 s56, {F1}")
    QSTOP = P("QSTOP", 16)
    for s in range(20):
        j, p = divmod(s, 4)
        if s == 18: a.wait(lg="CQW"); a("s_barrier")
        a.wait(lg=f"Q{s}")
        mf = []
        for t in range(3):
            b = BF + (s%3)*12 + t*4
            for tt in range(2): mf.append(MF(QA + (tt*3+t)*4, b, xf(tt, s), s == 0))
            if p == 0: mf.append(MF(CSQ, b, OH + 4*t, s == 0 and t == 0))
        front = qreads(s+2) if s < 18 else []
        side = []
        if s < QSTOP: side += [lambda: a.bg(1)]*P("QBG", 1)
        if s == 17:
            side.append(lambda: a.vmem("buffer_load_dword v16, v17, s[40:43], s56 offen sc1", "POLL1"))
            side += ["s_lshl_b32 s3, s28, 9", f"s_add_u32 s3, s3, {CSX}", "v_add_u32 v27, s3, v26"]
            side.append(lambda: (a("s_mov_b64 exec, s[66:67]"), a.ds(f"ds_write_b128 v27, {R(CSQ, 4)}", "CQW"), a("s_mov_b64 exec, -1")))
        if s == 18:
            side += [f"v_add_u32 v30, {CSX}, v23"]
            for w, base in ((0, 56), (1, 68), (2, 96)):
                for t in range(3): side.append(lambda w=w, t=t, base=base: a.ds(f"ds_read_b128 {R(base + 4*t, 4)}, v30 offset:{512*w + 64*t}", "CQR"))
        if s == 19:
            side.append(lambda: a.wait(lg="CQR"))
            for x in range(12): side.append(f"v_add_f32 v{56+x}, v{56+x}, v{68+x}")
            for t in range(3): side.append(lambda t=t: a.ds(f"ds_read_b128 {R(68 + 4*t, 4)}, v30 offset:{1536 + 64*t}", "CQR"))
        a.interleave(mf, side, front)
    a.stamp("qend")
    a.wait(vm="POLL1")
    a("s_mov_b32 s78, 0")
    a("L_h1p:")
    a("v_and_b32 v28, 0xfffffff8, v16"); a("v_cmp_ne_u32 vcc, s76, v28")
    a("s_cbranch_vccz L_h1ok")
    a("s_add_u32 s78, s78, 1"); a(f"s_cmp_ge_u32 s78, {POLLMAX}"); a("s_cbranch_scc1 L_h1ok")
    a("buffer_load_dword v16, v17, s[40:43], s56 offen sc1"); a("s_waitcnt vmcnt(0)")
    a("s_branch L_h1p")
    a("L_h1ok:")
    a.stamp("h1ok")
    a.vm = []
    a("v_cmp_ne_u32 vcc, s77, v16"); a("s_and_b64 vcc, vcc, s[88:89]"); a("s_cselect_b32 s79, 0, 1")
    if os.environ.get("FORCESLOW"): a("s_mov_b32 s79, 0")
    P0 = A0
    a("s_lshl_b32 s3, s27, 16"); a(f"s_add_u32 s3, s3, {PART}")
    for r_ in range(16):
        if "p16" in OPT: a.vmem(f"buffer_load_dwordx2 {R(P0 + 4*r_, 2)}, v9, s[40:43], s3 offen sc1", f"P{r_}")
        else: a.vmem(f"buffer_load_dwordx4 {R(P0 + 4*r_, 4)}, v9, s[40:43], s3 offen sc1", f"P{r_}")
        a("s_add_u32 s3, s3, 4096")
    a.bgq += [lambda i=i: w1tail(i) for i in range(11)]
    for x in range(0, 12, 2): a(f"v_pk_add_f32 v[{56+x}:{57+x}], v[{56+x}:{57+x}], v[{96+x}:{97+x}]")
    a.wait(lg="all")
    for x in range(0, 12, 2): a(f"v_pk_add_f32 v[{56+x}:{57+x}], v[{56+x}:{57+x}], v[{68+x}:{69+x}]")
    PQR = 96
    EBG = P("EBG", 2)
    for tt in range(2):
        for t in range(3):
            b_ = QA + (tt*3+t)*4
            for h in range(2):
                a(f"v_pk_mul_f32 v[{TP+2*h}:{TP+2*h+1}], v[{56+4*t+2*h}:{57+4*t+2*h}], v[{MT}:{MT+1}] op_sel:[0,{tt}] op_sel_hi:[1,{tt}]")
            for h in range(2):
                x = b_ + 2*h
                a(f"v_pk_fma_f32 v[{x}:{x+1}], v[{x}:{x+1}], v[{RT}:{RT+1}], v[{TP+2*h}:{TP+2*h+1}] op_sel:[0,{tt},0] op_sel_hi:[1,{tt},1] neg_lo:[0,0,1] neg_hi:[0,0,1]")
            phi4(a, b_, TP)
            for h in range(2):
                d = f"v{PQR + tt*6 + t*2 + h}"
                a(f"v_cvt_pk_bf16_f32 {d}, v{QA + (tt*3+t)*4 + 2*h}, v{QA + (tt*3+t)*4 + 2*h + 1}")
                if t == 2: a(f"v_cndmask_b32 {d}, 0, {d}, s[90:91]")
            a.bg(EBG)
    OSC = SCR
    TA = 56
    for s_ in range(12):
        src = T2R + s_//2
        if s_ & 1: a(f"v_lshrrev_b32 v{TA+s_}, 16, v{src}")
        else: a(f"v_and_b32 v{TA+s_}, 0xffff, v{src}")
        a(f"v_add_u32 v{TA+s_}, {OSC}, v{TA+s_}")
    for r_ in range(16):
        if r_ % 4 == 0: a.wait(vm=f"P{r_+3}")
        if "p16" in OPT:
            b_ = 32 if r_ == 0 else 36
            for e in range(2): a(f"v_accvgpr_read_b32 v{40+e}, {R(P0+4*r_+e)}")
            for e in range(2): a(f"v_lshlrev_b32 v{b_+2*e}, 16, v{40+e}"); a(f"v_and_b32 v{b_+2*e+1}, 0xffff0000, v{40+e}")
        else:
            for e in range(4): a(f"v_accvgpr_read_b32 v{(32 if r_ == 0 else 36)+e}, {R(P0+4*r_+e)}")
        if r_:
            for e in (0, 2): a(f"v_pk_add_f32 v[{32+e}:{33+e}], v[{32+e}:{33+e}], v[{36+e}:{37+e}]")
        if r_ % 4 == 3: a.bg(EBG)
    a("v_cvt_pk_bf16_f32 v18, v32, v33"); a("v_cvt_pk_bf16_f32 v19, v34, v35")
    a("v_cmp_gt_u32 vcc, 210, v0")
    a("v_cndmask_b32 v18, 0, v18, vcc"); a("v_cndmask_b32 v19, 0, v19, vcc")
    a("v_lshlrev_b32 v27, 3, v0"); a(f"v_add_u32 v27, {OSC}, v27")
    a("ds_write_b64 v27, v[18:19]")
    a("s_waitcnt lgkmcnt(0)")
    a("s_barrier")
    a.stamp("b9")
    KF = A0 + 64
    for E in range(4):
        for ta in range(3): a(f"ds_read_b64 {R(KF + 8*E + 2*ta, 2)}, v{TA + 3*E + ta}")
    a("s_mul_i32 s3, s28, 40960"); a("s_mul_i32 s56, s27, 1280"); a("s_add_u32 s3, s3, s56"); a("s_add_u32 s3, s3, s58")
    a("v_lshlrev_b32 v27, 2, v10"); a("v_lshl_add_u32 v27, v11, 3, v27")
    a("v_cndmask_b32 v27, v2, v27, s[90:91]")
    a("s_waitcnt lgkmcnt(0)")
    D = 32
    for tt in range(2):
        for E in (3, 0, 1, 2):
            d = R(D + (tt*4+E)*4, 4)
            a(f"v_mfma_f32_16x16x32_bf16 {d}, {R(KF + 8*E, 4)}, {R(PQR + 6*tt, 4)}, 0")
    for tt in range(2):
        for E in (3, 0, 1, 2):
            d = R(D + (tt*4+E)*4, 4)
            a(f"v_mfma_f32_16x16x16_bf16 {d}, {R(KF + 8*E + 4, 2)}, {R(PQR + 6*tt + 4, 2)}, {d}")
    for tt in range(2):
        z = D + (tt*4+3)*4
        a(f"v_add_f32 v20, s61, v{z}"); a(f"v_add_f32 v21, s61, v{z+1}")
        a("v_rcp_f32 v20, v20"); a("v_rcp_f32 v21, v21")
        a("v_cndmask_b32 v22, v21, v20, s[92:93]"); a("v_cndmask_b32 v28, v21, v20, s[90:91]")
        ob = 64 + 8*tt
        for E, rc in ((0, 22), (1, 28), (2, 21)):
            d = D + (tt*4+E)*4
            for e in range(4): a(f"v_mul_f32 v{d+e}, v{d+e}, v{rc}")
            a(f"v_cvt_pk_bf16_f32 v{ob + 2*E}, v{d}, v{d+1}"); a(f"v_cvt_pk_bf16_f32 v{ob + 2*E + 1}, v{d+2}, v{d+3}")
        a.vmem(f"buffer_store_dwordx4 {R(ob, 4)}, v8, s[40:43], s3 offen{HS}", "ST")
        a.vmem(f"buffer_store_dwordx2 {R(ob + 4, 2)}, v27, s[40:43], s3 offen offset:1024{HS}", "ST")
        a("s_add_u32 s3, s3, 20480")

    def hop(n, before, after_pub, post=0, touch=None, post2=0):
        before()
        a(f"s_add_u32 s59, s58, {G_FL + 128*n}")
        a("s_lshl_b32 s3, s27, 2"); a("s_add_u32 s3, s3, s59")
        a.bg(post)
        a.wait(vm="ST")
        if touch and "notouch" not in OPT: touch()
        a("s_barrier")
        a.stamp(f"hop{n}a")
        a("s_cmp_lg_u32 s28, 0"); a(f"s_cbranch_scc1 L_g{n}np")
        a("s_mov_b64 exec, 1")
        a("s_cmp_eq_u32 s79, 0"); a(f"s_cbranch_scc1 L_g{n}slow")
        a("buffer_store_dword v6, v5, s[40:43], s3 offen")
        a(f"s_branch L_g{n}pd")
        a(f"L_g{n}slow:")
        if FENCE: a("buffer_wbl2 sc1"); a("s_waitcnt vmcnt(0)")
        a("buffer_store_dword v6, v5, s[40:43], s3 offen sc1")
        a(f"L_g{n}pd:")
        a("s_mov_b64 exec, -1")
        a(f"L_g{n}np:")
        after_pub()
        a.bg(post2)
        a("s_cmp_lg_u32 s28, 0"); a(f"s_cbranch_scc1 L_g{n}j")
        a("s_mov_b32 s78, 0")
        a(f"L_g{n}p:")
        a("buffer_load_dword v27, v10, s[40:43], s59 offen sc1")
        a("s_add_u32 s78, s78, 1")
        a("s_waitcnt vmcnt(0)")
        a("v_cmp_ne_u32 vcc, s76, v27")
        a(f"s_cmp_ge_u32 s78, {POLLMAX}"); a(f"s_cbranch_scc1 L_g{n}x")
        a(f"s_cbranch_vccnz L_g{n}p")
        a(f"L_g{n}x:")
        if FENCE:
            a("s_cmp_lg_u32 s79, 0"); a(f"s_cbranch_scc1 L_g{n}j")
            a("buffer_inv sc1"); a("s_waitcnt vmcnt(0)")
        a(f"L_g{n}j:")
        a("s_barrier")
        a.stamp(f"hop{n}b")
    def a_off(NK, goff):
        for m in range(4):
            a(f"s_add_u32 s3, s28, {m}"); a("s_and_b32 s3, s3, 3"); a("s_lshl_b32 s57, s48, 2"); a("s_add_u32 s3, s3, s57")
            a(f"s_mul_i32 s3, s3, {NK}"); a("s_add_u32 s3, s3, s28"); a("s_lshl_b32 s3, s3, 10"); a("s_add_u32 s3, s3, s58"); a(f"s_add_u32 s{80+m}, s3, {goff}")
    def ctouch(lab, nl):
        def f():
            a("s_lshl_b32 s98, s27, 2"); a("s_add_u32 s98, s98, s28"); a(f"s_mul_i32 s98, s98, {128*nl}"); a(f"s_add_u32 s98, s98, {lab}-L_pc")
            a("v_add_u32 v31, s98, v3"); a(f"s_bfm_b64 exec, {nl}, 0")
            a.vmem("global_load_dword v4, v31, s[30:31]"); a("s_mov_b64 exec, -1")
        return f
    if "noct" not in OPT: a.bgq.insert(0, ctouch("L_cS4", 2))
    def flush_wo():
        while any(True for _ in [0]) and a.bgq and len(a.bgq) > 24 + 11: a.bg(1)
    def bef0():
        a_off(20, G_O)
        a("s_mul_i32 s99, s28, 40960"); a("s_mul_i32 s56, s27, 1280"); a("s_add_u32 s99, s99, s56"); a("s_add_u32 s99, s99, s58")
        a("v_mul_u32_u24 v28, 20480, v11"); a("v_lshl_add_u32 v28, v10, 5, v28")
    def tch0():
        a("s_mov_b64 exec, 0x03ff03ff"); a.vmem("buffer_load_dword v4, v28, s[40:43], s99 offen sc1"); a("s_mov_b64 exec, -1")
    hop(0, bef0, lambda: None, post=0, touch=tch0, post2=P("POST0", 10))
    flush_wo()
    ACC = 32 ; FA3 = A0
    for n in range(5):
        for m in range(4):
            a.vmem(f"buffer_load_dwordx4 {R(FA3 + (n*4+m)*4, 4)}, v8, s[40:43], s{80+m} offen sc1", f"A{n}")
            a(f"s_add_u32 s{80+m}, s{80+m}, 4096")
    if "sc1hid" not in OPT: a.bgq.insert(0, hidtouch)
    RED = 102400
    def red_addr():
        for m in range(1, 4):
            a(f"s_add_u32 s3, s28, {m}"); a("s_and_b32 s3, s3, 3"); a("s_mul_i32 s3, s3, 15360"); a(f"s_add_u32 s3, s3, {RED}")
            a(f"v_add_u32 v{16+m}, s3, v8")
        a("s_mul_i32 s3, s28, 15360"); a(f"s_add_u32 s3, s3, {RED}"); a("v_add_u32 v16, s3, v8")
    def init_acc(srcs):
        for t in range(5):
            for e in range(4):
                for q, src0 in enumerate(srcs):
                    src = src0 + 2*t + (e >> 1); d = ACC+4*t+e if q == 0 else 27
                    if e & 1: a(f"v_and_b32 v{d}, 0xffff0000, v{src}")
                    else: a(f"v_lshlrev_b32 v{d}, 16, v{src}")
                    if q: a(f"v_add_f32 v{ACC+4*t+e}, v{ACC+4*t+e}, v27")
    def last_step(mfn):
        order = [(m, t) for m in (1, 2, 3, 0) for t in range(5)]
        for i, (m, t) in enumerate(order):
            a(mfn(m, t))
            if i >= 5:
                m2, t2 = order[i-5]
                a(f"ds_write_b128 v{16+m2}, {R(ACC + (m2*5+t2)*4, 4)} offset:{(m2-1)*5120 + t2*1024}")
    red_addr()
    if "RES" in a.vm: a.wait(vm="RES")
    init_acc([RES])
    S3BG = P("S3BG", 3)
    for n in range(5):
        a.wait(vm=f"A{n}")
        if n == 4:
            last_step(lambda m, t: MF(ACC + (m*5+t)*4, FB3 + (n*5+t)*4, FA3 + (n*4+m)*4, False)); a.bg(S3BG)
        else:
            mf = [MF(ACC + (m*5+t)*4, FB3 + (n*5+t)*4, FA3 + (n*4+m)*4, n == 0 and m > 0) for m in range(4) for t in range(5)]
            a.interleave(mf, [lambda: a.bg(1)]*S3BG)
    a.stamp("s3end")
    a("L_cS4:")
    if "plainhid" in OPT and P("HTP", 0) == 0: hidtouch()
    HF = A0; BF = A0 + 160
    NA = P("NA", 4); BS = 4*max(NA, 7 - NA)
    if NA == 4:
        slots = [156 + 4*i for i in range(16)] + [A0 + 192 + 4*i for i in range(3)] + [A0 + 220 + 4*i for i in range(9)] + [HF + 4*i for i in range(40)] + [BF + 4*i for i in range(2)]
        NEARLY = 28
        arA = [A0 + 168 + 4*i for i in range(6)] + [A0 + 204 + 4*i for i in range(4)]
    elif NA == 7:
        for x in range(14): a(f"v_accvgpr_mov_b32 {R(A0 + 240 + x)}, {R(B1A + x)}")
        B1A = A0 + 240
        slots = [156 + 4*i for i in range(16)] + [A0 + 216 + 4*i for i in range(6)] + [HF + 4*i for i in range(40)] + [BF + 4*i for i in range(8)]
        NEARLY = 22
        arA = [A0 + 192 + 4*i for i in range(6)] + [A0 + 240 + 4*i for i in range(4)]
    else:
        for x in range(14): a(f"v_accvgpr_mov_b32 {R(A0 + 240 + x)}, {R(B1A + x)}")
        B1A = A0 + 240
        slots = [156 + 4*i for i in range(16)] + [A0 + 208 + 4*i for i in range(8)] + [HF + 4*i for i in range(40)] + [BF + 4*i for i in range(6)]
        NEARLY = 24
        arA = [A0 + 184 + 4*i for i in range(6)] + [A0 + 240 + 4*i for i in range(4)]
    def fb(n, t): return slots[n*5 + t]
    a("s_mul_i32 s3, s49, 54"); a("s_add_u32 s3, s3, s28"); a("s_mul_i32 s54, s3, 5120"); a(f"s_add_u32 s54, s54, {W2P}")
    def ldw2(n, t):
        if n == 13 and t == 0:
            a("s_cmp_ge_u32 s28, 2"); a("s_cselect_b32 s98, 0x40000000, 0"); a("s_add_u32 s54, s54, s98")
        a.vmem(f"buffer_load_dwordx4 {R(fb(n, t), 4)}, v{8 if t < 4 else 12}, s[40:43], s54 offen offset:{1024*(t&3)} sc1", f"W2_{n}")
        if t == 4: a("s_add_u32 s54, s54, 20480")
    w2q = [(n, t) for n in range(14) for t in range(5)]
    nw1left = len(a.bgq)
    def w2bg():
        ldw2(*w2q.pop(0))
    a.bgq += [w2bg]*NEARLY
    def reduce_epi(which, BIA=None, nbg=0):
        a.bg(2*nbg)
        a("s_waitcnt lgkmcnt(0)")
        a("s_barrier")
        for t in range(5):
            for m in range(1, 4): a(f"ds_read_b128 {R(ACC + (m*5+t)*4, 4)}, v16 offset:{(m-1)*5120 + t*1024}")
        for t in range(5):
            a(f"s_waitcnt lgkmcnt({12 - 3*t})")
            for e in (0, 2):
                x0 = ACC + 4*t + e
                a(f"v_pk_add_f32 v[{x0+20}:{x0+21}], v[{x0+20}:{x0+21}], v[{x0+40}:{x0+41}]"); a(f"v_pk_add_f32 v[{x0}:{x0+1}], v[{x0}:{x0+1}], v[{x0+60}:{x0+61}]")
            for e in (0, 2):
                x0 = ACC + 4*t + e
                a(f"v_pk_add_f32 v[{x0}:{x0+1}], v[{x0}:{x0+1}], v[{x0+20}:{x0+21}]")
            for h in range(2): a(f"v_cvt_pk_bf16_f32 v{RES+2*t+h}, v{ACC+4*t+2*h}, v{ACC+4*t+2*h+1}")
            if which == 3:
                if t == 1: a.vmem(f"buffer_store_dwordx4 {R(RES, 4)}, v8, s[40:43], s57 offen{HS}")
                if t == 3: a.vmem(f"buffer_store_dwordx4 {R(RES+4, 4)}, v8, s[40:43], s57 offen offset:1024{HS}")
                if t == 4: a.vmem(f"buffer_store_dwordx2 {R(RES+8, 2)}, v13, s[40:43], s57 offen offset:2048{HS}")
    a("s_mul_i32 s57, s50, 20480"); a("s_mul_i32 s3, s49, 2560"); a("s_add_u32 s57, s57, s3"); a("s_add_u32 s57, s57, s58"); a(f"s_add_u32 s57, s57, {G_H}")
    reduce_epi(3, nbg=P("R3BG", 3))
    a(f"v_pk_add_f32 v[28:29], v[{ACC}:{ACC+1}], v[{ACC+2}:{ACC+3}]"); a(f"v_pk_mul_f32 v[30:31], v[{ACC}:{ACC+1}], v[{ACC}:{ACC+1}]"); a(f"v_pk_fma_f32 v[30:31], v[{ACC+2}:{ACC+3}], v[{ACC+2}:{ACC+3}], v[30:31]")
    for x in range(4, 20, 2):
        a(f"v_pk_add_f32 v[28:29], v[28:29], v[{ACC+x}:{ACC+x+1}]"); a(f"v_pk_fma_f32 v[30:31], v[{ACC+x}:{ACC+x+1}], v[{ACC+x}:{ACC+x+1}], v[30:31]")
    a("v_add_f32 v20, v28, v29"); a("v_add_f32 v21, v30, v31")
    def red_g(regs, tmp):
        for r_ in regs:
            a(f"v_mov_b32 {tmp}, {r_}"); a(f"v_permlane32_swap_b32 {r_}, {tmp}"); a(f"v_add_f32 {r_}, {r_}, {tmp}")
            a(f"v_mov_b32 {tmp}, {r_}"); a(f"v_permlane16_swap_b32 {r_}, {tmp}"); a(f"v_add_f32 {r_}, {r_}, {tmp}")
    red_g(["v20", "v21"], "v22")
    a("v_lshlrev_b32 v22, 1, v10")
    a("s_lshl_b32 s57, s50, 10"); a("s_lshl_b32 s3, s49, 7"); a("s_add_u32 s57, s57, s3"); a("s_add_u32 s57, s57, s58"); a(f"s_add_u32 s57, s57, {G_ST}")
    a.vmem(f"buffer_store_dwordx2 v[20:21], v22, s[40:43], s57 offen{HS}", "ST")
    CS = 128; CSL = 144384
    def bef3():
        a("s_mul_i32 s3, s28, 40960"); a("s_add_u32 s3, s3, s58"); a(f"s_add_u32 s80, s3, {G_H}"); a("s_add_u32 s81, s80, 20480")
        a("s_lshl_b32 s82, s28, 11"); a("s_add_u32 s82, s82, s58"); a(f"s_add_u32 s82, s82, {G_ST}")
        a("v_lshlrev_b32 v19, 8, v11"); a("v_lshl_add_u32 v19, v10, 1, v19")
        a("v_add_u32 v16, 57344, v8"); a("v_add_u32 v17, 114688, v8")
        a(f"s_mul_i32 s3, s28, {11*1024}"); a(f"s_add_u32 s3, s3, {96*1024}"); a("v_add_u32 v18, s3, v8")
        for e in range(4):
            a(f"v_add_f32 v{C1R+e}, v{C1R+e}, v{C1R+4+e}"); a(f"v_add_f32 v{C1R+8+e}, v{C1R+8+e}, v{C1R+12+e}")
            a(f"v_add_f32 v{C1R+e}, v{C1R+e}, v{C1R+16+e}"); a(f"v_add_f32 v{C1R+e}, v{C1R+e}, v{C1R+8+e}")
        a("s_lshl_b32 s3, s28, 9"); a(f"s_add_u32 s3, s3, {CSL}"); a("v_add_u32 v29, s3, v26")
    def aft3():
        if "W1" in a.vm: a.wait(vm="W1")
        for i in range(11): a(f"ds_write_b128 v18, {R(W1T + 4*i, 4)} offset:{1024*i}")
        a("s_mov_b64 exec, s[66:67]"); a(f"ds_write_b128 v29, {R(C1R, 4)}"); a("s_mov_b64 exec, -1")
        a("s_waitcnt lgkmcnt(0)")
    left1 = max(0, len(a.bgq) - len([1 for x in a.bgq if x is w2bg]))
    print("w1 left at hop3:", left1, "w2 issued:", 70 - len(w2q), file=sys.stderr)
    def tch1():
        a("s_mul_i32 s99, s50, 20480"); a("s_mul_i32 s98, s49, 2560"); a("s_add_u32 s99, s99, s98"); a("s_add_u32 s99, s99, s58"); a(f"s_add_u32 s99, s99, {G_H}")
        a("s_mov_b64 exec, 0xfffff"); a.vmem("buffer_load_dword v4, v3, s[40:43], s99 offen sc1"); a("s_mov_b64 exec, -1")
    hop(1, bef3, aft3, post=left1, touch=tch1, post2=max(0, P("POST1", 6) - left1))
    def hf(tt, k): return HF + (k*2 + tt)*4
    def ldh(k):
        def one(tt):
            a.vmem(f"buffer_load_dwordx4 {R(hf(tt, k), 4)}, v8, s[40:43], s{80+tt} offen offset:{1024*(k&3)} sc1", f"H{k}")
            if (k & 3) == 3: a(f"s_add_u32 s{80+tt}, s{80+tt}, 4096")
        return [lambda tt=tt: one(tt) for tt in range(2)]
    PRE = P("PRE4", 6)
    for k in range(PRE):
        for f in ldh(k): f()
    for tt in range(2):
        for q in range(2):
            a.vmem(f"buffer_load_dwordx2 {R(88 + 4*tt + 2*q, 2)}, v19, s[40:43], s82 offen offset:{1024*tt + 128*q} sc1", "STAT")
    def breads(ps, k):
        ts = range(NA) if ps == 0 else range(NA, 7)
        return [lambda t=t: a.ds(f"ds_read_b128 {R(BF + (k&1)*BS + 4*(t - ts[0]), 4)}, v{[8, 16, 17][k >> 3]} offset:{(k & 7)*7168 + 1024*t}", f"BR{ps}_{k}") for t in ts]
    for f in breads(0, 0): f()
    vS = [20, 21]; vQ = [24, 25]
    a(f"v_add_u32 v18, {CSL}, v23")
    hq = list(range(PRE, 20))
    B1U = 220
    c1 = -2.0*LOG2E*0.7978845608028654
    c2 = c1*0.044715
    a(f"s_mov_b32 s60, {hx(c1)}"); a(f"s_mov_b32 s61, {hx(c2)}")
    a("s_mul_i32 s56, s28, 110592"); a("s_lshl_b32 s3, s53, 9"); a("s_add_u32 s56, s56, s3"); a("s_add_u32 s56, s56, s58"); a(f"s_add_u32 s56, s56, {G_HID}"); a("s_add_u32 s57, s56, 55296")
    for k in range(20):
        a.wait(vm=f"H{k}", lg=f"BR0_{k}")
        front = breads(0, k+1) if k < 19 else (breads(1, 0) if NA < 7 else [])
        side = []
        if NA == 7:
            if hq:
                for _ in range(P("HRATE", 2)):
                    if hq: side += ldh(hq.pop(0))
            else:
                side += [w2bg]*max(0, min(P("ABG", 2), len(w2q), NEARLY + 2*k - (70 - len(w2q))))
        elif hq:
            side += ldh(hq.pop(0))
            if not hq and "plainhid" in OPT and P("HTP", 0) == 1: side.append(hidtouch)
        else: side += [lambda: a.bg(1)]*P("ABG", 1)
        if 1 <= k < 8:
            kk = k - 1; tb = 96 if kk % 2 == 0 else 220
            side.append(lambda kk=kk: a.wait(lg=f"CG{kk}"))
            for e in range(4):
                side += [f"v_add_f32 v{CS+4*kk+e}, v{CS+4*kk+e}, v{tb+e}", f"v_add_f32 v{tb+4+e}, v{tb+4+e}, v{tb+8+e}", f"v_add_f32 v{CS+4*kk+e}, v{CS+4*kk+e}, v{tb+4+e}"]
        if k < 7:
            tb = 96 if k % 2 == 0 else 220
            for w in range(4): front.append(lambda w=w, k=k, tb=tb: a.ds(f"ds_read_b128 {R((CS + 4*k) if w == 0 else (tb - 4 + 4*w), 4)}, v18 offset:{512*w + 64*k}", f"CG{k}"))
        if k == PRE + 2:
            for tt in range(2):
                side.append(f"v_add_f32 v{vS[tt]}, v{88+4*tt}, v{90+4*tt}"); side.append(f"v_add_f32 v{vQ[tt]}, v{89+4*tt}, v{91+4*tt}")
            side.append(lambda: red_g([f"v{x}" for x in vS + vQ], "v22"))
        if k == PRE + 3:
            for tt in range(2):
                s_, q_ = f"v{vS[tt]}", f"v{vQ[tt]}"
                side += [f"v_mul_f32 {s_}, s63, {s_}", f"v_mul_f32 {q_}, s63, {q_}", f"v_fma_f32 {q_}, -{s_}, {s_}, {q_}", f"v_max_f32 {q_}, 0, {q_}",
                         f"v_add_f32 v22, s64, {q_}", f"v_fma_f32 {q_}, v22, s64, {q_}", f"v_rsq_f32 {q_}, {q_}", f"v_mul_f32 {s_}, {s_}, {q_}"]
            side += ["v_mov_b32 v252, s60", "v_mov_b32 v253, s60", "s_mov_b32 s96, s61", "s_mov_b32 s97, s61"]
        if k >= 12:
            x = 2*(k - 12)
            for y in (x, x + 1):
                if y < 14:
                    side += [f"v_accvgpr_read_b32 v27, {R(B1A + y)}", f"v_lshlrev_b32 v{B1U+2*y}, 16, v27", f"v_and_b32 v{B1U+2*y+1}, 0xffff0000, v27"]
        mf = [MF(ACC + (tt*7+t)*4, BF + (k&1)*BS + 4*t, hf(tt, k), k == 0) for t in range(NA) for tt in range(2)]
        a.interleave(mf, side, front)
    a.stamp("s4A")
    if "noct" not in OPT: ctouch("L_cS5", 1)()
    PK = 88
    def gelu(tt, t, pk=False):
        L = []
        if pk:
            b_ = ACC + (tt*7+t)*4
            pr = lambda x: f"v[{x}:{x+1}]"
            for h in (0, 2): L.append(f"v_pk_fma_f32 {pr(248+h)}, v[20:21], {pr(CS+4*t+h)}, {pr(B1U+4*t+h)} op_sel:[{tt},0,0] op_sel_hi:[{tt},1,1] neg_lo:[1,0,0] neg_hi:[1,0,0]")
            for h in (0, 2): L.append(f"v_pk_fma_f32 {pr(b_+h)}, {pr(b_+h)}, v[24:25], {pr(248+h)} op_sel:[0,{tt},0] op_sel_hi:[1,{tt},1]")
            for h in (0, 2): L.append(f"v_pk_mul_f32 {pr(248+h)}, {pr(b_+h)}, {pr(b_+h)}")
            for h in (0, 2): L.append(f"v_pk_fma_f32 {pr(248+h)}, {pr(248+h)}, s[96:97], v[252:253]")
            for h in (0, 2): L.append(f"v_pk_mul_f32 {pr(248+h)}, {pr(248+h)}, {pr(b_+h)}")
            for e in range(4): L.append(f"v_exp_f32 v{248+e}, v{248+e}")
            for h in (0, 2): L.append(f"v_pk_add_f32 {pr(248+h)}, {pr(248+h)}, 1.0 op_sel_hi:[1,0]")
            for e in range(4): L.append(f"v_rcp_f32 v{248+e}, v{248+e}")
            for h in (0, 2): L.append(f"v_pk_mul_f32 {pr(b_+h)}, {pr(b_+h)}, {pr(248+h)}")
        else:
            for e in range(4):
                v_ = f"v{ACC + (tt*7+t)*4 + e}"; ta = f"v{248+e}"
                L += [f"v_fma_f32 {ta}, -v{vS[tt]}, v{CS+4*t+e}, v{B1U+4*t+e}", f"v_fma_f32 {v_}, {v_}, v{vQ[tt]}, {ta}", f"v_mul_f32 {ta}, {v_}, {v_}",
                      f"v_fma_f32 {ta}, {ta}, s61, v252", f"v_mul_f32 {ta}, {ta}, {v_}", f"v_exp_f32 {ta}, {ta}"]
            for e in range(4):
                ta = f"v{248+e}"; L += [f"v_add_f32 {ta}, 1.0, {ta}"]
            for e in range(4):
                ta = f"v{248+e}"; L += [f"v_rcp_f32 {ta}, {ta}"]
            for e in range(4):
                v_ = f"v{ACC + (tt*7+t)*4 + e}"; L.append(f"v_mul_f32 {v_}, {v_}, v{248+e}")
        for h in range(2):
            x0 = ACC + (tt*7+t)*4 + 2*h
            L.append(f"v_cvt_pk_bf16_f32 v{PK + tt*14 + 2*t + h}, v{x0}, v{x0+1}")
        if t & 1: L.append(lambda: a.vmem(f"buffer_store_dwordx4 {R(PK + tt*14 + 2*(t-1), 4)}, v8, s[40:43], s{56+tt} offen offset:{512*(t-1)}{HS2}", "ST" if t > 3 else "ST01"))
        if t == 6: L.append(lambda: a.vmem(f"buffer_store_dwordx2 {R(PK + tt*14 + 12, 2)}, v13, s[40:43], s{56+tt} offen offset:3072{HS2}", "ST"))
        return L
    gl = []
    for p in range(NA//2 if NA < 7 else 0):
        for tt in range(2): gl += gelu(tt, 2*p, "pkB" in OPT) + gelu(tt, 2*p+1, "pkB" in OPT)
    a.bgq = []
    W2RATE = P("W2RATE", 2)
    for k in range(20 if NA < 7 else 0):
        a.wait(lg=f"BR1_{k}")
        front = breads(1, k+1) if k < 19 else []
        q = (len(gl) + 19 - k)//(20 - k) if k > 0 else 0
        side = gl[:q]; gl = gl[q:]
        nin = max(0, min(W2RATE, len(w2q), NEARLY + 2*k - (70 - len(w2q))))
        for i_ in range(nin): side.insert((i_ + 1)*len(side)//(nin + 1), w2bg)
        mf = [MF(ACC + (tt*7+t)*4, BF + (k&1)*BS + 4*(t-NA), hf(tt, k), k == 0) for t in range(NA, 7) for tt in range(2)]
        a.interleave(mf, side, front)
    a.stamp("s4B")
    a("L_cS5:")
    W2EPI = P("W2EPI", 2)
    seq = [(0, 4), (0, 5), (1, 4), (1, 5), (0, 6), (1, 6)] if NA == 4 else [(0, 6), (1, 6)]
    if NA == 7: seq = [(tt, 2*p + q) for p in range(3) for tt in range(2) for q in range(2)] + [(0, 6), (1, 6)]
    for i_, (tt, t) in enumerate(seq):
        L = gelu(tt, t, True)
        if i_ == P("HT", 99):
            a("v_and_b32 v28, 1, v11"); a("v_mul_u32_u24 v28, 55296, v28"); a("v_lshl_add_u32 v28, v10, 5, v28")
            a.wait(vm="ST01")
            a("s_bfm_b64 exec, 32, 0"); a.vmem("buffer_load_dword v4, v28, s[40:43], s56 offen sc1"); a("s_mov_b64 exec, -1")
        for j_, x in enumerate(L):
            a.run(x)
            if i_ < P("W2STOP", 4) and j_ in (6, 16)[:W2EPI] and w2q: ldw2(*w2q.pop(0))
    BIA = 126
    def bef4():
        srd(a, 32, 20, 2621440); srd(a, 36, 18, 1280)
        a_off(54, G_HID)
        a("v_lshlrev_b32 v28, 3, v11"); a("s_mul_i32 s3, s49, 160")
        a.vmem(f"buffer_load_dwordx4 {R(BIA, 4)}, v23, s[36:39], s3 offen")
        a.vmem(f"buffer_load_dwordx4 {R(BIA+4, 4)}, v23, s[36:39], s3 offen offset:64")
        a.vmem(f"buffer_load_dwordx2 {R(BIA+8, 2)}, v28, s[36:39], s3 offen offset:128", "BIA")
    npost = min(P("POST2", 4), len(w2q))
    a.bgq = [lambda x=x: ldw2(*x) for x in w2q[:npost]]; w2q = w2q[npost:]
    print("w2 left after hop4:", len(w2q), file=sys.stderr)
    def tch2():
        a("v_lshrrev_b32 v28, 5, v1"); a("v_mul_u32_u24 v28, 55296, v28"); a("v_and_b32 v29, 31, v1"); a("v_lshl_add_u32 v28, v29, 7, v28")
        a("s_mov_b32 exec_lo, 0x0fffffff"); a("s_mov_b32 exec_hi, 0x0fffffff"); a.vmem("buffer_load_dword v4, v28, s[40:43], s56 offen sc1"); a("s_mov_b64 exec, -1")
    hop(2, bef4, lambda: None, post=0, touch=tch2, post2=npost)
    ar = [136 + 4*i for i in range(5)] + [220 + 4*i for i in range(9)] + arA
    NR = 6
    def fa(n, m): return ar[(n % NR)*4 + m]
    def lda5(n):
        def one(m):
            if n == 13 and m == 0:
                a("s_cmp_ge_u32 s28, 2"); a("s_cselect_b32 s3, 0x40000000, 0")
                for q in range(4): a(f"s_add_u32 s{80+q}, s{80+q}, s3")
            a.vmem(f"buffer_load_dwordx4 {R(fa(n, m), 4)}, v8, s[40:43], s{80+m} offen sc1", f"A5_{n}")
            a(f"s_add_u32 s{80+m}, s{80+m}, 4096")
        return [lambda m=m: one(m) for m in range(4)]
    PRE5 = P("PRE5", 3)
    def need_w2(n):
        L = []
        while w2q and w2q[0][0] <= n:
            x = w2q.pop(0); L.append(lambda x=x: ldw2(*x))
        return L
    for n in range(PRE5):
        for f in need_w2(n) + lda5(n): f()
    def ldbia():
        a("v_lshlrev_b32 v28, 3, v11"); a("s_mul_i32 s3, s49, 160")
        a.vmem(f"buffer_load_dwordx4 {R(BIA, 4)}, v23, s[36:39], s3 offen")
        a.vmem(f"buffer_load_dwordx4 {R(BIA+4, 4)}, v23, s[36:39], s3 offen offset:64")
        a.vmem(f"buffer_load_dwordx2 {R(BIA+8, 2)}, v28, s[36:39], s3 offen offset:128")
    red_addr(); a.wait(vm="BIA"); init_acc([RES, BIA])
    nxt = PRE5
    for n in range(14):
        a.wait(vm=f"A5_{n}")
        side = []; cnt = 0
        while nxt < 14 and nxt <= n + NR - 1 and cnt < 2:
            side += need_w2(nxt) + lda5(nxt); nxt += 1; cnt += 1
        if n == 13:
            last_step(lambda m, t: MF(ACC + (m*5+t)*4, fb(n, t), fa(n, m), False))
        else:
            mf = [MF(ACC + (m*5+t)*4, fb(n, t), fa(n, m), n == 0 and m > 0) for m in range(4) for t in range(5)]
            a.interleave(mf, side)
    a.stamp("s5end")
    reduce_epi(5, BIA)
    a(f"buffer_store_dwordx4 {R(RES, 4)}, v14, s[32:35], s51 offen")
    a(f"buffer_store_dwordx4 {R(RES+4, 4)}, v14, s[32:35], s51 offen offset:64")
    a(f"buffer_store_dwordx2 {R(RES+8, 2)}, v15, s[32:35], s51 offen offset:128")
    a("s_or_b32 s3, s2, s28"); a("s_cmp_lg_u32 s3, 0"); a("s_cbranch_scc1 L_notagclr")
    a("global_store_dword v5, v5, s[22:23] sc1")
    a("L_notagclr:")
    a.stamp("stored")
    if STAMP:
        a("s_waitcnt vmcnt(0)")
        a.stamp("end")
        a("s_memrealtime s[100:101]"); a("s_waitcnt lgkmcnt(0)"); a("v_writelane_b32 v7, s100, 31")
        a("v_writelane_b32 v7, s79, 30")
        a("s_lshl_b32 s3, s2, 2"); a("s_add_u32 s3, s3, s28"); a("s_lshl_b32 s3, s3, 8"); a(f"s_add_u32 s3, s3, {STB}")
        a("v_lshlrev_b32 v27, 2, v1"); a("v_add_u32 v27, s3, v27")
        a("global_store_dword v27, v7, s[24:25]")
        if os.environ.get("DELAY"):
            di = os.environ["DELAY"]
            a(f"s_cmp_lg_u32 s2, {P('DWG', 8)}"); a("s_cbranch_scc1 L_end"); a("s_cmp_lg_u32 s28, 0"); a("s_cbranch_scc1 L_end")
            clk = "s_memrealtime" if di == "rt" else "s_memtime"
            a(f"{clk} s[100:101]"); a("s_waitcnt lgkmcnt(0)")
            if di == "rt":
                a("s_sub_u32 s3, s100, s76")
            else:
                a(f"v_readlane_b32 s3, v7, {di}"); a("v_readlane_b32 s56, v7, 0"); a("s_nop 3"); a("s_sub_u32 s3, s3, s56")
            a("s_lshl_b32 s3, s3, 2"); a("s_min_u32 s3, s3, 0x100000"); a("s_mov_b32 s57, s100")
            a("L_dly:")
            a(f"{clk} s[100:101]"); a("s_waitcnt lgkmcnt(0)"); a("s_sub_u32 s56, s100, s57"); a("s_cmp_lt_u32 s56, s3"); a("s_cbranch_scc1 L_dly")
        a.a.raw("; STAMPS " + " ".join(a.names))
    a("L_end:")
    a("s_endpgm")
    return a.a

def main(out):
    hdr = open("sequential_preLN__linear_attn_block__mixer_channel_mlp__prompt.s.ref").read().split("\n")
    hdr = [l for l in hdr if l.startswith(";") and "@launch" not in l]
    hdr.append("; @launch grid=(256,1,1) block=(256,1,1) lds=163840")
    a = gen()
    pre = '.amdgcn_target "amdgcn-amd-amdhsa--gfx950"\n.text\n'
    T1, T2 = build_tables()
    a.raw(".p2align 6\nT1_tab:")
    a.raw(".short " + ",".join(map(str, T1)))
    a.raw("T2_tab:")
    for row in T2: a.raw(".short " + ",".join(map(str, row)))
    a.raw(".fill 2048, 4, 0")
    a.raw('.section .rodata,"a"\n.p2align 6')
    a.raw(f""".amdhsa_kernel {NAME}
  .amdhsa_next_free_vgpr 512
  .amdhsa_next_free_sgpr 102
  .amdhsa_accum_offset 256
  .amdhsa_group_segment_fixed_size 0
  .amdhsa_kernarg_size 88
  .amdhsa_user_sgpr_count 2
  .amdhsa_user_sgpr_kernarg_segment_ptr 1
  .amdhsa_system_sgpr_workgroup_id_x 1
.end_amdhsa_kernel""")
    open(out, "w").write("\n".join(hdr) + "\n" + pre + a.finish())

if __name__ == "__main__":
    main(sys.argv[1])
```

```python
import sys, struct, os
from asmdsl import Asm, R, S
from gen1 import build_tables, PAIRS, f2u, hx, divmod_const, srd, LOG2E

NAME = "sequential_preLN__linear_attn_block__mixer_channel_mlp__prompt_kernel"
WOP = 0
W2P = WOP + 8*20*5*1024
W1P = W2P + 8*54*5*1024
C1P = W1P + 16*20*7*1024
WQKV = C1P + 320*512
PART = WQKV + 16*153600
GRP = PART + 256*4096
G_O = 0; G_H = 163840; G_ST = 327680; G_FL = 335872; G_HID = 336896; G_SZ = G_HID + 442368
FLG = GRP + 16*G_SZ
F1 = FLG; F1R = FLG + 8192; F0 = FLG + 10240; FU = FLG + 14336
WS_END = FLG + 20480
A0 = 256
STAMP = int(os.environ.get("STAMP", "0"))
STB = 32 << 20
POLLMAX = 1 << 15
OPT = set(os.environ.get("OPT", "").split(","))
def P(name, d): return int(os.environ.get(name, d))

class G:
    def __init__(self):
        self.a = Asm(); self.vm = []; self.lg = []; self.nst = 0; self.bgq = []; self.names = []
    def __call__(self, t): self.a(t)
    def vmem(self, text, tag=None): self.a(text); self.vm.append(tag)
    def ds(self, text, tag=None): self.a(text); self.lg.append(tag)
    def _n(self, lst, tag, cap):
        idx = max(i for i, t in enumerate(lst) if t == tag)
        return min(len(lst) - 1 - idx, cap)
    def wait(self, vm=None, lg=None):
        s = []
        if vm is not None: s.append(f"vmcnt({0 if vm == 'all' else self._n(self.vm, vm, 63)})")
        if lg is not None: s.append(f"lgkmcnt({0 if lg == 'all' else self._n(self.lg, lg, 15)})")
        self.a("s_waitcnt " + " ".join(s))
        if vm == 'all': self.vm = []
        if lg == 'all': self.lg = []
    def stamp(self, name=""):
        if STAMP != 1: return
        i = self.nst; self.nst += 1; self.names.append(name)
        assert i < 29
        self.a("s_memtime s[100:101]"); self.a("s_waitcnt lgkmcnt(0)"); self.a(f"v_writelane_b32 v7, s100, {i}")
    def run(self, x): x() if callable(x) else self.a(x)
    def bg(self, n=1):
        for _ in range(n):
            if self.bgq: self.bgq.pop(0)()
    def interleave(self, main, extra, front=()):
        n = len(main); m = len(extra); j = 0; front = list(front)
        for i, x in enumerate(main):
            self.run(x)
            if front:
                self.run(front.pop(0))
                if len(front) >= n - i and front: self.run(front.pop(0))
            while j < m and (j + 1) * n <= (i + 1) * m + (n - 1):
                self.run(extra[j]); j += 1
        for x in front: self.run(x)
        while j < m:
            self.run(extra[j]); j += 1

def MF(d, a_, b_, first): return f"v_mfma_f32_16x16x32_bf16 {R(d,4)}, {R(a_,4)}, {R(b_,4)}, {'0' if first else R(d,4)}"

def phi(a, val, t1, t2):
    a(f"v_mul_f32 {t1}, s60, {val}")
    a(f"v_max_f32 {t2}, 0, {val}")
    a(f"v_exp_f32_e64 {t1}, {t1} clamp")
    a(f"v_add_f32 {t2}, s61, {t2}")
    a(f"v_add_f32 {val}, {t1}, {t2}")

OPT |= {"sc1h", "sc1hid", "notouch", "usfirst", "ft"}
def phi4(a, b_, T, sel_mask=None):
    for h in range(2): a(f"v_pk_mul_f32 v[{T+2*h}:{T+2*h+1}], v[{b_+2*h}:{b_+2*h+1}], s[94:95]")
    for e in range(4): a(f"v_max_f32 v{T+4+e}, 0, v{b_+e}")
    for e in range(4): a(f"v_exp_f32_e64 v{T+e}, v{T+e} clamp")
    for h in range(2): a(f"v_pk_add_f32 v[{T+4+2*h}:{T+5+2*h}], v[{T+4+2*h}:{T+5+2*h}], s[96:97]")
    if sel_mask is None:
        for h in range(2): a(f"v_pk_add_f32 v[{b_+2*h}:{b_+2*h+1}], v[{T+2*h}:{T+2*h+1}], v[{T+4+2*h}:{T+5+2*h}]")
    else:
        for h in range(2): a(f"v_pk_add_f32 v[{T+2*h}:{T+2*h+1}], v[{T+2*h}:{T+2*h+1}], v[{T+4+2*h}:{T+5+2*h}]")
        for e in range(4): a(f"v_cndmask_b32 v{b_+e}, v{b_+e}, v{T+e}, {sel_mask}")
RPNT = "" if "rpplain" in OPT else " nt"
HS = "" if "plainh" in OPT else " sc1"
HS2 = "" if "plainhid" in OPT else " sc1"
FENCE = "plainh" in OPT or "plainhid" in OPT
def gen():
    a = G()
    name = NAME
    NRAW = P("NRAW", 2)
    a.a.raw(f".globl {name}\n.p2align 8\n.type {name},@function\n{name}:")
    a("s_cmp_ge_u32 s2, 256"); a("s_cbranch_scc1 L_end")
    a("s_load_dwordx16 s[4:19], s[0:1], 0")
    a("s_load_dwordx4 s[20:23], s[0:1], 64")
    a("s_load_dwordx2 s[24:25], s[0:1], 80")
    a("s_memrealtime s[76:77]")
    a("s_getpc_b64 s[30:31]")
    a("L_pc:")
    a("v_mov_b32 v7, 0")
    a.stamp("start")
    a("v_lshrrev_b32 v2, 6, v0"); a("v_and_b32 v1, 63, v0")
    a("v_readfirstlane_b32 s28, v2")
    if "m48" in OPT:
        a("s_and_b32 s3, s2, 7"); a("s_lshr_b32 s29, s2, 3")
        a("s_lshr_b32 s26, s3, 1"); a("s_lshl_b32 s26, s26, 2"); a("s_lshr_b32 s27, s29, 3"); a("s_add_u32 s26, s26, s27")
        a("s_and_b32 s3, s3, 1"); a("s_lshl_b32 s3, s3, 2"); a("s_and_b32 s27, s29, 3"); a("s_or_b32 s27, s27, s3")
        a("s_and_b32 s29, s29, 4"); a("s_lshl_b32 s29, s29, 1"); a("s_or_b32 s27, s27, s29")
    else:
        a("s_and_b32 s3, s2, 7"); a("s_lshr_b32 s27, s2, 3"); a("s_lshr_b32 s26, s27, 4"); a("s_lshl_b32 s3, s3, 1")
        a("s_add_u32 s26, s26, s3")
        a("s_and_b32 s27, s27, 15")
    a("v_lshlrev_b32 v3, 7, v1")
    if "cp16" in OPT:
        a("s_cmp_lg_u32 s28, 3"); a("s_cbranch_scc1 L_nocp")
        a("s_mul_i32 s3, s27, 2304"); a("v_add_u32 v27, s3, v3"); a("s_bfm_b64 exec, 18, 0")
        a("global_load_dword v4, v27, s[30:31]"); a("s_mov_b64 exec, -1")
    elif "nocp" not in OPT:
        a("s_cmp_lg_u32 s28, 3"); a("s_cbranch_scc1 L_nocp")
        a("s_mul_i32 s3, s27, 13"); a("s_lshr_b32 s3, s3, 6"); a("s_mul_i32 s3, s3, 5"); a("s_sub_u32 s3, s27, s3"); a("s_lshl_b32 s3, s3, 13")
        a("v_add_u32 v27, s3, v3")
        a("global_load_dword v4, v27, s[30:31]")
    a("L_nocp:")
    BQ = 102400; SCR = 153600; CSX = 161792
    vXA = [72, 73, 74, 75]; vW = [76, 77]; vRd = [78, 79]; vTB = [17, 18, 19, 20]; vTQ = [86, 87, 88, 89]; vTQ2 = [90, 91, 21, 22]
    vSA = [80, 81, 82]; vBA = [144, 145, 146, 147, 148]; vTR = [149, 150, 151, 152]
    vT1 = 24; vSTW = 25
    ACC = 32; RAW = 160; XF = A0; BF = A0 + 160; ONES = A0 + 200; GR = A0 + 204; RSM = A0 + 212; OH = A0 + 220; CSA = A0 + 240; CSQ = A0 + 244
    t0, t1, t2, t3 = "v27", "v28", "v29", "v30"
    def early():
        a("v_and_b32 v27, 3, v1"); a("s_lshl_b32 s3, s28, 2"); a("v_add_u32 v27, s3, v27"); a("v_min_u32 v27, 14, v27")
        a("v_lshrrev_b32 v28, 2, v1"); a("v_mul_u32_u24 v28, 3840, v28"); a("v_lshl_add_u32 v28, v27, 4, v28")
        a("v_add_u32 v29, 1280, v28"); a("v_add_u32 v30, 2480, v28"); a("v_subrev_u32 v28, 160, v28")
        a("v_cmp_gt_u32 vcc, 10, v27"); a("s_mul_i32 s50, s26, 153600"); a("s_mul_i32 s51, s27, 80"); a("v_cndmask_b32 v28, v28, v30, vcc")
        a("v_cmp_gt_u32 vcc, 5, v27"); a("s_add_u32 s50, s50, s51"); a("s_mul_i32 s53, s28, 3072"); a("v_cndmask_b32 v83, v28, v29, vcc")
        a(f"s_add_u32 s53, s53, {BQ + 28672}")
        a("s_mul_i32 s3, s26, 163840"); a("s_mul_i32 s56, s27, 10240"); a("s_add_u32 s3, s3, s56"); a("s_mul_i32 s56, s28, 2560"); a("s_add_u32 s57, s3, s56")
        a("v_mov_b32 v5, 0")
    def late():
        a("v_lshlrev_b32 v8, 4, v1"); a("v_lshlrev_b32 v9, 4, v0")
        a("v_and_b32 v10, 15, v1"); a("v_lshlrev_b32 v10, 2, v10")
        a("v_lshrrev_b32 v11, 4, v1"); a("v_add_u32 v12, 4096, v8")
        a("v_lshrrev_b32 v27, 3, v1"); a("v_and_b32 v28, 7, v1"); a("v_mul_u32_u24 v29, 1280, v27")
        a(f"v_lshl_add_u32 v{vXA[0]}, v28, 4, v29")
        for rg in range(1, 4): a(f"v_add_u32 v{vXA[rg]}, {10240*rg}, v{vXA[0]}")
        a("s_lshl_b32 s3, s28, 11"); a(f"s_add_u32 s48, s3, {SCR}")
        a("v_lshrrev_b32 v29, 1, v27"); a("v_xor_b32 v29, v29, v28"); a("v_lshlrev_b32 v29, 4, v29"); a("v_lshl_add_u32 v29, v27, 7, v29")
        a(f"v_add_u32 v{vW[0]}, s48, v29")
        a("v_xor_b32 v29, 64, v29"); a("v_add_u32 v29, 1024, v29"); a(f"v_add_u32 v{vW[1]}, s48, v29")
        a("s_lshl_b32 s49, s26, 7"); a("s_lshl_b32 s3, s28, 5"); a("s_add_u32 s49, s49, s3"); a("s_mul_i32 s49, s49, 1280")
        a("s_lshr_b32 s3, s28, 1"); a("s_lshl_b32 s3, s3, 7"); a("s_add_u32 s62, s49, 128"); a("s_sub_u32 s62, s62, s3"); a("s_add_u32 s49, s49, s3")
        a("s_mul_i32 s52, s28, 5120")
        a(f"s_mul_i32 s58, s26, {G_SZ}"); a(f"s_add_u32 s58, s58, {GRP}")
        a("s_lshl_b32 s70, s28, 4"); a("s_add_u32 s70, s70, s26")
        a(f"s_mul_i32 s71, s28, 7168"); a(f"s_add_u32 s71, s71, {BQ}")
        a("v_mov_b32 v2, 0x7fffffff")
    early()
    if "slowpro" in OPT: late()
    a("s_waitcnt lgkmcnt(0)")
    srd(a, 36, 6, 2457600)
    SLNT = "" if "slplain" in OPT else " nt"
    for i in range(3):
        a(f"s_add_u32 m0, s53, {1024*i}")
        if i == 2: a("s_bfm_b64 exec, 32, 0")
        a.vmem(f"buffer_load_dwordx4 v83, s[36:39], s50 offen{SLNT} lds", "SLD")
        a(f"s_add_u32 s50, s50, {16*3840}")
    srd(a, 32, 4, 2621440); srd(a, 40, 24, WS_END)
    a("s_mov_b64 exec, 0xfffff")
    a.vmem(f"buffer_load_dword v4, v3, s[32:35], s57 offen{' nt' if 'xtnt' in OPT else ''}")
    if "tlb" in OPT:
        a("v_lshlrev_b32 v27, 20, v1"); a("s_bfm_b64 exec, 24, 0")
        a.vmem(f"buffer_load_dword v4, v27, s[40:43], 0 offen")
    if "tlb2" in OPT:
        a("s_mul_i32 s54, s27, 153600"); a(f"s_add_u32 s54, s54, {WQKV}")
        a("v_mul_u32_u24 v27, 51200, v1"); a("v_add_u32 v27, s54, v27"); a(f"v_mov_b32 v28, {F0}"); a("v_cmp_eq_u32 vcc, 3, v1"); a("v_cndmask_b32 v27, v27, v28, vcc")
        a("s_bfm_b64 exec, 4, 0")
        a.vmem(f"buffer_load_dword v4, v27, s[40:43], 0 offen")
        a.vmem("global_load_dword v4, v5, s[22:23] offset:128")
    a("s_mov_b64 exec, -1")
    if STAMP: a("v_writelane_b32 v7, s76, 29")
    a("s_and_b32 s76, s76, 0xfffffff8"); a("s_or_b32 s76, s76, 8")
    a("s_or_b32 s3, s2, s28"); a("s_cmp_lg_u32 s3, 0"); a("s_cbranch_scc1 L_notag")
    a("v_mov_b32 v28, s76"); a("global_store_dword v5, v28, s[22:23] sc1")
    a("L_notag:")
    if "ft" in OPT:
        a("s_cmp_lg_u32 s26, s27"); a("s_cbranch_scc1 L_noft"); a("s_cmp_lg_u32 s28, 1"); a("s_cbranch_scc1 L_noft")
        a("s_mul_i32 s3, s27, 1280"); a(f"s_add_u32 s3, s3, {FLG}")
        a("s_bfm_b64 exec, 10, 0"); a("buffer_load_dword v4, v3, s[40:43], s3 offen sc0 sc1"); a("s_mov_b64 exec, -1")
        a("L_noft:")
    if "tlb3" in OPT:
        a("s_cmp_lg_u32 s28, 2"); a("s_cbranch_scc1 L_not3")
        a("v_lshlrev_b32 v27, 16, v1"); a("v_lshlrev_b32 v28, 18, v1")
        for cc, (sp, n_) in enumerate([(12, 34), (16, 34), (8, 13), (20, 40)]):
            a(f"s_cmp_lg_u32 s27, {2+cc}"); a(f"s_cbranch_scc1 L_t3_{cc}")
            a(f"s_bfm_b64 exec, {n_}, 0"); a(f"global_load_dword v4, v27, s[{sp}:{sp+1}]"); a("s_mov_b64 exec, -1")
            a(f"L_t3_{cc}:")
        a("s_cmp_lg_u32 s27, 6"); a("s_cbranch_scc1 L_t3_4"); a("buffer_load_dword v4, v28, s[40:43], 0 offen"); a("L_t3_4:")
        a("s_cmp_lg_u32 s27, 7"); a("s_cbranch_scc1 L_not3"); a(f"s_mov_b32 s3, {64 << 18}"); a("buffer_load_dword v4, v28, s[40:43], s3 offen")
        a("L_not3:")
    if "tlb4" in OPT:
        a("s_cmp_lg_u32 s28, 2"); a("s_cbranch_scc1 L_not4")
        a("v_lshlrev_b32 v27, 21, v1"); a("s_bfm_b64 exec, 2, 0")
        a("global_load_dword v4, v27, s[12:13]"); a("global_load_dword v4, v27, s[16:17]"); a("s_mov_b64 exec, 1"); a("global_load_dword v4, v27, s[8:9]")
        a("s_bfm_b64 exec, 11, 0"); a("buffer_load_dword v4, v27, s[40:43], 0 offen")
        a("s_mov_b64 exec, -1")
        a("L_not4:")
    if "nobt" not in OPT:
        a("s_lshl_b32 s3, s27, 2"); a("s_add_u32 s3, s3, s28"); a("s_cmp_lg_u32 s3, 6"); a("s_cbranch_scc1 L_nobt")
        a("s_bfm_b64 exec, 27, 0"); a("global_load_dword v4, v3, s[14:15]")
        a("s_bfm_b64 exec, 10, 0"); a("global_load_dword v4, v3, s[18:19]")
        a("s_mov_b64 exec, -1")
        a("L_nobt:")
    srd(a, 44, 12, 2211840)
    if "slowpro" not in OPT: late()
    def rp_issue(nt, pitch_src, nch):
        for i in range(7):
            if i < nt:
                a(f"v_add_u32 v27, {64*i}, v1")
                divmod_const(a, "v28", "v29", "v27", nch)
                a(f"v_mul_u32_u24 v28, {pitch_src}, v28"); a("v_lshl_add_u32 v28, v29, 4, v28")
                a(f"s_add_u32 m0, s71, {1024*i}")
                a(f"buffer_load_dwordx4 v28, s[44:47], s73 offen{RPNT} lds")
            else:
                a("buffer_load_dword v4, v2, s[44:47], 0 offen")
    def unit_issue():
        a("s_cmp_ge_u32 s70, 20"); a("s_cbranch_scc1 L_rp5")
        a("s_mov_b32 s72, 1")
        a("s_mul_i32 s75, s27, 27"); a("s_lshr_b32 s75, s75, 2"); a("s_lshl_b32 s75, s75, 5")
        a("s_mul_i32 s79, s70, 110592"); a("s_add_u32 s73, s75, s79")
        a("s_mul_i32 s75, s27, 20"); a("s_add_u32 s70, s70, s75")
        a("s_mul_i32 s74, s70, 7168"); a(f"s_add_u32 s74, s74, {W1P}")
        rp_issue(7, 3456, 14)
        a("s_branch L_rp_issued")
        a("L_rp5:")
        a("s_mov_b32 s72, 2")
        a("s_sub_u32 s79, s70, 20"); a("s_lshl_b32 s79, s79, 1"); a("s_lshr_b32 s75, s27, 3"); a("s_add_u32 s79, s79, s75"); a("s_and_b32 s75, s27, 7")
        a("s_cmp_ge_u32 s79, 54"); a("s_cbranch_scc1 L_rpwo")
        srd(a, 44, 16, 2211840)
        a("s_mul_i32 s78, s75, 54"); a("s_add_u32 s78, s78, s79")
        a("s_mul_i32 s74, s78, 5120"); a(f"s_add_u32 s74, s74, {W2P}")
        a("s_branch L_rp5b")
        a("L_rpwo:")
        srd(a, 44, 8, 819200)
        a("s_sub_u32 s79, s79, 54")
        a("s_mul_i32 s78, s75, 20"); a("s_add_u32 s78, s78, s79")
        a("s_mul_i32 s74, s78, 5120"); a(f"s_add_u32 s74, s74, {WOP}")
        a("s_cmp_ge_u32 s79, 20"); a("s_cselect_b32 s74, 0x40000000, s74")
        a("L_rp5b:")
        a("s_mul_i32 s75, s75, 160"); a("s_mul_i32 s79, s79, 40960"); a("s_add_u32 s73, s75, s79")
        rp_issue(5, 1280, 10)
        a("L_rp_issued:")
        a.vm += ["UL"]*7
    def raw(cx, rg): return 96 + (((cx + 1) % 10)*4 + rg)*4
    def xf(tt, k): return XF + (tt*20 + k)*4
    def ldx(cx):
        return [lambda cx=cx, rg=rg: a.vmem(f"buffer_load_dwordx4 {R(raw(cx, rg), 4)}, v{vXA[rg]}, s[32:35], s{62 if cx & 1 else 49} offen offset:{256*(cx>>1)}", f"X{cx}") for rg in range(4)]
    a("v_and_b32 v27, 15, v1")
    a("v_cmp_gt_u32 s[66:67], 8, v27")
    a("v_cmp_gt_u32 s[90:91], 32, v1"); a("v_cmp_gt_u32 s[92:93], 48, v1")
    a("v_cmp_eq_u32 s[88:89], 1, v11")
    a("v_and_b32 v29, 1, v11")
    a("s_lshl_b32 s3, s28, 1"); a("v_add_u32 v29, s3, v29")
    a("v_cmp_gt_u32 s[94:95], 5, v29"); a("v_cmp_eq_u32 s[96:97], 7, v29")
    a("v_lshlrev_b32 v29, 10, v29"); a(f"v_add_u32 v30, {BQ - 5120}, v29"); a("v_cndmask_b32 v29, v30, v29, s[94:95]")
    a("v_lshl_add_u32 v29, v10, 2, v29")
    a("v_mov_b32 v30, 2560"); a("v_mov_b32 v31, 5120"); a("v_cndmask_b32 v30, v30, v31, s[94:95]")
    a("v_mov_b32 v31, 8"); a("v_cndmask_b32 v31, v31, 7, s[96:97]")
    a("s_andn2_b64 s[96:97], s[96:97], s[66:67]")
    a("s_mul_i32 s3, s26, 5")
    a("v_lshrrev_b32 v28, 1, v11"); a("v_add_u32 v28, s3, v28")
    for n in range(3):
        a(f"v_lshrrev_b32 v27, 2, v28"); a(f"v_mad_u32_u24 v{vSA[n]}, v27, v30, v29")
        a("v_and_b32 v27, 3, v28"); a("v_lshlrev_b32 v27, v31, v27"); a(f"v_add_u32 v{vSA[n]}, v{vSA[n]}, v27")
        a(f"v_cndmask_b32 v{vSA[n]}, v{vSA[n]}, v2, s[96:97]")
        if n == 2: a(f"v_cndmask_b32 v{vSA[n]}, v2, v{vSA[n]}, s[90:91]")
        else: a("v_add_u32 v28, 2, v28")
    a("v_lshrrev_b32 v27, 5, v1"); a("v_bfe_u32 v28, v1, 2, 2"); a("v_lshl_add_u32 v27, v27, 3, v28"); a("v_lshlrev_b32 v27, 6, v27")
    a("v_bfe_u32 v28, v1, 4, 1"); a("v_lshl_add_u32 v27, v28, 5, v27"); a("v_and_b32 v28, 3, v1"); a("v_lshl_add_u32 v27, v28, 3, v27")
    a("v_add_u32 v84, s53, v27")
    a("s_mul_i32 s54, s27, 153600"); a(f"s_add_u32 s54, s54, {WQKV}")
    a.wait(vm="SLD")
    a.stamp("sld")
    for n in range(3):
        for h in range(2): a(f"ds_read_b64_tr_b16 {R(96 + 4*n + 2*h, 2)}, v84 offset:{1024*n + 256*h}")
    a("s_waitcnt lgkmcnt(0)")
    for n in range(3): a.vmem(f"buffer_store_dwordx4 {R(96 + 4*n, 4)}, v{vSA[n]}, s[40:43], s54 offen sc1", "SL")
    a.vmem("global_load_dword v6, v5, s[22:23] sc1", "TAG")
    NX0 = P("NX0", 3)
    for cx in range(NX0):
        for f in ldx(cx): f()
    a("v_and_b32 v27, 15, v1")
    a("v_lshrrev_b32 v29, 1, v27"); a("v_xor_b32 v29, v29, v11"); a("v_lshlrev_b32 v29, 4, v29"); a("v_lshl_add_u32 v29, v27, 7, v29")
    a("s_and_b32 s3, s28, 1"); a("s_lshl_b32 s3, s3, 6"); a("v_xor_b32 v29, s3, v29")
    a(f"v_add_u32 v{vRd[0]}, s48, v29"); a("v_xor_b32 v29, 64, v29"); a(f"v_add_u32 v{vRd[1]}, s48, v29")
    a("v_lshrrev_b32 v29, 2, v27"); a("v_cmp_eq_u32 vcc, v29, v11")
    a("v_lshlrev_b32 v30, 2, v1"); a("v_add_u32 v30, 512, v30")
    a("v_cndmask_b32 v29, v30, v10, vcc"); a(f"v_add_u32 v{vSTW}, s48, v29")
    a("v_and_b32 v29, 1, v1"); a("v_cmp_eq_u32 s[68:69], 1, v29")
    a("v_and_b32 v29, 2, v1"); a("v_cmp_eq_u32 s[86:87], 2, v29")
    a("v_mov_b32 v28, 0x3f803f80")
    for i in range(4): a(f"v_accvgpr_write_b32 {R(ONES+i)}, v28")
    for t in range(5):
        a(f"v_cmp_eq_u32 vcc, {t}, v27"); a("v_cndmask_b32 v29, 0, v28, vcc")
        for e in range(4): a(f"v_accvgpr_write_b32 {R(OH+4*t+e)}, v29")
    a("v_and_b32 v27, 7, v1"); a("v_lshlrev_b32 v27, 4, v27"); a("v_lshl_add_u32 v27, v11, 7, v27")
    for p in range(4):
        a(f"s_xor_b32 s3, s28, {p}"); a("s_mul_i32 s56, s3, 5120"); a(f"v_add_u32 v{vTB[p]}, s56, v8")
        a("s_mul_i32 s56, s3, 2560"); a(f"s_add_u32 s56, s56, {BQ}"); a(f"v_add_u32 v{vTQ[p]}, s56, v8"); a("s_add_u32 s56, s56, 2048"); a(f"v_add_u32 v{vTQ2[p]}, s56, v27")
    a(f"s_mov_b32 s60, {hx(LOG2E)}"); a(f"s_mov_b32 s61, {hx(1e-6)}")
    a(f"s_mov_b32 s63, {hx(1.0/640)}"); a(f"s_mov_b32 s64, {hx(1e-5)}")
    a("s_lshl_b32 s55, s27, 8"); a(f"s_add_u32 s55, s55, {F0}")
    a("v_lshlrev_b32 v26, 2, v1")
    a("s_lshl_b32 s3, s26, 4"); a("s_lshl_b32 s56, s28, 2"); a("s_add_u32 s3, s3, s56"); a("s_add_u32 s3, s3, s55")
    a.wait(vm="TAG")
    a("v_readfirstlane_b32 s76, v6"); a("s_mov_b32 s78, 0")
    a("L_tp1:")
    a("s_cmp_lg_u32 s76, 0"); a("s_cbranch_scc1 L_tp1_ok")
    a("global_load_dword v6, v5, s[22:23] sc1"); a("s_add_u32 s78, s78, 1"); a("s_waitcnt vmcnt(0)")
    a("v_readfirstlane_b32 s76, v6")
    a(f"s_cmp_lt_u32 s78, {POLLMAX}"); a("s_cbranch_scc1 L_tp1")
    a("L_tp1_ok:")
    a("s_getreg_b32 s77, hwreg(HW_REG_XCC_ID)"); a("s_and_b32 s77, s77, 7"); a("s_or_b32 s77, s77, s76")
    a("s_lshl_b32 s57, s26, 7"); a("s_lshl_b32 s56, s27, 2"); a("s_add_u32 s57, s57, s56"); a(f"s_add_u32 s57, s57, {F1R}")
    a("s_cmp_eq_u32 s28, 0"); a("s_cselect_b32 s57, s57, 0x40000000"); a("v_mov_b32 v27, s77")
    a("s_mov_b64 exec, 1"); a.vmem("buffer_store_dword v6, v5, s[40:43], s3 offen sc1"); a.vmem("buffer_store_dword v27, v5, s[40:43], s57 offen sc1"); a("s_mov_b64 exec, -1")
    a.stamp("F0pub")
    def rp_fin(nt, RG):
        pitch = nt*32
        a("v_bfe_u32 v28, v1, 2, 2"); a("v_lshl_add_u32 v27, v11, 3, v28"); a("v_and_b32 v28, 3, v1")
        a(f"v_mul_u32_u24 v29, {pitch}, v27"); a("v_add_u32 v29, s71, v29")
        a("v_lshl_add_u32 v30, v28, 3, v29"); a("v_lshl_add_u32 v29, v28, 4, v29")
        for t in range(nt):
            for h in range(2):
                if t == nt - 1: a(f"ds_read_b64_tr_b16 {R(RG + 4*t + 2*h, 2)}, v30 offset:{h*4*pitch + 32*t}")
                else: a(f"ds_read_b64_tr_b16 {R(RG + 4*t + 2*h, 2)}, v29 offset:{h*4*pitch + 64*(t>>1) + 8*(t&1)}")
        if nt == 7:
            a("v_mov_b32 v28, 0x3f803f80")
            for t in (5, 6):
                a(f"v_cmp_eq_u32 vcc, {4*t}, v10")
                for e in range(4): a(f"v_cndmask_b32 v{RG+28+4*(t-5)+e}, 0, v28, vcc")
        a("s_waitcnt lgkmcnt(0)")
        if nt == 7:
            for t in range(7): a(MF(RG+36, RG + 4*t, OH + 4*t if t < 5 else RG+28+4*(t-5), t == 0))
    def rp_store(nt, RG):
        for t in range(nt):
            a(f"buffer_store_dwordx4 {R(RG + 4*t, 4)}, v{8 if t < 4 else 12}, s[40:43], s74 offen offset:{1024*(t&3)} sc1")
        if nt == 7:
            a("v_lshlrev_b32 v29, 4, v11"); a("v_lshl_add_u32 v29, v10, 4, v29"); a("v_cndmask_b32 v29, v2, v29, s[66:67]")
            a("s_lshl_b32 s3, s70, 9"); a(f"s_add_u32 s3, s3, {C1P}")
            a(f"buffer_store_dwordx4 {R(RG+36, 4)}, v29, s[40:43], s3 offen sc1")
        else:
            for _ in range(3): a("buffer_store_dword v5, v2, s[40:43], 0 offen")
    def acc(tt, t): return ACC + (tt*5 + t)*4
    def transp(cx):
        L = []
        for tt in range(2):
            L.append(lambda tt=tt: a.ds(f"ds_write_b128 v{vW[0]}, {R(raw(cx, 2*tt), 4)}"))
            L.append(lambda tt=tt: a.ds(f"ds_write_b128 v{vW[1]}, {R(raw(cx, 2*tt+1), 4)}"))
            L.append(lambda tt=tt: a.ds(f"ds_read_b128 {R(xf(tt, 2*cx), 4)}, v{vRd[0]}"))
            L.append(lambda tt=tt: a.ds(f"ds_read_b128 {R(xf(tt, 2*cx+1), 4)}, v{vRd[1]}", f"T{cx}"))
        return L
    def statm(k):
        L = []
        for tt in range(2):
            L.append(MF(GR + 4*tt, xf(tt, k), xf(tt, k), k == 0)); L.append(MF(RSM + 4*tt, ONES, xf(tt, k), k == 0))
        return L
    def breads1(s):
        j, p = divmod(s, 4); L = []
        for t in range(5):
            L.append(lambda t=t: a.ds(f"ds_read_b128 {R(BF + (s&1)*20 + t*4, 4)}, v{vTB[p]} offset:{(j % 3)*20480 + t*1024}", f"R{s}"))
        if j == 2: L.append(f"v_add_u32 v{vTB[p]}, 61440, v{vTB[p]}")
        return L
    def ldb(j):
        def one(i):
            if i == 0: a(f"s_add_u32 m0, s52, {j*20480}"); a("s_add_u32 s57, s54, m0")
            if i == 4: a(f"s_add_u32 m0, s52, {j*20480 + 4096}")
            a.vmem(f"buffer_load_dwordx4 v{8 if i < 4 else 12}, s[40:43], s57 offen offset:{1024*(i&3)} sc1 lds", f"B{j}")
        return [lambda i=i: one(i) for i in range(5)]
    def ldq():
        def one(i):
            if i == 11: a("s_cmp_eq_u32 s28, 3"); a("s_cbranch_scc1 L_noq")
            a(f"s_mul_i32 s98, s28, 13312"); a(f"s_add_u32 m0, s98, {BQ + i*1024}"); a("s_add_u32 s98, s54, m0")
            a.a(f"buffer_load_dwordx4 v8, s[40:43], s98 offen sc1 lds")
            if i < 11: a.vm.append("BQ")
            if i == 12: a("L_noq:")
        return [lambda i=i: one(i) for i in range(11)] + [lambda: (one(11), one(12))]
    def ldt1():
        a("v_lshlrev_b32 v27, 1, v0"); a("s_add_u32 s56, s30, T1_tab-L_pc"); a("s_addc_u32 s57, s31, 0")
        a.vmem(f"global_load_ushort v{vT1}, v27, s[56:57]", "T1")
    def kv_mf(s):
        mf = []
        for t in range(5):
            b = BF + (s&1)*20 + t*4
            for tt in range(2): mf.append(MF(acc(tt, t), xf(tt, s), b, s == 0))
            if s % 4 == 0: mf.append(MF(CSA, OH + 4*t, b, s == 0 and t == 0))
        return mf
    RS = 96; MS = 104; RT = 112; MT = 114; CSV = 116
    URG = 116
    def flagtouch():
        a(f"s_add_u32 s3, s58, {G_FL}"); a("s_bfm_b64 exec, 8, 0"); a.vmem("buffer_load_dword v4, v3, s[40:43], s3 offen"); a("s_mov_b64 exec, -1")
    lq = sum([ldx(cx) for cx in range(NX0, 10)], []) + [ldt1, flagtouch, unit_issue]
    XR = P("XR", 8)
    for cx in range(10):
        while f"X{cx}" not in a.vm or a.vm.count(f"X{cx}") < 4: lq.pop(0)()
        a.wait(vm=f"X{cx}")
        mf = (statm(2*(cx-1)) + statm(2*(cx-1)+1)) if cx else []
        if cx: a.wait(lg=f"T{cx-1}")
        side = transp(cx) + lq[:XR]; lq = lq[XR:]
        if mf: a.interleave(mf, side)
        else:
            for f in side: f()
    assert not lq
    a.stamp("xdone")
    a("s_mov_b32 s78, 0")
    a("L_h0p:")
    a("buffer_load_dword v16, v26, s[40:43], s55 offen sc1"); a("s_waitcnt vmcnt(0)")
    a("v_cmp_ne_u32 vcc, s76, v16")
    a("s_cbranch_vccz L_h0ok")
    a("s_add_u32 s78, s78, 1"); a(f"s_cmp_lt_u32 s78, {POLLMAX}"); a("s_cbranch_scc1 L_h0p")
    a("L_h0ok:")
    a.vm = []
    a.stamp("F0ok")
    for f in ldb(0): f()
    for f in ldb(1): f()
    a.wait(lg="all")
    for x in statm(18) + statm(19): a(x)
    a("s_cmp_eq_u32 s72, 2"); a("s_cbranch_scc1 L_rp_f5")
    rp_fin(7, URG); a("s_branch L_rp_done")
    a("L_rp_f5:"); rp_fin(5, URG)
    a("L_rp_done:")
    for tt in range(2):
        for e in range(4): a(f"v_accvgpr_read_b32 v{160+e}, {R(GR + 4*tt + e)}")
        a(f"v_accvgpr_read_b32 v164, {R(RSM + 4*tt)}")
        for x in ["v_cndmask_b32 v160, v160, v161, s[68:69]", "v_cndmask_b32 v162, v162, v163, s[68:69]", "v_mul_f32 v164, s63, v164",
                  "v_cndmask_b32 v160, v160, v162, s[86:87]", "v_mul_f32 v160, s63, v160", "v_fma_f32 v160, -v164, v164, v160",
                  "v_max_f32 v160, 0, v160", "v_add_f32 v160, s64, v160", "v_rsq_f32 v160, v160", "v_mul_f32 v164, v164, v160"]: a(x)
        a.ds(f"ds_write_b32 v{vSTW}, v160 offset:{64*tt}"); a.ds(f"ds_write_b32 v{vSTW}, v164 offset:{128 + 64*tt}")
    a("v_lshlrev_b32 v28, 4, v11"); a("v_add_u32 v28, s48, v28"); a("v_add_u32 v29, s48, v10")
    for tt in range(2):
        a.ds(f"ds_read_b128 {R(RS + 4*tt, 4)}, v28 offset:{64*tt}"); a.ds(f"ds_read_b128 {R(MS + 4*tt, 4)}, v28 offset:{128 + 64*tt}")
        a.ds(f"ds_read_b32 v{RT + tt}, v29 offset:{64*tt}"); a.ds(f"ds_read_b32 v{MT + tt}, v29 offset:{128 + 64*tt}")
    NBE = P("NBE", 3)
    for j in range(2, NBE):
        for f in ldb(j): f()
    a("s_lshl_b32 s73, s70, 9"); a(f"s_add_u32 s73, s73, {C1P}")
    a("s_cmp_eq_u32 s72, 2"); a("s_cselect_b32 s75, 0x40000000, s74"); a("s_cselect_b32 s73, 0x40000000, s73")
    a("v_lshlrev_b32 v85, 4, v11"); a("v_lshl_add_u32 v85, v10, 4, v85"); a("v_cndmask_b32 v85, v2, v85, s[66:67]")
    def ust(t):
        if t < 7: a.vmem(f"buffer_store_dwordx4 {R(URG + 4*t, 4)}, v{8 if t < 4 else 12}, s[40:43], s{74 if t < 5 else 75} offen offset:{1024*(t&3)} sc1", "US")
        else: a.vmem(f"buffer_store_dwordx4 {R(URG+36, 4)}, v85, s[40:43], s73 offen sc1", "US")
    a("s_and_b32 s59, s27, 7"); a("s_lshl_b32 s59, s59, 9"); a(f"s_add_u32 s59, s59, {FU}")
    a("s_lshr_b32 s3, s27, 3"); a("s_lshl_b32 s3, s3, 4"); a("s_add_u32 s3, s3, s26"); a("s_lshl_b32 s3, s3, 2"); a("s_add_u32 s3, s3, s28"); a("s_lshl_b32 s3, s3, 2"); a("s_add_u32 s70, s3, s59")
    a.wait(vm="B0")
    a("s_barrier")
    a.stamp("bP")
    a("s_mov_b32 s94, s60"); a("s_mov_b32 s95, s60"); a("s_mov_b32 s96, s61"); a("s_mov_b32 s97, s61")
    for f in breads1(0): a.run(f)
    def pretouch():
        if "sc1h" in OPT:
            a(f"s_add_u32 s3, s58, {G_FL}"); a("s_bfm_b64 exec, 4, 0"); a.vmem("buffer_load_dword v4, v3, s[40:43], s3 offen"); a("s_mov_b64 exec, -1")
            return
        a("s_mul_i32 s3, s27, 21056"); a("s_add_u32 s3, s3, s58"); a("s_mul_i32 s56, s28, 5376"); a("s_add_u32 s3, s3, s56")
        a("s_bfm_b64 exec, 42, 0"); a.vmem("buffer_load_dword v4, v3, s[40:43], s3 offen"); a("s_mov_b64 exec, -1")
    FB3 = 156
    a("s_and_b32 s3, s27, 7"); a("s_mul_i32 s3, s3, 20"); a("s_add_u32 s3, s3, s28"); a("s_mul_i32 s65, s3, 5120"); a(f"s_add_u32 s65, s65, {WOP}")
    def ldwo(n, t):
        a.vmem(f"buffer_load_dwordx4 {R(FB3 + (n*5+t)*4, 4)}, v{8 if t < 4 else 12}, s[40:43], s65 offen offset:{1024*(t&3)} sc1", "WO")
        if t == 4: a("s_add_u32 s65, s65, 20480")
    def ldfu():
        a("v_lshlrev_b32 v31, 3, v1")
        a.vmem("buffer_load_dwordx2 v[92:93], v31, s[40:43], s59 offen sc1", "FU")
    def chkfu():
        a.wait(vm="FU")
        a("s_mov_b32 s78, 0")
        a("L_fu:")
        a("v_cmp_ne_u32 vcc, s76, v92"); a("v_cmp_ne_u32 s[84:85], s76, v93")
        a("s_or_b64 vcc, vcc, s[84:85]"); a("s_cbranch_scc0 L_fu_ok")
        a("s_add_u32 s78, s78, 1"); a(f"s_cmp_ge_u32 s78, {POLLMAX}"); a("s_cbranch_scc1 L_fu_ok")
        a("buffer_load_dwordx2 v[92:93], v31, s[40:43], s59 offen sc1"); a("s_waitcnt vmcnt(0)")
        a("s_branch L_fu")
        a("L_fu_ok:")
    q_ = ldq(); mix = []
    if "usfirst" in OPT:
        mix = [lambda i=i: ust(i) for i in range(8)] + q_
    else:
        for i in range(12):
            mix.append(q_[i])
            if i < 8: mix.append(lambda i=i: ust(i))
    ldlist = sum([ldb(j) for j in range(NBE, 5)], [])
    MS0 = P("MS0", 6); MR = P("MR", 1)
    a.bgq = mix
    SFU = P("SFU", 18)
    LEND = P("LEND", 16)
    CT = 116
    for s in range(20):
        j, p = divmod(s, 4)
        if p == 3 and j < 4:
            a.wait(vm=f"B{j+1}"); a("s_barrier")
        if s == SFU:
            a.wait(vm="US")
            a("s_mov_b64 exec, 1"); a.vmem("buffer_store_dword v6, v5, s[40:43], s70 offen sc1"); a("s_mov_b64 exec, -1")
        if s == 18:
            a.wait(lg="CSW"); a("s_barrier")
        a.wait(lg=f"R{s}")
        mf = kv_mf(s)
        front = breads1(s+1) if s < 19 else []
        side = []
        if s == 17:
            side += ["s_lshl_b32 s3, s28, 9", f"s_add_u32 s3, s3, {CSX}", "v_add_u32 v27, s3, v8"]
            side.append(lambda: (a("s_bfm_b64 exec, 32, 0"), a.ds(f"ds_write_b128 v27, {R(CSA, 4)}", "CSW"), a("s_mov_b64 exec, -1")))
        if s == 18:
            assert a.vm.count("US") == 8
            side += ["v_lshlrev_b32 v27, 2, v10", f"v_add_u32 v27, {CSX}, v27"]
            for w in range(4):
                side.append(lambda w=w: a.ds(f"ds_read_b128 {R(CT + 4*w, 4)}, v27 offset:{512*w}"))
                side.append(lambda w=w: a.ds(f"ds_read_b32 v{CT + 16 + w}, v27 offset:{512*w + 256}", "CSR"))
        if s == 19:
            side.append(lambda: a.wait(lg="CSR"))
            for e in range(4):
                side += [f"v_add_f32 v{CT+e}, v{CT+e}, v{CT+4+e}", f"v_add_f32 v{CT+8+e}, v{CT+8+e}, v{CT+12+e}", f"v_add_f32 v{CT+20+e}, v{CT+e}, v{CT+8+e}"]
            side += [f"v_add_f32 v{CT+16}, v{CT+16}, v{CT+17}", f"v_add_f32 v{CT+18}, v{CT+18}, v{CT+19}", f"v_add_f32 v{CT+24}, v{CT+16}, v{CT+18}"]
        side += ldlist[:3]; ldlist = ldlist[3:]
        if s >= MS0: side = [lambda: a.bg(1)]*MR + side
        a.interleave(mf, side, front)
    CSV = CT + 20
    a.stamp("kvend")
    if "plainh" in OPT:
        a("s_mul_i32 s3, s27, 21056"); a("s_add_u32 s3, s3, s58"); a("s_mul_i32 s56, s28, 5376"); a("s_add_u32 s3, s3, s56")
        a("s_bfm_b64 exec, 42, 0"); a.vmem("buffer_load_dword v4, v3, s[40:43], s3 offen"); a("s_mov_b64 exec, -1")
    OP = 116; TP = 72
    FUC = P("FUC", 14)
    if FUC < 4: ldfu()
    KBG = P("KBG", 1)
    for t in range(5):
        for tt in range(2):
            b_ = acc(tt, t)
            cp = CSV + t; cpe = cp & ~1; sel = cp & 1
            for h in range(2):
                x = b_ + 2*h
                a(f"v_pk_mul_f32 v[{TP+2*h}:{TP+2*h+1}], v[{MS+4*tt+2*h}:{MS+4*tt+2*h+1}], v[{cpe}:{cpe+1}] op_sel:[0,{sel}] op_sel_hi:[1,{sel}]")
            for h in range(2):
                x = b_ + 2*h
                a(f"v_pk_fma_f32 v[{x}:{x+1}], v[{x}:{x+1}], v[{RS+4*tt+2*h}:{RS+4*tt+2*h+1}], v[{TP+2*h}:{TP+2*h+1}] neg_lo:[0,0,1] neg_hi:[0,0,1]")
            if t <= 2: phi4(a, b_, TP, sel_mask=("s[66:67]" if t == 2 else None))
            for h in range(2):
                a(f"v_cvt_pk_bf16_f32 v{OP + 4*t + 2*tt + h}, v{acc(tt, t) + 2*h}, v{acc(tt, t) + 2*h + 1}")
            if t*2 + tt == SFU - 20:
                a.wait(vm="US")
                a("s_mov_b64 exec, 1"); a.vmem("buffer_store_dword v6, v5, s[40:43], s70 offen sc1"); a("s_mov_b64 exec, -1")
            if t*2 + tt == FUC - 4: ldfu()
            if t*2 + tt == FUC: chkfu(); a.bgq += [lambda n=n, t=t: ldwo(n, t) for n in range(5) for t in range(5)]
            a.bg(KBG)
    while "BQdone" not in a.vm and a.vm.count("BQ") < 11 or (a.bgq and a.bgq[0] is q_[11]): a.bg(1)
    KVD = 32
    for p, (ta, tb) in enumerate(PAIRS):
        a(MF(KVD + 4*p, OP + 4*ta, ONES if tb < 0 else OP + 4*tb, True))
    a("s_mul_i32 s3, s28, 10240"); a("v_add_u32 v27, s3, v8")
    for p in range(10): a(f"ds_write_b128 v27, {R(KVD + 4*p, 4)} offset:{1024*p}")
    a("s_lshl_b32 s3, s27, 4"); a("s_add_u32 s3, s3, s26"); a("s_lshl_b32 s3, s3, 12"); a(f"s_add_u32 s3, s3, {PART}")
    a("v_cmp_gt_u32 vcc, 216, v0"); a("v_cndmask_b32 v9, v2, v9, vcc")
    a.wait(lg="all")
    a("s_barrier")
    for w in range(4): a(f"ds_read_b128 {R(56 + 4*w, 4)}, v{vT1} offset:{10240*w}")
    a("s_waitcnt lgkmcnt(0)")
    for e in (0, 2):
        a(f"v_pk_add_f32 v[{56+e}:{57+e}], v[{56+e}:{57+e}], v[{60+e}:{61+e}]"); a(f"v_pk_add_f32 v[{64+e}:{65+e}], v[{64+e}:{65+e}], v[{68+e}:{69+e}]")
    for e in (0, 2): a(f"v_pk_add_f32 v[{56+e}:{57+e}], v[{56+e}:{57+e}], v[{64+e}:{65+e}]")
    if "p16" in OPT:
        a("v_cvt_pk_bf16_f32 v56, v56, v57"); a("v_cvt_pk_bf16_f32 v57, v58, v59"); a("v_lshrrev_b32 v9, 1, v9")
        a.vmem(f"buffer_store_dwordx2 v[56:57], v9, s[40:43], s3 offen sc1", "PST")
    else:
        a.vmem(f"buffer_store_dwordx4 v[56:59], v9, s[40:43], s3 offen sc1", "PST")
    ldfu()
    a("s_lshr_b32 s48, s27, 3"); a("s_and_b32 s49, s27, 7")
    a("v_lshrrev_b32 v13, 1, v11"); a("v_lshlrev_b32 v13, 8, v13"); a("v_lshl_add_u32 v13, v10, 2, v13")
    a("v_and_b32 v28, 1, v11"); a("v_lshl_add_u32 v13, v28, 3, v13")
    a("v_mul_u32_u24 v14, 320, v10"); a("v_lshl_add_u32 v15, v11, 3, v14"); a("v_lshl_add_u32 v14, v11, 4, v14")
    a("s_lshl_b32 s50, s48, 2"); a("s_add_u32 s50, s50, s28")
    a("s_lshl_b32 s3, s26, 3"); a("s_add_u32 s3, s3, s50"); a("s_mul_i32 s51, s3, 20480"); a("s_mul_i32 s3, s49, 160"); a("s_add_u32 s51, s51, s3")
    a("s_mul_i32 s53, s27, 27"); a("s_lshr_b32 s53, s53, 2")
    a("s_mul_i32 s55, s27, 143360"); a(f"s_add_u32 s55, s55, {W1P}")
    srd(a, 36, 14, 3456)
    a("v_lshlrev_b32 v23, 4, v11"); a("v_lshl_add_u32 v26, v10, 4, v23")
    a("s_lshl_b32 s62, s27, 2"); a("s_add_u32 s62, s62, s28"); a("s_lshl_b32 s62, s62, 7")
    a("s_lshl_b32 s56, s26, 7"); a("s_add_u32 s56, s56, 8192")
    a("v_mov_b32 v27, s62"); a("v_mov_b32 v28, s56"); a("v_cndmask_b32 v17, v27, v28, s[88:89]"); a("v_add_u32 v17, v17, v10")
    a("s_lshl_b32 s3, s26, 2"); a("s_add_u32 s3, s3, s62"); a(f"s_add_u32 s3, s3, {F1}")
    a.wait(vm="PST")
    a("s_mov_b64 exec, 1"); a.vmem("buffer_store_dword v6, v5, s[40:43], s3 offen sc1"); a("s_mov_b64 exec, -1")
    a("s_barrier")
    a.stamp("b7")
    chkfu(); a.bgq += [lambda n=n, t=t: ldwo(n, t) for n in range(5) for t in range(5)]
    FB3 = 156; RES = 116; C1R = 126; T2R = 146
    B1A = A0 + 204
    W1T = A0 + 100
    def w1dma(i):
        a(f"s_mul_i32 s98, s28, {24*1024}"); a(f"s_add_u32 m0, s98, {i*1024}"); a("s_add_u32 s98, s55, m0")
        a.vmem(f"buffer_load_dwordx4 v8, s[40:43], s98 offen sc1 lds", "W1")
    def w1tail(i):
        a(f"s_mul_i32 s98, s28, {11*1024}"); a(f"s_add_u32 s98, s98, {(96+i)*1024}"); a("s_add_u32 s98, s55, s98")
        a.vmem(f"buffer_load_dwordx4 {R(W1T + 4*i, 4)}, v8, s[40:43], s98 offen sc1", "W1")
    def ldsmall():
        a("v_lshlrev_b32 v31, 5, v1"); a("s_add_u32 s98, s30, T2_tab-L_pc"); a("s_addc_u32 s99, s31, 0")
        a.vmem(f"global_load_dwordx4 {R(T2R, 4)}, v31, s[98:99]"); a.vmem(f"global_load_dwordx2 {R(T2R+4, 2)}, v31, s[98:99] offset:16")
    def ldres(q):
        if q == 0: a.vmem(f"buffer_load_dwordx4 {R(RES, 4)}, v14, s[32:35], s51 offen")
        if q == 1: a.vmem(f"buffer_load_dwordx4 {R(RES+4, 4)}, v14, s[32:35], s51 offen offset:64")
        if q == 2: a.vmem(f"buffer_load_dwordx2 {R(RES+8, 2)}, v15, s[32:35], s51 offen offset:128", "RES")
    def ldb1():
        a("v_lshlrev_b32 v31, 3, v11"); a("s_lshl_b32 s98, s53, 5")
        for p in range(3): a.vmem(f"buffer_load_dwordx4 {R(B1A + 4*p, 4)}, v23, s[36:39], s98 offen offset:{64*p}")
        a.vmem(f"buffer_load_dwordx2 {R(B1A + 12, 2)}, v31, s[36:39], s98 offen offset:192")
    def ldc1():
        a("s_mul_i32 s98, s27, 20"); a("s_mul_i32 s99, s28, 5"); a("s_add_u32 s98, s98, s99"); a("s_lshl_b32 s98, s98, 9"); a(f"s_add_u32 s98, s98, {C1P}")
        a("s_mov_b64 exec, s[66:67]")
        for n in range(5): a.vmem(f"buffer_load_dwordx4 {R(C1R + 4*n, 4)}, v26, s[40:43], s98 offen offset:{512*n} sc1", "C1")
        a("s_mov_b64 exec, -1")
    def hidtouch():
        a("s_mul_i32 s98, s27, 27648"); a("s_add_u32 s98, s98, s58"); a(f"s_add_u32 s98, s98, {G_HID}"); a("s_mul_i32 s99, s28, 6912"); a("s_add_u32 s98, s98, s99")
        a("s_bfm_b64 exec, 54, 0"); a.vmem("buffer_load_dword v4, v3, s[40:43], s98 offen"); a("s_mov_b64 exec, -1")
    ldsmall()
    a.bgq += [lambda q=q: ldres(q) for q in range(3)] + [ldb1, ldc1] + [lambda i=i: w1dma(i) for i in range(24)]
    QA = 32
    def qreads(s):
        j, p = divmod(s, 4)
        return [lambda t=t: a.ds(f"ds_read_b128 {R(BF + (s%3)*12 + t*4, 4)}, v{vTQ[p] if t < 2 else vTQ2[p]} offset:{j*10240 + (t&1)*1024}", f"Q{s}") for t in range(3)]
    for f in qreads(0) + qreads(1): f()
    a(f"s_mov_b32 s56, {F1}")
    QSTOP = P("QSTOP", 16)
    for s in range(20):
        j, p = divmod(s, 4)
        if s == 18: a.wait(lg="CQW"); a("s_barrier")
        a.wait(lg=f"Q{s}")
        mf = []
        for t in range(3):
            b = BF + (s%3)*12 + t*4
            for tt in range(2): mf.append(MF(QA + (tt*3+t)*4, b, xf(tt, s), s == 0))
            if p == 0: mf.append(MF(CSQ, b, OH + 4*t, s == 0 and t == 0))
        front = qreads(s+2) if s < 18 else []
        side = []
        if s < QSTOP: side += [lambda: a.bg(1)]*P("QBG", 1)
        if s == 17:
            side.append(lambda: a.vmem("buffer_load_dword v16, v17, s[40:43], s56 offen sc1", "POLL1"))
            side += ["s_lshl_b32 s3, s28, 9", f"s_add_u32 s3, s3, {CSX}", "v_add_u32 v27, s3, v26"]
            side.append(lambda: (a("s_mov_b64 exec, s[66:67]"), a.ds(f"ds_write_b128 v27, {R(CSQ, 4)}", "CQW"), a("s_mov_b64 exec, -1")))
        if s == 18:
            side += [f"v_add_u32 v30, {CSX}, v23"]
            for w, base in ((0, 56), (1, 68), (2, 96)):
                for t in range(3): side.append(lambda w=w, t=t, base=base: a.ds(f"ds_read_b128 {R(base + 4*t, 4)}, v30 offset:{512*w + 64*t}", "CQR"))
        if s == 19:
            side.append(lambda: a.wait(lg="CQR"))
            for x in range(12): side.append(f"v_add_f32 v{56+x}, v{56+x}, v{68+x}")
            for t in range(3): side.append(lambda t=t: a.ds(f"ds_read_b128 {R(68 + 4*t, 4)}, v30 offset:{1536 + 64*t}", "CQR"))
        a.interleave(mf, side, front)
    a.stamp("qend")
    a.wait(vm="POLL1")
    a("s_mov_b32 s78, 0")
    a("L_h1p:")
    a("v_and_b32 v28, 0xfffffff8, v16"); a("v_cmp_ne_u32 vcc, s76, v28")
    a("s_cbranch_vccz L_h1ok")
    a("s_add_u32 s78, s78, 1"); a(f"s_cmp_ge_u32 s78, {POLLMAX}"); a("s_cbranch_scc1 L_h1ok")
    a("buffer_load_dword v16, v17, s[40:43], s56 offen sc1"); a("s_waitcnt vmcnt(0)")
    a("s_branch L_h1p")
    a("L_h1ok:")
    a.stamp("h1ok")
    a.vm = []
    a("v_cmp_ne_u32 vcc, s77, v16"); a("s_and_b64 vcc, vcc, s[88:89]"); a("s_cselect_b32 s79, 0, 1")
    if os.environ.get("FORCESLOW"): a("s_mov_b32 s79, 0")
    P0 = A0
    a("s_lshl_b32 s3, s27, 16"); a(f"s_add_u32 s3, s3, {PART}")
    for r_ in range(16):
        if "p16" in OPT: a.vmem(f"buffer_load_dwordx2 {R(P0 + 4*r_, 2)}, v9, s[40:43], s3 offen sc1", f"P{r_}")
        else: a.vmem(f"buffer_load_dwordx4 {R(P0 + 4*r_, 4)}, v9, s[40:43], s3 offen sc1", f"P{r_}")
        a("s_add_u32 s3, s3, 4096")
    a.bgq += [lambda i=i: w1tail(i) for i in range(11)]
    for x in range(0, 12, 2): a(f"v_pk_add_f32 v[{56+x}:{57+x}], v[{56+x}:{57+x}], v[{96+x}:{97+x}]")
    a.wait(lg="all")
    for x in range(0, 12, 2): a(f"v_pk_add_f32 v[{56+x}:{57+x}], v[{56+x}:{57+x}], v[{68+x}:{69+x}]")
    PQR = 96
    EBG = P("EBG", 2)
    for tt in range(2):
        for t in range(3):
            b_ = QA + (tt*3+t)*4
            for h in range(2):
                a(f"v_pk_mul_f32 v[{TP+2*h}:{TP+2*h+1}], v[{56+4*t+2*h}:{57+4*t+2*h}], v[{MT}:{MT+1}] op_sel:[0,{tt}] op_sel_hi:[1,{tt}]")
            for h in range(2):
                x = b_ + 2*h
                a(f"v_pk_fma_f32 v[{x}:{x+1}], v[{x}:{x+1}], v[{RT}:{RT+1}], v[{TP+2*h}:{TP+2*h+1}] op_sel:[0,{tt},0] op_sel_hi:[1,{tt},1] neg_lo:[0,0,1] neg_hi:[0,0,1]")
            phi4(a, b_, TP)
            for h in range(2):
                d = f"v{PQR + tt*6 + t*2 + h}"
                a(f"v_cvt_pk_bf16_f32 {d}, v{QA + (tt*3+t)*4 + 2*h}, v{QA + (tt*3+t)*4 + 2*h + 1}")
                if t == 2: a(f"v_cndmask_b32 {d}, 0, {d}, s[90:91]")
            a.bg(EBG)
    OSC = SCR
    TA = 56
    for s_ in range(12):
        src = T2R + s_//2
        if s_ & 1: a(f"v_lshrrev_b32 v{TA+s_}, 16, v{src}")
        else: a(f"v_and_b32 v{TA+s_}, 0xffff, v{src}")
        a(f"v_add_u32 v{TA+s_}, {OSC}, v{TA+s_}")
    for r_ in range(16):
        if r_ % 4 == 0: a.wait(vm=f"P{r_+3}")
        if "p16" in OPT:
            b_ = 32 if r_ == 0 else 36
            for e in range(2): a(f"v_accvgpr_read_b32 v{40+e}, {R(P0+4*r_+e)}")
            for e in range(2): a(f"v_lshlrev_b32 v{b_+2*e}, 16, v{40+e}"); a(f"v_and_b32 v{b_+2*e+1}, 0xffff0000, v{40+e}")
        else:
            for e in range(4): a(f"v_accvgpr_read_b32 v{(32 if r_ == 0 else 36)+e}, {R(P0+4*r_+e)}")
        if r_:
            for e in (0, 2): a(f"v_pk_add_f32 v[{32+e}:{33+e}], v[{32+e}:{33+e}], v[{36+e}:{37+e}]")
        if r_ % 4 == 3: a.bg(EBG)
    a("v_cvt_pk_bf16_f32 v18, v32, v33"); a("v_cvt_pk_bf16_f32 v19, v34, v35")
    a("v_cmp_gt_u32 vcc, 210, v0")
    a("v_cndmask_b32 v18, 0, v18, vcc"); a("v_cndmask_b32 v19, 0, v19, vcc")
    a("v_lshlrev_b32 v27, 3, v0"); a(f"v_add_u32 v27, {OSC}, v27")
    a("ds_write_b64 v27, v[18:19]")
    a("s_waitcnt lgkmcnt(0)")
    a("s_barrier")
    a.stamp("b9")
    KF = A0 + 64
    for E in range(4):
        for ta in range(3): a(f"ds_read_b64 {R(KF + 8*E + 2*ta, 2)}, v{TA + 3*E + ta}")
    a("s_mul_i32 s3, s28, 40960"); a("s_mul_i32 s56, s27, 1280"); a("s_add_u32 s3, s3, s56"); a("s_add_u32 s3, s3, s58")
    a("v_lshlrev_b32 v27, 2, v10"); a("v_lshl_add_u32 v27, v11, 3, v27")
    a("v_cndmask_b32 v27, v2, v27, s[90:91]")
    a("s_waitcnt lgkmcnt(0)")
    D = 32
    for tt in range(2):
        for E in (3, 0, 1, 2):
            d = R(D + (tt*4+E)*4, 4)
            a(f"v_mfma_f32_16x16x32_bf16 {d}, {R(KF + 8*E, 4)}, {R(PQR + 6*tt, 4)}, 0")
    for tt in range(2):
        for E in (3, 0, 1, 2):
            d = R(D + (tt*4+E)*4, 4)
            a(f"v_mfma_f32_16x16x16_bf16 {d}, {R(KF + 8*E + 4, 2)}, {R(PQR + 6*tt + 4, 2)}, {d}")
    for tt in range(2):
        z = D + (tt*4+3)*4
        a(f"v_add_f32 v20, s61, v{z}"); a(f"v_add_f32 v21, s61, v{z+1}")
        a("v_rcp_f32 v20, v20"); a("v_rcp_f32 v21, v21")
        a("v_cndmask_b32 v22, v21, v20, s[92:93]"); a("v_cndmask_b32 v28, v21, v20, s[90:91]")
        ob = 64 + 8*tt
        for E, rc in ((0, 22), (1, 28), (2, 21)):
            d = D + (tt*4+E)*4
            for e in range(4): a(f"v_mul_f32 v{d+e}, v{d+e}, v{rc}")
            a(f"v_cvt_pk_bf16_f32 v{ob + 2*E}, v{d}, v{d+1}"); a(f"v_cvt_pk_bf16_f32 v{ob + 2*E + 1}, v{d+2}, v{d+3}")
        a.vmem(f"buffer_store_dwordx4 {R(ob, 4)}, v8, s[40:43], s3 offen{HS}", "ST")
        a.vmem(f"buffer_store_dwordx2 {R(ob + 4, 2)}, v27, s[40:43], s3 offen offset:1024{HS}", "ST")
        a("s_add_u32 s3, s3, 20480")

    def hop(n, before, after_pub, post=0, touch=None, post2=0):
        before()
        a(f"s_add_u32 s59, s58, {G_FL + 128*n}")
        a("s_lshl_b32 s3, s27, 2"); a("s_add_u32 s3, s3, s59")
        a.bg(post)
        a.wait(vm="ST")
        if touch and "notouch" not in OPT: touch()
        a("s_barrier")
        a.stamp(f"hop{n}a")
        a("s_cmp_lg_u32 s28, 0"); a(f"s_cbranch_scc1 L_g{n}np")
        a("s_mov_b64 exec, 1")
        a("s_cmp_eq_u32 s79, 0"); a(f"s_cbranch_scc1 L_g{n}slow")
        a("buffer_store_dword v6, v5, s[40:43], s3 offen")
        a(f"s_branch L_g{n}pd")
        a(f"L_g{n}slow:")
        if FENCE: a("buffer_wbl2 sc1"); a("s_waitcnt vmcnt(0)")
        a("buffer_store_dword v6, v5, s[40:43], s3 offen sc1")
        a(f"L_g{n}pd:")
        a("s_mov_b64 exec, -1")
        a(f"L_g{n}np:")
        after_pub()
        a.bg(post2)
        a("s_cmp_lg_u32 s28, 0"); a(f"s_cbranch_scc1 L_g{n}j")
        a("s_mov_b32 s78, 0")
        a(f"L_g{n}p:")
        a("buffer_load_dword v27, v10, s[40:43], s59 offen sc1")
        a("s_add_u32 s78, s78, 1")
        a("s_waitcnt vmcnt(0)")
        a("v_cmp_ne_u32 vcc, s76, v27")
        a(f"s_cmp_ge_u32 s78, {POLLMAX}"); a(f"s_cbranch_scc1 L_g{n}x")
        a(f"s_cbranch_vccnz L_g{n}p")
        a(f"L_g{n}x:")
        if FENCE:
            a("s_cmp_lg_u32 s79, 0"); a(f"s_cbranch_scc1 L_g{n}j")
            a("buffer_inv sc1"); a("s_waitcnt vmcnt(0)")
        a(f"L_g{n}j:")
        a("s_barrier")
        a.stamp(f"hop{n}b")
    def a_off(NK, goff):
        for m in range(4):
            a(f"s_add_u32 s3, s28, {m}"); a("s_and_b32 s3, s3, 3"); a("s_lshl_b32 s57, s48, 2"); a("s_add_u32 s3, s3, s57")
            a(f"s_mul_i32 s3, s3, {NK}"); a("s_add_u32 s3, s3, s28"); a("s_lshl_b32 s3, s3, 10"); a("s_add_u32 s3, s3, s58"); a(f"s_add_u32 s{80+m}, s3, {goff}")
    def ctouch(lab, nl):
        def f():
            a("s_lshl_b32 s98, s27, 2"); a("s_add_u32 s98, s98, s28"); a(f"s_mul_i32 s98, s98, {128*nl}"); a(f"s_add_u32 s98, s98, {lab}-L_pc")
            a("v_add_u32 v31, s98, v3"); a(f"s_bfm_b64 exec, {nl}, 0")
            a.vmem("global_load_dword v4, v31, s[30:31]"); a("s_mov_b64 exec, -1")
        return f
    if "noct" not in OPT: a.bgq.insert(0, ctouch("L_cS4", 2))
    def flush_wo():
        while any(True for _ in [0]) and a.bgq and len(a.bgq) > 24 + 11: a.bg(1)
    def bef0():
        a_off(20, G_O)
        a("s_mul_i32 s99, s28, 40960"); a("s_mul_i32 s56, s27, 1280"); a("s_add_u32 s99, s99, s56"); a("s_add_u32 s99, s99, s58")
        a("v_mul_u32_u24 v28, 20480, v11"); a("v_lshl_add_u32 v28, v10, 5, v28")
    def tch0():
        a("s_mov_b64 exec, 0x03ff03ff"); a.vmem("buffer_load_dword v4, v28, s[40:43], s99 offen sc1"); a("s_mov_b64 exec, -1")
    hop(0, bef0, lambda: None, post=0, touch=tch0, post2=P("POST0", 10))
    flush_wo()
    ACC = 32 ; FA3 = A0
    for n in range(5):
        for m in range(4):
            a.vmem(f"buffer_load_dwordx4 {R(FA3 + (n*4+m)*4, 4)}, v8, s[40:43], s{80+m} offen sc1", f"A{n}")
            a(f"s_add_u32 s{80+m}, s{80+m}, 4096")
    if "sc1hid" not in OPT: a.bgq.insert(0, hidtouch)
    RED = 102400
    def red_addr():
        for m in range(1, 4):
            a(f"s_add_u32 s3, s28, {m}"); a("s_and_b32 s3, s3, 3"); a("s_mul_i32 s3, s3, 15360"); a(f"s_add_u32 s3, s3, {RED}")
            a(f"v_add_u32 v{16+m}, s3, v8")
        a("s_mul_i32 s3, s28, 15360"); a(f"s_add_u32 s3, s3, {RED}"); a("v_add_u32 v16, s3, v8")
    def init_acc(srcs):
        for t in range(5):
            for e in range(4):
                for q, src0 in enumerate(srcs):
                    src = src0 + 2*t + (e >> 1); d = ACC+4*t+e if q == 0 else 27
                    if e & 1: a(f"v_and_b32 v{d}, 0xffff0000, v{src}")
                    else: a(f"v_lshlrev_b32 v{d}, 16, v{src}")
                    if q: a(f"v_add_f32 v{ACC+4*t+e}, v{ACC+4*t+e}, v27")
    def last_step(mfn):
        order = [(m, t) for m in (1, 2, 3, 0) for t in range(5)]
        for i, (m, t) in enumerate(order):
            a(mfn(m, t))
            if i >= 5:
                m2, t2 = order[i-5]
                a(f"ds_write_b128 v{16+m2}, {R(ACC + (m2*5+t2)*4, 4)} offset:{(m2-1)*5120 + t2*1024}")
    red_addr()
    if "RES" in a.vm: a.wait(vm="RES")
    init_acc([RES])
    S3BG = P("S3BG", 3)
    for n in range(5):
        a.wait(vm=f"A{n}")
        if n == 4:
            last_step(lambda m, t: MF(ACC + (m*5+t)*4, FB3 + (n*5+t)*4, FA3 + (n*4+m)*4, False)); a.bg(S3BG)
        else:
            mf = [MF(ACC + (m*5+t)*4, FB3 + (n*5+t)*4, FA3 + (n*4+m)*4, n == 0 and m > 0) for m in range(4) for t in range(5)]
            a.interleave(mf, [lambda: a.bg(1)]*S3BG)
    a.stamp("s3end")
    a("L_cS4:")
    if "plainhid" in OPT and P("HTP", 0) == 0: hidtouch()
    HF = A0; BF = A0 + 160
    NA = P("NA", 4); BS = 4*max(NA, 7 - NA)
    if NA == 4:
        slots = [156 + 4*i for i in range(16)] + [A0 + 192 + 4*i for i in range(3)] + [A0 + 220 + 4*i for i in range(9)] + [HF + 4*i for i in range(40)] + [BF + 4*i for i in range(2)]
        NEARLY = 28
        arA = [A0 + 168 + 4*i for i in range(6)] + [A0 + 204 + 4*i for i in range(4)]
    elif NA == 7:
        for x in range(14): a(f"v_accvgpr_mov_b32 {R(A0 + 240 + x)}, {R(B1A + x)}")
        B1A = A0 + 240
        slots = [156 + 4*i for i in range(16)] + [A0 + 216 + 4*i for i in range(6)] + [HF + 4*i for i in range(40)] + [BF + 4*i for i in range(8)]
        NEARLY = 22
        arA = [A0 + 192 + 4*i for i in range(6)] + [A0 + 240 + 4*i for i in range(4)]
    else:
        for x in range(14): a(f"v_accvgpr_mov_b32 {R(A0 + 240 + x)}, {R(B1A + x)}")
        B1A = A0 + 240
        slots = [156 + 4*i for i in range(16)] + [A0 + 208 + 4*i for i in range(8)] + [HF + 4*i for i in range(40)] + [BF + 4*i for i in range(6)]
        NEARLY = 24
        arA = [A0 + 184 + 4*i for i in range(6)] + [A0 + 240 + 4*i for i in range(4)]
    def fb(n, t): return slots[n*5 + t]
    a("s_mul_i32 s3, s49, 54"); a("s_add_u32 s3, s3, s28"); a("s_mul_i32 s54, s3, 5120"); a(f"s_add_u32 s54, s54, {W2P}")
    def ldw2(n, t):
        if n == 13 and t == 0:
            a("s_cmp_ge_u32 s28, 2"); a("s_cselect_b32 s98, 0x40000000, 0"); a("s_add_u32 s54, s54, s98")
        a.vmem(f"buffer_load_dwordx4 {R(fb(n, t), 4)}, v{8 if t < 4 else 12}, s[40:43], s54 offen offset:{1024*(t&3)} sc1", f"W2_{n}")
        if t == 4: a("s_add_u32 s54, s54, 20480")
    w2q = [(n, t) for n in range(14) for t in range(5)]
    nw1left = len(a.bgq)
    def w2bg():
        ldw2(*w2q.pop(0))
    a.bgq += [w2bg]*NEARLY
    def reduce_epi(which, BIA=None, nbg=0):
        a.bg(2*nbg)
        a("s_waitcnt lgkmcnt(0)")
        a("s_barrier")
        for t in range(5):
            for m in range(1, 4): a(f"ds_read_b128 {R(ACC + (m*5+t)*4, 4)}, v16 offset:{(m-1)*5120 + t*1024}")
        for t in range(5):
            a(f"s_waitcnt lgkmcnt({12 - 3*t})")
            for e in (0, 2):
                x0 = ACC + 4*t + e
                a(f"v_pk_add_f32 v[{x0+20}:{x0+21}], v[{x0+20}:{x0+21}], v[{x0+40}:{x0+41}]"); a(f"v_pk_add_f32 v[{x0}:{x0+1}], v[{x0}:{x0+1}], v[{x0+60}:{x0+61}]")
            for e in (0, 2):
                x0 = ACC + 4*t + e
                a(f"v_pk_add_f32 v[{x0}:{x0+1}], v[{x0}:{x0+1}], v[{x0+20}:{x0+21}]")
            for h in range(2): a(f"v_cvt_pk_bf16_f32 v{RES+2*t+h}, v{ACC+4*t+2*h}, v{ACC+4*t+2*h+1}")
            if which == 3:
                if t == 1: a.vmem(f"buffer_store_dwordx4 {R(RES, 4)}, v8, s[40:43], s57 offen{HS}")
                if t == 3: a.vmem(f"buffer_store_dwordx4 {R(RES+4, 4)}, v8, s[40:43], s57 offen offset:1024{HS}")
                if t == 4: a.vmem(f"buffer_store_dwordx2 {R(RES+8, 2)}, v13, s[40:43], s57 offen offset:2048{HS}")
    a("s_mul_i32 s57, s50, 20480"); a("s_mul_i32 s3, s49, 2560"); a("s_add_u32 s57, s57, s3"); a("s_add_u32 s57, s57, s58"); a(f"s_add_u32 s57, s57, {G_H}")
    reduce_epi(3, nbg=P("R3BG", 3))
    a(f"v_pk_add_f32 v[28:29], v[{ACC}:{ACC+1}], v[{ACC+2}:{ACC+3}]"); a(f"v_pk_mul_f32 v[30:31], v[{ACC}:{ACC+1}], v[{ACC}:{ACC+1}]"); a(f"v_pk_fma_f32 v[30:31], v[{ACC+2}:{ACC+3}], v[{ACC+2}:{ACC+3}], v[30:31]")
    for x in range(4, 20, 2):
        a(f"v_pk_add_f32 v[28:29], v[28:29], v[{ACC+x}:{ACC+x+1}]"); a(f"v_pk_fma_f32 v[30:31], v[{ACC+x}:{ACC+x+1}], v[{ACC+x}:{ACC+x+1}], v[30:31]")
    a("v_add_f32 v20, v28, v29"); a("v_add_f32 v21, v30, v31")
    def red_g(regs, tmp):
        for r_ in regs:
            a(f"v_mov_b32 {tmp}, {r_}"); a(f"v_permlane32_swap_b32 {r_}, {tmp}"); a(f"v_add_f32 {r_}, {r_}, {tmp}")
            a(f"v_mov_b32 {tmp}, {r_}"); a(f"v_permlane16_swap_b32 {r_}, {tmp}"); a(f"v_add_f32 {r_}, {r_}, {tmp}")
    red_g(["v20", "v21"], "v22")
    a("v_lshlrev_b32 v22, 1, v10")
    a("s_lshl_b32 s57, s50, 10"); a("s_lshl_b32 s3, s49, 7"); a("s_add_u32 s57, s57, s3"); a("s_add_u32 s57, s57, s58"); a(f"s_add_u32 s57, s57, {G_ST}")
    a.vmem(f"buffer_store_dwordx2 v[20:21], v22, s[40:43], s57 offen{HS}", "ST")
    CS = 128; CSL = 144384
    def bef3():
        a("s_mul_i32 s3, s28, 40960"); a("s_add_u32 s3, s3, s58"); a(f"s_add_u32 s80, s3, {G_H}"); a("s_add_u32 s81, s80, 20480")
        a("s_lshl_b32 s82, s28, 11"); a("s_add_u32 s82, s82, s58"); a(f"s_add_u32 s82, s82, {G_ST}")
        a("v_lshlrev_b32 v19, 8, v11"); a("v_lshl_add_u32 v19, v10, 1, v19")
        a("v_add_u32 v16, 57344, v8"); a("v_add_u32 v17, 114688, v8")
        a(f"s_mul_i32 s3, s28, {11*1024}"); a(f"s_add_u32 s3, s3, {96*1024}"); a("v_add_u32 v18, s3, v8")
        for e in range(4):
            a(f"v_add_f32 v{C1R+e}, v{C1R+e}, v{C1R+4+e}"); a(f"v_add_f32 v{C1R+8+e}, v{C1R+8+e}, v{C1R+12+e}")
            a(f"v_add_f32 v{C1R+e}, v{C1R+e}, v{C1R+16+e}"); a(f"v_add_f32 v{C1R+e}, v{C1R+e}, v{C1R+8+e}")
        a("s_lshl_b32 s3, s28, 9"); a(f"s_add_u32 s3, s3, {CSL}"); a("v_add_u32 v29, s3, v26")
    def aft3():
        if "W1" in a.vm: a.wait(vm="W1")
        for i in range(11): a(f"ds_write_b128 v18, {R(W1T + 4*i, 4)} offset:{1024*i}")
        a("s_mov_b64 exec, s[66:67]"); a(f"ds_write_b128 v29, {R(C1R, 4)}"); a("s_mov_b64 exec, -1")
        a("s_waitcnt lgkmcnt(0)")
    left1 = max(0, len(a.bgq) - len([1 for x in a.bgq if x is w2bg]))
    print("w1 left at hop3:", left1, "w2 issued:", 70 - len(w2q), file=sys.stderr)
    def tch1():
        a("s_mul_i32 s99, s50, 20480"); a("s_mul_i32 s98, s49, 2560"); a("s_add_u32 s99, s99, s98"); a("s_add_u32 s99, s99, s58"); a(f"s_add_u32 s99, s99, {G_H}")
        a("s_mov_b64 exec, 0xfffff"); a.vmem("buffer_load_dword v4, v3, s[40:43], s99 offen sc1"); a("s_mov_b64 exec, -1")
    hop(1, bef3, aft3, post=left1, touch=tch1, post2=max(0, P("POST1", 6) - left1))
    def hf(tt, k): return HF + (k*2 + tt)*4
    def ldh(k):
        def one(tt):
            a.vmem(f"buffer_load_dwordx4 {R(hf(tt, k), 4)}, v8, s[40:43], s{80+tt} offen offset:{1024*(k&3)} sc1", f"H{k}")
            if (k & 3) == 3: a(f"s_add_u32 s{80+tt}, s{80+tt}, 4096")
        return [lambda tt=tt: one(tt) for tt in range(2)]
    PRE = P("PRE4", 6)
    for k in range(PRE):
        for f in ldh(k): f()
    for tt in range(2):
        for q in range(2):
            a.vmem(f"buffer_load_dwordx2 {R(88 + 4*tt + 2*q, 2)}, v19, s[40:43], s82 offen offset:{1024*tt + 128*q} sc1", "STAT")
    def breads(ps, k):
        ts = range(NA) if ps == 0 else range(NA, 7)
        return [lambda t=t: a.ds(f"ds_read_b128 {R(BF + (k&1)*BS + 4*(t - ts[0]), 4)}, v{[8, 16, 17][k >> 3]} offset:{(k & 7)*7168 + 1024*t}", f"BR{ps}_{k}") for t in ts]
    for f in breads(0, 0): f()
    vS = [20, 21]; vQ = [24, 25]
    a(f"v_add_u32 v18, {CSL}, v23")
    hq = list(range(PRE, 20))
    B1U = 220
    c1 = -2.0*LOG2E*0.7978845608028654
    c2 = c1*0.044715
    a(f"s_mov_b32 s60, {hx(c1)}"); a(f"s_mov_b32 s61, {hx(c2)}")
    a("s_mul_i32 s56, s28, 110592"); a("s_lshl_b32 s3, s53, 9"); a("s_add_u32 s56, s56, s3"); a("s_add_u32 s56, s56, s58"); a(f"s_add_u32 s56, s56, {G_HID}"); a("s_add_u32 s57, s56, 55296")
    for k in range(20):
        a.wait(vm=f"H{k}", lg=f"BR0_{k}")
        front = breads(0, k+1) if k < 19 else (breads(1, 0) if NA < 7 else [])
        side = []
        if NA == 7:
            if hq:
                for _ in range(P("HRATE", 2)):
                    if hq: side += ldh(hq.pop(0))
            else:
                side += [w2bg]*max(0, min(P("ABG", 2), len(w2q), NEARLY + 2*k - (70 - len(w2q))))
        elif hq:
            side += ldh(hq.pop(0))
            if not hq and "plainhid" in OPT and P("HTP", 0) == 1: side.append(hidtouch)
        else: side += [lambda: a.bg(1)]*P("ABG", 1)
        if 1 <= k < 8:
            kk = k - 1; tb = 96 if kk % 2 == 0 else 220
            side.append(lambda kk=kk: a.wait(lg=f"CG{kk}"))
            for e in range(4):
                side += [f"v_add_f32 v{CS+4*kk+e}, v{CS+4*kk+e}, v{tb+e}", f"v_add_f32 v{tb+4+e}, v{tb+4+e}, v{tb+8+e}", f"v_add_f32 v{CS+4*kk+e}, v{CS+4*kk+e}, v{tb+4+e}"]
        if k < 7:
            tb = 96 if k % 2 == 0 else 220
            for w in range(4): front.append(lambda w=w, k=k, tb=tb: a.ds(f"ds_read_b128 {R((CS + 4*k) if w == 0 else (tb - 4 + 4*w), 4)}, v18 offset:{512*w + 64*k}", f"CG{k}"))
        if k == PRE + 2:
            for tt in range(2):
                side.append(f"v_add_f32 v{vS[tt]}, v{88+4*tt}, v{90+4*tt}"); side.append(f"v_add_f32 v{vQ[tt]}, v{89+4*tt}, v{91+4*tt}")
            side.append(lambda: red_g([f"v{x}" for x in vS + vQ], "v22"))
        if k == PRE + 3:
            for tt in range(2):
                s_, q_ = f"v{vS[tt]}", f"v{vQ[tt]}"
                side += [f"v_mul_f32 {s_}, s63, {s_}", f"v_mul_f32 {q_}, s63, {q_}", f"v_fma_f32 {q_}, -{s_}, {s_}, {q_}", f"v_max_f32 {q_}, 0, {q_}",
                         f"v_add_f32 v22, s64, {q_}", f"v_fma_f32 {q_}, v22, s64, {q_}", f"v_rsq_f32 {q_}, {q_}", f"v_mul_f32 {s_}, {s_}, {q_}"]
            side += ["v_mov_b32 v252, s60", "v_mov_b32 v253, s60", "s_mov_b32 s96, s61", "s_mov_b32 s97, s61"]
        if k >= 12:
            x = 2*(k - 12)
            for y in (x, x + 1):
                if y < 14:
                    side += [f"v_accvgpr_read_b32 v27, {R(B1A + y)}", f"v_lshlrev_b32 v{B1U+2*y}, 16, v27", f"v_and_b32 v{B1U+2*y+1}, 0xffff0000, v27"]
        mf = [MF(ACC + (tt*7+t)*4, BF + (k&1)*BS + 4*t, hf(tt, k), k == 0) for t in range(NA) for tt in range(2)]
        a.interleave(mf, side, front)
    a.stamp("s4A")
    if "noct" not in OPT: ctouch("L_cS5", 1)()
    PK = 88
    def gelu(tt, t, pk=False):
        L = []
        if pk:
            b_ = ACC + (tt*7+t)*4
            pr = lambda x: f"v[{x}:{x+1}]"
            for h in (0, 2): L.append(f"v_pk_fma_f32 {pr(248+h)}, v[20:21], {pr(CS+4*t+h)}, {pr(B1U+4*t+h)} op_sel:[{tt},0,0] op_sel_hi:[{tt},1,1] neg_lo:[1,0,0] neg_hi:[1,0,0]")
            for h in (0, 2): L.append(f"v_pk_fma_f32 {pr(b_+h)}, {pr(b_+h)}, v[24:25], {pr(248+h)} op_sel:[0,{tt},0] op_sel_hi:[1,{tt},1]")
            for h in (0, 2): L.append(f"v_pk_mul_f32 {pr(248+h)}, {pr(b_+h)}, {pr(b_+h)}")
            for h in (0, 2): L.append(f"v_pk_fma_f32 {pr(248+h)}, {pr(248+h)}, s[96:97], v[252:253]")
            for h in (0, 2): L.append(f"v_pk_mul_f32 {pr(248+h)}, {pr(248+h)}, {pr(b_+h)}")
            for e in range(4): L.append(f"v_exp_f32 v{248+e}, v{248+e}")
            for h in (0, 2): L.append(f"v_pk_add_f32 {pr(248+h)}, {pr(248+h)}, 1.0 op_sel_hi:[1,0]")
            for e in range(4): L.append(f"v_rcp_f32 v{248+e}, v{248+e}")
            for h in (0, 2): L.append(f"v_pk_mul_f32 {pr(b_+h)}, {pr(b_+h)}, {pr(248+h)}")
        else:
            for e in range(4):
                v_ = f"v{ACC + (tt*7+t)*4 + e}"; ta = f"v{248+e}"
                L += [f"v_fma_f32 {ta}, -v{vS[tt]}, v{CS+4*t+e}, v{B1U+4*t+e}", f"v_fma_f32 {v_}, {v_}, v{vQ[tt]}, {ta}", f"v_mul_f32 {ta}, {v_}, {v_}",
                      f"v_fma_f32 {ta}, {ta}, s61, v252", f"v_mul_f32 {ta}, {ta}, {v_}", f"v_exp_f32 {ta}, {ta}"]
            for e in range(4):
                ta = f"v{248+e}"; L += [f"v_add_f32 {ta}, 1.0, {ta}"]
            for e in range(4):
                ta = f"v{248+e}"; L += [f"v_rcp_f32 {ta}, {ta}"]
            for e in range(4):
                v_ = f"v{ACC + (tt*7+t)*4 + e}"; L.append(f"v_mul_f32 {v_}, {v_}, v{248+e}")
        for h in range(2):
            x0 = ACC + (tt*7+t)*4 + 2*h
            L.append(f"v_cvt_pk_bf16_f32 v{PK + tt*14 + 2*t + h}, v{x0}, v{x0+1}")
        if t & 1: L.append(lambda: a.vmem(f"buffer_store_dwordx4 {R(PK + tt*14 + 2*(t-1), 4)}, v8, s[40:43], s{56+tt} offen offset:{512*(t-1)}{HS2}", "ST" if t > 3 else "ST01"))
        if t == 6: L.append(lambda: a.vmem(f"buffer_store_dwordx2 {R(PK + tt*14 + 12, 2)}, v13, s[40:43], s{56+tt} offen offset:3072{HS2}", "ST"))
        return L
    gl = []
    for p in range(NA//2 if NA < 7 else 0):
        for tt in range(2): gl += gelu(tt, 2*p, "pkB" in OPT) + gelu(tt, 2*p+1, "pkB" in OPT)
    a.bgq = []
    W2RATE = P("W2RATE", 2)
    for k in range(20 if NA < 7 else 0):
        a.wait(lg=f"BR1_{k}")
        front = breads(1, k+1) if k < 19 else []
        q = (len(gl) + 19 - k)//(20 - k) if k > 0 else 0
        side = gl[:q]; gl = gl[q:]
        nin = max(0, min(W2RATE, len(w2q), NEARLY + 2*k - (70 - len(w2q))))
        for i_ in range(nin): side.insert((i_ + 1)*len(side)//(nin + 1), w2bg)
        mf = [MF(ACC + (tt*7+t)*4, BF + (k&1)*BS + 4*(t-NA), hf(tt, k), k == 0) for t in range(NA, 7) for tt in range(2)]
        a.interleave(mf, side, front)
    a.stamp("s4B")
    a("L_cS5:")
    W2EPI = P("W2EPI", 2)
    seq = [(0, 4), (0, 5), (1, 4), (1, 5), (0, 6), (1, 6)] if NA == 4 else [(0, 6), (1, 6)]
    if NA == 7: seq = [(tt, 2*p + q) for p in range(3) for tt in range(2) for q in range(2)] + [(0, 6), (1, 6)]
    for i_, (tt, t) in enumerate(seq):
        L = gelu(tt, t, True)
        if i_ == P("HT", 99):
            a("v_and_b32 v28, 1, v11"); a("v_mul_u32_u24 v28, 55296, v28"); a("v_lshl_add_u32 v28, v10, 5, v28")
            a.wait(vm="ST01")
            a("s_bfm_b64 exec, 32, 0"); a.vmem("buffer_load_dword v4, v28, s[40:43], s56 offen sc1"); a("s_mov_b64 exec, -1")
        for j_, x in enumerate(L):
            a.run(x)
            if i_ < P("W2STOP", 4) and j_ in (6, 16)[:W2EPI] and w2q: ldw2(*w2q.pop(0))
    BIA = 126
    def bef4():
        srd(a, 32, 20, 2621440); srd(a, 36, 18, 1280)
        a_off(54, G_HID)
        a("v_lshlrev_b32 v28, 3, v11"); a("s_mul_i32 s3, s49, 160")
        a.vmem(f"buffer_load_dwordx4 {R(BIA, 4)}, v23, s[36:39], s3 offen")
        a.vmem(f"buffer_load_dwordx4 {R(BIA+4, 4)}, v23, s[36:39], s3 offen offset:64")
        a.vmem(f"buffer_load_dwordx2 {R(BIA+8, 2)}, v28, s[36:39], s3 offen offset:128", "BIA")
    npost = min(P("POST2", 4), len(w2q))
    a.bgq = [lambda x=x: ldw2(*x) for x in w2q[:npost]]; w2q = w2q[npost:]
    print("w2 left after hop4:", len(w2q), file=sys.stderr)
    def tch2():
        a("v_lshrrev_b32 v28, 5, v1"); a("v_mul_u32_u24 v28, 55296, v28"); a("v_and_b32 v29, 31, v1"); a("v_lshl_add_u32 v28, v29, 7, v28")
        a("s_mov_b32 exec_lo, 0x0fffffff"); a("s_mov_b32 exec_hi, 0x0fffffff"); a.vmem("buffer_load_dword v4, v28, s[40:43], s56 offen sc1"); a("s_mov_b64 exec, -1")
    hop(2, bef4, lambda: None, post=0, touch=tch2, post2=npost)
    ar = [136 + 4*i for i in range(5)] + [220 + 4*i for i in range(9)] + arA
    NR = 6
    def fa(n, m): return ar[(n % NR)*4 + m]
    def lda5(n):
        def one(m):
            if n == 13 and m == 0:
                a("s_cmp_ge_u32 s28, 2"); a("s_cselect_b32 s3, 0x40000000, 0")
                for q in range(4): a(f"s_add_u32 s{80+q}, s{80+q}, s3")
            a.vmem(f"buffer_load_dwordx4 {R(fa(n, m), 4)}, v8, s[40:43], s{80+m} offen sc1", f"A5_{n}")
            a(f"s_add_u32 s{80+m}, s{80+m}, 4096")
        return [lambda m=m: one(m) for m in range(4)]
    PRE5 = P("PRE5", 3)
    def need_w2(n):
        L = []
        while w2q and w2q[0][0] <= n:
            x = w2q.pop(0); L.append(lambda x=x: ldw2(*x))
        return L
    for n in range(PRE5):
        for f in need_w2(n) + lda5(n): f()
    def ldbia():
        a("v_lshlrev_b32 v28, 3, v11"); a("s_mul_i32 s3, s49, 160")
        a.vmem(f"buffer_load_dwordx4 {R(BIA, 4)}, v23, s[36:39], s3 offen")
        a.vmem(f"buffer_load_dwordx4 {R(BIA+4, 4)}, v23, s[36:39], s3 offen offset:64")
        a.vmem(f"buffer_load_dwordx2 {R(BIA+8, 2)}, v28, s[36:39], s3 offen offset:128")
    red_addr(); a.wait(vm="BIA"); init_acc([RES, BIA])
    nxt = PRE5
    for n in range(14):
        a.wait(vm=f"A5_{n}")
        side = []; cnt = 0
        while nxt < 14 and nxt <= n + NR - 1 and cnt < 2:
            side += need_w2(nxt) + lda5(nxt); nxt += 1; cnt += 1
        if n == 13:
            last_step(lambda m, t: MF(ACC + (m*5+t)*4, fb(n, t), fa(n, m), False))
        else:
            mf = [MF(ACC + (m*5+t)*4, fb(n, t), fa(n, m), n == 0 and m > 0) for m in range(4) for t in range(5)]
            a.interleave(mf, side)
    a.stamp("s5end")
    reduce_epi(5, BIA)
    a(f"buffer_store_dwordx4 {R(RES, 4)}, v14, s[32:35], s51 offen")
    a(f"buffer_store_dwordx4 {R(RES+4, 4)}, v14, s[32:35], s51 offen offset:64")
    a(f"buffer_store_dwordx2 {R(RES+8, 2)}, v15, s[32:35], s51 offen offset:128")
    a("s_or_b32 s3, s2, s28"); a("s_cmp_lg_u32 s3, 0"); a("s_cbranch_scc1 L_notagclr")
    a("global_store_dword v5, v5, s[22:23] sc1")
    a("L_notagclr:")
    a.stamp("stored")
    if STAMP:
        a("s_waitcnt vmcnt(0)")
        a.stamp("end")
        a("s_memrealtime s[100:101]"); a("s_waitcnt lgkmcnt(0)"); a("v_writelane_b32 v7, s100, 31")
        a("v_writelane_b32 v7, s79, 30")
        a("s_lshl_b32 s3, s2, 2"); a("s_add_u32 s3, s3, s28"); a("s_lshl_b32 s3, s3, 8"); a(f"s_add_u32 s3, s3, {STB}")
        a("v_lshlrev_b32 v27, 2, v1"); a("v_add_u32 v27, s3, v27")
        a("global_store_dword v27, v7, s[24:25]")
        if os.environ.get("DELAY"):
            di = os.environ["DELAY"]
            a(f"s_cmp_lg_u32 s2, {P('DWG', 8)}"); a("s_cbranch_scc1 L_end"); a("s_cmp_lg_u32 s28, 0"); a("s_cbranch_scc1 L_end")
            clk = "s_memrealtime" if di == "rt" else "s_memtime"
            a(f"{clk} s[100:101]"); a("s_waitcnt lgkmcnt(0)")
            if di == "rt":
                a("s_sub_u32 s3, s100, s76")
            else:
                a(f"v_readlane_b32 s3, v7, {di}"); a("v_readlane_b32 s56, v7, 0"); a("s_nop 3"); a("s_sub_u32 s3, s3, s56")
            a("s_lshl_b32 s3, s3, 2"); a("s_min_u32 s3, s3, 0x100000"); a("s_mov_b32 s57, s100")
            a("L_dly:")
            a(f"{clk} s[100:101]"); a("s_waitcnt lgkmcnt(0)"); a("s_sub_u32 s56, s100, s57"); a("s_cmp_lt_u32 s56, s3"); a("s_cbranch_scc1 L_dly")
        a.a.raw("; STAMPS " + " ".join(a.names))
    a("L_end:")
    a("s_endpgm")
    return a.a

def main(out):
    hdr = open("sequential_preLN__linear_attn_block__mixer_channel_mlp__prompt.s.ref").read().split("\n")
    hdr = [l for l in hdr if l.startswith(";") and "@launch" not in l]
    hdr.append("; @launch grid=(256,1,1) block=(256,1,1) lds=163840")
    a = gen()
    pre = '.amdgcn_target "amdgcn-amd-amdhsa--gfx950"\n.text\n'
    T1, T2 = build_tables()
    a.raw(".p2align 6\nT1_tab:")
    a.raw(".short " + ",".join(map(str, T1)))
    a.raw("T2_tab:")
    for row in T2: a.raw(".short " + ",".join(map(str, row)))
    a.raw(".fill 2048, 4, 0")
    a.raw('.section .rodata,"a"\n.p2align 6')
    a.raw(f""".amdhsa_kernel {NAME}
  .amdhsa_next_free_vgpr 512
  .amdhsa_next_free_sgpr 102
  .amdhsa_accum_offset 256
  .amdhsa_group_segment_fixed_size 0
  .amdhsa_kernarg_size 88
  .amdhsa_user_sgpr_count 2
  .amdhsa_user_sgpr_kernarg_segment_ptr 1
  .amdhsa_system_sgpr_workgroup_id_x 1
.end_amdhsa_kernel""")
    open(out, "w").write("\n".join(hdr) + "\n" + pre + a.finish())

if __name__ == "__main__":
    main(sys.argv[1])
```

```python
import sys, struct, os
from asmdsl import Asm, R, S
from gen1 import build_tables, PAIRS, f2u, hx, divmod_const, srd, LOG2E

NAME = "sequential_preLN__linear_attn_block__mixer_channel_mlp__prompt_kernel"
WOP = 0
W2P = WOP + 8*20*5*1024
W1P = W2P + 8*54*5*1024
C1P = W1P + 16*20*7*1024
WQKV = C1P + 320*512
PART = WQKV + 16*153600
GRP = PART + 256*4096
G_O = 0; G_H = 163840; G_ST = 327680; G_FL = 335872; G_HID = 336896; G_SZ = G_HID + 442368
FLG = GRP + 16*G_SZ
F1 = FLG; F1R = FLG + 8192; F0 = FLG + 10240; FU = FLG + 14336
WS_END = FLG + 20480
A0 = 256
STAMP = int(os.environ.get("STAMP", "0"))
STB = 32 << 20
POLLMAX = 1 << 15
OPT = set(os.environ.get("OPT", "").split(","))
def P(name, d): return int(os.environ.get(name, d))

class G:
    def __init__(self):
        self.a = Asm(); self.vm = []; self.lg = []; self.nst = 0; self.bgq = []; self.names = []
    def __call__(self, t): self.a(t)
    def vmem(self, text, tag=None): self.a(text); self.vm.append(tag)
    def ds(self, text, tag=None): self.a(text); self.lg.append(tag)
    def _n(self, lst, tag, cap):
        idx = max(i for i, t in enumerate(lst) if t == tag)
        return min(len(lst) - 1 - idx, cap)
    def wait(self, vm=None, lg=None):
        s = []
        if vm is not None: s.append(f"vmcnt({0 if vm == 'all' else self._n(self.vm, vm, 63)})")
        if lg is not None: s.append(f"lgkmcnt({0 if lg == 'all' else self._n(self.lg, lg, 15)})")
        self.a("s_waitcnt " + " ".join(s))
        if vm == 'all': self.vm = []
        if lg == 'all': self.lg = []
    def stamp(self, name=""):
        if STAMP != 1: return
        i = self.nst; self.nst += 1; self.names.append(name)
        assert i < 29
        self.a("s_memtime s[100:101]"); self.a("s_waitcnt lgkmcnt(0)"); self.a(f"v_writelane_b32 v7, s100, {i}")
    def run(self, x): x() if callable(x) else self.a(x)
    def bg(self, n=1):
        for _ in range(n):
            if self.bgq: self.bgq.pop(0)()
    def interleave(self, main, extra, front=()):
        n = len(main); m = len(extra); j = 0; front = list(front)
        for i, x in enumerate(main):
            self.run(x)
            if front:
                self.run(front.pop(0))
                if len(front) >= n - i and front: self.run(front.pop(0))
            while j < m and (j + 1) * n <= (i + 1) * m + (n - 1):
                self.run(extra[j]); j += 1
        for x in front: self.run(x)
        while j < m:
            self.run(extra[j]); j += 1

def MF(d, a_, b_, first): return f"v_mfma_f32_16x16x32_bf16 {R(d,4)}, {R(a_,4)}, {R(b_,4)}, {'0' if first else R(d,4)}"

def phi(a, val, t1, t2):
    a(f"v_mul_f32 {t1}, s60, {val}")
    a(f"v_max_f32 {t2}, 0, {val}")
    a(f"v_exp_f32_e64 {t1}, {t1} clamp")
    a(f"v_add_f32 {t2}, s61, {t2}")
    a(f"v_add_f32 {val}, {t1}, {t2}")

OPT |= {"sc1h", "sc1hid", "notouch", "usfirst", "ft"}
def phi4(a, b_, T, sel_mask=None):
    for h in range(2): a(f"v_pk_mul_f32 v[{T+2*h}:{T+2*h+1}], v[{b_+2*h}:{b_+2*h+1}], s[94:95]")
    for e in range(4): a(f"v_max_f32 v{T+4+e}, 0, v{b_+e}")
    for e in range(4): a(f"v_exp_f32_e64 v{T+e}, v{T+e} clamp")
    for h in range(2): a(f"v_pk_add_f32 v[{T+4+2*h}:{T+5+2*h}], v[{T+4+2*h}:{T+5+2*h}], s[96:97]")
    if sel_mask is None:
        for h in range(2): a(f"v_pk_add_f32 v[{b_+2*h}:{b_+2*h+1}], v[{T+2*h}:{T+2*h+1}], v[{T+4+2*h}:{T+5+2*h}]")
    else:
        for h in range(2): a(f"v_pk_add_f32 v[{T+2*h}:{T+2*h+1}], v[{T+2*h}:{T+2*h+1}], v[{T+4+2*h}:{T+5+2*h}]")
        for e in range(4): a(f"v_cndmask_b32 v{b_+e}, v{b_+e}, v{T+e}, {sel_mask}")
RPNT = "" if "rpplain" in OPT else " nt"
HS = " sc1"
HS2 = " sc1"
def gen():
    a = G()
    name = NAME
    NRAW = P("NRAW", 2)
    a.a.raw(f".globl {name}\n.p2align 8\n.type {name},@function\n{name}:")
    a("s_cmp_ge_u32 s2, 256"); a("s_cbranch_scc1 L_end")
    a("s_load_dwordx16 s[4:19], s[0:1], 0")
    a("s_load_dwordx4 s[20:23], s[0:1], 64")
    a("s_load_dwordx2 s[24:25], s[0:1], 80")
    a("s_memrealtime s[76:77]")
    a("s_getpc_b64 s[30:31]")
    a("L_pc:")
    a("v_mov_b32 v7, 0")
    a.stamp("start")
    a("v_lshrrev_b32 v2, 6, v0"); a("v_and_b32 v1, 63, v0")
    a("v_readfirstlane_b32 s28, v2")
    if "m48" in OPT:
        a("s_and_b32 s3, s2, 7"); a("s_lshr_b32 s29, s2, 3")
        a("s_lshr_b32 s26, s3, 1"); a("s_lshl_b32 s26, s26, 2"); a("s_lshr_b32 s27, s29, 3"); a("s_add_u32 s26, s26, s27")
        a("s_and_b32 s3, s3, 1"); a("s_lshl_b32 s3, s3, 2"); a("s_and_b32 s27, s29, 3"); a("s_or_b32 s27, s27, s3")
        a("s_and_b32 s29, s29, 4"); a("s_lshl_b32 s29, s29, 1"); a("s_or_b32 s27, s27, s29")
    else:
        a("s_and_b32 s3, s2, 7"); a("s_lshr_b32 s27, s2, 3"); a("s_lshr_b32 s26, s27, 4"); a("s_lshl_b32 s3, s3, 1")
        a("s_add_u32 s26, s26, s3")
        a("s_and_b32 s27, s27, 15")
    a("v_lshlrev_b32 v3, 7, v1")
    if "cp16" in OPT:
        a("s_cmp_lg_u32 s28, 3"); a("s_cbranch_scc1 L_nocp")
        a("s_mul_i32 s3, s27, 2304"); a("v_add_u32 v27, s3, v3"); a("s_bfm_b64 exec, 18, 0")
        a("global_load_dword v4, v27, s[30:31]"); a("s_mov_b64 exec, -1")
    elif "nocp" not in OPT:
        a("s_cmp_lg_u32 s28, 3"); a("s_cbranch_scc1 L_nocp")
        a("s_mul_i32 s3, s27, 13"); a("s_lshr_b32 s3, s3, 6"); a("s_mul_i32 s3, s3, 5"); a("s_sub_u32 s3, s27, s3"); a("s_lshl_b32 s3, s3, 13")
        a("v_add_u32 v27, s3, v3")
        a("global_load_dword v4, v27, s[30:31]")
    a("L_nocp:")
    BQ = 102400; SCR = 153600; CSX = 161792
    vXA = [72, 73, 74, 75]; vW = [76, 77]; vRd = [78, 79]; vTB = [17, 18, 19, 20]; vTQ = [86, 87, 88, 89]; vTQ2 = [90, 91, 21, 22]
    vSA = [80, 81, 82]; vBA = [144, 145, 146, 147, 148]; vTR = [149, 150, 151, 152]
    vT1 = 24; vSTW = 25
    ACC = 32; RAW = 160; XF = A0; BF = A0 + 160; ONES = A0 + 200; GR = A0 + 204; RSM = A0 + 212; OH = A0 + 220; CSA = A0 + 240; CSQ = A0 + 244
    t0, t1, t2, t3 = "v27", "v28", "v29", "v30"
    def early():
        a("v_and_b32 v27, 3, v1"); a("s_lshl_b32 s3, s28, 2"); a("v_add_u32 v27, s3, v27"); a("v_min_u32 v27, 14, v27")
        a("v_lshrrev_b32 v28, 2, v1"); a("v_mul_u32_u24 v28, 3840, v28"); a("v_lshl_add_u32 v28, v27, 4, v28")
        a("v_add_u32 v29, 1280, v28"); a("v_add_u32 v30, 2480, v28"); a("v_subrev_u32 v28, 160, v28")
        a("v_cmp_gt_u32 vcc, 10, v27"); a("s_mul_i32 s50, s26, 153600"); a("s_mul_i32 s51, s27, 80"); a("v_cndmask_b32 v28, v28, v30, vcc")
        a("v_cmp_gt_u32 vcc, 5, v27"); a("s_add_u32 s50, s50, s51"); a("s_mul_i32 s53, s28, 3072"); a("v_cndmask_b32 v83, v28, v29, vcc")
        a(f"s_add_u32 s53, s53, {BQ + 28672}")
        a("s_mul_i32 s3, s26, 163840"); a("s_mul_i32 s56, s27, 10240"); a("s_add_u32 s3, s3, s56"); a("s_mul_i32 s56, s28, 2560"); a("s_add_u32 s57, s3, s56")
        a("v_mov_b32 v5, 0")
    def late():
        a("v_lshlrev_b32 v8, 4, v1"); a("v_lshlrev_b32 v9, 4, v0")
        a("v_and_b32 v10, 15, v1"); a("v_lshlrev_b32 v10, 2, v10")
        a("v_lshrrev_b32 v11, 4, v1"); a("v_add_u32 v12, 4096, v8")
        a("v_lshrrev_b32 v27, 3, v1"); a("v_and_b32 v28, 7, v1"); a("v_mul_u32_u24 v29, 1280, v27")
        a(f"v_lshl_add_u32 v{vXA[0]}, v28, 4, v29")
        for rg in range(1, 4): a(f"v_add_u32 v{vXA[rg]}, {10240*rg}, v{vXA[0]}")
        a("s_lshl_b32 s3, s28, 11"); a(f"s_add_u32 s48, s3, {SCR}")
        a("v_lshrrev_b32 v29, 1, v27"); a("v_xor_b32 v29, v29, v28"); a("v_lshlrev_b32 v29, 4, v29"); a("v_lshl_add_u32 v29, v27, 7, v29")
        a(f"v_add_u32 v{vW[0]}, s48, v29")
        a("v_xor_b32 v29, 64, v29"); a("v_add_u32 v29, 1024, v29"); a(f"v_add_u32 v{vW[1]}, s48, v29")
        a("s_lshl_b32 s49, s26, 7"); a("s_lshl_b32 s3, s28, 5"); a("s_add_u32 s49, s49, s3"); a("s_mul_i32 s49, s49, 1280")
        a("s_lshr_b32 s3, s28, 1"); a("s_lshl_b32 s3, s3, 7"); a("s_add_u32 s62, s49, 128"); a("s_sub_u32 s62, s62, s3"); a("s_add_u32 s49, s49, s3")
        a("s_mul_i32 s52, s28, 5120")
        a(f"s_mul_i32 s58, s26, {G_SZ}"); a(f"s_add_u32 s58, s58, {GRP}")
        a("s_lshl_b32 s70, s28, 4"); a("s_add_u32 s70, s70, s26")
        a(f"s_mul_i32 s71, s28, 7168"); a(f"s_add_u32 s71, s71, {BQ}")
        a("v_mov_b32 v2, 0x7fffffff")
    early()
    if "slowpro" in OPT: late()
    a("s_waitcnt lgkmcnt(0)")
    srd(a, 36, 6, 2457600)
    SLNT = "" if "slplain" in OPT else " nt"
    for i in range(3):
        a(f"s_add_u32 m0, s53, {1024*i}")
        if i == 2: a("s_bfm_b64 exec, 32, 0")
        a.vmem(f"buffer_load_dwordx4 v83, s[36:39], s50 offen{SLNT} lds", "SLD")
        a(f"s_add_u32 s50, s50, {16*3840}")
    srd(a, 32, 4, 2621440); srd(a, 40, 24, WS_END)
    a("s_mov_b64 exec, 0xfffff")
    a.vmem(f"buffer_load_dword v4, v3, s[32:35], s57 offen{' nt' if 'xtnt' in OPT else ''}")
    if "tlb" in OPT:
        a("v_lshlrev_b32 v27, 20, v1"); a("s_bfm_b64 exec, 24, 0")
        a.vmem(f"buffer_load_dword v4, v27, s[40:43], 0 offen")
    if "tlb2" in OPT:
        a("s_mul_i32 s54, s27, 153600"); a(f"s_add_u32 s54, s54, {WQKV}")
        a("v_mul_u32_u24 v27, 51200, v1"); a("v_add_u32 v27, s54, v27"); a(f"v_mov_b32 v28, {F0}"); a("v_cmp_eq_u32 vcc, 3, v1"); a("v_cndmask_b32 v27, v27, v28, vcc")
        a("s_bfm_b64 exec, 4, 0")
        a.vmem(f"buffer_load_dword v4, v27, s[40:43], 0 offen")
        a.vmem("global_load_dword v4, v5, s[22:23] offset:128")
    a("s_mov_b64 exec, -1")
    if STAMP: a("v_writelane_b32 v7, s76, 29")
    a("s_and_b32 s76, s76, 0xfffffff8"); a("s_or_b32 s76, s76, 8")
    a("s_or_b32 s3, s2, s28"); a("s_cmp_lg_u32 s3, 0"); a("s_cbranch_scc1 L_notag")
    a("v_mov_b32 v28, s76"); a("global_store_dword v5, v28, s[22:23] sc1")
    a("L_notag:")
    if "ft" in OPT:
        a("s_cmp_lg_u32 s26, s27"); a("s_cbranch_scc1 L_noft"); a("s_cmp_lg_u32 s28, 1"); a("s_cbranch_scc1 L_noft")
        a("s_mul_i32 s3, s27, 1280"); a(f"s_add_u32 s3, s3, {FLG}")
        a("s_bfm_b64 exec, 10, 0"); a("buffer_load_dword v4, v3, s[40:43], s3 offen sc0 sc1"); a("s_mov_b64 exec, -1")
        a("L_noft:")
    if "tlb3" in OPT:
        a("s_cmp_lg_u32 s28, 2"); a("s_cbranch_scc1 L_not3")
        a("v_lshlrev_b32 v27, 16, v1"); a("v_lshlrev_b32 v28, 18, v1")
        for cc, (sp, n_) in enumerate([(12, 34), (16, 34), (8, 13), (20, 40)]):
            a(f"s_cmp_lg_u32 s27, {2+cc}"); a(f"s_cbranch_scc1 L_t3_{cc}")
            a(f"s_bfm_b64 exec, {n_}, 0"); a(f"global_load_dword v4, v27, s[{sp}:{sp+1}]"); a("s_mov_b64 exec, -1")
            a(f"L_t3_{cc}:")
        a("s_cmp_lg_u32 s27, 6"); a("s_cbranch_scc1 L_t3_4"); a("buffer_load_dword v4, v28, s[40:43], 0 offen"); a("L_t3_4:")
        a("s_cmp_lg_u32 s27, 7"); a("s_cbranch_scc1 L_not3"); a(f"s_mov_b32 s3, {64 << 18}"); a("buffer_load_dword v4, v28, s[40:43], s3 offen")
        a("L_not3:")
    if "nobt" not in OPT:
        a("s_lshl_b32 s3, s27, 2"); a("s_add_u32 s3, s3, s28"); a("s_cmp_lg_u32 s3, 6"); a("s_cbranch_scc1 L_nobt")
        a("s_bfm_b64 exec, 27, 0"); a("global_load_dword v4, v3, s[14:15]")
        a("s_bfm_b64 exec, 10, 0"); a("global_load_dword v4, v3, s[18:19]")
        a("s_mov_b64 exec, -1")
        a("L_nobt:")
    srd(a, 44, 12, 2211840)
    if "slowpro" not in OPT: late()
    def rp_issue(nt, pitch_src, nch):
        for i in range(7):
            if i < nt:
                a(f"v_add_u32 v27, {64*i}, v1")
                divmod_const(a, "v28", "v29", "v27", nch)
                a(f"v_mul_u32_u24 v28, {pitch_src}, v28"); a("v_lshl_add_u32 v28, v29, 4, v28")
                a(f"s_add_u32 m0, s71, {1024*i}")
                a(f"buffer_load_dwordx4 v28, s[44:47], s73 offen{RPNT} lds")
            else:
                a("buffer_load_dword v4, v2, s[44:47], 0 offen")
    def unit_issue():
        a("s_cmp_ge_u32 s70, 20"); a("s_cbranch_scc1 L_rp5")
        a("s_mov_b32 s72, 1")
        a("s_mul_i32 s75, s27, 27"); a("s_lshr_b32 s75, s75, 2"); a("s_lshl_b32 s75, s75, 5")
        a("s_mul_i32 s79, s70, 110592"); a("s_add_u32 s73, s75, s79")
        a("s_mul_i32 s75, s27, 20"); a("s_add_u32 s70, s70, s75")
        a("s_mul_i32 s74, s70, 7168"); a(f"s_add_u32 s74, s74, {W1P}")
        rp_issue(7, 3456, 14)
        a("s_branch L_rp_issued")
        a("L_rp5:")
        a("s_mov_b32 s72, 2")
        a("s_sub_u32 s79, s70, 20"); a("s_lshl_b32 s79, s79, 1"); a("s_lshr_b32 s75, s27, 3"); a("s_add_u32 s79, s79, s75"); a("s_and_b32 s75, s27, 7")
        a("s_cmp_ge_u32 s79, 54"); a("s_cbranch_scc1 L_rpwo")
        srd(a, 44, 16, 2211840)
        a("s_mul_i32 s78, s75, 54"); a("s_add_u32 s78, s78, s79")
        a("s_mul_i32 s74, s78, 5120"); a(f"s_add_u32 s74, s74, {W2P}")
        a("s_branch L_rp5b")
        a("L_rpwo:")
        srd(a, 44, 8, 819200)
        a("s_sub_u32 s79, s79, 54")
        a("s_mul_i32 s78, s75, 20"); a("s_add_u32 s78, s78, s79")
        a("s_mul_i32 s74, s78, 5120"); a(f"s_add_u32 s74, s74, {WOP}")
        a("s_cmp_ge_u32 s79, 20"); a("s_cselect_b32 s74, 0x40000000, s74")
        a("L_rp5b:")
        a("s_mul_i32 s75, s75, 160"); a("s_mul_i32 s79, s79, 40960"); a("s_add_u32 s73, s75, s79")
        rp_issue(5, 1280, 10)
        a("L_rp_issued:")
        a.vm += ["UL"]*7
    def raw(cx, rg): return 96 + (((cx + 1) % 10)*4 + rg)*4
    def xf(tt, k): return XF + (tt*20 + k)*4
    def ldx(cx):
        return [lambda cx=cx, rg=rg: a.vmem(f"buffer_load_dwordx4 {R(raw(cx, rg), 4)}, v{vXA[rg]}, s[32:35], s{62 if cx & 1 else 49} offen offset:{256*(cx>>1)}", f"X{cx}") for rg in range(4)]
    a("v_and_b32 v27, 15, v1")
    a("v_cmp_gt_u32 s[66:67], 8, v27")
    a("v_cmp_gt_u32 s[90:91], 32, v1"); a("v_cmp_gt_u32 s[92:93], 48, v1")
    a("v_cmp_eq_u32 s[88:89], 1, v11")
    a("v_and_b32 v29, 1, v11")
    a("s_lshl_b32 s3, s28, 1"); a("v_add_u32 v29, s3, v29")
    a("v_cmp_gt_u32 s[94:95], 5, v29"); a("v_cmp_eq_u32 s[96:97], 7, v29")
    a("v_lshlrev_b32 v29, 10, v29"); a(f"v_add_u32 v30, {BQ - 5120}, v29"); a("v_cndmask_b32 v29, v30, v29, s[94:95]")
    a("v_lshl_add_u32 v29, v10, 2, v29")
    a("v_mov_b32 v30, 2560"); a("v_mov_b32 v31, 5120"); a("v_cndmask_b32 v30, v30, v31, s[94:95]")
    a("v_mov_b32 v31, 8"); a("v_cndmask_b32 v31, v31, 7, s[96:97]")
    a("s_andn2_b64 s[96:97], s[96:97], s[66:67]")
    a("s_mul_i32 s3, s26, 5")
    a("v_lshrrev_b32 v28, 1, v11"); a("v_add_u32 v28, s3, v28")
    for n in range(3):
        a(f"v_lshrrev_b32 v27, 2, v28"); a(f"v_mad_u32_u24 v{vSA[n]}, v27, v30, v29")
        a("v_and_b32 v27, 3, v28"); a("v_lshlrev_b32 v27, v31, v27"); a(f"v_add_u32 v{vSA[n]}, v{vSA[n]}, v27")
        a(f"v_cndmask_b32 v{vSA[n]}, v{vSA[n]}, v2, s[96:97]")
        if n == 2: a(f"v_cndmask_b32 v{vSA[n]}, v2, v{vSA[n]}, s[90:91]")
        else: a("v_add_u32 v28, 2, v28")
    a("v_lshrrev_b32 v27, 5, v1"); a("v_bfe_u32 v28, v1, 2, 2"); a("v_lshl_add_u32 v27, v27, 3, v28"); a("v_lshlrev_b32 v27, 6, v27")
    a("v_bfe_u32 v28, v1, 4, 1"); a("v_lshl_add_u32 v27, v28, 5, v27"); a("v_and_b32 v28, 3, v1"); a("v_lshl_add_u32 v27, v28, 3, v27")
    a("v_add_u32 v84, s53, v27")
    a("s_mul_i32 s54, s27, 153600"); a(f"s_add_u32 s54, s54, {WQKV}")
    def transp(cx):
        L = []
        for tt in range(2):
            L.append(lambda tt=tt: a.ds(f"ds_write_b128 v{vW[0]}, {R(raw(cx, 2*tt), 4)}"))
            L.append(lambda tt=tt: a.ds(f"ds_write_b128 v{vW[1]}, {R(raw(cx, 2*tt+1), 4)}"))
            L.append(lambda tt=tt: a.ds(f"ds_read_b128 {R(xf(tt, 2*cx), 4)}, v{vRd[0]}"))
            L.append(lambda tt=tt: a.ds(f"ds_read_b128 {R(xf(tt, 2*cx+1), 4)}, v{vRd[1]}", f"T{cx}"))
        return L
    a("v_and_b32 v27, 15, v1")
    a("v_lshrrev_b32 v29, 1, v27"); a("v_xor_b32 v29, v29, v11"); a("v_lshlrev_b32 v29, 4, v29"); a("v_lshl_add_u32 v29, v27, 7, v29")
    a("s_and_b32 s3, s28, 1"); a("s_lshl_b32 s3, s3, 6"); a("v_xor_b32 v29, s3, v29")
    a(f"v_add_u32 v{vRd[0]}, s48, v29"); a("v_xor_b32 v29, 64, v29"); a(f"v_add_u32 v{vRd[1]}, s48, v29")
    a("v_lshrrev_b32 v29, 2, v27"); a("v_cmp_eq_u32 vcc, v29, v11")
    a("v_lshlrev_b32 v30, 2, v1"); a("v_add_u32 v30, 512, v30")
    a("v_cndmask_b32 v29, v30, v10, vcc"); a(f"v_add_u32 v{vSTW}, s48, v29")
    a("v_and_b32 v29, 1, v1"); a("v_cmp_eq_u32 s[68:69], 1, v29")
    a("v_and_b32 v29, 2, v1"); a("v_cmp_eq_u32 s[86:87], 2, v29")
    a("v_mov_b32 v28, 0x3f803f80")
    for i in range(4): a(f"v_accvgpr_write_b32 {R(ONES+i)}, v28")
    for t in range(5):
        a(f"v_cmp_eq_u32 vcc, {t}, v27"); a("v_cndmask_b32 v29, 0, v28, vcc")
        for e in range(4): a(f"v_accvgpr_write_b32 {R(OH+4*t+e)}, v29")
    a("v_and_b32 v27, 7, v1"); a("v_lshlrev_b32 v27, 4, v27"); a("v_lshl_add_u32 v27, v11, 7, v27")
    for p in range(4):
        a(f"s_xor_b32 s3, s28, {p}"); a("s_mul_i32 s56, s3, 5120"); a(f"v_add_u32 v{vTB[p]}, s56, v8")
        a("s_mul_i32 s56, s3, 2560"); a(f"s_add_u32 s56, s56, {BQ}"); a(f"v_add_u32 v{vTQ[p]}, s56, v8"); a("s_add_u32 s56, s56, 2048"); a(f"v_add_u32 v{vTQ2[p]}, s56, v27")
    a(f"s_mov_b32 s60, {hx(LOG2E)}"); a(f"s_mov_b32 s61, {hx(1e-6)}")
    a(f"s_mov_b32 s63, {hx(1.0/640)}"); a(f"s_mov_b32 s64, {hx(1e-5)}")
    a("s_lshl_b32 s55, s27, 8"); a(f"s_add_u32 s55, s55, {F0}")
    a("v_lshlrev_b32 v26, 2, v1")
    a("s_lshl_b32 s3, s26, 4"); a("s_lshl_b32 s56, s28, 2"); a("s_add_u32 s3, s3, s56"); a("s_add_u32 s3, s3, s55")
    NX0 = P("NX0", 3); NX1 = P("NX1", 10)
    for cx in range(NX0):
        for f in ldx(cx): f()
    a.wait(vm="SLD")
    a.stamp("sld")
    for n in range(3):
        for h in range(2): a(f"ds_read_b64_tr_b16 {R(32 + 4*n + 2*h, 2)}, v84 offset:{1024*n + 256*h}")
    a("s_waitcnt lgkmcnt(0)")
    for n in range(3): a.vmem(f"buffer_store_dwordx4 {R(32 + 4*n, 4)}, v{vSA[n]}, s[40:43], s54 offen sc1", "SL")
    a.vmem("global_load_dword v6, v5, s[22:23] sc1", "TAG")
    lq = sum([ldx(cx) for cx in range(NX0, NX1)], [])
    per = (len(lq) + NX0 - 1)//NX0
    for cx in range(NX0):
        for f in lq[:per]: f()
        lq = lq[per:]
        a.wait(vm=f"X{cx}")
        for f in transp(cx): f()
    a.wait(vm="TAG")
    a("v_readfirstlane_b32 s76, v6"); a("s_mov_b32 s78, 0")
    a("L_tp1:")
    a("s_cmp_lg_u32 s76, 0"); a("s_cbranch_scc1 L_tp1_ok")
    a("global_load_dword v6, v5, s[22:23] sc1"); a("s_add_u32 s78, s78, 1"); a("s_waitcnt vmcnt(0)")
    a("v_readfirstlane_b32 s76, v6")
    a(f"s_cmp_lt_u32 s78, {POLLMAX}"); a("s_cbranch_scc1 L_tp1")
    a("L_tp1_ok:")
    a("s_getreg_b32 s77, hwreg(HW_REG_XCC_ID)"); a("s_and_b32 s77, s77, 7"); a("s_or_b32 s77, s77, s76")
    a("s_lshl_b32 s57, s26, 7"); a("s_lshl_b32 s56, s27, 2"); a("s_add_u32 s57, s57, s56"); a(f"s_add_u32 s57, s57, {F1R}")
    a("s_cmp_eq_u32 s28, 0"); a("s_cselect_b32 s57, s57, 0x40000000"); a("v_mov_b32 v27, s77")
    a("s_mov_b64 exec, 1"); a.vmem("buffer_store_dword v6, v5, s[40:43], s3 offen sc1"); a.vmem("buffer_store_dword v27, v5, s[40:43], s57 offen sc1"); a("s_mov_b64 exec, -1")
    a.stamp("F0pub")
    def rp_fin(nt, RG):
        pitch = nt*32
        a("v_bfe_u32 v28, v1, 2, 2"); a("v_lshl_add_u32 v27, v11, 3, v28"); a("v_and_b32 v28, 3, v1")
        a(f"v_mul_u32_u24 v29, {pitch}, v27"); a("v_add_u32 v29, s71, v29")
        a("v_lshl_add_u32 v30, v28, 3, v29"); a("v_lshl_add_u32 v29, v28, 4, v29")
        for t in range(nt):
            for h in range(2):
                if t == nt - 1: a(f"ds_read_b64_tr_b16 {R(RG + 4*t + 2*h, 2)}, v30 offset:{h*4*pitch + 32*t}")
                else: a(f"ds_read_b64_tr_b16 {R(RG + 4*t + 2*h, 2)}, v29 offset:{h*4*pitch + 64*(t>>1) + 8*(t&1)}")
        if nt == 7:
            a("v_mov_b32 v28, 0x3f803f80")
            for t in (5, 6):
                a(f"v_cmp_eq_u32 vcc, {4*t}, v10")
                for e in range(4): a(f"v_cndmask_b32 v{RG+28+4*(t-5)+e}, 0, v28, vcc")
        a("s_waitcnt lgkmcnt(0)")
        if nt == 7:
            for t in range(7): a(MF(RG+36, RG + 4*t, OH + 4*t if t < 5 else RG+28+4*(t-5), t == 0))
    def rp_store(nt, RG):
        for t in range(nt):
            a(f"buffer_store_dwordx4 {R(RG + 4*t, 4)}, v{8 if t < 4 else 12}, s[40:43], s74 offen offset:{1024*(t&3)} sc1")
        if nt == 7:
            a("v_lshlrev_b32 v29, 4, v11"); a("v_lshl_add_u32 v29, v10, 4, v29"); a("v_cndmask_b32 v29, v2, v29, s[66:67]")
            a("s_lshl_b32 s3, s70, 9"); a(f"s_add_u32 s3, s3, {C1P}")
            a(f"buffer_store_dwordx4 {R(RG+36, 4)}, v29, s[40:43], s3 offen sc1")
        else:
            for _ in range(3): a("buffer_store_dword v5, v2, s[40:43], 0 offen")
    def acc(tt, t): return ACC + (tt*5 + t)*4
    def statm(k):
        L = []
        for tt in range(2):
            L.append(MF(GR + 4*tt, xf(tt, k), xf(tt, k), k == 0)); L.append(MF(RSM + 4*tt, ONES, xf(tt, k), k == 0))
        return L
    def breads1(s):
        j, p = divmod(s, 4); L = []
        for t in range(5):
            L.append(lambda t=t: a.ds(f"ds_read_b128 {R(BF + (s&1)*20 + t*4, 4)}, v{vTB[p]} offset:{(j % 3)*20480 + t*1024}", f"R{s}"))
        if j == 2: L.append(f"v_add_u32 v{vTB[p]}, 61440, v{vTB[p]}")
        return L
    def ldb(j):
        def one(i):
            if i == 0: a(f"s_add_u32 m0, s52, {j*20480}"); a("s_add_u32 s57, s54, m0")
            if i == 4: a(f"s_add_u32 m0, s52, {j*20480 + 4096}")
            a.vmem(f"buffer_load_dwordx4 v{8 if i < 4 else 12}, s[40:43], s57 offen offset:{1024*(i&3)} sc1 lds", f"B{j}")
        return [lambda i=i: one(i) for i in range(5)]
    def ldq():
        def one(i):
            if i == 11: a("s_cmp_eq_u32 s28, 3"); a("s_cbranch_scc1 L_noq")
            a(f"s_mul_i32 s98, s28, 13312"); a(f"s_add_u32 m0, s98, {BQ + i*1024}"); a("s_add_u32 s98, s54, m0")
            a.a(f"buffer_load_dwordx4 v8, s[40:43], s98 offen sc1 lds")
            if i < 11: a.vm.append("BQ")
            if i == 12: a("L_noq:")
        return [lambda i=i: one(i) for i in range(11)] + [lambda: (one(11), one(12))]
    def ldt1():
        a("v_lshlrev_b32 v27, 1, v0"); a("s_add_u32 s56, s30, T1_tab-L_pc"); a("s_addc_u32 s57, s31, 0")
        a.vmem(f"global_load_ushort v{vT1}, v27, s[56:57]", "T1")
    def kv_mf(s):
        mf = []
        for t in range(5):
            b = BF + (s&1)*20 + t*4
            for tt in range(2): mf.append(MF(acc(tt, t), xf(tt, s), b, s == 0))
            if s % 4 == 0: mf.append(MF(CSA, OH + 4*t, b, s == 0 and t == 0))
        return mf
    RS = 96; MS = 104; RT = 112; MT = 114; CSV = 116
    URG = 116
    def flagtouch():
        a(f"s_add_u32 s3, s58, {G_FL}"); a("s_bfm_b64 exec, 8, 0"); a.vmem("buffer_load_dword v4, v3, s[40:43], s3 offen"); a("s_mov_b64 exec, -1")
    for f in sum([ldx(cx) for cx in range(NX1, 10)], []) + [ldt1, flagtouch]: f()
    UPOS = P("UPOS", NX0)
    sq = 0
    for cx in range(NX0, 10):
        if cx == UPOS: unit_issue()
        a.wait(vm=f"X{cx}")
        a.wait(lg=f"T{cx-1}")
        mf = []
        n_ = 3 if sq + 3 <= 2*cx else 2*cx - sq
        for _ in range(n_): mf += statm(sq); sq += 1
        a.interleave(mf, transp(cx))
    a.stamp("xdone")
    a("s_mov_b32 s78, 0")
    a("L_h0p:")
    a("buffer_load_dword v16, v26, s[40:43], s55 offen sc1"); a("s_waitcnt vmcnt(0)")
    a("v_cmp_ne_u32 vcc, s76, v16")
    a("s_cbranch_vccz L_h0ok")
    a("s_add_u32 s78, s78, 1"); a(f"s_cmp_lt_u32 s78, {POLLMAX}"); a("s_cbranch_scc1 L_h0p")
    a("L_h0ok:")
    a.vm = []
    a.stamp("F0ok")
    for f in ldb(0): f()
    for f in ldb(1): f()
    a.wait(lg="all")
    while sq < 20:
        for x in statm(sq): a(x)
        sq += 1
    a("s_cmp_eq_u32 s72, 2"); a("s_cbranch_scc1 L_rp_f5")
    rp_fin(7, URG); a("s_branch L_rp_done")
    a("L_rp_f5:"); rp_fin(5, URG)
    a("L_rp_done:")
    for tt in range(2):
        for e in range(4): a(f"v_accvgpr_read_b32 v{160+e}, {R(GR + 4*tt + e)}")
        a(f"v_accvgpr_read_b32 v164, {R(RSM + 4*tt)}")
        for x in ["v_cndmask_b32 v160, v160, v161, s[68:69]", "v_cndmask_b32 v162, v162, v163, s[68:69]", "v_mul_f32 v164, s63, v164",
                  "v_cndmask_b32 v160, v160, v162, s[86:87]", "v_mul_f32 v160, s63, v160", "v_fma_f32 v160, -v164, v164, v160",
                  "v_max_f32 v160, 0, v160", "v_add_f32 v160, s64, v160", "v_rsq_f32 v160, v160", "v_mul_f32 v164, v164, v160"]: a(x)
        a.ds(f"ds_write_b32 v{vSTW}, v160 offset:{64*tt}"); a.ds(f"ds_write_b32 v{vSTW}, v164 offset:{128 + 64*tt}")
    a("v_lshlrev_b32 v28, 4, v11"); a("v_add_u32 v28, s48, v28"); a("v_add_u32 v29, s48, v10")
    for tt in range(2):
        a.ds(f"ds_read_b128 {R(RS + 4*tt, 4)}, v28 offset:{64*tt}"); a.ds(f"ds_read_b128 {R(MS + 4*tt, 4)}, v28 offset:{128 + 64*tt}")
        a.ds(f"ds_read_b32 v{RT + tt}, v29 offset:{64*tt}"); a.ds(f"ds_read_b32 v{MT + tt}, v29 offset:{128 + 64*tt}")
    NBE = P("NBE", 3)
    for j in range(2, NBE):
        for f in ldb(j): f()
    a("s_lshl_b32 s73, s70, 9"); a(f"s_add_u32 s73, s73, {C1P}")
    a("s_cmp_eq_u32 s72, 2"); a("s_cselect_b32 s75, 0x40000000, s74"); a("s_cselect_b32 s73, 0x40000000, s73")
    a("v_lshlrev_b32 v85, 4, v11"); a("v_lshl_add_u32 v85, v10, 4, v85"); a("v_cndmask_b32 v85, v2, v85, s[66:67]")
    def ust(t):
        if t < 7: a.vmem(f"buffer_store_dwordx4 {R(URG + 4*t, 4)}, v{8 if t < 4 else 12}, s[40:43], s{74 if t < 5 else 75} offen offset:{1024*(t&3)} sc1", "US")
        else: a.vmem(f"buffer_store_dwordx4 {R(URG+36, 4)}, v85, s[40:43], s73 offen sc1", "US")
    a("s_and_b32 s59, s27, 7"); a("s_lshl_b32 s59, s59, 9"); a(f"s_add_u32 s59, s59, {FU}")
    a("s_lshr_b32 s3, s27, 3"); a("s_lshl_b32 s3, s3, 4"); a("s_add_u32 s3, s3, s26"); a("s_lshl_b32 s3, s3, 2"); a("s_add_u32 s3, s3, s28"); a("s_lshl_b32 s3, s3, 2"); a("s_add_u32 s70, s3, s59")
    a.wait(vm="B0")
    a("s_barrier")
    a.stamp("bP")
    a("s_mov_b32 s94, s60"); a("s_mov_b32 s95, s60"); a("s_mov_b32 s96, s61"); a("s_mov_b32 s97, s61")
    for f in breads1(0): a.run(f)
    def pretouch():
        if "sc1h" in OPT:
            a(f"s_add_u32 s3, s58, {G_FL}"); a("s_bfm_b64 exec, 4, 0"); a.vmem("buffer_load_dword v4, v3, s[40:43], s3 offen"); a("s_mov_b64 exec, -1")
            return
        a("s_mul_i32 s3, s27, 21056"); a("s_add_u32 s3, s3, s58"); a("s_mul_i32 s56, s28, 5376"); a("s_add_u32 s3, s3, s56")
        a("s_bfm_b64 exec, 42, 0"); a.vmem("buffer_load_dword v4, v3, s[40:43], s3 offen"); a("s_mov_b64 exec, -1")
    FB3 = 156
    a("s_and_b32 s3, s27, 7"); a("s_mul_i32 s3, s3, 20"); a("s_add_u32 s3, s3, s28"); a("s_mul_i32 s65, s3, 5120"); a(f"s_add_u32 s65, s65, {WOP}")
    def ldwo(n, t):
        a.vmem(f"buffer_load_dwordx4 {R(FB3 + (n*5+t)*4, 4)}, v{8 if t < 4 else 12}, s[40:43], s65 offen offset:{1024*(t&3)} sc1", "WO")
        if t == 4: a("s_add_u32 s65, s65, 20480")
    def ldfu():
        a("v_lshlrev_b32 v31, 3, v1")
        a.vmem("buffer_load_dwordx2 v[92:93], v31, s[40:43], s59 offen sc1", "FU")
    def chkfu():
        a.wait(vm="FU")
        a("s_mov_b32 s78, 0")
        a("L_fu:")
        a("v_cmp_ne_u32 vcc, s76, v92"); a("v_cmp_ne_u32 s[84:85], s76, v93")
        a("s_or_b64 vcc, vcc, s[84:85]"); a("s_cbranch_scc0 L_fu_ok")
        a("s_add_u32 s78, s78, 1"); a(f"s_cmp_ge_u32 s78, {POLLMAX}"); a("s_cbranch_scc1 L_fu_ok")
        a("buffer_load_dwordx2 v[92:93], v31, s[40:43], s59 offen sc1"); a("s_waitcnt vmcnt(0)")
        a("s_branch L_fu")
        a("L_fu_ok:")
    q_ = ldq(); mix = []
    if "usfirst" in OPT:
        mix = [lambda i=i: ust(i) for i in range(8)] + q_
    else:
        for i in range(12):
            mix.append(q_[i])
            if i < 8: mix.append(lambda i=i: ust(i))
    ldlist = sum([ldb(j) for j in range(NBE, 5)], [])
    MS0 = P("MS0", 6); MR = P("MR", 1)
    a.bgq = mix
    SFU = P("SFU", 18)
    LEND = P("LEND", 16)
    CT = 116
    for s in range(20):
        j, p = divmod(s, 4)
        if p == 3 and j < 4:
            a.wait(vm=f"B{j+1}"); a("s_barrier")
        if s == SFU:
            a.wait(vm="US")
            a("s_mov_b64 exec, 1"); a.vmem("buffer_store_dword v6, v5, s[40:43], s70 offen sc1"); a("s_mov_b64 exec, -1")
        if s == 18:
            a.wait(lg="CSW"); a("s_barrier")
        a.wait(lg=f"R{s}")
        mf = kv_mf(s)
        front = breads1(s+1) if s < 19 else []
        side = []
        if s == 17:
            side += ["s_lshl_b32 s3, s28, 9", f"s_add_u32 s3, s3, {CSX}", "v_add_u32 v27, s3, v8"]
            side.append(lambda: (a("s_bfm_b64 exec, 32, 0"), a.ds(f"ds_write_b128 v27, {R(CSA, 4)}", "CSW"), a("s_mov_b64 exec, -1")))
        if s == 18:
            assert a.vm.count("US") == 8
            side += ["v_lshlrev_b32 v27, 2, v10", f"v_add_u32 v27, {CSX}, v27"]
            for w in range(4):
                side.append(lambda w=w: a.ds(f"ds_read_b128 {R(CT + 4*w, 4)}, v27 offset:{512*w}"))
                side.append(lambda w=w: a.ds(f"ds_read_b32 v{CT + 16 + w}, v27 offset:{512*w + 256}", "CSR"))
        if s == 19:
            side.append(lambda: a.wait(lg="CSR"))
            for e in range(4):
                side += [f"v_add_f32 v{CT+e}, v{CT+e}, v{CT+4+e}", f"v_add_f32 v{CT+8+e}, v{CT+8+e}, v{CT+12+e}", f"v_add_f32 v{CT+20+e}, v{CT+e}, v{CT+8+e}"]
            side += [f"v_add_f32 v{CT+16}, v{CT+16}, v{CT+17}", f"v_add_f32 v{CT+18}, v{CT+18}, v{CT+19}", f"v_add_f32 v{CT+24}, v{CT+16}, v{CT+18}"]
        side += ldlist[:3]; ldlist = ldlist[3:]
        if s >= MS0: side = [lambda: a.bg(1)]*MR + side
        a.interleave(mf, side, front)
    CSV = CT + 20
    a.stamp("kvend")
    OP = 116; TP = 72
    FUC = P("FUC", 14)
    if FUC < 4: ldfu()
    KBG = P("KBG", 1)
    for t in range(5):
        for tt in range(2):
            b_ = acc(tt, t)
            cp = CSV + t; cpe = cp & ~1; sel = cp & 1
            for h in range(2):
                x = b_ + 2*h
                a(f"v_pk_mul_f32 v[{TP+2*h}:{TP+2*h+1}], v[{MS+4*tt+2*h}:{MS+4*tt+2*h+1}], v[{cpe}:{cpe+1}] op_sel:[0,{sel}] op_sel_hi:[1,{sel}]")
            for h in range(2):
                x = b_ + 2*h
                a(f"v_pk_fma_f32 v[{x}:{x+1}], v[{x}:{x+1}], v[{RS+4*tt+2*h}:{RS+4*tt+2*h+1}], v[{TP+2*h}:{TP+2*h+1}] neg_lo:[0,0,1] neg_hi:[0,0,1]")
            if t <= 2: phi4(a, b_, TP, sel_mask=("s[66:67]" if t == 2 else None))
            for h in range(2):
                a(f"v_cvt_pk_bf16_f32 v{OP + 4*t + 2*tt + h}, v{acc(tt, t) + 2*h}, v{acc(tt, t) + 2*h + 1}")
            if t*2 + tt == SFU - 20:
                a.wait(vm="US")
                a("s_mov_b64 exec, 1"); a.vmem("buffer_store_dword v6, v5, s[40:43], s70 offen sc1"); a("s_mov_b64 exec, -1")
            if t*2 + tt == FUC - 4: ldfu()
            if t*2 + tt == FUC: chkfu(); a.bgq += [lambda n=n, t=t: ldwo(n, t) for n in range(5) for t in range(5)]
            a.bg(KBG)
    while "BQdone" not in a.vm and a.vm.count("BQ") < 11 or (a.bgq and a.bgq[0] is q_[11]): a.bg(1)
    KVD = 32
    for p, (ta, tb) in enumerate(PAIRS):
        a(MF(KVD + 4*p, OP + 4*ta, ONES if tb < 0 else OP + 4*tb, True))
    a("s_mul_i32 s3, s28, 10240"); a("v_add_u32 v27, s3, v8")
    for p in range(10): a(f"ds_write_b128 v27, {R(KVD + 4*p, 4)} offset:{1024*p}")
    a("s_lshl_b32 s3, s27, 4"); a("s_add_u32 s3, s3, s26"); a("s_lshl_b32 s3, s3, 12"); a(f"s_add_u32 s3, s3, {PART}")
    a("v_cmp_gt_u32 vcc, 216, v0"); a("v_cndmask_b32 v9, v2, v9, vcc")
    a.wait(lg="all")
    a("s_barrier")
    for w in range(4): a(f"ds_read_b128 {R(56 + 4*w, 4)}, v{vT1} offset:{10240*w}")
    a("s_waitcnt lgkmcnt(0)")
    for e in (0, 2):
        a(f"v_pk_add_f32 v[{56+e}:{57+e}], v[{56+e}:{57+e}], v[{60+e}:{61+e}]"); a(f"v_pk_add_f32 v[{64+e}:{65+e}], v[{64+e}:{65+e}], v[{68+e}:{69+e}]")
    for e in (0, 2): a(f"v_pk_add_f32 v[{56+e}:{57+e}], v[{56+e}:{57+e}], v[{64+e}:{65+e}]")
    if "p16" in OPT:
        a("v_cvt_pk_bf16_f32 v56, v56, v57"); a("v_cvt_pk_bf16_f32 v57, v58, v59"); a("v_lshrrev_b32 v9, 1, v9")
        a.vmem(f"buffer_store_dwordx2 v[56:57], v9, s[40:43], s3 offen sc1", "PST")
    else:
        a.vmem(f"buffer_store_dwordx4 v[56:59], v9, s[40:43], s3 offen sc1", "PST")
    ldfu()
    a("s_lshr_b32 s48, s27, 3"); a("s_and_b32 s49, s27, 7")
    a("v_lshrrev_b32 v13, 1, v11"); a("v_lshlrev_b32 v13, 8, v13"); a("v_lshl_add_u32 v13, v10, 2, v13")
    a("v_and_b32 v28, 1, v11"); a("v_lshl_add_u32 v13, v28, 3, v13")
    a("v_mul_u32_u24 v14, 320, v10"); a("v_lshl_add_u32 v15, v11, 3, v14"); a("v_lshl_add_u32 v14, v11, 4, v14")
    a("s_lshl_b32 s50, s48, 2"); a("s_add_u32 s50, s50, s28")
    a("s_lshl_b32 s3, s26, 3"); a("s_add_u32 s3, s3, s50"); a("s_mul_i32 s51, s3, 20480"); a("s_mul_i32 s3, s49, 160"); a("s_add_u32 s51, s51, s3")
    a("s_mul_i32 s53, s27, 27"); a("s_lshr_b32 s53, s53, 2")
    a("s_mul_i32 s55, s27, 143360"); a(f"s_add_u32 s55, s55, {W1P}")
    srd(a, 36, 14, 3456)
    a("v_lshlrev_b32 v23, 4, v11"); a("v_lshl_add_u32 v26, v10, 4, v23")
    a("s_lshl_b32 s62, s27, 2"); a("s_add_u32 s62, s62, s28"); a("s_lshl_b32 s62, s62, 7")
    a("s_lshl_b32 s56, s26, 7"); a("s_add_u32 s56, s56, 8192")
    a("v_mov_b32 v27, s62"); a("v_mov_b32 v28, s56"); a("v_cndmask_b32 v17, v27, v28, s[88:89]"); a("v_add_u32 v17, v17, v10")
    a("s_lshl_b32 s3, s26, 2"); a("s_add_u32 s3, s3, s62"); a(f"s_add_u32 s3, s3, {F1}")
    a.wait(vm="PST")
    a("s_mov_b64 exec, 1"); a.vmem("buffer_store_dword v6, v5, s[40:43], s3 offen sc1"); a("s_mov_b64 exec, -1")
    a("s_barrier")
    a.stamp("b7")
    chkfu(); a.bgq += [lambda n=n, t=t: ldwo(n, t) for n in range(5) for t in range(5)]
    FB3 = 156; RES = 116; C1R = 126; T2R = 146
    B1A = A0 + 204
    W1T = A0 + 100
    def w1dma(i):
        a(f"s_mul_i32 s98, s28, {24*1024}"); a(f"s_add_u32 m0, s98, {i*1024}"); a("s_add_u32 s98, s55, m0")
        a.vmem(f"buffer_load_dwordx4 v8, s[40:43], s98 offen sc1 lds", "W1")
    def w1tail(i):
        a(f"s_mul_i32 s98, s28, {11*1024}"); a(f"s_add_u32 s98, s98, {(96+i)*1024}"); a("s_add_u32 s98, s55, s98")
        a.vmem(f"buffer_load_dwordx4 {R(W1T + 4*i, 4)}, v8, s[40:43], s98 offen sc1", "W1")
    def ldsmall():
        a("v_lshlrev_b32 v31, 5, v1"); a("s_add_u32 s98, s30, T2_tab-L_pc"); a("s_addc_u32 s99, s31, 0")
        a.vmem(f"global_load_dwordx4 {R(T2R, 4)}, v31, s[98:99]"); a.vmem(f"global_load_dwordx2 {R(T2R+4, 2)}, v31, s[98:99] offset:16")
    def ldres(q):
        if q == 0: a.vmem(f"buffer_load_dwordx4 {R(RES, 4)}, v14, s[32:35], s51 offen")
        if q == 1: a.vmem(f"buffer_load_dwordx4 {R(RES+4, 4)}, v14, s[32:35], s51 offen offset:64")
        if q == 2: a.vmem(f"buffer_load_dwordx2 {R(RES+8, 2)}, v15, s[32:35], s51 offen offset:128", "RES")
    def ldb1():
        a("v_lshlrev_b32 v31, 3, v11"); a("s_lshl_b32 s98, s53, 5")
        for p in range(3): a.vmem(f"buffer_load_dwordx4 {R(B1A + 4*p, 4)}, v23, s[36:39], s98 offen offset:{64*p}")
        a.vmem(f"buffer_load_dwordx2 {R(B1A + 12, 2)}, v31, s[36:39], s98 offen offset:192")
    def ldc1():
        a("s_mul_i32 s98, s27, 20"); a("s_mul_i32 s99, s28, 5"); a("s_add_u32 s98, s98, s99"); a("s_lshl_b32 s98, s98, 9"); a(f"s_add_u32 s98, s98, {C1P}")
        a("s_mov_b64 exec, s[66:67]")
        for n in range(5): a.vmem(f"buffer_load_dwordx4 {R(C1R + 4*n, 4)}, v26, s[40:43], s98 offen offset:{512*n} sc1", "C1")
        a("s_mov_b64 exec, -1")
    def hidtouch():
        a("s_mul_i32 s98, s27, 27648"); a("s_add_u32 s98, s98, s58"); a(f"s_add_u32 s98, s98, {G_HID}"); a("s_mul_i32 s99, s28, 6912"); a("s_add_u32 s98, s98, s99")
        a("s_bfm_b64 exec, 54, 0"); a.vmem("buffer_load_dword v4, v3, s[40:43], s98 offen"); a("s_mov_b64 exec, -1")
    ldsmall()
    a.bgq += [lambda q=q: ldres(q) for q in range(3)] + [ldb1, ldc1] + [lambda i=i: w1dma(i) for i in range(24)]
    QA = 32
    def qreads(s):
        j, p = divmod(s, 4)
        return [lambda t=t: a.ds(f"ds_read_b128 {R(BF + (s%3)*12 + t*4, 4)}, v{vTQ[p] if t < 2 else vTQ2[p]} offset:{j*10240 + (t&1)*1024}", f"Q{s}") for t in range(3)]
    for f in qreads(0) + qreads(1): f()
    a(f"s_mov_b32 s56, {F1}")
    QSTOP = P("QSTOP", 16)
    for s in range(20):
        j, p = divmod(s, 4)
        if s == 18: a.wait(lg="CQW"); a("s_barrier")
        a.wait(lg=f"Q{s}")
        mf = []
        for t in range(3):
            b = BF + (s%3)*12 + t*4
            for tt in range(2): mf.append(MF(QA + (tt*3+t)*4, b, xf(tt, s), s == 0))
            if p == 0: mf.append(MF(CSQ, b, OH + 4*t, s == 0 and t == 0))
        front = qreads(s+2) if s < 18 else []
        side = []
        if s < QSTOP: side += [lambda: a.bg(1)]*P("QBG", 1)
        if s == 17:
            side.append(lambda: a.vmem("buffer_load_dword v16, v17, s[40:43], s56 offen sc1", "POLL1"))
            side += ["s_lshl_b32 s3, s28, 9", f"s_add_u32 s3, s3, {CSX}", "v_add_u32 v27, s3, v26"]
            side.append(lambda: (a("s_mov_b64 exec, s[66:67]"), a.ds(f"ds_write_b128 v27, {R(CSQ, 4)}", "CQW"), a("s_mov_b64 exec, -1")))
        if s == 18:
            side += [f"v_add_u32 v30, {CSX}, v23"]
            for w, base in ((0, 56), (1, 68), (2, 96)):
                for t in range(3): side.append(lambda w=w, t=t, base=base: a.ds(f"ds_read_b128 {R(base + 4*t, 4)}, v30 offset:{512*w + 64*t}", "CQR"))
        if s == 19:
            side.append(lambda: a.wait(lg="CQR"))
            for x in range(12): side.append(f"v_add_f32 v{56+x}, v{56+x}, v{68+x}")
            for t in range(3): side.append(lambda t=t: a.ds(f"ds_read_b128 {R(68 + 4*t, 4)}, v30 offset:{1536 + 64*t}", "CQR"))
        a.interleave(mf, side, front)
    a.stamp("qend")
    a.wait(vm="POLL1")
    a("s_mov_b32 s78, 0")
    a("L_h1p:")
    a("v_and_b32 v28, 0xfffffff8, v16"); a("v_cmp_ne_u32 vcc, s76, v28")
    a("s_cbranch_vccz L_h1ok")
    a("s_add_u32 s78, s78, 1"); a(f"s_cmp_ge_u32 s78, {POLLMAX}"); a("s_cbranch_scc1 L_h1ok")
    a("buffer_load_dword v16, v17, s[40:43], s56 offen sc1"); a("s_waitcnt vmcnt(0)")
    a("s_branch L_h1p")
    a("L_h1ok:")
    a.stamp("h1ok")
    a.vm = []
    a("v_cmp_ne_u32 vcc, s77, v16"); a("s_and_b64 vcc, vcc, s[88:89]"); a("s_cselect_b32 s79, 0, 1")
    if os.environ.get("FORCESLOW"): a("s_mov_b32 s79, 0")
    P0 = A0
    a("s_lshl_b32 s3, s27, 16"); a(f"s_add_u32 s3, s3, {PART}")
    for r_ in range(16):
        if "p16" in OPT: a.vmem(f"buffer_load_dwordx2 {R(P0 + 4*r_, 2)}, v9, s[40:43], s3 offen sc1", f"P{r_}")
        else: a.vmem(f"buffer_load_dwordx4 {R(P0 + 4*r_, 4)}, v9, s[40:43], s3 offen sc1", f"P{r_}")
        a("s_add_u32 s3, s3, 4096")
    a.bgq += [lambda i=i: w1tail(i) for i in range(11)]
    for x in range(0, 12, 2): a(f"v_pk_add_f32 v[{56+x}:{57+x}], v[{56+x}:{57+x}], v[{96+x}:{97+x}]")
    a.wait(lg="all")
    for x in range(0, 12, 2): a(f"v_pk_add_f32 v[{56+x}:{57+x}], v[{56+x}:{57+x}], v[{68+x}:{69+x}]")
    PQR = 96
    EBG = P("EBG", 2)
    for tt in range(2):
        for t in range(3):
            b_ = QA + (tt*3+t)*4
            for h in range(2):
                a(f"v_pk_mul_f32 v[{TP+2*h}:{TP+2*h+1}], v[{56+4*t+2*h}:{57+4*t+2*h}], v[{MT}:{MT+1}] op_sel:[0,{tt}] op_sel_hi:[1,{tt}]")
            for h in range(2):
                x = b_ + 2*h
                a(f"v_pk_fma_f32 v[{x}:{x+1}], v[{x}:{x+1}], v[{RT}:{RT+1}], v[{TP+2*h}:{TP+2*h+1}] op_sel:[0,{tt},0] op_sel_hi:[1,{tt},1] neg_lo:[0,0,1] neg_hi:[0,0,1]")
            phi4(a, b_, TP)
            for h in range(2):
                d = f"v{PQR + tt*6 + t*2 + h}"
                a(f"v_cvt_pk_bf16_f32 {d}, v{QA + (tt*3+t)*4 + 2*h}, v{QA + (tt*3+t)*4 + 2*h + 1}")
                if t == 2: a(f"v_cndmask_b32 {d}, 0, {d}, s[90:91]")
            a.bg(EBG)
    OSC = SCR
    TA = 56
    for s_ in range(12):
        src = T2R + s_//2
        if s_ & 1: a(f"v_lshrrev_b32 v{TA+s_}, 16, v{src}")
        else: a(f"v_and_b32 v{TA+s_}, 0xffff, v{src}")
        a(f"v_add_u32 v{TA+s_}, {OSC}, v{TA+s_}")
    for r_ in range(16):
        if r_ % 4 == 0: a.wait(vm=f"P{r_+3}")
        if "p16" in OPT:
            b_ = 32 if r_ == 0 else 36
            for e in range(2): a(f"v_accvgpr_read_b32 v{40+e}, {R(P0+4*r_+e)}")
            for e in range(2): a(f"v_lshlrev_b32 v{b_+2*e}, 16, v{40+e}"); a(f"v_and_b32 v{b_+2*e+1}, 0xffff0000, v{40+e}")
        else:
            for e in range(4): a(f"v_accvgpr_read_b32 v{(32 if r_ == 0 else 36)+e}, {R(P0+4*r_+e)}")
        if r_:
            for e in (0, 2): a(f"v_pk_add_f32 v[{32+e}:{33+e}], v[{32+e}:{33+e}], v[{36+e}:{37+e}]")
        if r_ % 4 == 3: a.bg(EBG)
    a("v_cvt_pk_bf16_f32 v18, v32, v33"); a("v_cvt_pk_bf16_f32 v19, v34, v35")
    a("v_cmp_gt_u32 vcc, 210, v0")
    a("v_cndmask_b32 v18, 0, v18, vcc"); a("v_cndmask_b32 v19, 0, v19, vcc")
    a("v_lshlrev_b32 v27, 3, v0"); a(f"v_add_u32 v27, {OSC}, v27")
    a("ds_write_b64 v27, v[18:19]")
    a("s_waitcnt lgkmcnt(0)")
    a("s_barrier")
    a.stamp("b9")
    KF = A0 + 64
    for E in range(4):
        for ta in range(3): a(f"ds_read_b64 {R(KF + 8*E + 2*ta, 2)}, v{TA + 3*E + ta}")
    a("s_mul_i32 s3, s28, 40960"); a("s_mul_i32 s56, s27, 1280"); a("s_add_u32 s3, s3, s56"); a("s_add_u32 s3, s3, s58")
    a("v_lshlrev_b32 v27, 2, v10"); a("v_lshl_add_u32 v27, v11, 3, v27")
    a("v_cndmask_b32 v27, v2, v27, s[90:91]")
    a("s_waitcnt lgkmcnt(0)")
    D = 32
    for tt in range(2):
        for E in (3, 0, 1, 2):
            d = R(D + (tt*4+E)*4, 4)
            a(f"v_mfma_f32_16x16x32_bf16 {d}, {R(KF + 8*E, 4)}, {R(PQR + 6*tt, 4)}, 0")
    for tt in range(2):
        for E in (3, 0, 1, 2):
            d = R(D + (tt*4+E)*4, 4)
            a(f"v_mfma_f32_16x16x16_bf16 {d}, {R(KF + 8*E + 4, 2)}, {R(PQR + 6*tt + 4, 2)}, {d}")
    for tt in range(2):
        z = D + (tt*4+3)*4
        a(f"v_add_f32 v20, s61, v{z}"); a(f"v_add_f32 v21, s61, v{z+1}")
        a("v_rcp_f32 v20, v20"); a("v_rcp_f32 v21, v21")
        a("v_cndmask_b32 v22, v21, v20, s[92:93]"); a("v_cndmask_b32 v28, v21, v20, s[90:91]")
        ob = 64 + 8*tt
        for E, rc in ((0, 22), (1, 28), (2, 21)):
            d = D + (tt*4+E)*4
            for e in range(4): a(f"v_mul_f32 v{d+e}, v{d+e}, v{rc}")
            a(f"v_cvt_pk_bf16_f32 v{ob + 2*E}, v{d}, v{d+1}"); a(f"v_cvt_pk_bf16_f32 v{ob + 2*E + 1}, v{d+2}, v{d+3}")
        a.vmem(f"buffer_store_dwordx4 {R(ob, 4)}, v8, s[40:43], s3 offen{HS}", "ST")
        a.vmem(f"buffer_store_dwordx2 {R(ob + 4, 2)}, v27, s[40:43], s3 offen offset:1024{HS}", "ST")
        a("s_add_u32 s3, s3, 20480")

    def hop(n, before, after_pub, post=0, touch=None, post2=0):
        before()
        a(f"s_add_u32 s59, s58, {G_FL + 128*n}")
        a("s_lshl_b32 s3, s27, 2"); a("s_add_u32 s3, s3, s59")
        a.bg(post)
        a.wait(vm="ST")
        if touch and "notouch" not in OPT: touch()
        a("s_barrier")
        a.stamp(f"hop{n}a")
        a("s_cmp_lg_u32 s28, 0"); a(f"s_cbranch_scc1 L_g{n}np")
        a("s_mov_b64 exec, 1")
        a("s_cmp_eq_u32 s79, 0"); a(f"s_cbranch_scc1 L_g{n}slow")
        a("buffer_store_dword v6, v5, s[40:43], s3 offen")
        a(f"s_branch L_g{n}pd")
        a(f"L_g{n}slow:")
        a("buffer_store_dword v6, v5, s[40:43], s3 offen sc1")
        a(f"L_g{n}pd:")
        a("s_mov_b64 exec, -1")
        a(f"L_g{n}np:")
        after_pub()
        a.bg(post2)
        a("s_cmp_lg_u32 s28, 0"); a(f"s_cbranch_scc1 L_g{n}j")
        a("s_mov_b32 s78, 0")
        a(f"L_g{n}p:")
        a("buffer_load_dword v27, v10, s[40:43], s59 offen sc1")
        a("s_add_u32 s78, s78, 1")
        a("s_waitcnt vmcnt(0)")
        a("v_cmp_ne_u32 vcc, s76, v27")
        a(f"s_cmp_ge_u32 s78, {POLLMAX}"); a(f"s_cbranch_scc1 L_g{n}x")
        a(f"s_cbranch_vccnz L_g{n}p")
        a(f"L_g{n}x:")
        a(f"L_g{n}j:")
        a("s_barrier")
        a.stamp(f"hop{n}b")
    def a_off(NK, goff):
        for m in range(4):
            a(f"s_add_u32 s3, s28, {m}"); a("s_and_b32 s3, s3, 3"); a("s_lshl_b32 s57, s48, 2"); a("s_add_u32 s3, s3, s57")
            a(f"s_mul_i32 s3, s3, {NK}"); a("s_add_u32 s3, s3, s28"); a("s_lshl_b32 s3, s3, 10"); a("s_add_u32 s3, s3, s58"); a(f"s_add_u32 s{80+m}, s3, {goff}")
    def ctouch(lab, nl):
        def f():
            a("s_lshl_b32 s98, s27, 2"); a("s_add_u32 s98, s98, s28"); a(f"s_mul_i32 s98, s98, {128*nl}"); a(f"s_add_u32 s98, s98, {lab}-L_pc")
            a("v_add_u32 v31, s98, v3"); a(f"s_bfm_b64 exec, {nl}, 0")
            a.vmem("global_load_dword v4, v31, s[30:31]"); a("s_mov_b64 exec, -1")
        return f
    if "noct" not in OPT: a.bgq.insert(0, ctouch("L_cS4", 2))
    def flush_wo():
        while any(True for _ in [0]) and a.bgq and len(a.bgq) > 24 + 11: a.bg(1)
    def bef0():
        a_off(20, G_O)
        a("s_mul_i32 s99, s28, 40960"); a("s_mul_i32 s56, s27, 1280"); a("s_add_u32 s99, s99, s56"); a("s_add_u32 s99, s99, s58")
        a("v_mul_u32_u24 v28, 20480, v11"); a("v_lshl_add_u32 v28, v10, 5, v28")
    def tch0():
        a("s_mov_b64 exec, 0x03ff03ff"); a.vmem("buffer_load_dword v4, v28, s[40:43], s99 offen sc1"); a("s_mov_b64 exec, -1")
    hop(0, bef0, lambda: None, post=0, touch=tch0, post2=P("POST0", 10))
    flush_wo()
    ACC = 32 ; FA3 = A0
    for n in range(5):
        for m in range(4):
            a.vmem(f"buffer_load_dwordx4 {R(FA3 + (n*4+m)*4, 4)}, v8, s[40:43], s{80+m} offen sc1", f"A{n}")
            a(f"s_add_u32 s{80+m}, s{80+m}, 4096")
    if "sc1hid" not in OPT: a.bgq.insert(0, hidtouch)
    RED = 102400
    def red_addr():
        for m in range(1, 4):
            a(f"s_add_u32 s3, s28, {m}"); a("s_and_b32 s3, s3, 3"); a("s_mul_i32 s3, s3, 15360"); a(f"s_add_u32 s3, s3, {RED}")
            a(f"v_add_u32 v{16+m}, s3, v8")
        a("s_mul_i32 s3, s28, 15360"); a(f"s_add_u32 s3, s3, {RED}"); a("v_add_u32 v16, s3, v8")
    def init_acc(srcs):
        for t in range(5):
            for e in range(4):
                for q, src0 in enumerate(srcs):
                    src = src0 + 2*t + (e >> 1); d = ACC+4*t+e if q == 0 else 27
                    if e & 1: a(f"v_and_b32 v{d}, 0xffff0000, v{src}")
                    else: a(f"v_lshlrev_b32 v{d}, 16, v{src}")
                    if q: a(f"v_add_f32 v{ACC+4*t+e}, v{ACC+4*t+e}, v27")
    def last_step(mfn):
        order = [(m, t) for m in (1, 2, 3, 0) for t in range(5)]
        for i, (m, t) in enumerate(order):
            a(mfn(m, t))
            if i >= 5:
                m2, t2 = order[i-5]
                a(f"ds_write_b128 v{16+m2}, {R(ACC + (m2*5+t2)*4, 4)} offset:{(m2-1)*5120 + t2*1024}")
    red_addr()
    if "RES" in a.vm: a.wait(vm="RES")
    init_acc([RES])
    S3BG = P("S3BG", 3)
    for n in range(5):
        a.wait(vm=f"A{n}")
        if n == 4:
            last_step(lambda m, t: MF(ACC + (m*5+t)*4, FB3 + (n*5+t)*4, FA3 + (n*4+m)*4, False)); a.bg(S3BG)
        else:
            mf = [MF(ACC + (m*5+t)*4, FB3 + (n*5+t)*4, FA3 + (n*4+m)*4, n == 0 and m > 0) for m in range(4) for t in range(5)]
            a.interleave(mf, [lambda: a.bg(1)]*S3BG)
    a.stamp("s3end")
    a("L_cS4:")
    HF = A0; BF = A0 + 160
    NA = P("NA", 4); BS = 4*max(NA, 7 - NA)
    if NA == 4:
        slots = [156 + 4*i for i in range(16)] + [A0 + 192 + 4*i for i in range(3)] + [A0 + 220 + 4*i for i in range(9)] + [HF + 4*i for i in range(40)] + [BF + 4*i for i in range(2)]
        NEARLY = 28
        arA = [A0 + 168 + 4*i for i in range(6)] + [A0 + 204 + 4*i for i in range(4)]
    elif NA == 7:
        for x in range(14): a(f"v_accvgpr_mov_b32 {R(A0 + 240 + x)}, {R(B1A + x)}")
        B1A = A0 + 240
        slots = [156 + 4*i for i in range(16)] + [A0 + 216 + 4*i for i in range(6)] + [HF + 4*i for i in range(40)] + [BF + 4*i for i in range(8)]
        NEARLY = 22
        arA = [A0 + 192 + 4*i for i in range(6)] + [A0 + 240 + 4*i for i in range(4)]
    else:
        for x in range(14): a(f"v_accvgpr_mov_b32 {R(A0 + 240 + x)}, {R(B1A + x)}")
        B1A = A0 + 240
        slots = [156 + 4*i for i in range(16)] + [A0 + 208 + 4*i for i in range(8)] + [HF + 4*i for i in range(40)] + [BF + 4*i for i in range(6)]
        NEARLY = 24
        arA = [A0 + 184 + 4*i for i in range(6)] + [A0 + 240 + 4*i for i in range(4)]
    def fb(n, t): return slots[n*5 + t]
    a("s_mul_i32 s3, s49, 54"); a("s_add_u32 s3, s3, s28"); a("s_mul_i32 s54, s3, 5120"); a(f"s_add_u32 s54, s54, {W2P}")
    def ldw2(n, t):
        if n == 13 and t == 0:
            a("s_cmp_ge_u32 s28, 2"); a("s_cselect_b32 s98, 0x40000000, 0"); a("s_add_u32 s54, s54, s98")
        a.vmem(f"buffer_load_dwordx4 {R(fb(n, t), 4)}, v{8 if t < 4 else 12}, s[40:43], s54 offen offset:{1024*(t&3)} sc1", f"W2_{n}")
        if t == 4: a("s_add_u32 s54, s54, 20480")
    w2q = [(n, t) for n in range(14) for t in range(5)]
    nw1left = len(a.bgq)
    def w2bg():
        ldw2(*w2q.pop(0))
    a.bgq += [w2bg]*NEARLY
    def reduce_epi(which, BIA=None, nbg=0):
        a.bg(2*nbg)
        a("s_waitcnt lgkmcnt(0)")
        a("s_barrier")
        for t in range(5):
            for m in range(1, 4): a(f"ds_read_b128 {R(ACC + (m*5+t)*4, 4)}, v16 offset:{(m-1)*5120 + t*1024}")
        for t in range(5):
            a(f"s_waitcnt lgkmcnt({12 - 3*t})")
            for e in (0, 2):
                x0 = ACC + 4*t + e
                a(f"v_pk_add_f32 v[{x0+20}:{x0+21}], v[{x0+20}:{x0+21}], v[{x0+40}:{x0+41}]"); a(f"v_pk_add_f32 v[{x0}:{x0+1}], v[{x0}:{x0+1}], v[{x0+60}:{x0+61}]")
            for e in (0, 2):
                x0 = ACC + 4*t + e
                a(f"v_pk_add_f32 v[{x0}:{x0+1}], v[{x0}:{x0+1}], v[{x0+20}:{x0+21}]")
            for h in range(2): a(f"v_cvt_pk_bf16_f32 v{RES+2*t+h}, v{ACC+4*t+2*h}, v{ACC+4*t+2*h+1}")
            if which == 3:
                if t == 1: a.vmem(f"buffer_store_dwordx4 {R(RES, 4)}, v8, s[40:43], s57 offen{HS}")
                if t == 3: a.vmem(f"buffer_store_dwordx4 {R(RES+4, 4)}, v8, s[40:43], s57 offen offset:1024{HS}")
                if t == 4: a.vmem(f"buffer_store_dwordx2 {R(RES+8, 2)}, v13, s[40:43], s57 offen offset:2048{HS}")
    a("s_mul_i32 s57, s50, 20480"); a("s_mul_i32 s3, s49, 2560"); a("s_add_u32 s57, s57, s3"); a("s_add_u32 s57, s57, s58"); a(f"s_add_u32 s57, s57, {G_H}")
    reduce_epi(3, nbg=P("R3BG", 3))
    a(f"v_pk_add_f32 v[28:29], v[{ACC}:{ACC+1}], v[{ACC+2}:{ACC+3}]"); a(f"v_pk_mul_f32 v[30:31], v[{ACC}:{ACC+1}], v[{ACC}:{ACC+1}]"); a(f"v_pk_fma_f32 v[30:31], v[{ACC+2}:{ACC+3}], v[{ACC+2}:{ACC+3}], v[30:31]")
    for x in range(4, 20, 2):
        a(f"v_pk_add_f32 v[28:29], v[28:29], v[{ACC+x}:{ACC+x+1}]"); a(f"v_pk_fma_f32 v[30:31], v[{ACC+x}:{ACC+x+1}], v[{ACC+x}:{ACC+x+1}], v[30:31]")
    a("v_add_f32 v20, v28, v29"); a("v_add_f32 v21, v30, v31")
    def red_g(regs, tmp):
        for r_ in regs:
            a(f"v_mov_b32 {tmp}, {r_}"); a(f"v_permlane32_swap_b32 {r_}, {tmp}"); a(f"v_add_f32 {r_}, {r_}, {tmp}")
            a(f"v_mov_b32 {tmp}, {r_}"); a(f"v_permlane16_swap_b32 {r_}, {tmp}"); a(f"v_add_f32 {r_}, {r_}, {tmp}")
    red_g(["v20", "v21"], "v22")
    a("v_lshlrev_b32 v22, 1, v10")
    a("s_lshl_b32 s57, s50, 10"); a("s_lshl_b32 s3, s49, 7"); a("s_add_u32 s57, s57, s3"); a("s_add_u32 s57, s57, s58"); a(f"s_add_u32 s57, s57, {G_ST}")
    a.vmem(f"buffer_store_dwordx2 v[20:21], v22, s[40:43], s57 offen{HS}", "ST")
    CS = 128; CSL = 144384
    def bef3():
        a("s_mul_i32 s3, s28, 40960"); a("s_add_u32 s3, s3, s58"); a(f"s_add_u32 s80, s3, {G_H}"); a("s_add_u32 s81, s80, 20480")
        a("s_lshl_b32 s82, s28, 11"); a("s_add_u32 s82, s82, s58"); a(f"s_add_u32 s82, s82, {G_ST}")
        a("v_lshlrev_b32 v19, 8, v11"); a("v_lshl_add_u32 v19, v10, 1, v19")
        a("v_add_u32 v16, 57344, v8"); a("v_add_u32 v17, 114688, v8")
        a(f"s_mul_i32 s3, s28, {11*1024}"); a(f"s_add_u32 s3, s3, {96*1024}"); a("v_add_u32 v18, s3, v8")
        for e in range(4):
            a(f"v_add_f32 v{C1R+e}, v{C1R+e}, v{C1R+4+e}"); a(f"v_add_f32 v{C1R+8+e}, v{C1R+8+e}, v{C1R+12+e}")
            a(f"v_add_f32 v{C1R+e}, v{C1R+e}, v{C1R+16+e}"); a(f"v_add_f32 v{C1R+e}, v{C1R+e}, v{C1R+8+e}")
        a("s_lshl_b32 s3, s28, 9"); a(f"s_add_u32 s3, s3, {CSL}"); a("v_add_u32 v29, s3, v26")
    def aft3():
        if "W1" in a.vm: a.wait(vm="W1")
        for i in range(11): a(f"ds_write_b128 v18, {R(W1T + 4*i, 4)} offset:{1024*i}")
        a("s_mov_b64 exec, s[66:67]"); a(f"ds_write_b128 v29, {R(C1R, 4)}"); a("s_mov_b64 exec, -1")
        a("s_waitcnt lgkmcnt(0)")
    left1 = max(0, len(a.bgq) - len([1 for x in a.bgq if x is w2bg]))
    print("w1 left at hop3:", left1, "w2 issued:", 70 - len(w2q), file=sys.stderr)
    def tch1():
        a("s_mul_i32 s99, s50, 20480"); a("s_mul_i32 s98, s49, 2560"); a("s_add_u32 s99, s99, s98"); a("s_add_u32 s99, s99, s58"); a(f"s_add_u32 s99, s99, {G_H}")
        a("s_mov_b64 exec, 0xfffff"); a.vmem("buffer_load_dword v4, v3, s[40:43], s99 offen sc1"); a("s_mov_b64 exec, -1")
    hop(1, bef3, aft3, post=left1, touch=tch1, post2=max(0, P("POST1", 6) - left1))
    def hf(tt, k): return HF + (k*2 + tt)*4
    def ldh(k):
        def one(tt):
            a.vmem(f"buffer_load_dwordx4 {R(hf(tt, k), 4)}, v8, s[40:43], s{80+tt} offen offset:{1024*(k&3)} sc1", f"H{k}")
            if (k & 3) == 3: a(f"s_add_u32 s{80+tt}, s{80+tt}, 4096")
        return [lambda tt=tt: one(tt) for tt in range(2)]
    PRE = P("PRE4", 6)
    for k in range(PRE):
        for f in ldh(k): f()
    for tt in range(2):
        for q in range(2):
            a.vmem(f"buffer_load_dwordx2 {R(88 + 4*tt + 2*q, 2)}, v19, s[40:43], s82 offen offset:{1024*tt + 128*q} sc1", "STAT")
    def breads(ps, k):
        ts = range(NA) if ps == 0 else range(NA, 7)
        return [lambda t=t: a.ds(f"ds_read_b128 {R(BF + (k&1)*BS + 4*(t - ts[0]), 4)}, v{[8, 16, 17][k >> 3]} offset:{(k & 7)*7168 + 1024*t}", f"BR{ps}_{k}") for t in ts]
    for f in breads(0, 0): f()
    vS = [20, 21]; vQ = [24, 25]
    a(f"v_add_u32 v18, {CSL}, v23")
    hq = list(range(PRE, 20))
    B1U = 220
    c1 = -2.0*LOG2E*0.7978845608028654
    c2 = c1*0.044715
    a(f"s_mov_b32 s60, {hx(c1)}"); a(f"s_mov_b32 s61, {hx(c2)}")
    a("s_mul_i32 s56, s28, 110592"); a("s_lshl_b32 s3, s53, 9"); a("s_add_u32 s56, s56, s3"); a("s_add_u32 s56, s56, s58"); a(f"s_add_u32 s56, s56, {G_HID}"); a("s_add_u32 s57, s56, 55296")
    for k in range(20):
        a.wait(vm=f"H{k}", lg=f"BR0_{k}")
        front = breads(0, k+1) if k < 19 else (breads(1, 0) if NA < 7 else [])
        side = []
        if NA == 7:
            if hq:
                for _ in range(P("HRATE", 2)):
                    if hq: side += ldh(hq.pop(0))
            else:
                side += [w2bg]*max(0, min(P("ABG", 2), len(w2q), NEARLY + 2*k - (70 - len(w2q))))
        elif hq: side += ldh(hq.pop(0))
        else: side += [lambda: a.bg(1)]*P("ABG", 1)
        if 1 <= k < 8:
            kk = k - 1; tb = 96 if kk % 2 == 0 else 220
            side.append(lambda kk=kk: a.wait(lg=f"CG{kk}"))
            for e in range(4):
                side += [f"v_add_f32 v{CS+4*kk+e}, v{CS+4*kk+e}, v{tb+e}", f"v_add_f32 v{tb+4+e}, v{tb+4+e}, v{tb+8+e}", f"v_add_f32 v{CS+4*kk+e}, v{CS+4*kk+e}, v{tb+4+e}"]
        if k < 7:
            tb = 96 if k % 2 == 0 else 220
            for w in range(4): front.append(lambda w=w, k=k, tb=tb: a.ds(f"ds_read_b128 {R((CS + 4*k) if w == 0 else (tb - 4 + 4*w), 4)}, v18 offset:{512*w + 64*k}", f"CG{k}"))
        if k == PRE + 2:
            for tt in range(2):
                side.append(f"v_add_f32 v{vS[tt]}, v{88+4*tt}, v{90+4*tt}"); side.append(f"v_add_f32 v{vQ[tt]}, v{89+4*tt}, v{91+4*tt}")
            side.append(lambda: red_g([f"v{x}" for x in vS + vQ], "v22"))
        if k == PRE + 3:
            for tt in range(2):
                s_, q_ = f"v{vS[tt]}", f"v{vQ[tt]}"
                side += [f"v_mul_f32 {s_}, s63, {s_}", f"v_mul_f32 {q_}, s63, {q_}", f"v_fma_f32 {q_}, -{s_}, {s_}, {q_}", f"v_max_f32 {q_}, 0, {q_}",
                         f"v_add_f32 v22, s64, {q_}", f"v_fma_f32 {q_}, v22, s64, {q_}", f"v_rsq_f32 {q_}, {q_}", f"v_mul_f32 {s_}, {s_}, {q_}"]
            side += ["v_mov_b32 v252, s60", "v_mov_b32 v253, s60", "s_mov_b32 s96, s61", "s_mov_b32 s97, s61"]
        if k >= 12:
            x = 2*(k - 12)
            for y in (x, x + 1):
                if y < 14:
                    side += [f"v_accvgpr_read_b32 v27, {R(B1A + y)}", f"v_lshlrev_b32 v{B1U+2*y}, 16, v27", f"v_and_b32 v{B1U+2*y+1}, 0xffff0000, v27"]
        mf = [MF(ACC + (tt*7+t)*4, BF + (k&1)*BS + 4*t, hf(tt, k), k == 0) for t in range(NA) for tt in range(2)]
        a.interleave(mf, side, front)
    a.stamp("s4A")
    if "noct" not in OPT: ctouch("L_cS5", 1)()
    PK = 88
    def gelu(tt, t, pk=False):
        L = []
        if pk:
            b_ = ACC + (tt*7+t)*4
            pr = lambda x: f"v[{x}:{x+1}]"
            for h in (0, 2): L.append(f"v_pk_fma_f32 {pr(248+h)}, v[20:21], {pr(CS+4*t+h)}, {pr(B1U+4*t+h)} op_sel:[{tt},0,0] op_sel_hi:[{tt},1,1] neg_lo:[1,0,0] neg_hi:[1,0,0]")
            for h in (0, 2): L.append(f"v_pk_fma_f32 {pr(b_+h)}, {pr(b_+h)}, v[24:25], {pr(248+h)} op_sel:[0,{tt},0] op_sel_hi:[1,{tt},1]")
            for h in (0, 2): L.append(f"v_pk_mul_f32 {pr(248+h)}, {pr(b_+h)}, {pr(b_+h)}")
            for h in (0, 2): L.append(f"v_pk_fma_f32 {pr(248+h)}, {pr(248+h)}, s[96:97], v[252:253]")
            for h in (0, 2): L.append(f"v_pk_mul_f32 {pr(248+h)}, {pr(248+h)}, {pr(b_+h)}")
            for e in range(4): L.append(f"v_exp_f32 v{248+e}, v{248+e}")
            for h in (0, 2): L.append(f"v_pk_add_f32 {pr(248+h)}, {pr(248+h)}, 1.0 op_sel_hi:[1,0]")
            for e in range(4): L.append(f"v_rcp_f32 v{248+e}, v{248+e}")
            for h in (0, 2): L.append(f"v_pk_mul_f32 {pr(b_+h)}, {pr(b_+h)}, {pr(248+h)}")
        else:
            for e in range(4):
                v_ = f"v{ACC + (tt*7+t)*4 + e}"; ta = f"v{248+e}"
                L += [f"v_fma_f32 {ta}, -v{vS[tt]}, v{CS+4*t+e}, v{B1U+4*t+e}", f"v_fma_f32 {v_}, {v_}, v{vQ[tt]}, {ta}", f"v_mul_f32 {ta}, {v_}, {v_}",
                      f"v_fma_f32 {ta}, {ta}, s61, v252", f"v_mul_f32 {ta}, {ta}, {v_}", f"v_exp_f32 {ta}, {ta}"]
            for e in range(4):
                ta = f"v{248+e}"; L += [f"v_add_f32 {ta}, 1.0, {ta}"]
            for e in range(4):
                ta = f"v{248+e}"; L += [f"v_rcp_f32 {ta}, {ta}"]
            for e in range(4):
                v_ = f"v{ACC + (tt*7+t)*4 + e}"; L.append(f"v_mul_f32 {v_}, {v_}, v{248+e}")
        for h in range(2):
            x0 = ACC + (tt*7+t)*4 + 2*h
            L.append(f"v_cvt_pk_bf16_f32 v{PK + tt*14 + 2*t + h}, v{x0}, v{x0+1}")
        if t & 1: L.append(lambda: a.vmem(f"buffer_store_dwordx4 {R(PK + tt*14 + 2*(t-1), 4)}, v8, s[40:43], s{56+tt} offen offset:{512*(t-1)}{HS2}", "ST" if t > 3 else "ST01"))
        if t == 6: L.append(lambda: a.vmem(f"buffer_store_dwordx2 {R(PK + tt*14 + 12, 2)}, v13, s[40:43], s{56+tt} offen offset:3072{HS2}", "ST"))
        return L
    gl = []
    for p in range(NA//2 if NA < 7 else 0):
        for tt in range(2): gl += gelu(tt, 2*p, "pkB" in OPT) + gelu(tt, 2*p+1, "pkB" in OPT)
    a.bgq = []
    W2RATE = P("W2RATE", 2)
    for k in range(20 if NA < 7 else 0):
        a.wait(lg=f"BR1_{k}")
        front = breads(1, k+1) if k < 19 else []
        q = (len(gl) + 19 - k)//(20 - k) if k > 0 else 0
        side = gl[:q]; gl = gl[q:]
        nin = max(0, min(W2RATE, len(w2q), NEARLY + 2*k - (70 - len(w2q))))
        for i_ in range(nin): side.insert((i_ + 1)*len(side)//(nin + 1), w2bg)
        mf = [MF(ACC + (tt*7+t)*4, BF + (k&1)*BS + 4*(t-NA), hf(tt, k), k == 0) for t in range(NA, 7) for tt in range(2)]
        a.interleave(mf, side, front)
    a.stamp("s4B")
    a("L_cS5:")
    W2EPI = P("W2EPI", 2)
    seq = [(0, 4), (0, 5), (1, 4), (1, 5), (0, 6), (1, 6)] if NA == 4 else [(0, 6), (1, 6)]
    if NA == 7: seq = [(tt, 2*p + q) for p in range(3) for tt in range(2) for q in range(2)] + [(0, 6), (1, 6)]
    for i_, (tt, t) in enumerate(seq):
        L = gelu(tt, t, True)
        if i_ == P("HT", 99):
            a("v_and_b32 v28, 1, v11"); a("v_mul_u32_u24 v28, 55296, v28"); a("v_lshl_add_u32 v28, v10, 5, v28")
            a.wait(vm="ST01")
            a("s_bfm_b64 exec, 32, 0"); a.vmem("buffer_load_dword v4, v28, s[40:43], s56 offen sc1"); a("s_mov_b64 exec, -1")
        for j_, x in enumerate(L):
            a.run(x)
            if i_ < P("W2STOP", 4) and j_ in (6, 16)[:W2EPI] and w2q: ldw2(*w2q.pop(0))
    BIA = 126
    def bef4():
        srd(a, 32, 20, 2621440); srd(a, 36, 18, 1280)
        a_off(54, G_HID)
        a("v_lshlrev_b32 v28, 3, v11"); a("s_mul_i32 s3, s49, 160")
        a.vmem(f"buffer_load_dwordx4 {R(BIA, 4)}, v23, s[36:39], s3 offen")
        a.vmem(f"buffer_load_dwordx4 {R(BIA+4, 4)}, v23, s[36:39], s3 offen offset:64")
        a.vmem(f"buffer_load_dwordx2 {R(BIA+8, 2)}, v28, s[36:39], s3 offen offset:128", "BIA")
    npost = min(P("POST2", 4), len(w2q))
    a.bgq = [lambda x=x: ldw2(*x) for x in w2q[:npost]]; w2q = w2q[npost:]
    print("w2 left after hop4:", len(w2q), file=sys.stderr)
    def tch2():
        a("v_lshrrev_b32 v28, 5, v1"); a("v_mul_u32_u24 v28, 55296, v28"); a("v_and_b32 v29, 31, v1"); a("v_lshl_add_u32 v28, v29, 7, v28")
        a("s_mov_b32 exec_lo, 0x0fffffff"); a("s_mov_b32 exec_hi, 0x0fffffff"); a.vmem("buffer_load_dword v4, v28, s[40:43], s56 offen sc1"); a("s_mov_b64 exec, -1")
    hop(2, bef4, lambda: None, post=0, touch=tch2, post2=npost)
    ar = [136 + 4*i for i in range(5)] + [220 + 4*i for i in range(9)] + arA
    NR = 6
    def fa(n, m): return ar[(n % NR)*4 + m]
    def lda5(n):
        def one(m):
            if n == 13 and m == 0:
                a("s_cmp_ge_u32 s28, 2"); a("s_cselect_b32 s3, 0x40000000, 0")
                for q in range(4): a(f"s_add_u32 s{80+q}, s{80+q}, s3")
            a.vmem(f"buffer_load_dwordx4 {R(fa(n, m), 4)}, v8, s[40:43], s{80+m} offen sc1", f"A5_{n}")
            a(f"s_add_u32 s{80+m}, s{80+m}, 4096")
        return [lambda m=m: one(m) for m in range(4)]
    PRE5 = P("PRE5", 3)
    def need_w2(n):
        L = []
        while w2q and w2q[0][0] <= n:
            x = w2q.pop(0); L.append(lambda x=x: ldw2(*x))
        return L
    for n in range(PRE5):
        for f in need_w2(n) + lda5(n): f()
    def ldbia():
        a("v_lshlrev_b32 v28, 3, v11"); a("s_mul_i32 s3, s49, 160")
        a.vmem(f"buffer_load_dwordx4 {R(BIA, 4)}, v23, s[36:39], s3 offen")
        a.vmem(f"buffer_load_dwordx4 {R(BIA+4, 4)}, v23, s[36:39], s3 offen offset:64")
        a.vmem(f"buffer_load_dwordx2 {R(BIA+8, 2)}, v28, s[36:39], s3 offen offset:128")
    red_addr(); a.wait(vm="BIA"); init_acc([RES, BIA])
    nxt = PRE5
    for n in range(14):
        a.wait(vm=f"A5_{n}")
        side = []; cnt = 0
        while nxt < 14 and nxt <= n + NR - 1 and cnt < 2:
            side += need_w2(nxt) + lda5(nxt); nxt += 1; cnt += 1
        if n == 13:
            last_step(lambda m, t: MF(ACC + (m*5+t)*4, fb(n, t), fa(n, m), False))
        else:
            mf = [MF(ACC + (m*5+t)*4, fb(n, t), fa(n, m), n == 0 and m > 0) for m in range(4) for t in range(5)]
            a.interleave(mf, side)
    a.stamp("s5end")
    reduce_epi(5, BIA)
    a(f"buffer_store_dwordx4 {R(RES, 4)}, v14, s[32:35], s51 offen")
    a(f"buffer_store_dwordx4 {R(RES+4, 4)}, v14, s[32:35], s51 offen offset:64")
    a(f"buffer_store_dwordx2 {R(RES+8, 2)}, v15, s[32:35], s51 offen offset:128")
    a("s_or_b32 s3, s2, s28"); a("s_cmp_lg_u32 s3, 0"); a("s_cbranch_scc1 L_notagclr")
    a("global_store_dword v5, v5, s[22:23] sc1")
    a("L_notagclr:")
    a.stamp("stored")
    if STAMP:
        a("s_waitcnt vmcnt(0)")
        a.stamp("end")
        a("s_memrealtime s[100:101]"); a("s_waitcnt lgkmcnt(0)"); a("v_writelane_b32 v7, s100, 31")
        a("v_writelane_b32 v7, s79, 30")
        a("s_lshl_b32 s3, s2, 2"); a("s_add_u32 s3, s3, s28"); a("s_lshl_b32 s3, s3, 8"); a(f"s_add_u32 s3, s3, {STB}")
        a("v_lshlrev_b32 v27, 2, v1"); a("v_add_u32 v27, s3, v27")
        a("global_store_dword v27, v7, s[24:25]")
        if os.environ.get("DELAY"):
            di = os.environ["DELAY"]
            a(f"s_cmp_lg_u32 s2, {P('DWG', 8)}"); a("s_cbranch_scc1 L_end"); a("s_cmp_lg_u32 s28, 0"); a("s_cbranch_scc1 L_end")
            clk = "s_memrealtime" if di == "rt" else "s_memtime"
            a(f"{clk} s[100:101]"); a("s_waitcnt lgkmcnt(0)")
            if di == "rt":
                a("s_sub_u32 s3, s100, s76")
            else:
                a(f"v_readlane_b32 s3, v7, {di}"); a("v_readlane_b32 s56, v7, 0"); a("s_nop 3"); a("s_sub_u32 s3, s3, s56")
            a("s_lshl_b32 s3, s3, 2"); a("s_min_u32 s3, s3, 0x100000"); a("s_mov_b32 s57, s100")
            a("L_dly:")
            a(f"{clk} s[100:101]"); a("s_waitcnt lgkmcnt(0)"); a("s_sub_u32 s56, s100, s57"); a("s_cmp_lt_u32 s56, s3"); a("s_cbranch_scc1 L_dly")
        a.a.raw("; STAMPS " + " ".join(a.names))
    a("L_end:")
    a("s_endpgm")
    return a.a

def main(out):
    hdr = open("sequential_preLN__linear_attn_block__mixer_channel_mlp__prompt.s.ref").read().split("\n")
    hdr = [l for l in hdr if l.startswith(";") and "@launch" not in l]
    hdr.append("; @launch grid=(256,1,1) block=(256,1,1) lds=163840")
    a = gen()
    pre = '.amdgcn_target "amdgcn-amd-amdhsa--gfx950"\n.text\n'
    T1, T2 = build_tables()
    a.raw(".p2align 6\nT1_tab:")
    a.raw(".short " + ",".join(map(str, T1)))
    a.raw("T2_tab:")
    for row in T2: a.raw(".short " + ",".join(map(str, row)))
    a.raw(".fill 2048, 4, 0")
    a.raw('.section .rodata,"a"\n.p2align 6')
    a.raw(f""".amdhsa_kernel {NAME}
  .amdhsa_next_free_vgpr 512
  .amdhsa_next_free_sgpr 102
  .amdhsa_accum_offset 256
  .amdhsa_group_segment_fixed_size 0
  .amdhsa_kernarg_size 88
  .amdhsa_user_sgpr_count 2
  .amdhsa_user_sgpr_kernarg_segment_ptr 1
  .amdhsa_system_sgpr_workgroup_id_x 1
.end_amdhsa_kernel""")
    open(out, "w").write("\n".join(hdr) + "\n" + pre + a.finish())

if __name__ == "__main__":
    main(sys.argv[1])
```

```python
import sys, struct, os
from asmdsl import Asm, R, S
from gen1 import build_tables, PAIRS, f2u, hx, divmod_const, srd, LOG2E

NAME = "sequential_preLN__linear_attn_block__mixer_channel_mlp__prompt_kernel"
WOP = 0
W2P = WOP + 8*20*5*1024
W1P = W2P + 8*54*5*1024
C1P = W1P + 16*20*7*1024
WQKV = C1P + 320*512
PART = WQKV + 16*153600
GRP = PART + 256*4096
G_O = 0; G_H = 163840; G_ST = 327680; G_FL = 335872; G_HID = 336896; G_SZ = G_HID + 442368
FLG = GRP + 16*G_SZ
F1 = FLG; F1R = FLG + 8192; F0 = FLG + 10240; FU = FLG + 14336
WS_END = FLG + 20480
A0 = 256
STAMP = int(os.environ.get("STAMP", "0"))
STB = 32 << 20
POLLMAX = 1 << 15
OPT = set(os.environ.get("OPT", "").split(","))
def P(name, d): return int(os.environ.get(name, d))

class G:
    def __init__(self):
        self.a = Asm(); self.vm = []; self.lg = []; self.nst = 0; self.bgq = []; self.names = []
    def __call__(self, t): self.a(t)
    def vmem(self, text, tag=None): self.a(text); self.vm.append(tag)
    def ds(self, text, tag=None): self.a(text); self.lg.append(tag)
    def _n(self, lst, tag, cap):
        idx = max(i for i, t in enumerate(lst) if t == tag)
        return min(len(lst) - 1 - idx, cap)
    def wait(self, vm=None, lg=None):
        s = []
        if vm is not None: s.append(f"vmcnt({0 if vm == 'all' else self._n(self.vm, vm, 63)})")
        if lg is not None: s.append(f"lgkmcnt({0 if lg == 'all' else self._n(self.lg, lg, 15)})")
        self.a("s_waitcnt " + " ".join(s))
        if vm == 'all': self.vm = []
        if lg == 'all': self.lg = []
    def stamp(self, name=""):
        if STAMP != 1: return
        i = self.nst; self.nst += 1; self.names.append(name)
        assert i < 29
        self.a("s_memtime s[100:101]"); self.a("s_waitcnt lgkmcnt(0)"); self.a(f"v_writelane_b32 v7, s100, {i}")
    def run(self, x): x() if callable(x) else self.a(x)
    def bg(self, n=1):
        for _ in range(n):
            if self.bgq: self.bgq.pop(0)()
    def interleave(self, main, extra, front=()):
        n = len(main); m = len(extra); j = 0; front = list(front)
        for i, x in enumerate(main):
            self.run(x)
            if front:
                self.run(front.pop(0))
                if len(front) >= n - i and front: self.run(front.pop(0))
            while j < m and (j + 1) * n <= (i + 1) * m + (n - 1):
                self.run(extra[j]); j += 1
        for x in front: self.run(x)
        while j < m:
            self.run(extra[j]); j += 1

def MF(d, a_, b_, first): return f"v_mfma_f32_16x16x32_bf16 {R(d,4)}, {R(a_,4)}, {R(b_,4)}, {'0' if first else R(d,4)}"

def phi(a, val, t1, t2):
    a(f"v_mul_f32 {t1}, s60, {val}")
    a(f"v_max_f32 {t2}, 0, {val}")
    a(f"v_exp_f32_e64 {t1}, {t1} clamp")
    a(f"v_add_f32 {t2}, s61, {t2}")
    a(f"v_add_f32 {val}, {t1}, {t2}")

OPT |= {"sc1h", "sc1hid", "notouch", "usfirst", "ft", "rpplain", "slplain", "tlb3"}
def phi4(a, b_, T, sel_mask=None):
    for h in range(2): a(f"v_pk_mul_f32 v[{T+2*h}:{T+2*h+1}], v[{b_+2*h}:{b_+2*h+1}], s[94:95]")
    for e in range(4): a(f"v_max_f32 v{T+4+e}, 0, v{b_+e}")
    for e in range(4): a(f"v_exp_f32_e64 v{T+e}, v{T+e} clamp")
    for h in range(2): a(f"v_pk_add_f32 v[{T+4+2*h}:{T+5+2*h}], v[{T+4+2*h}:{T+5+2*h}], s[96:97]")
    if sel_mask is None:
        for h in range(2): a(f"v_pk_add_f32 v[{b_+2*h}:{b_+2*h+1}], v[{T+2*h}:{T+2*h+1}], v[{T+4+2*h}:{T+5+2*h}]")
    else:
        for h in range(2): a(f"v_pk_add_f32 v[{T+2*h}:{T+2*h+1}], v[{T+2*h}:{T+2*h+1}], v[{T+4+2*h}:{T+5+2*h}]")
        for e in range(4): a(f"v_cndmask_b32 v{b_+e}, v{b_+e}, v{T+e}, {sel_mask}")
RPNT = "" if "rpplain" in OPT else " nt"
HS = "" if "plainh" in OPT else " sc1"
HS2 = "" if "plainhid" in OPT else " sc1"
FENCE = "plainh" in OPT or "plainhid" in OPT
def gen():
    a = G()
    name = NAME
    NRAW = P("NRAW", 2)
    a.a.raw(f".globl {name}\n.p2align 8\n.type {name},@function\n{name}:")
    a("s_cmp_ge_u32 s2, 256"); a("s_cbranch_scc1 L_end")
    a("s_load_dwordx16 s[4:19], s[0:1], 0")
    a("s_load_dwordx4 s[20:23], s[0:1], 64")
    a("s_load_dwordx2 s[24:25], s[0:1], 80")
    a("s_memrealtime s[76:77]")
    a("s_getpc_b64 s[30:31]")
    a("L_pc:")
    a("v_mov_b32 v7, 0")
    a.stamp("start")
    a("v_lshrrev_b32 v2, 6, v0"); a("v_and_b32 v1, 63, v0")
    a("v_readfirstlane_b32 s28, v2")
    if "m48" in OPT:
        a("s_and_b32 s3, s2, 7"); a("s_lshr_b32 s29, s2, 3")
        a("s_lshr_b32 s26, s3, 1"); a("s_lshl_b32 s26, s26, 2"); a("s_lshr_b32 s27, s29, 3"); a("s_add_u32 s26, s26, s27")
        a("s_and_b32 s3, s3, 1"); a("s_lshl_b32 s3, s3, 2"); a("s_and_b32 s27, s29, 3"); a("s_or_b32 s27, s27, s3")
        a("s_and_b32 s29, s29, 4"); a("s_lshl_b32 s29, s29, 1"); a("s_or_b32 s27, s27, s29")
    else:
        a("s_and_b32 s3, s2, 7"); a("s_lshr_b32 s27, s2, 3"); a("s_lshr_b32 s26, s27, 4"); a("s_lshl_b32 s3, s3, 1")
        a("s_add_u32 s26, s26, s3")
        a("s_and_b32 s27, s27, 15")
    a("v_lshlrev_b32 v3, 7, v1")
    if "cp16" in OPT:
        a("s_cmp_lg_u32 s28, 3"); a("s_cbranch_scc1 L_nocp")
        a("s_mul_i32 s3, s27, 2304"); a("v_add_u32 v27, s3, v3"); a("s_bfm_b64 exec, 18, 0")
        a("global_load_dword v4, v27, s[30:31]"); a("s_mov_b64 exec, -1")
    elif "nocp" not in OPT:
        a("s_cmp_lg_u32 s28, 3"); a("s_cbranch_scc1 L_nocp")
        a("s_mul_i32 s3, s27, 13"); a("s_lshr_b32 s3, s3, 6"); a("s_mul_i32 s3, s3, 5"); a("s_sub_u32 s3, s27, s3"); a("s_lshl_b32 s3, s3, 13")
        a("v_add_u32 v27, s3, v3")
        a("global_load_dword v4, v27, s[30:31]")
    a("L_nocp:")
    BQ = 102400; SCR = 153600; CSX = 161792
    vXA = [72, 73, 74, 75]; vW = [76, 77]; vRd = [78, 79]; vTB = [17, 18, 19, 20]; vTQ = [86, 87, 88, 89]; vTQ2 = [90, 91, 21, 22]
    vSA = [80, 81, 82]; vBA = [144, 145, 146, 147, 148]; vTR = [149, 150, 151, 152]
    vT1 = 24; vSTW = 25
    ACC = 32; RAW = 160; XF = A0; BF = A0 + 160; ONES = A0 + 200; GR = A0 + 204; RSM = A0 + 212; OH = A0 + 220; CSA = A0 + 240; CSQ = A0 + 244
    t0, t1, t2, t3 = "v27", "v28", "v29", "v30"
    def early():
        a("v_and_b32 v27, 3, v1"); a("s_lshl_b32 s3, s28, 2"); a("v_add_u32 v27, s3, v27"); a("v_min_u32 v27, 14, v27")
        a("v_lshrrev_b32 v28, 2, v1"); a("v_mul_u32_u24 v28, 3840, v28"); a("v_lshl_add_u32 v28, v27, 4, v28")
        a("v_add_u32 v29, 1280, v28"); a("v_add_u32 v30, 2480, v28"); a("v_subrev_u32 v28, 160, v28")
        a("v_cmp_gt_u32 vcc, 10, v27"); a("s_mul_i32 s50, s26, 153600"); a("s_mul_i32 s51, s27, 80"); a("v_cndmask_b32 v28, v28, v30, vcc")
        a("v_cmp_gt_u32 vcc, 5, v27"); a("s_add_u32 s50, s50, s51"); a("s_mul_i32 s53, s28, 3072"); a("v_cndmask_b32 v83, v28, v29, vcc")
        a(f"s_add_u32 s53, s53, {BQ + 28672}")
        a("s_mul_i32 s3, s26, 163840"); a("s_mul_i32 s56, s27, 10240"); a("s_add_u32 s3, s3, s56"); a("s_mul_i32 s56, s28, 2560"); a("s_add_u32 s57, s3, s56")
        a("v_mov_b32 v5, 0")
    def late():
        a("v_lshlrev_b32 v8, 4, v1"); a("v_lshlrev_b32 v9, 4, v0")
        a("v_and_b32 v10, 15, v1"); a("v_lshlrev_b32 v10, 2, v10")
        a("v_lshrrev_b32 v11, 4, v1"); a("v_add_u32 v12, 4096, v8")
        a("v_lshrrev_b32 v27, 3, v1"); a("v_and_b32 v28, 7, v1"); a("v_mul_u32_u24 v29, 1280, v27")
        a("v_lshrrev_b32 v30, 1, v27"); a("v_xor_b32 v28, v28, v30")
        a(f"v_lshl_add_u32 v{vXA[0]}, v28, 4, v29")
        a(f"v_xor_b32 v{vXA[1]}, 64, v{vXA[0]}"); a(f"v_add_u32 v{vXA[1]}, 10240, v{vXA[1]}")
        a(f"v_add_u32 v{vXA[2]}, 20480, v{vXA[0]}"); a(f"v_add_u32 v{vXA[3]}, 20480, v{vXA[1]}")
        a("s_lshl_b32 s3, s28, 11"); a(f"s_add_u32 s48, s3, {SCR}")
        a("s_lshl_b32 s49, s26, 7"); a("s_lshl_b32 s3, s28, 5"); a("s_add_u32 s49, s49, s3"); a("s_mul_i32 s49, s49, 1280")
        a("s_lshr_b32 s3, s28, 1"); a("s_lshl_b32 s3, s3, 7"); a("s_add_u32 s62, s49, 128"); a("s_sub_u32 s62, s62, s3"); a("s_add_u32 s49, s49, s3")
        a("s_mul_i32 s52, s28, 5120")
        a(f"s_mul_i32 s58, s26, {G_SZ}"); a(f"s_add_u32 s58, s58, {GRP}")
        a("s_lshl_b32 s70, s28, 4"); a("s_add_u32 s70, s70, s26")
        a(f"s_mul_i32 s71, s28, 7168"); a(f"s_add_u32 s71, s71, {BQ}")
        a("v_mov_b32 v2, 0x7fffffff")
    early()
    if "slowpro" in OPT: late()
    a("s_waitcnt lgkmcnt(0)")
    srd(a, 36, 6, 2457600)
    SLNT = "" if "slplain" in OPT else " nt"
    for i in range(3):
        a(f"s_add_u32 m0, s53, {1024*i}")
        if i == 2: a("s_bfm_b64 exec, 32, 0")
        a.vmem(f"buffer_load_dwordx4 v83, s[36:39], s50 offen{SLNT} lds", "SLD")
        a(f"s_add_u32 s50, s50, {16*3840}")
    srd(a, 32, 4, 2621440); srd(a, 40, 24, WS_END)
    a("s_mov_b64 exec, 0xfffff")
    a.vmem(f"buffer_load_dword v4, v3, s[32:35], s57 offen{' nt' if 'xtnt' in OPT else ''}")
    if "tlb" in OPT:
        a("v_lshlrev_b32 v27, 20, v1"); a("s_bfm_b64 exec, 24, 0")
        a.vmem(f"buffer_load_dword v4, v27, s[40:43], 0 offen")
    if "tlb2" in OPT:
        a("s_mul_i32 s54, s27, 153600"); a(f"s_add_u32 s54, s54, {WQKV}")
        a("v_mul_u32_u24 v27, 51200, v1"); a("v_add_u32 v27, s54, v27"); a(f"v_mov_b32 v28, {F0}"); a("v_cmp_eq_u32 vcc, 3, v1"); a("v_cndmask_b32 v27, v27, v28, vcc")
        a("s_bfm_b64 exec, 4, 0")
        a.vmem(f"buffer_load_dword v4, v27, s[40:43], 0 offen")
        a.vmem("global_load_dword v4, v5, s[22:23] offset:128")
    a("s_mov_b64 exec, -1")
    if STAMP: a("v_writelane_b32 v7, s76, 29")
    a("s_and_b32 s76, s76, 0xfffffff8"); a("s_or_b32 s76, s76, 8")
    a("s_or_b32 s3, s2, s28"); a("s_cmp_lg_u32 s3, 0"); a("s_cbranch_scc1 L_notag")
    a("v_mov_b32 v28, s76"); a("global_store_dword v5, v28, s[22:23] sc1")
    a("L_notag:")
    if "ft" in OPT:
        a("s_cmp_lg_u32 s26, s27"); a("s_cbranch_scc1 L_noft"); a("s_cmp_lg_u32 s28, 1"); a("s_cbranch_scc1 L_noft")
        a("s_mul_i32 s3, s27, 1280"); a(f"s_add_u32 s3, s3, {FLG}")
        a("s_bfm_b64 exec, 10, 0"); a("buffer_load_dword v4, v3, s[40:43], s3 offen sc0 sc1"); a("s_mov_b64 exec, -1")
        a("L_noft:")
    if "tlb3" in OPT:
        a("s_cmp_lg_u32 s28, 2"); a("s_cbranch_scc1 L_not3")
        a("v_lshlrev_b32 v27, 16, v1"); a("v_lshlrev_b32 v28, 18, v1")
        for cc, (sp, n_) in enumerate([(12, 34), (16, 34), (8, 13), (20, 40)]):
            a(f"s_cmp_lg_u32 s27, {2+cc}"); a(f"s_cbranch_scc1 L_t3_{cc}")
            a(f"s_bfm_b64 exec, {n_}, 0"); a(f"global_load_dword v4, v27, s[{sp}:{sp+1}]"); a("s_mov_b64 exec, -1")
            a(f"L_t3_{cc}:")
        a("s_cmp_lg_u32 s27, 6"); a("s_cbranch_scc1 L_t3_4"); a("buffer_load_dword v4, v28, s[40:43], 0 offen"); a("L_t3_4:")
        a("s_cmp_lg_u32 s27, 7"); a("s_cbranch_scc1 L_not3"); a(f"s_mov_b32 s3, {64 << 18}"); a("buffer_load_dword v4, v28, s[40:43], s3 offen")
        a("L_not3:")
    if "tlb4" in OPT:
        a("s_cmp_lg_u32 s28, 2"); a("s_cbranch_scc1 L_not4")
        a("v_lshlrev_b32 v27, 21, v1"); a("s_bfm_b64 exec, 2, 0")
        a("global_load_dword v4, v27, s[12:13]"); a("global_load_dword v4, v27, s[16:17]"); a("s_mov_b64 exec, 1"); a("global_load_dword v4, v27, s[8:9]")
        a("s_bfm_b64 exec, 11, 0"); a("buffer_load_dword v4, v27, s[40:43], 0 offen")
        a("s_mov_b64 exec, -1")
        a("L_not4:")
    if "nobt" not in OPT:
        a("s_lshl_b32 s3, s27, 2"); a("s_add_u32 s3, s3, s28"); a("s_cmp_lg_u32 s3, 6"); a("s_cbranch_scc1 L_nobt")
        a("s_bfm_b64 exec, 27, 0"); a("global_load_dword v4, v3, s[14:15]")
        a("s_bfm_b64 exec, 10, 0"); a("global_load_dword v4, v3, s[18:19]")
        a("s_mov_b64 exec, -1")
        a("L_nobt:")
    srd(a, 44, 12, 2211840)
    if "slowpro" not in OPT: late()
    def rp_issue(nt, pitch_src, nch):
        for i in range(7):
            if i < nt:
                a(f"v_add_u32 v27, {64*i}, v1")
                divmod_const(a, "v28", "v29", "v27", nch)
                a(f"v_mul_u32_u24 v28, {pitch_src}, v28"); a("v_lshl_add_u32 v28, v29, 4, v28")
                a(f"s_add_u32 m0, s71, {1024*i}")
                a(f"buffer_load_dwordx4 v28, s[44:47], s73 offen{RPNT} lds")
            else:
                a("buffer_load_dword v4, v2, s[44:47], 0 offen")
    def unit_issue():
        a("s_cmp_ge_u32 s70, 20"); a("s_cbranch_scc1 L_rp5")
        a("s_mov_b32 s72, 1")
        a("s_mul_i32 s75, s27, 27"); a("s_lshr_b32 s75, s75, 2"); a("s_lshl_b32 s75, s75, 5")
        a("s_mul_i32 s79, s70, 110592"); a("s_add_u32 s73, s75, s79")
        a("s_mul_i32 s75, s27, 20"); a("s_add_u32 s70, s70, s75")
        a("s_mul_i32 s74, s70, 7168"); a(f"s_add_u32 s74, s74, {W1P}")
        rp_issue(7, 3456, 14)
        a("s_branch L_rp_issued")
        a("L_rp5:")
        a("s_mov_b32 s72, 2")
        a("s_sub_u32 s79, s70, 20"); a("s_lshl_b32 s79, s79, 1"); a("s_lshr_b32 s75, s27, 3"); a("s_add_u32 s79, s79, s75"); a("s_and_b32 s75, s27, 7")
        a("s_cmp_ge_u32 s79, 54"); a("s_cbranch_scc1 L_rpwo")
        srd(a, 44, 16, 2211840)
        a("s_mul_i32 s78, s75, 54"); a("s_add_u32 s78, s78, s79")
        a("s_mul_i32 s74, s78, 5120"); a(f"s_add_u32 s74, s74, {W2P}")
        a("s_branch L_rp5b")
        a("L_rpwo:")
        srd(a, 44, 8, 819200)
        a("s_sub_u32 s79, s79, 54")
        a("s_mul_i32 s78, s75, 20"); a("s_add_u32 s78, s78, s79")
        a("s_mul_i32 s74, s78, 5120"); a(f"s_add_u32 s74, s74, {WOP}")
        a("s_cmp_ge_u32 s79, 20"); a("s_cselect_b32 s74, 0x40000000, s74")
        a("L_rp5b:")
        a("s_mul_i32 s75, s75, 160"); a("s_mul_i32 s79, s79, 40960"); a("s_add_u32 s73, s75, s79")
        rp_issue(5, 1280, 10)
        a("L_rp_issued:")
        a.vm += ["UL"]*7
    def raw(cx, rg): return 96 + (((cx + 1) % 10)*4 + rg)*4
    def xf(tt, k): return XF + (tt*20 + k)*4
    def ldx(cx):
        def one(rg):
            off = 256*(cx >> 1)
            a(f"s_add_u32 m0, s52, {(cx % 5)*20480 + rg*1024 + 1024 - off}")
            a.vmem(f"buffer_load_dwordx4 v{vXA[rg]}, s[32:35], s{62 if cx & 1 else 49} offen offset:{off} lds", f"X{cx}")
        return [lambda rg=rg: one(rg) for rg in range(4)]
    a("v_and_b32 v27, 15, v1")
    a("v_cmp_gt_u32 s[66:67], 8, v27")
    a("v_cmp_gt_u32 s[90:91], 32, v1"); a("v_cmp_gt_u32 s[92:93], 48, v1")
    a("v_cmp_eq_u32 s[88:89], 1, v11")
    a("v_and_b32 v29, 1, v11")
    a("s_lshl_b32 s3, s28, 1"); a("v_add_u32 v29, s3, v29")
    a("v_cmp_gt_u32 s[94:95], 5, v29"); a("v_cmp_eq_u32 s[96:97], 7, v29")
    a("v_lshlrev_b32 v29, 10, v29"); a(f"v_add_u32 v30, {BQ - 5120}, v29"); a("v_cndmask_b32 v29, v30, v29, s[94:95]")
    a("v_lshl_add_u32 v29, v10, 2, v29")
    a("v_mov_b32 v30, 2560"); a("v_mov_b32 v31, 5120"); a("v_cndmask_b32 v30, v30, v31, s[94:95]")
    a("v_mov_b32 v31, 8"); a("v_cndmask_b32 v31, v31, 7, s[96:97]")
    a("s_andn2_b64 s[96:97], s[96:97], s[66:67]")
    a("s_mul_i32 s3, s26, 5")
    a("v_lshrrev_b32 v28, 1, v11"); a("v_add_u32 v28, s3, v28")
    for n in range(3):
        a(f"v_lshrrev_b32 v27, 2, v28"); a(f"v_mad_u32_u24 v{vSA[n]}, v27, v30, v29")
        a("v_and_b32 v27, 3, v28"); a("v_lshlrev_b32 v27, v31, v27"); a(f"v_add_u32 v{vSA[n]}, v{vSA[n]}, v27")
        a(f"v_cndmask_b32 v{vSA[n]}, v{vSA[n]}, v2, s[96:97]")
        if n == 2: a(f"v_cndmask_b32 v{vSA[n]}, v2, v{vSA[n]}, s[90:91]")
        else: a("v_add_u32 v28, 2, v28")
    a("v_lshrrev_b32 v27, 5, v1"); a("v_bfe_u32 v28, v1, 2, 2"); a("v_lshl_add_u32 v27, v27, 3, v28"); a("v_lshlrev_b32 v27, 6, v27")
    a("v_bfe_u32 v28, v1, 4, 1"); a("v_lshl_add_u32 v27, v28, 5, v27"); a("v_and_b32 v28, 3, v1"); a("v_lshl_add_u32 v27, v28, 3, v27")
    a("v_add_u32 v84, s53, v27")
    a("s_mul_i32 s54, s27, 153600"); a(f"s_add_u32 s54, s54, {WQKV}")
    a.wait(vm="SLD")
    a.stamp("sld")
    for n in range(3):
        for h in range(2): a(f"ds_read_b64_tr_b16 {R(96 + 4*n + 2*h, 2)}, v84 offset:{1024*n + 256*h}")
    a("s_waitcnt lgkmcnt(0)")
    for n in range(3): a.vmem(f"buffer_store_dwordx4 {R(96 + 4*n, 4)}, v{vSA[n]}, s[40:43], s54 offen sc1", "SL")
    a.vmem("global_load_dword v6, v5, s[22:23] sc1", "TAG")
    NX0 = P("NX0", 5)
    for cx in range(NX0):
        for f in ldx(cx): f()
    a("v_and_b32 v27, 15, v1")
    a("v_lshrrev_b32 v29, 1, v27"); a("v_xor_b32 v29, v29, v11"); a("v_lshlrev_b32 v29, 4, v29"); a("v_lshl_add_u32 v29, v27, 7, v29")
    a("s_and_b32 s3, s28, 1"); a("s_lshl_b32 s3, s3, 6"); a("v_xor_b32 v29, s3, v29")
    a(f"v_add_u32 v{vRd[0]}, s52, v29"); a("v_xor_b32 v29, 64, v29"); a(f"v_add_u32 v{vRd[1]}, s52, v29")
    a(f"v_add_u32 v{vW[0]}, 61440, v{vRd[0]}"); a(f"v_add_u32 v{vW[1]}, 61440, v{vRd[1]}")
    a("v_lshrrev_b32 v29, 2, v27"); a("v_cmp_eq_u32 vcc, v29, v11")
    a("v_lshlrev_b32 v30, 2, v1"); a("v_add_u32 v30, 512, v30")
    a("v_cndmask_b32 v29, v30, v10, vcc"); a(f"v_add_u32 v{vSTW}, s48, v29")
    a("v_and_b32 v29, 1, v1"); a("v_cmp_eq_u32 s[68:69], 1, v29")
    a("v_and_b32 v29, 2, v1"); a("v_cmp_eq_u32 s[86:87], 2, v29")
    a("v_mov_b32 v28, 0x3f803f80")
    for i in range(4): a(f"v_accvgpr_write_b32 {R(ONES+i)}, v28")
    for t in range(5):
        a(f"v_cmp_eq_u32 vcc, {t}, v27"); a("v_cndmask_b32 v29, 0, v28, vcc")
        for e in range(4): a(f"v_accvgpr_write_b32 {R(OH+4*t+e)}, v29")
    a("v_and_b32 v27, 7, v1"); a("v_lshlrev_b32 v27, 4, v27"); a("v_lshl_add_u32 v27, v11, 7, v27")
    for p in range(4):
        a(f"s_xor_b32 s3, s28, {p}"); a("s_mul_i32 s56, s3, 5120"); a(f"v_add_u32 v{vTB[p]}, s56, v8")
        a("s_mul_i32 s56, s3, 2560"); a(f"s_add_u32 s56, s56, {BQ}"); a(f"v_add_u32 v{vTQ[p]}, s56, v8"); a("s_add_u32 s56, s56, 2048"); a(f"v_add_u32 v{vTQ2[p]}, s56, v27")
    a(f"s_mov_b32 s60, {hx(LOG2E)}"); a(f"s_mov_b32 s61, {hx(1e-6)}")
    a(f"s_mov_b32 s63, {hx(1.0/640)}"); a(f"s_mov_b32 s64, {hx(1e-5)}")
    a("s_lshl_b32 s55, s27, 8"); a(f"s_add_u32 s55, s55, {F0}")
    a("v_lshlrev_b32 v26, 2, v1")
    a("s_lshl_b32 s3, s26, 4"); a("s_lshl_b32 s56, s28, 2"); a("s_add_u32 s3, s3, s56"); a("s_add_u32 s3, s3, s55")
    a.wait(vm="TAG")
    a("v_readfirstlane_b32 s76, v6"); a("s_mov_b32 s78, 0")
    a("L_tp1:")
    a("s_cmp_lg_u32 s76, 0"); a("s_cbranch_scc1 L_tp1_ok")
    a("global_load_dword v6, v5, s[22:23] sc1"); a("s_add_u32 s78, s78, 1"); a("s_waitcnt vmcnt(0)")
    a("v_readfirstlane_b32 s76, v6")
    a(f"s_cmp_lt_u32 s78, {POLLMAX}"); a("s_cbranch_scc1 L_tp1")
    a("L_tp1_ok:")
    a("s_getreg_b32 s77, hwreg(HW_REG_XCC_ID)"); a("s_and_b32 s77, s77, 7"); a("s_or_b32 s77, s77, s76")
    a("s_lshl_b32 s57, s26, 7"); a("s_lshl_b32 s56, s27, 2"); a("s_add_u32 s57, s57, s56"); a(f"s_add_u32 s57, s57, {F1R}")
    a("s_cmp_eq_u32 s28, 0"); a("s_cselect_b32 s57, s57, 0x40000000"); a("v_mov_b32 v27, s77")
    a("s_mov_b64 exec, 1"); a.vmem("buffer_store_dword v6, v5, s[40:43], s3 offen sc1"); a.vmem("buffer_store_dword v27, v5, s[40:43], s57 offen sc1"); a("s_mov_b64 exec, -1")
    a.stamp("F0pub")
    def rp_fin(nt, RG):
        pitch = nt*32
        a("v_bfe_u32 v28, v1, 2, 2"); a("v_lshl_add_u32 v27, v11, 3, v28"); a("v_and_b32 v28, 3, v1")
        a(f"v_mul_u32_u24 v29, {pitch}, v27"); a("v_add_u32 v29, s71, v29")
        a("v_lshl_add_u32 v30, v28, 3, v29"); a("v_lshl_add_u32 v29, v28, 4, v29")
        for t in range(nt):
            for h in range(2):
                if t == nt - 1: a(f"ds_read_b64_tr_b16 {R(RG + 4*t + 2*h, 2)}, v30 offset:{h*4*pitch + 32*t}")
                else: a(f"ds_read_b64_tr_b16 {R(RG + 4*t + 2*h, 2)}, v29 offset:{h*4*pitch + 64*(t>>1) + 8*(t&1)}")
        if nt == 7:
            a("v_mov_b32 v28, 0x3f803f80")
            for t in (5, 6):
                a(f"v_cmp_eq_u32 vcc, {4*t}, v10")
                for e in range(4): a(f"v_cndmask_b32 v{RG+28+4*(t-5)+e}, 0, v28, vcc")
        a("s_waitcnt lgkmcnt(0)")
        if nt == 7:
            for t in range(7): a(MF(RG+36, RG + 4*t, OH + 4*t if t < 5 else RG+28+4*(t-5), t == 0))
    def rp_store(nt, RG):
        for t in range(nt):
            a(f"buffer_store_dwordx4 {R(RG + 4*t, 4)}, v{8 if t < 4 else 12}, s[40:43], s74 offen offset:{1024*(t&3)} sc1")
        if nt == 7:
            a("v_lshlrev_b32 v29, 4, v11"); a("v_lshl_add_u32 v29, v10, 4, v29"); a("v_cndmask_b32 v29, v2, v29, s[66:67]")
            a("s_lshl_b32 s3, s70, 9"); a(f"s_add_u32 s3, s3, {C1P}")
            a(f"buffer_store_dwordx4 {R(RG+36, 4)}, v29, s[40:43], s3 offen sc1")
        else:
            for _ in range(3): a("buffer_store_dword v5, v2, s[40:43], 0 offen")
    def acc(tt, t): return ACC + (tt*5 + t)*4
    def transp(cx):
        L = []
        j = cx % 5; b = vRd if j < 3 else vW; o = (j % 3)*20480 + 1024
        for tt in range(2):
            L.append(lambda tt=tt: a.ds(f"ds_read_b128 {R(xf(tt, 2*cx), 4)}, v{b[0]} offset:{o + 2048*tt}"))
            L.append(lambda tt=tt: a.ds(f"ds_read_b128 {R(xf(tt, 2*cx+1), 4)}, v{b[1]} offset:{o + 2048*tt}", f"T{cx}"))
        return L
    def statm(k):
        L = []
        for tt in range(2):
            L.append(MF(GR + 4*tt, xf(tt, k), xf(tt, k), k == 0)); L.append(MF(RSM + 4*tt, ONES, xf(tt, k), k == 0))
        return L
    def breads1(s):
        j, p = divmod(s, 4); L = []
        for t in range(5):
            L.append(lambda t=t: a.ds(f"ds_read_b128 {R(BF + (s&1)*20 + t*4, 4)}, v{vTB[p]} offset:{(j % 3)*20480 + t*1024}", f"R{s}"))
        if j == 2: L.append(f"v_add_u32 v{vTB[p]}, 61440, v{vTB[p]}")
        return L
    def ldb(j):
        def one(i):
            if i == 0: a(f"s_add_u32 m0, s52, {j*20480}"); a("s_add_u32 s57, s54, m0")
            if i == 4: a(f"s_add_u32 m0, s52, {j*20480 + 4096}")
            a.vmem(f"buffer_load_dwordx4 v{8 if i < 4 else 12}, s[40:43], s57 offen offset:{1024*(i&3)} sc1 lds", f"B{j}")
        return [lambda i=i: one(i) for i in range(5)]
    def ldq():
        def one(i):
            if i == 11: a("s_cmp_eq_u32 s28, 3"); a("s_cbranch_scc1 L_noq")
            a(f"s_mul_i32 s98, s28, 13312"); a(f"s_add_u32 m0, s98, {BQ + i*1024}"); a("s_add_u32 s98, s54, m0")
            a.a(f"buffer_load_dwordx4 v8, s[40:43], s98 offen sc1 lds")
            if i < 11: a.vm.append("BQ")
            if i == 12: a("L_noq:")
        return [lambda i=i: one(i) for i in range(11)] + [lambda: (one(11), one(12))]
    def ldt1():
        a("v_lshlrev_b32 v27, 1, v0"); a("s_add_u32 s56, s30, T1_tab-L_pc"); a("s_addc_u32 s57, s31, 0")
        a.vmem(f"global_load_ushort v{vT1}, v27, s[56:57]", "T1")
    def kv_mf(s):
        mf = []
        for t in range(5):
            b = BF + (s&1)*20 + t*4
            for tt in range(2): mf.append(MF(acc(tt, t), xf(tt, s), b, s == 0))
            if s % 4 == 0: mf.append(MF(CSA, OH + 4*t, b, s == 0 and t == 0))
        return mf
    RS = 96; MS = 104; RT = 112; MT = 114; CSV = 116
    URG = 116
    def flagtouch():
        a(f"s_add_u32 s3, s58, {G_FL}"); a("s_bfm_b64 exec, 8, 0"); a.vmem("buffer_load_dword v4, v3, s[40:43], s3 offen"); a("s_mov_b64 exec, -1")
    for cx in range(NX0, 5):
        for f in ldx(cx): f()
    for cx in range(10):
        a.wait(vm=f"X{cx}")
        for f in transp(cx): f()
        if cx:
            a.wait(lg=f"T{cx-1}")
            side = ldx(cx + 4) if cx + 4 < 10 else []
            if cx == 6: side = [ldt1, flagtouch, unit_issue]
            a.interleave(statm(2*(cx-1)) + statm(2*(cx-1)+1), side)
    a.wait(lg="T9")
    a.stamp("xdone")
    a("s_mov_b32 s78, 0")
    a("L_h0p:")
    a("buffer_load_dword v16, v26, s[40:43], s55 offen sc1"); a("s_waitcnt vmcnt(0)")
    a("v_cmp_ne_u32 vcc, s76, v16")
    a("s_cbranch_vccz L_h0ok")
    a("s_add_u32 s78, s78, 1"); a(f"s_cmp_lt_u32 s78, {POLLMAX}"); a("s_cbranch_scc1 L_h0p")
    a("L_h0ok:")
    a.vm = []
    a.stamp("F0ok")
    for f in ldb(0): f()
    for f in ldb(1): f()
    a.wait(lg="all")
    for x in statm(18) + statm(19): a(x)
    a("s_cmp_eq_u32 s72, 2"); a("s_cbranch_scc1 L_rp_f5")
    rp_fin(7, URG); a("s_branch L_rp_done")
    a("L_rp_f5:"); rp_fin(5, URG)
    a("L_rp_done:")
    for tt in range(2):
        for e in range(4): a(f"v_accvgpr_read_b32 v{160+e}, {R(GR + 4*tt + e)}")
        a(f"v_accvgpr_read_b32 v164, {R(RSM + 4*tt)}")
        for x in ["v_cndmask_b32 v160, v160, v161, s[68:69]", "v_cndmask_b32 v162, v162, v163, s[68:69]", "v_mul_f32 v164, s63, v164",
                  "v_cndmask_b32 v160, v160, v162, s[86:87]", "v_mul_f32 v160, s63, v160", "v_fma_f32 v160, -v164, v164, v160",
                  "v_max_f32 v160, 0, v160", "v_add_f32 v160, s64, v160", "v_rsq_f32 v160, v160", "v_mul_f32 v164, v164, v160"]: a(x)
        a.ds(f"ds_write_b32 v{vSTW}, v160 offset:{64*tt}"); a.ds(f"ds_write_b32 v{vSTW}, v164 offset:{128 + 64*tt}")
    a("v_lshlrev_b32 v28, 4, v11"); a("v_add_u32 v28, s48, v28"); a("v_add_u32 v29, s48, v10")
    for tt in range(2):
        a.ds(f"ds_read_b128 {R(RS + 4*tt, 4)}, v28 offset:{64*tt}"); a.ds(f"ds_read_b128 {R(MS + 4*tt, 4)}, v28 offset:{128 + 64*tt}")
        a.ds(f"ds_read_b32 v{RT + tt}, v29 offset:{64*tt}"); a.ds(f"ds_read_b32 v{MT + tt}, v29 offset:{128 + 64*tt}")
    NBE = P("NBE", 3)
    for j in range(2, NBE):
        for f in ldb(j): f()
    a("s_lshl_b32 s73, s70, 9"); a(f"s_add_u32 s73, s73, {C1P}")
    a("s_cmp_eq_u32 s72, 2"); a("s_cselect_b32 s75, 0x40000000, s74"); a("s_cselect_b32 s73, 0x40000000, s73")
    a("v_lshlrev_b32 v85, 4, v11"); a("v_lshl_add_u32 v85, v10, 4, v85"); a("v_cndmask_b32 v85, v2, v85, s[66:67]")
    def ust(t):
        if t < 7: a.vmem(f"buffer_store_dwordx4 {R(URG + 4*t, 4)}, v{8 if t < 4 else 12}, s[40:43], s{74 if t < 5 else 75} offen offset:{1024*(t&3)} sc1", "US")
        else: a.vmem(f"buffer_store_dwordx4 {R(URG+36, 4)}, v85, s[40:43], s73 offen sc1", "US")
    a("s_and_b32 s59, s27, 7"); a("s_lshl_b32 s59, s59, 9"); a(f"s_add_u32 s59, s59, {FU}")
    a("s_lshr_b32 s3, s27, 3"); a("s_lshl_b32 s3, s3, 4"); a("s_add_u32 s3, s3, s26"); a("s_lshl_b32 s3, s3, 2"); a("s_add_u32 s3, s3, s28"); a("s_lshl_b32 s3, s3, 2"); a("s_add_u32 s70, s3, s59")
    a.wait(vm="B0")
    a("s_barrier")
    a.stamp("bP")
    a("s_mov_b32 s94, s60"); a("s_mov_b32 s95, s60"); a("s_mov_b32 s96, s61"); a("s_mov_b32 s97, s61")
    for f in breads1(0): a.run(f)
    def pretouch():
        if "sc1h" in OPT:
            a(f"s_add_u32 s3, s58, {G_FL}"); a("s_bfm_b64 exec, 4, 0"); a.vmem("buffer_load_dword v4, v3, s[40:43], s3 offen"); a("s_mov_b64 exec, -1")
            return
        a("s_mul_i32 s3, s27, 21056"); a("s_add_u32 s3, s3, s58"); a("s_mul_i32 s56, s28, 5376"); a("s_add_u32 s3, s3, s56")
        a("s_bfm_b64 exec, 42, 0"); a.vmem("buffer_load_dword v4, v3, s[40:43], s3 offen"); a("s_mov_b64 exec, -1")
    FB3 = 156
    a("s_and_b32 s3, s27, 7"); a("s_mul_i32 s3, s3, 20"); a("s_add_u32 s3, s3, s28"); a("s_mul_i32 s65, s3, 5120"); a(f"s_add_u32 s65, s65, {WOP}")
    def ldwo(n, t):
        a.vmem(f"buffer_load_dwordx4 {R(FB3 + (n*5+t)*4, 4)}, v{8 if t < 4 else 12}, s[40:43], s65 offen offset:{1024*(t&3)} sc1", "WO")
        if t == 4: a("s_add_u32 s65, s65, 20480")
    def ldfu():
        a("v_lshlrev_b32 v31, 3, v1")
        a.vmem("buffer_load_dwordx2 v[92:93], v31, s[40:43], s59 offen sc1", "FU")
    def chkfu():
        a.wait(vm="FU")
        a("s_mov_b32 s78, 0")
        a("L_fu:")
        a("v_cmp_ne_u32 vcc, s76, v92"); a("v_cmp_ne_u32 s[84:85], s76, v93")
        a("s_or_b64 vcc, vcc, s[84:85]"); a("s_cbranch_scc0 L_fu_ok")
        a("s_add_u32 s78, s78, 1"); a(f"s_cmp_ge_u32 s78, {POLLMAX}"); a("s_cbranch_scc1 L_fu_ok")
        a("buffer_load_dwordx2 v[92:93], v31, s[40:43], s59 offen sc1"); a("s_waitcnt vmcnt(0)")
        a("s_branch L_fu")
        a("L_fu_ok:")
    q_ = ldq(); mix = []
    if "usfirst" in OPT:
        mix = [lambda i=i: ust(i) for i in range(8)] + q_
    else:
        for i in range(12):
            mix.append(q_[i])
            if i < 8: mix.append(lambda i=i: ust(i))
    ldlist = sum([ldb(j) for j in range(NBE, 5)], [])
    MS0 = P("MS0", 6); MR = P("MR", 1)
    a.bgq = mix
    SFU = P("SFU", 18)
    LEND = P("LEND", 16)
    CT = 116
    for s in range(20):
        j, p = divmod(s, 4)
        if p == 3 and j < 4:
            a.wait(vm=f"B{j+1}"); a("s_barrier")
        if s == SFU:
            a.wait(vm="US")
            a("s_mov_b64 exec, 1"); a.vmem("buffer_store_dword v6, v5, s[40:43], s70 offen sc1"); a("s_mov_b64 exec, -1")
        if s == 18:
            a.wait(lg="CSW"); a("s_barrier")
        a.wait(lg=f"R{s}")
        mf = kv_mf(s)
        front = breads1(s+1) if s < 19 else []
        side = []
        if s == 17:
            side += ["s_lshl_b32 s3, s28, 9", f"s_add_u32 s3, s3, {CSX}", "v_add_u32 v27, s3, v8"]
            side.append(lambda: (a("s_bfm_b64 exec, 32, 0"), a.ds(f"ds_write_b128 v27, {R(CSA, 4)}", "CSW"), a("s_mov_b64 exec, -1")))
        if s == 18:
            assert a.vm.count("US") == 8
            side += ["v_lshlrev_b32 v27, 2, v10", f"v_add_u32 v27, {CSX}, v27"]
            for w in range(4):
                side.append(lambda w=w: a.ds(f"ds_read_b128 {R(CT + 4*w, 4)}, v27 offset:{512*w}"))
                side.append(lambda w=w: a.ds(f"ds_read_b32 v{CT + 16 + w}, v27 offset:{512*w + 256}", "CSR"))
        if s == 19:
            side.append(lambda: a.wait(lg="CSR"))
            for e in range(4):
                side += [f"v_add_f32 v{CT+e}, v{CT+e}, v{CT+4+e}", f"v_add_f32 v{CT+8+e}, v{CT+8+e}, v{CT+12+e}", f"v_add_f32 v{CT+20+e}, v{CT+e}, v{CT+8+e}"]
            side += [f"v_add_f32 v{CT+16}, v{CT+16}, v{CT+17}", f"v_add_f32 v{CT+18}, v{CT+18}, v{CT+19}", f"v_add_f32 v{CT+24}, v{CT+16}, v{CT+18}"]
        side += ldlist[:3]; ldlist = ldlist[3:]
        if s >= MS0: side = [lambda: a.bg(1)]*MR + side
        a.interleave(mf, side, front)
    CSV = CT + 20
    a.stamp("kvend")
    if "plainh" in OPT:
        a("s_mul_i32 s3, s27, 21056"); a("s_add_u32 s3, s3, s58"); a("s_mul_i32 s56, s28, 5376"); a("s_add_u32 s3, s3, s56")
        a("s_bfm_b64 exec, 42, 0"); a.vmem("buffer_load_dword v4, v3, s[40:43], s3 offen"); a("s_mov_b64 exec, -1")
    OP = 116; TP = 72
    FUC = P("FUC", 14)
    if FUC < 4: ldfu()
    KBG = P("KBG", 1)
    for t in range(5):
        for tt in range(2):
            b_ = acc(tt, t)
            cp = CSV + t; cpe = cp & ~1; sel = cp & 1
            for h in range(2):
                x = b_ + 2*h
                a(f"v_pk_mul_f32 v[{TP+2*h}:{TP+2*h+1}], v[{MS+4*tt+2*h}:{MS+4*tt+2*h+1}], v[{cpe}:{cpe+1}] op_sel:[0,{sel}] op_sel_hi:[1,{sel}]")
            for h in range(2):
                x = b_ + 2*h
                a(f"v_pk_fma_f32 v[{x}:{x+1}], v[{x}:{x+1}], v[{RS+4*tt+2*h}:{RS+4*tt+2*h+1}], v[{TP+2*h}:{TP+2*h+1}] neg_lo:[0,0,1] neg_hi:[0,0,1]")
            if t <= 2: phi4(a, b_, TP, sel_mask=("s[66:67]" if t == 2 else None))
            for h in range(2):
                a(f"v_cvt_pk_bf16_f32 v{OP + 4*t + 2*tt + h}, v{acc(tt, t) + 2*h}, v{acc(tt, t) + 2*h + 1}")
            if t*2 + tt == SFU - 20:
                a.wait(vm="US")
                a("s_mov_b64 exec, 1"); a.vmem("buffer_store_dword v6, v5, s[40:43], s70 offen sc1"); a("s_mov_b64 exec, -1")
            if t*2 + tt == FUC - 4: ldfu()
            if t*2 + tt == FUC: chkfu(); a.bgq += [lambda n=n, t=t: ldwo(n, t) for n in range(5) for t in range(5)]
            a.bg(KBG)
    while "BQdone" not in a.vm and a.vm.count("BQ") < 11 or (a.bgq and a.bgq[0] is q_[11]): a.bg(1)
    KVD = 32
    for p, (ta, tb) in enumerate(PAIRS):
        a(MF(KVD + 4*p, OP + 4*ta, ONES if tb < 0 else OP + 4*tb, True))
    a("s_mul_i32 s3, s28, 10240"); a("v_add_u32 v27, s3, v8")
    for p in range(10): a(f"ds_write_b128 v27, {R(KVD + 4*p, 4)} offset:{1024*p}")
    a("s_lshl_b32 s3, s27, 4"); a("s_add_u32 s3, s3, s26"); a("s_lshl_b32 s3, s3, 12"); a(f"s_add_u32 s3, s3, {PART}")
    a("v_cmp_gt_u32 vcc, 216, v0"); a("v_cndmask_b32 v9, v2, v9, vcc")
    a.wait(lg="all")
    a("s_barrier")
    for w in range(4): a(f"ds_read_b128 {R(56 + 4*w, 4)}, v{vT1} offset:{10240*w}")
    a("s_waitcnt lgkmcnt(0)")
    for e in (0, 2):
        a(f"v_pk_add_f32 v[{56+e}:{57+e}], v[{56+e}:{57+e}], v[{60+e}:{61+e}]"); a(f"v_pk_add_f32 v[{64+e}:{65+e}], v[{64+e}:{65+e}], v[{68+e}:{69+e}]")
    for e in (0, 2): a(f"v_pk_add_f32 v[{56+e}:{57+e}], v[{56+e}:{57+e}], v[{64+e}:{65+e}]")
    if "p16" in OPT:
        a("v_cvt_pk_bf16_f32 v56, v56, v57"); a("v_cvt_pk_bf16_f32 v57, v58, v59"); a("v_lshrrev_b32 v9, 1, v9")
        a.vmem(f"buffer_store_dwordx2 v[56:57], v9, s[40:43], s3 offen sc1", "PST")
    else:
        a.vmem(f"buffer_store_dwordx4 v[56:59], v9, s[40:43], s3 offen sc1", "PST")
    ldfu()
    a("s_lshr_b32 s48, s27, 3"); a("s_and_b32 s49, s27, 7")
    a("v_lshrrev_b32 v13, 1, v11"); a("v_lshlrev_b32 v13, 8, v13"); a("v_lshl_add_u32 v13, v10, 2, v13")
    a("v_and_b32 v28, 1, v11"); a("v_lshl_add_u32 v13, v28, 3, v13")
    a("v_mul_u32_u24 v14, 320, v10"); a("v_lshl_add_u32 v15, v11, 3, v14"); a("v_lshl_add_u32 v14, v11, 4, v14")
    a("s_lshl_b32 s50, s48, 2"); a("s_add_u32 s50, s50, s28")
    a("s_lshl_b32 s3, s26, 3"); a("s_add_u32 s3, s3, s50"); a("s_mul_i32 s51, s3, 20480"); a("s_mul_i32 s3, s49, 160"); a("s_add_u32 s51, s51, s3")
    a("s_mul_i32 s53, s27, 27"); a("s_lshr_b32 s53, s53, 2")
    a("s_mul_i32 s55, s27, 143360"); a(f"s_add_u32 s55, s55, {W1P}")
    srd(a, 36, 14, 3456)
    a("v_lshlrev_b32 v23, 4, v11"); a("v_lshl_add_u32 v26, v10, 4, v23")
    a("s_lshl_b32 s62, s27, 2"); a("s_add_u32 s62, s62, s28"); a("s_lshl_b32 s62, s62, 7")
    a("s_lshl_b32 s56, s26, 7"); a("s_add_u32 s56, s56, 8192")
    a("v_mov_b32 v27, s62"); a("v_mov_b32 v28, s56"); a("v_cndmask_b32 v17, v27, v28, s[88:89]"); a("v_add_u32 v17, v17, v10")
    a("s_lshl_b32 s3, s26, 2"); a("s_add_u32 s3, s3, s62"); a(f"s_add_u32 s3, s3, {F1}")
    a.wait(vm="PST")
    a("s_mov_b64 exec, 1"); a.vmem("buffer_store_dword v6, v5, s[40:43], s3 offen sc1"); a("s_mov_b64 exec, -1")
    a("s_barrier")
    a.stamp("b7")
    chkfu(); a.bgq += [lambda n=n, t=t: ldwo(n, t) for n in range(5) for t in range(5)]
    FB3 = 156; RES = 116; C1R = 126; T2R = 146
    B1A = A0 + 204
    W1T = A0 + 100
    def w1dma(i):
        a(f"s_mul_i32 s98, s28, {24*1024}"); a(f"s_add_u32 m0, s98, {i*1024}"); a("s_add_u32 s98, s55, m0")
        a.vmem(f"buffer_load_dwordx4 v8, s[40:43], s98 offen sc1 lds", "W1")
    def w1tail(i):
        a(f"s_mul_i32 s98, s28, {11*1024}"); a(f"s_add_u32 s98, s98, {(96+i)*1024}"); a("s_add_u32 s98, s55, s98")
        a.vmem(f"buffer_load_dwordx4 {R(W1T + 4*i, 4)}, v8, s[40:43], s98 offen sc1", "W1")
    def ldsmall():
        a("v_lshlrev_b32 v31, 5, v1"); a("s_add_u32 s98, s30, T2_tab-L_pc"); a("s_addc_u32 s99, s31, 0")
        a.vmem(f"global_load_dwordx4 {R(T2R, 4)}, v31, s[98:99]"); a.vmem(f"global_load_dwordx2 {R(T2R+4, 2)}, v31, s[98:99] offset:16")
    def ldres(q):
        if q == 0: a.vmem(f"buffer_load_dwordx4 {R(RES, 4)}, v14, s[32:35], s51 offen")
        if q == 1: a.vmem(f"buffer_load_dwordx4 {R(RES+4, 4)}, v14, s[32:35], s51 offen offset:64")
        if q == 2: a.vmem(f"buffer_load_dwordx2 {R(RES+8, 2)}, v15, s[32:35], s51 offen offset:128", "RES")
    def ldb1():
        a("v_lshlrev_b32 v31, 3, v11"); a("s_lshl_b32 s98, s53, 5")
        for p in range(3): a.vmem(f"buffer_load_dwordx4 {R(B1A + 4*p, 4)}, v23, s[36:39], s98 offen offset:{64*p}")
        a.vmem(f"buffer_load_dwordx2 {R(B1A + 12, 2)}, v31, s[36:39], s98 offen offset:192")
    def ldc1():
        a("s_mul_i32 s98, s27, 20"); a("s_mul_i32 s99, s28, 5"); a("s_add_u32 s98, s98, s99"); a("s_lshl_b32 s98, s98, 9"); a(f"s_add_u32 s98, s98, {C1P}")
        a("s_mov_b64 exec, s[66:67]")
        for n in range(5): a.vmem(f"buffer_load_dwordx4 {R(C1R + 4*n, 4)}, v26, s[40:43], s98 offen offset:{512*n} sc1", "C1")
        a("s_mov_b64 exec, -1")
    def hidtouch():
        a("s_mul_i32 s98, s27, 27648"); a("s_add_u32 s98, s98, s58"); a(f"s_add_u32 s98, s98, {G_HID}"); a("s_mul_i32 s99, s28, 6912"); a("s_add_u32 s98, s98, s99")
        a("s_bfm_b64 exec, 54, 0"); a.vmem("buffer_load_dword v4, v3, s[40:43], s98 offen"); a("s_mov_b64 exec, -1")
    ldsmall()
    a.bgq += [lambda q=q: ldres(q) for q in range(3)] + [ldb1, ldc1] + [lambda i=i: w1dma(i) for i in range(24)]
    QA = 32
    def qreads(s):
        j, p = divmod(s, 4)
        return [lambda t=t: a.ds(f"ds_read_b128 {R(BF + (s%3)*12 + t*4, 4)}, v{vTQ[p] if t < 2 else vTQ2[p]} offset:{j*10240 + (t&1)*1024}", f"Q{s}") for t in range(3)]
    for f in qreads(0) + qreads(1): f()
    a(f"s_mov_b32 s56, {F1}")
    QSTOP = P("QSTOP", 16)
    for s in range(20):
        j, p = divmod(s, 4)
        if s == 18: a.wait(lg="CQW"); a("s_barrier")
        a.wait(lg=f"Q{s}")
        mf = []
        for t in range(3):
            b = BF + (s%3)*12 + t*4
            for tt in range(2): mf.append(MF(QA + (tt*3+t)*4, b, xf(tt, s), s == 0))
            if p == 0: mf.append(MF(CSQ, b, OH + 4*t, s == 0 and t == 0))
        front = qreads(s+2) if s < 18 else []
        side = []
        if s < QSTOP: side += [lambda: a.bg(1)]*P("QBG", 1)
        if s == 17:
            side.append(lambda: a.vmem("buffer_load_dword v16, v17, s[40:43], s56 offen sc1", "POLL1"))
            side += ["s_lshl_b32 s3, s28, 9", f"s_add_u32 s3, s3, {CSX}", "v_add_u32 v27, s3, v26"]
            side.append(lambda: (a("s_mov_b64 exec, s[66:67]"), a.ds(f"ds_write_b128 v27, {R(CSQ, 4)}", "CQW"), a("s_mov_b64 exec, -1")))
        if s == 18:
            side += [f"v_add_u32 v30, {CSX}, v23"]
            for w, base in ((0, 56), (1, 68), (2, 96)):
                for t in range(3): side.append(lambda w=w, t=t, base=base: a.ds(f"ds_read_b128 {R(base + 4*t, 4)}, v30 offset:{512*w + 64*t}", "CQR"))
        if s == 19:
            side.append(lambda: a.wait(lg="CQR"))
            for x in range(12): side.append(f"v_add_f32 v{56+x}, v{56+x}, v{68+x}")
            for t in range(3): side.append(lambda t=t: a.ds(f"ds_read_b128 {R(68 + 4*t, 4)}, v30 offset:{1536 + 64*t}", "CQR"))
        a.interleave(mf, side, front)
    a.stamp("qend")
    a.wait(vm="POLL1")
    a("s_mov_b32 s78, 0")
    a("L_h1p:")
    a("v_and_b32 v28, 0xfffffff8, v16"); a("v_cmp_ne_u32 vcc, s76, v28")
    a("s_cbranch_vccz L_h1ok")
    a("s_add_u32 s78, s78, 1"); a(f"s_cmp_ge_u32 s78, {POLLMAX}"); a("s_cbranch_scc1 L_h1ok")
    a("buffer_load_dword v16, v17, s[40:43], s56 offen sc1"); a("s_waitcnt vmcnt(0)")
    a("s_branch L_h1p")
    a("L_h1ok:")
    a.stamp("h1ok")
    a.vm = []
    a("v_cmp_ne_u32 vcc, s77, v16"); a("s_and_b64 vcc, vcc, s[88:89]"); a("s_cselect_b32 s79, 0, 1")
    if os.environ.get("FORCESLOW"): a("s_mov_b32 s79, 0")
    P0 = A0
    a("s_lshl_b32 s3, s27, 16"); a(f"s_add_u32 s3, s3, {PART}")
    for r_ in range(16):
        if "p16" in OPT: a.vmem(f"buffer_load_dwordx2 {R(P0 + 4*r_, 2)}, v9, s[40:43], s3 offen sc1", f"P{r_}")
        else: a.vmem(f"buffer_load_dwordx4 {R(P0 + 4*r_, 4)}, v9, s[40:43], s3 offen sc1", f"P{r_}")
        a("s_add_u32 s3, s3, 4096")
    a.bgq += [lambda i=i: w1tail(i) for i in range(11)]
    for x in range(0, 12, 2): a(f"v_pk_add_f32 v[{56+x}:{57+x}], v[{56+x}:{57+x}], v[{96+x}:{97+x}]")
    a.wait(lg="all")
    for x in range(0, 12, 2): a(f"v_pk_add_f32 v[{56+x}:{57+x}], v[{56+x}:{57+x}], v[{68+x}:{69+x}]")
    PQR = 96
    EBG = P("EBG", 2)
    for tt in range(2):
        for t in range(3):
            b_ = QA + (tt*3+t)*4
            for h in range(2):
                a(f"v_pk_mul_f32 v[{TP+2*h}:{TP+2*h+1}], v[{56+4*t+2*h}:{57+4*t+2*h}], v[{MT}:{MT+1}] op_sel:[0,{tt}] op_sel_hi:[1,{tt}]")
            for h in range(2):
                x = b_ + 2*h
                a(f"v_pk_fma_f32 v[{x}:{x+1}], v[{x}:{x+1}], v[{RT}:{RT+1}], v[{TP+2*h}:{TP+2*h+1}] op_sel:[0,{tt},0] op_sel_hi:[1,{tt},1] neg_lo:[0,0,1] neg_hi:[0,0,1]")
            phi4(a, b_, TP)
            for h in range(2):
                d = f"v{PQR + tt*6 + t*2 + h}"
                a(f"v_cvt_pk_bf16_f32 {d}, v{QA + (tt*3+t)*4 + 2*h}, v{QA + (tt*3+t)*4 + 2*h + 1}")
                if t == 2: a(f"v_cndmask_b32 {d}, 0, {d}, s[90:91]")
            a.bg(EBG)
    OSC = SCR
    TA = 56
    for s_ in range(12):
        src = T2R + s_//2
        if s_ & 1: a(f"v_lshrrev_b32 v{TA+s_}, 16, v{src}")
        else: a(f"v_and_b32 v{TA+s_}, 0xffff, v{src}")
        a(f"v_add_u32 v{TA+s_}, {OSC}, v{TA+s_}")
    for r_ in range(16):
        if r_ % 4 == 0: a.wait(vm=f"P{r_+3}")
        if "p16" in OPT:
            b_ = 32 if r_ == 0 else 36
            for e in range(2): a(f"v_accvgpr_read_b32 v{40+e}, {R(P0+4*r_+e)}")
            for e in range(2): a(f"v_lshlrev_b32 v{b_+2*e}, 16, v{40+e}"); a(f"v_and_b32 v{b_+2*e+1}, 0xffff0000, v{40+e}")
        else:
            for e in range(4): a(f"v_accvgpr_read_b32 v{(32 if r_ == 0 else 36)+e}, {R(P0+4*r_+e)}")
        if r_:
            for e in (0, 2): a(f"v_pk_add_f32 v[{32+e}:{33+e}], v[{32+e}:{33+e}], v[{36+e}:{37+e}]")
        if r_ % 4 == 3: a.bg(EBG)
    a("v_cvt_pk_bf16_f32 v18, v32, v33"); a("v_cvt_pk_bf16_f32 v19, v34, v35")
    a("v_cmp_gt_u32 vcc, 210, v0")
    a("v_cndmask_b32 v18, 0, v18, vcc"); a("v_cndmask_b32 v19, 0, v19, vcc")
    a("v_lshlrev_b32 v27, 3, v0"); a(f"v_add_u32 v27, {OSC}, v27")
    a("ds_write_b64 v27, v[18:19]")
    a("s_waitcnt lgkmcnt(0)")
    a("s_barrier")
    a.stamp("b9")
    KF = A0 + 64
    for E in range(4):
        for ta in range(3): a(f"ds_read_b64 {R(KF + 8*E + 2*ta, 2)}, v{TA + 3*E + ta}")
    a("s_mul_i32 s3, s28, 40960"); a("s_mul_i32 s56, s27, 1280"); a("s_add_u32 s3, s3, s56"); a("s_add_u32 s3, s3, s58")
    a("v_lshlrev_b32 v27, 2, v10"); a("v_lshl_add_u32 v27, v11, 3, v27")
    a("v_cndmask_b32 v27, v2, v27, s[90:91]")
    a("s_waitcnt lgkmcnt(0)")
    D = 32
    for tt in range(2):
        for E in (3, 0, 1, 2):
            d = R(D + (tt*4+E)*4, 4)
            a(f"v_mfma_f32_16x16x32_bf16 {d}, {R(KF + 8*E, 4)}, {R(PQR + 6*tt, 4)}, 0")
    for tt in range(2):
        for E in (3, 0, 1, 2):
            d = R(D + (tt*4+E)*4, 4)
            a(f"v_mfma_f32_16x16x16_bf16 {d}, {R(KF + 8*E + 4, 2)}, {R(PQR + 6*tt + 4, 2)}, {d}")
    for tt in range(2):
        z = D + (tt*4+3)*4
        a(f"v_add_f32 v20, s61, v{z}"); a(f"v_add_f32 v21, s61, v{z+1}")
        a("v_rcp_f32 v20, v20"); a("v_rcp_f32 v21, v21")
        a("v_cndmask_b32 v22, v21, v20, s[92:93]"); a("v_cndmask_b32 v28, v21, v20, s[90:91]")
        ob = 64 + 8*tt
        for E, rc in ((0, 22), (1, 28), (2, 21)):
            d = D + (tt*4+E)*4
            for e in range(4): a(f"v_mul_f32 v{d+e}, v{d+e}, v{rc}")
            a(f"v_cvt_pk_bf16_f32 v{ob + 2*E}, v{d}, v{d+1}"); a(f"v_cvt_pk_bf16_f32 v{ob + 2*E + 1}, v{d+2}, v{d+3}")
        a.vmem(f"buffer_store_dwordx4 {R(ob, 4)}, v8, s[40:43], s3 offen{HS}", "ST")
        a.vmem(f"buffer_store_dwordx2 {R(ob + 4, 2)}, v27, s[40:43], s3 offen offset:1024{HS}", "ST")
        a("s_add_u32 s3, s3, 20480")

    def hop(n, before, after_pub, post=0, touch=None, post2=0):
        before()
        a(f"s_add_u32 s59, s58, {G_FL + 128*n}")
        a("s_lshl_b32 s3, s27, 2"); a("s_add_u32 s3, s3, s59")
        a.bg(post)
        a.wait(vm="ST")
        if touch and "notouch" not in OPT: touch()
        a("s_barrier")
        a.stamp(f"hop{n}a")
        a("s_cmp_lg_u32 s28, 0"); a(f"s_cbranch_scc1 L_g{n}np")
        a("s_mov_b64 exec, 1")
        a("s_cmp_eq_u32 s79, 0"); a(f"s_cbranch_scc1 L_g{n}slow")
        a("buffer_store_dword v6, v5, s[40:43], s3 offen")
        a(f"s_branch L_g{n}pd")
        a(f"L_g{n}slow:")
        if FENCE: a("buffer_wbl2 sc1"); a("s_waitcnt vmcnt(0)")
        a("buffer_store_dword v6, v5, s[40:43], s3 offen sc1")
        a(f"L_g{n}pd:")
        a("s_mov_b64 exec, -1")
        a(f"L_g{n}np:")
        after_pub()
        a.bg(post2)
        a("s_cmp_lg_u32 s28, 0"); a(f"s_cbranch_scc1 L_g{n}j")
        a("s_mov_b32 s78, 0")
        a(f"L_g{n}p:")
        a("buffer_load_dword v27, v10, s[40:43], s59 offen sc1")
        a("s_add_u32 s78, s78, 1")
        a("s_waitcnt vmcnt(0)")
        a("v_cmp_ne_u32 vcc, s76, v27")
        a(f"s_cmp_ge_u32 s78, {POLLMAX}"); a(f"s_cbranch_scc1 L_g{n}x")
        a(f"s_cbranch_vccnz L_g{n}p")
        a(f"L_g{n}x:")
        if FENCE:
            a("s_cmp_lg_u32 s79, 0"); a(f"s_cbranch_scc1 L_g{n}j")
            a("buffer_inv sc1"); a("s_waitcnt vmcnt(0)")
        a(f"L_g{n}j:")
        a("s_barrier")
        a.stamp(f"hop{n}b")
    def a_off(NK, goff):
        for m in range(4):
            a(f"s_add_u32 s3, s28, {m}"); a("s_and_b32 s3, s3, 3"); a("s_lshl_b32 s57, s48, 2"); a("s_add_u32 s3, s3, s57")
            a(f"s_mul_i32 s3, s3, {NK}"); a("s_add_u32 s3, s3, s28"); a("s_lshl_b32 s3, s3, 10"); a("s_add_u32 s3, s3, s58"); a(f"s_add_u32 s{80+m}, s3, {goff}")
    def ctouch(lab, nl):
        def f():
            a("s_lshl_b32 s98, s27, 2"); a("s_add_u32 s98, s98, s28"); a(f"s_mul_i32 s98, s98, {128*nl}"); a(f"s_add_u32 s98, s98, {lab}-L_pc")
            a("v_add_u32 v31, s98, v3"); a(f"s_bfm_b64 exec, {nl}, 0")
            a.vmem("global_load_dword v4, v31, s[30:31]"); a("s_mov_b64 exec, -1")
        return f
    if "noct" not in OPT: a.bgq.insert(0, ctouch("L_cS4", 2))
    def flush_wo():
        while any(True for _ in [0]) and a.bgq and len(a.bgq) > 24 + 11: a.bg(1)
    def bef0():
        a_off(20, G_O)
        a("s_mul_i32 s99, s28, 40960"); a("s_mul_i32 s56, s27, 1280"); a("s_add_u32 s99, s99, s56"); a("s_add_u32 s99, s99, s58")
        a("v_mul_u32_u24 v28, 20480, v11"); a("v_lshl_add_u32 v28, v10, 5, v28")
    def tch0():
        a("s_mov_b64 exec, 0x03ff03ff"); a.vmem("buffer_load_dword v4, v28, s[40:43], s99 offen sc1"); a("s_mov_b64 exec, -1")
    hop(0, bef0, lambda: None, post=0, touch=tch0, post2=P("POST0", 10))
    flush_wo()
    ACC = 32 ; FA3 = A0
    for n in range(5):
        for m in range(4):
            a.vmem(f"buffer_load_dwordx4 {R(FA3 + (n*4+m)*4, 4)}, v8, s[40:43], s{80+m} offen sc1", f"A{n}")
            a(f"s_add_u32 s{80+m}, s{80+m}, 4096")
    if "sc1hid" not in OPT: a.bgq.insert(0, hidtouch)
    RED = 102400
    def red_addr():
        for m in range(1, 4):
            a(f"s_add_u32 s3, s28, {m}"); a("s_and_b32 s3, s3, 3"); a("s_mul_i32 s3, s3, 15360"); a(f"s_add_u32 s3, s3, {RED}")
            a(f"v_add_u32 v{16+m}, s3, v8")
        a("s_mul_i32 s3, s28, 15360"); a(f"s_add_u32 s3, s3, {RED}"); a("v_add_u32 v16, s3, v8")
    def init_acc(srcs):
        for t in range(5):
            for e in range(4):
                for q, src0 in enumerate(srcs):
                    src = src0 + 2*t + (e >> 1); d = ACC+4*t+e if q == 0 else 27
                    if e & 1: a(f"v_and_b32 v{d}, 0xffff0000, v{src}")
                    else: a(f"v_lshlrev_b32 v{d}, 16, v{src}")
                    if q: a(f"v_add_f32 v{ACC+4*t+e}, v{ACC+4*t+e}, v27")
    def last_step(mfn):
        order = [(m, t) for m in (1, 2, 3, 0) for t in range(5)]
        for i, (m, t) in enumerate(order):
            a(mfn(m, t))
            if i >= 5:
                m2, t2 = order[i-5]
                a(f"ds_write_b128 v{16+m2}, {R(ACC + (m2*5+t2)*4, 4)} offset:{(m2-1)*5120 + t2*1024}")
    red_addr()
    if "RES" in a.vm: a.wait(vm="RES")
    init_acc([RES])
    S3BG = P("S3BG", 3)
    for n in range(5):
        a.wait(vm=f"A{n}")
        if n == 4:
            last_step(lambda m, t: MF(ACC + (m*5+t)*4, FB3 + (n*5+t)*4, FA3 + (n*4+m)*4, False)); a.bg(S3BG)
        else:
            mf = [MF(ACC + (m*5+t)*4, FB3 + (n*5+t)*4, FA3 + (n*4+m)*4, n == 0 and m > 0) for m in range(4) for t in range(5)]
            a.interleave(mf, [lambda: a.bg(1)]*S3BG)
    a.stamp("s3end")
    a("L_cS4:")
    if "plainhid" in OPT and P("HTP", 0) == 0: hidtouch()
    HF = A0; BF = A0 + 160
    NA = P("NA", 4); BS = 4*max(NA, 7 - NA)
    if NA == 4:
        slots = [156 + 4*i for i in range(16)] + [A0 + 192 + 4*i for i in range(3)] + [A0 + 220 + 4*i for i in range(9)] + [HF + 4*i for i in range(40)] + [BF + 4*i for i in range(2)]
        NEARLY = 28
        arA = [A0 + 168 + 4*i for i in range(6)] + [A0 + 204 + 4*i for i in range(4)]
    elif NA == 7:
        for x in range(14): a(f"v_accvgpr_mov_b32 {R(A0 + 240 + x)}, {R(B1A + x)}")
        B1A = A0 + 240
        slots = [156 + 4*i for i in range(16)] + [A0 + 216 + 4*i for i in range(6)] + [HF + 4*i for i in range(40)] + [BF + 4*i for i in range(8)]
        NEARLY = 22
        arA = [A0 + 192 + 4*i for i in range(6)] + [A0 + 240 + 4*i for i in range(4)]
    else:
        for x in range(14): a(f"v_accvgpr_mov_b32 {R(A0 + 240 + x)}, {R(B1A + x)}")
        B1A = A0 + 240
        slots = [156 + 4*i for i in range(16)] + [A0 + 208 + 4*i for i in range(8)] + [HF + 4*i for i in range(40)] + [BF + 4*i for i in range(6)]
        NEARLY = 24
        arA = [A0 + 184 + 4*i for i in range(6)] + [A0 + 240 + 4*i for i in range(4)]
    def fb(n, t): return slots[n*5 + t]
    a("s_mul_i32 s3, s49, 54"); a("s_add_u32 s3, s3, s28"); a("s_mul_i32 s54, s3, 5120"); a(f"s_add_u32 s54, s54, {W2P}")
    def ldw2(n, t):
        if n == 13 and t == 0:
            a("s_cmp_ge_u32 s28, 2"); a("s_cselect_b32 s98, 0x40000000, 0"); a("s_add_u32 s54, s54, s98")
        a.vmem(f"buffer_load_dwordx4 {R(fb(n, t), 4)}, v{8 if t < 4 else 12}, s[40:43], s54 offen offset:{1024*(t&3)} sc1", f"W2_{n}")
        if t == 4: a("s_add_u32 s54, s54, 20480")
    w2q = [(n, t) for n in range(14) for t in range(5)]
    nw1left = len(a.bgq)
    def w2bg():
        ldw2(*w2q.pop(0))
    a.bgq += [w2bg]*NEARLY
    def reduce_epi(which, BIA=None, nbg=0):
        a.bg(2*nbg)
        a("s_waitcnt lgkmcnt(0)")
        a("s_barrier")
        for t in range(5):
            for m in range(1, 4): a(f"ds_read_b128 {R(ACC + (m*5+t)*4, 4)}, v16 offset:{(m-1)*5120 + t*1024}")
        for t in range(5):
            a(f"s_waitcnt lgkmcnt({12 - 3*t})")
            for e in (0, 2):
                x0 = ACC + 4*t + e
                a(f"v_pk_add_f32 v[{x0+20}:{x0+21}], v[{x0+20}:{x0+21}], v[{x0+40}:{x0+41}]"); a(f"v_pk_add_f32 v[{x0}:{x0+1}], v[{x0}:{x0+1}], v[{x0+60}:{x0+61}]")
            for e in (0, 2):
                x0 = ACC + 4*t + e
                a(f"v_pk_add_f32 v[{x0}:{x0+1}], v[{x0}:{x0+1}], v[{x0+20}:{x0+21}]")
            for h in range(2): a(f"v_cvt_pk_bf16_f32 v{RES+2*t+h}, v{ACC+4*t+2*h}, v{ACC+4*t+2*h+1}")
            if which == 3:
                if t == 1: a.vmem(f"buffer_store_dwordx4 {R(RES, 4)}, v8, s[40:43], s57 offen{HS}")
                if t == 3: a.vmem(f"buffer_store_dwordx4 {R(RES+4, 4)}, v8, s[40:43], s57 offen offset:1024{HS}")
                if t == 4: a.vmem(f"buffer_store_dwordx2 {R(RES+8, 2)}, v13, s[40:43], s57 offen offset:2048{HS}")
    a("s_mul_i32 s57, s50, 20480"); a("s_mul_i32 s3, s49, 2560"); a("s_add_u32 s57, s57, s3"); a("s_add_u32 s57, s57, s58"); a(f"s_add_u32 s57, s57, {G_H}")
    reduce_epi(3, nbg=P("R3BG", 3))
    a(f"v_pk_add_f32 v[28:29], v[{ACC}:{ACC+1}], v[{ACC+2}:{ACC+3}]"); a(f"v_pk_mul_f32 v[30:31], v[{ACC}:{ACC+1}], v[{ACC}:{ACC+1}]"); a(f"v_pk_fma_f32 v[30:31], v[{ACC+2}:{ACC+3}], v[{ACC+2}:{ACC+3}], v[30:31]")
    for x in range(4, 20, 2):
        a(f"v_pk_add_f32 v[28:29], v[28:29], v[{ACC+x}:{ACC+x+1}]"); a(f"v_pk_fma_f32 v[30:31], v[{ACC+x}:{ACC+x+1}], v[{ACC+x}:{ACC+x+1}], v[30:31]")
    a("v_add_f32 v20, v28, v29"); a("v_add_f32 v21, v30, v31")
    def red_g(regs, tmp):
        for r_ in regs:
            a(f"v_mov_b32 {tmp}, {r_}"); a(f"v_permlane32_swap_b32 {r_}, {tmp}"); a(f"v_add_f32 {r_}, {r_}, {tmp}")
            a(f"v_mov_b32 {tmp}, {r_}"); a(f"v_permlane16_swap_b32 {r_}, {tmp}"); a(f"v_add_f32 {r_}, {r_}, {tmp}")
    red_g(["v20", "v21"], "v22")
    a("v_lshlrev_b32 v22, 1, v10")
    a("s_lshl_b32 s57, s50, 10"); a("s_lshl_b32 s3, s49, 7"); a("s_add_u32 s57, s57, s3"); a("s_add_u32 s57, s57, s58"); a(f"s_add_u32 s57, s57, {G_ST}")
    a.vmem(f"buffer_store_dwordx2 v[20:21], v22, s[40:43], s57 offen{HS}", "ST")
    CS = 128; CSL = 144384
    def bef3():
        a("s_mul_i32 s3, s28, 40960"); a("s_add_u32 s3, s3, s58"); a(f"s_add_u32 s80, s3, {G_H}"); a("s_add_u32 s81, s80, 20480")
        a("s_lshl_b32 s82, s28, 11"); a("s_add_u32 s82, s82, s58"); a(f"s_add_u32 s82, s82, {G_ST}")
        a("v_lshlrev_b32 v19, 8, v11"); a("v_lshl_add_u32 v19, v10, 1, v19")
        a("v_add_u32 v16, 57344, v8"); a("v_add_u32 v17, 114688, v8")
        a(f"s_mul_i32 s3, s28, {11*1024}"); a(f"s_add_u32 s3, s3, {96*1024}"); a("v_add_u32 v18, s3, v8")
        for e in range(4):
            a(f"v_add_f32 v{C1R+e}, v{C1R+e}, v{C1R+4+e}"); a(f"v_add_f32 v{C1R+8+e}, v{C1R+8+e}, v{C1R+12+e}")
            a(f"v_add_f32 v{C1R+e}, v{C1R+e}, v{C1R+16+e}"); a(f"v_add_f32 v{C1R+e}, v{C1R+e}, v{C1R+8+e}")
        a("s_lshl_b32 s3, s28, 9"); a(f"s_add_u32 s3, s3, {CSL}"); a("v_add_u32 v29, s3, v26")
    def aft3():
        if "W1" in a.vm: a.wait(vm="W1")
        for i in range(11): a(f"ds_write_b128 v18, {R(W1T + 4*i, 4)} offset:{1024*i}")
        a("s_mov_b64 exec, s[66:67]"); a(f"ds_write_b128 v29, {R(C1R, 4)}"); a("s_mov_b64 exec, -1")
        a("s_waitcnt lgkmcnt(0)")
    left1 = max(0, len(a.bgq) - len([1 for x in a.bgq if x is w2bg]))
    print("w1 left at hop3:", left1, "w2 issued:", 70 - len(w2q), file=sys.stderr)
    def tch1():
        a("s_mul_i32 s99, s50, 20480"); a("s_mul_i32 s98, s49, 2560"); a("s_add_u32 s99, s99, s98"); a("s_add_u32 s99, s99, s58"); a(f"s_add_u32 s99, s99, {G_H}")
        a("s_mov_b64 exec, 0xfffff"); a.vmem("buffer_load_dword v4, v3, s[40:43], s99 offen sc1"); a("s_mov_b64 exec, -1")
    hop(1, bef3, aft3, post=left1, touch=tch1, post2=max(0, P("POST1", 6) - left1))
    def hf(tt, k): return HF + (k*2 + tt)*4
    def ldh(k):
        def one(tt):
            a.vmem(f"buffer_load_dwordx4 {R(hf(tt, k), 4)}, v8, s[40:43], s{80+tt} offen offset:{1024*(k&3)} sc1", f"H{k}")
            if (k & 3) == 3: a(f"s_add_u32 s{80+tt}, s{80+tt}, 4096")
        return [lambda tt=tt: one(tt) for tt in range(2)]
    PRE = P("PRE4", 6)
    for k in range(PRE):
        for f in ldh(k): f()
    for tt in range(2):
        for q in range(2):
            a.vmem(f"buffer_load_dwordx2 {R(88 + 4*tt + 2*q, 2)}, v19, s[40:43], s82 offen offset:{1024*tt + 128*q} sc1", "STAT")
    def breads(ps, k):
        ts = range(NA) if ps == 0 else range(NA, 7)
        return [lambda t=t: a.ds(f"ds_read_b128 {R(BF + (k&1)*BS + 4*(t - ts[0]), 4)}, v{[8, 16, 17][k >> 3]} offset:{(k & 7)*7168 + 1024*t}", f"BR{ps}_{k}") for t in ts]
    for f in breads(0, 0): f()
    vS = [20, 21]; vQ = [24, 25]
    a(f"v_add_u32 v18, {CSL}, v23")
    hq = list(range(PRE, 20))
    B1U = 220
    c1 = -2.0*LOG2E*0.7978845608028654
    c2 = c1*0.044715
    a(f"s_mov_b32 s60, {hx(c1)}"); a(f"s_mov_b32 s61, {hx(c2)}")
    a("s_mul_i32 s56, s28, 110592"); a("s_lshl_b32 s3, s53, 9"); a("s_add_u32 s56, s56, s3"); a("s_add_u32 s56, s56, s58"); a(f"s_add_u32 s56, s56, {G_HID}"); a("s_add_u32 s57, s56, 55296")
    for k in range(20):
        a.wait(vm=f"H{k}", lg=f"BR0_{k}")
        front = breads(0, k+1) if k < 19 else (breads(1, 0) if NA < 7 else [])
        side = []
        if NA == 7:
            if hq:
                for _ in range(P("HRATE", 2)):
                    if hq: side += ldh(hq.pop(0))
            else:
                side += [w2bg]*max(0, min(P("ABG", 2), len(w2q), NEARLY + 2*k - (70 - len(w2q))))
        elif hq:
            side += ldh(hq.pop(0))
            if not hq and "plainhid" in OPT and P("HTP", 0) == 1: side.append(hidtouch)
        else: side += [lambda: a.bg(1)]*P("ABG", 1)
        if 1 <= k < 8:
            kk = k - 1; tb = 96 if kk % 2 == 0 else 220
            side.append(lambda kk=kk: a.wait(lg=f"CG{kk}"))
            for e in range(4):
                side += [f"v_add_f32 v{CS+4*kk+e}, v{CS+4*kk+e}, v{tb+e}", f"v_add_f32 v{tb+4+e}, v{tb+4+e}, v{tb+8+e}", f"v_add_f32 v{CS+4*kk+e}, v{CS+4*kk+e}, v{tb+4+e}"]
        if k < 7:
            tb = 96 if k % 2 == 0 else 220
            for w in range(4): front.append(lambda w=w, k=k, tb=tb: a.ds(f"ds_read_b128 {R((CS + 4*k) if w == 0 else (tb - 4 + 4*w), 4)}, v18 offset:{512*w + 64*k}", f"CG{k}"))
        if k == PRE + 2:
            for tt in range(2):
                side.append(f"v_add_f32 v{vS[tt]}, v{88+4*tt}, v{90+4*tt}"); side.append(f"v_add_f32 v{vQ[tt]}, v{89+4*tt}, v{91+4*tt}")
            side.append(lambda: red_g([f"v{x}" for x in vS + vQ], "v22"))
        if k == PRE + 3:
            for tt in range(2):
                s_, q_ = f"v{vS[tt]}", f"v{vQ[tt]}"
                side += [f"v_mul_f32 {s_}, s63, {s_}", f"v_mul_f32 {q_}, s63, {q_}", f"v_fma_f32 {q_}, -{s_}, {s_}, {q_}", f"v_max_f32 {q_}, 0, {q_}",
                         f"v_add_f32 v22, s64, {q_}", f"v_fma_f32 {q_}, v22, s64, {q_}", f"v_rsq_f32 {q_}, {q_}", f"v_mul_f32 {s_}, {s_}, {q_}"]
            side += ["v_mov_b32 v252, s60", "v_mov_b32 v253, s60", "s_mov_b32 s96, s61", "s_mov_b32 s97, s61"]
        if k >= 12:
            x = 2*(k - 12)
            for y in (x, x + 1):
                if y < 14:
                    side += [f"v_accvgpr_read_b32 v27, {R(B1A + y)}", f"v_lshlrev_b32 v{B1U+2*y}, 16, v27", f"v_and_b32 v{B1U+2*y+1}, 0xffff0000, v27"]
        mf = [MF(ACC + (tt*7+t)*4, BF + (k&1)*BS + 4*t, hf(tt, k), k == 0) for t in range(NA) for tt in range(2)]
        a.interleave(mf, side, front)
    a.stamp("s4A")
    if "noct" not in OPT: ctouch("L_cS5", 1)()
    PK = 88
    def gelu(tt, t, pk=False):
        L = []
        if pk:
            b_ = ACC + (tt*7+t)*4
            pr = lambda x: f"v[{x}:{x+1}]"
            for h in (0, 2): L.append(f"v_pk_fma_f32 {pr(248+h)}, v[20:21], {pr(CS+4*t+h)}, {pr(B1U+4*t+h)} op_sel:[{tt},0,0] op_sel_hi:[{tt},1,1] neg_lo:[1,0,0] neg_hi:[1,0,0]")
            for h in (0, 2): L.append(f"v_pk_fma_f32 {pr(b_+h)}, {pr(b_+h)}, v[24:25], {pr(248+h)} op_sel:[0,{tt},0] op_sel_hi:[1,{tt},1]")
            for h in (0, 2): L.append(f"v_pk_mul_f32 {pr(248+h)}, {pr(b_+h)}, {pr(b_+h)}")
            for h in (0, 2): L.append(f"v_pk_fma_f32 {pr(248+h)}, {pr(248+h)}, s[96:97], v[252:253]")
            for h in (0, 2): L.append(f"v_pk_mul_f32 {pr(248+h)}, {pr(248+h)}, {pr(b_+h)}")
            for e in range(4): L.append(f"v_exp_f32 v{248+e}, v{248+e}")
            for h in (0, 2): L.append(f"v_pk_add_f32 {pr(248+h)}, {pr(248+h)}, 1.0 op_sel_hi:[1,0]")
            for e in range(4): L.append(f"v_rcp_f32 v{248+e}, v{248+e}")
            for h in (0, 2): L.append(f"v_pk_mul_f32 {pr(b_+h)}, {pr(b_+h)}, {pr(248+h)}")
        else:
            for e in range(4):
                v_ = f"v{ACC + (tt*7+t)*4 + e}"; ta = f"v{248+e}"
                L += [f"v_fma_f32 {ta}, -v{vS[tt]}, v{CS+4*t+e}, v{B1U+4*t+e}", f"v_fma_f32 {v_}, {v_}, v{vQ[tt]}, {ta}", f"v_mul_f32 {ta}, {v_}, {v_}",
                      f"v_fma_f32 {ta}, {ta}, s61, v252", f"v_mul_f32 {ta}, {ta}, {v_}", f"v_exp_f32 {ta}, {ta}"]
            for e in range(4):
                ta = f"v{248+e}"; L += [f"v_add_f32 {ta}, 1.0, {ta}"]
            for e in range(4):
                ta = f"v{248+e}"; L += [f"v_rcp_f32 {ta}, {ta}"]
            for e in range(4):
                v_ = f"v{ACC + (tt*7+t)*4 + e}"; L.append(f"v_mul_f32 {v_}, {v_}, v{248+e}")
        for h in range(2):
            x0 = ACC + (tt*7+t)*4 + 2*h
            L.append(f"v_cvt_pk_bf16_f32 v{PK + tt*14 + 2*t + h}, v{x0}, v{x0+1}")
        if t & 1: L.append(lambda: a.vmem(f"buffer_store_dwordx4 {R(PK + tt*14 + 2*(t-1), 4)}, v8, s[40:43], s{56+tt} offen offset:{512*(t-1)}{HS2}", "ST" if t > 3 else "ST01"))
        if t == 6: L.append(lambda: a.vmem(f"buffer_store_dwordx2 {R(PK + tt*14 + 12, 2)}, v13, s[40:43], s{56+tt} offen offset:3072{HS2}", "ST"))
        return L
    gl = []
    for p in range(NA//2 if NA < 7 else 0):
        for tt in range(2): gl += gelu(tt, 2*p, "pkB" in OPT) + gelu(tt, 2*p+1, "pkB" in OPT)
    a.bgq = []
    W2RATE = P("W2RATE", 2)
    for k in range(20 if NA < 7 else 0):
        a.wait(lg=f"BR1_{k}")
        front = breads(1, k+1) if k < 19 else []
        q = (len(gl) + 19 - k)//(20 - k) if k > 0 else 0
        side = gl[:q]; gl = gl[q:]
        nin = max(0, min(W2RATE, len(w2q), NEARLY + 2*k - (70 - len(w2q))))
        for i_ in range(nin): side.insert((i_ + 1)*len(side)//(nin + 1), w2bg)
        mf = [MF(ACC + (tt*7+t)*4, BF + (k&1)*BS + 4*(t-NA), hf(tt, k), k == 0) for t in range(NA, 7) for tt in range(2)]
        a.interleave(mf, side, front)
    a.stamp("s4B")
    a("L_cS5:")
    W2EPI = P("W2EPI", 2)
    seq = [(0, 4), (0, 5), (1, 4), (1, 5), (0, 6), (1, 6)] if NA == 4 else [(0, 6), (1, 6)]
    if NA == 7: seq = [(tt, 2*p + q) for p in range(3) for tt in range(2) for q in range(2)] + [(0, 6), (1, 6)]
    for i_, (tt, t) in enumerate(seq):
        L = gelu(tt, t, True)
        if i_ == P("HT", 99):
            a("v_and_b32 v28, 1, v11"); a("v_mul_u32_u24 v28, 55296, v28"); a("v_lshl_add_u32 v28, v10, 5, v28")
            a.wait(vm="ST01")
            a("s_bfm_b64 exec, 32, 0"); a.vmem("buffer_load_dword v4, v28, s[40:43], s56 offen sc1"); a("s_mov_b64 exec, -1")
        for j_, x in enumerate(L):
            a.run(x)
            if i_ < P("W2STOP", 4) and j_ in (6, 16)[:W2EPI] and w2q: ldw2(*w2q.pop(0))
    BIA = 126
    def bef4():
        srd(a, 32, 20, 2621440); srd(a, 36, 18, 1280)
        a_off(54, G_HID)
        a("v_lshlrev_b32 v28, 3, v11"); a("s_mul_i32 s3, s49, 160")
        a.vmem(f"buffer_load_dwordx4 {R(BIA, 4)}, v23, s[36:39], s3 offen")
        a.vmem(f"buffer_load_dwordx4 {R(BIA+4, 4)}, v23, s[36:39], s3 offen offset:64")
        a.vmem(f"buffer_load_dwordx2 {R(BIA+8, 2)}, v28, s[36:39], s3 offen offset:128", "BIA")
    npost = min(P("POST2", 4), len(w2q))
    a.bgq = [lambda x=x: ldw2(*x) for x in w2q[:npost]]; w2q = w2q[npost:]
    print("w2 left after hop4:", len(w2q), file=sys.stderr)
    def tch2():
        a("v_lshrrev_b32 v28, 5, v1"); a("v_mul_u32_u24 v28, 55296, v28"); a("v_and_b32 v29, 31, v1"); a("v_lshl_add_u32 v28, v29, 7, v28")
        a("s_mov_b32 exec_lo, 0x0fffffff"); a("s_mov_b32 exec_hi, 0x0fffffff"); a.vmem("buffer_load_dword v4, v28, s[40:43], s56 offen sc1"); a("s_mov_b64 exec, -1")
    hop(2, bef4, lambda: None, post=0, touch=tch2, post2=npost)
    ar = [136 + 4*i for i in range(5)] + [220 + 4*i for i in range(9)] + arA
    NR = 6
    def fa(n, m): return ar[(n % NR)*4 + m]
    def lda5(n):
        def one(m):
            if n == 13 and m == 0:
                a("s_cmp_ge_u32 s28, 2"); a("s_cselect_b32 s3, 0x40000000, 0")
                for q in range(4): a(f"s_add_u32 s{80+q}, s{80+q}, s3")
            a.vmem(f"buffer_load_dwordx4 {R(fa(n, m), 4)}, v8, s[40:43], s{80+m} offen sc1", f"A5_{n}")
            a(f"s_add_u32 s{80+m}, s{80+m}, 4096")
        return [lambda m=m: one(m) for m in range(4)]
    PRE5 = P("PRE5", 3)
    def need_w2(n):
        L = []
        while w2q and w2q[0][0] <= n:
            x = w2q.pop(0); L.append(lambda x=x: ldw2(*x))
        return L
    for n in range(PRE5):
        for f in need_w2(n) + lda5(n): f()
    def ldbia():
        a("v_lshlrev_b32 v28, 3, v11"); a("s_mul_i32 s3, s49, 160")
        a.vmem(f"buffer_load_dwordx4 {R(BIA, 4)}, v23, s[36:39], s3 offen")
        a.vmem(f"buffer_load_dwordx4 {R(BIA+4, 4)}, v23, s[36:39], s3 offen offset:64")
        a.vmem(f"buffer_load_dwordx2 {R(BIA+8, 2)}, v28, s[36:39], s3 offen offset:128")
    red_addr(); a.wait(vm="BIA"); init_acc([RES, BIA])
    nxt = PRE5
    for n in range(14):
        a.wait(vm=f"A5_{n}")
        side = []; cnt = 0
        while nxt < 14 and nxt <= n + NR - 1 and cnt < 2:
            side += need_w2(nxt) + lda5(nxt); nxt += 1; cnt += 1
        if n == 13:
            last_step(lambda m, t: MF(ACC + (m*5+t)*4, fb(n, t), fa(n, m), False))
        else:
            mf = [MF(ACC + (m*5+t)*4, fb(n, t), fa(n, m), n == 0 and m > 0) for m in range(4) for t in range(5)]
            a.interleave(mf, side)
    a.stamp("s5end")
    reduce_epi(5, BIA)
    a(f"buffer_store_dwordx4 {R(RES, 4)}, v14, s[32:35], s51 offen")
    a(f"buffer_store_dwordx4 {R(RES+4, 4)}, v14, s[32:35], s51 offen offset:64")
    a(f"buffer_store_dwordx2 {R(RES+8, 2)}, v15, s[32:35], s51 offen offset:128")
    a("s_or_b32 s3, s2, s28"); a("s_cmp_lg_u32 s3, 0"); a("s_cbranch_scc1 L_notagclr")
    a("global_store_dword v5, v5, s[22:23] sc1")
    a("L_notagclr:")
    a.stamp("stored")
    if STAMP:
        a("s_waitcnt vmcnt(0)")
        a.stamp("end")
        a("s_memrealtime s[100:101]"); a("s_waitcnt lgkmcnt(0)"); a("v_writelane_b32 v7, s100, 31")
        a("v_writelane_b32 v7, s79, 30")
        a("s_lshl_b32 s3, s2, 2"); a("s_add_u32 s3, s3, s28"); a("s_lshl_b32 s3, s3, 8"); a(f"s_add_u32 s3, s3, {STB}")
        a("v_lshlrev_b32 v27, 2, v1"); a("v_add_u32 v27, s3, v27")
        a("global_store_dword v27, v7, s[24:25]")
        if os.environ.get("DELAY"):
            di = os.environ["DELAY"]
            a(f"s_cmp_lg_u32 s2, {P('DWG', 8)}"); a("s_cbranch_scc1 L_end"); a("s_cmp_lg_u32 s28, 0"); a("s_cbranch_scc1 L_end")
            clk = "s_memrealtime" if di == "rt" else "s_memtime"
            a(f"{clk} s[100:101]"); a("s_waitcnt lgkmcnt(0)")
            if di == "rt":
                a("s_sub_u32 s3, s100, s76")
            else:
                a(f"v_readlane_b32 s3, v7, {di}"); a("v_readlane_b32 s56, v7, 0"); a("s_nop 3"); a("s_sub_u32 s3, s3, s56")
            a("s_lshl_b32 s3, s3, 2"); a("s_min_u32 s3, s3, 0x100000"); a("s_mov_b32 s57, s100")
            a("L_dly:")
            a(f"{clk} s[100:101]"); a("s_waitcnt lgkmcnt(0)"); a("s_sub_u32 s56, s100, s57"); a("s_cmp_lt_u32 s56, s3"); a("s_cbranch_scc1 L_dly")
        a.a.raw("; STAMPS " + " ".join(a.names))
    a("L_end:")
    a("s_endpgm")
    return a.a

def main(out):
    hdr = open("sequential_preLN__linear_attn_block__mixer_channel_mlp__prompt.s.ref").read().split("\n")
    hdr = [l for l in hdr if l.startswith(";") and "@launch" not in l]
    hdr.append("; @launch grid=(256,1,1) block=(256,1,1) lds=163840")
    a = gen()
    pre = '.amdgcn_target "amdgcn-amd-amdhsa--gfx950"\n.text\n'
    T1, T2 = build_tables()
    a.raw(".p2align 6\nT1_tab:")
    a.raw(".short " + ",".join(map(str, T1)))
    a.raw("T2_tab:")
    for row in T2: a.raw(".short " + ",".join(map(str, row)))
    a.raw(".fill 2048, 4, 0")
    a.raw('.section .rodata,"a"\n.p2align 6')
    a.raw(f""".amdhsa_kernel {NAME}
  .amdhsa_next_free_vgpr 512
  .amdhsa_next_free_sgpr 102
  .amdhsa_accum_offset 256
  .amdhsa_group_segment_fixed_size 0
  .amdhsa_kernarg_size 88
  .amdhsa_user_sgpr_count 2
  .amdhsa_user_sgpr_kernarg_segment_ptr 1
  .amdhsa_system_sgpr_workgroup_id_x 1
.end_amdhsa_kernel""")
    open(out, "w").write("\n".join(hdr) + "\n" + pre + a.finish())

if __name__ == "__main__":
    main(sys.argv[1])
```

```python
import sys, struct, os
from asmdsl import Asm, R, S
from gen1 import build_tables, PAIRS, f2u, hx, divmod_const, srd, LOG2E

NAME = "sequential_preLN__linear_attn_block__mixer_channel_mlp__prompt_kernel"
WOP = 0
W2P = WOP + 8*20*5*1024
W1P = W2P + 8*54*5*1024
C1P = W1P + 16*20*7*1024
WQKV = C1P + 320*512
PART = WQKV + 16*153600
GRP = PART + 256*4096
G_O = 0; G_H = 163840; G_ST = 327680; G_FL = 335872; G_HID = 336896; G_SZ = G_HID + 442368
FLG = GRP + 16*G_SZ
F1 = FLG; F1R = FLG + 8192; F0 = FLG + 10240; FU = FLG + 14336
WS_END = FLG + 20480
A0 = 256
STAMP = int(os.environ.get("STAMP", "0"))
STB = 32 << 20
POLLMAX = 1 << 15
OPT = set(os.environ.get("OPT", "").split(","))
def P(name, d): return int(os.environ.get(name, d))

class G:
    def __init__(self):
        self.a = Asm(); self.vm = []; self.lg = []; self.nst = 0; self.bgq = []; self.names = []
    def __call__(self, t): self.a(t)
    def vmem(self, text, tag=None): self.a(text); self.vm.append(tag)
    def ds(self, text, tag=None): self.a(text); self.lg.append(tag)
    def _n(self, lst, tag, cap):
        idx = max(i for i, t in enumerate(lst) if t == tag)
        return min(len(lst) - 1 - idx, cap)
    def wait(self, vm=None, lg=None):
        s = []
        if vm is not None: s.append(f"vmcnt({0 if vm == 'all' else self._n(self.vm, vm, 63)})")
        if lg is not None: s.append(f"lgkmcnt({0 if lg == 'all' else self._n(self.lg, lg, 15)})")
        self.a("s_waitcnt " + " ".join(s))
        if vm == 'all': self.vm = []
        if lg == 'all': self.lg = []
    def stamp(self, name=""):
        if STAMP != 1: return
        i = self.nst; self.nst += 1; self.names.append(name)
        assert i < 29
        self.a("s_memtime s[100:101]"); self.a("s_waitcnt lgkmcnt(0)"); self.a(f"v_writelane_b32 v7, s100, {i}")
    def run(self, x): x() if callable(x) else self.a(x)
    def bg(self, n=1):
        for _ in range(n):
            if self.bgq: self.bgq.pop(0)()
    def interleave(self, main, extra, front=()):
        n = len(main); m = len(extra); j = 0; front = list(front)
        for i, x in enumerate(main):
            self.run(x)
            if front:
                self.run(front.pop(0))
                if len(front) >= n - i and front: self.run(front.pop(0))
            while j < m and (j + 1) * n <= (i + 1) * m + (n - 1):
                self.run(extra[j]); j += 1
        for x in front: self.run(x)
        while j < m:
            self.run(extra[j]); j += 1

def MF(d, a_, b_, first): return f"v_mfma_f32_16x16x32_bf16 {R(d,4)}, {R(a_,4)}, {R(b_,4)}, {'0' if first else R(d,4)}"

def phi(a, val, t1, t2):
    a(f"v_mul_f32 {t1}, s60, {val}")
    a(f"v_max_f32 {t2}, 0, {val}")
    a(f"v_exp_f32_e64 {t1}, {t1} clamp")
    a(f"v_add_f32 {t2}, s61, {t2}")
    a(f"v_add_f32 {val}, {t1}, {t2}")

OPT |= {"sc1h", "sc1hid", "notouch", "usfirst", "ft", "rpplain", "slplain", "tlb3"}
def phi4(a, b_, T, sel_mask=None):
    for h in range(2): a(f"v_pk_mul_f32 v[{T+2*h}:{T+2*h+1}], v[{b_+2*h}:{b_+2*h+1}], s[94:95]")
    for e in range(4): a(f"v_max_f32 v{T+4+e}, 0, v{b_+e}")
    for e in range(4): a(f"v_exp_f32_e64 v{T+e}, v{T+e} clamp")
    for h in range(2): a(f"v_pk_add_f32 v[{T+4+2*h}:{T+5+2*h}], v[{T+4+2*h}:{T+5+2*h}], s[96:97]")
    if sel_mask is None:
        for h in range(2): a(f"v_pk_add_f32 v[{b_+2*h}:{b_+2*h+1}], v[{T+2*h}:{T+2*h+1}], v[{T+4+2*h}:{T+5+2*h}]")
    else:
        for h in range(2): a(f"v_pk_add_f32 v[{T+2*h}:{T+2*h+1}], v[{T+2*h}:{T+2*h+1}], v[{T+4+2*h}:{T+5+2*h}]")
        for e in range(4): a(f"v_cndmask_b32 v{b_+e}, v{b_+e}, v{T+e}, {sel_mask}")
RPNT = "" if "rpplain" in OPT else " nt"
HS = "" if "plainh" in OPT else " sc1"
HS2 = "" if "plainhid" in OPT else " sc1"
FENCE = "plainh" in OPT or "plainhid" in OPT
def gen():
    a = G()
    name = NAME
    NRAW = P("NRAW", 2)
    a.a.raw(f".globl {name}\n.p2align 8\n.type {name},@function\n{name}:")
    a("s_cmp_ge_u32 s2, 256"); a("s_cbranch_scc1 L_end")
    a("s_load_dwordx16 s[4:19], s[0:1], 0")
    a("s_load_dwordx4 s[20:23], s[0:1], 64")
    a("s_load_dwordx2 s[24:25], s[0:1], 80")
    a("s_memrealtime s[76:77]")
    a("s_getpc_b64 s[30:31]")
    a("L_pc:")
    a("v_mov_b32 v7, 0")
    a.stamp("start")
    a("v_lshrrev_b32 v2, 6, v0"); a("v_and_b32 v1, 63, v0")
    a("v_readfirstlane_b32 s28, v2")
    if "m48" in OPT:
        a("s_and_b32 s3, s2, 7"); a("s_lshr_b32 s29, s2, 3")
        a("s_lshr_b32 s26, s3, 1"); a("s_lshl_b32 s26, s26, 2"); a("s_lshr_b32 s27, s29, 3"); a("s_add_u32 s26, s26, s27")
        a("s_and_b32 s3, s3, 1"); a("s_lshl_b32 s3, s3, 2"); a("s_and_b32 s27, s29, 3"); a("s_or_b32 s27, s27, s3")
        a("s_and_b32 s29, s29, 4"); a("s_lshl_b32 s29, s29, 1"); a("s_or_b32 s27, s27, s29")
    else:
        a("s_and_b32 s3, s2, 7"); a("s_lshr_b32 s27, s2, 3"); a("s_lshr_b32 s26, s27, 4"); a("s_lshl_b32 s3, s3, 1")
        a("s_add_u32 s26, s26, s3")
        a("s_and_b32 s27, s27, 15")
    a("v_lshlrev_b32 v3, 7, v1")
    if "cp16" in OPT:
        a("s_cmp_lg_u32 s28, 3"); a("s_cbranch_scc1 L_nocp")
        a("s_mul_i32 s3, s27, 2304"); a("v_add_u32 v27, s3, v3"); a("s_bfm_b64 exec, 18, 0")
        a("global_load_dword v4, v27, s[30:31]"); a("s_mov_b64 exec, -1")
    elif "nocp" not in OPT:
        a("s_cmp_lg_u32 s28, 3"); a("s_cbranch_scc1 L_nocp")
        a("s_mul_i32 s3, s27, 13"); a("s_lshr_b32 s3, s3, 6"); a("s_mul_i32 s3, s3, 5"); a("s_sub_u32 s3, s27, s3"); a("s_lshl_b32 s3, s3, 13")
        a("v_add_u32 v27, s3, v3")
        a("global_load_dword v4, v27, s[30:31]")
    a("L_nocp:")
    BQ = 102400; SCR = 153600; CSX = 161792
    vXA = [72, 73, 74, 75]; vW = [76, 77]; vRd = [78, 79]; vTB = [17, 18, 19, 20]; vTQ = [86, 87, 88, 89]; vTQ2 = [90, 91, 21, 22]
    vSA = [80, 81, 82]; vBA = [144, 145, 146, 147, 148]; vTR = [149, 150, 151, 152]
    vT1 = 24; vSTW = 25
    ACC = 32; RAW = 160; XF = A0; BF = A0 + 160; ONES = A0 + 200; GR = A0 + 204; RSM = A0 + 212; OH = A0 + 220; CSA = A0 + 240; CSQ = A0 + 244
    t0, t1, t2, t3 = "v27", "v28", "v29", "v30"
    def early():
        a("v_and_b32 v27, 3, v1"); a("s_lshl_b32 s3, s28, 2"); a("v_add_u32 v27, s3, v27"); a("v_min_u32 v27, 14, v27")
        a("v_lshrrev_b32 v28, 2, v1"); a("v_mul_u32_u24 v28, 3840, v28"); a("v_lshl_add_u32 v28, v27, 4, v28")
        a("v_add_u32 v29, 1280, v28"); a("v_add_u32 v30, 2480, v28"); a("v_subrev_u32 v28, 160, v28")
        a("v_cmp_gt_u32 vcc, 10, v27"); a("s_mul_i32 s50, s26, 153600"); a("s_mul_i32 s51, s27, 80"); a("v_cndmask_b32 v28, v28, v30, vcc")
        a("v_cmp_gt_u32 vcc, 5, v27"); a("s_add_u32 s50, s50, s51"); a("s_mul_i32 s53, s28, 3072"); a("v_cndmask_b32 v83, v28, v29, vcc")
        a(f"s_add_u32 s53, s53, {BQ + 28672}")
        a("s_mul_i32 s3, s26, 163840"); a("s_mul_i32 s56, s27, 10240"); a("s_add_u32 s3, s3, s56"); a("s_mul_i32 s56, s28, 2560"); a("s_add_u32 s57, s3, s56")
        a("v_mov_b32 v5, 0")
    def late():
        a("v_lshlrev_b32 v8, 4, v1"); a("v_lshlrev_b32 v9, 4, v0")
        a("v_and_b32 v10, 15, v1"); a("v_lshlrev_b32 v10, 2, v10")
        a("v_lshrrev_b32 v11, 4, v1"); a("v_add_u32 v12, 4096, v8")
        a("v_lshrrev_b32 v27, 3, v1"); a("v_and_b32 v28, 7, v1"); a("v_mul_u32_u24 v29, 1280, v27")
        a("v_lshrrev_b32 v30, 1, v27"); a("v_xor_b32 v28, v28, v30")
        a(f"v_lshl_add_u32 v{vXA[0]}, v28, 4, v29")
        a(f"v_xor_b32 v{vXA[1]}, 64, v{vXA[0]}"); a(f"v_add_u32 v{vXA[1]}, 10240, v{vXA[1]}")
        a(f"v_add_u32 v{vXA[2]}, 20480, v{vXA[0]}"); a(f"v_add_u32 v{vXA[3]}, 20480, v{vXA[1]}")
        a("s_lshl_b32 s3, s28, 11"); a(f"s_add_u32 s48, s3, {SCR}")
        a("s_lshl_b32 s49, s26, 7"); a("s_lshl_b32 s3, s28, 5"); a("s_add_u32 s49, s49, s3"); a("s_mul_i32 s49, s49, 1280")
        a("s_lshr_b32 s3, s28, 1"); a("s_lshl_b32 s3, s3, 7"); a("s_add_u32 s62, s49, 128"); a("s_sub_u32 s62, s62, s3"); a("s_add_u32 s49, s49, s3")
        a("s_mul_i32 s52, s28, 5120")
        a(f"s_mul_i32 s58, s26, {G_SZ}"); a(f"s_add_u32 s58, s58, {GRP}")
        a("s_lshl_b32 s70, s28, 4"); a("s_add_u32 s70, s70, s26")
        a(f"s_mul_i32 s71, s28, 7168"); a(f"s_add_u32 s71, s71, {BQ}")
        a("v_mov_b32 v2, 0x7fffffff")
    early()
    if "slowpro" in OPT: late()
    a("s_waitcnt lgkmcnt(0)")
    srd(a, 36, 6, 2457600)
    SLNT = "" if "slplain" in OPT else " nt"
    for i in range(3):
        a(f"s_add_u32 m0, s53, {1024*i}")
        if i == 2: a("s_bfm_b64 exec, 32, 0")
        a.vmem(f"buffer_load_dwordx4 v83, s[36:39], s50 offen{SLNT} lds", "SLD")
        a(f"s_add_u32 s50, s50, {16*3840}")
    srd(a, 32, 4, 2621440); srd(a, 40, 24, WS_END)
    a("s_mov_b64 exec, 0xfffff")
    a.vmem(f"buffer_load_dword v4, v3, s[32:35], s57 offen{' nt' if 'xtnt' in OPT else ''}")
    if "tlb" in OPT:
        a("v_lshlrev_b32 v27, 20, v1"); a("s_bfm_b64 exec, 24, 0")
        a.vmem(f"buffer_load_dword v4, v27, s[40:43], 0 offen")
    if "tlb2" in OPT:
        a("s_mul_i32 s54, s27, 153600"); a(f"s_add_u32 s54, s54, {WQKV}")
        a("v_mul_u32_u24 v27, 51200, v1"); a("v_add_u32 v27, s54, v27"); a(f"v_mov_b32 v28, {F0}"); a("v_cmp_eq_u32 vcc, 3, v1"); a("v_cndmask_b32 v27, v27, v28, vcc")
        a("s_bfm_b64 exec, 4, 0")
        a.vmem(f"buffer_load_dword v4, v27, s[40:43], 0 offen")
        a.vmem("global_load_dword v4, v5, s[22:23] offset:128")
    a("s_mov_b64 exec, -1")
    if STAMP: a("v_writelane_b32 v7, s76, 29")
    a("s_and_b32 s76, s76, 0xfffffff8"); a("s_or_b32 s76, s76, 8")
    a("s_or_b32 s3, s2, s28"); a("s_cmp_lg_u32 s3, 0"); a("s_cbranch_scc1 L_notag")
    a("v_mov_b32 v28, s76"); a("global_store_dword v5, v28, s[22:23] sc1")
    a("L_notag:")
    if "ft" in OPT:
        a("s_cmp_lg_u32 s26, s27"); a("s_cbranch_scc1 L_noft"); a("s_cmp_lg_u32 s28, 1"); a("s_cbranch_scc1 L_noft")
        a("s_mul_i32 s3, s27, 1280"); a(f"s_add_u32 s3, s3, {FLG}")
        a("s_bfm_b64 exec, 10, 0"); a("buffer_load_dword v4, v3, s[40:43], s3 offen sc0 sc1"); a("s_mov_b64 exec, -1")
        a("L_noft:")
    if "tlb3" in OPT:
        a("s_cmp_lg_u32 s28, 2"); a("s_cbranch_scc1 L_not3")
        a("v_lshlrev_b32 v27, 16, v1"); a("v_lshlrev_b32 v28, 18, v1")
        for cc, (sp, n_) in enumerate([(12, 34), (16, 34), (8, 13), (20, 40)]):
            a(f"s_cmp_lg_u32 s27, {2+cc}"); a(f"s_cbranch_scc1 L_t3_{cc}")
            a(f"s_bfm_b64 exec, {n_}, 0"); a(f"global_load_dword v4, v27, s[{sp}:{sp+1}]"); a("s_mov_b64 exec, -1")
            a(f"L_t3_{cc}:")
        a("s_cmp_lg_u32 s27, 6"); a("s_cbranch_scc1 L_t3_4"); a("buffer_load_dword v4, v28, s[40:43], 0 offen"); a("L_t3_4:")
        a("s_cmp_lg_u32 s27, 7"); a("s_cbranch_scc1 L_not3"); a(f"s_mov_b32 s3, {64 << 18}"); a("buffer_load_dword v4, v28, s[40:43], s3 offen")
        a("L_not3:")
    if "tlb4" in OPT:
        a("s_cmp_lg_u32 s28, 2"); a("s_cbranch_scc1 L_not4")
        a("v_lshlrev_b32 v27, 21, v1"); a("s_bfm_b64 exec, 2, 0")
        a("global_load_dword v4, v27, s[12:13]"); a("global_load_dword v4, v27, s[16:17]"); a("s_mov_b64 exec, 1"); a("global_load_dword v4, v27, s[8:9]")
        a("s_bfm_b64 exec, 11, 0"); a("buffer_load_dword v4, v27, s[40:43], 0 offen")
        a("s_mov_b64 exec, -1")
        a("L_not4:")
    if "nobt" not in OPT:
        a("s_lshl_b32 s3, s27, 2"); a("s_add_u32 s3, s3, s28"); a("s_cmp_lg_u32 s3, 6"); a("s_cbranch_scc1 L_nobt")
        a("s_bfm_b64 exec, 27, 0"); a("global_load_dword v4, v3, s[14:15]")
        a("s_bfm_b64 exec, 10, 0"); a("global_load_dword v4, v3, s[18:19]")
        a("s_mov_b64 exec, -1")
        a("L_nobt:")
    srd(a, 44, 12, 2211840)
    if "slowpro" not in OPT: late()
    def rp_issue(nt, pitch_src, nch):
        for i in range(7):
            if i < nt:
                a(f"v_add_u32 v27, {64*i}, v1")
                divmod_const(a, "v28", "v29", "v27", nch)
                a(f"v_mul_u32_u24 v28, {pitch_src}, v28"); a("v_lshl_add_u32 v28, v29, 4, v28")
                a(f"s_add_u32 m0, s71, {1024*i}")
                a(f"buffer_load_dwordx4 v28, s[44:47], s73 offen{RPNT} lds")
            else:
                a("buffer_load_dword v4, v2, s[44:47], 0 offen")
    def unit_issue():
        a("s_cmp_ge_u32 s70, 20"); a("s_cbranch_scc1 L_rp5")
        a("s_mov_b32 s72, 1")
        a("s_mul_i32 s75, s27, 27"); a("s_lshr_b32 s75, s75, 2"); a("s_lshl_b32 s75, s75, 5")
        a("s_mul_i32 s79, s70, 110592"); a("s_add_u32 s73, s75, s79")
        a("s_mul_i32 s75, s27, 20"); a("s_add_u32 s70, s70, s75")
        a("s_mul_i32 s74, s70, 7168"); a(f"s_add_u32 s74, s74, {W1P}")
        rp_issue(7, 3456, 14)
        a("s_branch L_rp_issued")
        a("L_rp5:")
        a("s_mov_b32 s72, 2")
        a("s_sub_u32 s79, s70, 20"); a("s_lshl_b32 s79, s79, 1"); a("s_lshr_b32 s75, s27, 3"); a("s_add_u32 s79, s79, s75"); a("s_and_b32 s75, s27, 7")
        a("s_cmp_ge_u32 s79, 54"); a("s_cbranch_scc1 L_rpwo")
        srd(a, 44, 16, 2211840)
        a("s_mul_i32 s78, s75, 54"); a("s_add_u32 s78, s78, s79")
        a("s_mul_i32 s74, s78, 5120"); a(f"s_add_u32 s74, s74, {W2P}")
        a("s_branch L_rp5b")
        a("L_rpwo:")
        srd(a, 44, 8, 819200)
        a("s_sub_u32 s79, s79, 54")
        a("s_mul_i32 s78, s75, 20"); a("s_add_u32 s78, s78, s79")
        a("s_mul_i32 s74, s78, 5120"); a(f"s_add_u32 s74, s74, {WOP}")
        a("s_cmp_ge_u32 s79, 20"); a("s_cselect_b32 s74, 0x40000000, s74")
        a("L_rp5b:")
        a("s_mul_i32 s75, s75, 160"); a("s_mul_i32 s79, s79, 40960"); a("s_add_u32 s73, s75, s79")
        rp_issue(5, 1280, 10)
        a("L_rp_issued:")
        a.vm += ["UL"]*7
    def raw(cx, rg): return 96 + (((cx + 1) % 10)*4 + rg)*4
    def xf(tt, k): return XF + (tt*20 + k)*4
    def ldx(cx):
        def one(rg):
            off = 256*(cx >> 1)
            a(f"s_add_u32 m0, s52, {(cx % 5)*20480 + rg*1024 + 1024 - off}")
            a.vmem(f"buffer_load_dwordx4 v{vXA[rg]}, s[32:35], s{62 if cx & 1 else 49} offen offset:{off} lds", f"X{cx}")
        return [lambda rg=rg: one(rg) for rg in range(4)]
    a("v_and_b32 v27, 15, v1")
    a("v_cmp_gt_u32 s[66:67], 8, v27")
    a("v_cmp_gt_u32 s[90:91], 32, v1"); a("v_cmp_gt_u32 s[92:93], 48, v1")
    a("v_cmp_eq_u32 s[88:89], 1, v11")
    a("v_and_b32 v29, 1, v11")
    a("s_lshl_b32 s3, s28, 1"); a("v_add_u32 v29, s3, v29")
    a("v_cmp_gt_u32 s[94:95], 5, v29"); a("v_cmp_eq_u32 s[96:97], 7, v29")
    a("v_lshlrev_b32 v29, 10, v29"); a(f"v_add_u32 v30, {BQ - 5120}, v29"); a("v_cndmask_b32 v29, v30, v29, s[94:95]")
    a("v_lshl_add_u32 v29, v10, 2, v29")
    a("v_mov_b32 v30, 2560"); a("v_mov_b32 v31, 5120"); a("v_cndmask_b32 v30, v30, v31, s[94:95]")
    a("v_mov_b32 v31, 8"); a("v_cndmask_b32 v31, v31, 7, s[96:97]")
    a("s_andn2_b64 s[96:97], s[96:97], s[66:67]")
    a("s_mul_i32 s3, s26, 5")
    a("v_lshrrev_b32 v28, 1, v11"); a("v_add_u32 v28, s3, v28")
    for n in range(3):
        a(f"v_lshrrev_b32 v27, 2, v28"); a(f"v_mad_u32_u24 v{vSA[n]}, v27, v30, v29")
        a("v_and_b32 v27, 3, v28"); a("v_lshlrev_b32 v27, v31, v27"); a(f"v_add_u32 v{vSA[n]}, v{vSA[n]}, v27")
        a(f"v_cndmask_b32 v{vSA[n]}, v{vSA[n]}, v2, s[96:97]")
        if n == 2: a(f"v_cndmask_b32 v{vSA[n]}, v2, v{vSA[n]}, s[90:91]")
        else: a("v_add_u32 v28, 2, v28")
    a("v_lshrrev_b32 v27, 5, v1"); a("v_bfe_u32 v28, v1, 2, 2"); a("v_lshl_add_u32 v27, v27, 3, v28"); a("v_lshlrev_b32 v27, 6, v27")
    a("v_bfe_u32 v28, v1, 4, 1"); a("v_lshl_add_u32 v27, v28, 5, v27"); a("v_and_b32 v28, 3, v1"); a("v_lshl_add_u32 v27, v28, 3, v27")
    a("v_add_u32 v84, s53, v27")
    a("s_mul_i32 s54, s27, 153600"); a(f"s_add_u32 s54, s54, {WQKV}")
    a.wait(vm="SLD")
    a.stamp("sld")
    for n in range(3):
        for h in range(2): a(f"ds_read_b64_tr_b16 {R(96 + 4*n + 2*h, 2)}, v84 offset:{1024*n + 256*h}")
    a("s_waitcnt lgkmcnt(0)")
    for n in range(3): a.vmem(f"buffer_store_dwordx4 {R(96 + 4*n, 4)}, v{vSA[n]}, s[40:43], s54 offen sc1", "SL")
    a.vmem("global_load_dword v6, v5, s[22:23] sc1", "TAG")
    NX0 = P("NX0", 5)
    for cx in range(NX0):
        for f in ldx(cx): f()
    a("v_and_b32 v27, 15, v1")
    a("v_lshrrev_b32 v29, 1, v27"); a("v_xor_b32 v29, v29, v11"); a("v_lshlrev_b32 v29, 4, v29"); a("v_lshl_add_u32 v29, v27, 7, v29")
    a("s_and_b32 s3, s28, 1"); a("s_lshl_b32 s3, s3, 6"); a("v_xor_b32 v29, s3, v29")
    a(f"v_add_u32 v{vRd[0]}, s52, v29"); a("v_xor_b32 v29, 64, v29"); a(f"v_add_u32 v{vRd[1]}, s52, v29")
    a(f"v_add_u32 v{vW[0]}, 61440, v{vRd[0]}"); a(f"v_add_u32 v{vW[1]}, 61440, v{vRd[1]}")
    a("v_lshrrev_b32 v29, 2, v27"); a("v_cmp_eq_u32 vcc, v29, v11")
    a("v_lshlrev_b32 v30, 2, v1"); a("v_add_u32 v30, 512, v30")
    a("v_cndmask_b32 v29, v30, v10, vcc"); a(f"v_add_u32 v{vSTW}, s48, v29")
    a("v_and_b32 v29, 1, v1"); a("v_cmp_eq_u32 s[68:69], 1, v29")
    a("v_and_b32 v29, 2, v1"); a("v_cmp_eq_u32 s[86:87], 2, v29")
    a("v_mov_b32 v28, 0x3f803f80")
    for i in range(4): a(f"v_accvgpr_write_b32 {R(ONES+i)}, v28")
    for t in range(5):
        a(f"v_cmp_eq_u32 vcc, {t}, v27"); a("v_cndmask_b32 v29, 0, v28, vcc")
        for e in range(4): a(f"v_accvgpr_write_b32 {R(OH+4*t+e)}, v29")
    a("v_and_b32 v27, 7, v1"); a("v_lshlrev_b32 v27, 4, v27"); a("v_lshl_add_u32 v27, v11, 7, v27")
    for p in range(4):
        a(f"s_xor_b32 s3, s28, {p}"); a("s_mul_i32 s56, s3, 5120"); a(f"v_add_u32 v{vTB[p]}, s56, v8")
        a("s_mul_i32 s56, s3, 2560"); a(f"s_add_u32 s56, s56, {BQ}"); a(f"v_add_u32 v{vTQ[p]}, s56, v8"); a("s_add_u32 s56, s56, 2048"); a(f"v_add_u32 v{vTQ2[p]}, s56, v27")
    a(f"s_mov_b32 s60, {hx(LOG2E)}"); a(f"s_mov_b32 s61, {hx(1e-6)}")
    a(f"s_mov_b32 s63, {hx(1.0/640)}"); a(f"s_mov_b32 s64, {hx(1e-5)}")
    a("s_lshl_b32 s55, s27, 8"); a(f"s_add_u32 s55, s55, {F0}")
    a("v_lshlrev_b32 v26, 2, v1")
    a("s_lshl_b32 s3, s26, 4"); a("s_lshl_b32 s56, s28, 2"); a("s_add_u32 s3, s3, s56"); a("s_add_u32 s3, s3, s55")
    a.wait(vm="TAG")
    a("v_readfirstlane_b32 s76, v6"); a("s_mov_b32 s78, 0")
    a("L_tp1:")
    a("s_cmp_lg_u32 s76, 0"); a("s_cbranch_scc1 L_tp1_ok")
    a("global_load_dword v6, v5, s[22:23] sc1"); a("s_add_u32 s78, s78, 1"); a("s_waitcnt vmcnt(0)")
    a("v_readfirstlane_b32 s76, v6")
    a(f"s_cmp_lt_u32 s78, {POLLMAX}"); a("s_cbranch_scc1 L_tp1")
    a("L_tp1_ok:")
    a("s_getreg_b32 s77, hwreg(HW_REG_XCC_ID)"); a("s_and_b32 s77, s77, 7"); a("s_or_b32 s77, s77, s76")
    a("s_lshl_b32 s57, s26, 7"); a("s_lshl_b32 s56, s27, 2"); a("s_add_u32 s57, s57, s56"); a(f"s_add_u32 s57, s57, {F1R}")
    a("s_cmp_eq_u32 s28, 0"); a("s_cselect_b32 s57, s57, 0x40000000"); a("v_mov_b32 v27, s77")
    a("s_mov_b64 exec, 1"); a.vmem("buffer_store_dword v6, v5, s[40:43], s3 offen sc1"); a.vmem("buffer_store_dword v27, v5, s[40:43], s57 offen sc1"); a("s_mov_b64 exec, -1")
    a.stamp("F0pub")
    def rp_fin(nt, RG):
        pitch = nt*32
        a("v_bfe_u32 v28, v1, 2, 2"); a("v_lshl_add_u32 v27, v11, 3, v28"); a("v_and_b32 v28, 3, v1")
        a(f"v_mul_u32_u24 v29, {pitch}, v27"); a("v_add_u32 v29, s71, v29")
        a("v_lshl_add_u32 v30, v28, 3, v29"); a("v_lshl_add_u32 v29, v28, 4, v29")
        for t in range(nt):
            for h in range(2):
                if t == nt - 1: a(f"ds_read_b64_tr_b16 {R(RG + 4*t + 2*h, 2)}, v30 offset:{h*4*pitch + 32*t}")
                else: a(f"ds_read_b64_tr_b16 {R(RG + 4*t + 2*h, 2)}, v29 offset:{h*4*pitch + 64*(t>>1) + 8*(t&1)}")
        if nt == 7:
            a("v_mov_b32 v28, 0x3f803f80")
            for t in (5, 6):
                a(f"v_cmp_eq_u32 vcc, {4*t}, v10")
                for e in range(4): a(f"v_cndmask_b32 v{RG+28+4*(t-5)+e}, 0, v28, vcc")
        a("s_waitcnt lgkmcnt(0)")
        if nt == 7:
            for t in range(7): a(MF(RG+36, RG + 4*t, OH + 4*t if t < 5 else RG+28+4*(t-5), t == 0))
    def rp_store(nt, RG):
        for t in range(nt):
            a(f"buffer_store_dwordx4 {R(RG + 4*t, 4)}, v{8 if t < 4 else 12}, s[40:43], s74 offen offset:{1024*(t&3)} sc1")
        if nt == 7:
            a("v_lshlrev_b32 v29, 4, v11"); a("v_lshl_add_u32 v29, v10, 4, v29"); a("v_cndmask_b32 v29, v2, v29, s[66:67]")
            a("s_lshl_b32 s3, s70, 9"); a(f"s_add_u32 s3, s3, {C1P}")
            a(f"buffer_store_dwordx4 {R(RG+36, 4)}, v29, s[40:43], s3 offen sc1")
        else:
            for _ in range(3): a("buffer_store_dword v5, v2, s[40:43], 0 offen")
    def acc(tt, t): return ACC + (tt*5 + t)*4
    def transp(cx):
        L = []
        j = cx % 5; b = vRd if j < 3 else vW; o = (j % 3)*20480 + 1024
        for tt in range(2):
            L.append(lambda tt=tt: a.ds(f"ds_read_b128 {R(xf(tt, 2*cx), 4)}, v{b[0]} offset:{o + 2048*tt}"))
            L.append(lambda tt=tt: a.ds(f"ds_read_b128 {R(xf(tt, 2*cx+1), 4)}, v{b[1]} offset:{o + 2048*tt}", f"T{cx}"))
        return L
    def statm(k):
        L = []
        for tt in range(2):
            L.append(MF(GR + 4*tt, xf(tt, k), xf(tt, k), k == 0)); L.append(MF(RSM + 4*tt, ONES, xf(tt, k), k == 0))
        return L
    def breads1(s):
        j, p = divmod(s, 4); L = []
        for t in range(5):
            L.append(lambda t=t: a.ds(f"ds_read_b128 {R(BF + (s&1)*20 + t*4, 4)}, v{vTB[p]} offset:{(j % 3)*20480 + t*1024}", f"R{s}"))
        if j == 2: L.append(f"v_add_u32 v{vTB[p]}, 61440, v{vTB[p]}")
        return L
    def ldb(j):
        def one(i):
            if i == 0: a(f"s_add_u32 m0, s52, {j*20480}"); a("s_add_u32 s57, s54, m0")
            if i == 4: a(f"s_add_u32 m0, s52, {j*20480 + 4096}")
            a.vmem(f"buffer_load_dwordx4 v{8 if i < 4 else 12}, s[40:43], s57 offen offset:{1024*(i&3)} sc1 lds", f"B{j}")
        return [lambda i=i: one(i) for i in range(5)]
    def ldq():
        def one(i):
            if i == 11: a("s_cmp_eq_u32 s28, 3"); a("s_cbranch_scc1 L_noq")
            a(f"s_mul_i32 s98, s28, 13312"); a(f"s_add_u32 m0, s98, {BQ + i*1024}"); a("s_add_u32 s98, s54, m0")
            a.a(f"buffer_load_dwordx4 v8, s[40:43], s98 offen sc1 lds")
            if i < 11: a.vm.append("BQ")
            if i == 12: a("L_noq:")
        return [lambda i=i: one(i) for i in range(11)] + [lambda: (one(11), one(12))]
    def ldt1():
        a("v_lshlrev_b32 v27, 1, v0"); a("s_add_u32 s56, s30, T1_tab-L_pc"); a("s_addc_u32 s57, s31, 0")
        a.vmem(f"global_load_ushort v{vT1}, v27, s[56:57]", "T1")
    def kv_mf(s):
        mf = []
        for t in range(5):
            b = BF + (s&1)*20 + t*4
            for tt in range(2): mf.append(MF(acc(tt, t), xf(tt, s), b, s == 0))
            if s % 4 == 0: mf.append(MF(CSA, OH + 4*t, b, s == 0 and t == 0))
        return mf
    RS = 96; MS = 104; RT = 112; MT = 114; CSV = 116
    URG = 116
    def flagtouch():
        a(f"s_add_u32 s3, s58, {G_FL}"); a("s_bfm_b64 exec, 8, 0"); a.vmem("buffer_load_dword v4, v3, s[40:43], s3 offen"); a("s_mov_b64 exec, -1")
    for cx in range(NX0, 5):
        for f in ldx(cx): f()
    UPOS = P("UPOS", 6)
    if UPOS == 0:
        for f in (ldt1, flagtouch, unit_issue): f()
    for cx in range(10):
        a.wait(vm=f"X{cx}")
        for f in transp(cx): f()
        if cx:
            a.wait(lg=f"T{cx-1}")
            side = ldx(cx + 4) if cx + 4 < 10 else []
            if cx == UPOS: side = side + [ldt1, flagtouch, unit_issue]
            a.interleave(statm(2*(cx-1)) + statm(2*(cx-1)+1), side)
    a.wait(lg="T9")
    a.stamp("xdone")
    a("s_mov_b32 s78, 0")
    a("L_h0p:")
    a("buffer_load_dword v16, v26, s[40:43], s55 offen sc1"); a("s_waitcnt vmcnt(0)")
    a("v_cmp_ne_u32 vcc, s76, v16")
    a("s_cbranch_vccz L_h0ok")
    a("s_add_u32 s78, s78, 1"); a(f"s_cmp_lt_u32 s78, {POLLMAX}"); a("s_cbranch_scc1 L_h0p")
    a("L_h0ok:")
    a.vm = []
    a.stamp("F0ok")
    for f in ldb(0): f()
    for f in ldb(1): f()
    a.wait(lg="all")
    for x in statm(18) + statm(19): a(x)
    a("s_cmp_eq_u32 s72, 2"); a("s_cbranch_scc1 L_rp_f5")
    rp_fin(7, URG); a("s_branch L_rp_done")
    a("L_rp_f5:"); rp_fin(5, URG)
    a("L_rp_done:")
    for tt in range(2):
        for e in range(4): a(f"v_accvgpr_read_b32 v{160+e}, {R(GR + 4*tt + e)}")
        a(f"v_accvgpr_read_b32 v164, {R(RSM + 4*tt)}")
        for x in ["v_cndmask_b32 v160, v160, v161, s[68:69]", "v_cndmask_b32 v162, v162, v163, s[68:69]", "v_mul_f32 v164, s63, v164",
                  "v_cndmask_b32 v160, v160, v162, s[86:87]", "v_mul_f32 v160, s63, v160", "v_fma_f32 v160, -v164, v164, v160",
                  "v_max_f32 v160, 0, v160", "v_add_f32 v160, s64, v160", "v_rsq_f32 v160, v160", "v_mul_f32 v164, v164, v160"]: a(x)
        a.ds(f"ds_write_b32 v{vSTW}, v160 offset:{64*tt}"); a.ds(f"ds_write_b32 v{vSTW}, v164 offset:{128 + 64*tt}")
    a("v_lshlrev_b32 v28, 4, v11"); a("v_add_u32 v28, s48, v28"); a("v_add_u32 v29, s48, v10")
    for tt in range(2):
        a.ds(f"ds_read_b128 {R(RS + 4*tt, 4)}, v28 offset:{64*tt}"); a.ds(f"ds_read_b128 {R(MS + 4*tt, 4)}, v28 offset:{128 + 64*tt}")
        a.ds(f"ds_read_b32 v{RT + tt}, v29 offset:{64*tt}"); a.ds(f"ds_read_b32 v{MT + tt}, v29 offset:{128 + 64*tt}")
    NBE = P("NBE", 3)
    for j in range(2, NBE):
        for f in ldb(j): f()
    a("s_lshl_b32 s73, s70, 9"); a(f"s_add_u32 s73, s73, {C1P}")
    a("s_cmp_eq_u32 s72, 2"); a("s_cselect_b32 s75, 0x40000000, s74"); a("s_cselect_b32 s73, 0x40000000, s73")
    a("v_lshlrev_b32 v85, 4, v11"); a("v_lshl_add_u32 v85, v10, 4, v85"); a("v_cndmask_b32 v85, v2, v85, s[66:67]")
    def ust(t):
        if t < 7: a.vmem(f"buffer_store_dwordx4 {R(URG + 4*t, 4)}, v{8 if t < 4 else 12}, s[40:43], s{74 if t < 5 else 75} offen offset:{1024*(t&3)} sc1", "US")
        else: a.vmem(f"buffer_store_dwordx4 {R(URG+36, 4)}, v85, s[40:43], s73 offen sc1", "US")
    a("s_and_b32 s59, s27, 7"); a("s_lshl_b32 s59, s59, 9"); a(f"s_add_u32 s59, s59, {FU}")
    a("s_lshr_b32 s3, s27, 3"); a("s_lshl_b32 s3, s3, 4"); a("s_add_u32 s3, s3, s26"); a("s_lshl_b32 s3, s3, 2"); a("s_add_u32 s3, s3, s28"); a("s_lshl_b32 s3, s3, 2"); a("s_add_u32 s70, s3, s59")
    a.wait(vm="B0")
    a("s_barrier")
    a.stamp("bP")
    a("s_mov_b32 s94, s60"); a("s_mov_b32 s95, s60"); a("s_mov_b32 s96, s61"); a("s_mov_b32 s97, s61")
    for f in breads1(0): a.run(f)
    def pretouch():
        if "sc1h" in OPT:
            a(f"s_add_u32 s3, s58, {G_FL}"); a("s_bfm_b64 exec, 4, 0"); a.vmem("buffer_load_dword v4, v3, s[40:43], s3 offen"); a("s_mov_b64 exec, -1")
            return
        a("s_mul_i32 s3, s27, 21056"); a("s_add_u32 s3, s3, s58"); a("s_mul_i32 s56, s28, 5376"); a("s_add_u32 s3, s3, s56")
        a("s_bfm_b64 exec, 42, 0"); a.vmem("buffer_load_dword v4, v3, s[40:43], s3 offen"); a("s_mov_b64 exec, -1")
    FB3 = 156
    a("s_and_b32 s3, s27, 7"); a("s_mul_i32 s3, s3, 20"); a("s_add_u32 s3, s3, s28"); a("s_mul_i32 s65, s3, 5120"); a(f"s_add_u32 s65, s65, {WOP}")
    def ldwo(n, t):
        a.vmem(f"buffer_load_dwordx4 {R(FB3 + (n*5+t)*4, 4)}, v{8 if t < 4 else 12}, s[40:43], s65 offen offset:{1024*(t&3)} sc1", "WO")
        if t == 4: a("s_add_u32 s65, s65, 20480")
    def ldfu():
        a("v_lshlrev_b32 v31, 3, v1")
        a.vmem("buffer_load_dwordx2 v[92:93], v31, s[40:43], s59 offen sc1", "FU")
    def chkfu():
        a.wait(vm="FU")
        a("s_mov_b32 s78, 0")
        a("L_fu:")
        a("v_cmp_ne_u32 vcc, s76, v92"); a("v_cmp_ne_u32 s[84:85], s76, v93")
        a("s_or_b64 vcc, vcc, s[84:85]"); a("s_cbranch_scc0 L_fu_ok")
        a("s_add_u32 s78, s78, 1"); a(f"s_cmp_ge_u32 s78, {POLLMAX}"); a("s_cbranch_scc1 L_fu_ok")
        a("buffer_load_dwordx2 v[92:93], v31, s[40:43], s59 offen sc1"); a("s_waitcnt vmcnt(0)")
        a("s_branch L_fu")
        a("L_fu_ok:")
    q_ = ldq(); mix = []
    if "usfirst" in OPT:
        mix = [lambda i=i: ust(i) for i in range(8)] + q_
    else:
        for i in range(12):
            mix.append(q_[i])
            if i < 8: mix.append(lambda i=i: ust(i))
    ldlist = sum([ldb(j) for j in range(NBE, 5)], [])
    MS0 = P("MS0", 6); MR = P("MR", 1)
    a.bgq = mix
    SFU = P("SFU", 18)
    LEND = P("LEND", 16)
    CT = 116
    for s in range(20):
        j, p = divmod(s, 4)
        if p == 3 and j < 4:
            a.wait(vm=f"B{j+1}"); a("s_barrier")
        if s == SFU:
            a.wait(vm="US")
            a("s_mov_b64 exec, 1"); a.vmem("buffer_store_dword v6, v5, s[40:43], s70 offen sc1"); a("s_mov_b64 exec, -1")
        if s == 18:
            a.wait(lg="CSW"); a("s_barrier")
        a.wait(lg=f"R{s}")
        mf = kv_mf(s)
        front = breads1(s+1) if s < 19 else []
        side = []
        if s == 17:
            side += ["s_lshl_b32 s3, s28, 9", f"s_add_u32 s3, s3, {CSX}", "v_add_u32 v27, s3, v8"]
            side.append(lambda: (a("s_bfm_b64 exec, 32, 0"), a.ds(f"ds_write_b128 v27, {R(CSA, 4)}", "CSW"), a("s_mov_b64 exec, -1")))
        if s == 18:
            assert a.vm.count("US") == 8
            side += ["v_lshlrev_b32 v27, 2, v10", f"v_add_u32 v27, {CSX}, v27"]
            for w in range(4):
                side.append(lambda w=w: a.ds(f"ds_read_b128 {R(CT + 4*w, 4)}, v27 offset:{512*w}"))
                side.append(lambda w=w: a.ds(f"ds_read_b32 v{CT + 16 + w}, v27 offset:{512*w + 256}", "CSR"))
        if s == 19:
            side.append(lambda: a.wait(lg="CSR"))
            for e in range(4):
                side += [f"v_add_f32 v{CT+e}, v{CT+e}, v{CT+4+e}", f"v_add_f32 v{CT+8+e}, v{CT+8+e}, v{CT+12+e}", f"v_add_f32 v{CT+20+e}, v{CT+e}, v{CT+8+e}"]
            side += [f"v_add_f32 v{CT+16}, v{CT+16}, v{CT+17}", f"v_add_f32 v{CT+18}, v{CT+18}, v{CT+19}", f"v_add_f32 v{CT+24}, v{CT+16}, v{CT+18}"]
        side += ldlist[:3]; ldlist = ldlist[3:]
        if s >= MS0: side = [lambda: a.bg(1)]*MR + side
        a.interleave(mf, side, front)
    CSV = CT + 20
    a.stamp("kvend")
    if "plainh" in OPT:
        a("s_mul_i32 s3, s27, 21056"); a("s_add_u32 s3, s3, s58"); a("s_mul_i32 s56, s28, 5376"); a("s_add_u32 s3, s3, s56")
        a("s_bfm_b64 exec, 42, 0"); a.vmem("buffer_load_dword v4, v3, s[40:43], s3 offen"); a("s_mov_b64 exec, -1")
    OP = 116; TP = 72
    FUC = P("FUC", 14)
    if FUC < 4: ldfu()
    KBG = P("KBG", 1)
    for t in range(5):
        for tt in range(2):
            b_ = acc(tt, t)
            cp = CSV + t; cpe = cp & ~1; sel = cp & 1
            for h in range(2):
                x = b_ + 2*h
                a(f"v_pk_mul_f32 v[{TP+2*h}:{TP+2*h+1}], v[{MS+4*tt+2*h}:{MS+4*tt+2*h+1}], v[{cpe}:{cpe+1}] op_sel:[0,{sel}] op_sel_hi:[1,{sel}]")
            for h in range(2):
                x = b_ + 2*h
                a(f"v_pk_fma_f32 v[{x}:{x+1}], v[{x}:{x+1}], v[{RS+4*tt+2*h}:{RS+4*tt+2*h+1}], v[{TP+2*h}:{TP+2*h+1}] neg_lo:[0,0,1] neg_hi:[0,0,1]")
            if t <= 2: phi4(a, b_, TP, sel_mask=("s[66:67]" if t == 2 else None))
            for h in range(2):
                a(f"v_cvt_pk_bf16_f32 v{OP + 4*t + 2*tt + h}, v{acc(tt, t) + 2*h}, v{acc(tt, t) + 2*h + 1}")
            if t*2 + tt == SFU - 20:
                a.wait(vm="US")
                a("s_mov_b64 exec, 1"); a.vmem("buffer_store_dword v6, v5, s[40:43], s70 offen sc1"); a("s_mov_b64 exec, -1")
            if t*2 + tt == FUC - 4: ldfu()
            if t*2 + tt == FUC: chkfu(); a.bgq += [lambda n=n, t=t: ldwo(n, t) for n in range(5) for t in range(5)]
            a.bg(KBG)
    while "BQdone" not in a.vm and a.vm.count("BQ") < 11 or (a.bgq and a.bgq[0] is q_[11]): a.bg(1)
    KVD = 32
    for p, (ta, tb) in enumerate(PAIRS):
        a(MF(KVD + 4*p, OP + 4*ta, ONES if tb < 0 else OP + 4*tb, True))
    a("s_mul_i32 s3, s28, 10240"); a("v_add_u32 v27, s3, v8")
    for p in range(10): a(f"ds_write_b128 v27, {R(KVD + 4*p, 4)} offset:{1024*p}")
    a("s_lshl_b32 s3, s27, 4"); a("s_add_u32 s3, s3, s26"); a("s_lshl_b32 s3, s3, 12"); a(f"s_add_u32 s3, s3, {PART}")
    a("v_cmp_gt_u32 vcc, 216, v0"); a("v_cndmask_b32 v9, v2, v9, vcc")
    a.wait(lg="all")
    a("s_barrier")
    for w in range(4): a(f"ds_read_b128 {R(56 + 4*w, 4)}, v{vT1} offset:{10240*w}")
    a("s_waitcnt lgkmcnt(0)")
    for e in (0, 2):
        a(f"v_pk_add_f32 v[{56+e}:{57+e}], v[{56+e}:{57+e}], v[{60+e}:{61+e}]"); a(f"v_pk_add_f32 v[{64+e}:{65+e}], v[{64+e}:{65+e}], v[{68+e}:{69+e}]")
    for e in (0, 2): a(f"v_pk_add_f32 v[{56+e}:{57+e}], v[{56+e}:{57+e}], v[{64+e}:{65+e}]")
    if "p16" in OPT:
        a("v_cvt_pk_bf16_f32 v56, v56, v57"); a("v_cvt_pk_bf16_f32 v57, v58, v59"); a("v_lshrrev_b32 v9, 1, v9")
        a.vmem(f"buffer_store_dwordx2 v[56:57], v9, s[40:43], s3 offen sc1", "PST")
    else:
        a.vmem(f"buffer_store_dwordx4 v[56:59], v9, s[40:43], s3 offen sc1", "PST")
    ldfu()
    a("s_lshr_b32 s48, s27, 3"); a("s_and_b32 s49, s27, 7")
    a("v_lshrrev_b32 v13, 1, v11"); a("v_lshlrev_b32 v13, 8, v13"); a("v_lshl_add_u32 v13, v10, 2, v13")
    a("v_and_b32 v28, 1, v11"); a("v_lshl_add_u32 v13, v28, 3, v13")
    a("v_mul_u32_u24 v14, 320, v10"); a("v_lshl_add_u32 v15, v11, 3, v14"); a("v_lshl_add_u32 v14, v11, 4, v14")
    a("s_lshl_b32 s50, s48, 2"); a("s_add_u32 s50, s50, s28")
    a("s_lshl_b32 s3, s26, 3"); a("s_add_u32 s3, s3, s50"); a("s_mul_i32 s51, s3, 20480"); a("s_mul_i32 s3, s49, 160"); a("s_add_u32 s51, s51, s3")
    a("s_mul_i32 s53, s27, 27"); a("s_lshr_b32 s53, s53, 2")
    a("s_mul_i32 s55, s27, 143360"); a(f"s_add_u32 s55, s55, {W1P}")
    srd(a, 36, 14, 3456)
    a("v_lshlrev_b32 v23, 4, v11"); a("v_lshl_add_u32 v26, v10, 4, v23")
    a("s_lshl_b32 s62, s27, 2"); a("s_add_u32 s62, s62, s28"); a("s_lshl_b32 s62, s62, 7")
    a("s_lshl_b32 s56, s26, 7"); a("s_add_u32 s56, s56, 8192")
    a("v_mov_b32 v27, s62"); a("v_mov_b32 v28, s56"); a("v_cndmask_b32 v17, v27, v28, s[88:89]"); a("v_add_u32 v17, v17, v10")
    a("s_lshl_b32 s3, s26, 2"); a("s_add_u32 s3, s3, s62"); a(f"s_add_u32 s3, s3, {F1}")
    a.wait(vm="PST")
    a("s_mov_b64 exec, 1"); a.vmem("buffer_store_dword v6, v5, s[40:43], s3 offen sc1"); a("s_mov_b64 exec, -1")
    a("s_barrier")
    a.stamp("b7")
    chkfu(); a.bgq += [lambda n=n, t=t: ldwo(n, t) for n in range(5) for t in range(5)]
    FB3 = 156; RES = 116; C1R = 126; T2R = 146
    B1A = A0 + 204
    W1T = A0 + 100
    def w1dma(i):
        a(f"s_mul_i32 s98, s28, {24*1024}"); a(f"s_add_u32 m0, s98, {i*1024}"); a("s_add_u32 s98, s55, m0")
        a.vmem(f"buffer_load_dwordx4 v8, s[40:43], s98 offen sc1 lds", "W1")
    def w1tail(i):
        a(f"s_mul_i32 s98, s28, {11*1024}"); a(f"s_add_u32 s98, s98, {(96+i)*1024}"); a("s_add_u32 s98, s55, s98")
        a.vmem(f"buffer_load_dwordx4 {R(W1T + 4*i, 4)}, v8, s[40:43], s98 offen sc1", "W1")
    def ldsmall():
        a("v_lshlrev_b32 v31, 5, v1"); a("s_add_u32 s98, s30, T2_tab-L_pc"); a("s_addc_u32 s99, s31, 0")
        a.vmem(f"global_load_dwordx4 {R(T2R, 4)}, v31, s[98:99]"); a.vmem(f"global_load_dwordx2 {R(T2R+4, 2)}, v31, s[98:99] offset:16")
    def ldres(q):
        if q == 0: a.vmem(f"buffer_load_dwordx4 {R(RES, 4)}, v14, s[32:35], s51 offen")
        if q == 1: a.vmem(f"buffer_load_dwordx4 {R(RES+4, 4)}, v14, s[32:35], s51 offen offset:64")
        if q == 2: a.vmem(f"buffer_load_dwordx2 {R(RES+8, 2)}, v15, s[32:35], s51 offen offset:128", "RES")
    def ldb1():
        a("v_lshlrev_b32 v31, 3, v11"); a("s_lshl_b32 s98, s53, 5")
        for p in range(3): a.vmem(f"buffer_load_dwordx4 {R(B1A + 4*p, 4)}, v23, s[36:39], s98 offen offset:{64*p}")
        a.vmem(f"buffer_load_dwordx2 {R(B1A + 12, 2)}, v31, s[36:39], s98 offen offset:192")
    def ldc1():
        a("s_mul_i32 s98, s27, 20"); a("s_mul_i32 s99, s28, 5"); a("s_add_u32 s98, s98, s99"); a("s_lshl_b32 s98, s98, 9"); a(f"s_add_u32 s98, s98, {C1P}")
        a("s_mov_b64 exec, s[66:67]")
        for n in range(5): a.vmem(f"buffer_load_dwordx4 {R(C1R + 4*n, 4)}, v26, s[40:43], s98 offen offset:{512*n} sc1", "C1")
        a("s_mov_b64 exec, -1")
    def hidtouch():
        a("s_mul_i32 s98, s27, 27648"); a("s_add_u32 s98, s98, s58"); a(f"s_add_u32 s98, s98, {G_HID}"); a("s_mul_i32 s99, s28, 6912"); a("s_add_u32 s98, s98, s99")
        a("s_bfm_b64 exec, 54, 0"); a.vmem("buffer_load_dword v4, v3, s[40:43], s98 offen"); a("s_mov_b64 exec, -1")
    ldsmall()
    a.bgq += [lambda q=q: ldres(q) for q in range(3)] + [ldb1, ldc1] + [lambda i=i: w1dma(i) for i in range(24)]
    QA = 32
    def qreads(s):
        j, p = divmod(s, 4)
        return [lambda t=t: a.ds(f"ds_read_b128 {R(BF + (s%3)*12 + t*4, 4)}, v{vTQ[p] if t < 2 else vTQ2[p]} offset:{j*10240 + (t&1)*1024}", f"Q{s}") for t in range(3)]
    for f in qreads(0) + qreads(1): f()
    a(f"s_mov_b32 s56, {F1}")
    QSTOP = P("QSTOP", 16)
    for s in range(20):
        j, p = divmod(s, 4)
        if s == 18: a.wait(lg="CQW"); a("s_barrier")
        a.wait(lg=f"Q{s}")
        mf = []
        for t in range(3):
            b = BF + (s%3)*12 + t*4
            for tt in range(2): mf.append(MF(QA + (tt*3+t)*4, b, xf(tt, s), s == 0))
            if p == 0: mf.append(MF(CSQ, b, OH + 4*t, s == 0 and t == 0))
        front = qreads(s+2) if s < 18 else []
        side = []
        if s < QSTOP: side += [lambda: a.bg(1)]*P("QBG", 1)
        if s == 17:
            side.append(lambda: a.vmem("buffer_load_dword v16, v17, s[40:43], s56 offen sc1", "POLL1"))
            side += ["s_lshl_b32 s3, s28, 9", f"s_add_u32 s3, s3, {CSX}", "v_add_u32 v27, s3, v26"]
            side.append(lambda: (a("s_mov_b64 exec, s[66:67]"), a.ds(f"ds_write_b128 v27, {R(CSQ, 4)}", "CQW"), a("s_mov_b64 exec, -1")))
        if s == 18:
            side += [f"v_add_u32 v30, {CSX}, v23"]
            for w, base in ((0, 56), (1, 68), (2, 96)):
                for t in range(3): side.append(lambda w=w, t=t, base=base: a.ds(f"ds_read_b128 {R(base + 4*t, 4)}, v30 offset:{512*w + 64*t}", "CQR"))
        if s == 19:
            side.append(lambda: a.wait(lg="CQR"))
            for x in range(12): side.append(f"v_add_f32 v{56+x}, v{56+x}, v{68+x}")
            for t in range(3): side.append(lambda t=t: a.ds(f"ds_read_b128 {R(68 + 4*t, 4)}, v30 offset:{1536 + 64*t}", "CQR"))
        a.interleave(mf, side, front)
    a.stamp("qend")
    a.wait(vm="POLL1")
    a("s_mov_b32 s78, 0")
    a("L_h1p:")
    a("v_and_b32 v28, 0xfffffff8, v16"); a("v_cmp_ne_u32 vcc, s76, v28")
    a("s_cbranch_vccz L_h1ok")
    a("s_add_u32 s78, s78, 1"); a(f"s_cmp_ge_u32 s78, {POLLMAX}"); a("s_cbranch_scc1 L_h1ok")
    a("buffer_load_dword v16, v17, s[40:43], s56 offen sc1"); a("s_waitcnt vmcnt(0)")
    a("s_branch L_h1p")
    a("L_h1ok:")
    a.stamp("h1ok")
    a.vm = []
    a("v_cmp_ne_u32 vcc, s77, v16"); a("s_and_b64 vcc, vcc, s[88:89]"); a("s_cselect_b32 s79, 0, 1")
    if os.environ.get("FORCESLOW"): a("s_mov_b32 s79, 0")
    P0 = A0
    a("s_lshl_b32 s3, s27, 16"); a(f"s_add_u32 s3, s3, {PART}")
    for r_ in range(16):
        if "p16" in OPT: a.vmem(f"buffer_load_dwordx2 {R(P0 + 4*r_, 2)}, v9, s[40:43], s3 offen sc1", f"P{r_}")
        else: a.vmem(f"buffer_load_dwordx4 {R(P0 + 4*r_, 4)}, v9, s[40:43], s3 offen sc1", f"P{r_}")
        a("s_add_u32 s3, s3, 4096")
    a.bgq += [lambda i=i: w1tail(i) for i in range(11)]
    for x in range(0, 12, 2): a(f"v_pk_add_f32 v[{56+x}:{57+x}], v[{56+x}:{57+x}], v[{96+x}:{97+x}]")
    a.wait(lg="all")
    for x in range(0, 12, 2): a(f"v_pk_add_f32 v[{56+x}:{57+x}], v[{56+x}:{57+x}], v[{68+x}:{69+x}]")
    PQR = 96
    EBG = P("EBG", 2)
    for tt in range(2):
        for t in range(3):
            b_ = QA + (tt*3+t)*4
            for h in range(2):
                a(f"v_pk_mul_f32 v[{TP+2*h}:{TP+2*h+1}], v[{56+4*t+2*h}:{57+4*t+2*h}], v[{MT}:{MT+1}] op_sel:[0,{tt}] op_sel_hi:[1,{tt}]")
            for h in range(2):
                x = b_ + 2*h
                a(f"v_pk_fma_f32 v[{x}:{x+1}], v[{x}:{x+1}], v[{RT}:{RT+1}], v[{TP+2*h}:{TP+2*h+1}] op_sel:[0,{tt},0] op_sel_hi:[1,{tt},1] neg_lo:[0,0,1] neg_hi:[0,0,1]")
            phi4(a, b_, TP)
            for h in range(2):
                d = f"v{PQR + tt*6 + t*2 + h}"
                a(f"v_cvt_pk_bf16_f32 {d}, v{QA + (tt*3+t)*4 + 2*h}, v{QA + (tt*3+t)*4 + 2*h + 1}")
                if t == 2: a(f"v_cndmask_b32 {d}, 0, {d}, s[90:91]")
            a.bg(EBG)
    OSC = SCR
    TA = 56
    for s_ in range(12):
        src = T2R + s_//2
        if s_ & 1: a(f"v_lshrrev_b32 v{TA+s_}, 16, v{src}")
        else: a(f"v_and_b32 v{TA+s_}, 0xffff, v{src}")
        a(f"v_add_u32 v{TA+s_}, {OSC}, v{TA+s_}")
    for r_ in range(16):
        if r_ % 4 == 0: a.wait(vm=f"P{r_+3}")
        if "p16" in OPT:
            b_ = 32 if r_ == 0 else 36
            for e in range(2): a(f"v_accvgpr_read_b32 v{40+e}, {R(P0+4*r_+e)}")
            for e in range(2): a(f"v_lshlrev_b32 v{b_+2*e}, 16, v{40+e}"); a(f"v_and_b32 v{b_+2*e+1}, 0xffff0000, v{40+e}")
        else:
            for e in range(4): a(f"v_accvgpr_read_b32 v{(32 if r_ == 0 else 36)+e}, {R(P0+4*r_+e)}")
        if r_:
            for e in (0, 2): a(f"v_pk_add_f32 v[{32+e}:{33+e}], v[{32+e}:{33+e}], v[{36+e}:{37+e}]")
        if r_ % 4 == 3: a.bg(EBG)
    a("v_cvt_pk_bf16_f32 v18, v32, v33"); a("v_cvt_pk_bf16_f32 v19, v34, v35")
    a("v_cmp_gt_u32 vcc, 210, v0")
    a("v_cndmask_b32 v18, 0, v18, vcc"); a("v_cndmask_b32 v19, 0, v19, vcc")
    a("v_lshlrev_b32 v27, 3, v0"); a(f"v_add_u32 v27, {OSC}, v27")
    a("ds_write_b64 v27, v[18:19]")
    a("s_waitcnt lgkmcnt(0)")
    a("s_barrier")
    a.stamp("b9")
    KF = A0 + 64
    for E in range(4):
        for ta in range(3): a(f"ds_read_b64 {R(KF + 8*E + 2*ta, 2)}, v{TA + 3*E + ta}")
    a("s_mul_i32 s3, s28, 40960"); a("s_mul_i32 s56, s27, 1280"); a("s_add_u32 s3, s3, s56"); a("s_add_u32 s3, s3, s58")
    a("v_lshlrev_b32 v27, 2, v10"); a("v_lshl_add_u32 v27, v11, 3, v27")
    a("v_cndmask_b32 v27, v2, v27, s[90:91]")
    a("s_waitcnt lgkmcnt(0)")
    D = 32
    for tt in range(2):
        for E in (3, 0, 1, 2):
            d = R(D + (tt*4+E)*4, 4)
            a(f"v_mfma_f32_16x16x32_bf16 {d}, {R(KF + 8*E, 4)}, {R(PQR + 6*tt, 4)}, 0")
    for tt in range(2):
        for E in (3, 0, 1, 2):
            d = R(D + (tt*4+E)*4, 4)
            a(f"v_mfma_f32_16x16x16_bf16 {d}, {R(KF + 8*E + 4, 2)}, {R(PQR + 6*tt + 4, 2)}, {d}")
    for tt in range(2):
        z = D + (tt*4+3)*4
        a(f"v_add_f32 v20, s61, v{z}"); a(f"v_add_f32 v21, s61, v{z+1}")
        a("v_rcp_f32 v20, v20"); a("v_rcp_f32 v21, v21")
        a("v_cndmask_b32 v22, v21, v20, s[92:93]"); a("v_cndmask_b32 v28, v21, v20, s[90:91]")
        ob = 64 + 8*tt
        for E, rc in ((0, 22), (1, 28), (2, 21)):
            d = D + (tt*4+E)*4
            for e in range(4): a(f"v_mul_f32 v{d+e}, v{d+e}, v{rc}")
            a(f"v_cvt_pk_bf16_f32 v{ob + 2*E}, v{d}, v{d+1}"); a(f"v_cvt_pk_bf16_f32 v{ob + 2*E + 1}, v{d+2}, v{d+3}")
        a.vmem(f"buffer_store_dwordx4 {R(ob, 4)}, v8, s[40:43], s3 offen{HS}", "ST")
        a.vmem(f"buffer_store_dwordx2 {R(ob + 4, 2)}, v27, s[40:43], s3 offen offset:1024{HS}", "ST")
        a("s_add_u32 s3, s3, 20480")

    def hop(n, before, after_pub, post=0, touch=None, post2=0):
        before()
        a(f"s_add_u32 s59, s58, {G_FL + 128*n}")
        a("s_lshl_b32 s3, s27, 2"); a("s_add_u32 s3, s3, s59")
        a.bg(post)
        a.wait(vm="ST")
        if touch and "notouch" not in OPT: touch()
        a("s_barrier")
        a.stamp(f"hop{n}a")
        a("s_cmp_lg_u32 s28, 0"); a(f"s_cbranch_scc1 L_g{n}np")
        a("s_mov_b64 exec, 1")
        a("s_cmp_eq_u32 s79, 0"); a(f"s_cbranch_scc1 L_g{n}slow")
        a("buffer_store_dword v6, v5, s[40:43], s3 offen")
        a(f"s_branch L_g{n}pd")
        a(f"L_g{n}slow:")
        if FENCE: a("buffer_wbl2 sc1"); a("s_waitcnt vmcnt(0)")
        a("buffer_store_dword v6, v5, s[40:43], s3 offen sc1")
        a(f"L_g{n}pd:")
        a("s_mov_b64 exec, -1")
        a(f"L_g{n}np:")
        after_pub()
        a.bg(post2)
        a("s_cmp_lg_u32 s28, 0"); a(f"s_cbranch_scc1 L_g{n}j")
        a("s_mov_b32 s78, 0")
        a(f"L_g{n}p:")
        a("buffer_load_dword v27, v10, s[40:43], s59 offen sc1")
        a("s_add_u32 s78, s78, 1")
        a("s_waitcnt vmcnt(0)")
        a("v_cmp_ne_u32 vcc, s76, v27")
        a(f"s_cmp_ge_u32 s78, {POLLMAX}"); a(f"s_cbranch_scc1 L_g{n}x")
        a(f"s_cbranch_vccnz L_g{n}p")
        a(f"L_g{n}x:")
        if FENCE:
            a("s_cmp_lg_u32 s79, 0"); a(f"s_cbranch_scc1 L_g{n}j")
            a("buffer_inv sc1"); a("s_waitcnt vmcnt(0)")
        a(f"L_g{n}j:")
        a("s_barrier")
        a.stamp(f"hop{n}b")
    def a_off(NK, goff):
        for m in range(4):
            a(f"s_add_u32 s3, s28, {m}"); a("s_and_b32 s3, s3, 3"); a("s_lshl_b32 s57, s48, 2"); a("s_add_u32 s3, s3, s57")
            a(f"s_mul_i32 s3, s3, {NK}"); a("s_add_u32 s3, s3, s28"); a("s_lshl_b32 s3, s3, 10"); a("s_add_u32 s3, s3, s58"); a(f"s_add_u32 s{80+m}, s3, {goff}")
    def ctouch(lab, nl):
        def f():
            a("s_lshl_b32 s98, s27, 2"); a("s_add_u32 s98, s98, s28"); a(f"s_mul_i32 s98, s98, {128*nl}"); a(f"s_add_u32 s98, s98, {lab}-L_pc")
            a("v_add_u32 v31, s98, v3"); a(f"s_bfm_b64 exec, {nl}, 0")
            a.vmem("global_load_dword v4, v31, s[30:31]"); a("s_mov_b64 exec, -1")
        return f
    if "noct" not in OPT: a.bgq.insert(0, ctouch("L_cS4", 2))
    def flush_wo():
        while any(True for _ in [0]) and a.bgq and len(a.bgq) > 24 + 11: a.bg(1)
    def bef0():
        a_off(20, G_O)
        a("s_mul_i32 s99, s28, 40960"); a("s_mul_i32 s56, s27, 1280"); a("s_add_u32 s99, s99, s56"); a("s_add_u32 s99, s99, s58")
        a("v_mul_u32_u24 v28, 20480, v11"); a("v_lshl_add_u32 v28, v10, 5, v28")
    def tch0():
        a("s_mov_b64 exec, 0x03ff03ff"); a.vmem("buffer_load_dword v4, v28, s[40:43], s99 offen sc1"); a("s_mov_b64 exec, -1")
    hop(0, bef0, lambda: None, post=0, touch=tch0, post2=P("POST0", 10))
    flush_wo()
    ACC = 32 ; FA3 = A0
    for n in range(5):
        for m in range(4):
            a.vmem(f"buffer_load_dwordx4 {R(FA3 + (n*4+m)*4, 4)}, v8, s[40:43], s{80+m} offen sc1", f"A{n}")
            a(f"s_add_u32 s{80+m}, s{80+m}, 4096")
    if "sc1hid" not in OPT: a.bgq.insert(0, hidtouch)
    RED = 102400
    def red_addr():
        for m in range(1, 4):
            a(f"s_add_u32 s3, s28, {m}"); a("s_and_b32 s3, s3, 3"); a("s_mul_i32 s3, s3, 15360"); a(f"s_add_u32 s3, s3, {RED}")
            a(f"v_add_u32 v{16+m}, s3, v8")
        a("s_mul_i32 s3, s28, 15360"); a(f"s_add_u32 s3, s3, {RED}"); a("v_add_u32 v16, s3, v8")
    def init_acc(srcs):
        for t in range(5):
            for e in range(4):
                for q, src0 in enumerate(srcs):
                    src = src0 + 2*t + (e >> 1); d = ACC+4*t+e if q == 0 else 27
                    if e & 1: a(f"v_and_b32 v{d}, 0xffff0000, v{src}")
                    else: a(f"v_lshlrev_b32 v{d}, 16, v{src}")
                    if q: a(f"v_add_f32 v{ACC+4*t+e}, v{ACC+4*t+e}, v27")
    def last_step(mfn):
        order = [(m, t) for m in (1, 2, 3, 0) for t in range(5)]
        for i, (m, t) in enumerate(order):
            a(mfn(m, t))
            if i >= 5:
                m2, t2 = order[i-5]
                a(f"ds_write_b128 v{16+m2}, {R(ACC + (m2*5+t2)*4, 4)} offset:{(m2-1)*5120 + t2*1024}")
    red_addr()
    if "RES" in a.vm: a.wait(vm="RES")
    init_acc([RES])
    S3BG = P("S3BG", 3)
    for n in range(5):
        a.wait(vm=f"A{n}")
        if n == 4:
            last_step(lambda m, t: MF(ACC + (m*5+t)*4, FB3 + (n*5+t)*4, FA3 + (n*4+m)*4, False)); a.bg(S3BG)
        else:
            mf = [MF(ACC + (m*5+t)*4, FB3 + (n*5+t)*4, FA3 + (n*4+m)*4, n == 0 and m > 0) for m in range(4) for t in range(5)]
            a.interleave(mf, [lambda: a.bg(1)]*S3BG)
    a.stamp("s3end")
    a("L_cS4:")
    if "plainhid" in OPT and P("HTP", 0) == 0: hidtouch()
    HF = A0; BF = A0 + 160
    NA = P("NA", 4); BS = 4*max(NA, 7 - NA)
    if NA == 4:
        slots = [156 + 4*i for i in range(16)] + [A0 + 192 + 4*i for i in range(3)] + [A0 + 220 + 4*i for i in range(9)] + [HF + 4*i for i in range(40)] + [BF + 4*i for i in range(2)]
        NEARLY = 28
        arA = [A0 + 168 + 4*i for i in range(6)] + [A0 + 204 + 4*i for i in range(4)]
    elif NA == 7:
        for x in range(14): a(f"v_accvgpr_mov_b32 {R(A0 + 240 + x)}, {R(B1A + x)}")
        B1A = A0 + 240
        slots = [156 + 4*i for i in range(16)] + [A0 + 216 + 4*i for i in range(6)] + [HF + 4*i for i in range(40)] + [BF + 4*i for i in range(8)]
        NEARLY = 22
        arA = [A0 + 192 + 4*i for i in range(6)] + [A0 + 240 + 4*i for i in range(4)]
    else:
        for x in range(14): a(f"v_accvgpr_mov_b32 {R(A0 + 240 + x)}, {R(B1A + x)}")
        B1A = A0 + 240
        slots = [156 + 4*i for i in range(16)] + [A0 + 208 + 4*i for i in range(8)] + [HF + 4*i for i in range(40)] + [BF + 4*i for i in range(6)]
        NEARLY = 24
        arA = [A0 + 184 + 4*i for i in range(6)] + [A0 + 240 + 4*i for i in range(4)]
    def fb(n, t): return slots[n*5 + t]
    a("s_mul_i32 s3, s49, 54"); a("s_add_u32 s3, s3, s28"); a("s_mul_i32 s54, s3, 5120"); a(f"s_add_u32 s54, s54, {W2P}")
    def ldw2(n, t):
        if n == 13 and t == 0:
            a("s_cmp_ge_u32 s28, 2"); a("s_cselect_b32 s98, 0x40000000, 0"); a("s_add_u32 s54, s54, s98")
        a.vmem(f"buffer_load_dwordx4 {R(fb(n, t), 4)}, v{8 if t < 4 else 12}, s[40:43], s54 offen offset:{1024*(t&3)} sc1", f"W2_{n}")
        if t == 4: a("s_add_u32 s54, s54, 20480")
    w2q = [(n, t) for n in range(14) for t in range(5)]
    nw1left = len(a.bgq)
    def w2bg():
        ldw2(*w2q.pop(0))
    a.bgq += [w2bg]*NEARLY
    def reduce_epi(which, BIA=None, nbg=0):
        a.bg(2*nbg)
        a("s_waitcnt lgkmcnt(0)")
        a("s_barrier")
        for t in range(5):
            for m in range(1, 4): a(f"ds_read_b128 {R(ACC + (m*5+t)*4, 4)}, v16 offset:{(m-1)*5120 + t*1024}")
        for t in range(5):
            a(f"s_waitcnt lgkmcnt({12 - 3*t})")
            for e in (0, 2):
                x0 = ACC + 4*t + e
                a(f"v_pk_add_f32 v[{x0+20}:{x0+21}], v[{x0+20}:{x0+21}], v[{x0+40}:{x0+41}]"); a(f"v_pk_add_f32 v[{x0}:{x0+1}], v[{x0}:{x0+1}], v[{x0+60}:{x0+61}]")
            for e in (0, 2):
                x0 = ACC + 4*t + e
                a(f"v_pk_add_f32 v[{x0}:{x0+1}], v[{x0}:{x0+1}], v[{x0+20}:{x0+21}]")
            for h in range(2): a(f"v_cvt_pk_bf16_f32 v{RES+2*t+h}, v{ACC+4*t+2*h}, v{ACC+4*t+2*h+1}")
            if which == 3:
                if t == 1: a.vmem(f"buffer_store_dwordx4 {R(RES, 4)}, v8, s[40:43], s57 offen{HS}")
                if t == 3: a.vmem(f"buffer_store_dwordx4 {R(RES+4, 4)}, v8, s[40:43], s57 offen offset:1024{HS}")
                if t == 4: a.vmem(f"buffer_store_dwordx2 {R(RES+8, 2)}, v13, s[40:43], s57 offen offset:2048{HS}")
    a("s_mul_i32 s57, s50, 20480"); a("s_mul_i32 s3, s49, 2560"); a("s_add_u32 s57, s57, s3"); a("s_add_u32 s57, s57, s58"); a(f"s_add_u32 s57, s57, {G_H}")
    reduce_epi(3, nbg=P("R3BG", 3))
    a(f"v_pk_add_f32 v[28:29], v[{ACC}:{ACC+1}], v[{ACC+2}:{ACC+3}]"); a(f"v_pk_mul_f32 v[30:31], v[{ACC}:{ACC+1}], v[{ACC}:{ACC+1}]"); a(f"v_pk_fma_f32 v[30:31], v[{ACC+2}:{ACC+3}], v[{ACC+2}:{ACC+3}], v[30:31]")
    for x in range(4, 20, 2):
        a(f"v_pk_add_f32 v[28:29], v[28:29], v[{ACC+x}:{ACC+x+1}]"); a(f"v_pk_fma_f32 v[30:31], v[{ACC+x}:{ACC+x+1}], v[{ACC+x}:{ACC+x+1}], v[30:31]")
    a("v_add_f32 v20, v28, v29"); a("v_add_f32 v21, v30, v31")
    def red_g(regs, tmp):
        for r_ in regs:
            a(f"v_mov_b32 {tmp}, {r_}"); a(f"v_permlane32_swap_b32 {r_}, {tmp}"); a(f"v_add_f32 {r_}, {r_}, {tmp}")
            a(f"v_mov_b32 {tmp}, {r_}"); a(f"v_permlane16_swap_b32 {r_}, {tmp}"); a(f"v_add_f32 {r_}, {r_}, {tmp}")
    red_g(["v20", "v21"], "v22")
    a("v_lshlrev_b32 v22, 1, v10")
    a("s_lshl_b32 s57, s50, 10"); a("s_lshl_b32 s3, s49, 7"); a("s_add_u32 s57, s57, s3"); a("s_add_u32 s57, s57, s58"); a(f"s_add_u32 s57, s57, {G_ST}")
    a.vmem(f"buffer_store_dwordx2 v[20:21], v22, s[40:43], s57 offen{HS}", "ST")
    CS = 128; CSL = 144384
    def bef3():
        a("s_mul_i32 s3, s28, 40960"); a("s_add_u32 s3, s3, s58"); a(f"s_add_u32 s80, s3, {G_H}"); a("s_add_u32 s81, s80, 20480")
        a("s_lshl_b32 s82, s28, 11"); a("s_add_u32 s82, s82, s58"); a(f"s_add_u32 s82, s82, {G_ST}")
        a("v_lshlrev_b32 v19, 8, v11"); a("v_lshl_add_u32 v19, v10, 1, v19")
        a("v_add_u32 v16, 57344, v8"); a("v_add_u32 v17, 114688, v8")
        a(f"s_mul_i32 s3, s28, {11*1024}"); a(f"s_add_u32 s3, s3, {96*1024}"); a("v_add_u32 v18, s3, v8")
        for e in range(4):
            a(f"v_add_f32 v{C1R+e}, v{C1R+e}, v{C1R+4+e}"); a(f"v_add_f32 v{C1R+8+e}, v{C1R+8+e}, v{C1R+12+e}")
            a(f"v_add_f32 v{C1R+e}, v{C1R+e}, v{C1R+16+e}"); a(f"v_add_f32 v{C1R+e}, v{C1R+e}, v{C1R+8+e}")
        a("s_lshl_b32 s3, s28, 9"); a(f"s_add_u32 s3, s3, {CSL}"); a("v_add_u32 v29, s3, v26")
    def aft3():
        if "W1" in a.vm: a.wait(vm="W1")
        for i in range(11): a(f"ds_write_b128 v18, {R(W1T + 4*i, 4)} offset:{1024*i}")
        a("s_mov_b64 exec, s[66:67]"); a(f"ds_write_b128 v29, {R(C1R, 4)}"); a("s_mov_b64 exec, -1")
        a("s_waitcnt lgkmcnt(0)")
    left1 = max(0, len(a.bgq) - len([1 for x in a.bgq if x is w2bg]))
    print("w1 left at hop3:", left1, "w2 issued:", 70 - len(w2q), file=sys.stderr)
    def tch1():
        a("s_mul_i32 s99, s50, 20480"); a("s_mul_i32 s98, s49, 2560"); a("s_add_u32 s99, s99, s98"); a("s_add_u32 s99, s99, s58"); a(f"s_add_u32 s99, s99, {G_H}")
        a("s_mov_b64 exec, 0xfffff"); a.vmem("buffer_load_dword v4, v3, s[40:43], s99 offen sc1"); a("s_mov_b64 exec, -1")
    hop(1, bef3, aft3, post=left1, touch=tch1, post2=max(0, P("POST1", 6) - left1))
    def hf(tt, k): return HF + (k*2 + tt)*4
    def ldh(k):
        def one(tt):
            a.vmem(f"buffer_load_dwordx4 {R(hf(tt, k), 4)}, v8, s[40:43], s{80+tt} offen offset:{1024*(k&3)} sc1", f"H{k}")
            if (k & 3) == 3: a(f"s_add_u32 s{80+tt}, s{80+tt}, 4096")
        return [lambda tt=tt: one(tt) for tt in range(2)]
    PRE = P("PRE4", 6)
    for k in range(PRE):
        for f in ldh(k): f()
    for tt in range(2):
        for q in range(2):
            a.vmem(f"buffer_load_dwordx2 {R(88 + 4*tt + 2*q, 2)}, v19, s[40:43], s82 offen offset:{1024*tt + 128*q} sc1", "STAT")
    def breads(ps, k):
        ts = range(NA) if ps == 0 else range(NA, 7)
        return [lambda t=t: a.ds(f"ds_read_b128 {R(BF + (k&1)*BS + 4*(t - ts[0]), 4)}, v{[8, 16, 17][k >> 3]} offset:{(k & 7)*7168 + 1024*t}", f"BR{ps}_{k}") for t in ts]
    for f in breads(0, 0): f()
    vS = [20, 21]; vQ = [24, 25]
    a(f"v_add_u32 v18, {CSL}, v23")
    hq = list(range(PRE, 20))
    B1U = 220
    c1 = -2.0*LOG2E*0.7978845608028654
    c2 = c1*0.044715
    a(f"s_mov_b32 s60, {hx(c1)}"); a(f"s_mov_b32 s61, {hx(c2)}")
    a("s_mul_i32 s56, s28, 110592"); a("s_lshl_b32 s3, s53, 9"); a("s_add_u32 s56, s56, s3"); a("s_add_u32 s56, s56, s58"); a(f"s_add_u32 s56, s56, {G_HID}"); a("s_add_u32 s57, s56, 55296")
    for k in range(20):
        a.wait(vm=f"H{k}", lg=f"BR0_{k}")
        front = breads(0, k+1) if k < 19 else (breads(1, 0) if NA < 7 else [])
        side = []
        if NA == 7:
            if hq:
                for _ in range(P("HRATE", 2)):
                    if hq: side += ldh(hq.pop(0))
            else:
                side += [w2bg]*max(0, min(P("ABG", 2), len(w2q), NEARLY + 2*k - (70 - len(w2q))))
        elif hq:
            side += ldh(hq.pop(0))
            if not hq and "plainhid" in OPT and P("HTP", 0) == 1: side.append(hidtouch)
        else: side += [lambda: a.bg(1)]*P("ABG", 1)
        if 1 <= k < 8:
            kk = k - 1; tb = 96 if kk % 2 == 0 else 220
            side.append(lambda kk=kk: a.wait(lg=f"CG{kk}"))
            for e in range(4):
                side += [f"v_add_f32 v{CS+4*kk+e}, v{CS+4*kk+e}, v{tb+e}", f"v_add_f32 v{tb+4+e}, v{tb+4+e}, v{tb+8+e}", f"v_add_f32 v{CS+4*kk+e}, v{CS+4*kk+e}, v{tb+4+e}"]
        if k < 7:
            tb = 96 if k % 2 == 0 else 220
            for w in range(4): front.append(lambda w=w, k=k, tb=tb: a.ds(f"ds_read_b128 {R((CS + 4*k) if w == 0 else (tb - 4 + 4*w), 4)}, v18 offset:{512*w + 64*k}", f"CG{k}"))
        if k == PRE + 2:
            for tt in range(2):
                side.append(f"v_add_f32 v{vS[tt]}, v{88+4*tt}, v{90+4*tt}"); side.append(f"v_add_f32 v{vQ[tt]}, v{89+4*tt}, v{91+4*tt}")
            side.append(lambda: red_g([f"v{x}" for x in vS + vQ], "v22"))
        if k == PRE + 3:
            for tt in range(2):
                s_, q_ = f"v{vS[tt]}", f"v{vQ[tt]}"
                side += [f"v_mul_f32 {s_}, s63, {s_}", f"v_mul_f32 {q_}, s63, {q_}", f"v_fma_f32 {q_}, -{s_}, {s_}, {q_}", f"v_max_f32 {q_}, 0, {q_}",
                         f"v_add_f32 v22, s64, {q_}", f"v_fma_f32 {q_}, v22, s64, {q_}", f"v_rsq_f32 {q_}, {q_}", f"v_mul_f32 {s_}, {s_}, {q_}"]
            side += ["v_mov_b32 v252, s60", "v_mov_b32 v253, s60", "s_mov_b32 s96, s61", "s_mov_b32 s97, s61"]
        if k >= 12:
            x = 2*(k - 12)
            for y in (x, x + 1):
                if y < 14:
                    side += [f"v_accvgpr_read_b32 v27, {R(B1A + y)}", f"v_lshlrev_b32 v{B1U+2*y}, 16, v27", f"v_and_b32 v{B1U+2*y+1}, 0xffff0000, v27"]
        mf = [MF(ACC + (tt*7+t)*4, BF + (k&1)*BS + 4*t, hf(tt, k), k == 0) for t in range(NA) for tt in range(2)]
        a.interleave(mf, side, front)
    a.stamp("s4A")
    if "noct" not in OPT: ctouch("L_cS5", 1)()
    PK = 88
    def gelu(tt, t, pk=False):
        L = []
        if pk:
            b_ = ACC + (tt*7+t)*4
            pr = lambda x: f"v[{x}:{x+1}]"
            for h in (0, 2): L.append(f"v_pk_fma_f32 {pr(248+h)}, v[20:21], {pr(CS+4*t+h)}, {pr(B1U+4*t+h)} op_sel:[{tt},0,0] op_sel_hi:[{tt},1,1] neg_lo:[1,0,0] neg_hi:[1,0,0]")
            for h in (0, 2): L.append(f"v_pk_fma_f32 {pr(b_+h)}, {pr(b_+h)}, v[24:25], {pr(248+h)} op_sel:[0,{tt},0] op_sel_hi:[1,{tt},1]")
            for h in (0, 2): L.append(f"v_pk_mul_f32 {pr(248+h)}, {pr(b_+h)}, {pr(b_+h)}")
            for h in (0, 2): L.append(f"v_pk_fma_f32 {pr(248+h)}, {pr(248+h)}, s[96:97], v[252:253]")
            for h in (0, 2): L.append(f"v_pk_mul_f32 {pr(248+h)}, {pr(248+h)}, {pr(b_+h)}")
            for e in range(4): L.append(f"v_exp_f32 v{248+e}, v{248+e}")
            for h in (0, 2): L.append(f"v_pk_add_f32 {pr(248+h)}, {pr(248+h)}, 1.0 op_sel_hi:[1,0]")
            for e in range(4): L.append(f"v_rcp_f32 v{248+e}, v{248+e}")
            for h in (0, 2): L.append(f"v_pk_mul_f32 {pr(b_+h)}, {pr(b_+h)}, {pr(248+h)}")
        else:
            for e in range(4):
                v_ = f"v{ACC + (tt*7+t)*4 + e}"; ta = f"v{248+e}"
                L += [f"v_fma_f32 {ta}, -v{vS[tt]}, v{CS+4*t+e}, v{B1U+4*t+e}", f"v_fma_f32 {v_}, {v_}, v{vQ[tt]}, {ta}", f"v_mul_f32 {ta}, {v_}, {v_}",
                      f"v_fma_f32 {ta}, {ta}, s61, v252", f"v_mul_f32 {ta}, {ta}, {v_}", f"v_exp_f32 {ta}, {ta}"]
            for e in range(4):
                ta = f"v{248+e}"; L += [f"v_add_f32 {ta}, 1.0, {ta}"]
            for e in range(4):
                ta = f"v{248+e}"; L += [f"v_rcp_f32 {ta}, {ta}"]
            for e in range(4):
                v_ = f"v{ACC + (tt*7+t)*4 + e}"; L.append(f"v_mul_f32 {v_}, {v_}, v{248+e}")
        for h in range(2):
            x0 = ACC + (tt*7+t)*4 + 2*h
            L.append(f"v_cvt_pk_bf16_f32 v{PK + tt*14 + 2*t + h}, v{x0}, v{x0+1}")
        if t & 1: L.append(lambda: a.vmem(f"buffer_store_dwordx4 {R(PK + tt*14 + 2*(t-1), 4)}, v8, s[40:43], s{56+tt} offen offset:{512*(t-1)}{HS2}", "ST" if t > 3 else "ST01"))
        if t == 6: L.append(lambda: a.vmem(f"buffer_store_dwordx2 {R(PK + tt*14 + 12, 2)}, v13, s[40:43], s{56+tt} offen offset:3072{HS2}", "ST"))
        return L
    gl = []
    for p in range(NA//2 if NA < 7 else 0):
        for tt in range(2): gl += gelu(tt, 2*p, "pkB" in OPT) + gelu(tt, 2*p+1, "pkB" in OPT)
    a.bgq = []
    W2RATE = P("W2RATE", 2)
    for k in range(20 if NA < 7 else 0):
        a.wait(lg=f"BR1_{k}")
        front = breads(1, k+1) if k < 19 else []
        q = (len(gl) + 19 - k)//(20 - k) if k > 0 else 0
        side = gl[:q]; gl = gl[q:]
        nin = max(0, min(W2RATE, len(w2q), NEARLY + 2*k - (70 - len(w2q))))
        for i_ in range(nin): side.insert((i_ + 1)*len(side)//(nin + 1), w2bg)
        mf = [MF(ACC + (tt*7+t)*4, BF + (k&1)*BS + 4*(t-NA), hf(tt, k), k == 0) for t in range(NA, 7) for tt in range(2)]
        a.interleave(mf, side, front)
    a.stamp("s4B")
    a("L_cS5:")
    W2EPI = P("W2EPI", 2)
    seq = [(0, 4), (0, 5), (1, 4), (1, 5), (0, 6), (1, 6)] if NA == 4 else [(0, 6), (1, 6)]
    if NA == 7: seq = [(tt, 2*p + q) for p in range(3) for tt in range(2) for q in range(2)] + [(0, 6), (1, 6)]
    for i_, (tt, t) in enumerate(seq):
        L = gelu(tt, t, True)
        if i_ == P("HT", 99):
            a("v_and_b32 v28, 1, v11"); a("v_mul_u32_u24 v28, 55296, v28"); a("v_lshl_add_u32 v28, v10, 5, v28")
            a.wait(vm="ST01")
            a("s_bfm_b64 exec, 32, 0"); a.vmem("buffer_load_dword v4, v28, s[40:43], s56 offen sc1"); a("s_mov_b64 exec, -1")
        for j_, x in enumerate(L):
            a.run(x)
            if i_ < P("W2STOP", 4) and j_ in (6, 16)[:W2EPI] and w2q: ldw2(*w2q.pop(0))
    BIA = 126
    def bef4():
        srd(a, 32, 20, 2621440); srd(a, 36, 18, 1280)
        a_off(54, G_HID)
        a("v_lshlrev_b32 v28, 3, v11"); a("s_mul_i32 s3, s49, 160")
        a.vmem(f"buffer_load_dwordx4 {R(BIA, 4)}, v23, s[36:39], s3 offen")
        a.vmem(f"buffer_load_dwordx4 {R(BIA+4, 4)}, v23, s[36:39], s3 offen offset:64")
        a.vmem(f"buffer_load_dwordx2 {R(BIA+8, 2)}, v28, s[36:39], s3 offen offset:128", "BIA")
    npost = min(P("POST2", 4), len(w2q))
    a.bgq = [lambda x=x: ldw2(*x) for x in w2q[:npost]]; w2q = w2q[npost:]
    print("w2 left after hop4:", len(w2q), file=sys.stderr)
    def tch2():
        a("v_lshrrev_b32 v28, 5, v1"); a("v_mul_u32_u24 v28, 55296, v28"); a("v_and_b32 v29, 31, v1"); a("v_lshl_add_u32 v28, v29, 7, v28")
        a("s_mov_b32 exec_lo, 0x0fffffff"); a("s_mov_b32 exec_hi, 0x0fffffff"); a.vmem("buffer_load_dword v4, v28, s[40:43], s56 offen sc1"); a("s_mov_b64 exec, -1")
    hop(2, bef4, lambda: None, post=0, touch=tch2, post2=npost)
    ar = [136 + 4*i for i in range(5)] + [220 + 4*i for i in range(9)] + arA
    NR = 6
    def fa(n, m): return ar[(n % NR)*4 + m]
    def lda5(n):
        def one(m):
            if n == 13 and m == 0:
                a("s_cmp_ge_u32 s28, 2"); a("s_cselect_b32 s3, 0x40000000, 0")
                for q in range(4): a(f"s_add_u32 s{80+q}, s{80+q}, s3")
            a.vmem(f"buffer_load_dwordx4 {R(fa(n, m), 4)}, v8, s[40:43], s{80+m} offen sc1", f"A5_{n}")
            a(f"s_add_u32 s{80+m}, s{80+m}, 4096")
        return [lambda m=m: one(m) for m in range(4)]
    PRE5 = P("PRE5", 3)
    def need_w2(n):
        L = []
        while w2q and w2q[0][0] <= n:
            x = w2q.pop(0); L.append(lambda x=x: ldw2(*x))
        return L
    for n in range(PRE5):
        for f in need_w2(n) + lda5(n): f()
    def ldbia():
        a("v_lshlrev_b32 v28, 3, v11"); a("s_mul_i32 s3, s49, 160")
        a.vmem(f"buffer_load_dwordx4 {R(BIA, 4)}, v23, s[36:39], s3 offen")
        a.vmem(f"buffer_load_dwordx4 {R(BIA+4, 4)}, v23, s[36:39], s3 offen offset:64")
        a.vmem(f"buffer_load_dwordx2 {R(BIA+8, 2)}, v28, s[36:39], s3 offen offset:128")
    red_addr(); a.wait(vm="BIA"); init_acc([RES, BIA])
    nxt = PRE5
    for n in range(14):
        a.wait(vm=f"A5_{n}")
        side = []; cnt = 0
        while nxt < 14 and nxt <= n + NR - 1 and cnt < 2:
            side += need_w2(nxt) + lda5(nxt); nxt += 1; cnt += 1
        if n == 13:
            last_step(lambda m, t: MF(ACC + (m*5+t)*4, fb(n, t), fa(n, m), False))
        else:
            mf = [MF(ACC + (m*5+t)*4, fb(n, t), fa(n, m), n == 0 and m > 0) for m in range(4) for t in range(5)]
            a.interleave(mf, side)
    a.stamp("s5end")
    reduce_epi(5, BIA)
    a(f"buffer_store_dwordx4 {R(RES, 4)}, v14, s[32:35], s51 offen")
    a(f"buffer_store_dwordx4 {R(RES+4, 4)}, v14, s[32:35], s51 offen offset:64")
    a(f"buffer_store_dwordx2 {R(RES+8, 2)}, v15, s[32:35], s51 offen offset:128")
    a("s_or_b32 s3, s2, s28"); a("s_cmp_lg_u32 s3, 0"); a("s_cbranch_scc1 L_notagclr")
    a("global_store_dword v5, v5, s[22:23] sc1")
    a("L_notagclr:")
    a.stamp("stored")
    if STAMP:
        a("s_waitcnt vmcnt(0)")
        a.stamp("end")
        a("s_memrealtime s[100:101]"); a("s_waitcnt lgkmcnt(0)"); a("v_writelane_b32 v7, s100, 31")
        a("v_writelane_b32 v7, s79, 30")
        a("s_lshl_b32 s3, s2, 2"); a("s_add_u32 s3, s3, s28"); a("s_lshl_b32 s3, s3, 8"); a(f"s_add_u32 s3, s3, {STB}")
        a("v_lshlrev_b32 v27, 2, v1"); a("v_add_u32 v27, s3, v27")
        a("global_store_dword v27, v7, s[24:25]")
        if os.environ.get("DELAY"):
            di = os.environ["DELAY"]
            a(f"s_cmp_lg_u32 s2, {P('DWG', 8)}"); a("s_cbranch_scc1 L_end"); a("s_cmp_lg_u32 s28, 0"); a("s_cbranch_scc1 L_end")
            clk = "s_memrealtime" if di == "rt" else "s_memtime"
            a(f"{clk} s[100:101]"); a("s_waitcnt lgkmcnt(0)")
            if di == "rt":
                a("s_sub_u32 s3, s100, s76")
            else:
                a(f"v_readlane_b32 s3, v7, {di}"); a("v_readlane_b32 s56, v7, 0"); a("s_nop 3"); a("s_sub_u32 s3, s3, s56")
            a("s_lshl_b32 s3, s3, 2"); a("s_min_u32 s3, s3, 0x100000"); a("s_mov_b32 s57, s100")
            a("L_dly:")
            a(f"{clk} s[100:101]"); a("s_waitcnt lgkmcnt(0)"); a("s_sub_u32 s56, s100, s57"); a("s_cmp_lt_u32 s56, s3"); a("s_cbranch_scc1 L_dly")
        a.a.raw("; STAMPS " + " ".join(a.names))
    a("L_end:")
    a("s_endpgm")
    return a.a

def main(out):
    hdr = open("sequential_preLN__linear_attn_block__mixer_channel_mlp__prompt.s.ref").read().split("\n")
    hdr = [l for l in hdr if l.startswith(";") and "@launch" not in l]
    hdr.append("; @launch grid=(256,1,1) block=(256,1,1) lds=163840")
    a = gen()
    pre = '.amdgcn_target "amdgcn-amd-amdhsa--gfx950"\n.text\n'
    T1, T2 = build_tables()
    a.raw(".p2align 6\nT1_tab:")
    a.raw(".short " + ",".join(map(str, T1)))
    a.raw("T2_tab:")
    for row in T2: a.raw(".short " + ",".join(map(str, row)))
    a.raw(".fill 2048, 4, 0")
    a.raw('.section .rodata,"a"\n.p2align 6')
    a.raw(f""".amdhsa_kernel {NAME}
  .amdhsa_next_free_vgpr 512
  .amdhsa_next_free_sgpr 102
  .amdhsa_accum_offset 256
  .amdhsa_group_segment_fixed_size 0
  .amdhsa_kernarg_size 88
  .amdhsa_user_sgpr_count 2
  .amdhsa_user_sgpr_kernarg_segment_ptr 1
  .amdhsa_system_sgpr_workgroup_id_x 1
.end_amdhsa_kernel""")
    open(out, "w").write("\n".join(hdr) + "\n" + pre + a.finish())

if __name__ == "__main__":
    main(sys.argv[1])
```

```python
import sys, struct, os
from asmdsl import Asm, R, S
from gen1 import build_tables, PAIRS, f2u, hx, divmod_const, srd, LOG2E

NAME = "sequential_preLN__linear_attn_block__mixer_channel_mlp__prompt_kernel"
WOP = 0
W2P = WOP + 8*20*5*1024
W1P = W2P + 8*54*5*1024
C1P = W1P + 16*20*7*1024
WQKV = C1P + 320*512
PART = WQKV + 16*153600
GRP = PART + 256*4096
G_O = 0; G_H = 163840; G_ST = 327680; G_FL = 335872; G_HID = 336896; G_SZ = G_HID + 442368
FLG = GRP + 16*G_SZ
F1 = FLG; F1R = FLG + 8192; F0 = FLG + 10240; FU = FLG + 14336
WS_END = FLG + 20480
A0 = 256
STAMP = int(os.environ.get("STAMP", "0"))
STB = 32 << 20
POLLMAX = 1 << 15
OPT = set(os.environ.get("OPT", "").split(","))
def P(name, d): return int(os.environ.get(name, d))

class G:
    def __init__(self):
        self.a = Asm(); self.vm = []; self.lg = []; self.nst = 0; self.bgq = []; self.names = []
    def __call__(self, t): self.a(t)
    def vmem(self, text, tag=None): self.a(text); self.vm.append(tag)
    def ds(self, text, tag=None): self.a(text); self.lg.append(tag)
    def _n(self, lst, tag, cap):
        idx = max(i for i, t in enumerate(lst) if t == tag)
        return min(len(lst) - 1 - idx, cap)
    def wait(self, vm=None, lg=None):
        s = []
        if vm is not None: s.append(f"vmcnt({0 if vm == 'all' else self._n(self.vm, vm, 63)})")
        if lg is not None: s.append(f"lgkmcnt({0 if lg == 'all' else self._n(self.lg, lg, 15)})")
        self.a("s_waitcnt " + " ".join(s))
        if vm == 'all': self.vm = []
        if lg == 'all': self.lg = []
    def stamp(self, name=""):
        if STAMP != 1: return
        i = self.nst; self.nst += 1; self.names.append(name)
        assert i < 29
        self.a("s_memtime s[100:101]"); self.a("s_waitcnt lgkmcnt(0)"); self.a(f"v_writelane_b32 v7, s100, {i}")
    def run(self, x): x() if callable(x) else self.a(x)
    def bg(self, n=1):
        for _ in range(n):
            if self.bgq: self.bgq.pop(0)()
    def interleave(self, main, extra, front=()):
        n = len(main); m = len(extra); j = 0; front = list(front)
        for i, x in enumerate(main):
            self.run(x)
            if front:
                self.run(front.pop(0))
                if len(front) >= n - i and front: self.run(front.pop(0))
            while j < m and (j + 1) * n <= (i + 1) * m + (n - 1):
                self.run(extra[j]); j += 1
        for x in front: self.run(x)
        while j < m:
            self.run(extra[j]); j += 1

def MF(d, a_, b_, first): return f"v_mfma_f32_16x16x32_bf16 {R(d,4)}, {R(a_,4)}, {R(b_,4)}, {'0' if first else R(d,4)}"

def phi(a, val, t1, t2):
    a(f"v_mul_f32 {t1}, s60, {val}")
    a(f"v_max_f32 {t2}, 0, {val}")
    a(f"v_exp_f32_e64 {t1}, {t1} clamp")
    a(f"v_add_f32 {t2}, s61, {t2}")
    a(f"v_add_f32 {val}, {t1}, {t2}")

OPT |= {"sc1h", "sc1hid", "notouch", "usfirst", "ft", "rpplain", "slplain", "tlb3"}
def phi4(a, b_, T, sel_mask=None):
    for h in range(2): a(f"v_pk_mul_f32 v[{T+2*h}:{T+2*h+1}], v[{b_+2*h}:{b_+2*h+1}], s[94:95]")
    for e in range(4): a(f"v_max_f32 v{T+4+e}, 0, v{b_+e}")
    for e in range(4): a(f"v_exp_f32_e64 v{T+e}, v{T+e} clamp")
    for h in range(2): a(f"v_pk_add_f32 v[{T+4+2*h}:{T+5+2*h}], v[{T+4+2*h}:{T+5+2*h}], s[96:97]")
    if sel_mask is None:
        for h in range(2): a(f"v_pk_add_f32 v[{b_+2*h}:{b_+2*h+1}], v[{T+2*h}:{T+2*h+1}], v[{T+4+2*h}:{T+5+2*h}]")
    else:
        for h in range(2): a(f"v_pk_add_f32 v[{T+2*h}:{T+2*h+1}], v[{T+2*h}:{T+2*h+1}], v[{T+4+2*h}:{T+5+2*h}]")
        for e in range(4): a(f"v_cndmask_b32 v{b_+e}, v{b_+e}, v{T+e}, {sel_mask}")
RPNT = "" if "rpplain" in OPT else " nt"
HS = "" if "plainh" in OPT else " sc1"
HS2 = "" if "plainhid" in OPT else " sc1"
FENCE = "plainh" in OPT or "plainhid" in OPT
def gen():
    a = G()
    name = NAME
    NRAW = P("NRAW", 2)
    a.a.raw(f".globl {name}\n.p2align 8\n.type {name},@function\n{name}:")
    a("s_cmp_ge_u32 s2, 256"); a("s_cbranch_scc1 L_end")
    a("s_load_dwordx16 s[4:19], s[0:1], 0")
    a("s_load_dwordx4 s[20:23], s[0:1], 64")
    a("s_load_dwordx2 s[24:25], s[0:1], 80")
    a("s_memrealtime s[76:77]")
    a("s_getpc_b64 s[30:31]")
    a("L_pc:")
    a("v_mov_b32 v7, 0")
    a.stamp("start")
    a("v_lshrrev_b32 v2, 6, v0"); a("v_and_b32 v1, 63, v0")
    a("v_readfirstlane_b32 s28, v2")
    if "m48" in OPT:
        a("s_and_b32 s3, s2, 7"); a("s_lshr_b32 s29, s2, 3")
        a("s_lshr_b32 s26, s3, 1"); a("s_lshl_b32 s26, s26, 2"); a("s_lshr_b32 s27, s29, 3"); a("s_add_u32 s26, s26, s27")
        a("s_and_b32 s3, s3, 1"); a("s_lshl_b32 s3, s3, 2"); a("s_and_b32 s27, s29, 3"); a("s_or_b32 s27, s27, s3")
        a("s_and_b32 s29, s29, 4"); a("s_lshl_b32 s29, s29, 1"); a("s_or_b32 s27, s27, s29")
    else:
        a("s_and_b32 s3, s2, 7"); a("s_lshr_b32 s27, s2, 3"); a("s_lshr_b32 s26, s27, 4"); a("s_lshl_b32 s3, s3, 1")
        a("s_add_u32 s26, s26, s3")
        a("s_and_b32 s27, s27, 15")
    a("v_lshlrev_b32 v3, 7, v1")
    if "cp16" in OPT:
        a("s_cmp_lg_u32 s28, 3"); a("s_cbranch_scc1 L_nocp")
        a("s_mul_i32 s3, s27, 2304"); a("v_add_u32 v27, s3, v3"); a("s_bfm_b64 exec, 18, 0")
        a("global_load_dword v4, v27, s[30:31]"); a("s_mov_b64 exec, -1")
    elif "nocp" not in OPT:
        a("s_cmp_lg_u32 s28, 3"); a("s_cbranch_scc1 L_nocp")
        a("s_mul_i32 s3, s27, 13"); a("s_lshr_b32 s3, s3, 6"); a("s_mul_i32 s3, s3, 5"); a("s_sub_u32 s3, s27, s3"); a("s_lshl_b32 s3, s3, 13")
        a("v_add_u32 v27, s3, v3")
        a("global_load_dword v4, v27, s[30:31]")
    a("L_nocp:")
    BQ = 102400; SCR = 153600; CSX = 161792
    vXA = [72, 73, 74, 75]; vW = [76, 77]; vRd = [78, 79]; vTB = [17, 18, 19, 20]; vTQ = [86, 87, 88, 89]; vTQ2 = [90, 91, 21, 22]
    vSA = [80, 81, 82]; vBA = [144, 145, 146, 147, 148]; vTR = [149, 150, 151, 152]
    vT1 = 24; vSTW = 25
    ACC = 32; RAW = 160; XF = A0; BF = A0 + 160; ONES = A0 + 200; GR = A0 + 204; RSM = A0 + 212; OH = A0 + 220; CSA = A0 + 240; CSQ = A0 + 244
    t0, t1, t2, t3 = "v27", "v28", "v29", "v30"
    def early():
        a("v_and_b32 v27, 3, v1"); a("s_lshl_b32 s3, s28, 2"); a("v_add_u32 v27, s3, v27"); a("v_min_u32 v27, 14, v27")
        a("v_lshrrev_b32 v28, 2, v1"); a("v_mul_u32_u24 v28, 3840, v28"); a("v_lshl_add_u32 v28, v27, 4, v28")
        a("v_add_u32 v29, 1280, v28"); a("v_add_u32 v30, 2480, v28"); a("v_subrev_u32 v28, 160, v28")
        a("v_cmp_gt_u32 vcc, 10, v27"); a("s_mul_i32 s50, s26, 153600"); a("s_mul_i32 s51, s27, 80"); a("v_cndmask_b32 v28, v28, v30, vcc")
        a("v_cmp_gt_u32 vcc, 5, v27"); a("s_add_u32 s50, s50, s51"); a("s_mul_i32 s53, s28, 3072"); a("v_cndmask_b32 v83, v28, v29, vcc")
        a(f"s_add_u32 s53, s53, {BQ + 28672}")
        a("s_mul_i32 s3, s26, 163840"); a("s_mul_i32 s56, s27, 10240"); a("s_add_u32 s3, s3, s56"); a("s_mul_i32 s56, s28, 2560"); a("s_add_u32 s57, s3, s56")
        a("v_mov_b32 v5, 0")
    def late():
        a("v_lshlrev_b32 v8, 4, v1"); a("v_lshlrev_b32 v9, 4, v0")
        a("v_and_b32 v10, 15, v1"); a("v_lshlrev_b32 v10, 2, v10")
        a("v_lshrrev_b32 v11, 4, v1"); a("v_add_u32 v12, 4096, v8")
        a("v_lshrrev_b32 v27, 3, v1"); a("v_and_b32 v28, 7, v1"); a("v_mul_u32_u24 v29, 1280, v27")
        a("v_lshrrev_b32 v30, 1, v27"); a("v_xor_b32 v28, v28, v30")
        a(f"v_lshl_add_u32 v{vXA[0]}, v28, 4, v29")
        a(f"v_xor_b32 v{vXA[1]}, 64, v{vXA[0]}"); a(f"v_add_u32 v{vXA[1]}, 10240, v{vXA[1]}")
        a(f"v_add_u32 v{vXA[2]}, 20480, v{vXA[0]}"); a(f"v_add_u32 v{vXA[3]}, 20480, v{vXA[1]}")
        a("s_lshl_b32 s3, s28, 11"); a(f"s_add_u32 s48, s3, {SCR}")
        a("s_lshl_b32 s49, s26, 7"); a("s_lshl_b32 s3, s28, 5"); a("s_add_u32 s49, s49, s3"); a("s_mul_i32 s49, s49, 1280")
        a("s_lshr_b32 s3, s28, 1"); a("s_lshl_b32 s3, s3, 7"); a("s_add_u32 s62, s49, 128"); a("s_sub_u32 s62, s62, s3"); a("s_add_u32 s49, s49, s3")
        a("s_mul_i32 s52, s28, 5120")
        a(f"s_mul_i32 s58, s26, {G_SZ}"); a(f"s_add_u32 s58, s58, {GRP}")
        a("s_lshl_b32 s70, s28, 4"); a("s_add_u32 s70, s70, s26")
        a(f"s_mul_i32 s71, s28, 7168"); a(f"s_add_u32 s71, s71, {BQ}")
        a("v_mov_b32 v2, 0x7fffffff")
    early()
    if "slowpro" in OPT: late()
    a("s_waitcnt lgkmcnt(0)")
    srd(a, 36, 6, 2457600)
    SLNT = "" if "slplain" in OPT else " nt"
    for i in range(3):
        a(f"s_add_u32 m0, s53, {1024*i}")
        if i == 2: a("s_bfm_b64 exec, 32, 0")
        a.vmem(f"buffer_load_dwordx4 v83, s[36:39], s50 offen{SLNT} lds", "SLD")
        a(f"s_add_u32 s50, s50, {16*3840}")
    srd(a, 32, 4, 2621440); srd(a, 40, 24, WS_END)
    a("s_mov_b64 exec, 0xfffff")
    a.vmem(f"buffer_load_dword v4, v3, s[32:35], s57 offen{' nt' if 'xtnt' in OPT else ''}")
    if "tlb" in OPT:
        a("v_lshlrev_b32 v27, 20, v1"); a("s_bfm_b64 exec, 24, 0")
        a.vmem(f"buffer_load_dword v4, v27, s[40:43], 0 offen")
    if "tlb2" in OPT:
        a("s_mul_i32 s54, s27, 153600"); a(f"s_add_u32 s54, s54, {WQKV}")
        a("v_mul_u32_u24 v27, 51200, v1"); a("v_add_u32 v27, s54, v27"); a(f"v_mov_b32 v28, {F0}"); a("v_cmp_eq_u32 vcc, 3, v1"); a("v_cndmask_b32 v27, v27, v28, vcc")
        a("s_bfm_b64 exec, 4, 0")
        a.vmem(f"buffer_load_dword v4, v27, s[40:43], 0 offen")
        a.vmem("global_load_dword v4, v5, s[22:23] offset:128")
    a("s_mov_b64 exec, -1")
    if STAMP: a("v_writelane_b32 v7, s76, 29")
    a("s_and_b32 s76, s76, 0xfffffff8"); a("s_or_b32 s76, s76, 8")
    a("s_or_b32 s3, s2, s28"); a("s_cmp_lg_u32 s3, 0"); a("s_cbranch_scc1 L_notag")
    a("v_mov_b32 v28, s76"); a("global_store_dword v5, v28, s[22:23] sc1")
    a("L_notag:")
    if "ft" in OPT:
        a("s_cmp_lg_u32 s26, s27"); a("s_cbranch_scc1 L_noft"); a("s_cmp_lg_u32 s28, 1"); a("s_cbranch_scc1 L_noft")
        a("s_mul_i32 s3, s27, 1280"); a(f"s_add_u32 s3, s3, {FLG}")
        a("s_bfm_b64 exec, 10, 0"); a("buffer_load_dword v4, v3, s[40:43], s3 offen sc0 sc1"); a("s_mov_b64 exec, -1")
        a("L_noft:")
    if "tlb3" in OPT:
        a("s_cmp_lg_u32 s28, 2"); a("s_cbranch_scc1 L_not3")
        a("v_lshlrev_b32 v27, 16, v1"); a("v_lshlrev_b32 v28, 18, v1")
        for cc, (sp, n_) in enumerate([(12, 34), (16, 34), (8, 13), (20, 40)]):
            a(f"s_cmp_lg_u32 s27, {2+cc}"); a(f"s_cbranch_scc1 L_t3_{cc}")
            a(f"s_bfm_b64 exec, {n_}, 0"); a(f"global_load_dword v4, v27, s[{sp}:{sp+1}]"); a("s_mov_b64 exec, -1")
            a(f"L_t3_{cc}:")
        a("s_cmp_lg_u32 s27, 6"); a("s_cbranch_scc1 L_t3_4"); a("buffer_load_dword v4, v28, s[40:43], 0 offen"); a("L_t3_4:")
        a("s_cmp_lg_u32 s27, 7"); a("s_cbranch_scc1 L_not3"); a(f"s_mov_b32 s3, {64 << 18}"); a("buffer_load_dword v4, v28, s[40:43], s3 offen")
        a("L_not3:")
    if "tlb4" in OPT:
        a("s_cmp_lg_u32 s28, 2"); a("s_cbranch_scc1 L_not4")
        a("v_lshlrev_b32 v27, 21, v1"); a("s_bfm_b64 exec, 2, 0")
        a("global_load_dword v4, v27, s[12:13]"); a("global_load_dword v4, v27, s[16:17]"); a("s_mov_b64 exec, 1"); a("global_load_dword v4, v27, s[8:9]")
        a("s_bfm_b64 exec, 11, 0"); a("buffer_load_dword v4, v27, s[40:43], 0 offen")
        a("s_mov_b64 exec, -1")
        a("L_not4:")
    if "nobt" not in OPT:
        a("s_lshl_b32 s3, s27, 2"); a("s_add_u32 s3, s3, s28"); a("s_cmp_lg_u32 s3, 6"); a("s_cbranch_scc1 L_nobt")
        a("s_bfm_b64 exec, 27, 0"); a("global_load_dword v4, v3, s[14:15]")
        a("s_bfm_b64 exec, 10, 0"); a("global_load_dword v4, v3, s[18:19]")
        a("s_mov_b64 exec, -1")
        a("L_nobt:")
    srd(a, 44, 12, 2211840)
    if "slowpro" not in OPT: late()
    def rp_issue(nt, pitch_src, nch):
        for i in range(7):
            if i < nt:
                a(f"v_add_u32 v27, {64*i}, v1")
                divmod_const(a, "v28", "v29", "v27", nch)
                a(f"v_mul_u32_u24 v28, {pitch_src}, v28"); a("v_lshl_add_u32 v28, v29, 4, v28")
                a(f"s_add_u32 m0, s71, {1024*i}")
                a(f"buffer_load_dwordx4 v28, s[44:47], s73 offen{RPNT} lds")
            else:
                a("buffer_load_dword v4, v2, s[44:47], 0 offen")
    def unit_issue():
        a("s_cmp_ge_u32 s70, 20"); a("s_cbranch_scc1 L_rp5")
        a("s_mov_b32 s72, 1")
        a("s_mul_i32 s75, s27, 27"); a("s_lshr_b32 s75, s75, 2"); a("s_lshl_b32 s75, s75, 5")
        a("s_mul_i32 s79, s70, 110592"); a("s_add_u32 s73, s75, s79")
        a("s_mul_i32 s75, s27, 20"); a("s_add_u32 s70, s70, s75")
        a("s_mul_i32 s74, s70, 7168"); a(f"s_add_u32 s74, s74, {W1P}")
        rp_issue(7, 3456, 14)
        a("s_branch L_rp_issued")
        a("L_rp5:")
        a("s_mov_b32 s72, 2")
        a("s_sub_u32 s79, s70, 20"); a("s_lshl_b32 s79, s79, 1"); a("s_lshr_b32 s75, s27, 3"); a("s_add_u32 s79, s79, s75"); a("s_and_b32 s75, s27, 7")
        a("s_cmp_ge_u32 s79, 54"); a("s_cbranch_scc1 L_rpwo")
        srd(a, 44, 16, 2211840)
        a("s_mul_i32 s78, s75, 54"); a("s_add_u32 s78, s78, s79")
        a("s_mul_i32 s74, s78, 5120"); a(f"s_add_u32 s74, s74, {W2P}")
        a("s_branch L_rp5b")
        a("L_rpwo:")
        srd(a, 44, 8, 819200)
        a("s_sub_u32 s79, s79, 54")
        a("s_mul_i32 s78, s75, 20"); a("s_add_u32 s78, s78, s79")
        a("s_mul_i32 s74, s78, 5120"); a(f"s_add_u32 s74, s74, {WOP}")
        a("s_cmp_ge_u32 s79, 20"); a("s_cselect_b32 s74, 0x40000000, s74")
        a("L_rp5b:")
        a("s_mul_i32 s75, s75, 160"); a("s_mul_i32 s79, s79, 40960"); a("s_add_u32 s73, s75, s79")
        rp_issue(5, 1280, 10)
        a("L_rp_issued:")
        a.vm += ["UL"]*7
    def raw(cx, rg): return 96 + (((cx + 1) % 10)*4 + rg)*4
    def xf(tt, k): return XF + (tt*20 + k)*4
    def ldx(cx):
        def one(rg):
            off = 256*(cx >> 1)
            a(f"s_add_u32 m0, s52, {(cx % 5)*20480 + rg*1024 + 1024 - off}")
            a.vmem(f"buffer_load_dwordx4 v{vXA[rg]}, s[32:35], s{62 if cx & 1 else 49} offen offset:{off} lds", f"X{cx}")
        return [lambda rg=rg: one(rg) for rg in range(4)]
    a("v_and_b32 v27, 15, v1")
    a("v_cmp_gt_u32 s[66:67], 8, v27")
    a("v_cmp_gt_u32 s[90:91], 32, v1"); a("v_cmp_gt_u32 s[92:93], 48, v1")
    a("v_cmp_eq_u32 s[88:89], 1, v11")
    a("v_and_b32 v29, 1, v11")
    a("s_lshl_b32 s3, s28, 1"); a("v_add_u32 v29, s3, v29")
    a("v_cmp_gt_u32 s[94:95], 5, v29"); a("v_cmp_eq_u32 s[96:97], 7, v29")
    a("v_lshlrev_b32 v29, 10, v29"); a(f"v_add_u32 v30, {BQ - 5120}, v29"); a("v_cndmask_b32 v29, v30, v29, s[94:95]")
    a("v_lshl_add_u32 v29, v10, 2, v29")
    a("v_mov_b32 v30, 2560"); a("v_mov_b32 v31, 5120"); a("v_cndmask_b32 v30, v30, v31, s[94:95]")
    a("v_mov_b32 v31, 8"); a("v_cndmask_b32 v31, v31, 7, s[96:97]")
    a("s_andn2_b64 s[96:97], s[96:97], s[66:67]")
    a("s_mul_i32 s3, s26, 5")
    a("v_lshrrev_b32 v28, 1, v11"); a("v_add_u32 v28, s3, v28")
    for n in range(3):
        a(f"v_lshrrev_b32 v27, 2, v28"); a(f"v_mad_u32_u24 v{vSA[n]}, v27, v30, v29")
        a("v_and_b32 v27, 3, v28"); a("v_lshlrev_b32 v27, v31, v27"); a(f"v_add_u32 v{vSA[n]}, v{vSA[n]}, v27")
        a(f"v_cndmask_b32 v{vSA[n]}, v{vSA[n]}, v2, s[96:97]")
        if n == 2: a(f"v_cndmask_b32 v{vSA[n]}, v2, v{vSA[n]}, s[90:91]")
        else: a("v_add_u32 v28, 2, v28")
    a("v_lshrrev_b32 v27, 5, v1"); a("v_bfe_u32 v28, v1, 2, 2"); a("v_lshl_add_u32 v27, v27, 3, v28"); a("v_lshlrev_b32 v27, 6, v27")
    a("v_bfe_u32 v28, v1, 4, 1"); a("v_lshl_add_u32 v27, v28, 5, v27"); a("v_and_b32 v28, 3, v1"); a("v_lshl_add_u32 v27, v28, 3, v27")
    a("v_add_u32 v84, s53, v27")
    a("s_mul_i32 s54, s27, 153600"); a(f"s_add_u32 s54, s54, {WQKV}")
    a.wait(vm="SLD")
    a.stamp("sld")
    for n in range(3):
        for h in range(2): a(f"ds_read_b64_tr_b16 {R(96 + 4*n + 2*h, 2)}, v84 offset:{1024*n + 256*h}")
    a("s_waitcnt lgkmcnt(0)")
    for n in range(3): a.vmem(f"buffer_store_dwordx4 {R(96 + 4*n, 4)}, v{vSA[n]}, s[40:43], s54 offen sc1", "SL")
    a.vmem("global_load_dword v6, v5, s[22:23] sc1", "TAG")
    NX0 = P("NX0", 5)
    for cx in range(NX0):
        for f in ldx(cx): f()
    a("v_and_b32 v27, 15, v1")
    a("v_lshrrev_b32 v29, 1, v27"); a("v_xor_b32 v29, v29, v11"); a("v_lshlrev_b32 v29, 4, v29"); a("v_lshl_add_u32 v29, v27, 7, v29")
    a("s_and_b32 s3, s28, 1"); a("s_lshl_b32 s3, s3, 6"); a("v_xor_b32 v29, s3, v29")
    a(f"v_add_u32 v{vRd[0]}, s52, v29"); a("v_xor_b32 v29, 64, v29"); a(f"v_add_u32 v{vRd[1]}, s52, v29")
    a(f"v_add_u32 v{vW[0]}, 61440, v{vRd[0]}"); a(f"v_add_u32 v{vW[1]}, 61440, v{vRd[1]}")
    a("v_lshrrev_b32 v29, 2, v27"); a("v_cmp_eq_u32 vcc, v29, v11")
    a("v_lshlrev_b32 v30, 2, v1"); a("v_add_u32 v30, 512, v30")
    a("v_cndmask_b32 v29, v30, v10, vcc"); a(f"v_add_u32 v{vSTW}, s48, v29")
    a("v_and_b32 v29, 1, v1"); a("v_cmp_eq_u32 s[68:69], 1, v29")
    a("v_and_b32 v29, 2, v1"); a("v_cmp_eq_u32 s[86:87], 2, v29")
    a("v_mov_b32 v28, 0x3f803f80")
    for i in range(4): a(f"v_accvgpr_write_b32 {R(ONES+i)}, v28")
    for t in range(5):
        a(f"v_cmp_eq_u32 vcc, {t}, v27"); a("v_cndmask_b32 v29, 0, v28, vcc")
        for e in range(4): a(f"v_accvgpr_write_b32 {R(OH+4*t+e)}, v29")
    a("v_and_b32 v27, 7, v1"); a("v_lshlrev_b32 v27, 4, v27"); a("v_lshl_add_u32 v27, v11, 7, v27")
    for p in range(4):
        a(f"s_xor_b32 s3, s28, {p}"); a("s_mul_i32 s56, s3, 5120"); a(f"v_add_u32 v{vTB[p]}, s56, v8")
        a("s_mul_i32 s56, s3, 2560"); a(f"s_add_u32 s56, s56, {BQ}"); a(f"v_add_u32 v{vTQ[p]}, s56, v8"); a("s_add_u32 s56, s56, 2048"); a(f"v_add_u32 v{vTQ2[p]}, s56, v27")
    a(f"s_mov_b32 s60, {hx(LOG2E)}"); a(f"s_mov_b32 s61, {hx(1e-6)}")
    a(f"s_mov_b32 s63, {hx(1.0/640)}"); a(f"s_mov_b32 s64, {hx(1e-5)}")
    a("s_lshl_b32 s55, s27, 8"); a(f"s_add_u32 s55, s55, {F0}")
    a("v_lshlrev_b32 v26, 2, v1")
    a("s_lshl_b32 s3, s26, 4"); a("s_lshl_b32 s56, s28, 2"); a("s_add_u32 s3, s3, s56"); a("s_add_u32 s3, s3, s55")
    a.wait(vm="TAG")
    a("v_readfirstlane_b32 s76, v6"); a("s_mov_b32 s78, 0")
    a("L_tp1:")
    a("s_cmp_lg_u32 s76, 0"); a("s_cbranch_scc1 L_tp1_ok")
    a("global_load_dword v6, v5, s[22:23] sc1"); a("s_add_u32 s78, s78, 1"); a("s_waitcnt vmcnt(0)")
    a("v_readfirstlane_b32 s76, v6")
    a(f"s_cmp_lt_u32 s78, {POLLMAX}"); a("s_cbranch_scc1 L_tp1")
    a("L_tp1_ok:")
    a("s_getreg_b32 s77, hwreg(HW_REG_XCC_ID)"); a("s_and_b32 s77, s77, 7"); a("s_or_b32 s77, s77, s76")
    a("s_lshl_b32 s57, s26, 7"); a("s_lshl_b32 s56, s27, 2"); a("s_add_u32 s57, s57, s56"); a(f"s_add_u32 s57, s57, {F1R}")
    a("s_cmp_eq_u32 s28, 0"); a("s_cselect_b32 s57, s57, 0x40000000"); a("v_mov_b32 v27, s77")
    a("s_mov_b64 exec, 1"); a.vmem("buffer_store_dword v6, v5, s[40:43], s3 offen sc1"); a.vmem("buffer_store_dword v27, v5, s[40:43], s57 offen sc1"); a("s_mov_b64 exec, -1")
    a.stamp("F0pub")
    def rp_fin(nt, RG):
        pitch = nt*32
        a("v_bfe_u32 v28, v1, 2, 2"); a("v_lshl_add_u32 v27, v11, 3, v28"); a("v_and_b32 v28, 3, v1")
        a(f"v_mul_u32_u24 v29, {pitch}, v27"); a("v_add_u32 v29, s71, v29")
        a("v_lshl_add_u32 v30, v28, 3, v29"); a("v_lshl_add_u32 v29, v28, 4, v29")
        for t in range(nt):
            for h in range(2):
                if t == nt - 1: a(f"ds_read_b64_tr_b16 {R(RG + 4*t + 2*h, 2)}, v30 offset:{h*4*pitch + 32*t}")
                else: a(f"ds_read_b64_tr_b16 {R(RG + 4*t + 2*h, 2)}, v29 offset:{h*4*pitch + 64*(t>>1) + 8*(t&1)}")
        if nt == 7:
            a("v_mov_b32 v28, 0x3f803f80")
            for t in (5, 6):
                a(f"v_cmp_eq_u32 vcc, {4*t}, v10")
                for e in range(4): a(f"v_cndmask_b32 v{RG+28+4*(t-5)+e}, 0, v28, vcc")
        a("s_waitcnt lgkmcnt(0)")
        if nt == 7:
            for t in range(7): a(MF(RG+36, RG + 4*t, OH + 4*t if t < 5 else RG+28+4*(t-5), t == 0))
    def rp_store(nt, RG):
        for t in range(nt):
            a(f"buffer_store_dwordx4 {R(RG + 4*t, 4)}, v{8 if t < 4 else 12}, s[40:43], s74 offen offset:{1024*(t&3)} sc1")
        if nt == 7:
            a("v_lshlrev_b32 v29, 4, v11"); a("v_lshl_add_u32 v29, v10, 4, v29"); a("v_cndmask_b32 v29, v2, v29, s[66:67]")
            a("s_lshl_b32 s3, s70, 9"); a(f"s_add_u32 s3, s3, {C1P}")
            a(f"buffer_store_dwordx4 {R(RG+36, 4)}, v29, s[40:43], s3 offen sc1")
        else:
            for _ in range(3): a("buffer_store_dword v5, v2, s[40:43], 0 offen")
    def acc(tt, t): return ACC + (tt*5 + t)*4
    def transp(cx):
        L = []
        j = cx % 5; b = vRd if j < 3 else vW; o = (j % 3)*20480 + 1024
        for tt in range(2):
            L.append(lambda tt=tt: a.ds(f"ds_read_b128 {R(xf(tt, 2*cx), 4)}, v{b[0]} offset:{o + 2048*tt}"))
            L.append(lambda tt=tt: a.ds(f"ds_read_b128 {R(xf(tt, 2*cx+1), 4)}, v{b[1]} offset:{o + 2048*tt}", f"T{cx}"))
        return L
    def statm(k):
        L = []
        for tt in range(2):
            L.append(MF(GR + 4*tt, xf(tt, k), xf(tt, k), k == 0)); L.append(MF(RSM + 4*tt, ONES, xf(tt, k), k == 0))
        return L
    def breads1(s):
        j, p = divmod(s, 4); L = []
        for t in range(5):
            L.append(lambda t=t: a.ds(f"ds_read_b128 {R(BF + (s&1)*20 + t*4, 4)}, v{vTB[p]} offset:{(j % 3)*20480 + t*1024}", f"R{s}"))
        if j == 2: L.append(f"v_add_u32 v{vTB[p]}, 61440, v{vTB[p]}")
        return L
    def ldb(j):
        def one(i):
            if i == 0: a(f"s_add_u32 m0, s52, {j*20480}"); a("s_add_u32 s57, s54, m0")
            if i == 4: a(f"s_add_u32 m0, s52, {j*20480 + 4096}")
            a.vmem(f"buffer_load_dwordx4 v{8 if i < 4 else 12}, s[40:43], s57 offen offset:{1024*(i&3)} sc1 lds", f"B{j}")
        return [lambda i=i: one(i) for i in range(5)]
    def ldq():
        def one(i):
            if i == 11: a("s_cmp_eq_u32 s28, 3"); a("s_cbranch_scc1 L_noq")
            a(f"s_mul_i32 s98, s28, 13312"); a(f"s_add_u32 m0, s98, {BQ + i*1024}"); a("s_add_u32 s98, s54, m0")
            a.a(f"buffer_load_dwordx4 v8, s[40:43], s98 offen sc1 lds")
            if i < 11: a.vm.append("BQ")
            if i == 12: a("L_noq:")
        return [lambda i=i: one(i) for i in range(11)] + [lambda: (one(11), one(12))]
    def ldt1():
        a("v_lshlrev_b32 v27, 1, v0"); a("s_add_u32 s56, s30, T1_tab-L_pc"); a("s_addc_u32 s57, s31, 0")
        a.vmem(f"global_load_ushort v{vT1}, v27, s[56:57]", "T1")
    def kv_mf(s):
        mf = []
        for t in range(5):
            b = BF + (s&1)*20 + t*4
            for tt in range(2): mf.append(MF(acc(tt, t), xf(tt, s), b, s == 0))
            if s % 4 == 0: mf.append(MF(CSA, OH + 4*t, b, s == 0 and t == 0))
        return mf
    RS = 96; MS = 104; RT = 112; MT = 114; CSV = 116
    URG = 116
    def flagtouch():
        a(f"s_add_u32 s3, s58, {G_FL}"); a("s_bfm_b64 exec, 8, 0"); a.vmem("buffer_load_dword v4, v3, s[40:43], s3 offen"); a("s_mov_b64 exec, -1")
    for cx in range(NX0, 5):
        for f in ldx(cx): f()
    UPOS = P("UPOS", 6)
    if UPOS == 0:
        for f in (ldt1, flagtouch, unit_issue): f()
    for cx in range(10):
        a.wait(vm=f"X{cx}")
        for f in transp(cx): f()
        if cx:
            a.wait(lg=f"T{cx-1}")
            side = ldx(cx + 4) if cx + 4 < 10 else []
            if cx == UPOS: side = side + [ldt1, flagtouch, unit_issue]
            a.interleave(statm(2*(cx-1)) + statm(2*(cx-1)+1), side)
    a.wait(lg="T9")
    a.stamp("xdone")
    a("s_mov_b32 s78, 0")
    a("L_h0p:")
    a("buffer_load_dword v16, v26, s[40:43], s55 offen sc1"); a("s_waitcnt vmcnt(0)")
    a("v_cmp_ne_u32 vcc, s76, v16")
    a("s_cbranch_vccz L_h0ok")
    a("s_add_u32 s78, s78, 1"); a(f"s_cmp_lt_u32 s78, {POLLMAX}"); a("s_cbranch_scc1 L_h0p")
    a("L_h0ok:")
    a.vm = []
    a.stamp("F0ok")
    for f in ldb(0): f()
    for f in ldb(1): f()
    a.wait(lg="all")
    for x in statm(18) + statm(19): a(x)
    a("s_cmp_eq_u32 s72, 2"); a("s_cbranch_scc1 L_rp_f5")
    rp_fin(7, URG); a("s_branch L_rp_done")
    a("L_rp_f5:"); rp_fin(5, URG)
    a("L_rp_done:")
    for tt in range(2):
        for e in range(4): a(f"v_accvgpr_read_b32 v{160+e}, {R(GR + 4*tt + e)}")
        a(f"v_accvgpr_read_b32 v164, {R(RSM + 4*tt)}")
        for x in ["v_cndmask_b32 v160, v160, v161, s[68:69]", "v_cndmask_b32 v162, v162, v163, s[68:69]", "v_mul_f32 v164, s63, v164",
                  "v_cndmask_b32 v160, v160, v162, s[86:87]", "v_mul_f32 v160, s63, v160", "v_fma_f32 v160, -v164, v164, v160",
                  "v_max_f32 v160, 0, v160", "v_add_f32 v160, s64, v160", "v_rsq_f32 v160, v160", "v_mul_f32 v164, v164, v160"]: a(x)
        a.ds(f"ds_write_b32 v{vSTW}, v160 offset:{64*tt}"); a.ds(f"ds_write_b32 v{vSTW}, v164 offset:{128 + 64*tt}")
    a("v_lshlrev_b32 v28, 4, v11"); a("v_add_u32 v28, s48, v28"); a("v_add_u32 v29, s48, v10")
    for tt in range(2):
        a.ds(f"ds_read_b128 {R(RS + 4*tt, 4)}, v28 offset:{64*tt}"); a.ds(f"ds_read_b128 {R(MS + 4*tt, 4)}, v28 offset:{128 + 64*tt}")
        a.ds(f"ds_read_b32 v{RT + tt}, v29 offset:{64*tt}"); a.ds(f"ds_read_b32 v{MT + tt}, v29 offset:{128 + 64*tt}")
    NBE = P("NBE", 3)
    for j in range(2, NBE):
        for f in ldb(j): f()
    a("s_lshl_b32 s73, s70, 9"); a(f"s_add_u32 s73, s73, {C1P}")
    a("s_cmp_eq_u32 s72, 2"); a("s_cselect_b32 s75, 0x40000000, s74"); a("s_cselect_b32 s73, 0x40000000, s73")
    a("v_lshlrev_b32 v85, 4, v11"); a("v_lshl_add_u32 v85, v10, 4, v85"); a("v_cndmask_b32 v85, v2, v85, s[66:67]")
    def ust(t):
        if t < 7: a.vmem(f"buffer_store_dwordx4 {R(URG + 4*t, 4)}, v{8 if t < 4 else 12}, s[40:43], s{74 if t < 5 else 75} offen offset:{1024*(t&3)} sc1", "US")
        else: a.vmem(f"buffer_store_dwordx4 {R(URG+36, 4)}, v85, s[40:43], s73 offen sc1", "US")
    a("s_and_b32 s59, s27, 7"); a("s_lshl_b32 s59, s59, 9"); a(f"s_add_u32 s59, s59, {FU}")
    a("s_lshr_b32 s3, s27, 3"); a("s_lshl_b32 s3, s3, 4"); a("s_add_u32 s3, s3, s26"); a("s_lshl_b32 s3, s3, 2"); a("s_add_u32 s3, s3, s28"); a("s_lshl_b32 s3, s3, 2"); a("s_add_u32 s70, s3, s59")
    a.wait(vm="B0")
    a("s_barrier")
    a.stamp("bP")
    a("s_mov_b32 s94, s60"); a("s_mov_b32 s95, s60"); a("s_mov_b32 s96, s61"); a("s_mov_b32 s97, s61")
    for f in breads1(0): a.run(f)
    def pretouch():
        if "sc1h" in OPT:
            a(f"s_add_u32 s3, s58, {G_FL}"); a("s_bfm_b64 exec, 4, 0"); a.vmem("buffer_load_dword v4, v3, s[40:43], s3 offen"); a("s_mov_b64 exec, -1")
            return
        a("s_mul_i32 s3, s27, 21056"); a("s_add_u32 s3, s3, s58"); a("s_mul_i32 s56, s28, 5376"); a("s_add_u32 s3, s3, s56")
        a("s_bfm_b64 exec, 42, 0"); a.vmem("buffer_load_dword v4, v3, s[40:43], s3 offen"); a("s_mov_b64 exec, -1")
    FB3 = 156
    a("s_and_b32 s3, s27, 7"); a("s_mul_i32 s3, s3, 20"); a("s_add_u32 s3, s3, s28"); a("s_mul_i32 s65, s3, 5120"); a(f"s_add_u32 s65, s65, {WOP}")
    def ldwo(n, t):
        a.vmem(f"buffer_load_dwordx4 {R(FB3 + (n*5+t)*4, 4)}, v{8 if t < 4 else 12}, s[40:43], s65 offen offset:{1024*(t&3)} sc1", "WO")
        if t == 4: a("s_add_u32 s65, s65, 20480")
    def ldfu():
        a("v_lshlrev_b32 v31, 3, v1")
        a.vmem("buffer_load_dwordx2 v[92:93], v31, s[40:43], s59 offen sc1", "FU")
    def chkfu():
        a.wait(vm="FU")
        a("s_mov_b32 s78, 0")
        a("L_fu:")
        a("v_cmp_ne_u32 vcc, s76, v92"); a("v_cmp_ne_u32 s[84:85], s76, v93")
        a("s_or_b64 vcc, vcc, s[84:85]"); a("s_cbranch_scc0 L_fu_ok")
        a("s_add_u32 s78, s78, 1"); a(f"s_cmp_ge_u32 s78, {POLLMAX}"); a("s_cbranch_scc1 L_fu_ok")
        a("buffer_load_dwordx2 v[92:93], v31, s[40:43], s59 offen sc1"); a("s_waitcnt vmcnt(0)")
        a("s_branch L_fu")
        a("L_fu_ok:")
    q_ = ldq(); mix = []
    if "usfirst" in OPT:
        mix = [lambda i=i: ust(i) for i in range(8)] + q_
    else:
        for i in range(12):
            mix.append(q_[i])
            if i < 8: mix.append(lambda i=i: ust(i))
    ldlist = sum([ldb(j) for j in range(NBE, 5)], [])
    MS0 = P("MS0", 6); MR = P("MR", 1)
    a.bgq = mix
    SFU = P("SFU", 18)
    LEND = P("LEND", 16)
    CT = 116
    for s in range(20):
        j, p = divmod(s, 4)
        if p == 3 and j < 4:
            a.wait(vm=f"B{j+1}"); a("s_barrier")
        if s == SFU:
            a.wait(vm="US")
            a("s_mov_b64 exec, 1"); a.vmem("buffer_store_dword v6, v5, s[40:43], s70 offen sc1"); a("s_mov_b64 exec, -1")
        if s == 18:
            a.wait(lg="CSW"); a("s_barrier")
        a.wait(lg=f"R{s}")
        mf = kv_mf(s)
        front = breads1(s+1) if s < 19 else []
        side = []
        if s == 17:
            side += ["s_lshl_b32 s3, s28, 9", f"s_add_u32 s3, s3, {CSX}", "v_add_u32 v27, s3, v8"]
            side.append(lambda: (a("s_bfm_b64 exec, 32, 0"), a.ds(f"ds_write_b128 v27, {R(CSA, 4)}", "CSW"), a("s_mov_b64 exec, -1")))
        if s == 18:
            assert a.vm.count("US") == 8
            side += ["v_lshlrev_b32 v27, 2, v10", f"v_add_u32 v27, {CSX}, v27"]
            for w in range(4):
                side.append(lambda w=w: a.ds(f"ds_read_b128 {R(CT + 4*w, 4)}, v27 offset:{512*w}"))
                side.append(lambda w=w: a.ds(f"ds_read_b32 v{CT + 16 + w}, v27 offset:{512*w + 256}", "CSR"))
        if s == 19:
            side.append(lambda: a.wait(lg="CSR"))
            for e in range(4):
                side += [f"v_add_f32 v{CT+e}, v{CT+e}, v{CT+4+e}", f"v_add_f32 v{CT+8+e}, v{CT+8+e}, v{CT+12+e}", f"v_add_f32 v{CT+20+e}, v{CT+e}, v{CT+8+e}"]
            side += [f"v_add_f32 v{CT+16}, v{CT+16}, v{CT+17}", f"v_add_f32 v{CT+18}, v{CT+18}, v{CT+19}", f"v_add_f32 v{CT+24}, v{CT+16}, v{CT+18}"]
        side += ldlist[:3]; ldlist = ldlist[3:]
        if s >= MS0: side = [lambda: a.bg(1)]*MR + side
        a.interleave(mf, side, front)
    CSV = CT + 20
    a.stamp("kvend")
    if "plainh" in OPT:
        a("s_mul_i32 s3, s27, 21056"); a("s_add_u32 s3, s3, s58"); a("s_mul_i32 s56, s28, 5376"); a("s_add_u32 s3, s3, s56")
        a("s_bfm_b64 exec, 42, 0"); a.vmem("buffer_load_dword v4, v3, s[40:43], s3 offen"); a("s_mov_b64 exec, -1")
    OP = 116; TP = 72
    FUC = P("FUC", 14)
    if FUC < 4: ldfu()
    KBG = P("KBG", 1)
    for t in range(5):
        for tt in range(2):
            b_ = acc(tt, t)
            cp = CSV + t; cpe = cp & ~1; sel = cp & 1
            for h in range(2):
                x = b_ + 2*h
                a(f"v_pk_mul_f32 v[{TP+2*h}:{TP+2*h+1}], v[{MS+4*tt+2*h}:{MS+4*tt+2*h+1}], v[{cpe}:{cpe+1}] op_sel:[0,{sel}] op_sel_hi:[1,{sel}]")
            for h in range(2):
                x = b_ + 2*h
                a(f"v_pk_fma_f32 v[{x}:{x+1}], v[{x}:{x+1}], v[{RS+4*tt+2*h}:{RS+4*tt+2*h+1}], v[{TP+2*h}:{TP+2*h+1}] neg_lo:[0,0,1] neg_hi:[0,0,1]")
            if t <= 2: phi4(a, b_, TP, sel_mask=("s[66:67]" if t == 2 else None))
            for h in range(2):
                a(f"v_cvt_pk_bf16_f32 v{OP + 4*t + 2*tt + h}, v{acc(tt, t) + 2*h}, v{acc(tt, t) + 2*h + 1}")
            if t*2 + tt == SFU - 20:
                a.wait(vm="US")
                a("s_mov_b64 exec, 1"); a.vmem("buffer_store_dword v6, v5, s[40:43], s70 offen sc1"); a("s_mov_b64 exec, -1")
            if t*2 + tt == FUC - 4: ldfu()
            if t*2 + tt == FUC: chkfu(); a.bgq += [lambda n=n, t=t: ldwo(n, t) for n in range(5) for t in range(5)]
            a.bg(KBG)
    while "BQdone" not in a.vm and a.vm.count("BQ") < 11 or (a.bgq and a.bgq[0] is q_[11]): a.bg(1)
    KVD = 32
    for p, (ta, tb) in enumerate(PAIRS):
        a(MF(KVD + 4*p, OP + 4*ta, ONES if tb < 0 else OP + 4*tb, True))
    a("s_mul_i32 s3, s28, 10240"); a("v_add_u32 v27, s3, v8")
    for p in range(10): a(f"ds_write_b128 v27, {R(KVD + 4*p, 4)} offset:{1024*p}")
    a("s_lshl_b32 s3, s27, 4"); a("s_add_u32 s3, s3, s26"); a("s_lshl_b32 s3, s3, 12"); a(f"s_add_u32 s3, s3, {PART}")
    a("v_cmp_gt_u32 vcc, 216, v0"); a("v_cndmask_b32 v9, v2, v9, vcc")
    a.wait(lg="all")
    a("s_barrier")
    for w in range(4): a(f"ds_read_b128 {R(56 + 4*w, 4)}, v{vT1} offset:{10240*w}")
    a("s_waitcnt lgkmcnt(0)")
    for e in (0, 2):
        a(f"v_pk_add_f32 v[{56+e}:{57+e}], v[{56+e}:{57+e}], v[{60+e}:{61+e}]"); a(f"v_pk_add_f32 v[{64+e}:{65+e}], v[{64+e}:{65+e}], v[{68+e}:{69+e}]")
    for e in (0, 2): a(f"v_pk_add_f32 v[{56+e}:{57+e}], v[{56+e}:{57+e}], v[{64+e}:{65+e}]")
    if "p16" in OPT:
        a("v_cvt_pk_bf16_f32 v56, v56, v57"); a("v_cvt_pk_bf16_f32 v57, v58, v59"); a("v_lshrrev_b32 v9, 1, v9")
        a.vmem(f"buffer_store_dwordx2 v[56:57], v9, s[40:43], s3 offen sc1", "PST")
    else:
        a.vmem(f"buffer_store_dwordx4 v[56:59], v9, s[40:43], s3 offen sc1", "PST")
    ldfu()
    a("s_lshr_b32 s48, s27, 3"); a("s_and_b32 s49, s27, 7")
    a("v_lshrrev_b32 v13, 1, v11"); a("v_lshlrev_b32 v13, 8, v13"); a("v_lshl_add_u32 v13, v10, 2, v13")
    a("v_and_b32 v28, 1, v11"); a("v_lshl_add_u32 v13, v28, 3, v13")
    a("v_mul_u32_u24 v14, 320, v10"); a("v_lshl_add_u32 v15, v11, 3, v14"); a("v_lshl_add_u32 v14, v11, 4, v14")
    a("s_lshl_b32 s50, s48, 2"); a("s_add_u32 s50, s50, s28")
    a("s_lshl_b32 s3, s26, 3"); a("s_add_u32 s3, s3, s50"); a("s_mul_i32 s51, s3, 20480"); a("s_mul_i32 s3, s49, 160"); a("s_add_u32 s51, s51, s3")
    a("s_mul_i32 s53, s27, 27"); a("s_lshr_b32 s53, s53, 2")
    a("s_mul_i32 s55, s27, 143360"); a(f"s_add_u32 s55, s55, {W1P}")
    srd(a, 36, 14, 3456)
    a("v_lshlrev_b32 v23, 4, v11"); a("v_lshl_add_u32 v26, v10, 4, v23")
    a("s_lshl_b32 s62, s27, 2"); a("s_add_u32 s62, s62, s28"); a("s_lshl_b32 s62, s62, 7")
    a("s_lshl_b32 s56, s26, 7"); a("s_add_u32 s56, s56, 8192")
    a("v_mov_b32 v27, s62"); a("v_mov_b32 v28, s56"); a("v_cndmask_b32 v17, v27, v28, s[88:89]"); a("v_add_u32 v17, v17, v10")
    a("s_lshl_b32 s3, s26, 2"); a("s_add_u32 s3, s3, s62"); a(f"s_add_u32 s3, s3, {F1}")
    a.wait(vm="PST")
    a("s_mov_b64 exec, 1"); a.vmem("buffer_store_dword v6, v5, s[40:43], s3 offen sc1"); a("s_mov_b64 exec, -1")
    a("s_barrier")
    a.stamp("b7")
    chkfu(); a.bgq += [lambda n=n, t=t: ldwo(n, t) for n in range(5) for t in range(5)]
    FB3 = 156; RES = 116; C1R = 126; T2R = 146
    B1A = A0 + 204
    W1T = A0 + 100
    def w1dma(i):
        a(f"s_mul_i32 s98, s28, {24*1024}"); a(f"s_add_u32 m0, s98, {i*1024}"); a("s_add_u32 s98, s55, m0")
        a.vmem(f"buffer_load_dwordx4 v8, s[40:43], s98 offen sc1 lds", "W1")
    def w1tail(i):
        a(f"s_mul_i32 s98, s28, {11*1024}"); a(f"s_add_u32 s98, s98, {(96+i)*1024}"); a("s_add_u32 s98, s55, s98")
        a.vmem(f"buffer_load_dwordx4 {R(W1T + 4*i, 4)}, v8, s[40:43], s98 offen sc1", "W1")
    def ldsmall():
        a("v_lshlrev_b32 v31, 5, v1"); a("s_add_u32 s98, s30, T2_tab-L_pc"); a("s_addc_u32 s99, s31, 0")
        a.vmem(f"global_load_dwordx4 {R(T2R, 4)}, v31, s[98:99]"); a.vmem(f"global_load_dwordx2 {R(T2R+4, 2)}, v31, s[98:99] offset:16")
    def ldres(q):
        if q == 0: a.vmem(f"buffer_load_dwordx4 {R(RES, 4)}, v14, s[32:35], s51 offen")
        if q == 1: a.vmem(f"buffer_load_dwordx4 {R(RES+4, 4)}, v14, s[32:35], s51 offen offset:64")
        if q == 2: a.vmem(f"buffer_load_dwordx2 {R(RES+8, 2)}, v15, s[32:35], s51 offen offset:128", "RES")
    def ldb1():
        a("v_lshlrev_b32 v31, 3, v11"); a("s_lshl_b32 s98, s53, 5")
        for p in range(3): a.vmem(f"buffer_load_dwordx4 {R(B1A + 4*p, 4)}, v23, s[36:39], s98 offen offset:{64*p}")
        a.vmem(f"buffer_load_dwordx2 {R(B1A + 12, 2)}, v31, s[36:39], s98 offen offset:192")
    def ldc1():
        a("s_mul_i32 s98, s27, 20"); a("s_mul_i32 s99, s28, 5"); a("s_add_u32 s98, s98, s99"); a("s_lshl_b32 s98, s98, 9"); a(f"s_add_u32 s98, s98, {C1P}")
        a("s_mov_b64 exec, s[66:67]")
        for n in range(5): a.vmem(f"buffer_load_dwordx4 {R(C1R + 4*n, 4)}, v26, s[40:43], s98 offen offset:{512*n} sc1", "C1")
        a("s_mov_b64 exec, -1")
    def hidtouch():
        a("s_mul_i32 s98, s27, 27648"); a("s_add_u32 s98, s98, s58"); a(f"s_add_u32 s98, s98, {G_HID}"); a("s_mul_i32 s99, s28, 6912"); a("s_add_u32 s98, s98, s99")
        a("s_bfm_b64 exec, 54, 0"); a.vmem("buffer_load_dword v4, v3, s[40:43], s98 offen"); a("s_mov_b64 exec, -1")
    ldsmall()
    a.bgq += [lambda q=q: ldres(q) for q in range(3)] + [ldb1, ldc1] + [lambda i=i: w1dma(i) for i in range(24)]
    QA = 32
    def qreads(s):
        j, p = divmod(s, 4)
        return [lambda t=t: a.ds(f"ds_read_b128 {R(BF + (s%3)*12 + t*4, 4)}, v{vTQ[p] if t < 2 else vTQ2[p]} offset:{j*10240 + (t&1)*1024}", f"Q{s}") for t in range(3)]
    for f in qreads(0) + qreads(1): f()
    a(f"s_mov_b32 s56, {F1}")
    QSTOP = P("QSTOP", 16)
    for s in range(20):
        j, p = divmod(s, 4)
        if s == 18: a.wait(lg="CQW"); a("s_barrier")
        a.wait(lg=f"Q{s}")
        mf = []
        for t in range(3):
            b = BF + (s%3)*12 + t*4
            for tt in range(2): mf.append(MF(QA + (tt*3+t)*4, b, xf(tt, s), s == 0))
            if p == 0: mf.append(MF(CSQ, b, OH + 4*t, s == 0 and t == 0))
        front = qreads(s+2) if s < 18 else []
        side = []
        if s < QSTOP: side += [lambda: a.bg(1)]*P("QBG", 1)
        if s == 17:
            side.append(lambda: a.vmem("buffer_load_dword v16, v17, s[40:43], s56 offen sc1", "POLL1"))
            side += ["s_lshl_b32 s3, s28, 9", f"s_add_u32 s3, s3, {CSX}", "v_add_u32 v27, s3, v26"]
            side.append(lambda: (a("s_mov_b64 exec, s[66:67]"), a.ds(f"ds_write_b128 v27, {R(CSQ, 4)}", "CQW"), a("s_mov_b64 exec, -1")))
        if s == 18:
            side += [f"v_add_u32 v30, {CSX}, v23"]
            for w, base in ((0, 56), (1, 68), (2, 96)):
                for t in range(3): side.append(lambda w=w, t=t, base=base: a.ds(f"ds_read_b128 {R(base + 4*t, 4)}, v30 offset:{512*w + 64*t}", "CQR"))
        if s == 19:
            side.append(lambda: a.wait(lg="CQR"))
            for x in range(12): side.append(f"v_add_f32 v{56+x}, v{56+x}, v{68+x}")
            for t in range(3): side.append(lambda t=t: a.ds(f"ds_read_b128 {R(68 + 4*t, 4)}, v30 offset:{1536 + 64*t}", "CQR"))
        a.interleave(mf, side, front)
    a.stamp("qend")
    a.wait(vm="POLL1")
    a("s_mov_b32 s78, 0")
    a("L_h1p:")
    a("v_and_b32 v28, 0xfffffff8, v16"); a("v_cmp_ne_u32 vcc, s76, v28")
    a("s_cbranch_vccz L_h1ok")
    a("s_add_u32 s78, s78, 1"); a(f"s_cmp_ge_u32 s78, {POLLMAX}"); a("s_cbranch_scc1 L_h1ok")
    a("buffer_load_dword v16, v17, s[40:43], s56 offen sc1"); a("s_waitcnt vmcnt(0)")
    a("s_branch L_h1p")
    a("L_h1ok:")
    a.stamp("h1ok")
    a.vm = []
    a("v_cmp_ne_u32 vcc, s77, v16"); a("s_and_b64 vcc, vcc, s[88:89]"); a("s_cselect_b32 s79, 0, 1")
    if os.environ.get("FORCESLOW"): a("s_mov_b32 s79, 0")
    P0 = A0
    a("s_lshl_b32 s3, s27, 16"); a(f"s_add_u32 s3, s3, {PART}")
    for r_ in range(16):
        if "p16" in OPT: a.vmem(f"buffer_load_dwordx2 {R(P0 + 4*r_, 2)}, v9, s[40:43], s3 offen sc1", f"P{r_}")
        else: a.vmem(f"buffer_load_dwordx4 {R(P0 + 4*r_, 4)}, v9, s[40:43], s3 offen sc1", f"P{r_}")
        a("s_add_u32 s3, s3, 4096")
    a.bgq += [lambda i=i: w1tail(i) for i in range(11)]
    for x in range(0, 12, 2): a(f"v_pk_add_f32 v[{56+x}:{57+x}], v[{56+x}:{57+x}], v[{96+x}:{97+x}]")
    a.wait(lg="all")
    for x in range(0, 12, 2): a(f"v_pk_add_f32 v[{56+x}:{57+x}], v[{56+x}:{57+x}], v[{68+x}:{69+x}]")
    PQR = 96
    EBG = P("EBG", 2)
    for tt in range(2):
        for t in range(3):
            b_ = QA + (tt*3+t)*4
            for h in range(2):
                a(f"v_pk_mul_f32 v[{TP+2*h}:{TP+2*h+1}], v[{56+4*t+2*h}:{57+4*t+2*h}], v[{MT}:{MT+1}] op_sel:[0,{tt}] op_sel_hi:[1,{tt}]")
            for h in range(2):
                x = b_ + 2*h
                a(f"v_pk_fma_f32 v[{x}:{x+1}], v[{x}:{x+1}], v[{RT}:{RT+1}], v[{TP+2*h}:{TP+2*h+1}] op_sel:[0,{tt},0] op_sel_hi:[1,{tt},1] neg_lo:[0,0,1] neg_hi:[0,0,1]")
            phi4(a, b_, TP)
            for h in range(2):
                d = f"v{PQR + tt*6 + t*2 + h}"
                a(f"v_cvt_pk_bf16_f32 {d}, v{QA + (tt*3+t)*4 + 2*h}, v{QA + (tt*3+t)*4 + 2*h + 1}")
                if t == 2: a(f"v_cndmask_b32 {d}, 0, {d}, s[90:91]")
            a.bg(EBG)
    OSC = SCR
    TA = 56
    for s_ in range(12):
        src = T2R + s_//2
        if s_ & 1: a(f"v_lshrrev_b32 v{TA+s_}, 16, v{src}")
        else: a(f"v_and_b32 v{TA+s_}, 0xffff, v{src}")
        a(f"v_add_u32 v{TA+s_}, {OSC}, v{TA+s_}")
    for r_ in range(16):
        if r_ % 4 == 0: a.wait(vm=f"P{r_+3}")
        if "p16" in OPT:
            b_ = 32 if r_ == 0 else 36
            for e in range(2): a(f"v_accvgpr_read_b32 v{40+e}, {R(P0+4*r_+e)}")
            for e in range(2): a(f"v_lshlrev_b32 v{b_+2*e}, 16, v{40+e}"); a(f"v_and_b32 v{b_+2*e+1}, 0xffff0000, v{40+e}")
        else:
            for e in range(4): a(f"v_accvgpr_read_b32 v{(32 if r_ == 0 else 36)+e}, {R(P0+4*r_+e)}")
        if r_:
            for e in (0, 2): a(f"v_pk_add_f32 v[{32+e}:{33+e}], v[{32+e}:{33+e}], v[{36+e}:{37+e}]")
        if r_ % 4 == 3: a.bg(EBG)
    a("v_cvt_pk_bf16_f32 v18, v32, v33"); a("v_cvt_pk_bf16_f32 v19, v34, v35")
    a("v_cmp_gt_u32 vcc, 210, v0")
    a("v_cndmask_b32 v18, 0, v18, vcc"); a("v_cndmask_b32 v19, 0, v19, vcc")
    a("v_lshlrev_b32 v27, 3, v0"); a(f"v_add_u32 v27, {OSC}, v27")
    a("ds_write_b64 v27, v[18:19]")
    a("s_waitcnt lgkmcnt(0)")
    a("s_barrier")
    a.stamp("b9")
    KF = A0 + 64
    for E in range(4):
        for ta in range(3): a(f"ds_read_b64 {R(KF + 8*E + 2*ta, 2)}, v{TA + 3*E + ta}")
    a("s_mul_i32 s3, s28, 40960"); a("s_mul_i32 s56, s27, 1280"); a("s_add_u32 s3, s3, s56"); a("s_add_u32 s3, s3, s58")
    a("v_lshlrev_b32 v27, 2, v10"); a("v_lshl_add_u32 v27, v11, 3, v27")
    a("v_cndmask_b32 v27, v2, v27, s[90:91]")
    a("s_waitcnt lgkmcnt(0)")
    D = 32
    for tt in range(2):
        for E in (3, 0, 1, 2):
            d = R(D + (tt*4+E)*4, 4)
            a(f"v_mfma_f32_16x16x32_bf16 {d}, {R(KF + 8*E, 4)}, {R(PQR + 6*tt, 4)}, 0")
    for tt in range(2):
        for E in (3, 0, 1, 2):
            d = R(D + (tt*4+E)*4, 4)
            a(f"v_mfma_f32_16x16x16_bf16 {d}, {R(KF + 8*E + 4, 2)}, {R(PQR + 6*tt + 4, 2)}, {d}")
    for tt in range(2):
        z = D + (tt*4+3)*4
        a(f"v_add_f32 v20, s61, v{z}"); a(f"v_add_f32 v21, s61, v{z+1}")
        a("v_rcp_f32 v20, v20"); a("v_rcp_f32 v21, v21")
        a("v_cndmask_b32 v22, v21, v20, s[92:93]"); a("v_cndmask_b32 v28, v21, v20, s[90:91]")
        ob = 64 + 8*tt
        for E, rc in ((0, 22), (1, 28), (2, 21)):
            d = D + (tt*4+E)*4
            for e in range(4): a(f"v_mul_f32 v{d+e}, v{d+e}, v{rc}")
            a(f"v_cvt_pk_bf16_f32 v{ob + 2*E}, v{d}, v{d+1}"); a(f"v_cvt_pk_bf16_f32 v{ob + 2*E + 1}, v{d+2}, v{d+3}")
        a.vmem(f"buffer_store_dwordx4 {R(ob, 4)}, v8, s[40:43], s3 offen{HS}", "ST")
        a.vmem(f"buffer_store_dwordx2 {R(ob + 4, 2)}, v27, s[40:43], s3 offen offset:1024{HS}", "ST")
        a("s_add_u32 s3, s3, 20480")

    def hop(n, before, after_pub, post=0, touch=None, post2=0):
        before()
        a(f"s_add_u32 s59, s58, {G_FL + 128*n}")
        a("s_lshl_b32 s3, s27, 2"); a("s_add_u32 s3, s3, s59")
        a.bg(post)
        a.wait(vm="ST")
        if touch and "notouch" not in OPT: touch()
        a("s_barrier")
        a.stamp(f"hop{n}a")
        a("s_cmp_lg_u32 s28, 0"); a(f"s_cbranch_scc1 L_g{n}np")
        a("s_mov_b64 exec, 1")
        a("s_cmp_eq_u32 s79, 0"); a(f"s_cbranch_scc1 L_g{n}slow")
        a("buffer_store_dword v6, v5, s[40:43], s3 offen")
        a(f"s_branch L_g{n}pd")
        a(f"L_g{n}slow:")
        if FENCE: a("buffer_wbl2 sc1"); a("s_waitcnt vmcnt(0)")
        a("buffer_store_dword v6, v5, s[40:43], s3 offen sc1")
        a(f"L_g{n}pd:")
        a("s_mov_b64 exec, -1")
        a(f"L_g{n}np:")
        after_pub()
        a.bg(post2)
        a("s_cmp_lg_u32 s28, 0"); a(f"s_cbranch_scc1 L_g{n}j")
        a("s_mov_b32 s78, 0")
        a(f"L_g{n}p:")
        a("buffer_load_dword v27, v10, s[40:43], s59 offen sc1")
        a("s_add_u32 s78, s78, 1")
        a("s_waitcnt vmcnt(0)")
        a("v_cmp_ne_u32 vcc, s76, v27")
        a(f"s_cmp_ge_u32 s78, {POLLMAX}"); a(f"s_cbranch_scc1 L_g{n}x")
        a(f"s_cbranch_vccnz L_g{n}p")
        a(f"L_g{n}x:")
        if FENCE:
            a("s_cmp_lg_u32 s79, 0"); a(f"s_cbranch_scc1 L_g{n}j")
            a("buffer_inv sc1"); a("s_waitcnt vmcnt(0)")
        a(f"L_g{n}j:")
        a("s_barrier")
        a.stamp(f"hop{n}b")
    def a_off(NK, goff):
        for m in range(4):
            a(f"s_add_u32 s3, s28, {m}"); a("s_and_b32 s3, s3, 3"); a("s_lshl_b32 s57, s48, 2"); a("s_add_u32 s3, s3, s57")
            a(f"s_mul_i32 s3, s3, {NK}"); a("s_add_u32 s3, s3, s28"); a("s_lshl_b32 s3, s3, 10"); a("s_add_u32 s3, s3, s58"); a(f"s_add_u32 s{80+m}, s3, {goff}")
    def ctouch(lab, nl):
        def f():
            a("s_lshl_b32 s98, s27, 2"); a("s_add_u32 s98, s98, s28"); a(f"s_mul_i32 s98, s98, {128*nl}"); a(f"s_add_u32 s98, s98, {lab}-L_pc")
            a("v_add_u32 v31, s98, v3"); a(f"s_bfm_b64 exec, {nl}, 0")
            a.vmem("global_load_dword v4, v31, s[30:31]"); a("s_mov_b64 exec, -1")
        return f
    if "noct" not in OPT: a.bgq.insert(0, ctouch("L_cS4", 2))
    def flush_wo():
        while any(True for _ in [0]) and a.bgq and len(a.bgq) > 24 + 11: a.bg(1)
    def bef0():
        a_off(20, G_O)
        a("s_mul_i32 s99, s28, 40960"); a("s_mul_i32 s56, s27, 1280"); a("s_add_u32 s99, s99, s56"); a("s_add_u32 s99, s99, s58")
        a("v_mul_u32_u24 v28, 20480, v11"); a("v_lshl_add_u32 v28, v10, 5, v28")
    def tch0():
        a("s_mov_b64 exec, 0x03ff03ff"); a.vmem("buffer_load_dword v4, v28, s[40:43], s99 offen sc1"); a("s_mov_b64 exec, -1")
    hop(0, bef0, lambda: None, post=0, touch=tch0, post2=P("POST0", 10))
    flush_wo()
    ACC = 32 ; FA3 = A0
    for n in range(5):
        for m in range(4):
            a.vmem(f"buffer_load_dwordx4 {R(FA3 + (n*4+m)*4, 4)}, v8, s[40:43], s{80+m} offen sc1", f"A{n}")
            a(f"s_add_u32 s{80+m}, s{80+m}, 4096")
    if "sc1hid" not in OPT: a.bgq.insert(0, hidtouch)
    RED = 102400
    def red_addr():
        for m in range(1, 4):
            a(f"s_add_u32 s3, s28, {m}"); a("s_and_b32 s3, s3, 3"); a("s_mul_i32 s3, s3, 15360"); a(f"s_add_u32 s3, s3, {RED}")
            a(f"v_add_u32 v{16+m}, s3, v8")
        a("s_mul_i32 s3, s28, 15360"); a(f"s_add_u32 s3, s3, {RED}"); a("v_add_u32 v16, s3, v8")
    def init_acc(srcs):
        for t in range(5):
            for e in range(4):
                for q, src0 in enumerate(srcs):
                    src = src0 + 2*t + (e >> 1); d = ACC+4*t+e if q == 0 else 27
                    if e & 1: a(f"v_and_b32 v{d}, 0xffff0000, v{src}")
                    else: a(f"v_lshlrev_b32 v{d}, 16, v{src}")
                    if q: a(f"v_add_f32 v{ACC+4*t+e}, v{ACC+4*t+e}, v27")
    def last_step(mfn):
        order = [(m, t) for m in (1, 2, 3, 0) for t in range(5)]
        for i, (m, t) in enumerate(order):
            a(mfn(m, t))
            if i >= 5:
                m2, t2 = order[i-5]
                a(f"ds_write_b128 v{16+m2}, {R(ACC + (m2*5+t2)*4, 4)} offset:{(m2-1)*5120 + t2*1024}")
    red_addr()
    if "RES" in a.vm: a.wait(vm="RES")
    init_acc([RES])
    S3BG = P("S3BG", 3)
    for n in range(5):
        a.wait(vm=f"A{n}")
        if n == 4:
            last_step(lambda m, t: MF(ACC + (m*5+t)*4, FB3 + (n*5+t)*4, FA3 + (n*4+m)*4, False)); a.bg(S3BG)
        else:
            mf = [MF(ACC + (m*5+t)*4, FB3 + (n*5+t)*4, FA3 + (n*4+m)*4, n == 0 and m > 0) for m in range(4) for t in range(5)]
            a.interleave(mf, [lambda: a.bg(1)]*S3BG)
    a.stamp("s3end")
    a("L_cS4:")
    if "plainhid" in OPT and P("HTP", 0) == 0: hidtouch()
    HF = A0; BF = A0 + 160
    NA = P("NA", 4); BS = 4*max(NA, 7 - NA)
    if NA == 4:
        slots = [156 + 4*i for i in range(16)] + [A0 + 192 + 4*i for i in range(3)] + [A0 + 220 + 4*i for i in range(9)] + [HF + 4*i for i in range(40)] + [BF + 4*i for i in range(2)]
        NEARLY = 28
        arA = [A0 + 168 + 4*i for i in range(6)] + [A0 + 204 + 4*i for i in range(4)]
    elif NA == 7:
        for x in range(14): a(f"v_accvgpr_mov_b32 {R(A0 + 240 + x)}, {R(B1A + x)}")
        B1A = A0 + 240
        slots = [156 + 4*i for i in range(16)] + [A0 + 216 + 4*i for i in range(6)] + [HF + 4*i for i in range(40)] + [BF + 4*i for i in range(8)]
        NEARLY = 22
        arA = [A0 + 192 + 4*i for i in range(6)] + [A0 + 240 + 4*i for i in range(4)]
    else:
        for x in range(14): a(f"v_accvgpr_mov_b32 {R(A0 + 240 + x)}, {R(B1A + x)}")
        B1A = A0 + 240
        slots = [156 + 4*i for i in range(16)] + [A0 + 208 + 4*i for i in range(8)] + [HF + 4*i for i in range(40)] + [BF + 4*i for i in range(6)]
        NEARLY = 24
        arA = [A0 + 184 + 4*i for i in range(6)] + [A0 + 240 + 4*i for i in range(4)]
    def fb(n, t): return slots[n*5 + t]
    a("s_mul_i32 s3, s49, 54"); a("s_add_u32 s3, s3, s28"); a("s_mul_i32 s54, s3, 5120"); a(f"s_add_u32 s54, s54, {W2P}")
    def ldw2(n, t):
        if n == 13 and t == 0:
            a("s_cmp_ge_u32 s28, 2"); a("s_cselect_b32 s98, 0x40000000, 0"); a("s_add_u32 s54, s54, s98")
        a.vmem(f"buffer_load_dwordx4 {R(fb(n, t), 4)}, v{8 if t < 4 else 12}, s[40:43], s54 offen offset:{1024*(t&3)} sc1", f"W2_{n}")
        if t == 4: a("s_add_u32 s54, s54, 20480")
    w2q = [(n, t) for n in range(14) for t in range(5)]
    nw1left = len(a.bgq)
    def w2bg():
        ldw2(*w2q.pop(0))
    a.bgq += [w2bg]*NEARLY
    def reduce_epi(which, BIA=None, nbg=0):
        a.bg(2*nbg)
        a("s_waitcnt lgkmcnt(0)")
        a("s_barrier")
        for t in range(5):
            for m in range(1, 4): a(f"ds_read_b128 {R(ACC + (m*5+t)*4, 4)}, v16 offset:{(m-1)*5120 + t*1024}")
        for t in range(5):
            a(f"s_waitcnt lgkmcnt({12 - 3*t})")
            for e in (0, 2):
                x0 = ACC + 4*t + e
                a(f"v_pk_add_f32 v[{x0+20}:{x0+21}], v[{x0+20}:{x0+21}], v[{x0+40}:{x0+41}]"); a(f"v_pk_add_f32 v[{x0}:{x0+1}], v[{x0}:{x0+1}], v[{x0+60}:{x0+61}]")
            for e in (0, 2):
                x0 = ACC + 4*t + e
                a(f"v_pk_add_f32 v[{x0}:{x0+1}], v[{x0}:{x0+1}], v[{x0+20}:{x0+21}]")
            for h in range(2): a(f"v_cvt_pk_bf16_f32 v{RES+2*t+h}, v{ACC+4*t+2*h}, v{ACC+4*t+2*h+1}")
            if which == 3:
                if t == 1: a.vmem(f"buffer_store_dwordx4 {R(RES, 4)}, v8, s[40:43], s57 offen{HS}")
                if t == 3: a.vmem(f"buffer_store_dwordx4 {R(RES+4, 4)}, v8, s[40:43], s57 offen offset:1024{HS}")
                if t == 4: a.vmem(f"buffer_store_dwordx2 {R(RES+8, 2)}, v13, s[40:43], s57 offen offset:2048{HS}")
    a("s_mul_i32 s57, s50, 20480"); a("s_mul_i32 s3, s49, 2560"); a("s_add_u32 s57, s57, s3"); a("s_add_u32 s57, s57, s58"); a(f"s_add_u32 s57, s57, {G_H}")
    reduce_epi(3, nbg=P("R3BG", 3))
    a(f"v_pk_add_f32 v[28:29], v[{ACC}:{ACC+1}], v[{ACC+2}:{ACC+3}]"); a(f"v_pk_mul_f32 v[30:31], v[{ACC}:{ACC+1}], v[{ACC}:{ACC+1}]"); a(f"v_pk_fma_f32 v[30:31], v[{ACC+2}:{ACC+3}], v[{ACC+2}:{ACC+3}], v[30:31]")
    for x in range(4, 20, 2):
        a(f"v_pk_add_f32 v[28:29], v[28:29], v[{ACC+x}:{ACC+x+1}]"); a(f"v_pk_fma_f32 v[30:31], v[{ACC+x}:{ACC+x+1}], v[{ACC+x}:{ACC+x+1}], v[30:31]")
    a("v_add_f32 v20, v28, v29"); a("v_add_f32 v21, v30, v31")
    def red_g(regs, tmp):
        for r_ in regs:
            a(f"v_mov_b32 {tmp}, {r_}"); a(f"v_permlane32_swap_b32 {r_}, {tmp}"); a(f"v_add_f32 {r_}, {r_}, {tmp}")
            a(f"v_mov_b32 {tmp}, {r_}"); a(f"v_permlane16_swap_b32 {r_}, {tmp}"); a(f"v_add_f32 {r_}, {r_}, {tmp}")
    red_g(["v20", "v21"], "v22")
    a("v_lshlrev_b32 v22, 1, v10")
    a("s_lshl_b32 s57, s50, 10"); a("s_lshl_b32 s3, s49, 7"); a("s_add_u32 s57, s57, s3"); a("s_add_u32 s57, s57, s58"); a(f"s_add_u32 s57, s57, {G_ST}")
    a.vmem(f"buffer_store_dwordx2 v[20:21], v22, s[40:43], s57 offen{HS}", "ST")
    CS = 128; CSL = 144384
    def bef3():
        a("s_mul_i32 s3, s28, 40960"); a("s_add_u32 s3, s3, s58"); a(f"s_add_u32 s80, s3, {G_H}"); a("s_add_u32 s81, s80, 20480")
        a("s_lshl_b32 s82, s28, 11"); a("s_add_u32 s82, s82, s58"); a(f"s_add_u32 s82, s82, {G_ST}")
        a("v_lshlrev_b32 v19, 8, v11"); a("v_lshl_add_u32 v19, v10, 1, v19")
        a("v_add_u32 v16, 57344, v8"); a("v_add_u32 v17, 114688, v8")
        a(f"s_mul_i32 s3, s28, {11*1024}"); a(f"s_add_u32 s3, s3, {96*1024}"); a("v_add_u32 v18, s3, v8")
        for e in range(4):
            a(f"v_add_f32 v{C1R+e}, v{C1R+e}, v{C1R+4+e}"); a(f"v_add_f32 v{C1R+8+e}, v{C1R+8+e}, v{C1R+12+e}")
            a(f"v_add_f32 v{C1R+e}, v{C1R+e}, v{C1R+16+e}"); a(f"v_add_f32 v{C1R+e}, v{C1R+e}, v{C1R+8+e}")
        a("s_lshl_b32 s3, s28, 9"); a(f"s_add_u32 s3, s3, {CSL}"); a("v_add_u32 v29, s3, v26")
    def aft3():
        if "W1" in a.vm: a.wait(vm="W1")
        for i in range(11): a(f"ds_write_b128 v18, {R(W1T + 4*i, 4)} offset:{1024*i}")
        a("s_mov_b64 exec, s[66:67]"); a(f"ds_write_b128 v29, {R(C1R, 4)}"); a("s_mov_b64 exec, -1")
        a("s_waitcnt lgkmcnt(0)")
    left1 = max(0, len(a.bgq) - len([1 for x in a.bgq if x is w2bg]))
    print("w1 left at hop3:", left1, "w2 issued:", 70 - len(w2q), file=sys.stderr)
    def tch1():
        a("s_mul_i32 s99, s50, 20480"); a("s_mul_i32 s98, s49, 2560"); a("s_add_u32 s99, s99, s98"); a("s_add_u32 s99, s99, s58"); a(f"s_add_u32 s99, s99, {G_H}")
        a("s_mov_b64 exec, 0xfffff"); a.vmem("buffer_load_dword v4, v3, s[40:43], s99 offen sc1"); a("s_mov_b64 exec, -1")
    hop(1, bef3, aft3, post=left1, touch=tch1, post2=max(0, P("POST1", 6) - left1))
    def hf(tt, k): return HF + (k*2 + tt)*4
    def ldh(k):
        def one(tt):
            a.vmem(f"buffer_load_dwordx4 {R(hf(tt, k), 4)}, v8, s[40:43], s{80+tt} offen offset:{1024*(k&3)} sc1", f"H{k}")
            if (k & 3) == 3: a(f"s_add_u32 s{80+tt}, s{80+tt}, 4096")
        return [lambda tt=tt: one(tt) for tt in range(2)]
    PRE = P("PRE4", 6)
    for k in range(PRE):
        for f in ldh(k): f()
    for tt in range(2):
        for q in range(2):
            a.vmem(f"buffer_load_dwordx2 {R(88 + 4*tt + 2*q, 2)}, v19, s[40:43], s82 offen offset:{1024*tt + 128*q} sc1", "STAT")
    def breads(ps, k):
        ts = range(NA) if ps == 0 else range(NA, 7)
        return [lambda t=t: a.ds(f"ds_read_b128 {R(BF + (k&1)*BS + 4*(t - ts[0]), 4)}, v{[8, 16, 17][k >> 3]} offset:{(k & 7)*7168 + 1024*t}", f"BR{ps}_{k}") for t in ts]
    for f in breads(0, 0): f()
    vS = [20, 21]; vQ = [24, 25]
    a(f"v_add_u32 v18, {CSL}, v23")
    hq = list(range(PRE, 20))
    B1U = 220
    c1 = -2.0*LOG2E*0.7978845608028654
    c2 = c1*0.044715
    a(f"s_mov_b32 s60, {hx(c1)}"); a(f"s_mov_b32 s61, {hx(c2)}")
    a("s_mul_i32 s56, s28, 110592"); a("s_lshl_b32 s3, s53, 9"); a("s_add_u32 s56, s56, s3"); a("s_add_u32 s56, s56, s58"); a(f"s_add_u32 s56, s56, {G_HID}"); a("s_add_u32 s57, s56, 55296")
    for k in range(20):
        a.wait(vm=f"H{k}", lg=f"BR0_{k}")
        front = breads(0, k+1) if k < 19 else (breads(1, 0) if NA < 7 else [])
        side = []
        if NA == 7:
            if hq:
                for _ in range(P("HRATE", 2)):
                    if hq: side += ldh(hq.pop(0))
            else:
                side += [w2bg]*max(0, min(P("ABG", 2), len(w2q), NEARLY + 2*k - (70 - len(w2q))))
        elif hq:
            side += ldh(hq.pop(0))
            if not hq and "plainhid" in OPT and P("HTP", 0) == 1: side.append(hidtouch)
        else: side += [lambda: a.bg(1)]*P("ABG", 1)
        if 1 <= k < 8:
            kk = k - 1; tb = 96 if kk % 2 == 0 else 220
            side.append(lambda kk=kk: a.wait(lg=f"CG{kk}"))
            for e in range(4):
                side += [f"v_add_f32 v{CS+4*kk+e}, v{CS+4*kk+e}, v{tb+e}", f"v_add_f32 v{tb+4+e}, v{tb+4+e}, v{tb+8+e}", f"v_add_f32 v{CS+4*kk+e}, v{CS+4*kk+e}, v{tb+4+e}"]
        if k < 7:
            tb = 96 if k % 2 == 0 else 220
            for w in range(4): front.append(lambda w=w, k=k, tb=tb: a.ds(f"ds_read_b128 {R((CS + 4*k) if w == 0 else (tb - 4 + 4*w), 4)}, v18 offset:{512*w + 64*k}", f"CG{k}"))
        if k == PRE + 2:
            for tt in range(2):
                side.append(f"v_add_f32 v{vS[tt]}, v{88+4*tt}, v{90+4*tt}"); side.append(f"v_add_f32 v{vQ[tt]}, v{89+4*tt}, v{91+4*tt}")
            side.append(lambda: red_g([f"v{x}" for x in vS + vQ], "v22"))
        if k == PRE + 3:
            for tt in range(2):
                s_, q_ = f"v{vS[tt]}", f"v{vQ[tt]}"
                side += [f"v_mul_f32 {s_}, s63, {s_}", f"v_mul_f32 {q_}, s63, {q_}", f"v_fma_f32 {q_}, -{s_}, {s_}, {q_}", f"v_max_f32 {q_}, 0, {q_}",
                         f"v_add_f32 v22, s64, {q_}", f"v_fma_f32 {q_}, v22, s64, {q_}", f"v_rsq_f32 {q_}, {q_}", f"v_mul_f32 {s_}, {s_}, {q_}"]
            side += ["v_mov_b32 v252, s60", "v_mov_b32 v253, s60", "s_mov_b32 s96, s61", "s_mov_b32 s97, s61"]
        if k >= 12:
            x = 2*(k - 12)
            for y in (x, x + 1):
                if y < 14:
                    side += [f"v_accvgpr_read_b32 v27, {R(B1A + y)}", f"v_lshlrev_b32 v{B1U+2*y}, 16, v27", f"v_and_b32 v{B1U+2*y+1}, 0xffff0000, v27"]
        mf = [MF(ACC + (tt*7+t)*4, BF + (k&1)*BS + 4*t, hf(tt, k), k == 0) for t in range(NA) for tt in range(2)]
        a.interleave(mf, side, front)
    a.stamp("s4A")
    if "noct" not in OPT: ctouch("L_cS5", 1)()
    PK = 88
    def gelu(tt, t, pk=False):
        L = []
        if pk:
            b_ = ACC + (tt*7+t)*4
            pr = lambda x: f"v[{x}:{x+1}]"
            for h in (0, 2): L.append(f"v_pk_fma_f32 {pr(248+h)}, v[20:21], {pr(CS+4*t+h)}, {pr(B1U+4*t+h)} op_sel:[{tt},0,0] op_sel_hi:[{tt},1,1] neg_lo:[1,0,0] neg_hi:[1,0,0]")
            for h in (0, 2): L.append(f"v_pk_fma_f32 {pr(b_+h)}, {pr(b_+h)}, v[24:25], {pr(248+h)} op_sel:[0,{tt},0] op_sel_hi:[1,{tt},1]")
            for h in (0, 2): L.append(f"v_pk_mul_f32 {pr(248+h)}, {pr(b_+h)}, {pr(b_+h)}")
            for h in (0, 2): L.append(f"v_pk_fma_f32 {pr(248+h)}, {pr(248+h)}, s[96:97], v[252:253]")
            for h in (0, 2): L.append(f"v_pk_mul_f32 {pr(248+h)}, {pr(248+h)}, {pr(b_+h)}")
            for e in range(4): L.append(f"v_exp_f32 v{248+e}, v{248+e}")
            for h in (0, 2): L.append(f"v_pk_add_f32 {pr(248+h)}, {pr(248+h)}, 1.0 op_sel_hi:[1,0]")
            for e in range(4): L.append(f"v_rcp_f32 v{248+e}, v{248+e}")
            for h in (0, 2): L.append(f"v_pk_mul_f32 {pr(b_+h)}, {pr(b_+h)}, {pr(248+h)}")
        else:
            for e in range(4):
                v_ = f"v{ACC + (tt*7+t)*4 + e}"; ta = f"v{248+e}"
                L += [f"v_fma_f32 {ta}, -v{vS[tt]}, v{CS+4*t+e}, v{B1U+4*t+e}", f"v_fma_f32 {v_}, {v_}, v{vQ[tt]}, {ta}", f"v_mul_f32 {ta}, {v_}, {v_}",
                      f"v_fma_f32 {ta}, {ta}, s61, v252", f"v_mul_f32 {ta}, {ta}, {v_}", f"v_exp_f32 {ta}, {ta}"]
            for e in range(4):
                ta = f"v{248+e}"; L += [f"v_add_f32 {ta}, 1.0, {ta}"]
            for e in range(4):
                ta = f"v{248+e}"; L += [f"v_rcp_f32 {ta}, {ta}"]
            for e in range(4):
                v_ = f"v{ACC + (tt*7+t)*4 + e}"; L.append(f"v_mul_f32 {v_}, {v_}, v{248+e}")
        for h in range(2):
            x0 = ACC + (tt*7+t)*4 + 2*h
            L.append(f"v_cvt_pk_bf16_f32 v{PK + tt*14 + 2*t + h}, v{x0}, v{x0+1}")
        if t & 1: L.append(lambda: a.vmem(f"buffer_store_dwordx4 {R(PK + tt*14 + 2*(t-1), 4)}, v8, s[40:43], s{56+tt} offen offset:{512*(t-1)}{HS2}", "ST" if t > 3 else "ST01"))
        if t == 6: L.append(lambda: a.vmem(f"buffer_store_dwordx2 {R(PK + tt*14 + 12, 2)}, v13, s[40:43], s{56+tt} offen offset:3072{HS2}", "ST"))
        return L
    gl = []
    for p in range(NA//2 if NA < 7 else 0):
        for tt in range(2): gl += gelu(tt, 2*p, "pkB" in OPT) + gelu(tt, 2*p+1, "pkB" in OPT)
    a.bgq = []
    W2RATE = P("W2RATE", 2)
    for k in range(20 if NA < 7 else 0):
        a.wait(lg=f"BR1_{k}")
        front = breads(1, k+1) if k < 19 else []
        q = (len(gl) + 19 - k)//(20 - k) if k > 0 else 0
        side = gl[:q]; gl = gl[q:]
        nin = max(0, min(W2RATE, len(w2q), NEARLY + 2*k - (70 - len(w2q))))
        for i_ in range(nin): side.insert((i_ + 1)*len(side)//(nin + 1), w2bg)
        mf = [MF(ACC + (tt*7+t)*4, BF + (k&1)*BS + 4*(t-NA), hf(tt, k), k == 0) for t in range(NA, 7) for tt in range(2)]
        a.interleave(mf, side, front)
    a.stamp("s4B")
    a("L_cS5:")
    W2EPI = P("W2EPI", 2)
    seq = [(0, 4), (0, 5), (1, 4), (1, 5), (0, 6), (1, 6)] if NA == 4 else [(0, 6), (1, 6)]
    if NA == 7: seq = [(tt, 2*p + q) for p in range(3) for tt in range(2) for q in range(2)] + [(0, 6), (1, 6)]
    for i_, (tt, t) in enumerate(seq):
        L = gelu(tt, t, True)
        if i_ == P("HT", 99):
            a("v_and_b32 v28, 1, v11"); a("v_mul_u32_u24 v28, 55296, v28"); a("v_lshl_add_u32 v28, v10, 5, v28")
            a.wait(vm="ST01")
            a("s_bfm_b64 exec, 32, 0"); a.vmem("buffer_load_dword v4, v28, s[40:43], s56 offen sc1"); a("s_mov_b64 exec, -1")
        for j_, x in enumerate(L):
            a.run(x)
            if i_ < P("W2STOP", 4) and j_ in (6, 16)[:W2EPI] and w2q: ldw2(*w2q.pop(0))
    BIA = 126
    def bef4():
        srd(a, 32, 20, 2621440); srd(a, 36, 18, 1280)
        a_off(54, G_HID)
        a("v_lshlrev_b32 v28, 3, v11"); a("s_mul_i32 s3, s49, 160")
        a.vmem(f"buffer_load_dwordx4 {R(BIA, 4)}, v23, s[36:39], s3 offen")
        a.vmem(f"buffer_load_dwordx4 {R(BIA+4, 4)}, v23, s[36:39], s3 offen offset:64")
        a.vmem(f"buffer_load_dwordx2 {R(BIA+8, 2)}, v28, s[36:39], s3 offen offset:128", "BIA")
    npost = min(P("POST2", 4), len(w2q))
    a.bgq = [lambda x=x: ldw2(*x) for x in w2q[:npost]]; w2q = w2q[npost:]
    print("w2 left after hop4:", len(w2q), file=sys.stderr)
    def tch2():
        a("v_lshrrev_b32 v28, 5, v1"); a("v_mul_u32_u24 v28, 55296, v28"); a("v_and_b32 v29, 31, v1"); a("v_lshl_add_u32 v28, v29, 7, v28")
        a("s_mov_b32 exec_lo, 0x0fffffff"); a("s_mov_b32 exec_hi, 0x0fffffff"); a.vmem("buffer_load_dword v4, v28, s[40:43], s56 offen sc1"); a("s_mov_b64 exec, -1")
    hop(2, bef4, lambda: None, post=0, touch=tch2, post2=npost)
    ar = [136 + 4*i for i in range(5)] + [220 + 4*i for i in range(9)] + arA
    NR = 6
    def fa(n, m): return ar[(n % NR)*4 + m]
    def lda5(n):
        def one(m):
            if n == 13 and m == 0:
                a("s_cmp_ge_u32 s28, 2"); a("s_cselect_b32 s3, 0x40000000, 0")
                for q in range(4): a(f"s_add_u32 s{80+q}, s{80+q}, s3")
            a.vmem(f"buffer_load_dwordx4 {R(fa(n, m), 4)}, v8, s[40:43], s{80+m} offen sc1", f"A5_{n}")
            a(f"s_add_u32 s{80+m}, s{80+m}, 4096")
        return [lambda m=m: one(m) for m in range(4)]
    PRE5 = P("PRE5", 3)
    def need_w2(n):
        L = []
        while w2q and w2q[0][0] <= n:
            x = w2q.pop(0); L.append(lambda x=x: ldw2(*x))
        return L
    for n in range(PRE5):
        for f in need_w2(n) + lda5(n): f()
    def ldbia():
        a("v_lshlrev_b32 v28, 3, v11"); a("s_mul_i32 s3, s49, 160")
        a.vmem(f"buffer_load_dwordx4 {R(BIA, 4)}, v23, s[36:39], s3 offen")
        a.vmem(f"buffer_load_dwordx4 {R(BIA+4, 4)}, v23, s[36:39], s3 offen offset:64")
        a.vmem(f"buffer_load_dwordx2 {R(BIA+8, 2)}, v28, s[36:39], s3 offen offset:128")
    red_addr(); a.wait(vm="BIA"); init_acc([RES, BIA])
    nxt = PRE5
    for n in range(14):
        a.wait(vm=f"A5_{n}")
        side = []; cnt = 0
        while nxt < 14 and nxt <= n + NR - 1 and cnt < 2:
            side += need_w2(nxt) + lda5(nxt); nxt += 1; cnt += 1
        if n == 13:
            last_step(lambda m, t: MF(ACC + (m*5+t)*4, fb(n, t), fa(n, m), False))
        else:
            mf = [MF(ACC + (m*5+t)*4, fb(n, t), fa(n, m), n == 0 and m > 0) for m in range(4) for t in range(5)]
            a.interleave(mf, side)
    a.stamp("s5end")
    reduce_epi(5, BIA)
    a(f"buffer_store_dwordx4 {R(RES, 4)}, v14, s[32:35], s51 offen")
    a(f"buffer_store_dwordx4 {R(RES+4, 4)}, v14, s[32:35], s51 offen offset:64")
    a(f"buffer_store_dwordx2 {R(RES+8, 2)}, v15, s[32:35], s51 offen offset:128")
    a("s_or_b32 s3, s2, s28"); a("s_cmp_lg_u32 s3, 0"); a("s_cbranch_scc1 L_notagclr")
    a("global_store_dword v5, v5, s[22:23] sc1")
    a("L_notagclr:")
    a.stamp("stored")
    if STAMP:
        a("s_waitcnt vmcnt(0)")
        a.stamp("end")
        a("s_memrealtime s[100:101]"); a("s_waitcnt lgkmcnt(0)"); a("v_writelane_b32 v7, s100, 31")
        a("v_writelane_b32 v7, s79, 30")
        a("s_lshl_b32 s3, s2, 2"); a("s_add_u32 s3, s3, s28"); a("s_lshl_b32 s3, s3, 8"); a(f"s_add_u32 s3, s3, {STB}")
        a("v_lshlrev_b32 v27, 2, v1"); a("v_add_u32 v27, s3, v27")
        a("global_store_dword v27, v7, s[24:25]")
        if os.environ.get("DELAY"):
            di = os.environ["DELAY"]
            a(f"s_cmp_lg_u32 s2, {P('DWG', 8)}"); a("s_cbranch_scc1 L_end"); a("s_cmp_lg_u32 s28, 0"); a("s_cbranch_scc1 L_end")
            clk = "s_memrealtime" if di in ("rt", "sk") else "s_memtime"
            a(f"{clk} s[100:101]"); a("s_waitcnt lgkmcnt(0)")
            if di == "sk":
                a("v_readlane_b32 s3, v7, 29"); a("s_nop 3"); a("s_sub_u32 s3, s3, s76"); a("s_add_u32 s3, s3, 100"); a("s_lshl_b32 s3, s3, 1")
            elif di == "rt":
                a("s_sub_u32 s3, s100, s76")
            else:
                a(f"v_readlane_b32 s3, v7, {di}"); a("v_readlane_b32 s56, v7, 0"); a("s_nop 3"); a("s_sub_u32 s3, s3, s56")
            a("s_lshl_b32 s3, s3, 2"); a("s_min_u32 s3, s3, 0x100000"); a("s_mov_b32 s57, s100")
            a("L_dly:")
            a(f"{clk} s[100:101]"); a("s_waitcnt lgkmcnt(0)"); a("s_sub_u32 s56, s100, s57"); a("s_cmp_lt_u32 s56, s3"); a("s_cbranch_scc1 L_dly")
        a.a.raw("; STAMPS " + " ".join(a.names))
    a("L_end:")
    a("s_endpgm")
    return a.a

def main(out):
    hdr = open("sequential_preLN__linear_attn_block__mixer_channel_mlp__prompt.s.ref").read().split("\n")
    hdr = [l for l in hdr if l.startswith(";") and "@launch" not in l]
    hdr.append("; @launch grid=(256,1,1) block=(256,1,1) lds=163840")
    a = gen()
    pre = '.amdgcn_target "amdgcn-amd-amdhsa--gfx950"\n.text\n'
    T1, T2 = build_tables()
    a.raw(".p2align 6\nT1_tab:")
    a.raw(".short " + ",".join(map(str, T1)))
    a.raw("T2_tab:")
    for row in T2: a.raw(".short " + ",".join(map(str, row)))
    a.raw(".fill 2048, 4, 0")
    a.raw('.section .rodata,"a"\n.p2align 6')
    a.raw(f""".amdhsa_kernel {NAME}
  .amdhsa_next_free_vgpr 512
  .amdhsa_next_free_sgpr 102
  .amdhsa_accum_offset 256
  .amdhsa_group_segment_fixed_size 0
  .amdhsa_kernarg_size 88
  .amdhsa_user_sgpr_count 2
  .amdhsa_user_sgpr_kernarg_segment_ptr 1
  .amdhsa_system_sgpr_workgroup_id_x 1
.end_amdhsa_kernel""")
    open(out, "w").write("\n".join(hdr) + "\n" + pre + a.finish())

if __name__ == "__main__":
    main(sys.argv[1])
```

```python
import sys, struct, os
from asmdsl import Asm, R, S
from gen1 import build_tables, PAIRS, f2u, hx, divmod_const, srd, LOG2E

NAME = "sequential_preLN__linear_attn_block__mixer_channel_mlp__prompt_kernel"
WOP = 0
W2P = WOP + 8*20*5*1024
W1P = W2P + 8*54*5*1024
C1P = W1P + 16*20*7*1024
WQKV = C1P + 320*512
PART = WQKV + 16*153600
GRP = PART + 256*4096
G_O = 0; G_H = 163840; G_ST = 327680; G_FL = 335872; G_HID = 336896; G_SZ = G_HID + 442368
FLG = GRP + 16*G_SZ
F1 = FLG; F1R = FLG + 8192; F0 = FLG + 10240; FU = FLG + 14336
WS_END = FLG + 20480
A0 = 256
STAMP = int(os.environ.get("STAMP", "0"))
STB = 32 << 20
POLLMAX = 1 << 15
OPT = set(os.environ.get("OPT", "").split(","))
def P(name, d): return int(os.environ.get(name, d))

class G:
    def __init__(self):
        self.a = Asm(); self.vm = []; self.lg = []; self.nst = 0; self.bgq = []; self.names = []
    def __call__(self, t): self.a(t)
    def vmem(self, text, tag=None): self.a(text); self.vm.append(tag)
    def ds(self, text, tag=None): self.a(text); self.lg.append(tag)
    def _n(self, lst, tag, cap):
        idx = max(i for i, t in enumerate(lst) if t == tag)
        return min(len(lst) - 1 - idx, cap)
    def wait(self, vm=None, lg=None):
        s = []
        if vm is not None: s.append(f"vmcnt({0 if vm == 'all' else self._n(self.vm, vm, 63)})")
        if lg is not None: s.append(f"lgkmcnt({0 if lg == 'all' else self._n(self.lg, lg, 15)})")
        self.a("s_waitcnt " + " ".join(s))
        if vm == 'all': self.vm = []
        if lg == 'all': self.lg = []
    def stamp(self, name=""):
        if STAMP != 1: return
        i = self.nst; self.nst += 1; self.names.append(name)
        assert i < 29
        self.a("s_memtime s[100:101]"); self.a("s_waitcnt lgkmcnt(0)"); self.a(f"v_writelane_b32 v7, s100, {i}")
    def run(self, x): x() if callable(x) else self.a(x)
    def bg(self, n=1):
        for _ in range(n):
            if self.bgq: self.bgq.pop(0)()
    def interleave(self, main, extra, front=()):
        n = len(main); m = len(extra); j = 0; front = list(front)
        for i, x in enumerate(main):
            self.run(x)
            if front:
                self.run(front.pop(0))
                if len(front) >= n - i and front: self.run(front.pop(0))
            while j < m and (j + 1) * n <= (i + 1) * m + (n - 1):
                self.run(extra[j]); j += 1
        for x in front: self.run(x)
        while j < m:
            self.run(extra[j]); j += 1

def MF(d, a_, b_, first): return f"v_mfma_f32_16x16x32_bf16 {R(d,4)}, {R(a_,4)}, {R(b_,4)}, {'0' if first else R(d,4)}"

def phi(a, val, t1, t2):
    a(f"v_mul_f32 {t1}, s60, {val}")
    a(f"v_max_f32 {t2}, 0, {val}")
    a(f"v_exp_f32_e64 {t1}, {t1} clamp")
    a(f"v_add_f32 {t2}, s61, {t2}")
    a(f"v_add_f32 {val}, {t1}, {t2}")

OPT |= {"sc1h", "sc1hid", "notouch", "usfirst", "ft", "rpplain", "slplain", "tlb3"}
def phi4(a, b_, T, sel_mask=None):
    for h in range(2): a(f"v_pk_mul_f32 v[{T+2*h}:{T+2*h+1}], v[{b_+2*h}:{b_+2*h+1}], s[94:95]")
    for e in range(4): a(f"v_max_f32 v{T+4+e}, 0, v{b_+e}")
    for e in range(4): a(f"v_exp_f32_e64 v{T+e}, v{T+e} clamp")
    for h in range(2): a(f"v_pk_add_f32 v[{T+4+2*h}:{T+5+2*h}], v[{T+4+2*h}:{T+5+2*h}], s[96:97]")
    if sel_mask is None:
        for h in range(2): a(f"v_pk_add_f32 v[{b_+2*h}:{b_+2*h+1}], v[{T+2*h}:{T+2*h+1}], v[{T+4+2*h}:{T+5+2*h}]")
    else:
        for h in range(2): a(f"v_pk_add_f32 v[{T+2*h}:{T+2*h+1}], v[{T+2*h}:{T+2*h+1}], v[{T+4+2*h}:{T+5+2*h}]")
        for e in range(4): a(f"v_cndmask_b32 v{b_+e}, v{b_+e}, v{T+e}, {sel_mask}")
RPNT = "" if "rpplain" in OPT else " nt"
HS = "" if "plainh" in OPT else " sc1"
HS2 = "" if "plainhid" in OPT else " sc1"
FENCE = "plainh" in OPT or "plainhid" in OPT
def gen():
    a = G()
    name = NAME
    NRAW = P("NRAW", 2)
    a.a.raw(f".globl {name}\n.p2align 8\n.type {name},@function\n{name}:")
    a("s_cmp_ge_u32 s2, 256"); a("s_cbranch_scc1 L_end")
    a("s_load_dwordx16 s[4:19], s[0:1], 0")
    a("s_load_dwordx4 s[20:23], s[0:1], 64")
    a("s_load_dwordx2 s[24:25], s[0:1], 80")
    a("s_memrealtime s[76:77]")
    a("s_getpc_b64 s[30:31]")
    a("L_pc:")
    a("v_mov_b32 v7, 0")
    a.stamp("start")
    a("v_lshrrev_b32 v2, 6, v0"); a("v_and_b32 v1, 63, v0")
    a("v_readfirstlane_b32 s28, v2")
    if "m48" in OPT:
        a("s_and_b32 s3, s2, 7"); a("s_lshr_b32 s29, s2, 3")
        a("s_lshr_b32 s26, s3, 1"); a("s_lshl_b32 s26, s26, 2"); a("s_lshr_b32 s27, s29, 3"); a("s_add_u32 s26, s26, s27")
        a("s_and_b32 s3, s3, 1"); a("s_lshl_b32 s3, s3, 2"); a("s_and_b32 s27, s29, 3"); a("s_or_b32 s27, s27, s3")
        a("s_and_b32 s29, s29, 4"); a("s_lshl_b32 s29, s29, 1"); a("s_or_b32 s27, s27, s29")
    else:
        a("s_and_b32 s3, s2, 7"); a("s_lshr_b32 s27, s2, 3"); a("s_lshr_b32 s26, s27, 4"); a("s_lshl_b32 s3, s3, 1")
        a("s_add_u32 s26, s26, s3")
        a("s_and_b32 s27, s27, 15")
    a("v_lshlrev_b32 v3, 7, v1")
    if "cp16" in OPT:
        a("s_cmp_lg_u32 s28, 3"); a("s_cbranch_scc1 L_nocp")
        a("s_mul_i32 s3, s27, 2304"); a("v_add_u32 v27, s3, v3"); a("s_bfm_b64 exec, 18, 0")
        a("global_load_dword v4, v27, s[30:31]"); a("s_mov_b64 exec, -1")
    elif "nocp" not in OPT:
        a("s_cmp_lg_u32 s28, 3"); a("s_cbranch_scc1 L_nocp")
        a("s_mul_i32 s3, s27, 13"); a("s_lshr_b32 s3, s3, 6"); a("s_mul_i32 s3, s3, 5"); a("s_sub_u32 s3, s27, s3"); a("s_lshl_b32 s3, s3, 13")
        a("v_add_u32 v27, s3, v3")
        a("global_load_dword v4, v27, s[30:31]")
    a("L_nocp:")
    BQ = 102400; SCR = 153600; CSX = 161792
    vXA = [72, 73, 74, 75]; vW = [76, 77]; vRd = [78, 79]; vTB = [17, 18, 19, 20]; vTQ = [86, 87, 88, 89]; vTQ2 = [90, 91, 21, 22]
    vSA = [80, 81, 82]; vBA = [144, 145, 146, 147, 148]; vTR = [149, 150, 151, 152]
    vT1 = 24; vSTW = 25
    ACC = 32; RAW = 160; XF = A0; BF = A0 + 160; ONES = A0 + 200; GR = A0 + 204; RSM = A0 + 212; OH = A0 + 220; CSA = A0 + 240; CSQ = A0 + 244
    t0, t1, t2, t3 = "v27", "v28", "v29", "v30"
    def early():
        a("v_and_b32 v27, 3, v1"); a("s_lshl_b32 s3, s28, 2"); a("v_add_u32 v27, s3, v27"); a("v_min_u32 v27, 14, v27")
        a("v_lshrrev_b32 v28, 2, v1"); a("v_mul_u32_u24 v28, 3840, v28"); a("v_lshl_add_u32 v28, v27, 4, v28")
        a("v_add_u32 v29, 1280, v28"); a("v_add_u32 v30, 2480, v28"); a("v_subrev_u32 v28, 160, v28")
        a("v_cmp_gt_u32 vcc, 10, v27"); a("s_mul_i32 s50, s26, 153600"); a("s_mul_i32 s51, s27, 80"); a("v_cndmask_b32 v28, v28, v30, vcc")
        a("v_cmp_gt_u32 vcc, 5, v27"); a("s_add_u32 s50, s50, s51"); a("s_mul_i32 s53, s28, 3072"); a("v_cndmask_b32 v83, v28, v29, vcc")
        a(f"s_add_u32 s53, s53, {BQ + 28672}")
        a("s_mul_i32 s3, s26, 163840"); a("s_mul_i32 s56, s27, 10240"); a("s_add_u32 s3, s3, s56"); a("s_mul_i32 s56, s28, 2560"); a("s_add_u32 s57, s3, s56")
        a("v_mov_b32 v5, 0")
    def late():
        a("v_lshlrev_b32 v8, 4, v1"); a("v_lshlrev_b32 v9, 4, v0")
        a("v_and_b32 v10, 15, v1"); a("v_lshlrev_b32 v10, 2, v10")
        a("v_lshrrev_b32 v11, 4, v1"); a("v_add_u32 v12, 4096, v8")
        a("v_lshrrev_b32 v27, 3, v1"); a("v_and_b32 v28, 7, v1"); a("v_mul_u32_u24 v29, 1280, v27")
        a(f"v_lshl_add_u32 v{vXA[0]}, v28, 4, v29")
        for rg in range(1, 4): a(f"v_add_u32 v{vXA[rg]}, {10240*rg}, v{vXA[0]}")
        a("s_lshl_b32 s3, s28, 11"); a(f"s_add_u32 s48, s3, {SCR}")
        a("v_lshrrev_b32 v29, 1, v27"); a("v_xor_b32 v29, v29, v28"); a("v_lshlrev_b32 v29, 4, v29"); a("v_lshl_add_u32 v29, v27, 7, v29")
        a(f"v_add_u32 v{vW[0]}, s48, v29")
        a("v_xor_b32 v29, 64, v29"); a("v_add_u32 v29, 1024, v29"); a(f"v_add_u32 v{vW[1]}, s48, v29")
        a("s_lshl_b32 s49, s26, 7"); a("s_lshl_b32 s3, s28, 5"); a("s_add_u32 s49, s49, s3"); a("s_mul_i32 s49, s49, 1280")
        a("s_lshr_b32 s3, s28, 1"); a("s_lshl_b32 s3, s3, 7"); a("s_add_u32 s62, s49, 128"); a("s_sub_u32 s62, s62, s3"); a("s_add_u32 s49, s49, s3")
        a("s_mul_i32 s52, s28, 5120")
        a(f"s_mul_i32 s58, s26, {G_SZ}"); a(f"s_add_u32 s58, s58, {GRP}")
        a("s_lshl_b32 s70, s28, 4"); a("s_add_u32 s70, s70, s26")
        a(f"s_mul_i32 s71, s28, 7168"); a(f"s_add_u32 s71, s71, {BQ}")
        a("v_mov_b32 v2, 0x7fffffff")
    early()
    if "slowpro" in OPT: late()
    a("s_waitcnt lgkmcnt(0)")
    srd(a, 36, 6, 2457600)
    SLNT = "" if "slplain" in OPT else " nt"
    for i in range(3):
        a(f"s_add_u32 m0, s53, {1024*i}")
        if i == 2: a("s_bfm_b64 exec, 32, 0")
        a.vmem(f"buffer_load_dwordx4 v83, s[36:39], s50 offen{SLNT} lds", "SLD")
        a(f"s_add_u32 s50, s50, {16*3840}")
    srd(a, 32, 4, 2621440); srd(a, 40, 24, WS_END)
    a("s_mov_b64 exec, 0xfffff")
    a.vmem(f"buffer_load_dword v4, v3, s[32:35], s57 offen{' nt' if 'xtnt' in OPT else ''}")
    if "tlb" in OPT:
        a("v_lshlrev_b32 v27, 20, v1"); a("s_bfm_b64 exec, 24, 0")
        a.vmem(f"buffer_load_dword v4, v27, s[40:43], 0 offen")
    if "tlb2" in OPT:
        a("s_mul_i32 s54, s27, 153600"); a(f"s_add_u32 s54, s54, {WQKV}")
        a("v_mul_u32_u24 v27, 51200, v1"); a("v_add_u32 v27, s54, v27"); a(f"v_mov_b32 v28, {F0}"); a("v_cmp_eq_u32 vcc, 3, v1"); a("v_cndmask_b32 v27, v27, v28, vcc")
        a("s_bfm_b64 exec, 4, 0")
        a.vmem(f"buffer_load_dword v4, v27, s[40:43], 0 offen")
        a.vmem("global_load_dword v4, v5, s[22:23] offset:128")
    a("s_mov_b64 exec, -1")
    if STAMP: a("v_writelane_b32 v7, s76, 29")
    a("s_and_b32 s76, s76, 0xfffffff8"); a("s_or_b32 s76, s76, 8")
    a("s_or_b32 s3, s2, s28"); a("s_cmp_lg_u32 s3, 0"); a("s_cbranch_scc1 L_notag")
    a("v_mov_b32 v28, s76"); a("global_store_dword v5, v28, s[22:23] sc1")
    a("L_notag:")
    if "ft" in OPT:
        a("s_cmp_lg_u32 s26, s27"); a("s_cbranch_scc1 L_noft"); a("s_cmp_lg_u32 s28, 1"); a("s_cbranch_scc1 L_noft")
        a("s_mul_i32 s3, s27, 1280"); a(f"s_add_u32 s3, s3, {FLG}")
        a("s_bfm_b64 exec, 10, 0"); a("buffer_load_dword v4, v3, s[40:43], s3 offen sc0 sc1"); a("s_mov_b64 exec, -1")
        a("L_noft:")
    if "tlb3" in OPT:
        a("s_cmp_lg_u32 s28, 2"); a("s_cbranch_scc1 L_not3")
        a("v_lshlrev_b32 v27, 16, v1"); a("v_lshlrev_b32 v28, 18, v1")
        for cc, (sp, n_) in enumerate([(12, 34), (16, 34), (8, 13), (20, 40)]):
            a(f"s_cmp_lg_u32 s27, {2+cc}"); a(f"s_cbranch_scc1 L_t3_{cc}")
            a(f"s_bfm_b64 exec, {n_}, 0"); a(f"global_load_dword v4, v27, s[{sp}:{sp+1}]"); a("s_mov_b64 exec, -1")
            a(f"L_t3_{cc}:")
        a("s_cmp_lg_u32 s27, 6"); a("s_cbranch_scc1 L_t3_4"); a("buffer_load_dword v4, v28, s[40:43], 0 offen"); a("L_t3_4:")
        a("s_cmp_lg_u32 s27, 7"); a("s_cbranch_scc1 L_not3"); a(f"s_mov_b32 s3, {64 << 18}"); a("buffer_load_dword v4, v28, s[40:43], s3 offen")
        a("L_not3:")
    if "tlb4" in OPT:
        a("s_cmp_lg_u32 s28, 2"); a("s_cbranch_scc1 L_not4")
        a("v_lshlrev_b32 v27, 21, v1"); a("s_bfm_b64 exec, 2, 0")
        a("global_load_dword v4, v27, s[12:13]"); a("global_load_dword v4, v27, s[16:17]"); a("s_mov_b64 exec, 1"); a("global_load_dword v4, v27, s[8:9]")
        a("s_bfm_b64 exec, 11, 0"); a("buffer_load_dword v4, v27, s[40:43], 0 offen")
        a("s_mov_b64 exec, -1")
        a("L_not4:")
    if "nobt" not in OPT:
        a("s_lshl_b32 s3, s27, 2"); a("s_add_u32 s3, s3, s28"); a("s_cmp_lg_u32 s3, 6"); a("s_cbranch_scc1 L_nobt")
        a("s_bfm_b64 exec, 27, 0"); a("global_load_dword v4, v3, s[14:15]")
        a("s_bfm_b64 exec, 10, 0"); a("global_load_dword v4, v3, s[18:19]")
        a("s_mov_b64 exec, -1")
        a("L_nobt:")
    srd(a, 44, 12, 2211840)
    if "slowpro" not in OPT: late()
    def rp_issue(nt, pitch_src, nch):
        for i in range(7):
            if i < nt:
                a(f"v_add_u32 v27, {64*i}, v1")
                divmod_const(a, "v28", "v29", "v27", nch)
                if nt == 5:
                    a("v_cmp_lt_u32 vcc, 15, v28"); a("v_add_u32 v30, s83, v28"); a("v_cndmask_b32 v28, v28, v30, vcc")
                a(f"v_mul_u32_u24 v28, {pitch_src}, v28"); a("v_lshl_add_u32 v28, v29, 4, v28")
                a(f"s_add_u32 m0, s71, {1024*i}")
                a(f"buffer_load_dwordx4 v28, s[44:47], s73 offen{RPNT} lds")
            else:
                a("buffer_load_dword v4, v2, s[44:47], 0 offen")
    def unit_issue():
        a("s_cmp_ge_u32 s70, 20"); a("s_cbranch_scc1 L_rp5")
        a("s_mov_b32 s72, 1")
        a("s_mul_i32 s75, s27, 27"); a("s_lshr_b32 s75, s75, 2"); a("s_lshl_b32 s75, s75, 5")
        a("s_mul_i32 s79, s70, 110592"); a("s_add_u32 s73, s75, s79")
        a("s_mul_i32 s75, s27, 20"); a("s_add_u32 s70, s70, s75")
        a("s_mul_i32 s74, s70, 7168"); a(f"s_add_u32 s74, s74, {W1P}")
        rp_issue(7, 3456, 14)
        a("s_branch L_rp_issued")
        a("L_rp5:")
        a("s_mov_b32 s72, 2")
        a("s_sub_u32 s79, s70, 20"); a("s_lshl_b32 s79, s79, 1"); a("s_lshr_b32 s75, s27, 3"); a("s_add_u32 s79, s79, s75"); a("s_and_b32 s75, s27, 7")
        a("s_cmp_ge_u32 s79, 54"); a("s_cbranch_scc1 L_rpwo")
        srd(a, 44, 16, 2211840)
        a("s_mul_i32 s78, s75, 54"); a("s_add_u32 s78, s78, s79")
        a("s_mul_i32 s74, s78, 5120"); a(f"s_add_u32 s74, s74, {W2P}")
        a("s_mov_b32 s83, 0")
        a("s_cmp_ge_u32 s79, 48"); a("s_cbranch_scc1 L_w2s")
        a("s_lshr_b32 s84, s79, 1"); a("s_and_b32 s85, s79, 1"); a("s_lshl_b32 s85, s85, 1")
        a("s_sub_u32 s78, s79, 32"); a("s_cmp_ge_u32 s79, 32"); a("s_cselect_b32 s84, s78, s84"); a("s_cselect_b32 s85, 4, s85")
        a("s_mul_i32 s84, s84, 27"); a("s_lshr_b32 s84, s84, 2"); a("s_add_u32 s79, s84, s85")
        a("s_branch L_rp5b")
        a("L_w2s:")
        a("s_sub_u32 s84, s79, 48"); a("s_lshl_b32 s84, s84, 1"); a("s_add_u32 s85, s84, 1")
        for r_ in ("s84", "s85"):
            a(f"s_mul_i32 s78, {r_}, 11"); a("s_lshr_b32 s78, s78, 5"); a(f"s_add_u32 {r_}, {r_}, s78"); a(f"s_add_u32 {r_}, {r_}, 1")
            a(f"s_mul_i32 {r_}, {r_}, 27"); a(f"s_lshr_b32 {r_}, {r_}, 2")
        a("s_add_u32 s79, s84, 6"); a("s_sub_u32 s83, s85, s84"); a("s_sub_u32 s83, s83, 1"); a("s_lshl_b32 s83, s83, 4")
        a("s_branch L_rp5b")
        a("L_rpwo:")
        srd(a, 44, 8, 819200)
        a("s_sub_u32 s79, s79, 54")
        a("s_mul_i32 s78, s75, 20"); a("s_add_u32 s78, s78, s79")
        a("s_mul_i32 s74, s78, 5120"); a(f"s_add_u32 s74, s74, {WOP}")
        a("s_cmp_ge_u32 s79, 20"); a("s_cselect_b32 s74, 0x40000000, s74")
        a("s_lshl_b32 s79, s79, 1"); a("s_mov_b32 s83, 0")
        a("L_rp5b:")
        a("s_mul_i32 s75, s75, 160"); a("s_mul_i32 s79, s79, 20480"); a("s_add_u32 s73, s75, s79")
        rp_issue(5, 1280, 10)
        a("L_rp_issued:")
        a.vm += ["UL"]*7
    def raw(cx, rg): return 96 + (((cx + 1) % 10)*4 + rg)*4
    def xf(tt, k): return XF + (tt*20 + k)*4
    def ldx(cx):
        return [lambda cx=cx, rg=rg: a.vmem(f"buffer_load_dwordx4 {R(raw(cx, rg), 4)}, v{vXA[rg]}, s[32:35], s{62 if cx & 1 else 49} offen offset:{256*(cx>>1)}", f"X{cx}") for rg in range(4)]
    a("v_and_b32 v27, 15, v1")
    a("v_cmp_gt_u32 s[66:67], 8, v27")
    a("v_cmp_gt_u32 s[90:91], 32, v1"); a("v_cmp_gt_u32 s[92:93], 48, v1")
    a("v_cmp_eq_u32 s[88:89], 1, v11")
    a("v_and_b32 v29, 1, v11")
    a("s_lshl_b32 s3, s28, 1"); a("v_add_u32 v29, s3, v29")
    a("v_cmp_gt_u32 s[94:95], 5, v29"); a("v_cmp_eq_u32 s[96:97], 7, v29")
    a("v_lshlrev_b32 v29, 10, v29"); a(f"v_add_u32 v30, {BQ - 5120}, v29"); a("v_cndmask_b32 v29, v30, v29, s[94:95]")
    a("v_lshl_add_u32 v29, v10, 2, v29")
    a("v_mov_b32 v30, 2560"); a("v_mov_b32 v31, 5120"); a("v_cndmask_b32 v30, v30, v31, s[94:95]")
    a("v_mov_b32 v31, 8"); a("v_cndmask_b32 v31, v31, 7, s[96:97]")
    a("s_andn2_b64 s[96:97], s[96:97], s[66:67]")
    a("s_mul_i32 s3, s26, 5")
    a("v_lshrrev_b32 v28, 1, v11"); a("v_add_u32 v28, s3, v28")
    for n in range(3):
        a(f"v_lshrrev_b32 v27, 2, v28"); a(f"v_mad_u32_u24 v{vSA[n]}, v27, v30, v29")
        a("v_and_b32 v27, 3, v28"); a("v_lshlrev_b32 v27, v31, v27"); a(f"v_add_u32 v{vSA[n]}, v{vSA[n]}, v27")
        a(f"v_cndmask_b32 v{vSA[n]}, v{vSA[n]}, v2, s[96:97]")
        if n == 2: a(f"v_cndmask_b32 v{vSA[n]}, v2, v{vSA[n]}, s[90:91]")
        else: a("v_add_u32 v28, 2, v28")
    a("v_lshrrev_b32 v27, 5, v1"); a("v_bfe_u32 v28, v1, 2, 2"); a("v_lshl_add_u32 v27, v27, 3, v28"); a("v_lshlrev_b32 v27, 6, v27")
    a("v_bfe_u32 v28, v1, 4, 1"); a("v_lshl_add_u32 v27, v28, 5, v27"); a("v_and_b32 v28, 3, v1"); a("v_lshl_add_u32 v27, v28, 3, v27")
    a("v_add_u32 v84, s53, v27")
    a("s_mul_i32 s54, s27, 153600"); a(f"s_add_u32 s54, s54, {WQKV}")
    a.wait(vm="SLD")
    a.stamp("sld")
    for n in range(3):
        for h in range(2): a(f"ds_read_b64_tr_b16 {R(96 + 4*n + 2*h, 2)}, v84 offset:{1024*n + 256*h}")
    a("s_waitcnt lgkmcnt(0)")
    for n in range(3): a.vmem(f"buffer_store_dwordx4 {R(96 + 4*n, 4)}, v{vSA[n]}, s[40:43], s54 offen sc1", "SL")
    a.vmem("global_load_dword v6, v5, s[22:23] sc1", "TAG")
    NX0 = P("NX0", 3)
    for cx in range(NX0):
        for f in ldx(cx): f()
    a("v_and_b32 v27, 15, v1")
    a("v_lshrrev_b32 v29, 1, v27"); a("v_xor_b32 v29, v29, v11"); a("v_lshlrev_b32 v29, 4, v29"); a("v_lshl_add_u32 v29, v27, 7, v29")
    a("s_and_b32 s3, s28, 1"); a("s_lshl_b32 s3, s3, 6"); a("v_xor_b32 v29, s3, v29")
    a(f"v_add_u32 v{vRd[0]}, s48, v29"); a("v_xor_b32 v29, 64, v29"); a(f"v_add_u32 v{vRd[1]}, s48, v29")
    a("v_lshrrev_b32 v29, 2, v27"); a("v_cmp_eq_u32 vcc, v29, v11")
    a("v_lshlrev_b32 v30, 2, v1"); a("v_add_u32 v30, 512, v30")
    a("v_cndmask_b32 v29, v30, v10, vcc"); a(f"v_add_u32 v{vSTW}, s48, v29")
    a("v_and_b32 v29, 1, v1"); a("v_cmp_eq_u32 s[68:69], 1, v29")
    a("v_and_b32 v29, 2, v1"); a("v_cmp_eq_u32 s[86:87], 2, v29")
    a("v_mov_b32 v28, 0x3f803f80")
    for i in range(4): a(f"v_accvgpr_write_b32 {R(ONES+i)}, v28")
    for t in range(5):
        a(f"v_cmp_eq_u32 vcc, {t}, v27"); a("v_cndmask_b32 v29, 0, v28, vcc")
        for e in range(4): a(f"v_accvgpr_write_b32 {R(OH+4*t+e)}, v29")
    a("v_and_b32 v27, 7, v1"); a("v_lshlrev_b32 v27, 4, v27"); a("v_lshl_add_u32 v27, v11, 7, v27")
    for p in range(4):
        a(f"s_xor_b32 s3, s28, {p}"); a("s_mul_i32 s56, s3, 5120"); a(f"v_add_u32 v{vTB[p]}, s56, v8")
        a("s_mul_i32 s56, s3, 2560"); a(f"s_add_u32 s56, s56, {BQ}"); a(f"v_add_u32 v{vTQ[p]}, s56, v8"); a("s_add_u32 s56, s56, 2048"); a(f"v_add_u32 v{vTQ2[p]}, s56, v27")
    a(f"s_mov_b32 s60, {hx(LOG2E)}"); a(f"s_mov_b32 s61, {hx(1e-6)}")
    a(f"s_mov_b32 s63, {hx(1.0/640)}"); a(f"s_mov_b32 s64, {hx(1e-5)}")
    a("s_lshl_b32 s55, s27, 8"); a(f"s_add_u32 s55, s55, {F0}")
    a("v_lshlrev_b32 v26, 2, v1")
    a("s_lshl_b32 s3, s26, 4"); a("s_lshl_b32 s56, s28, 2"); a("s_add_u32 s3, s3, s56"); a("s_add_u32 s3, s3, s55")
    a.wait(vm="TAG")
    a("v_readfirstlane_b32 s76, v6"); a("s_mov_b32 s78, 0")
    a("L_tp1:")
    a("s_cmp_lg_u32 s76, 0"); a("s_cbranch_scc1 L_tp1_ok")
    a("global_load_dword v6, v5, s[22:23] sc1"); a("s_add_u32 s78, s78, 1"); a("s_waitcnt vmcnt(0)")
    a("v_readfirstlane_b32 s76, v6")
    a(f"s_cmp_lt_u32 s78, {POLLMAX}"); a("s_cbranch_scc1 L_tp1")
    a("L_tp1_ok:")
    a("s_getreg_b32 s77, hwreg(HW_REG_XCC_ID)"); a("s_and_b32 s77, s77, 7"); a("s_or_b32 s77, s77, s76")
    a("s_lshl_b32 s57, s26, 7"); a("s_lshl_b32 s56, s27, 2"); a("s_add_u32 s57, s57, s56"); a(f"s_add_u32 s57, s57, {F1R}")
    a("s_cmp_eq_u32 s28, 0"); a("s_cselect_b32 s57, s57, 0x40000000"); a("v_mov_b32 v27, s77")
    a("s_mov_b64 exec, 1"); a.vmem("buffer_store_dword v6, v5, s[40:43], s3 offen sc1"); a.vmem("buffer_store_dword v27, v5, s[40:43], s57 offen sc1"); a("s_mov_b64 exec, -1")
    a.stamp("F0pub")
    def rp_fin(nt, RG):
        pitch = nt*32
        a("v_bfe_u32 v28, v1, 2, 2"); a("v_lshl_add_u32 v27, v11, 3, v28"); a("v_and_b32 v28, 3, v1")
        a(f"v_mul_u32_u24 v29, {pitch}, v27"); a("v_add_u32 v29, s71, v29")
        a("v_lshl_add_u32 v30, v28, 3, v29"); a("v_lshl_add_u32 v29, v28, 4, v29")
        for t in range(nt):
            for h in range(2):
                if t == nt - 1: a(f"ds_read_b64_tr_b16 {R(RG + 4*t + 2*h, 2)}, v30 offset:{h*4*pitch + 32*t}")
                else: a(f"ds_read_b64_tr_b16 {R(RG + 4*t + 2*h, 2)}, v29 offset:{h*4*pitch + 64*(t>>1) + 8*(t&1)}")
        if nt == 7:
            a("v_mov_b32 v28, 0x3f803f80")
            for t in (5, 6):
                a(f"v_cmp_eq_u32 vcc, {4*t}, v10")
                for e in range(4): a(f"v_cndmask_b32 v{RG+28+4*(t-5)+e}, 0, v28, vcc")
        a("s_waitcnt lgkmcnt(0)")
        if nt == 7:
            for t in range(7): a(MF(RG+36, RG + 4*t, OH + 4*t if t < 5 else RG+28+4*(t-5), t == 0))
    def rp_store(nt, RG):
        for t in range(nt):
            a(f"buffer_store_dwordx4 {R(RG + 4*t, 4)}, v{8 if t < 4 else 12}, s[40:43], s74 offen offset:{1024*(t&3)} sc1")
        if nt == 7:
            a("v_lshlrev_b32 v29, 4, v11"); a("v_lshl_add_u32 v29, v10, 4, v29"); a("v_cndmask_b32 v29, v2, v29, s[66:67]")
            a("s_lshl_b32 s3, s70, 9"); a(f"s_add_u32 s3, s3, {C1P}")
            a(f"buffer_store_dwordx4 {R(RG+36, 4)}, v29, s[40:43], s3 offen sc1")
        else:
            for _ in range(3): a("buffer_store_dword v5, v2, s[40:43], 0 offen")
    def acc(tt, t): return ACC + (tt*5 + t)*4
    def transp(cx):
        L = []
        for tt in range(2):
            L.append(lambda tt=tt: a.ds(f"ds_write_b128 v{vW[0]}, {R(raw(cx, 2*tt), 4)}"))
            L.append(lambda tt=tt: a.ds(f"ds_write_b128 v{vW[1]}, {R(raw(cx, 2*tt+1), 4)}"))
            L.append(lambda tt=tt: a.ds(f"ds_read_b128 {R(xf(tt, 2*cx), 4)}, v{vRd[0]}"))
            L.append(lambda tt=tt: a.ds(f"ds_read_b128 {R(xf(tt, 2*cx+1), 4)}, v{vRd[1]}", f"T{cx}"))
        return L
    def statm(k):
        L = []
        for tt in range(2):
            L.append(MF(GR + 4*tt, xf(tt, k), xf(tt, k), k == 0)); L.append(MF(RSM + 4*tt, ONES, xf(tt, k), k == 0))
        return L
    def breads1(s):
        j, p = divmod(s, 4); L = []
        for t in range(5):
            L.append(lambda t=t: a.ds(f"ds_read_b128 {R(BF + (s&1)*20 + t*4, 4)}, v{vTB[p]} offset:{(j % 3)*20480 + t*1024}", f"R{s}"))
        if j == 2: L.append(f"v_add_u32 v{vTB[p]}, 61440, v{vTB[p]}")
        return L
    def ldb(j):
        def one(i):
            if i == 0: a(f"s_add_u32 m0, s52, {j*20480}"); a("s_add_u32 s57, s54, m0")
            if i == 4: a(f"s_add_u32 m0, s52, {j*20480 + 4096}")
            a.vmem(f"buffer_load_dwordx4 v{8 if i < 4 else 12}, s[40:43], s57 offen offset:{1024*(i&3)} sc1 lds", f"B{j}")
        return [lambda i=i: one(i) for i in range(5)]
    def ldq():
        def one(i):
            if i == 11: a("s_cmp_eq_u32 s28, 3"); a("s_cbranch_scc1 L_noq")
            a(f"s_mul_i32 s98, s28, 13312"); a(f"s_add_u32 m0, s98, {BQ + i*1024}"); a("s_add_u32 s98, s54, m0")
            a.a(f"buffer_load_dwordx4 v8, s[40:43], s98 offen sc1 lds")
            if i < 11: a.vm.append("BQ")
            if i == 12: a("L_noq:")
        return [lambda i=i: one(i) for i in range(11)] + [lambda: (one(11), one(12))]
    def ldt1():
        a("v_lshlrev_b32 v27, 1, v0"); a("s_add_u32 s56, s30, T1_tab-L_pc"); a("s_addc_u32 s57, s31, 0")
        a.vmem(f"global_load_ushort v{vT1}, v27, s[56:57]", "T1")
    def kv_mf(s):
        mf = []
        for t in range(5):
            b = BF + (s&1)*20 + t*4
            for tt in range(2): mf.append(MF(acc(tt, t), xf(tt, s), b, s == 0))
            if s % 4 == 0: mf.append(MF(CSA, OH + 4*t, b, s == 0 and t == 0))
        return mf
    RS = 96; MS = 104; RT = 112; MT = 114; CSV = 116
    URG = 116
    def flagtouch():
        a(f"s_add_u32 s3, s58, {G_FL}"); a("s_bfm_b64 exec, 8, 0"); a.vmem("buffer_load_dword v4, v3, s[40:43], s3 offen"); a("s_mov_b64 exec, -1")
    lq = sum([ldx(cx) for cx in range(NX0, 10)], []) + [ldt1, flagtouch, unit_issue]
    XR = P("XR", 8)
    for cx in range(10):
        while f"X{cx}" not in a.vm or a.vm.count(f"X{cx}") < 4: lq.pop(0)()
        a.wait(vm=f"X{cx}")
        mf = (statm(2*(cx-1)) + statm(2*(cx-1)+1)) if cx else []
        if cx: a.wait(lg=f"T{cx-1}")
        side = transp(cx) + lq[:XR]; lq = lq[XR:]
        if mf: a.interleave(mf, side)
        else:
            for f in side: f()
    assert not lq
    a.stamp("xdone")
    a("s_mov_b32 s78, 0")
    a("L_h0p:")
    a("buffer_load_dword v16, v26, s[40:43], s55 offen sc1"); a("s_waitcnt vmcnt(0)")
    a("v_cmp_ne_u32 vcc, s76, v16")
    a("s_cbranch_vccz L_h0ok")
    a("s_add_u32 s78, s78, 1"); a(f"s_cmp_lt_u32 s78, {POLLMAX}"); a("s_cbranch_scc1 L_h0p")
    a("L_h0ok:")
    a.vm = []
    a.stamp("F0ok")
    for f in ldb(0): f()
    for f in ldb(1): f()
    a.wait(lg="all")
    for x in statm(18) + statm(19): a(x)
    a("s_cmp_eq_u32 s72, 2"); a("s_cbranch_scc1 L_rp_f5")
    rp_fin(7, URG); a("s_branch L_rp_done")
    a("L_rp_f5:"); rp_fin(5, URG)
    a("L_rp_done:")
    for tt in range(2):
        for e in range(4): a(f"v_accvgpr_read_b32 v{160+e}, {R(GR + 4*tt + e)}")
        a(f"v_accvgpr_read_b32 v164, {R(RSM + 4*tt)}")
        for x in ["v_cndmask_b32 v160, v160, v161, s[68:69]", "v_cndmask_b32 v162, v162, v163, s[68:69]", "v_mul_f32 v164, s63, v164",
                  "v_cndmask_b32 v160, v160, v162, s[86:87]", "v_mul_f32 v160, s63, v160", "v_fma_f32 v160, -v164, v164, v160",
                  "v_max_f32 v160, 0, v160", "v_add_f32 v160, s64, v160", "v_rsq_f32 v160, v160", "v_mul_f32 v164, v164, v160"]: a(x)
        a.ds(f"ds_write_b32 v{vSTW}, v160 offset:{64*tt}"); a.ds(f"ds_write_b32 v{vSTW}, v164 offset:{128 + 64*tt}")
    a("v_lshlrev_b32 v28, 4, v11"); a("v_add_u32 v28, s48, v28"); a("v_add_u32 v29, s48, v10")
    for tt in range(2):
        a.ds(f"ds_read_b128 {R(RS + 4*tt, 4)}, v28 offset:{64*tt}"); a.ds(f"ds_read_b128 {R(MS + 4*tt, 4)}, v28 offset:{128 + 64*tt}")
        a.ds(f"ds_read_b32 v{RT + tt}, v29 offset:{64*tt}"); a.ds(f"ds_read_b32 v{MT + tt}, v29 offset:{128 + 64*tt}")
    NBE = P("NBE", 3)
    for j in range(2, NBE):
        for f in ldb(j): f()
    a("s_lshl_b32 s73, s70, 9"); a(f"s_add_u32 s73, s73, {C1P}")
    a("s_cmp_eq_u32 s72, 2"); a("s_cselect_b32 s75, 0x40000000, s74"); a("s_cselect_b32 s73, 0x40000000, s73")
    a("v_lshlrev_b32 v85, 4, v11"); a("v_lshl_add_u32 v85, v10, 4, v85"); a("v_cndmask_b32 v85, v2, v85, s[66:67]")
    def ust(t):
        if t < 7: a.vmem(f"buffer_store_dwordx4 {R(URG + 4*t, 4)}, v{8 if t < 4 else 12}, s[40:43], s{74 if t < 5 else 75} offen offset:{1024*(t&3)} sc1", "US")
        else: a.vmem(f"buffer_store_dwordx4 {R(URG+36, 4)}, v85, s[40:43], s73 offen sc1", "US")
    a("s_and_b32 s59, s27, 7"); a("s_lshl_b32 s59, s59, 9"); a(f"s_add_u32 s59, s59, {FU}")
    a("s_lshr_b32 s3, s27, 3"); a("s_lshl_b32 s3, s3, 4"); a("s_add_u32 s3, s3, s26"); a("s_lshl_b32 s3, s3, 2"); a("s_add_u32 s3, s3, s28"); a("s_lshl_b32 s3, s3, 2"); a("s_add_u32 s70, s3, s59")
    a.wait(vm="B0")
    a("s_barrier")
    a.stamp("bP")
    a("s_mov_b32 s94, s60"); a("s_mov_b32 s95, s60"); a("s_mov_b32 s96, s61"); a("s_mov_b32 s97, s61")
    for f in breads1(0): a.run(f)
    def pretouch():
        if "sc1h" in OPT:
            a(f"s_add_u32 s3, s58, {G_FL}"); a("s_bfm_b64 exec, 4, 0"); a.vmem("buffer_load_dword v4, v3, s[40:43], s3 offen"); a("s_mov_b64 exec, -1")
            return
        a("s_mul_i32 s3, s27, 21056"); a("s_add_u32 s3, s3, s58"); a("s_mul_i32 s56, s28, 5376"); a("s_add_u32 s3, s3, s56")
        a("s_bfm_b64 exec, 42, 0"); a.vmem("buffer_load_dword v4, v3, s[40:43], s3 offen"); a("s_mov_b64 exec, -1")
    FB3 = 156
    a("s_and_b32 s3, s27, 7"); a("s_mul_i32 s3, s3, 20"); a("s_add_u32 s3, s3, s28"); a("s_mul_i32 s65, s3, 5120"); a(f"s_add_u32 s65, s65, {WOP}")
    def ldwo(n, t):
        a.vmem(f"buffer_load_dwordx4 {R(FB3 + (n*5+t)*4, 4)}, v{8 if t < 4 else 12}, s[40:43], s65 offen offset:{1024*(t&3)} sc1", "WO")
        if t == 4: a("s_add_u32 s65, s65, 20480")
    def ldfu():
        a("v_lshlrev_b32 v31, 3, v1")
        a.vmem("buffer_load_dwordx2 v[92:93], v31, s[40:43], s59 offen sc1", "FU")
    def chkfu():
        a.wait(vm="FU")
        a("s_mov_b32 s78, 0")
        a("L_fu:")
        a("v_cmp_ne_u32 vcc, s76, v92"); a("v_cmp_ne_u32 s[84:85], s76, v93")
        a("s_or_b64 vcc, vcc, s[84:85]"); a("s_cbranch_scc0 L_fu_ok")
        a("s_add_u32 s78, s78, 1"); a(f"s_cmp_ge_u32 s78, {POLLMAX}"); a("s_cbranch_scc1 L_fu_ok")
        a("buffer_load_dwordx2 v[92:93], v31, s[40:43], s59 offen sc1"); a("s_waitcnt vmcnt(0)")
        a("s_branch L_fu")
        a("L_fu_ok:")
    q_ = ldq(); mix = []
    if "usfirst" in OPT:
        mix = [lambda i=i: ust(i) for i in range(8)] + q_
    else:
        for i in range(12):
            mix.append(q_[i])
            if i < 8: mix.append(lambda i=i: ust(i))
    ldlist = sum([ldb(j) for j in range(NBE, 5)], [])
    MS0 = P("MS0", 6); MR = P("MR", 1)
    a.bgq = mix
    SFU = P("SFU", 18)
    LEND = P("LEND", 16)
    CT = 116
    for s in range(20):
        j, p = divmod(s, 4)
        if p == 3 and j < 4:
            a.wait(vm=f"B{j+1}"); a("s_barrier")
        if s == SFU:
            a.wait(vm="US")
            a("s_mov_b64 exec, 1"); a.vmem("buffer_store_dword v6, v5, s[40:43], s70 offen sc1"); a("s_mov_b64 exec, -1")
        if s == 18:
            a.wait(lg="CSW"); a("s_barrier")
        a.wait(lg=f"R{s}")
        mf = kv_mf(s)
        front = breads1(s+1) if s < 19 else []
        side = []
        if s == 17:
            side += ["s_lshl_b32 s3, s28, 9", f"s_add_u32 s3, s3, {CSX}", "v_add_u32 v27, s3, v8"]
            side.append(lambda: (a("s_bfm_b64 exec, 32, 0"), a.ds(f"ds_write_b128 v27, {R(CSA, 4)}", "CSW"), a("s_mov_b64 exec, -1")))
        if s == 18:
            assert a.vm.count("US") == 8
            side += ["v_lshlrev_b32 v27, 2, v10", f"v_add_u32 v27, {CSX}, v27"]
            for w in range(4):
                side.append(lambda w=w: a.ds(f"ds_read_b128 {R(CT + 4*w, 4)}, v27 offset:{512*w}"))
                side.append(lambda w=w: a.ds(f"ds_read_b32 v{CT + 16 + w}, v27 offset:{512*w + 256}", "CSR"))
        if s == 19:
            side.append(lambda: a.wait(lg="CSR"))
            for e in range(4):
                side += [f"v_add_f32 v{CT+e}, v{CT+e}, v{CT+4+e}", f"v_add_f32 v{CT+8+e}, v{CT+8+e}, v{CT+12+e}", f"v_add_f32 v{CT+20+e}, v{CT+e}, v{CT+8+e}"]
            side += [f"v_add_f32 v{CT+16}, v{CT+16}, v{CT+17}", f"v_add_f32 v{CT+18}, v{CT+18}, v{CT+19}", f"v_add_f32 v{CT+24}, v{CT+16}, v{CT+18}"]
        side += ldlist[:3]; ldlist = ldlist[3:]
        if s >= MS0: side = [lambda: a.bg(1)]*MR + side
        a.interleave(mf, side, front)
    CSV = CT + 20
    a.stamp("kvend")
    if "plainh" in OPT:
        a("s_mul_i32 s3, s27, 21056"); a("s_add_u32 s3, s3, s58"); a("s_mul_i32 s56, s28, 5376"); a("s_add_u32 s3, s3, s56")
        a("s_bfm_b64 exec, 42, 0"); a.vmem("buffer_load_dword v4, v3, s[40:43], s3 offen"); a("s_mov_b64 exec, -1")
    OP = 116; TP = 72
    FUC = P("FUC", 14)
    if FUC < 4: ldfu()
    KBG = P("KBG", 1)
    for t in range(5):
        for tt in range(2):
            b_ = acc(tt, t)
            cp = CSV + t; cpe = cp & ~1; sel = cp & 1
            for h in range(2):
                x = b_ + 2*h
                a(f"v_pk_mul_f32 v[{TP+2*h}:{TP+2*h+1}], v[{MS+4*tt+2*h}:{MS+4*tt+2*h+1}], v[{cpe}:{cpe+1}] op_sel:[0,{sel}] op_sel_hi:[1,{sel}]")
            for h in range(2):
                x = b_ + 2*h
                a(f"v_pk_fma_f32 v[{x}:{x+1}], v[{x}:{x+1}], v[{RS+4*tt+2*h}:{RS+4*tt+2*h+1}], v[{TP+2*h}:{TP+2*h+1}] neg_lo:[0,0,1] neg_hi:[0,0,1]")
            if t <= 2: phi4(a, b_, TP, sel_mask=("s[66:67]" if t == 2 else None))
            for h in range(2):
                a(f"v_cvt_pk_bf16_f32 v{OP + 4*t + 2*tt + h}, v{acc(tt, t) + 2*h}, v{acc(tt, t) + 2*h + 1}")
            if t*2 + tt == SFU - 20:
                a.wait(vm="US")
                a("s_mov_b64 exec, 1"); a.vmem("buffer_store_dword v6, v5, s[40:43], s70 offen sc1"); a("s_mov_b64 exec, -1")
            if t*2 + tt == FUC - 4: ldfu()
            if t*2 + tt == FUC: chkfu(); a.bgq += [lambda n=n, t=t: ldwo(n, t) for n in range(5) for t in range(5)]
            a.bg(KBG)
    while "BQdone" not in a.vm and a.vm.count("BQ") < 11 or (a.bgq and a.bgq[0] is q_[11]): a.bg(1)
    KVD = 32
    for p, (ta, tb) in enumerate(PAIRS):
        a(MF(KVD + 4*p, OP + 4*ta, ONES if tb < 0 else OP + 4*tb, True))
    a("s_mul_i32 s3, s28, 10240"); a("v_add_u32 v27, s3, v8")
    for p in range(10): a(f"ds_write_b128 v27, {R(KVD + 4*p, 4)} offset:{1024*p}")
    a("s_lshl_b32 s3, s27, 4"); a("s_add_u32 s3, s3, s26"); a("s_lshl_b32 s3, s3, 12"); a(f"s_add_u32 s3, s3, {PART}")
    a("v_cmp_gt_u32 vcc, 216, v0"); a("v_cndmask_b32 v9, v2, v9, vcc")
    a.wait(lg="all")
    a("s_barrier")
    for w in range(4): a(f"ds_read_b128 {R(56 + 4*w, 4)}, v{vT1} offset:{10240*w}")
    a("s_waitcnt lgkmcnt(0)")
    for e in (0, 2):
        a(f"v_pk_add_f32 v[{56+e}:{57+e}], v[{56+e}:{57+e}], v[{60+e}:{61+e}]"); a(f"v_pk_add_f32 v[{64+e}:{65+e}], v[{64+e}:{65+e}], v[{68+e}:{69+e}]")
    for e in (0, 2): a(f"v_pk_add_f32 v[{56+e}:{57+e}], v[{56+e}:{57+e}], v[{64+e}:{65+e}]")
    if "p16" in OPT:
        a("v_cvt_pk_bf16_f32 v56, v56, v57"); a("v_cvt_pk_bf16_f32 v57, v58, v59"); a("v_lshrrev_b32 v9, 1, v9")
        a.vmem(f"buffer_store_dwordx2 v[56:57], v9, s[40:43], s3 offen sc1", "PST")
    else:
        a.vmem(f"buffer_store_dwordx4 v[56:59], v9, s[40:43], s3 offen sc1", "PST")
    ldfu()
    a("s_lshr_b32 s48, s27, 3"); a("s_and_b32 s49, s27, 7")
    a("v_lshrrev_b32 v13, 1, v11"); a("v_lshlrev_b32 v13, 8, v13"); a("v_lshl_add_u32 v13, v10, 2, v13")
    a("v_and_b32 v28, 1, v11"); a("v_lshl_add_u32 v13, v28, 3, v13")
    a("v_mul_u32_u24 v14, 320, v10"); a("v_lshl_add_u32 v15, v11, 3, v14"); a("v_lshl_add_u32 v14, v11, 4, v14")
    a("s_lshl_b32 s50, s48, 2"); a("s_add_u32 s50, s50, s28")
    a("s_lshl_b32 s3, s26, 3"); a("s_add_u32 s3, s3, s50"); a("s_mul_i32 s51, s3, 20480"); a("s_mul_i32 s3, s49, 160"); a("s_add_u32 s51, s51, s3")
    a("s_mul_i32 s53, s27, 27"); a("s_lshr_b32 s53, s53, 2")
    a("s_mul_i32 s55, s27, 143360"); a(f"s_add_u32 s55, s55, {W1P}")
    srd(a, 36, 14, 3456)
    a("v_lshlrev_b32 v23, 4, v11"); a("v_lshl_add_u32 v26, v10, 4, v23")
    a("s_lshl_b32 s62, s27, 2"); a("s_add_u32 s62, s62, s28"); a("s_lshl_b32 s62, s62, 7")
    a("s_lshl_b32 s56, s26, 7"); a("s_add_u32 s56, s56, 8192")
    a("v_mov_b32 v27, s62"); a("v_mov_b32 v28, s56"); a("v_cndmask_b32 v17, v27, v28, s[88:89]"); a("v_add_u32 v17, v17, v10")
    a("s_lshl_b32 s3, s26, 2"); a("s_add_u32 s3, s3, s62"); a(f"s_add_u32 s3, s3, {F1}")
    a.wait(vm="PST")
    a("s_mov_b64 exec, 1"); a.vmem("buffer_store_dword v6, v5, s[40:43], s3 offen sc1"); a("s_mov_b64 exec, -1")
    a("s_barrier")
    a.stamp("b7")
    chkfu(); a.bgq += [lambda n=n, t=t: ldwo(n, t) for n in range(5) for t in range(5)]
    FB3 = 156; RES = 116; C1R = 126; T2R = 146
    B1A = A0 + 204
    W1T = A0 + 100
    def w1dma(i):
        a(f"s_mul_i32 s98, s28, {24*1024}"); a(f"s_add_u32 m0, s98, {i*1024}"); a("s_add_u32 s98, s55, m0")
        a.vmem(f"buffer_load_dwordx4 v8, s[40:43], s98 offen sc1 lds", "W1")
    def w1tail(i):
        a(f"s_mul_i32 s98, s28, {11*1024}"); a(f"s_add_u32 s98, s98, {(96+i)*1024}"); a("s_add_u32 s98, s55, s98")
        a.vmem(f"buffer_load_dwordx4 {R(W1T + 4*i, 4)}, v8, s[40:43], s98 offen sc1", "W1")
    def ldsmall():
        a("v_lshlrev_b32 v31, 5, v1"); a("s_add_u32 s98, s30, T2_tab-L_pc"); a("s_addc_u32 s99, s31, 0")
        a.vmem(f"global_load_dwordx4 {R(T2R, 4)}, v31, s[98:99]"); a.vmem(f"global_load_dwordx2 {R(T2R+4, 2)}, v31, s[98:99] offset:16")
    def ldres(q):
        if q == 0: a.vmem(f"buffer_load_dwordx4 {R(RES, 4)}, v14, s[32:35], s51 offen")
        if q == 1: a.vmem(f"buffer_load_dwordx4 {R(RES+4, 4)}, v14, s[32:35], s51 offen offset:64")
        if q == 2: a.vmem(f"buffer_load_dwordx2 {R(RES+8, 2)}, v15, s[32:35], s51 offen offset:128", "RES")
    def ldb1():
        a("v_lshlrev_b32 v31, 3, v11"); a("s_lshl_b32 s98, s53, 5")
        for p in range(3): a.vmem(f"buffer_load_dwordx4 {R(B1A + 4*p, 4)}, v23, s[36:39], s98 offen offset:{64*p}")
        a.vmem(f"buffer_load_dwordx2 {R(B1A + 12, 2)}, v31, s[36:39], s98 offen offset:192")
    def ldc1():
        a("s_mul_i32 s98, s27, 20"); a("s_mul_i32 s99, s28, 5"); a("s_add_u32 s98, s98, s99"); a("s_lshl_b32 s98, s98, 9"); a(f"s_add_u32 s98, s98, {C1P}")
        a("s_mov_b64 exec, s[66:67]")
        for n in range(5): a.vmem(f"buffer_load_dwordx4 {R(C1R + 4*n, 4)}, v26, s[40:43], s98 offen offset:{512*n} sc1", "C1")
        a("s_mov_b64 exec, -1")
    def hidtouch():
        a("s_mul_i32 s98, s27, 27648"); a("s_add_u32 s98, s98, s58"); a(f"s_add_u32 s98, s98, {G_HID}"); a("s_mul_i32 s99, s28, 6912"); a("s_add_u32 s98, s98, s99")
        a("s_bfm_b64 exec, 54, 0"); a.vmem("buffer_load_dword v4, v3, s[40:43], s98 offen"); a("s_mov_b64 exec, -1")
    ldsmall()
    a.bgq += [lambda q=q: ldres(q) for q in range(3)] + [ldb1, ldc1] + [lambda i=i: w1dma(i) for i in range(24)]
    QA = 32
    def qreads(s):
        j, p = divmod(s, 4)
        return [lambda t=t: a.ds(f"ds_read_b128 {R(BF + (s%3)*12 + t*4, 4)}, v{vTQ[p] if t < 2 else vTQ2[p]} offset:{j*10240 + (t&1)*1024}", f"Q{s}") for t in range(3)]
    for f in qreads(0) + qreads(1): f()
    a(f"s_mov_b32 s56, {F1}")
    QSTOP = P("QSTOP", 16)
    for s in range(20):
        j, p = divmod(s, 4)
        if s == 18: a.wait(lg="CQW"); a("s_barrier")
        a.wait(lg=f"Q{s}")
        mf = []
        for t in range(3):
            b = BF + (s%3)*12 + t*4
            for tt in range(2): mf.append(MF(QA + (tt*3+t)*4, b, xf(tt, s), s == 0))
            if p == 0: mf.append(MF(CSQ, b, OH + 4*t, s == 0 and t == 0))
        front = qreads(s+2) if s < 18 else []
        side = []
        if s < QSTOP: side += [lambda: a.bg(1)]*P("QBG", 1)
        if s == 17:
            side.append(lambda: a.vmem("buffer_load_dword v16, v17, s[40:43], s56 offen sc1", "POLL1"))
            side += ["s_lshl_b32 s3, s28, 9", f"s_add_u32 s3, s3, {CSX}", "v_add_u32 v27, s3, v26"]
            side.append(lambda: (a("s_mov_b64 exec, s[66:67]"), a.ds(f"ds_write_b128 v27, {R(CSQ, 4)}", "CQW"), a("s_mov_b64 exec, -1")))
        if s == 18:
            side += [f"v_add_u32 v30, {CSX}, v23"]
            for w, base in ((0, 56), (1, 68), (2, 96)):
                for t in range(3): side.append(lambda w=w, t=t, base=base: a.ds(f"ds_read_b128 {R(base + 4*t, 4)}, v30 offset:{512*w + 64*t}", "CQR"))
        if s == 19:
            side.append(lambda: a.wait(lg="CQR"))
            for x in range(12): side.append(f"v_add_f32 v{56+x}, v{56+x}, v{68+x}")
            for t in range(3): side.append(lambda t=t: a.ds(f"ds_read_b128 {R(68 + 4*t, 4)}, v30 offset:{1536 + 64*t}", "CQR"))
        a.interleave(mf, side, front)
    a.stamp("qend")
    a.wait(vm="POLL1")
    a("s_mov_b32 s78, 0")
    a("L_h1p:")
    a("v_and_b32 v28, 0xfffffff8, v16"); a("v_cmp_ne_u32 vcc, s76, v28")
    a("s_cbranch_vccz L_h1ok")
    a("s_add_u32 s78, s78, 1"); a(f"s_cmp_ge_u32 s78, {POLLMAX}"); a("s_cbranch_scc1 L_h1ok")
    a("buffer_load_dword v16, v17, s[40:43], s56 offen sc1"); a("s_waitcnt vmcnt(0)")
    a("s_branch L_h1p")
    a("L_h1ok:")
    a.stamp("h1ok")
    a.vm = []
    a("v_cmp_ne_u32 vcc, s77, v16"); a("s_and_b64 vcc, vcc, s[88:89]"); a("s_cselect_b32 s79, 0, 1")
    if os.environ.get("FORCESLOW"): a("s_mov_b32 s79, 0")
    P0 = A0
    a("s_lshl_b32 s3, s27, 16"); a(f"s_add_u32 s3, s3, {PART}")
    for r_ in range(16):
        if "p16" in OPT: a.vmem(f"buffer_load_dwordx2 {R(P0 + 4*r_, 2)}, v9, s[40:43], s3 offen sc1", f"P{r_}")
        else: a.vmem(f"buffer_load_dwordx4 {R(P0 + 4*r_, 4)}, v9, s[40:43], s3 offen sc1", f"P{r_}")
        a("s_add_u32 s3, s3, 4096")
    a.bgq += [lambda i=i: w1tail(i) for i in range(11)]
    for x in range(0, 12, 2): a(f"v_pk_add_f32 v[{56+x}:{57+x}], v[{56+x}:{57+x}], v[{96+x}:{97+x}]")
    a.wait(lg="all")
    for x in range(0, 12, 2): a(f"v_pk_add_f32 v[{56+x}:{57+x}], v[{56+x}:{57+x}], v[{68+x}:{69+x}]")
    PQR = 96
    EBG = P("EBG", 2)
    for tt in range(2):
        for t in range(3):
            b_ = QA + (tt*3+t)*4
            for h in range(2):
                a(f"v_pk_mul_f32 v[{TP+2*h}:{TP+2*h+1}], v[{56+4*t+2*h}:{57+4*t+2*h}], v[{MT}:{MT+1}] op_sel:[0,{tt}] op_sel_hi:[1,{tt}]")
            for h in range(2):
                x = b_ + 2*h
                a(f"v_pk_fma_f32 v[{x}:{x+1}], v[{x}:{x+1}], v[{RT}:{RT+1}], v[{TP+2*h}:{TP+2*h+1}] op_sel:[0,{tt},0] op_sel_hi:[1,{tt},1] neg_lo:[0,0,1] neg_hi:[0,0,1]")
            phi4(a, b_, TP)
            for h in range(2):
                d = f"v{PQR + tt*6 + t*2 + h}"
                a(f"v_cvt_pk_bf16_f32 {d}, v{QA + (tt*3+t)*4 + 2*h}, v{QA + (tt*3+t)*4 + 2*h + 1}")
                if t == 2: a(f"v_cndmask_b32 {d}, 0, {d}, s[90:91]")
            a.bg(EBG)
    OSC = SCR
    TA = 56
    for s_ in range(12):
        src = T2R + s_//2
        if s_ & 1: a(f"v_lshrrev_b32 v{TA+s_}, 16, v{src}")
        else: a(f"v_and_b32 v{TA+s_}, 0xffff, v{src}")
        a(f"v_add_u32 v{TA+s_}, {OSC}, v{TA+s_}")
    for r_ in range(16):
        if r_ % 4 == 0: a.wait(vm=f"P{r_+3}")
        if "p16" in OPT:
            b_ = 32 if r_ == 0 else 36
            for e in range(2): a(f"v_accvgpr_read_b32 v{40+e}, {R(P0+4*r_+e)}")
            for e in range(2): a(f"v_lshlrev_b32 v{b_+2*e}, 16, v{40+e}"); a(f"v_and_b32 v{b_+2*e+1}, 0xffff0000, v{40+e}")
        else:
            for e in range(4): a(f"v_accvgpr_read_b32 v{(32 if r_ == 0 else 36)+e}, {R(P0+4*r_+e)}")
        if r_:
            for e in (0, 2): a(f"v_pk_add_f32 v[{32+e}:{33+e}], v[{32+e}:{33+e}], v[{36+e}:{37+e}]")
        if r_ % 4 == 3: a.bg(EBG)
    a("v_cvt_pk_bf16_f32 v18, v32, v33"); a("v_cvt_pk_bf16_f32 v19, v34, v35")
    a("v_cmp_gt_u32 vcc, 210, v0")
    a("v_cndmask_b32 v18, 0, v18, vcc"); a("v_cndmask_b32 v19, 0, v19, vcc")
    a("v_lshlrev_b32 v27, 3, v0"); a(f"v_add_u32 v27, {OSC}, v27")
    a("ds_write_b64 v27, v[18:19]")
    a("s_waitcnt lgkmcnt(0)")
    a("s_barrier")
    a.stamp("b9")
    KF = A0 + 64
    for E in range(4):
        for ta in range(3): a(f"ds_read_b64 {R(KF + 8*E + 2*ta, 2)}, v{TA + 3*E + ta}")
    a("s_mul_i32 s3, s28, 40960"); a("s_mul_i32 s56, s27, 1280"); a("s_add_u32 s3, s3, s56"); a("s_add_u32 s3, s3, s58")
    a("v_lshlrev_b32 v27, 2, v10"); a("v_lshl_add_u32 v27, v11, 3, v27")
    a("v_cndmask_b32 v27, v2, v27, s[90:91]")
    a("s_waitcnt lgkmcnt(0)")
    D = 32
    for tt in range(2):
        for E in (3, 0, 1, 2):
            d = R(D + (tt*4+E)*4, 4)
            a(f"v_mfma_f32_16x16x32_bf16 {d}, {R(KF + 8*E, 4)}, {R(PQR + 6*tt, 4)}, 0")
    for tt in range(2):
        for E in (3, 0, 1, 2):
            d = R(D + (tt*4+E)*4, 4)
            a(f"v_mfma_f32_16x16x16_bf16 {d}, {R(KF + 8*E + 4, 2)}, {R(PQR + 6*tt + 4, 2)}, {d}")
    for tt in range(2):
        z = D + (tt*4+3)*4
        a(f"v_add_f32 v20, s61, v{z}"); a(f"v_add_f32 v21, s61, v{z+1}")
        a("v_rcp_f32 v20, v20"); a("v_rcp_f32 v21, v21")
        a("v_cndmask_b32 v22, v21, v20, s[92:93]"); a("v_cndmask_b32 v28, v21, v20, s[90:91]")
        ob = 64 + 8*tt
        for E, rc in ((0, 22), (1, 28), (2, 21)):
            d = D + (tt*4+E)*4
            for e in range(4): a(f"v_mul_f32 v{d+e}, v{d+e}, v{rc}")
            a(f"v_cvt_pk_bf16_f32 v{ob + 2*E}, v{d}, v{d+1}"); a(f"v_cvt_pk_bf16_f32 v{ob + 2*E + 1}, v{d+2}, v{d+3}")
        a.vmem(f"buffer_store_dwordx4 {R(ob, 4)}, v8, s[40:43], s3 offen{HS}", "ST")
        a.vmem(f"buffer_store_dwordx2 {R(ob + 4, 2)}, v27, s[40:43], s3 offen offset:1024{HS}", "ST")
        a("s_add_u32 s3, s3, 20480")

    def hop(n, before, after_pub, post=0, touch=None, post2=0):
        before()
        a(f"s_add_u32 s59, s58, {G_FL + 128*n}")
        a("s_lshl_b32 s3, s27, 2"); a("s_add_u32 s3, s3, s59")
        a.bg(post)
        a.wait(vm="ST")
        if touch and "notouch" not in OPT: touch()
        a("s_barrier")
        a.stamp(f"hop{n}a")
        a("s_cmp_lg_u32 s28, 0"); a(f"s_cbranch_scc1 L_g{n}np")
        a("s_mov_b64 exec, 1")
        a("s_cmp_eq_u32 s79, 0"); a(f"s_cbranch_scc1 L_g{n}slow")
        a("buffer_store_dword v6, v5, s[40:43], s3 offen")
        a(f"s_branch L_g{n}pd")
        a(f"L_g{n}slow:")
        if FENCE: a("buffer_wbl2 sc1"); a("s_waitcnt vmcnt(0)")
        a("buffer_store_dword v6, v5, s[40:43], s3 offen sc1")
        a(f"L_g{n}pd:")
        a("s_mov_b64 exec, -1")
        a(f"L_g{n}np:")
        after_pub()
        a.bg(post2)
        a("s_cmp_lg_u32 s28, 0"); a(f"s_cbranch_scc1 L_g{n}j")
        a("s_mov_b32 s78, 0")
        a(f"L_g{n}p:")
        a("buffer_load_dword v27, v10, s[40:43], s59 offen sc1")
        a("s_add_u32 s78, s78, 1")
        a("s_waitcnt vmcnt(0)")
        a("v_cmp_ne_u32 vcc, s76, v27")
        a(f"s_cmp_ge_u32 s78, {POLLMAX}"); a(f"s_cbranch_scc1 L_g{n}x")
        a(f"s_cbranch_vccnz L_g{n}p")
        a(f"L_g{n}x:")
        if FENCE:
            a("s_cmp_lg_u32 s79, 0"); a(f"s_cbranch_scc1 L_g{n}j")
            a("buffer_inv sc1"); a("s_waitcnt vmcnt(0)")
        a(f"L_g{n}j:")
        a("s_barrier")
        a.stamp(f"hop{n}b")
    def a_off(NK, goff):
        for m in range(4):
            a(f"s_add_u32 s3, s28, {m}"); a("s_and_b32 s3, s3, 3"); a("s_lshl_b32 s57, s48, 2"); a("s_add_u32 s3, s3, s57")
            a(f"s_mul_i32 s3, s3, {NK}"); a("s_add_u32 s3, s3, s28"); a("s_lshl_b32 s3, s3, 10"); a("s_add_u32 s3, s3, s58"); a(f"s_add_u32 s{80+m}, s3, {goff}")
    def ctouch(lab, nl):
        def f():
            a("s_lshl_b32 s98, s27, 2"); a("s_add_u32 s98, s98, s28"); a(f"s_mul_i32 s98, s98, {128*nl}"); a(f"s_add_u32 s98, s98, {lab}-L_pc")
            a("v_add_u32 v31, s98, v3"); a(f"s_bfm_b64 exec, {nl}, 0")
            a.vmem("global_load_dword v4, v31, s[30:31]"); a("s_mov_b64 exec, -1")
        return f
    if "noct" not in OPT: a.bgq.insert(0, ctouch("L_cS4", 2))
    def flush_wo():
        while any(True for _ in [0]) and a.bgq and len(a.bgq) > 24 + 11: a.bg(1)
    def bef0():
        a_off(20, G_O)
        a("s_mul_i32 s99, s28, 40960"); a("s_mul_i32 s56, s27, 1280"); a("s_add_u32 s99, s99, s56"); a("s_add_u32 s99, s99, s58")
        a("v_mul_u32_u24 v28, 20480, v11"); a("v_lshl_add_u32 v28, v10, 5, v28")
    def tch0():
        a("s_mov_b64 exec, 0x03ff03ff"); a.vmem("buffer_load_dword v4, v28, s[40:43], s99 offen sc1"); a("s_mov_b64 exec, -1")
    hop(0, bef0, lambda: None, post=0, touch=tch0, post2=P("POST0", 10))
    flush_wo()
    ACC = 32 ; FA3 = A0
    for n in range(5):
        for m in range(4):
            a.vmem(f"buffer_load_dwordx4 {R(FA3 + (n*4+m)*4, 4)}, v8, s[40:43], s{80+m} offen sc1", f"A{n}")
            a(f"s_add_u32 s{80+m}, s{80+m}, 4096")
    if "sc1hid" not in OPT: a.bgq.insert(0, hidtouch)
    RED = 102400
    def red_addr():
        for m in range(1, 4):
            a(f"s_add_u32 s3, s28, {m}"); a("s_and_b32 s3, s3, 3"); a("s_mul_i32 s3, s3, 15360"); a(f"s_add_u32 s3, s3, {RED}")
            a(f"v_add_u32 v{16+m}, s3, v8")
        a("s_mul_i32 s3, s28, 15360"); a(f"s_add_u32 s3, s3, {RED}"); a("v_add_u32 v16, s3, v8")
    def init_acc(srcs):
        for t in range(5):
            for e in range(4):
                for q, src0 in enumerate(srcs):
                    src = src0 + 2*t + (e >> 1); d = ACC+4*t+e if q == 0 else 27
                    if e & 1: a(f"v_and_b32 v{d}, 0xffff0000, v{src}")
                    else: a(f"v_lshlrev_b32 v{d}, 16, v{src}")
                    if q: a(f"v_add_f32 v{ACC+4*t+e}, v{ACC+4*t+e}, v27")
    def last_step(mfn):
        order = [(m, t) for m in (1, 2, 3, 0) for t in range(5)]
        for i, (m, t) in enumerate(order):
            a(mfn(m, t))
            if i >= 5:
                m2, t2 = order[i-5]
                a(f"ds_write_b128 v{16+m2}, {R(ACC + (m2*5+t2)*4, 4)} offset:{(m2-1)*5120 + t2*1024}")
    red_addr()
    if "RES" in a.vm: a.wait(vm="RES")
    init_acc([RES])
    S3BG = P("S3BG", 3)
    for n in range(5):
        a.wait(vm=f"A{n}")
        if n == 4:
            last_step(lambda m, t: MF(ACC + (m*5+t)*4, FB3 + (n*5+t)*4, FA3 + (n*4+m)*4, False)); a.bg(S3BG)
        else:
            mf = [MF(ACC + (m*5+t)*4, FB3 + (n*5+t)*4, FA3 + (n*4+m)*4, n == 0 and m > 0) for m in range(4) for t in range(5)]
            a.interleave(mf, [lambda: a.bg(1)]*S3BG)
    a.stamp("s3end")
    a("L_cS4:")
    if "plainhid" in OPT and P("HTP", 0) == 0: hidtouch()
    HF = A0; BF = A0 + 160
    NA = P("NA", 4); BS = 4*max(NA, 7 - NA)
    if NA == 4:
        slots = [156 + 4*i for i in range(16)] + [A0 + 192 + 4*i for i in range(3)] + [A0 + 220 + 4*i for i in range(9)] + [HF + 4*i for i in range(40)] + [BF + 4*i for i in range(2)]
        NEARLY = 28
        arA = [A0 + 168 + 4*i for i in range(6)] + [A0 + 204 + 4*i for i in range(4)]
    elif NA == 7:
        for x in range(14): a(f"v_accvgpr_mov_b32 {R(A0 + 240 + x)}, {R(B1A + x)}")
        B1A = A0 + 240
        slots = [156 + 4*i for i in range(16)] + [A0 + 216 + 4*i for i in range(6)] + [HF + 4*i for i in range(40)] + [BF + 4*i for i in range(8)]
        NEARLY = 22
        arA = [A0 + 192 + 4*i for i in range(6)] + [A0 + 240 + 4*i for i in range(4)]
    else:
        for x in range(14): a(f"v_accvgpr_mov_b32 {R(A0 + 240 + x)}, {R(B1A + x)}")
        B1A = A0 + 240
        slots = [156 + 4*i for i in range(16)] + [A0 + 208 + 4*i for i in range(8)] + [HF + 4*i for i in range(40)] + [BF + 4*i for i in range(6)]
        NEARLY = 24
        arA = [A0 + 184 + 4*i for i in range(6)] + [A0 + 240 + 4*i for i in range(4)]
    def fb(n, t): return slots[n*5 + t]
    a("s_mul_i32 s3, s49, 54"); a("s_add_u32 s3, s3, s28"); a("s_mul_i32 s54, s3, 5120"); a(f"s_add_u32 s54, s54, {W2P}")
    def ldw2(n, t):
        if n == 13 and t == 0:
            a("s_cmp_ge_u32 s28, 2"); a("s_cselect_b32 s98, 0x40000000, 0"); a("s_add_u32 s54, s54, s98")
        a.vmem(f"buffer_load_dwordx4 {R(fb(n, t), 4)}, v{8 if t < 4 else 12}, s[40:43], s54 offen offset:{1024*(t&3)} sc1", f"W2_{n}")
        if t == 4: a("s_add_u32 s54, s54, 20480")
    w2q = [(n, t) for n in range(14) for t in range(5)]
    nw1left = len(a.bgq)
    def w2bg():
        ldw2(*w2q.pop(0))
    a.bgq += [w2bg]*NEARLY
    def reduce_epi(which, BIA=None, nbg=0):
        a.bg(2*nbg)
        a("s_waitcnt lgkmcnt(0)")
        a("s_barrier")
        for t in range(5):
            for m in range(1, 4): a(f"ds_read_b128 {R(ACC + (m*5+t)*4, 4)}, v16 offset:{(m-1)*5120 + t*1024}")
        for t in range(5):
            a(f"s_waitcnt lgkmcnt({12 - 3*t})")
            for e in (0, 2):
                x0 = ACC + 4*t + e
                a(f"v_pk_add_f32 v[{x0+20}:{x0+21}], v[{x0+20}:{x0+21}], v[{x0+40}:{x0+41}]"); a(f"v_pk_add_f32 v[{x0}:{x0+1}], v[{x0}:{x0+1}], v[{x0+60}:{x0+61}]")
            for e in (0, 2):
                x0 = ACC + 4*t + e
                a(f"v_pk_add_f32 v[{x0}:{x0+1}], v[{x0}:{x0+1}], v[{x0+20}:{x0+21}]")
            for h in range(2): a(f"v_cvt_pk_bf16_f32 v{RES+2*t+h}, v{ACC+4*t+2*h}, v{ACC+4*t+2*h+1}")
            if which == 3:
                if t == 1: a.vmem(f"buffer_store_dwordx4 {R(RES, 4)}, v8, s[40:43], s57 offen{HS}")
                if t == 3: a.vmem(f"buffer_store_dwordx4 {R(RES+4, 4)}, v8, s[40:43], s57 offen offset:1024{HS}")
                if t == 4: a.vmem(f"buffer_store_dwordx2 {R(RES+8, 2)}, v13, s[40:43], s57 offen offset:2048{HS}")
    a("s_mul_i32 s57, s50, 20480"); a("s_mul_i32 s3, s49, 2560"); a("s_add_u32 s57, s57, s3"); a("s_add_u32 s57, s57, s58"); a(f"s_add_u32 s57, s57, {G_H}")
    reduce_epi(3, nbg=P("R3BG", 3))
    a(f"v_pk_add_f32 v[28:29], v[{ACC}:{ACC+1}], v[{ACC+2}:{ACC+3}]"); a(f"v_pk_mul_f32 v[30:31], v[{ACC}:{ACC+1}], v[{ACC}:{ACC+1}]"); a(f"v_pk_fma_f32 v[30:31], v[{ACC+2}:{ACC+3}], v[{ACC+2}:{ACC+3}], v[30:31]")
    for x in range(4, 20, 2):
        a(f"v_pk_add_f32 v[28:29], v[28:29], v[{ACC+x}:{ACC+x+1}]"); a(f"v_pk_fma_f32 v[30:31], v[{ACC+x}:{ACC+x+1}], v[{ACC+x}:{ACC+x+1}], v[30:31]")
    a("v_add_f32 v20, v28, v29"); a("v_add_f32 v21, v30, v31")
    def red_g(regs, tmp):
        for r_ in regs:
            a(f"v_mov_b32 {tmp}, {r_}"); a(f"v_permlane32_swap_b32 {r_}, {tmp}"); a(f"v_add_f32 {r_}, {r_}, {tmp}")
            a(f"v_mov_b32 {tmp}, {r_}"); a(f"v_permlane16_swap_b32 {r_}, {tmp}"); a(f"v_add_f32 {r_}, {r_}, {tmp}")
    red_g(["v20", "v21"], "v22")
    a("v_lshlrev_b32 v22, 1, v10")
    a("s_lshl_b32 s57, s50, 10"); a("s_lshl_b32 s3, s49, 7"); a("s_add_u32 s57, s57, s3"); a("s_add_u32 s57, s57, s58"); a(f"s_add_u32 s57, s57, {G_ST}")
    a.vmem(f"buffer_store_dwordx2 v[20:21], v22, s[40:43], s57 offen{HS}", "ST")
    CS = 128; CSL = 144384
    def bef3():
        a("s_mul_i32 s3, s28, 40960"); a("s_add_u32 s3, s3, s58"); a(f"s_add_u32 s80, s3, {G_H}"); a("s_add_u32 s81, s80, 20480")
        a("s_lshl_b32 s82, s28, 11"); a("s_add_u32 s82, s82, s58"); a(f"s_add_u32 s82, s82, {G_ST}")
        a("v_lshlrev_b32 v19, 8, v11"); a("v_lshl_add_u32 v19, v10, 1, v19")
        a("v_add_u32 v16, 57344, v8"); a("v_add_u32 v17, 114688, v8")
        a(f"s_mul_i32 s3, s28, {11*1024}"); a(f"s_add_u32 s3, s3, {96*1024}"); a("v_add_u32 v18, s3, v8")
        for e in range(4):
            a(f"v_add_f32 v{C1R+e}, v{C1R+e}, v{C1R+4+e}"); a(f"v_add_f32 v{C1R+8+e}, v{C1R+8+e}, v{C1R+12+e}")
            a(f"v_add_f32 v{C1R+e}, v{C1R+e}, v{C1R+16+e}"); a(f"v_add_f32 v{C1R+e}, v{C1R+e}, v{C1R+8+e}")
        a("s_lshl_b32 s3, s28, 9"); a(f"s_add_u32 s3, s3, {CSL}"); a("v_add_u32 v29, s3, v26")
    def aft3():
        if "W1" in a.vm: a.wait(vm="W1")
        for i in range(11): a(f"ds_write_b128 v18, {R(W1T + 4*i, 4)} offset:{1024*i}")
        a("s_mov_b64 exec, s[66:67]"); a(f"ds_write_b128 v29, {R(C1R, 4)}"); a("s_mov_b64 exec, -1")
        a("s_waitcnt lgkmcnt(0)")
    left1 = max(0, len(a.bgq) - len([1 for x in a.bgq if x is w2bg]))
    print("w1 left at hop3:", left1, "w2 issued:", 70 - len(w2q), file=sys.stderr)
    def tch1():
        a("s_mul_i32 s99, s50, 20480"); a("s_mul_i32 s98, s49, 2560"); a("s_add_u32 s99, s99, s98"); a("s_add_u32 s99, s99, s58"); a(f"s_add_u32 s99, s99, {G_H}")
        a("s_mov_b64 exec, 0xfffff"); a.vmem("buffer_load_dword v4, v3, s[40:43], s99 offen sc1"); a("s_mov_b64 exec, -1")
    hop(1, bef3, aft3, post=left1, touch=tch1, post2=max(0, P("POST1", 6) - left1))
    def hf(tt, k): return HF + (k*2 + tt)*4
    def ldh(k):
        def one(tt):
            a.vmem(f"buffer_load_dwordx4 {R(hf(tt, k), 4)}, v8, s[40:43], s{80+tt} offen offset:{1024*(k&3)} sc1", f"H{k}")
            if (k & 3) == 3: a(f"s_add_u32 s{80+tt}, s{80+tt}, 4096")
        return [lambda tt=tt: one(tt) for tt in range(2)]
    PRE = P("PRE4", 6)
    for k in range(PRE):
        for f in ldh(k): f()
    for tt in range(2):
        for q in range(2):
            a.vmem(f"buffer_load_dwordx2 {R(88 + 4*tt + 2*q, 2)}, v19, s[40:43], s82 offen offset:{1024*tt + 128*q} sc1", "STAT")
    def breads(ps, k):
        ts = range(NA) if ps == 0 else range(NA, 7)
        return [lambda t=t: a.ds(f"ds_read_b128 {R(BF + (k&1)*BS + 4*(t - ts[0]), 4)}, v{[8, 16, 17][k >> 3]} offset:{(k & 7)*7168 + 1024*t}", f"BR{ps}_{k}") for t in ts]
    for f in breads(0, 0): f()
    vS = [20, 21]; vQ = [24, 25]
    a(f"v_add_u32 v18, {CSL}, v23")
    hq = list(range(PRE, 20))
    B1U = 220
    c1 = -2.0*LOG2E*0.7978845608028654
    c2 = c1*0.044715
    a(f"s_mov_b32 s60, {hx(c1)}"); a(f"s_mov_b32 s61, {hx(c2)}")
    a("s_mul_i32 s72, s28, 110592"); a("s_add_u32 s72, s72, s58"); a(f"s_add_u32 s72, s72, {G_HID}")
    a("s_lshl_b32 s3, s27, 11"); a("s_add_u32 s56, s72, s3"); a("s_add_u32 s57, s56, 55296")
    a("s_lshl_b32 s3, s27, 10"); a("s_add_u32 s70, s72, s3"); a("s_add_u32 s70, s70, 32768"); a("s_add_u32 s71, s70, 55296")
    a("s_lshr_b32 s3, s27, 2"); a("s_sub_u32 s3, s27, s3"); a("s_lshl_b32 s3, s3, 9"); a("s_add_u32 s72, s72, s3"); a(f"s_add_u32 s72, s72, {49152 - 512}")
    a("s_and_b32 s3, s27, 3"); a("s_cselect_b32 s72, s72, 0x40000000"); a("s_add_u32 s73, s72, 55296")
    for k in range(20):
        a.wait(vm=f"H{k}", lg=f"BR0_{k}")
        front = breads(0, k+1) if k < 19 else (breads(1, 0) if NA < 7 else [])
        side = []
        if NA == 7:
            if hq:
                for _ in range(P("HRATE", 2)):
                    if hq: side += ldh(hq.pop(0))
            else:
                side += [w2bg]*max(0, min(P("ABG", 2), len(w2q), NEARLY + 2*k - (70 - len(w2q))))
        elif hq:
            side += ldh(hq.pop(0))
            if not hq and "plainhid" in OPT and P("HTP", 0) == 1: side.append(hidtouch)
        else: side += [lambda: a.bg(1)]*P("ABG", 1)
        if 1 <= k < 8:
            kk = k - 1; tb = 96 if kk % 2 == 0 else 220
            side.append(lambda kk=kk: a.wait(lg=f"CG{kk}"))
            for e in range(4):
                side += [f"v_add_f32 v{CS+4*kk+e}, v{CS+4*kk+e}, v{tb+e}", f"v_add_f32 v{tb+4+e}, v{tb+4+e}, v{tb+8+e}", f"v_add_f32 v{CS+4*kk+e}, v{CS+4*kk+e}, v{tb+4+e}"]
        if k < 7:
            tb = 96 if k % 2 == 0 else 220
            for w in range(4): front.append(lambda w=w, k=k, tb=tb: a.ds(f"ds_read_b128 {R((CS + 4*k) if w == 0 else (tb - 4 + 4*w), 4)}, v18 offset:{512*w + 64*k}", f"CG{k}"))
        if k == PRE + 2:
            for tt in range(2):
                side.append(f"v_add_f32 v{vS[tt]}, v{88+4*tt}, v{90+4*tt}"); side.append(f"v_add_f32 v{vQ[tt]}, v{89+4*tt}, v{91+4*tt}")
            side.append(lambda: red_g([f"v{x}" for x in vS + vQ], "v22"))
        if k == PRE + 3:
            for tt in range(2):
                s_, q_ = f"v{vS[tt]}", f"v{vQ[tt]}"
                side += [f"v_mul_f32 {s_}, s63, {s_}", f"v_mul_f32 {q_}, s63, {q_}", f"v_fma_f32 {q_}, -{s_}, {s_}, {q_}", f"v_max_f32 {q_}, 0, {q_}",
                         f"v_add_f32 v22, s64, {q_}", f"v_fma_f32 {q_}, v22, s64, {q_}", f"v_rsq_f32 {q_}, {q_}", f"v_mul_f32 {s_}, {s_}, {q_}"]
            side += ["v_mov_b32 v252, s60", "v_mov_b32 v253, s60", "s_mov_b32 s96, s61", "s_mov_b32 s97, s61"]
        if k >= 12:
            x = 2*(k - 12)
            for y in (x, x + 1):
                if y < 14:
                    side += [f"v_accvgpr_read_b32 v27, {R(B1A + y)}", f"v_lshlrev_b32 v{B1U+2*y}, 16, v27", f"v_and_b32 v{B1U+2*y+1}, 0xffff0000, v27"]
        mf = [MF(ACC + (tt*7+t)*4, BF + (k&1)*BS + 4*t, hf(tt, k), k == 0) for t in range(NA) for tt in range(2)]
        a.interleave(mf, side, front)
    a.stamp("s4A")
    if "noct" not in OPT: ctouch("L_cS5", 1)()
    PK = 88
    def gelu(tt, t, pk=False):
        L = []
        if pk:
            b_ = ACC + (tt*7+t)*4
            pr = lambda x: f"v[{x}:{x+1}]"
            for h in (0, 2): L.append(f"v_pk_fma_f32 {pr(248+h)}, v[20:21], {pr(CS+4*t+h)}, {pr(B1U+4*t+h)} op_sel:[{tt},0,0] op_sel_hi:[{tt},1,1] neg_lo:[1,0,0] neg_hi:[1,0,0]")
            for h in (0, 2): L.append(f"v_pk_fma_f32 {pr(b_+h)}, {pr(b_+h)}, v[24:25], {pr(248+h)} op_sel:[0,{tt},0] op_sel_hi:[1,{tt},1]")
            for h in (0, 2): L.append(f"v_pk_mul_f32 {pr(248+h)}, {pr(b_+h)}, {pr(b_+h)}")
            for h in (0, 2): L.append(f"v_pk_fma_f32 {pr(248+h)}, {pr(248+h)}, s[96:97], v[252:253]")
            for h in (0, 2): L.append(f"v_pk_mul_f32 {pr(248+h)}, {pr(248+h)}, {pr(b_+h)}")
            for e in range(4): L.append(f"v_exp_f32 v{248+e}, v{248+e}")
            for h in (0, 2): L.append(f"v_pk_add_f32 {pr(248+h)}, {pr(248+h)}, 1.0 op_sel_hi:[1,0]")
            for e in range(4): L.append(f"v_rcp_f32 v{248+e}, v{248+e}")
            for h in (0, 2): L.append(f"v_pk_mul_f32 {pr(b_+h)}, {pr(b_+h)}, {pr(248+h)}")
        else:
            for e in range(4):
                v_ = f"v{ACC + (tt*7+t)*4 + e}"; ta = f"v{248+e}"
                L += [f"v_fma_f32 {ta}, -v{vS[tt]}, v{CS+4*t+e}, v{B1U+4*t+e}", f"v_fma_f32 {v_}, {v_}, v{vQ[tt]}, {ta}", f"v_mul_f32 {ta}, {v_}, {v_}",
                      f"v_fma_f32 {ta}, {ta}, s61, v252", f"v_mul_f32 {ta}, {ta}, {v_}", f"v_exp_f32 {ta}, {ta}"]
            for e in range(4):
                ta = f"v{248+e}"; L += [f"v_add_f32 {ta}, 1.0, {ta}"]
            for e in range(4):
                ta = f"v{248+e}"; L += [f"v_rcp_f32 {ta}, {ta}"]
            for e in range(4):
                v_ = f"v{ACC + (tt*7+t)*4 + e}"; L.append(f"v_mul_f32 {v_}, {v_}, v{248+e}")
        for h in range(2):
            x0 = ACC + (tt*7+t)*4 + 2*h
            L.append(f"v_cvt_pk_bf16_f32 v{PK + tt*14 + 2*t + h}, v{x0}, v{x0+1}")
        if t in (1, 3): L.append(lambda: a.vmem(f"buffer_store_dwordx4 {R(PK + tt*14 + 2*(t-1), 4)}, v8, s[40:43], s{56+tt} offen offset:{512*(t-1)}{HS2}", "ST01"))
        if t == 5: L.append(lambda: a.vmem(f"buffer_store_dwordx4 {R(PK + tt*14 + 8, 4)}, v8, s[40:43], s{70+tt} offen{HS2}", "ST"))
        if t == 6: L.append(lambda: a.vmem(f"buffer_store_dwordx2 {R(PK + tt*14 + 12, 2)}, v13, s[40:43], s{72+tt} offen{HS2}", "ST"))
        return L
    gl = []
    for p in range(NA//2 if NA < 7 else 0):
        for tt in range(2): gl += gelu(tt, 2*p, "pkB" in OPT) + gelu(tt, 2*p+1, "pkB" in OPT)
    a.bgq = []
    W2RATE = P("W2RATE", 2)
    for k in range(20 if NA < 7 else 0):
        a.wait(lg=f"BR1_{k}")
        front = breads(1, k+1) if k < 19 else []
        GEND = P("GEND", 17)
        q = ((len(gl) + GEND - 1 - k)//(GEND - k) if k < GEND else len(gl)) if k > 0 else 0
        side = gl[:q]; gl = gl[q:]
        nin = max(0, min(W2RATE, len(w2q), NEARLY + 2*k - (70 - len(w2q))))
        for i_ in range(nin): side.insert((i_ + 1)*len(side)//(nin + 1), w2bg)
        mf = [MF(ACC + (tt*7+t)*4, BF + (k&1)*BS + 4*(t-NA), hf(tt, k), k == 0) for t in range(NA, 7) for tt in range(2)]
        a.interleave(mf, side, front)
    a.stamp("s4B")
    a("L_cS5:")
    W2EPI = P("W2EPI", 1)
    BIA = 126
    srd(a, 32, 20, 2621440); srd(a, 36, 18, 1280)
    s57save = None
    for m in range(4):
        a(f"s_add_u32 s3, s28, {m}"); a("s_and_b32 s3, s3, 3"); a("s_lshl_b32 s99, s48, 2"); a("s_add_u32 s3, s3, s99")
        a(f"s_mul_i32 s3, s3, 54"); a("s_add_u32 s3, s3, s28"); a("s_lshl_b32 s3, s3, 10"); a("s_add_u32 s3, s3, s58"); a(f"s_add_u32 s{80+m}, s3, {G_HID}")
    a("v_lshlrev_b32 v28, 3, v11"); a("s_mul_i32 s3, s49, 160")
    a.vmem(f"buffer_load_dwordx4 {R(BIA, 4)}, v23, s[36:39], s3 offen")
    a.vmem(f"buffer_load_dwordx4 {R(BIA+4, 4)}, v23, s[36:39], s3 offen offset:64")
    a.vmem(f"buffer_load_dwordx2 {R(BIA+8, 2)}, v28, s[36:39], s3 offen offset:128", "BIA")
    def pub(n):
        a("s_barrier")
        a("s_cmp_lg_u32 s28, 0"); a(f"s_cbranch_scc1 L_p{n}np")
        a("s_lshl_b32 s3, s27, 2"); a("s_add_u32 s3, s3, s58"); a(f"s_add_u32 s3, s3, {G_FL + 128*n}")
        a("s_mov_b64 exec, 1")
        a("s_cmp_eq_u32 s79, 0"); a(f"s_cbranch_scc1 L_p{n}slow")
        a("buffer_store_dword v6, v5, s[40:43], s3 offen")
        a(f"s_branch L_p{n}pd")
        a(f"L_p{n}slow:")
        a("buffer_store_dword v6, v5, s[40:43], s3 offen sc1")
        a(f"L_p{n}pd:")
        a("s_mov_b64 exec, -1")
        a(f"L_p{n}np:")
    def pld(n):
        a(f"s_add_u32 s59, s58, {G_FL + 128*n}")
        a.vmem("buffer_load_dword v31, v10, s[40:43], s59 offen sc1", f"PL{n}")
    def pchk(n):
        a.wait(vm=f"PL{n}")
        a("s_mov_b32 s78, 0")
        a(f"L_c{n}:")
        a("v_cmp_ne_u32 vcc, s76, v31")
        a(f"s_cbranch_vccz L_c{n}ok")
        a("buffer_load_dword v31, v10, s[40:43], s59 offen sc1"); a("s_waitcnt vmcnt(0)")
        a("s_add_u32 s78, s78, 1"); a(f"s_cmp_lt_u32 s78, {POLLMAX}"); a(f"s_cbranch_scc1 L_c{n}")
        a(f"L_c{n}ok:")
    seq = [(0, 4), (0, 5), (1, 4), (1, 5), (0, 6), (1, 6)]
    for i_, (tt, t) in enumerate(seq):
        if i_ == P("EP", 1): a.wait(vm="ST01"); pub(2)
        if i_ == P("PP", 5): pld(2)
        L = gelu(tt, t, True)
        for j_, x in enumerate(L):
            a.run(x)
            if i_ < P("W2STOP", 4) and j_ in (6, 16)[:W2EPI] and w2q: ldw2(*w2q.pop(0))
    a.stamp("tail")
    print("w2 left for S5:", len(w2q), file=sys.stderr)
    red_addr(); a.wait(vm="BIA"); init_acc([RES, BIA])
    pchk(2)
    a.stamp("FEok")
    ar = [136 + 4*i for i in range(5)] + [220 + 4*i for i in range(9)] + arA
    NR = 6
    def fa(n, m): return ar[(n % NR)*4 + m]
    def lda5(n):
        def one(m):
            if n == 13 and m == 0:
                a("s_cmp_ge_u32 s28, 2"); a("s_cselect_b32 s3, 0x40000000, 0")
                for q in range(4): a(f"s_add_u32 s{80+q}, s{80+q}, s3")
            a.vmem(f"buffer_load_dwordx4 {R(fa(n, m), 4)}, v8, s[40:43], s{80+m} offen sc1", f"A5_{n}")
            a(f"s_add_u32 s{80+m}, s{80+m}, 4096")
        return [lambda m=m: one(m) for m in range(4)]
    PRE5 = P("PRE5", 3)
    def need_w2(n):
        L = []
        while w2q and w2q[0][0] <= n:
            x = w2q.pop(0); L.append(lambda x=x: ldw2(*x))
        return L
    for n in range(PRE5):
        for f in need_w2(n) + lda5(n): f()
    a.wait(vm="ST"); pub(3)
    nxt = PRE5
    PL = P("PL", 2); PC = P("PC", 4)
    for n in range(14):
        a.wait(vm=f"A5_{n}")
        if n == PC: pchk(3)
        side = []; cnt = 0
        if n == PL: side.append(lambda: pld(3))
        while nxt < 14 and nxt <= n + NR - 1 and cnt < 2 and (nxt < 8 or n >= PC):
            side += need_w2(nxt) + lda5(nxt); nxt += 1; cnt += 1
        if cnt == 0 and w2q:
            for _ in range(min(4, len(w2q))):
                x = w2q.pop(0); side.append(lambda x=x: ldw2(*x))
        if n == 13:
            last_step(lambda m, t: MF(ACC + (m*5+t)*4, fb(n, t), fa(n, m), False))
        else:
            mf = [MF(ACC + (m*5+t)*4, fb(n, t), fa(n, m), n == 0 and m > 0) for m in range(4) for t in range(5)]
            a.interleave(mf, side)
    a.stamp("s5end")
    reduce_epi(5, BIA)
    a(f"buffer_store_dwordx4 {R(RES, 4)}, v14, s[32:35], s51 offen")
    a(f"buffer_store_dwordx4 {R(RES+4, 4)}, v14, s[32:35], s51 offen offset:64")
    a(f"buffer_store_dwordx2 {R(RES+8, 2)}, v15, s[32:35], s51 offen offset:128")
    a("s_or_b32 s3, s2, s28"); a("s_cmp_lg_u32 s3, 0"); a("s_cbranch_scc1 L_notagclr")
    a("global_store_dword v5, v5, s[22:23] sc1")
    a("L_notagclr:")
    a.stamp("stored")
    if STAMP:
        a("s_waitcnt vmcnt(0)")
        a.stamp("end")
        a("s_memrealtime s[100:101]"); a("s_waitcnt lgkmcnt(0)"); a("v_writelane_b32 v7, s100, 31")
        a("v_writelane_b32 v7, s79, 30")
        a("s_lshl_b32 s3, s2, 2"); a("s_add_u32 s3, s3, s28"); a("s_lshl_b32 s3, s3, 8"); a(f"s_add_u32 s3, s3, {STB}")
        a("v_lshlrev_b32 v27, 2, v1"); a("v_add_u32 v27, s3, v27")
        a("global_store_dword v27, v7, s[24:25]")
        if os.environ.get("DELAY"):
            di = os.environ["DELAY"]
            a(f"s_cmp_lg_u32 s2, {P('DWG', 8)}"); a("s_cbranch_scc1 L_end"); a("s_cmp_lg_u32 s28, 0"); a("s_cbranch_scc1 L_end")
            clk = "s_memrealtime" if di == "rt" else "s_memtime"
            a(f"{clk} s[100:101]"); a("s_waitcnt lgkmcnt(0)")
            if di == "rt":
                a("s_sub_u32 s3, s100, s76")
            else:
                a(f"v_readlane_b32 s3, v7, {di}"); a("v_readlane_b32 s56, v7, 0"); a("s_nop 3"); a("s_sub_u32 s3, s3, s56")
            a("s_lshl_b32 s3, s3, 2"); a("s_min_u32 s3, s3, 0x100000"); a("s_mov_b32 s57, s100")
            a("L_dly:")
            a(f"{clk} s[100:101]"); a("s_waitcnt lgkmcnt(0)"); a("s_sub_u32 s56, s100, s57"); a("s_cmp_lt_u32 s56, s3"); a("s_cbranch_scc1 L_dly")
        a.a.raw("; STAMPS " + " ".join(a.names))
    a("L_end:")
    a("s_endpgm")
    return a.a

def main(out):
    hdr = open("sequential_preLN__linear_attn_block__mixer_channel_mlp__prompt.s.ref").read().split("\n")
    hdr = [l for l in hdr if l.startswith(";") and "@launch" not in l]
    hdr.append("; @launch grid=(256,1,1) block=(256,1,1) lds=163840")
    a = gen()
    pre = '.amdgcn_target "amdgcn-amd-amdhsa--gfx950"\n.text\n'
    T1, T2 = build_tables()
    a.raw(".p2align 6\nT1_tab:")
    a.raw(".short " + ",".join(map(str, T1)))
    a.raw("T2_tab:")
    for row in T2: a.raw(".short " + ",".join(map(str, row)))
    a.raw(".fill 2048, 4, 0")
    a.raw('.section .rodata,"a"\n.p2align 6')
    a.raw(f""".amdhsa_kernel {NAME}
  .amdhsa_next_free_vgpr 512
  .amdhsa_next_free_sgpr 102
  .amdhsa_accum_offset 256
  .amdhsa_group_segment_fixed_size 0
  .amdhsa_kernarg_size 88
  .amdhsa_user_sgpr_count 2
  .amdhsa_user_sgpr_kernarg_segment_ptr 1
  .amdhsa_system_sgpr_workgroup_id_x 1
.end_amdhsa_kernel""")
    open(out, "w").write("\n".join(hdr) + "\n" + pre + a.finish())

if __name__ == "__main__":
    main(sys.argv[1])
```

```python
import sys, struct, os
from asmdsl import Asm, R, S
from gen1 import build_tables, PAIRS, f2u, hx, divmod_const, srd, LOG2E

NAME = "sequential_preLN__linear_attn_block__mixer_channel_mlp__prompt_kernel"
WOP = 0
W2P = WOP + 8*20*5*1024
W1P = W2P + 8*54*5*1024
C1P = W1P + 16*20*7*1024
WQKV = C1P + 320*512
PART = WQKV + 16*153600
GRP = PART + 256*4096
G_O = 0; G_H = 163840; G_ST = 327680; G_FL = 335872; G_HID = 336896; G_SZ = G_HID + 442368
FLG = GRP + 16*G_SZ
F1 = FLG; F1R = FLG + 8192; F0 = FLG + 10240; FU = FLG + 14336
WS_END = FLG + 20480
A0 = 256
STAMP = int(os.environ.get("STAMP", "0"))
STB = 32 << 20
POLLMAX = 1 << 15
OPT = set(os.environ.get("OPT", "").split(","))
def P(name, d): return int(os.environ.get(name, d))

class G:
    def __init__(self):
        self.a = Asm(); self.vm = []; self.lg = []; self.nst = 0; self.bgq = []; self.names = []
    def __call__(self, t): self.a(t)
    def vmem(self, text, tag=None): self.a(text); self.vm.append(tag)
    def ds(self, text, tag=None): self.a(text); self.lg.append(tag)
    def _n(self, lst, tag, cap):
        idx = max(i for i, t in enumerate(lst) if t == tag)
        return min(len(lst) - 1 - idx, cap)
    def wait(self, vm=None, lg=None):
        s = []
        if vm is not None: s.append(f"vmcnt({0 if vm == 'all' else self._n(self.vm, vm, 63)})")
        if lg is not None: s.append(f"lgkmcnt({0 if lg == 'all' else self._n(self.lg, lg, 15)})")
        self.a("s_waitcnt " + " ".join(s))
        if vm == 'all': self.vm = []
        if lg == 'all': self.lg = []
    def stamp(self, name=""):
        if STAMP != 1: return
        i = self.nst; self.nst += 1; self.names.append(name)
        assert i < 29
        self.a("s_memtime s[100:101]"); self.a("s_waitcnt lgkmcnt(0)"); self.a(f"v_writelane_b32 v7, s100, {i}")
    def run(self, x): x() if callable(x) else self.a(x)
    def bg(self, n=1):
        for _ in range(n):
            if self.bgq: self.bgq.pop(0)()
    def interleave(self, main, extra, front=()):
        n = len(main); m = len(extra); j = 0; front = list(front)
        for i, x in enumerate(main):
            self.run(x)
            if front:
                self.run(front.pop(0))
                if len(front) >= n - i and front: self.run(front.pop(0))
            while j < m and (j + 1) * n <= (i + 1) * m + (n - 1):
                self.run(extra[j]); j += 1
        for x in front: self.run(x)
        while j < m:
            self.run(extra[j]); j += 1

def MF(d, a_, b_, first): return f"v_mfma_f32_16x16x32_bf16 {R(d,4)}, {R(a_,4)}, {R(b_,4)}, {'0' if first else R(d,4)}"

def phi(a, val, t1, t2):
    a(f"v_mul_f32 {t1}, s60, {val}")
    a(f"v_max_f32 {t2}, 0, {val}")
    a(f"v_exp_f32_e64 {t1}, {t1} clamp")
    a(f"v_add_f32 {t2}, s61, {t2}")
    a(f"v_add_f32 {val}, {t1}, {t2}")

OPT |= {"sc1h", "sc1hid", "notouch", "usfirst", "ft", "rpplain", "slplain", "tlb3"}
def phi4(a, b_, T, sel_mask=None):
    for h in range(2): a(f"v_pk_mul_f32 v[{T+2*h}:{T+2*h+1}], v[{b_+2*h}:{b_+2*h+1}], s[94:95]")
    for e in range(4): a(f"v_max_f32 v{T+4+e}, 0, v{b_+e}")
    for e in range(4): a(f"v_exp_f32_e64 v{T+e}, v{T+e} clamp")
    for h in range(2): a(f"v_pk_add_f32 v[{T+4+2*h}:{T+5+2*h}], v[{T+4+2*h}:{T+5+2*h}], s[96:97]")
    if sel_mask is None:
        for h in range(2): a(f"v_pk_add_f32 v[{b_+2*h}:{b_+2*h+1}], v[{T+2*h}:{T+2*h+1}], v[{T+4+2*h}:{T+5+2*h}]")
    else:
        for h in range(2): a(f"v_pk_add_f32 v[{T+2*h}:{T+2*h+1}], v[{T+2*h}:{T+2*h+1}], v[{T+4+2*h}:{T+5+2*h}]")
        for e in range(4): a(f"v_cndmask_b32 v{b_+e}, v{b_+e}, v{T+e}, {sel_mask}")
RPNT = "" if "rpplain" in OPT else " nt"
HS = "" if "plainh" in OPT else " sc1"
HS2 = "" if "plainhid" in OPT else " sc1"
FENCE = "plainh" in OPT or "plainhid" in OPT
def gen():
    a = G()
    name = NAME
    NRAW = P("NRAW", 2)
    a.a.raw(f".globl {name}\n.p2align 8\n.type {name},@function\n{name}:")
    a("s_cmp_ge_u32 s2, 256"); a("s_cbranch_scc1 L_end")
    a("s_load_dwordx16 s[4:19], s[0:1], 0")
    a("s_load_dwordx4 s[20:23], s[0:1], 64")
    a("s_load_dwordx2 s[24:25], s[0:1], 80")
    a("s_memrealtime s[76:77]")
    a("s_getpc_b64 s[30:31]")
    a("L_pc:")
    a("v_mov_b32 v7, 0")
    a.stamp("start")
    a("v_lshrrev_b32 v2, 6, v0"); a("v_and_b32 v1, 63, v0")
    a("v_readfirstlane_b32 s28, v2")
    if "m48" in OPT:
        a("s_and_b32 s3, s2, 7"); a("s_lshr_b32 s29, s2, 3")
        a("s_lshr_b32 s26, s3, 1"); a("s_lshl_b32 s26, s26, 2"); a("s_lshr_b32 s27, s29, 3"); a("s_add_u32 s26, s26, s27")
        a("s_and_b32 s3, s3, 1"); a("s_lshl_b32 s3, s3, 2"); a("s_and_b32 s27, s29, 3"); a("s_or_b32 s27, s27, s3")
        a("s_and_b32 s29, s29, 4"); a("s_lshl_b32 s29, s29, 1"); a("s_or_b32 s27, s27, s29")
    else:
        a("s_and_b32 s3, s2, 7"); a("s_lshr_b32 s27, s2, 3"); a("s_lshr_b32 s26, s27, 4"); a("s_lshl_b32 s3, s3, 1")
        a("s_add_u32 s26, s26, s3")
        a("s_and_b32 s27, s27, 15")
    a("v_lshlrev_b32 v3, 7, v1")
    if "cp16" in OPT:
        a("s_cmp_lg_u32 s28, 3"); a("s_cbranch_scc1 L_nocp")
        a("s_mul_i32 s3, s27, 2304"); a("v_add_u32 v27, s3, v3"); a("s_bfm_b64 exec, 18, 0")
        a("global_load_dword v4, v27, s[30:31]"); a("s_mov_b64 exec, -1")
    elif "nocp" not in OPT:
        a("s_cmp_lg_u32 s28, 3"); a("s_cbranch_scc1 L_nocp")
        a("s_mul_i32 s3, s27, 13"); a("s_lshr_b32 s3, s3, 6"); a("s_mul_i32 s3, s3, 5"); a("s_sub_u32 s3, s27, s3"); a("s_lshl_b32 s3, s3, 13")
        a("v_add_u32 v27, s3, v3")
        a("global_load_dword v4, v27, s[30:31]")
    a("L_nocp:")
    BQ = 102400; SCR = 153600; CSX = 161792
    vXA = [72, 73, 74, 75]; vW = [76, 77]; vRd = [78, 79]; vTB = [17, 18, 19, 20]; vTQ = [86, 87, 88, 89]; vTQ2 = [90, 91, 21, 22]
    vSA = [80, 81, 82]; vBA = [144, 145, 146, 147, 148]; vTR = [149, 150, 151, 152]
    vT1 = 24; vSTW = 25
    ACC = 32; RAW = 160; XF = A0; BF = A0 + 160; ONES = A0 + 200; GR = A0 + 204; RSM = A0 + 212; OH = A0 + 220; CSA = A0 + 240; CSQ = A0 + 244
    t0, t1, t2, t3 = "v27", "v28", "v29", "v30"
    def early():
        a("v_and_b32 v27, 3, v1"); a("s_lshl_b32 s3, s28, 2"); a("v_add_u32 v27, s3, v27"); a("v_min_u32 v27, 14, v27")
        a("v_lshrrev_b32 v28, 2, v1"); a("v_mul_u32_u24 v28, 3840, v28"); a("v_lshl_add_u32 v28, v27, 4, v28")
        a("v_add_u32 v29, 1280, v28"); a("v_add_u32 v30, 2480, v28"); a("v_subrev_u32 v28, 160, v28")
        a("v_cmp_gt_u32 vcc, 10, v27"); a("s_mul_i32 s50, s26, 153600"); a("s_mul_i32 s51, s27, 80"); a("v_cndmask_b32 v28, v28, v30, vcc")
        a("v_cmp_gt_u32 vcc, 5, v27"); a("s_add_u32 s50, s50, s51"); a("s_mul_i32 s53, s28, 3072"); a("v_cndmask_b32 v83, v28, v29, vcc")
        a(f"s_add_u32 s53, s53, {BQ + 28672}")
        a("s_mul_i32 s3, s26, 163840"); a("s_mul_i32 s56, s27, 10240"); a("s_add_u32 s3, s3, s56"); a("s_mul_i32 s56, s28, 2560"); a("s_add_u32 s57, s3, s56")
        a("v_mov_b32 v5, 0")
    def late():
        a("v_lshlrev_b32 v8, 4, v1"); a("v_lshlrev_b32 v9, 4, v0")
        a("v_and_b32 v10, 15, v1"); a("v_lshlrev_b32 v10, 2, v10")
        a("v_lshrrev_b32 v11, 4, v1"); a("v_add_u32 v12, 4096, v8")
        a("v_lshrrev_b32 v27, 3, v1"); a("v_and_b32 v28, 7, v1"); a("v_mul_u32_u24 v29, 1280, v27")
        a("v_lshrrev_b32 v30, 1, v27"); a("v_xor_b32 v28, v28, v30")
        a(f"v_lshl_add_u32 v{vXA[0]}, v28, 4, v29")
        a(f"v_xor_b32 v{vXA[1]}, 64, v{vXA[0]}"); a(f"v_add_u32 v{vXA[1]}, 10240, v{vXA[1]}")
        a(f"v_add_u32 v{vXA[2]}, 20480, v{vXA[0]}"); a(f"v_add_u32 v{vXA[3]}, 20480, v{vXA[1]}")
        a("s_lshl_b32 s3, s28, 11"); a(f"s_add_u32 s48, s3, {SCR}")
        a("s_lshl_b32 s49, s26, 7"); a("s_lshl_b32 s3, s28, 5"); a("s_add_u32 s49, s49, s3"); a("s_mul_i32 s49, s49, 1280")
        a("s_lshr_b32 s3, s28, 1"); a("s_lshl_b32 s3, s3, 7"); a("s_add_u32 s62, s49, 128"); a("s_sub_u32 s62, s62, s3"); a("s_add_u32 s49, s49, s3")
        a("s_mul_i32 s52, s28, 5120")
        a(f"s_mul_i32 s58, s26, {G_SZ}"); a(f"s_add_u32 s58, s58, {GRP}")
        a("s_lshl_b32 s70, s28, 4"); a("s_add_u32 s70, s70, s26")
        a(f"s_mul_i32 s71, s28, 7168"); a(f"s_add_u32 s71, s71, {BQ}")
        a("v_mov_b32 v2, 0x7fffffff")
    early()
    if "slowpro" in OPT: late()
    a("s_waitcnt lgkmcnt(0)")
    srd(a, 36, 6, 2457600)
    SLNT = "" if "slplain" in OPT else " nt"
    for i in range(3):
        a(f"s_add_u32 m0, s53, {1024*i}")
        if i == 2: a("s_bfm_b64 exec, 32, 0")
        a.vmem(f"buffer_load_dwordx4 v83, s[36:39], s50 offen{SLNT} lds", "SLD")
        a(f"s_add_u32 s50, s50, {16*3840}")
    srd(a, 32, 4, 2621440); srd(a, 40, 24, WS_END)
    a("s_mov_b64 exec, 0xfffff")
    a.vmem(f"buffer_load_dword v4, v3, s[32:35], s57 offen{' nt' if 'xtnt' in OPT else ''}")
    if "tlb" in OPT:
        a("v_lshlrev_b32 v27, 20, v1"); a("s_bfm_b64 exec, 24, 0")
        a.vmem(f"buffer_load_dword v4, v27, s[40:43], 0 offen")
    if "tlb2" in OPT:
        a("s_mul_i32 s54, s27, 153600"); a(f"s_add_u32 s54, s54, {WQKV}")
        a("v_mul_u32_u24 v27, 51200, v1"); a("v_add_u32 v27, s54, v27"); a(f"v_mov_b32 v28, {F0}"); a("v_cmp_eq_u32 vcc, 3, v1"); a("v_cndmask_b32 v27, v27, v28, vcc")
        a("s_bfm_b64 exec, 4, 0")
        a.vmem(f"buffer_load_dword v4, v27, s[40:43], 0 offen")
        a.vmem("global_load_dword v4, v5, s[22:23] offset:128")
    a("s_mov_b64 exec, -1")
    if STAMP: a("v_writelane_b32 v7, s76, 29")
    a("s_and_b32 s76, s76, 0xfffffff8"); a("s_or_b32 s76, s76, 8")
    a("s_or_b32 s3, s2, s28"); a("s_cmp_lg_u32 s3, 0"); a("s_cbranch_scc1 L_notag")
    a("v_mov_b32 v28, s76"); a("global_store_dword v5, v28, s[22:23] sc1")
    a("L_notag:")
    if "ft" in OPT:
        a("s_cmp_lg_u32 s26, s27"); a("s_cbranch_scc1 L_noft"); a("s_cmp_lg_u32 s28, 1"); a("s_cbranch_scc1 L_noft")
        a("s_mul_i32 s3, s27, 1280"); a(f"s_add_u32 s3, s3, {FLG}")
        a("s_bfm_b64 exec, 10, 0"); a("buffer_load_dword v4, v3, s[40:43], s3 offen sc0 sc1"); a("s_mov_b64 exec, -1")
        a("L_noft:")
    if "tlb3" in OPT:
        a("s_cmp_lg_u32 s28, 2"); a("s_cbranch_scc1 L_not3")
        a("v_lshlrev_b32 v27, 16, v1"); a("v_lshlrev_b32 v28, 18, v1")
        for cc, (sp, n_) in enumerate([(12, 34), (16, 34), (8, 13), (20, 40)]):
            a(f"s_cmp_lg_u32 s27, {2+cc}"); a(f"s_cbranch_scc1 L_t3_{cc}")
            a(f"s_bfm_b64 exec, {n_}, 0"); a(f"global_load_dword v4, v27, s[{sp}:{sp+1}]"); a("s_mov_b64 exec, -1")
            a(f"L_t3_{cc}:")
        a("s_cmp_lg_u32 s27, 6"); a("s_cbranch_scc1 L_t3_4"); a("buffer_load_dword v4, v28, s[40:43], 0 offen"); a("L_t3_4:")
        a("s_cmp_lg_u32 s27, 7"); a("s_cbranch_scc1 L_not3"); a(f"s_mov_b32 s3, {64 << 18}"); a("buffer_load_dword v4, v28, s[40:43], s3 offen")
        a("L_not3:")
    if "tlb4" in OPT:
        a("s_cmp_lg_u32 s28, 2"); a("s_cbranch_scc1 L_not4")
        a("v_lshlrev_b32 v27, 21, v1"); a("s_bfm_b64 exec, 2, 0")
        a("global_load_dword v4, v27, s[12:13]"); a("global_load_dword v4, v27, s[16:17]"); a("s_mov_b64 exec, 1"); a("global_load_dword v4, v27, s[8:9]")
        a("s_bfm_b64 exec, 11, 0"); a("buffer_load_dword v4, v27, s[40:43], 0 offen")
        a("s_mov_b64 exec, -1")
        a("L_not4:")
    if "nobt" not in OPT:
        a("s_lshl_b32 s3, s27, 2"); a("s_add_u32 s3, s3, s28"); a("s_cmp_lg_u32 s3, 6"); a("s_cbranch_scc1 L_nobt")
        a("s_bfm_b64 exec, 27, 0"); a("global_load_dword v4, v3, s[14:15]")
        a("s_bfm_b64 exec, 10, 0"); a("global_load_dword v4, v3, s[18:19]")
        a("s_mov_b64 exec, -1")
        a("L_nobt:")
    srd(a, 44, 12, 2211840)
    if "slowpro" not in OPT: late()
    def rp_issue(nt, pitch_src, nch):
        for i in range(7):
            if i < nt:
                a(f"v_add_u32 v27, {64*i}, v1")
                divmod_const(a, "v28", "v29", "v27", nch)
                if nt == 5:
                    a("v_cmp_lt_u32 vcc, 15, v28"); a("v_add_u32 v30, s83, v28"); a("v_cndmask_b32 v28, v28, v30, vcc")
                a(f"v_mul_u32_u24 v28, {pitch_src}, v28"); a("v_lshl_add_u32 v28, v29, 4, v28")
                a(f"s_add_u32 m0, s71, {1024*i}")
                a(f"buffer_load_dwordx4 v28, s[44:47], s73 offen{RPNT} lds")
            else:
                a("buffer_load_dword v4, v2, s[44:47], 0 offen")
    def unit_issue():
        a("s_cmp_ge_u32 s70, 20"); a("s_cbranch_scc1 L_rp5")
        a("s_mov_b32 s72, 1")
        a("s_mul_i32 s75, s27, 27"); a("s_lshr_b32 s75, s75, 2"); a("s_lshl_b32 s75, s75, 5")
        a("s_mul_i32 s79, s70, 110592"); a("s_add_u32 s73, s75, s79")
        a("s_mul_i32 s75, s27, 20"); a("s_add_u32 s70, s70, s75")
        a("s_mul_i32 s74, s70, 7168"); a(f"s_add_u32 s74, s74, {W1P}")
        rp_issue(7, 3456, 14)
        a("s_branch L_rp_issued")
        a("L_rp5:")
        a("s_mov_b32 s72, 2")
        a("s_sub_u32 s79, s70, 20"); a("s_lshl_b32 s79, s79, 1"); a("s_lshr_b32 s75, s27, 3"); a("s_add_u32 s79, s79, s75"); a("s_and_b32 s75, s27, 7")
        a("s_cmp_ge_u32 s79, 54"); a("s_cbranch_scc1 L_rpwo")
        srd(a, 44, 16, 2211840)
        a("s_mul_i32 s78, s75, 54"); a("s_add_u32 s78, s78, s79")
        a("s_mul_i32 s74, s78, 5120"); a(f"s_add_u32 s74, s74, {W2P}")
        a("s_mov_b32 s83, 0")
        a("s_cmp_ge_u32 s79, 48"); a("s_cbranch_scc1 L_w2s")
        a("s_lshr_b32 s84, s79, 1"); a("s_and_b32 s85, s79, 1"); a("s_lshl_b32 s85, s85, 1")
        a("s_sub_u32 s78, s79, 32"); a("s_cmp_ge_u32 s79, 32"); a("s_cselect_b32 s84, s78, s84"); a("s_cselect_b32 s85, 4, s85")
        a("s_mul_i32 s84, s84, 27"); a("s_lshr_b32 s84, s84, 2"); a("s_add_u32 s79, s84, s85")
        a("s_branch L_rp5b")
        a("L_w2s:")
        a("s_sub_u32 s84, s79, 48"); a("s_lshl_b32 s84, s84, 1"); a("s_add_u32 s85, s84, 1")
        for r_ in ("s84", "s85"):
            a(f"s_mul_i32 s78, {r_}, 11"); a("s_lshr_b32 s78, s78, 5"); a(f"s_add_u32 {r_}, {r_}, s78"); a(f"s_add_u32 {r_}, {r_}, 1")
            a(f"s_mul_i32 {r_}, {r_}, 27"); a(f"s_lshr_b32 {r_}, {r_}, 2")
        a("s_add_u32 s79, s84, 6"); a("s_sub_u32 s83, s85, s84"); a("s_sub_u32 s83, s83, 1"); a("s_lshl_b32 s83, s83, 4")
        a("s_branch L_rp5b")
        a("L_rpwo:")
        srd(a, 44, 8, 819200)
        a("s_sub_u32 s79, s79, 54")
        a("s_mul_i32 s78, s75, 20"); a("s_add_u32 s78, s78, s79")
        a("s_mul_i32 s74, s78, 5120"); a(f"s_add_u32 s74, s74, {WOP}")
        a("s_cmp_ge_u32 s79, 20"); a("s_cselect_b32 s74, 0x40000000, s74")
        a("s_lshl_b32 s79, s79, 1"); a("s_mov_b32 s83, 0")
        a("L_rp5b:")
        a("s_mul_i32 s75, s75, 160"); a("s_mul_i32 s79, s79, 20480"); a("s_add_u32 s73, s75, s79")
        rp_issue(5, 1280, 10)
        a("L_rp_issued:")
        a.vm += ["UL"]*7
    def raw(cx, rg): return 96 + (((cx + 1) % 10)*4 + rg)*4
    def xf(tt, k): return XF + (tt*20 + k)*4
    def ldx(cx):
        def one(rg):
            off = 256*(cx >> 1)
            a(f"s_add_u32 m0, s52, {(cx % 5)*20480 + rg*1024 + 1024 - off}")
            a.vmem(f"buffer_load_dwordx4 v{vXA[rg]}, s[32:35], s{62 if cx & 1 else 49} offen offset:{off} lds", f"X{cx}")
        return [lambda rg=rg: one(rg) for rg in range(4)]
    a("v_and_b32 v27, 15, v1")
    a("v_cmp_gt_u32 s[66:67], 8, v27")
    a("v_cmp_gt_u32 s[90:91], 32, v1"); a("v_cmp_gt_u32 s[92:93], 48, v1")
    a("v_cmp_eq_u32 s[88:89], 1, v11")
    a("v_and_b32 v29, 1, v11")
    a("s_lshl_b32 s3, s28, 1"); a("v_add_u32 v29, s3, v29")
    a("v_cmp_gt_u32 s[94:95], 5, v29"); a("v_cmp_eq_u32 s[96:97], 7, v29")
    a("v_lshlrev_b32 v29, 10, v29"); a(f"v_add_u32 v30, {BQ - 5120}, v29"); a("v_cndmask_b32 v29, v30, v29, s[94:95]")
    a("v_lshl_add_u32 v29, v10, 2, v29")
    a("v_mov_b32 v30, 2560"); a("v_mov_b32 v31, 5120"); a("v_cndmask_b32 v30, v30, v31, s[94:95]")
    a("v_mov_b32 v31, 8"); a("v_cndmask_b32 v31, v31, 7, s[96:97]")
    a("s_andn2_b64 s[96:97], s[96:97], s[66:67]")
    a("s_mul_i32 s3, s26, 5")
    a("v_lshrrev_b32 v28, 1, v11"); a("v_add_u32 v28, s3, v28")
    for n in range(3):
        a(f"v_lshrrev_b32 v27, 2, v28"); a(f"v_mad_u32_u24 v{vSA[n]}, v27, v30, v29")
        a("v_and_b32 v27, 3, v28"); a("v_lshlrev_b32 v27, v31, v27"); a(f"v_add_u32 v{vSA[n]}, v{vSA[n]}, v27")
        a(f"v_cndmask_b32 v{vSA[n]}, v{vSA[n]}, v2, s[96:97]")
        if n == 2: a(f"v_cndmask_b32 v{vSA[n]}, v2, v{vSA[n]}, s[90:91]")
        else: a("v_add_u32 v28, 2, v28")
    a("v_lshrrev_b32 v27, 5, v1"); a("v_bfe_u32 v28, v1, 2, 2"); a("v_lshl_add_u32 v27, v27, 3, v28"); a("v_lshlrev_b32 v27, 6, v27")
    a("v_bfe_u32 v28, v1, 4, 1"); a("v_lshl_add_u32 v27, v28, 5, v27"); a("v_and_b32 v28, 3, v1"); a("v_lshl_add_u32 v27, v28, 3, v27")
    a("v_add_u32 v84, s53, v27")
    a("s_mul_i32 s54, s27, 153600"); a(f"s_add_u32 s54, s54, {WQKV}")
    a.wait(vm="SLD")
    a.stamp("sld")
    for n in range(3):
        for h in range(2): a(f"ds_read_b64_tr_b16 {R(96 + 4*n + 2*h, 2)}, v84 offset:{1024*n + 256*h}")
    a("s_waitcnt lgkmcnt(0)")
    for n in range(3): a.vmem(f"buffer_store_dwordx4 {R(96 + 4*n, 4)}, v{vSA[n]}, s[40:43], s54 offen sc1", "SL")
    a.vmem("global_load_dword v6, v5, s[22:23] sc1", "TAG")
    NX0 = P("NX0", 3)
    for cx in range(NX0):
        for f in ldx(cx): f()
    a("v_and_b32 v27, 15, v1")
    a("v_lshrrev_b32 v29, 1, v27"); a("v_xor_b32 v29, v29, v11"); a("v_lshlrev_b32 v29, 4, v29"); a("v_lshl_add_u32 v29, v27, 7, v29")
    a("s_and_b32 s3, s28, 1"); a("s_lshl_b32 s3, s3, 6"); a("v_xor_b32 v29, s3, v29")
    a(f"v_add_u32 v{vRd[0]}, s52, v29"); a("v_xor_b32 v29, 64, v29"); a(f"v_add_u32 v{vRd[1]}, s52, v29")
    a(f"v_add_u32 v{vW[0]}, 61440, v{vRd[0]}"); a(f"v_add_u32 v{vW[1]}, 61440, v{vRd[1]}")
    a("v_lshrrev_b32 v29, 2, v27"); a("v_cmp_eq_u32 vcc, v29, v11")
    a("v_lshlrev_b32 v30, 2, v1"); a("v_add_u32 v30, 512, v30")
    a("v_cndmask_b32 v29, v30, v10, vcc"); a(f"v_add_u32 v{vSTW}, s48, v29")
    a("v_and_b32 v29, 1, v1"); a("v_cmp_eq_u32 s[68:69], 1, v29")
    a("v_and_b32 v29, 2, v1"); a("v_cmp_eq_u32 s[86:87], 2, v29")
    a("v_mov_b32 v28, 0x3f803f80")
    for i in range(4): a(f"v_accvgpr_write_b32 {R(ONES+i)}, v28")
    for t in range(5):
        a(f"v_cmp_eq_u32 vcc, {t}, v27"); a("v_cndmask_b32 v29, 0, v28, vcc")
        for e in range(4): a(f"v_accvgpr_write_b32 {R(OH+4*t+e)}, v29")
    a("v_and_b32 v27, 7, v1"); a("v_lshlrev_b32 v27, 4, v27"); a("v_lshl_add_u32 v27, v11, 7, v27")
    for p in range(4):
        a(f"s_xor_b32 s3, s28, {p}"); a("s_mul_i32 s56, s3, 5120"); a(f"v_add_u32 v{vTB[p]}, s56, v8")
        a("s_mul_i32 s56, s3, 2560"); a(f"s_add_u32 s56, s56, {BQ}"); a(f"v_add_u32 v{vTQ[p]}, s56, v8"); a("s_add_u32 s56, s56, 2048"); a(f"v_add_u32 v{vTQ2[p]}, s56, v27")
    a(f"s_mov_b32 s60, {hx(LOG2E)}"); a(f"s_mov_b32 s61, {hx(1e-6)}")
    a(f"s_mov_b32 s63, {hx(1.0/640)}"); a(f"s_mov_b32 s64, {hx(1e-5)}")
    a("s_lshl_b32 s55, s27, 8"); a(f"s_add_u32 s55, s55, {F0}")
    a("v_lshlrev_b32 v26, 2, v1")
    a("s_lshl_b32 s3, s26, 4"); a("s_lshl_b32 s56, s28, 2"); a("s_add_u32 s3, s3, s56"); a("s_add_u32 s3, s3, s55")
    a.wait(vm="TAG")
    a("v_readfirstlane_b32 s76, v6"); a("s_mov_b32 s78, 0")
    a("L_tp1:")
    a("s_cmp_lg_u32 s76, 0"); a("s_cbranch_scc1 L_tp1_ok")
    a("global_load_dword v6, v5, s[22:23] sc1"); a("s_add_u32 s78, s78, 1"); a("s_waitcnt vmcnt(0)")
    a("v_readfirstlane_b32 s76, v6")
    a(f"s_cmp_lt_u32 s78, {POLLMAX}"); a("s_cbranch_scc1 L_tp1")
    a("L_tp1_ok:")
    a("s_getreg_b32 s77, hwreg(HW_REG_XCC_ID)"); a("s_and_b32 s77, s77, 7"); a("s_or_b32 s77, s77, s76")
    a("s_lshl_b32 s57, s26, 7"); a("s_lshl_b32 s56, s27, 2"); a("s_add_u32 s57, s57, s56"); a(f"s_add_u32 s57, s57, {F1R}")
    a("s_cmp_eq_u32 s28, 0"); a("s_cselect_b32 s57, s57, 0x40000000"); a("v_mov_b32 v27, s77")
    a("s_mov_b64 exec, 1"); a.vmem("buffer_store_dword v6, v5, s[40:43], s3 offen sc1"); a.vmem("buffer_store_dword v27, v5, s[40:43], s57 offen sc1"); a("s_mov_b64 exec, -1")
    a.stamp("F0pub")
    def rp_fin(nt, RG):
        pitch = nt*32
        a("v_bfe_u32 v28, v1, 2, 2"); a("v_lshl_add_u32 v27, v11, 3, v28"); a("v_and_b32 v28, 3, v1")
        a(f"v_mul_u32_u24 v29, {pitch}, v27"); a("v_add_u32 v29, s71, v29")
        a("v_lshl_add_u32 v30, v28, 3, v29"); a("v_lshl_add_u32 v29, v28, 4, v29")
        for t in range(nt):
            for h in range(2):
                if t == nt - 1: a(f"ds_read_b64_tr_b16 {R(RG + 4*t + 2*h, 2)}, v30 offset:{h*4*pitch + 32*t}")
                else: a(f"ds_read_b64_tr_b16 {R(RG + 4*t + 2*h, 2)}, v29 offset:{h*4*pitch + 64*(t>>1) + 8*(t&1)}")
        if nt == 7:
            a("v_mov_b32 v28, 0x3f803f80")
            for t in (5, 6):
                a(f"v_cmp_eq_u32 vcc, {4*t}, v10")
                for e in range(4): a(f"v_cndmask_b32 v{RG+28+4*(t-5)+e}, 0, v28, vcc")
        a("s_waitcnt lgkmcnt(0)")
        if nt == 7:
            for t in range(7): a(MF(RG+36, RG + 4*t, OH + 4*t if t < 5 else RG+28+4*(t-5), t == 0))
    def rp_store(nt, RG):
        for t in range(nt):
            a(f"buffer_store_dwordx4 {R(RG + 4*t, 4)}, v{8 if t < 4 else 12}, s[40:43], s74 offen offset:{1024*(t&3)} sc1")
        if nt == 7:
            a("v_lshlrev_b32 v29, 4, v11"); a("v_lshl_add_u32 v29, v10, 4, v29"); a("v_cndmask_b32 v29, v2, v29, s[66:67]")
            a("s_lshl_b32 s3, s70, 9"); a(f"s_add_u32 s3, s3, {C1P}")
            a(f"buffer_store_dwordx4 {R(RG+36, 4)}, v29, s[40:43], s3 offen sc1")
        else:
            for _ in range(3): a("buffer_store_dword v5, v2, s[40:43], 0 offen")
    def acc(tt, t): return ACC + (tt*5 + t)*4
    def transp(cx):
        L = []
        j = cx % 5; b = vRd if j < 3 else vW; o = (j % 3)*20480 + 1024
        for tt in range(2):
            L.append(lambda tt=tt: a.ds(f"ds_read_b128 {R(xf(tt, 2*cx), 4)}, v{b[0]} offset:{o + 2048*tt}"))
            L.append(lambda tt=tt: a.ds(f"ds_read_b128 {R(xf(tt, 2*cx+1), 4)}, v{b[1]} offset:{o + 2048*tt}", f"T{cx}"))
        return L
    def statm(k):
        L = []
        for tt in range(2):
            L.append(MF(GR + 4*tt, xf(tt, k), xf(tt, k), k == 0)); L.append(MF(RSM + 4*tt, ONES, xf(tt, k), k == 0))
        return L
    def breads1(s):
        j, p = divmod(s, 4); L = []
        for t in range(5):
            L.append(lambda t=t: a.ds(f"ds_read_b128 {R(BF + (s&1)*20 + t*4, 4)}, v{vTB[p]} offset:{(j % 3)*20480 + t*1024}", f"R{s}"))
        if j == 2: L.append(f"v_add_u32 v{vTB[p]}, 61440, v{vTB[p]}")
        return L
    def ldb(j):
        def one(i):
            if i == 0: a(f"s_add_u32 m0, s52, {j*20480}"); a("s_add_u32 s57, s54, m0")
            if i == 4: a(f"s_add_u32 m0, s52, {j*20480 + 4096}")
            a.vmem(f"buffer_load_dwordx4 v{8 if i < 4 else 12}, s[40:43], s57 offen offset:{1024*(i&3)} sc1 lds", f"B{j}")
        return [lambda i=i: one(i) for i in range(5)]
    def ldq():
        def one(i):
            if i == 11: a("s_cmp_eq_u32 s28, 3"); a("s_cbranch_scc1 L_noq")
            a(f"s_mul_i32 s98, s28, 13312"); a(f"s_add_u32 m0, s98, {BQ + i*1024}"); a("s_add_u32 s98, s54, m0")
            a.a(f"buffer_load_dwordx4 v8, s[40:43], s98 offen sc1 lds")
            if i < 11: a.vm.append("BQ")
            if i == 12: a("L_noq:")
        return [lambda i=i: one(i) for i in range(11)] + [lambda: (one(11), one(12))]
    def ldt1():
        a("v_lshlrev_b32 v27, 1, v0"); a("s_add_u32 s56, s30, T1_tab-L_pc"); a("s_addc_u32 s57, s31, 0")
        a.vmem(f"global_load_ushort v{vT1}, v27, s[56:57]", "T1")
    def kv_mf(s):
        mf = []
        for t in range(5):
            b = BF + (s&1)*20 + t*4
            for tt in range(2): mf.append(MF(acc(tt, t), xf(tt, s), b, s == 0))
            if s % 4 == 0: mf.append(MF(CSA, OH + 4*t, b, s == 0 and t == 0))
        return mf
    RS = 96; MS = 104; RT = 112; MT = 114; CSV = 116
    URG = 116
    def flagtouch():
        a(f"s_add_u32 s3, s58, {G_FL}"); a("s_bfm_b64 exec, 8, 0"); a.vmem("buffer_load_dword v4, v3, s[40:43], s3 offen"); a("s_mov_b64 exec, -1")
    for cx in range(NX0, 5):
        for f in ldx(cx): f()
    UPOS = P("UPOS", 0)
    if UPOS == 0:
        for f in (ldt1, flagtouch, unit_issue): f()
    for cx in range(10):
        a.wait(vm=f"X{cx}")
        for f in transp(cx): f()
        if cx:
            a.wait(lg=f"T{cx-1}")
            side = ldx(cx + 4) if cx + 4 < 10 else []
            if cx == UPOS: side = side + [ldt1, flagtouch, unit_issue]
            a.interleave(statm(2*(cx-1)) + statm(2*(cx-1)+1), side)
    a.wait(lg="T9")
    a.stamp("xdone")
    a("s_mov_b32 s78, 0")
    a("L_h0p:")
    a("buffer_load_dword v16, v26, s[40:43], s55 offen sc1"); a("s_waitcnt vmcnt(0)")
    a("v_cmp_ne_u32 vcc, s76, v16")
    a("s_cbranch_vccz L_h0ok")
    a("s_add_u32 s78, s78, 1"); a(f"s_cmp_lt_u32 s78, {POLLMAX}"); a("s_cbranch_scc1 L_h0p")
    a("L_h0ok:")
    a.vm = []
    a.stamp("F0ok")
    for f in ldb(0): f()
    for f in ldb(1): f()
    a.wait(lg="all")
    for x in statm(18) + statm(19): a(x)
    a("s_cmp_eq_u32 s72, 2"); a("s_cbranch_scc1 L_rp_f5")
    rp_fin(7, URG); a("s_branch L_rp_done")
    a("L_rp_f5:"); rp_fin(5, URG)
    a("L_rp_done:")
    for tt in range(2):
        for e in range(4): a(f"v_accvgpr_read_b32 v{160+e}, {R(GR + 4*tt + e)}")
        a(f"v_accvgpr_read_b32 v164, {R(RSM + 4*tt)}")
        for x in ["v_cndmask_b32 v160, v160, v161, s[68:69]", "v_cndmask_b32 v162, v162, v163, s[68:69]", "v_mul_f32 v164, s63, v164",
                  "v_cndmask_b32 v160, v160, v162, s[86:87]", "v_mul_f32 v160, s63, v160", "v_fma_f32 v160, -v164, v164, v160",
                  "v_max_f32 v160, 0, v160", "v_add_f32 v160, s64, v160", "v_rsq_f32 v160, v160", "v_mul_f32 v164, v164, v160"]: a(x)
        a.ds(f"ds_write_b32 v{vSTW}, v160 offset:{64*tt}"); a.ds(f"ds_write_b32 v{vSTW}, v164 offset:{128 + 64*tt}")
    a("v_lshlrev_b32 v28, 4, v11"); a("v_add_u32 v28, s48, v28"); a("v_add_u32 v29, s48, v10")
    for tt in range(2):
        a.ds(f"ds_read_b128 {R(RS + 4*tt, 4)}, v28 offset:{64*tt}"); a.ds(f"ds_read_b128 {R(MS + 4*tt, 4)}, v28 offset:{128 + 64*tt}")
        a.ds(f"ds_read_b32 v{RT + tt}, v29 offset:{64*tt}"); a.ds(f"ds_read_b32 v{MT + tt}, v29 offset:{128 + 64*tt}")
    NBE = P("NBE", 3)
    for j in range(2, NBE):
        for f in ldb(j): f()
    a("s_lshl_b32 s73, s70, 9"); a(f"s_add_u32 s73, s73, {C1P}")
    a("s_cmp_eq_u32 s72, 2"); a("s_cselect_b32 s75, 0x40000000, s74"); a("s_cselect_b32 s73, 0x40000000, s73")
    a("v_lshlrev_b32 v85, 4, v11"); a("v_lshl_add_u32 v85, v10, 4, v85"); a("v_cndmask_b32 v85, v2, v85, s[66:67]")
    def ust(t):
        if t < 7: a.vmem(f"buffer_store_dwordx4 {R(URG + 4*t, 4)}, v{8 if t < 4 else 12}, s[40:43], s{74 if t < 5 else 75} offen offset:{1024*(t&3)} sc1", "US")
        else: a.vmem(f"buffer_store_dwordx4 {R(URG+36, 4)}, v85, s[40:43], s73 offen sc1", "US")
    a("s_and_b32 s59, s27, 7"); a("s_lshl_b32 s59, s59, 9"); a(f"s_add_u32 s59, s59, {FU}")
    a("s_lshr_b32 s3, s27, 3"); a("s_lshl_b32 s3, s3, 4"); a("s_add_u32 s3, s3, s26"); a("s_lshl_b32 s3, s3, 2"); a("s_add_u32 s3, s3, s28"); a("s_lshl_b32 s3, s3, 2"); a("s_add_u32 s70, s3, s59")
    a.wait(vm="B0")
    a("s_barrier")
    a.stamp("bP")
    a("s_mov_b32 s94, s60"); a("s_mov_b32 s95, s60"); a("s_mov_b32 s96, s61"); a("s_mov_b32 s97, s61")
    for f in breads1(0): a.run(f)
    def pretouch():
        if "sc1h" in OPT:
            a(f"s_add_u32 s3, s58, {G_FL}"); a("s_bfm_b64 exec, 4, 0"); a.vmem("buffer_load_dword v4, v3, s[40:43], s3 offen"); a("s_mov_b64 exec, -1")
            return
        a("s_mul_i32 s3, s27, 21056"); a("s_add_u32 s3, s3, s58"); a("s_mul_i32 s56, s28, 5376"); a("s_add_u32 s3, s3, s56")
        a("s_bfm_b64 exec, 42, 0"); a.vmem("buffer_load_dword v4, v3, s[40:43], s3 offen"); a("s_mov_b64 exec, -1")
    FB3 = 156
    a("s_and_b32 s3, s27, 7"); a("s_mul_i32 s3, s3, 20"); a("s_add_u32 s3, s3, s28"); a("s_mul_i32 s65, s3, 5120"); a(f"s_add_u32 s65, s65, {WOP}")
    def ldwo(n, t):
        a.vmem(f"buffer_load_dwordx4 {R(FB3 + (n*5+t)*4, 4)}, v{8 if t < 4 else 12}, s[40:43], s65 offen offset:{1024*(t&3)} sc1", "WO")
        if t == 4: a("s_add_u32 s65, s65, 20480")
    def ldfu():
        a("v_lshlrev_b32 v31, 3, v1")
        a.vmem("buffer_load_dwordx2 v[92:93], v31, s[40:43], s59 offen sc1", "FU")
    def chkfu():
        a.wait(vm="FU")
        a("s_mov_b32 s78, 0")
        a("L_fu:")
        a("v_cmp_ne_u32 vcc, s76, v92"); a("v_cmp_ne_u32 s[84:85], s76, v93")
        a("s_or_b64 vcc, vcc, s[84:85]"); a("s_cbranch_scc0 L_fu_ok")
        a("s_add_u32 s78, s78, 1"); a(f"s_cmp_ge_u32 s78, {POLLMAX}"); a("s_cbranch_scc1 L_fu_ok")
        a("buffer_load_dwordx2 v[92:93], v31, s[40:43], s59 offen sc1"); a("s_waitcnt vmcnt(0)")
        a("s_branch L_fu")
        a("L_fu_ok:")
    q_ = ldq(); mix = []
    if "usfirst" in OPT:
        mix = [lambda i=i: ust(i) for i in range(8)] + q_
    else:
        for i in range(12):
            mix.append(q_[i])
            if i < 8: mix.append(lambda i=i: ust(i))
    ldlist = sum([ldb(j) for j in range(NBE, 5)], [])
    MS0 = P("MS0", 6); MR = P("MR", 1)
    a.bgq = mix
    SFU = P("SFU", 18)
    LEND = P("LEND", 16)
    CT = 116
    for s in range(20):
        j, p = divmod(s, 4)
        if p == 3 and j < 4:
            a.wait(vm=f"B{j+1}"); a("s_barrier")
        if s == SFU:
            a.wait(vm="US")
            a("s_mov_b64 exec, 1"); a.vmem("buffer_store_dword v6, v5, s[40:43], s70 offen sc1"); a("s_mov_b64 exec, -1")
        if s == 18:
            a.wait(lg="CSW"); a("s_barrier")
        a.wait(lg=f"R{s}")
        mf = kv_mf(s)
        front = breads1(s+1) if s < 19 else []
        side = []
        if s == 17:
            side += ["s_lshl_b32 s3, s28, 9", f"s_add_u32 s3, s3, {CSX}", "v_add_u32 v27, s3, v8"]
            side.append(lambda: (a("s_bfm_b64 exec, 32, 0"), a.ds(f"ds_write_b128 v27, {R(CSA, 4)}", "CSW"), a("s_mov_b64 exec, -1")))
        if s == 18:
            assert a.vm.count("US") == 8
            side += ["v_lshlrev_b32 v27, 2, v10", f"v_add_u32 v27, {CSX}, v27"]
            for w in range(4):
                side.append(lambda w=w: a.ds(f"ds_read_b128 {R(CT + 4*w, 4)}, v27 offset:{512*w}"))
                side.append(lambda w=w: a.ds(f"ds_read_b32 v{CT + 16 + w}, v27 offset:{512*w + 256}", "CSR"))
        if s == 19:
            side.append(lambda: a.wait(lg="CSR"))
            for e in range(4):
                side += [f"v_add_f32 v{CT+e}, v{CT+e}, v{CT+4+e}", f"v_add_f32 v{CT+8+e}, v{CT+8+e}, v{CT+12+e}", f"v_add_f32 v{CT+20+e}, v{CT+e}, v{CT+8+e}"]
            side += [f"v_add_f32 v{CT+16}, v{CT+16}, v{CT+17}", f"v_add_f32 v{CT+18}, v{CT+18}, v{CT+19}", f"v_add_f32 v{CT+24}, v{CT+16}, v{CT+18}"]
        side += ldlist[:3]; ldlist = ldlist[3:]
        if s >= MS0: side = [lambda: a.bg(1)]*MR + side
        a.interleave(mf, side, front)
    CSV = CT + 20
    a.stamp("kvend")
    if "plainh" in OPT:
        a("s_mul_i32 s3, s27, 21056"); a("s_add_u32 s3, s3, s58"); a("s_mul_i32 s56, s28, 5376"); a("s_add_u32 s3, s3, s56")
        a("s_bfm_b64 exec, 42, 0"); a.vmem("buffer_load_dword v4, v3, s[40:43], s3 offen"); a("s_mov_b64 exec, -1")
    OP = 116; TP = 72
    FUC = P("FUC", 14)
    if FUC < 4: ldfu()
    KBG = P("KBG", 1)
    for t in range(5):
        for tt in range(2):
            b_ = acc(tt, t)
            cp = CSV + t; cpe = cp & ~1; sel = cp & 1
            for h in range(2):
                x = b_ + 2*h
                a(f"v_pk_mul_f32 v[{TP+2*h}:{TP+2*h+1}], v[{MS+4*tt+2*h}:{MS+4*tt+2*h+1}], v[{cpe}:{cpe+1}] op_sel:[0,{sel}] op_sel_hi:[1,{sel}]")
            for h in range(2):
                x = b_ + 2*h
                a(f"v_pk_fma_f32 v[{x}:{x+1}], v[{x}:{x+1}], v[{RS+4*tt+2*h}:{RS+4*tt+2*h+1}], v[{TP+2*h}:{TP+2*h+1}] neg_lo:[0,0,1] neg_hi:[0,0,1]")
            if t <= 2: phi4(a, b_, TP, sel_mask=("s[66:67]" if t == 2 else None))
            for h in range(2):
                a(f"v_cvt_pk_bf16_f32 v{OP + 4*t + 2*tt + h}, v{acc(tt, t) + 2*h}, v{acc(tt, t) + 2*h + 1}")
            if t*2 + tt == SFU - 20:
                a.wait(vm="US")
                a("s_mov_b64 exec, 1"); a.vmem("buffer_store_dword v6, v5, s[40:43], s70 offen sc1"); a("s_mov_b64 exec, -1")
            if t*2 + tt == FUC - 4: ldfu()
            if t*2 + tt == FUC: chkfu(); a.bgq += [lambda n=n, t=t: ldwo(n, t) for n in range(5) for t in range(5)]
            a.bg(KBG)
    while "BQdone" not in a.vm and a.vm.count("BQ") < 11 or (a.bgq and a.bgq[0] is q_[11]): a.bg(1)
    KVD = 32
    for p, (ta, tb) in enumerate(PAIRS):
        a(MF(KVD + 4*p, OP + 4*ta, ONES if tb < 0 else OP + 4*tb, True))
    a("s_mul_i32 s3, s28, 10240"); a("v_add_u32 v27, s3, v8")
    for p in range(10): a(f"ds_write_b128 v27, {R(KVD + 4*p, 4)} offset:{1024*p}")
    a("s_lshl_b32 s3, s27, 4"); a("s_add_u32 s3, s3, s26"); a("s_lshl_b32 s3, s3, 12"); a(f"s_add_u32 s3, s3, {PART}")
    a("v_cmp_gt_u32 vcc, 216, v0"); a("v_cndmask_b32 v9, v2, v9, vcc")
    a.wait(lg="all")
    a("s_barrier")
    for w in range(4): a(f"ds_read_b128 {R(56 + 4*w, 4)}, v{vT1} offset:{10240*w}")
    a("s_waitcnt lgkmcnt(0)")
    for e in (0, 2):
        a(f"v_pk_add_f32 v[{56+e}:{57+e}], v[{56+e}:{57+e}], v[{60+e}:{61+e}]"); a(f"v_pk_add_f32 v[{64+e}:{65+e}], v[{64+e}:{65+e}], v[{68+e}:{69+e}]")
    for e in (0, 2): a(f"v_pk_add_f32 v[{56+e}:{57+e}], v[{56+e}:{57+e}], v[{64+e}:{65+e}]")
    if "p16" in OPT:
        a("v_cvt_pk_bf16_f32 v56, v56, v57"); a("v_cvt_pk_bf16_f32 v57, v58, v59"); a("v_lshrrev_b32 v9, 1, v9")
        a.vmem(f"buffer_store_dwordx2 v[56:57], v9, s[40:43], s3 offen sc1", "PST")
    else:
        a.vmem(f"buffer_store_dwordx4 v[56:59], v9, s[40:43], s3 offen sc1", "PST")
    ldfu()
    a("s_lshr_b32 s48, s27, 3"); a("s_and_b32 s49, s27, 7")
    a("v_lshrrev_b32 v13, 1, v11"); a("v_lshlrev_b32 v13, 8, v13"); a("v_lshl_add_u32 v13, v10, 2, v13")
    a("v_and_b32 v28, 1, v11"); a("v_lshl_add_u32 v13, v28, 3, v13")
    a("v_mul_u32_u24 v14, 320, v10"); a("v_lshl_add_u32 v15, v11, 3, v14"); a("v_lshl_add_u32 v14, v11, 4, v14")
    a("s_lshl_b32 s50, s48, 2"); a("s_add_u32 s50, s50, s28")
    a("s_lshl_b32 s3, s26, 3"); a("s_add_u32 s3, s3, s50"); a("s_mul_i32 s51, s3, 20480"); a("s_mul_i32 s3, s49, 160"); a("s_add_u32 s51, s51, s3")
    a("s_mul_i32 s53, s27, 27"); a("s_lshr_b32 s53, s53, 2")
    a("s_mul_i32 s55, s27, 143360"); a(f"s_add_u32 s55, s55, {W1P}")
    srd(a, 36, 14, 3456)
    a("v_lshlrev_b32 v23, 4, v11"); a("v_lshl_add_u32 v26, v10, 4, v23")
    a("s_lshl_b32 s62, s27, 2"); a("s_add_u32 s62, s62, s28"); a("s_lshl_b32 s62, s62, 7")
    a("s_lshl_b32 s56, s26, 7"); a("s_add_u32 s56, s56, 8192")
    a("v_mov_b32 v27, s62"); a("v_mov_b32 v28, s56"); a("v_cndmask_b32 v17, v27, v28, s[88:89]"); a("v_add_u32 v17, v17, v10")
    a("s_lshl_b32 s3, s26, 2"); a("s_add_u32 s3, s3, s62"); a(f"s_add_u32 s3, s3, {F1}")
    a.wait(vm="PST")
    a("s_mov_b64 exec, 1"); a.vmem("buffer_store_dword v6, v5, s[40:43], s3 offen sc1"); a("s_mov_b64 exec, -1")
    a("s_barrier")
    a.stamp("b7")
    chkfu(); a.bgq += [lambda n=n, t=t: ldwo(n, t) for n in range(5) for t in range(5)]
    FB3 = 156; RES = 116; C1R = 126; T2R = 146
    B1A = A0 + 204
    W1T = A0 + 100
    def w1dma(i):
        a(f"s_mul_i32 s98, s28, {24*1024}"); a(f"s_add_u32 m0, s98, {i*1024}"); a("s_add_u32 s98, s55, m0")
        a.vmem(f"buffer_load_dwordx4 v8, s[40:43], s98 offen sc1 lds", "W1")
    def w1tail(i):
        a(f"s_mul_i32 s98, s28, {11*1024}"); a(f"s_add_u32 s98, s98, {(96+i)*1024}"); a("s_add_u32 s98, s55, s98")
        a.vmem(f"buffer_load_dwordx4 {R(W1T + 4*i, 4)}, v8, s[40:43], s98 offen sc1", "W1")
    def ldsmall():
        a("v_lshlrev_b32 v31, 5, v1"); a("s_add_u32 s98, s30, T2_tab-L_pc"); a("s_addc_u32 s99, s31, 0")
        a.vmem(f"global_load_dwordx4 {R(T2R, 4)}, v31, s[98:99]"); a.vmem(f"global_load_dwordx2 {R(T2R+4, 2)}, v31, s[98:99] offset:16")
    def ldres(q):
        if q == 0: a.vmem(f"buffer_load_dwordx4 {R(RES, 4)}, v14, s[32:35], s51 offen")
        if q == 1: a.vmem(f"buffer_load_dwordx4 {R(RES+4, 4)}, v14, s[32:35], s51 offen offset:64")
        if q == 2: a.vmem(f"buffer_load_dwordx2 {R(RES+8, 2)}, v15, s[32:35], s51 offen offset:128", "RES")
    def ldb1():
        a("v_lshlrev_b32 v31, 3, v11"); a("s_lshl_b32 s98, s53, 5")
        for p in range(3): a.vmem(f"buffer_load_dwordx4 {R(B1A + 4*p, 4)}, v23, s[36:39], s98 offen offset:{64*p}")
        a.vmem(f"buffer_load_dwordx2 {R(B1A + 12, 2)}, v31, s[36:39], s98 offen offset:192")
    def ldc1():
        a("s_mul_i32 s98, s27, 20"); a("s_mul_i32 s99, s28, 5"); a("s_add_u32 s98, s98, s99"); a("s_lshl_b32 s98, s98, 9"); a(f"s_add_u32 s98, s98, {C1P}")
        a("s_mov_b64 exec, s[66:67]")
        for n in range(5): a.vmem(f"buffer_load_dwordx4 {R(C1R + 4*n, 4)}, v26, s[40:43], s98 offen offset:{512*n} sc1", "C1")
        a("s_mov_b64 exec, -1")
    def hidtouch():
        a("s_mul_i32 s98, s27, 27648"); a("s_add_u32 s98, s98, s58"); a(f"s_add_u32 s98, s98, {G_HID}"); a("s_mul_i32 s99, s28, 6912"); a("s_add_u32 s98, s98, s99")
        a("s_bfm_b64 exec, 54, 0"); a.vmem("buffer_load_dword v4, v3, s[40:43], s98 offen"); a("s_mov_b64 exec, -1")
    ldsmall()
    a.bgq += [lambda q=q: ldres(q) for q in range(3)] + [ldb1, ldc1] + [lambda i=i: w1dma(i) for i in range(24)]
    QA = 32
    def qreads(s):
        j, p = divmod(s, 4)
        return [lambda t=t: a.ds(f"ds_read_b128 {R(BF + (s%3)*12 + t*4, 4)}, v{vTQ[p] if t < 2 else vTQ2[p]} offset:{j*10240 + (t&1)*1024}", f"Q{s}") for t in range(3)]
    for f in qreads(0) + qreads(1): f()
    a(f"s_mov_b32 s56, {F1}")
    QSTOP = P("QSTOP", 16)
    for s in range(20):
        j, p = divmod(s, 4)
        if s == 18: a.wait(lg="CQW"); a("s_barrier")
        a.wait(lg=f"Q{s}")
        mf = []
        for t in range(3):
            b = BF + (s%3)*12 + t*4
            for tt in range(2): mf.append(MF(QA + (tt*3+t)*4, b, xf(tt, s), s == 0))
            if p == 0: mf.append(MF(CSQ, b, OH + 4*t, s == 0 and t == 0))
        front = qreads(s+2) if s < 18 else []
        side = []
        if s < QSTOP: side += [lambda: a.bg(1)]*P("QBG", 1)
        if s == 17:
            side.append(lambda: a.vmem("buffer_load_dword v16, v17, s[40:43], s56 offen sc1", "POLL1"))
            side += ["s_lshl_b32 s3, s28, 9", f"s_add_u32 s3, s3, {CSX}", "v_add_u32 v27, s3, v26"]
            side.append(lambda: (a("s_mov_b64 exec, s[66:67]"), a.ds(f"ds_write_b128 v27, {R(CSQ, 4)}", "CQW"), a("s_mov_b64 exec, -1")))
        if s == 18:
            side += [f"v_add_u32 v30, {CSX}, v23"]
            for w, base in ((0, 56), (1, 68), (2, 96)):
                for t in range(3): side.append(lambda w=w, t=t, base=base: a.ds(f"ds_read_b128 {R(base + 4*t, 4)}, v30 offset:{512*w + 64*t}", "CQR"))
        if s == 19:
            side.append(lambda: a.wait(lg="CQR"))
            for x in range(12): side.append(f"v_add_f32 v{56+x}, v{56+x}, v{68+x}")
            for t in range(3): side.append(lambda t=t: a.ds(f"ds_read_b128 {R(68 + 4*t, 4)}, v30 offset:{1536 + 64*t}", "CQR"))
        a.interleave(mf, side, front)
    a.stamp("qend")
    a.wait(vm="POLL1")
    a("s_mov_b32 s78, 0")
    a("L_h1p:")
    a("v_and_b32 v28, 0xfffffff8, v16"); a("v_cmp_ne_u32 vcc, s76, v28")
    a("s_cbranch_vccz L_h1ok")
    a("s_add_u32 s78, s78, 1"); a(f"s_cmp_ge_u32 s78, {POLLMAX}"); a("s_cbranch_scc1 L_h1ok")
    a("buffer_load_dword v16, v17, s[40:43], s56 offen sc1"); a("s_waitcnt vmcnt(0)")
    a("s_branch L_h1p")
    a("L_h1ok:")
    a.stamp("h1ok")
    a.vm = []
    a("v_cmp_ne_u32 vcc, s77, v16"); a("s_and_b64 vcc, vcc, s[88:89]"); a("s_cselect_b32 s79, 0, 1")
    if os.environ.get("FORCESLOW"): a("s_mov_b32 s79, 0")
    P0 = A0
    a("s_lshl_b32 s3, s27, 16"); a(f"s_add_u32 s3, s3, {PART}")
    for r_ in range(16):
        if "p16" in OPT: a.vmem(f"buffer_load_dwordx2 {R(P0 + 4*r_, 2)}, v9, s[40:43], s3 offen sc1", f"P{r_}")
        else: a.vmem(f"buffer_load_dwordx4 {R(P0 + 4*r_, 4)}, v9, s[40:43], s3 offen sc1", f"P{r_}")
        a("s_add_u32 s3, s3, 4096")
    a.bgq += [lambda i=i: w1tail(i) for i in range(11)]
    for x in range(0, 12, 2): a(f"v_pk_add_f32 v[{56+x}:{57+x}], v[{56+x}:{57+x}], v[{96+x}:{97+x}]")
    a.wait(lg="all")
    for x in range(0, 12, 2): a(f"v_pk_add_f32 v[{56+x}:{57+x}], v[{56+x}:{57+x}], v[{68+x}:{69+x}]")
    PQR = 96
    EBG = P("EBG", 2)
    for tt in range(2):
        for t in range(3):
            b_ = QA + (tt*3+t)*4
            for h in range(2):
                a(f"v_pk_mul_f32 v[{TP+2*h}:{TP+2*h+1}], v[{56+4*t+2*h}:{57+4*t+2*h}], v[{MT}:{MT+1}] op_sel:[0,{tt}] op_sel_hi:[1,{tt}]")
            for h in range(2):
                x = b_ + 2*h
                a(f"v_pk_fma_f32 v[{x}:{x+1}], v[{x}:{x+1}], v[{RT}:{RT+1}], v[{TP+2*h}:{TP+2*h+1}] op_sel:[0,{tt},0] op_sel_hi:[1,{tt},1] neg_lo:[0,0,1] neg_hi:[0,0,1]")
            phi4(a, b_, TP)
            for h in range(2):
                d = f"v{PQR + tt*6 + t*2 + h}"
                a(f"v_cvt_pk_bf16_f32 {d}, v{QA + (tt*3+t)*4 + 2*h}, v{QA + (tt*3+t)*4 + 2*h + 1}")
                if t == 2: a(f"v_cndmask_b32 {d}, 0, {d}, s[90:91]")
            a.bg(EBG)
    OSC = SCR
    TA = 56
    for s_ in range(12):
        src = T2R + s_//2
        if s_ & 1: a(f"v_lshrrev_b32 v{TA+s_}, 16, v{src}")
        else: a(f"v_and_b32 v{TA+s_}, 0xffff, v{src}")
        a(f"v_add_u32 v{TA+s_}, {OSC}, v{TA+s_}")
    for r_ in range(16):
        if r_ % 4 == 0: a.wait(vm=f"P{r_+3}")
        if "p16" in OPT:
            b_ = 32 if r_ == 0 else 36
            for e in range(2): a(f"v_accvgpr_read_b32 v{40+e}, {R(P0+4*r_+e)}")
            for e in range(2): a(f"v_lshlrev_b32 v{b_+2*e}, 16, v{40+e}"); a(f"v_and_b32 v{b_+2*e+1}, 0xffff0000, v{40+e}")
        else:
            for e in range(4): a(f"v_accvgpr_read_b32 v{(32 if r_ == 0 else 36)+e}, {R(P0+4*r_+e)}")
        if r_:
            for e in (0, 2): a(f"v_pk_add_f32 v[{32+e}:{33+e}], v[{32+e}:{33+e}], v[{36+e}:{37+e}]")
        if r_ % 4 == 3: a.bg(EBG)
    a("v_cvt_pk_bf16_f32 v18, v32, v33"); a("v_cvt_pk_bf16_f32 v19, v34, v35")
    a("v_cmp_gt_u32 vcc, 210, v0")
    a("v_cndmask_b32 v18, 0, v18, vcc"); a("v_cndmask_b32 v19, 0, v19, vcc")
    a("v_lshlrev_b32 v27, 3, v0"); a(f"v_add_u32 v27, {OSC}, v27")
    a("ds_write_b64 v27, v[18:19]")
    a("s_waitcnt lgkmcnt(0)")
    a("s_barrier")
    a.stamp("b9")
    KF = A0 + 64
    for E in range(4):
        for ta in range(3): a(f"ds_read_b64 {R(KF + 8*E + 2*ta, 2)}, v{TA + 3*E + ta}")
    a("s_mul_i32 s3, s28, 40960"); a("s_mul_i32 s56, s27, 1280"); a("s_add_u32 s3, s3, s56"); a("s_add_u32 s3, s3, s58")
    a("v_lshlrev_b32 v27, 2, v10"); a("v_lshl_add_u32 v27, v11, 3, v27")
    a("v_cndmask_b32 v27, v2, v27, s[90:91]")
    a("s_waitcnt lgkmcnt(0)")
    D = 32
    for tt in range(2):
        for E in (3, 0, 1, 2):
            d = R(D + (tt*4+E)*4, 4)
            a(f"v_mfma_f32_16x16x32_bf16 {d}, {R(KF + 8*E, 4)}, {R(PQR + 6*tt, 4)}, 0")
    for tt in range(2):
        for E in (3, 0, 1, 2):
            d = R(D + (tt*4+E)*4, 4)
            a(f"v_mfma_f32_16x16x16_bf16 {d}, {R(KF + 8*E + 4, 2)}, {R(PQR + 6*tt + 4, 2)}, {d}")
    for tt in range(2):
        z = D + (tt*4+3)*4
        a(f"v_add_f32 v20, s61, v{z}"); a(f"v_add_f32 v21, s61, v{z+1}")
        a("v_rcp_f32 v20, v20"); a("v_rcp_f32 v21, v21")
        a("v_cndmask_b32 v22, v21, v20, s[92:93]"); a("v_cndmask_b32 v28, v21, v20, s[90:91]")
        ob = 64 + 8*tt
        for E, rc in ((0, 22), (1, 28), (2, 21)):
            d = D + (tt*4+E)*4
            for e in range(4): a(f"v_mul_f32 v{d+e}, v{d+e}, v{rc}")
            a(f"v_cvt_pk_bf16_f32 v{ob + 2*E}, v{d}, v{d+1}"); a(f"v_cvt_pk_bf16_f32 v{ob + 2*E + 1}, v{d+2}, v{d+3}")
        a.vmem(f"buffer_store_dwordx4 {R(ob, 4)}, v8, s[40:43], s3 offen{HS}", "ST")
        a.vmem(f"buffer_store_dwordx2 {R(ob + 4, 2)}, v27, s[40:43], s3 offen offset:1024{HS}", "ST")
        a("s_add_u32 s3, s3, 20480")

    def hop(n, before, after_pub, post=0, touch=None, post2=0):
        before()
        a(f"s_add_u32 s59, s58, {G_FL + 128*n}")
        a("s_lshl_b32 s3, s27, 2"); a("s_add_u32 s3, s3, s59")
        a.bg(post)
        a.wait(vm="ST")
        if touch and "notouch" not in OPT: touch()
        a("s_barrier")
        a.stamp(f"hop{n}a")
        a("s_cmp_lg_u32 s28, 0"); a(f"s_cbranch_scc1 L_g{n}np")
        a("s_mov_b64 exec, 1")
        a("s_cmp_eq_u32 s79, 0"); a(f"s_cbranch_scc1 L_g{n}slow")
        a("buffer_store_dword v6, v5, s[40:43], s3 offen")
        a(f"s_branch L_g{n}pd")
        a(f"L_g{n}slow:")
        if FENCE: a("buffer_wbl2 sc1"); a("s_waitcnt vmcnt(0)")
        a("buffer_store_dword v6, v5, s[40:43], s3 offen sc1")
        a(f"L_g{n}pd:")
        a("s_mov_b64 exec, -1")
        a(f"L_g{n}np:")
        after_pub()
        a.bg(post2)
        a("s_cmp_lg_u32 s28, 0"); a(f"s_cbranch_scc1 L_g{n}j")
        a("s_mov_b32 s78, 0")
        a(f"L_g{n}p:")
        a("buffer_load_dword v27, v10, s[40:43], s59 offen sc1")
        a("s_add_u32 s78, s78, 1")
        a("s_waitcnt vmcnt(0)")
        a("v_cmp_ne_u32 vcc, s76, v27")
        a(f"s_cmp_ge_u32 s78, {POLLMAX}"); a(f"s_cbranch_scc1 L_g{n}x")
        a(f"s_cbranch_vccnz L_g{n}p")
        a(f"L_g{n}x:")
        if FENCE:
            a("s_cmp_lg_u32 s79, 0"); a(f"s_cbranch_scc1 L_g{n}j")
            a("buffer_inv sc1"); a("s_waitcnt vmcnt(0)")
        a(f"L_g{n}j:")
        a("s_barrier")
        a.stamp(f"hop{n}b")
    def a_off(NK, goff):
        for m in range(4):
            a(f"s_add_u32 s3, s28, {m}"); a("s_and_b32 s3, s3, 3"); a("s_lshl_b32 s57, s48, 2"); a("s_add_u32 s3, s3, s57")
            a(f"s_mul_i32 s3, s3, {NK}"); a("s_add_u32 s3, s3, s28"); a("s_lshl_b32 s3, s3, 10"); a("s_add_u32 s3, s3, s58"); a(f"s_add_u32 s{80+m}, s3, {goff}")
    def ctouch(lab, nl):
        def f():
            a("s_lshl_b32 s98, s27, 2"); a("s_add_u32 s98, s98, s28"); a(f"s_mul_i32 s98, s98, {128*nl}"); a(f"s_add_u32 s98, s98, {lab}-L_pc")
            a("v_add_u32 v31, s98, v3"); a(f"s_bfm_b64 exec, {nl}, 0")
            a.vmem("global_load_dword v4, v31, s[30:31]"); a("s_mov_b64 exec, -1")
        return f
    if "noct" not in OPT: a.bgq.insert(0, ctouch("L_cS4", 2))
    def flush_wo():
        while any(True for _ in [0]) and a.bgq and len(a.bgq) > 24 + 11: a.bg(1)
    def bef0():
        a_off(20, G_O)
        a("s_mul_i32 s99, s28, 40960"); a("s_mul_i32 s56, s27, 1280"); a("s_add_u32 s99, s99, s56"); a("s_add_u32 s99, s99, s58")
        a("v_mul_u32_u24 v28, 20480, v11"); a("v_lshl_add_u32 v28, v10, 5, v28")
    def tch0():
        a("s_mov_b64 exec, 0x03ff03ff"); a.vmem("buffer_load_dword v4, v28, s[40:43], s99 offen sc1"); a("s_mov_b64 exec, -1")
    hop(0, bef0, lambda: None, post=0, touch=tch0, post2=P("POST0", 10))
    flush_wo()
    ACC = 32 ; FA3 = A0
    for n in range(5):
        for m in range(4):
            a.vmem(f"buffer_load_dwordx4 {R(FA3 + (n*4+m)*4, 4)}, v8, s[40:43], s{80+m} offen sc1", f"A{n}")
            a(f"s_add_u32 s{80+m}, s{80+m}, 4096")
    if "sc1hid" not in OPT: a.bgq.insert(0, hidtouch)
    RED = 102400
    def red_addr():
        for m in range(1, 4):
            a(f"s_add_u32 s3, s28, {m}"); a("s_and_b32 s3, s3, 3"); a("s_mul_i32 s3, s3, 15360"); a(f"s_add_u32 s3, s3, {RED}")
            a(f"v_add_u32 v{16+m}, s3, v8")
        a("s_mul_i32 s3, s28, 15360"); a(f"s_add_u32 s3, s3, {RED}"); a("v_add_u32 v16, s3, v8")
    def init_acc(srcs):
        for t in range(5):
            for e in range(4):
                for q, src0 in enumerate(srcs):
                    src = src0 + 2*t + (e >> 1); d = ACC+4*t+e if q == 0 else 27
                    if e & 1: a(f"v_and_b32 v{d}, 0xffff0000, v{src}")
                    else: a(f"v_lshlrev_b32 v{d}, 16, v{src}")
                    if q: a(f"v_add_f32 v{ACC+4*t+e}, v{ACC+4*t+e}, v27")
    def last_step(mfn):
        order = [(m, t) for m in (1, 2, 3, 0) for t in range(5)]
        for i, (m, t) in enumerate(order):
            a(mfn(m, t))
            if i >= 5:
                m2, t2 = order[i-5]
                a(f"ds_write_b128 v{16+m2}, {R(ACC + (m2*5+t2)*4, 4)} offset:{(m2-1)*5120 + t2*1024}")
    red_addr()
    if "RES" in a.vm: a.wait(vm="RES")
    init_acc([RES])
    S3BG = P("S3BG", 3)
    for n in range(5):
        a.wait(vm=f"A{n}")
        if n == 4:
            last_step(lambda m, t: MF(ACC + (m*5+t)*4, FB3 + (n*5+t)*4, FA3 + (n*4+m)*4, False)); a.bg(S3BG)
        else:
            mf = [MF(ACC + (m*5+t)*4, FB3 + (n*5+t)*4, FA3 + (n*4+m)*4, n == 0 and m > 0) for m in range(4) for t in range(5)]
            a.interleave(mf, [lambda: a.bg(1)]*S3BG)
    a.stamp("s3end")
    a("L_cS4:")
    if "plainhid" in OPT and P("HTP", 0) == 0: hidtouch()
    HF = A0; BF = A0 + 160
    NA = P("NA", 4); BS = 4*max(NA, 7 - NA)
    if NA == 4:
        slots = [156 + 4*i for i in range(16)] + [A0 + 192 + 4*i for i in range(3)] + [A0 + 220 + 4*i for i in range(9)] + [HF + 4*i for i in range(40)] + [BF + 4*i for i in range(2)]
        NEARLY = 28
        arA = [A0 + 168 + 4*i for i in range(6)] + [A0 + 204 + 4*i for i in range(4)]
    elif NA == 7:
        for x in range(14): a(f"v_accvgpr_mov_b32 {R(A0 + 240 + x)}, {R(B1A + x)}")
        B1A = A0 + 240
        slots = [156 + 4*i for i in range(16)] + [A0 + 216 + 4*i for i in range(6)] + [HF + 4*i for i in range(40)] + [BF + 4*i for i in range(8)]
        NEARLY = 22
        arA = [A0 + 192 + 4*i for i in range(6)] + [A0 + 240 + 4*i for i in range(4)]
    else:
        for x in range(14): a(f"v_accvgpr_mov_b32 {R(A0 + 240 + x)}, {R(B1A + x)}")
        B1A = A0 + 240
        slots = [156 + 4*i for i in range(16)] + [A0 + 208 + 4*i for i in range(8)] + [HF + 4*i for i in range(40)] + [BF + 4*i for i in range(6)]
        NEARLY = 24
        arA = [A0 + 184 + 4*i for i in range(6)] + [A0 + 240 + 4*i for i in range(4)]
    def fb(n, t): return slots[n*5 + t]
    a("s_mul_i32 s3, s49, 54"); a("s_add_u32 s3, s3, s28"); a("s_mul_i32 s54, s3, 5120"); a(f"s_add_u32 s54, s54, {W2P}")
    def ldw2(n, t):
        if n == 13 and t == 0:
            a("s_cmp_ge_u32 s28, 2"); a("s_cselect_b32 s98, 0x40000000, 0"); a("s_add_u32 s54, s54, s98")
        a.vmem(f"buffer_load_dwordx4 {R(fb(n, t), 4)}, v{8 if t < 4 else 12}, s[40:43], s54 offen offset:{1024*(t&3)} sc1", f"W2_{n}")
        if t == 4: a("s_add_u32 s54, s54, 20480")
    w2q = [(n, t) for n in range(14) for t in range(5)]
    nw1left = len(a.bgq)
    def w2bg():
        ldw2(*w2q.pop(0))
    a.bgq += [w2bg]*NEARLY
    def reduce_epi(which, BIA=None, nbg=0):
        a.bg(2*nbg)
        a("s_waitcnt lgkmcnt(0)")
        a("s_barrier")
        for t in range(5):
            for m in range(1, 4): a(f"ds_read_b128 {R(ACC + (m*5+t)*4, 4)}, v16 offset:{(m-1)*5120 + t*1024}")
        for t in range(5):
            a(f"s_waitcnt lgkmcnt({12 - 3*t})")
            for e in (0, 2):
                x0 = ACC + 4*t + e
                a(f"v_pk_add_f32 v[{x0+20}:{x0+21}], v[{x0+20}:{x0+21}], v[{x0+40}:{x0+41}]"); a(f"v_pk_add_f32 v[{x0}:{x0+1}], v[{x0}:{x0+1}], v[{x0+60}:{x0+61}]")
            for e in (0, 2):
                x0 = ACC + 4*t + e
                a(f"v_pk_add_f32 v[{x0}:{x0+1}], v[{x0}:{x0+1}], v[{x0+20}:{x0+21}]")
            for h in range(2): a(f"v_cvt_pk_bf16_f32 v{RES+2*t+h}, v{ACC+4*t+2*h}, v{ACC+4*t+2*h+1}")
            if which == 3:
                if t == 1: a.vmem(f"buffer_store_dwordx4 {R(RES, 4)}, v8, s[40:43], s57 offen{HS}")
                if t == 3: a.vmem(f"buffer_store_dwordx4 {R(RES+4, 4)}, v8, s[40:43], s57 offen offset:1024{HS}")
                if t == 4: a.vmem(f"buffer_store_dwordx2 {R(RES+8, 2)}, v13, s[40:43], s57 offen offset:2048{HS}")
    a("s_mul_i32 s57, s50, 20480"); a("s_mul_i32 s3, s49, 2560"); a("s_add_u32 s57, s57, s3"); a("s_add_u32 s57, s57, s58"); a(f"s_add_u32 s57, s57, {G_H}")
    reduce_epi(3, nbg=P("R3BG", 3))
    a(f"v_pk_add_f32 v[28:29], v[{ACC}:{ACC+1}], v[{ACC+2}:{ACC+3}]"); a(f"v_pk_mul_f32 v[30:31], v[{ACC}:{ACC+1}], v[{ACC}:{ACC+1}]"); a(f"v_pk_fma_f32 v[30:31], v[{ACC+2}:{ACC+3}], v[{ACC+2}:{ACC+3}], v[30:31]")
    for x in range(4, 20, 2):
        a(f"v_pk_add_f32 v[28:29], v[28:29], v[{ACC+x}:{ACC+x+1}]"); a(f"v_pk_fma_f32 v[30:31], v[{ACC+x}:{ACC+x+1}], v[{ACC+x}:{ACC+x+1}], v[30:31]")
    a("v_add_f32 v20, v28, v29"); a("v_add_f32 v21, v30, v31")
    def red_g(regs, tmp):
        for r_ in regs:
            a(f"v_mov_b32 {tmp}, {r_}"); a(f"v_permlane32_swap_b32 {r_}, {tmp}"); a(f"v_add_f32 {r_}, {r_}, {tmp}")
            a(f"v_mov_b32 {tmp}, {r_}"); a(f"v_permlane16_swap_b32 {r_}, {tmp}"); a(f"v_add_f32 {r_}, {r_}, {tmp}")
    red_g(["v20", "v21"], "v22")
    a("v_lshlrev_b32 v22, 1, v10")
    a("s_lshl_b32 s57, s50, 10"); a("s_lshl_b32 s3, s49, 7"); a("s_add_u32 s57, s57, s3"); a("s_add_u32 s57, s57, s58"); a(f"s_add_u32 s57, s57, {G_ST}")
    a.vmem(f"buffer_store_dwordx2 v[20:21], v22, s[40:43], s57 offen{HS}", "ST")
    CS = 128; CSL = 144384
    def bef3():
        a("s_mul_i32 s3, s28, 40960"); a("s_add_u32 s3, s3, s58"); a(f"s_add_u32 s80, s3, {G_H}"); a("s_add_u32 s81, s80, 20480")
        a("s_lshl_b32 s82, s28, 11"); a("s_add_u32 s82, s82, s58"); a(f"s_add_u32 s82, s82, {G_ST}")
        a("v_lshlrev_b32 v19, 8, v11"); a("v_lshl_add_u32 v19, v10, 1, v19")
        a("v_add_u32 v16, 57344, v8"); a("v_add_u32 v17, 114688, v8")
        a(f"s_mul_i32 s3, s28, {11*1024}"); a(f"s_add_u32 s3, s3, {96*1024}"); a("v_add_u32 v18, s3, v8")
        for e in range(4):
            a(f"v_add_f32 v{C1R+e}, v{C1R+e}, v{C1R+4+e}"); a(f"v_add_f32 v{C1R+8+e}, v{C1R+8+e}, v{C1R+12+e}")
            a(f"v_add_f32 v{C1R+e}, v{C1R+e}, v{C1R+16+e}"); a(f"v_add_f32 v{C1R+e}, v{C1R+e}, v{C1R+8+e}")
        a("s_lshl_b32 s3, s28, 9"); a(f"s_add_u32 s3, s3, {CSL}"); a("v_add_u32 v29, s3, v26")
    def aft3():
        if "W1" in a.vm: a.wait(vm="W1")
        for i in range(11): a(f"ds_write_b128 v18, {R(W1T + 4*i, 4)} offset:{1024*i}")
        a("s_mov_b64 exec, s[66:67]"); a(f"ds_write_b128 v29, {R(C1R, 4)}"); a("s_mov_b64 exec, -1")
        a("s_waitcnt lgkmcnt(0)")
    left1 = max(0, len(a.bgq) - len([1 for x in a.bgq if x is w2bg]))
    print("w1 left at hop3:", left1, "w2 issued:", 70 - len(w2q), file=sys.stderr)
    def tch1():
        a("s_mul_i32 s99, s50, 20480"); a("s_mul_i32 s98, s49, 2560"); a("s_add_u32 s99, s99, s98"); a("s_add_u32 s99, s99, s58"); a(f"s_add_u32 s99, s99, {G_H}")
        a("s_mov_b64 exec, 0xfffff"); a.vmem("buffer_load_dword v4, v3, s[40:43], s99 offen sc1"); a("s_mov_b64 exec, -1")
    hop(1, bef3, aft3, post=left1, touch=tch1, post2=max(0, P("POST1", 6) - left1))
    def hf(tt, k): return HF + (k*2 + tt)*4
    def ldh(k):
        def one(tt):
            a.vmem(f"buffer_load_dwordx4 {R(hf(tt, k), 4)}, v8, s[40:43], s{80+tt} offen offset:{1024*(k&3)} sc1", f"H{k}")
            if (k & 3) == 3: a(f"s_add_u32 s{80+tt}, s{80+tt}, 4096")
        return [lambda tt=tt: one(tt) for tt in range(2)]
    PRE = P("PRE4", 6)
    for k in range(PRE):
        for f in ldh(k): f()
    for tt in range(2):
        for q in range(2):
            a.vmem(f"buffer_load_dwordx2 {R(88 + 4*tt + 2*q, 2)}, v19, s[40:43], s82 offen offset:{1024*tt + 128*q} sc1", "STAT")
    def breads(ps, k):
        ts = range(NA) if ps == 0 else range(NA, 7)
        return [lambda t=t: a.ds(f"ds_read_b128 {R(BF + (k&1)*BS + 4*(t - ts[0]), 4)}, v{[8, 16, 17][k >> 3]} offset:{(k & 7)*7168 + 1024*t}", f"BR{ps}_{k}") for t in ts]
    for f in breads(0, 0): f()
    vS = [20, 21]; vQ = [24, 25]
    a(f"v_add_u32 v18, {CSL}, v23")
    hq = list(range(PRE, 20))
    B1U = 220
    c1 = -2.0*LOG2E*0.7978845608028654
    c2 = c1*0.044715
    a(f"s_mov_b32 s60, {hx(c1)}"); a(f"s_mov_b32 s61, {hx(c2)}")
    a("s_mul_i32 s72, s28, 110592"); a("s_add_u32 s72, s72, s58"); a(f"s_add_u32 s72, s72, {G_HID}")
    a("s_lshl_b32 s3, s27, 11"); a("s_add_u32 s56, s72, s3"); a("s_add_u32 s57, s56, 55296")
    a("s_lshl_b32 s3, s27, 10"); a("s_add_u32 s70, s72, s3"); a("s_add_u32 s70, s70, 32768"); a("s_add_u32 s71, s70, 55296")
    a("s_lshr_b32 s3, s27, 2"); a("s_sub_u32 s3, s27, s3"); a("s_lshl_b32 s3, s3, 9"); a("s_add_u32 s72, s72, s3"); a(f"s_add_u32 s72, s72, {49152 - 512}")
    a("s_and_b32 s3, s27, 3"); a("s_cselect_b32 s72, s72, 0x40000000"); a("s_add_u32 s73, s72, 55296")
    for k in range(20):
        a.wait(vm=f"H{k}", lg=f"BR0_{k}")
        front = breads(0, k+1) if k < 19 else (breads(1, 0) if NA < 7 else [])
        side = []
        if NA == 7:
            if hq:
                for _ in range(P("HRATE", 2)):
                    if hq: side += ldh(hq.pop(0))
            else:
                side += [w2bg]*max(0, min(P("ABG", 2), len(w2q), NEARLY + 2*k - (70 - len(w2q))))
        elif hq:
            side += ldh(hq.pop(0))
            if not hq and "plainhid" in OPT and P("HTP", 0) == 1: side.append(hidtouch)
        else: side += [lambda: a.bg(1)]*P("ABG", 1)
        if 1 <= k < 8:
            kk = k - 1; tb = 96 if kk % 2 == 0 else 220
            side.append(lambda kk=kk: a.wait(lg=f"CG{kk}"))
            for e in range(4):
                side += [f"v_add_f32 v{CS+4*kk+e}, v{CS+4*kk+e}, v{tb+e}", f"v_add_f32 v{tb+4+e}, v{tb+4+e}, v{tb+8+e}", f"v_add_f32 v{CS+4*kk+e}, v{CS+4*kk+e}, v{tb+4+e}"]
        if k < 7:
            tb = 96 if k % 2 == 0 else 220
            for w in range(4): front.append(lambda w=w, k=k, tb=tb: a.ds(f"ds_read_b128 {R((CS + 4*k) if w == 0 else (tb - 4 + 4*w), 4)}, v18 offset:{512*w + 64*k}", f"CG{k}"))
        if k == PRE + 2:
            for tt in range(2):
                side.append(f"v_add_f32 v{vS[tt]}, v{88+4*tt}, v{90+4*tt}"); side.append(f"v_add_f32 v{vQ[tt]}, v{89+4*tt}, v{91+4*tt}")
            side.append(lambda: red_g([f"v{x}" for x in vS + vQ], "v22"))
        if k == PRE + 3:
            for tt in range(2):
                s_, q_ = f"v{vS[tt]}", f"v{vQ[tt]}"
                side += [f"v_mul_f32 {s_}, s63, {s_}", f"v_mul_f32 {q_}, s63, {q_}", f"v_fma_f32 {q_}, -{s_}, {s_}, {q_}", f"v_max_f32 {q_}, 0, {q_}",
                         f"v_add_f32 v22, s64, {q_}", f"v_fma_f32 {q_}, v22, s64, {q_}", f"v_rsq_f32 {q_}, {q_}", f"v_mul_f32 {s_}, {s_}, {q_}"]
            side += ["v_mov_b32 v252, s60", "v_mov_b32 v253, s60", "s_mov_b32 s96, s61", "s_mov_b32 s97, s61"]
        if k >= 12:
            x = 2*(k - 12)
            for y in (x, x + 1):
                if y < 14:
                    side += [f"v_accvgpr_read_b32 v27, {R(B1A + y)}", f"v_lshlrev_b32 v{B1U+2*y}, 16, v27", f"v_and_b32 v{B1U+2*y+1}, 0xffff0000, v27"]
        mf = [MF(ACC + (tt*7+t)*4, BF + (k&1)*BS + 4*t, hf(tt, k), k == 0) for t in range(NA) for tt in range(2)]
        a.interleave(mf, side, front)
    a.stamp("s4A")
    if "noct" not in OPT: ctouch("L_cS5", 1)()
    PK = 88
    def gelu(tt, t, pk=False):
        L = []
        if pk:
            b_ = ACC + (tt*7+t)*4
            pr = lambda x: f"v[{x}:{x+1}]"
            for h in (0, 2): L.append(f"v_pk_fma_f32 {pr(248+h)}, v[20:21], {pr(CS+4*t+h)}, {pr(B1U+4*t+h)} op_sel:[{tt},0,0] op_sel_hi:[{tt},1,1] neg_lo:[1,0,0] neg_hi:[1,0,0]")
            for h in (0, 2): L.append(f"v_pk_fma_f32 {pr(b_+h)}, {pr(b_+h)}, v[24:25], {pr(248+h)} op_sel:[0,{tt},0] op_sel_hi:[1,{tt},1]")
            for h in (0, 2): L.append(f"v_pk_mul_f32 {pr(248+h)}, {pr(b_+h)}, {pr(b_+h)}")
            for h in (0, 2): L.append(f"v_pk_fma_f32 {pr(248+h)}, {pr(248+h)}, s[96:97], v[252:253]")
            for h in (0, 2): L.append(f"v_pk_mul_f32 {pr(248+h)}, {pr(248+h)}, {pr(b_+h)}")
            for e in range(4): L.append(f"v_exp_f32 v{248+e}, v{248+e}")
            for h in (0, 2): L.append(f"v_pk_add_f32 {pr(248+h)}, {pr(248+h)}, 1.0 op_sel_hi:[1,0]")
            for e in range(4): L.append(f"v_rcp_f32 v{248+e}, v{248+e}")
            for h in (0, 2): L.append(f"v_pk_mul_f32 {pr(b_+h)}, {pr(b_+h)}, {pr(248+h)}")
        else:
            for e in range(4):
                v_ = f"v{ACC + (tt*7+t)*4 + e}"; ta = f"v{248+e}"
                L += [f"v_fma_f32 {ta}, -v{vS[tt]}, v{CS+4*t+e}, v{B1U+4*t+e}", f"v_fma_f32 {v_}, {v_}, v{vQ[tt]}, {ta}", f"v_mul_f32 {ta}, {v_}, {v_}",
                      f"v_fma_f32 {ta}, {ta}, s61, v252", f"v_mul_f32 {ta}, {ta}, {v_}", f"v_exp_f32 {ta}, {ta}"]
            for e in range(4):
                ta = f"v{248+e}"; L += [f"v_add_f32 {ta}, 1.0, {ta}"]
            for e in range(4):
                ta = f"v{248+e}"; L += [f"v_rcp_f32 {ta}, {ta}"]
            for e in range(4):
                v_ = f"v{ACC + (tt*7+t)*4 + e}"; L.append(f"v_mul_f32 {v_}, {v_}, v{248+e}")
        for h in range(2):
            x0 = ACC + (tt*7+t)*4 + 2*h
            L.append(f"v_cvt_pk_bf16_f32 v{PK + tt*14 + 2*t + h}, v{x0}, v{x0+1}")
        if t in (1, 3): L.append(lambda: a.vmem(f"buffer_store_dwordx4 {R(PK + tt*14 + 2*(t-1), 4)}, v8, s[40:43], s{56+tt} offen offset:{512*(t-1)}{HS2}", "ST01"))
        if t == 5: L.append(lambda: a.vmem(f"buffer_store_dwordx4 {R(PK + tt*14 + 8, 4)}, v8, s[40:43], s{70+tt} offen{HS2}", "ST"))
        if t == 6: L.append(lambda: a.vmem(f"buffer_store_dwordx2 {R(PK + tt*14 + 12, 2)}, v13, s[40:43], s{72+tt} offen{HS2}", "ST"))
        return L
    gl = []
    for p in range(NA//2 if NA < 7 else 0):
        for tt in range(2): gl += gelu(tt, 2*p, "pkB" in OPT) + gelu(tt, 2*p+1, "pkB" in OPT)
    a.bgq = []
    W2RATE = P("W2RATE", 2)
    for k in range(20 if NA < 7 else 0):
        a.wait(lg=f"BR1_{k}")
        front = breads(1, k+1) if k < 19 else []
        GEND = P("GEND", 14)
        q = ((len(gl) + GEND - 1 - k)//(GEND - k) if k < GEND else len(gl)) if k > 0 else 0
        side = gl[:q]; gl = gl[q:]
        nin = max(0, min(W2RATE, len(w2q), NEARLY + 2*k - (70 - len(w2q))))
        for i_ in range(nin): side.insert((i_ + 1)*len(side)//(nin + 1), w2bg)
        mf = [MF(ACC + (tt*7+t)*4, BF + (k&1)*BS + 4*(t-NA), hf(tt, k), k == 0) for t in range(NA, 7) for tt in range(2)]
        a.interleave(mf, side, front)
    a.stamp("s4B")
    a("L_cS5:")
    W2EPI = P("W2EPI", 1)
    BIA = 126
    srd(a, 32, 20, 2621440); srd(a, 36, 18, 1280)
    s57save = None
    for m in range(4):
        a(f"s_add_u32 s3, s28, {m}"); a("s_and_b32 s3, s3, 3"); a("s_lshl_b32 s99, s48, 2"); a("s_add_u32 s3, s3, s99")
        a(f"s_mul_i32 s3, s3, 54"); a("s_add_u32 s3, s3, s28"); a("s_lshl_b32 s3, s3, 10"); a("s_add_u32 s3, s3, s58"); a(f"s_add_u32 s{80+m}, s3, {G_HID}")
    a("v_lshlrev_b32 v28, 3, v11"); a("s_mul_i32 s3, s49, 160")
    a.vmem(f"buffer_load_dwordx4 {R(BIA, 4)}, v23, s[36:39], s3 offen")
    a.vmem(f"buffer_load_dwordx4 {R(BIA+4, 4)}, v23, s[36:39], s3 offen offset:64")
    a.vmem(f"buffer_load_dwordx2 {R(BIA+8, 2)}, v28, s[36:39], s3 offen offset:128", "BIA")
    def pub(n):
        a("s_barrier")
        a("s_cmp_lg_u32 s28, 0"); a(f"s_cbranch_scc1 L_p{n}np")
        a("s_lshl_b32 s3, s27, 2"); a("s_add_u32 s3, s3, s58"); a(f"s_add_u32 s3, s3, {G_FL + 128*n}")
        a("s_mov_b64 exec, 1")
        a("s_cmp_eq_u32 s79, 0"); a(f"s_cbranch_scc1 L_p{n}slow")
        a("buffer_store_dword v6, v5, s[40:43], s3 offen")
        a(f"s_branch L_p{n}pd")
        a(f"L_p{n}slow:")
        a("buffer_store_dword v6, v5, s[40:43], s3 offen sc1")
        a(f"L_p{n}pd:")
        a("s_mov_b64 exec, -1")
        a(f"L_p{n}np:")
    def pld(n):
        a(f"s_add_u32 s59, s58, {G_FL + 128*n}")
        a.vmem("buffer_load_dword v31, v10, s[40:43], s59 offen sc1", f"PL{n}")
    def pchk(n):
        a.wait(vm=f"PL{n}")
        a("s_mov_b32 s78, 0")
        a(f"L_c{n}:")
        a("v_cmp_ne_u32 vcc, s76, v31")
        a(f"s_cbranch_vccz L_c{n}ok")
        a("buffer_load_dword v31, v10, s[40:43], s59 offen sc1"); a("s_waitcnt vmcnt(0)")
        a("s_add_u32 s78, s78, 1"); a(f"s_cmp_lt_u32 s78, {POLLMAX}"); a(f"s_cbranch_scc1 L_c{n}")
        a(f"L_c{n}ok:")
    seq = [(0, 4), (0, 5), (1, 4), (1, 5), (0, 6), (1, 6)]
    for i_, (tt, t) in enumerate(seq):
        if i_ == P("EP", 0): a.wait(vm="ST01"); pub(2)
        if i_ == P("PP", 4): pld(2)
        L = gelu(tt, t, True)
        for j_, x in enumerate(L):
            a.run(x)
            if i_ < P("W2STOP", 4) and j_ in (6, 16)[:W2EPI] and w2q: ldw2(*w2q.pop(0))
    a.stamp("tail")
    print("w2 left for S5:", len(w2q), file=sys.stderr)
    red_addr(); a.wait(vm="BIA"); init_acc([RES, BIA])
    pchk(2)
    a.stamp("FEok")
    ar = [136 + 4*i for i in range(5)] + [220 + 4*i for i in range(9)] + arA
    NR = 6
    def fa(n, m): return ar[(n % NR)*4 + m]
    def lda5(n):
        def one(m):
            if n == 13 and m == 0:
                a("s_cmp_ge_u32 s28, 2"); a("s_cselect_b32 s3, 0x40000000, 0")
                for q in range(4): a(f"s_add_u32 s{80+q}, s{80+q}, s3")
            a.vmem(f"buffer_load_dwordx4 {R(fa(n, m), 4)}, v8, s[40:43], s{80+m} offen sc1", f"A5_{n}")
            a(f"s_add_u32 s{80+m}, s{80+m}, 4096")
        return [lambda m=m: one(m) for m in range(4)]
    PRE5 = P("PRE5", 3)
    def need_w2(n):
        L = []
        while w2q and w2q[0][0] <= n:
            x = w2q.pop(0); L.append(lambda x=x: ldw2(*x))
        return L
    for n in range(PRE5):
        for f in need_w2(n) + lda5(n): f()
    a.wait(vm="ST"); pub(3)
    nxt = PRE5
    PL = P("PL", 2); PC = P("PC", 4)
    for n in range(14):
        a.wait(vm=f"A5_{n}")
        if n == PC: pchk(3)
        side = []; cnt = 0
        if n == PL: side.append(lambda: pld(3))
        while nxt < 14 and nxt <= n + NR - 1 and cnt < 2 and (nxt < 8 or n >= PC):
            side += need_w2(nxt) + lda5(nxt); nxt += 1; cnt += 1
        if cnt == 0 and w2q:
            for _ in range(min(4, len(w2q))):
                x = w2q.pop(0); side.append(lambda x=x: ldw2(*x))
        if n == 13:
            last_step(lambda m, t: MF(ACC + (m*5+t)*4, fb(n, t), fa(n, m), False))
        else:
            mf = [MF(ACC + (m*5+t)*4, fb(n, t), fa(n, m), n == 0 and m > 0) for m in range(4) for t in range(5)]
            a.interleave(mf, side)
    a.stamp("s5end")
    reduce_epi(5, BIA)
    a(f"buffer_store_dwordx4 {R(RES, 4)}, v14, s[32:35], s51 offen")
    a(f"buffer_store_dwordx4 {R(RES+4, 4)}, v14, s[32:35], s51 offen offset:64")
    a(f"buffer_store_dwordx2 {R(RES+8, 2)}, v15, s[32:35], s51 offen offset:128")
    a("s_or_b32 s3, s2, s28"); a("s_cmp_lg_u32 s3, 0"); a("s_cbranch_scc1 L_notagclr")
    a("global_store_dword v5, v5, s[22:23] sc1")
    a("L_notagclr:")
    a.stamp("stored")
    if STAMP:
        a("s_waitcnt vmcnt(0)")
        a.stamp("end")
        a("s_memrealtime s[100:101]"); a("s_waitcnt lgkmcnt(0)"); a("v_writelane_b32 v7, s100, 31")
        a("v_writelane_b32 v7, s79, 30")
        a("s_lshl_b32 s3, s2, 2"); a("s_add_u32 s3, s3, s28"); a("s_lshl_b32 s3, s3, 8"); a(f"s_add_u32 s3, s3, {STB}")
        a("v_lshlrev_b32 v27, 2, v1"); a("v_add_u32 v27, s3, v27")
        a("global_store_dword v27, v7, s[24:25]")
        if os.environ.get("DELAY"):
            di = os.environ["DELAY"]
            a(f"s_cmp_lg_u32 s2, {P('DWG', 8)}"); a("s_cbranch_scc1 L_end"); a("s_cmp_lg_u32 s28, 0"); a("s_cbranch_scc1 L_end")
            clk = "s_memrealtime" if di == "rt" else "s_memtime"
            a(f"{clk} s[100:101]"); a("s_waitcnt lgkmcnt(0)")
            if di == "rt":
                a("s_sub_u32 s3, s100, s76")
            else:
                a(f"v_readlane_b32 s3, v7, {di}"); a("v_readlane_b32 s56, v7, 0"); a("s_nop 3"); a("s_sub_u32 s3, s3, s56")
            a("s_lshl_b32 s3, s3, 2"); a("s_min_u32 s3, s3, 0x100000"); a("s_mov_b32 s57, s100")
            a("L_dly:")
            a(f"{clk} s[100:101]"); a("s_waitcnt lgkmcnt(0)"); a("s_sub_u32 s56, s100, s57"); a("s_cmp_lt_u32 s56, s3"); a("s_cbranch_scc1 L_dly")
        a.a.raw("; STAMPS " + " ".join(a.names))
    a("L_end:")
    a("s_endpgm")
    return a.a

def main(out):
    hdr = open("sequential_preLN__linear_attn_block__mixer_channel_mlp__prompt.s.ref").read().split("\n")
    hdr = [l for l in hdr if l.startswith(";") and "@launch" not in l]
    hdr.append("; @launch grid=(256,1,1) block=(256,1,1) lds=163840")
    a = gen()
    pre = '.amdgcn_target "amdgcn-amd-amdhsa--gfx950"\n.text\n'
    T1, T2 = build_tables()
    a.raw(".p2align 6\nT1_tab:")
    a.raw(".short " + ",".join(map(str, T1)))
    a.raw("T2_tab:")
    for row in T2: a.raw(".short " + ",".join(map(str, row)))
    a.raw(".fill 2048, 4, 0")
    a.raw('.section .rodata,"a"\n.p2align 6')
    a.raw(f""".amdhsa_kernel {NAME}
  .amdhsa_next_free_vgpr 512
  .amdhsa_next_free_sgpr 102
  .amdhsa_accum_offset 256
  .amdhsa_group_segment_fixed_size 0
  .amdhsa_kernarg_size 88
  .amdhsa_user_sgpr_count 2
  .amdhsa_user_sgpr_kernarg_segment_ptr 1
  .amdhsa_system_sgpr_workgroup_id_x 1
.end_amdhsa_kernel""")
    open(out, "w").write("\n".join(hdr) + "\n" + pre + a.finish())

if __name__ == "__main__":
    main(sys.argv[1])
```

```python
import sys, struct, os
from asmdsl import Asm, R, S
from gen1 import build_tables, PAIRS, f2u, hx, divmod_const, srd, LOG2E

NAME = "sequential_preLN__linear_attn_block__mixer_channel_mlp__prompt_kernel"
WOP = 0
W2P = WOP + 8*20*5*1024
W1P = W2P + 8*54*5*1024
C1P = W1P + 16*20*7*1024
WQKV = C1P + 320*512
PART = WQKV + 16*153600
GRP = PART + 256*4096
G_O = 0; G_H = 163840; G_ST = 327680; G_FL = 335872; G_HID = 336896; G_SZ = G_HID + 442368
FLG = GRP + 16*G_SZ
F1 = FLG; F1R = FLG + 8192; F0 = FLG + 10240; FU = FLG + 14336
WS_END = FLG + 20480
A0 = 256
STAMP = int(os.environ.get("STAMP", "0"))
STB = 32 << 20
POLLMAX = 1 << 15
OPT = set(os.environ.get("OPT", "").split(","))
def P(name, d): return int(os.environ.get(name, d))

class G:
    def __init__(self):
        self.a = Asm(); self.vm = []; self.lg = []; self.nst = 0; self.bgq = []; self.names = []
    def __call__(self, t): self.a(t)
    def vmem(self, text, tag=None): self.a(text); self.vm.append(tag)
    def ds(self, text, tag=None): self.a(text); self.lg.append(tag)
    def _n(self, lst, tag, cap):
        idx = max(i for i, t in enumerate(lst) if t == tag)
        return min(len(lst) - 1 - idx, cap)
    def wait(self, vm=None, lg=None):
        s = []
        if vm is not None: s.append(f"vmcnt({0 if vm == 'all' else self._n(self.vm, vm, 63)})")
        if lg is not None: s.append(f"lgkmcnt({0 if lg == 'all' else self._n(self.lg, lg, 15)})")
        self.a("s_waitcnt " + " ".join(s))
        if vm == 'all': self.vm = []
        if lg == 'all': self.lg = []
    def stamp(self, name=""):
        if STAMP != 1: return
        i = self.nst; self.nst += 1; self.names.append(name)
        assert i < 29
        self.a("s_memtime s[100:101]"); self.a("s_waitcnt lgkmcnt(0)"); self.a(f"v_writelane_b32 v7, s100, {i}")
    def run(self, x): x() if callable(x) else self.a(x)
    def bg(self, n=1):
        for _ in range(n):
            if self.bgq: self.bgq.pop(0)()
    def interleave(self, main, extra, front=()):
        n = len(main); m = len(extra); j = 0; front = list(front)
        for i, x in enumerate(main):
            self.run(x)
            if front:
                self.run(front.pop(0))
                if len(front) >= n - i and front: self.run(front.pop(0))
            while j < m and (j + 1) * n <= (i + 1) * m + (n - 1):
                self.run(extra[j]); j += 1
        for x in front: self.run(x)
        while j < m:
            self.run(extra[j]); j += 1

def MF(d, a_, b_, first): return f"v_mfma_f32_16x16x32_bf16 {R(d,4)}, {R(a_,4)}, {R(b_,4)}, {'0' if first else R(d,4)}"

def phi(a, val, t1, t2):
    a(f"v_mul_f32 {t1}, s60, {val}")
    a(f"v_max_f32 {t2}, 0, {val}")
    a(f"v_exp_f32_e64 {t1}, {t1} clamp")
    a(f"v_add_f32 {t2}, s61, {t2}")
    a(f"v_add_f32 {val}, {t1}, {t2}")

OPT |= {"sc1h", "sc1hid", "notouch", "usfirst", "ft", "rpplain", "slplain", "tlb3"}
def phi4(a, b_, T, sel_mask=None):
    for h in range(2): a(f"v_pk_mul_f32 v[{T+2*h}:{T+2*h+1}], v[{b_+2*h}:{b_+2*h+1}], s[94:95]")
    for e in range(4): a(f"v_max_f32 v{T+4+e}, 0, v{b_+e}")
    for e in range(4): a(f"v_exp_f32_e64 v{T+e}, v{T+e} clamp")
    for h in range(2): a(f"v_pk_add_f32 v[{T+4+2*h}:{T+5+2*h}], v[{T+4+2*h}:{T+5+2*h}], s[96:97]")
    if sel_mask is None:
        for h in range(2): a(f"v_pk_add_f32 v[{b_+2*h}:{b_+2*h+1}], v[{T+2*h}:{T+2*h+1}], v[{T+4+2*h}:{T+5+2*h}]")
    else:
        for h in range(2): a(f"v_pk_add_f32 v[{T+2*h}:{T+2*h+1}], v[{T+2*h}:{T+2*h+1}], v[{T+4+2*h}:{T+5+2*h}]")
        for e in range(4): a(f"v_cndmask_b32 v{b_+e}, v{b_+e}, v{T+e}, {sel_mask}")
RPNT = "" if "rpplain" in OPT else " nt"
HS = "" if "plainh" in OPT else " sc1"
HS2 = "" if "plainhid" in OPT else " sc1"
FENCE = "plainh" in OPT or "plainhid" in OPT
def gen():
    a = G()
    name = NAME
    NRAW = P("NRAW", 2)
    a.a.raw(f".globl {name}\n.p2align 8\n.type {name},@function\n{name}:")
    a("s_cmp_ge_u32 s2, 256"); a("s_cbranch_scc1 L_end")
    a("s_load_dwordx16 s[4:19], s[0:1], 0")
    a("s_load_dwordx4 s[20:23], s[0:1], 64")
    a("s_load_dwordx2 s[24:25], s[0:1], 80")
    a("s_memrealtime s[76:77]")
    a("s_getpc_b64 s[30:31]")
    a("L_pc:")
    a("v_mov_b32 v7, 0")
    a.stamp("start")
    a("v_lshrrev_b32 v2, 6, v0"); a("v_and_b32 v1, 63, v0")
    a("v_readfirstlane_b32 s28, v2")
    if "m48" in OPT:
        a("s_and_b32 s3, s2, 7"); a("s_lshr_b32 s29, s2, 3")
        a("s_lshr_b32 s26, s3, 1"); a("s_lshl_b32 s26, s26, 2"); a("s_lshr_b32 s27, s29, 3"); a("s_add_u32 s26, s26, s27")
        a("s_and_b32 s3, s3, 1"); a("s_lshl_b32 s3, s3, 2"); a("s_and_b32 s27, s29, 3"); a("s_or_b32 s27, s27, s3")
        a("s_and_b32 s29, s29, 4"); a("s_lshl_b32 s29, s29, 1"); a("s_or_b32 s27, s27, s29")
    else:
        a("s_and_b32 s3, s2, 7"); a("s_lshr_b32 s27, s2, 3"); a("s_lshr_b32 s26, s27, 4"); a("s_lshl_b32 s3, s3, 1")
        a("s_add_u32 s26, s26, s3")
        a("s_and_b32 s27, s27, 15")
    a("v_lshlrev_b32 v3, 7, v1")
    if "cp16" in OPT:
        a("s_cmp_lg_u32 s28, 3"); a("s_cbranch_scc1 L_nocp")
        a("s_mul_i32 s3, s27, 2304"); a("v_add_u32 v27, s3, v3"); a("s_bfm_b64 exec, 18, 0")
        a("global_load_dword v4, v27, s[30:31]"); a("s_mov_b64 exec, -1")
    elif "nocp" not in OPT:
        a("s_cmp_lg_u32 s28, 3"); a("s_cbranch_scc1 L_nocp")
        a("s_mul_i32 s3, s27, 13"); a("s_lshr_b32 s3, s3, 6"); a("s_mul_i32 s3, s3, 5"); a("s_sub_u32 s3, s27, s3"); a("s_lshl_b32 s3, s3, 13")
        a("v_add_u32 v27, s3, v3")
        a("global_load_dword v4, v27, s[30:31]")
    a("L_nocp:")
    BQ = 102400; SCR = 153600; CSX = 161792
    vXA = [72, 73, 74, 75]; vW = [76, 77]; vRd = [78, 79]; vTB = [17, 18, 19, 20]; vTQ = [86, 87, 88, 89]; vTQ2 = [90, 91, 21, 22]
    vSA = [80, 81, 82]; vBA = [144, 145, 146, 147, 148]; vTR = [149, 150, 151, 152]
    vT1 = 24; vSTW = 25
    ACC = 32; RAW = 160; XF = A0; BF = A0 + 160; ONES = A0 + 200; GR = A0 + 204; RSM = A0 + 212; OH = A0 + 220; CSA = A0 + 240; CSQ = A0 + 244
    t0, t1, t2, t3 = "v27", "v28", "v29", "v30"
    def early():
        a("v_and_b32 v27, 3, v1"); a("s_lshl_b32 s3, s28, 2"); a("v_add_u32 v27, s3, v27"); a("v_min_u32 v27, 14, v27")
        a("v_lshrrev_b32 v28, 2, v1"); a("v_mul_u32_u24 v28, 3840, v28"); a("v_lshl_add_u32 v28, v27, 4, v28")
        a("v_add_u32 v29, 1280, v28"); a("v_add_u32 v30, 2480, v28"); a("v_subrev_u32 v28, 160, v28")
        a("v_cmp_gt_u32 vcc, 10, v27"); a("s_mul_i32 s50, s26, 153600"); a("s_mul_i32 s51, s27, 80"); a("v_cndmask_b32 v28, v28, v30, vcc")
        a("v_cmp_gt_u32 vcc, 5, v27"); a("s_add_u32 s50, s50, s51"); a("s_mul_i32 s53, s28, 3072"); a("v_cndmask_b32 v83, v28, v29, vcc")
        a(f"s_add_u32 s53, s53, {BQ + 28672}")
        a("s_mul_i32 s3, s26, 163840"); a("s_mul_i32 s56, s27, 10240"); a("s_add_u32 s3, s3, s56"); a("s_mul_i32 s56, s28, 2560"); a("s_add_u32 s57, s3, s56")
        a("v_mov_b32 v5, 0")
    def late():
        a("v_lshlrev_b32 v8, 4, v1"); a("v_lshlrev_b32 v9, 4, v0")
        a("v_and_b32 v10, 15, v1"); a("v_lshlrev_b32 v10, 2, v10")
        a("v_lshrrev_b32 v11, 4, v1"); a("v_add_u32 v12, 4096, v8")
        a("v_lshrrev_b32 v27, 3, v1"); a("v_and_b32 v28, 7, v1"); a("v_mul_u32_u24 v29, 1280, v27")
        a("v_lshrrev_b32 v30, 1, v27"); a("v_xor_b32 v28, v28, v30")
        a(f"v_lshl_add_u32 v{vXA[0]}, v28, 4, v29")
        a(f"v_xor_b32 v{vXA[1]}, 64, v{vXA[0]}"); a(f"v_add_u32 v{vXA[1]}, 10240, v{vXA[1]}")
        a(f"v_add_u32 v{vXA[2]}, 20480, v{vXA[0]}"); a(f"v_add_u32 v{vXA[3]}, 20480, v{vXA[1]}")
        a("s_lshl_b32 s3, s28, 11"); a(f"s_add_u32 s48, s3, {SCR}")
        a("s_lshl_b32 s49, s26, 7"); a("s_lshl_b32 s3, s28, 5"); a("s_add_u32 s49, s49, s3"); a("s_mul_i32 s49, s49, 1280")
        a("s_lshr_b32 s3, s28, 1"); a("s_lshl_b32 s3, s3, 7"); a("s_add_u32 s62, s49, 128"); a("s_sub_u32 s62, s62, s3"); a("s_add_u32 s49, s49, s3")
        a("s_mul_i32 s52, s28, 5120")
        a(f"s_mul_i32 s58, s26, {G_SZ}"); a(f"s_add_u32 s58, s58, {GRP}")
        a("s_lshl_b32 s70, s28, 4"); a("s_add_u32 s70, s70, s26")
        a(f"s_mul_i32 s71, s28, 7168"); a(f"s_add_u32 s71, s71, {BQ}")
        a("v_mov_b32 v2, 0x7fffffff")
    early()
    if "slowpro" in OPT: late()
    a("s_waitcnt lgkmcnt(0)")
    srd(a, 36, 6, 2457600)
    SLNT = "" if "slplain" in OPT else " nt"
    for i in range(3):
        a(f"s_add_u32 m0, s53, {1024*i}")
        if i == 2: a("s_bfm_b64 exec, 32, 0")
        a.vmem(f"buffer_load_dwordx4 v83, s[36:39], s50 offen{SLNT} lds", "SLD")
        a(f"s_add_u32 s50, s50, {16*3840}")
    srd(a, 32, 4, 2621440); srd(a, 40, 24, WS_END)
    a("s_mov_b64 exec, 0xfffff")
    a.vmem(f"buffer_load_dword v4, v3, s[32:35], s57 offen{' nt' if 'xtnt' in OPT else ''}")
    if "tlb" in OPT:
        a("v_lshlrev_b32 v27, 20, v1"); a("s_bfm_b64 exec, 24, 0")
        a.vmem(f"buffer_load_dword v4, v27, s[40:43], 0 offen")
    if "tlb2" in OPT:
        a("s_mul_i32 s54, s27, 153600"); a(f"s_add_u32 s54, s54, {WQKV}")
        a("v_mul_u32_u24 v27, 51200, v1"); a("v_add_u32 v27, s54, v27"); a(f"v_mov_b32 v28, {F0}"); a("v_cmp_eq_u32 vcc, 3, v1"); a("v_cndmask_b32 v27, v27, v28, vcc")
        a("s_bfm_b64 exec, 4, 0")
        a.vmem(f"buffer_load_dword v4, v27, s[40:43], 0 offen")
        a.vmem("global_load_dword v4, v5, s[22:23] offset:128")
    a("s_mov_b64 exec, -1")
    if STAMP: a("v_writelane_b32 v7, s76, 29")
    a("s_and_b32 s76, s76, 0xfffffff8"); a("s_or_b32 s76, s76, 8")
    a("s_or_b32 s3, s2, s28"); a("s_cmp_lg_u32 s3, 0"); a("s_cbranch_scc1 L_notag")
    a("v_mov_b32 v28, s76"); a("global_store_dword v5, v28, s[22:23] sc1")
    a("L_notag:")
    if "ft" in OPT:
        a("s_cmp_lg_u32 s26, s27"); a("s_cbranch_scc1 L_noft"); a("s_cmp_lg_u32 s28, 1"); a("s_cbranch_scc1 L_noft")
        a("s_mul_i32 s3, s27, 1280"); a(f"s_add_u32 s3, s3, {FLG}")
        a("s_bfm_b64 exec, 10, 0"); a("buffer_load_dword v4, v3, s[40:43], s3 offen sc0 sc1"); a("s_mov_b64 exec, -1")
        a("L_noft:")
    if "tlb3" in OPT:
        a("s_cmp_lg_u32 s28, 2"); a("s_cbranch_scc1 L_not3")
        a("v_lshlrev_b32 v27, 16, v1"); a("v_lshlrev_b32 v28, 18, v1")
        for cc, (sp, n_) in enumerate([(12, 34), (16, 34), (8, 13), (20, 40)]):
            a(f"s_cmp_lg_u32 s27, {2+cc}"); a(f"s_cbranch_scc1 L_t3_{cc}")
            a(f"s_bfm_b64 exec, {n_}, 0"); a(f"global_load_dword v4, v27, s[{sp}:{sp+1}]"); a("s_mov_b64 exec, -1")
            a(f"L_t3_{cc}:")
        a("s_cmp_lg_u32 s27, 6"); a("s_cbranch_scc1 L_t3_4"); a("buffer_load_dword v4, v28, s[40:43], 0 offen"); a("L_t3_4:")
        a("s_cmp_lg_u32 s27, 7"); a("s_cbranch_scc1 L_not3"); a(f"s_mov_b32 s3, {64 << 18}"); a("buffer_load_dword v4, v28, s[40:43], s3 offen")
        a("L_not3:")
    if "tlb4" in OPT:
        a("s_cmp_lg_u32 s28, 2"); a("s_cbranch_scc1 L_not4")
        a("v_lshlrev_b32 v27, 21, v1"); a("s_bfm_b64 exec, 2, 0")
        a("global_load_dword v4, v27, s[12:13]"); a("global_load_dword v4, v27, s[16:17]"); a("s_mov_b64 exec, 1"); a("global_load_dword v4, v27, s[8:9]")
        a("s_bfm_b64 exec, 11, 0"); a("buffer_load_dword v4, v27, s[40:43], 0 offen")
        a("s_mov_b64 exec, -1")
        a("L_not4:")
    if "nobt" not in OPT:
        a("s_lshl_b32 s3, s27, 2"); a("s_add_u32 s3, s3, s28"); a("s_cmp_lg_u32 s3, 6"); a("s_cbranch_scc1 L_nobt")
        a("s_bfm_b64 exec, 27, 0"); a("global_load_dword v4, v3, s[14:15]")
        a("s_bfm_b64 exec, 10, 0"); a("global_load_dword v4, v3, s[18:19]")
        a("s_mov_b64 exec, -1")
        a("L_nobt:")
    srd(a, 44, 12, 2211840)
    if "slowpro" not in OPT: late()
    def rp_issue(nt, pitch_src, nch):
        for i in range(7):
            if i < nt:
                a(f"v_add_u32 v27, {64*i}, v1")
                divmod_const(a, "v28", "v29", "v27", nch)
                if nt == 5:
                    a("v_cmp_lt_u32 vcc, 15, v28"); a("v_add_u32 v30, s83, v28"); a("v_cndmask_b32 v28, v28, v30, vcc")
                a(f"v_mul_u32_u24 v28, {pitch_src}, v28"); a("v_lshl_add_u32 v28, v29, 4, v28")
                a(f"s_add_u32 m0, s71, {1024*i}")
                a(f"buffer_load_dwordx4 v28, s[44:47], s73 offen{RPNT} lds")
            else:
                a("buffer_load_dword v4, v2, s[44:47], 0 offen")
    def unit_issue():
        a("s_cmp_ge_u32 s70, 20"); a("s_cbranch_scc1 L_rp5")
        a("s_mov_b32 s72, 1")
        a("s_mul_i32 s75, s27, 27"); a("s_lshr_b32 s75, s75, 2"); a("s_lshl_b32 s75, s75, 5")
        a("s_mul_i32 s79, s70, 110592"); a("s_add_u32 s73, s75, s79")
        a("s_mul_i32 s75, s27, 20"); a("s_add_u32 s70, s70, s75")
        a("s_mul_i32 s74, s70, 7168"); a(f"s_add_u32 s74, s74, {W1P}")
        rp_issue(7, 3456, 14)
        a("s_branch L_rp_issued")
        a("L_rp5:")
        a("s_mov_b32 s72, 2")
        a("s_sub_u32 s79, s70, 20"); a("s_lshl_b32 s79, s79, 1"); a("s_lshr_b32 s75, s27, 3"); a("s_add_u32 s79, s79, s75"); a("s_and_b32 s75, s27, 7")
        a("s_cmp_ge_u32 s79, 54"); a("s_cbranch_scc1 L_rpwo")
        srd(a, 44, 16, 2211840)
        a("s_mul_i32 s78, s75, 54"); a("s_add_u32 s78, s78, s79")
        a("s_mul_i32 s74, s78, 5120"); a(f"s_add_u32 s74, s74, {W2P}")
        a("s_mov_b32 s83, 0")
        a("s_cmp_ge_u32 s79, 48"); a("s_cbranch_scc1 L_w2s")
        a("s_lshr_b32 s84, s79, 1"); a("s_and_b32 s85, s79, 1"); a("s_lshl_b32 s85, s85, 1")
        a("s_sub_u32 s78, s79, 32"); a("s_cmp_ge_u32 s79, 32"); a("s_cselect_b32 s84, s78, s84"); a("s_cselect_b32 s85, 4, s85")
        a("s_mul_i32 s84, s84, 27"); a("s_lshr_b32 s84, s84, 2"); a("s_add_u32 s79, s84, s85")
        a("s_branch L_rp5b")
        a("L_w2s:")
        a("s_sub_u32 s84, s79, 48"); a("s_lshl_b32 s84, s84, 1"); a("s_add_u32 s85, s84, 1")
        for r_ in ("s84", "s85"):
            a(f"s_mul_i32 s78, {r_}, 11"); a("s_lshr_b32 s78, s78, 5"); a(f"s_add_u32 {r_}, {r_}, s78"); a(f"s_add_u32 {r_}, {r_}, 1")
            a(f"s_mul_i32 {r_}, {r_}, 27"); a(f"s_lshr_b32 {r_}, {r_}, 2")
        a("s_add_u32 s79, s84, 6"); a("s_sub_u32 s83, s85, s84"); a("s_sub_u32 s83, s83, 1"); a("s_lshl_b32 s83, s83, 4")
        a("s_branch L_rp5b")
        a("L_rpwo:")
        srd(a, 44, 8, 819200)
        a("s_sub_u32 s79, s79, 54")
        a("s_mul_i32 s78, s75, 20"); a("s_add_u32 s78, s78, s79")
        a("s_mul_i32 s74, s78, 5120"); a(f"s_add_u32 s74, s74, {WOP}")
        a("s_cmp_ge_u32 s79, 20"); a("s_cselect_b32 s74, 0x40000000, s74")
        a("s_lshl_b32 s79, s79, 1"); a("s_mov_b32 s83, 0")
        a("L_rp5b:")
        a("s_mul_i32 s75, s75, 160"); a("s_mul_i32 s79, s79, 20480"); a("s_add_u32 s73, s75, s79")
        rp_issue(5, 1280, 10)
        a("L_rp_issued:")
        a.vm += ["UL"]*7
    def raw(cx, rg): return 96 + (((cx + 1) % 10)*4 + rg)*4
    def xf(tt, k): return XF + (tt*20 + k)*4
    def ldx(cx):
        def one(rg):
            off = 256*(cx >> 1)
            a(f"s_add_u32 m0, s52, {(cx % 5)*20480 + rg*1024 + 1024 - off}")
            a.vmem(f"buffer_load_dwordx4 v{vXA[rg]}, s[32:35], s{62 if cx & 1 else 49} offen offset:{off} lds", f"X{cx}")
        return [lambda rg=rg: one(rg) for rg in range(4)]
    a("v_and_b32 v27, 15, v1")
    a("v_cmp_gt_u32 s[66:67], 8, v27")
    a("v_cmp_gt_u32 s[90:91], 32, v1"); a("v_cmp_gt_u32 s[92:93], 48, v1")
    a("v_cmp_eq_u32 s[88:89], 1, v11")
    a("v_and_b32 v29, 1, v11")
    a("s_lshl_b32 s3, s28, 1"); a("v_add_u32 v29, s3, v29")
    a("v_cmp_gt_u32 s[94:95], 5, v29"); a("v_cmp_eq_u32 s[96:97], 7, v29")
    a("v_lshlrev_b32 v29, 10, v29"); a(f"v_add_u32 v30, {BQ - 5120}, v29"); a("v_cndmask_b32 v29, v30, v29, s[94:95]")
    a("v_lshl_add_u32 v29, v10, 2, v29")
    a("v_mov_b32 v30, 2560"); a("v_mov_b32 v31, 5120"); a("v_cndmask_b32 v30, v30, v31, s[94:95]")
    a("v_mov_b32 v31, 8"); a("v_cndmask_b32 v31, v31, 7, s[96:97]")
    a("s_andn2_b64 s[96:97], s[96:97], s[66:67]")
    a("s_mul_i32 s3, s26, 5")
    a("v_lshrrev_b32 v28, 1, v11"); a("v_add_u32 v28, s3, v28")
    for n in range(3):
        a(f"v_lshrrev_b32 v27, 2, v28"); a(f"v_mad_u32_u24 v{vSA[n]}, v27, v30, v29")
        a("v_and_b32 v27, 3, v28"); a("v_lshlrev_b32 v27, v31, v27"); a(f"v_add_u32 v{vSA[n]}, v{vSA[n]}, v27")
        a(f"v_cndmask_b32 v{vSA[n]}, v{vSA[n]}, v2, s[96:97]")
        if n == 2: a(f"v_cndmask_b32 v{vSA[n]}, v2, v{vSA[n]}, s[90:91]")
        else: a("v_add_u32 v28, 2, v28")
    a("v_lshrrev_b32 v27, 5, v1"); a("v_bfe_u32 v28, v1, 2, 2"); a("v_lshl_add_u32 v27, v27, 3, v28"); a("v_lshlrev_b32 v27, 6, v27")
    a("v_bfe_u32 v28, v1, 4, 1"); a("v_lshl_add_u32 v27, v28, 5, v27"); a("v_and_b32 v28, 3, v1"); a("v_lshl_add_u32 v27, v28, 3, v27")
    a("v_add_u32 v84, s53, v27")
    a("s_mul_i32 s54, s27, 153600"); a(f"s_add_u32 s54, s54, {WQKV}")
    a.wait(vm="SLD")
    a.stamp("sld")
    for n in range(3):
        for h in range(2): a(f"ds_read_b64_tr_b16 {R(96 + 4*n + 2*h, 2)}, v84 offset:{1024*n + 256*h}")
    a("s_waitcnt lgkmcnt(0)")
    for n in range(3): a.vmem(f"buffer_store_dwordx4 {R(96 + 4*n, 4)}, v{vSA[n]}, s[40:43], s54 offen sc1", "SL")
    a.vmem("global_load_dword v6, v5, s[22:23] sc1", "TAG")
    NX0 = P("NX0", 3)
    for cx in range(NX0):
        for f in ldx(cx): f()
    a("v_and_b32 v27, 15, v1")
    a("v_lshrrev_b32 v29, 1, v27"); a("v_xor_b32 v29, v29, v11"); a("v_lshlrev_b32 v29, 4, v29"); a("v_lshl_add_u32 v29, v27, 7, v29")
    a("s_and_b32 s3, s28, 1"); a("s_lshl_b32 s3, s3, 6"); a("v_xor_b32 v29, s3, v29")
    a(f"v_add_u32 v{vRd[0]}, s52, v29"); a("v_xor_b32 v29, 64, v29"); a(f"v_add_u32 v{vRd[1]}, s52, v29")
    a(f"v_add_u32 v{vW[0]}, 61440, v{vRd[0]}"); a(f"v_add_u32 v{vW[1]}, 61440, v{vRd[1]}")
    a("v_lshrrev_b32 v29, 2, v27"); a("v_cmp_eq_u32 vcc, v29, v11")
    a("v_lshlrev_b32 v30, 2, v1"); a("v_add_u32 v30, 512, v30")
    a("v_cndmask_b32 v29, v30, v10, vcc"); a(f"v_add_u32 v{vSTW}, s48, v29")
    a("v_and_b32 v29, 1, v1"); a("v_cmp_eq_u32 s[68:69], 1, v29")
    a("v_and_b32 v29, 2, v1"); a("v_cmp_eq_u32 s[86:87], 2, v29")
    a("v_mov_b32 v28, 0x3f803f80")
    for i in range(4): a(f"v_accvgpr_write_b32 {R(ONES+i)}, v28")
    for t in range(5):
        a(f"v_cmp_eq_u32 vcc, {t}, v27"); a("v_cndmask_b32 v29, 0, v28, vcc")
        for e in range(4): a(f"v_accvgpr_write_b32 {R(OH+4*t+e)}, v29")
    a("v_and_b32 v27, 7, v1"); a("v_lshlrev_b32 v27, 4, v27"); a("v_lshl_add_u32 v27, v11, 7, v27")
    for p in range(4):
        a(f"s_xor_b32 s3, s28, {p}"); a("s_mul_i32 s56, s3, 5120"); a(f"v_add_u32 v{vTB[p]}, s56, v8")
        a("s_mul_i32 s56, s3, 2560"); a(f"s_add_u32 s56, s56, {BQ}"); a(f"v_add_u32 v{vTQ[p]}, s56, v8"); a("s_add_u32 s56, s56, 2048"); a(f"v_add_u32 v{vTQ2[p]}, s56, v27")
    a(f"s_mov_b32 s60, {hx(LOG2E)}"); a(f"s_mov_b32 s61, {hx(1e-6)}")
    a(f"s_mov_b32 s63, {hx(1.0/640)}"); a(f"s_mov_b32 s64, {hx(1e-5)}")
    a("s_lshl_b32 s55, s27, 8"); a(f"s_add_u32 s55, s55, {F0}")
    a("v_lshlrev_b32 v26, 2, v1")
    a("s_lshl_b32 s3, s26, 4"); a("s_lshl_b32 s56, s28, 2"); a("s_add_u32 s3, s3, s56"); a("s_add_u32 s3, s3, s55")
    a.wait(vm="TAG")
    a("v_readfirstlane_b32 s76, v6"); a("s_mov_b32 s78, 0")
    a("L_tp1:")
    a("s_cmp_lg_u32 s76, 0"); a("s_cbranch_scc1 L_tp1_ok")
    a("global_load_dword v6, v5, s[22:23] sc1"); a("s_add_u32 s78, s78, 1"); a("s_waitcnt vmcnt(0)")
    a("v_readfirstlane_b32 s76, v6")
    a(f"s_cmp_lt_u32 s78, {POLLMAX}"); a("s_cbranch_scc1 L_tp1")
    a("L_tp1_ok:")
    a("s_getreg_b32 s77, hwreg(HW_REG_XCC_ID)"); a("s_and_b32 s77, s77, 7"); a("s_or_b32 s77, s77, s76")
    a("s_lshl_b32 s57, s26, 7"); a("s_lshl_b32 s56, s27, 2"); a("s_add_u32 s57, s57, s56"); a(f"s_add_u32 s57, s57, {F1R}")
    a("s_cmp_eq_u32 s28, 0"); a("s_cselect_b32 s57, s57, 0x40000000"); a("v_mov_b32 v27, s77")
    a("s_mov_b64 exec, 1"); a.vmem("buffer_store_dword v6, v5, s[40:43], s3 offen sc1"); a.vmem("buffer_store_dword v27, v5, s[40:43], s57 offen sc1"); a("s_mov_b64 exec, -1")
    a.stamp("F0pub")
    def rp_fin(nt, RG):
        pitch = nt*32
        a("v_bfe_u32 v28, v1, 2, 2"); a("v_lshl_add_u32 v27, v11, 3, v28"); a("v_and_b32 v28, 3, v1")
        a(f"v_mul_u32_u24 v29, {pitch}, v27"); a("v_add_u32 v29, s71, v29")
        a("v_lshl_add_u32 v30, v28, 3, v29"); a("v_lshl_add_u32 v29, v28, 4, v29")
        for t in range(nt):
            for h in range(2):
                if t == nt - 1: a(f"ds_read_b64_tr_b16 {R(RG + 4*t + 2*h, 2)}, v30 offset:{h*4*pitch + 32*t}")
                else: a(f"ds_read_b64_tr_b16 {R(RG + 4*t + 2*h, 2)}, v29 offset:{h*4*pitch + 64*(t>>1) + 8*(t&1)}")
        if nt == 7:
            a("v_mov_b32 v28, 0x3f803f80")
            for t in (5, 6):
                a(f"v_cmp_eq_u32 vcc, {4*t}, v10")
                for e in range(4): a(f"v_cndmask_b32 v{RG+28+4*(t-5)+e}, 0, v28, vcc")
        a("s_waitcnt lgkmcnt(0)")
        if nt == 7:
            for t in range(7): a(MF(RG+36, RG + 4*t, OH + 4*t if t < 5 else RG+28+4*(t-5), t == 0))
    def rp_store(nt, RG):
        for t in range(nt):
            a(f"buffer_store_dwordx4 {R(RG + 4*t, 4)}, v{8 if t < 4 else 12}, s[40:43], s74 offen offset:{1024*(t&3)} sc1")
        if nt == 7:
            a("v_lshlrev_b32 v29, 4, v11"); a("v_lshl_add_u32 v29, v10, 4, v29"); a("v_cndmask_b32 v29, v2, v29, s[66:67]")
            a("s_lshl_b32 s3, s70, 9"); a(f"s_add_u32 s3, s3, {C1P}")
            a(f"buffer_store_dwordx4 {R(RG+36, 4)}, v29, s[40:43], s3 offen sc1")
        else:
            for _ in range(3): a("buffer_store_dword v5, v2, s[40:43], 0 offen")
    def acc(tt, t): return ACC + (tt*5 + t)*4
    def transp(cx):
        L = []
        j = cx % 5; b = vRd if j < 3 else vW; o = (j % 3)*20480 + 1024
        for tt in range(2):
            L.append(lambda tt=tt: a.ds(f"ds_read_b128 {R(xf(tt, 2*cx), 4)}, v{b[0]} offset:{o + 2048*tt}"))
            L.append(lambda tt=tt: a.ds(f"ds_read_b128 {R(xf(tt, 2*cx+1), 4)}, v{b[1]} offset:{o + 2048*tt}", f"T{cx}"))
        return L
    def statm(k):
        L = []
        for tt in range(2):
            L.append(MF(GR + 4*tt, xf(tt, k), xf(tt, k), k == 0)); L.append(MF(RSM + 4*tt, ONES, xf(tt, k), k == 0))
        return L
    def breads1(s):
        j, p = divmod(s, 4); L = []
        for t in range(5):
            L.append(lambda t=t: a.ds(f"ds_read_b128 {R(BF + (s&1)*20 + t*4, 4)}, v{vTB[p]} offset:{(j % 3)*20480 + t*1024}", f"R{s}"))
        if j == 2: L.append(f"v_add_u32 v{vTB[p]}, 61440, v{vTB[p]}")
        return L
    def ldb(j):
        def one(i):
            if i == 0: a(f"s_add_u32 m0, s52, {j*20480}"); a("s_add_u32 s57, s54, m0")
            if i == 4: a(f"s_add_u32 m0, s52, {j*20480 + 4096}")
            a.vmem(f"buffer_load_dwordx4 v{8 if i < 4 else 12}, s[40:43], s57 offen offset:{1024*(i&3)} sc1 lds", f"B{j}")
        return [lambda i=i: one(i) for i in range(5)]
    def ldq():
        def one(i):
            if i == 11: a("s_cmp_eq_u32 s28, 3"); a("s_cbranch_scc1 L_noq")
            a(f"s_mul_i32 s98, s28, 13312"); a(f"s_add_u32 m0, s98, {BQ + i*1024}"); a("s_add_u32 s98, s54, m0")
            a.a(f"buffer_load_dwordx4 v8, s[40:43], s98 offen sc1 lds")
            if i < 11: a.vm.append("BQ")
            if i == 12: a("L_noq:")
        return [lambda i=i: one(i) for i in range(11)] + [lambda: (one(11), one(12))]
    def ldt1():
        a("v_lshlrev_b32 v27, 1, v0"); a("s_add_u32 s56, s30, T1_tab-L_pc"); a("s_addc_u32 s57, s31, 0")
        a.vmem(f"global_load_ushort v{vT1}, v27, s[56:57]", "T1")
    def kv_mf(s):
        mf = []
        for t in range(5):
            b = BF + (s&1)*20 + t*4
            for tt in range(2): mf.append(MF(acc(tt, t), xf(tt, s), b, s == 0))
            if s % 4 == 0: mf.append(MF(CSA, OH + 4*t, b, s == 0 and t == 0))
        return mf
    RS = 96; MS = 104; RT = 112; MT = 114; CSV = 116
    URG = 168
    RES0 = 142
    def ldres_early():
        a("v_mul_u32_u24 v14, 320, v10"); a("v_lshl_add_u32 v15, v11, 3, v14"); a("v_lshl_add_u32 v14, v11, 4, v14")
        a("s_lshr_b32 s98, s27, 3"); a("s_lshl_b32 s98, s98, 2"); a("s_add_u32 s98, s98, s28"); a("s_lshl_b32 s99, s26, 3"); a("s_add_u32 s98, s98, s99"); a("s_mul_i32 s98, s98, 20480")
        a("s_and_b32 s99, s27, 7"); a("s_mul_i32 s99, s99, 160"); a("s_add_u32 s98, s98, s99")
        a.vmem(f"buffer_load_dwordx4 {R(RES0, 4)}, v14, s[32:35], s98 offen")
        a.vmem(f"buffer_load_dwordx4 {R(RES0+4, 4)}, v14, s[32:35], s98 offen offset:64")
        a.vmem(f"buffer_load_dwordx2 {R(RES0+8, 2)}, v15, s[32:35], s98 offen offset:128")
    def flagtouch():
        a(f"s_add_u32 s3, s58, {G_FL}"); a("s_bfm_b64 exec, 8, 0"); a.vmem("buffer_load_dword v4, v3, s[40:43], s3 offen"); a("s_mov_b64 exec, -1")
    for cx in range(NX0, 5):
        for f in ldx(cx): f()
    UPOS = P("UPOS", 6)
    if UPOS == 0:
        for f in (ldt1, flagtouch, unit_issue): f()
    for cx in range(10):
        a.wait(vm=f"X{cx}")
        for f in transp(cx): f()
        if cx:
            a.wait(lg=f"T{cx-1}")
            side = ldx(cx + 4) if cx + 4 < 10 else []
            if cx == UPOS: side = side + ([ldres_early, ldt1, flagtouch, unit_issue] if "resb" in OPT else [ldt1, flagtouch, unit_issue, ldres_early])
            a.interleave(statm(2*(cx-1)) + statm(2*(cx-1)+1), side)
    a.wait(lg="T9")
    a.stamp("xdone")
    a("s_mov_b32 s78, 0")
    a("L_h0p:")
    a("buffer_load_dword v16, v26, s[40:43], s55 offen sc1"); a("s_waitcnt vmcnt(0)")
    a("v_cmp_ne_u32 vcc, s76, v16")
    a("s_cbranch_vccz L_h0ok")
    a("s_add_u32 s78, s78, 1"); a(f"s_cmp_lt_u32 s78, {POLLMAX}"); a("s_cbranch_scc1 L_h0p")
    a("L_h0ok:")
    a.vm = []
    a.stamp("F0ok")
    for f in ldb(0): f()
    for f in ldb(1): f()
    a.wait(lg="all")
    for x in statm(18) + statm(19): a(x)
    a("s_cmp_eq_u32 s72, 2"); a("s_cbranch_scc1 L_rp_f5")
    rp_fin(7, URG); a("s_branch L_rp_done")
    a("L_rp_f5:"); rp_fin(5, URG)
    a("L_rp_done:")
    for tt in range(2):
        for e in range(4): a(f"v_accvgpr_read_b32 v{160+e}, {R(GR + 4*tt + e)}")
        a(f"v_accvgpr_read_b32 v164, {R(RSM + 4*tt)}")
        for x in ["v_cndmask_b32 v160, v160, v161, s[68:69]", "v_cndmask_b32 v162, v162, v163, s[68:69]", "v_mul_f32 v164, s63, v164",
                  "v_cndmask_b32 v160, v160, v162, s[86:87]", "v_mul_f32 v160, s63, v160", "v_fma_f32 v160, -v164, v164, v160",
                  "v_max_f32 v160, 0, v160", "v_add_f32 v160, s64, v160", "v_rsq_f32 v160, v160", "v_mul_f32 v164, v164, v160"]: a(x)
        a.ds(f"ds_write_b32 v{vSTW}, v160 offset:{64*tt}"); a.ds(f"ds_write_b32 v{vSTW}, v164 offset:{128 + 64*tt}")
    a("v_lshlrev_b32 v28, 4, v11"); a("v_add_u32 v28, s48, v28"); a("v_add_u32 v29, s48, v10")
    for tt in range(2):
        a.ds(f"ds_read_b128 {R(RS + 4*tt, 4)}, v28 offset:{64*tt}"); a.ds(f"ds_read_b128 {R(MS + 4*tt, 4)}, v28 offset:{128 + 64*tt}")
        a.ds(f"ds_read_b32 v{RT + tt}, v29 offset:{64*tt}"); a.ds(f"ds_read_b32 v{MT + tt}, v29 offset:{128 + 64*tt}")
    NBE = P("NBE", 3)
    for j in range(2, NBE):
        for f in ldb(j): f()
    a("s_lshl_b32 s73, s70, 9"); a(f"s_add_u32 s73, s73, {C1P}")
    a("s_cmp_eq_u32 s72, 2"); a("s_cselect_b32 s75, 0x40000000, s74"); a("s_cselect_b32 s73, 0x40000000, s73")
    a("v_lshlrev_b32 v85, 4, v11"); a("v_lshl_add_u32 v85, v10, 4, v85"); a("v_cndmask_b32 v85, v2, v85, s[66:67]")
    def ust(t):
        if t < 7: a.vmem(f"buffer_store_dwordx4 {R(URG + 4*t, 4)}, v{8 if t < 4 else 12}, s[40:43], s{74 if t < 5 else 75} offen offset:{1024*(t&3)} sc1", "US")
        else: a.vmem(f"buffer_store_dwordx4 {R(URG+36, 4)}, v85, s[40:43], s73 offen sc1", "US")
    a("s_and_b32 s59, s27, 7"); a("s_lshl_b32 s59, s59, 9"); a(f"s_add_u32 s59, s59, {FU}")
    a("s_lshr_b32 s3, s27, 3"); a("s_lshl_b32 s3, s3, 4"); a("s_add_u32 s3, s3, s26"); a("s_lshl_b32 s3, s3, 2"); a("s_add_u32 s3, s3, s28"); a("s_lshl_b32 s3, s3, 2"); a("s_add_u32 s70, s3, s59")
    a.wait(vm="B0")
    a("s_barrier")
    a.stamp("bP")
    a("s_mov_b32 s94, s60"); a("s_mov_b32 s95, s60"); a("s_mov_b32 s96, s61"); a("s_mov_b32 s97, s61")
    for f in breads1(0): a.run(f)
    def pretouch():
        if "sc1h" in OPT:
            a(f"s_add_u32 s3, s58, {G_FL}"); a("s_bfm_b64 exec, 4, 0"); a.vmem("buffer_load_dword v4, v3, s[40:43], s3 offen"); a("s_mov_b64 exec, -1")
            return
        a("s_mul_i32 s3, s27, 21056"); a("s_add_u32 s3, s3, s58"); a("s_mul_i32 s56, s28, 5376"); a("s_add_u32 s3, s3, s56")
        a("s_bfm_b64 exec, 42, 0"); a.vmem("buffer_load_dword v4, v3, s[40:43], s3 offen"); a("s_mov_b64 exec, -1")
    FB3 = 156
    a("s_and_b32 s3, s27, 7"); a("s_mul_i32 s3, s3, 20"); a("s_add_u32 s3, s3, s28"); a("s_mul_i32 s65, s3, 5120"); a(f"s_add_u32 s65, s65, {WOP}")
    def ldwo(n, t):
        a.vmem(f"buffer_load_dwordx4 {R(FB3 + (n*5+t)*4, 4)}, v{8 if t < 4 else 12}, s[40:43], s65 offen offset:{1024*(t&3)} sc1", "WO")
        if t == 4: a("s_add_u32 s65, s65, 20480")
    def ldfu():
        a("v_lshlrev_b32 v31, 3, v1")
        a.vmem("buffer_load_dwordx2 v[92:93], v31, s[40:43], s59 offen sc1", "FU")
    def chkfu():
        a.wait(vm="FU")
        a("s_mov_b32 s78, 0")
        a("L_fu:")
        a("v_cmp_ne_u32 vcc, s76, v92"); a("v_cmp_ne_u32 s[84:85], s76, v93")
        a("s_or_b64 vcc, vcc, s[84:85]"); a("s_cbranch_scc0 L_fu_ok")
        a("s_add_u32 s78, s78, 1"); a(f"s_cmp_ge_u32 s78, {POLLMAX}"); a("s_cbranch_scc1 L_fu_ok")
        a("buffer_load_dwordx2 v[92:93], v31, s[40:43], s59 offen sc1"); a("s_waitcnt vmcnt(0)")
        a("s_branch L_fu")
        a("L_fu_ok:")
    q_ = ldq(); mix = []
    if "usfirst" in OPT:
        mix = [lambda i=i: ust(i) for i in range(8)] + q_
    else:
        for i in range(12):
            mix.append(q_[i])
            if i < 8: mix.append(lambda i=i: ust(i))
    ldlist = sum([ldb(j) for j in range(NBE, 5)], [])
    MS0 = P("MS0", 6); MR = P("MR", 1)
    a.bgq = mix
    SFU = P("SFU", 18)
    LEND = P("LEND", 16)
    CT = 116
    for s in range(20):
        j, p = divmod(s, 4)
        if p == 3 and j < 4:
            a.wait(vm=f"B{j+1}"); a("s_barrier")
        if s == SFU:
            a.wait(vm="US")
            a("s_mov_b64 exec, 1"); a.vmem("buffer_store_dword v6, v5, s[40:43], s70 offen sc1"); a("s_mov_b64 exec, -1")
        if s == 18:
            a.wait(lg="CSW"); a("s_barrier")
        a.wait(lg=f"R{s}")
        mf = kv_mf(s)
        front = breads1(s+1) if s < 19 else []
        side = []
        if s == 17:
            side += ["s_lshl_b32 s3, s28, 9", f"s_add_u32 s3, s3, {CSX}", "v_add_u32 v27, s3, v8"]
            side.append(lambda: (a("s_bfm_b64 exec, 32, 0"), a.ds(f"ds_write_b128 v27, {R(CSA, 4)}", "CSW"), a("s_mov_b64 exec, -1")))
        if s == 18:
            assert a.vm.count("US") == 8
            side += ["v_lshlrev_b32 v27, 2, v10", f"v_add_u32 v27, {CSX}, v27"]
            for w in range(4):
                side.append(lambda w=w: a.ds(f"ds_read_b128 {R(CT + 4*w, 4)}, v27 offset:{512*w}"))
                side.append(lambda w=w: a.ds(f"ds_read_b32 v{CT + 16 + w}, v27 offset:{512*w + 256}", "CSR"))
        if s == 19:
            side.append(lambda: a.wait(lg="CSR"))
            for e in range(4):
                side += [f"v_add_f32 v{CT+e}, v{CT+e}, v{CT+4+e}", f"v_add_f32 v{CT+8+e}, v{CT+8+e}, v{CT+12+e}", f"v_add_f32 v{CT+20+e}, v{CT+e}, v{CT+8+e}"]
            side += [f"v_add_f32 v{CT+16}, v{CT+16}, v{CT+17}", f"v_add_f32 v{CT+18}, v{CT+18}, v{CT+19}", f"v_add_f32 v{CT+24}, v{CT+16}, v{CT+18}"]
        side += ldlist[:3]; ldlist = ldlist[3:]
        if s >= MS0: side = [lambda: a.bg(1)]*MR + side
        a.interleave(mf, side, front)
    CSV = CT + 20
    a.stamp("kvend")
    if "plainh" in OPT:
        a("s_mul_i32 s3, s27, 21056"); a("s_add_u32 s3, s3, s58"); a("s_mul_i32 s56, s28, 5376"); a("s_add_u32 s3, s3, s56")
        a("s_bfm_b64 exec, 42, 0"); a.vmem("buffer_load_dword v4, v3, s[40:43], s3 offen"); a("s_mov_b64 exec, -1")
    OP = 116; TP = 72
    FUC = P("FUC", 14)
    if FUC < 4: ldfu()
    KBG = P("KBG", 1)
    for t in range(5):
        for tt in range(2):
            b_ = acc(tt, t)
            cp = CSV + t; cpe = cp & ~1; sel = cp & 1
            for h in range(2):
                x = b_ + 2*h
                a(f"v_pk_mul_f32 v[{TP+2*h}:{TP+2*h+1}], v[{MS+4*tt+2*h}:{MS+4*tt+2*h+1}], v[{cpe}:{cpe+1}] op_sel:[0,{sel}] op_sel_hi:[1,{sel}]")
            for h in range(2):
                x = b_ + 2*h
                a(f"v_pk_fma_f32 v[{x}:{x+1}], v[{x}:{x+1}], v[{RS+4*tt+2*h}:{RS+4*tt+2*h+1}], v[{TP+2*h}:{TP+2*h+1}] neg_lo:[0,0,1] neg_hi:[0,0,1]")
            if t <= 2: phi4(a, b_, TP, sel_mask=("s[66:67]" if t == 2 else None))
            for h in range(2):
                a(f"v_cvt_pk_bf16_f32 v{OP + 4*t + 2*tt + h}, v{acc(tt, t) + 2*h}, v{acc(tt, t) + 2*h + 1}")
            if t*2 + tt == SFU - 20:
                a.wait(vm="US")
                a("s_mov_b64 exec, 1"); a.vmem("buffer_store_dword v6, v5, s[40:43], s70 offen sc1"); a("s_mov_b64 exec, -1")
            if t*2 + tt == FUC - 4: ldfu()
            if t*2 + tt == FUC: chkfu(); a.bgq += [lambda n=n, t=t: ldwo(n, t) for n in range(5) for t in range(5)]
            a.bg(KBG)
    while "BQdone" not in a.vm and a.vm.count("BQ") < 11 or (a.bgq and a.bgq[0] is q_[11]): a.bg(1)
    KVD = 32
    for p, (ta, tb) in enumerate(PAIRS):
        a(MF(KVD + 4*p, OP + 4*ta, ONES if tb < 0 else OP + 4*tb, True))
    a("s_mul_i32 s3, s28, 10240"); a("v_add_u32 v27, s3, v8")
    for p in range(10): a(f"ds_write_b128 v27, {R(KVD + 4*p, 4)} offset:{1024*p}")
    a("s_lshl_b32 s3, s27, 4"); a("s_add_u32 s3, s3, s26"); a("s_lshl_b32 s3, s3, 12"); a(f"s_add_u32 s3, s3, {PART}")
    a("v_cmp_gt_u32 vcc, 216, v0"); a("v_cndmask_b32 v9, v2, v9, vcc")
    a.wait(lg="all")
    a("s_barrier")
    for w in range(4): a(f"ds_read_b128 {R(56 + 4*w, 4)}, v{vT1} offset:{10240*w}")
    a("s_waitcnt lgkmcnt(0)")
    for e in (0, 2):
        a(f"v_pk_add_f32 v[{56+e}:{57+e}], v[{56+e}:{57+e}], v[{60+e}:{61+e}]"); a(f"v_pk_add_f32 v[{64+e}:{65+e}], v[{64+e}:{65+e}], v[{68+e}:{69+e}]")
    for e in (0, 2): a(f"v_pk_add_f32 v[{56+e}:{57+e}], v[{56+e}:{57+e}], v[{64+e}:{65+e}]")
    if "p16" in OPT:
        a("v_cvt_pk_bf16_f32 v56, v56, v57"); a("v_cvt_pk_bf16_f32 v57, v58, v59"); a("v_lshrrev_b32 v9, 1, v9")
        a.vmem(f"buffer_store_dwordx2 v[56:57], v9, s[40:43], s3 offen sc1", "PST")
    else:
        a.vmem(f"buffer_store_dwordx4 v[56:59], v9, s[40:43], s3 offen sc1", "PST")
    ldfu()
    a("s_lshr_b32 s48, s27, 3"); a("s_and_b32 s49, s27, 7")
    a("v_lshrrev_b32 v13, 1, v11"); a("v_lshlrev_b32 v13, 8, v13"); a("v_lshl_add_u32 v13, v10, 2, v13")
    a("v_and_b32 v28, 1, v11"); a("v_lshl_add_u32 v13, v28, 3, v13")
    a("v_mul_u32_u24 v14, 320, v10"); a("v_lshl_add_u32 v15, v11, 3, v14"); a("v_lshl_add_u32 v14, v11, 4, v14")
    a("s_lshl_b32 s50, s48, 2"); a("s_add_u32 s50, s50, s28")
    a("s_lshl_b32 s3, s26, 3"); a("s_add_u32 s3, s3, s50"); a("s_mul_i32 s51, s3, 20480"); a("s_mul_i32 s3, s49, 160"); a("s_add_u32 s51, s51, s3")
    a("s_mul_i32 s53, s27, 27"); a("s_lshr_b32 s53, s53, 2")
    a("s_mul_i32 s55, s27, 143360"); a(f"s_add_u32 s55, s55, {W1P}")
    srd(a, 36, 14, 3456)
    a("v_lshlrev_b32 v23, 4, v11"); a("v_lshl_add_u32 v26, v10, 4, v23")
    a("s_lshl_b32 s62, s27, 2"); a("s_add_u32 s62, s62, s28"); a("s_lshl_b32 s62, s62, 7")
    a("s_lshl_b32 s56, s26, 7"); a("s_add_u32 s56, s56, 8192")
    a("v_mov_b32 v27, s62"); a("v_mov_b32 v28, s56"); a("v_cndmask_b32 v17, v27, v28, s[88:89]"); a("v_add_u32 v17, v17, v10")
    a("s_lshl_b32 s3, s26, 2"); a("s_add_u32 s3, s3, s62"); a(f"s_add_u32 s3, s3, {F1}")
    a.wait(vm="PST")
    a("s_mov_b64 exec, 1"); a.vmem("buffer_store_dword v6, v5, s[40:43], s3 offen sc1"); a("s_mov_b64 exec, -1")
    a("s_barrier")
    a.stamp("b7")
    chkfu(); a.bgq += [lambda n=n, t=t: ldwo(n, t) for n in range(5) for t in range(5)]
    FB3 = 156; RES = 116; C1R = 126; T2R = 146
    B1A = A0 + 204
    W1T = A0 + 100
    def w1dma(i):
        a(f"s_mul_i32 s98, s28, {24*1024}"); a(f"s_add_u32 m0, s98, {i*1024}"); a("s_add_u32 s98, s55, m0")
        a.vmem(f"buffer_load_dwordx4 v8, s[40:43], s98 offen sc1 lds", "W1")
    def w1tail(i):
        a(f"s_mul_i32 s98, s28, {11*1024}"); a(f"s_add_u32 s98, s98, {(96+i)*1024}"); a("s_add_u32 s98, s55, s98")
        a.vmem(f"buffer_load_dwordx4 {R(W1T + 4*i, 4)}, v8, s[40:43], s98 offen sc1", "W1")
    def ldsmall():
        a("v_lshlrev_b32 v31, 5, v1"); a("s_add_u32 s98, s30, T2_tab-L_pc"); a("s_addc_u32 s99, s31, 0")
        a.vmem(f"global_load_dwordx4 {R(T2R, 4)}, v31, s[98:99]"); a.vmem(f"global_load_dwordx2 {R(T2R+4, 2)}, v31, s[98:99] offset:16")
    def ldres(q):
        if q == 0: a.vmem(f"buffer_load_dwordx4 {R(RES, 4)}, v14, s[32:35], s51 offen")
        if q == 1: a.vmem(f"buffer_load_dwordx4 {R(RES+4, 4)}, v14, s[32:35], s51 offen offset:64")
        if q == 2: a.vmem(f"buffer_load_dwordx2 {R(RES+8, 2)}, v15, s[32:35], s51 offen offset:128", "RES")
    def ldb1():
        a("v_lshlrev_b32 v31, 3, v11"); a("s_lshl_b32 s98, s53, 5")
        for p in range(3): a.vmem(f"buffer_load_dwordx4 {R(B1A + 4*p, 4)}, v23, s[36:39], s98 offen offset:{64*p}")
        a.vmem(f"buffer_load_dwordx2 {R(B1A + 12, 2)}, v31, s[36:39], s98 offen offset:192")
    def ldc1():
        a("s_mul_i32 s98, s27, 20"); a("s_mul_i32 s99, s28, 5"); a("s_add_u32 s98, s98, s99"); a("s_lshl_b32 s98, s98, 9"); a(f"s_add_u32 s98, s98, {C1P}")
        a("s_mov_b64 exec, s[66:67]")
        for n in range(5): a.vmem(f"buffer_load_dwordx4 {R(C1R + 4*n, 4)}, v26, s[40:43], s98 offen offset:{512*n} sc1", "C1")
        a("s_mov_b64 exec, -1")
    def hidtouch():
        a("s_mul_i32 s98, s27, 27648"); a("s_add_u32 s98, s98, s58"); a(f"s_add_u32 s98, s98, {G_HID}"); a("s_mul_i32 s99, s28, 6912"); a("s_add_u32 s98, s98, s99")
        a("s_bfm_b64 exec, 54, 0"); a.vmem("buffer_load_dword v4, v3, s[40:43], s98 offen"); a("s_mov_b64 exec, -1")
    for x in range(10): a(f"v_mov_b32 v{RES+x}, v{RES0+x}")
    ldsmall()
    a.bgq += [ldb1, ldc1] + [lambda i=i: w1dma(i) for i in range(24)]
    QA = 32
    def qreads(s):
        j, p = divmod(s, 4)
        return [lambda t=t: a.ds(f"ds_read_b128 {R(BF + (s%3)*12 + t*4, 4)}, v{vTQ[p] if t < 2 else vTQ2[p]} offset:{j*10240 + (t&1)*1024}", f"Q{s}") for t in range(3)]
    for f in qreads(0) + qreads(1): f()
    a(f"s_mov_b32 s56, {F1}")
    QSTOP = P("QSTOP", 16)
    for s in range(20):
        j, p = divmod(s, 4)
        if s == 18: a.wait(lg="CQW"); a("s_barrier")
        a.wait(lg=f"Q{s}")
        mf = []
        for t in range(3):
            b = BF + (s%3)*12 + t*4
            for tt in range(2): mf.append(MF(QA + (tt*3+t)*4, b, xf(tt, s), s == 0))
            if p == 0: mf.append(MF(CSQ, b, OH + 4*t, s == 0 and t == 0))
        front = qreads(s+2) if s < 18 else []
        side = []
        if s < QSTOP: side += [lambda: a.bg(1)]*P("QBG", 1)
        if s == 17:
            side.append(lambda: a.vmem("buffer_load_dword v16, v17, s[40:43], s56 offen sc1", "POLL1"))
            side += ["s_lshl_b32 s3, s28, 9", f"s_add_u32 s3, s3, {CSX}", "v_add_u32 v27, s3, v26"]
            side.append(lambda: (a("s_mov_b64 exec, s[66:67]"), a.ds(f"ds_write_b128 v27, {R(CSQ, 4)}", "CQW"), a("s_mov_b64 exec, -1")))
        if s == 18:
            side += [f"v_add_u32 v30, {CSX}, v23"]
            for w, base in ((0, 56), (1, 68), (2, 96)):
                for t in range(3): side.append(lambda w=w, t=t, base=base: a.ds(f"ds_read_b128 {R(base + 4*t, 4)}, v30 offset:{512*w + 64*t}", "CQR"))
        if s == 19:
            side.append(lambda: a.wait(lg="CQR"))
            for x in range(12): side.append(f"v_add_f32 v{56+x}, v{56+x}, v{68+x}")
            for t in range(3): side.append(lambda t=t: a.ds(f"ds_read_b128 {R(68 + 4*t, 4)}, v30 offset:{1536 + 64*t}", "CQR"))
        a.interleave(mf, side, front)
    a.stamp("qend")
    a.wait(vm="POLL1")
    a("s_mov_b32 s78, 0")
    a("L_h1p:")
    a("v_and_b32 v28, 0xfffffff8, v16"); a("v_cmp_ne_u32 vcc, s76, v28")
    a("s_cbranch_vccz L_h1ok")
    a("s_add_u32 s78, s78, 1"); a(f"s_cmp_ge_u32 s78, {POLLMAX}"); a("s_cbranch_scc1 L_h1ok")
    a("buffer_load_dword v16, v17, s[40:43], s56 offen sc1"); a("s_waitcnt vmcnt(0)")
    a("s_branch L_h1p")
    a("L_h1ok:")
    a.stamp("h1ok")
    a.vm = []
    a("v_cmp_ne_u32 vcc, s77, v16"); a("s_and_b64 vcc, vcc, s[88:89]"); a("s_cselect_b32 s79, 0, 1")
    if os.environ.get("FORCESLOW"): a("s_mov_b32 s79, 0")
    P0 = A0
    a("s_lshl_b32 s3, s27, 16"); a(f"s_add_u32 s3, s3, {PART}")
    for r_ in range(16):
        if "p16" in OPT: a.vmem(f"buffer_load_dwordx2 {R(P0 + 4*r_, 2)}, v9, s[40:43], s3 offen sc1", f"P{r_}")
        else: a.vmem(f"buffer_load_dwordx4 {R(P0 + 4*r_, 4)}, v9, s[40:43], s3 offen sc1", f"P{r_}")
        a("s_add_u32 s3, s3, 4096")
    a.bgq += [lambda i=i: w1tail(i) for i in range(11)]
    for x in range(0, 12, 2): a(f"v_pk_add_f32 v[{56+x}:{57+x}], v[{56+x}:{57+x}], v[{96+x}:{97+x}]")
    a.wait(lg="all")
    for x in range(0, 12, 2): a(f"v_pk_add_f32 v[{56+x}:{57+x}], v[{56+x}:{57+x}], v[{68+x}:{69+x}]")
    PQR = 96
    EBG = P("EBG", 2)
    for tt in range(2):
        for t in range(3):
            b_ = QA + (tt*3+t)*4
            for h in range(2):
                a(f"v_pk_mul_f32 v[{TP+2*h}:{TP+2*h+1}], v[{56+4*t+2*h}:{57+4*t+2*h}], v[{MT}:{MT+1}] op_sel:[0,{tt}] op_sel_hi:[1,{tt}]")
            for h in range(2):
                x = b_ + 2*h
                a(f"v_pk_fma_f32 v[{x}:{x+1}], v[{x}:{x+1}], v[{RT}:{RT+1}], v[{TP+2*h}:{TP+2*h+1}] op_sel:[0,{tt},0] op_sel_hi:[1,{tt},1] neg_lo:[0,0,1] neg_hi:[0,0,1]")
            phi4(a, b_, TP)
            for h in range(2):
                d = f"v{PQR + tt*6 + t*2 + h}"
                a(f"v_cvt_pk_bf16_f32 {d}, v{QA + (tt*3+t)*4 + 2*h}, v{QA + (tt*3+t)*4 + 2*h + 1}")
                if t == 2: a(f"v_cndmask_b32 {d}, 0, {d}, s[90:91]")
            a.bg(EBG)
    OSC = SCR
    TA = 56
    for s_ in range(12):
        src = T2R + s_//2
        if s_ & 1: a(f"v_lshrrev_b32 v{TA+s_}, 16, v{src}")
        else: a(f"v_and_b32 v{TA+s_}, 0xffff, v{src}")
        a(f"v_add_u32 v{TA+s_}, {OSC}, v{TA+s_}")
    for r_ in range(16):
        if r_ % 4 == 0: a.wait(vm=f"P{r_+3}")
        if "p16" in OPT:
            b_ = 32 if r_ == 0 else 36
            for e in range(2): a(f"v_accvgpr_read_b32 v{40+e}, {R(P0+4*r_+e)}")
            for e in range(2): a(f"v_lshlrev_b32 v{b_+2*e}, 16, v{40+e}"); a(f"v_and_b32 v{b_+2*e+1}, 0xffff0000, v{40+e}")
        else:
            for e in range(4): a(f"v_accvgpr_read_b32 v{(32 if r_ == 0 else 36)+e}, {R(P0+4*r_+e)}")
        if r_:
            for e in (0, 2): a(f"v_pk_add_f32 v[{32+e}:{33+e}], v[{32+e}:{33+e}], v[{36+e}:{37+e}]")
        if r_ % 4 == 3: a.bg(EBG)
    a("v_cvt_pk_bf16_f32 v18, v32, v33"); a("v_cvt_pk_bf16_f32 v19, v34, v35")
    a("v_cmp_gt_u32 vcc, 210, v0")
    a("v_cndmask_b32 v18, 0, v18, vcc"); a("v_cndmask_b32 v19, 0, v19, vcc")
    a("v_lshlrev_b32 v27, 3, v0"); a(f"v_add_u32 v27, {OSC}, v27")
    a("ds_write_b64 v27, v[18:19]")
    a("s_waitcnt lgkmcnt(0)")
    a("s_barrier")
    a.stamp("b9")
    KF = A0 + 64
    for E in range(4):
        for ta in range(3): a(f"ds_read_b64 {R(KF + 8*E + 2*ta, 2)}, v{TA + 3*E + ta}")
    a("s_mul_i32 s3, s28, 40960"); a("s_mul_i32 s56, s27, 1280"); a("s_add_u32 s3, s3, s56"); a("s_add_u32 s3, s3, s58")
    a("v_lshlrev_b32 v27, 2, v10"); a("v_lshl_add_u32 v27, v11, 3, v27")
    a("v_cndmask_b32 v27, v2, v27, s[90:91]")
    a("s_waitcnt lgkmcnt(0)")
    D = 32
    for tt in range(2):
        for E in (3, 0, 1, 2):
            d = R(D + (tt*4+E)*4, 4)
            a(f"v_mfma_f32_16x16x32_bf16 {d}, {R(KF + 8*E, 4)}, {R(PQR + 6*tt, 4)}, 0")
    for tt in range(2):
        for E in (3, 0, 1, 2):
            d = R(D + (tt*4+E)*4, 4)
            a(f"v_mfma_f32_16x16x16_bf16 {d}, {R(KF + 8*E + 4, 2)}, {R(PQR + 6*tt + 4, 2)}, {d}")
    for tt in range(2):
        z = D + (tt*4+3)*4
        a(f"v_add_f32 v20, s61, v{z}"); a(f"v_add_f32 v21, s61, v{z+1}")
        a("v_rcp_f32 v20, v20"); a("v_rcp_f32 v21, v21")
        a("v_cndmask_b32 v22, v21, v20, s[92:93]"); a("v_cndmask_b32 v28, v21, v20, s[90:91]")
        ob = 64 + 8*tt
        for E, rc in ((0, 22), (1, 28), (2, 21)):
            d = D + (tt*4+E)*4
            for e in range(4): a(f"v_mul_f32 v{d+e}, v{d+e}, v{rc}")
            a(f"v_cvt_pk_bf16_f32 v{ob + 2*E}, v{d}, v{d+1}"); a(f"v_cvt_pk_bf16_f32 v{ob + 2*E + 1}, v{d+2}, v{d+3}")
        a.vmem(f"buffer_store_dwordx4 {R(ob, 4)}, v8, s[40:43], s3 offen{HS}", "ST")
        a.vmem(f"buffer_store_dwordx2 {R(ob + 4, 2)}, v27, s[40:43], s3 offen offset:1024{HS}", "ST")
        a("s_add_u32 s3, s3, 20480")

    def hop(n, before, after_pub, post=0, touch=None, post2=0):
        before()
        a(f"s_add_u32 s59, s58, {G_FL + 128*n}")
        a("s_lshl_b32 s3, s27, 2"); a("s_add_u32 s3, s3, s59")
        a.bg(post)
        a.wait(vm="ST")
        if touch and "notouch" not in OPT: touch()
        a("s_barrier")
        a.stamp(f"hop{n}a")
        a("s_cmp_lg_u32 s28, 0"); a(f"s_cbranch_scc1 L_g{n}np")
        a("s_mov_b64 exec, 1")
        a("s_cmp_eq_u32 s79, 0"); a(f"s_cbranch_scc1 L_g{n}slow")
        a("buffer_store_dword v6, v5, s[40:43], s3 offen")
        a(f"s_branch L_g{n}pd")
        a(f"L_g{n}slow:")
        if FENCE: a("buffer_wbl2 sc1"); a("s_waitcnt vmcnt(0)")
        a("buffer_store_dword v6, v5, s[40:43], s3 offen sc1")
        a(f"L_g{n}pd:")
        a("s_mov_b64 exec, -1")
        a(f"L_g{n}np:")
        after_pub()
        a.bg(post2)
        a("s_cmp_lg_u32 s28, 0"); a(f"s_cbranch_scc1 L_g{n}j")
        a("s_mov_b32 s78, 0")
        a(f"L_g{n}p:")
        a("buffer_load_dword v27, v10, s[40:43], s59 offen sc1")
        a("s_add_u32 s78, s78, 1")
        a("s_waitcnt vmcnt(0)")
        a("v_cmp_ne_u32 vcc, s76, v27")
        a(f"s_cmp_ge_u32 s78, {POLLMAX}"); a(f"s_cbranch_scc1 L_g{n}x")
        a(f"s_cbranch_vccnz L_g{n}p")
        a(f"L_g{n}x:")
        if FENCE:
            a("s_cmp_lg_u32 s79, 0"); a(f"s_cbranch_scc1 L_g{n}j")
            a("buffer_inv sc1"); a("s_waitcnt vmcnt(0)")
        a(f"L_g{n}j:")
        a("s_barrier")
        a.stamp(f"hop{n}b")
    def a_off(NK, goff):
        for m in range(4):
            a(f"s_add_u32 s3, s28, {m}"); a("s_and_b32 s3, s3, 3"); a("s_lshl_b32 s57, s48, 2"); a("s_add_u32 s3, s3, s57")
            a(f"s_mul_i32 s3, s3, {NK}"); a("s_add_u32 s3, s3, s28"); a("s_lshl_b32 s3, s3, 10"); a("s_add_u32 s3, s3, s58"); a(f"s_add_u32 s{80+m}, s3, {goff}")
    def ctouch(lab, nl):
        def f():
            a("s_lshl_b32 s98, s27, 2"); a("s_add_u32 s98, s98, s28"); a(f"s_mul_i32 s98, s98, {128*nl}"); a(f"s_add_u32 s98, s98, {lab}-L_pc")
            a("v_add_u32 v31, s98, v3"); a(f"s_bfm_b64 exec, {nl}, 0")
            a.vmem("global_load_dword v4, v31, s[30:31]"); a("s_mov_b64 exec, -1")
        return f
    if "noct" not in OPT: a.bgq.insert(0, ctouch("L_cS4", 2))
    def flush_wo():
        while any(True for _ in [0]) and a.bgq and len(a.bgq) > 24 + 11: a.bg(1)
    def bef0():
        a_off(20, G_O)
        a("s_mul_i32 s99, s28, 40960"); a("s_mul_i32 s56, s27, 1280"); a("s_add_u32 s99, s99, s56"); a("s_add_u32 s99, s99, s58")
        a("v_mul_u32_u24 v28, 20480, v11"); a("v_lshl_add_u32 v28, v10, 5, v28")
    def tch0():
        a("s_mov_b64 exec, 0x03ff03ff"); a.vmem("buffer_load_dword v4, v28, s[40:43], s99 offen sc1"); a("s_mov_b64 exec, -1")
    hop(0, bef0, lambda: None, post=0, touch=tch0, post2=P("POST0", 10))
    flush_wo()
    ACC = 32 ; FA3 = A0
    for n in range(5):
        for m in range(4):
            a.vmem(f"buffer_load_dwordx4 {R(FA3 + (n*4+m)*4, 4)}, v8, s[40:43], s{80+m} offen sc1", f"A{n}")
            a(f"s_add_u32 s{80+m}, s{80+m}, 4096")
    if "sc1hid" not in OPT: a.bgq.insert(0, hidtouch)
    RED = 102400
    def red_addr():
        for m in range(1, 4):
            a(f"s_add_u32 s3, s28, {m}"); a("s_and_b32 s3, s3, 3"); a("s_mul_i32 s3, s3, 15360"); a(f"s_add_u32 s3, s3, {RED}")
            a(f"v_add_u32 v{16+m}, s3, v8")
        a("s_mul_i32 s3, s28, 15360"); a(f"s_add_u32 s3, s3, {RED}"); a("v_add_u32 v16, s3, v8")
    def init_acc(srcs):
        for t in range(5):
            for e in range(4):
                for q, src0 in enumerate(srcs):
                    src = src0 + 2*t + (e >> 1); d = ACC+4*t+e if q == 0 else 27
                    if e & 1: a(f"v_and_b32 v{d}, 0xffff0000, v{src}")
                    else: a(f"v_lshlrev_b32 v{d}, 16, v{src}")
                    if q: a(f"v_add_f32 v{ACC+4*t+e}, v{ACC+4*t+e}, v27")
    def last_step(mfn):
        order = [(m, t) for m in (1, 2, 3, 0) for t in range(5)]
        for i, (m, t) in enumerate(order):
            a(mfn(m, t))
            if i >= 5:
                m2, t2 = order[i-5]
                a(f"ds_write_b128 v{16+m2}, {R(ACC + (m2*5+t2)*4, 4)} offset:{(m2-1)*5120 + t2*1024}")
    red_addr()
    if "RES" in a.vm: a.wait(vm="RES")
    init_acc([RES])
    S3BG = P("S3BG", 3)
    for n in range(5):
        a.wait(vm=f"A{n}")
        if n == 4:
            last_step(lambda m, t: MF(ACC + (m*5+t)*4, FB3 + (n*5+t)*4, FA3 + (n*4+m)*4, False)); a.bg(S3BG)
        else:
            mf = [MF(ACC + (m*5+t)*4, FB3 + (n*5+t)*4, FA3 + (n*4+m)*4, n == 0 and m > 0) for m in range(4) for t in range(5)]
            a.interleave(mf, [lambda: a.bg(1)]*S3BG)
    a.stamp("s3end")
    a("L_cS4:")
    if "plainhid" in OPT and P("HTP", 0) == 0: hidtouch()
    HF = A0; BF = A0 + 160
    NA = P("NA", 4); BS = 4*max(NA, 7 - NA)
    if NA == 4:
        slots = [156 + 4*i for i in range(16)] + [A0 + 192 + 4*i for i in range(3)] + [A0 + 220 + 4*i for i in range(9)] + [HF + 4*i for i in range(40)] + [BF + 4*i for i in range(2)]
        NEARLY = 28
        arA = [A0 + 168 + 4*i for i in range(6)] + [A0 + 204 + 4*i for i in range(4)]
    elif NA == 7:
        for x in range(14): a(f"v_accvgpr_mov_b32 {R(A0 + 240 + x)}, {R(B1A + x)}")
        B1A = A0 + 240
        slots = [156 + 4*i for i in range(16)] + [A0 + 216 + 4*i for i in range(6)] + [HF + 4*i for i in range(40)] + [BF + 4*i for i in range(8)]
        NEARLY = 22
        arA = [A0 + 192 + 4*i for i in range(6)] + [A0 + 240 + 4*i for i in range(4)]
    else:
        for x in range(14): a(f"v_accvgpr_mov_b32 {R(A0 + 240 + x)}, {R(B1A + x)}")
        B1A = A0 + 240
        slots = [156 + 4*i for i in range(16)] + [A0 + 208 + 4*i for i in range(8)] + [HF + 4*i for i in range(40)] + [BF + 4*i for i in range(6)]
        NEARLY = 24
        arA = [A0 + 184 + 4*i for i in range(6)] + [A0 + 240 + 4*i for i in range(4)]
    def fb(n, t): return slots[n*5 + t]
    a("s_mul_i32 s3, s49, 54"); a("s_add_u32 s3, s3, s28"); a("s_mul_i32 s54, s3, 5120"); a(f"s_add_u32 s54, s54, {W2P}")
    def ldw2(n, t):
        if n == 13 and t == 0:
            a("s_cmp_ge_u32 s28, 2"); a("s_cselect_b32 s98, 0x40000000, 0"); a("s_add_u32 s54, s54, s98")
        a.vmem(f"buffer_load_dwordx4 {R(fb(n, t), 4)}, v{8 if t < 4 else 12}, s[40:43], s54 offen offset:{1024*(t&3)} sc1", f"W2_{n}")
        if t == 4: a("s_add_u32 s54, s54, 20480")
    w2q = [(n, t) for n in range(14) for t in range(5)]
    nw1left = len(a.bgq)
    def w2bg():
        ldw2(*w2q.pop(0))
    a.bgq += [w2bg]*NEARLY
    def reduce_epi(which, BIA=None, nbg=0):
        a.bg(2*nbg)
        a("s_waitcnt lgkmcnt(0)")
        a("s_barrier")
        for t in range(5):
            for m in range(1, 4): a(f"ds_read_b128 {R(ACC + (m*5+t)*4, 4)}, v16 offset:{(m-1)*5120 + t*1024}")
        for t in range(5):
            a(f"s_waitcnt lgkmcnt({12 - 3*t})")
            for e in (0, 2):
                x0 = ACC + 4*t + e
                a(f"v_pk_add_f32 v[{x0+20}:{x0+21}], v[{x0+20}:{x0+21}], v[{x0+40}:{x0+41}]"); a(f"v_pk_add_f32 v[{x0}:{x0+1}], v[{x0}:{x0+1}], v[{x0+60}:{x0+61}]")
            for e in (0, 2):
                x0 = ACC + 4*t + e
                a(f"v_pk_add_f32 v[{x0}:{x0+1}], v[{x0}:{x0+1}], v[{x0+20}:{x0+21}]")
            for h in range(2): a(f"v_cvt_pk_bf16_f32 v{RES+2*t+h}, v{ACC+4*t+2*h}, v{ACC+4*t+2*h+1}")
            if which == 3:
                if t == 1: a.vmem(f"buffer_store_dwordx4 {R(RES, 4)}, v8, s[40:43], s57 offen{HS}")
                if t == 3: a.vmem(f"buffer_store_dwordx4 {R(RES+4, 4)}, v8, s[40:43], s57 offen offset:1024{HS}")
                if t == 4: a.vmem(f"buffer_store_dwordx2 {R(RES+8, 2)}, v13, s[40:43], s57 offen offset:2048{HS}")
    a("s_mul_i32 s57, s50, 20480"); a("s_mul_i32 s3, s49, 2560"); a("s_add_u32 s57, s57, s3"); a("s_add_u32 s57, s57, s58"); a(f"s_add_u32 s57, s57, {G_H}")
    reduce_epi(3, nbg=P("R3BG", 3))
    a(f"v_pk_add_f32 v[28:29], v[{ACC}:{ACC+1}], v[{ACC+2}:{ACC+3}]"); a(f"v_pk_mul_f32 v[30:31], v[{ACC}:{ACC+1}], v[{ACC}:{ACC+1}]"); a(f"v_pk_fma_f32 v[30:31], v[{ACC+2}:{ACC+3}], v[{ACC+2}:{ACC+3}], v[30:31]")
    for x in range(4, 20, 2):
        a(f"v_pk_add_f32 v[28:29], v[28:29], v[{ACC+x}:{ACC+x+1}]"); a(f"v_pk_fma_f32 v[30:31], v[{ACC+x}:{ACC+x+1}], v[{ACC+x}:{ACC+x+1}], v[30:31]")
    a("v_add_f32 v20, v28, v29"); a("v_add_f32 v21, v30, v31")
    def red_g(regs, tmp):
        for r_ in regs:
            a(f"v_mov_b32 {tmp}, {r_}"); a(f"v_permlane32_swap_b32 {r_}, {tmp}"); a(f"v_add_f32 {r_}, {r_}, {tmp}")
            a(f"v_mov_b32 {tmp}, {r_}"); a(f"v_permlane16_swap_b32 {r_}, {tmp}"); a(f"v_add_f32 {r_}, {r_}, {tmp}")
    red_g(["v20", "v21"], "v22")
    a("v_lshlrev_b32 v22, 1, v10")
    a("s_lshl_b32 s57, s50, 10"); a("s_lshl_b32 s3, s49, 7"); a("s_add_u32 s57, s57, s3"); a("s_add_u32 s57, s57, s58"); a(f"s_add_u32 s57, s57, {G_ST}")
    a.vmem(f"buffer_store_dwordx2 v[20:21], v22, s[40:43], s57 offen{HS}", "ST")
    CS = 128; CSL = 144384
    def bef3():
        a("s_mul_i32 s3, s28, 40960"); a("s_add_u32 s3, s3, s58"); a(f"s_add_u32 s80, s3, {G_H}"); a("s_add_u32 s81, s80, 20480")
        a("s_lshl_b32 s82, s28, 11"); a("s_add_u32 s82, s82, s58"); a(f"s_add_u32 s82, s82, {G_ST}")
        a("v_lshlrev_b32 v19, 8, v11"); a("v_lshl_add_u32 v19, v10, 1, v19")
        a("v_add_u32 v16, 57344, v8"); a("v_add_u32 v17, 114688, v8")
        a(f"s_mul_i32 s3, s28, {11*1024}"); a(f"s_add_u32 s3, s3, {96*1024}"); a("v_add_u32 v18, s3, v8")
        for e in range(4):
            a(f"v_add_f32 v{C1R+e}, v{C1R+e}, v{C1R+4+e}"); a(f"v_add_f32 v{C1R+8+e}, v{C1R+8+e}, v{C1R+12+e}")
            a(f"v_add_f32 v{C1R+e}, v{C1R+e}, v{C1R+16+e}"); a(f"v_add_f32 v{C1R+e}, v{C1R+e}, v{C1R+8+e}")
        a("s_lshl_b32 s3, s28, 9"); a(f"s_add_u32 s3, s3, {CSL}"); a("v_add_u32 v29, s3, v26")
    def aft3():
        if "W1" in a.vm: a.wait(vm="W1")
        for i in range(11): a(f"ds_write_b128 v18, {R(W1T + 4*i, 4)} offset:{1024*i}")
        a("s_mov_b64 exec, s[66:67]"); a(f"ds_write_b128 v29, {R(C1R, 4)}"); a("s_mov_b64 exec, -1")
        a("s_waitcnt lgkmcnt(0)")
    left1 = max(0, len(a.bgq) - len([1 for x in a.bgq if x is w2bg]))
    print("w1 left at hop3:", left1, "w2 issued:", 70 - len(w2q), file=sys.stderr)
    def tch1():
        a("s_mul_i32 s99, s50, 20480"); a("s_mul_i32 s98, s49, 2560"); a("s_add_u32 s99, s99, s98"); a("s_add_u32 s99, s99, s58"); a(f"s_add_u32 s99, s99, {G_H}")
        a("s_mov_b64 exec, 0xfffff"); a.vmem("buffer_load_dword v4, v3, s[40:43], s99 offen sc1"); a("s_mov_b64 exec, -1")
    hop(1, bef3, aft3, post=left1, touch=tch1, post2=max(0, P("POST1", 6) - left1))
    def hf(tt, k): return HF + (k*2 + tt)*4
    def ldh(k):
        def one(tt):
            a.vmem(f"buffer_load_dwordx4 {R(hf(tt, k), 4)}, v8, s[40:43], s{80+tt} offen offset:{1024*(k&3)} sc1", f"H{k}")
            if (k & 3) == 3: a(f"s_add_u32 s{80+tt}, s{80+tt}, 4096")
        return [lambda tt=tt: one(tt) for tt in range(2)]
    PRE = P("PRE4", 6)
    for k in range(PRE):
        for f in ldh(k): f()
    for tt in range(2):
        for q in range(2):
            a.vmem(f"buffer_load_dwordx2 {R(88 + 4*tt + 2*q, 2)}, v19, s[40:43], s82 offen offset:{1024*tt + 128*q} sc1", "STAT")
    def breads(ps, k):
        ts = range(NA) if ps == 0 else range(NA, 7)
        return [lambda t=t: a.ds(f"ds_read_b128 {R(BF + (k&1)*BS + 4*(t - ts[0]), 4)}, v{[8, 16, 17][k >> 3]} offset:{(k & 7)*7168 + 1024*t}", f"BR{ps}_{k}") for t in ts]
    for f in breads(0, 0): f()
    vS = [20, 21]; vQ = [24, 25]
    a(f"v_add_u32 v18, {CSL}, v23")
    hq = list(range(PRE, 20))
    B1U = 220
    c1 = -2.0*LOG2E*0.7978845608028654
    c2 = c1*0.044715
    a(f"s_mov_b32 s60, {hx(c1)}"); a(f"s_mov_b32 s61, {hx(c2)}")
    a("s_mul_i32 s72, s28, 110592"); a("s_add_u32 s72, s72, s58"); a(f"s_add_u32 s72, s72, {G_HID}")
    a("s_lshl_b32 s3, s27, 11"); a("s_add_u32 s56, s72, s3"); a("s_add_u32 s57, s56, 55296")
    a("s_lshl_b32 s3, s27, 10"); a("s_add_u32 s70, s72, s3"); a("s_add_u32 s70, s70, 32768"); a("s_add_u32 s71, s70, 55296")
    a("s_lshr_b32 s3, s27, 2"); a("s_sub_u32 s3, s27, s3"); a("s_lshl_b32 s3, s3, 9"); a("s_add_u32 s72, s72, s3"); a(f"s_add_u32 s72, s72, {49152 - 512}")
    a("s_and_b32 s3, s27, 3"); a("s_cselect_b32 s72, s72, 0x40000000"); a("s_add_u32 s73, s72, 55296")
    for k in range(20):
        a.wait(vm=f"H{k}", lg=f"BR0_{k}")
        front = breads(0, k+1) if k < 19 else (breads(1, 0) if NA < 7 else [])
        side = []
        if NA == 7:
            if hq:
                for _ in range(P("HRATE", 2)):
                    if hq: side += ldh(hq.pop(0))
            else:
                side += [w2bg]*max(0, min(P("ABG", 2), len(w2q), NEARLY + 2*k - (70 - len(w2q))))
        elif hq:
            side += ldh(hq.pop(0))
            if not hq and "plainhid" in OPT and P("HTP", 0) == 1: side.append(hidtouch)
        else: side += [lambda: a.bg(1)]*P("ABG", 1)
        if 1 <= k < 8:
            kk = k - 1; tb = 96 if kk % 2 == 0 else 220
            side.append(lambda kk=kk: a.wait(lg=f"CG{kk}"))
            for e in range(4):
                side += [f"v_add_f32 v{CS+4*kk+e}, v{CS+4*kk+e}, v{tb+e}", f"v_add_f32 v{tb+4+e}, v{tb+4+e}, v{tb+8+e}", f"v_add_f32 v{CS+4*kk+e}, v{CS+4*kk+e}, v{tb+4+e}"]
        if k < 7:
            tb = 96 if k % 2 == 0 else 220
            for w in range(4): front.append(lambda w=w, k=k, tb=tb: a.ds(f"ds_read_b128 {R((CS + 4*k) if w == 0 else (tb - 4 + 4*w), 4)}, v18 offset:{512*w + 64*k}", f"CG{k}"))
        if k == PRE + 2:
            for tt in range(2):
                side.append(f"v_add_f32 v{vS[tt]}, v{88+4*tt}, v{90+4*tt}"); side.append(f"v_add_f32 v{vQ[tt]}, v{89+4*tt}, v{91+4*tt}")
            side.append(lambda: red_g([f"v{x}" for x in vS + vQ], "v22"))
        if k == PRE + 3:
            for tt in range(2):
                s_, q_ = f"v{vS[tt]}", f"v{vQ[tt]}"
                side += [f"v_mul_f32 {s_}, s63, {s_}", f"v_mul_f32 {q_}, s63, {q_}", f"v_fma_f32 {q_}, -{s_}, {s_}, {q_}", f"v_max_f32 {q_}, 0, {q_}",
                         f"v_add_f32 v22, s64, {q_}", f"v_fma_f32 {q_}, v22, s64, {q_}", f"v_rsq_f32 {q_}, {q_}", f"v_mul_f32 {s_}, {s_}, {q_}"]
            side += ["v_mov_b32 v252, s60", "v_mov_b32 v253, s60", "s_mov_b32 s96, s61", "s_mov_b32 s97, s61"]
        if k >= 12:
            x = 2*(k - 12)
            for y in (x, x + 1):
                if y < 14:
                    side += [f"v_accvgpr_read_b32 v27, {R(B1A + y)}", f"v_lshlrev_b32 v{B1U+2*y}, 16, v27", f"v_and_b32 v{B1U+2*y+1}, 0xffff0000, v27"]
        mf = [MF(ACC + (tt*7+t)*4, BF + (k&1)*BS + 4*t, hf(tt, k), k == 0) for t in range(NA) for tt in range(2)]
        a.interleave(mf, side, front)
    a.stamp("s4A")
    if "noct" not in OPT: ctouch("L_cS5", 1)()
    PK = 88
    def gelu(tt, t, pk=False):
        L = []
        if pk:
            b_ = ACC + (tt*7+t)*4
            pr = lambda x: f"v[{x}:{x+1}]"
            for h in (0, 2): L.append(f"v_pk_fma_f32 {pr(248+h)}, v[20:21], {pr(CS+4*t+h)}, {pr(B1U+4*t+h)} op_sel:[{tt},0,0] op_sel_hi:[{tt},1,1] neg_lo:[1,0,0] neg_hi:[1,0,0]")
            for h in (0, 2): L.append(f"v_pk_fma_f32 {pr(b_+h)}, {pr(b_+h)}, v[24:25], {pr(248+h)} op_sel:[0,{tt},0] op_sel_hi:[1,{tt},1]")
            for h in (0, 2): L.append(f"v_pk_mul_f32 {pr(248+h)}, {pr(b_+h)}, {pr(b_+h)}")
            for h in (0, 2): L.append(f"v_pk_fma_f32 {pr(248+h)}, {pr(248+h)}, s[96:97], v[252:253]")
            for h in (0, 2): L.append(f"v_pk_mul_f32 {pr(248+h)}, {pr(248+h)}, {pr(b_+h)}")
            for e in range(4): L.append(f"v_exp_f32 v{248+e}, v{248+e}")
            for h in (0, 2): L.append(f"v_pk_add_f32 {pr(248+h)}, {pr(248+h)}, 1.0 op_sel_hi:[1,0]")
            for e in range(4): L.append(f"v_rcp_f32 v{248+e}, v{248+e}")
            for h in (0, 2): L.append(f"v_pk_mul_f32 {pr(b_+h)}, {pr(b_+h)}, {pr(248+h)}")
        else:
            for e in range(4):
                v_ = f"v{ACC + (tt*7+t)*4 + e}"; ta = f"v{248+e}"
                L += [f"v_fma_f32 {ta}, -v{vS[tt]}, v{CS+4*t+e}, v{B1U+4*t+e}", f"v_fma_f32 {v_}, {v_}, v{vQ[tt]}, {ta}", f"v_mul_f32 {ta}, {v_}, {v_}",
                      f"v_fma_f32 {ta}, {ta}, s61, v252", f"v_mul_f32 {ta}, {ta}, {v_}", f"v_exp_f32 {ta}, {ta}"]
            for e in range(4):
                ta = f"v{248+e}"; L += [f"v_add_f32 {ta}, 1.0, {ta}"]
            for e in range(4):
                ta = f"v{248+e}"; L += [f"v_rcp_f32 {ta}, {ta}"]
            for e in range(4):
                v_ = f"v{ACC + (tt*7+t)*4 + e}"; L.append(f"v_mul_f32 {v_}, {v_}, v{248+e}")
        for h in range(2):
            x0 = ACC + (tt*7+t)*4 + 2*h
            L.append(f"v_cvt_pk_bf16_f32 v{PK + tt*14 + 2*t + h}, v{x0}, v{x0+1}")
        if t in (1, 3): L.append(lambda: a.vmem(f"buffer_store_dwordx4 {R(PK + tt*14 + 2*(t-1), 4)}, v8, s[40:43], s{56+tt} offen offset:{512*(t-1)}{HS2}", "ST01"))
        if t == 5: L.append(lambda: a.vmem(f"buffer_store_dwordx4 {R(PK + tt*14 + 8, 4)}, v8, s[40:43], s{70+tt} offen{HS2}", "ST"))
        if t == 6: L.append(lambda: a.vmem(f"buffer_store_dwordx2 {R(PK + tt*14 + 12, 2)}, v13, s[40:43], s{72+tt} offen{HS2}", "ST"))
        return L
    gl = []
    for p in range(NA//2 if NA < 7 else 0):
        for tt in range(2): gl += gelu(tt, 2*p, "pkB" in OPT) + gelu(tt, 2*p+1, "pkB" in OPT)
    a.bgq = []
    W2RATE = P("W2RATE", 2)
    for k in range(20 if NA < 7 else 0):
        a.wait(lg=f"BR1_{k}")
        front = breads(1, k+1) if k < 19 else []
        GEND = P("GEND", 14)
        q = ((len(gl) + GEND - 1 - k)//(GEND - k) if k < GEND else len(gl)) if k > 0 else 0
        side = gl[:q]; gl = gl[q:]
        nin = max(0, min(W2RATE, len(w2q), NEARLY + 2*k - (70 - len(w2q))))
        for i_ in range(nin): side.insert((i_ + 1)*len(side)//(nin + 1), w2bg)
        mf = [MF(ACC + (tt*7+t)*4, BF + (k&1)*BS + 4*(t-NA), hf(tt, k), k == 0) for t in range(NA, 7) for tt in range(2)]
        a.interleave(mf, side, front)
    a.stamp("s4B")
    a("L_cS5:")
    W2EPI = P("W2EPI", 1)
    BIA = 126
    srd(a, 32, 20, 2621440); srd(a, 36, 18, 1280)
    s57save = None
    for m in range(4):
        a(f"s_add_u32 s3, s28, {m}"); a("s_and_b32 s3, s3, 3"); a("s_lshl_b32 s99, s48, 2"); a("s_add_u32 s3, s3, s99")
        a(f"s_mul_i32 s3, s3, 54"); a("s_add_u32 s3, s3, s28"); a("s_lshl_b32 s3, s3, 10"); a("s_add_u32 s3, s3, s58"); a(f"s_add_u32 s{80+m}, s3, {G_HID}")
    a("v_lshlrev_b32 v28, 3, v11"); a("s_mul_i32 s3, s49, 160")
    a.vmem(f"buffer_load_dwordx4 {R(BIA, 4)}, v23, s[36:39], s3 offen")
    a.vmem(f"buffer_load_dwordx4 {R(BIA+4, 4)}, v23, s[36:39], s3 offen offset:64")
    a.vmem(f"buffer_load_dwordx2 {R(BIA+8, 2)}, v28, s[36:39], s3 offen offset:128", "BIA")
    def pub(n):
        a("s_barrier")
        a("s_cmp_lg_u32 s28, 0"); a(f"s_cbranch_scc1 L_p{n}np")
        a("s_lshl_b32 s3, s27, 2"); a("s_add_u32 s3, s3, s58"); a(f"s_add_u32 s3, s3, {G_FL + 128*n}")
        a("s_mov_b64 exec, 1")
        a("s_cmp_eq_u32 s79, 0"); a(f"s_cbranch_scc1 L_p{n}slow")
        a("buffer_store_dword v6, v5, s[40:43], s3 offen")
        a(f"s_branch L_p{n}pd")
        a(f"L_p{n}slow:")
        a("buffer_store_dword v6, v5, s[40:43], s3 offen sc1")
        a(f"L_p{n}pd:")
        a("s_mov_b64 exec, -1")
        a(f"L_p{n}np:")
    def pld(n):
        a(f"s_add_u32 s59, s58, {G_FL + 128*n}")
        a.vmem("buffer_load_dword v31, v10, s[40:43], s59 offen sc1", f"PL{n}")
    def pchk(n):
        a.wait(vm=f"PL{n}")
        a("s_mov_b32 s78, 0")
        a(f"L_c{n}:")
        a("v_cmp_ne_u32 vcc, s76, v31")
        a(f"s_cbranch_vccz L_c{n}ok")
        a("buffer_load_dword v31, v10, s[40:43], s59 offen sc1"); a("s_waitcnt vmcnt(0)")
        a("s_add_u32 s78, s78, 1"); a(f"s_cmp_lt_u32 s78, {POLLMAX}"); a(f"s_cbranch_scc1 L_c{n}")
        a(f"L_c{n}ok:")
    seq = [(0, 4), (0, 5), (1, 4), (1, 5), (0, 6), (1, 6)]
    for i_, (tt, t) in enumerate(seq):
        if i_ == P("EP", 0): a.wait(vm="ST01"); pub(2)
        if i_ == P("PP", 4): pld(2)
        L = gelu(tt, t, True)
        for j_, x in enumerate(L):
            a.run(x)
            if i_ < P("W2STOP", 4) and j_ in (6, 16)[:W2EPI] and w2q: ldw2(*w2q.pop(0))
    a.stamp("tail")
    print("w2 left for S5:", len(w2q), file=sys.stderr)
    red_addr(); a.wait(vm="BIA"); init_acc([RES, BIA])
    pchk(2)
    a.stamp("FEok")
    ar = [136 + 4*i for i in range(5)] + [220 + 4*i for i in range(9)] + arA
    NR = 6
    def fa(n, m): return ar[(n % NR)*4 + m]
    def lda5(n):
        def one(m):
            if n == 13 and m == 0:
                a("s_cmp_ge_u32 s28, 2"); a("s_cselect_b32 s3, 0x40000000, 0")
                for q in range(4): a(f"s_add_u32 s{80+q}, s{80+q}, s3")
            a.vmem(f"buffer_load_dwordx4 {R(fa(n, m), 4)}, v8, s[40:43], s{80+m} offen sc1", f"A5_{n}")
            a(f"s_add_u32 s{80+m}, s{80+m}, 4096")
        return [lambda m=m: one(m) for m in range(4)]
    PRE5 = P("PRE5", 3)
    def need_w2(n):
        L = []
        while w2q and w2q[0][0] <= n:
            x = w2q.pop(0); L.append(lambda x=x: ldw2(*x))
        return L
    for n in range(PRE5):
        for f in need_w2(n) + lda5(n): f()
    a.wait(vm="ST"); pub(3)
    nxt = PRE5
    PL = P("PL", 2); PC = P("PC", 4)
    for n in range(14):
        a.wait(vm=f"A5_{n}")
        if n == PC: pchk(3)
        side = []; cnt = 0
        if n == PL: side.append(lambda: pld(3))
        while nxt < 14 and nxt <= n + NR - 1 and cnt < 2 and (nxt < 8 or n >= PC):
            side += need_w2(nxt) + lda5(nxt); nxt += 1; cnt += 1
        if cnt == 0 and w2q:
            for _ in range(min(4, len(w2q))):
                x = w2q.pop(0); side.append(lambda x=x: ldw2(*x))
        if n == 13:
            last_step(lambda m, t: MF(ACC + (m*5+t)*4, fb(n, t), fa(n, m), False))
        else:
            mf = [MF(ACC + (m*5+t)*4, fb(n, t), fa(n, m), n == 0 and m > 0) for m in range(4) for t in range(5)]
            a.interleave(mf, side)
    a.stamp("s5end")
    reduce_epi(5, BIA)
    a(f"buffer_store_dwordx4 {R(RES, 4)}, v14, s[32:35], s51 offen")
    a(f"buffer_store_dwordx4 {R(RES+4, 4)}, v14, s[32:35], s51 offen offset:64")
    a(f"buffer_store_dwordx2 {R(RES+8, 2)}, v15, s[32:35], s51 offen offset:128")
    a("s_or_b32 s3, s2, s28"); a("s_cmp_lg_u32 s3, 0"); a("s_cbranch_scc1 L_notagclr")
    a("global_store_dword v5, v5, s[22:23] sc1")
    a("L_notagclr:")
    a.stamp("stored")
    if STAMP:
        a("s_waitcnt vmcnt(0)")
        a.stamp("end")
        a("s_memrealtime s[100:101]"); a("s_waitcnt lgkmcnt(0)"); a("v_writelane_b32 v7, s100, 31")
        a("v_writelane_b32 v7, s79, 30")
        a("s_lshl_b32 s3, s2, 2"); a("s_add_u32 s3, s3, s28"); a("s_lshl_b32 s3, s3, 8"); a(f"s_add_u32 s3, s3, {STB}")
        a("v_lshlrev_b32 v27, 2, v1"); a("v_add_u32 v27, s3, v27")
        a("global_store_dword v27, v7, s[24:25]")
        if os.environ.get("DELAY"):
            di = os.environ["DELAY"]
            a(f"s_cmp_lg_u32 s2, {P('DWG', 8)}"); a("s_cbranch_scc1 L_end"); a("s_cmp_lg_u32 s28, 0"); a("s_cbranch_scc1 L_end")
            clk = "s_memrealtime" if di == "rt" else "s_memtime"
            a(f"{clk} s[100:101]"); a("s_waitcnt lgkmcnt(0)")
            if di == "rt":
                a("s_sub_u32 s3, s100, s76")
            else:
                a(f"v_readlane_b32 s3, v7, {di}"); a("v_readlane_b32 s56, v7, 0"); a("s_nop 3"); a("s_sub_u32 s3, s3, s56")
            a("s_lshl_b32 s3, s3, 2"); a("s_min_u32 s3, s3, 0x100000"); a("s_mov_b32 s57, s100")
            a("L_dly:")
            a(f"{clk} s[100:101]"); a("s_waitcnt lgkmcnt(0)"); a("s_sub_u32 s56, s100, s57"); a("s_cmp_lt_u32 s56, s3"); a("s_cbranch_scc1 L_dly")
        a.a.raw("; STAMPS " + " ".join(a.names))
    a("L_end:")
    a("s_endpgm")
    return a.a

def main(out):
    hdr = open("sequential_preLN__linear_attn_block__mixer_channel_mlp__prompt.s.ref").read().split("\n")
    hdr = [l for l in hdr if l.startswith(";") and "@launch" not in l]
    hdr.append("; @launch grid=(256,1,1) block=(256,1,1) lds=163840")
    a = gen()
    pre = '.amdgcn_target "amdgcn-amd-amdhsa--gfx950"\n.text\n'
    T1, T2 = build_tables()
    a.raw(".p2align 6\nT1_tab:")
    a.raw(".short " + ",".join(map(str, T1)))
    a.raw("T2_tab:")
    for row in T2: a.raw(".short " + ",".join(map(str, row)))
    a.raw(".fill 2048, 4, 0")
    a.raw('.section .rodata,"a"\n.p2align 6')
    a.raw(f""".amdhsa_kernel {NAME}
  .amdhsa_next_free_vgpr 512
  .amdhsa_next_free_sgpr 102
  .amdhsa_accum_offset 256
  .amdhsa_group_segment_fixed_size 0
  .amdhsa_kernarg_size 88
  .amdhsa_user_sgpr_count 2
  .amdhsa_user_sgpr_kernarg_segment_ptr 1
  .amdhsa_system_sgpr_workgroup_id_x 1
.end_amdhsa_kernel""")
    open(out, "w").write("\n".join(hdr) + "\n" + pre + a.finish())

if __name__ == "__main__":
    main(sys.argv[1])
```

```python
import sys, struct, os
from asmdsl import Asm, R, S
from gen1 import build_tables, PAIRS, f2u, hx, divmod_const, srd, LOG2E

NAME = "sequential_preLN__linear_attn_block__mixer_channel_mlp__prompt_kernel"
WOP = 0
W2P = WOP + 8*20*5*1024
W1P = W2P + 8*54*5*1024
C1P = W1P + 16*20*7*1024
WQKV = C1P + 320*512
PART = WQKV + 16*153600
GRP = PART + 256*4096
G_O = 0; G_H = 163840; G_ST = 327680; G_FL = 335872; G_HID = 336896; G_SZ = G_HID + 442368
FLG = GRP + 16*G_SZ
F1 = FLG; F1R = FLG + 8192; F0 = FLG + 10240; FU = FLG + 14336
WS_END = FLG + 20480
A0 = 256
STAMP = int(os.environ.get("STAMP", "0"))
STB = 32 << 20
POLLMAX = 1 << 15
OPT = set(os.environ.get("OPT", "").split(","))
def P(name, d): return int(os.environ.get(name, d))

class G:
    def __init__(self):
        self.a = Asm(); self.vm = []; self.lg = []; self.nst = 0; self.bgq = []; self.names = []
    def __call__(self, t): self.a(t)
    def vmem(self, text, tag=None): self.a(text); self.vm.append(tag)
    def ds(self, text, tag=None): self.a(text); self.lg.append(tag)
    def _n(self, lst, tag, cap):
        idx = max(i for i, t in enumerate(lst) if t == tag)
        return min(len(lst) - 1 - idx, cap)
    def wait(self, vm=None, lg=None):
        s = []
        if vm is not None: s.append(f"vmcnt({0 if vm == 'all' else self._n(self.vm, vm, 63)})")
        if lg is not None: s.append(f"lgkmcnt({0 if lg == 'all' else self._n(self.lg, lg, 15)})")
        self.a("s_waitcnt " + " ".join(s))
        if vm == 'all': self.vm = []
        if lg == 'all': self.lg = []
    def stamp(self, name=""):
        if STAMP != 1: return
        i = self.nst; self.nst += 1; self.names.append(name)
        assert i < 29
        self.a("s_memtime s[100:101]"); self.a("s_waitcnt lgkmcnt(0)"); self.a(f"v_writelane_b32 v7, s100, {i}")
    def run(self, x): x() if callable(x) else self.a(x)
    def bg(self, n=1):
        for _ in range(n):
            if self.bgq: self.bgq.pop(0)()
    def interleave(self, main, extra, front=()):
        n = len(main); m = len(extra); j = 0; front = list(front)
        for i, x in enumerate(main):
            self.run(x)
            if front:
                self.run(front.pop(0))
                if len(front) >= n - i and front: self.run(front.pop(0))
            while j < m and (j + 1) * n <= (i + 1) * m + (n - 1):
                self.run(extra[j]); j += 1
        for x in front: self.run(x)
        while j < m:
            self.run(extra[j]); j += 1

def MF(d, a_, b_, first): return f"v_mfma_f32_16x16x32_bf16 {R(d,4)}, {R(a_,4)}, {R(b_,4)}, {'0' if first else R(d,4)}"

def phi(a, val, t1, t2):
    a(f"v_mul_f32 {t1}, s60, {val}")
    a(f"v_max_f32 {t2}, 0, {val}")
    a(f"v_exp_f32_e64 {t1}, {t1} clamp")
    a(f"v_add_f32 {t2}, s61, {t2}")
    a(f"v_add_f32 {val}, {t1}, {t2}")

OPT |= {"sc1h", "sc1hid", "notouch", "usfirst", "ft", "rpplain", "slplain", "tlb3"}
def phi4(a, b_, T, sel_mask=None):
    for h in range(2): a(f"v_pk_mul_f32 v[{T+2*h}:{T+2*h+1}], v[{b_+2*h}:{b_+2*h+1}], s[94:95]")
    for e in range(4): a(f"v_max_f32 v{T+4+e}, 0, v{b_+e}")
    for e in range(4): a(f"v_exp_f32_e64 v{T+e}, v{T+e} clamp")
    for h in range(2): a(f"v_pk_add_f32 v[{T+4+2*h}:{T+5+2*h}], v[{T+4+2*h}:{T+5+2*h}], s[96:97]")
    if sel_mask is None:
        for h in range(2): a(f"v_pk_add_f32 v[{b_+2*h}:{b_+2*h+1}], v[{T+2*h}:{T+2*h+1}], v[{T+4+2*h}:{T+5+2*h}]")
    else:
        for h in range(2): a(f"v_pk_add_f32 v[{T+2*h}:{T+2*h+1}], v[{T+2*h}:{T+2*h+1}], v[{T+4+2*h}:{T+5+2*h}]")
        for e in range(4): a(f"v_cndmask_b32 v{b_+e}, v{b_+e}, v{T+e}, {sel_mask}")
RPNT = "" if "rpplain" in OPT else " nt"
HS = "" if "plainh" in OPT else " sc1"
HS2 = "" if "plainhid" in OPT else " sc1"
FENCE = "plainh" in OPT or "plainhid" in OPT
def gen():
    a = G()
    name = NAME
    NRAW = P("NRAW", 2)
    a.a.raw(f".globl {name}\n.p2align 8\n.type {name},@function\n{name}:")
    a("s_cmp_ge_u32 s2, 256"); a("s_cbranch_scc1 L_end")
    a("s_load_dwordx16 s[4:19], s[0:1], 0")
    a("s_load_dwordx4 s[20:23], s[0:1], 64")
    a("s_load_dwordx2 s[24:25], s[0:1], 80")
    a("s_memrealtime s[76:77]")
    a("s_getpc_b64 s[30:31]")
    a("L_pc:")
    a("v_mov_b32 v7, 0")
    a.stamp("start")
    a("v_lshrrev_b32 v2, 6, v0"); a("v_and_b32 v1, 63, v0")
    a("v_readfirstlane_b32 s28, v2")
    if "m48" in OPT:
        a("s_and_b32 s3, s2, 7"); a("s_lshr_b32 s29, s2, 3")
        a("s_lshr_b32 s26, s3, 1"); a("s_lshl_b32 s26, s26, 2"); a("s_lshr_b32 s27, s29, 3"); a("s_add_u32 s26, s26, s27")
        a("s_and_b32 s3, s3, 1"); a("s_lshl_b32 s3, s3, 2"); a("s_and_b32 s27, s29, 3"); a("s_or_b32 s27, s27, s3")
        a("s_and_b32 s29, s29, 4"); a("s_lshl_b32 s29, s29, 1"); a("s_or_b32 s27, s27, s29")
    else:
        a("s_and_b32 s3, s2, 7"); a("s_lshr_b32 s27, s2, 3"); a("s_lshr_b32 s26, s27, 4"); a("s_lshl_b32 s3, s3, 1")
        a("s_add_u32 s26, s26, s3")
        a("s_and_b32 s27, s27, 15")
    a("v_lshlrev_b32 v3, 7, v1")
    if "cp16" in OPT:
        a("s_cmp_lg_u32 s28, 3"); a("s_cbranch_scc1 L_nocp")
        a("s_mul_i32 s3, s27, 2304"); a("v_add_u32 v27, s3, v3"); a("s_bfm_b64 exec, 18, 0")
        a("global_load_dword v4, v27, s[30:31]"); a("s_mov_b64 exec, -1")
    elif "nocp" not in OPT:
        a("s_cmp_lg_u32 s28, 3"); a("s_cbranch_scc1 L_nocp")
        a("s_mul_i32 s3, s27, 13"); a("s_lshr_b32 s3, s3, 6"); a("s_mul_i32 s3, s3, 5"); a("s_sub_u32 s3, s27, s3"); a("s_lshl_b32 s3, s3, 13")
        a("v_add_u32 v27, s3, v3")
        a("global_load_dword v4, v27, s[30:31]")
    a("L_nocp:")
    BQ = 102400; SCR = 153600; CSX = 161792
    vXA = [72, 73, 74, 75]; vW = [76, 77]; vRd = [78, 79]; vTB = [17, 18, 19, 20]; vTQ = [86, 87, 88, 89]; vTQ2 = [90, 91, 21, 22]
    vSA = [80, 81, 82]; vBA = [144, 145, 146, 147, 148]; vTR = [149, 150, 151, 152]
    vT1 = 24; vSTW = 25
    ACC = 32; RAW = 160; XF = A0; BF = A0 + 160; ONES = A0 + 200; GR = A0 + 204; RSM = A0 + 212; OH = A0 + 220; CSA = A0 + 240; CSQ = A0 + 244
    t0, t1, t2, t3 = "v27", "v28", "v29", "v30"
    def early():
        a("v_and_b32 v27, 3, v1"); a("s_lshl_b32 s3, s28, 2"); a("v_add_u32 v27, s3, v27"); a("v_min_u32 v27, 14, v27")
        a("v_lshrrev_b32 v28, 2, v1"); a("v_mul_u32_u24 v28, 3840, v28"); a("v_lshl_add_u32 v28, v27, 4, v28")
        a("v_add_u32 v29, 1280, v28"); a("v_add_u32 v30, 2480, v28"); a("v_subrev_u32 v28, 160, v28")
        a("v_cmp_gt_u32 vcc, 10, v27"); a("s_mul_i32 s50, s26, 153600"); a("s_mul_i32 s51, s27, 80"); a("v_cndmask_b32 v28, v28, v30, vcc")
        a("v_cmp_gt_u32 vcc, 5, v27"); a("s_add_u32 s50, s50, s51"); a("s_mul_i32 s53, s28, 3072"); a("v_cndmask_b32 v83, v28, v29, vcc")
        a(f"s_add_u32 s53, s53, {BQ + 28672}")
        a("s_mul_i32 s3, s26, 163840"); a("s_mul_i32 s56, s27, 10240"); a("s_add_u32 s3, s3, s56"); a("s_mul_i32 s56, s28, 2560"); a("s_add_u32 s57, s3, s56")
        a("v_mov_b32 v5, 0")
    def late():
        a("v_lshlrev_b32 v8, 4, v1"); a("v_lshlrev_b32 v9, 4, v0")
        a("v_and_b32 v10, 15, v1"); a("v_lshlrev_b32 v10, 2, v10")
        a("v_lshrrev_b32 v11, 4, v1"); a("v_add_u32 v12, 4096, v8")
        a("v_lshrrev_b32 v27, 3, v1"); a("v_and_b32 v28, 7, v1"); a("v_mul_u32_u24 v29, 1280, v27")
        a("v_lshrrev_b32 v30, 1, v27"); a("v_xor_b32 v28, v28, v30")
        a(f"v_lshl_add_u32 v{vXA[0]}, v28, 4, v29")
        a(f"v_xor_b32 v{vXA[1]}, 64, v{vXA[0]}"); a(f"v_add_u32 v{vXA[1]}, 10240, v{vXA[1]}")
        a(f"v_add_u32 v{vXA[2]}, 20480, v{vXA[0]}"); a(f"v_add_u32 v{vXA[3]}, 20480, v{vXA[1]}")
        a("s_lshl_b32 s3, s28, 11"); a(f"s_add_u32 s48, s3, {SCR}")
        a("s_lshl_b32 s49, s26, 7"); a("s_lshl_b32 s3, s28, 5"); a("s_add_u32 s49, s49, s3"); a("s_mul_i32 s49, s49, 1280")
        a("s_lshr_b32 s3, s28, 1"); a("s_lshl_b32 s3, s3, 7"); a("s_add_u32 s62, s49, 128"); a("s_sub_u32 s62, s62, s3"); a("s_add_u32 s49, s49, s3")
        a("s_mul_i32 s52, s28, 5120")
        a(f"s_mul_i32 s58, s26, {G_SZ}"); a(f"s_add_u32 s58, s58, {GRP}")
        a("s_lshl_b32 s70, s28, 4"); a("s_add_u32 s70, s70, s26")
        a(f"s_mul_i32 s71, s28, 7168"); a(f"s_add_u32 s71, s71, {BQ}")
        a("v_mov_b32 v2, 0x7fffffff")
    early()
    if "slowpro" in OPT: late()
    a("s_waitcnt lgkmcnt(0)")
    srd(a, 36, 6, 2457600)
    SLNT = "" if "slplain" in OPT else " nt"
    for i in range(3):
        a(f"s_add_u32 m0, s53, {1024*i}")
        if i == 2: a("s_bfm_b64 exec, 32, 0")
        a.vmem(f"buffer_load_dwordx4 v83, s[36:39], s50 offen{SLNT} lds", "SLD")
        a(f"s_add_u32 s50, s50, {16*3840}")
    srd(a, 32, 4, 2621440); srd(a, 40, 24, WS_END)
    a("s_mov_b64 exec, 0xfffff")
    a.vmem(f"buffer_load_dword v4, v3, s[32:35], s57 offen{' nt' if 'xtnt' in OPT else ''}")
    if "tlb" in OPT:
        a("v_lshlrev_b32 v27, 20, v1"); a("s_bfm_b64 exec, 24, 0")
        a.vmem(f"buffer_load_dword v4, v27, s[40:43], 0 offen")
    if "tlb2" in OPT:
        a("s_mul_i32 s54, s27, 153600"); a(f"s_add_u32 s54, s54, {WQKV}")
        a("v_mul_u32_u24 v27, 51200, v1"); a("v_add_u32 v27, s54, v27"); a(f"v_mov_b32 v28, {F0}"); a("v_cmp_eq_u32 vcc, 3, v1"); a("v_cndmask_b32 v27, v27, v28, vcc")
        a("s_bfm_b64 exec, 4, 0")
        a.vmem(f"buffer_load_dword v4, v27, s[40:43], 0 offen")
        a.vmem("global_load_dword v4, v5, s[22:23] offset:128")
    a("s_mov_b64 exec, -1")
    if STAMP: a("v_writelane_b32 v7, s76, 29")
    a("s_and_b32 s76, s76, 0xfffffff8"); a("s_or_b32 s76, s76, 8")
    a("s_or_b32 s3, s2, s28"); a("s_cmp_lg_u32 s3, 0"); a("s_cbranch_scc1 L_notag")
    a("v_mov_b32 v28, s76"); a("global_store_dword v5, v28, s[22:23] sc1")
    a("L_notag:")
    if "ft" in OPT:
        a("s_cmp_lg_u32 s26, s27"); a("s_cbranch_scc1 L_noft"); a("s_cmp_lg_u32 s28, 1"); a("s_cbranch_scc1 L_noft")
        a("s_mul_i32 s3, s27, 1280"); a(f"s_add_u32 s3, s3, {FLG}")
        a("s_bfm_b64 exec, 10, 0"); a("buffer_load_dword v4, v3, s[40:43], s3 offen sc0 sc1"); a("s_mov_b64 exec, -1")
        a("L_noft:")
    if "tlb3" in OPT:
        a("s_cmp_lg_u32 s28, 2"); a("s_cbranch_scc1 L_not3")
        a("v_lshlrev_b32 v27, 16, v1"); a("v_lshlrev_b32 v28, 18, v1")
        for cc, (sp, n_) in enumerate([(12, 34), (16, 34), (8, 13), (20, 40)]):
            a(f"s_cmp_lg_u32 s27, {2+cc}"); a(f"s_cbranch_scc1 L_t3_{cc}")
            a(f"s_bfm_b64 exec, {n_}, 0"); a(f"global_load_dword v4, v27, s[{sp}:{sp+1}]"); a("s_mov_b64 exec, -1")
            a(f"L_t3_{cc}:")
        a("s_cmp_lg_u32 s27, 6"); a("s_cbranch_scc1 L_t3_4"); a("buffer_load_dword v4, v28, s[40:43], 0 offen"); a("L_t3_4:")
        a("s_cmp_lg_u32 s27, 7"); a("s_cbranch_scc1 L_not3"); a(f"s_mov_b32 s3, {64 << 18}"); a("buffer_load_dword v4, v28, s[40:43], s3 offen")
        a("L_not3:")
    if "tlb4" in OPT:
        a("s_cmp_lg_u32 s28, 2"); a("s_cbranch_scc1 L_not4")
        a("v_lshlrev_b32 v27, 21, v1"); a("s_bfm_b64 exec, 2, 0")
        a("global_load_dword v4, v27, s[12:13]"); a("global_load_dword v4, v27, s[16:17]"); a("s_mov_b64 exec, 1"); a("global_load_dword v4, v27, s[8:9]")
        a("s_bfm_b64 exec, 11, 0"); a("buffer_load_dword v4, v27, s[40:43], 0 offen")
        a("s_mov_b64 exec, -1")
        a("L_not4:")
    if "nobt" not in OPT:
        a("s_lshl_b32 s3, s27, 2"); a("s_add_u32 s3, s3, s28"); a("s_cmp_lg_u32 s3, 6"); a("s_cbranch_scc1 L_nobt")
        a("s_bfm_b64 exec, 27, 0"); a("global_load_dword v4, v3, s[14:15]")
        a("s_bfm_b64 exec, 10, 0"); a("global_load_dword v4, v3, s[18:19]")
        a("s_mov_b64 exec, -1")
        a("L_nobt:")
    srd(a, 44, 12, 2211840)
    if "slowpro" not in OPT: late()
    def rp_issue(nt, pitch_src, nch):
        for i in range(7):
            if i < nt:
                a(f"v_add_u32 v27, {64*i}, v1")
                divmod_const(a, "v28", "v29", "v27", nch)
                if nt == 5:
                    a("v_cmp_lt_u32 vcc, 15, v28"); a("v_add_u32 v30, s83, v28"); a("v_cndmask_b32 v28, v28, v30, vcc")
                a(f"v_mul_u32_u24 v28, {pitch_src}, v28"); a("v_lshl_add_u32 v28, v29, 4, v28")
                a(f"s_add_u32 m0, s71, {1024*i}")
                a(f"buffer_load_dwordx4 v28, s[44:47], s73 offen{RPNT} lds")
            else:
                a("buffer_load_dword v4, v2, s[44:47], 0 offen")
    def unit_issue():
        a("s_cmp_ge_u32 s70, 20"); a("s_cbranch_scc1 L_rp5")
        a("s_mov_b32 s72, 1")
        a("s_mul_i32 s75, s27, 27"); a("s_lshr_b32 s75, s75, 2"); a("s_lshl_b32 s75, s75, 5")
        a("s_mul_i32 s79, s70, 110592"); a("s_add_u32 s73, s75, s79")
        a("s_mul_i32 s75, s27, 20"); a("s_add_u32 s70, s70, s75")
        a("s_mul_i32 s74, s70, 7168"); a(f"s_add_u32 s74, s74, {W1P}")
        rp_issue(7, 3456, 14)
        a("s_branch L_rp_issued")
        a("L_rp5:")
        a("s_mov_b32 s72, 2")
        a("s_sub_u32 s79, s70, 20"); a("s_lshl_b32 s79, s79, 1"); a("s_lshr_b32 s75, s27, 3"); a("s_add_u32 s79, s79, s75"); a("s_and_b32 s75, s27, 7")
        a("s_cmp_ge_u32 s79, 54"); a("s_cbranch_scc1 L_rpwo")
        srd(a, 44, 16, 2211840)
        a("s_mul_i32 s78, s75, 54"); a("s_add_u32 s78, s78, s79")
        a("s_mul_i32 s74, s78, 5120"); a(f"s_add_u32 s74, s74, {W2P}")
        a("s_mov_b32 s83, 0")
        a("s_cmp_ge_u32 s79, 48"); a("s_cbranch_scc1 L_w2s")
        a("s_lshr_b32 s84, s79, 1"); a("s_and_b32 s85, s79, 1"); a("s_lshl_b32 s85, s85, 1")
        a("s_sub_u32 s78, s79, 32"); a("s_cmp_ge_u32 s79, 32"); a("s_cselect_b32 s84, s78, s84"); a("s_cselect_b32 s85, 4, s85")
        a("s_mul_i32 s84, s84, 27"); a("s_lshr_b32 s84, s84, 2"); a("s_add_u32 s79, s84, s85")
        a("s_branch L_rp5b")
        a("L_w2s:")
        a("s_sub_u32 s84, s79, 48"); a("s_lshl_b32 s84, s84, 1"); a("s_add_u32 s85, s84, 1")
        for r_ in ("s84", "s85"):
            a(f"s_mul_i32 s78, {r_}, 11"); a("s_lshr_b32 s78, s78, 5"); a(f"s_add_u32 {r_}, {r_}, s78"); a(f"s_add_u32 {r_}, {r_}, 1")
            a(f"s_mul_i32 {r_}, {r_}, 27"); a(f"s_lshr_b32 {r_}, {r_}, 2")
        a("s_add_u32 s79, s84, 6"); a("s_sub_u32 s83, s85, s84"); a("s_sub_u32 s83, s83, 1"); a("s_lshl_b32 s83, s83, 4")
        a("s_branch L_rp5b")
        a("L_rpwo:")
        srd(a, 44, 8, 819200)
        a("s_sub_u32 s79, s79, 54")
        a("s_mul_i32 s78, s75, 20"); a("s_add_u32 s78, s78, s79")
        a("s_mul_i32 s74, s78, 5120"); a(f"s_add_u32 s74, s74, {WOP}")
        a("s_cmp_ge_u32 s79, 20"); a("s_cselect_b32 s74, 0x40000000, s74")
        a("s_lshl_b32 s79, s79, 1"); a("s_mov_b32 s83, 0")
        a("L_rp5b:")
        a("s_mul_i32 s75, s75, 160"); a("s_mul_i32 s79, s79, 20480"); a("s_add_u32 s73, s75, s79")
        rp_issue(5, 1280, 10)
        a("L_rp_issued:")
        a.vm += ["UL"]*7
    def raw(cx, rg): return 96 + (((cx + 1) % 10)*4 + rg)*4
    def xf(tt, k): return XF + (tt*20 + k)*4
    def ldx(cx):
        def one(rg):
            off = 256*(cx >> 1)
            a(f"s_add_u32 m0, s52, {(cx % 5)*20480 + rg*1024 + 1024 - off}")
            a.vmem(f"buffer_load_dwordx4 v{vXA[rg]}, s[32:35], s{62 if cx & 1 else 49} offen offset:{off} lds", f"X{cx}")
        return [lambda rg=rg: one(rg) for rg in range(4)]
    a("v_and_b32 v27, 15, v1")
    a("v_cmp_gt_u32 s[66:67], 8, v27")
    a("v_cmp_gt_u32 s[90:91], 32, v1"); a("v_cmp_gt_u32 s[92:93], 48, v1")
    a("v_cmp_eq_u32 s[88:89], 1, v11")
    a("v_and_b32 v29, 1, v11")
    a("s_lshl_b32 s3, s28, 1"); a("v_add_u32 v29, s3, v29")
    a("v_cmp_gt_u32 s[94:95], 5, v29"); a("v_cmp_eq_u32 s[96:97], 7, v29")
    a("v_lshlrev_b32 v29, 10, v29"); a(f"v_add_u32 v30, {BQ - 5120}, v29"); a("v_cndmask_b32 v29, v30, v29, s[94:95]")
    a("v_lshl_add_u32 v29, v10, 2, v29")
    a("v_mov_b32 v30, 2560"); a("v_mov_b32 v31, 5120"); a("v_cndmask_b32 v30, v30, v31, s[94:95]")
    a("v_mov_b32 v31, 8"); a("v_cndmask_b32 v31, v31, 7, s[96:97]")
    a("s_andn2_b64 s[96:97], s[96:97], s[66:67]")
    a("s_mul_i32 s3, s26, 5")
    a("v_lshrrev_b32 v28, 1, v11"); a("v_add_u32 v28, s3, v28")
    for n in range(3):
        a(f"v_lshrrev_b32 v27, 2, v28"); a(f"v_mad_u32_u24 v{vSA[n]}, v27, v30, v29")
        a("v_and_b32 v27, 3, v28"); a("v_lshlrev_b32 v27, v31, v27"); a(f"v_add_u32 v{vSA[n]}, v{vSA[n]}, v27")
        a(f"v_cndmask_b32 v{vSA[n]}, v{vSA[n]}, v2, s[96:97]")
        if n == 2: a(f"v_cndmask_b32 v{vSA[n]}, v2, v{vSA[n]}, s[90:91]")
        else: a("v_add_u32 v28, 2, v28")
    a("v_lshrrev_b32 v27, 5, v1"); a("v_bfe_u32 v28, v1, 2, 2"); a("v_lshl_add_u32 v27, v27, 3, v28"); a("v_lshlrev_b32 v27, 6, v27")
    a("v_bfe_u32 v28, v1, 4, 1"); a("v_lshl_add_u32 v27, v28, 5, v27"); a("v_and_b32 v28, 3, v1"); a("v_lshl_add_u32 v27, v28, 3, v27")
    a("v_add_u32 v84, s53, v27")
    a("s_mul_i32 s54, s27, 153600"); a(f"s_add_u32 s54, s54, {WQKV}")
    if P("UPOS", 6) == -1: unit_issue()
    a.wait(vm="SLD")
    a.stamp("sld")
    for n in range(3):
        for h in range(2): a(f"ds_read_b64_tr_b16 {R(96 + 4*n + 2*h, 2)}, v84 offset:{1024*n + 256*h}")
    a("s_waitcnt lgkmcnt(0)")
    for n in range(3): a.vmem(f"buffer_store_dwordx4 {R(96 + 4*n, 4)}, v{vSA[n]}, s[40:43], s54 offen sc1", "SL")
    a.vmem("global_load_dword v6, v5, s[22:23] sc1", "TAG")
    if P("UPOS", 6) == -2: unit_issue()
    NX0 = P("NX0", 3)
    for cx in range(NX0):
        for f in ldx(cx): f()
    a("v_and_b32 v27, 15, v1")
    a("v_lshrrev_b32 v29, 1, v27"); a("v_xor_b32 v29, v29, v11"); a("v_lshlrev_b32 v29, 4, v29"); a("v_lshl_add_u32 v29, v27, 7, v29")
    a("s_and_b32 s3, s28, 1"); a("s_lshl_b32 s3, s3, 6"); a("v_xor_b32 v29, s3, v29")
    a(f"v_add_u32 v{vRd[0]}, s52, v29"); a("v_xor_b32 v29, 64, v29"); a(f"v_add_u32 v{vRd[1]}, s52, v29")
    a(f"v_add_u32 v{vW[0]}, 61440, v{vRd[0]}"); a(f"v_add_u32 v{vW[1]}, 61440, v{vRd[1]}")
    a("v_lshrrev_b32 v29, 2, v27"); a("v_cmp_eq_u32 vcc, v29, v11")
    a("v_lshlrev_b32 v30, 2, v1"); a("v_add_u32 v30, 512, v30")
    a("v_cndmask_b32 v29, v30, v10, vcc"); a(f"v_add_u32 v{vSTW}, s48, v29")
    a("v_and_b32 v29, 1, v1"); a("v_cmp_eq_u32 s[68:69], 1, v29")
    a("v_and_b32 v29, 2, v1"); a("v_cmp_eq_u32 s[86:87], 2, v29")
    a("v_mov_b32 v28, 0x3f803f80")
    for i in range(4): a(f"v_accvgpr_write_b32 {R(ONES+i)}, v28")
    for t in range(5):
        a(f"v_cmp_eq_u32 vcc, {t}, v27"); a("v_cndmask_b32 v29, 0, v28, vcc")
        for e in range(4): a(f"v_accvgpr_write_b32 {R(OH+4*t+e)}, v29")
    a("v_and_b32 v27, 7, v1"); a("v_lshlrev_b32 v27, 4, v27"); a("v_lshl_add_u32 v27, v11, 7, v27")
    for p in range(4):
        a(f"s_xor_b32 s3, s28, {p}"); a("s_mul_i32 s56, s3, 5120"); a(f"v_add_u32 v{vTB[p]}, s56, v8")
        a("s_mul_i32 s56, s3, 2560"); a(f"s_add_u32 s56, s56, {BQ}"); a(f"v_add_u32 v{vTQ[p]}, s56, v8"); a("s_add_u32 s56, s56, 2048"); a(f"v_add_u32 v{vTQ2[p]}, s56, v27")
    a(f"s_mov_b32 s60, {hx(LOG2E)}"); a(f"s_mov_b32 s61, {hx(1e-6)}")
    a(f"s_mov_b32 s63, {hx(1.0/640)}"); a(f"s_mov_b32 s64, {hx(1e-5)}")
    a("s_lshl_b32 s55, s27, 8"); a(f"s_add_u32 s55, s55, {F0}")
    a("v_lshlrev_b32 v26, 2, v1")
    a("s_lshl_b32 s3, s26, 4"); a("s_lshl_b32 s56, s28, 2"); a("s_add_u32 s3, s3, s56"); a("s_add_u32 s3, s3, s55")
    a.wait(vm="TAG")
    a("v_readfirstlane_b32 s76, v6"); a("s_mov_b32 s78, 0")
    a("L_tp1:")
    a("s_cmp_lg_u32 s76, 0"); a("s_cbranch_scc1 L_tp1_ok")
    a("global_load_dword v6, v5, s[22:23] sc1"); a("s_add_u32 s78, s78, 1"); a("s_waitcnt vmcnt(0)")
    a("v_readfirstlane_b32 s76, v6")
    a(f"s_cmp_lt_u32 s78, {POLLMAX}"); a("s_cbranch_scc1 L_tp1")
    a("L_tp1_ok:")
    a("s_getreg_b32 s77, hwreg(HW_REG_XCC_ID)"); a("s_and_b32 s77, s77, 7"); a("s_or_b32 s77, s77, s76")
    a("s_lshl_b32 s57, s26, 7"); a("s_lshl_b32 s56, s27, 2"); a("s_add_u32 s57, s57, s56"); a(f"s_add_u32 s57, s57, {F1R}")
    a("s_cmp_eq_u32 s28, 0"); a("s_cselect_b32 s57, s57, 0x40000000"); a("v_mov_b32 v27, s77")
    a("s_mov_b64 exec, 1"); a.vmem("buffer_store_dword v6, v5, s[40:43], s3 offen sc1"); a.vmem("buffer_store_dword v27, v5, s[40:43], s57 offen sc1"); a("s_mov_b64 exec, -1")
    a.stamp("F0pub")
    def rp_fin(nt, RG):
        pitch = nt*32
        a("v_bfe_u32 v28, v1, 2, 2"); a("v_lshl_add_u32 v27, v11, 3, v28"); a("v_and_b32 v28, 3, v1")
        a(f"v_mul_u32_u24 v29, {pitch}, v27"); a("v_add_u32 v29, s71, v29")
        a("v_lshl_add_u32 v30, v28, 3, v29"); a("v_lshl_add_u32 v29, v28, 4, v29")
        for t in range(nt):
            for h in range(2):
                if t == nt - 1: a(f"ds_read_b64_tr_b16 {R(RG + 4*t + 2*h, 2)}, v30 offset:{h*4*pitch + 32*t}")
                else: a(f"ds_read_b64_tr_b16 {R(RG + 4*t + 2*h, 2)}, v29 offset:{h*4*pitch + 64*(t>>1) + 8*(t&1)}")
        if nt == 7:
            a("v_mov_b32 v28, 0x3f803f80")
            for t in (5, 6):
                a(f"v_cmp_eq_u32 vcc, {4*t}, v10")
                for e in range(4): a(f"v_cndmask_b32 v{RG+28+4*(t-5)+e}, 0, v28, vcc")
        a("s_waitcnt lgkmcnt(0)")
        if nt == 7:
            for t in range(7): a(MF(RG+36, RG + 4*t, OH + 4*t if t < 5 else RG+28+4*(t-5), t == 0))
    def rp_store(nt, RG):
        for t in range(nt):
            a(f"buffer_store_dwordx4 {R(RG + 4*t, 4)}, v{8 if t < 4 else 12}, s[40:43], s74 offen offset:{1024*(t&3)} sc1")
        if nt == 7:
            a("v_lshlrev_b32 v29, 4, v11"); a("v_lshl_add_u32 v29, v10, 4, v29"); a("v_cndmask_b32 v29, v2, v29, s[66:67]")
            a("s_lshl_b32 s3, s70, 9"); a(f"s_add_u32 s3, s3, {C1P}")
            a(f"buffer_store_dwordx4 {R(RG+36, 4)}, v29, s[40:43], s3 offen sc1")
        else:
            for _ in range(3): a("buffer_store_dword v5, v2, s[40:43], 0 offen")
    def acc(tt, t): return ACC + (tt*5 + t)*4
    def transp(cx):
        L = []
        j = cx % 5; b = vRd if j < 3 else vW; o = (j % 3)*20480 + 1024
        for tt in range(2):
            L.append(lambda tt=tt: a.ds(f"ds_read_b128 {R(xf(tt, 2*cx), 4)}, v{b[0]} offset:{o + 2048*tt}"))
            L.append(lambda tt=tt: a.ds(f"ds_read_b128 {R(xf(tt, 2*cx+1), 4)}, v{b[1]} offset:{o + 2048*tt}", f"T{cx}"))
        return L
    def statm(k):
        L = []
        for tt in range(2):
            L.append(MF(GR + 4*tt, xf(tt, k), xf(tt, k), k == 0)); L.append(MF(RSM + 4*tt, ONES, xf(tt, k), k == 0))
        return L
    def breads1(s):
        j, p = divmod(s, 4); L = []
        for t in range(5):
            L.append(lambda t=t: a.ds(f"ds_read_b128 {R(BF + (s&1)*20 + t*4, 4)}, v{vTB[p]} offset:{(j % 3)*20480 + t*1024}", f"R{s}"))
        if j == 2: L.append(f"v_add_u32 v{vTB[p]}, 61440, v{vTB[p]}")
        return L
    def ldb(j):
        def one(i):
            if i == 0: a(f"s_add_u32 m0, s52, {j*20480}"); a("s_add_u32 s57, s54, m0")
            if i == 4: a(f"s_add_u32 m0, s52, {j*20480 + 4096}")
            a.vmem(f"buffer_load_dwordx4 v{8 if i < 4 else 12}, s[40:43], s57 offen offset:{1024*(i&3)} sc1 lds", f"B{j}")
        return [lambda i=i: one(i) for i in range(5)]
    def ldq():
        def one(i):
            if i == 11: a("s_cmp_eq_u32 s28, 3"); a("s_cbranch_scc1 L_noq")
            a(f"s_mul_i32 s98, s28, 13312"); a(f"s_add_u32 m0, s98, {BQ + i*1024}"); a("s_add_u32 s98, s54, m0")
            a.a(f"buffer_load_dwordx4 v8, s[40:43], s98 offen sc1 lds")
            if i < 11: a.vm.append("BQ")
            if i == 12: a("L_noq:")
        return [lambda i=i: one(i) for i in range(11)] + [lambda: (one(11), one(12))]
    def ldt1():
        a("v_lshlrev_b32 v27, 1, v0"); a("s_add_u32 s56, s30, T1_tab-L_pc"); a("s_addc_u32 s57, s31, 0")
        a.vmem(f"global_load_ushort v{vT1}, v27, s[56:57]", "T1")
    def kv_mf(s):
        mf = []
        for t in range(5):
            b = BF + (s&1)*20 + t*4
            for tt in range(2): mf.append(MF(acc(tt, t), xf(tt, s), b, s == 0))
            if s % 4 == 0: mf.append(MF(CSA, OH + 4*t, b, s == 0 and t == 0))
        return mf
    RS = 96; MS = 104; RT = 112; MT = 114; CSV = 116
    URG = 116
    def flagtouch():
        a(f"s_add_u32 s3, s58, {G_FL}"); a("s_bfm_b64 exec, 8, 0"); a.vmem("buffer_load_dword v4, v3, s[40:43], s3 offen"); a("s_mov_b64 exec, -1")
    for cx in range(NX0, 5):
        for f in ldx(cx): f()
    UPOS = P("UPOS", 6)
    if UPOS == 0:
        for f in (ldt1, flagtouch, unit_issue): f()
    if UPOS < 0:
        for f in (ldt1, flagtouch): f()
    for cx in range(10):
        a.wait(vm=f"X{cx}")
        for f in transp(cx): f()
        if cx:
            a.wait(lg=f"T{cx-1}")
            side = ldx(cx + 4) if cx + 4 < 10 else []
            if cx == UPOS: side = side + [ldt1, flagtouch, unit_issue]
            a.interleave(statm(2*(cx-1)) + statm(2*(cx-1)+1), side)
    a.wait(lg="T9")
    a.stamp("xdone")
    a("s_mov_b32 s78, 0")
    a("L_h0p:")
    a("buffer_load_dword v16, v26, s[40:43], s55 offen sc1"); a("s_waitcnt vmcnt(0)")
    a("v_cmp_ne_u32 vcc, s76, v16")
    a("s_cbranch_vccz L_h0ok")
    a("s_add_u32 s78, s78, 1"); a(f"s_cmp_lt_u32 s78, {POLLMAX}"); a("s_cbranch_scc1 L_h0p")
    a("L_h0ok:")
    a.vm = []
    a.stamp("F0ok")
    for f in ldb(0): f()
    for f in ldb(1): f()
    a.wait(lg="all")
    for x in statm(18) + statm(19): a(x)
    a("s_cmp_eq_u32 s72, 2"); a("s_cbranch_scc1 L_rp_f5")
    rp_fin(7, URG); a("s_branch L_rp_done")
    a("L_rp_f5:"); rp_fin(5, URG)
    a("L_rp_done:")
    for tt in range(2):
        for e in range(4): a(f"v_accvgpr_read_b32 v{160+e}, {R(GR + 4*tt + e)}")
        a(f"v_accvgpr_read_b32 v164, {R(RSM + 4*tt)}")
        for x in ["v_cndmask_b32 v160, v160, v161, s[68:69]", "v_cndmask_b32 v162, v162, v163, s[68:69]", "v_mul_f32 v164, s63, v164",
                  "v_cndmask_b32 v160, v160, v162, s[86:87]", "v_mul_f32 v160, s63, v160", "v_fma_f32 v160, -v164, v164, v160",
                  "v_max_f32 v160, 0, v160", "v_add_f32 v160, s64, v160", "v_rsq_f32 v160, v160", "v_mul_f32 v164, v164, v160"]: a(x)
        a.ds(f"ds_write_b32 v{vSTW}, v160 offset:{64*tt}"); a.ds(f"ds_write_b32 v{vSTW}, v164 offset:{128 + 64*tt}")
    a("v_lshlrev_b32 v28, 4, v11"); a("v_add_u32 v28, s48, v28"); a("v_add_u32 v29, s48, v10")
    for tt in range(2):
        a.ds(f"ds_read_b128 {R(RS + 4*tt, 4)}, v28 offset:{64*tt}"); a.ds(f"ds_read_b128 {R(MS + 4*tt, 4)}, v28 offset:{128 + 64*tt}")
        a.ds(f"ds_read_b32 v{RT + tt}, v29 offset:{64*tt}"); a.ds(f"ds_read_b32 v{MT + tt}, v29 offset:{128 + 64*tt}")
    NBE = P("NBE", 3)
    for j in range(2, NBE):
        for f in ldb(j): f()
    a("s_lshl_b32 s73, s70, 9"); a(f"s_add_u32 s73, s73, {C1P}")
    a("s_cmp_eq_u32 s72, 2"); a("s_cselect_b32 s75, 0x40000000, s74"); a("s_cselect_b32 s73, 0x40000000, s73")
    a("v_lshlrev_b32 v85, 4, v11"); a("v_lshl_add_u32 v85, v10, 4, v85"); a("v_cndmask_b32 v85, v2, v85, s[66:67]")
    def ust(t):
        if t < 7: a.vmem(f"buffer_store_dwordx4 {R(URG + 4*t, 4)}, v{8 if t < 4 else 12}, s[40:43], s{74 if t < 5 else 75} offen offset:{1024*(t&3)} sc1", "US")
        else: a.vmem(f"buffer_store_dwordx4 {R(URG+36, 4)}, v85, s[40:43], s73 offen sc1", "US")
    a("s_and_b32 s59, s27, 7"); a("s_lshl_b32 s59, s59, 9"); a(f"s_add_u32 s59, s59, {FU}")
    a("s_lshr_b32 s3, s27, 3"); a("s_lshl_b32 s3, s3, 4"); a("s_add_u32 s3, s3, s26"); a("s_lshl_b32 s3, s3, 2"); a("s_add_u32 s3, s3, s28"); a("s_lshl_b32 s3, s3, 2"); a("s_add_u32 s70, s3, s59")
    a.wait(vm="B0")
    a("s_barrier")
    a.stamp("bP")
    a("s_mov_b32 s94, s60"); a("s_mov_b32 s95, s60"); a("s_mov_b32 s96, s61"); a("s_mov_b32 s97, s61")
    for f in breads1(0): a.run(f)
    def pretouch():
        if "sc1h" in OPT:
            a(f"s_add_u32 s3, s58, {G_FL}"); a("s_bfm_b64 exec, 4, 0"); a.vmem("buffer_load_dword v4, v3, s[40:43], s3 offen"); a("s_mov_b64 exec, -1")
            return
        a("s_mul_i32 s3, s27, 21056"); a("s_add_u32 s3, s3, s58"); a("s_mul_i32 s56, s28, 5376"); a("s_add_u32 s3, s3, s56")
        a("s_bfm_b64 exec, 42, 0"); a.vmem("buffer_load_dword v4, v3, s[40:43], s3 offen"); a("s_mov_b64 exec, -1")
    FB3 = 156
    a("s_and_b32 s3, s27, 7"); a("s_mul_i32 s3, s3, 20"); a("s_add_u32 s3, s3, s28"); a("s_mul_i32 s65, s3, 5120"); a(f"s_add_u32 s65, s65, {WOP}")
    def ldwo(n, t):
        a.vmem(f"buffer_load_dwordx4 {R(FB3 + (n*5+t)*4, 4)}, v{8 if t < 4 else 12}, s[40:43], s65 offen offset:{1024*(t&3)} sc1", "WO")
        if t == 4: a("s_add_u32 s65, s65, 20480")
    def ldfu():
        a("v_lshlrev_b32 v31, 3, v1")
        a.vmem("buffer_load_dwordx2 v[92:93], v31, s[40:43], s59 offen sc1", "FU")
    def chkfu():
        a.wait(vm="FU")
        a("s_mov_b32 s78, 0")
        a("L_fu:")
        a("v_cmp_ne_u32 vcc, s76, v92"); a("v_cmp_ne_u32 s[84:85], s76, v93")
        a("s_or_b64 vcc, vcc, s[84:85]"); a("s_cbranch_scc0 L_fu_ok")
        a("s_add_u32 s78, s78, 1"); a(f"s_cmp_ge_u32 s78, {POLLMAX}"); a("s_cbranch_scc1 L_fu_ok")
        a("buffer_load_dwordx2 v[92:93], v31, s[40:43], s59 offen sc1"); a("s_waitcnt vmcnt(0)")
        a("s_branch L_fu")
        a("L_fu_ok:")
    q_ = ldq(); mix = []
    if "usfirst" in OPT:
        mix = [lambda i=i: ust(i) for i in range(8)] + q_
    else:
        for i in range(12):
            mix.append(q_[i])
            if i < 8: mix.append(lambda i=i: ust(i))
    ldlist = sum([ldb(j) for j in range(NBE, 5)], [])
    MS0 = P("MS0", 6); MR = P("MR", 1)
    a.bgq = mix
    SFU = P("SFU", 18)
    LEND = P("LEND", 16)
    CT = 116
    for s in range(20):
        j, p = divmod(s, 4)
        if p == 3 and j < 4:
            a.wait(vm=f"B{j+1}"); a("s_barrier")
        if s == SFU:
            a.wait(vm="US")
            a("s_mov_b64 exec, 1"); a.vmem("buffer_store_dword v6, v5, s[40:43], s70 offen sc1"); a("s_mov_b64 exec, -1")
        if s == 18:
            a.wait(lg="CSW"); a("s_barrier")
        a.wait(lg=f"R{s}")
        mf = kv_mf(s)
        front = breads1(s+1) if s < 19 else []
        side = []
        if s == 17:
            side += ["s_lshl_b32 s3, s28, 9", f"s_add_u32 s3, s3, {CSX}", "v_add_u32 v27, s3, v8"]
            side.append(lambda: (a("s_bfm_b64 exec, 32, 0"), a.ds(f"ds_write_b128 v27, {R(CSA, 4)}", "CSW"), a("s_mov_b64 exec, -1")))
        if s == 18:
            assert a.vm.count("US") == 8
            side += ["v_lshlrev_b32 v27, 2, v10", f"v_add_u32 v27, {CSX}, v27"]
            for w in range(4):
                side.append(lambda w=w: a.ds(f"ds_read_b128 {R(CT + 4*w, 4)}, v27 offset:{512*w}"))
                side.append(lambda w=w: a.ds(f"ds_read_b32 v{CT + 16 + w}, v27 offset:{512*w + 256}", "CSR"))
        if s == 19:
            side.append(lambda: a.wait(lg="CSR"))
            for e in range(4):
                side += [f"v_add_f32 v{CT+e}, v{CT+e}, v{CT+4+e}", f"v_add_f32 v{CT+8+e}, v{CT+8+e}, v{CT+12+e}", f"v_add_f32 v{CT+20+e}, v{CT+e}, v{CT+8+e}"]
            side += [f"v_add_f32 v{CT+16}, v{CT+16}, v{CT+17}", f"v_add_f32 v{CT+18}, v{CT+18}, v{CT+19}", f"v_add_f32 v{CT+24}, v{CT+16}, v{CT+18}"]
        side += ldlist[:3]; ldlist = ldlist[3:]
        if s >= MS0: side = [lambda: a.bg(1)]*MR + side
        a.interleave(mf, side, front)
    CSV = CT + 20
    a.stamp("kvend")
    if "plainh" in OPT:
        a("s_mul_i32 s3, s27, 21056"); a("s_add_u32 s3, s3, s58"); a("s_mul_i32 s56, s28, 5376"); a("s_add_u32 s3, s3, s56")
        a("s_bfm_b64 exec, 42, 0"); a.vmem("buffer_load_dword v4, v3, s[40:43], s3 offen"); a("s_mov_b64 exec, -1")
    OP = 116; TP = 72
    FUC = P("FUC", 14)
    if FUC < 4: ldfu()
    KBG = P("KBG", 1)
    for t in range(5):
        for tt in range(2):
            b_ = acc(tt, t)
            cp = CSV + t; cpe = cp & ~1; sel = cp & 1
            for h in range(2):
                x = b_ + 2*h
                a(f"v_pk_mul_f32 v[{TP+2*h}:{TP+2*h+1}], v[{MS+4*tt+2*h}:{MS+4*tt+2*h+1}], v[{cpe}:{cpe+1}] op_sel:[0,{sel}] op_sel_hi:[1,{sel}]")
            for h in range(2):
                x = b_ + 2*h
                a(f"v_pk_fma_f32 v[{x}:{x+1}], v[{x}:{x+1}], v[{RS+4*tt+2*h}:{RS+4*tt+2*h+1}], v[{TP+2*h}:{TP+2*h+1}] neg_lo:[0,0,1] neg_hi:[0,0,1]")
            if t <= 2: phi4(a, b_, TP, sel_mask=("s[66:67]" if t == 2 else None))
            for h in range(2):
                a(f"v_cvt_pk_bf16_f32 v{OP + 4*t + 2*tt + h}, v{acc(tt, t) + 2*h}, v{acc(tt, t) + 2*h + 1}")
            if t*2 + tt == SFU - 20:
                a.wait(vm="US")
                a("s_mov_b64 exec, 1"); a.vmem("buffer_store_dword v6, v5, s[40:43], s70 offen sc1"); a("s_mov_b64 exec, -1")
            if t*2 + tt == FUC - 4: ldfu()
            if t*2 + tt == FUC: chkfu(); a.bgq += [lambda n=n, t=t: ldwo(n, t) for n in range(5) for t in range(5)]
            a.bg(KBG)
    while "BQdone" not in a.vm and a.vm.count("BQ") < 11 or (a.bgq and a.bgq[0] is q_[11]): a.bg(1)
    KVD = 32
    for p, (ta, tb) in enumerate(PAIRS):
        a(MF(KVD + 4*p, OP + 4*ta, ONES if tb < 0 else OP + 4*tb, True))
    a("s_mul_i32 s3, s28, 10240"); a("v_add_u32 v27, s3, v8")
    for p in range(10): a(f"ds_write_b128 v27, {R(KVD + 4*p, 4)} offset:{1024*p}")
    a("s_lshl_b32 s3, s27, 4"); a("s_add_u32 s3, s3, s26"); a("s_lshl_b32 s3, s3, 12"); a(f"s_add_u32 s3, s3, {PART}")
    a("v_cmp_gt_u32 vcc, 216, v0"); a("v_cndmask_b32 v9, v2, v9, vcc")
    a.wait(lg="all")
    a("s_barrier")
    for w in range(4): a(f"ds_read_b128 {R(56 + 4*w, 4)}, v{vT1} offset:{10240*w}")
    a("s_waitcnt lgkmcnt(0)")
    for e in (0, 2):
        a(f"v_pk_add_f32 v[{56+e}:{57+e}], v[{56+e}:{57+e}], v[{60+e}:{61+e}]"); a(f"v_pk_add_f32 v[{64+e}:{65+e}], v[{64+e}:{65+e}], v[{68+e}:{69+e}]")
    for e in (0, 2): a(f"v_pk_add_f32 v[{56+e}:{57+e}], v[{56+e}:{57+e}], v[{64+e}:{65+e}]")
    if "p16" in OPT:
        a("v_cvt_pk_bf16_f32 v56, v56, v57"); a("v_cvt_pk_bf16_f32 v57, v58, v59"); a("v_lshrrev_b32 v9, 1, v9")
        a.vmem(f"buffer_store_dwordx2 v[56:57], v9, s[40:43], s3 offen sc1", "PST")
    else:
        a.vmem(f"buffer_store_dwordx4 v[56:59], v9, s[40:43], s3 offen sc1", "PST")
    ldfu()
    a("s_lshr_b32 s48, s27, 3"); a("s_and_b32 s49, s27, 7")
    a("v_lshrrev_b32 v13, 1, v11"); a("v_lshlrev_b32 v13, 8, v13"); a("v_lshl_add_u32 v13, v10, 2, v13")
    a("v_and_b32 v28, 1, v11"); a("v_lshl_add_u32 v13, v28, 3, v13")
    a("v_mul_u32_u24 v14, 320, v10"); a("v_lshl_add_u32 v15, v11, 3, v14"); a("v_lshl_add_u32 v14, v11, 4, v14")
    a("s_lshl_b32 s50, s48, 2"); a("s_add_u32 s50, s50, s28")
    a("s_lshl_b32 s3, s26, 3"); a("s_add_u32 s3, s3, s50"); a("s_mul_i32 s51, s3, 20480"); a("s_mul_i32 s3, s49, 160"); a("s_add_u32 s51, s51, s3")
    a("s_mul_i32 s53, s27, 27"); a("s_lshr_b32 s53, s53, 2")
    a("s_mul_i32 s55, s27, 143360"); a(f"s_add_u32 s55, s55, {W1P}")
    srd(a, 36, 14, 3456)
    a("v_lshlrev_b32 v23, 4, v11"); a("v_lshl_add_u32 v26, v10, 4, v23")
    a("s_lshl_b32 s62, s27, 2"); a("s_add_u32 s62, s62, s28"); a("s_lshl_b32 s62, s62, 7")
    a("s_lshl_b32 s56, s26, 7"); a("s_add_u32 s56, s56, 8192")
    a("v_mov_b32 v27, s62"); a("v_mov_b32 v28, s56"); a("v_cndmask_b32 v17, v27, v28, s[88:89]"); a("v_add_u32 v17, v17, v10")
    a("s_lshl_b32 s3, s26, 2"); a("s_add_u32 s3, s3, s62"); a(f"s_add_u32 s3, s3, {F1}")
    a.wait(vm="PST")
    a("s_mov_b64 exec, 1"); a.vmem("buffer_store_dword v6, v5, s[40:43], s3 offen sc1"); a("s_mov_b64 exec, -1")
    a("s_barrier")
    a.stamp("b7")
    chkfu(); a.bgq += [lambda n=n, t=t: ldwo(n, t) for n in range(5) for t in range(5)]
    FB3 = 156; RES = 116; C1R = 126; T2R = 146
    B1A = A0 + 204
    W1T = A0 + 100
    def w1dma(i):
        a(f"s_mul_i32 s98, s28, {24*1024}"); a(f"s_add_u32 m0, s98, {i*1024}"); a("s_add_u32 s98, s55, m0")
        a.vmem(f"buffer_load_dwordx4 v8, s[40:43], s98 offen sc1 lds", "W1")
    def w1tail(i):
        a(f"s_mul_i32 s98, s28, {11*1024}"); a(f"s_add_u32 s98, s98, {(96+i)*1024}"); a("s_add_u32 s98, s55, s98")
        a.vmem(f"buffer_load_dwordx4 {R(W1T + 4*i, 4)}, v8, s[40:43], s98 offen sc1", "W1")
    def ldsmall():
        a("v_lshlrev_b32 v31, 5, v1"); a("s_add_u32 s98, s30, T2_tab-L_pc"); a("s_addc_u32 s99, s31, 0")
        a.vmem(f"global_load_dwordx4 {R(T2R, 4)}, v31, s[98:99]"); a.vmem(f"global_load_dwordx2 {R(T2R+4, 2)}, v31, s[98:99] offset:16")
    def ldres(q):
        if q == 0: a.vmem(f"buffer_load_dwordx4 {R(RES, 4)}, v14, s[32:35], s51 offen")
        if q == 1: a.vmem(f"buffer_load_dwordx4 {R(RES+4, 4)}, v14, s[32:35], s51 offen offset:64")
        if q == 2: a.vmem(f"buffer_load_dwordx2 {R(RES+8, 2)}, v15, s[32:35], s51 offen offset:128", "RES")
    def ldb1():
        a("v_lshlrev_b32 v31, 3, v11"); a("s_lshl_b32 s98, s53, 5")
        for p in range(3): a.vmem(f"buffer_load_dwordx4 {R(B1A + 4*p, 4)}, v23, s[36:39], s98 offen offset:{64*p}")
        a.vmem(f"buffer_load_dwordx2 {R(B1A + 12, 2)}, v31, s[36:39], s98 offen offset:192")
    def ldc1():
        a("s_mul_i32 s98, s27, 20"); a("s_mul_i32 s99, s28, 5"); a("s_add_u32 s98, s98, s99"); a("s_lshl_b32 s98, s98, 9"); a(f"s_add_u32 s98, s98, {C1P}")
        a("s_mov_b64 exec, s[66:67]")
        for n in range(5): a.vmem(f"buffer_load_dwordx4 {R(C1R + 4*n, 4)}, v26, s[40:43], s98 offen offset:{512*n} sc1", "C1")
        a("s_mov_b64 exec, -1")
    def hidtouch():
        a("s_mul_i32 s98, s27, 27648"); a("s_add_u32 s98, s98, s58"); a(f"s_add_u32 s98, s98, {G_HID}"); a("s_mul_i32 s99, s28, 6912"); a("s_add_u32 s98, s98, s99")
        a("s_bfm_b64 exec, 54, 0"); a.vmem("buffer_load_dword v4, v3, s[40:43], s98 offen"); a("s_mov_b64 exec, -1")
    ldsmall()
    a.bgq += [lambda q=q: ldres(q) for q in range(3)] + [ldb1, ldc1] + [lambda i=i: w1dma(i) for i in range(24)]
    QA = 32
    def qreads(s):
        j, p = divmod(s, 4)
        return [lambda t=t: a.ds(f"ds_read_b128 {R(BF + (s%3)*12 + t*4, 4)}, v{vTQ[p] if t < 2 else vTQ2[p]} offset:{j*10240 + (t&1)*1024}", f"Q{s}") for t in range(3)]
    for f in qreads(0) + qreads(1): f()
    a(f"s_mov_b32 s56, {F1}")
    QSTOP = P("QSTOP", 16)
    for s in range(20):
        j, p = divmod(s, 4)
        if s == 18: a.wait(lg="CQW"); a("s_barrier")
        a.wait(lg=f"Q{s}")
        mf = []
        for t in range(3):
            b = BF + (s%3)*12 + t*4
            for tt in range(2): mf.append(MF(QA + (tt*3+t)*4, b, xf(tt, s), s == 0))
            if p == 0: mf.append(MF(CSQ, b, OH + 4*t, s == 0 and t == 0))
        front = qreads(s+2) if s < 18 else []
        side = []
        if s < QSTOP: side += [lambda: a.bg(1)]*P("QBG", 1)
        if s == 17:
            side.append(lambda: a.vmem("buffer_load_dword v16, v17, s[40:43], s56 offen sc1", "POLL1"))
            side += ["s_lshl_b32 s3, s28, 9", f"s_add_u32 s3, s3, {CSX}", "v_add_u32 v27, s3, v26"]
            side.append(lambda: (a("s_mov_b64 exec, s[66:67]"), a.ds(f"ds_write_b128 v27, {R(CSQ, 4)}", "CQW"), a("s_mov_b64 exec, -1")))
        if s == 18:
            side += [f"v_add_u32 v30, {CSX}, v23"]
            for w, base in ((0, 56), (1, 68), (2, 96)):
                for t in range(3): side.append(lambda w=w, t=t, base=base: a.ds(f"ds_read_b128 {R(base + 4*t, 4)}, v30 offset:{512*w + 64*t}", "CQR"))
        if s == 19:
            side.append(lambda: a.wait(lg="CQR"))
            for x in range(12): side.append(f"v_add_f32 v{56+x}, v{56+x}, v{68+x}")
            for t in range(3): side.append(lambda t=t: a.ds(f"ds_read_b128 {R(68 + 4*t, 4)}, v30 offset:{1536 + 64*t}", "CQR"))
        a.interleave(mf, side, front)
    a.stamp("qend")
    a.wait(vm="POLL1")
    a("s_mov_b32 s78, 0")
    a("L_h1p:")
    a("v_and_b32 v28, 0xfffffff8, v16"); a("v_cmp_ne_u32 vcc, s76, v28")
    a("s_cbranch_vccz L_h1ok")
    a("s_add_u32 s78, s78, 1"); a(f"s_cmp_ge_u32 s78, {POLLMAX}"); a("s_cbranch_scc1 L_h1ok")
    a("buffer_load_dword v16, v17, s[40:43], s56 offen sc1"); a("s_waitcnt vmcnt(0)")
    a("s_branch L_h1p")
    a("L_h1ok:")
    a.stamp("h1ok")
    a.vm = []
    a("v_cmp_ne_u32 vcc, s77, v16"); a("s_and_b64 vcc, vcc, s[88:89]"); a("s_cselect_b32 s79, 0, 1")
    if os.environ.get("FORCESLOW"): a("s_mov_b32 s79, 0")
    P0 = A0
    a("s_lshl_b32 s3, s27, 16"); a(f"s_add_u32 s3, s3, {PART}")
    for r_ in range(16):
        if "p16" in OPT: a.vmem(f"buffer_load_dwordx2 {R(P0 + 4*r_, 2)}, v9, s[40:43], s3 offen sc1", f"P{r_}")
        else: a.vmem(f"buffer_load_dwordx4 {R(P0 + 4*r_, 4)}, v9, s[40:43], s3 offen sc1", f"P{r_}")
        a("s_add_u32 s3, s3, 4096")
    a.bgq += [lambda i=i: w1tail(i) for i in range(11)]
    for x in range(0, 12, 2): a(f"v_pk_add_f32 v[{56+x}:{57+x}], v[{56+x}:{57+x}], v[{96+x}:{97+x}]")
    a.wait(lg="all")
    for x in range(0, 12, 2): a(f"v_pk_add_f32 v[{56+x}:{57+x}], v[{56+x}:{57+x}], v[{68+x}:{69+x}]")
    PQR = 96
    EBG = P("EBG", 2)
    for tt in range(2):
        for t in range(3):
            b_ = QA + (tt*3+t)*4
            for h in range(2):
                a(f"v_pk_mul_f32 v[{TP+2*h}:{TP+2*h+1}], v[{56+4*t+2*h}:{57+4*t+2*h}], v[{MT}:{MT+1}] op_sel:[0,{tt}] op_sel_hi:[1,{tt}]")
            for h in range(2):
                x = b_ + 2*h
                a(f"v_pk_fma_f32 v[{x}:{x+1}], v[{x}:{x+1}], v[{RT}:{RT+1}], v[{TP+2*h}:{TP+2*h+1}] op_sel:[0,{tt},0] op_sel_hi:[1,{tt},1] neg_lo:[0,0,1] neg_hi:[0,0,1]")
            phi4(a, b_, TP)
            for h in range(2):
                d = f"v{PQR + tt*6 + t*2 + h}"
                a(f"v_cvt_pk_bf16_f32 {d}, v{QA + (tt*3+t)*4 + 2*h}, v{QA + (tt*3+t)*4 + 2*h + 1}")
                if t == 2: a(f"v_cndmask_b32 {d}, 0, {d}, s[90:91]")
            a.bg(EBG)
    OSC = SCR
    TA = 56
    for s_ in range(12):
        src = T2R + s_//2
        if s_ & 1: a(f"v_lshrrev_b32 v{TA+s_}, 16, v{src}")
        else: a(f"v_and_b32 v{TA+s_}, 0xffff, v{src}")
        a(f"v_add_u32 v{TA+s_}, {OSC}, v{TA+s_}")
    for r_ in range(16):
        if r_ % 4 == 0: a.wait(vm=f"P{r_+3}")
        if "p16" in OPT:
            b_ = 32 if r_ == 0 else 36
            for e in range(2): a(f"v_accvgpr_read_b32 v{40+e}, {R(P0+4*r_+e)}")
            for e in range(2): a(f"v_lshlrev_b32 v{b_+2*e}, 16, v{40+e}"); a(f"v_and_b32 v{b_+2*e+1}, 0xffff0000, v{40+e}")
        else:
            for e in range(4): a(f"v_accvgpr_read_b32 v{(32 if r_ == 0 else 36)+e}, {R(P0+4*r_+e)}")
        if r_:
            for e in (0, 2): a(f"v_pk_add_f32 v[{32+e}:{33+e}], v[{32+e}:{33+e}], v[{36+e}:{37+e}]")
        if r_ % 4 == 3: a.bg(EBG)
    a("v_cvt_pk_bf16_f32 v18, v32, v33"); a("v_cvt_pk_bf16_f32 v19, v34, v35")
    a("v_cmp_gt_u32 vcc, 210, v0")
    a("v_cndmask_b32 v18, 0, v18, vcc"); a("v_cndmask_b32 v19, 0, v19, vcc")
    a("v_lshlrev_b32 v27, 3, v0"); a(f"v_add_u32 v27, {OSC}, v27")
    a("ds_write_b64 v27, v[18:19]")
    a("s_waitcnt lgkmcnt(0)")
    a("s_barrier")
    a.stamp("b9")
    KF = A0 + 64
    for E in range(4):
        for ta in range(3): a(f"ds_read_b64 {R(KF + 8*E + 2*ta, 2)}, v{TA + 3*E + ta}")
    a("s_mul_i32 s3, s28, 40960"); a("s_mul_i32 s56, s27, 1280"); a("s_add_u32 s3, s3, s56"); a("s_add_u32 s3, s3, s58")
    a("v_lshlrev_b32 v27, 2, v10"); a("v_lshl_add_u32 v27, v11, 3, v27")
    a("v_cndmask_b32 v27, v2, v27, s[90:91]")
    a("s_waitcnt lgkmcnt(0)")
    D = 32
    for tt in range(2):
        for E in (3, 0, 1, 2):
            d = R(D + (tt*4+E)*4, 4)
            a(f"v_mfma_f32_16x16x32_bf16 {d}, {R(KF + 8*E, 4)}, {R(PQR + 6*tt, 4)}, 0")
    for tt in range(2):
        for E in (3, 0, 1, 2):
            d = R(D + (tt*4+E)*4, 4)
            a(f"v_mfma_f32_16x16x16_bf16 {d}, {R(KF + 8*E + 4, 2)}, {R(PQR + 6*tt + 4, 2)}, {d}")
    for tt in range(2):
        z = D + (tt*4+3)*4
        a(f"v_add_f32 v20, s61, v{z}"); a(f"v_add_f32 v21, s61, v{z+1}")
        a("v_rcp_f32 v20, v20"); a("v_rcp_f32 v21, v21")
        a("v_cndmask_b32 v22, v21, v20, s[92:93]"); a("v_cndmask_b32 v28, v21, v20, s[90:91]")
        ob = 64 + 8*tt
        for E, rc in ((0, 22), (1, 28), (2, 21)):
            d = D + (tt*4+E)*4
            for e in range(4): a(f"v_mul_f32 v{d+e}, v{d+e}, v{rc}")
            a(f"v_cvt_pk_bf16_f32 v{ob + 2*E}, v{d}, v{d+1}"); a(f"v_cvt_pk_bf16_f32 v{ob + 2*E + 1}, v{d+2}, v{d+3}")
        a.vmem(f"buffer_store_dwordx4 {R(ob, 4)}, v8, s[40:43], s3 offen{HS}", "ST")
        a.vmem(f"buffer_store_dwordx2 {R(ob + 4, 2)}, v27, s[40:43], s3 offen offset:1024{HS}", "ST")
        a("s_add_u32 s3, s3, 20480")

    def hop(n, before, after_pub, post=0, touch=None, post2=0):
        before()
        a(f"s_add_u32 s59, s58, {G_FL + 128*n}")
        a("s_lshl_b32 s3, s27, 2"); a("s_add_u32 s3, s3, s59")
        a.bg(post)
        a.wait(vm="ST")
        if touch and "notouch" not in OPT: touch()
        a("s_barrier")
        a.stamp(f"hop{n}a")
        a("s_cmp_lg_u32 s28, 0"); a(f"s_cbranch_scc1 L_g{n}np")
        a("s_mov_b64 exec, 1")
        a("s_cmp_eq_u32 s79, 0"); a(f"s_cbranch_scc1 L_g{n}slow")
        a("buffer_store_dword v6, v5, s[40:43], s3 offen")
        a(f"s_branch L_g{n}pd")
        a(f"L_g{n}slow:")
        if FENCE: a("buffer_wbl2 sc1"); a("s_waitcnt vmcnt(0)")
        a("buffer_store_dword v6, v5, s[40:43], s3 offen sc1")
        a(f"L_g{n}pd:")
        a("s_mov_b64 exec, -1")
        a(f"L_g{n}np:")
        after_pub()
        a.bg(post2)
        a("s_cmp_lg_u32 s28, 0"); a(f"s_cbranch_scc1 L_g{n}j")
        a("s_mov_b32 s78, 0")
        a(f"L_g{n}p:")
        a("buffer_load_dword v27, v10, s[40:43], s59 offen sc1")
        a("s_add_u32 s78, s78, 1")
        a("s_waitcnt vmcnt(0)")
        a("v_cmp_ne_u32 vcc, s76, v27")
        a(f"s_cmp_ge_u32 s78, {POLLMAX}"); a(f"s_cbranch_scc1 L_g{n}x")
        a(f"s_cbranch_vccnz L_g{n}p")
        a(f"L_g{n}x:")
        if FENCE:
            a("s_cmp_lg_u32 s79, 0"); a(f"s_cbranch_scc1 L_g{n}j")
            a("buffer_inv sc1"); a("s_waitcnt vmcnt(0)")
        a(f"L_g{n}j:")
        a("s_barrier")
        a.stamp(f"hop{n}b")
    def a_off(NK, goff):
        for m in range(4):
            a(f"s_add_u32 s3, s28, {m}"); a("s_and_b32 s3, s3, 3"); a("s_lshl_b32 s57, s48, 2"); a("s_add_u32 s3, s3, s57")
            a(f"s_mul_i32 s3, s3, {NK}"); a("s_add_u32 s3, s3, s28"); a("s_lshl_b32 s3, s3, 10"); a("s_add_u32 s3, s3, s58"); a(f"s_add_u32 s{80+m}, s3, {goff}")
    def ctouch(lab, nl):
        def f():
            a("s_lshl_b32 s98, s27, 2"); a("s_add_u32 s98, s98, s28"); a(f"s_mul_i32 s98, s98, {128*nl}"); a(f"s_add_u32 s98, s98, {lab}-L_pc")
            a("v_add_u32 v31, s98, v3"); a(f"s_bfm_b64 exec, {nl}, 0")
            a.vmem("global_load_dword v4, v31, s[30:31]"); a("s_mov_b64 exec, -1")
        return f
    if "noct" not in OPT: a.bgq.insert(0, ctouch("L_cS4", 2))
    def flush_wo():
        while any(True for _ in [0]) and a.bgq and len(a.bgq) > 24 + 11: a.bg(1)
    def bef0():
        a_off(20, G_O)
        a("s_mul_i32 s99, s28, 40960"); a("s_mul_i32 s56, s27, 1280"); a("s_add_u32 s99, s99, s56"); a("s_add_u32 s99, s99, s58")
        a("v_mul_u32_u24 v28, 20480, v11"); a("v_lshl_add_u32 v28, v10, 5, v28")
    def tch0():
        a("s_mov_b64 exec, 0x03ff03ff"); a.vmem("buffer_load_dword v4, v28, s[40:43], s99 offen sc1"); a("s_mov_b64 exec, -1")
    hop(0, bef0, lambda: None, post=0, touch=tch0, post2=P("POST0", 10))
    flush_wo()
    ACC = 32 ; FA3 = A0
    for n in range(5):
        for m in range(4):
            a.vmem(f"buffer_load_dwordx4 {R(FA3 + (n*4+m)*4, 4)}, v8, s[40:43], s{80+m} offen sc1", f"A{n}")
            a(f"s_add_u32 s{80+m}, s{80+m}, 4096")
    if "sc1hid" not in OPT: a.bgq.insert(0, hidtouch)
    RED = 102400
    def red_addr():
        for m in range(1, 4):
            a(f"s_add_u32 s3, s28, {m}"); a("s_and_b32 s3, s3, 3"); a("s_mul_i32 s3, s3, 15360"); a(f"s_add_u32 s3, s3, {RED}")
            a(f"v_add_u32 v{16+m}, s3, v8")
        a("s_mul_i32 s3, s28, 15360"); a(f"s_add_u32 s3, s3, {RED}"); a("v_add_u32 v16, s3, v8")
    def init_acc(srcs):
        for t in range(5):
            for e in range(4):
                for q, src0 in enumerate(srcs):
                    src = src0 + 2*t + (e >> 1); d = ACC+4*t+e if q == 0 else 27
                    if e & 1: a(f"v_and_b32 v{d}, 0xffff0000, v{src}")
                    else: a(f"v_lshlrev_b32 v{d}, 16, v{src}")
                    if q: a(f"v_add_f32 v{ACC+4*t+e}, v{ACC+4*t+e}, v27")
    def last_step(mfn):
        order = [(m, t) for m in (1, 2, 3, 0) for t in range(5)]
        for i, (m, t) in enumerate(order):
            a(mfn(m, t))
            if i >= 5:
                m2, t2 = order[i-5]
                a(f"ds_write_b128 v{16+m2}, {R(ACC + (m2*5+t2)*4, 4)} offset:{(m2-1)*5120 + t2*1024}")
    red_addr()
    if "RES" in a.vm: a.wait(vm="RES")
    init_acc([RES])
    S3BG = P("S3BG", 3)
    for n in range(5):
        a.wait(vm=f"A{n}")
        if n == 4:
            last_step(lambda m, t: MF(ACC + (m*5+t)*4, FB3 + (n*5+t)*4, FA3 + (n*4+m)*4, False)); a.bg(S3BG)
        else:
            mf = [MF(ACC + (m*5+t)*4, FB3 + (n*5+t)*4, FA3 + (n*4+m)*4, n == 0 and m > 0) for m in range(4) for t in range(5)]
            a.interleave(mf, [lambda: a.bg(1)]*S3BG)
    a.stamp("s3end")
    a("L_cS4:")
    if "plainhid" in OPT and P("HTP", 0) == 0: hidtouch()
    HF = A0; BF = A0 + 160
    NA = P("NA", 4); BS = 4*max(NA, 7 - NA)
    if NA == 4:
        slots = [156 + 4*i for i in range(16)] + [A0 + 192 + 4*i for i in range(3)] + [A0 + 220 + 4*i for i in range(9)] + [HF + 4*i for i in range(40)] + [BF + 4*i for i in range(2)]
        NEARLY = 28
        arA = [A0 + 168 + 4*i for i in range(6)] + [A0 + 204 + 4*i for i in range(4)]
    elif NA == 7:
        for x in range(14): a(f"v_accvgpr_mov_b32 {R(A0 + 240 + x)}, {R(B1A + x)}")
        B1A = A0 + 240
        slots = [156 + 4*i for i in range(16)] + [A0 + 216 + 4*i for i in range(6)] + [HF + 4*i for i in range(40)] + [BF + 4*i for i in range(8)]
        NEARLY = 22
        arA = [A0 + 192 + 4*i for i in range(6)] + [A0 + 240 + 4*i for i in range(4)]
    else:
        for x in range(14): a(f"v_accvgpr_mov_b32 {R(A0 + 240 + x)}, {R(B1A + x)}")
        B1A = A0 + 240
        slots = [156 + 4*i for i in range(16)] + [A0 + 208 + 4*i for i in range(8)] + [HF + 4*i for i in range(40)] + [BF + 4*i for i in range(6)]
        NEARLY = 24
        arA = [A0 + 184 + 4*i for i in range(6)] + [A0 + 240 + 4*i for i in range(4)]
    def fb(n, t): return slots[n*5 + t]
    a("s_mul_i32 s3, s49, 54"); a("s_add_u32 s3, s3, s28"); a("s_mul_i32 s54, s3, 5120"); a(f"s_add_u32 s54, s54, {W2P}")
    def ldw2(n, t):
        if n == 13 and t == 0:
            a("s_cmp_ge_u32 s28, 2"); a("s_cselect_b32 s98, 0x40000000, 0"); a("s_add_u32 s54, s54, s98")
        a.vmem(f"buffer_load_dwordx4 {R(fb(n, t), 4)}, v{8 if t < 4 else 12}, s[40:43], s54 offen offset:{1024*(t&3)} sc1", f"W2_{n}")
        if t == 4: a("s_add_u32 s54, s54, 20480")
    w2q = [(n, t) for n in range(14) for t in range(5)]
    nw1left = len(a.bgq)
    def w2bg():
        ldw2(*w2q.pop(0))
    a.bgq += [w2bg]*NEARLY
    def reduce_epi(which, BIA=None, nbg=0):
        a.bg(2*nbg)
        a("s_waitcnt lgkmcnt(0)")
        a("s_barrier")
        for t in range(5):
            for m in range(1, 4): a(f"ds_read_b128 {R(ACC + (m*5+t)*4, 4)}, v16 offset:{(m-1)*5120 + t*1024}")
        for t in range(5):
            a(f"s_waitcnt lgkmcnt({12 - 3*t})")
            for e in (0, 2):
                x0 = ACC + 4*t + e
                a(f"v_pk_add_f32 v[{x0+20}:{x0+21}], v[{x0+20}:{x0+21}], v[{x0+40}:{x0+41}]"); a(f"v_pk_add_f32 v[{x0}:{x0+1}], v[{x0}:{x0+1}], v[{x0+60}:{x0+61}]")
            for e in (0, 2):
                x0 = ACC + 4*t + e
                a(f"v_pk_add_f32 v[{x0}:{x0+1}], v[{x0}:{x0+1}], v[{x0+20}:{x0+21}]")
            for h in range(2): a(f"v_cvt_pk_bf16_f32 v{RES+2*t+h}, v{ACC+4*t+2*h}, v{ACC+4*t+2*h+1}")
            if which == 3:
                if t == 1: a.vmem(f"buffer_store_dwordx4 {R(RES, 4)}, v8, s[40:43], s57 offen{HS}")
                if t == 3: a.vmem(f"buffer_store_dwordx4 {R(RES+4, 4)}, v8, s[40:43], s57 offen offset:1024{HS}")
                if t == 4: a.vmem(f"buffer_store_dwordx2 {R(RES+8, 2)}, v13, s[40:43], s57 offen offset:2048{HS}")
    a("s_mul_i32 s57, s50, 20480"); a("s_mul_i32 s3, s49, 2560"); a("s_add_u32 s57, s57, s3"); a("s_add_u32 s57, s57, s58"); a(f"s_add_u32 s57, s57, {G_H}")
    reduce_epi(3, nbg=P("R3BG", 3))
    a(f"v_pk_add_f32 v[28:29], v[{ACC}:{ACC+1}], v[{ACC+2}:{ACC+3}]"); a(f"v_pk_mul_f32 v[30:31], v[{ACC}:{ACC+1}], v[{ACC}:{ACC+1}]"); a(f"v_pk_fma_f32 v[30:31], v[{ACC+2}:{ACC+3}], v[{ACC+2}:{ACC+3}], v[30:31]")
    for x in range(4, 20, 2):
        a(f"v_pk_add_f32 v[28:29], v[28:29], v[{ACC+x}:{ACC+x+1}]"); a(f"v_pk_fma_f32 v[30:31], v[{ACC+x}:{ACC+x+1}], v[{ACC+x}:{ACC+x+1}], v[30:31]")
    a("v_add_f32 v20, v28, v29"); a("v_add_f32 v21, v30, v31")
    def red_g(regs, tmp):
        for r_ in regs:
            a(f"v_mov_b32 {tmp}, {r_}"); a(f"v_permlane32_swap_b32 {r_}, {tmp}"); a(f"v_add_f32 {r_}, {r_}, {tmp}")
            a(f"v_mov_b32 {tmp}, {r_}"); a(f"v_permlane16_swap_b32 {r_}, {tmp}"); a(f"v_add_f32 {r_}, {r_}, {tmp}")
    red_g(["v20", "v21"], "v22")
    a("v_lshlrev_b32 v22, 1, v10")
    a("s_lshl_b32 s57, s50, 10"); a("s_lshl_b32 s3, s49, 7"); a("s_add_u32 s57, s57, s3"); a("s_add_u32 s57, s57, s58"); a(f"s_add_u32 s57, s57, {G_ST}")
    a.vmem(f"buffer_store_dwordx2 v[20:21], v22, s[40:43], s57 offen{HS}", "ST")
    CS = 128; CSL = 144384
    def bef3():
        a("s_mul_i32 s3, s28, 40960"); a("s_add_u32 s3, s3, s58"); a(f"s_add_u32 s80, s3, {G_H}"); a("s_add_u32 s81, s80, 20480")
        a("s_lshl_b32 s82, s28, 11"); a("s_add_u32 s82, s82, s58"); a(f"s_add_u32 s82, s82, {G_ST}")
        a("v_lshlrev_b32 v19, 8, v11"); a("v_lshl_add_u32 v19, v10, 1, v19")
        a("v_add_u32 v16, 57344, v8"); a("v_add_u32 v17, 114688, v8")
        a(f"s_mul_i32 s3, s28, {11*1024}"); a(f"s_add_u32 s3, s3, {96*1024}"); a("v_add_u32 v18, s3, v8")
        for e in range(4):
            a(f"v_add_f32 v{C1R+e}, v{C1R+e}, v{C1R+4+e}"); a(f"v_add_f32 v{C1R+8+e}, v{C1R+8+e}, v{C1R+12+e}")
            a(f"v_add_f32 v{C1R+e}, v{C1R+e}, v{C1R+16+e}"); a(f"v_add_f32 v{C1R+e}, v{C1R+e}, v{C1R+8+e}")
        a("s_lshl_b32 s3, s28, 9"); a(f"s_add_u32 s3, s3, {CSL}"); a("v_add_u32 v29, s3, v26")
    def aft3():
        if "W1" in a.vm: a.wait(vm="W1")
        for i in range(11): a(f"ds_write_b128 v18, {R(W1T + 4*i, 4)} offset:{1024*i}")
        a("s_mov_b64 exec, s[66:67]"); a(f"ds_write_b128 v29, {R(C1R, 4)}"); a("s_mov_b64 exec, -1")
        a("s_waitcnt lgkmcnt(0)")
    left1 = max(0, len(a.bgq) - len([1 for x in a.bgq if x is w2bg]))
    print("w1 left at hop3:", left1, "w2 issued:", 70 - len(w2q), file=sys.stderr)
    def tch1():
        a("s_mul_i32 s99, s50, 20480"); a("s_mul_i32 s98, s49, 2560"); a("s_add_u32 s99, s99, s98"); a("s_add_u32 s99, s99, s58"); a(f"s_add_u32 s99, s99, {G_H}")
        a("s_mov_b64 exec, 0xfffff"); a.vmem("buffer_load_dword v4, v3, s[40:43], s99 offen sc1"); a("s_mov_b64 exec, -1")
    hop(1, bef3, aft3, post=left1, touch=tch1, post2=max(0, P("POST1", 6) - left1))
    def hf(tt, k): return HF + (k*2 + tt)*4
    def ldh(k):
        def one(tt):
            a.vmem(f"buffer_load_dwordx4 {R(hf(tt, k), 4)}, v8, s[40:43], s{80+tt} offen offset:{1024*(k&3)} sc1", f"H{k}")
            if (k & 3) == 3: a(f"s_add_u32 s{80+tt}, s{80+tt}, 4096")
        return [lambda tt=tt: one(tt) for tt in range(2)]
    PRE = P("PRE4", 6)
    for k in range(PRE):
        for f in ldh(k): f()
    for tt in range(2):
        for q in range(2):
            a.vmem(f"buffer_load_dwordx2 {R(88 + 4*tt + 2*q, 2)}, v19, s[40:43], s82 offen offset:{1024*tt + 128*q} sc1", "STAT")
    def breads(ps, k):
        ts = range(NA) if ps == 0 else range(NA, 7)
        return [lambda t=t: a.ds(f"ds_read_b128 {R(BF + (k&1)*BS + 4*(t - ts[0]), 4)}, v{[8, 16, 17][k >> 3]} offset:{(k & 7)*7168 + 1024*t}", f"BR{ps}_{k}") for t in ts]
    for f in breads(0, 0): f()
    vS = [20, 21]; vQ = [24, 25]
    a(f"v_add_u32 v18, {CSL}, v23")
    hq = list(range(PRE, 20))
    B1U = 220
    c1 = -2.0*LOG2E*0.7978845608028654
    c2 = c1*0.044715
    a(f"s_mov_b32 s60, {hx(c1)}"); a(f"s_mov_b32 s61, {hx(c2)}")
    a("s_mul_i32 s72, s28, 110592"); a("s_add_u32 s72, s72, s58"); a(f"s_add_u32 s72, s72, {G_HID}")
    a("s_lshl_b32 s3, s27, 11"); a("s_add_u32 s56, s72, s3"); a("s_add_u32 s57, s56, 55296")
    a("s_lshl_b32 s3, s27, 10"); a("s_add_u32 s70, s72, s3"); a("s_add_u32 s70, s70, 32768"); a("s_add_u32 s71, s70, 55296")
    a("s_lshr_b32 s3, s27, 2"); a("s_sub_u32 s3, s27, s3"); a("s_lshl_b32 s3, s3, 9"); a("s_add_u32 s72, s72, s3"); a(f"s_add_u32 s72, s72, {49152 - 512}")
    a("s_and_b32 s3, s27, 3"); a("s_cselect_b32 s72, s72, 0x40000000"); a("s_add_u32 s73, s72, 55296")
    for k in range(20):
        a.wait(vm=f"H{k}", lg=f"BR0_{k}")
        front = breads(0, k+1) if k < 19 else (breads(1, 0) if NA < 7 else [])
        side = []
        if NA == 7:
            if hq:
                for _ in range(P("HRATE", 2)):
                    if hq: side += ldh(hq.pop(0))
            else:
                side += [w2bg]*max(0, min(P("ABG", 2), len(w2q), NEARLY + 2*k - (70 - len(w2q))))
        elif hq:
            side += ldh(hq.pop(0))
            if not hq and "plainhid" in OPT and P("HTP", 0) == 1: side.append(hidtouch)
        else: side += [lambda: a.bg(1)]*P("ABG", 1)
        if 1 <= k < 8:
            kk = k - 1; tb = 96 if kk % 2 == 0 else 220
            side.append(lambda kk=kk: a.wait(lg=f"CG{kk}"))
            for e in range(4):
                side += [f"v_add_f32 v{CS+4*kk+e}, v{CS+4*kk+e}, v{tb+e}", f"v_add_f32 v{tb+4+e}, v{tb+4+e}, v{tb+8+e}", f"v_add_f32 v{CS+4*kk+e}, v{CS+4*kk+e}, v{tb+4+e}"]
        if k < 7:
            tb = 96 if k % 2 == 0 else 220
            for w in range(4): front.append(lambda w=w, k=k, tb=tb: a.ds(f"ds_read_b128 {R((CS + 4*k) if w == 0 else (tb - 4 + 4*w), 4)}, v18 offset:{512*w + 64*k}", f"CG{k}"))
        if k == PRE + 2:
            for tt in range(2):
                side.append(f"v_add_f32 v{vS[tt]}, v{88+4*tt}, v{90+4*tt}"); side.append(f"v_add_f32 v{vQ[tt]}, v{89+4*tt}, v{91+4*tt}")
            side.append(lambda: red_g([f"v{x}" for x in vS + vQ], "v22"))
        if k == PRE + 3:
            for tt in range(2):
                s_, q_ = f"v{vS[tt]}", f"v{vQ[tt]}"
                side += [f"v_mul_f32 {s_}, s63, {s_}", f"v_mul_f32 {q_}, s63, {q_}", f"v_fma_f32 {q_}, -{s_}, {s_}, {q_}", f"v_max_f32 {q_}, 0, {q_}",
                         f"v_add_f32 v22, s64, {q_}", f"v_fma_f32 {q_}, v22, s64, {q_}", f"v_rsq_f32 {q_}, {q_}", f"v_mul_f32 {s_}, {s_}, {q_}"]
            side += ["v_mov_b32 v252, s60", "v_mov_b32 v253, s60", "s_mov_b32 s96, s61", "s_mov_b32 s97, s61"]
        if k >= 12:
            x = 2*(k - 12)
            for y in (x, x + 1):
                if y < 14:
                    side += [f"v_accvgpr_read_b32 v27, {R(B1A + y)}", f"v_lshlrev_b32 v{B1U+2*y}, 16, v27", f"v_and_b32 v{B1U+2*y+1}, 0xffff0000, v27"]
        mf = [MF(ACC + (tt*7+t)*4, BF + (k&1)*BS + 4*t, hf(tt, k), k == 0) for t in range(NA) for tt in range(2)]
        a.interleave(mf, side, front)
    a.stamp("s4A")
    if "noct" not in OPT: ctouch("L_cS5", 1)()
    PK = 88
    def gelu(tt, t, pk=False):
        L = []
        if pk:
            b_ = ACC + (tt*7+t)*4
            pr = lambda x: f"v[{x}:{x+1}]"
            for h in (0, 2): L.append(f"v_pk_fma_f32 {pr(248+h)}, v[20:21], {pr(CS+4*t+h)}, {pr(B1U+4*t+h)} op_sel:[{tt},0,0] op_sel_hi:[{tt},1,1] neg_lo:[1,0,0] neg_hi:[1,0,0]")
            for h in (0, 2): L.append(f"v_pk_fma_f32 {pr(b_+h)}, {pr(b_+h)}, v[24:25], {pr(248+h)} op_sel:[0,{tt},0] op_sel_hi:[1,{tt},1]")
            for h in (0, 2): L.append(f"v_pk_mul_f32 {pr(248+h)}, {pr(b_+h)}, {pr(b_+h)}")
            for h in (0, 2): L.append(f"v_pk_fma_f32 {pr(248+h)}, {pr(248+h)}, s[96:97], v[252:253]")
            for h in (0, 2): L.append(f"v_pk_mul_f32 {pr(248+h)}, {pr(248+h)}, {pr(b_+h)}")
            for e in range(4): L.append(f"v_exp_f32 v{248+e}, v{248+e}")
            for h in (0, 2): L.append(f"v_pk_add_f32 {pr(248+h)}, {pr(248+h)}, 1.0 op_sel_hi:[1,0]")
            for e in range(4): L.append(f"v_rcp_f32 v{248+e}, v{248+e}")
            for h in (0, 2): L.append(f"v_pk_mul_f32 {pr(b_+h)}, {pr(b_+h)}, {pr(248+h)}")
        else:
            for e in range(4):
                v_ = f"v{ACC + (tt*7+t)*4 + e}"; ta = f"v{248+e}"
                L += [f"v_fma_f32 {ta}, -v{vS[tt]}, v{CS+4*t+e}, v{B1U+4*t+e}", f"v_fma_f32 {v_}, {v_}, v{vQ[tt]}, {ta}", f"v_mul_f32 {ta}, {v_}, {v_}",
                      f"v_fma_f32 {ta}, {ta}, s61, v252", f"v_mul_f32 {ta}, {ta}, {v_}", f"v_exp_f32 {ta}, {ta}"]
            for e in range(4):
                ta = f"v{248+e}"; L += [f"v_add_f32 {ta}, 1.0, {ta}"]
            for e in range(4):
                ta = f"v{248+e}"; L += [f"v_rcp_f32 {ta}, {ta}"]
            for e in range(4):
                v_ = f"v{ACC + (tt*7+t)*4 + e}"; L.append(f"v_mul_f32 {v_}, {v_}, v{248+e}")
        for h in range(2):
            x0 = ACC + (tt*7+t)*4 + 2*h
            L.append(f"v_cvt_pk_bf16_f32 v{PK + tt*14 + 2*t + h}, v{x0}, v{x0+1}")
        if t in (1, 3): L.append(lambda: a.vmem(f"buffer_store_dwordx4 {R(PK + tt*14 + 2*(t-1), 4)}, v8, s[40:43], s{56+tt} offen offset:{512*(t-1)}{HS2}", "ST01"))
        if t == 5: L.append(lambda: a.vmem(f"buffer_store_dwordx4 {R(PK + tt*14 + 8, 4)}, v8, s[40:43], s{70+tt} offen{HS2}", "ST"))
        if t == 6: L.append(lambda: a.vmem(f"buffer_store_dwordx2 {R(PK + tt*14 + 12, 2)}, v13, s[40:43], s{72+tt} offen{HS2}", "ST"))
        return L
    gl = []
    for p in range(NA//2 if NA < 7 else 0):
        for tt in range(2): gl += gelu(tt, 2*p, "pkB" in OPT) + gelu(tt, 2*p+1, "pkB" in OPT)
    a.bgq = []
    W2RATE = P("W2RATE", 2)
    for k in range(20 if NA < 7 else 0):
        a.wait(lg=f"BR1_{k}")
        front = breads(1, k+1) if k < 19 else []
        GEND = P("GEND", 14)
        q = ((len(gl) + GEND - 1 - k)//(GEND - k) if k < GEND else len(gl)) if k > 0 else 0
        side = gl[:q]; gl = gl[q:]
        nin = max(0, min(W2RATE, len(w2q), NEARLY + 2*k - (70 - len(w2q))))
        for i_ in range(nin): side.insert((i_ + 1)*len(side)//(nin + 1), w2bg)
        mf = [MF(ACC + (tt*7+t)*4, BF + (k&1)*BS + 4*(t-NA), hf(tt, k), k == 0) for t in range(NA, 7) for tt in range(2)]
        a.interleave(mf, side, front)
    a.stamp("s4B")
    a("L_cS5:")
    W2EPI = P("W2EPI", 1)
    BIA = 126
    srd(a, 32, 20, 2621440); srd(a, 36, 18, 1280)
    s57save = None
    for m in range(4):
        a(f"s_add_u32 s3, s28, {m}"); a("s_and_b32 s3, s3, 3"); a("s_lshl_b32 s99, s48, 2"); a("s_add_u32 s3, s3, s99")
        a(f"s_mul_i32 s3, s3, 54"); a("s_add_u32 s3, s3, s28"); a("s_lshl_b32 s3, s3, 10"); a("s_add_u32 s3, s3, s58"); a(f"s_add_u32 s{80+m}, s3, {G_HID}")
    a("v_lshlrev_b32 v28, 3, v11"); a("s_mul_i32 s3, s49, 160")
    a.vmem(f"buffer_load_dwordx4 {R(BIA, 4)}, v23, s[36:39], s3 offen")
    a.vmem(f"buffer_load_dwordx4 {R(BIA+4, 4)}, v23, s[36:39], s3 offen offset:64")
    a.vmem(f"buffer_load_dwordx2 {R(BIA+8, 2)}, v28, s[36:39], s3 offen offset:128", "BIA")
    def pub(n):
        a("s_barrier")
        a("s_cmp_lg_u32 s28, 0"); a(f"s_cbranch_scc1 L_p{n}np")
        a("s_lshl_b32 s3, s27, 2"); a("s_add_u32 s3, s3, s58"); a(f"s_add_u32 s3, s3, {G_FL + 128*n}")
        a("s_mov_b64 exec, 1")
        a("s_cmp_eq_u32 s79, 0"); a(f"s_cbranch_scc1 L_p{n}slow")
        a("buffer_store_dword v6, v5, s[40:43], s3 offen")
        a(f"s_branch L_p{n}pd")
        a(f"L_p{n}slow:")
        a("buffer_store_dword v6, v5, s[40:43], s3 offen sc1")
        a(f"L_p{n}pd:")
        a("s_mov_b64 exec, -1")
        a(f"L_p{n}np:")
    def pld(n):
        a(f"s_add_u32 s59, s58, {G_FL + 128*n}")
        a.vmem("buffer_load_dword v31, v10, s[40:43], s59 offen sc1", f"PL{n}")
    def pchk(n):
        a.wait(vm=f"PL{n}")
        a("s_mov_b32 s78, 0")
        a(f"L_c{n}:")
        a("v_cmp_ne_u32 vcc, s76, v31")
        a(f"s_cbranch_vccz L_c{n}ok")
        a("buffer_load_dword v31, v10, s[40:43], s59 offen sc1"); a("s_waitcnt vmcnt(0)")
        a("s_add_u32 s78, s78, 1"); a(f"s_cmp_lt_u32 s78, {POLLMAX}"); a(f"s_cbranch_scc1 L_c{n}")
        a(f"L_c{n}ok:")
    seq = [(0, 4), (0, 5), (1, 4), (1, 5), (0, 6), (1, 6)]
    for i_, (tt, t) in enumerate(seq):
        if i_ == P("EP", 0): a.wait(vm="ST01"); pub(2)
        if i_ == P("PP", 4): pld(2)
        L = gelu(tt, t, True)
        for j_, x in enumerate(L):
            a.run(x)
            if i_ < P("W2STOP", 4) and j_ in (6, 16)[:W2EPI] and w2q: ldw2(*w2q.pop(0))
    a.stamp("tail")
    print("w2 left for S5:", len(w2q), file=sys.stderr)
    red_addr(); a.wait(vm="BIA"); init_acc([RES, BIA])
    pchk(2)
    a.stamp("FEok")
    ar = [136 + 4*i for i in range(5)] + [220 + 4*i for i in range(9)] + arA
    NR = 6
    def fa(n, m): return ar[(n % NR)*4 + m]
    def lda5(n):
        def one(m):
            if n == 13 and m == 0:
                a("s_cmp_ge_u32 s28, 2"); a("s_cselect_b32 s3, 0x40000000, 0")
                for q in range(4): a(f"s_add_u32 s{80+q}, s{80+q}, s3")
            a.vmem(f"buffer_load_dwordx4 {R(fa(n, m), 4)}, v8, s[40:43], s{80+m} offen sc1", f"A5_{n}")
            a(f"s_add_u32 s{80+m}, s{80+m}, 4096")
        return [lambda m=m: one(m) for m in range(4)]
    PRE5 = P("PRE5", 3)
    def need_w2(n):
        L = []
        while w2q and w2q[0][0] <= n:
            x = w2q.pop(0); L.append(lambda x=x: ldw2(*x))
        return L
    for n in range(PRE5):
        for f in need_w2(n) + lda5(n): f()
    a.wait(vm="ST"); pub(3)
    nxt = PRE5
    PL = P("PL", 2); PC = P("PC", 4)
    for n in range(14):
        a.wait(vm=f"A5_{n}")
        if n == PC: pchk(3)
        side = []; cnt = 0
        if n == PL: side.append(lambda: pld(3))
        while nxt < 14 and nxt <= n + NR - 1 and cnt < 2 and (nxt < 8 or n >= PC):
            side += need_w2(nxt) + lda5(nxt); nxt += 1; cnt += 1
        if cnt == 0 and w2q:
            for _ in range(min(4, len(w2q))):
                x = w2q.pop(0); side.append(lambda x=x: ldw2(*x))
        if n == 13:
            last_step(lambda m, t: MF(ACC + (m*5+t)*4, fb(n, t), fa(n, m), False))
        else:
            mf = [MF(ACC + (m*5+t)*4, fb(n, t), fa(n, m), n == 0 and m > 0) for m in range(4) for t in range(5)]
            a.interleave(mf, side)
    a.stamp("s5end")
    reduce_epi(5, BIA)
    a(f"buffer_store_dwordx4 {R(RES, 4)}, v14, s[32:35], s51 offen")
    a(f"buffer_store_dwordx4 {R(RES+4, 4)}, v14, s[32:35], s51 offen offset:64")
    a(f"buffer_store_dwordx2 {R(RES+8, 2)}, v15, s[32:35], s51 offen offset:128")
    a("s_or_b32 s3, s2, s28"); a("s_cmp_lg_u32 s3, 0"); a("s_cbranch_scc1 L_notagclr")
    a("global_store_dword v5, v5, s[22:23] sc1")
    a("L_notagclr:")
    a.stamp("stored")
    if STAMP:
        a("s_waitcnt vmcnt(0)")
        a.stamp("end")
        a("s_memrealtime s[100:101]"); a("s_waitcnt lgkmcnt(0)"); a("v_writelane_b32 v7, s100, 31")
        a("v_writelane_b32 v7, s79, 30")
        a("s_lshl_b32 s3, s2, 2"); a("s_add_u32 s3, s3, s28"); a("s_lshl_b32 s3, s3, 8"); a(f"s_add_u32 s3, s3, {STB}")
        a("v_lshlrev_b32 v27, 2, v1"); a("v_add_u32 v27, s3, v27")
        a("global_store_dword v27, v7, s[24:25]")
        if os.environ.get("DELAY"):
            di = os.environ["DELAY"]
            a(f"s_cmp_lg_u32 s2, {P('DWG', 8)}"); a("s_cbranch_scc1 L_end"); a("s_cmp_lg_u32 s28, 0"); a("s_cbranch_scc1 L_end")
            clk = "s_memrealtime" if di == "rt" else "s_memtime"
            a(f"{clk} s[100:101]"); a("s_waitcnt lgkmcnt(0)")
            if di == "rt":
                a("s_sub_u32 s3, s100, s76")
            else:
                a(f"v_readlane_b32 s3, v7, {di}"); a("v_readlane_b32 s56, v7, 0"); a("s_nop 3"); a("s_sub_u32 s3, s3, s56")
            a("s_lshl_b32 s3, s3, 2"); a("s_min_u32 s3, s3, 0x100000"); a("s_mov_b32 s57, s100")
            a("L_dly:")
            a(f"{clk} s[100:101]"); a("s_waitcnt lgkmcnt(0)"); a("s_sub_u32 s56, s100, s57"); a("s_cmp_lt_u32 s56, s3"); a("s_cbranch_scc1 L_dly")
        a.a.raw("; STAMPS " + " ".join(a.names))
    a("L_end:")
    a("s_endpgm")
    return a.a

def main(out):
    hdr = open("sequential_preLN__linear_attn_block__mixer_channel_mlp__prompt.s.ref").read().split("\n")
    hdr = [l for l in hdr if l.startswith(";") and "@launch" not in l]
    hdr.append("; @launch grid=(256,1,1) block=(256,1,1) lds=163840")
    a = gen()
    pre = '.amdgcn_target "amdgcn-amd-amdhsa--gfx950"\n.text\n'
    T1, T2 = build_tables()
    a.raw(".p2align 6\nT1_tab:")
    a.raw(".short " + ",".join(map(str, T1)))
    a.raw("T2_tab:")
    for row in T2: a.raw(".short " + ",".join(map(str, row)))
    a.raw(".fill 2048, 4, 0")
    a.raw('.section .rodata,"a"\n.p2align 6')
    a.raw(f""".amdhsa_kernel {NAME}
  .amdhsa_next_free_vgpr 512
  .amdhsa_next_free_sgpr 102
  .amdhsa_accum_offset 256
  .amdhsa_group_segment_fixed_size 0
  .amdhsa_kernarg_size 88
  .amdhsa_user_sgpr_count 2
  .amdhsa_user_sgpr_kernarg_segment_ptr 1
  .amdhsa_system_sgpr_workgroup_id_x 1
.end_amdhsa_kernel""")
    open(out, "w").write("\n".join(hdr) + "\n" + pre + a.finish())

if __name__ == "__main__":
    main(sys.argv[1])
```

```python
import sys, struct, os
from asmdsl import Asm, R, S
from gen1 import build_tables, PAIRS, f2u, hx, divmod_const, srd, LOG2E

NAME = "sequential_preLN__linear_attn_block__mixer_channel_mlp__prompt_kernel"
WOP = 0
W2P = WOP + 8*20*5*1024
W1P = W2P + 8*54*5*1024
C1P = W1P + 16*20*7*1024
WQKV = C1P + 320*512
PART = WQKV + 16*153600
GRP = PART + 256*4096
G_O = 0; G_H = 163840; G_ST = 327680; G_FL = 335872; G_HID = 336896; G_SZ = G_HID + 442368
FLG = GRP + 16*G_SZ
F1 = FLG; F1R = FLG + 8192; F0 = FLG + 10240; FU = FLG + 14336
WS_END = FLG + 20480
A0 = 256
STAMP = int(os.environ.get("STAMP", "0"))
STB = 32 << 20
POLLMAX = 1 << 15
OPT = set(os.environ.get("OPT", "").split(","))
def P(name, d): return int(os.environ.get(name, d))

class G:
    def __init__(self):
        self.a = Asm(); self.vm = []; self.lg = []; self.nst = 0; self.bgq = []; self.names = []
    def __call__(self, t): self.a(t)
    def vmem(self, text, tag=None): self.a(text); self.vm.append(tag)
    def ds(self, text, tag=None): self.a(text); self.lg.append(tag)
    def _n(self, lst, tag, cap):
        idx = max(i for i, t in enumerate(lst) if t == tag)
        return min(len(lst) - 1 - idx, cap)
    def wait(self, vm=None, lg=None):
        s = []
        if vm is not None: s.append(f"vmcnt({0 if vm == 'all' else self._n(self.vm, vm, 63)})")
        if lg is not None: s.append(f"lgkmcnt({0 if lg == 'all' else self._n(self.lg, lg, 15)})")
        self.a("s_waitcnt " + " ".join(s))
        if vm == 'all': self.vm = []
        if lg == 'all': self.lg = []
    def stamp(self, name=""):
        if STAMP != 1: return
        i = self.nst; self.nst += 1; self.names.append(name)
        assert i < 29
        self.a("s_memtime s[100:101]"); self.a("s_waitcnt lgkmcnt(0)"); self.a(f"v_writelane_b32 v7, s100, {i}")
    def run(self, x): x() if callable(x) else self.a(x)
    def bg(self, n=1):
        for _ in range(n):
            if self.bgq: self.bgq.pop(0)()
    def interleave(self, main, extra, front=()):
        n = len(main); m = len(extra); j = 0; front = list(front)
        for i, x in enumerate(main):
            self.run(x)
            if front:
                self.run(front.pop(0))
                if len(front) >= n - i and front: self.run(front.pop(0))
            while j < m and (j + 1) * n <= (i + 1) * m + (n - 1):
                self.run(extra[j]); j += 1
        for x in front: self.run(x)
        while j < m:
            self.run(extra[j]); j += 1

def MF(d, a_, b_, first): return f"v_mfma_f32_16x16x32_bf16 {R(d,4)}, {R(a_,4)}, {R(b_,4)}, {'0' if first else R(d,4)}"

def phi(a, val, t1, t2):
    a(f"v_mul_f32 {t1}, s60, {val}")
    a(f"v_max_f32 {t2}, 0, {val}")
    a(f"v_exp_f32_e64 {t1}, {t1} clamp")
    a(f"v_add_f32 {t2}, s61, {t2}")
    a(f"v_add_f32 {val}, {t1}, {t2}")

OPT |= {"sc1h", "sc1hid", "notouch", "usfirst", "ft", "rpplain", "slplain", "tlb3"}
def phi4(a, b_, T, sel_mask=None):
    for h in range(2): a(f"v_pk_mul_f32 v[{T+2*h}:{T+2*h+1}], v[{b_+2*h}:{b_+2*h+1}], s[94:95]")
    for e in range(4): a(f"v_max_f32 v{T+4+e}, 0, v{b_+e}")
    for e in range(4): a(f"v_exp_f32_e64 v{T+e}, v{T+e} clamp")
    for h in range(2): a(f"v_pk_add_f32 v[{T+4+2*h}:{T+5+2*h}], v[{T+4+2*h}:{T+5+2*h}], s[96:97]")
    if sel_mask is None:
        for h in range(2): a(f"v_pk_add_f32 v[{b_+2*h}:{b_+2*h+1}], v[{T+2*h}:{T+2*h+1}], v[{T+4+2*h}:{T+5+2*h}]")
    else:
        for h in range(2): a(f"v_pk_add_f32 v[{T+2*h}:{T+2*h+1}], v[{T+2*h}:{T+2*h+1}], v[{T+4+2*h}:{T+5+2*h}]")
        for e in range(4): a(f"v_cndmask_b32 v{b_+e}, v{b_+e}, v{T+e}, {sel_mask}")
RPNT = "" if "rpplain" in OPT else " nt"
HS = "" if "plainh" in OPT else " sc1"
HS2 = "" if "plainhid" in OPT else " sc1"
FENCE = "plainh" in OPT or "plainhid" in OPT
def gen():
    a = G()
    name = NAME
    NRAW = P("NRAW", 2)
    a.a.raw(f".globl {name}\n.p2align 8\n.type {name},@function\n{name}:")
    a("s_cmp_ge_u32 s2, 256"); a("s_cbranch_scc1 L_end")
    a("s_load_dwordx16 s[4:19], s[0:1], 0")
    a("s_load_dwordx4 s[20:23], s[0:1], 64")
    a("s_load_dwordx2 s[24:25], s[0:1], 80")
    a("s_memrealtime s[76:77]")
    a("s_getpc_b64 s[30:31]")
    a("L_pc:")
    a("v_mov_b32 v7, 0")
    a.stamp("start")
    a("v_lshrrev_b32 v2, 6, v0"); a("v_and_b32 v1, 63, v0")
    a("v_readfirstlane_b32 s28, v2")
    if "m48" in OPT:
        a("s_and_b32 s3, s2, 7"); a("s_lshr_b32 s29, s2, 3")
        a("s_lshr_b32 s26, s3, 1"); a("s_lshl_b32 s26, s26, 2"); a("s_lshr_b32 s27, s29, 3"); a("s_add_u32 s26, s26, s27")
        a("s_and_b32 s3, s3, 1"); a("s_lshl_b32 s3, s3, 2"); a("s_and_b32 s27, s29, 3"); a("s_or_b32 s27, s27, s3")
        a("s_and_b32 s29, s29, 4"); a("s_lshl_b32 s29, s29, 1"); a("s_or_b32 s27, s27, s29")
    else:
        a("s_and_b32 s3, s2, 7"); a("s_lshr_b32 s27, s2, 3"); a("s_lshr_b32 s26, s27, 4"); a("s_lshl_b32 s3, s3, 1")
        a("s_add_u32 s26, s26, s3")
        a("s_and_b32 s27, s27, 15")
    a("v_lshlrev_b32 v3, 7, v1")
    if "cp16" in OPT:
        a("s_cmp_lg_u32 s28, 3"); a("s_cbranch_scc1 L_nocp")
        a("s_mul_i32 s3, s27, 2304"); a("v_add_u32 v27, s3, v3"); a("s_bfm_b64 exec, 18, 0")
        a("global_load_dword v4, v27, s[30:31]"); a("s_mov_b64 exec, -1")
    elif "nocp" not in OPT:
        a("s_cmp_lg_u32 s28, 3"); a("s_cbranch_scc1 L_nocp")
        a("s_mul_i32 s3, s27, 13"); a("s_lshr_b32 s3, s3, 6"); a("s_mul_i32 s3, s3, 5"); a("s_sub_u32 s3, s27, s3"); a("s_lshl_b32 s3, s3, 13")
        a("v_add_u32 v27, s3, v3")
        a("global_load_dword v4, v27, s[30:31]")
    a("L_nocp:")
    BQ = 102400; SCR = 153600; CSX = 161792
    vXA = [72, 73, 74, 75]; vW = [76, 77]; vRd = [78, 79]; vTB = [17, 18, 19, 20]; vTQ = [86, 87, 88, 89]; vTQ2 = [90, 91, 21, 22]
    vSA = [80, 81, 82]; vBA = [144, 145, 146, 147, 148]; vTR = [149, 150, 151, 152]
    vT1 = 24; vSTW = 25
    ACC = 32; RAW = 160; XF = A0; BF = A0 + 160; ONES = A0 + 200; GR = A0 + 204; RSM = A0 + 212; OH = A0 + 220; CSA = A0 + 240; CSQ = A0 + 244
    t0, t1, t2, t3 = "v27", "v28", "v29", "v30"
    def early():
        a("v_and_b32 v27, 3, v1"); a("s_lshl_b32 s3, s28, 2"); a("v_add_u32 v27, s3, v27"); a("v_min_u32 v27, 14, v27")
        a("v_lshrrev_b32 v28, 2, v1"); a("v_mul_u32_u24 v28, 3840, v28"); a("v_lshl_add_u32 v28, v27, 4, v28")
        a("v_add_u32 v29, 1280, v28"); a("v_add_u32 v30, 2480, v28"); a("v_subrev_u32 v28, 160, v28")
        a("v_cmp_gt_u32 vcc, 10, v27"); a("s_mul_i32 s50, s26, 153600"); a("s_mul_i32 s51, s27, 80"); a("v_cndmask_b32 v28, v28, v30, vcc")
        a("v_cmp_gt_u32 vcc, 5, v27"); a("s_add_u32 s50, s50, s51"); a("s_mul_i32 s53, s28, 3072"); a("v_cndmask_b32 v83, v28, v29, vcc")
        a(f"s_add_u32 s53, s53, {BQ + 28672}")
        a("s_mul_i32 s3, s26, 163840"); a("s_mul_i32 s56, s27, 10240"); a("s_add_u32 s3, s3, s56"); a("s_mul_i32 s56, s28, 2560"); a("s_add_u32 s57, s3, s56")
        a("v_mov_b32 v5, 0")
    def late():
        a("v_lshlrev_b32 v8, 4, v1"); a("v_lshlrev_b32 v9, 4, v0")
        a("v_and_b32 v10, 15, v1"); a("v_lshlrev_b32 v10, 2, v10")
        a("v_lshrrev_b32 v11, 4, v1"); a("v_add_u32 v12, 4096, v8")
        a("v_lshrrev_b32 v27, 3, v1"); a("v_and_b32 v28, 7, v1"); a("v_mul_u32_u24 v29, 1280, v27")
        a("v_lshrrev_b32 v30, 1, v27"); a("v_xor_b32 v28, v28, v30")
        a(f"v_lshl_add_u32 v{vXA[0]}, v28, 4, v29")
        a(f"v_xor_b32 v{vXA[1]}, 64, v{vXA[0]}"); a(f"v_add_u32 v{vXA[1]}, 10240, v{vXA[1]}")
        a(f"v_add_u32 v{vXA[2]}, 20480, v{vXA[0]}"); a(f"v_add_u32 v{vXA[3]}, 20480, v{vXA[1]}")
        a("s_lshl_b32 s3, s28, 11"); a(f"s_add_u32 s48, s3, {SCR}")
        a("s_lshl_b32 s49, s26, 7"); a("s_lshl_b32 s3, s28, 5"); a("s_add_u32 s49, s49, s3"); a("s_mul_i32 s49, s49, 1280")
        a("s_lshr_b32 s3, s28, 1"); a("s_lshl_b32 s3, s3, 7"); a("s_add_u32 s62, s49, 128"); a("s_sub_u32 s62, s62, s3"); a("s_add_u32 s49, s49, s3")
        a("s_mul_i32 s52, s28, 5120")
        a(f"s_mul_i32 s58, s26, {G_SZ}"); a(f"s_add_u32 s58, s58, {GRP}")
        a("s_lshl_b32 s70, s28, 4"); a("s_add_u32 s70, s70, s26")
        a(f"s_mul_i32 s71, s28, 7168"); a(f"s_add_u32 s71, s71, {BQ}")
        a("v_mov_b32 v2, 0x7fffffff")
    early()
    if "slowpro" in OPT: late()
    a("s_waitcnt lgkmcnt(0)")
    srd(a, 36, 6, 2457600)
    SLNT = "" if "slplain" in OPT else " nt"
    for i in range(3):
        a(f"s_add_u32 m0, s53, {1024*i}")
        if i == 2: a("s_bfm_b64 exec, 32, 0")
        a.vmem(f"buffer_load_dwordx4 v83, s[36:39], s50 offen{SLNT} lds", "SLD")
        a(f"s_add_u32 s50, s50, {16*3840}")
    srd(a, 32, 4, 2621440); srd(a, 40, 24, WS_END)
    a("s_mov_b64 exec, 0xfffff")
    a.vmem(f"buffer_load_dword v4, v3, s[32:35], s57 offen{' nt' if 'xtnt' in OPT else ''}")
    if "tlb" in OPT:
        a("v_lshlrev_b32 v27, 20, v1"); a("s_bfm_b64 exec, 24, 0")
        a.vmem(f"buffer_load_dword v4, v27, s[40:43], 0 offen")
    if "tlb2" in OPT:
        a("s_mul_i32 s54, s27, 153600"); a(f"s_add_u32 s54, s54, {WQKV}")
        a("v_mul_u32_u24 v27, 51200, v1"); a("v_add_u32 v27, s54, v27"); a(f"v_mov_b32 v28, {F0}"); a("v_cmp_eq_u32 vcc, 3, v1"); a("v_cndmask_b32 v27, v27, v28, vcc")
        a("s_bfm_b64 exec, 4, 0")
        a.vmem(f"buffer_load_dword v4, v27, s[40:43], 0 offen")
        a.vmem("global_load_dword v4, v5, s[22:23] offset:128")
    a("s_mov_b64 exec, -1")
    if STAMP: a("v_writelane_b32 v7, s76, 29")
    a("s_and_b32 s76, s76, 0xfffffff8"); a("s_or_b32 s76, s76, 8")
    a("s_or_b32 s3, s2, s28"); a("s_cmp_lg_u32 s3, 0"); a("s_cbranch_scc1 L_notag")
    a("v_mov_b32 v28, s76"); a("global_store_dword v5, v28, s[22:23] sc1")
    a("L_notag:")
    if "ft" in OPT:
        a("s_cmp_lg_u32 s26, s27"); a("s_cbranch_scc1 L_noft"); a("s_cmp_lg_u32 s28, 1"); a("s_cbranch_scc1 L_noft")
        a("s_mul_i32 s3, s27, 1280"); a(f"s_add_u32 s3, s3, {FLG}")
        a("s_bfm_b64 exec, 10, 0"); a("buffer_load_dword v4, v3, s[40:43], s3 offen sc0 sc1"); a("s_mov_b64 exec, -1")
        a("L_noft:")
    if "tlb3" in OPT:
        a("s_cmp_lg_u32 s28, 2"); a("s_cbranch_scc1 L_not3")
        a("v_lshlrev_b32 v27, 16, v1"); a("v_lshlrev_b32 v28, 18, v1")
        for cc, (sp, n_) in enumerate([(12, 34), (16, 34), (8, 13), (20, 40)]):
            a(f"s_cmp_lg_u32 s27, {2+cc}"); a(f"s_cbranch_scc1 L_t3_{cc}")
            a(f"s_bfm_b64 exec, {n_}, 0"); a(f"global_load_dword v4, v27, s[{sp}:{sp+1}]"); a("s_mov_b64 exec, -1")
            a(f"L_t3_{cc}:")
        a("s_cmp_lg_u32 s27, 6"); a("s_cbranch_scc1 L_t3_4"); a("buffer_load_dword v4, v28, s[40:43], 0 offen"); a("L_t3_4:")
        a("s_cmp_lg_u32 s27, 7"); a("s_cbranch_scc1 L_not3"); a(f"s_mov_b32 s3, {64 << 18}"); a("buffer_load_dword v4, v28, s[40:43], s3 offen")
        a("L_not3:")
    if "tlb4" in OPT:
        a("s_cmp_lg_u32 s28, 2"); a("s_cbranch_scc1 L_not4")
        a("v_lshlrev_b32 v27, 21, v1"); a("s_bfm_b64 exec, 2, 0")
        a("global_load_dword v4, v27, s[12:13]"); a("global_load_dword v4, v27, s[16:17]"); a("s_mov_b64 exec, 1"); a("global_load_dword v4, v27, s[8:9]")
        a("s_bfm_b64 exec, 11, 0"); a("buffer_load_dword v4, v27, s[40:43], 0 offen")
        a("s_mov_b64 exec, -1")
        a("L_not4:")
    if "nobt" not in OPT:
        a("s_lshl_b32 s3, s27, 2"); a("s_add_u32 s3, s3, s28"); a("s_cmp_lg_u32 s3, 6"); a("s_cbranch_scc1 L_nobt")
        a("s_bfm_b64 exec, 27, 0"); a("global_load_dword v4, v3, s[14:15]")
        a("s_bfm_b64 exec, 10, 0"); a("global_load_dword v4, v3, s[18:19]")
        a("s_mov_b64 exec, -1")
        a("L_nobt:")
    srd(a, 44, 12, 2211840)
    if "slowpro" not in OPT: late()
    def rp_issue(nt, pitch_src, nch):
        for i in range(7):
            if i < nt:
                a(f"v_add_u32 v27, {64*i}, v1")
                divmod_const(a, "v28", "v29", "v27", nch)
                if nt == 5:
                    a("v_cmp_lt_u32 vcc, 15, v28"); a("v_add_u32 v30, s83, v28"); a("v_cndmask_b32 v28, v28, v30, vcc")
                a(f"v_mul_u32_u24 v28, {pitch_src}, v28"); a("v_lshl_add_u32 v28, v29, 4, v28")
                a(f"s_add_u32 m0, s71, {1024*i}")
                a(f"buffer_load_dwordx4 v28, s[44:47], s73 offen{RPNT} lds")
            else:
                a("buffer_load_dword v4, v2, s[44:47], 0 offen")
    def unit_issue():
        a("s_cmp_ge_u32 s70, 20"); a("s_cbranch_scc1 L_rp5")
        a("s_mov_b32 s72, 1")
        a("s_mul_i32 s75, s27, 27"); a("s_lshr_b32 s75, s75, 2"); a("s_lshl_b32 s75, s75, 5")
        a("s_mul_i32 s79, s70, 110592"); a("s_add_u32 s73, s75, s79")
        a("s_mul_i32 s75, s27, 20"); a("s_add_u32 s70, s70, s75")
        a("s_mul_i32 s74, s70, 7168"); a(f"s_add_u32 s74, s74, {W1P}")
        rp_issue(7, 3456, 14)
        a("s_branch L_rp_issued")
        a("L_rp5:")
        a("s_mov_b32 s72, 2")
        a("s_sub_u32 s79, s70, 20"); a("s_lshl_b32 s79, s79, 1"); a("s_lshr_b32 s75, s27, 3"); a("s_add_u32 s79, s79, s75"); a("s_and_b32 s75, s27, 7")
        a("s_cmp_ge_u32 s79, 54"); a("s_cbranch_scc1 L_rpwo")
        srd(a, 44, 16, 2211840)
        a("s_mul_i32 s78, s75, 54"); a("s_add_u32 s78, s78, s79")
        a("s_mul_i32 s74, s78, 5120"); a(f"s_add_u32 s74, s74, {W2P}")
        a("s_mov_b32 s83, 0")
        a("s_cmp_ge_u32 s79, 48"); a("s_cbranch_scc1 L_w2s")
        a("s_lshr_b32 s84, s79, 1"); a("s_and_b32 s85, s79, 1"); a("s_lshl_b32 s85, s85, 1")
        a("s_sub_u32 s78, s79, 32"); a("s_cmp_ge_u32 s79, 32"); a("s_cselect_b32 s84, s78, s84"); a("s_cselect_b32 s85, 4, s85")
        a("s_mul_i32 s84, s84, 27"); a("s_lshr_b32 s84, s84, 2"); a("s_add_u32 s79, s84, s85")
        a("s_branch L_rp5b")
        a("L_w2s:")
        a("s_sub_u32 s84, s79, 48"); a("s_lshl_b32 s84, s84, 1"); a("s_add_u32 s85, s84, 1")
        for r_ in ("s84", "s85"):
            a(f"s_mul_i32 s78, {r_}, 11"); a("s_lshr_b32 s78, s78, 5"); a(f"s_add_u32 {r_}, {r_}, s78"); a(f"s_add_u32 {r_}, {r_}, 1")
            a(f"s_mul_i32 {r_}, {r_}, 27"); a(f"s_lshr_b32 {r_}, {r_}, 2")
        a("s_add_u32 s79, s84, 6"); a("s_sub_u32 s83, s85, s84"); a("s_sub_u32 s83, s83, 1"); a("s_lshl_b32 s83, s83, 4")
        a("s_branch L_rp5b")
        a("L_rpwo:")
        srd(a, 44, 8, 819200)
        a("s_sub_u32 s79, s79, 54")
        a("s_mul_i32 s78, s75, 20"); a("s_add_u32 s78, s78, s79")
        a("s_mul_i32 s74, s78, 5120"); a(f"s_add_u32 s74, s74, {WOP}")
        a("s_cmp_ge_u32 s79, 20"); a("s_cselect_b32 s74, 0x40000000, s74")
        a("s_lshl_b32 s79, s79, 1"); a("s_mov_b32 s83, 0")
        a("L_rp5b:")
        a("s_mul_i32 s75, s75, 160"); a("s_mul_i32 s79, s79, 20480"); a("s_add_u32 s73, s75, s79")
        rp_issue(5, 1280, 10)
        a("L_rp_issued:")
        a.vm += ["UL"]*7
    def raw(cx, rg): return 96 + (((cx + 1) % 10)*4 + rg)*4
    def xf(tt, k): return XF + (tt*20 + k)*4
    def ldx(cx):
        def one(rg):
            off = 256*(cx >> 1)
            a(f"s_add_u32 m0, s52, {(cx % 5)*20480 + rg*1024 + 1024 - off}")
            a.vmem(f"buffer_load_dwordx4 v{vXA[rg]}, s[32:35], s{62 if cx & 1 else 49} offen offset:{off} lds", f"X{cx}")
        return [lambda rg=rg: one(rg) for rg in range(4)]
    a("v_and_b32 v27, 15, v1")
    a("v_cmp_gt_u32 s[66:67], 8, v27")
    a("v_cmp_gt_u32 s[90:91], 32, v1"); a("v_cmp_gt_u32 s[92:93], 48, v1")
    a("v_cmp_eq_u32 s[88:89], 1, v11")
    a("v_and_b32 v29, 1, v11")
    a("s_lshl_b32 s3, s28, 1"); a("v_add_u32 v29, s3, v29")
    a("v_cmp_gt_u32 s[94:95], 5, v29"); a("v_cmp_eq_u32 s[96:97], 7, v29")
    a("v_lshlrev_b32 v29, 10, v29"); a(f"v_add_u32 v30, {BQ - 5120}, v29"); a("v_cndmask_b32 v29, v30, v29, s[94:95]")
    a("v_lshl_add_u32 v29, v10, 2, v29")
    a("v_mov_b32 v30, 2560"); a("v_mov_b32 v31, 5120"); a("v_cndmask_b32 v30, v30, v31, s[94:95]")
    a("v_mov_b32 v31, 8"); a("v_cndmask_b32 v31, v31, 7, s[96:97]")
    a("s_andn2_b64 s[96:97], s[96:97], s[66:67]")
    a("s_mul_i32 s3, s26, 5")
    a("v_lshrrev_b32 v28, 1, v11"); a("v_add_u32 v28, s3, v28")
    for n in range(3):
        a(f"v_lshrrev_b32 v27, 2, v28"); a(f"v_mad_u32_u24 v{vSA[n]}, v27, v30, v29")
        a("v_and_b32 v27, 3, v28"); a("v_lshlrev_b32 v27, v31, v27"); a(f"v_add_u32 v{vSA[n]}, v{vSA[n]}, v27")
        a(f"v_cndmask_b32 v{vSA[n]}, v{vSA[n]}, v2, s[96:97]")
        if n == 2: a(f"v_cndmask_b32 v{vSA[n]}, v2, v{vSA[n]}, s[90:91]")
        else: a("v_add_u32 v28, 2, v28")
    a("v_lshrrev_b32 v27, 5, v1"); a("v_bfe_u32 v28, v1, 2, 2"); a("v_lshl_add_u32 v27, v27, 3, v28"); a("v_lshlrev_b32 v27, 6, v27")
    a("v_bfe_u32 v28, v1, 4, 1"); a("v_lshl_add_u32 v27, v28, 5, v27"); a("v_and_b32 v28, 3, v1"); a("v_lshl_add_u32 v27, v28, 3, v27")
    a("v_add_u32 v84, s53, v27")
    a("s_mul_i32 s54, s27, 153600"); a(f"s_add_u32 s54, s54, {WQKV}")
    if P("UPOS", -1) == -1: unit_issue()
    a.wait(vm="SLD")
    a.stamp("sld")
    for n in range(3):
        for h in range(2): a(f"ds_read_b64_tr_b16 {R(96 + 4*n + 2*h, 2)}, v84 offset:{1024*n + 256*h}")
    a("s_waitcnt lgkmcnt(0)")
    for n in range(3): a.vmem(f"buffer_store_dwordx4 {R(96 + 4*n, 4)}, v{vSA[n]}, s[40:43], s54 offen sc1", "SL")
    a.vmem("global_load_dword v6, v5, s[22:23] sc1", "TAG")
    if P("UPOS", -1) == -2: unit_issue()
    NX0 = P("NX0", 3)
    for cx in range(NX0):
        for f in ldx(cx): f()
    a("v_and_b32 v27, 15, v1")
    a("v_lshrrev_b32 v29, 1, v27"); a("v_xor_b32 v29, v29, v11"); a("v_lshlrev_b32 v29, 4, v29"); a("v_lshl_add_u32 v29, v27, 7, v29")
    a("s_and_b32 s3, s28, 1"); a("s_lshl_b32 s3, s3, 6"); a("v_xor_b32 v29, s3, v29")
    a(f"v_add_u32 v{vRd[0]}, s52, v29"); a("v_xor_b32 v29, 64, v29"); a(f"v_add_u32 v{vRd[1]}, s52, v29")
    a(f"v_add_u32 v{vW[0]}, 61440, v{vRd[0]}"); a(f"v_add_u32 v{vW[1]}, 61440, v{vRd[1]}")
    a("v_lshrrev_b32 v29, 2, v27"); a("v_cmp_eq_u32 vcc, v29, v11")
    a("v_lshlrev_b32 v30, 2, v1"); a("v_add_u32 v30, 512, v30")
    a("v_cndmask_b32 v29, v30, v10, vcc"); a(f"v_add_u32 v{vSTW}, s48, v29")
    a("v_and_b32 v29, 1, v1"); a("v_cmp_eq_u32 s[68:69], 1, v29")
    a("v_and_b32 v29, 2, v1"); a("v_cmp_eq_u32 s[86:87], 2, v29")
    a("v_mov_b32 v28, 0x3f803f80")
    for i in range(4): a(f"v_accvgpr_write_b32 {R(ONES+i)}, v28")
    for t in range(5):
        a(f"v_cmp_eq_u32 vcc, {t}, v27"); a("v_cndmask_b32 v29, 0, v28, vcc")
        for e in range(4): a(f"v_accvgpr_write_b32 {R(OH+4*t+e)}, v29")
    a("v_and_b32 v27, 7, v1"); a("v_lshlrev_b32 v27, 4, v27"); a("v_lshl_add_u32 v27, v11, 7, v27")
    for p in range(4):
        a(f"s_xor_b32 s3, s28, {p}"); a("s_mul_i32 s56, s3, 5120"); a(f"v_add_u32 v{vTB[p]}, s56, v8")
        a("s_mul_i32 s56, s3, 2560"); a(f"s_add_u32 s56, s56, {BQ}"); a(f"v_add_u32 v{vTQ[p]}, s56, v8"); a("s_add_u32 s56, s56, 2048"); a(f"v_add_u32 v{vTQ2[p]}, s56, v27")
    a(f"s_mov_b32 s60, {hx(LOG2E)}"); a(f"s_mov_b32 s61, {hx(1e-6)}")
    a(f"s_mov_b32 s63, {hx(1.0/640)}"); a(f"s_mov_b32 s64, {hx(1e-5)}")
    a("s_lshl_b32 s55, s27, 8"); a(f"s_add_u32 s55, s55, {F0}")
    a("v_lshlrev_b32 v26, 2, v1")
    a("s_lshl_b32 s3, s26, 4"); a("s_lshl_b32 s56, s28, 2"); a("s_add_u32 s3, s3, s56"); a("s_add_u32 s3, s3, s55")
    a.wait(vm="TAG")
    a("v_readfirstlane_b32 s76, v6"); a("s_mov_b32 s78, 0")
    a("L_tp1:")
    a("s_cmp_lg_u32 s76, 0"); a("s_cbranch_scc1 L_tp1_ok")
    a("global_load_dword v6, v5, s[22:23] sc1"); a("s_add_u32 s78, s78, 1"); a("s_waitcnt vmcnt(0)")
    a("v_readfirstlane_b32 s76, v6")
    a(f"s_cmp_lt_u32 s78, {POLLMAX}"); a("s_cbranch_scc1 L_tp1")
    a("L_tp1_ok:")
    a("s_getreg_b32 s77, hwreg(HW_REG_XCC_ID)"); a("s_and_b32 s77, s77, 7"); a("s_or_b32 s77, s77, s76")
    a("s_lshl_b32 s57, s26, 7"); a("s_lshl_b32 s56, s27, 2"); a("s_add_u32 s57, s57, s56"); a(f"s_add_u32 s57, s57, {F1R}")
    a("s_cmp_eq_u32 s28, 0"); a("s_cselect_b32 s57, s57, 0x40000000"); a("v_mov_b32 v27, s77")
    a("s_mov_b64 exec, 1"); a.vmem("buffer_store_dword v6, v5, s[40:43], s3 offen sc1"); a.vmem("buffer_store_dword v27, v5, s[40:43], s57 offen sc1"); a("s_mov_b64 exec, -1")
    a.stamp("F0pub")
    def rp_fin(nt, RG):
        pitch = nt*32
        a("v_bfe_u32 v28, v1, 2, 2"); a("v_lshl_add_u32 v27, v11, 3, v28"); a("v_and_b32 v28, 3, v1")
        a(f"v_mul_u32_u24 v29, {pitch}, v27"); a("v_add_u32 v29, s71, v29")
        a("v_lshl_add_u32 v30, v28, 3, v29"); a("v_lshl_add_u32 v29, v28, 4, v29")
        for t in range(nt):
            for h in range(2):
                if t == nt - 1: a(f"ds_read_b64_tr_b16 {R(RG + 4*t + 2*h, 2)}, v30 offset:{h*4*pitch + 32*t}")
                else: a(f"ds_read_b64_tr_b16 {R(RG + 4*t + 2*h, 2)}, v29 offset:{h*4*pitch + 64*(t>>1) + 8*(t&1)}")
        if nt == 7:
            a("v_mov_b32 v28, 0x3f803f80")
            for t in (5, 6):
                a(f"v_cmp_eq_u32 vcc, {4*t}, v10")
                for e in range(4): a(f"v_cndmask_b32 v{RG+28+4*(t-5)+e}, 0, v28, vcc")
        a("s_waitcnt lgkmcnt(0)")
        if nt == 7:
            for t in range(7): a(MF(RG+36, RG + 4*t, OH + 4*t if t < 5 else RG+28+4*(t-5), t == 0))
    def rp_store(nt, RG):
        for t in range(nt):
            a(f"buffer_store_dwordx4 {R(RG + 4*t, 4)}, v{8 if t < 4 else 12}, s[40:43], s74 offen offset:{1024*(t&3)} sc1")
        if nt == 7:
            a("v_lshlrev_b32 v29, 4, v11"); a("v_lshl_add_u32 v29, v10, 4, v29"); a("v_cndmask_b32 v29, v2, v29, s[66:67]")
            a("s_lshl_b32 s3, s70, 9"); a(f"s_add_u32 s3, s3, {C1P}")
            a(f"buffer_store_dwordx4 {R(RG+36, 4)}, v29, s[40:43], s3 offen sc1")
        else:
            for _ in range(3): a("buffer_store_dword v5, v2, s[40:43], 0 offen")
    def acc(tt, t): return ACC + (tt*5 + t)*4
    def transp(cx):
        L = []
        j = cx % 5; b = vRd if j < 3 else vW; o = (j % 3)*20480 + 1024
        for tt in range(2):
            L.append(lambda tt=tt: a.ds(f"ds_read_b128 {R(xf(tt, 2*cx), 4)}, v{b[0]} offset:{o + 2048*tt}"))
            L.append(lambda tt=tt: a.ds(f"ds_read_b128 {R(xf(tt, 2*cx+1), 4)}, v{b[1]} offset:{o + 2048*tt}", f"T{cx}"))
        return L
    def statm(k):
        L = []
        for tt in range(2):
            L.append(MF(GR + 4*tt, xf(tt, k), xf(tt, k), k == 0)); L.append(MF(RSM + 4*tt, ONES, xf(tt, k), k == 0))
        return L
    def breads1(s):
        j, p = divmod(s, 4); L = []
        for t in range(5):
            L.append(lambda t=t: a.ds(f"ds_read_b128 {R(BF + (s&1)*20 + t*4, 4)}, v{vTB[p]} offset:{(j % 3)*20480 + t*1024}", f"R{s}"))
        if j == 2: L.append(f"v_add_u32 v{vTB[p]}, 61440, v{vTB[p]}")
        return L
    def ldb(j):
        def one(i):
            if i == 0: a(f"s_add_u32 m0, s52, {j*20480}"); a("s_add_u32 s57, s54, m0")
            if i == 4: a(f"s_add_u32 m0, s52, {j*20480 + 4096}")
            a.vmem(f"buffer_load_dwordx4 v{8 if i < 4 else 12}, s[40:43], s57 offen offset:{1024*(i&3)} sc1 lds", f"B{j}")
        return [lambda i=i: one(i) for i in range(5)]
    def ldq():
        def one(i):
            if i == 11: a("s_cmp_eq_u32 s28, 3"); a("s_cbranch_scc1 L_noq")
            a(f"s_mul_i32 s98, s28, 13312"); a(f"s_add_u32 m0, s98, {BQ + i*1024}"); a("s_add_u32 s98, s54, m0")
            a.a(f"buffer_load_dwordx4 v8, s[40:43], s98 offen sc1 lds")
            if i < 11: a.vm.append("BQ")
            if i == 12: a("L_noq:")
        return [lambda i=i: one(i) for i in range(11)] + [lambda: (one(11), one(12))]
    def ldt1():
        a("v_lshlrev_b32 v27, 1, v0"); a("s_add_u32 s56, s30, T1_tab-L_pc"); a("s_addc_u32 s57, s31, 0")
        a.vmem(f"global_load_ushort v{vT1}, v27, s[56:57]", "T1")
    def kv_mf(s):
        mf = []
        for t in range(5):
            b = BF + (s&1)*20 + t*4
            for tt in range(2): mf.append(MF(acc(tt, t), xf(tt, s), b, s == 0))
            if s % 4 == 0: mf.append(MF(CSA, OH + 4*t, b, s == 0 and t == 0))
        return mf
    RS = 96; MS = 104; RT = 112; MT = 114; CSV = 116
    URG = 116
    def flagtouch():
        a(f"s_add_u32 s3, s58, {G_FL}"); a("s_bfm_b64 exec, 8, 0"); a.vmem("buffer_load_dword v4, v3, s[40:43], s3 offen"); a("s_mov_b64 exec, -1")
    for cx in range(NX0, 5):
        for f in ldx(cx): f()
    UPOS = P("UPOS", -1)
    if UPOS == 0:
        for f in (ldt1, flagtouch, unit_issue): f()
    if UPOS < 0:
        for f in (ldt1, flagtouch): f()
    a.wait(vm="UL")
    a("s_cmp_eq_u32 s72, 2"); a("s_cbranch_scc1 L_rp_f5")
    rp_fin(7, URG); a("s_branch L_rp_done")
    a("L_rp_f5:"); rp_fin(5, URG)
    a("L_rp_done:")
    a("s_nop 7")
    a("s_lshl_b32 s73, s70, 9"); a(f"s_add_u32 s73, s73, {C1P}")
    a("s_cmp_eq_u32 s72, 2"); a("s_cselect_b32 s75, 0x40000000, s74"); a("s_cselect_b32 s73, 0x40000000, s73")
    a("v_lshlrev_b32 v85, 4, v11"); a("v_lshl_add_u32 v85, v10, 4, v85"); a("v_cndmask_b32 v85, v2, v85, s[66:67]")
    def ust(t):
        if t < 7: a.vmem(f"buffer_store_dwordx4 {R(URG + 4*t, 4)}, v{8 if t < 4 else 12}, s[40:43], s{74 if t < 5 else 75} offen offset:{1024*(t&3)} sc1", "US")
        else: a.vmem(f"buffer_store_dwordx4 {R(URG+36, 4)}, v85, s[40:43], s73 offen sc1", "US")
    a("s_and_b32 s59, s27, 7"); a("s_lshl_b32 s59, s59, 9"); a(f"s_add_u32 s59, s59, {FU}")
    a("s_lshr_b32 s3, s27, 3"); a("s_lshl_b32 s3, s3, 4"); a("s_add_u32 s3, s3, s26"); a("s_lshl_b32 s3, s3, 2"); a("s_add_u32 s3, s3, s28"); a("s_lshl_b32 s3, s3, 2"); a("s_add_u32 s70, s3, s59")
    US0 = P("US0", 6)
    uq = [lambda i=i: ust(i) for i in range(8)]
    for cx in range(10):
        a.wait(vm=f"X{cx}")
        for f in transp(cx): f()
        if cx:
            a.wait(lg=f"T{cx-1}")
            side = ldx(cx + 4) if cx + 4 < 10 else []
            if cx >= US0:
                q = (len(uq) + 9 - cx)//(10 - cx); side = side + uq[:q]; uq = uq[q:]
            a.interleave(statm(2*(cx-1)) + statm(2*(cx-1)+1), side)
    a.wait(lg="T9")
    a.stamp("xdone")
    a("s_mov_b32 s78, 0")
    a("L_h0p:")
    a("buffer_load_dword v16, v26, s[40:43], s55 offen sc1"); a("s_waitcnt vmcnt(0)")
    a("v_cmp_ne_u32 vcc, s76, v16")
    a("s_cbranch_vccz L_h0ok")
    a("s_add_u32 s78, s78, 1"); a(f"s_cmp_lt_u32 s78, {POLLMAX}"); a("s_cbranch_scc1 L_h0p")
    a("L_h0ok:")
    a.vm = []
    a.stamp("F0ok")
    for f in ldb(0): f()
    a("s_mov_b64 exec, 1"); a.vmem("buffer_store_dword v6, v5, s[40:43], s70 offen sc1"); a("s_mov_b64 exec, -1")
    for f in ldb(1): f()
    a.wait(lg="all")
    for x in statm(18) + statm(19): a(x)
    for tt in range(2):
        for e in range(4): a(f"v_accvgpr_read_b32 v{160+e}, {R(GR + 4*tt + e)}")
        a(f"v_accvgpr_read_b32 v164, {R(RSM + 4*tt)}")
        for x in ["v_cndmask_b32 v160, v160, v161, s[68:69]", "v_cndmask_b32 v162, v162, v163, s[68:69]", "v_mul_f32 v164, s63, v164",
                  "v_cndmask_b32 v160, v160, v162, s[86:87]", "v_mul_f32 v160, s63, v160", "v_fma_f32 v160, -v164, v164, v160",
                  "v_max_f32 v160, 0, v160", "v_add_f32 v160, s64, v160", "v_rsq_f32 v160, v160", "v_mul_f32 v164, v164, v160"]: a(x)
        a.ds(f"ds_write_b32 v{vSTW}, v160 offset:{64*tt}"); a.ds(f"ds_write_b32 v{vSTW}, v164 offset:{128 + 64*tt}")
    a("v_lshlrev_b32 v28, 4, v11"); a("v_add_u32 v28, s48, v28"); a("v_add_u32 v29, s48, v10")
    for tt in range(2):
        a.ds(f"ds_read_b128 {R(RS + 4*tt, 4)}, v28 offset:{64*tt}"); a.ds(f"ds_read_b128 {R(MS + 4*tt, 4)}, v28 offset:{128 + 64*tt}")
        a.ds(f"ds_read_b32 v{RT + tt}, v29 offset:{64*tt}"); a.ds(f"ds_read_b32 v{MT + tt}, v29 offset:{128 + 64*tt}")
    NBE = P("NBE", 3)
    for j in range(2, NBE):
        for f in ldb(j): f()
    a.wait(vm="B0")
    a("s_barrier")
    a.stamp("bP")
    a("s_mov_b32 s94, s60"); a("s_mov_b32 s95, s60"); a("s_mov_b32 s96, s61"); a("s_mov_b32 s97, s61")
    for f in breads1(0): a.run(f)
    def pretouch():
        if "sc1h" in OPT:
            a(f"s_add_u32 s3, s58, {G_FL}"); a("s_bfm_b64 exec, 4, 0"); a.vmem("buffer_load_dword v4, v3, s[40:43], s3 offen"); a("s_mov_b64 exec, -1")
            return
        a("s_mul_i32 s3, s27, 21056"); a("s_add_u32 s3, s3, s58"); a("s_mul_i32 s56, s28, 5376"); a("s_add_u32 s3, s3, s56")
        a("s_bfm_b64 exec, 42, 0"); a.vmem("buffer_load_dword v4, v3, s[40:43], s3 offen"); a("s_mov_b64 exec, -1")
    FB3 = 156
    a("s_and_b32 s3, s27, 7"); a("s_mul_i32 s3, s3, 20"); a("s_add_u32 s3, s3, s28"); a("s_mul_i32 s65, s3, 5120"); a(f"s_add_u32 s65, s65, {WOP}")
    def ldwo(n, t):
        a.vmem(f"buffer_load_dwordx4 {R(FB3 + (n*5+t)*4, 4)}, v{8 if t < 4 else 12}, s[40:43], s65 offen offset:{1024*(t&3)} sc1", "WO")
        if t == 4: a("s_add_u32 s65, s65, 20480")
    def ldfu():
        a("v_lshlrev_b32 v31, 3, v1")
        a.vmem("buffer_load_dwordx2 v[92:93], v31, s[40:43], s59 offen sc1", "FU")
    def chkfu():
        a.wait(vm="FU")
        a("s_mov_b32 s78, 0")
        a("L_fu:")
        a("v_cmp_ne_u32 vcc, s76, v92"); a("v_cmp_ne_u32 s[84:85], s76, v93")
        a("s_or_b64 vcc, vcc, s[84:85]"); a("s_cbranch_scc0 L_fu_ok")
        a("s_add_u32 s78, s78, 1"); a(f"s_cmp_ge_u32 s78, {POLLMAX}"); a("s_cbranch_scc1 L_fu_ok")
        a("buffer_load_dwordx2 v[92:93], v31, s[40:43], s59 offen sc1"); a("s_waitcnt vmcnt(0)")
        a("s_branch L_fu")
        a("L_fu_ok:")
    q_ = ldq(); mix = []
    if "usfirst" in OPT:
        mix = list(q_)
    else:
        for i in range(12):
            mix.append(q_[i])
            if i < 8: mix.append(lambda i=i: ust(i))
    ldlist = sum([ldb(j) for j in range(NBE, 5)], [])
    MS0 = P("MS0", 4); MR = P("MR", 1)
    a.bgq = mix
    SFU = 99; SFC = P("SFC", 16)
    LEND = P("LEND", 16)
    CT = 116
    for s in range(20):
        j, p = divmod(s, 4)
        if p == 3 and j < 4:
            a.wait(vm=f"B{j+1}"); a("s_barrier")
        if s == SFC - 4: ldfu()
        if s == SFC: chkfu(); a.bgq += [lambda n=n, t=t: ldwo(n, t) for n in range(5) for t in range(5)]
        if s == SFU:
            a.wait(vm="US")
            a("s_mov_b64 exec, 1"); a.vmem("buffer_store_dword v6, v5, s[40:43], s70 offen sc1"); a("s_mov_b64 exec, -1")
        if s == 18:
            a.wait(lg="CSW"); a("s_barrier")
        a.wait(lg=f"R{s}")
        mf = kv_mf(s)
        front = breads1(s+1) if s < 19 else []
        side = []
        if s == 17:
            side += ["s_lshl_b32 s3, s28, 9", f"s_add_u32 s3, s3, {CSX}", "v_add_u32 v27, s3, v8"]
            side.append(lambda: (a("s_bfm_b64 exec, 32, 0"), a.ds(f"ds_write_b128 v27, {R(CSA, 4)}", "CSW"), a("s_mov_b64 exec, -1")))
        if s == 18:
            side += ["v_lshlrev_b32 v27, 2, v10", f"v_add_u32 v27, {CSX}, v27"]
            for w in range(4):
                side.append(lambda w=w: a.ds(f"ds_read_b128 {R(CT + 4*w, 4)}, v27 offset:{512*w}"))
                side.append(lambda w=w: a.ds(f"ds_read_b32 v{CT + 16 + w}, v27 offset:{512*w + 256}", "CSR"))
        if s == 19:
            side.append(lambda: a.wait(lg="CSR"))
            for e in range(4):
                side += [f"v_add_f32 v{CT+e}, v{CT+e}, v{CT+4+e}", f"v_add_f32 v{CT+8+e}, v{CT+8+e}, v{CT+12+e}", f"v_add_f32 v{CT+20+e}, v{CT+e}, v{CT+8+e}"]
            side += [f"v_add_f32 v{CT+16}, v{CT+16}, v{CT+17}", f"v_add_f32 v{CT+18}, v{CT+18}, v{CT+19}", f"v_add_f32 v{CT+24}, v{CT+16}, v{CT+18}"]
        side += ldlist[:3]; ldlist = ldlist[3:]
        if s >= MS0: side = [lambda: a.bg(1)]*MR + side
        a.interleave(mf, side, front)
    CSV = CT + 20
    a.stamp("kvend")
    if "plainh" in OPT:
        a("s_mul_i32 s3, s27, 21056"); a("s_add_u32 s3, s3, s58"); a("s_mul_i32 s56, s28, 5376"); a("s_add_u32 s3, s3, s56")
        a("s_bfm_b64 exec, 42, 0"); a.vmem("buffer_load_dword v4, v3, s[40:43], s3 offen"); a("s_mov_b64 exec, -1")
    OP = 116; TP = 72
    FUC = P("FUC", 14)
    if FUC < 4: ldfu()
    KBG = P("KBG", 1)
    for t in range(5):
        for tt in range(2):
            b_ = acc(tt, t)
            cp = CSV + t; cpe = cp & ~1; sel = cp & 1
            for h in range(2):
                x = b_ + 2*h
                a(f"v_pk_mul_f32 v[{TP+2*h}:{TP+2*h+1}], v[{MS+4*tt+2*h}:{MS+4*tt+2*h+1}], v[{cpe}:{cpe+1}] op_sel:[0,{sel}] op_sel_hi:[1,{sel}]")
            for h in range(2):
                x = b_ + 2*h
                a(f"v_pk_fma_f32 v[{x}:{x+1}], v[{x}:{x+1}], v[{RS+4*tt+2*h}:{RS+4*tt+2*h+1}], v[{TP+2*h}:{TP+2*h+1}] neg_lo:[0,0,1] neg_hi:[0,0,1]")
            if t <= 2: phi4(a, b_, TP, sel_mask=("s[66:67]" if t == 2 else None))
            for h in range(2):
                a(f"v_cvt_pk_bf16_f32 v{OP + 4*t + 2*tt + h}, v{acc(tt, t) + 2*h}, v{acc(tt, t) + 2*h + 1}")
            if t*2 + tt == SFU - 20:
                a.wait(vm="US")
                a("s_mov_b64 exec, 1"); a.vmem("buffer_store_dword v6, v5, s[40:43], s70 offen sc1"); a("s_mov_b64 exec, -1")
            if t*2 + tt == FUC - 4: ldfu()
            if t*2 + tt == FUC: chkfu(); a.bgq += [lambda n=n, t=t: ldwo(n, t) for n in range(5) for t in range(5)]
            a.bg(KBG)
    while "BQdone" not in a.vm and a.vm.count("BQ") < 11 or (a.bgq and a.bgq[0] is q_[11]): a.bg(1)
    KVD = 32
    for p, (ta, tb) in enumerate(PAIRS):
        a(MF(KVD + 4*p, OP + 4*ta, ONES if tb < 0 else OP + 4*tb, True))
    a("s_mul_i32 s3, s28, 10240"); a("v_add_u32 v27, s3, v8")
    for p in range(10): a(f"ds_write_b128 v27, {R(KVD + 4*p, 4)} offset:{1024*p}")
    a("s_lshl_b32 s3, s27, 4"); a("s_add_u32 s3, s3, s26"); a("s_lshl_b32 s3, s3, 12"); a(f"s_add_u32 s3, s3, {PART}")
    a("v_cmp_gt_u32 vcc, 216, v0"); a("v_cndmask_b32 v9, v2, v9, vcc")
    a.wait(lg="all")
    a("s_barrier")
    for w in range(4): a(f"ds_read_b128 {R(56 + 4*w, 4)}, v{vT1} offset:{10240*w}")
    a("s_waitcnt lgkmcnt(0)")
    for e in (0, 2):
        a(f"v_pk_add_f32 v[{56+e}:{57+e}], v[{56+e}:{57+e}], v[{60+e}:{61+e}]"); a(f"v_pk_add_f32 v[{64+e}:{65+e}], v[{64+e}:{65+e}], v[{68+e}:{69+e}]")
    for e in (0, 2): a(f"v_pk_add_f32 v[{56+e}:{57+e}], v[{56+e}:{57+e}], v[{64+e}:{65+e}]")
    if "p16" in OPT:
        a("v_cvt_pk_bf16_f32 v56, v56, v57"); a("v_cvt_pk_bf16_f32 v57, v58, v59"); a("v_lshrrev_b32 v9, 1, v9")
        a.vmem(f"buffer_store_dwordx2 v[56:57], v9, s[40:43], s3 offen sc1", "PST")
    else:
        a.vmem(f"buffer_store_dwordx4 v[56:59], v9, s[40:43], s3 offen sc1", "PST")
    a.bg(P("KBG2", 4))
    a("s_lshr_b32 s48, s27, 3"); a("s_and_b32 s49, s27, 7")
    a("v_lshrrev_b32 v13, 1, v11"); a("v_lshlrev_b32 v13, 8, v13"); a("v_lshl_add_u32 v13, v10, 2, v13")
    a("v_and_b32 v28, 1, v11"); a("v_lshl_add_u32 v13, v28, 3, v13")
    a("v_mul_u32_u24 v14, 320, v10"); a("v_lshl_add_u32 v15, v11, 3, v14"); a("v_lshl_add_u32 v14, v11, 4, v14")
    a("s_lshl_b32 s50, s48, 2"); a("s_add_u32 s50, s50, s28")
    a("s_lshl_b32 s3, s26, 3"); a("s_add_u32 s3, s3, s50"); a("s_mul_i32 s51, s3, 20480"); a("s_mul_i32 s3, s49, 160"); a("s_add_u32 s51, s51, s3")
    a("s_mul_i32 s53, s27, 27"); a("s_lshr_b32 s53, s53, 2")
    a("s_mul_i32 s55, s27, 143360"); a(f"s_add_u32 s55, s55, {W1P}")
    srd(a, 36, 14, 3456)
    a("v_lshlrev_b32 v23, 4, v11"); a("v_lshl_add_u32 v26, v10, 4, v23")
    a("s_lshl_b32 s62, s27, 2"); a("s_add_u32 s62, s62, s28"); a("s_lshl_b32 s62, s62, 7")
    a("s_lshl_b32 s56, s26, 7"); a("s_add_u32 s56, s56, 8192")
    a("v_mov_b32 v27, s62"); a("v_mov_b32 v28, s56"); a("v_cndmask_b32 v17, v27, v28, s[88:89]"); a("v_add_u32 v17, v17, v10")
    a("s_lshl_b32 s3, s26, 2"); a("s_add_u32 s3, s3, s62"); a(f"s_add_u32 s3, s3, {F1}")
    a.wait(vm="PST")
    a("s_mov_b64 exec, 1"); a.vmem("buffer_store_dword v6, v5, s[40:43], s3 offen sc1"); a("s_mov_b64 exec, -1")
    a("s_barrier")
    a.stamp("b7")
    FB3 = 156; RES = 116; C1R = 126; T2R = 146
    B1A = A0 + 204
    W1T = A0 + 100
    def w1dma(i):
        a(f"s_mul_i32 s98, s28, {24*1024}"); a(f"s_add_u32 m0, s98, {i*1024}"); a("s_add_u32 s98, s55, m0")
        a.vmem(f"buffer_load_dwordx4 v8, s[40:43], s98 offen sc1 lds", "W1")
    def w1tail(i):
        a(f"s_mul_i32 s98, s28, {11*1024}"); a(f"s_add_u32 s98, s98, {(96+i)*1024}"); a("s_add_u32 s98, s55, s98")
        a.vmem(f"buffer_load_dwordx4 {R(W1T + 4*i, 4)}, v8, s[40:43], s98 offen sc1", "W1")
    def ldsmall():
        a("v_lshlrev_b32 v31, 5, v1"); a("s_add_u32 s98, s30, T2_tab-L_pc"); a("s_addc_u32 s99, s31, 0")
        a.vmem(f"global_load_dwordx4 {R(T2R, 4)}, v31, s[98:99]"); a.vmem(f"global_load_dwordx2 {R(T2R+4, 2)}, v31, s[98:99] offset:16")
    def ldres(q):
        if q == 0: a.vmem(f"buffer_load_dwordx4 {R(RES, 4)}, v14, s[32:35], s51 offen")
        if q == 1: a.vmem(f"buffer_load_dwordx4 {R(RES+4, 4)}, v14, s[32:35], s51 offen offset:64")
        if q == 2: a.vmem(f"buffer_load_dwordx2 {R(RES+8, 2)}, v15, s[32:35], s51 offen offset:128", "RES")
    def ldb1():
        a("v_lshlrev_b32 v31, 3, v11"); a("s_lshl_b32 s98, s53, 5")
        for p in range(3): a.vmem(f"buffer_load_dwordx4 {R(B1A + 4*p, 4)}, v23, s[36:39], s98 offen offset:{64*p}")
        a.vmem(f"buffer_load_dwordx2 {R(B1A + 12, 2)}, v31, s[36:39], s98 offen offset:192")
    def ldc1():
        a("s_mul_i32 s98, s27, 20"); a("s_mul_i32 s99, s28, 5"); a("s_add_u32 s98, s98, s99"); a("s_lshl_b32 s98, s98, 9"); a(f"s_add_u32 s98, s98, {C1P}")
        a("s_mov_b64 exec, s[66:67]")
        for n in range(5): a.vmem(f"buffer_load_dwordx4 {R(C1R + 4*n, 4)}, v26, s[40:43], s98 offen offset:{512*n} sc1", "C1")
        a("s_mov_b64 exec, -1")
    def hidtouch():
        a("s_mul_i32 s98, s27, 27648"); a("s_add_u32 s98, s98, s58"); a(f"s_add_u32 s98, s98, {G_HID}"); a("s_mul_i32 s99, s28, 6912"); a("s_add_u32 s98, s98, s99")
        a("s_bfm_b64 exec, 54, 0"); a.vmem("buffer_load_dword v4, v3, s[40:43], s98 offen"); a("s_mov_b64 exec, -1")
    ldsmall()
    a.bgq += [lambda q=q: ldres(q) for q in range(3)] + [ldb1, ldc1] + [lambda i=i: w1dma(i) for i in range(24)]
    QA = 32
    def qreads(s):
        j, p = divmod(s, 4)
        return [lambda t=t: a.ds(f"ds_read_b128 {R(BF + (s%3)*12 + t*4, 4)}, v{vTQ[p] if t < 2 else vTQ2[p]} offset:{j*10240 + (t&1)*1024}", f"Q{s}") for t in range(3)]
    for f in qreads(0) + qreads(1): f()
    a(f"s_mov_b32 s56, {F1}")
    QSTOP = P("QSTOP", 16)
    for s in range(20):
        j, p = divmod(s, 4)
        if s == 18: a.wait(lg="CQW"); a("s_barrier")
        a.wait(lg=f"Q{s}")
        mf = []
        for t in range(3):
            b = BF + (s%3)*12 + t*4
            for tt in range(2): mf.append(MF(QA + (tt*3+t)*4, b, xf(tt, s), s == 0))
            if p == 0: mf.append(MF(CSQ, b, OH + 4*t, s == 0 and t == 0))
        front = qreads(s+2) if s < 18 else []
        side = []
        if s < QSTOP: side += [lambda: a.bg(1)]*P("QBG", 1)
        if s == 17:
            side.append(lambda: a.vmem("buffer_load_dword v16, v17, s[40:43], s56 offen sc1", "POLL1"))
            side += ["s_lshl_b32 s3, s28, 9", f"s_add_u32 s3, s3, {CSX}", "v_add_u32 v27, s3, v26"]
            side.append(lambda: (a("s_mov_b64 exec, s[66:67]"), a.ds(f"ds_write_b128 v27, {R(CSQ, 4)}", "CQW"), a("s_mov_b64 exec, -1")))
        if s == 18:
            side += [f"v_add_u32 v30, {CSX}, v23"]
            for w, base in ((0, 56), (1, 68), (2, 96)):
                for t in range(3): side.append(lambda w=w, t=t, base=base: a.ds(f"ds_read_b128 {R(base + 4*t, 4)}, v30 offset:{512*w + 64*t}", "CQR"))
        if s == 19:
            side.append(lambda: a.wait(lg="CQR"))
            for x in range(12): side.append(f"v_add_f32 v{56+x}, v{56+x}, v{68+x}")
            for t in range(3): side.append(lambda t=t: a.ds(f"ds_read_b128 {R(68 + 4*t, 4)}, v30 offset:{1536 + 64*t}", "CQR"))
        a.interleave(mf, side, front)
    a.stamp("qend")
    a.wait(vm="POLL1")
    a("s_mov_b32 s78, 0")
    a("L_h1p:")
    a("v_and_b32 v28, 0xfffffff8, v16"); a("v_cmp_ne_u32 vcc, s76, v28")
    a("s_cbranch_vccz L_h1ok")
    a("s_add_u32 s78, s78, 1"); a(f"s_cmp_ge_u32 s78, {POLLMAX}"); a("s_cbranch_scc1 L_h1ok")
    a("buffer_load_dword v16, v17, s[40:43], s56 offen sc1"); a("s_waitcnt vmcnt(0)")
    a("s_branch L_h1p")
    a("L_h1ok:")
    a.stamp("h1ok")
    a.vm = []
    a("v_cmp_ne_u32 vcc, s77, v16"); a("s_and_b64 vcc, vcc, s[88:89]"); a("s_cselect_b32 s79, 0, 1")
    if os.environ.get("FORCESLOW"): a("s_mov_b32 s79, 0")
    P0 = A0
    a("s_lshl_b32 s3, s27, 16"); a(f"s_add_u32 s3, s3, {PART}")
    for r_ in range(16):
        if "p16" in OPT: a.vmem(f"buffer_load_dwordx2 {R(P0 + 4*r_, 2)}, v9, s[40:43], s3 offen sc1", f"P{r_}")
        else: a.vmem(f"buffer_load_dwordx4 {R(P0 + 4*r_, 4)}, v9, s[40:43], s3 offen sc1", f"P{r_}")
        a("s_add_u32 s3, s3, 4096")
    a.bgq += [lambda i=i: w1tail(i) for i in range(11)]
    for x in range(0, 12, 2): a(f"v_pk_add_f32 v[{56+x}:{57+x}], v[{56+x}:{57+x}], v[{96+x}:{97+x}]")
    a.wait(lg="all")
    for x in range(0, 12, 2): a(f"v_pk_add_f32 v[{56+x}:{57+x}], v[{56+x}:{57+x}], v[{68+x}:{69+x}]")
    PQR = 96
    EBG = P("EBG", 2)
    for tt in range(2):
        for t in range(3):
            b_ = QA + (tt*3+t)*4
            for h in range(2):
                a(f"v_pk_mul_f32 v[{TP+2*h}:{TP+2*h+1}], v[{56+4*t+2*h}:{57+4*t+2*h}], v[{MT}:{MT+1}] op_sel:[0,{tt}] op_sel_hi:[1,{tt}]")
            for h in range(2):
                x = b_ + 2*h
                a(f"v_pk_fma_f32 v[{x}:{x+1}], v[{x}:{x+1}], v[{RT}:{RT+1}], v[{TP+2*h}:{TP+2*h+1}] op_sel:[0,{tt},0] op_sel_hi:[1,{tt},1] neg_lo:[0,0,1] neg_hi:[0,0,1]")
            phi4(a, b_, TP)
            for h in range(2):
                d = f"v{PQR + tt*6 + t*2 + h}"
                a(f"v_cvt_pk_bf16_f32 {d}, v{QA + (tt*3+t)*4 + 2*h}, v{QA + (tt*3+t)*4 + 2*h + 1}")
                if t == 2: a(f"v_cndmask_b32 {d}, 0, {d}, s[90:91]")
            a.bg(EBG)
    OSC = SCR
    TA = 56
    for s_ in range(12):
        src = T2R + s_//2
        if s_ & 1: a(f"v_lshrrev_b32 v{TA+s_}, 16, v{src}")
        else: a(f"v_and_b32 v{TA+s_}, 0xffff, v{src}")
        a(f"v_add_u32 v{TA+s_}, {OSC}, v{TA+s_}")
    for r_ in range(16):
        if r_ % 4 == 0: a.wait(vm=f"P{r_+3}")
        if "p16" in OPT:
            b_ = 32 if r_ == 0 else 36
            for e in range(2): a(f"v_accvgpr_read_b32 v{40+e}, {R(P0+4*r_+e)}")
            for e in range(2): a(f"v_lshlrev_b32 v{b_+2*e}, 16, v{40+e}"); a(f"v_and_b32 v{b_+2*e+1}, 0xffff0000, v{40+e}")
        else:
            for e in range(4): a(f"v_accvgpr_read_b32 v{(32 if r_ == 0 else 36)+e}, {R(P0+4*r_+e)}")
        if r_:
            for e in (0, 2): a(f"v_pk_add_f32 v[{32+e}:{33+e}], v[{32+e}:{33+e}], v[{36+e}:{37+e}]")
        if r_ % 4 == 3: a.bg(EBG)
    a("v_cvt_pk_bf16_f32 v18, v32, v33"); a("v_cvt_pk_bf16_f32 v19, v34, v35")
    a("v_cmp_gt_u32 vcc, 210, v0")
    a("v_cndmask_b32 v18, 0, v18, vcc"); a("v_cndmask_b32 v19, 0, v19, vcc")
    a("v_lshlrev_b32 v27, 3, v0"); a(f"v_add_u32 v27, {OSC}, v27")
    a("ds_write_b64 v27, v[18:19]")
    a("s_waitcnt lgkmcnt(0)")
    a("s_barrier")
    a.stamp("b9")
    KF = A0 + 64
    for E in range(4):
        for ta in range(3): a(f"ds_read_b64 {R(KF + 8*E + 2*ta, 2)}, v{TA + 3*E + ta}")
    a("s_mul_i32 s3, s28, 40960"); a("s_mul_i32 s56, s27, 1280"); a("s_add_u32 s3, s3, s56"); a("s_add_u32 s3, s3, s58")
    a("v_lshlrev_b32 v27, 2, v10"); a("v_lshl_add_u32 v27, v11, 3, v27")
    a("v_cndmask_b32 v27, v2, v27, s[90:91]")
    a("s_waitcnt lgkmcnt(0)")
    D = 32
    for tt in range(2):
        for E in (3, 0, 1, 2):
            d = R(D + (tt*4+E)*4, 4)
            a(f"v_mfma_f32_16x16x32_bf16 {d}, {R(KF + 8*E, 4)}, {R(PQR + 6*tt, 4)}, 0")
    for tt in range(2):
        for E in (3, 0, 1, 2):
            d = R(D + (tt*4+E)*4, 4)
            a(f"v_mfma_f32_16x16x16_bf16 {d}, {R(KF + 8*E + 4, 2)}, {R(PQR + 6*tt + 4, 2)}, {d}")
    for tt in range(2):
        z = D + (tt*4+3)*4
        a(f"v_add_f32 v20, s61, v{z}"); a(f"v_add_f32 v21, s61, v{z+1}")
        a("v_rcp_f32 v20, v20"); a("v_rcp_f32 v21, v21")
        a("v_cndmask_b32 v22, v21, v20, s[92:93]"); a("v_cndmask_b32 v28, v21, v20, s[90:91]")
        ob = 64 + 8*tt
        for E, rc in ((0, 22), (1, 28), (2, 21)):
            d = D + (tt*4+E)*4
            for e in range(4): a(f"v_mul_f32 v{d+e}, v{d+e}, v{rc}")
            a(f"v_cvt_pk_bf16_f32 v{ob + 2*E}, v{d}, v{d+1}"); a(f"v_cvt_pk_bf16_f32 v{ob + 2*E + 1}, v{d+2}, v{d+3}")
        a.vmem(f"buffer_store_dwordx4 {R(ob, 4)}, v8, s[40:43], s3 offen{HS}", "ST")
        a.vmem(f"buffer_store_dwordx2 {R(ob + 4, 2)}, v27, s[40:43], s3 offen offset:1024{HS}", "ST")
        a("s_add_u32 s3, s3, 20480")

    def hop(n, before, after_pub, post=0, touch=None, post2=0):
        before()
        a(f"s_add_u32 s59, s58, {G_FL + 128*n}")
        a("s_lshl_b32 s3, s27, 2"); a("s_add_u32 s3, s3, s59")
        a.bg(post)
        a.wait(vm="ST")
        if touch and "notouch" not in OPT: touch()
        a("s_barrier")
        a.stamp(f"hop{n}a")
        a("s_cmp_lg_u32 s28, 0"); a(f"s_cbranch_scc1 L_g{n}np")
        a("s_mov_b64 exec, 1")
        a("s_cmp_eq_u32 s79, 0"); a(f"s_cbranch_scc1 L_g{n}slow")
        a("buffer_store_dword v6, v5, s[40:43], s3 offen")
        a(f"s_branch L_g{n}pd")
        a(f"L_g{n}slow:")
        if FENCE: a("buffer_wbl2 sc1"); a("s_waitcnt vmcnt(0)")
        a("buffer_store_dword v6, v5, s[40:43], s3 offen sc1")
        a(f"L_g{n}pd:")
        a("s_mov_b64 exec, -1")
        a(f"L_g{n}np:")
        after_pub()
        a.bg(post2)
        a("s_cmp_lg_u32 s28, 0"); a(f"s_cbranch_scc1 L_g{n}j")
        a("s_mov_b32 s78, 0")
        a(f"L_g{n}p:")
        a("buffer_load_dword v27, v10, s[40:43], s59 offen sc1")
        a("s_add_u32 s78, s78, 1")
        a("s_waitcnt vmcnt(0)")
        a("v_cmp_ne_u32 vcc, s76, v27")
        a(f"s_cmp_ge_u32 s78, {POLLMAX}"); a(f"s_cbranch_scc1 L_g{n}x")
        a(f"s_cbranch_vccnz L_g{n}p")
        a(f"L_g{n}x:")
        if FENCE:
            a("s_cmp_lg_u32 s79, 0"); a(f"s_cbranch_scc1 L_g{n}j")
            a("buffer_inv sc1"); a("s_waitcnt vmcnt(0)")
        a(f"L_g{n}j:")
        a("s_barrier")
        a.stamp(f"hop{n}b")
    def a_off(NK, goff):
        for m in range(4):
            a(f"s_add_u32 s3, s28, {m}"); a("s_and_b32 s3, s3, 3"); a("s_lshl_b32 s57, s48, 2"); a("s_add_u32 s3, s3, s57")
            a(f"s_mul_i32 s3, s3, {NK}"); a("s_add_u32 s3, s3, s28"); a("s_lshl_b32 s3, s3, 10"); a("s_add_u32 s3, s3, s58"); a(f"s_add_u32 s{80+m}, s3, {goff}")
    def ctouch(lab, nl):
        def f():
            a("s_lshl_b32 s98, s27, 2"); a("s_add_u32 s98, s98, s28"); a(f"s_mul_i32 s98, s98, {128*nl}"); a(f"s_add_u32 s98, s98, {lab}-L_pc")
            a("v_add_u32 v31, s98, v3"); a(f"s_bfm_b64 exec, {nl}, 0")
            a.vmem("global_load_dword v4, v31, s[30:31]"); a("s_mov_b64 exec, -1")
        return f
    if "noct" not in OPT: a.bgq.insert(0, ctouch("L_cS4", 2))
    def flush_wo():
        while any(True for _ in [0]) and a.bgq and len(a.bgq) > 24 + 11: a.bg(1)
    def bef0():
        a_off(20, G_O)
        a("s_mul_i32 s99, s28, 40960"); a("s_mul_i32 s56, s27, 1280"); a("s_add_u32 s99, s99, s56"); a("s_add_u32 s99, s99, s58")
        a("v_mul_u32_u24 v28, 20480, v11"); a("v_lshl_add_u32 v28, v10, 5, v28")
    def tch0():
        a("s_mov_b64 exec, 0x03ff03ff"); a.vmem("buffer_load_dword v4, v28, s[40:43], s99 offen sc1"); a("s_mov_b64 exec, -1")
    hop(0, bef0, lambda: None, post=0, touch=tch0, post2=P("POST0", 10))
    flush_wo()
    ACC = 32 ; FA3 = A0
    for n in range(5):
        for m in range(4):
            a.vmem(f"buffer_load_dwordx4 {R(FA3 + (n*4+m)*4, 4)}, v8, s[40:43], s{80+m} offen sc1", f"A{n}")
            a(f"s_add_u32 s{80+m}, s{80+m}, 4096")
    if "sc1hid" not in OPT: a.bgq.insert(0, hidtouch)
    RED = 102400
    def red_addr():
        for m in range(1, 4):
            a(f"s_add_u32 s3, s28, {m}"); a("s_and_b32 s3, s3, 3"); a("s_mul_i32 s3, s3, 15360"); a(f"s_add_u32 s3, s3, {RED}")
            a(f"v_add_u32 v{16+m}, s3, v8")
        a("s_mul_i32 s3, s28, 15360"); a(f"s_add_u32 s3, s3, {RED}"); a("v_add_u32 v16, s3, v8")
    def init_acc(srcs):
        for t in range(5):
            for e in range(4):
                for q, src0 in enumerate(srcs):
                    src = src0 + 2*t + (e >> 1); d = ACC+4*t+e if q == 0 else 27
                    if e & 1: a(f"v_and_b32 v{d}, 0xffff0000, v{src}")
                    else: a(f"v_lshlrev_b32 v{d}, 16, v{src}")
                    if q: a(f"v_add_f32 v{ACC+4*t+e}, v{ACC+4*t+e}, v27")
    def last_step(mfn):
        order = [(m, t) for m in (1, 2, 3, 0) for t in range(5)]
        for i, (m, t) in enumerate(order):
            a(mfn(m, t))
            if i >= 5:
                m2, t2 = order[i-5]
                a(f"ds_write_b128 v{16+m2}, {R(ACC + (m2*5+t2)*4, 4)} offset:{(m2-1)*5120 + t2*1024}")
    red_addr()
    if "RES" in a.vm: a.wait(vm="RES")
    init_acc([RES])
    S3BG = P("S3BG", 3)
    for n in range(5):
        a.wait(vm=f"A{n}")
        if n == 4:
            last_step(lambda m, t: MF(ACC + (m*5+t)*4, FB3 + (n*5+t)*4, FA3 + (n*4+m)*4, False)); a.bg(S3BG)
        else:
            mf = [MF(ACC + (m*5+t)*4, FB3 + (n*5+t)*4, FA3 + (n*4+m)*4, n == 0 and m > 0) for m in range(4) for t in range(5)]
            a.interleave(mf, [lambda: a.bg(1)]*S3BG)
    a.stamp("s3end")
    a("L_cS4:")
    if "plainhid" in OPT and P("HTP", 0) == 0: hidtouch()
    HF = A0; BF = A0 + 160
    NA = P("NA", 4); BS = 4*max(NA, 7 - NA)
    if NA == 4:
        slots = [156 + 4*i for i in range(16)] + [A0 + 192 + 4*i for i in range(3)] + [A0 + 220 + 4*i for i in range(9)] + [HF + 4*i for i in range(40)] + [BF + 4*i for i in range(2)]
        NEARLY = 28
        arA = [A0 + 168 + 4*i for i in range(6)] + [A0 + 204 + 4*i for i in range(4)]
    elif NA == 7:
        for x in range(14): a(f"v_accvgpr_mov_b32 {R(A0 + 240 + x)}, {R(B1A + x)}")
        B1A = A0 + 240
        slots = [156 + 4*i for i in range(16)] + [A0 + 216 + 4*i for i in range(6)] + [HF + 4*i for i in range(40)] + [BF + 4*i for i in range(8)]
        NEARLY = 22
        arA = [A0 + 192 + 4*i for i in range(6)] + [A0 + 240 + 4*i for i in range(4)]
    else:
        for x in range(14): a(f"v_accvgpr_mov_b32 {R(A0 + 240 + x)}, {R(B1A + x)}")
        B1A = A0 + 240
        slots = [156 + 4*i for i in range(16)] + [A0 + 208 + 4*i for i in range(8)] + [HF + 4*i for i in range(40)] + [BF + 4*i for i in range(6)]
        NEARLY = 24
        arA = [A0 + 184 + 4*i for i in range(6)] + [A0 + 240 + 4*i for i in range(4)]
    def fb(n, t): return slots[n*5 + t]
    a("s_mul_i32 s3, s49, 54"); a("s_add_u32 s3, s3, s28"); a("s_mul_i32 s54, s3, 5120"); a(f"s_add_u32 s54, s54, {W2P}")
    def ldw2(n, t):
        if n == 13 and t == 0:
            a("s_cmp_ge_u32 s28, 2"); a("s_cselect_b32 s98, 0x40000000, 0"); a("s_add_u32 s54, s54, s98")
        a.vmem(f"buffer_load_dwordx4 {R(fb(n, t), 4)}, v{8 if t < 4 else 12}, s[40:43], s54 offen offset:{1024*(t&3)} sc1", f"W2_{n}")
        if t == 4: a("s_add_u32 s54, s54, 20480")
    w2q = [(n, t) for n in range(14) for t in range(5)]
    nw1left = len(a.bgq)
    def w2bg():
        ldw2(*w2q.pop(0))
    a.bgq += [w2bg]*NEARLY
    def reduce_epi(which, BIA=None, nbg=0):
        a.bg(2*nbg)
        a("s_waitcnt lgkmcnt(0)")
        a("s_barrier")
        for t in range(5):
            for m in range(1, 4): a(f"ds_read_b128 {R(ACC + (m*5+t)*4, 4)}, v16 offset:{(m-1)*5120 + t*1024}")
        for t in range(5):
            a(f"s_waitcnt lgkmcnt({12 - 3*t})")
            for e in (0, 2):
                x0 = ACC + 4*t + e
                a(f"v_pk_add_f32 v[{x0+20}:{x0+21}], v[{x0+20}:{x0+21}], v[{x0+40}:{x0+41}]"); a(f"v_pk_add_f32 v[{x0}:{x0+1}], v[{x0}:{x0+1}], v[{x0+60}:{x0+61}]")
            for e in (0, 2):
                x0 = ACC + 4*t + e
                a(f"v_pk_add_f32 v[{x0}:{x0+1}], v[{x0}:{x0+1}], v[{x0+20}:{x0+21}]")
            for h in range(2): a(f"v_cvt_pk_bf16_f32 v{RES+2*t+h}, v{ACC+4*t+2*h}, v{ACC+4*t+2*h+1}")
            if which == 3:
                if t == 1: a.vmem(f"buffer_store_dwordx4 {R(RES, 4)}, v8, s[40:43], s57 offen{HS}")
                if t == 3: a.vmem(f"buffer_store_dwordx4 {R(RES+4, 4)}, v8, s[40:43], s57 offen offset:1024{HS}")
                if t == 4: a.vmem(f"buffer_store_dwordx2 {R(RES+8, 2)}, v13, s[40:43], s57 offen offset:2048{HS}")
    a("s_mul_i32 s57, s50, 20480"); a("s_mul_i32 s3, s49, 2560"); a("s_add_u32 s57, s57, s3"); a("s_add_u32 s57, s57, s58"); a(f"s_add_u32 s57, s57, {G_H}")
    reduce_epi(3, nbg=P("R3BG", 3))
    a(f"v_pk_add_f32 v[28:29], v[{ACC}:{ACC+1}], v[{ACC+2}:{ACC+3}]"); a(f"v_pk_mul_f32 v[30:31], v[{ACC}:{ACC+1}], v[{ACC}:{ACC+1}]"); a(f"v_pk_fma_f32 v[30:31], v[{ACC+2}:{ACC+3}], v[{ACC+2}:{ACC+3}], v[30:31]")
    for x in range(4, 20, 2):
        a(f"v_pk_add_f32 v[28:29], v[28:29], v[{ACC+x}:{ACC+x+1}]"); a(f"v_pk_fma_f32 v[30:31], v[{ACC+x}:{ACC+x+1}], v[{ACC+x}:{ACC+x+1}], v[30:31]")
    a("v_add_f32 v20, v28, v29"); a("v_add_f32 v21, v30, v31")
    def red_g(regs, tmp):
        for r_ in regs:
            a(f"v_mov_b32 {tmp}, {r_}"); a(f"v_permlane32_swap_b32 {r_}, {tmp}"); a(f"v_add_f32 {r_}, {r_}, {tmp}")
            a(f"v_mov_b32 {tmp}, {r_}"); a(f"v_permlane16_swap_b32 {r_}, {tmp}"); a(f"v_add_f32 {r_}, {r_}, {tmp}")
    red_g(["v20", "v21"], "v22")
    a("v_lshlrev_b32 v22, 1, v10")
    a("s_lshl_b32 s57, s50, 10"); a("s_lshl_b32 s3, s49, 7"); a("s_add_u32 s57, s57, s3"); a("s_add_u32 s57, s57, s58"); a(f"s_add_u32 s57, s57, {G_ST}")
    a.vmem(f"buffer_store_dwordx2 v[20:21], v22, s[40:43], s57 offen{HS}", "ST")
    CS = 128; CSL = 144384
    def bef3():
        a("s_mul_i32 s3, s28, 40960"); a("s_add_u32 s3, s3, s58"); a(f"s_add_u32 s80, s3, {G_H}"); a("s_add_u32 s81, s80, 20480")
        a("s_lshl_b32 s82, s28, 11"); a("s_add_u32 s82, s82, s58"); a(f"s_add_u32 s82, s82, {G_ST}")
        a("v_lshlrev_b32 v19, 8, v11"); a("v_lshl_add_u32 v19, v10, 1, v19")
        a("v_add_u32 v16, 57344, v8"); a("v_add_u32 v17, 114688, v8")
        a(f"s_mul_i32 s3, s28, {11*1024}"); a(f"s_add_u32 s3, s3, {96*1024}"); a("v_add_u32 v18, s3, v8")
        for e in range(4):
            a(f"v_add_f32 v{C1R+e}, v{C1R+e}, v{C1R+4+e}"); a(f"v_add_f32 v{C1R+8+e}, v{C1R+8+e}, v{C1R+12+e}")
            a(f"v_add_f32 v{C1R+e}, v{C1R+e}, v{C1R+16+e}"); a(f"v_add_f32 v{C1R+e}, v{C1R+e}, v{C1R+8+e}")
        a("s_lshl_b32 s3, s28, 9"); a(f"s_add_u32 s3, s3, {CSL}"); a("v_add_u32 v29, s3, v26")
    def aft3():
        if "W1" in a.vm: a.wait(vm="W1")
        for i in range(11): a(f"ds_write_b128 v18, {R(W1T + 4*i, 4)} offset:{1024*i}")
        a("s_mov_b64 exec, s[66:67]"); a(f"ds_write_b128 v29, {R(C1R, 4)}"); a("s_mov_b64 exec, -1")
        a("s_waitcnt lgkmcnt(0)")
    left1 = max(0, len(a.bgq) - len([1 for x in a.bgq if x is w2bg]))
    print("w1 left at hop3:", left1, "w2 issued:", 70 - len(w2q), file=sys.stderr)
    def tch1():
        a("s_mul_i32 s99, s50, 20480"); a("s_mul_i32 s98, s49, 2560"); a("s_add_u32 s99, s99, s98"); a("s_add_u32 s99, s99, s58"); a(f"s_add_u32 s99, s99, {G_H}")
        a("s_mov_b64 exec, 0xfffff"); a.vmem("buffer_load_dword v4, v3, s[40:43], s99 offen sc1"); a("s_mov_b64 exec, -1")
    hop(1, bef3, aft3, post=left1, touch=tch1, post2=max(0, P("POST1", 6) - left1))
    def hf(tt, k): return HF + (k*2 + tt)*4
    def ldh(k):
        def one(tt):
            a.vmem(f"buffer_load_dwordx4 {R(hf(tt, k), 4)}, v8, s[40:43], s{80+tt} offen offset:{1024*(k&3)} sc1", f"H{k}")
            if (k & 3) == 3: a(f"s_add_u32 s{80+tt}, s{80+tt}, 4096")
        return [lambda tt=tt: one(tt) for tt in range(2)]
    PRE = P("PRE4", 6)
    for k in range(PRE):
        for f in ldh(k): f()
    for tt in range(2):
        for q in range(2):
            a.vmem(f"buffer_load_dwordx2 {R(88 + 4*tt + 2*q, 2)}, v19, s[40:43], s82 offen offset:{1024*tt + 128*q} sc1", "STAT")
    def breads(ps, k):
        ts = range(NA) if ps == 0 else range(NA, 7)
        return [lambda t=t: a.ds(f"ds_read_b128 {R(BF + (k&1)*BS + 4*(t - ts[0]), 4)}, v{[8, 16, 17][k >> 3]} offset:{(k & 7)*7168 + 1024*t}", f"BR{ps}_{k}") for t in ts]
    for f in breads(0, 0): f()
    vS = [20, 21]; vQ = [24, 25]
    a(f"v_add_u32 v18, {CSL}, v23")
    hq = list(range(PRE, 20))
    B1U = 220
    c1 = -2.0*LOG2E*0.7978845608028654
    c2 = c1*0.044715
    a(f"s_mov_b32 s60, {hx(c1)}"); a(f"s_mov_b32 s61, {hx(c2)}")
    a("s_mul_i32 s72, s28, 110592"); a("s_add_u32 s72, s72, s58"); a(f"s_add_u32 s72, s72, {G_HID}")
    a("s_lshl_b32 s3, s27, 11"); a("s_add_u32 s56, s72, s3"); a("s_add_u32 s57, s56, 55296")
    a("s_lshl_b32 s3, s27, 10"); a("s_add_u32 s70, s72, s3"); a("s_add_u32 s70, s70, 32768"); a("s_add_u32 s71, s70, 55296")
    a("s_lshr_b32 s3, s27, 2"); a("s_sub_u32 s3, s27, s3"); a("s_lshl_b32 s3, s3, 9"); a("s_add_u32 s72, s72, s3"); a(f"s_add_u32 s72, s72, {49152 - 512}")
    a("s_and_b32 s3, s27, 3"); a("s_cselect_b32 s72, s72, 0x40000000"); a("s_add_u32 s73, s72, 55296")
    for k in range(20):
        a.wait(vm=f"H{k}", lg=f"BR0_{k}")
        front = breads(0, k+1) if k < 19 else (breads(1, 0) if NA < 7 else [])
        side = []
        if NA == 7:
            if hq:
                for _ in range(P("HRATE", 2)):
                    if hq: side += ldh(hq.pop(0))
            else:
                side += [w2bg]*max(0, min(P("ABG", 2), len(w2q), NEARLY + 2*k - (70 - len(w2q))))
        elif hq:
            side += ldh(hq.pop(0))
            if not hq and "plainhid" in OPT and P("HTP", 0) == 1: side.append(hidtouch)
        else: side += [lambda: a.bg(1)]*P("ABG", 1)
        if 1 <= k < 8:
            kk = k - 1; tb = 96 if kk % 2 == 0 else 220
            side.append(lambda kk=kk: a.wait(lg=f"CG{kk}"))
            for e in range(4):
                side += [f"v_add_f32 v{CS+4*kk+e}, v{CS+4*kk+e}, v{tb+e}", f"v_add_f32 v{tb+4+e}, v{tb+4+e}, v{tb+8+e}", f"v_add_f32 v{CS+4*kk+e}, v{CS+4*kk+e}, v{tb+4+e}"]
        if k < 7:
            tb = 96 if k % 2 == 0 else 220
            for w in range(4): front.append(lambda w=w, k=k, tb=tb: a.ds(f"ds_read_b128 {R((CS + 4*k) if w == 0 else (tb - 4 + 4*w), 4)}, v18 offset:{512*w + 64*k}", f"CG{k}"))
        if k == PRE + 2:
            for tt in range(2):
                side.append(f"v_add_f32 v{vS[tt]}, v{88+4*tt}, v{90+4*tt}"); side.append(f"v_add_f32 v{vQ[tt]}, v{89+4*tt}, v{91+4*tt}")
            side.append(lambda: red_g([f"v{x}" for x in vS + vQ], "v22"))
        if k == PRE + 3:
            for tt in range(2):
                s_, q_ = f"v{vS[tt]}", f"v{vQ[tt]}"
                side += [f"v_mul_f32 {s_}, s63, {s_}", f"v_mul_f32 {q_}, s63, {q_}", f"v_fma_f32 {q_}, -{s_}, {s_}, {q_}", f"v_max_f32 {q_}, 0, {q_}",
                         f"v_add_f32 v22, s64, {q_}", f"v_fma_f32 {q_}, v22, s64, {q_}", f"v_rsq_f32 {q_}, {q_}", f"v_mul_f32 {s_}, {s_}, {q_}"]
            side += ["v_mov_b32 v252, s60", "v_mov_b32 v253, s60", "s_mov_b32 s96, s61", "s_mov_b32 s97, s61"]
        if k >= 12:
            x = 2*(k - 12)
            for y in (x, x + 1):
                if y < 14:
                    side += [f"v_accvgpr_read_b32 v27, {R(B1A + y)}", f"v_lshlrev_b32 v{B1U+2*y}, 16, v27", f"v_and_b32 v{B1U+2*y+1}, 0xffff0000, v27"]
        mf = [MF(ACC + (tt*7+t)*4, BF + (k&1)*BS + 4*t, hf(tt, k), k == 0) for t in range(NA) for tt in range(2)]
        a.interleave(mf, side, front)
    a.stamp("s4A")
    if "noct" not in OPT: ctouch("L_cS5", 1)()
    PK = 88
    def gelu(tt, t, pk=False):
        L = []
        if pk:
            b_ = ACC + (tt*7+t)*4
            pr = lambda x: f"v[{x}:{x+1}]"
            for h in (0, 2): L.append(f"v_pk_fma_f32 {pr(248+h)}, v[20:21], {pr(CS+4*t+h)}, {pr(B1U+4*t+h)} op_sel:[{tt},0,0] op_sel_hi:[{tt},1,1] neg_lo:[1,0,0] neg_hi:[1,0,0]")
            for h in (0, 2): L.append(f"v_pk_fma_f32 {pr(b_+h)}, {pr(b_+h)}, v[24:25], {pr(248+h)} op_sel:[0,{tt},0] op_sel_hi:[1,{tt},1]")
            for h in (0, 2): L.append(f"v_pk_mul_f32 {pr(248+h)}, {pr(b_+h)}, {pr(b_+h)}")
            for h in (0, 2): L.append(f"v_pk_fma_f32 {pr(248+h)}, {pr(248+h)}, s[96:97], v[252:253]")
            for h in (0, 2): L.append(f"v_pk_mul_f32 {pr(248+h)}, {pr(248+h)}, {pr(b_+h)}")
            for e in range(4): L.append(f"v_exp_f32 v{248+e}, v{248+e}")
            for h in (0, 2): L.append(f"v_pk_add_f32 {pr(248+h)}, {pr(248+h)}, 1.0 op_sel_hi:[1,0]")
            for e in range(4): L.append(f"v_rcp_f32 v{248+e}, v{248+e}")
            for h in (0, 2): L.append(f"v_pk_mul_f32 {pr(b_+h)}, {pr(b_+h)}, {pr(248+h)}")
        else:
            for e in range(4):
                v_ = f"v{ACC + (tt*7+t)*4 + e}"; ta = f"v{248+e}"
                L += [f"v_fma_f32 {ta}, -v{vS[tt]}, v{CS+4*t+e}, v{B1U+4*t+e}", f"v_fma_f32 {v_}, {v_}, v{vQ[tt]}, {ta}", f"v_mul_f32 {ta}, {v_}, {v_}",
                      f"v_fma_f32 {ta}, {ta}, s61, v252", f"v_mul_f32 {ta}, {ta}, {v_}", f"v_exp_f32 {ta}, {ta}"]
            for e in range(4):
                ta = f"v{248+e}"; L += [f"v_add_f32 {ta}, 1.0, {ta}"]
            for e in range(4):
                ta = f"v{248+e}"; L += [f"v_rcp_f32 {ta}, {ta}"]
            for e in range(4):
                v_ = f"v{ACC + (tt*7+t)*4 + e}"; L.append(f"v_mul_f32 {v_}, {v_}, v{248+e}")
        for h in range(2):
            x0 = ACC + (tt*7+t)*4 + 2*h
            L.append(f"v_cvt_pk_bf16_f32 v{PK + tt*14 + 2*t + h}, v{x0}, v{x0+1}")
        if t in (1, 3): L.append(lambda: a.vmem(f"buffer_store_dwordx4 {R(PK + tt*14 + 2*(t-1), 4)}, v8, s[40:43], s{56+tt} offen offset:{512*(t-1)}{HS2}", "ST01"))
        if t == 5: L.append(lambda: a.vmem(f"buffer_store_dwordx4 {R(PK + tt*14 + 8, 4)}, v8, s[40:43], s{70+tt} offen{HS2}", "ST"))
        if t == 6: L.append(lambda: a.vmem(f"buffer_store_dwordx2 {R(PK + tt*14 + 12, 2)}, v13, s[40:43], s{72+tt} offen{HS2}", "ST"))
        return L
    gl = []
    for p in range(NA//2 if NA < 7 else 0):
        for tt in range(2): gl += gelu(tt, 2*p, "pkB" in OPT) + gelu(tt, 2*p+1, "pkB" in OPT)
    a.bgq = []
    W2RATE = P("W2RATE", 2)
    for k in range(20 if NA < 7 else 0):
        a.wait(lg=f"BR1_{k}")
        front = breads(1, k+1) if k < 19 else []
        GEND = P("GEND", 14)
        q = ((len(gl) + GEND - 1 - k)//(GEND - k) if k < GEND else len(gl)) if k > 0 else 0
        side = gl[:q]; gl = gl[q:]
        nin = max(0, min(W2RATE, len(w2q), NEARLY + 2*k - (70 - len(w2q))))
        for i_ in range(nin): side.insert((i_ + 1)*len(side)//(nin + 1), w2bg)
        mf = [MF(ACC + (tt*7+t)*4, BF + (k&1)*BS + 4*(t-NA), hf(tt, k), k == 0) for t in range(NA, 7) for tt in range(2)]
        a.interleave(mf, side, front)
    a.stamp("s4B")
    a("L_cS5:")
    W2EPI = P("W2EPI", 1)
    BIA = 126
    srd(a, 32, 20, 2621440); srd(a, 36, 18, 1280)
    s57save = None
    for m in range(4):
        a(f"s_add_u32 s3, s28, {m}"); a("s_and_b32 s3, s3, 3"); a("s_lshl_b32 s99, s48, 2"); a("s_add_u32 s3, s3, s99")
        a(f"s_mul_i32 s3, s3, 54"); a("s_add_u32 s3, s3, s28"); a("s_lshl_b32 s3, s3, 10"); a("s_add_u32 s3, s3, s58"); a(f"s_add_u32 s{80+m}, s3, {G_HID}")
    a("v_lshlrev_b32 v28, 3, v11"); a("s_mul_i32 s3, s49, 160")
    a.vmem(f"buffer_load_dwordx4 {R(BIA, 4)}, v23, s[36:39], s3 offen")
    a.vmem(f"buffer_load_dwordx4 {R(BIA+4, 4)}, v23, s[36:39], s3 offen offset:64")
    a.vmem(f"buffer_load_dwordx2 {R(BIA+8, 2)}, v28, s[36:39], s3 offen offset:128", "BIA")
    def pub(n):
        a("s_barrier")
        a("s_cmp_lg_u32 s28, 0"); a(f"s_cbranch_scc1 L_p{n}np")
        a("s_lshl_b32 s3, s27, 2"); a("s_add_u32 s3, s3, s58"); a(f"s_add_u32 s3, s3, {G_FL + 128*n}")
        a("s_mov_b64 exec, 1")
        a("s_cmp_eq_u32 s79, 0"); a(f"s_cbranch_scc1 L_p{n}slow")
        a("buffer_store_dword v6, v5, s[40:43], s3 offen")
        a(f"s_branch L_p{n}pd")
        a(f"L_p{n}slow:")
        a("buffer_store_dword v6, v5, s[40:43], s3 offen sc1")
        a(f"L_p{n}pd:")
        a("s_mov_b64 exec, -1")
        a(f"L_p{n}np:")
    def pld(n):
        a(f"s_add_u32 s59, s58, {G_FL + 128*n}")
        a.vmem("buffer_load_dword v31, v10, s[40:43], s59 offen sc1", f"PL{n}")
    def pchk(n):
        a.wait(vm=f"PL{n}")
        a("s_mov_b32 s78, 0")
        a(f"L_c{n}:")
        a("v_cmp_ne_u32 vcc, s76, v31")
        a(f"s_cbranch_vccz L_c{n}ok")
        a("buffer_load_dword v31, v10, s[40:43], s59 offen sc1"); a("s_waitcnt vmcnt(0)")
        a("s_add_u32 s78, s78, 1"); a(f"s_cmp_lt_u32 s78, {POLLMAX}"); a(f"s_cbranch_scc1 L_c{n}")
        a(f"L_c{n}ok:")
    seq = [(0, 4), (0, 5), (1, 4), (1, 5), (0, 6), (1, 6)]
    for i_, (tt, t) in enumerate(seq):
        if i_ == P("EP", 0): a.wait(vm="ST01"); pub(2)
        if i_ == P("PP", 4): pld(2)
        L = gelu(tt, t, True)
        for j_, x in enumerate(L):
            a.run(x)
            if i_ < P("W2STOP", 4) and j_ in (6, 16)[:W2EPI] and w2q: ldw2(*w2q.pop(0))
    a.stamp("tail")
    print("w2 left for S5:", len(w2q), file=sys.stderr)
    red_addr(); a.wait(vm="BIA"); init_acc([RES, BIA])
    pchk(2)
    a.stamp("FEok")
    ar = [136 + 4*i for i in range(5)] + [220 + 4*i for i in range(9)] + arA
    NR = 6
    def fa(n, m): return ar[(n % NR)*4 + m]
    def lda5(n):
        def one(m):
            if n == 13 and m == 0:
                a("s_cmp_ge_u32 s28, 2"); a("s_cselect_b32 s3, 0x40000000, 0")
                for q in range(4): a(f"s_add_u32 s{80+q}, s{80+q}, s3")
            a.vmem(f"buffer_load_dwordx4 {R(fa(n, m), 4)}, v8, s[40:43], s{80+m} offen sc1", f"A5_{n}")
            a(f"s_add_u32 s{80+m}, s{80+m}, 4096")
        return [lambda m=m: one(m) for m in range(4)]
    PRE5 = P("PRE5", 3)
    def need_w2(n):
        L = []
        while w2q and w2q[0][0] <= n:
            x = w2q.pop(0); L.append(lambda x=x: ldw2(*x))
        return L
    for n in range(PRE5):
        for f in need_w2(n) + lda5(n): f()
    a.wait(vm="ST"); pub(3)
    nxt = PRE5
    PL = P("PL", 2); PC = P("PC", 4)
    for n in range(14):
        a.wait(vm=f"A5_{n}")
        if n == PC: pchk(3)
        side = []; cnt = 0
        if n == PL: side.append(lambda: pld(3))
        while nxt < 14 and nxt <= n + NR - 1 and cnt < 2 and (nxt < 8 or n >= PC):
            side += need_w2(nxt) + lda5(nxt); nxt += 1; cnt += 1
        if cnt == 0 and w2q:
            for _ in range(min(4, len(w2q))):
                x = w2q.pop(0); side.append(lambda x=x: ldw2(*x))
        if n == 13:
            last_step(lambda m, t: MF(ACC + (m*5+t)*4, fb(n, t), fa(n, m), False))
        else:
            mf = [MF(ACC + (m*5+t)*4, fb(n, t), fa(n, m), n == 0 and m > 0) for m in range(4) for t in range(5)]
            a.interleave(mf, side)
    a.stamp("s5end")
    reduce_epi(5, BIA)
    a(f"buffer_store_dwordx4 {R(RES, 4)}, v14, s[32:35], s51 offen")
    a(f"buffer_store_dwordx4 {R(RES+4, 4)}, v14, s[32:35], s51 offen offset:64")
    a(f"buffer_store_dwordx2 {R(RES+8, 2)}, v15, s[32:35], s51 offen offset:128")
    a("s_or_b32 s3, s2, s28"); a("s_cmp_lg_u32 s3, 0"); a("s_cbranch_scc1 L_notagclr")
    a("global_store_dword v5, v5, s[22:23] sc1")
    a("L_notagclr:")
    a.stamp("stored")
    if STAMP:
        a("s_waitcnt vmcnt(0)")
        a.stamp("end")
        a("s_memrealtime s[100:101]"); a("s_waitcnt lgkmcnt(0)"); a("v_writelane_b32 v7, s100, 31")
        a("v_writelane_b32 v7, s79, 30")
        a("s_lshl_b32 s3, s2, 2"); a("s_add_u32 s3, s3, s28"); a("s_lshl_b32 s3, s3, 8"); a(f"s_add_u32 s3, s3, {STB}")
        a("v_lshlrev_b32 v27, 2, v1"); a("v_add_u32 v27, s3, v27")
        a("global_store_dword v27, v7, s[24:25]")
        if os.environ.get("DELAY"):
            di = os.environ["DELAY"]
            a(f"s_cmp_lg_u32 s2, {P('DWG', 8)}"); a("s_cbranch_scc1 L_end"); a("s_cmp_lg_u32 s28, 0"); a("s_cbranch_scc1 L_end")
            clk = "s_memrealtime" if di == "rt" else "s_memtime"
            a(f"{clk} s[100:101]"); a("s_waitcnt lgkmcnt(0)")
            if di == "rt":
                a("s_sub_u32 s3, s100, s76")
            else:
                a(f"v_readlane_b32 s3, v7, {di}"); a("v_readlane_b32 s56, v7, 0"); a("s_nop 3"); a("s_sub_u32 s3, s3, s56")
            a("s_lshl_b32 s3, s3, 2"); a("s_min_u32 s3, s3, 0x100000"); a("s_mov_b32 s57, s100")
            a("L_dly:")
            a(f"{clk} s[100:101]"); a("s_waitcnt lgkmcnt(0)"); a("s_sub_u32 s56, s100, s57"); a("s_cmp_lt_u32 s56, s3"); a("s_cbranch_scc1 L_dly")
        a.a.raw("; STAMPS " + " ".join(a.names))
    a("L_end:")
    a("s_endpgm")
    return a.a

def main(out):
    hdr = open("sequential_preLN__linear_attn_block__mixer_channel_mlp__prompt.s.ref").read().split("\n")
    hdr = [l for l in hdr if l.startswith(";") and "@launch" not in l]
    hdr.append("; @launch grid=(256,1,1) block=(256,1,1) lds=163840")
    a = gen()
    pre = '.amdgcn_target "amdgcn-amd-amdhsa--gfx950"\n.text\n'
    T1, T2 = build_tables()
    a.raw(".p2align 6\nT1_tab:")
    a.raw(".short " + ",".join(map(str, T1)))
    a.raw("T2_tab:")
    for row in T2: a.raw(".short " + ",".join(map(str, row)))
    a.raw(".fill 2048, 4, 0")
    a.raw('.section .rodata,"a"\n.p2align 6')
    a.raw(f""".amdhsa_kernel {NAME}
  .amdhsa_next_free_vgpr 512
  .amdhsa_next_free_sgpr 102
  .amdhsa_accum_offset 256
  .amdhsa_group_segment_fixed_size 0
  .amdhsa_kernarg_size 88
  .amdhsa_user_sgpr_count 2
  .amdhsa_user_sgpr_kernarg_segment_ptr 1
  .amdhsa_system_sgpr_workgroup_id_x 1
.end_amdhsa_kernel""")
    open(out, "w").write("\n".join(hdr) + "\n" + pre + a.finish())

if __name__ == "__main__":
    main(sys.argv[1])
```
